```python
import torch

def _softmax(x, axis=-1):
    return torch.softmax(x, dim=axis)
def _gelu(x):
    return torch.nn.functional.gelu(x, approximate="tanh")
def _silu(x):
    return torch.nn.functional.silu(x)
def _sigmoid(x):
    return torch.sigmoid(x)
def _layernorm(x, axis=-1, eps=1e-5):
    m = x.mean(dim=axis, keepdim=True)
    v = x.var(dim=axis, keepdim=True, unbiased=False)
    return (x - m) / torch.sqrt(v + eps)
def _scatter_add(tgt, idx, src, axis=0):
    return tgt.clone().index_add_(axis, idx, src)
def _segment_sum(src, seg, n):
    out = torch.zeros((n,) + src.shape[1:], dtype=src.dtype)
    return out.index_add_(0, seg, src)
def _pad(x, pw):
    flat = tuple(v for pair in reversed(pw) for v in pair)
    return torch.nn.functional.pad(x, flat)

kernel_name = 'gated_mix__mha_block__dense_activation_squared_relu__prompt'

def setup_inputs():

    _w = (lambda a: (lambda t: t.to(torch.bfloat16) if t.is_floating_point() else t)(torch.as_tensor(a)))
    def _A_setup():
        B, S, D, H = 1, 2048, 512, 32
        return {
            "x": _w((lambda *s: torch.randn(*s, dtype=torch.bfloat16) * 0.05)(B, S, D)),
            "wqkv": _w((lambda *s: torch.randn(*s, dtype=torch.bfloat16) * 0.8)(D, 3 * D)),
            "wo": _w((lambda *s: torch.randn(*s, dtype=torch.bfloat16) * 0.1)(D, D)),
        }
    _A_in = _A_setup()

    def _B_setup():
        B, S, D, F = 1, 2048, 512, 1376
        return {
            "x": _w((lambda *s: torch.randn(*s, dtype=torch.bfloat16) * 0.05)(B, S, D)),
            "w1": _w((lambda *s: torch.randn(*s, dtype=torch.bfloat16) * 0.1)(D, F)),
            "b1": _w((lambda *s: torch.randn(*s, dtype=torch.bfloat16) * 0.1)(F)),
            "w2": _w((lambda *s: torch.randn(*s, dtype=torch.bfloat16) * 0.1)(F, D)),
            "b2": _w((lambda *s: torch.randn(*s, dtype=torch.bfloat16) * 0.05)(D)),
        }
    _B_in = _B_setup()

    return {
        "A_x": _A_in["x"],
        "A_wqkv": _A_in["wqkv"],
        "A_wo": _A_in["wo"],
        "B_x": _B_in["x"],
        "B_w1": _B_in["w1"],
        "B_b1": _B_in["b1"],
        "B_w2": _B_in["w2"],
        "B_b2": _B_in["b2"],
        "gate_w": _w((lambda *s: torch.randn(*s, dtype=torch.bfloat16) * 0.05)(512) * 16.0),
    }

def reference(A_x, A_wqkv, A_wo, B_x, B_w1, B_b1, B_w2, B_b2, gate_w):
    def _A_ref(x, wqkv, wo):
        B, S, D = x.shape
        H = 32
        Dh = D // H
        qkv = (lambda x, *d: x.permute(*d))((x @ wqkv).reshape(B, S, 3, H, Dh), 2, 0, 3, 1, 4)
        q, k, v = qkv[0], qkv[1], qkv[2]
        scores = torch.einsum("bhqd,bhkd->bhqk", q, k) * (Dh ** -0.5)
        p = _softmax(scores, axis=-1)
        o = torch.einsum("bhqk,bhkd->bhqd", p, v)
        return (lambda x, *d: x.permute(*d))(o, 0, 2, 1, 3).reshape(B, S, D) @ wo

    def _B_ref(x, w1, b1, w2, b2):
        h = torch.einsum("bsd,df->bsf", x, w1) + b1
        zero = torch.zeros_like(h)
        r = torch.where(h > zero, h, zero)
        h = r * r
        out = torch.einsum("bsf,fd->bsd", h, w2) + b2
        return out

    x = A_x
    g = _sigmoid((x * gate_w).sum(-1, keepdims=True))
    a = _A_ref(x, A_wqkv, A_wo)
    b = _B_ref(x, B_w1, B_b1, B_w2, B_b2)
    return g * a + (1 - g) * b
```

```python
import re

class Asm:
    def __init__(self):
        self.lines = []
        self._pfl = None
    def I(self, s):
        for l in s.strip("\n").split("\n"):
            l = l.strip()
            if l:
                self.lines.append("  " + l)
    def L(self, name):
        self.lines.append(name + ":")
    def C(self, s):
        self.lines.append("  ; " + s)
    def raw(self, s):
        self.lines.append(s)
    def text(self):
        return "\n".join(self.lines) + "\n"

def vr(a, n=1):
    return f"v{a}" if n == 1 else f"v[{a}:{a+n-1}]"
def sr(a, n=1):
    return f"s{a}" if n == 1 else f"s[{a}:{a+n-1}]"

_reg = re.compile(r"^(v|s|a)(\d+)$")
_rng = re.compile(r"^(v|s|a)\[(\d+):(\d+)\]$")
def regs_of(tok):
    tok = tok.strip()
    neg = tok.lstrip("-")
    if neg.startswith("abs(") or neg.startswith("|"):
        neg = neg.replace("abs(", "").replace(")", "").replace("|", "")
    tok = neg
    m = _reg.match(tok)
    if m: return {(m.group(1), int(m.group(2)))}
    m = _rng.match(tok)
    if m: return {(m.group(1), i) for i in range(int(m.group(2)), int(m.group(3)) + 1)}
    if tok == "vcc": return {("s", 106), ("s", 107)}
    if tok == "vcc_lo": return {("s", 106)}
    if tok == "vcc_hi": return {("s", 107)}
    if tok == "exec": return {("s", 126), ("s", 127)}
    if tok == "exec_lo": return {("s", 126)}
    if tok == "exec_hi": return {("s", 127)}
    if tok == "m0": return {("s", 124)}
    return set()

def split_ops(s):
    out, depth, cur = [], 0, ""
    for ch in s:
        if ch in "[(": depth += 1
        if ch in "])": depth -= 1
        if ch == "," and depth == 0:
            out.append(cur.strip()); cur = ""
        else:
            cur += ch
    if cur.strip(): out.append(cur.strip())
    return out

TRANS = ("v_exp_f32", "v_log_f32", "v_rcp_f32", "v_rsq_f32", "v_sqrt_f32", "v_sin_f32", "v_cos_f32", "v_exp_f16", "v_rcp_iflag_f32")
class Ins:
    __slots__ = ("txt", "mn", "kind", "w", "r", "a", "b", "c", "passes", "states", "mods", "lds_dma", "store_wide", "dpp")
def parse(line):
    t = line.split(";")[0].strip()
    if not t or t.endswith(":") or t.startswith("."):
        return None
    parts = t.split(None, 1)
    mn = parts[0]
    rest = parts[1] if len(parts) > 1 else ""
    ops = split_ops(rest)
    mods = ""
    if ops:
        last = ops[-1].split()
        if len(last) > 1:
            ops[-1] = last[0]
            mods = " ".join(last[1:])
    i = Ins(); i.txt = t; i.mn = mn; i.mods = mods; i.w = set(); i.r = set(); i.a = i.b = i.c = set()
    i.passes = 0; i.states = 1; i.lds_dma = False; i.store_wide = False; i.dpp = False
    base = re.sub(r"_(e32|e64|dpp|sdwa)$", "", mn)
    R = [regs_of(o) for o in ops]
    if mn == "s_nop":
        i.kind = "nop"; i.states = int(ops[0], 0) + 1
    elif mn.startswith("v_mfma"):
        i.kind = "mfma"; i.w = R[0]; i.a, i.b, i.c = R[1], R[2], R[3]; i.r = R[1] | R[2] | R[3]
        i.passes = 8 if ("32x32x16" in mn or "32x32x8" in mn) else 4
    elif mn.startswith("v_"):
        i.kind = "trans" if base in TRANS else "valu"
        i.dpp = ("row_" in mods or "quad_perm" in mods or mn.endswith("_dpp"))
        if base.startswith("v_cmp"):
            i.w = R[0]; i.r = set().union(*R[1:]) if len(R) > 1 else set()
            if base.startswith("v_cmpx"): i.w = i.w | regs_of("exec")
        elif base in ("v_readfirstlane_b32", "v_readlane_b32"):
            i.w = R[0]; i.r = set().union(*R[1:])
        elif base.startswith("v_permlane") and "swap" in base:
            i.w = R[0] | R[1]; i.r = R[0] | R[1]
        elif base in ("v_add_co_u32", "v_sub_co_u32", "v_subrev_co_u32"):
            i.w = R[0] | R[1]; i.r = set().union(*R[2:])
        elif base in ("v_addc_co_u32", "v_subb_co_u32"):
            i.w = R[0] | R[1]; i.r = set().union(*R[2:])
        else:
            i.w = R[0]; i.r = set().union(*R[1:]) if len(R) > 1 else set()
            if base in ("v_fmac_f32", "v_dot2c_f32_bf16", "v_mac_f32", "v_pk_fmac_f16", "v_writelane_b32") or "UNUSED_PRESERVE" in mods or i.dpp:
                i.r = i.r | R[0]
            if base == "v_cndmask_b32" and len(ops) == 3:
                i.r = i.r | regs_of("vcc")
    elif mn.startswith("buffer_") or mn.startswith("global_"):
        i.kind = "vmem"
        allm = rest
        if " lds" in (" " + mods + " ") and mn.startswith("buffer_load"):
            i.lds_dma = True; i.r = set().union(*R) | regs_of("m0")
        elif "load" in mn:
            i.w = R[0]; i.r = set().union(*R[1:])
        elif "atomic" in mn:
            i.r = set().union(*R)
            if "sc0" in mods: i.w = R[0] if mn.startswith("buffer_") else R[0]
        elif "store" in mn:
            i.r = set().union(*R)
            if "x4" in mn or "x3" in mn: i.store_wide = True
            i.a = R[0] if mn.startswith("buffer_") else R[1]
        else:
            i.r = set().union(*R) if R else set()
    elif mn.startswith("ds_"):
        i.kind = "ds"
        if mn.startswith("ds_read") or "rtn" in mn or mn.startswith("ds_bpermute") or mn.startswith("ds_swizzle") or mn.startswith("ds_permute"):
            i.w = R[0]; i.r = set().union(*R[1:])
        else:
            i.r = set().union(*R)
    elif mn.startswith("s_"):
        i.kind = "salu"
        if mn in ("s_waitcnt", "s_barrier", "s_endpgm", "s_setprio", "s_sleep", "s_branch") or mn.startswith("s_cbranch"):
            i.kind = "ctl"
        elif mn.startswith("s_cmp") or mn.startswith("s_bitcmp"):
            i.r = set().union(*R)
        elif mn.startswith("s_load") or mn.startswith("s_buffer_load") or mn in ("s_memtime", "s_memrealtime"):
            i.kind = "smem"; i.w = R[0]; i.r = set().union(*R[1:]) if len(R) > 1 else set()
        else:
            i.w = R[0]; i.r = set().union(*R[1:]) if len(R) > 1 else set()
            if "saveexec" in mn: i.w = i.w | regs_of("exec")
    else:
        raise ValueError("unknown instr " + t)
    i.txt = t
    return i

def isv(rs): return {r for r in rs if r[0] in "va"}
def iss(rs): return {r for r in rs if r[0] == "s"}

def check_linear(lines, name="", waits=True):
    ins = [x for x in (parse(l) for l in lines) if x is not None]
    probs = []
    n = len(ins)
    def need(j, k, states, why):
        gap = sum(ins[t].states for t in range(j + 1, k))
        if gap < states:
            probs.append(f"{name}: {why}: need {states} have {gap}: [{ins[j].txt}] -> [{ins[k].txt}]")
    for k in range(n):
        c = ins[k]
        gap = 0
        for j in range(k - 1, max(-1, k - 24), -1):
            p = ins[j]
            if gap >= 20: break
            pv_w = isv(p.w)
            if p.kind in ("valu", "trans"):
                if c.kind == "mfma" and pv_w & c.r: need(j, k, 2, "VALU->MFMA operand")
                if p.kind == "trans" and c.kind in ("valu", "mfma") and pv_w & c.r: need(j, k, 1, "trans->VALU")
                if c.mn.startswith("v_read") and pv_w & c.r: need(j, k, 1, "VALU->readlane")
                if c.mn.startswith("v_permlane") and pv_w & c.r: need(j, k, 2, "VALU->permlane")
                if c.dpp and pv_w & c.r: need(j, k, 2, "VALU->DPP")
                if p.mn.startswith("v_dot") and c.mn != p.mn and c.kind in ("valu", "trans", "mfma", "vmem", "ds") and pv_w & (c.r | c.w): need(j, k, 3, "DOT->other")
                ps = iss(p.w)
                if ps:
                    if c.kind == "vmem" and ps & c.r: need(j, k, 5, "VALU sgpr->VMEM")
                    if c.kind in ("valu", "trans") and ps & iss(c.r): need(j, k, 2, "VALU sgpr->VALU const")
                    if c.kind == "salu" and ps & iss(c.r): need(j, k, 1, "VALU sgpr->SALU (cautious)")
                    if (ps & regs_of("exec")) and c.kind == "mfma": need(j, k, 4, "VALU exec->MFMA")
            if p.kind == "mfma":
                P = p.passes
                d = p.w
                if c.kind == "mfma":
                    if d & (c.a | c.b): need(j, k, {4: 8, 8: 12}[P], "MFMA D->MFMA A/B")
                    if d & c.c and not (c.c == d and c.passes == P): need(j, k, {4: 6, 8: 10}[P], "MFMA D->MFMA C overlap")
                    if d & c.w and not (c.c == d or c.w == d): pass
                elif c.kind in ("valu", "trans"):
                    if d & (c.r | c.w): need(j, k, {4: 8, 8: 12}[P], "MFMA D->VALU")
                    if p.c & isv(c.w) and not (d & c.w): need(j, k, {4: 3, 8: 7}[P], "MFMA C WAR VALU")
                elif c.kind in ("vmem", "ds"):
                    if d & (c.r | c.w): need(j, k, {4: 8, 8: 12}[P], "MFMA D->VMEM/DS")
            if p.kind == "salu" and ("s", 124) in p.w and c.lds_dma: need(j, k, 1, "M0->LDS DMA")
            if p.kind == "vmem" and p.store_wide and c.kind in ("valu", "trans") and (p.a & c.w): need(j, k, 2, "store data WAR")
            gap += p.states
    if waits:
        vq, lq = [], []
        for k, c in enumerate(ins):
            if c.mn == "s_waitcnt":
                m = re.search(r"vmcnt\((\d+)\)", c.txt)
                if m:
                    N = int(m.group(1))
                    while len(vq) > N: vq.pop(0)
                m = re.search(r"lgkmcnt\((\d+)\)", c.txt)
                if m:
                    N = int(m.group(1))
                    if any(x[2] == "smem" for x in lq) and N > 0:
                        pass
                    else:
                        while len(lq) > N: lq.pop(0)
                continue
            if c.mn in ("s_endpgm", "s_branch"):
                vq, lq = [], []
                continue
            touch = c.r | c.w
            for q, nm in ((vq, "vmcnt"), (lq, "lgkmcnt")):
                for (d, t, kind) in q:
                    if c.kind == "vmem" and nm == "vmcnt" and not (d & c.r):
                        continue
                    if c.kind == "ds" and nm == "lgkmcnt" and not (d & c.r):
                        continue
                    if d & touch:
                        probs.append(f"{name}: use before {nm} wait: [{t}] -> [{c.txt}]")
            if c.kind == "vmem":
                vq.append((c.w, c.txt, "vmem"))
                if len(vq) > 63: probs.append(f"{name}: vmcnt overflow at {c.txt}")
            elif c.kind == "ds":
                lq.append((c.w, c.txt, "ds"))
            elif c.kind == "smem":
                lq.append((c.w, c.txt, "smem"))
    return probs
```

```python
import sys, struct
from asmlib import *

NAME = "gated_mix__mha_block__dense_activation_squared_relu__prompt"
MB = 1 << 20
QF, KF, VF, HF, GO, OF, BP = 0, 2*MB, 4*MB, 6*MB, 12*MB, 13*MB, 16*MB
HF_SIZE = 86 * 65536
QSCALE = 0.25 * 1.4426950408889634
def f2u(x): return struct.unpack("<I", struct.pack("<f", x))[0]

def srd(a, dst, base, size):
    a.I(f"s_mov_b32 s{dst}, s{base}")
    a.I(f"s_mov_b32 s{dst+1}, s{base+1}")
    a.I(f"s_mov_b32 s{dst+2}, {size}")
    a.I(f"s_mov_b32 s{dst+3}, 0x20000")

def srd_off(a, dst, base, off, size):
    a.I(f"s_add_u32 s{dst}, s{base}, {off}")
    a.I(f"s_addc_u32 s{dst+1}, s{base+1}, 0")
    a.I(f"s_mov_b32 s{dst+2}, {size}")
    a.I(f"s_mov_b32 s{dst+3}, 0x20000")

def MF(d, A, B, c=None):
    cc = "0" if c is None else vr(c, 16)
    return f"v_mfma_f32_32x32x16_bf16 {vr(d,16)}, {vr(A,4)}, {vr(B,4)}, {cc}"

def kernel_head(a, K):
    a.raw(f".globl {K}\n.p2align 8\n.type {K},@function\n{K}:")

def desc(K, vgpr, sgpr=96):
    vg = (vgpr + 7) // 8 * 8
    return f""".amdhsa_kernel {K}
  .amdhsa_next_free_vgpr {vg}
  .amdhsa_next_free_sgpr {sgpr}
  .amdhsa_accum_offset {vg}
  .amdhsa_group_segment_fixed_size 0
  .amdhsa_kernarg_size 96
  .amdhsa_user_sgpr_count 2
  .amdhsa_user_sgpr_kernarg_segment_ptr 1
  .amdhsa_system_sgpr_workgroup_id_x 1
.end_amdhsa_kernel
"""

def tr_lane_addr(a, dst, lane, tmp, tmp2, hrow_shift_rows):
    a.I(f"v_bfe_u32 v{tmp}, v{lane}, 2, 2")
    a.I(f"v_lshrrev_b32 v{tmp2}, 5, v{lane}")
    a.I(f"v_mul_u32_u24 v{tmp2}, {hrow_shift_rows}, v{tmp2}")
    a.I(f"v_add_u32 v{tmp}, v{tmp}, v{tmp2}")
    a.I(f"v_lshlrev_b32 v{dst}, 7, v{tmp}")
    a.I(f"v_bfe_u32 v{tmp}, v{lane}, 4, 1")
    a.I(f"v_lshlrev_b32 v{tmp}, 1, v{tmp}")
    a.I(f"v_bfe_u32 v{tmp2}, v{lane}, 1, 1")
    a.I(f"v_add_u32 v{tmp}, v{tmp}, v{tmp2}")
    a.I(f"v_bfe_u32 v{tmp2}, v{lane}, 3, 1")
    a.I(f"v_lshlrev_b32 v{tmp2}, 2, v{tmp2}")
    a.I(f"v_xor_b32 v{tmp}, v{tmp}, v{tmp2}")
    a.I(f"v_lshl_add_u32 v{dst}, v{tmp}, 4, v{dst}")
    a.I(f"v_and_b32 v{tmp}, 1, v{lane}")
    a.I(f"v_lshl_add_u32 v{dst}, v{tmp}, 3, v{dst}")

def dma_w_lane_off(a, dst, lane, tmp, tmp2, pitch_sgpr_or_imm):
    a.I(f"v_lshrrev_b32 v{tmp}, 3, v{lane}")
    if isinstance(pitch_sgpr_or_imm, int):
        a.I(f"v_mul_u32_u24 v{dst}, {pitch_sgpr_or_imm}, v{tmp}")
    else:
        a.I(f"v_mul_lo_u32 v{dst}, {pitch_sgpr_or_imm}, v{tmp}")
    a.I(f"v_bfe_u32 v{tmp}, v{lane}, 4, 1")
    a.I(f"v_lshlrev_b32 v{tmp}, 2, v{tmp}")
    a.I(f"v_and_b32 v{tmp2}, 7, v{lane}")
    a.I(f"v_xor_b32 v{tmp}, v{tmp}, v{tmp2}")
    a.I(f"v_lshl_add_u32 v{dst}, v{tmp}, 4, v{dst}")

def gen_k1():
    a = Asm()
    K = "k1_kernel"
    kernel_head(a, K)
    a.I("s_cmp_ge_u32 s2, 256")
    a.I("s_cbranch_scc1 L_k1_end")
    a.I("s_load_dwordx4 s[4:7], s[0:1], 0")
    a.I("s_load_dwordx4 s[8:11], s[0:1], 24")
    a.I("s_load_dwordx2 s[12:13], s[0:1], 40")
    a.I("s_load_dwordx2 s[14:15], s[0:1], 64")
    a.I("s_load_dwordx2 s[16:17], s[0:1], 88")
    a.I("v_lshrrev_b32 v2, 6, v0")
    a.I("v_and_b32 v1, 63, v0")
    a.I("v_readfirstlane_b32 s21, v2")
    a.I("s_and_b32 s52, s2, 7")
    a.I("s_lshr_b32 s53, s2, 3")
    a.I("s_lshr_b32 s18, s52, 2")
    a.I("s_and_b32 s54, s52, 1")
    a.I("s_lshl_b32 s54, s54, 3")
    a.I("s_and_b32 s55, s53, 7")
    a.I("s_add_u32 s19, s54, s55")
    a.I("s_bfe_u32 s54, s52, 0x10001")
    a.I("s_lshl_b32 s54, s54, 2")
    a.I("s_lshr_b32 s55, s53, 3")
    a.I("s_add_u32 s20, s54, s55")
    a.I("s_mul_i32 s54, s20, 6")
    a.I("s_min_u32 s22, s54, 37")
    a.I("s_lshl_b32 s54, s22, 6")
    a.I("s_lshl_b32 s55, s20, 7")
    a.I("s_waitcnt lgkmcnt(0)")
    a.I("s_cmp_eq_u32 s18, 0")
    a.I("s_cselect_b32 s49, s55, s54")
    a.I("s_movk_i32 s48, 2752")
    a.I("s_movk_i32 s50, 128")
    a.I("s_cselect_b32 s48, 3072, s48")
    a.I("s_cselect_b32 s50, 1024, s50")
    a.I("s_mov_b32 s56, s4")
    a.I("s_mov_b32 s57, s5")
    a.I("s_cselect_b32 s58, s6, s10")
    a.I("s_cselect_b32 s59, s7, s11")
    a.I("s_lshl_b32 s54, s19, 17")
    srd_off(a, 24, 56, "s54", 131072)
    a.I("s_lshl_b32 s54, s48, 9")
    a.I("s_mov_b32 s28, s58")
    a.I("s_mov_b32 s29, s59")
    a.I("s_mov_b32 s30, s54")
    a.I("s_mov_b32 s31, 0x20000")
    a.I("s_cmp_ge_u32 s21, 4")
    a.I("s_cbranch_scc1 L_k1_prod")

    H, XA, WA, ACC, FA, FB, B1 = 2, 26, 30, 32, 128, 148, 168
    def acc(rt, s): return ACC + (rt*3 + s)*16
    a.I(f"v_lshrrev_b32 v{H}, 5, v1")
    a.I("s_lshl_b32 s54, s2, 13")
    srd_off(a, 36, 4, "s54", 8192)
    srd(a, 40, 14, 1024)
    a.I("v_and_b32 v3, 31, v1")
    a.I("v_lshlrev_b32 v3, 5, v3")
    a.I("s_lshl_b32 s54, s21, 1")
    a.I(f"v_add_u32 v4, s54, v{H}")
    a.I("v_lshl_add_u32 v5, v4, 10, v3")
    a.I("buffer_load_dwordx4 v[8:11], v5, s[36:39], 0 offen")
    a.I("buffer_load_dwordx4 v[12:15], v5, s[36:39], 0 offen offset:16")
    a.I("buffer_load_dwordx4 v[16:19], v3, s[40:43], 0 offen")
    a.I("buffer_load_dwordx4 v[20:23], v3, s[40:43], 0 offen offset:16")
    a.I("s_and_b32 s60, s21, 1")
    a.I("s_lshr_b32 s61, s21, 1")
    a.I("s_cmp_eq_u32 s18, 0")
    a.I("s_cbranch_scc1 L_k1_zero")
    srd(a, 44, 12, 2752)
    a.I("s_add_u32 s54, s22, s60")
    a.I("s_lshl_b32 s54, s54, 6")
    a.I(f"v_lshlrev_b32 v6, 3, v{H}")
    for s in range(3):
        for q in range(4):
            r = B1 + (s*4+q)*2
            a.I(f"buffer_load_dwordx2 v[{r}:{r+1}], v6, s[44:47], s54 offen offset:{s*128+q*16}")
    a.I("s_waitcnt vmcnt(0)")
    for s in range(3):
        for q in range(4):
            r = B1 + (s*4+q)*2
            for rt in range(2):
                d = acc(rt, s) + q*4
                a.I(f"v_lshlrev_b32 v{d}, 16, v{r}")
                a.I(f"v_and_b32 v{d+1}, 0xffff0000, v{r}")
                a.I(f"v_lshlrev_b32 v{d+2}, 16, v{r+1}")
                a.I(f"v_and_b32 v{d+3}, 0xffff0000, v{r+1}")
    a.I("s_branch L_k1_gate")
    a.L("L_k1_zero")
    for i in range(96):
        a.I(f"v_mov_b32 v{ACC+i}, 0")
    a.L("L_k1_gate")
    a.I("s_waitcnt vmcnt(0)")
    a.I("v_mov_b32 v24, 0")
    for i in range(8):
        a.I(f"v_dot2c_f32_bf16 v24, v{8+i}, v{16+i}")
    a.I("s_nop 3")
    for sh in (1, 2, 4, 8):
        a.I(f"v_add_f32_dpp v24, v24, v24 row_shr:{sh} row_mask:0xf bank_mask:0xf")
        a.I("s_nop 1")
    a.I("v_add_f32_dpp v24, v24, v24 row_bcast:15 row_mask:0xa bank_mask:0xf")
    a.I("s_nop 1")
    a.I("v_cvt_pk_bf16_f32 v24, v24, v24")
    a.I("v_and_b32 v24, 0xffff0000, v24")
    a.I(f"v_mul_f32 v24, {hex(f2u(-1.4426950408889634))}, v24")
    a.I("v_exp_f32 v24, v24")
    a.I("s_nop 0")
    a.I("v_add_f32 v24, 1.0, v24")
    a.I("v_rcp_f32 v24, v24")
    a.I("s_nop 0")
    a.I("v_cvt_pk_bf16_f32 v24, v24, v24")
    a.I("v_and_b32 v24, 0xffff0000, v24")
    srd_off(a, 36, 16, GO, 8192)
    a.I("s_lshl_b32 s54, s2, 5")
    a.I("v_lshlrev_b32 v4, 2, v4")
    a.I("s_mov_b32 s62, 0x80000000")
    a.I("s_mov_b32 s63, 0x80000000")
    a.I("s_mov_b64 exec, s[62:63]")
    a.I("buffer_store_dword v24, v4, s[36:39], s54 offen")
    a.I("s_mov_b64 exec, -1")
    a.I("v_and_b32 v8, 31, v1")
    a.I("v_bfe_u32 v9, v1, 1, 3")
    a.I("s_lshl_b32 s54, s61, 6")
    a.I("v_add_u32 v8, s54, v8")
    a.I("v_lshlrev_b32 v8, 7, v8")
    a.I(f"v_xor_b32 v9, v9, v{H}")
    for ks in range(4):
        a.I(f"v_xor_b32 v10, {2*ks}, v9")
        a.I(f"v_lshl_add_u32 v{XA+ks}, v10, 4, v8")
    tr_lane_addr(a, WA, 1, 8, 9, 8)
    a.I("s_lshl_b32 s54, s60, 6")
    a.I(f"v_xor_b32 v{WA}, s54, v{WA}")
    a.I(f"v_add_u32 v{WA}, 0x10000, v{WA}")
    a.I(f"v_add_u32 v{WA+1}, 49152, v{WA}")

    def reads(b, ks, F):
        out = []
        for rt in range(2):
            out.append(f"ds_read_b128 {vr(F+4*rt,4)}, v{XA+ks} offset:{b*16384 + rt*4096}")
        wv = WA + (b >> 1)
        for s in range(3):
            for rd in range(2):
                out.append(f"ds_read_b64_tr_b16 {vr(F+8+4*s+2*rd,2)}, v{wv} offset:{(b&1)*24576 + s*8192 + ks*2048 + rd*512}")
        return out
    def mfmas(F, qkv):
        out = []
        for rt in range(2):
            for s in range(3):
                X, W = F+4*rt, F+8+4*s
                if qkv and s == 2:
                    out.append(MF(acc(rt, s), X, W, acc(rt, s)))
                else:
                    out.append(MF(acc(rt, s), W, X, acc(rt, s)))
        return out

    def mainloop(tag, qkv):
        a.I("s_barrier")
        a.I("\n".join(reads(0, 0, FA)))
        a.I("s_mov_b32 s64, 0")
        a.L(f"L_k1_loop_{tag}")
        body = Asm()
        for b in range(4):
            body.I("\n".join(reads(b, 1, FB)));  body.I("s_waitcnt lgkmcnt(8)"); body.I("\n".join(mfmas(FA, qkv)))
            body.I("\n".join(reads(b, 2, FA)));  body.I("s_waitcnt lgkmcnt(8)"); body.I("\n".join(mfmas(FB, qkv)))
            body.I("\n".join(reads(b, 3, FB)));  body.I("s_waitcnt lgkmcnt(8)"); body.I("\n".join(mfmas(FA, qkv)))
            body.I("s_waitcnt lgkmcnt(0)")
            if b == 3:
                body.I("s_cmp_lg_u32 s64, 0")
                body.I(f"s_cbranch_scc1 L_k1_last_{tag}")
            body.I("s_barrier")
            body.I("\n".join(reads((b+1) % 4, 0, FA)))
            body.I("\n".join(mfmas(FB, qkv)))
        a.lines += body.lines
        a.I("s_mov_b32 s64, 1")
        a.I(f"s_branch L_k1_loop_{tag}")
        a.L(f"L_k1_last_{tag}")
        a.I("\n".join(mfmas(FB, qkv)))
        a.I("s_nop 15")

    a.I("s_cmp_eq_u32 s18, 0")
    a.I("s_cbranch_scc0 L_k1_ffn")
    mainloop("q", True)
    srd(a, 32, 16, 6*MB)
    a.I("s_lshl_b32 s54, s19, 2")
    a.I("s_lshl_b32 s55, s61, 1")
    a.I("s_add_u32 s54, s54, s55")
    a.I("s_lshl_b32 s55, s20, 2")
    a.I("s_lshl_b32 s65, s60, 1")
    a.I("s_add_u32 s55, s55, s65")
    a.I("s_lshl_b32 s55, s55, 6")
    a.I("s_add_u32 s54, s54, s55")
    a.I("s_lshl_b32 s54, s54, 10")
    a.I("v_lshlrev_b32 v3, 4, v1")
    a.I("v_bfe_u32 v4, v1, 4, 1")
    a.I("v_lshlrev_b32 v4, 16, v4")
    a.I(f"v_lshl_add_u32 v4, v{H}, 8, v4")
    a.I("v_and_b32 v5, 15, v1")
    a.I("v_lshl_add_u32 v4, v5, 4, v4")
    a.I(f"s_mov_b32 s66, {hex(f2u(QSCALE))}")
    for rt in range(2):
        for s in range(3):
            d = acc(rt, s)
            if s == 0:
                for i in range(16):
                    a.I(f"v_mul_f32 v{d+i}, s66, v{d+i}")
            for j in range(8):
                a.I(f"v_cvt_pk_bf16_f32 v{d+j}, v{d+2*j}, v{d+2*j+1}")
            if s < 2:
                for hh in range(2):
                    a.I(f"s_add_u32 s55, s54, {s*KF + rt*1024 + hh*65536}")
                    a.I(f"buffer_store_dwordx4 {vr(d+4*hh,4)}, v3, s[32:35], s55 offen")
            else:
                a.I(f"s_add_u32 s55, s54, {VF + rt*1024}")
                for u in range(2):
                    a.I(f"buffer_store_dwordx4 {vr(d+4*u,4)}, v4, s[32:35], s55 offen offset:{u*512}")
    a.I("s_endpgm")
    a.L("L_k1_ffn")
    mainloop("f", False)
    srd_off(a, 32, 16, HF, HF_SIZE)
    a.I("s_lshl_b32 s54, s19, 2")
    a.I("s_lshl_b32 s55, s61, 1")
    a.I("s_add_u32 s54, s54, s55")
    a.I("s_add_u32 s55, s22, s60")
    a.I("s_lshl_b32 s55, s55, 7")
    a.I("s_add_u32 s54, s54, s55")
    a.I("s_lshl_b32 s54, s54, 10")
    a.I("v_lshlrev_b32 v3, 4, v1")
    for rt in range(2):
        for s in range(3):
            d = acc(rt, s)
            for i in range(16):
                a.I(f"v_max_f32 v{d+i}, 0, v{d+i}")
            for i in range(16):
                a.I(f"v_mul_f32 v{d+i}, v{d+i}, v{d+i}")
            for j in range(8):
                a.I(f"v_cvt_pk_bf16_f32 v{d+j}, v{d+2*j}, v{d+2*j+1}")
            for uu in range(2):
                a.I(f"s_add_u32 s55, s54, {rt*1024 + (4*s+uu)*65536}")
                a.I(f"buffer_store_dwordx4 {vr(d+4*uu,4)}, v3, s[32:35], s55 offen")
    a.I("s_endpgm")

    a.L("L_k1_prod")
    a.I("s_sub_u32 s67, s21, 4")
    a.I("v_lshrrev_b32 v2, 3, v1")
    a.I("s_lshl_b32 s54, s67, 3")
    a.I("v_add_u32 v2, s54, v2")
    a.I("v_lshrrev_b32 v3, 4, v1")
    a.I("s_and_b32 s54, s67, 1")
    a.I("s_lshl_b32 s54, s54, 2")
    a.I("v_add_u32 v3, s54, v3")
    a.I("v_and_b32 v4, 7, v1")
    a.I("v_xor_b32 v3, v3, v4")
    a.I("v_lshlrev_b32 v3, 4, v3")
    a.I("v_lshl_add_u32 v8, v2, 10, v3")
    a.I("v_mul_lo_u32 v9, s48, v2")
    a.I("v_bfe_u32 v3, v1, 4, 1")
    a.I("v_lshlrev_b32 v3, 2, v3")
    a.I("v_xor_b32 v3, v3, v4")
    a.I("v_lshl_add_u32 v9, v3, 4, v9")
    a.I("s_lshl_b32 s68, s67, 10")
    a.I("s_add_u32 s69, s68, 0x10000")
    a.I("s_lshl_b32 s70, s48, 6")
    a.I("s_lshl_b32 s71, s48, 5")
    for s in range(3):
        for n in range(2):
            j = 72 + s*2 + n
            a.I(f"s_mul_i32 s{j}, s50, {s}")
            if n: a.I(f"s_add_u32 s{j}, s{j}, s71")
            a.I(f"s_add_u32 s{j}, s{j}, s49")
    def issue(c_sgpr):
        a.I(f"s_and_b32 s78, {c_sgpr}, 3")
        a.I("s_lshl_b32 s79, s78, 14")
        a.I("s_add_u32 s79, s79, s68")
        a.I("s_mul_i32 s80, s78, 24576")
        a.I("s_add_u32 s80, s80, s69")
        a.I(f"s_lshl_b32 s81, {c_sgpr}, 7")
        a.I(f"s_mul_i32 s82, {c_sgpr}, s70")
        for n in range(4):
            a.I(f"s_add_u32 m0, s79, {n*4096}")
            a.I(f"s_add_u32 s83, s81, {n*32768}")
            a.I("buffer_load_dwordx4 v8, s[24:27], s83 offen lds")
        for s in range(3):
            for n in range(2):
                a.I(f"s_add_u32 m0, s80, {s*8192 + n*4096}")
                a.I(f"s_add_u32 s83, s82, s{72+s*2+n}")
                a.I("buffer_load_dwordx4 v9, s[28:31], s83 offen lds")
    a.I("s_mov_b32 s84, 0")
    a.L("L_k1_pro")
    issue("s84")
    a.I("s_add_u32 s84, s84, 1")
    a.I("s_cmp_lt_u32 s84, 3")
    a.I("s_cbranch_scc1 L_k1_pro")
    a.L("L_k1_ploop")
    a.I("s_waitcnt vmcnt(20)")
    a.I("s_barrier")
    issue("s84")
    a.I("s_add_u32 s84, s84, 1")
    a.I("s_cmp_lt_u32 s84, 8")
    a.I("s_cbranch_scc1 L_k1_ploop")
    a.I("s_waitcnt vmcnt(20)")
    a.I("s_barrier")
    a.I("s_waitcnt vmcnt(10)")
    a.I("s_barrier")
    a.I("s_waitcnt vmcnt(0)")
    a.I("s_barrier")
    a.L("L_k1_end")
    a.I("s_endpgm")
    return a, K, 192

def tr_reads_perm(F, va0, va1, slot_off):
    out = []
    for ct, va in ((0, va0), (1, va1)):
        for rd in range(2):
            out.append(f"ds_read_b64_tr_b16 {vr(F+4*ct+2*rd,2)}, v{va} offset:{slot_off + rd*1024}")
    return out

K2_RING, K2_PART, K2_XCH, K2_FLAG = 0, 32768, 98304, 98304 + 8*2304
K2_LDS = K2_FLAG + 64
def gen_k2():
    a = Asm()
    K = "k2_kernel"
    kernel_head(a, K)
    a.I("s_cmp_ge_u32 s2, 256")
    a.I("s_cbranch_scc1 L_k2_end")
    a.I("s_load_dwordx2 s[4:5], s[0:1], 88")
    a.I("s_load_dwordx4 s[8:11], s[0:1], 48")
    a.I("v_lshrrev_b32 v2, 6, v0")
    a.I("v_and_b32 v1, 63, v0")
    a.I("v_readfirstlane_b32 s21, v2")
    a.I("s_and_b32 s12, s2, 7")
    a.I("s_lshl_b32 s12, s12, 2")
    a.I("s_bfe_u32 s13, s2, 0x20003")
    a.I("s_add_u32 s12, s12, s13")
    a.I("s_lshr_b32 s13, s2, 5")
    a.I(f"v_mov_b32 v2, {K2_FLAG}")
    a.I("v_mov_b32 v4, 0")
    a.I("v_mov_b32 v5, 0")
    a.I("ds_write_b64 v2, v[4:5]")
    a.I("s_waitcnt lgkmcnt(0)")
    a.I("s_cmp_ge_u32 s21, 8")
    a.I("s_cbranch_scc1 L_k2_ffn")
    QA, QB, K0, V0, S0, S1, OA, OB = 4, 8, 12, 20, 36, 52, 68, 84
    KB = [12, 16]; VB = [20, 28]
    VK, VV = 2, 3
    a.I("s_and_b32 s14, s21, 3")
    a.I("s_lshr_b32 s15, s21, 2")
    a.I("s_lshl_b32 s16, s12, 16")
    a.I(f"s_add_u32 s17, s16, {KF}")
    srd_off(a, 24, 4, "s17", 65536)
    a.I(f"s_add_u32 s17, s16, {VF}")
    srd_off(a, 28, 4, "s17", 65536)
    srd_off(a, 32, 4, "s16", 65536)
    a.I(f"v_lshlrev_b32 v{VK}, 4, v1")
    a.I("v_lshrrev_b32 v4, 5, v1")
    a.I("v_and_b32 v5, 15, v1")
    a.I("v_lshlrev_b32 v5, 4, v5")
    a.I(f"v_lshl_add_u32 v{VV}, v4, 8, v5")
    a.I("s_lshl_b32 s17, s13, 3")
    a.I("s_lshl_b32 s18, s14, 1")
    a.I("s_add_u32 s17, s17, s18")
    a.I("s_lshl_b32 s18, s17, 10")
    a.I(f"buffer_load_dwordx4 {vr(QA,4)}, v{VK}, s[32:35], s18 offen")
    a.I(f"buffer_load_dwordx4 {vr(QB,4)}, v{VK}, s[32:35], s18 offen offset:1024")
    a.I("s_lshl_b32 s19, s13, 3")
    a.I("s_add_u32 s19, s19, s21")
    a.I("s_lshl_b32 s19, s19, 10")
    a.I(f"buffer_load_dwordx4 v[100:103], v{VK}, s[24:27], s19 offen")
    a.I(f"buffer_load_dwordx4 v[104:107], v{VK}, s[28:31], s19 offen")
    for i in range(16):
        a.I(f"v_mov_b32 v{VB[0]+i}, 0x3f803f80")
    a.I("s_lshl_b32 s36, s15, 15")
    a.I("s_mov_b32 s38, 0x0000ffff")
    a.I("s_mov_b32 s39, 0x0000ffff")
    a.I(f"buffer_load_dwordx4 {vr(KB[0],4)}, v{VK}, s[24:27], s36 offen")
    a.I("s_mov_b64 exec, s[38:39]")
    a.I(f"buffer_load_dwordx4 {vr(VB[0],4)}, v{VV}, s[28:31], s36 offen")
    a.I(f"buffer_load_dwordx4 {vr(VB[0]+4,4)}, v{VV}, s[28:31], s36 offen offset:512")
    a.I("s_mov_b64 exec, -1")
    a.I(f"buffer_load_dwordx4 {vr(KB[1],4)}, v{VK}, s[24:27], s36 offen offset:1024")
    for i in range(16):
        a.I(f"v_mov_b32 v{OA+i}, 0")
        a.I(f"v_mov_b32 v{OB+i}, 0")
    for i in range(4):
        a.I(f"v_mov_b32 v{S1+4+i}, 0")
    a.I("s_barrier")
    a.I("s_waitcnt vmcnt(3)")
    a.I(MF(S0, KB[0], QA))
    a.I("s_nop 7")
    a.I("s_nop 3")

    def tile(Sin, Sout, Qn, Kn, Ocur, Vcur_u0, Oprev, Vprev_u1, after_pv2, wait_s, after_s, wait_pv1):
        e = lambda i: f"v_exp_f32 v{Sin+i}, v{Sin+i}"
        c = lambda j: f"v_cvt_pk_bf16_f32 v{Sin+j}, v{Sin+2*j}, v{Sin+2*j+1}"
        L = []
        L += [e(0), e(1)]
        L.append(MF(Oprev, Vprev_u1, Sout+4, Oprev))
        L += after_pv2
        L += [e(2), e(3), c(0), e(4), e(5), c(1)]
        L += wait_s
        L.append(MF(Sout, Kn, Qn))
        L += after_s
        L += [e(6), e(7), c(2), e(8), e(9), c(3), e(10), e(11)]
        L += wait_pv1
        L.append(MF(Ocur, Vcur_u0, Sin, Ocur))
        L += [c(4), e(12), e(13), c(5), e(14), e(15), c(6), c(7)]
        return L
    def keytile(kap, off):
        vload = ["s_mov_b64 exec, s[38:39]",
                 f"buffer_load_dwordx4 {vr(VB[kap^1],4)}, v{VV}, s[28:31], s36 offen offset:{off+1024}",
                 f"buffer_load_dwordx4 {vr(VB[kap^1]+4,4)}, v{VV}, s[28:31], s36 offen offset:{off+1536}",
                 "s_mov_b64 exec, -1"]
        kload = [f"buffer_load_dwordx4 {vr(KB[kap],4)}, v{VK}, s[24:27], s36 offen offset:{off+2048}"]
        L = tile(S0, S1, QB, KB[kap], OA, VB[kap], OB, VB[kap^1]+4, vload, [], kload, ["s_waitcnt vmcnt(4)"])
        L += tile(S1, S0, QA, KB[kap^1], OB, VB[kap], OA, VB[kap]+4, [], ["s_waitcnt vmcnt(3)"], [], [])
        return L
    a.I("s_mov_b32 s37, 16")
    a.raw(".p2align 6")
    a.L("L_k2_aloop")
    body = keytile(0, 0) + keytile(1, 1024)
    a.I("\n".join(body))
    a.I("s_add_u32 s36, s36, 2048")
    a.I("s_sub_u32 s37, s37, 1")
    a.I("s_cmp_lg_u32 s37, 0")
    a.I("s_cbranch_scc1 L_k2_aloop")
    a.I("s_nop 1")
    a.I(MF(OB, VB[1]+4, S1+4, OB))
    a.I("s_nop 15")
    a.I(f"s_mul_i32 s40, s21, 2304")
    a.I(f"s_add_u32 s40, s40, {K2_XCH}")
    a.I("s_xor_b32 s41, s21, 4")
    a.I(f"s_mul_i32 s41, s41, 2304")
    a.I(f"s_add_u32 s41, s41, {K2_XCH}")
    a.I("v_lshlrev_b32 v4, 4, v1")
    a.I("v_add_u32 v5, s41, v4")
    a.I("v_add_u32 v4, s40, v4")
    a.I("v_lshlrev_b32 v6, 2, v1")
    a.I("v_add_u32 v7, s41, v6")
    a.I("v_add_u32 v6, s40, v6")
    a.I("s_cmp_eq_u32 s15, 0")
    a.I("s_cbranch_scc1 L_k2_x0")
    for i in range(9):
        a.I(f"v_mov_b32 v{S0+i}, v{OA+i}")
        a.I(f"v_mov_b32 v{OA+i}, v{OB+i}")
        a.I(f"v_mov_b32 v{OB+i}, v{S0+i}")
    a.L("L_k2_x0")
    a.I(f"ds_write_b128 v4, {vr(OB,4)}")
    a.I(f"ds_write_b128 v4, {vr(OB+4,4)} offset:1024")
    a.I(f"ds_write_b32 v6, v{OB+8} offset:2048")
    a.I("s_waitcnt lgkmcnt(0)")
    a.I("s_barrier")
    a.I(f"ds_read_b128 {vr(S0,4)}, v5")
    a.I(f"ds_read_b128 {vr(S0+4,4)}, v5 offset:1024")
    a.I(f"ds_read_b32 v{S0+8}, v7 offset:2048")
    a.I("s_waitcnt lgkmcnt(0)")
    for i in range(9):
        a.I(f"v_add_f32 v{OA+i}, v{OA+i}, v{S0+i}")
    a.I(f"v_rcp_f32 v{OA+8}, v{OA+8}")
    a.I("s_nop 0")
    for i in range(8):
        a.I(f"v_mul_f32 v{OA+i}, v{OA+i}, v{OA+8}")
    for j in range(4):
        a.I(f"v_cvt_pk_bf16_f32 v{OA+j}, v{OA+2*j}, v{OA+2*j+1}")
    srd_off(a, 32, 4, OF, 2*MB)
    a.I("s_add_u32 s17, s17, s15")
    a.I("s_lshl_b32 s17, s17, 5")
    a.I("s_add_u32 s17, s17, s12")
    a.I("s_lshl_b32 s17, s17, 10")
    a.I(f"buffer_store_dwordx4 {vr(OA,4)}, v{VK}, s[32:35], s17 offen")
    a.I("s_endpgm")

    a.L("L_k2_ffn")
    a.I("s_barrier")
    a.I("s_setprio 2")
    WF, HR, ACC = 16, 32, 64
    VH, VW, VA0, VA1 = 2, 3, 4, 5
    a.I("s_sub_u32 s14, s21, 8")
    srd(a, 24, 8, 1376*1024)
    srd_off(a, 28, 4, HF, HF_SIZE)
    a.I(f"v_lshlrev_b32 v{VH}, 4, v1")
    dma_w_lane_off(a, VW, 1, 6, 7, 1024)
    a.I("s_lshl_b32 s15, s13, 7")
    a.I(f"v_add_u32 v{VW}, s15, v{VW}")
    tr_lane_addr(a, VA0, 1, 6, 7, 4)
    a.I("s_lshl_b32 s16, s14, 13")
    a.I(f"v_add_u32 v{VA0}, s16, v{VA0}")
    a.I(f"v_xor_b32 v{VA1}, 64, v{VA0}")
    a.I("s_mul_i32 s17, s14, 24")
    a.I("s_lshl_b32 s36, s17, 14")
    a.I("s_lshl_b32 s37, s17, 16")
    a.I("s_lshl_b32 s18, s12, 11")
    a.I("s_add_u32 s37, s37, s18")
    for i in range(64):
        a.I(f"v_mov_b32 v{ACC+i}, 0")
    def issue(slot):
        L = []
        L.append(f"s_add_u32 m0, s16, {slot*2048}")
        L.append(f"s_add_u32 s19, s36, 8192")
        L.append(f"buffer_load_dwordx4 v{VW}, s[24:27], s36 offen lds")
        L.append(f"s_add_u32 m0, s16, {slot*2048+1024}")
        L.append(f"s_add_u32 s36, s36, 16384")
        L.append(f"buffer_load_dwordx4 v{VW}, s[24:27], s19 offen lds")
        L.append(f"buffer_load_dwordx4 {vr(HR+slot*8,4)}, v{VH}, s[28:31], s37 offen")
        L.append(f"buffer_load_dwordx4 {vr(HR+slot*8+4,4)}, v{VH}, s[28:31], s37 offen offset:1024")
        L.append(f"s_add_u32 s37, s37, 65536")
        return L
    for slot in range(4):
        a.I("\n".join(issue(slot)))
    a.I("s_mov_b32 s38, 6")
    a.L("L_k2_floop")
    for slot in range(4):
        a.I("s_waitcnt vmcnt(12)")
        a.I("\n".join(tr_reads_perm(WF, VA0, VA1, slot*2048)))
        a.I("s_waitcnt lgkmcnt(0)")
        for ct in range(2):
            for rt in range(2):
                d = ACC + (ct*2+rt)*16
                a.I(MF(d, WF+4*ct, HR+slot*8+4*rt, d))
        a.I("\n".join(issue(slot)))
    a.I("s_sub_u32 s38, s38, 1")
    a.I("s_cmp_lg_u32 s38, 0")
    a.I("s_cbranch_scc1 L_k2_floop")
    a.I("s_nop 15")
    a.I("s_lshl_b32 s16, s14, 14")
    a.I(f"s_add_u32 s16, s16, {K2_PART}")
    a.I(f"v_add_u32 v6, s16, v{VH}")
    for i in range(16):
        a.I(f"ds_write_b128 v6, {vr(ACC+4*i,4)} offset:{i*1024}")
    srd_off(a, 40, 4, GO, 8192)
    srd(a, 44, 10, 1024)
    a.I("s_and_b32 s15, s14, 1")
    a.I("s_lshr_b32 s17, s14, 1")
    a.I("s_lshl_b32 s18, s12, 6")
    a.I("s_lshl_b32 s19, s15, 5")
    a.I("s_add_u32 s18, s18, s19")
    a.I("s_lshl_b32 s18, s18, 2")
    a.I("v_and_b32 v7, 31, v1")
    a.I("v_lshlrev_b32 v7, 2, v7")
    a.I("buffer_load_dword v8, v7, s[40:43], s18 offen")
    a.I("s_lshl_b32 s18, s13, 6")
    a.I("s_lshl_b32 s19, s17, 5")
    a.I("s_add_u32 s18, s18, s19")
    a.I("s_lshl_b32 s18, s18, 1")
    a.I("v_lshrrev_b32 v7, 5, v1")
    a.I("v_lshlrev_b32 v7, 3, v7")
    for q in range(4):
        a.I(f"buffer_load_dwordx2 v[{16+2*q}:{17+2*q}], v7, s[44:47], s18 offen offset:{q*16}")
    a.I("s_waitcnt lgkmcnt(0)")
    a.I(f"v_mov_b32 v9, {K2_FLAG}")
    a.I("v_mov_b32 v10, 1")
    a.I("s_mov_b64 exec, 1")
    a.I("ds_add_u32 v9, v10")
    a.I("s_mov_b64 exec, -1")
    a.L("L_k2_fspin")
    a.I("ds_read_b32 v10, v9")
    a.I("s_waitcnt lgkmcnt(0)")
    a.I("v_readfirstlane_b32 s50, v10")
    a.I("s_nop 0")
    a.I("s_cmp_ge_u32 s50, 4")
    a.I("s_cbranch_scc1 L_k2_fgo")
    a.I("s_sleep 2")
    a.I("s_branch L_k2_fspin")
    a.L("L_k2_fgo")
    a.I("s_lshl_b32 s16, s14, 12")
    a.I(f"s_add_u32 s16, s16, {K2_PART}")
    a.I(f"v_add_u32 v6, s16, v{VH}")
    for p in range(4):
        for q in range(4):
            a.I(f"ds_read_b128 {vr(ACC+p*16+q*4,4)}, v6 offset:{p*16384+q*1024}")
    a.I("s_waitcnt lgkmcnt(0)")
    for i in range(16):
        a.I(f"v_add_f32 v{ACC+i}, v{ACC+i}, v{ACC+16+i}")
        a.I(f"v_add_f32 v{ACC+32+i}, v{ACC+32+i}, v{ACC+48+i}")
    for i in range(16):
        a.I(f"v_add_f32 v{ACC+i}, v{ACC+i}, v{ACC+32+i}")
    a.I("s_waitcnt vmcnt(0)")
    a.I("v_sub_f32 v8, 1.0, v8")
    a.I("v_cvt_pk_bf16_f32 v8, v8, v8")
    a.I("v_and_b32 v8, 0xffff0000, v8")
    for q in range(4):
        a.I(f"v_lshlrev_b32 v24, 16, v{16+2*q}")
        a.I(f"v_and_b32 v25, 0xffff0000, v{16+2*q}")
        a.I(f"v_lshlrev_b32 v26, 16, v{17+2*q}")
        a.I(f"v_and_b32 v27, 0xffff0000, v{17+2*q}")
        for j in range(4):
            a.I(f"v_add_f32 v{ACC+4*q+j}, v{ACC+4*q+j}, v{24+j}")
        for j in range(4):
            a.I(f"v_mul_f32 v{ACC+4*q+j}, v{ACC+4*q+j}, v8")
    srd_off(a, 40, 4, BP, 4*MB)
    a.I("s_lshl_b32 s16, s2, 14")
    a.I("s_lshl_b32 s17, s14, 12")
    a.I("s_add_u32 s16, s16, s17")
    for q in range(4):
        a.I(f"buffer_store_dwordx4 {vr(ACC+4*q,4)}, v{VH}, s[40:43], s16 offen offset:{q*1024}")
    a.L("L_k2_end")
    a.I("s_endpgm")
    return a, K, 168

def gen_k3():
    a = Asm()
    K = "k3_kernel"
    kernel_head(a, K)
    a.I("s_cmp_ge_u32 s2, 256")
    a.I("s_cbranch_scc1 L_k3_end")
    a.I("s_load_dwordx2 s[4:5], s[0:1], 88")
    a.I("s_load_dwordx2 s[6:7], s[0:1], 16")
    a.I("s_load_dwordx2 s[8:9], s[0:1], 72")
    a.I("v_lshrrev_b32 v2, 6, v0")
    a.I("v_and_b32 v1, 63, v0")
    a.I("v_readfirstlane_b32 s21, v2")
    a.I("s_and_b32 s12, s2, 7")
    a.I("s_lshl_b32 s12, s12, 2")
    a.I("s_bfe_u32 s13, s2, 0x20003")
    a.I("s_add_u32 s12, s12, s13")
    a.I("s_lshr_b32 s13, s2, 5")
    OR_, WF, ACC = 64, 16, 128
    VH, VW, VA0, VA1 = 2, 3, 4, 5
    a.I(f"v_lshlrev_b32 v{VH}, 4, v1")
    dma_w_lane_off(a, VW, 1, 6, 7, 1024)
    a.I("s_lshl_b32 s15, s13, 7")
    a.I(f"v_add_u32 v{VW}, s15, v{VW}")
    a.I("s_lshl_b32 s16, s21, 14")
    a.I("s_lshl_b32 s36, s21, 17")
    a.I("s_waitcnt lgkmcnt(0)")
    srd(a, 24, 6, 512*1024)
    srd_off(a, 28, 4, OF, 2*MB)
    for ks in range(8):
        for n in range(2):
            a.I(f"s_add_u32 m0, s16, {ks*2048+n*1024}")
            a.I(f"s_add_u32 s19, s36, {ks*16384+n*8192}")
            a.I(f"buffer_load_dwordx4 v{VW}, s[24:27], s19 offen lds")
    a.I("s_lshl_b32 s18, s12, 6")
    a.I("s_lshl_b32 s19, s21, 3")
    a.I("s_add_u32 s18, s18, s19")
    a.I("s_lshl_b32 s18, s18, 10")
    for ks in range(8):
        for rt in range(2):
            a.I(f"s_add_u32 s19, s18, {rt*32768 + (ks//4)*4096}")
            a.I(f"buffer_load_dwordx4 {vr(OR_+ks*8+rt*4,4)}, v{VH}, s[28:31], s19 offen offset:{(ks%4)*1024}")
    srd_off(a, 40, 4, BP, 4*MB)
    a.I("s_lshl_b32 s17, s2, 14")
    a.I("s_lshl_b32 s19, s21, 12")
    a.I("s_add_u32 s17, s17, s19")
    for q in range(4):
        a.I(f"buffer_load_dwordx4 {vr(32+4*q,4)}, v{VH}, s[40:43], s17 offen offset:{q*1024}")
    srd_off(a, 44, 4, GO, 8192)
    a.I("s_and_b32 s22, s21, 1")
    a.I("s_lshr_b32 s23, s21, 1")
    a.I("s_lshl_b32 s18, s12, 6")
    a.I("s_lshl_b32 s19, s22, 5")
    a.I("s_add_u32 s18, s18, s19")
    a.I("s_lshl_b32 s19, s18, 2")
    a.I("v_and_b32 v7, 31, v1")
    a.I("v_lshlrev_b32 v8, 2, v7")
    a.I("buffer_load_dword v9, v8, s[44:47], s19 offen")
    tr_lane_addr(a, VA0, 1, 10, 11, 4)
    a.I(f"v_add_u32 v{VA0}, s16, v{VA0}")
    a.I(f"v_xor_b32 v{VA1}, 64, v{VA0}")
    for i in range(64):
        a.I(f"v_mov_b32 v{ACC+i}, 0")
    for ks in range(8):
        if ks == 0:
            a.I("s_waitcnt vmcnt(19)")
        else:
            a.I(f"s_waitcnt vmcnt({19-2*ks})")
        F = WF + (ks & 1) * 8
        a.I("\n".join(tr_reads_perm(F, VA0, VA1, ks*2048)))
        a.I("s_waitcnt lgkmcnt(0)")
        for ct in range(2):
            for rt in range(2):
                d = ACC + (ct*2+rt)*16
                a.I(MF(d, F+4*ct, OR_+ks*8+4*rt, d))
    a.I("s_nop 15")
    a.I(f"v_add_u32 v6, s16, v{VH}")
    for i in range(16):
        a.I(f"ds_write_b128 v6, {vr(ACC+4*i,4)} offset:{i*1024}")
    a.I("s_waitcnt lgkmcnt(0)")
    a.I("s_barrier")
    a.I("s_lshl_b32 s16, s21, 12")
    a.I(f"v_add_u32 v6, s16, v{VH}")
    for p in range(4):
        for q in range(4):
            a.I(f"ds_read_b128 {vr(ACC+p*16+q*4,4)}, v6 offset:{p*16384+q*1024}")
    a.I("s_waitcnt vmcnt(0) lgkmcnt(0)")
    for i in range(16):
        a.I(f"v_add_f32 v{ACC+i}, v{ACC+i}, v{ACC+16+i}")
        a.I(f"v_add_f32 v{ACC+32+i}, v{ACC+32+i}, v{ACC+48+i}")
    for i in range(16):
        a.I(f"v_add_f32 v{ACC+i}, v{ACC+i}, v{ACC+32+i}")
    for i in range(16):
        a.I(f"v_fma_f32 v{ACC+i}, v{ACC+i}, v9, v{32+i}")
    for j in range(8):
        a.I(f"v_cvt_pk_bf16_f32 v{ACC+j}, v{ACC+2*j}, v{ACC+2*j+1}")
    a.I("s_nop 1")
    a.I(f"v_permlane32_swap_b32 v{ACC}, v{ACC+2}")
    a.I(f"v_permlane32_swap_b32 v{ACC+1}, v{ACC+3}")
    a.I(f"v_permlane32_swap_b32 v{ACC+4}, v{ACC+6}")
    a.I(f"v_permlane32_swap_b32 v{ACC+5}, v{ACC+7}")
    srd(a, 40, 8, 2*MB)
    a.I("s_lshl_b32 s18, s18, 10")
    a.I("s_lshl_b32 s19, s13, 7")
    a.I("s_add_u32 s18, s18, s19")
    a.I("s_lshl_b32 s19, s23, 6")
    a.I("s_add_u32 s18, s18, s19")
    a.I("v_lshlrev_b32 v7, 10, v7")
    a.I("v_lshrrev_b32 v8, 5, v1")
    a.I("v_lshl_add_u32 v7, v8, 4, v7")
    a.I(f"buffer_store_dwordx4 {vr(ACC,4)}, v7, s[40:43], s18 offen")
    a.I(f"buffer_store_dwordx4 {vr(ACC+4,4)}, v7, s[40:43], s18 offen offset:32")
    a.L("L_k3_end")
    a.I("s_endpgm")
    return a, K, 192

HEADER = open("cdna_kernels/" + NAME + ".s.ref").read().split("; Override launch")[0]

def build(path):
    ks = [gen_k1(), gen_k2(), gen_k3()]
    launches = [("k1_kernel", 256, 512, 163840), ("k2_kernel", 256, 768, K2_LDS), ("k3_kernel", 256, 256, 65536)]
    out = HEADER
    for k, g, b, l in launches:
        out += f"; @launch kernel={k} grid=({g},1,1) block=({b},1,1) lds={l}\n"
    out += '.amdgcn_target "amdgcn-amd-amdhsa--gfx950"\n.text\n'
    probs = []
    for a, K, vg in ks:
        out += a.text()
        probs += check_linear(a.lines, K)
    out += '.section .rodata,"a"\n'
    for a, K, vg in ks:
        out += ".p2align 6\n" + desc(K, vg)
    open(path, "w").write(out)
    return probs

if __name__ == "__main__":
    path = sys.argv[1] if len(sys.argv) > 1 else "cdna_kernels/" + NAME + ".s"
    probs = build(path)
    for p in probs: print("HAZARD:", p)
    print("written", path, "problems:", len(probs))
```

```python
import sys, struct
from asmlib import *

NAME = "gated_mix__mha_block__dense_activation_squared_relu__prompt"
MB = 1 << 20
QF, KF, VF, HF, GO, OF, BP = 0, 2*MB, 4*MB, 6*MB, 12*MB, 13*MB, 16*MB
HF_SIZE = 86 * 65536
QSCALE = 0.25 * 1.4426950408889634
def f2u(x): return struct.unpack("<I", struct.pack("<f", x))[0]

def srd(a, dst, base, size):
    a.I(f"s_mov_b32 s{dst}, s{base}")
    a.I(f"s_mov_b32 s{dst+1}, s{base+1}")
    a.I(f"s_mov_b32 s{dst+2}, {size}")
    a.I(f"s_mov_b32 s{dst+3}, 0x20000")

def srd_off(a, dst, base, off, size):
    a.I(f"s_add_u32 s{dst}, s{base}, {off}")
    a.I(f"s_addc_u32 s{dst+1}, s{base+1}, 0")
    a.I(f"s_mov_b32 s{dst+2}, {size}")
    a.I(f"s_mov_b32 s{dst+3}, 0x20000")

def MF(d, A, B, c=None):
    cc = "0" if c is None else vr(c, 16)
    return f"v_mfma_f32_32x32x16_bf16 {vr(d,16)}, {vr(A,4)}, {vr(B,4)}, {cc}"

STAMPS = False
OPT = {}
STAMP_OFF = 32*MB
def kernel_head(a, K):
    a.raw(f".globl {K}\n.p2align 8\n.type {K},@function\n{K}:")

def stamp(a, i):
    if not STAMPS: return
    a.I("s_waitcnt lgkmcnt(0)")
    a.I("s_memtime s[94:95]")
    a.I("s_waitcnt lgkmcnt(0)")
    a.I(f"s_mov_b32 s{86+2*i}, s94")
    a.I("s_memrealtime s[94:95]")
    a.I("s_waitcnt lgkmcnt(0)")
    a.I(f"s_mov_b32 s{87+2*i}, s94")

def stamp_flush(a, kidx, ws, wave_sgpr):
    if not STAMPS: return
    a.I("s_waitcnt vmcnt(0)")
    stamp(a, 3)
    a.I(f"s_add_u32 s84, s{ws}, {STAMP_OFF}")
    a.I(f"s_addc_u32 s85, s{ws+1}, 0")
    a.I(f"s_add_u32 s94, s2, {kidx*256}")
    a.I("s_lshl_b32 s94, s94, 4")
    a.I(f"s_add_u32 s94, s94, s{wave_sgpr}")
    a.I("s_lshl_b32 s94, s94, 5")
    for i in range(8):
        a.I(f"v_mov_b32 v{240+i if False else 8+i}, s{86+i}")
    a.I("v_mov_b32 v16, s94")
    a.I("s_mov_b64 exec, 1")
    a.I("global_store_dwordx4 v16, v[8:11], s[84:85]")
    a.I("global_store_dwordx4 v16, v[12:15], s[84:85] offset:16")
    a.I("s_waitcnt vmcnt(0)")

def desc(K, vgpr, sgpr=96):
    vg = (vgpr + 7) // 8 * 8
    return f""".amdhsa_kernel {K}
  .amdhsa_next_free_vgpr {vg}
  .amdhsa_next_free_sgpr {sgpr}
  .amdhsa_accum_offset {vg}
  .amdhsa_group_segment_fixed_size 0
  .amdhsa_kernarg_size 96
  .amdhsa_user_sgpr_count 2
  .amdhsa_user_sgpr_kernarg_segment_ptr 1
  .amdhsa_system_sgpr_workgroup_id_x 1
.end_amdhsa_kernel
"""

def tr_lane_addr(a, dst, lane, tmp, tmp2, hrow_shift_rows):
    a.I(f"v_bfe_u32 v{tmp}, v{lane}, 2, 2")
    a.I(f"v_lshrrev_b32 v{tmp2}, 5, v{lane}")
    a.I(f"v_mul_u32_u24 v{tmp2}, {hrow_shift_rows}, v{tmp2}")
    a.I(f"v_add_u32 v{tmp}, v{tmp}, v{tmp2}")
    a.I(f"v_lshlrev_b32 v{dst}, 7, v{tmp}")
    a.I(f"v_bfe_u32 v{tmp}, v{lane}, 4, 1")
    a.I(f"v_lshlrev_b32 v{tmp}, 1, v{tmp}")
    a.I(f"v_bfe_u32 v{tmp2}, v{lane}, 1, 1")
    a.I(f"v_add_u32 v{tmp}, v{tmp}, v{tmp2}")
    a.I(f"v_bfe_u32 v{tmp2}, v{lane}, 3, 1")
    a.I(f"v_lshlrev_b32 v{tmp2}, 2, v{tmp2}")
    a.I(f"v_xor_b32 v{tmp}, v{tmp}, v{tmp2}")
    a.I(f"v_lshl_add_u32 v{dst}, v{tmp}, 4, v{dst}")
    a.I(f"v_and_b32 v{tmp}, 1, v{lane}")
    a.I(f"v_lshl_add_u32 v{dst}, v{tmp}, 3, v{dst}")

def dma_w_lane_off(a, dst, lane, tmp, tmp2, pitch_sgpr_or_imm):
    a.I(f"v_lshrrev_b32 v{tmp}, 3, v{lane}")
    if isinstance(pitch_sgpr_or_imm, int):
        a.I(f"v_mul_u32_u24 v{dst}, {pitch_sgpr_or_imm}, v{tmp}")
    else:
        a.I(f"v_mul_lo_u32 v{dst}, {pitch_sgpr_or_imm}, v{tmp}")
    a.I(f"v_bfe_u32 v{tmp}, v{lane}, 4, 1")
    a.I(f"v_lshlrev_b32 v{tmp}, 2, v{tmp}")
    a.I(f"v_and_b32 v{tmp2}, 7, v{lane}")
    a.I(f"v_xor_b32 v{tmp}, v{tmp}, v{tmp2}")
    a.I(f"v_lshl_add_u32 v{dst}, v{tmp}, 4, v{dst}")

def gen_k1():
    a = Asm()
    K = "k1_kernel"
    kernel_head(a, K)
    a.I("s_cmp_ge_u32 s2, 256")
    a.I("s_cbranch_scc1 L_k1_end")
    stamp(a, 0)
    a.I("s_load_dwordx4 s[4:7], s[0:1], 0")
    a.I("s_load_dwordx4 s[8:11], s[0:1], 24")
    a.I("s_load_dwordx2 s[12:13], s[0:1], 40")
    a.I("s_load_dwordx2 s[14:15], s[0:1], 64")
    a.I("s_load_dwordx2 s[16:17], s[0:1], 88")
    a.I("v_lshrrev_b32 v2, 6, v0")
    a.I("v_and_b32 v1, 63, v0")
    a.I("v_readfirstlane_b32 s21, v2")
    a.I("s_and_b32 s52, s2, 7")
    a.I("s_lshr_b32 s53, s2, 3")
    a.I("s_lshr_b32 s18, s52, 2")
    a.I("s_and_b32 s54, s52, 1")
    a.I("s_lshl_b32 s54, s54, 3")
    a.I("s_and_b32 s55, s53, 7")
    a.I("s_add_u32 s19, s54, s55")
    a.I("s_bfe_u32 s54, s52, 0x10001")
    a.I("s_lshl_b32 s54, s54, 2")
    a.I("s_lshr_b32 s55, s53, 3")
    a.I("s_add_u32 s20, s54, s55")
    a.I("s_mul_i32 s54, s20, 6")
    a.I("s_min_u32 s22, s54, 37")
    a.I("s_lshl_b32 s54, s22, 6")
    a.I("s_lshl_b32 s55, s20, 7")
    a.I("s_waitcnt lgkmcnt(0)")
    a.I("s_cmp_eq_u32 s18, 0")
    a.I("s_cselect_b32 s49, s55, s54")
    a.I("s_movk_i32 s48, 2752")
    a.I("s_movk_i32 s50, 128")
    a.I("s_cselect_b32 s48, 3072, s48")
    a.I("s_cselect_b32 s50, 1024, s50")
    a.I("s_mov_b32 s56, s4")
    a.I("s_mov_b32 s57, s5")
    a.I("s_cselect_b32 s58, s6, s10")
    a.I("s_cselect_b32 s59, s7, s11")
    a.I("s_lshl_b32 s54, s19, 17")
    srd_off(a, 24, 56, "s54", 131072)
    a.I("s_lshl_b32 s54, s48, 9")
    a.I("s_mov_b32 s28, s58")
    a.I("s_mov_b32 s29, s59")
    a.I("s_mov_b32 s30, s54")
    a.I("s_mov_b32 s31, 0x20000")
    a.I("s_cmp_ge_u32 s21, 4")
    a.I("s_cbranch_scc1 L_k1_prod")

    H, XA, WA, ACC, FA, FB, B1 = 2, 26, 30, 32, 128, 148, 168
    def acc(rt, s): return ACC + (rt*3 + s)*16
    a.I(f"v_lshrrev_b32 v{H}, 5, v1")
    a.I("s_lshl_b32 s54, s2, 13")
    srd_off(a, 36, 4, "s54", 8192)
    srd(a, 40, 14, 1024)
    a.I("v_and_b32 v3, 31, v1")
    a.I("v_lshlrev_b32 v3, 5, v3")
    a.I("s_lshl_b32 s54, s21, 1")
    a.I(f"v_add_u32 v4, s54, v{H}")
    a.I("v_lshl_add_u32 v5, v4, 10, v3")
    a.I("buffer_load_dwordx4 v[8:11], v5, s[36:39], 0 offen")
    a.I("buffer_load_dwordx4 v[12:15], v5, s[36:39], 0 offen offset:16")
    a.I("buffer_load_dwordx4 v[16:19], v3, s[40:43], 0 offen")
    a.I("buffer_load_dwordx4 v[20:23], v3, s[40:43], 0 offen offset:16")
    a.I("s_and_b32 s60, s21, 1")
    a.I("s_lshr_b32 s61, s21, 1")
    a.I("s_cmp_eq_u32 s18, 0")
    a.I("s_cbranch_scc1 L_k1_zero")
    srd(a, 44, 12, 2752)
    a.I("s_add_u32 s54, s22, s60")
    a.I("s_lshl_b32 s54, s54, 6")
    a.I(f"v_lshlrev_b32 v6, 3, v{H}")
    for s in range(3):
        for q in range(4):
            r = B1 + (s*4+q)*2
            a.I(f"buffer_load_dwordx2 v[{r}:{r+1}], v6, s[44:47], s54 offen offset:{s*128+q*16}")
    a.I("s_waitcnt vmcnt(0)")
    for s in range(3):
        for q in range(4):
            r = B1 + (s*4+q)*2
            for rt in range(2):
                d = acc(rt, s) + q*4
                a.I(f"v_lshlrev_b32 v{d}, 16, v{r}")
                a.I(f"v_and_b32 v{d+1}, 0xffff0000, v{r}")
                a.I(f"v_lshlrev_b32 v{d+2}, 16, v{r+1}")
                a.I(f"v_and_b32 v{d+3}, 0xffff0000, v{r+1}")
    a.I("s_branch L_k1_gate")
    a.L("L_k1_zero")
    for i in range(96):
        a.I(f"v_mov_b32 v{ACC+i}, 0")
    a.L("L_k1_gate")
    a.I("s_waitcnt vmcnt(0)")
    a.I("v_mov_b32 v24, 0")
    for i in range(8):
        a.I(f"v_dot2c_f32_bf16 v24, v{8+i}, v{16+i}")
    a.I("s_nop 3")
    for sh in (1, 2, 4, 8):
        a.I(f"v_add_f32_dpp v24, v24, v24 row_shr:{sh} row_mask:0xf bank_mask:0xf")
        a.I("s_nop 1")
    a.I("v_add_f32_dpp v24, v24, v24 row_bcast:15 row_mask:0xa bank_mask:0xf")
    a.I("s_nop 1")
    a.I("v_cvt_pk_bf16_f32 v24, v24, v24")
    a.I("v_and_b32 v24, 0xffff0000, v24")
    a.I(f"v_mul_f32 v24, {hex(f2u(-1.4426950408889634))}, v24")
    a.I("v_exp_f32 v24, v24")
    a.I("s_nop 0")
    a.I("v_add_f32 v24, 1.0, v24")
    a.I("v_rcp_f32 v24, v24")
    a.I("s_nop 0")
    a.I("v_cvt_pk_bf16_f32 v24, v24, v24")
    a.I("v_and_b32 v24, 0xffff0000, v24")
    srd_off(a, 36, 16, GO, 8192)
    a.I("s_lshl_b32 s54, s2, 5")
    a.I("v_lshlrev_b32 v4, 2, v4")
    a.I("s_mov_b32 s62, 0x80000000")
    a.I("s_mov_b32 s63, 0x80000000")
    a.I("s_mov_b64 exec, s[62:63]")
    a.I("buffer_store_dword v24, v4, s[36:39], s54 offen")
    a.I("s_mov_b64 exec, -1")
    a.I("v_and_b32 v8, 31, v1")
    a.I("v_bfe_u32 v9, v1, 1, 3")
    a.I("s_lshl_b32 s54, s61, 6")
    a.I("v_add_u32 v8, s54, v8")
    a.I("v_lshlrev_b32 v8, 7, v8")
    a.I(f"v_xor_b32 v9, v9, v{H}")
    for ks in range(4):
        a.I(f"v_xor_b32 v10, {2*ks}, v9")
        a.I(f"v_lshl_add_u32 v{XA+ks}, v10, 4, v8")
    tr_lane_addr(a, WA, 1, 8, 9, 8)
    a.I("s_lshl_b32 s54, s60, 6")
    a.I(f"v_xor_b32 v{WA}, s54, v{WA}")
    a.I(f"v_add_u32 v{WA}, 0x10000, v{WA}")
    a.I(f"v_add_u32 v{WA+1}, 49152, v{WA}")

    def reads(b, ks, F):
        out = []
        for rt in range(2):
            out.append(f"ds_read_b128 {vr(F+4*rt,4)}, v{XA+ks} offset:{b*16384 + rt*4096}")
        wv = WA + (b >> 1)
        for s in range(3):
            for rd in range(2):
                out.append(f"ds_read_b64_tr_b16 {vr(F+8+4*s+2*rd,2)}, v{wv} offset:{(b&1)*24576 + s*8192 + ks*2048 + rd*512}")
        return out
    def mfmas(F, qkv):
        out = []
        for rt in range(2):
            for s in range(3):
                X, W = F+4*rt, F+8+4*s
                if qkv and s == 2:
                    out.append(MF(acc(rt, s), X, W, acc(rt, s)))
                else:
                    out.append(MF(acc(rt, s), W, X, acc(rt, s)))
        return out

    def mainloop(tag, qkv):
        a.I("s_barrier")
        stamp(a, 1)
        a.I("\n".join(reads(0, 0, FA)))
        a.I("s_mov_b32 s64, 0")
        a.L(f"L_k1_loop_{tag}")
        body = Asm()
        for b in range(4):
            body.I("\n".join(reads(b, 1, FB)));  body.I("s_waitcnt lgkmcnt(8)"); body.I("\n".join(mfmas(FA, qkv)))
            body.I("\n".join(reads(b, 2, FA)));  body.I("s_waitcnt lgkmcnt(8)"); body.I("\n".join(mfmas(FB, qkv)))
            body.I("\n".join(reads(b, 3, FB)));  body.I("s_waitcnt lgkmcnt(8)"); body.I("\n".join(mfmas(FA, qkv)))
            body.I("s_waitcnt lgkmcnt(0)")
            if b == 3:
                body.I("s_cmp_lg_u32 s64, 0")
                body.I(f"s_cbranch_scc1 L_k1_last_{tag}")
            body.I("s_barrier")
            body.I("\n".join(reads((b+1) % 4, 0, FA)))
            body.I("\n".join(mfmas(FB, qkv)))
        a.lines += body.lines
        a.I("s_mov_b32 s64, 1")
        a.I(f"s_branch L_k1_loop_{tag}")
        a.L(f"L_k1_last_{tag}")
        a.I("\n".join(mfmas(FB, qkv)))
        a.I("s_nop 15")
        stamp(a, 2)

    a.I("s_cmp_eq_u32 s18, 0")
    a.I("s_cbranch_scc0 L_k1_ffn")
    mainloop("q", True)
    srd(a, 32, 16, 6*MB)
    a.I("s_lshl_b32 s54, s19, 2")
    a.I("s_lshl_b32 s55, s61, 1")
    a.I("s_add_u32 s54, s54, s55")
    a.I("s_lshl_b32 s55, s20, 2")
    a.I("s_lshl_b32 s65, s60, 1")
    a.I("s_add_u32 s55, s55, s65")
    a.I("s_lshl_b32 s55, s55, 6")
    a.I("s_add_u32 s54, s54, s55")
    a.I("s_lshl_b32 s54, s54, 10")
    a.I("v_lshlrev_b32 v3, 4, v1")
    a.I("v_bfe_u32 v4, v1, 4, 1")
    a.I("v_lshlrev_b32 v4, 16, v4")
    a.I(f"v_lshl_add_u32 v4, v{H}, 8, v4")
    a.I("v_and_b32 v5, 15, v1")
    a.I("v_lshl_add_u32 v4, v5, 4, v4")
    a.I(f"s_mov_b32 s66, {hex(f2u(QSCALE))}")
    for rt in range(2):
        for s in range(3):
            d = acc(rt, s)
            if s == 0:
                for i in range(16):
                    a.I(f"v_mul_f32 v{d+i}, s66, v{d+i}")
            for j in range(8):
                a.I(f"v_cvt_pk_bf16_f32 v{d+j}, v{d+2*j}, v{d+2*j+1}")
            if s < 2:
                for hh in range(2):
                    a.I(f"s_add_u32 s55, s54, {s*KF + rt*1024 + hh*65536}")
                    a.I(f"buffer_store_dwordx4 {vr(d+4*hh,4)}, v3, s[32:35], s55 offen")
            else:
                a.I(f"s_add_u32 s55, s54, {VF + rt*1024}")
                for u in range(2):
                    a.I(f"buffer_store_dwordx4 {vr(d+4*u,4)}, v4, s[32:35], s55 offen offset:{u*512}")
    stamp_flush(a, 0, 16, 21)
    a.I("s_endpgm")
    a.L("L_k1_ffn")
    mainloop("f", False)
    srd_off(a, 32, 16, HF, HF_SIZE)
    a.I("s_lshl_b32 s54, s19, 2")
    a.I("s_lshl_b32 s55, s61, 1")
    a.I("s_add_u32 s54, s54, s55")
    a.I("s_add_u32 s55, s22, s60")
    a.I("s_lshl_b32 s55, s55, 7")
    a.I("s_add_u32 s54, s54, s55")
    a.I("s_lshl_b32 s54, s54, 10")
    a.I("v_lshlrev_b32 v3, 4, v1")
    for rt in range(2):
        for s in range(3):
            d = acc(rt, s)
            for i in range(16):
                a.I(f"v_max_f32 v{d+i}, 0, v{d+i}")
            for i in range(16):
                a.I(f"v_mul_f32 v{d+i}, v{d+i}, v{d+i}")
            for j in range(8):
                a.I(f"v_cvt_pk_bf16_f32 v{d+j}, v{d+2*j}, v{d+2*j+1}")
            for uu in range(2):
                a.I(f"s_add_u32 s55, s54, {rt*1024 + (4*s+uu)*65536}")
                a.I(f"buffer_store_dwordx4 {vr(d+4*uu,4)}, v3, s[32:35], s55 offen")
    stamp_flush(a, 0, 16, 21)
    a.I("s_endpgm")

    a.L("L_k1_prod")
    a.I("s_sub_u32 s67, s21, 4")
    a.I("v_lshrrev_b32 v2, 3, v1")
    a.I("s_lshl_b32 s54, s67, 3")
    a.I("v_add_u32 v2, s54, v2")
    a.I("v_lshrrev_b32 v3, 4, v1")
    a.I("s_and_b32 s54, s67, 1")
    a.I("s_lshl_b32 s54, s54, 2")
    a.I("v_add_u32 v3, s54, v3")
    a.I("v_and_b32 v4, 7, v1")
    a.I("v_xor_b32 v3, v3, v4")
    a.I("v_lshlrev_b32 v3, 4, v3")
    a.I("v_lshl_add_u32 v8, v2, 10, v3")
    a.I("v_mul_lo_u32 v9, s48, v2")
    a.I("v_bfe_u32 v3, v1, 4, 1")
    a.I("v_lshlrev_b32 v3, 2, v3")
    a.I("v_xor_b32 v3, v3, v4")
    a.I("v_lshl_add_u32 v9, v3, 4, v9")
    a.I("s_lshl_b32 s68, s67, 10")
    a.I("s_add_u32 s69, s68, 0x10000")
    a.I("s_lshl_b32 s70, s48, 6")
    a.I("s_lshl_b32 s71, s48, 5")
    for s in range(3):
        for n in range(2):
            j = 72 + s*2 + n
            a.I(f"s_mul_i32 s{j}, s50, {s}")
            if n: a.I(f"s_add_u32 s{j}, s{j}, s71")
            a.I(f"s_add_u32 s{j}, s{j}, s49")
    def issue(c_sgpr):
        a.I(f"s_and_b32 s78, {c_sgpr}, 3")
        a.I("s_lshl_b32 s79, s78, 14")
        a.I("s_add_u32 s79, s79, s68")
        a.I("s_mul_i32 s80, s78, 24576")
        a.I("s_add_u32 s80, s80, s69")
        a.I(f"s_lshl_b32 s81, {c_sgpr}, 7")
        a.I(f"s_mul_i32 s82, {c_sgpr}, s70")
        for n in range(4):
            a.I(f"s_add_u32 m0, s79, {n*4096}")
            a.I(f"s_add_u32 s83, s81, {n*32768}")
            a.I("buffer_load_dwordx4 v8, s[24:27], s83 offen lds")
        for s in range(3):
            for n in range(2):
                a.I(f"s_add_u32 m0, s80, {s*8192 + n*4096}")
                a.I(f"s_add_u32 s83, s82, s{72+s*2+n}")
                a.I("buffer_load_dwordx4 v9, s[28:31], s83 offen lds")
    a.I("s_mov_b32 s84, 0")
    a.L("L_k1_pro")
    issue("s84")
    a.I("s_add_u32 s84, s84, 1")
    a.I("s_cmp_lt_u32 s84, 3")
    a.I("s_cbranch_scc1 L_k1_pro")
    if STAMPS: a.I("s_mov_b32 s85, s84")
    stamp(a, 1)
    a.L("L_k1_ploop")
    a.I("s_waitcnt vmcnt(20)")
    a.I("s_barrier")
    issue("s84")
    a.I("s_add_u32 s84, s84, 1")
    a.I("s_cmp_lt_u32 s84, 8")
    a.I("s_cbranch_scc1 L_k1_ploop")
    a.I("s_waitcnt vmcnt(20)")
    a.I("s_barrier")
    a.I("s_waitcnt vmcnt(10)")
    a.I("s_barrier")
    a.I("s_waitcnt vmcnt(0)")
    a.I("s_barrier")
    stamp(a, 2)
    stamp_flush(a, 0, 16, 21)
    a.L("L_k1_end")
    a.I("s_endpgm")
    return a, K, 192

def tr_reads_perm(F, va0, va1, slot_off):
    out = []
    for ct, va in ((0, va0), (1, va1)):
        for rd in range(2):
            out.append(f"ds_read_b64_tr_b16 {vr(F+4*ct+2*rd,2)}, v{va} offset:{slot_off + rd*1024}")
    return out

K2_RING, K2_PART, K2_XCH, K2_FLAG = 0, 32768, 98304, 98304 + 8*2304
K2_LDS = K2_FLAG + 64
def gen_k2():
    a = Asm()
    K = "k2_kernel"
    kernel_head(a, K)
    a.I("s_cmp_ge_u32 s2, 256")
    a.I("s_cbranch_scc1 L_k2_end")
    stamp(a, 0)
    a.I("s_load_dwordx2 s[4:5], s[0:1], 88")
    a.I("s_load_dwordx4 s[8:11], s[0:1], 48")
    a.I("v_lshrrev_b32 v2, 6, v0")
    a.I("v_and_b32 v1, 63, v0")
    a.I("v_readfirstlane_b32 s21, v2")
    a.I("s_and_b32 s12, s2, 7")
    a.I("s_lshl_b32 s12, s12, 2")
    a.I("s_bfe_u32 s13, s2, 0x20003")
    a.I("s_add_u32 s12, s12, s13")
    a.I("s_lshr_b32 s13, s2, 5")
    a.I(f"v_mov_b32 v2, {K2_FLAG}")
    a.I("v_mov_b32 v4, 0")
    a.I("v_mov_b32 v5, 0")
    a.I("ds_write_b64 v2, v[4:5]")
    a.I("s_waitcnt lgkmcnt(0)")
    a.I("s_cmp_ge_u32 s21, 8")
    a.I("s_cbranch_scc1 L_k2_ffn")
    QA, QB, K0, V0, S0, S1, OA, OB = 4, 8, 12, 20, 36, 52, 68, 84
    KB = [12, 16]; VB = [20, 28]
    VK, VV = 2, 3
    a.I("s_and_b32 s14, s21, 3")
    a.I("s_lshr_b32 s15, s21, 2")
    a.I("s_lshl_b32 s16, s12, 16")
    a.I(f"s_add_u32 s17, s16, {KF}")
    srd_off(a, 24, 4, "s17", 65536)
    a.I(f"s_add_u32 s17, s16, {VF}")
    srd_off(a, 28, 4, "s17", 65536)
    srd_off(a, 32, 4, "s16", 65536)
    a.I(f"v_lshlrev_b32 v{VK}, 4, v1")
    a.I("v_lshrrev_b32 v4, 5, v1")
    a.I("v_and_b32 v5, 15, v1")
    a.I("v_lshlrev_b32 v5, 4, v5")
    a.I(f"v_lshl_add_u32 v{VV}, v4, 8, v5")
    a.I("s_lshl_b32 s17, s13, 3")
    a.I("s_lshl_b32 s18, s14, 1")
    a.I("s_add_u32 s17, s17, s18")
    a.I("s_lshl_b32 s18, s17, 10")
    a.I(f"buffer_load_dwordx4 {vr(QA,4)}, v{VK}, s[32:35], s18 offen")
    a.I(f"buffer_load_dwordx4 {vr(QB,4)}, v{VK}, s[32:35], s18 offen offset:1024")
    a.I("s_lshl_b32 s19, s13, 3")
    a.I("s_add_u32 s19, s19, s21")
    a.I("s_lshl_b32 s19, s19, 10")
    a.I(f"buffer_load_dwordx4 v[100:103], v{VK}, s[24:27], s19 offen")
    a.I(f"buffer_load_dwordx4 v[104:107], v{VK}, s[28:31], s19 offen")
    for i in range(16):
        a.I(f"v_mov_b32 v{VB[0]+i}, 0x3f803f80")
    a.I("s_lshl_b32 s36, s15, 15")
    a.I("s_mov_b32 s38, 0x0000ffff")
    a.I("s_mov_b32 s39, 0x0000ffff")
    a.I(f"buffer_load_dwordx4 {vr(KB[0],4)}, v{VK}, s[24:27], s36 offen")
    a.I("s_mov_b64 exec, s[38:39]")
    a.I(f"buffer_load_dwordx4 {vr(VB[0],4)}, v{VV}, s[28:31], s36 offen")
    a.I(f"buffer_load_dwordx4 {vr(VB[0]+4,4)}, v{VV}, s[28:31], s36 offen offset:512")
    a.I("s_mov_b64 exec, -1")
    a.I(f"buffer_load_dwordx4 {vr(KB[1],4)}, v{VK}, s[24:27], s36 offen offset:1024")
    for i in range(16):
        a.I(f"v_mov_b32 v{OA+i}, 0")
        a.I(f"v_mov_b32 v{OB+i}, 0")
    for i in range(4):
        a.I(f"v_mov_b32 v{S1+4+i}, 0")
    a.I("s_barrier")
    a.I("s_waitcnt vmcnt(3)")
    stamp(a, 1)
    a.I(MF(S0, KB[0], QA))
    a.I("s_nop 7")
    a.I("s_nop 3")

    def tile(Sin, Sout, Qn, Kn, Ocur, Vcur_u0, Oprev, Vprev_u1, after_pv2, wait_s, after_s, wait_pv1):
        e = lambda i: f"v_exp_f32 v{Sin+i}, v{Sin+i}"
        c = lambda j: f"v_cvt_pk_bf16_f32 v{Sin+j}, v{Sin+2*j}, v{Sin+2*j+1}"
        L = []
        L += [e(0), e(1)]
        L.append(MF(Oprev, Vprev_u1, Sout+4, Oprev))
        L += after_pv2
        L += [e(2), e(3), c(0), e(4), e(5), c(1)]
        L += wait_s
        L.append(MF(Sout, Kn, Qn))
        L += after_s
        L += [e(6), e(7), c(2), e(8), e(9), c(3), e(10), e(11)]
        L += wait_pv1
        L.append(MF(Ocur, Vcur_u0, Sin, Ocur))
        L += [c(4), e(12), e(13), c(5), e(14), e(15), c(6), c(7)]
        return L
    def keytile(kap, off):
        vload = ["s_mov_b64 exec, s[38:39]",
                 f"buffer_load_dwordx4 {vr(VB[kap^1],4)}, v{VV}, s[28:31], s36 offen offset:{off+1024}",
                 f"buffer_load_dwordx4 {vr(VB[kap^1]+4,4)}, v{VV}, s[28:31], s36 offen offset:{off+1536}",
                 "s_mov_b64 exec, -1"]
        kload = [f"buffer_load_dwordx4 {vr(KB[kap],4)}, v{VK}, s[24:27], s36 offen offset:{off+2048}"]
        L = tile(S0, S1, QB, KB[kap], OA, VB[kap], OB, VB[kap^1]+4, vload, [], kload, ["s_waitcnt vmcnt(4)"])
        L += tile(S1, S0, QA, KB[kap^1], OB, VB[kap], OA, VB[kap]+4, [], ["s_waitcnt vmcnt(3)"], [], [])
        return L
    a.I("s_mov_b32 s37, 16")
    a.raw(".p2align 6")
    a.L("L_k2_aloop")
    body = keytile(0, 0) + keytile(1, 1024)
    a.I("\n".join(body))
    a.I("s_add_u32 s36, s36, 2048")
    a.I("s_sub_u32 s37, s37, 1")
    a.I("s_cmp_lg_u32 s37, 0")
    a.I("s_cbranch_scc1 L_k2_aloop")
    a.I("s_nop 1")
    a.I(MF(OB, VB[1]+4, S1+4, OB))
    a.I("s_nop 15")
    stamp(a, 2)
    a.I(f"s_mul_i32 s40, s21, 2304")
    a.I(f"s_add_u32 s40, s40, {K2_XCH}")
    a.I("s_xor_b32 s41, s21, 4")
    a.I(f"s_mul_i32 s41, s41, 2304")
    a.I(f"s_add_u32 s41, s41, {K2_XCH}")
    a.I("v_lshlrev_b32 v4, 4, v1")
    a.I("v_add_u32 v5, s41, v4")
    a.I("v_add_u32 v4, s40, v4")
    a.I("v_lshlrev_b32 v6, 2, v1")
    a.I("v_add_u32 v7, s41, v6")
    a.I("v_add_u32 v6, s40, v6")
    a.I("s_cmp_eq_u32 s15, 0")
    a.I("s_cbranch_scc1 L_k2_x0")
    for i in range(9):
        a.I(f"v_mov_b32 v{S0+i}, v{OA+i}")
        a.I(f"v_mov_b32 v{OA+i}, v{OB+i}")
        a.I(f"v_mov_b32 v{OB+i}, v{S0+i}")
    a.L("L_k2_x0")
    a.I(f"ds_write_b128 v4, {vr(OB,4)}")
    a.I(f"ds_write_b128 v4, {vr(OB+4,4)} offset:1024")
    a.I(f"ds_write_b32 v6, v{OB+8} offset:2048")
    a.I("s_waitcnt lgkmcnt(0)")
    a.I("s_barrier")
    a.I(f"ds_read_b128 {vr(S0,4)}, v5")
    a.I(f"ds_read_b128 {vr(S0+4,4)}, v5 offset:1024")
    a.I(f"ds_read_b32 v{S0+8}, v7 offset:2048")
    a.I("s_waitcnt lgkmcnt(0)")
    for i in range(9):
        a.I(f"v_add_f32 v{OA+i}, v{OA+i}, v{S0+i}")
    a.I(f"v_rcp_f32 v{OA+8}, v{OA+8}")
    a.I("s_nop 0")
    for i in range(8):
        a.I(f"v_mul_f32 v{OA+i}, v{OA+i}, v{OA+8}")
    for j in range(4):
        a.I(f"v_cvt_pk_bf16_f32 v{OA+j}, v{OA+2*j}, v{OA+2*j+1}")
    srd_off(a, 32, 4, OF, 2*MB)
    a.I("s_add_u32 s17, s17, s15")
    a.I("s_lshl_b32 s17, s17, 5")
    a.I("s_add_u32 s17, s17, s12")
    a.I("s_lshl_b32 s17, s17, 10")
    a.I(f"buffer_store_dwordx4 {vr(OA,4)}, v{VK}, s[32:35], s17 offen")
    stamp_flush(a, 1, 4, 21)
    a.I("s_endpgm")

    a.L("L_k2_ffn")
    a.I("s_barrier")
    if OPT.get("noffn"): a.I("s_endpgm")
    a.I(f"s_setprio {OPT.get('ffnprio', 2)}")
    WF, HR, ACC = 16, 32, 64
    VH, VW, VA0, VA1 = 2, 3, 4, 5
    a.I("s_sub_u32 s14, s21, 8")
    srd(a, 24, 8, 1376*1024)
    srd_off(a, 28, 4, HF, HF_SIZE)
    a.I(f"v_lshlrev_b32 v{VH}, 4, v1")
    dma_w_lane_off(a, VW, 1, 6, 7, 1024)
    a.I("s_lshl_b32 s15, s13, 7")
    a.I(f"v_add_u32 v{VW}, s15, v{VW}")
    tr_lane_addr(a, VA0, 1, 6, 7, 4)
    a.I("s_lshl_b32 s16, s14, 13")
    a.I(f"v_add_u32 v{VA0}, s16, v{VA0}")
    a.I(f"v_xor_b32 v{VA1}, 64, v{VA0}")
    a.I("s_mul_i32 s17, s14, 24")
    a.I("s_lshl_b32 s36, s17, 14")
    a.I("s_lshl_b32 s37, s17, 16")
    a.I("s_lshl_b32 s18, s12, 11")
    a.I("s_add_u32 s37, s37, s18")
    for i in range(64):
        a.I(f"v_mov_b32 v{ACC+i}, 0")
    def issue(slot):
        L = []
        L.append(f"s_add_u32 m0, s16, {slot*2048}")
        L.append(f"s_add_u32 s19, s36, 8192")
        L.append(f"buffer_load_dwordx4 v{VW}, s[24:27], s36 offen lds")
        L.append(f"s_add_u32 m0, s16, {slot*2048+1024}")
        L.append(f"s_add_u32 s36, s36, 16384")
        L.append(f"buffer_load_dwordx4 v{VW}, s[24:27], s19 offen lds")
        L.append(f"buffer_load_dwordx4 {vr(HR+slot*8,4)}, v{VH}, s[28:31], s37 offen")
        L.append(f"buffer_load_dwordx4 {vr(HR+slot*8+4,4)}, v{VH}, s[28:31], s37 offen offset:1024")
        L.append(f"s_add_u32 s37, s37, 65536")
        return L
    for slot in range(4):
        a.I("\n".join(issue(slot)))
    stamp(a, 1)
    a.I("s_mov_b32 s38, 6")
    a.L("L_k2_floop")
    for slot in range(4):
        a.I("s_waitcnt vmcnt(12)")
        a.I("\n".join(tr_reads_perm(WF, VA0, VA1, slot*2048)))
        a.I("s_waitcnt lgkmcnt(0)")
        for ct in range(2):
            for rt in range(2):
                d = ACC + (ct*2+rt)*16
                a.I(MF(d, WF+4*ct, HR+slot*8+4*rt, d))
        a.I("\n".join(issue(slot)))
    a.I("s_sub_u32 s38, s38, 1")
    a.I("s_cmp_lg_u32 s38, 0")
    a.I("s_cbranch_scc1 L_k2_floop")
    a.I("s_nop 15")
    stamp(a, 2)
    a.I("s_lshl_b32 s16, s14, 14")
    a.I(f"s_add_u32 s16, s16, {K2_PART}")
    a.I(f"v_add_u32 v6, s16, v{VH}")
    for i in range(16):
        a.I(f"ds_write_b128 v6, {vr(ACC+4*i,4)} offset:{i*1024}")
    srd_off(a, 40, 4, GO, 8192)
    srd(a, 44, 10, 1024)
    a.I("s_and_b32 s15, s14, 1")
    a.I("s_lshr_b32 s17, s14, 1")
    a.I("s_lshl_b32 s18, s12, 6")
    a.I("s_lshl_b32 s19, s15, 5")
    a.I("s_add_u32 s18, s18, s19")
    a.I("s_lshl_b32 s18, s18, 2")
    a.I("v_and_b32 v7, 31, v1")
    a.I("v_lshlrev_b32 v7, 2, v7")
    a.I("buffer_load_dword v8, v7, s[40:43], s18 offen")
    a.I("s_lshl_b32 s18, s13, 6")
    a.I("s_lshl_b32 s19, s17, 5")
    a.I("s_add_u32 s18, s18, s19")
    a.I("s_lshl_b32 s18, s18, 1")
    a.I("v_lshrrev_b32 v7, 5, v1")
    a.I("v_lshlrev_b32 v7, 3, v7")
    for q in range(4):
        a.I(f"buffer_load_dwordx2 v[{16+2*q}:{17+2*q}], v7, s[44:47], s18 offen offset:{q*16}")
    a.I("s_waitcnt lgkmcnt(0)")
    a.I(f"v_mov_b32 v9, {K2_FLAG}")
    a.I("v_mov_b32 v10, 1")
    a.I("s_mov_b64 exec, 1")
    a.I("ds_add_u32 v9, v10")
    a.I("s_mov_b64 exec, -1")
    a.L("L_k2_fspin")
    a.I("ds_read_b32 v10, v9")
    a.I("s_waitcnt lgkmcnt(0)")
    a.I("v_readfirstlane_b32 s50, v10")
    a.I("s_nop 0")
    a.I("s_cmp_ge_u32 s50, 4")
    a.I("s_cbranch_scc1 L_k2_fgo")
    a.I("s_sleep 2")
    a.I("s_branch L_k2_fspin")
    a.L("L_k2_fgo")
    a.I("s_lshl_b32 s16, s14, 12")
    a.I(f"s_add_u32 s16, s16, {K2_PART}")
    a.I(f"v_add_u32 v6, s16, v{VH}")
    for p in range(4):
        for q in range(4):
            a.I(f"ds_read_b128 {vr(ACC+p*16+q*4,4)}, v6 offset:{p*16384+q*1024}")
    a.I("s_waitcnt lgkmcnt(0)")
    for i in range(16):
        a.I(f"v_add_f32 v{ACC+i}, v{ACC+i}, v{ACC+16+i}")
        a.I(f"v_add_f32 v{ACC+32+i}, v{ACC+32+i}, v{ACC+48+i}")
    for i in range(16):
        a.I(f"v_add_f32 v{ACC+i}, v{ACC+i}, v{ACC+32+i}")
    a.I("s_waitcnt vmcnt(0)")
    a.I("v_sub_f32 v8, 1.0, v8")
    a.I("v_cvt_pk_bf16_f32 v8, v8, v8")
    a.I("v_and_b32 v8, 0xffff0000, v8")
    for q in range(4):
        a.I(f"v_lshlrev_b32 v24, 16, v{16+2*q}")
        a.I(f"v_and_b32 v25, 0xffff0000, v{16+2*q}")
        a.I(f"v_lshlrev_b32 v26, 16, v{17+2*q}")
        a.I(f"v_and_b32 v27, 0xffff0000, v{17+2*q}")
        for j in range(4):
            a.I(f"v_add_f32 v{ACC+4*q+j}, v{ACC+4*q+j}, v{24+j}")
        for j in range(4):
            a.I(f"v_mul_f32 v{ACC+4*q+j}, v{ACC+4*q+j}, v8")
    srd_off(a, 40, 4, BP, 4*MB)
    a.I("s_lshl_b32 s16, s2, 14")
    a.I("s_lshl_b32 s17, s14, 12")
    a.I("s_add_u32 s16, s16, s17")
    for q in range(4):
        a.I(f"buffer_store_dwordx4 {vr(ACC+4*q,4)}, v{VH}, s[40:43], s16 offen offset:{q*1024}")
    stamp_flush(a, 1, 4, 21)
    a.L("L_k2_end")
    a.I("s_endpgm")
    return a, K, 168

def gen_k3():
    a = Asm()
    K = "k3_kernel"
    kernel_head(a, K)
    a.I("s_cmp_ge_u32 s2, 256")
    a.I("s_cbranch_scc1 L_k3_end")
    stamp(a, 0)
    a.I("s_load_dwordx2 s[4:5], s[0:1], 88")
    a.I("s_load_dwordx2 s[6:7], s[0:1], 16")
    a.I("s_load_dwordx2 s[8:9], s[0:1], 72")
    a.I("v_lshrrev_b32 v2, 6, v0")
    a.I("v_and_b32 v1, 63, v0")
    a.I("v_readfirstlane_b32 s21, v2")
    a.I("s_and_b32 s12, s2, 7")
    a.I("s_lshl_b32 s12, s12, 2")
    a.I("s_bfe_u32 s13, s2, 0x20003")
    a.I("s_add_u32 s12, s12, s13")
    a.I("s_lshr_b32 s13, s2, 5")
    OR_, WF, ACC = 64, 16, 128
    VH, VW, VA0, VA1 = 2, 3, 4, 5
    a.I(f"v_lshlrev_b32 v{VH}, 4, v1")
    dma_w_lane_off(a, VW, 1, 6, 7, 1024)
    a.I("s_lshl_b32 s15, s13, 7")
    a.I(f"v_add_u32 v{VW}, s15, v{VW}")
    a.I("s_lshl_b32 s16, s21, 14")
    a.I("s_lshl_b32 s36, s21, 17")
    a.I("s_waitcnt lgkmcnt(0)")
    srd(a, 24, 6, 512*1024)
    srd_off(a, 28, 4, OF, 2*MB)
    for ks in range(8):
        for n in range(2):
            a.I(f"s_add_u32 m0, s16, {ks*2048+n*1024}")
            a.I(f"s_add_u32 s19, s36, {ks*16384+n*8192}")
            a.I(f"buffer_load_dwordx4 v{VW}, s[24:27], s19 offen lds")
    a.I("s_lshl_b32 s18, s12, 6")
    a.I("s_lshl_b32 s19, s21, 3")
    a.I("s_add_u32 s18, s18, s19")
    a.I("s_lshl_b32 s18, s18, 10")
    for ks in range(8):
        for rt in range(2):
            a.I(f"s_add_u32 s19, s18, {rt*32768 + (ks//4)*4096}")
            a.I(f"buffer_load_dwordx4 {vr(OR_+ks*8+rt*4,4)}, v{VH}, s[28:31], s19 offen offset:{(ks%4)*1024}")
    srd_off(a, 40, 4, BP, 4*MB)
    a.I("s_lshl_b32 s17, s2, 14")
    a.I("s_lshl_b32 s19, s21, 12")
    a.I("s_add_u32 s17, s17, s19")
    for q in range(4):
        a.I(f"buffer_load_dwordx4 {vr(32+4*q,4)}, v{VH}, s[40:43], s17 offen offset:{q*1024}")
    srd_off(a, 44, 4, GO, 8192)
    a.I("s_and_b32 s22, s21, 1")
    a.I("s_lshr_b32 s23, s21, 1")
    a.I("s_lshl_b32 s18, s12, 6")
    a.I("s_lshl_b32 s19, s22, 5")
    a.I("s_add_u32 s18, s18, s19")
    a.I("s_lshl_b32 s19, s18, 2")
    a.I("v_and_b32 v7, 31, v1")
    a.I("v_lshlrev_b32 v8, 2, v7")
    a.I("buffer_load_dword v9, v8, s[44:47], s19 offen")
    tr_lane_addr(a, VA0, 1, 10, 11, 4)
    a.I(f"v_add_u32 v{VA0}, s16, v{VA0}")
    a.I(f"v_xor_b32 v{VA1}, 64, v{VA0}")
    for i in range(64):
        a.I(f"v_mov_b32 v{ACC+i}, 0")
    for ks in range(8):
        if ks == 0:
            a.I("s_waitcnt vmcnt(19)")
            stamp(a, 1)
        else:
            a.I(f"s_waitcnt vmcnt({19-2*ks})")
        F = WF + (ks & 1) * 8
        a.I("\n".join(tr_reads_perm(F, VA0, VA1, ks*2048)))
        a.I("s_waitcnt lgkmcnt(0)")
        for ct in range(2):
            for rt in range(2):
                d = ACC + (ct*2+rt)*16
                a.I(MF(d, F+4*ct, OR_+ks*8+4*rt, d))
    a.I("s_nop 15")
    stamp(a, 2)
    a.I(f"v_add_u32 v6, s16, v{VH}")
    for i in range(16):
        a.I(f"ds_write_b128 v6, {vr(ACC+4*i,4)} offset:{i*1024}")
    a.I("s_waitcnt lgkmcnt(0)")
    a.I("s_barrier")
    a.I("s_lshl_b32 s16, s21, 12")
    a.I(f"v_add_u32 v6, s16, v{VH}")
    for p in range(4):
        for q in range(4):
            a.I(f"ds_read_b128 {vr(ACC+p*16+q*4,4)}, v6 offset:{p*16384+q*1024}")
    a.I("s_waitcnt vmcnt(0) lgkmcnt(0)")
    for i in range(16):
        a.I(f"v_add_f32 v{ACC+i}, v{ACC+i}, v{ACC+16+i}")
        a.I(f"v_add_f32 v{ACC+32+i}, v{ACC+32+i}, v{ACC+48+i}")
    for i in range(16):
        a.I(f"v_add_f32 v{ACC+i}, v{ACC+i}, v{ACC+32+i}")
    for i in range(16):
        a.I(f"v_fma_f32 v{ACC+i}, v{ACC+i}, v9, v{32+i}")
    for j in range(8):
        a.I(f"v_cvt_pk_bf16_f32 v{ACC+j}, v{ACC+2*j}, v{ACC+2*j+1}")
    a.I("s_nop 1")
    a.I(f"v_permlane32_swap_b32 v{ACC}, v{ACC+2}")
    a.I(f"v_permlane32_swap_b32 v{ACC+1}, v{ACC+3}")
    a.I(f"v_permlane32_swap_b32 v{ACC+4}, v{ACC+6}")
    a.I(f"v_permlane32_swap_b32 v{ACC+5}, v{ACC+7}")
    srd(a, 40, 8, 2*MB)
    a.I("s_lshl_b32 s18, s18, 10")
    a.I("s_lshl_b32 s19, s13, 7")
    a.I("s_add_u32 s18, s18, s19")
    a.I("s_lshl_b32 s19, s23, 6")
    a.I("s_add_u32 s18, s18, s19")
    a.I("v_lshlrev_b32 v7, 10, v7")
    a.I("v_lshrrev_b32 v8, 5, v1")
    a.I("v_lshl_add_u32 v7, v8, 4, v7")
    a.I(f"buffer_store_dwordx4 {vr(ACC,4)}, v7, s[40:43], s18 offen")
    a.I(f"buffer_store_dwordx4 {vr(ACC+4,4)}, v7, s[40:43], s18 offen offset:32")
    stamp_flush(a, 2, 4, 21)
    a.L("L_k3_end")
    a.I("s_endpgm")
    return a, K, 192

HEADER = open("cdna_kernels/" + NAME + ".s.ref").read().split("; Override launch")[0]

def build(path):
    ks = [gen_k1(), gen_k2(), gen_k3()]
    launches = [("k1_kernel", 256, 512, 163840), ("k2_kernel", 256, 768, K2_LDS), ("k3_kernel", 256, 256, 65536)]
    if OPT.get("empty"):
        e = Asm(); kernel_head(e, "k4_kernel"); e.I("s_endpgm")
        ks.append((e, "k4_kernel", 8))
        launches += [("k4_kernel", 256, 64, 0)] * OPT["empty"]
    out = HEADER
    for k, g, b, l in launches:
        out += f"; @launch kernel={k} grid=({g},1,1) block=({b},1,1) lds={l}\n"
    out += '.amdgcn_target "amdgcn-amd-amdhsa--gfx950"\n.text\n'
    probs = []
    for a, K, vg in ks:
        out += a.text()
        probs += check_linear(a.lines, K)
    out += '.section .rodata,"a"\n'
    for a, K, vg in ks:
        out += ".p2align 6\n" + desc(K, vg)
    open(path, "w").write(out)
    return probs

if __name__ == "__main__":
    for x in list(sys.argv[1:]):
        if x.startswith("-D"):
            k, _, v = x[2:].partition("=")
            OPT[k] = int(v) if v else 1
            sys.argv.remove(x)
    if "--stamps" in sys.argv:
        STAMPS = True; sys.argv.remove("--stamps")
    path = sys.argv[1] if len(sys.argv) > 1 else "cdna_kernels/" + NAME + ".s"
    probs = build(path)
    for p in probs: print("HAZARD:", p)
    print("written", path, "problems:", len(probs))
```

```python
import sys, struct
from asmlib import *

NAME = "gated_mix__mha_block__dense_activation_squared_relu__prompt"
KN = NAME + "_kernel"
MB = 1 << 20
QF, KF, VF, HF, GO, OF, FLG = 0, 2*MB, 4*MB, 6*MB, 12*MB, 13*MB, 16*MB
HF_SIZE = 86 * 65536
FA_OFF, FH_OFF, FO_OFF = 0, 4096, 8192
QSCALE = 0.25 * 1.4426950408889634
STAMP_OFF = 32*MB
STAMPS = False
OPT = {}
def f2u(x): return struct.unpack("<I", struct.pack("<f", x))[0]

S_AX, S_WQKV, S_WO, S_W1, S_B1, S_W2, S_B2, S_GW, S_OUT, S_DBG, S_WS = 4, 6, 8, 12, 14, 16, 18, 20, 22, 24, 26
S_W = 3
S_TYPE, S_RB16, S_CG, S_START = 28, 29, 30, 31
RA, RB, RC, RD = 32, 36, 40, 44
S_NONCE, S_HD, S_QB = 60, 61, 62
L_K, L_V, L_RING, L_MISC = 0, 65536, 131072, 131072 + 24576
L_XCH = L_RING
M_KV, M_H, M_BAD = L_MISC, L_MISC + 4, L_MISC + 8
LDS_TOTAL = 163840

def srd(a, dst, base, size):
    a.I(f"s_mov_b32 s{dst}, s{base}")
    a.I(f"s_mov_b32 s{dst+1}, s{base+1}")
    a.I(f"s_mov_b32 s{dst+2}, {size}")
    a.I(f"s_mov_b32 s{dst+3}, 0x20000")
def srd_off(a, dst, base, off, size):
    a.I(f"s_add_u32 s{dst}, s{base}, {off}")
    a.I(f"s_addc_u32 s{dst+1}, s{base+1}, 0")
    a.I(f"s_mov_b32 s{dst+2}, {size}")
    a.I(f"s_mov_b32 s{dst+3}, 0x20000")
def MF(d, A, B, c=None):
    cc = "0" if c is None else vr(c, 16)
    return f"v_mfma_f32_32x32x16_bf16 {vr(d,16)}, {vr(A,4)}, {vr(B,4)}, {cc}"
def S4(r): return f"s[{r}:{r+3}]"

_stamp_names = []
def stamp(a, name):
    if not STAMPS: return
    if name not in _stamp_names: _stamp_names.append(name)
    i = _stamp_names.index(name)
    a.I("s_waitcnt lgkmcnt(0)")
    a.I("s_memtime s[98:99]")
    a.I("s_memrealtime s[100:101]")
    a.I("s_waitcnt lgkmcnt(0)")
    a.I(f"v_writelane_b32 v6, s98, {i}")
    a.I(f"v_writelane_b32 v7, s100, {i}")
def stamp_flush(a):
    if not STAMPS: return
    a.I("s_waitcnt vmcnt(0)")
    stamp(a, "end")
    a.I(f"s_add_u32 s96, s{S_WS}, {STAMP_OFF}")
    a.I(f"s_addc_u32 s97, s{S_WS+1}, 0")
    a.I("s_mul_i32 s98, s2, 12")
    a.I(f"s_add_u32 s98, s98, s{S_W}")
    a.I("s_lshl_b32 s98, s98, 9")
    a.I("v_lshlrev_b32 v2, 2, v1")
    a.I("v_add_u32 v2, s98, v2")
    a.I("s_mov_b64 exec, -1")
    a.I("global_store_dword v2, v6, s[96:97]")
    a.I("global_store_dword v2, v7, s[96:97] offset:256")
    a.I("s_waitcnt vmcnt(0)")

def tr_lane_addr(a, dst, lane, tmp, tmp2, hrows, pitch):
    a.I(f"v_bfe_u32 v{tmp}, v{lane}, 2, 2")
    a.I(f"v_lshrrev_b32 v{tmp2}, 5, v{lane}")
    a.I(f"v_mul_u32_u24 v{tmp2}, {hrows}, v{tmp2}")
    a.I(f"v_add_u32 v{tmp}, v{tmp}, v{tmp2}")
    a.I(f"v_mul_u32_u24 v{dst}, {pitch}, v{tmp}")
    a.I(f"v_bfe_u32 v{tmp}, v{lane}, 4, 1")
    a.I(f"v_lshlrev_b32 v{tmp}, 1, v{tmp}")
    a.I(f"v_bfe_u32 v{tmp2}, v{lane}, 1, 1")
    a.I(f"v_add_u32 v{tmp}, v{tmp}, v{tmp2}")
    a.I(f"v_bfe_u32 v{tmp2}, v{lane}, 3, 1")
    a.I(f"v_lshlrev_b32 v{tmp2}, 2, v{tmp2}")
    a.I(f"v_xor_b32 v{tmp}, v{tmp}, v{tmp2}")
    a.I(f"v_lshl_add_u32 v{dst}, v{tmp}, 4, v{dst}")
    a.I(f"v_and_b32 v{tmp}, 1, v{lane}")
    a.I(f"v_lshl_add_u32 v{dst}, v{tmp}, 3, v{dst}")

def dma_w_lane_off(a, dst, lane, tmp, tmp2, pitch):
    a.I(f"v_lshrrev_b32 v{tmp}, 3, v{lane}")
    a.I(f"v_mul_u32_u24 v{dst}, {pitch}, v{tmp}")
    a.I(f"v_bfe_u32 v{tmp}, v{lane}, 4, 1")
    a.I(f"v_lshlrev_b32 v{tmp}, 2, v{tmp}")
    a.I(f"v_and_b32 v{tmp2}, 7, v{lane}")
    a.I(f"v_xor_b32 v{tmp}, v{tmp}, v{tmp2}")
    a.I(f"v_lshl_add_u32 v{dst}, v{tmp}, 4, v{dst}")

def tr_reads_perm(F, va0, va1, slot_off):
    out = []
    for ct, va in ((0, va0), (1, va1)):
        for rd in range(2):
            out.append(f"ds_read_b64_tr_b16 {vr(F+4*ct+2*rd,2)}, v{va} offset:{slot_off + rd*1024}")
    return out

_lab = [0]
def poll(a, srd_reg, nlanes, voff, vtmp, soff):
    _lab[0] += 1
    n = _lab[0]
    a.I(f"s_mov_b32 exec_lo, {hex((1 << nlanes) - 1)}")
    a.I("s_mov_b32 exec_hi, 0")
    a.I("s_mov_b32 s50, 0x40000")
    a.L(f"L_poll{n}")
    a.I(f"buffer_load_dword v{vtmp}, v{voff}, {S4(srd_reg)}, {soff} offen sc1")
    a.I("s_waitcnt vmcnt(0)")
    a.I(f"v_cmp_ne_u32 vcc, s{S_NONCE}, v{vtmp}")
    a.I(f"s_cbranch_vccz L_polld{n}")
    a.I("s_sub_u32 s50, s50, 1")
    a.I("s_cmp_eq_u32 s50, 0")
    a.I(f"s_cbranch_scc1 L_polld{n}")
    a.I("s_sleep 1")
    a.I(f"s_branch L_poll{n}")
    a.L(f"L_polld{n}")
    a.I("s_mov_b64 exec, -1")

def lds_spin(a, addr, target, vaddr, vtmp):
    _lab[0] += 1
    n = _lab[0]
    a.I(f"v_mov_b32 v{vaddr}, {addr}")
    a.I("s_mov_b32 s50, 0x400000")
    a.L(f"L_spin{n}")
    a.I(f"ds_read_b32 v{vtmp}, v{vaddr}")
    a.I("s_waitcnt lgkmcnt(0)")
    a.I(f"v_readfirstlane_b32 s51, v{vtmp}")
    a.I("s_sub_u32 s50, s50, 1")
    a.I(f"s_cmp_ge_u32 s51, {target}")
    a.I(f"s_cbranch_scc1 L_spind{n}")
    a.I("s_cmp_eq_u32 s50, 0")
    a.I(f"s_cbranch_scc1 L_spind{n}")
    a.I("s_sleep 1")
    a.I(f"s_branch L_spin{n}")
    a.L(f"L_spind{n}")

def lds_add1(a, addr, vaddr, vtmp):
    a.I(f"v_mov_b32 v{vaddr}, {addr}")
    a.I(f"v_mov_b32 v{vtmp}, 1")
    a.I("s_mov_b64 exec, 1")
    a.I(f"ds_add_u32 v{vaddr}, v{vtmp}")
    a.I("s_mov_b64 exec, -1")

def gen():
    a = Asm()
    a.raw(f".globl {KN}\n.p2align 8\n.type {KN},@function\n{KN}:")
    a.I("s_cmp_ge_u32 s2, 256")
    a.I("s_cbranch_scc1 L_end")
    a.I("s_load_dwordx4 s[4:7], s[0:1], 0")
    a.I("s_load_dwordx2 s[8:9], s[0:1], 16")
    a.I("s_load_dwordx4 s[12:15], s[0:1], 32")
    a.I("s_load_dwordx4 s[16:19], s[0:1], 48")
    a.I("s_load_dwordx4 s[20:23], s[0:1], 64")
    a.I("s_load_dwordx4 s[24:27], s[0:1], 80")
    a.I("v_lshrrev_b32 v2, 6, v0")
    a.I("v_and_b32 v1, 63, v0")
    a.I(f"v_readfirstlane_b32 s{S_W}, v2")
    if STAMPS:
        a.I("v_mov_b32 v6, 0"); a.I("v_mov_b32 v7, 0")
    a.I("s_and_b32 s52, s2, 7")
    a.I("s_lshr_b32 s53, s2, 3")
    a.I(f"s_lshr_b32 s{S_TYPE}, s52, 2")
    a.I("s_and_b32 s54, s52, 1")
    a.I("s_lshl_b32 s54, s54, 3")
    a.I("s_and_b32 s55, s53, 7")
    a.I(f"s_add_u32 s{S_RB16}, s54, s55")
    a.I("s_bfe_u32 s54, s52, 0x10001")
    a.I("s_lshl_b32 s54, s54, 2")
    a.I("s_lshr_b32 s55, s53, 3")
    a.I(f"s_add_u32 s{S_CG}, s54, s55")
    a.I(f"s_mul_i32 s54, s{S_CG}, 6")
    a.I(f"s_min_u32 s{S_START}, s54, 37")
    a.I(f"s_lshl_b32 s{S_HD}, s52, 2")
    a.I("s_and_b32 s54, s53, 3")
    a.I(f"s_add_u32 s{S_HD}, s{S_HD}, s54")
    a.I(f"s_lshr_b32 s{S_QB}, s2, 5")
    a.I(f"s_lshl_b32 s54, s{S_START}, 6")
    a.I(f"s_lshl_b32 s55, s{S_CG}, 7")
    a.I("s_movk_i32 s48, 2752")
    a.I("s_movk_i32 s58, 128")
    a.I(f"s_cmp_eq_u32 s{S_TYPE}, 0")
    a.I("s_cselect_b32 s49, s55, s54")
    a.I("s_cselect_b32 s48, 3072, s48")
    a.I("s_cselect_b32 s58, 1024, s58")
    a.I("s_waitcnt lgkmcnt(0)")
    stamp(a, "karg")
    a.I(f"s_cmp_ge_u32 s{S_W}, 8")
    a.I("s_cbranch_scc1 L_aux")
    a.I(f"s_cmp_ge_u32 s{S_W}, 4")
    a.I("s_cbranch_scc1 L_prod")

    H, XA, WA, ACC, FA, FB = 2, 8, 12, 32, 128, 148
    def acc(rt, s): return ACC + (rt*3 + s)*16
    a.I(f"v_lshrrev_b32 v{H}, 5, v1")
    a.I(f"s_and_b32 s63, s{S_W}, 1")
    a.I(f"s_lshr_b32 s64, s{S_W}, 1")
    a.I(f"s_cmp_eq_u32 s{S_TYPE}, 0")
    a.I("s_cbranch_scc1 L_zero")
    srd(a, RD, S_B1, 2752)
    a.I(f"s_add_u32 s54, s{S_START}, s63")
    a.I("s_lshl_b32 s54, s54, 6")
    a.I(f"v_lshlrev_b32 v3, 3, v{H}")
    B1 = 128
    for s in range(3):
        for q in range(4):
            r = B1 + (s*4+q)*2
            a.I(f"buffer_load_dwordx2 v[{r}:{r+1}], v3, {S4(RD)}, s54 offen offset:{s*128+q*16}")
    a.I("s_waitcnt vmcnt(0)")
    for s in range(3):
        for q in range(4):
            r = B1 + (s*4+q)*2
            for rt in range(2):
                d = acc(rt, s) + q*4
                a.I(f"v_lshlrev_b32 v{d}, 16, v{r}")
                a.I(f"v_and_b32 v{d+1}, 0xffff0000, v{r}")
                a.I(f"v_lshlrev_b32 v{d+2}, 16, v{r+1}")
                a.I(f"v_and_b32 v{d+3}, 0xffff0000, v{r+1}")
    a.I("s_branch L_addr")
    a.L("L_zero")
    for i in range(96):
        a.I(f"v_mov_b32 v{ACC+i}, 0")
    a.L("L_addr")
    a.I("v_and_b32 v16, 31, v1")
    a.I("v_bfe_u32 v17, v1, 1, 3")
    a.I("s_lshl_b32 s54, s64, 6")
    a.I("v_add_u32 v16, s54, v16")
    a.I("v_lshlrev_b32 v16, 7, v16")
    a.I(f"v_xor_b32 v17, v17, v{H}")
    for ks in range(4):
        a.I(f"v_xor_b32 v18, {2*ks}, v17")
        a.I(f"v_lshl_add_u32 v{XA+ks}, v18, 4, v16")
    tr_lane_addr(a, WA, 1, 16, 17, 8, 384)
    a.I("s_lshl_b32 s54, s63, 6")
    a.I(f"v_xor_b32 v{WA}, s54, v{WA}")
    a.I(f"v_add_u32 v{WA}, 0x10000, v{WA}")
    a.I(f"v_add_u32 v{WA+1}, 49152, v{WA}")

    def reads(b, ks, F):
        out = []
        for rt in range(2):
            out.append(f"ds_read_b128 {vr(F+4*rt,4)}, v{XA+ks} offset:{b*16384 + rt*4096}")
        wv = WA + (b >> 1)
        for s in range(3):
            for rd in range(2):
                out.append(f"ds_read_b64_tr_b16 {vr(F+8+4*s+2*rd,2)}, v{wv} offset:{(b&1)*24576 + ks*6144 + rd*1536 + s*128}")
        return out
    def mfmas(F, qkv):
        out = []
        for rt in range(2):
            for s in range(3):
                X, W = F+4*rt, F+8+4*s
                out.append(MF(acc(rt, s), X, W, acc(rt, s)) if (qkv and s == 2) else MF(acc(rt, s), W, X, acc(rt, s)))
        return out
    def mainloop(tag, qkv):
        a.I("s_barrier")
        stamp(a, "B0")
        a.I("\n".join(reads(0, 0, FA)))
        a.I("s_mov_b32 s65, 0")
        a.L(f"L_loop_{tag}")
        for b in range(4):
            a.I("\n".join(reads(b, 1, FB)));  a.I("s_waitcnt lgkmcnt(8)"); a.I("\n".join(mfmas(FA, qkv)))
            a.I("\n".join(reads(b, 2, FA)));  a.I("s_waitcnt lgkmcnt(8)"); a.I("\n".join(mfmas(FB, qkv)))
            a.I("\n".join(reads(b, 3, FB)));  a.I("s_waitcnt lgkmcnt(8)"); a.I("\n".join(mfmas(FA, qkv)))
            a.I("s_waitcnt lgkmcnt(0)")
            if b == 3:
                a.I("s_cmp_lg_u32 s65, 0")
                a.I(f"s_cbranch_scc1 L_last_{tag}")
            a.I("s_barrier")
            a.I("\n".join(reads((b+1) % 4, 0, FA)))
            a.I("\n".join(mfmas(FB, qkv)))
        a.I("s_mov_b32 s65, 1")
        a.I(f"s_branch L_loop_{tag}")
        a.L(f"L_last_{tag}")
        a.I("\n".join(mfmas(FB, qkv)))
        a.I("s_nop 15")
        stamp(a, "p1loop")

    a.I(f"s_cmp_eq_u32 s{S_TYPE}, 0")
    a.I("s_cbranch_scc0 L_ffn1")
    mainloop("q", True)
    srd(a, RA, S_WS, 6*MB)
    a.I(f"s_lshl_b32 s54, s{S_RB16}, 2")
    a.I("s_lshl_b32 s55, s64, 1")
    a.I("s_add_u32 s54, s54, s55")
    a.I(f"s_lshl_b32 s55, s{S_CG}, 2")
    a.I("s_lshl_b32 s56, s63, 1")
    a.I("s_add_u32 s55, s55, s56")
    a.I("s_lshl_b32 s55, s55, 6")
    a.I("s_add_u32 s54, s54, s55")
    a.I("s_lshl_b32 s54, s54, 10")
    a.I("v_lshlrev_b32 v3, 4, v1")
    a.I("v_bfe_u32 v4, v1, 4, 1")
    a.I("v_lshlrev_b32 v4, 16, v4")
    a.I(f"v_lshl_add_u32 v4, v{H}, 8, v4")
    a.I("v_and_b32 v5, 15, v1")
    a.I("v_lshl_add_u32 v4, v5, 4, v4")
    a.I(f"s_mov_b32 s56, {hex(f2u(QSCALE))}")
    for rt in range(2):
        for s in range(3):
            d = acc(rt, s)
            if s == 0:
                for i in range(16):
                    a.I(f"v_mul_f32 v{d+i}, s56, v{d+i}")
            for j in range(8):
                a.I(f"v_cvt_pk_bf16_f32 v{d+j}, v{d+2*j}, v{d+2*j+1}")
            if s < 2:
                for hh in range(2):
                    a.I(f"s_add_u32 s55, s54, {s*KF + rt*1024 + hh*65536}")
                    a.I(f"buffer_store_dwordx4 {vr(d+4*hh,4)}, v3, {S4(RA)}, s55 offen sc1")
            else:
                a.I(f"s_add_u32 s55, s54, {VF + rt*1024}")
                for u in range(2):
                    a.I(f"buffer_store_dwordx4 {vr(d+4*u,4)}, v4, {S4(RA)}, s55 offen offset:{u*512} sc1")
    a.I("s_branch L_p1done")
    a.L("L_ffn1")
    mainloop("f", False)
    srd_off(a, RA, S_WS, HF, HF_SIZE)
    a.I(f"s_lshl_b32 s54, s{S_RB16}, 2")
    a.I("s_lshl_b32 s55, s64, 1")
    a.I("s_add_u32 s54, s54, s55")
    a.I(f"s_add_u32 s55, s{S_START}, s63")
    a.I("s_lshl_b32 s55, s55, 7")
    a.I("s_add_u32 s54, s54, s55")
    a.I("s_lshl_b32 s54, s54, 10")
    a.I("v_lshlrev_b32 v3, 4, v1")
    for rt in range(2):
        for s in range(3):
            d = acc(rt, s)
            for i in range(16):
                a.I(f"v_max_f32 v{d+i}, 0, v{d+i}")
            for i in range(16):
                a.I(f"v_mul_f32 v{d+i}, v{d+i}, v{d+i}")
            for j in range(8):
                a.I(f"v_cvt_pk_bf16_f32 v{d+j}, v{d+2*j}, v{d+2*j+1}")
            for uu in range(2):
                a.I(f"s_add_u32 s55, s54, {rt*1024 + (4*s+uu)*65536}")
                a.I(f"buffer_store_dwordx4 {vr(d+4*uu,4)}, v3, {S4(RA)}, s55 offen sc1")
    a.L("L_p1done")
    a.I("s_waitcnt vmcnt(0)")
    stamp(a, "p1drain")
    a.I("s_branch L_B8_attn")

    a.L("L_prod")
    a.I(f"s_sub_u32 s67, s{S_W}, 4")
    a.I(f"s_lshl_b32 s54, s{S_RB16}, 17")
    srd_off(a, RA, S_AX, "s54", 131072)
    a.I("s_lshl_b32 s54, s48, 9")
    a.I(f"s_cmp_eq_u32 s{S_TYPE}, 0")
    a.I(f"s_cselect_b32 s{RB}, s{S_WQKV}, s{S_W1}")
    a.I(f"s_cselect_b32 s{RB+1}, s{S_WQKV+1}, s{S_W1+1}")
    a.I(f"s_mov_b32 s{RB+2}, s54")
    a.I(f"s_mov_b32 s{RB+3}, 0x20000")
    a.I("v_lshrrev_b32 v2, 3, v1")
    a.I("s_lshl_b32 s54, s67, 3")
    a.I("v_add_u32 v2, s54, v2")
    a.I("v_lshrrev_b32 v3, 4, v1")
    a.I("s_and_b32 s54, s67, 1")
    a.I("s_lshl_b32 s54, s54, 2")
    a.I("v_add_u32 v3, s54, v3")
    a.I("v_and_b32 v4, 7, v1")
    a.I("v_xor_b32 v3, v3, v4")
    a.I("v_lshlrev_b32 v3, 4, v3")
    a.I("v_lshl_add_u32 v8, v2, 10, v3")
    for j in range(3):
        a.I(f"v_add_u32 v2, {64*j}, v1")
        a.I("v_mul_u32_u24 v3, 171, v2")
        a.I("v_lshrrev_b32 v3, 12, v3")
        a.I("v_mul_u32_u24 v4, 24, v3")
        a.I("v_sub_u32 v2, v2, v4")
        a.I("v_lshrrev_b32 v4, 3, v2")
        a.I("v_and_b32 v2, 7, v2")
        a.I("v_bfe_u32 v5, v3, 1, 1")
        a.I("v_lshlrev_b32 v5, 2, v5")
        a.I("v_xor_b32 v2, v2, v5")
        a.I("v_mul_lo_u32 v3, s48, v3")
        a.I("v_mul_lo_u32 v4, s58, v4")
        a.I("v_add_u32 v3, v3, v4")
        a.I(f"v_lshl_add_u32 v{9+j}, v2, 4, v3")
    a.I("s_lshl_b32 s68, s67, 10")
    a.I("s_mul_i32 s69, s67, 6144")
    a.I("s_add_u32 s69, s69, 0x10000")
    a.I("s_lshl_b32 s70, s48, 6")
    a.I("s_lshl_b32 s71, s48, 3")
    a.I("s_lshl_b32 s72, s48, 4")
    a.I("s_mul_i32 s72, s72, s67")
    a.I("s_add_u32 s72, s72, s49")
    def issue(c):
        a.I(f"s_and_b32 s78, {c}, 3")
        a.I("s_lshl_b32 s79, s78, 14")
        a.I("s_add_u32 s79, s79, s68")
        a.I("s_mul_i32 s80, s78, 24576")
        a.I("s_add_u32 s80, s80, s69")
        a.I(f"s_lshl_b32 s81, {c}, 7")
        a.I(f"s_mul_i32 s82, {c}, s70")
        a.I("s_add_u32 s82, s82, s72")
        for n in range(4):
            a.I(f"s_add_u32 m0, s79, {n*4096}")
            a.I(f"s_add_u32 s83, s81, {n*32768}")
            a.I(f"buffer_load_dwordx4 v8, {S4(RA)}, s83 offen lds")
        for g in range(2):
            if g: a.I("s_add_u32 s82, s82, s71")
            for j in range(3):
                a.I(f"s_add_u32 m0, s80, {g*3072 + j*1024}")
                a.I("s_nop 0")
                a.I(f"buffer_load_dwordx4 v{9+j}, {S4(RB)}, s82 offen lds")
    a.I("s_mov_b32 s84, 0")
    a.L("L_pro")
    issue("s84")
    a.I("s_add_u32 s84, s84, 1")
    a.I("s_cmp_lt_u32 s84, 3")
    a.I("s_cbranch_scc1 L_pro")
    stamp(a, "issued3")
    a.L("L_ploop")
    a.I("s_waitcnt vmcnt(20)")
    a.I("s_barrier")
    issue("s84")
    a.I("s_add_u32 s84, s84, 1")
    a.I("s_cmp_lt_u32 s84, 8")
    a.I("s_cbranch_scc1 L_ploop")
    a.I("s_waitcnt vmcnt(20)")
    a.I("s_barrier")
    a.I("s_waitcnt vmcnt(10)")
    a.I("s_barrier")
    a.I("s_waitcnt vmcnt(0)")
    a.I("s_barrier")
    a.I("s_branch L_B8_attn")

    a.L("L_aux")
    a.I(f"s_sub_u32 s67, s{S_W}, 8")
    a.I("s_cmp_lg_u32 s67, 0")
    a.I("s_cbranch_scc1 L_aux1")
    srd(a, RC, S_DBG, 256)
    a.I("s_memrealtime s[52:53]")
    a.I("s_waitcnt lgkmcnt(0)")
    a.I("s_or_b32 s85, s52, 1")
    a.I("v_mov_b32 v8, s85")
    a.I("v_mov_b32 v9, 0")
    a.I("v_mov_b32 v10, 0")
    a.I("s_mov_b64 exec, 1")
    a.I(f"buffer_atomic_cmpswap v[8:9], v10, {S4(RC)}, 0 offen sc0 sc1")
    a.I("s_mov_b64 exec, -1")
    a.L("L_aux1")
    a.I(f"s_cmp_eq_u32 s{S_TYPE}, 0")
    a.I("s_cbranch_scc1 L_aux2")
    a.I(f"s_lshl_b32 s54, s{S_RB16}, 7")
    a.I(f"s_lshl_b32 s55, s{S_CG}, 4")
    a.I("s_add_u32 s54, s54, s55")
    a.I("s_lshl_b32 s55, s67, 2")
    a.I("s_add_u32 s66, s54, s55")
    a.I("s_lshl_b32 s54, s66, 10")
    srd_off(a, RA, S_AX, "s54", 4096)
    srd(a, RB, S_GW, 1024)
    a.I("v_and_b32 v2, 15, v1")
    a.I("v_lshlrev_b32 v2, 6, v2")
    a.I("v_lshrrev_b32 v3, 4, v1")
    a.I("v_lshl_add_u32 v4, v3, 10, v2")
    for i in range(4):
        a.I(f"buffer_load_dwordx4 {vr(32+4*i,4)}, v4, {S4(RA)}, 0 offen offset:{16*i}")
    for i in range(4):
        a.I(f"buffer_load_dwordx4 {vr(48+4*i,4)}, v2, {S4(RB)}, 0 offen offset:{16*i}")
    a.L("L_aux2")
    for i in range(4):
        a.I("s_barrier")
    a.I("s_waitcnt vmcnt(0)")
    a.I(f"s_cmp_eq_u32 s{S_TYPE}, 0")
    a.I("s_cbranch_scc1 L_aux3")
    a.I("v_mov_b32 v24, 0")
    for i in range(16):
        a.I(f"v_dot2c_f32_bf16 v24, v{32+i}, v{48+i}")
    a.I("s_nop 3")
    for sh in (1, 2, 4, 8):
        a.I(f"v_add_f32_dpp v24, v24, v24 row_shr:{sh} row_mask:0xf bank_mask:0xf")
        a.I("s_nop 1")
    a.I("v_cvt_pk_bf16_f32 v24, v24, v24")
    a.I("v_and_b32 v24, 0xffff0000, v24")
    a.I(f"v_mul_f32 v24, {hex(f2u(-1.4426950408889634))}, v24")
    a.I("v_exp_f32 v24, v24")
    a.I("s_nop 0")
    a.I("v_add_f32 v24, 1.0, v24")
    a.I("v_rcp_f32 v24, v24")
    a.I("s_nop 0")
    a.I("v_cvt_pk_bf16_f32 v24, v24, v24")
    a.I("v_and_b32 v24, 0xffff0000, v24")
    srd_off(a, RA, S_WS, GO, 8192)
    a.I("s_lshl_b32 s54, s66, 2")
    a.I("v_lshlrev_b32 v3, 2, v3")
    a.I("s_mov_b32 s52, 0x80008000")
    a.I("s_mov_b32 s53, 0x80008000")
    a.I("s_mov_b64 exec, s[52:53]")
    a.I(f"buffer_store_dword v24, v3, {S4(RA)}, s54 offen sc1")
    a.I("s_mov_b64 exec, -1")
    a.L("L_aux3")
    for i in range(4):
        a.I("s_barrier")
    a.I("s_cmp_lg_u32 s67, 0")
    a.I("s_cbranch_scc1 L_aux4")
    a.I("v_readfirstlane_b32 s54, v8")
    a.I("s_nop 0")
    a.I("s_cmp_eq_u32 s54, 0")
    a.I("s_cselect_b32 s54, s85, s54")
    a.I("v_mov_b32 v8, s54")
    a.I("v_mov_b32 v10, 0")
    a.I("ds_write_b32 v10, v8")
    a.L("L_aux4")
    a.I("s_waitcnt vmcnt(0) lgkmcnt(0)")
    a.I("s_barrier")
    stamp(a, "B8")
    a.I("v_mov_b32 v10, 0")
    a.I("ds_read_b32 v8, v10")
    a.I("s_waitcnt lgkmcnt(0)")
    a.I(f"v_readfirstlane_b32 s{S_NONCE}, v8")
    srd_off(a, RC, S_WS, FLG, 16384)
    a.I("s_cmp_lg_u32 s67, 0")
    a.I("s_cbranch_scc1 L_aux5")
    a.I(f"s_lshl_b32 s54, s{S_CG}, 7")
    a.I(f"s_lshl_b32 s55, s{S_RB16}, 2")
    a.I("s_add_u32 s54, s54, s55")
    a.I(f"s_add_u32 s54, s54, {FA_OFF}")
    a.I(f"s_lshl_b32 s55, s{S_RB16}, 7")
    a.I(f"s_lshl_b32 s56, s{S_CG}, 2")
    a.I("s_add_u32 s55, s55, s56")
    a.I(f"s_add_u32 s55, s55, {FH_OFF}")
    a.I(f"s_cmp_eq_u32 s{S_TYPE}, 0")
    a.I("s_cselect_b32 s54, s54, s55")
    a.I(f"v_mov_b32 v8, s{S_NONCE}")
    a.I("v_mov_b32 v10, 0")
    a.I("s_mov_b64 exec, 1")
    a.I(f"buffer_store_dword v8, v10, {S4(RC)}, s54 offen sc1")
    a.I("s_mov_b64 exec, -1")
    a.I("s_branch L_aux6")
    a.L("L_aux5")
    a.I("s_cmp_lg_u32 s67, 1")
    a.I("s_cbranch_scc1 L_aux6")
    a.I(f"v_lshlrev_b32 v10, 2, v1")
    a.I(f"v_add_u32 v10, {L_MISC}, v10")
    a.I("v_mov_b32 v8, 0")
    a.I("ds_write_b32 v10, v8")
    a.L("L_aux6")
    a.I("s_lshr_b32 s53, s2, 3")
    srd(a, RA, S_W2, 1376*1024)
    srd(a, RB, S_WO, 512*1024)
    a.I("v_lshlrev_b32 v2, 4, v1")
    a.I("s_mul_i32 s54, s53, 44032")
    a.I("s_lshl_b32 s55, s67, 10")
    a.I("s_add_u32 s54, s54, s55")
    for i in range(11):
        a.I(f"buffer_load_dwordx4 {vr(40+4*i,4)}, v2, {S4(RA)}, s54 offen")
        a.I("s_add_u32 s54, s54, 4096")
    a.I("s_lshl_b32 s54, s53, 14")
    a.I("s_add_u32 s54, s54, s55")
    for i in range(4):
        a.I(f"buffer_load_dwordx4 {vr(84+4*i,4)}, v2, {S4(RB)}, s54 offen")
        a.I("s_add_u32 s54, s54, 4096")
    a.I("s_waitcnt lgkmcnt(0)")
    a.I("s_barrier")
    a.I("s_barrier")
    stamp(a, "X1")
    WF, HR, OR_, ACC2, BPR = 24, 40, 40, 104, 8
    VH, VW, VA0, VA1 = 2, 3, 4, 5
    a.I("s_cmp_lg_u32 s67, 0")
    a.I("s_cbranch_scc1 L_f1")
    a.I(f"s_lshr_b32 s54, s{S_HD}, 1")
    a.I("s_lshl_b32 s54, s54, 7")
    a.I(f"s_add_u32 s54, s54, {FH_OFF}")
    a.I("v_lshlrev_b32 v8, 2, v1")
    poll(a, RC, 8, 8, 9, "s54")
    lds_add1(a, M_H, 8, 9)
    a.I("s_branch L_f2")
    a.L("L_f1")
    lds_spin(a, M_H, 1, 8, 9)
    a.L("L_f2")
    stamp(a, "hready")
    a.I(f"s_setprio {OPT.get('ffnprio', 0)}")
    srd(a, RA, S_W2, 1376*1024)
    srd_off(a, RB, S_WS, HF, HF_SIZE)
    a.I(f"v_lshlrev_b32 v{VH}, 4, v1")
    dma_w_lane_off(a, VW, 1, 8, 9, 1024)
    a.I(f"s_lshl_b32 s54, s{S_QB}, 7")
    a.I(f"v_add_u32 v{VW}, s54, v{VW}")
    tr_lane_addr(a, VA0, 1, 8, 9, 4, 128)
    a.I("s_mul_i32 s68, s67, 6144")
    a.I(f"s_add_u32 s68, s68, {L_RING}")
    a.I(f"v_add_u32 v{VA0}, s68, v{VA0}")
    a.I(f"v_xor_b32 v{VA1}, 64, v{VA0}")
    a.I("s_mul_i32 s54, s67, 24")
    a.I("s_lshl_b32 s70, s54, 14")
    a.I("s_lshl_b32 s71, s54, 16")
    a.I(f"s_lshl_b32 s55, s{S_HD}, 11")
    a.I("s_add_u32 s71, s71, s55")
    for i in range(64):
        a.I(f"v_mov_b32 v{ACC2+i}, 0")
    a.I("s_waitcnt vmcnt(0)")
    def fissue(slot):
        L = []
        L.append(f"s_add_u32 m0, s68, {slot*2048}")
        L.append(f"s_add_u32 s69, s70, 8192")
        L.append(f"buffer_load_dwordx4 v{VW}, {S4(RA)}, s70 offen lds")
        L.append(f"s_add_u32 m0, s68, {slot*2048+1024}")
        L.append(f"s_add_u32 s70, s70, 16384")
        L.append(f"buffer_load_dwordx4 v{VW}, {S4(RA)}, s69 offen lds")
        L.append(f"buffer_load_dwordx4 {vr(HR+slot*8,4)}, v{VH}, {S4(RB)}, s71 offen sc1")
        L.append(f"buffer_load_dwordx4 {vr(HR+slot*8+4,4)}, v{VH}, {S4(RB)}, s71 offen offset:1024 sc1")
        L.append(f"s_add_u32 s71, s71, 65536")
        return L
    for slot in range(3):
        a.I("\n".join(fissue(slot)))
    a.I("s_cmp_eq_u32 s67, 3")
    a.I("s_cselect_b32 s72, 5, 8")
    a.L("L_floop")
    for slot in range(3):
        a.I("s_waitcnt vmcnt(8)")
        a.I("\n".join(tr_reads_perm(WF, VA0, VA1, slot*2048)))
        a.I("s_waitcnt lgkmcnt(0)")
        for ct in range(2):
            for rt in range(2):
                d = ACC2 + (ct*2+rt)*16
                a.I(MF(d, WF+4*ct, HR+slot*8+4*rt, d))
        a.I("\n".join(fissue(slot)))
    a.I("s_sub_u32 s72, s72, 1")
    a.I("s_cmp_lg_u32 s72, 0")
    a.I("s_cbranch_scc1 L_floop")
    a.I("s_waitcnt vmcnt(0)")
    stamp(a, "ffn2")
    srd_off(a, RA, S_WS, GO, 8192)
    srd(a, RB, S_B2, 1024)
    a.I("s_and_b32 s73, s67, 1")
    a.I("s_lshr_b32 s74, s67, 1")
    a.I(f"s_lshl_b32 s75, s{S_HD}, 6")
    a.I("s_lshl_b32 s54, s73, 5")
    a.I("s_add_u32 s75, s75, s54")
    a.I("s_lshl_b32 s54, s75, 2")
    a.I("v_and_b32 v8, 31, v1")
    a.I("v_lshlrev_b32 v8, 2, v8")
    a.I(f"buffer_load_dword v40, v8, {S4(RA)}, s54 offen sc1")
    a.I(f"s_lshl_b32 s54, s{S_QB}, 6")
    a.I("s_lshl_b32 s55, s74, 5")
    a.I("s_add_u32 s54, s54, s55")
    a.I("s_lshl_b32 s54, s54, 1")
    a.I("v_lshrrev_b32 v8, 5, v1")
    a.I("v_lshlrev_b32 v8, 3, v8")
    for q in range(4):
        a.I(f"buffer_load_dwordx2 v[{42+2*q}:{43+2*q}], v8, {S4(RB)}, s54 offen offset:{q*16}")
    a.I("s_barrier")
    a.I("s_barrier")
    stamp(a, "B9b")
    srd(a, RA, S_WO, 512*1024)
    a.I("s_lshl_b32 s68, s67, 14")
    a.I("s_lshl_b32 s70, s67, 17")
    for ks in range(8):
        for n in range(2):
            a.I(f"s_add_u32 m0, s68, {ks*2048+n*1024}")
            a.I(f"s_add_u32 s69, s70, {ks*16384+n*8192}")
            a.I(f"buffer_load_dwordx4 v{VW}, {S4(RA)}, s69 offen lds")
    a.I(f"s_add_u32 s54, s68, {L_V}")
    a.I(f"v_add_u32 v8, s54, v{VH}")
    for i in range(16):
        a.I(f"ds_write_b128 v8, {vr(ACC2+4*i,4)} offset:{i*1024}")
    a.I("s_waitcnt lgkmcnt(0)")
    a.I("s_barrier")
    stamp(a, "B10")
    srd_off(a, RC, S_WS, FLG, 16384)
    a.I("s_cmp_lg_u32 s67, 0")
    a.I("s_cbranch_scc1 L_f3")
    a.I(f"s_lshl_b32 s54, s{S_QB}, 7")
    a.I(f"s_lshl_b32 s55, s{S_HD}, 2")
    a.I("s_add_u32 s54, s54, s55")
    a.I(f"s_add_u32 s54, s54, {FO_OFF}")
    a.I(f"v_mov_b32 v9, s{S_NONCE}")
    a.I("v_mov_b32 v10, 0")
    a.I("s_mov_b64 exec, 1")
    a.I(f"buffer_store_dword v9, v10, {S4(RC)}, s54 offen sc1")
    a.I("s_mov_b64 exec, -1")
    a.L("L_f3")
    a.I("s_lshl_b32 s54, s67, 12")
    a.I(f"s_add_u32 s54, s54, {L_V}")
    a.I(f"v_add_u32 v8, s54, v{VH}")
    for p in range(4):
        for q in range(4):
            a.I(f"ds_read_b128 {vr(ACC2+p*16+q*4,4)}, v8 offset:{p*16384+q*1024}")
    a.I("s_waitcnt lgkmcnt(0)")
    for i in range(16):
        a.I(f"v_add_f32 v{ACC2+i}, v{ACC2+i}, v{ACC2+16+i}")
        a.I(f"v_add_f32 v{ACC2+32+i}, v{ACC2+32+i}, v{ACC2+48+i}")
    for i in range(16):
        a.I(f"v_add_f32 v{ACC2+i}, v{ACC2+i}, v{ACC2+32+i}")
    a.I("s_waitcnt vmcnt(17)" if False else "s_waitcnt vmcnt(0)")
    a.I("v_sub_f32 v41, 1.0, v40")
    a.I("v_cvt_pk_bf16_f32 v41, v41, v41")
    a.I("v_and_b32 v41, 0xffff0000, v41")
    for q in range(4):
        a.I(f"v_lshlrev_b32 v52, 16, v{42+2*q}")
        a.I(f"v_and_b32 v53, 0xffff0000, v{42+2*q}")
        a.I(f"v_lshlrev_b32 v54, 16, v{43+2*q}")
        a.I(f"v_and_b32 v55, 0xffff0000, v{43+2*q}")
        for j in range(4):
            a.I(f"v_add_f32 v{BPR+4*q+j}, v{ACC2+4*q+j}, v{52+j}")
        for j in range(4):
            a.I(f"v_mul_f32 v{BPR+4*q+j}, v{BPR+4*q+j}, v41")
    a.I("v_mov_b32 v39, v40")
    a.I("s_cmp_lg_u32 s67, 0")
    a.I("s_cbranch_scc1 L_f4")
    a.I(f"s_lshr_b32 s54, s{S_HD}, 2")
    a.I("s_lshl_b32 s54, s54, 7")
    a.I(f"s_add_u32 s54, s54, {FO_OFF}")
    a.I("v_lshlrev_b32 v40, 2, v1")
    poll(a, RC, 32, 40, 41, "s54")
    a.L("L_f4")
    a.I("s_barrier")
    stamp(a, "B11")
    srd_off(a, RB, S_WS, OF, 2*MB)
    a.I(f"s_lshl_b32 s54, s{S_HD}, 6")
    a.I("s_lshl_b32 s55, s67, 3")
    a.I("s_add_u32 s54, s54, s55")
    a.I("s_lshl_b32 s54, s54, 10")
    for ks in range(8):
        for rt in range(2):
            a.I(f"s_add_u32 s55, s54, {rt*32768 + (ks//4)*4096}")
            a.I(f"buffer_load_dwordx4 {vr(OR_+ks*8+rt*4,4)}, v{VH}, {S4(RB)}, s55 offen offset:{(ks%4)*1024} sc1")
    tr_lane_addr(a, VA0, 1, 32, 33, 4, 128)
    a.I(f"v_add_u32 v{VA0}, s68, v{VA0}")
    a.I(f"v_xor_b32 v{VA1}, 64, v{VA0}")
    for i in range(64):
        a.I(f"v_mov_b32 v{ACC2+i}, 0")
    for ks in range(8):
        a.I(f"s_waitcnt vmcnt({14-2*ks})")
        F = WF
        a.I("\n".join(tr_reads_perm(F, VA0, VA1, ks*2048)))
        a.I("s_waitcnt lgkmcnt(0)")
        for ct in range(2):
            for rt in range(2):
                d = ACC2 + (ct*2+rt)*16
                a.I(MF(d, F+4*ct, OR_+ks*8+4*rt, d))
    a.I("s_nop 15")
    stamp(a, "p3mm")
    a.I(f"s_add_u32 s54, s68, {L_V}")
    a.I(f"v_add_u32 v32, s54, v{VH}")
    for i in range(16):
        a.I(f"ds_write_b128 v32, {vr(ACC2+4*i,4)} offset:{i*1024}")
    a.I("s_waitcnt lgkmcnt(0)")
    a.I("s_barrier")
    a.I("s_lshl_b32 s54, s67, 12")
    a.I(f"s_add_u32 s54, s54, {L_V}")
    a.I(f"v_add_u32 v32, s54, v{VH}")
    for p in range(4):
        for q in range(4):
            a.I(f"ds_read_b128 {vr(ACC2+p*16+q*4,4)}, v32 offset:{p*16384+q*1024}")
    a.I("s_waitcnt lgkmcnt(0)")
    for i in range(16):
        a.I(f"v_add_f32 v{ACC2+i}, v{ACC2+i}, v{ACC2+16+i}")
        a.I(f"v_add_f32 v{ACC2+32+i}, v{ACC2+32+i}, v{ACC2+48+i}")
    for i in range(16):
        a.I(f"v_add_f32 v{ACC2+i}, v{ACC2+i}, v{ACC2+32+i}")
    for i in range(16):
        a.I(f"v_fma_f32 v{ACC2+i}, v{ACC2+i}, v39, v{BPR+i}")
    for j in range(8):
        a.I(f"v_cvt_pk_bf16_f32 v{ACC2+j}, v{ACC2+2*j}, v{ACC2+2*j+1}")
    a.I("s_nop 1")
    a.I(f"v_permlane32_swap_b32 v{ACC2}, v{ACC2+2}")
    a.I(f"v_permlane32_swap_b32 v{ACC2+1}, v{ACC2+3}")
    a.I(f"v_permlane32_swap_b32 v{ACC2+4}, v{ACC2+6}")
    a.I(f"v_permlane32_swap_b32 v{ACC2+5}, v{ACC2+7}")
    srd(a, RA, S_OUT, 2*MB)
    a.I("s_lshl_b32 s54, s75, 10")
    a.I(f"s_lshl_b32 s55, s{S_QB}, 7")
    a.I("s_add_u32 s54, s54, s55")
    a.I("s_lshl_b32 s55, s74, 6")
    a.I("s_add_u32 s54, s54, s55")
    a.I("v_and_b32 v32, 31, v1")
    a.I("v_lshlrev_b32 v32, 10, v32")
    a.I("v_lshrrev_b32 v33, 5, v1")
    a.I("v_lshl_add_u32 v32, v33, 4, v32")
    a.I(f"buffer_store_dwordx4 {vr(ACC2,4)}, v32, {S4(RA)}, s54 offen")
    a.I(f"buffer_store_dwordx4 {vr(ACC2+4,4)}, v32, {S4(RA)}, s54 offen offset:32")
    stamp_flush(a)
    a.I("s_endpgm")

    a.L("L_B8_attn")
    a.I("s_barrier")
    stamp(a, "B8")
    QA, QB = 8, 12
    KB = [16, 20]; VB = [24, 32]
    S0, S1, OA, OB = 40, 56, 72, 88
    VK, VV, VL = 2, 3, 4
    a.I("v_mov_b32 v10, 0")
    a.I("ds_read_b32 v8, v10")
    a.I(f"s_and_b32 s63, s{S_W}, 3")
    a.I(f"s_lshr_b32 s64, s{S_W}, 2")
    a.I(f"s_lshl_b32 s54, s{S_HD}, 16")
    a.I(f"s_add_u32 s55, s54, {KF}")
    srd_off(a, RA, S_WS, "s55", 65536)
    a.I(f"s_add_u32 s55, s54, {VF}")
    srd_off(a, RB, S_WS, "s55", 65536)
    srd_off(a, RD, S_WS, "s54", 65536)
    srd_off(a, RC, S_WS, FLG, 16384)
    a.I(f"v_lshlrev_b32 v{VL}, 4, v1")
    a.I("s_waitcnt lgkmcnt(0)")
    a.I(f"v_readfirstlane_b32 s{S_NONCE}, v8")
    for i in range(16):
        a.I(f"v_mov_b32 v{VB[0]+i}, 0x3f803f80")
    for i in range(16):
        a.I(f"v_mov_b32 v{OA+i}, 0")
        a.I(f"v_mov_b32 v{OB+i}, 0")
    for i in range(4):
        a.I(f"v_mov_b32 v{S1+4+i}, 0")
    a.I(f"s_cmp_lg_u32 s{S_W}, 0")
    a.I("s_cbranch_scc1 L_a1")
    a.I(f"s_lshr_b32 s54, s{S_HD}, 2")
    a.I("s_lshl_b32 s54, s54, 7")
    a.I(f"s_add_u32 s54, s54, {FA_OFF}")
    a.I("v_lshlrev_b32 v8, 2, v1")
    poll(a, RC, 16, 8, 9, "s54")
    a.L("L_a1")
    a.I("s_barrier")
    stamp(a, "B8b")
    a.I(f"s_lshl_b32 s66, s{S_QB}, 3")
    a.I("s_lshl_b32 s54, s63, 1")
    a.I("s_add_u32 s66, s66, s54")
    a.I("s_lshl_b32 s54, s66, 10")
    a.I(f"buffer_load_dwordx4 {vr(QA,4)}, v{VL}, {S4(RD)}, s54 offen sc1")
    a.I(f"buffer_load_dwordx4 {vr(QB,4)}, v{VL}, {S4(RD)}, s54 offen offset:1024 sc1")
    a.I("s_lshl_b32 s54, s64, 5")
    a.I("s_add_u32 s54, s54, s63")
    a.I("s_lshl_b32 s54, s54, 10")
    for c in range(8):
        a.I(f"s_add_u32 s55, s54, {c*4096}")
        a.I("s_mov_b32 m0, s55")
        a.I(f"s_add_u32 s56, s55, {L_V}")
        a.I(f"buffer_load_dwordx4 v{VL}, {S4(RA)}, s55 offen sc1 lds")
        a.I("s_mov_b32 m0, s56")
        a.I("s_nop 0")
        a.I(f"buffer_load_dwordx4 v{VL}, {S4(RB)}, s55 offen sc1 lds")
    a.I("s_lshl_b32 s54, s64, 15")
    a.I(f"v_add_u32 v{VK}, s54, v{VL}")
    a.I("v_lshrrev_b32 v104, 5, v1")
    a.I("v_and_b32 v105, 15, v1")
    a.I("v_lshlrev_b32 v105, 4, v105")
    a.I(f"v_lshl_add_u32 v{VV}, v104, 8, v105")
    a.I(f"s_add_u32 s54, s54, {L_V}")
    a.I(f"v_add_u32 v{VV}, s54, v{VV}")
    a.I("s_mov_b32 s74, 0x0000ffff")
    a.I("s_mov_b32 s75, 0x0000ffff")
    a.I("s_waitcnt vmcnt(10)")
    a.I("s_barrier")
    stamp(a, "X1")
    a.I(f"ds_read_b128 {vr(KB[0],4)}, v{VK}")
    a.I("s_mov_b64 exec, s[74:75]")
    a.I(f"ds_read_b128 {vr(VB[0],4)}, v{VV}")
    a.I(f"ds_read_b128 {vr(VB[0]+4,4)}, v{VV} offset:512")
    a.I("s_mov_b64 exec, -1")
    a.I(f"ds_read_b128 {vr(KB[1],4)}, v{VK} offset:1024")
    a.I("s_waitcnt lgkmcnt(3)")
    a.I(MF(S0, KB[0], QA))
    a.I("s_nop 7")
    a.I("s_nop 3")

    def tile(Sin, Sout, Qn, Kn, Ocur, Vcur_u0, Oprev, Vprev_u1, after_pv2, wait_s, after_s, wait_pv1):
        e = lambda i: f"v_exp_f32 v{Sin+i}, v{Sin+i}"
        c = lambda j: f"v_cvt_pk_bf16_f32 v{Sin+j}, v{Sin+2*j}, v{Sin+2*j+1}"
        L = [e(0), e(1), MF(Oprev, Vprev_u1, Sout+4, Oprev)]
        L += after_pv2
        L += [e(2), e(3), c(0), e(4), e(5), c(1)]
        L += wait_s
        L.append(MF(Sout, Kn, Qn))
        L += after_s
        L += [e(6), e(7), c(2), e(8), e(9), c(3), e(10), e(11)]
        L += wait_pv1
        L.append(MF(Ocur, Vcur_u0, Sin, Ocur))
        L += [c(4), e(12), e(13), c(5), e(14), e(15), c(6), c(7)]
        return L
    def keytile(kap, off):
        vload = ["s_mov_b64 exec, s[74:75]",
                 f"ds_read_b128 {vr(VB[kap^1],4)}, v{VV} offset:{off+1024}",
                 f"ds_read_b128 {vr(VB[kap^1]+4,4)}, v{VV} offset:{off+1536}",
                 "s_mov_b64 exec, -1"]
        kload = [f"ds_read_b128 {vr(KB[kap],4)}, v{VK} offset:{off+2048}"]
        L = tile(S0, S1, QB, KB[kap], OA, VB[kap], OB, VB[kap^1]+4, vload, [], kload, ["s_waitcnt lgkmcnt(4)"])
        L += tile(S1, S0, QA, KB[kap^1], OB, VB[kap], OA, VB[kap]+4, [], ["s_waitcnt lgkmcnt(3)"], [], [])
        return L
    a.I("s_mov_b32 s73, 0")
    a.raw(".p2align 6")
    a.L("L_aloop")
    a.I("s_cmp_lg_u32 s73, 4")
    a.I("s_cbranch_scc1 L_aloop2")
    a.I("s_waitcnt vmcnt(0)")
    a.I(f"v_mov_b32 v104, {M_KV}")
    a.I("v_mov_b32 v105, 1")
    a.I("s_mov_b64 exec, 1")
    a.I("ds_add_u32 v104, v105")
    a.I("s_mov_b64 exec, -1")
    lds_spin(a, M_KV, 8, 104, 105)
    a.L("L_aloop2")
    a.I("\n".join(keytile(0, 0) + keytile(1, 1024)))
    a.I(f"v_add_u32 v{VK}, 2048, v{VK}")
    a.I(f"v_add_u32 v{VV}, 2048, v{VV}")
    a.I("s_add_u32 s73, s73, 1")
    a.I("s_cmp_lg_u32 s73, 16")
    a.I("s_cbranch_scc1 L_aloop")
    a.I(MF(OB, VB[1]+4, S1+4, OB))
    a.I("s_waitcnt lgkmcnt(0)")
    a.I("s_nop 15")
    stamp(a, "aloop")
    a.I("s_barrier")
    a.I(f"s_mul_i32 s54, s{S_W}, 2304")
    a.I(f"s_add_u32 s54, s54, {L_XCH}")
    a.I(f"s_xor_b32 s55, s{S_W}, 4")
    a.I("s_mul_i32 s55, s55, 2304")
    a.I(f"s_add_u32 s55, s55, {L_XCH}")
    a.I(f"v_add_u32 v9, s55, v{VL}")
    a.I(f"v_add_u32 v8, s54, v{VL}")
    a.I("v_lshlrev_b32 v10, 2, v1")
    a.I("v_add_u32 v11, s55, v10")
    a.I("v_add_u32 v10, s54, v10")
    a.I("s_cmp_eq_u32 s64, 0")
    a.I("s_cbranch_scc1 L_x0")
    for i in range(9):
        a.I(f"v_mov_b32 v{S0+i}, v{OA+i}")
        a.I(f"v_mov_b32 v{OA+i}, v{OB+i}")
        a.I(f"v_mov_b32 v{OB+i}, v{S0+i}")
    a.L("L_x0")
    a.I(f"ds_write_b128 v8, {vr(OB,4)}")
    a.I(f"ds_write_b128 v8, {vr(OB+4,4)} offset:1024")
    a.I(f"ds_write_b32 v10, v{OB+8} offset:2048")
    a.I("s_waitcnt lgkmcnt(0)")
    a.I("s_barrier")
    a.I(f"ds_read_b128 {vr(S0,4)}, v9")
    a.I(f"ds_read_b128 {vr(S0+4,4)}, v9 offset:1024")
    a.I(f"ds_read_b32 v{S0+8}, v11 offset:2048")
    a.I("s_waitcnt lgkmcnt(0)")
    for i in range(9):
        a.I(f"v_add_f32 v{OA+i}, v{OA+i}, v{S0+i}")
    a.I(f"v_rcp_f32 v{OA+8}, v{OA+8}")
    a.I("s_nop 0")
    for i in range(8):
        a.I(f"v_mul_f32 v{OA+i}, v{OA+i}, v{OA+8}")
    for j in range(4):
        a.I(f"v_cvt_pk_bf16_f32 v{OA+j}, v{OA+2*j}, v{OA+2*j+1}")
    srd_off(a, RA, S_WS, OF, 2*MB)
    a.I("s_add_u32 s66, s66, s64")
    a.I("s_lshl_b32 s66, s66, 5")
    a.I(f"s_add_u32 s66, s66, s{S_HD}")
    a.I("s_lshl_b32 s66, s66, 10")
    a.I(f"buffer_store_dwordx4 {vr(OA,4)}, v{VL}, {S4(RA)}, s66 offen sc1")
    a.I("s_waitcnt vmcnt(0)")
    a.I("s_barrier")
    stamp_flush(a)
    a.L("L_end")
    a.I("s_endpgm")
    return a

HEADER = open("cdna_kernels/" + NAME + ".s.ref").read().split("; Override launch")[0]

def build(path):
    a = gen()
    out = HEADER + f"; @launch grid=(256,1,1) block=(768,1,1) lds={LDS_TOTAL}\n"
    out += '.amdgcn_target "amdgcn-amd-amdhsa--gfx950"\n.text\n' + a.text()
    out += f""".section .rodata,"a"
.p2align 6
.amdhsa_kernel {KN}
  .amdhsa_next_free_vgpr 168
  .amdhsa_next_free_sgpr 102
  .amdhsa_accum_offset 168
  .amdhsa_group_segment_fixed_size 0
  .amdhsa_kernarg_size 96
  .amdhsa_user_sgpr_count 2
  .amdhsa_user_sgpr_kernarg_segment_ptr 1
  .amdhsa_system_sgpr_workgroup_id_x 1
.end_amdhsa_kernel
"""
    open(path, "w").write(out)
    probs = check_linear(a.lines, "k")
    if STAMPS: print("stamps:", _stamp_names)
    return probs

if __name__ == "__main__":
    for x in list(sys.argv[1:]):
        if x.startswith("-D"):
            k, _, v = x[2:].partition("=")
            OPT[k] = int(v) if v else 1
            sys.argv.remove(x)
    if "--stamps" in sys.argv:
        STAMPS = True; sys.argv.remove("--stamps")
    path = sys.argv[1] if len(sys.argv) > 1 else "cdna_kernels/" + NAME + ".s"
    probs = build(path)
    for p in probs: print("HAZARD:", p)
    print("written", path, "problems:", len(probs))
```

```python
import sys, struct
from asmlib import *

NAME = "gated_mix__mha_block__dense_activation_squared_relu__prompt"
KN = NAME + "_kernel"
MB = 1 << 20
QF, KF, VF, HF, GO, OF, FLG = 0, 2*MB, 4*MB, 6*MB, 12*MB, 13*MB, 16*MB
HF_SIZE = 86 * 65536
FA_OFF, FH_OFF, FO_OFF = 0, 4096, 8192
QSCALE = 0.25 * 1.4426950408889634
STAMP_OFF = 32*MB
STAMPS = False
OPT = {}
def f2u(x): return struct.unpack("<I", struct.pack("<f", x))[0]

S_AX, S_WQKV, S_WO, S_W1, S_B1, S_W2, S_B2, S_GW, S_OUT, S_DBG, S_WS = 4, 6, 8, 12, 14, 16, 18, 20, 22, 24, 26
S_W = 3
S_RB, S_CG, S_START = 29, 30, 31
RA, RB, RC, RD = 32, 36, 40, 44
S_NONCE, S_HD, S_QB = 60, 61, 62
L_K, L_V, L_RING, L_MISC = 0, 65536, 131072, 131072 + 24576
L_XCH = L_RING
M_KV, M_H, M_BAD, M_FA, M_QRD, M_HST = [L_MISC + 4*i for i in range(6)]
LDS_TOTAL = 163840

def srd(a, dst, base, size):
    a.I(f"s_mov_b32 s{dst}, s{base}")
    a.I(f"s_mov_b32 s{dst+1}, s{base+1}")
    a.I(f"s_mov_b32 s{dst+2}, {size}")
    a.I(f"s_mov_b32 s{dst+3}, 0x20000")
def srd_off(a, dst, base, off, size):
    a.I(f"s_add_u32 s{dst}, s{base}, {off}")
    a.I(f"s_addc_u32 s{dst+1}, s{base+1}, 0")
    a.I(f"s_mov_b32 s{dst+2}, {size}")
    a.I(f"s_mov_b32 s{dst+3}, 0x20000")
def MF(d, A, B, c=None):
    cc = "0" if c is None else vr(c, 16)
    return f"v_mfma_f32_32x32x16_bf16 {vr(d,16)}, {vr(A,4)}, {vr(B,4)}, {cc}"
def S4(r): return f"s[{r}:{r+3}]"

_stamp_names = []
def stamp(a, name):
    if not STAMPS: return
    if name not in _stamp_names: _stamp_names.append(name)
    i = _stamp_names.index(name)
    a.I("s_waitcnt lgkmcnt(0)")
    a.I("s_memtime s[98:99]")
    a.I("s_memrealtime s[100:101]")
    a.I("s_waitcnt lgkmcnt(0)")
    a.I(f"v_writelane_b32 v6, s98, {i}")
    a.I(f"v_writelane_b32 v7, s100, {i}")
def stamp_flush(a):
    if not STAMPS: return
    a.I("s_waitcnt vmcnt(0)")
    stamp(a, "end")
    a.I(f"s_add_u32 s96, s{S_WS}, {STAMP_OFF}")
    a.I(f"s_addc_u32 s97, s{S_WS+1}, 0")
    a.I("s_mul_i32 s98, s2, 12")
    a.I(f"s_add_u32 s98, s98, s{S_W}")
    a.I("s_lshl_b32 s98, s98, 9")
    a.I("v_lshlrev_b32 v2, 2, v1")
    a.I("v_add_u32 v2, s98, v2")
    a.I("s_mov_b64 exec, -1")
    a.I("global_store_dword v2, v6, s[96:97]")
    a.I("global_store_dword v2, v7, s[96:97] offset:256")
    a.I("s_waitcnt vmcnt(0)")

def tr_lane_addr(a, dst, lane, tmp, tmp2, hrows, pitch):
    a.I(f"v_bfe_u32 v{tmp}, v{lane}, 2, 2")
    a.I(f"v_lshrrev_b32 v{tmp2}, 5, v{lane}")
    a.I(f"v_mul_u32_u24 v{tmp2}, {hrows}, v{tmp2}")
    a.I(f"v_add_u32 v{tmp}, v{tmp}, v{tmp2}")
    a.I(f"v_mul_u32_u24 v{dst}, {pitch}, v{tmp}")
    a.I(f"v_bfe_u32 v{tmp}, v{lane}, 4, 1")
    a.I(f"v_lshlrev_b32 v{tmp}, 1, v{tmp}")
    a.I(f"v_bfe_u32 v{tmp2}, v{lane}, 1, 1")
    a.I(f"v_add_u32 v{tmp}, v{tmp}, v{tmp2}")
    a.I(f"v_bfe_u32 v{tmp2}, v{lane}, 3, 1")
    a.I(f"v_lshlrev_b32 v{tmp2}, 2, v{tmp2}")
    a.I(f"v_xor_b32 v{tmp}, v{tmp}, v{tmp2}")
    a.I(f"v_lshl_add_u32 v{dst}, v{tmp}, 4, v{dst}")
    a.I(f"v_and_b32 v{tmp}, 1, v{lane}")
    a.I(f"v_lshl_add_u32 v{dst}, v{tmp}, 3, v{dst}")

def dma_w_lane_off(a, dst, lane, tmp, tmp2, pitch):
    a.I(f"v_lshrrev_b32 v{tmp}, 3, v{lane}")
    a.I(f"v_mul_u32_u24 v{dst}, {pitch}, v{tmp}")
    a.I(f"v_bfe_u32 v{tmp}, v{lane}, 4, 1")
    a.I(f"v_lshlrev_b32 v{tmp}, 2, v{tmp}")
    a.I(f"v_and_b32 v{tmp2}, 7, v{lane}")
    a.I(f"v_xor_b32 v{tmp}, v{tmp}, v{tmp2}")
    a.I(f"v_lshl_add_u32 v{dst}, v{tmp}, 4, v{dst}")

def tr_reads_perm(F, va0, va1, slot_off):
    out = []
    for ct, va in ((0, va0), (1, va1)):
        for rd in range(2):
            out.append(f"ds_read_b64_tr_b16 {vr(F+4*ct+2*rd,2)}, v{va} offset:{slot_off + rd*1024}")
    return out

_lab = [0]
def poll(a, srd_reg, nlanes, voff, vtmp, soff):
    _lab[0] += 1
    n = _lab[0]
    a.I(f"s_mov_b32 exec_lo, {hex((1 << nlanes) - 1)}")
    a.I("s_mov_b32 exec_hi, 0")
    a.I("s_mov_b32 s50, 0x40000")
    a.L(f"L_poll{n}")
    a.I(f"buffer_load_dword v{vtmp}, v{voff}, {S4(srd_reg)}, {soff} offen sc1")
    a.I("s_waitcnt vmcnt(0)")
    a.I(f"v_cmp_ne_u32 vcc, s{S_NONCE}, v{vtmp}")
    a.I(f"s_cbranch_vccz L_polld{n}")
    a.I("s_sub_u32 s50, s50, 1")
    a.I("s_cmp_eq_u32 s50, 0")
    a.I(f"s_cbranch_scc1 L_polld{n}")
    a.I("s_sleep 1")
    a.I(f"s_branch L_poll{n}")
    a.L(f"L_polld{n}")
    a.I("s_mov_b64 exec, -1")

def lds_spin(a, addr, target, vaddr, vtmp):
    _lab[0] += 1
    n = _lab[0]
    a.I(f"v_mov_b32 v{vaddr}, {addr}")
    a.I("s_mov_b32 s50, 0x400000")
    a.L(f"L_spin{n}")
    a.I(f"ds_read_b32 v{vtmp}, v{vaddr}")
    a.I("s_waitcnt lgkmcnt(0)")
    a.I(f"v_readfirstlane_b32 s51, v{vtmp}")
    a.I("s_sub_u32 s50, s50, 1")
    a.I(f"s_cmp_ge_u32 s51, {target}")
    a.I(f"s_cbranch_scc1 L_spind{n}")
    a.I("s_cmp_eq_u32 s50, 0")
    a.I(f"s_cbranch_scc1 L_spind{n}")
    a.I("s_sleep 1")
    a.I(f"s_branch L_spin{n}")
    a.L(f"L_spind{n}")

def lds_add1(a, addr, vaddr, vtmp):
    a.I(f"v_mov_b32 v{vaddr}, {addr}")
    a.I(f"v_mov_b32 v{vtmp}, 1")
    a.I("s_mov_b64 exec, 1")
    a.I(f"ds_add_u32 v{vaddr}, v{vtmp}")
    a.I("s_mov_b64 exec, -1")

def gen():
    a = Asm()
    a.raw(f".globl {KN}\n.p2align 8\n.type {KN},@function\n{KN}:")
    a.I("s_cmp_ge_u32 s2, 256")
    a.I("s_cbranch_scc1 L_end")
    a.I("s_load_dwordx4 s[4:7], s[0:1], 0")
    a.I("s_load_dwordx2 s[8:9], s[0:1], 16")
    a.I("s_load_dwordx4 s[12:15], s[0:1], 32")
    a.I("s_load_dwordx4 s[16:19], s[0:1], 48")
    a.I("s_load_dwordx4 s[20:23], s[0:1], 64")
    a.I("s_load_dwordx4 s[24:27], s[0:1], 80")
    a.I("v_lshrrev_b32 v2, 6, v0")
    a.I("v_and_b32 v1, 63, v0")
    a.I(f"v_readfirstlane_b32 s{S_W}, v2")
    if STAMPS:
        a.I("v_mov_b32 v6, 0"); a.I("v_mov_b32 v7, 0")
    a.I("s_and_b32 s52, s2, 7")
    a.I("s_lshr_b32 s53, s2, 3")
    a.I("s_lshr_b32 s54, s52, 2")
    a.I("s_lshl_b32 s54, s54, 4")
    a.I("s_lshr_b32 s55, s53, 1")
    a.I(f"s_add_u32 s{S_RB}, s54, s55")
    a.I("s_and_b32 s54, s52, 3")
    a.I("s_lshl_b32 s54, s54, 1")
    a.I("s_and_b32 s55, s53, 1")
    a.I(f"s_add_u32 s{S_CG}, s54, s55")
    a.I(f"s_mul_i32 s54, s{S_CG}, 6")
    a.I(f"s_min_u32 s{S_START}, s54, 37")
    a.I(f"s_lshl_b32 s{S_HD}, s52, 2")
    a.I("s_and_b32 s54, s53, 3")
    a.I(f"s_add_u32 s{S_HD}, s{S_HD}, s54")
    a.I(f"s_lshr_b32 s{S_QB}, s2, 5")
    a.I("s_waitcnt lgkmcnt(0)")
    stamp(a, "karg")
    a.I(f"s_cmp_ge_u32 s{S_W}, 8")
    a.I("s_cbranch_scc1 L_aux")
    a.I(f"s_cmp_ge_u32 s{S_W}, 4")
    a.I("s_cbranch_scc1 L_prod")

    H, XA, WA, ACQ, ACF, FA, FB = 2, 8, 12, 32, 80, 128, 144
    a.I(f"v_lshrrev_b32 v{H}, 5, v1")
    a.I(f"s_and_b32 s63, s{S_W}, 1")
    a.I(f"s_lshr_b32 s64, s{S_W}, 1")
    srd(a, RD, S_B1, 2752)
    a.I(f"s_add_u32 s54, s{S_START}, s63")
    a.I("s_lshl_b32 s54, s54, 6")
    a.I(f"v_lshlrev_b32 v3, 3, v{H}")
    B1 = 128
    for s in range(3):
        for q in range(4):
            r = B1 + (s*4+q)*2
            a.I(f"buffer_load_dwordx2 v[{r}:{r+1}], v3, {S4(RD)}, s54 offen offset:{s*128+q*16}")
    for i in range(48):
        a.I(f"v_mov_b32 v{ACQ+i}, 0")
    a.I("v_and_b32 v16, 31, v1")
    a.I("v_bfe_u32 v17, v1, 1, 3")
    a.I("s_lshl_b32 s54, s64, 5")
    a.I("v_add_u32 v16, s54, v16")
    a.I("v_lshlrev_b32 v16, 7, v16")
    a.I(f"v_xor_b32 v17, v17, v{H}")
    for ks in range(4):
        a.I(f"v_xor_b32 v18, {2*ks}, v17")
        a.I(f"v_lshl_add_u32 v{XA+ks}, v18, 4, v16")
    tr_lane_addr(a, WA, 1, 16, 17, 8, 384)
    a.I("s_lshl_b32 s54, s63, 6")
    a.I(f"v_xor_b32 v{WA}, s54, v{WA}")
    a.I(f"v_add_u32 v{WA}, 0x10000, v{WA}")
    a.I(f"v_add_u32 v{WA+1}, 49152, v{WA}")
    a.I("s_waitcnt vmcnt(0)")
    for s in range(3):
        for q in range(4):
            r = B1 + (s*4+q)*2
            d = ACF + s*16 + q*4
            a.I(f"v_lshlrev_b32 v{d}, 16, v{r}")
            a.I(f"v_and_b32 v{d+1}, 0xffff0000, v{r}")
            a.I(f"v_lshlrev_b32 v{d+2}, 16, v{r+1}")
            a.I(f"v_and_b32 v{d+3}, 0xffff0000, v{r+1}")

    def reads(b, ks, F):
        out = [f"ds_read_b128 {vr(F,4)}, v{XA+ks} offset:{b*8192}"]
        wv = WA + (b >> 1)
        for s in range(3):
            for rd in range(2):
                out.append(f"ds_read_b64_tr_b16 {vr(F+4+4*s+2*rd,2)}, v{wv} offset:{(b&1)*24576 + ks*6144 + rd*1536 + s*128}")
        return out
    def mfmas(F, qkv):
        A = ACQ if qkv else ACF
        out = []
        for s in range(3):
            X, W = F, F+4+4*s
            out.append(MF(A+16*s, X, W, A+16*s) if (qkv and s == 2) else MF(A+16*s, W, X, A+16*s))
        return out
    def stage_loop(tag, qkv):
        a.I("s_mov_b32 s65, 0x8000")
        a.L(f"L_loop_{tag}")
        for b in range(4):
            a.I("\n".join(reads(b, 1, FB)));  a.I("s_waitcnt lgkmcnt(7)"); a.I("\n".join(mfmas(FA, qkv)))
            a.I("\n".join(reads(b, 2, FA)));  a.I("s_waitcnt lgkmcnt(7)"); a.I("\n".join(mfmas(FB, qkv)))
            a.I("\n".join(reads(b, 3, FB)));  a.I("s_waitcnt lgkmcnt(7)"); a.I("\n".join(mfmas(FA, qkv)))
            fap = OPT.get("fapos", 4)
            if (not qkv) and b == (fap & 3):
                if fap >= 4:
                    a.I("s_cmp_lt_i32 s65, 0")
                    a.I(f"s_cbranch_scc0 L_nodrain{b}")
                a.I("s_waitcnt vmcnt(0)")
                if fap >= 4: a.L(f"L_nodrain{b}")
            a.I("s_waitcnt lgkmcnt(0)")
            if b == 3:
                if not qkv:
                    a.I("s_cmp_lt_i32 s65, 0")
                    a.I(f"s_cbranch_scc1 L_last_{tag}")
                for ks in range(4):
                    a.I(f"v_add_u32 v{XA+ks}, s65, v{XA+ks}")
            a.I("s_barrier")
            a.I("\n".join(reads((b+1) % 4, 0, FA)))
            a.I("\n".join(mfmas(FB, qkv)))
        a.I("s_cmp_lt_i32 s65, 0")
        a.I("s_mov_b32 s65, 0xffff8000")
        a.I(f"s_cbranch_scc0 L_loop_{tag}")
        if not qkv:
            a.L(f"L_last_{tag}")
            a.I("\n".join(mfmas(FB, qkv)))

    a.I("s_barrier")
    stamp(a, "B0")
    a.I("\n".join(reads(0, 0, FA)))
    stage_loop("q", True)
    stamp(a, "qloop")
    srd(a, RA, S_WS, 6*MB)
    a.I(f"s_lshl_b32 s54, s{S_RB}, 1")
    a.I("s_add_u32 s54, s54, s64")
    a.I(f"s_lshl_b32 s55, s{S_CG}, 2")
    a.I("s_lshl_b32 s56, s63, 1")
    a.I("s_add_u32 s55, s55, s56")
    a.I("s_lshl_b32 s55, s55, 6")
    a.I("s_add_u32 s54, s54, s55")
    a.I("s_lshl_b32 s54, s54, 10")
    a.I("v_lshlrev_b32 v3, 4, v1")
    a.I("v_bfe_u32 v4, v1, 4, 1")
    a.I("v_lshlrev_b32 v4, 16, v4")
    a.I(f"v_lshl_add_u32 v4, v{H}, 8, v4")
    a.I("v_and_b32 v5, 15, v1")
    a.I("v_lshl_add_u32 v4, v5, 4, v4")
    a.I(f"s_mov_b32 s56, {hex(f2u(QSCALE))}")
    a.I("s_nop 7")
    for s in (1, 0, 2):
        d = ACQ + 16*s
        if s == 0:
            for i in range(16):
                a.I(f"v_mul_f32 v{d+i}, s56, v{d+i}")
        for j in range(8):
            a.I(f"v_cvt_pk_bf16_f32 v{d+j}, v{d+2*j}, v{d+2*j+1}")
        if s < 2:
            for hh in range(2):
                a.I(f"s_add_u32 s55, s54, {s*KF + hh*65536}")
                a.I(f"buffer_store_dwordx4 {vr(d+4*hh,4)}, v3, {S4(RA)}, s55 offen sc1")
        else:
            a.I(f"s_add_u32 s55, s54, {VF}")
            for u in range(2):
                a.I(f"buffer_store_dwordx4 {vr(d+4*u,4)}, v4, {S4(RA)}, s55 offen offset:{u*512} sc1")
    stage_loop("f", False)
    a.I("s_barrier")
    stamp(a, "floop")
    a.I("s_barrier")
    srd_off(a, RA, S_WS, HF, HF_SIZE)
    a.I(f"s_lshl_b32 s54, s{S_RB}, 1")
    a.I("s_add_u32 s54, s54, s64")
    a.I(f"s_add_u32 s55, s{S_START}, s63")
    a.I("s_lshl_b32 s55, s55, 7")
    a.I("s_add_u32 s54, s54, s55")
    a.I("s_lshl_b32 s54, s54, 10")
    a.I("v_lshlrev_b32 v3, 4, v1")
    a.I("s_nop 7")
    for s in range(3):
        d = ACF + 16*s
        for i in range(16):
            a.I(f"v_max_f32 v{d+i}, 0, v{d+i}")
        for i in range(16):
            a.I(f"v_mul_f32 v{d+i}, v{d+i}, v{d+i}")
        for j in range(8):
            a.I(f"v_cvt_pk_bf16_f32 v{d+j}, v{d+2*j}, v{d+2*j+1}")
        for uu in range(2):
            a.I(f"s_add_u32 s55, s54, {(4*s+uu)*65536}")
            a.I(f"buffer_store_dwordx4 {vr(d+4*uu,4)}, v3, {S4(RA)}, s55 offen sc1")
    a.I("s_nop 1")
    a.I("s_branch L_attn")

    a.L("L_prod")
    a.I(f"s_sub_u32 s67, s{S_W}, 4")
    a.I(f"s_lshl_b32 s54, s{S_RB}, 16")
    srd_off(a, RA, S_AX, "s54", 65536)
    srd(a, RB, S_WQKV, 512*3072)
    srd(a, RC, S_W1, 512*2752)
    a.I("v_lshrrev_b32 v2, 3, v1")
    a.I("s_lshl_b32 s54, s67, 3")
    a.I("v_add_u32 v2, s54, v2")
    a.I("v_lshrrev_b32 v3, 4, v1")
    a.I("s_and_b32 s54, s67, 1")
    a.I("s_lshl_b32 s54, s54, 2")
    a.I("v_add_u32 v3, s54, v3")
    a.I("v_and_b32 v4, 7, v1")
    a.I("v_xor_b32 v3, v3, v4")
    a.I("v_lshlrev_b32 v3, 4, v3")
    a.I("v_lshl_add_u32 v8, v2, 10, v3")
    for j in range(3):
        a.I(f"v_add_u32 v2, {64*j}, v1")
        a.I("v_mul_u32_u24 v3, 171, v2")
        a.I("v_lshrrev_b32 v3, 12, v3")
        a.I("v_mul_u32_u24 v4, 24, v3")
        a.I("v_sub_u32 v2, v2, v4")
        a.I("v_lshrrev_b32 v4, 3, v2")
        a.I("v_and_b32 v2, 7, v2")
        a.I("v_bfe_u32 v5, v3, 1, 1")
        a.I("v_lshlrev_b32 v5, 2, v5")
        a.I("v_xor_b32 v2, v2, v5")
        a.I("v_lshlrev_b32 v2, 4, v2")
        a.I("v_mul_u32_u24 v5, 3072, v3")
        a.I("v_lshl_add_u32 v5, v4, 10, v5")
        a.I(f"v_add_u32 v{9+j}, v5, v2")
        a.I("v_mul_u32_u24 v5, 2752, v3")
        a.I("v_lshl_add_u32 v5, v4, 7, v5")
        a.I(f"v_add_u32 v{12+j}, v5, v2")
    a.I("s_lshl_b32 s68, s67, 10")
    a.I("s_mul_i32 s69, s67, 6144")
    a.I("s_add_u32 s69, s69, 0x10000")
    a.I(f"s_lshl_b32 s70, s{S_CG}, 7")
    a.I(f"s_mul_i32 s71, s67, {16*3072}")
    a.I("s_add_u32 s70, s70, s71")
    a.I(f"s_lshl_b32 s71, s{S_START}, 6")
    a.I(f"s_mul_i32 s72, s67, {16*2752}")
    a.I("s_add_u32 s71, s71, s72")
    def issue(c, withx):
        a.I(f"s_and_b32 s78, {c}, 3")
        a.I("s_mul_i32 s80, s78, 24576")
        a.I("s_add_u32 s80, s80, s69")
        if withx:
            a.I(f"s_lshl_b32 s79, {c}, 13")
            a.I("s_add_u32 s79, s79, s68")
            a.I(f"s_lshl_b32 s81, {c}, 7")
            for n in range(2):
                a.I(f"s_add_u32 m0, s79, {n*4096}")
                a.I(f"s_add_u32 s83, s81, {n*32768}")
                a.I(f"buffer_load_dwordx4 v8, {S4(RA)}, s83 offen lds")
            a.I(f"s_mul_i32 s82, {c}, {64*3072}")
            a.I("s_add_u32 s82, s82, s70")
            pitch, vo, R = 3072, 9, RB
        else:
            a.I(f"s_sub_u32 s82, {c}, 8")
            a.I(f"s_mul_i32 s82, s82, {64*2752}")
            a.I("s_add_u32 s82, s82, s71")
            pitch, vo, R = 2752, 12, RC
        for g in range(2):
            if g: a.I(f"s_add_u32 s82, s82, {8*pitch}")
            for j in range(3):
                a.I(f"s_add_u32 m0, s80, {g*3072 + j*1024}")
                a.I("s_nop 0")
                a.I(f"buffer_load_dwordx4 v{vo+j}, {S4(R)}, s82 offen lds")
    a.I("s_mov_b32 s84, 0")
    a.L("L_pro")
    issue("s84", True)
    a.I("s_add_u32 s84, s84, 1")
    a.I("s_cmp_lt_u32 s84, 3")
    a.I("s_cbranch_scc1 L_pro")
    stamp(a, "issued3")
    a.L("L_pl1")
    a.I("s_waitcnt vmcnt(16)")
    a.I("s_barrier")
    issue("s84", True)
    a.I("s_add_u32 s84, s84, 1")
    a.I("s_cmp_lt_u32 s84, 8")
    a.I("s_cbranch_scc1 L_pl1")
    a.I("s_waitcnt vmcnt(16)")
    a.I("s_barrier")
    issue("s84", False)
    a.I("s_add_u32 s84, s84, 1")
    a.I("s_waitcnt vmcnt(14)")
    a.I("s_barrier")
    issue("s84", False)
    a.I("s_add_u32 s84, s84, 1")
    a.L("L_pl2")
    a.I("s_waitcnt vmcnt(12)")
    a.I("s_barrier")
    issue("s84", False)
    a.I("s_add_u32 s84, s84, 1")
    a.I("s_cmp_lt_u32 s84, 16")
    a.I("s_cbranch_scc1 L_pl2")
    a.I("s_waitcnt vmcnt(12)")
    a.I("s_barrier")
    a.I("s_waitcnt vmcnt(6)")
    a.I("s_barrier")
    a.I("s_waitcnt vmcnt(0)")
    a.I("s_barrier")
    a.I("s_barrier")
    a.I("s_barrier")
    a.I("s_branch L_attn")

    a.L("L_aux")
    a.I(f"s_sub_u32 s67, s{S_W}, 8")
    a.I("s_cmp_lg_u32 s67, 0")
    a.I("s_cbranch_scc1 L_aux1")
    srd(a, RC, S_DBG, 256)
    a.I("s_memrealtime s[52:53]")
    a.I("s_waitcnt lgkmcnt(0)")
    a.I("s_or_b32 s85, s52, 1")
    a.I("v_mov_b32 v8, s85")
    a.I("v_mov_b32 v9, 0")
    a.I("v_mov_b32 v10, 0")
    a.I("s_mov_b64 exec, 1")
    a.I(f"buffer_atomic_cmpswap v[8:9], v10, {S4(RC)}, 0 offen sc0 sc1")
    a.I("s_mov_b64 exec, -1")
    a.L("L_aux1")
    a.I(f"s_lshl_b32 s54, s{S_RB}, 6")
    a.I(f"s_lshl_b32 s55, s{S_CG}, 3")
    a.I("s_add_u32 s54, s54, s55")
    a.I("s_lshl_b32 s55, s67, 1")
    a.I("s_add_u32 s66, s54, s55")
    a.I("s_lshl_b32 s54, s66, 10")
    srd_off(a, RA, S_AX, "s54", 2048)
    srd(a, RB, S_GW, 1024)
    a.I("v_and_b32 v2, 31, v1")
    a.I("v_lshlrev_b32 v2, 5, v2")
    a.I("v_lshrrev_b32 v3, 5, v1")
    a.I("v_lshl_add_u32 v4, v3, 10, v2")
    for i in range(2):
        a.I(f"buffer_load_dwordx4 {vr(32+4*i,4)}, v4, {S4(RA)}, 0 offen offset:{16*i}")
    for i in range(2):
        a.I(f"buffer_load_dwordx4 {vr(40+4*i,4)}, v2, {S4(RB)}, 0 offen offset:{16*i}")
    npf = 0
    if not OPT.get("nopf"):
        a.I("s_and_b32 s52, s2, 7")
        a.I("s_lshr_b32 s53, s2, 3")
        a.I("s_lshr_b32 s54, s52, 2")
        a.I("s_lshl_b32 s54, s54, 10")
        a.I("s_lshl_b32 s55, s53, 5")
        a.I("s_add_u32 s54, s54, s55")
        a.I("s_lshl_b32 s55, s67, 3")
        a.I("s_add_u32 s54, s54, s55")
        a.I("s_lshl_b32 s54, s54, 10")
        srd(a, RD, S_AX, 2*MB)
        a.I("v_lshlrev_b32 v5, 4, v1")
        for i in range(8):
            a.I(f"buffer_load_dwordx4 {vr(48+4*i,4)}, v5, {S4(RD)}, s54 offen")
            a.I("s_add_u32 s54, s54, 1024")
        srd(a, RD, S_WQKV, 512*3072)
        a.I("s_lshl_b32 s54, s53, 4")
        a.I("s_lshl_b32 s55, s67, 2")
        a.I("s_add_u32 s54, s54, s55")
        a.I("s_mul_i32 s56, s54, 3072")
        a.I("s_and_b32 s55, s52, 3")
        a.I("s_lshl_b32 s55, s55, 8")
        a.I("s_add_u32 s56, s56, s55")
        a.I("v_lshrrev_b32 v10, 4, v1")
        a.I("v_mul_u32_u24 v10, 3072, v10")
        a.I("v_and_b32 v11, 15, v1")
        a.I("v_lshl_add_u32 v10, v11, 4, v10")
        for j in range(3):
            a.I(f"buffer_load_dwordx4 {vr(80+4*j,4)}, v10, {S4(RD)}, s56 offen offset:{j*1024}")
        srd(a, RD, S_W1, 512*2752)
        a.I("s_and_b32 s55, s52, 3")
        a.I("s_mul_i32 s55, s55, 12")
        a.I("s_min_u32 s55, s55, 31")
        a.I("s_lshl_b32 s55, s55, 6")
        a.I("s_mul_i32 s56, s54, 2752")
        a.I("s_add_u32 s56, s56, s55")
        for i in range(4):
            a.I(f"buffer_load_dwordx4 {vr(92+4*i,4)}, v5, {S4(RD)}, s56 offen")
            a.I("s_add_u32 s56, s56, 2752")
        npf = 15
    for i in range(4):
        a.I("s_barrier")
    a.I(f"s_waitcnt vmcnt({npf})")
    a.I("v_mov_b32 v24, 0")
    for i in range(8):
        a.I(f"v_dot2c_f32_bf16 v24, v{32+i}, v{40+i}")
    a.I("s_nop 3")
    for sh in (1, 2, 4, 8):
        a.I(f"v_add_f32_dpp v24, v24, v24 row_shr:{sh} row_mask:0xf bank_mask:0xf")
        a.I("s_nop 1")
    a.I("v_add_f32_dpp v24, v24, v24 row_bcast:15 row_mask:0xa bank_mask:0xf")
    a.I("s_nop 1")
    a.I("v_cvt_pk_bf16_f32 v24, v24, v24")
    a.I("v_and_b32 v24, 0xffff0000, v24")
    a.I(f"v_mul_f32 v24, {hex(f2u(-1.4426950408889634))}, v24")
    a.I("v_exp_f32 v24, v24")
    a.I("s_nop 0")
    a.I("v_add_f32 v24, 1.0, v24")
    a.I("v_rcp_f32 v24, v24")
    a.I("s_nop 0")
    a.I("v_cvt_pk_bf16_f32 v24, v24, v24")
    a.I("v_and_b32 v24, 0xffff0000, v24")
    srd_off(a, RA, S_WS, GO, 8192)
    a.I("s_lshl_b32 s54, s66, 2")
    a.I("v_lshlrev_b32 v3, 2, v3")
    a.I("s_mov_b32 s52, 0x80000000")
    a.I("s_mov_b32 s53, 0x80000000")
    a.I("s_mov_b64 exec, s[52:53]")
    a.I(f"buffer_store_dword v24, v3, {S4(RA)}, s54 offen sc1")
    a.I("s_mov_b64 exec, -1")
    srd_off(a, RC, S_WS, FLG, 16384)
    a.I("v_readfirstlane_b32 s54, v8")
    a.I("s_nop 0")
    a.I("s_cmp_eq_u32 s54, 0")
    a.I(f"s_cselect_b32 s{S_NONCE}, s85, s54")
    fap = OPT.get("fapos", 4)
    for i in range(4, 8 + fap + 2):
        a.I("s_barrier")
    a.I("s_cmp_lg_u32 s67, 0")
    a.I("s_cbranch_scc1 L_aux2")
    a.I(f"s_lshl_b32 s54, s{S_CG}, 7")
    a.I(f"s_lshl_b32 s55, s{S_RB}, 2")
    a.I("s_add_u32 s54, s54, s55")
    a.I(f"s_add_u32 s54, s54, {FA_OFF}")
    a.I(f"v_mov_b32 v8, s{S_NONCE}")
    a.I("v_mov_b32 v10, 0")
    a.I("s_mov_b64 exec, 1")
    a.I(f"buffer_store_dword v8, v10, {S4(RC)}, s54 offen sc1")
    a.I("s_mov_b64 exec, -1")
    stamp(a, "FApub")
    a.L("L_aux2")
    for i in range(8 + fap + 2, 16):
        a.I("s_barrier")
    a.I("s_barrier")
    a.I("s_cmp_lg_u32 s67, 1")
    a.I("s_cbranch_scc1 L_aux3")
    a.I(f"v_lshlrev_b32 v10, 2, v1")
    a.I(f"v_add_u32 v10, {L_MISC}, v10")
    a.I("v_mov_b32 v8, 0")
    a.I("ds_write_b32 v10, v8")
    a.I("s_waitcnt lgkmcnt(0)")
    a.L("L_aux3")
    a.I("s_barrier")
    a.I("s_setprio 3")
    stamp(a, "E2")
    a.I("s_cmp_lg_u32 s67, 0")
    a.I("s_cbranch_scc1 L_aux4")
    a.I(f"s_lshr_b32 s54, s{S_HD}, 2")
    a.I("s_lshl_b32 s54, s54, 7")
    a.I(f"s_add_u32 s54, s54, {FA_OFF}")
    a.I("v_lshlrev_b32 v8, 2, v1")
    poll(a, RC, 32, 8, 9, "s54")
    lds_add1(a, M_FA, 8, 9)
    a.I("s_branch L_aux5")
    a.L("L_aux4")
    lds_spin(a, M_FA, 1, 8, 9)
    a.L("L_aux5")
    stamp(a, "FAok")
    VL = 4
    a.I(f"v_lshlrev_b32 v{VL}, 4, v1")
    a.I(f"s_lshl_b32 s54, s{S_HD}, 16")
    a.I(f"s_add_u32 s55, s54, {KF}")
    srd_off(a, RA, S_WS, "s55", 65536)
    a.I(f"s_add_u32 s55, s54, {VF}")
    srd_off(a, RB, S_WS, "s55", 65536)
    srd_off(a, RD, S_WS, "s54", 65536)
    a.I(f"s_lshl_b32 s54, s{S_QB}, 3")
    a.I("s_lshl_b32 s55, s67, 1")
    a.I("s_add_u32 s54, s54, s55")
    a.I("s_lshl_b32 s54, s54, 10")
    a.I("s_lshl_b32 s55, s67, 11")
    a.I(f"s_add_u32 s55, s55, {L_RING}")
    for t in range(2):
        a.I(f"s_add_u32 m0, s55, {t*1024}")
        a.I(f"s_add_u32 s56, s54, {t*1024}")
        a.I(f"buffer_load_dwordx4 v{VL}, {S4(RD)}, s56 offen sc1 lds")
    a.I("s_lshl_b32 s54, s67, 10")
    def kvchunks(cs):
        for c in cs:
            for half in range(2):
                a.I(f"s_add_u32 s55, s54, {half*32768 + c*4096}")
                a.I("s_mov_b32 m0, s55")
                a.I(f"s_add_u32 s56, s55, {L_V}")
                a.I(f"buffer_load_dwordx4 v{VL}, {S4(RA)}, s55 offen sc1 lds")
                a.I("s_mov_b32 m0, s56")
                a.I("s_nop 0")
                a.I(f"buffer_load_dwordx4 v{VL}, {S4(RB)}, s55 offen sc1 lds")
    kvchunks(range(0, 2))
    kvchunks(range(2, 4))
    a.I("s_waitcnt vmcnt(8)")
    lds_add1(a, M_KV, 8, 9)
    stamp(a, "KV1")
    kvchunks(range(4, 8))
    a.I("s_lshr_b32 s53, s2, 3")
    srd(a, RA, S_W2, 1376*1024)
    srd(a, RB, S_WO, 512*1024)
    a.I("s_mul_i32 s54, s53, 44032")
    a.I("s_lshl_b32 s55, s67, 10")
    a.I("s_add_u32 s54, s54, s55")
    a.I("s_waitcnt vmcnt(0)")
    lds_add1(a, M_KV, 8, 9)
    stamp(a, "KV2")
    for i in range(11):
        a.I(f"buffer_load_dwordx4 {vr(40+4*i,4)}, v{VL}, {S4(RA)}, s54 offen")
        a.I("s_add_u32 s54, s54, 4096")
    a.I("s_lshl_b32 s54, s53, 14")
    a.I("s_add_u32 s54, s54, s55")
    for i in range(4):
        a.I(f"buffer_load_dwordx4 {vr(84+4*i,4)}, v{VL}, {S4(RB)}, s54 offen")
        a.I("s_add_u32 s54, s54, 4096")
    WF, HR, OR_, ACC2, BPR = 24, 40, 40, 104, 8
    VH, VW, VA0, VA1 = 2, 3, 4, 5
    a.I("s_cmp_lg_u32 s67, 0")
    a.I("s_cbranch_scc1 L_f1")
    lds_spin(a, M_HST, 4, 8, 9)
    lds_spin(a, M_KV, 8, 8, 9)
    a.I(f"s_lshl_b32 s54, s{S_RB}, 7")
    a.I(f"s_lshl_b32 s55, s{S_CG}, 2")
    a.I("s_add_u32 s54, s54, s55")
    a.I(f"s_add_u32 s54, s54, {FH_OFF}")
    a.I(f"v_mov_b32 v8, s{S_NONCE}")
    a.I("v_mov_b32 v10, 0")
    a.I("s_mov_b64 exec, 1")
    a.I(f"buffer_store_dword v8, v10, {S4(RC)}, s54 offen sc1")
    a.I("s_mov_b64 exec, -1")
    a.I(f"s_lshl_b32 s54, s{S_HD}, 7")
    a.I(f"s_add_u32 s54, s54, {FH_OFF}")
    a.I("v_lshlrev_b32 v8, 2, v1")
    poll(a, RC, 8, 8, 9, "s54")
    lds_add1(a, M_H, 8, 9)
    a.I("s_branch L_f2")
    a.L("L_f1")
    lds_spin(a, M_H, 1, 8, 9)
    a.L("L_f2")
    lds_spin(a, M_QRD, 8, 8, 9)
    stamp(a, "hready")
    srd(a, RA, S_W2, 1376*1024)
    srd_off(a, RB, S_WS, HF, HF_SIZE)
    a.I(f"v_lshlrev_b32 v{VH}, 4, v1")
    dma_w_lane_off(a, VW, 1, 8, 9, 1024)
    a.I(f"s_lshl_b32 s54, s{S_QB}, 7")
    a.I(f"v_add_u32 v{VW}, s54, v{VW}")
    tr_lane_addr(a, VA0, 1, 8, 9, 4, 128)
    a.I("s_mul_i32 s68, s67, 6144")
    a.I(f"s_add_u32 s68, s68, {L_RING}")
    a.I(f"v_add_u32 v{VA0}, s68, v{VA0}")
    a.I(f"v_xor_b32 v{VA1}, 64, v{VA0}")
    a.I("s_mul_i32 s54, s67, 24")
    a.I("s_lshl_b32 s70, s54, 14")
    a.I("s_lshl_b32 s71, s54, 16")
    a.I(f"s_lshl_b32 s55, s{S_HD}, 11")
    a.I("s_add_u32 s71, s71, s55")
    for i in range(64):
        a.I(f"v_mov_b32 v{ACC2+i}, 0")
    a.I("s_waitcnt vmcnt(0)")
    def fissue(slot):
        L = []
        L.append(f"s_add_u32 m0, s68, {slot*2048}")
        L.append(f"s_add_u32 s69, s70, 8192")
        L.append(f"buffer_load_dwordx4 v{VW}, {S4(RA)}, s70 offen lds")
        L.append(f"s_add_u32 m0, s68, {slot*2048+1024}")
        L.append(f"s_add_u32 s70, s70, 16384")
        L.append(f"buffer_load_dwordx4 v{VW}, {S4(RA)}, s69 offen lds")
        L.append(f"buffer_load_dwordx4 {vr(HR+slot*8,4)}, v{VH}, {S4(RB)}, s71 offen sc1")
        L.append(f"buffer_load_dwordx4 {vr(HR+slot*8+4,4)}, v{VH}, {S4(RB)}, s71 offen offset:1024 sc1")
        L.append(f"s_add_u32 s71, s71, 65536")
        return L
    for slot in range(3):
        a.I("\n".join(fissue(slot)))
    a.I("s_cmp_eq_u32 s67, 3")
    a.I("s_cselect_b32 s72, 5, 8")
    a.I(f"s_setprio {OPT.get('ffnprio', 0)}")
    if OPT.get("noffn"): a.I("s_branch L_fskip")
    a.L("L_floop")
    for slot in range(3):
        a.I("s_waitcnt vmcnt(8)")
        a.I("\n".join(tr_reads_perm(WF, VA0, VA1, slot*2048)))
        a.I("s_waitcnt lgkmcnt(0)")
        for ct in range(2):
            for rt in range(2):
                d = ACC2 + (ct*2+rt)*16
                a.I(MF(d, WF+4*ct, HR+slot*8+4*rt, d))
        a.I("\n".join(fissue(slot)))
    a.I("s_sub_u32 s72, s72, 1")
    a.I("s_cmp_lg_u32 s72, 0")
    a.I("s_cbranch_scc1 L_floop")
    a.L("L_fskip")
    a.I("s_setprio 3")
    a.I("s_waitcnt vmcnt(0)")
    stamp(a, "ffn2")
    srd_off(a, RA, S_WS, GO, 8192)
    srd(a, RB, S_B2, 1024)
    a.I("s_and_b32 s73, s67, 1")
    a.I("s_lshr_b32 s74, s67, 1")
    a.I(f"s_lshl_b32 s75, s{S_HD}, 6")
    a.I("s_lshl_b32 s54, s73, 5")
    a.I("s_add_u32 s75, s75, s54")
    a.I("s_lshl_b32 s54, s75, 2")
    a.I("v_and_b32 v8, 31, v1")
    a.I("v_lshlrev_b32 v8, 2, v8")
    a.I(f"buffer_load_dword v40, v8, {S4(RA)}, s54 offen sc1")
    a.I(f"s_lshl_b32 s54, s{S_QB}, 6")
    a.I("s_lshl_b32 s55, s74, 5")
    a.I("s_add_u32 s54, s54, s55")
    a.I("s_lshl_b32 s54, s54, 1")
    a.I("v_lshrrev_b32 v8, 5, v1")
    a.I("v_lshlrev_b32 v8, 3, v8")
    for q in range(4):
        a.I(f"buffer_load_dwordx2 v[{42+2*q}:{43+2*q}], v8, {S4(RB)}, s54 offen offset:{q*16}")
    a.I("s_barrier")
    a.I("s_barrier")
    stamp(a, "B9b")
    srd(a, RA, S_WO, 512*1024)
    a.I("s_lshl_b32 s68, s67, 14")
    a.I("s_lshl_b32 s70, s67, 17")
    for ks in range(8):
        for n in range(2):
            a.I(f"s_add_u32 m0, s68, {ks*2048+n*1024}")
            a.I(f"s_add_u32 s69, s70, {ks*16384+n*8192}")
            a.I(f"buffer_load_dwordx4 v{VW}, {S4(RA)}, s69 offen lds")
    a.I(f"s_add_u32 s54, s68, {L_V}")
    a.I(f"v_add_u32 v8, s54, v{VH}")
    for i in range(16):
        a.I(f"ds_write_b128 v8, {vr(ACC2+4*i,4)} offset:{i*1024}")
    a.I("s_waitcnt lgkmcnt(0)")
    a.I("s_barrier")
    stamp(a, "B10")
    srd_off(a, RC, S_WS, FLG, 16384)
    a.I("s_cmp_lg_u32 s67, 0")
    a.I("s_cbranch_scc1 L_f3")
    a.I(f"s_lshl_b32 s54, s{S_QB}, 7")
    a.I(f"s_lshl_b32 s55, s{S_HD}, 2")
    a.I("s_add_u32 s54, s54, s55")
    a.I(f"s_add_u32 s54, s54, {FO_OFF}")
    a.I(f"v_mov_b32 v9, s{S_NONCE}")
    a.I("v_mov_b32 v10, 0")
    a.I("s_mov_b64 exec, 1")
    a.I(f"buffer_store_dword v9, v10, {S4(RC)}, s54 offen sc1")
    a.I("s_mov_b64 exec, -1")
    a.L("L_f3")
    a.I("s_lshl_b32 s54, s67, 12")
    a.I(f"s_add_u32 s54, s54, {L_V}")
    a.I(f"v_add_u32 v8, s54, v{VH}")
    for p in range(4):
        for q in range(4):
            a.I(f"ds_read_b128 {vr(ACC2+p*16+q*4,4)}, v8 offset:{p*16384+q*1024}")
    a.I("s_waitcnt lgkmcnt(0)")
    for i in range(16):
        a.I(f"v_add_f32 v{ACC2+i}, v{ACC2+i}, v{ACC2+16+i}")
        a.I(f"v_add_f32 v{ACC2+32+i}, v{ACC2+32+i}, v{ACC2+48+i}")
    for i in range(16):
        a.I(f"v_add_f32 v{ACC2+i}, v{ACC2+i}, v{ACC2+32+i}")
    a.I("s_waitcnt vmcnt(17)" if False else "s_waitcnt vmcnt(0)")
    a.I("v_sub_f32 v41, 1.0, v40")
    a.I("v_cvt_pk_bf16_f32 v41, v41, v41")
    a.I("v_and_b32 v41, 0xffff0000, v41")
    for q in range(4):
        a.I(f"v_lshlrev_b32 v52, 16, v{42+2*q}")
        a.I(f"v_and_b32 v53, 0xffff0000, v{42+2*q}")
        a.I(f"v_lshlrev_b32 v54, 16, v{43+2*q}")
        a.I(f"v_and_b32 v55, 0xffff0000, v{43+2*q}")
        for j in range(4):
            a.I(f"v_add_f32 v{BPR+4*q+j}, v{ACC2+4*q+j}, v{52+j}")
        for j in range(4):
            a.I(f"v_mul_f32 v{BPR+4*q+j}, v{BPR+4*q+j}, v41")
    a.I("v_mov_b32 v39, v40")
    a.I("s_cmp_lg_u32 s67, 0")
    a.I("s_cbranch_scc1 L_f4")
    a.I(f"s_lshr_b32 s54, s{S_HD}, 2")
    a.I("s_lshl_b32 s54, s54, 7")
    a.I(f"s_add_u32 s54, s54, {FO_OFF}")
    a.I("v_lshlrev_b32 v40, 2, v1")
    poll(a, RC, 32, 40, 41, "s54")
    a.L("L_f4")
    a.I("s_barrier")
    stamp(a, "B11")
    srd_off(a, RB, S_WS, OF, 2*MB)
    a.I(f"s_lshl_b32 s54, s{S_HD}, 6")
    a.I("s_lshl_b32 s55, s67, 3")
    a.I("s_add_u32 s54, s54, s55")
    a.I("s_lshl_b32 s54, s54, 10")
    for ks in range(8):
        for rt in range(2):
            a.I(f"s_add_u32 s55, s54, {rt*32768 + (ks//4)*4096}")
            a.I(f"buffer_load_dwordx4 {vr(OR_+ks*8+rt*4,4)}, v{VH}, {S4(RB)}, s55 offen offset:{(ks%4)*1024} sc1")
    tr_lane_addr(a, VA0, 1, 32, 33, 4, 128)
    a.I(f"v_add_u32 v{VA0}, s68, v{VA0}")
    a.I(f"v_xor_b32 v{VA1}, 64, v{VA0}")
    for i in range(64):
        a.I(f"v_mov_b32 v{ACC2+i}, 0")
    for ks in range(8):
        a.I(f"s_waitcnt vmcnt({14-2*ks})")
        F = WF
        a.I("\n".join(tr_reads_perm(F, VA0, VA1, ks*2048)))
        a.I("s_waitcnt lgkmcnt(0)")
        for ct in range(2):
            for rt in range(2):
                d = ACC2 + (ct*2+rt)*16
                a.I(MF(d, F+4*ct, OR_+ks*8+4*rt, d))
    a.I("s_nop 15")
    stamp(a, "p3mm")
    a.I(f"s_add_u32 s54, s68, {L_V}")
    a.I(f"v_add_u32 v32, s54, v{VH}")
    for i in range(16):
        a.I(f"ds_write_b128 v32, {vr(ACC2+4*i,4)} offset:{i*1024}")
    a.I("s_waitcnt lgkmcnt(0)")
    a.I("s_barrier")
    a.I("s_lshl_b32 s54, s67, 12")
    a.I(f"s_add_u32 s54, s54, {L_V}")
    a.I(f"v_add_u32 v32, s54, v{VH}")
    for p in range(4):
        for q in range(4):
            a.I(f"ds_read_b128 {vr(ACC2+p*16+q*4,4)}, v32 offset:{p*16384+q*1024}")
    a.I("s_waitcnt lgkmcnt(0)")
    for i in range(16):
        a.I(f"v_add_f32 v{ACC2+i}, v{ACC2+i}, v{ACC2+16+i}")
        a.I(f"v_add_f32 v{ACC2+32+i}, v{ACC2+32+i}, v{ACC2+48+i}")
    for i in range(16):
        a.I(f"v_add_f32 v{ACC2+i}, v{ACC2+i}, v{ACC2+32+i}")
    for i in range(16):
        a.I(f"v_fma_f32 v{ACC2+i}, v{ACC2+i}, v39, v{BPR+i}")
    for j in range(8):
        a.I(f"v_cvt_pk_bf16_f32 v{ACC2+j}, v{ACC2+2*j}, v{ACC2+2*j+1}")
    a.I("s_nop 1")
    a.I(f"v_permlane32_swap_b32 v{ACC2}, v{ACC2+2}")
    a.I(f"v_permlane32_swap_b32 v{ACC2+1}, v{ACC2+3}")
    a.I(f"v_permlane32_swap_b32 v{ACC2+4}, v{ACC2+6}")
    a.I(f"v_permlane32_swap_b32 v{ACC2+5}, v{ACC2+7}")
    srd(a, RA, S_OUT, 2*MB)
    a.I("s_lshl_b32 s54, s75, 10")
    a.I(f"s_lshl_b32 s55, s{S_QB}, 7")
    a.I("s_add_u32 s54, s54, s55")
    a.I("s_lshl_b32 s55, s74, 6")
    a.I("s_add_u32 s54, s54, s55")
    a.I("v_and_b32 v32, 31, v1")
    a.I("v_lshlrev_b32 v32, 10, v32")
    a.I("v_lshrrev_b32 v33, 5, v1")
    a.I("v_lshl_add_u32 v32, v33, 4, v32")
    a.I(f"buffer_store_dwordx4 {vr(ACC2,4)}, v32, {S4(RA)}, s54 offen")
    a.I(f"buffer_store_dwordx4 {vr(ACC2+4,4)}, v32, {S4(RA)}, s54 offen offset:32")
    stamp_flush(a)
    a.I("s_endpgm")

    a.L("L_attn")
    stamp(a, "attn0")
    QA, QB = 8, 12
    KB = [16, 20]; VB = [24, 32]
    S0, S1, OA, OB = 40, 56, 72, 88
    VK, VV, VL = 2, 3, 4
    a.I(f"s_and_b32 s63, s{S_W}, 3")
    a.I(f"s_lshr_b32 s64, s{S_W}, 2")
    a.I(f"v_lshlrev_b32 v{VL}, 4, v1")
    a.I("s_lshl_b32 s54, s64, 15")
    a.I(f"v_add_u32 v{VK}, s54, v{VL}")
    a.I("v_lshrrev_b32 v104, 5, v1")
    a.I("v_and_b32 v105, 15, v1")
    a.I("v_lshlrev_b32 v105, 4, v105")
    a.I(f"v_lshl_add_u32 v{VV}, v104, 8, v105")
    a.I(f"s_add_u32 s54, s54, {L_V}")
    a.I(f"v_add_u32 v{VV}, s54, v{VV}")
    a.I("s_mov_b32 s74, 0x0000ffff")
    a.I("s_mov_b32 s75, 0x0000ffff")
    a.I(f"s_lshl_b32 s66, s{S_QB}, 3")
    a.I("s_lshl_b32 s54, s63, 1")
    a.I("s_add_u32 s66, s66, s54")
    a.I("s_lshl_b32 s54, s63, 11")
    a.I(f"s_add_u32 s54, s54, {L_RING}")
    a.I(f"v_add_u32 v106, s54, v{VL}")
    if OPT.get("vzero"):
        a.I("v_and_b32 v104, 31, v1")
        a.I("v_cmp_eq_u32 vcc, 16, v104")
        a.I("v_mov_b32 v105, 0x3f803f80")
        a.I("s_nop 1")
        a.I("v_cndmask_b32 v104, 0, v105, vcc")
        for i in range(16):
            a.I(f"v_mov_b32 v{VB[0]+i}, v104")
    else:
        for i in range(16):
            a.I(f"v_mov_b32 v{VB[0]+i}, 0x3f803f80")
    lds_spin(a, M_KV, 4, 104, 105)
    stamp(a, "kvok")
    a.I(f"ds_read_b128 {vr(QA,4)}, v106")
    a.I(f"ds_read_b128 {vr(QB,4)}, v106 offset:1024")
    a.I(f"ds_read_b128 {vr(KB[0],4)}, v{VK}")
    a.I("s_mov_b64 exec, s[74:75]")
    a.I(f"ds_read_b128 {vr(VB[0],4)}, v{VV}")
    a.I(f"ds_read_b128 {vr(VB[0]+4,4)}, v{VV} offset:512")
    a.I("s_mov_b64 exec, -1")
    a.I(f"ds_read_b128 {vr(KB[1],4)}, v{VK} offset:1024")
    for i in range(16):
        a.I(f"v_mov_b32 v{OA+i}, 0")
        a.I(f"v_mov_b32 v{OB+i}, 0")
    for i in range(4):
        a.I(f"v_mov_b32 v{S1+4+i}, 0")
    a.I("s_waitcnt lgkmcnt(3)")
    a.I(MF(S0, KB[0], QA))
    a.I(f"v_mov_b32 v104, {M_QRD}")
    a.I("v_mov_b32 v105, 1")
    a.I("s_mov_b64 exec, 1")
    a.I("ds_add_u32 v104, v105")
    a.I("s_mov_b64 exec, -1")
    a.I("s_waitcnt lgkmcnt(0)")
    a.I("s_nop 7")

    def tile(Sin, Sout, Qn, Kn, Ocur, Vcur_u0, Oprev, Vprev_u1, after_pv2, wait_s, after_s, wait_pv1):
        e = lambda i: f"v_exp_f32 v{Sin+i}, v{Sin+i}"
        c = lambda j: f"v_cvt_pk_bf16_f32 v{Sin+j}, v{Sin+2*j}, v{Sin+2*j+1}"
        L = [e(0), e(1), MF(Oprev, Vprev_u1, Sout+4, Oprev)]
        L += after_pv2
        L += [e(2), e(3), c(0), e(4), e(5), c(1)]
        L += wait_s
        L.append(MF(Sout, Kn, Qn))
        L += after_s
        L += [e(6), e(7), c(2), e(8), e(9), c(3), e(10), e(11)]
        L += wait_pv1
        L.append(MF(Ocur, Vcur_u0, Sin, Ocur))
        L += [c(4), e(12), e(13), c(5), e(14), e(15), c(6), c(7)]
        return L
    def keytile(kap, off):
        vload = ["s_mov_b64 exec, s[74:75]",
                 f"ds_read_b128 {vr(VB[kap^1],4)}, v{VV} offset:{off+1024}",
                 f"ds_read_b128 {vr(VB[kap^1]+4,4)}, v{VV} offset:{off+1536}",
                 "s_mov_b64 exec, -1"]
        kload = [f"ds_read_b128 {vr(KB[kap],4)}, v{VK} offset:{off+2048}"]
        L = tile(S0, S1, QB, KB[kap], OA, VB[kap], OB, VB[kap^1]+4, vload, [], kload, ["s_waitcnt lgkmcnt(4)"])
        L += tile(S1, S0, QA, KB[kap^1], OB, VB[kap], OA, VB[kap]+4, [], ["s_waitcnt lgkmcnt(3)"], [], [])
        return L
    UN = OPT.get("un", 4)
    NITER = 32 // UN
    a.I("s_mov_b32 s73, 0")
    a.raw(".p2align 6")
    a.L("L_aloop")
    body = []
    for t in range(UN):
        body += keytile(t & 1, t*1024)
    a.I("\n".join(body))
    a.I(f"v_add_u32 v{VK}, {UN*1024}, v{VK}")
    a.I(f"v_add_u32 v{VV}, {UN*1024}, v{VV}")
    a.I("s_add_u32 s73, s73, 1")
    a.I("s_cmp_lg_u32 s73, 1")
    a.I("s_cbranch_scc1 L_aloop2")
    a.I("s_waitcnt vmcnt(0)")
    a.I(f"s_cmp_ge_u32 s{S_W}, 4")
    a.I("s_cbranch_scc1 L_aloop1")
    a.I(f"v_mov_b32 v104, {M_HST}")
    a.I("v_mov_b32 v105, 1")
    a.I("s_mov_b64 exec, 1")
    a.I("ds_add_u32 v104, v105")
    a.I("s_mov_b64 exec, -1")
    a.L("L_aloop1")
    lds_spin(a, M_KV, 8, 104, 105)
    a.L("L_aloop2")
    a.I(f"s_cmp_lg_u32 s73, {NITER}")
    a.I("s_cbranch_scc1 L_aloop")
    a.I(MF(OB, VB[1]+4, S1+4, OB))
    a.I("s_waitcnt lgkmcnt(0)")
    a.I("s_nop 15")
    stamp(a, "aloop")
    a.I("s_barrier")
    a.I(f"s_mul_i32 s54, s{S_W}, 2304")
    a.I(f"s_add_u32 s54, s54, {L_XCH}")
    a.I(f"s_xor_b32 s55, s{S_W}, 4")
    a.I("s_mul_i32 s55, s55, 2304")
    a.I(f"s_add_u32 s55, s55, {L_XCH}")
    a.I(f"v_add_u32 v9, s55, v{VL}")
    a.I(f"v_add_u32 v8, s54, v{VL}")
    a.I("v_lshlrev_b32 v10, 2, v1")
    a.I("v_add_u32 v11, s55, v10")
    a.I("v_add_u32 v10, s54, v10")
    a.I("s_cmp_eq_u32 s64, 0")
    a.I("s_cbranch_scc1 L_x0")
    for i in range(9):
        a.I(f"v_mov_b32 v{S0+i}, v{OA+i}")
        a.I(f"v_mov_b32 v{OA+i}, v{OB+i}")
        a.I(f"v_mov_b32 v{OB+i}, v{S0+i}")
    a.L("L_x0")
    a.I(f"ds_write_b128 v8, {vr(OB,4)}")
    a.I(f"ds_write_b128 v8, {vr(OB+4,4)} offset:1024")
    a.I(f"ds_write_b32 v10, v{OB+8} offset:2048")
    a.I("s_waitcnt lgkmcnt(0)")
    a.I("s_barrier")
    a.I(f"ds_read_b128 {vr(S0,4)}, v9")
    a.I(f"ds_read_b128 {vr(S0+4,4)}, v9 offset:1024")
    a.I(f"ds_read_b32 v{S0+8}, v11 offset:2048")
    a.I("s_waitcnt lgkmcnt(0)")
    for i in range(9):
        a.I(f"v_add_f32 v{OA+i}, v{OA+i}, v{S0+i}")
    if OPT.get("vzero"):
        a.I(f"v_mov_b32 v{OA+9}, v{OA+8}")
        a.I("s_nop 1")
        a.I(f"v_permlane32_swap_b32 v{OA+9}, v{OA+8}")
        a.I("s_nop 1")
        a.I(f"v_mov_b32 v{OA+8}, v{OA+9}")
    a.I(f"v_rcp_f32 v{OA+8}, v{OA+8}")
    a.I("s_nop 0")
    for i in range(8):
        a.I(f"v_mul_f32 v{OA+i}, v{OA+i}, v{OA+8}")
    for j in range(4):
        a.I(f"v_cvt_pk_bf16_f32 v{OA+j}, v{OA+2*j}, v{OA+2*j+1}")
    srd_off(a, RA, S_WS, OF, 2*MB)
    a.I("s_add_u32 s66, s66, s64")
    a.I("s_lshl_b32 s66, s66, 5")
    a.I(f"s_add_u32 s66, s66, s{S_HD}")
    a.I("s_lshl_b32 s66, s66, 10")
    a.I(f"buffer_store_dwordx4 {vr(OA,4)}, v{VL}, {S4(RA)}, s66 offen sc1")
    a.I("s_waitcnt vmcnt(0)")
    a.I("s_barrier")
    stamp_flush(a)
    a.L("L_end")
    a.I("s_endpgm")
    return a

HEADER = open("cdna_kernels/" + NAME + ".s.ref").read().split("; Override launch")[0]

def build(path):
    a = gen()
    out = HEADER + f"; @launch grid=(256,1,1) block=(768,1,1) lds={LDS_TOTAL}\n"
    out += '.amdgcn_target "amdgcn-amd-amdhsa--gfx950"\n.text\n' + a.text()
    out += f""".section .rodata,"a"
.p2align 6
.amdhsa_kernel {KN}
  .amdhsa_next_free_vgpr 168
  .amdhsa_next_free_sgpr 102
  .amdhsa_accum_offset 168
  .amdhsa_group_segment_fixed_size 0
  .amdhsa_kernarg_size 96
  .amdhsa_user_sgpr_count 2
  .amdhsa_user_sgpr_kernarg_segment_ptr 1
  .amdhsa_system_sgpr_workgroup_id_x 1
.end_amdhsa_kernel
"""
    open(path, "w").write(out)
    probs = check_linear(a.lines, "k")
    if STAMPS: print("stamps:", _stamp_names)
    return probs

if __name__ == "__main__":
    for x in list(sys.argv[1:]):
        if x.startswith("-D"):
            k, _, v = x[2:].partition("=")
            OPT[k] = int(v) if v else 1
            sys.argv.remove(x)
    if "--stamps" in sys.argv:
        STAMPS = True; sys.argv.remove("--stamps")
    path = sys.argv[1] if len(sys.argv) > 1 else "cdna_kernels/" + NAME + ".s"
    probs = build(path)
    for p in probs: print("HAZARD:", p)
    print("written", path, "problems:", len(probs))
```

```python
import sys, struct
from asmlib import *

NAME = "gated_mix__mha_block__dense_activation_squared_relu__prompt"
KN = NAME + "_kernel"
MB = 1 << 20
QF, KF, VF, HF, GO, OF, FLG = 4096, 2*MB + 8192, 4*MB + 12288, 6*MB + 16384, 12*MB, 14*MB + 4096, 16*MB + 8192
HF_SIZE = 86 * 65536
FA_OFF, FH_OFF, FO_OFF = 0, 4096, 8192
QSCALE = 0.25 * 1.4426950408889634
STAMP_OFF = 32*MB
STAMPS = False
OPT = {}
def f2u(x): return struct.unpack("<I", struct.pack("<f", x))[0]

S_AX, S_WQKV, S_WO, S_W1, S_B1, S_W2, S_B2, S_GW, S_OUT, S_DBG, S_WS = 4, 6, 8, 12, 14, 16, 18, 20, 22, 24, 26
S_W = 3
S_RB, S_CG, S_START = 29, 30, 31
RA, RB, RC, RD = 32, 36, 40, 44
S_NONCE, S_HD, S_QB = 60, 61, 62
L_K, L_V, L_RING, L_MISC = 0, 65536, 131072, 131072 + 24576
L_XCH = L_RING
M_KV, M_H, M_BAD, M_FA, M_QRD, M_HST = [L_MISC + 4*i for i in range(6)]
LDS_TOTAL = 163840

def srd(a, dst, base, size):
    a.I(f"s_mov_b32 s{dst}, s{base}")
    a.I(f"s_mov_b32 s{dst+1}, s{base+1}")
    a.I(f"s_mov_b32 s{dst+2}, {size}")
    a.I(f"s_mov_b32 s{dst+3}, 0x20000")
def srd_off(a, dst, base, off, size):
    a.I(f"s_add_u32 s{dst}, s{base}, {off}")
    a.I(f"s_addc_u32 s{dst+1}, s{base+1}, 0")
    a.I(f"s_mov_b32 s{dst+2}, {size}")
    a.I(f"s_mov_b32 s{dst+3}, 0x20000")
def MF(d, A, B, c=None):
    cc = "0" if c is None else vr(c, 16)
    return f"v_mfma_f32_32x32x16_bf16 {vr(d,16)}, {vr(A,4)}, {vr(B,4)}, {cc}"
def S4(r): return f"s[{r}:{r+3}]"

_stamp_names = []
def stamp(a, name):
    if not STAMPS: return
    if name not in _stamp_names: _stamp_names.append(name)
    i = _stamp_names.index(name)
    a.I("s_waitcnt lgkmcnt(0)")
    a.I("s_memtime s[98:99]")
    a.I("s_memrealtime s[100:101]")
    a.I("s_waitcnt lgkmcnt(0)")
    a.I(f"v_writelane_b32 v6, s98, {i}")
    a.I(f"v_writelane_b32 v7, s100, {i}")
def stamp_flush(a):
    if not STAMPS: return
    a.I("s_waitcnt vmcnt(0)")
    stamp(a, "end")
    a.I(f"s_add_u32 s96, s{S_WS}, {STAMP_OFF}")
    a.I(f"s_addc_u32 s97, s{S_WS+1}, 0")
    a.I("s_mul_i32 s98, s2, 12")
    a.I(f"s_add_u32 s98, s98, s{S_W}")
    a.I("s_lshl_b32 s98, s98, 9")
    a.I("v_lshlrev_b32 v2, 2, v1")
    a.I("v_add_u32 v2, s98, v2")
    a.I("s_mov_b64 exec, -1")
    a.I("global_store_dword v2, v6, s[96:97]")
    a.I("global_store_dword v2, v7, s[96:97] offset:256")
    a.I("s_waitcnt vmcnt(0)")

def tr_lane_addr(a, dst, lane, tmp, tmp2, hrows, pitch):
    a.I(f"v_bfe_u32 v{tmp}, v{lane}, 2, 2")
    a.I(f"v_lshrrev_b32 v{tmp2}, 5, v{lane}")
    a.I(f"v_mul_u32_u24 v{tmp2}, {hrows}, v{tmp2}")
    a.I(f"v_add_u32 v{tmp}, v{tmp}, v{tmp2}")
    a.I(f"v_mul_u32_u24 v{dst}, {pitch}, v{tmp}")
    a.I(f"v_bfe_u32 v{tmp}, v{lane}, 4, 1")
    a.I(f"v_lshlrev_b32 v{tmp}, 1, v{tmp}")
    a.I(f"v_bfe_u32 v{tmp2}, v{lane}, 1, 1")
    a.I(f"v_add_u32 v{tmp}, v{tmp}, v{tmp2}")
    a.I(f"v_bfe_u32 v{tmp2}, v{lane}, 3, 1")
    a.I(f"v_lshlrev_b32 v{tmp2}, 2, v{tmp2}")
    a.I(f"v_xor_b32 v{tmp}, v{tmp}, v{tmp2}")
    a.I(f"v_lshl_add_u32 v{dst}, v{tmp}, 4, v{dst}")
    a.I(f"v_and_b32 v{tmp}, 1, v{lane}")
    a.I(f"v_lshl_add_u32 v{dst}, v{tmp}, 3, v{dst}")

def dma_w_lane_off(a, dst, lane, tmp, tmp2, pitch):
    a.I(f"v_lshrrev_b32 v{tmp}, 3, v{lane}")
    a.I(f"v_mul_u32_u24 v{dst}, {pitch}, v{tmp}")
    a.I(f"v_bfe_u32 v{tmp}, v{lane}, 4, 1")
    a.I(f"v_lshlrev_b32 v{tmp}, 2, v{tmp}")
    a.I(f"v_and_b32 v{tmp2}, 7, v{lane}")
    a.I(f"v_xor_b32 v{tmp}, v{tmp}, v{tmp2}")
    a.I(f"v_lshl_add_u32 v{dst}, v{tmp}, 4, v{dst}")

def tr_reads_perm(F, va0, va1, slot_off):
    out = []
    for ct, va in ((0, va0), (1, va1)):
        for rd in range(2):
            out.append(f"ds_read_b64_tr_b16 {vr(F+4*ct+2*rd,2)}, v{va} offset:{slot_off + rd*1024}")
    return out

_lab = [0]
def poll(a, srd_reg, nlanes, voff, vtmp, soff):
    _lab[0] += 1
    n = _lab[0]
    a.I(f"s_mov_b32 exec_lo, {hex((1 << nlanes) - 1)}")
    a.I("s_mov_b32 exec_hi, 0")
    a.I("s_mov_b32 s50, 0x40000")
    a.L(f"L_poll{n}")
    a.I(f"buffer_load_dword v{vtmp}, v{voff}, {S4(srd_reg)}, {soff} offen sc1")
    a.I("s_waitcnt vmcnt(0)")
    a.I(f"v_cmp_ne_u32 vcc, s{S_NONCE}, v{vtmp}")
    a.I(f"s_cbranch_vccz L_polld{n}")
    a.I("s_sub_u32 s50, s50, 1")
    a.I("s_cmp_eq_u32 s50, 0")
    a.I(f"s_cbranch_scc1 L_polld{n}")
    a.I("s_sleep 1")
    a.I(f"s_branch L_poll{n}")
    a.L(f"L_polld{n}")
    a.I("s_mov_b64 exec, -1")

def lds_spin(a, addr, target, vaddr, vtmp):
    _lab[0] += 1
    n = _lab[0]
    a.I(f"v_mov_b32 v{vaddr}, {addr}")
    a.I("s_mov_b32 s50, 0x400000")
    a.L(f"L_spin{n}")
    a.I(f"ds_read_b32 v{vtmp}, v{vaddr}")
    a.I("s_waitcnt lgkmcnt(0)")
    a.I(f"v_readfirstlane_b32 s51, v{vtmp}")
    a.I("s_sub_u32 s50, s50, 1")
    a.I(f"s_cmp_ge_u32 s51, {target}")
    a.I(f"s_cbranch_scc1 L_spind{n}")
    a.I("s_cmp_eq_u32 s50, 0")
    a.I(f"s_cbranch_scc1 L_spind{n}")
    a.I("s_sleep 1")
    a.I(f"s_branch L_spin{n}")
    a.L(f"L_spind{n}")

def lds_add1(a, addr, vaddr, vtmp):
    a.I(f"v_mov_b32 v{vaddr}, {addr}")
    a.I(f"v_mov_b32 v{vtmp}, 1")
    a.I("s_mov_b64 exec, 1")
    a.I(f"ds_add_u32 v{vaddr}, v{vtmp}")
    a.I("s_mov_b64 exec, -1")

def gen():
    a = Asm()
    a.raw(f".globl {KN}\n.p2align 8\n.type {KN},@function\n{KN}:")
    a.I("s_cmp_ge_u32 s2, 256")
    a.I("s_cbranch_scc1 L_end")
    a.I("s_load_dwordx4 s[4:7], s[0:1], 0")
    a.I("s_load_dwordx2 s[8:9], s[0:1], 16")
    a.I("s_load_dwordx4 s[12:15], s[0:1], 32")
    a.I("s_load_dwordx4 s[16:19], s[0:1], 48")
    a.I("s_load_dwordx4 s[20:23], s[0:1], 64")
    a.I("s_load_dwordx4 s[24:27], s[0:1], 80")
    a.I("v_lshrrev_b32 v2, 6, v0")
    a.I("v_and_b32 v1, 63, v0")
    a.I(f"v_readfirstlane_b32 s{S_W}, v2")
    if STAMPS:
        a.I("v_mov_b32 v6, 0"); a.I("v_mov_b32 v7, 0")
    a.I("s_and_b32 s52, s2, 7")
    a.I("s_lshr_b32 s53, s2, 3")
    a.I("s_lshr_b32 s54, s52, 2")
    a.I("s_lshl_b32 s54, s54, 4")
    a.I("s_lshr_b32 s55, s53, 1")
    a.I(f"s_add_u32 s{S_RB}, s54, s55")
    a.I("s_and_b32 s54, s52, 3")
    a.I("s_lshl_b32 s54, s54, 1")
    a.I("s_and_b32 s55, s53, 1")
    a.I(f"s_add_u32 s{S_CG}, s54, s55")
    a.I(f"s_mul_i32 s54, s{S_CG}, 6")
    a.I(f"s_min_u32 s{S_START}, s54, 37")
    a.I(f"s_lshl_b32 s{S_HD}, s52, 2")
    a.I("s_and_b32 s54, s53, 3")
    a.I(f"s_add_u32 s{S_HD}, s{S_HD}, s54")
    a.I(f"s_lshr_b32 s{S_QB}, s2, 5")
    a.I("s_waitcnt lgkmcnt(0)")
    stamp(a, "karg")
    a.I(f"s_cmp_ge_u32 s{S_W}, 8")
    a.I("s_cbranch_scc1 L_aux")
    a.I(f"s_cmp_ge_u32 s{S_W}, 4")
    a.I("s_cbranch_scc1 L_prod")

    H, XA, WA, ACQ, ACF, FA, FB = 2, 8, 12, 32, 80, 128, 144
    a.I(f"v_lshrrev_b32 v{H}, 5, v1")
    a.I(f"s_and_b32 s63, s{S_W}, 1")
    a.I(f"s_lshr_b32 s64, s{S_W}, 1")
    srd(a, RD, S_B1, 2752)
    a.I(f"s_add_u32 s54, s{S_START}, s63")
    a.I("s_lshl_b32 s54, s54, 6")
    a.I(f"v_lshlrev_b32 v3, 3, v{H}")
    B1 = 128
    for s in range(3):
        for q in range(4):
            r = B1 + (s*4+q)*2
            a.I(f"buffer_load_dwordx2 v[{r}:{r+1}], v3, {S4(RD)}, s54 offen offset:{s*128+q*16}")
    for i in range(48):
        a.I(f"v_mov_b32 v{ACQ+i}, 0")
    a.I("v_and_b32 v16, 31, v1")
    a.I("v_bfe_u32 v17, v1, 1, 3")
    a.I("s_lshl_b32 s54, s64, 5")
    a.I("v_add_u32 v16, s54, v16")
    a.I("v_lshlrev_b32 v16, 7, v16")
    a.I(f"v_xor_b32 v17, v17, v{H}")
    for ks in range(4):
        a.I(f"v_xor_b32 v18, {2*ks}, v17")
        a.I(f"v_lshl_add_u32 v{XA+ks}, v18, 4, v16")
    tr_lane_addr(a, WA, 1, 16, 17, 8, 384)
    a.I("s_lshl_b32 s54, s63, 6")
    a.I(f"v_xor_b32 v{WA}, s54, v{WA}")
    a.I(f"v_add_u32 v{WA}, 0x10000, v{WA}")
    a.I(f"v_add_u32 v{WA+1}, 49152, v{WA}")
    a.I("s_waitcnt vmcnt(0)")
    for s in range(3):
        for q in range(4):
            r = B1 + (s*4+q)*2
            d = ACF + s*16 + q*4
            a.I(f"v_lshlrev_b32 v{d}, 16, v{r}")
            a.I(f"v_and_b32 v{d+1}, 0xffff0000, v{r}")
            a.I(f"v_lshlrev_b32 v{d+2}, 16, v{r+1}")
            a.I(f"v_and_b32 v{d+3}, 0xffff0000, v{r+1}")

    def reads(b, ks, F):
        out = [f"ds_read_b128 {vr(F,4)}, v{XA+ks} offset:{b*8192}"]
        wv = WA + (b >> 1)
        for s in range(3):
            for rd in range(2):
                out.append(f"ds_read_b64_tr_b16 {vr(F+4+4*s+2*rd,2)}, v{wv} offset:{(b&1)*24576 + ks*6144 + rd*1536 + s*128}")
        return out
    def mfmas(F, qkv):
        A = ACQ if qkv else ACF
        out = []
        for s in range(3):
            X, W = F, F+4+4*s
            out.append(MF(A+16*s, X, W, A+16*s) if (qkv and s == 2) else MF(A+16*s, W, X, A+16*s))
        return out
    def stage_loop(tag, qkv):
        a.I("s_mov_b32 s65, 0x8000")
        a.L(f"L_loop_{tag}")
        for b in range(4):
            a.I("\n".join(reads(b, 1, FB)));  a.I("s_waitcnt lgkmcnt(7)"); a.I("\n".join(mfmas(FA, qkv)))
            a.I("\n".join(reads(b, 2, FA)));  a.I("s_waitcnt lgkmcnt(7)"); a.I("\n".join(mfmas(FB, qkv)))
            a.I("\n".join(reads(b, 3, FB)));  a.I("s_waitcnt lgkmcnt(7)"); a.I("\n".join(mfmas(FA, qkv)))
            fap = OPT.get("fapos", 4)
            if (not qkv) and b == (fap & 3):
                if fap >= 4:
                    a.I("s_cmp_lt_i32 s65, 0")
                    a.I(f"s_cbranch_scc0 L_nodrain{b}")
                a.I("s_waitcnt vmcnt(0)")
                if fap >= 4: a.L(f"L_nodrain{b}")
            a.I("s_waitcnt lgkmcnt(0)")
            if b == 3:
                if not qkv:
                    a.I("s_cmp_lt_i32 s65, 0")
                    a.I(f"s_cbranch_scc1 L_last_{tag}")
                for ks in range(4):
                    a.I(f"v_add_u32 v{XA+ks}, s65, v{XA+ks}")
            a.I("s_barrier")
            a.I("\n".join(reads((b+1) % 4, 0, FA)))
            a.I("\n".join(mfmas(FB, qkv)))
        a.I("s_cmp_lt_i32 s65, 0")
        a.I("s_mov_b32 s65, 0xffff8000")
        a.I(f"s_cbranch_scc0 L_loop_{tag}")
        if not qkv:
            a.L(f"L_last_{tag}")
            a.I("\n".join(mfmas(FB, qkv)))

    a.I("s_barrier")
    stamp(a, "B0")
    a.I("\n".join(reads(0, 0, FA)))
    stage_loop("q", True)
    stamp(a, "qloop")
    srd(a, RA, S_WS, VF + 2*MB)
    a.I(f"s_lshl_b32 s54, s{S_RB}, 1")
    a.I("s_add_u32 s54, s54, s64")
    a.I(f"s_lshl_b32 s55, s{S_CG}, 2")
    a.I("s_lshl_b32 s56, s63, 1")
    a.I("s_add_u32 s55, s55, s56")
    a.I("s_lshl_b32 s55, s55, 6")
    a.I("s_add_u32 s54, s54, s55")
    a.I("s_lshl_b32 s54, s54, 10")
    a.I("v_lshlrev_b32 v3, 4, v1")
    a.I("v_bfe_u32 v4, v1, 4, 1")
    a.I("v_lshlrev_b32 v4, 16, v4")
    a.I(f"v_lshl_add_u32 v4, v{H}, 8, v4")
    a.I("v_and_b32 v5, 15, v1")
    a.I("v_lshl_add_u32 v4, v5, 4, v4")
    a.I(f"s_mov_b32 s56, {hex(f2u(QSCALE))}")
    a.I("s_nop 7")
    for s in (1, 0, 2):
        d = ACQ + 16*s
        if s == 0:
            for i in range(16):
                a.I(f"v_mul_f32 v{d+i}, s56, v{d+i}")
        for j in range(8):
            a.I(f"v_cvt_pk_bf16_f32 v{d+j}, v{d+2*j}, v{d+2*j+1}")
        if s < 2:
            for hh in range(2):
                a.I(f"s_add_u32 s55, s54, {(KF if s else QF) + hh*65536}")
                a.I(f"buffer_store_dwordx4 {vr(d+4*hh,4)}, v3, {S4(RA)}, s55 offen sc1")
        else:
            a.I(f"s_add_u32 s55, s54, {VF}")
            for u in range(2):
                a.I(f"buffer_store_dwordx4 {vr(d+4*u,4)}, v4, {S4(RA)}, s55 offen offset:{u*512} sc1")
    stage_loop("f", False)
    a.I("s_barrier")
    stamp(a, "floop")
    a.I("s_barrier")
    srd_off(a, RA, S_WS, HF, HF_SIZE)
    a.I(f"s_lshl_b32 s54, s{S_RB}, 1")
    a.I("s_add_u32 s54, s54, s64")
    a.I(f"s_add_u32 s55, s{S_START}, s63")
    a.I("s_lshl_b32 s55, s55, 7")
    a.I("s_add_u32 s54, s54, s55")
    a.I("s_lshl_b32 s54, s54, 10")
    a.I("v_lshlrev_b32 v3, 4, v1")
    a.I("s_nop 7")
    for s in range(3):
        d = ACF + 16*s
        for i in range(16):
            a.I(f"v_max_f32 v{d+i}, 0, v{d+i}")
        for i in range(16):
            a.I(f"v_mul_f32 v{d+i}, v{d+i}, v{d+i}")
        for j in range(8):
            a.I(f"v_cvt_pk_bf16_f32 v{d+j}, v{d+2*j}, v{d+2*j+1}")
        for uu in range(2):
            a.I(f"s_add_u32 s55, s54, {(4*s+uu)*65536}")
            a.I(f"buffer_store_dwordx4 {vr(d+4*uu,4)}, v3, {S4(RA)}, s55 offen sc1")
    a.I("s_nop 1")
    a.I("s_branch L_attn")

    a.L("L_prod")
    a.I(f"s_sub_u32 s67, s{S_W}, 4")
    a.I(f"s_lshl_b32 s54, s{S_RB}, 16")
    srd_off(a, RA, S_AX, "s54", 65536)
    srd(a, RB, S_WQKV, 512*3072)
    srd(a, RC, S_W1, 512*2752)
    a.I("v_lshrrev_b32 v2, 3, v1")
    a.I("s_lshl_b32 s54, s67, 3")
    a.I("v_add_u32 v2, s54, v2")
    a.I("v_lshrrev_b32 v3, 4, v1")
    a.I("s_and_b32 s54, s67, 1")
    a.I("s_lshl_b32 s54, s54, 2")
    a.I("v_add_u32 v3, s54, v3")
    a.I("v_and_b32 v4, 7, v1")
    a.I("v_xor_b32 v3, v3, v4")
    a.I("v_lshlrev_b32 v3, 4, v3")
    a.I("v_lshl_add_u32 v8, v2, 10, v3")
    for j in range(3):
        a.I(f"v_add_u32 v2, {64*j}, v1")
        a.I("v_mul_u32_u24 v3, 171, v2")
        a.I("v_lshrrev_b32 v3, 12, v3")
        a.I("v_mul_u32_u24 v4, 24, v3")
        a.I("v_sub_u32 v2, v2, v4")
        a.I("v_lshrrev_b32 v4, 3, v2")
        a.I("v_and_b32 v2, 7, v2")
        a.I("v_bfe_u32 v5, v3, 1, 1")
        a.I("v_lshlrev_b32 v5, 2, v5")
        a.I("v_xor_b32 v2, v2, v5")
        a.I("v_lshlrev_b32 v2, 4, v2")
        a.I("v_mul_u32_u24 v5, 3072, v3")
        a.I("v_lshl_add_u32 v5, v4, 10, v5")
        a.I(f"v_add_u32 v{9+j}, v5, v2")
        a.I("v_mul_u32_u24 v5, 2752, v3")
        a.I("v_lshl_add_u32 v5, v4, 7, v5")
        a.I(f"v_add_u32 v{12+j}, v5, v2")
    a.I("s_lshl_b32 s68, s67, 10")
    a.I("s_mul_i32 s69, s67, 6144")
    a.I("s_add_u32 s69, s69, 0x10000")
    a.I(f"s_lshl_b32 s70, s{S_CG}, 7")
    a.I(f"s_mul_i32 s71, s67, {16*3072}")
    a.I("s_add_u32 s70, s70, s71")
    a.I(f"s_lshl_b32 s71, s{S_START}, 6")
    a.I(f"s_mul_i32 s72, s67, {16*2752}")
    a.I("s_add_u32 s71, s71, s72")
    def issue(c, withx):
        a.I(f"s_and_b32 s78, {c}, 3")
        a.I("s_mul_i32 s80, s78, 24576")
        a.I("s_add_u32 s80, s80, s69")
        if withx:
            a.I(f"s_lshl_b32 s79, {c}, 13")
            a.I("s_add_u32 s79, s79, s68")
            a.I(f"s_lshl_b32 s81, {c}, 7")
            for n in range(2):
                a.I(f"s_add_u32 m0, s79, {n*4096}")
                a.I(f"s_add_u32 s83, s81, {n*32768}")
                a.I(f"buffer_load_dwordx4 v8, {S4(RA)}, s83 offen lds")
            a.I(f"s_mul_i32 s82, {c}, {64*3072}")
            a.I("s_add_u32 s82, s82, s70")
            pitch, vo, R = 3072, 9, RB
        else:
            a.I(f"s_sub_u32 s82, {c}, 8")
            a.I(f"s_mul_i32 s82, s82, {64*2752}")
            a.I("s_add_u32 s82, s82, s71")
            pitch, vo, R = 2752, 12, RC
        for g in range(2):
            if g: a.I(f"s_add_u32 s82, s82, {8*pitch}")
            for j in range(3):
                a.I(f"s_add_u32 m0, s80, {g*3072 + j*1024}")
                a.I("s_nop 0")
                a.I(f"buffer_load_dwordx4 v{vo+j}, {S4(R)}, s82 offen lds")
    a.I("s_mov_b32 s84, 0")
    a.L("L_pro")
    issue("s84", True)
    a.I("s_add_u32 s84, s84, 1")
    a.I("s_cmp_lt_u32 s84, 3")
    a.I("s_cbranch_scc1 L_pro")
    stamp(a, "issued3")
    a.L("L_pl1")
    a.I("s_waitcnt vmcnt(16)")
    a.I("s_barrier")
    issue("s84", True)
    a.I("s_add_u32 s84, s84, 1")
    a.I("s_cmp_lt_u32 s84, 8")
    a.I("s_cbranch_scc1 L_pl1")
    a.I("s_waitcnt vmcnt(16)")
    a.I("s_barrier")
    issue("s84", False)
    a.I("s_add_u32 s84, s84, 1")
    a.I("s_waitcnt vmcnt(14)")
    a.I("s_barrier")
    issue("s84", False)
    a.I("s_add_u32 s84, s84, 1")
    a.L("L_pl2")
    a.I("s_waitcnt vmcnt(12)")
    a.I("s_barrier")
    issue("s84", False)
    a.I("s_add_u32 s84, s84, 1")
    a.I("s_cmp_lt_u32 s84, 16")
    a.I("s_cbranch_scc1 L_pl2")
    a.I("s_waitcnt vmcnt(12)")
    a.I("s_barrier")
    a.I("s_waitcnt vmcnt(6)")
    a.I("s_barrier")
    a.I("s_waitcnt vmcnt(0)")
    a.I("s_barrier")
    a.I("s_barrier")
    a.I("s_barrier")
    a.I("s_branch L_attn")

    a.L("L_aux")
    a.I(f"s_sub_u32 s67, s{S_W}, 8")
    npre = 0
    if OPT.get("codepf"):
        a.I("s_getpc_b64 s[52:53]")
        a.L("L_pc")
        a.I(f"s_sub_u32 s52, s52, L_pc-{KN}")
        a.I("s_subb_u32 s53, s53, 0")
        a.I(f"s_mul_i32 s54, s67, {OPT['codepf']*1024}")
        a.I("v_lshlrev_b32 v5, 4, v1")
        a.I("v_add_u32 v5, s54, v5")
        for i in range(OPT["codepf"]):
            a.I(f"v_min_u32 v4, L_code_end-{KN}-16, v5")
            a.I(f"global_load_dwordx4 {vr(116+4*(i%8),4)}, v4, s[52:53]")
            a.I("v_add_u32 v5, 1024, v5")
        npre += OPT["codepf"]
    if OPT.get("tlbpf"):
        a.I("s_mov_b32 s54, 0x201000")
        a.I("v_mul_lo_u32 v5, s54, v1")
        a.I("s_mov_b64 exec, 0xf")
        a.I(f"global_load_dword v108, v5, s[{S_WS}:{S_WS+1}]")
        a.I("s_mov_b64 exec, -1")
        a.I(f"v_mov_b32 v5, {12*MB + 16384}")
        a.I("s_mov_b64 exec, 1")
        a.I(f"global_load_dword v109, v5, s[{S_WS}:{S_WS+1}]")
        a.I(f"v_mov_b32 v5, {14*MB}")
        a.I(f"global_load_dword v110, v5, s[{S_WS}:{S_WS+1}]")
        a.I(f"v_mov_b32 v5, {16*MB + 4096}")
        a.I(f"global_load_dword v111, v5, s[{S_WS}:{S_WS+1}]")
        a.I("v_mov_b32 v5, 0")
        a.I(f"global_load_dword v112, v5, s[{S_W2}:{S_W2+1}]")
        a.I(f"global_load_dword v113, v5, s[{S_WO}:{S_WO+1}]")
        a.I(f"global_load_dword v114, v5, s[{S_OUT}:{S_OUT+1}]")
        a.I("s_mov_b64 exec, -1")
        npre += 7
    a.I("s_cmp_lg_u32 s67, 0")
    a.I("s_cbranch_scc1 L_aux1")
    srd(a, RC, S_DBG, 256)
    a.I("s_memrealtime s[52:53]")
    a.I("s_waitcnt lgkmcnt(0)")
    a.I("s_or_b32 s85, s52, 1")
    a.I("v_mov_b32 v8, s85")
    a.I("v_mov_b32 v9, 0")
    a.I("v_mov_b32 v10, 0")
    a.I("s_mov_b64 exec, 1")
    a.I(f"buffer_atomic_cmpswap v[8:9], v10, {S4(RC)}, 0 offen sc0 sc1")
    a.I("s_mov_b64 exec, -1")
    a.L("L_aux1")
    a.I(f"s_lshl_b32 s54, s{S_RB}, 6")
    a.I(f"s_lshl_b32 s55, s{S_CG}, 3")
    a.I("s_add_u32 s54, s54, s55")
    a.I("s_lshl_b32 s55, s67, 1")
    a.I("s_add_u32 s66, s54, s55")
    a.I("s_lshl_b32 s54, s66, 10")
    srd_off(a, RA, S_AX, "s54", 2048)
    srd(a, RB, S_GW, 1024)
    a.I("v_and_b32 v2, 31, v1")
    a.I("v_lshlrev_b32 v2, 5, v2")
    a.I("v_lshrrev_b32 v3, 5, v1")
    a.I("v_lshl_add_u32 v4, v3, 10, v2")
    for i in range(2):
        a.I(f"buffer_load_dwordx4 {vr(32+4*i,4)}, v4, {S4(RA)}, 0 offen offset:{16*i}")
    for i in range(2):
        a.I(f"buffer_load_dwordx4 {vr(40+4*i,4)}, v2, {S4(RB)}, 0 offen offset:{16*i}")
    npf = 0
    if not OPT.get("nopf"):
        a.I("s_and_b32 s52, s2, 7")
        a.I("s_lshr_b32 s53, s2, 3")
        a.I("s_lshr_b32 s54, s52, 2")
        a.I("s_lshl_b32 s54, s54, 10")
        a.I("s_lshl_b32 s55, s53, 5")
        a.I("s_add_u32 s54, s54, s55")
        a.I("s_lshl_b32 s55, s67, 3")
        a.I("s_add_u32 s54, s54, s55")
        a.I("s_lshl_b32 s54, s54, 10")
        srd(a, RD, S_AX, 2*MB)
        a.I("v_lshlrev_b32 v5, 4, v1")
        for i in range(8):
            a.I(f"buffer_load_dwordx4 {vr(48+4*i,4)}, v5, {S4(RD)}, s54 offen")
            a.I("s_add_u32 s54, s54, 1024")
        srd(a, RD, S_WQKV, 512*3072)
        a.I("s_lshl_b32 s54, s53, 4")
        a.I("s_lshl_b32 s55, s67, 2")
        a.I("s_add_u32 s54, s54, s55")
        a.I("s_mul_i32 s56, s54, 3072")
        a.I("s_and_b32 s55, s52, 3")
        a.I("s_lshl_b32 s55, s55, 8")
        a.I("s_add_u32 s56, s56, s55")
        a.I("v_lshrrev_b32 v10, 4, v1")
        a.I("v_mul_u32_u24 v10, 3072, v10")
        a.I("v_and_b32 v11, 15, v1")
        a.I("v_lshl_add_u32 v10, v11, 4, v10")
        for j in range(3):
            a.I(f"buffer_load_dwordx4 {vr(80+4*j,4)}, v10, {S4(RD)}, s56 offen offset:{j*1024}")
        srd(a, RD, S_W1, 512*2752)
        a.I("s_and_b32 s55, s52, 3")
        a.I("s_mul_i32 s55, s55, 12")
        a.I("s_min_u32 s55, s55, 31")
        a.I("s_lshl_b32 s55, s55, 6")
        a.I("s_mul_i32 s56, s54, 2752")
        a.I("s_add_u32 s56, s56, s55")
        for i in range(4):
            a.I(f"buffer_load_dwordx4 {vr(92+4*i,4)}, v5, {S4(RD)}, s56 offen")
            a.I("s_add_u32 s56, s56, 2752")
        npf = 15
    for i in range(4):
        a.I("s_barrier")
    a.I(f"s_waitcnt vmcnt({npf})")
    a.I("v_mov_b32 v24, 0")
    for i in range(8):
        a.I(f"v_dot2c_f32_bf16 v24, v{32+i}, v{40+i}")
    a.I("s_nop 3")
    for sh in (1, 2, 4, 8):
        a.I(f"v_add_f32_dpp v24, v24, v24 row_shr:{sh} row_mask:0xf bank_mask:0xf")
        a.I("s_nop 1")
    a.I("v_add_f32_dpp v24, v24, v24 row_bcast:15 row_mask:0xa bank_mask:0xf")
    a.I("s_nop 1")
    a.I("v_cvt_pk_bf16_f32 v24, v24, v24")
    a.I("v_and_b32 v24, 0xffff0000, v24")
    a.I(f"v_mul_f32 v24, {hex(f2u(-1.4426950408889634))}, v24")
    a.I("v_exp_f32 v24, v24")
    a.I("s_nop 0")
    a.I("v_add_f32 v24, 1.0, v24")
    a.I("v_rcp_f32 v24, v24")
    a.I("s_nop 0")
    a.I("v_cvt_pk_bf16_f32 v24, v24, v24")
    a.I("v_and_b32 v24, 0xffff0000, v24")
    srd_off(a, RA, S_WS, GO, 8192)
    a.I("s_lshl_b32 s54, s66, 2")
    a.I("v_lshlrev_b32 v3, 2, v3")
    a.I("s_mov_b32 s52, 0x80000000")
    a.I("s_mov_b32 s53, 0x80000000")
    a.I("s_mov_b64 exec, s[52:53]")
    a.I(f"buffer_store_dword v24, v3, {S4(RA)}, s54 offen sc1")
    a.I("s_mov_b64 exec, -1")
    srd_off(a, RC, S_WS, FLG, 16384)
    a.I("v_readfirstlane_b32 s54, v8")
    a.I("s_nop 0")
    a.I("s_cmp_eq_u32 s54, 0")
    a.I(f"s_cselect_b32 s{S_NONCE}, s85, s54")
    fap = OPT.get("fapos", 4)
    for i in range(4, 8 + fap + 2):
        a.I("s_barrier")
    a.I("s_cmp_lg_u32 s67, 0")
    a.I("s_cbranch_scc1 L_aux2")
    a.I(f"s_lshl_b32 s54, s{S_CG}, 7")
    a.I(f"s_lshl_b32 s55, s{S_RB}, 2")
    a.I("s_add_u32 s54, s54, s55")
    a.I(f"s_add_u32 s54, s54, {FA_OFF}")
    a.I(f"v_mov_b32 v8, s{S_NONCE}")
    a.I("v_mov_b32 v10, 0")
    a.I("s_mov_b64 exec, 1")
    a.I(f"buffer_store_dword v8, v10, {S4(RC)}, s54 offen sc1")
    a.I("s_mov_b64 exec, -1")
    stamp(a, "FApub")
    a.L("L_aux2")
    for i in range(8 + fap + 2, 16):
        a.I("s_barrier")
    a.I("s_barrier")
    a.I("s_cmp_lg_u32 s67, 1")
    a.I("s_cbranch_scc1 L_aux3")
    a.I(f"v_lshlrev_b32 v10, 2, v1")
    a.I(f"v_add_u32 v10, {L_MISC}, v10")
    a.I("v_mov_b32 v8, 0")
    a.I("ds_write_b32 v10, v8")
    a.I("s_waitcnt lgkmcnt(0)")
    a.L("L_aux3")
    a.I("s_barrier")
    a.I("s_setprio 3")
    stamp(a, "E2")
    a.I("s_cmp_lg_u32 s67, 0")
    a.I("s_cbranch_scc1 L_aux4")
    a.I(f"s_lshr_b32 s54, s{S_HD}, 2")
    a.I("s_lshl_b32 s54, s54, 7")
    a.I(f"s_add_u32 s54, s54, {FA_OFF}")
    a.I("v_lshlrev_b32 v8, 2, v1")
    poll(a, RC, 32, 8, 9, "s54")
    lds_add1(a, M_FA, 8, 9)
    a.I("s_branch L_aux5")
    a.L("L_aux4")
    lds_spin(a, M_FA, 1, 8, 9)
    a.L("L_aux5")
    stamp(a, "FAok")
    VL = 4
    a.I(f"v_lshlrev_b32 v{VL}, 4, v1")
    a.I(f"s_lshl_b32 s54, s{S_HD}, 16")
    a.I(f"s_add_u32 s55, s54, {KF}")
    srd_off(a, RA, S_WS, "s55", 65536)
    a.I(f"s_add_u32 s55, s54, {VF}")
    srd_off(a, RB, S_WS, "s55", 65536)
    a.I(f"s_add_u32 s55, s54, {QF}")
    srd_off(a, RD, S_WS, "s55", 65536)
    a.I(f"s_lshl_b32 s54, s{S_QB}, 3")
    a.I("s_lshl_b32 s55, s67, 1")
    a.I("s_add_u32 s54, s54, s55")
    a.I("s_lshl_b32 s54, s54, 10")
    a.I("s_lshl_b32 s55, s67, 11")
    a.I(f"s_add_u32 s55, s55, {L_RING}")
    for t in range(2):
        a.I(f"s_add_u32 m0, s55, {t*1024}")
        a.I(f"s_add_u32 s56, s54, {t*1024}")
        a.I(f"buffer_load_dwordx4 v{VL}, {S4(RD)}, s56 offen sc1 lds")
    a.I("s_lshl_b32 s54, s67, 10")
    def kvchunks(cs):
        for c in cs:
            for half in range(2):
                a.I(f"s_add_u32 s55, s54, {half*32768 + c*4096}")
                a.I("s_mov_b32 m0, s55")
                a.I(f"s_add_u32 s56, s55, {L_V}")
                a.I(f"buffer_load_dwordx4 v{VL}, {S4(RA)}, s55 offen sc1 lds")
                a.I("s_mov_b32 m0, s56")
                a.I("s_nop 0")
                a.I(f"buffer_load_dwordx4 v{VL}, {S4(RB)}, s55 offen sc1 lds")
    kvchunks(range(0, 2))
    kvchunks(range(2, 4))
    a.I("s_waitcnt vmcnt(8)")
    lds_add1(a, M_KV, 8, 9)
    stamp(a, "KV1")
    kvchunks(range(4, 8))
    a.I("s_lshr_b32 s53, s2, 3")
    srd(a, RA, S_W2, 1376*1024)
    srd(a, RB, S_WO, 512*1024)
    a.I("s_mul_i32 s54, s53, 44032")
    a.I("s_lshl_b32 s55, s67, 10")
    a.I("s_add_u32 s54, s54, s55")
    a.I("s_waitcnt vmcnt(0)")
    lds_add1(a, M_KV, 8, 9)
    stamp(a, "KV2")
    for i in range(11):
        a.I(f"buffer_load_dwordx4 {vr(40+4*i,4)}, v{VL}, {S4(RA)}, s54 offen")
        a.I("s_add_u32 s54, s54, 4096")
    a.I("s_lshl_b32 s54, s53, 14")
    a.I("s_add_u32 s54, s54, s55")
    for i in range(4):
        a.I(f"buffer_load_dwordx4 {vr(84+4*i,4)}, v{VL}, {S4(RB)}, s54 offen")
        a.I("s_add_u32 s54, s54, 4096")
    WF, HR, OR_, ACC2, BPR = 24, 40, 40, 104, 8
    VH, VW, VA0, VA1 = 2, 3, 4, 5
    a.I("s_cmp_lg_u32 s67, 0")
    a.I("s_cbranch_scc1 L_f1")
    lds_spin(a, M_HST, 4, 8, 9)
    lds_spin(a, M_KV, 8, 8, 9)
    a.I(f"s_lshl_b32 s54, s{S_RB}, 7")
    a.I(f"s_lshl_b32 s55, s{S_CG}, 2")
    a.I("s_add_u32 s54, s54, s55")
    a.I(f"s_add_u32 s54, s54, {FH_OFF}")
    a.I(f"v_mov_b32 v8, s{S_NONCE}")
    a.I("v_mov_b32 v10, 0")
    a.I("s_mov_b64 exec, 1")
    a.I(f"buffer_store_dword v8, v10, {S4(RC)}, s54 offen sc1")
    a.I("s_mov_b64 exec, -1")
    a.I(f"s_lshl_b32 s54, s{S_HD}, 7")
    a.I(f"s_add_u32 s54, s54, {FH_OFF}")
    a.I("v_lshlrev_b32 v8, 2, v1")
    poll(a, RC, 8, 8, 9, "s54")
    lds_add1(a, M_H, 8, 9)
    a.I("s_branch L_f2")
    a.L("L_f1")
    lds_spin(a, M_H, 1, 8, 9)
    a.L("L_f2")
    lds_spin(a, M_QRD, 8, 8, 9)
    stamp(a, "hready")
    srd(a, RA, S_W2, 1376*1024)
    srd_off(a, RB, S_WS, HF, HF_SIZE)
    a.I(f"v_lshlrev_b32 v{VH}, 4, v1")
    dma_w_lane_off(a, VW, 1, 8, 9, 1024)
    a.I(f"s_lshl_b32 s54, s{S_QB}, 7")
    a.I(f"v_add_u32 v{VW}, s54, v{VW}")
    tr_lane_addr(a, VA0, 1, 8, 9, 4, 128)
    a.I("s_mul_i32 s68, s67, 6144")
    a.I(f"s_add_u32 s68, s68, {L_RING}")
    a.I(f"v_add_u32 v{VA0}, s68, v{VA0}")
    a.I(f"v_xor_b32 v{VA1}, 64, v{VA0}")
    a.I("s_mul_i32 s54, s67, 24")
    a.I("s_lshl_b32 s70, s54, 14")
    a.I("s_lshl_b32 s71, s54, 16")
    a.I(f"s_lshl_b32 s55, s{S_HD}, 11")
    a.I("s_add_u32 s71, s71, s55")
    for i in range(64):
        a.I(f"v_mov_b32 v{ACC2+i}, 0")
    a.I("s_waitcnt vmcnt(0)")
    def fissue(slot):
        L = []
        L.append(f"s_add_u32 m0, s68, {slot*2048}")
        L.append(f"s_add_u32 s69, s70, 8192")
        L.append(f"buffer_load_dwordx4 v{VW}, {S4(RA)}, s70 offen lds")
        L.append(f"s_add_u32 m0, s68, {slot*2048+1024}")
        L.append(f"s_add_u32 s70, s70, 16384")
        L.append(f"buffer_load_dwordx4 v{VW}, {S4(RA)}, s69 offen lds")
        L.append(f"buffer_load_dwordx4 {vr(HR+slot*8,4)}, v{VH}, {S4(RB)}, s71 offen sc1")
        L.append(f"buffer_load_dwordx4 {vr(HR+slot*8+4,4)}, v{VH}, {S4(RB)}, s71 offen offset:1024 sc1")
        L.append(f"s_add_u32 s71, s71, 65536")
        return L
    for slot in range(3):
        a.I("\n".join(fissue(slot)))
    a.I("s_cmp_eq_u32 s67, 3")
    a.I("s_cselect_b32 s72, 5, 8")
    a.I(f"s_setprio {OPT.get('ffnprio', 0)}")
    if OPT.get("noffn"): a.I("s_branch L_fskip")
    a.L("L_floop")
    for slot in range(3):
        a.I("s_waitcnt vmcnt(8)")
        a.I("\n".join(tr_reads_perm(WF, VA0, VA1, slot*2048)))
        a.I("s_waitcnt lgkmcnt(0)")
        for ct in range(2):
            for rt in range(2):
                d = ACC2 + (ct*2+rt)*16
                a.I(MF(d, WF+4*ct, HR+slot*8+4*rt, d))
        a.I("\n".join(fissue(slot)))
    a.I("s_sub_u32 s72, s72, 1")
    a.I("s_cmp_lg_u32 s72, 0")
    a.I("s_cbranch_scc1 L_floop")
    a.L("L_fskip")
    a.I("s_setprio 3")
    a.I("s_waitcnt vmcnt(0)")
    stamp(a, "ffn2")
    srd_off(a, RA, S_WS, GO, 8192)
    srd(a, RB, S_B2, 1024)
    a.I("s_and_b32 s73, s67, 1")
    a.I("s_lshr_b32 s74, s67, 1")
    a.I(f"s_lshl_b32 s75, s{S_HD}, 6")
    a.I("s_lshl_b32 s54, s73, 5")
    a.I("s_add_u32 s75, s75, s54")
    a.I("s_lshl_b32 s54, s75, 2")
    a.I("v_and_b32 v8, 31, v1")
    a.I("v_lshlrev_b32 v8, 2, v8")
    a.I(f"buffer_load_dword v40, v8, {S4(RA)}, s54 offen sc1")
    a.I(f"s_lshl_b32 s54, s{S_QB}, 6")
    a.I("s_lshl_b32 s55, s74, 5")
    a.I("s_add_u32 s54, s54, s55")
    a.I("s_lshl_b32 s54, s54, 1")
    a.I("v_lshrrev_b32 v8, 5, v1")
    a.I("v_lshlrev_b32 v8, 3, v8")
    for q in range(4):
        a.I(f"buffer_load_dwordx2 v[{42+2*q}:{43+2*q}], v8, {S4(RB)}, s54 offen offset:{q*16}")
    a.I("s_barrier")
    a.I("s_barrier")
    stamp(a, "B9b")
    srd(a, RA, S_WO, 512*1024)
    a.I("s_lshl_b32 s68, s67, 14")
    a.I("s_lshl_b32 s70, s67, 17")
    for ks in range(8):
        for n in range(2):
            a.I(f"s_add_u32 m0, s68, {ks*2048+n*1024}")
            a.I(f"s_add_u32 s69, s70, {ks*16384+n*8192}")
            a.I(f"buffer_load_dwordx4 v{VW}, {S4(RA)}, s69 offen lds")
    a.I(f"s_add_u32 s54, s68, {L_V}")
    a.I(f"v_add_u32 v8, s54, v{VH}")
    for i in range(16):
        a.I(f"ds_write_b128 v8, {vr(ACC2+4*i,4)} offset:{i*1024}")
    a.I("s_waitcnt lgkmcnt(0)")
    a.I("s_barrier")
    stamp(a, "B10")
    srd_off(a, RC, S_WS, FLG, 16384)
    a.I("s_cmp_lg_u32 s67, 0")
    a.I("s_cbranch_scc1 L_f3")
    a.I(f"s_lshl_b32 s54, s{S_QB}, 7")
    a.I(f"s_lshl_b32 s55, s{S_HD}, 2")
    a.I("s_add_u32 s54, s54, s55")
    a.I(f"s_add_u32 s54, s54, {FO_OFF}")
    a.I(f"v_mov_b32 v9, s{S_NONCE}")
    a.I("v_mov_b32 v10, 0")
    a.I("s_mov_b64 exec, 1")
    a.I(f"buffer_store_dword v9, v10, {S4(RC)}, s54 offen sc1")
    a.I("s_mov_b64 exec, -1")
    a.L("L_f3")
    a.I("s_lshl_b32 s54, s67, 12")
    a.I(f"s_add_u32 s54, s54, {L_V}")
    a.I(f"v_add_u32 v8, s54, v{VH}")
    for p in range(4):
        for q in range(4):
            a.I(f"ds_read_b128 {vr(ACC2+p*16+q*4,4)}, v8 offset:{p*16384+q*1024}")
    a.I("s_waitcnt lgkmcnt(0)")
    for i in range(16):
        a.I(f"v_add_f32 v{ACC2+i}, v{ACC2+i}, v{ACC2+16+i}")
        a.I(f"v_add_f32 v{ACC2+32+i}, v{ACC2+32+i}, v{ACC2+48+i}")
    for i in range(16):
        a.I(f"v_add_f32 v{ACC2+i}, v{ACC2+i}, v{ACC2+32+i}")
    a.I("s_waitcnt vmcnt(17)" if False else "s_waitcnt vmcnt(0)")
    a.I("v_sub_f32 v41, 1.0, v40")
    a.I("v_cvt_pk_bf16_f32 v41, v41, v41")
    a.I("v_and_b32 v41, 0xffff0000, v41")
    for q in range(4):
        a.I(f"v_lshlrev_b32 v52, 16, v{42+2*q}")
        a.I(f"v_and_b32 v53, 0xffff0000, v{42+2*q}")
        a.I(f"v_lshlrev_b32 v54, 16, v{43+2*q}")
        a.I(f"v_and_b32 v55, 0xffff0000, v{43+2*q}")
        for j in range(4):
            a.I(f"v_add_f32 v{BPR+4*q+j}, v{ACC2+4*q+j}, v{52+j}")
        for j in range(4):
            a.I(f"v_mul_f32 v{BPR+4*q+j}, v{BPR+4*q+j}, v41")
    a.I("v_mov_b32 v39, v40")
    a.I("s_cmp_lg_u32 s67, 0")
    a.I("s_cbranch_scc1 L_f4")
    a.I(f"s_lshr_b32 s54, s{S_HD}, 2")
    a.I("s_lshl_b32 s54, s54, 7")
    a.I(f"s_add_u32 s54, s54, {FO_OFF}")
    a.I("v_lshlrev_b32 v40, 2, v1")
    poll(a, RC, 32, 40, 41, "s54")
    a.L("L_f4")
    a.I("s_barrier")
    stamp(a, "B11")
    srd_off(a, RB, S_WS, OF, 2*MB)
    a.I(f"s_lshl_b32 s54, s{S_HD}, 6")
    a.I("s_lshl_b32 s55, s67, 3")
    a.I("s_add_u32 s54, s54, s55")
    a.I("s_lshl_b32 s54, s54, 10")
    for ks in range(8):
        for rt in range(2):
            a.I(f"s_add_u32 s55, s54, {rt*32768 + (ks//4)*4096}")
            a.I(f"buffer_load_dwordx4 {vr(OR_+ks*8+rt*4,4)}, v{VH}, {S4(RB)}, s55 offen offset:{(ks%4)*1024} sc1")
    tr_lane_addr(a, VA0, 1, 32, 33, 4, 128)
    a.I(f"v_add_u32 v{VA0}, s68, v{VA0}")
    a.I(f"v_xor_b32 v{VA1}, 64, v{VA0}")
    for i in range(64):
        a.I(f"v_mov_b32 v{ACC2+i}, 0")
    for ks in range(8):
        a.I(f"s_waitcnt vmcnt({14-2*ks})")
        F = WF
        a.I("\n".join(tr_reads_perm(F, VA0, VA1, ks*2048)))
        a.I("s_waitcnt lgkmcnt(0)")
        for ct in range(2):
            for rt in range(2):
                d = ACC2 + (ct*2+rt)*16
                a.I(MF(d, F+4*ct, OR_+ks*8+4*rt, d))
    a.I("s_nop 15")
    stamp(a, "p3mm")
    a.I(f"s_add_u32 s54, s68, {L_V}")
    a.I(f"v_add_u32 v32, s54, v{VH}")
    for i in range(16):
        a.I(f"ds_write_b128 v32, {vr(ACC2+4*i,4)} offset:{i*1024}")
    a.I("s_waitcnt lgkmcnt(0)")
    a.I("s_barrier")
    a.I("s_lshl_b32 s54, s67, 12")
    a.I(f"s_add_u32 s54, s54, {L_V}")
    a.I(f"v_add_u32 v32, s54, v{VH}")
    for p in range(4):
        for q in range(4):
            a.I(f"ds_read_b128 {vr(ACC2+p*16+q*4,4)}, v32 offset:{p*16384+q*1024}")
    a.I("s_waitcnt lgkmcnt(0)")
    for i in range(16):
        a.I(f"v_add_f32 v{ACC2+i}, v{ACC2+i}, v{ACC2+16+i}")
        a.I(f"v_add_f32 v{ACC2+32+i}, v{ACC2+32+i}, v{ACC2+48+i}")
    for i in range(16):
        a.I(f"v_add_f32 v{ACC2+i}, v{ACC2+i}, v{ACC2+32+i}")
    for i in range(16):
        a.I(f"v_fma_f32 v{ACC2+i}, v{ACC2+i}, v39, v{BPR+i}")
    for j in range(8):
        a.I(f"v_cvt_pk_bf16_f32 v{ACC2+j}, v{ACC2+2*j}, v{ACC2+2*j+1}")
    a.I("s_nop 1")
    a.I(f"v_permlane32_swap_b32 v{ACC2}, v{ACC2+2}")
    a.I(f"v_permlane32_swap_b32 v{ACC2+1}, v{ACC2+3}")
    a.I(f"v_permlane32_swap_b32 v{ACC2+4}, v{ACC2+6}")
    a.I(f"v_permlane32_swap_b32 v{ACC2+5}, v{ACC2+7}")
    srd(a, RA, S_OUT, 2*MB)
    a.I("s_lshl_b32 s54, s75, 10")
    a.I(f"s_lshl_b32 s55, s{S_QB}, 7")
    a.I("s_add_u32 s54, s54, s55")
    a.I("s_lshl_b32 s55, s74, 6")
    a.I("s_add_u32 s54, s54, s55")
    a.I("v_and_b32 v32, 31, v1")
    a.I("v_lshlrev_b32 v32, 10, v32")
    a.I("v_lshrrev_b32 v33, 5, v1")
    a.I("v_lshl_add_u32 v32, v33, 4, v32")
    a.I(f"buffer_store_dwordx4 {vr(ACC2,4)}, v32, {S4(RA)}, s54 offen")
    a.I(f"buffer_store_dwordx4 {vr(ACC2+4,4)}, v32, {S4(RA)}, s54 offen offset:32")
    stamp_flush(a)
    a.I("s_endpgm")

    a.L("L_attn")
    stamp(a, "attn0")
    QA, QB = 8, 12
    KB = [16, 20]; VB = [24, 32]
    S0, S1, OA, OB = 40, 56, 72, 88
    VK, VV, VL = 2, 3, 4
    a.I(f"s_and_b32 s63, s{S_W}, 3")
    a.I(f"s_lshr_b32 s64, s{S_W}, 2")
    a.I(f"v_lshlrev_b32 v{VL}, 4, v1")
    a.I("s_lshl_b32 s54, s64, 15")
    a.I(f"v_add_u32 v{VK}, s54, v{VL}")
    a.I("v_lshrrev_b32 v104, 5, v1")
    a.I("v_and_b32 v105, 15, v1")
    a.I("v_lshlrev_b32 v105, 4, v105")
    a.I(f"v_lshl_add_u32 v{VV}, v104, 8, v105")
    a.I(f"s_add_u32 s54, s54, {L_V}")
    a.I(f"v_add_u32 v{VV}, s54, v{VV}")
    a.I("s_mov_b32 s74, 0x0000ffff")
    a.I("s_mov_b32 s75, 0x0000ffff")
    a.I(f"s_lshl_b32 s66, s{S_QB}, 3")
    a.I("s_lshl_b32 s54, s63, 1")
    a.I("s_add_u32 s66, s66, s54")
    a.I("s_lshl_b32 s54, s63, 11")
    a.I(f"s_add_u32 s54, s54, {L_RING}")
    a.I(f"v_add_u32 v106, s54, v{VL}")
    if OPT.get("vzero"):
        a.I("v_and_b32 v104, 31, v1")
        a.I("v_cmp_eq_u32 vcc, 16, v104")
        a.I("v_mov_b32 v105, 0x3f803f80")
        a.I("s_nop 1")
        a.I("v_cndmask_b32 v104, 0, v105, vcc")
        for i in range(16):
            a.I(f"v_mov_b32 v{VB[0]+i}, v104")
    else:
        for i in range(16):
            a.I(f"v_mov_b32 v{VB[0]+i}, 0x3f803f80")
    lds_spin(a, M_KV, 4, 104, 105)
    stamp(a, "kvok")
    a.I(f"ds_read_b128 {vr(QA,4)}, v106")
    a.I(f"ds_read_b128 {vr(QB,4)}, v106 offset:1024")
    a.I(f"ds_read_b128 {vr(KB[0],4)}, v{VK}")
    a.I("s_mov_b64 exec, s[74:75]")
    a.I(f"ds_read_b128 {vr(VB[0],4)}, v{VV}")
    a.I(f"ds_read_b128 {vr(VB[0]+4,4)}, v{VV} offset:512")
    a.I("s_mov_b64 exec, -1")
    a.I(f"ds_read_b128 {vr(KB[1],4)}, v{VK} offset:1024")
    for i in range(16):
        a.I(f"v_mov_b32 v{OA+i}, 0")
        a.I(f"v_mov_b32 v{OB+i}, 0")
    for i in range(4):
        a.I(f"v_mov_b32 v{S1+4+i}, 0")
    a.I("s_waitcnt lgkmcnt(3)")
    a.I(MF(S0, KB[0], QA))
    a.I(f"v_mov_b32 v104, {M_QRD}")
    a.I("v_mov_b32 v105, 1")
    a.I("s_mov_b64 exec, 1")
    a.I("ds_add_u32 v104, v105")
    a.I("s_mov_b64 exec, -1")
    a.I("s_waitcnt lgkmcnt(0)")
    a.I("s_nop 7")

    def tile(Sin, Sout, Qn, Kn, Ocur, Vcur_u0, Oprev, Vprev_u1, after_pv2, wait_s, after_s, wait_pv1):
        e = lambda i: f"v_exp_f32 v{Sin+i}, v{Sin+i}"
        c = lambda j: f"v_cvt_pk_bf16_f32 v{Sin+j}, v{Sin+2*j}, v{Sin+2*j+1}"
        L = [e(0), e(1), MF(Oprev, Vprev_u1, Sout+4, Oprev)]
        L += after_pv2
        L += [e(2), e(3), c(0), e(4), e(5), c(1)]
        L += wait_s
        L.append(MF(Sout, Kn, Qn))
        L += after_s
        L += [e(6), e(7), c(2), e(8), e(9), c(3), e(10), e(11)]
        L += wait_pv1
        L.append(MF(Ocur, Vcur_u0, Sin, Ocur))
        L += [c(4), e(12), e(13), c(5), e(14), e(15), c(6), c(7)]
        return L
    def keytile(kap, off):
        vload = ["s_mov_b64 exec, s[74:75]",
                 f"ds_read_b128 {vr(VB[kap^1],4)}, v{VV} offset:{off+1024}",
                 f"ds_read_b128 {vr(VB[kap^1]+4,4)}, v{VV} offset:{off+1536}",
                 "s_mov_b64 exec, -1"]
        kload = [f"ds_read_b128 {vr(KB[kap],4)}, v{VK} offset:{off+2048}"]
        L = tile(S0, S1, QB, KB[kap], OA, VB[kap], OB, VB[kap^1]+4, vload, [], kload, ["s_waitcnt lgkmcnt(4)"])
        L += tile(S1, S0, QA, KB[kap^1], OB, VB[kap], OA, VB[kap]+4, [], ["s_waitcnt lgkmcnt(3)"], [], [])
        return L
    UN = OPT.get("un", 4)
    NITER = 32 // UN
    a.I("s_mov_b32 s73, 0")
    a.raw(".p2align 6")
    a.L("L_aloop")
    body = []
    for t in range(UN):
        body += keytile(t & 1, t*1024)
    a.I("\n".join(body))
    a.I(f"v_add_u32 v{VK}, {UN*1024}, v{VK}")
    a.I(f"v_add_u32 v{VV}, {UN*1024}, v{VV}")
    a.I("s_add_u32 s73, s73, 1")
    a.I("s_cmp_lg_u32 s73, 1")
    a.I("s_cbranch_scc1 L_aloop2")
    a.I("s_waitcnt vmcnt(0)")
    a.I(f"s_cmp_ge_u32 s{S_W}, 4")
    a.I("s_cbranch_scc1 L_aloop1")
    a.I(f"v_mov_b32 v104, {M_HST}")
    a.I("v_mov_b32 v105, 1")
    a.I("s_mov_b64 exec, 1")
    a.I("ds_add_u32 v104, v105")
    a.I("s_mov_b64 exec, -1")
    a.L("L_aloop1")
    lds_spin(a, M_KV, 8, 104, 105)
    a.L("L_aloop2")
    a.I(f"s_cmp_lg_u32 s73, {NITER}")
    a.I("s_cbranch_scc1 L_aloop")
    a.I(MF(OB, VB[1]+4, S1+4, OB))
    a.I("s_waitcnt lgkmcnt(0)")
    a.I("s_nop 15")
    stamp(a, "aloop")
    a.I("s_barrier")
    a.I(f"s_mul_i32 s54, s{S_W}, 2304")
    a.I(f"s_add_u32 s54, s54, {L_XCH}")
    a.I(f"s_xor_b32 s55, s{S_W}, 4")
    a.I("s_mul_i32 s55, s55, 2304")
    a.I(f"s_add_u32 s55, s55, {L_XCH}")
    a.I(f"v_add_u32 v9, s55, v{VL}")
    a.I(f"v_add_u32 v8, s54, v{VL}")
    a.I("v_lshlrev_b32 v10, 2, v1")
    a.I("v_add_u32 v11, s55, v10")
    a.I("v_add_u32 v10, s54, v10")
    a.I("s_cmp_eq_u32 s64, 0")
    a.I("s_cbranch_scc1 L_x0")
    for i in range(9):
        a.I(f"v_mov_b32 v{S0+i}, v{OA+i}")
        a.I(f"v_mov_b32 v{OA+i}, v{OB+i}")
        a.I(f"v_mov_b32 v{OB+i}, v{S0+i}")
    a.L("L_x0")
    a.I(f"ds_write_b128 v8, {vr(OB,4)}")
    a.I(f"ds_write_b128 v8, {vr(OB+4,4)} offset:1024")
    a.I(f"ds_write_b32 v10, v{OB+8} offset:2048")
    a.I("s_waitcnt lgkmcnt(0)")
    a.I("s_barrier")
    a.I(f"ds_read_b128 {vr(S0,4)}, v9")
    a.I(f"ds_read_b128 {vr(S0+4,4)}, v9 offset:1024")
    a.I(f"ds_read_b32 v{S0+8}, v11 offset:2048")
    a.I("s_waitcnt lgkmcnt(0)")
    for i in range(9):
        a.I(f"v_add_f32 v{OA+i}, v{OA+i}, v{S0+i}")
    if OPT.get("vzero"):
        a.I(f"v_mov_b32 v{OA+9}, v{OA+8}")
        a.I("s_nop 1")
        a.I(f"v_permlane32_swap_b32 v{OA+9}, v{OA+8}")
        a.I("s_nop 1")
        a.I(f"v_mov_b32 v{OA+8}, v{OA+9}")
    a.I(f"v_rcp_f32 v{OA+8}, v{OA+8}")
    a.I("s_nop 0")
    for i in range(8):
        a.I(f"v_mul_f32 v{OA+i}, v{OA+i}, v{OA+8}")
    for j in range(4):
        a.I(f"v_cvt_pk_bf16_f32 v{OA+j}, v{OA+2*j}, v{OA+2*j+1}")
    srd_off(a, RA, S_WS, OF, 2*MB)
    a.I("s_add_u32 s66, s66, s64")
    a.I("s_lshl_b32 s66, s66, 5")
    a.I(f"s_add_u32 s66, s66, s{S_HD}")
    a.I("s_lshl_b32 s66, s66, 10")
    a.I(f"buffer_store_dwordx4 {vr(OA,4)}, v{VL}, {S4(RA)}, s66 offen sc1")
    a.I("s_waitcnt vmcnt(0)")
    a.I("s_barrier")
    stamp_flush(a)
    a.L("L_end")
    a.I("s_endpgm")
    a.L("L_code_end")
    a.I("s_endpgm")
    return a

HEADER = open("cdna_kernels/" + NAME + ".s.ref").read().split("; Override launch")[0]

def build(path):
    a = gen()
    out = HEADER + f"; WSLAYOUT QF={QF} KF={KF} VF={VF} HF={HF} GO={GO} OF={OF}\n" + f"; @launch grid=(256,1,1) block=(768,1,1) lds={LDS_TOTAL}\n"
    out += '.amdgcn_target "amdgcn-amd-amdhsa--gfx950"\n.text\n' + a.text()
    out += f""".section .rodata,"a"
.p2align 6
.amdhsa_kernel {KN}
  .amdhsa_next_free_vgpr 168
  .amdhsa_next_free_sgpr 102
  .amdhsa_accum_offset 168
  .amdhsa_group_segment_fixed_size 0
  .amdhsa_kernarg_size 96
  .amdhsa_user_sgpr_count 2
  .amdhsa_user_sgpr_kernarg_segment_ptr 1
  .amdhsa_system_sgpr_workgroup_id_x 1
.end_amdhsa_kernel
"""
    open(path, "w").write(out)
    probs = check_linear(a.lines, "k")
    if STAMPS: print("stamps:", _stamp_names)
    return probs

if __name__ == "__main__":
    for x in list(sys.argv[1:]):
        if x.startswith("-D"):
            k, _, v = x[2:].partition("=")
            OPT[k] = int(v) if v else 1
            sys.argv.remove(x)
    if "--stamps" in sys.argv:
        STAMPS = True; sys.argv.remove("--stamps")
    path = sys.argv[1] if len(sys.argv) > 1 else "cdna_kernels/" + NAME + ".s"
    probs = build(path)
    for p in probs: print("HAZARD:", p)
    print("written", path, "problems:", len(probs))
```

```python
import sys, struct
from asmlib import *

NAME = "gated_mix__mha_block__dense_activation_squared_relu__prompt"
KN = NAME + "_kernel"
MB = 1 << 20
QF, KF, VF, HF, GO, OF, FLG = 4096, 2*MB + 8192, 4*MB + 12288, 6*MB + 16384, 12*MB, 14*MB + 4096, 16*MB + 8192
HF_SIZE = 86 * 65536
FA_OFF, FH_OFF, FO_OFF = 0, 4096, 8192
FLG_SIZE = 16384
QSCALE = 0.25 * 1.4426950408889634
STAMP_OFF = 32*MB
STAMPS = False
OPT = {}
def f2u(x): return struct.unpack("<I", struct.pack("<f", x))[0]

S_AX, S_WQKV, S_WO, S_W1, S_B1, S_W2, S_B2, S_GW, S_OUT, S_DBG, S_WS = 4, 6, 8, 12, 14, 16, 18, 20, 22, 24, 26
S_W = 3
S_RB, S_CG, S_START = 29, 30, 31
RA, RB, RC, RD = 32, 36, 40, 44
S_NONCE, S_HD, S_QB = 60, 61, 62
L_K, L_V, L_RING, L_MISC = 0, 65536, 131072, 131072 + 24576
L_XCH = L_RING
M_KV, M_H, M_FA, M_QRD, M_HST, M_FFN, M_ATT, M_T1 = [L_MISC + 4*i for i in range(8)]
M_PAIR, M_PFLAG, M_CH = L_MISC + 64, L_MISC + 96, L_MISC + 160
LDS_TOTAL = 163840

def srd(a, dst, base, size):
    a.I(f"s_mov_b32 s{dst}, s{base}")
    a.I(f"s_mov_b32 s{dst+1}, s{base+1}")
    a.I(f"s_mov_b32 s{dst+2}, {size}")
    a.I(f"s_mov_b32 s{dst+3}, 0x20000")
def srd_off(a, dst, base, off, size):
    a.I(f"s_add_u32 s{dst}, s{base}, {off}")
    a.I(f"s_addc_u32 s{dst+1}, s{base+1}, 0")
    a.I(f"s_mov_b32 s{dst+2}, {size}")
    a.I(f"s_mov_b32 s{dst+3}, 0x20000")
def MF(d, A, B, c=None):
    cc = "0" if c is None else vr(c, 16)
    return f"v_mfma_f32_32x32x16_bf16 {vr(d,16)}, {vr(A,4)}, {vr(B,4)}, {cc}"
def S4(r): return f"s[{r}:{r+3}]"
def J(L): return "\n".join(L)

_stamp_names = []
def stamp(a, name):
    if not STAMPS: return
    if name not in _stamp_names: _stamp_names.append(name)
    i = _stamp_names.index(name)
    a.I("s_waitcnt lgkmcnt(0)")
    a.I("s_memtime s[98:99]")
    a.I("s_memrealtime s[100:101]")
    a.I("s_waitcnt lgkmcnt(0)")
    a.I(f"v_writelane_b32 v6, s98, {i}")
    a.I(f"v_writelane_b32 v7, s100, {i}")
def stamp_dyn(a):
    if not (STAMPS and OPT.get("fine")): return
    a.I("s_memtime s[98:99]")
    a.I("s_memrealtime s[100:101]")
    a.I("s_waitcnt lgkmcnt(0)")
    a.I("s_mov_b32 s88, m0")
    a.I("s_mov_b32 m0, s87")
    a.I("s_nop 3")
    a.I("v_writelane_b32 v6, s98, m0")
    a.I("v_writelane_b32 v7, s100, m0")
    a.I("s_mov_b32 m0, s88")
    a.I("s_add_u32 s87, s87, 1")
def stamp_flush(a):
    if not STAMPS: return
    a.I("s_waitcnt vmcnt(0)")
    stamp(a, "end")
    a.I(f"s_add_u32 s96, s{S_WS}, {STAMP_OFF}")
    a.I(f"s_addc_u32 s97, s{S_WS+1}, 0")
    a.I("s_mul_i32 s98, s2, 12")
    a.I(f"s_add_u32 s98, s98, s{S_W}")
    a.I("s_lshl_b32 s98, s98, 9")
    a.I("v_lshlrev_b32 v2, 2, v1")
    a.I("v_add_u32 v2, s98, v2")
    a.I("s_mov_b64 exec, -1")
    a.I("global_store_dword v2, v6, s[96:97]")
    a.I("global_store_dword v2, v7, s[96:97] offset:256")
    a.I("s_waitcnt vmcnt(0)")

def tr_lane_addr(a, dst, lane, tmp, tmp2, hrows, pitch):
    a.I(f"v_bfe_u32 v{tmp}, v{lane}, 2, 2")
    a.I(f"v_lshrrev_b32 v{tmp2}, 5, v{lane}")
    a.I(f"v_mul_u32_u24 v{tmp2}, {hrows}, v{tmp2}")
    a.I(f"v_add_u32 v{tmp}, v{tmp}, v{tmp2}")
    a.I(f"v_mul_u32_u24 v{dst}, {pitch}, v{tmp}")
    a.I(f"v_bfe_u32 v{tmp}, v{lane}, 4, 1")
    a.I(f"v_lshlrev_b32 v{tmp}, 1, v{tmp}")
    a.I(f"v_bfe_u32 v{tmp2}, v{lane}, 1, 1")
    a.I(f"v_add_u32 v{tmp}, v{tmp}, v{tmp2}")
    a.I(f"v_bfe_u32 v{tmp2}, v{lane}, 3, 1")
    a.I(f"v_lshlrev_b32 v{tmp2}, 2, v{tmp2}")
    a.I(f"v_xor_b32 v{tmp}, v{tmp}, v{tmp2}")
    a.I(f"v_lshl_add_u32 v{dst}, v{tmp}, 4, v{dst}")
    a.I(f"v_and_b32 v{tmp}, 1, v{lane}")
    a.I(f"v_lshl_add_u32 v{dst}, v{tmp}, 3, v{dst}")

def dma_w_lane_off(a, dst, lane, tmp, tmp2, pitch):
    a.I(f"v_lshrrev_b32 v{tmp}, 3, v{lane}")
    a.I(f"v_mul_u32_u24 v{dst}, {pitch}, v{tmp}")
    a.I(f"v_bfe_u32 v{tmp}, v{lane}, 4, 1")
    a.I(f"v_lshlrev_b32 v{tmp}, 2, v{tmp}")
    a.I(f"v_and_b32 v{tmp2}, 7, v{lane}")
    a.I(f"v_xor_b32 v{tmp}, v{tmp}, v{tmp2}")
    a.I(f"v_lshl_add_u32 v{dst}, v{tmp}, 4, v{dst}")

_lab = [0]
def lab(p):
    _lab[0] += 1
    return f"L_{p}{_lab[0]}"

def poll(a, srd_reg, nlanes, voff, vtmp, soff):
    l0, l1 = lab("poll"), lab("polld")
    if nlanes < 64:
        a.I(f"s_mov_b32 exec_lo, {hex((1 << nlanes) - 1)}")
        a.I("s_mov_b32 exec_hi, 0")
    a.I("s_mov_b32 s50, 0x40000")
    a.L(l0)
    a.I(f"buffer_load_dword v{vtmp}, v{voff}, {S4(srd_reg)}, {soff} offen sc1")
    a.I("s_waitcnt vmcnt(0)")
    a.I(f"v_cmp_ne_u32 vcc, s{S_NONCE}, v{vtmp}")
    a.I(f"s_cbranch_vccz {l1}")
    a.I("s_sub_u32 s50, s50, 1")
    a.I("s_cmp_eq_u32 s50, 0")
    a.I(f"s_cbranch_scc1 {l1}")
    a.I("s_sleep 1")
    a.I(f"s_branch {l0}")
    a.L(l1)
    a.I("s_mov_b64 exec, -1")

def lds_spin(a, addr, target, vaddr, vtmp, slp=1):
    l0, l1 = lab("spin"), lab("spind")
    a.I(f"v_mov_b32 v{vaddr}, {addr}")
    a.I("s_mov_b32 s50, 0x400000")
    a.L(l0)
    a.I(f"ds_read_b32 v{vtmp}, v{vaddr}")
    a.I("s_waitcnt lgkmcnt(0)")
    a.I(f"v_readfirstlane_b32 s51, v{vtmp}")
    a.I("s_sub_u32 s50, s50, 1")
    a.I(f"s_cmp_ge_u32 s51, {target}")
    a.I(f"s_cbranch_scc1 {l1}")
    a.I("s_cmp_eq_u32 s50, 0")
    a.I(f"s_cbranch_scc1 {l1}")
    a.I(f"s_sleep {slp}")
    a.I(f"s_branch {l0}")
    a.L(l1)

def lds_add1(a, addr, vaddr, vtmp):
    a.I(f"v_mov_b32 v{vaddr}, {addr}")
    a.I(f"v_mov_b32 v{vtmp}, 1")
    a.I("s_mov_b64 exec, 1")
    a.I(f"ds_add_u32 v{vaddr}, v{vtmp}")
    a.I("s_mov_b64 exec, -1")

def flag_store(a, soff, v0_, v1_):
    a.I(f"v_mov_b32 v{v0_}, s{S_NONCE}")
    a.I(f"v_mov_b32 v{v1_}, 0")
    a.I("s_mov_b64 exec, 1")
    a.I(f"buffer_store_dword v{v0_}, v{v1_}, {S4(RC)}, {soff} offen sc1")
    a.I("s_mov_b64 exec, -1")

def prologue(a):
    a.raw(f".globl {KN}\n.p2align 8\n.type {KN},@function\n{KN}:")
    a.I("s_cmp_ge_u32 s2, 256")
    a.I("s_cbranch_scc1 L_end")
    a.I("s_load_dwordx4 s[4:7], s[0:1], 0")
    a.I("s_load_dwordx2 s[8:9], s[0:1], 16")
    a.I("s_load_dwordx4 s[12:15], s[0:1], 32")
    a.I("s_load_dwordx4 s[16:19], s[0:1], 48")
    a.I("s_load_dwordx4 s[20:23], s[0:1], 64")
    a.I("s_load_dwordx4 s[24:27], s[0:1], 80")
    a.I("v_lshrrev_b32 v2, 6, v0")
    a.I("v_and_b32 v1, 63, v0")
    a.I(f"v_readfirstlane_b32 s{S_W}, v2")
    if STAMPS:
        a.I("v_mov_b32 v6, 0"); a.I("v_mov_b32 v7, 0")
    a.I("s_and_b32 s52, s2, 7")
    a.I("s_lshr_b32 s53, s2, 3")
    a.I("s_lshr_b32 s54, s52, 2")
    a.I("s_lshl_b32 s54, s54, 4")
    a.I("s_lshr_b32 s55, s53, 1")
    a.I(f"s_add_u32 s{S_RB}, s54, s55")
    a.I("s_and_b32 s54, s52, 3")
    a.I("s_lshl_b32 s54, s54, 1")
    a.I("s_and_b32 s55, s53, 1")
    a.I(f"s_add_u32 s{S_CG}, s54, s55")
    a.I(f"s_mul_i32 s54, s{S_CG}, 6")
    a.I(f"s_min_u32 s{S_START}, s54, 37")
    a.I(f"s_lshl_b32 s{S_HD}, s52, 2")
    a.I("s_and_b32 s54, s53, 3")
    a.I(f"s_add_u32 s{S_HD}, s{S_HD}, s54")
    a.I(f"s_lshr_b32 s{S_QB}, s2, 5")
    a.I("s_waitcnt lgkmcnt(0)")
    stamp(a, "karg")
    a.I(f"s_cmp_ge_u32 s{S_W}, 8")
    a.I("s_cbranch_scc1 L_aux")
    a.I(f"s_cmp_lt_u32 s{S_W}, 4")
    a.I("s_cbranch_scc1 L_cons")

GATEPOS = 3
def producer(a, aux):
    T = "a" if aux else "p"
    a.I(f"s_sub_u32 s67, s{S_W}, 4")
    a.I(f"s_lshl_b32 s54, s{S_RB}, 16")
    srd_off(a, RA, S_AX, "s54", 65536)
    srd(a, RB, S_WQKV, 512*3072)
    a.I("v_lshrrev_b32 v2, 3, v1")
    a.I("s_lshl_b32 s54, s67, 3")
    a.I("v_add_u32 v2, s54, v2")
    a.I("v_lshrrev_b32 v3, 4, v1")
    a.I("s_and_b32 s54, s67, 1")
    a.I("s_lshl_b32 s54, s54, 2")
    a.I("v_add_u32 v3, s54, v3")
    a.I("v_and_b32 v4, 7, v1")
    a.I("v_xor_b32 v3, v3, v4")
    a.I("v_lshlrev_b32 v3, 4, v3")
    a.I("v_lshl_add_u32 v12, v2, 10, v3")
    a.I("s_lshl_b32 s68, s67, 10")
    def woffs(dst, pitch, segshift):
        for j in range(3):
            a.I(f"v_add_u32 v2, {64*j}, v1")
            a.I("v_mul_u32_u24 v3, 171, v2")
            a.I("v_lshrrev_b32 v3, 12, v3")
            a.I("v_mul_u32_u24 v4, 24, v3")
            a.I("v_sub_u32 v2, v2, v4")
            a.I("v_lshrrev_b32 v4, 3, v2")
            a.I("v_and_b32 v2, 7, v2")
            a.I("v_bfe_u32 v5, v3, 1, 1")
            a.I("v_lshlrev_b32 v5, 2, v5")
            a.I("v_xor_b32 v2, v2, v5")
            a.I("v_lshlrev_b32 v2, 4, v2")
            a.I(f"v_mul_u32_u24 v5, {pitch}, v3")
            a.I(f"v_lshl_add_u32 v5, v4, {segshift}, v5")
            a.I(f"v_add_u32 v{dst+j}, v5, v2")
    woffs(13, 3072, 10)
    a.I("s_mul_i32 s69, s67, 3072")
    a.I("s_add_u32 s69, s69, 0x10000")
    a.I(f"s_lshl_b32 s70, s{S_CG}, 7")
    a.I(f"s_mul_i32 s71, s67, {8*3072}")
    a.I("s_add_u32 s70, s70, s71")
    def issue_x(c):
        if OPT.get("p1noprod"): return
        a.I(f"s_add_u32 m0, s68, {c*8192}")
        a.I(f"s_movk_i32 s81, {c*128}")
        a.I(f"buffer_load_dwordx4 v12, {S4(RA)}, s81 offen lds")
    def issue_w(c):
        if OPT.get("p1noprod"): return
        if c < 8:
            a.I(f"s_add_u32 s82, s70, {c*64*3072}")
            vo, R = 13, RB
        else:
            a.I(f"s_add_u32 s82, s71, {(c-8)*64*2752}")
            vo, R = 16, RC
        for j in range(3):
            a.I(f"s_add_u32 m0, s69, {(c&3)*24576 + j*1024}")
            a.I("s_nop 0")
            a.I(f"buffer_load_dwordx4 v{vo+j}, {S4(R)}, s82 offen lds")
    sched = OPT.get("sched", 0)
    if sched == 0:
        pre = [("X",0),("W",0),("X",1),("W",1),("X",2),("W",2)]
        post = {c: ([("X",c+3)] if c+3 < 8 else []) + ([("W",c+3)] if c+3 < 16 else []) for c in range(16)}
    elif sched == 1:
        pre = [("X",0),("W",0),("X",1),("W",1),("X",2),("W",2),("X",3),("W",3),("X",4),("X",5),("X",6),("X",7)]
        post = {c: ([("W",c+3)] if (c >= 1 and c+3 < 16) else []) for c in range(16)}
    elif sched == 2:
        pre = [("X",0),("W",0),("X",1),("W",1),("X",2),("W",2),("X",3),("W",3)]
        post = {c: ([("W",c+3)] if (c >= 1 and c+3 < 16) else []) for c in range(16)}
        post[0] = [("X",4),("X",5),("X",6),("X",7)]
    fifo = []
    def do(item):
        k, c = item
        if k == "X": issue_x(c); fifo.append((item, 1))
        else: issue_w(c); fifo.append((item, 3))
    for it in pre: do(it)
    stamp(a, "issued3")
    nside = 0
    if aux:
        nside = aux_side_issue(a)
    srd(a, RC, S_W1, 512*2752)
    woffs(16, 2752, 7)
    a.I(f"s_lshl_b32 s71, s{S_START}, 6")
    a.I(f"s_mul_i32 s72, s67, {8*2752}")
    a.I("s_add_u32 s71, s71, s72")
    fap = OPT.get("fapos", 4)
    assert fap >= 2
    for c in range(16):
        need = [("W", c)] + ([("X", c)] if c < 8 else [])
        idx = max(i for i, (it, _) in enumerate(fifo) if it in need)
        allow = sum(k for _, k in fifo[idx+1:])
        if c == 0 and STAMPS and OPT.get("fine"): a.I("s_mov_b32 s87, 24")
        stamp_dyn(a)
        a.I(f"s_waitcnt vmcnt({allow})")
        stamp_dyn(a)
        a.I("s_barrier")
        for it in post[c]: do(it)
        if aux and c == 2:
            fifo.append(("side", aux_side_loads(a)))
        if aux and c == 6:
            aux_gate(a)
            fifo.append(("g", 1))
        if aux and c == 7:
            fifo.append(("nonce", aux_nonce_issue(a)))
        if aux and c == 11:
            aux_nonce_take(a)
        if aux and c == 9 + fap:
            aux_publish_fa(a)
    a.I("s_barrier")
    if aux:
        aux_after_e1(a)
    else:
        a.I("s_barrier")
        a.I("s_branch L_attn")

def l2_prefetch(a, part):
    a.I("s_and_b32 s52, s2, 7")
    a.I("s_lshr_b32 s53, s2, 3")
    a.I("s_lshl_b32 s54, s53, 4")
    a.I(f"s_lshl_b32 s55, s{S_W}, 2")
    a.I("s_add_u32 s56, s54, s55")
    if part == 2:
        a.I(f"s_cmp_lg_u32 s{S_W}, 0")
        a.I("s_cbranch_scc1 L_pf2")
        srd(a, RC, S_WQKV, 512*3072)
        a.I("s_lshl_b32 s54, s53, 3")
        a.I("s_add_u32 s54, s54, 256")
        a.I("s_mul_i32 s54, s54, 3072")
        a.I("s_and_b32 s55, s52, 3")
        a.I("s_lshl_b32 s55, s55, 8")
        a.I("s_add_u32 s54, s54, s55")
        a.I("v_lshrrev_b32 v21, 3, v1")
        a.I("v_mul_u32_u24 v21, 3072, v21")
        a.I("v_bfe_u32 v22, v1, 1, 2")
        a.I("v_min_u32 v22, 2, v22")
        a.I("v_lshl_add_u32 v21, v22, 10, v21")
        a.I("v_and_b32 v22, 1, v1")
        a.I("v_lshl_add_u32 v21, v22, 7, v21")
        a.I(f"buffer_load_dword v25, v21, {S4(RC)}, s54 offen")
        a.L("L_pf2")
    elif part == 0:
        G = OPT.get("pfg", 64)
        sh = {128: 7, 64: 6, 32: 5}[G]
        srd(a, RC, S_AX, 2*MB)
        a.I("s_lshr_b32 s54, s52, 2")
        a.I("s_lshl_b32 s54, s54, 10")
        a.I("s_lshl_b32 s55, s53, 5")
        a.I("s_add_u32 s54, s54, s55")
        a.I(f"s_lshl_b32 s55, s{S_W}, 3")
        a.I("s_add_u32 s54, s54, s55")
        a.I("s_lshl_b32 s54, s54, 10")
        a.I(f"v_lshlrev_b32 v20, {sh}, v1")
        for i in range(8192 // (64*G)):
            a.I(f"buffer_load_dword v24, v20, {S4(RC)}, s54 offen")
            a.I(f"s_add_u32 s54, s54, {64*G}")
        srd(a, RC, S_WQKV, 512*3072)
        a.I("s_mul_i32 s54, s56, 3072")
        a.I("s_and_b32 s55, s52, 3")
        a.I("s_lshl_b32 s55, s55, 8")
        a.I("s_add_u32 s54, s54, s55")
        per = 256 // G
        a.I("v_lshrrev_b32 v21, 4, v1")
        a.I("v_mul_u32_u24 v21, 3072, v21")
        a.I("v_and_b32 v22, 15, v1")
        if G == 64:
            a.I("v_lshrrev_b32 v23, 2, v22")
            a.I("v_min_u32 v23, 2, v23")
            a.I("v_lshl_add_u32 v21, v23, 10, v21")
            a.I("v_and_b32 v22, 3, v22")
            a.I("v_lshl_add_u32 v21, v22, 6, v21")
            a.I(f"buffer_load_dword v25, v21, {S4(RC)}, s54 offen")
        elif G == 32:
            a.I("v_lshrrev_b32 v23, 3, v22")
            a.I("v_lshl_add_u32 v21, v23, 10, v21")
            a.I("v_and_b32 v22, 7, v22")
            a.I("v_lshl_add_u32 v21, v22, 5, v21")
            a.I(f"buffer_load_dword v25, v21, {S4(RC)}, s54 offen")
            a.I(f"buffer_load_dword v25, v21, {S4(RC)}, s54 offen offset:2048")
        else:
            a.I("v_lshrrev_b32 v23, 1, v22")
            a.I("v_min_u32 v23, 2, v23")
            a.I("v_lshl_add_u32 v21, v23, 10, v21")
            a.I("v_and_b32 v22, 1, v22")
            a.I("v_lshl_add_u32 v21, v22, 7, v21")
            a.I(f"buffer_load_dword v25, v21, {S4(RC)}, s54 offen")
    else:
        srd(a, RC, S_W1, 512*2752)
        a.I("s_and_b32 s55, s52, 3")
        a.I("s_mul_i32 s55, s55, 12")
        a.I("s_min_u32 s55, s55, 31")
        a.I("s_lshl_b32 s55, s55, 6")
        a.I("s_mul_i32 s54, s56, 2752")
        a.I("s_add_u32 s54, s54, s55")
        a.I("v_lshrrev_b32 v21, 4, v1")
        a.I("v_mul_u32_u24 v21, 2752, v21")
        a.I("v_and_b32 v22, 15, v1")
        a.I("v_lshl_add_u32 v21, v22, 6, v21")
        a.I(f"buffer_load_dword v26, v21, {S4(RC)}, s54 offen")

def consumer(a):
    a.L("L_cons")
    H, XA, WA, ACC, B1, FA, FB = 2, 8, 12, 32, 80, 104, 136
    if not OPT.get("nopf") and not OPT.get("pflate"):
        l2_prefetch(a, OPT.get("pfmode", 0))
    a.I(f"v_lshrrev_b32 v{H}, 5, v1")
    a.I(f"s_and_b32 s63, s{S_W}, 1")
    a.I(f"s_lshr_b32 s64, s{S_W}, 1")
    srd(a, RD, S_B1, 2752)
    a.I(f"s_add_u32 s54, s{S_START}, s63")
    a.I("s_lshl_b32 s54, s54, 6")
    a.I(f"v_lshlrev_b32 v3, 3, v{H}")
    for s in range(3):
        for q in range(4):
            r = B1 + (s*4+q)*2
            a.I(f"buffer_load_dwordx2 v[{r}:{r+1}], v3, {S4(RD)}, s54 offen offset:{s*128+q*16}")
    for i in range(48):
        a.I(f"v_mov_b32 v{ACC+i}, 0")
    a.I("v_and_b32 v16, 31, v1")
    a.I("v_bfe_u32 v17, v1, 1, 3")
    a.I("s_lshl_b32 s54, s64, 5")
    a.I("v_add_u32 v16, s54, v16")
    a.I("v_lshlrev_b32 v16, 7, v16")
    a.I(f"v_xor_b32 v17, v17, v{H}")
    for ks in range(4):
        a.I(f"v_xor_b32 v18, {2*ks}, v17")
        a.I(f"v_lshl_add_u32 v{XA+ks}, v18, 4, v16")
    tr_lane_addr(a, WA, 1, 16, 17, 8, 384)
    a.I("s_lshl_b32 s54, s63, 6")
    a.I(f"v_xor_b32 v{WA}, s54, v{WA}")
    a.I(f"v_add_u32 v{WA}, 0x10000, v{WA}")
    a.I(f"v_add_u32 v{WA+1}, 49152, v{WA}")

    def reads(b, G, F):
        out = []
        if OPT.get("p1nocons"): return ["s_nop 0"]
        wv = WA + (b >> 1)
        for l in range(2):
            ks = 2*G + l
            out.append(f"ds_read_b128 {vr(F+4*l,4)}, v{XA+ks} offset:{b*8192}")
            for s in range(3):
                for rd in range(2):
                    out.append(f"ds_read_b64_tr_b16 {vr(F+8+12*l+4*s+2*rd,2)}, v{wv} offset:{(b&1)*24576 + ks*6144 + rd*1536 + s*128}")
        return out
    def mfmas(F, qkv):
        out = []
        if OPT.get("p1nocons") or OPT.get("p1nomfma"): return ["s_nop 0"]
        for l in range(2):
            for s in range(3):
                X, W = F+4*l, F+8+12*l+4*s
                out.append(MF(ACC+16*s, X, W, ACC+16*s) if (qkv and s == 2) else MF(ACC+16*s, W, X, ACC+16*s))
        return out
    def inter(mf, rd):
        out = []
        per = OPT.get("iper", [4, 4, 3, 3, 0, 0])
        if len(mf) != 6: return mf + rd
        k = 0
        for i, m in enumerate(mf):
            out.append(m)
            out += rd[k:k+per[i]]
            k += per[i]
        assert k >= len(rd)
        return out
    def stage_loop(tag, qkv):
        a.I("s_mov_b32 s65, 0x8000")
        a.L(f"L_loop_{tag}")
        fap = OPT.get("fapos", 4)
        for b in range(4):
            a.I("s_waitcnt lgkmcnt(0)")
            a.I(J(inter(mfmas(FA, qkv), reads(b, 1, FB))))
            if (not qkv) and b == (fap & 3):
                if fap >= 4:
                    a.I("s_cmp_lt_i32 s65, 0")
                    a.I(f"s_cbranch_scc0 L_nodrain")
                a.I("s_waitcnt vmcnt(0)")
                if fap >= 4: a.L("L_nodrain")
            a.I("s_waitcnt lgkmcnt(0)")
            if b == 3:
                if not qkv:
                    a.I("s_cmp_lt_i32 s65, 0")
                    a.I(f"s_cbranch_scc1 L_last_{tag}")
                for ks in range(4):
                    a.I(f"v_add_u32 v{XA+ks}, s65, v{XA+ks}")
            stamp_dyn(a)
            a.I("s_barrier")
            stamp_dyn(a)
            a.I(J(inter(mfmas(FB, qkv), reads((b+1) % 4, 0, FA))))
        a.I("s_cmp_lt_i32 s65, 0")
        a.I("s_mov_b32 s65, 0xffff8000")
        a.I(f"s_cbranch_scc0 L_loop_{tag}")
        if not qkv:
            a.L(f"L_last_{tag}")
            a.I(J(mfmas(FB, qkv)))

    if OPT.get("pflate"):
        for i in range(OPT["pflate"]):
            a.I("s_sleep 8")
        l2_prefetch(a, 0)
    if OPT.get("pfw1early"):
        l2_prefetch(a, 1)
    a.I("s_barrier")
    stamp(a, "B0")
    if STAMPS and OPT.get("fine"): a.I("s_mov_b32 s87, 24")
    if not OPT.get("nopf") and not OPT.get("pfw1early"):
        l2_prefetch(a, 1)
    a.I(J(reads(0, 0, FA)))
    stage_loop("q", True)
    stamp(a, "qloop")
    srd(a, RA, S_WS, VF + 2*MB)
    a.I(f"s_lshl_b32 s54, s{S_RB}, 1")
    a.I("s_add_u32 s54, s54, s64")
    a.I(f"s_lshl_b32 s55, s{S_CG}, 2")
    a.I("s_lshl_b32 s56, s63, 1")
    a.I("s_add_u32 s55, s55, s56")
    a.I("s_lshl_b32 s55, s55, 6")
    a.I("s_add_u32 s54, s54, s55")
    a.I("s_lshl_b32 s54, s54, 10")
    a.I("v_lshlrev_b32 v3, 4, v1")
    a.I("v_bfe_u32 v4, v1, 4, 1")
    a.I("v_lshlrev_b32 v4, 16, v4")
    a.I(f"v_lshl_add_u32 v4, v{H}, 8, v4")
    a.I("v_and_b32 v5, 15, v1")
    a.I("v_lshl_add_u32 v4, v5, 4, v4")
    a.I(f"s_mov_b32 s56, {hex(f2u(QSCALE))}")
    a.I("s_waitcnt vmcnt(0)")
    a.I("s_nop 4")
    for idx, s in enumerate((1, 2, 0)):
        d = ACC + 16*s
        if s == 0:
            for i in range(16):
                a.I(f"v_mul_f32 v{d+i}, s56, v{d+i}")
        for j in range(8):
            a.I(f"v_cvt_pk_bf16_f32 v{d+j}, v{d+2*j}, v{d+2*j+1}")
        if s < 2:
            for hh in range(2):
                a.I(f"s_add_u32 s55, s54, {(KF if s else QF) + hh*65536}")
                a.I(f"buffer_store_dwordx4 {vr(d+4*hh,4)}, v3, {S4(RA)}, s55 offen sc1")
        else:
            a.I(f"s_add_u32 s55, s54, {VF}")
            for u in range(2):
                a.I(f"buffer_store_dwordx4 {vr(d+4*u,4)}, v4, {S4(RA)}, s55 offen offset:{u*512} sc1")
    a.I("s_nop 1")
    for s in range(3):
        for q in range(4):
            r = B1 + (s*4+q)*2
            d = ACC + s*16 + q*4
            a.I(f"v_lshlrev_b32 v{d}, 16, v{r}")
            a.I(f"v_and_b32 v{d+1}, 0xffff0000, v{r}")
            a.I(f"v_lshlrev_b32 v{d+2}, 16, v{r+1}")
            a.I(f"v_and_b32 v{d+3}, 0xffff0000, v{r+1}")
    stage_loop("f", False)
    a.I("s_barrier")
    stamp(a, "floop")
    a.I("s_barrier")
    srd_off(a, RA, S_WS, HF, HF_SIZE)
    a.I(f"s_lshl_b32 s54, s{S_RB}, 1")
    a.I("s_add_u32 s54, s54, s64")
    a.I(f"s_add_u32 s55, s{S_START}, s63")
    a.I("s_lshl_b32 s55, s55, 7")
    a.I("s_add_u32 s54, s54, s55")
    a.I("s_lshl_b32 s54, s54, 10")
    a.I("v_lshlrev_b32 v3, 4, v1")
    a.I("s_nop 4")
    for s in range(3):
        d = ACC + 16*s
        for i in range(16):
            a.I(f"v_max_f32 v{d+i}, 0, v{d+i}")
        for i in range(16):
            a.I(f"v_mul_f32 v{d+i}, v{d+i}, v{d+i}")
        for j in range(8):
            a.I(f"v_cvt_pk_bf16_f32 v{d+j}, v{d+2*j}, v{d+2*j+1}")
        for uu in range(2):
            a.I(f"s_add_u32 s55, s54, {(4*s+uu)*65536}")
            a.I(f"buffer_store_dwordx4 {vr(d+4*uu,4)}, v3, {S4(RA)}, s55 offen sc1")
    a.I("s_nop 1")
    a.I("s_branch L_attn")

def aux_side_issue(a):
    a.I("s_sub_u32 s66, s67, 4")
    a.I(f"s_lshl_b32 s54, s2, 2")
    a.I("s_or_b32 s54, s54, s66")
    a.I("s_cmp_lg_u32 s54, 0")
    a.I("s_cbranch_scc1 L_aux1")
    srd(a, RD, S_DBG, 256)
    a.I("s_memrealtime s[54:55]")
    a.I("s_waitcnt lgkmcnt(0)")
    a.I("s_or_b32 s85, s54, 1")
    a.I("v_mov_b32 v8, s85")
    a.I("v_mov_b32 v10, 0")
    a.I("s_mov_b64 exec, 1")
    a.I(f"buffer_store_dword v8, v10, {S4(RD)}, 0 offen sc1")
    a.I("s_mov_b64 exec, -1")
    a.L("L_aux1")
    a.I(f"s_lshl_b32 s54, s{S_RB}, 6")
    a.I(f"s_lshl_b32 s55, s{S_CG}, 3")
    a.I("s_add_u32 s54, s54, s55")
    a.I("s_lshl_b32 s55, s66, 1")
    a.I("s_add_u32 s86, s54, s55")
    return 0

def aux_side_loads(a):
    a.I("s_lshl_b32 s54, s86, 10")
    srd_off(a, RD, S_AX, "s54", 2048)
    a.I("v_and_b32 v2, 31, v1")
    a.I("v_lshlrev_b32 v2, 5, v2")
    a.I("v_lshrrev_b32 v3, 5, v1")
    a.I("v_lshl_add_u32 v4, v3, 10, v2")
    for i in range(2):
        a.I(f"buffer_load_dwordx4 {vr(32+4*i,4)}, v4, {S4(RD)}, 0 offen offset:{16*i}")
    srd(a, RD, S_GW, 1024)
    for i in range(2):
        a.I(f"buffer_load_dwordx4 {vr(40+4*i,4)}, v2, {S4(RD)}, 0 offen offset:{16*i}")
    n = 4
    if OPT.get("codepf", 1):
        a.I("s_getpc_b64 s[52:53]")
        a.L("L_pc")
        a.I(f"s_sub_u32 s52, s52, L_pc-{KN}")
        a.I("s_subb_u32 s53, s53, 0")
        a.I("s_lshl_b32 s54, s66, 13")
        a.I("v_lshlrev_b32 v5, 7, v1")
        a.I("v_add_u32 v5, s54, v5")
        a.I(f"v_min_u32 v5, L_code_end-{KN}-4, v5")
        a.I("global_load_dword v116, v5, s[52:53]")
        n += 1
    return n

def aux_nonce_issue(a):
    srd(a, RD, S_DBG, 256)
    a.I("v_mov_b32 v10, 0")
    a.I(f"buffer_load_dword v8, v10, {S4(RD)}, 0 offen sc1")
    return 1

def aux_nonce_take(a):
    a.I(f"v_readfirstlane_b32 s{S_NONCE}, v8")
    a.I("s_cmp_lg_u32 s66, 0")
    a.I("s_cbranch_scc1 L_nonce_ok")
    a.I("s_mov_b32 s50, 0x40000")
    a.L("L_nonce")
    a.I(f"s_cmp_lg_u32 s{S_NONCE}, 0")
    a.I("s_cbranch_scc1 L_nonce_ok")
    a.I("s_sub_u32 s50, s50, 1")
    a.I("s_cmp_eq_u32 s50, 0")
    a.I("s_cbranch_scc1 L_nonce_ok")
    srd(a, RD, S_DBG, 256)
    a.I(f"buffer_load_dword v8, v10, {S4(RD)}, 0 offen sc1")
    a.I("s_waitcnt vmcnt(0)")
    a.I(f"v_readfirstlane_b32 s{S_NONCE}, v8")
    a.I("s_branch L_nonce")
    a.L("L_nonce_ok")

def aux_gate(a):
    if OPT.get("p1noprod"): a.I("s_waitcnt vmcnt(0)")
    a.I("v_mov_b32 v24, 0")
    for i in range(8):
        a.I(f"v_dot2c_f32_bf16 v24, v{32+i}, v{40+i}")
    a.I("s_nop 3")
    for sh in (1, 2, 4, 8):
        a.I(f"v_add_f32_dpp v24, v24, v24 row_shr:{sh} row_mask:0xf bank_mask:0xf")
        a.I("s_nop 1")
    a.I("v_add_f32_dpp v24, v24, v24 row_bcast:15 row_mask:0xa bank_mask:0xf")
    a.I("s_nop 1")
    a.I("v_cvt_pk_bf16_f32 v24, v24, v24")
    a.I("v_and_b32 v24, 0xffff0000, v24")
    a.I(f"v_mul_f32 v24, {hex(f2u(-1.4426950408889634))}, v24")
    a.I("v_exp_f32 v24, v24")
    a.I("s_nop 0")
    a.I("v_add_f32 v24, 1.0, v24")
    a.I("v_rcp_f32 v24, v24")
    a.I("s_nop 0")
    a.I("v_cvt_pk_bf16_f32 v24, v24, v24")
    a.I("v_and_b32 v24, 0xffff0000, v24")
    srd_off(a, RD, S_WS, GO, 8192)
    a.I("s_lshl_b32 s54, s86, 2")
    a.I("v_lshrrev_b32 v3, 5, v1")
    a.I("v_lshlrev_b32 v3, 2, v3")
    a.I("s_mov_b32 s52, 0x80000000")
    a.I("s_mov_b32 s53, 0x80000000")
    a.I("s_mov_b64 exec, s[52:53]")
    a.I(f"buffer_store_dword v24, v3, {S4(RD)}, s54 offen sc1")
    a.I("s_mov_b64 exec, -1")

def aux_publish_fa(a):
    a.I("s_cmp_lg_u32 s66, 0")
    a.I("s_cbranch_scc1 L_aux2")
    srd_off(a, RD, S_WS, FLG, FLG_SIZE)
    a.I(f"s_lshl_b32 s54, s{S_CG}, 7")
    a.I(f"s_lshl_b32 s55, s{S_RB}, 2")
    a.I("s_add_u32 s54, s54, s55")
    a.I(f"s_add_u32 s54, s54, {FA_OFF}")
    a.I(f"v_mov_b32 v8, s{S_NONCE}")
    a.I(f"v_mov_b32 v10, 0")
    a.I("s_mov_b64 exec, 1")
    a.I(f"buffer_store_dword v8, v10, {S4(RD)}, s54 offen sc1")
    a.I("s_mov_b64 exec, -1")
    stamp(a, "FApub")
    a.L("L_aux2")

def aux_after_e1(a):
    a.I("s_mov_b32 s67, s66")
    a.I("s_cmp_lg_u32 s67, 1")
    a.I("s_cbranch_scc1 L_aux3")
    a.I(f"v_lshlrev_b32 v10, 2, v1")
    a.I(f"v_add_u32 v10, {L_MISC}, v10")
    a.I("v_mov_b32 v8, 0")
    a.I("ds_write_b32 v10, v8")
    a.I("s_waitcnt lgkmcnt(0)")
    a.L("L_aux3")
    a.I("s_barrier")
    a.I("s_setprio 3")
    stamp(a, "E2")
    srd_off(a, RC, S_WS, FLG, FLG_SIZE)
    a.I("s_cmp_lg_u32 s67, 0")
    a.I("s_cbranch_scc1 L_aux4")
    a.I(f"v_mov_b32 v8, {L_MISC + 128}")
    a.I(f"v_mov_b32 v9, s{S_NONCE}")
    a.I("ds_write_b32 v8, v9")
    a.I(f"s_lshr_b32 s54, s{S_HD}, 2")
    a.I("s_lshl_b32 s54, s54, 7")
    a.I(f"s_add_u32 s54, s54, {FA_OFF}")
    a.I("v_lshlrev_b32 v8, 2, v1")
    poll(a, RC, 32, 8, 9, "s54")
    lds_add1(a, M_FA, 8, 9)
    a.I("s_branch L_aux5")
    a.L("L_aux4")
    lds_spin(a, M_FA, 1, 8, 9)
    a.L("L_aux5")
    stamp(a, "FAok")
    VL = 4
    a.I(f"v_lshlrev_b32 v{VL}, 4, v1")
    a.I(f"s_lshl_b32 s54, s{S_HD}, 16")
    a.I(f"s_add_u32 s55, s54, {KF}")
    srd_off(a, RA, S_WS, "s55", 65536)
    a.I(f"s_add_u32 s55, s54, {VF}")
    srd_off(a, RB, S_WS, "s55", 65536)
    a.I(f"s_add_u32 s55, s54, {QF}")
    srd_off(a, RD, S_WS, "s55", 65536)
    a.I(f"s_lshl_b32 s54, s{S_QB}, 3")
    a.I("s_lshl_b32 s55, s67, 1")
    a.I("s_add_u32 s54, s54, s55")
    a.I("s_lshl_b32 s54, s54, 10")
    a.I("s_lshl_b32 s55, s67, 11")
    a.I(f"s_add_u32 s55, s55, {L_RING}")
    for t in range(2):
        a.I(f"s_add_u32 m0, s55, {t*1024}")
        a.I(f"s_add_u32 s56, s54, {t*1024}")
        a.I(f"buffer_load_dwordx4 v{VL}, {S4(RD)}, s56 offen sc1 lds")
    a.I("s_lshl_b32 s54, s67, 10")
    def kvchunks(cs):
        for c in cs:
            a.I(f"s_add_u32 s55, s54, {c*4096}")
            a.I("s_mov_b32 m0, s55")
            a.I(f"s_add_u32 s56, s55, {L_V}")
            a.I(f"buffer_load_dwordx4 v{VL}, {S4(RA)}, s55 offen sc1 lds")
            a.I("s_mov_b32 m0, s56")
            a.I("s_nop 0")
            a.I(f"buffer_load_dwordx4 v{VL}, {S4(RB)}, s55 offen sc1 lds")
    kvchunks(range(0, 4))
    a.I("s_waitcnt vmcnt(0)")
    lds_add1(a, M_KV, 8, 9)
    stamp(a, "KV1")
    kvchunks(range(4, 16))
    a.I("s_lshr_b32 s53, s2, 3")
    srd(a, RA, S_W2, 1376*1024)
    srd(a, RB, S_WO, 512*1024)
    a.I("s_mul_i32 s54, s53, 44032")
    a.I("s_lshl_b32 s55, s67, 10")
    a.I("s_add_u32 s54, s54, s55")
    a.I("s_waitcnt vmcnt(0)")
    lds_add1(a, M_KV, 8, 9)
    stamp(a, "KV2")
    a.I("v_lshlrev_b32 v10, 7, v1")
    a.I("s_lshl_b32 s55, s67, 13")
    a.I("s_mul_i32 s54, s53, 44032")
    a.I("s_add_u32 s54, s54, s55")
    a.I(f"buffer_load_dword v40, v10, {S4(RA)}, s54 offen")
    a.I("s_add_u32 s54, s54, 32768")
    a.I(f"buffer_load_dword v41, v10, {S4(RA)}, s54 offen")
    a.I("s_lshl_b32 s54, s53, 14")
    a.I("s_lshl_b32 s55, s67, 12")
    a.I("s_add_u32 s54, s54, s55")
    a.I("s_mov_b32 exec_hi, 0")
    a.I(f"buffer_load_dword v42, v10, {S4(RB)}, s54 offen")
    a.I("s_mov_b64 exec, -1")

def ffn2_p3(a):
    WF, HR, ACC2, BPR = 24, 40, 104, 8
    VH, VW, VA0, VA1 = 2, 3, 4, 5
    a.I("s_cmp_lg_u32 s67, 0")
    a.I("s_cbranch_scc1 L_f1")
    lds_spin(a, M_HST, 4, 8, 9, OPT.get('fslp', 1))
    lds_spin(a, M_KV, 8, 8, 9)
    a.I(f"s_lshl_b32 s54, s{S_RB}, 7")
    a.I(f"s_lshl_b32 s55, s{S_CG}, 2")
    a.I("s_add_u32 s54, s54, s55")
    a.I(f"s_add_u32 s54, s54, {FH_OFF}")
    flag_store(a, "s54", 8, 10)
    a.I(f"s_lshl_b32 s54, s{S_HD}, 7")
    a.I(f"s_add_u32 s54, s54, {FH_OFF}")
    a.I("v_lshlrev_b32 v8, 2, v1")
    poll(a, RC, 8, 8, 9, "s54")
    lds_add1(a, M_H, 8, 9)
    a.I("s_branch L_f2")
    a.L("L_f1")
    lds_spin(a, M_H, 1, 8, 9, OPT.get('fslp', 1))
    a.L("L_f2")
    lds_spin(a, M_QRD, 8, 8, 9, OPT.get('fslp', 1))
    stamp(a, "hready")
    srd(a, RA, S_W2, 1376*1024)
    srd_off(a, RB, S_WS, HF, HF_SIZE)
    a.I(f"v_lshlrev_b32 v{VH}, 4, v1")
    dma_w_lane_off(a, VW, 1, 8, 9, 1024)
    a.I(f"s_lshl_b32 s54, s{S_QB}, 7")
    a.I(f"v_add_u32 v{VW}, s54, v{VW}")
    tr_lane_addr(a, VA0, 1, 8, 9, 4, 128)
    a.I("s_mul_i32 s68, s67, 6144")
    a.I(f"s_add_u32 s68, s68, {L_RING}")
    a.I(f"v_add_u32 v{VA0}, s68, v{VA0}")
    a.I(f"v_xor_b32 v{VA1}, 64, v{VA0}")
    a.I("s_mul_i32 s54, s67, 24")
    a.I("s_lshl_b32 s70, s54, 14")
    a.I("s_lshl_b32 s71, s54, 16")
    a.I(f"s_lshl_b32 s55, s{S_HD}, 11")
    a.I("s_add_u32 s71, s71, s55")
    for i in range(64):
        a.I(f"v_mov_b32 v{ACC2+i}, 0")
    a.I("s_waitcnt vmcnt(0)")
    def fissue(slot):
        return [f"s_add_u32 m0, s68, {slot*2048}",
                f"s_add_u32 s69, s70, 8192",
                f"buffer_load_dwordx4 v{VW}, {S4(RA)}, s70 offen lds",
                f"s_add_u32 m0, s68, {slot*2048+1024}",
                f"s_add_u32 s70, s70, 16384",
                f"buffer_load_dwordx4 v{VW}, {S4(RA)}, s69 offen lds",
                f"buffer_load_dwordx4 {vr(HR+slot*8,4)}, v{VH}, {S4(RB)}, s71 offen sc1",
                f"buffer_load_dwordx4 {vr(HR+slot*8+4,4)}, v{VH}, {S4(RB)}, s71 offen offset:1024 sc1",
                f"s_add_u32 s71, s71, 65536"]
    def trr(F, off):
        out = []
        for ct, va in ((0, VA0), (1, VA1)):
            for rd in range(2):
                out.append(f"ds_read_b64_tr_b16 {vr(F+4*ct+2*rd,2)}, v{va} offset:{off + rd*1024}")
        return out
    for slot in range(3):
        a.I(J(fissue(slot)))
    a.I("s_cmp_eq_u32 s67, 3")
    a.I("s_cselect_b32 s72, 5, 8")
    a.I(f"s_setprio {OPT.get('ffnprio', 1)}")
    if OPT.get("noffn"): a.I("s_branch L_fskip")
    a.L("L_floop")
    for slot in range(3):
        a.I("s_waitcnt vmcnt(8)")
        a.I(J(trr(WF, slot*2048)))
        a.I("s_waitcnt lgkmcnt(0)")
        fi = fissue(slot)
        mf = lambda ct, rt: MF(ACC2 + (ct*2+rt)*16, WF+4*ct, HR+slot*8+4*rt, ACC2 + (ct*2+rt)*16)
        if OPT.get("fspread", 1):
            a.I(mf(0, 0)); a.I(J(fi[0:3]))
            a.I(mf(1, 0)); a.I(J(fi[3:6]))
            a.I(mf(0, 1)); a.I(fi[6])
            a.I(mf(1, 1)); a.I(J(fi[7:]))
        else:
            for ct in range(2):
                for rt in range(2):
                    a.I(mf(ct, rt))
            a.I(J(fi))
    a.I("s_sub_u32 s72, s72, 1")
    a.I("s_cmp_lg_u32 s72, 0")
    a.I("s_cbranch_scc1 L_floop")
    a.L("L_fskip")
    a.I("s_setprio 3")
    a.I("s_waitcnt vmcnt(0)")
    lds_add1(a, M_FFN, 8, 9)
    stamp(a, "ffn2")
    srd_off(a, RA, S_WS, GO, 8192)
    srd(a, RB, S_B2, 1024)
    a.I("s_and_b32 s73, s67, 1")
    a.I("s_lshr_b32 s74, s67, 1")
    a.I(f"s_lshl_b32 s75, s{S_HD}, 6")
    a.I("s_lshl_b32 s54, s73, 5")
    a.I("s_add_u32 s75, s75, s54")
    a.I("s_lshl_b32 s54, s75, 2")
    a.I("v_and_b32 v8, 31, v1")
    a.I("v_lshlrev_b32 v8, 2, v8")
    a.I(f"buffer_load_dword v40, v8, {S4(RA)}, s54 offen sc1")
    a.I(f"s_lshl_b32 s54, s{S_QB}, 6")
    a.I("s_lshl_b32 s55, s74, 5")
    a.I("s_add_u32 s54, s54, s55")
    a.I("s_lshl_b32 s54, s54, 1")
    a.I("v_lshrrev_b32 v8, 5, v1")
    a.I("v_lshlrev_b32 v8, 3, v8")
    for q in range(4):
        a.I(f"buffer_load_dwordx2 v[{42+2*q}:{43+2*q}], v8, {S4(RB)}, s54 offen offset:{q*16}")
    lds_spin(a, M_ATT, 4, 8, 9, OPT.get('attslp', 1))
    stamp(a, "attdone")
    srd(a, RA, S_WO, 512*1024)
    a.I("s_lshl_b32 s68, s67, 14")
    a.I("s_lshl_b32 s70, s67, 17")
    for ks in range(8):
        for n in range(2):
            a.I(f"s_add_u32 m0, s68, {ks*2048+n*1024}")
            a.I(f"s_add_u32 s69, s70, {ks*16384+n*8192}")
            a.I(f"buffer_load_dwordx4 v{VW}, {S4(RA)}, s69 offen lds")
    a.I(f"s_add_u32 s54, s68, {L_V}")
    a.I(f"v_add_u32 v8, s54, v{VH}")
    for i in range(16):
        a.I(f"ds_write_b128 v8, {vr(ACC2+4*i,4)} offset:{i*1024}")
    a.I("s_waitcnt lgkmcnt(0)")
    lds_add1(a, M_T1, 9, 10)
    lds_spin(a, M_T1, 4, 9, 10)
    a.I("s_lshl_b32 s54, s67, 12")
    a.I(f"s_add_u32 s54, s54, {L_V}")
    a.I(f"v_add_u32 v8, s54, v{VH}")
    for p in range(4):
        for q in range(4):
            a.I(f"ds_read_b128 {vr(ACC2+p*16+q*4,4)}, v8 offset:{p*16384+q*1024}")
    a.I("s_waitcnt lgkmcnt(0)")
    for i in range(16):
        a.I(f"v_add_f32 v{ACC2+i}, v{ACC2+i}, v{ACC2+16+i}")
        a.I(f"v_add_f32 v{ACC2+32+i}, v{ACC2+32+i}, v{ACC2+48+i}")
    for i in range(16):
        a.I(f"v_add_f32 v{ACC2+i}, v{ACC2+i}, v{ACC2+32+i}")
    a.I("s_waitcnt vmcnt(0)")
    a.I("v_sub_f32 v41, 1.0, v40")
    a.I("v_cvt_pk_bf16_f32 v41, v41, v41")
    a.I("v_and_b32 v41, 0xffff0000, v41")
    for q in range(4):
        a.I(f"v_lshlrev_b32 v52, 16, v{42+2*q}")
        a.I(f"v_and_b32 v53, 0xffff0000, v{42+2*q}")
        a.I(f"v_lshlrev_b32 v54, 16, v{43+2*q}")
        a.I(f"v_and_b32 v55, 0xffff0000, v{43+2*q}")
        for j in range(4):
            a.I(f"v_add_f32 v{BPR+4*q+j}, v{ACC2+4*q+j}, v{52+j}")
        for j in range(4):
            a.I(f"v_mul_f32 v{BPR+4*q+j}, v{BPR+4*q+j}, v41")
    a.I("v_mov_b32 v39, v40")
    a.I("s_cmp_lg_u32 s67, 0")
    a.I("s_cbranch_scc1 L_f4")
    a.I(f"s_lshl_b32 s54, s{S_HD}, 8")
    a.I(f"s_add_u32 s54, s54, {FO_OFF}")
    a.I("v_lshlrev_b32 v40, 2, v1")
    poll(a, RC, 64, 40, 41, "s54")
    a.L("L_f4")
    a.I("s_barrier")
    stamp(a, "T2")
    srd_off(a, RB, S_WS, OF, 2*MB)
    a.I(f"s_lshl_b32 s54, s{S_HD}, 16")
    a.I("s_lshl_b32 s55, s67, 12")
    a.I("s_add_u32 s54, s54, s55")
    a.I(f"s_add_u32 s55, s55, {L_V}")
    for half in range(2):
        for rt in range(2):
            for hh in range(4):
                off = rt*32768 + half*16384 + hh*1024
                a.I(f"s_add_u32 m0, s55, {off}")
                a.I(f"s_add_u32 s56, s54, {off}")
                a.I(f"buffer_load_dwordx4 v{VH}, {S4(RB)}, s56 offen sc1 lds")
    tr_lane_addr(a, VA0, 1, 32, 33, 4, 128)
    a.I("s_lshl_b32 s54, s74, 6")
    a.I(f"v_xor_b32 v{VA0}, s54, v{VA0}")
    a.I("s_lshl_b32 s54, s73, 15")
    a.I(f"s_add_u32 s54, s54, {L_V}")
    a.I(f"v_add_u32 v{VA1}, s54, v{VH}")
    FR = 40
    def p3reads(ks):
        F = FR + (ks % 8) * 8
        return [f"ds_read_b64_tr_b16 {vr(F,2)}, v{VA0} offset:{ks*2048}",
                f"ds_read_b64_tr_b16 {vr(F+2,2)}, v{VA0} offset:{ks*2048+1024}",
                f"ds_read_b128 {vr(F+4,4)}, v{VA1} offset:{ks*1024}"]
    for half in range(2):
        a.I(f"s_waitcnt vmcnt({8 if half == 0 else 0})")
        a.I("s_barrier")
        k0 = half*16
        for ks in range(k0, k0+4):
            a.I(J(p3reads(ks)))
        for ks in range(k0, k0+16):
            nxt = ks + 4
            if nxt < k0 + 16:
                a.I(J(p3reads(nxt)))
                a.I("s_waitcnt lgkmcnt(12)")
            else:
                a.I(f"s_waitcnt lgkmcnt({3*(k0+15-ks)})")
            F = FR + (ks % 8) * 8
            a.I(MF(ACC2, F, F+4, ACC2 if ks else None))
    a.I("s_nop 15")
    stamp(a, "p3mm")
    for i in range(16):
        a.I(f"v_fma_f32 v{ACC2+i}, v{ACC2+i}, v39, v{BPR+i}")
    for j in range(8):
        a.I(f"v_cvt_pk_bf16_f32 v{ACC2+j}, v{ACC2+2*j}, v{ACC2+2*j+1}")
    a.I("s_nop 1")
    a.I(f"v_permlane32_swap_b32 v{ACC2}, v{ACC2+2}")
    a.I(f"v_permlane32_swap_b32 v{ACC2+1}, v{ACC2+3}")
    a.I(f"v_permlane32_swap_b32 v{ACC2+4}, v{ACC2+6}")
    a.I(f"v_permlane32_swap_b32 v{ACC2+5}, v{ACC2+7}")
    srd(a, RA, S_OUT, 2*MB)
    a.I("s_lshl_b32 s54, s75, 10")
    a.I(f"s_lshl_b32 s55, s{S_QB}, 7")
    a.I("s_add_u32 s54, s54, s55")
    a.I("s_lshl_b32 s55, s74, 6")
    a.I("s_add_u32 s54, s54, s55")
    a.I("v_and_b32 v32, 31, v1")
    a.I("v_lshlrev_b32 v32, 10, v32")
    a.I("v_lshrrev_b32 v33, 5, v1")
    a.I("v_lshl_add_u32 v32, v33, 4, v32")
    a.I(f"buffer_store_dwordx4 {vr(ACC2,4)}, v32, {S4(RA)}, s54 offen")
    a.I(f"buffer_store_dwordx4 {vr(ACC2+4,4)}, v32, {S4(RA)}, s54 offen offset:32")
    stamp_flush(a)
    a.I("s_endpgm")

def attention(a):
    a.L("L_attn")
    stamp(a, "attn0")
    QA, QB = 8, 12
    KB = [16, 20]; VB = [24, 32]
    S0, S1, OA, OB = 40, 56, 72, 88
    VK, VV, VL = 2, 3, 4
    T0, T1, T2 = 104, 105, 106
    VKN, VVN, VVB, VCH, VONE, VNX = 107, 108, 109, 110, 111, 5
    a.I(f"s_and_b32 s63, s{S_W}, 3")
    a.I(f"s_lshr_b32 s64, s{S_W}, 2")
    a.I(f"v_lshlrev_b32 v{VL}, 4, v1")
    a.I(f"v_lshrrev_b32 v{T0}, 5, v1")
    a.I(f"v_and_b32 v{T1}, 15, v1")
    a.I(f"v_lshlrev_b32 v{T1}, 4, v{T1}")
    a.I(f"v_lshl_add_u32 v{VVB}, v{T0}, 8, v{T1}")
    a.I(f"v_add_u32 v{VVB}, {L_V}, v{VVB}")
    a.I("s_lshl_b32 s54, s64, 12")
    a.I(f"v_add_u32 v{VK}, s54, v{VL}")
    a.I(f"v_add_u32 v{VV}, s54, v{VVB}")
    a.I("s_lshl_b32 s54, s63, 2")
    a.I(f"s_add_u32 s54, s54, {M_CH}")
    a.I(f"v_mov_b32 v{VCH}, s54")
    a.I(f"v_mov_b32 v{VONE}, 1")
    a.I("s_mov_b32 s74, 0x0000ffff")
    a.I("s_mov_b32 s75, 0x0000ffff")
    a.I("s_mov_b32 s77, 0")
    a.I(f"s_lshl_b32 s66, s{S_QB}, 3")
    a.I("s_lshl_b32 s54, s63, 1")
    a.I("s_add_u32 s66, s66, s54")
    a.I("s_lshl_b32 s54, s63, 11")
    a.I(f"s_add_u32 s54, s54, {L_RING}")
    a.I(f"v_add_u32 v{T2}, s54, v{VL}")
    a.I(f"v_and_b32 v{T0}, 31, v1")
    a.I(f"v_cmp_eq_u32 vcc, 16, v{T0}")
    a.I(f"v_mov_b32 v{T1}, 0x3f803f80")
    a.I("s_nop 1")
    a.I(f"v_cndmask_b32 v{T0}, 0, v{T1}, vcc")
    for i in range(16):
        a.I(f"v_mov_b32 v{VB[0]+i}, v{T0}")
    lds_spin(a, M_KV, 4, T0, T1)
    stamp(a, "kvok")
    a.I(f"ds_read_b128 {vr(QA,4)}, v{T2}")
    a.I(f"ds_read_b128 {vr(QB,4)}, v{T2} offset:1024")
    for i in range(16):
        a.I(f"v_mov_b32 v{OA+i}, 0")
        a.I(f"v_mov_b32 v{OB+i}, 0")
    a.I("s_waitcnt lgkmcnt(0)")
    lds_add1(a, M_QRD, T0, T1)
    a.I("s_lshl_b32 s71, s64, 12")
    if STAMPS and OPT.get("fineattn"): a.I("s_mov_b32 s87, 24")
    a.I("s_mov_b32 s73, 0")

    def e_(S, i): return f"v_exp_f32 v{S+i}, v{S+i}"
    def c_(S, j): return f"v_cvt_pk_bf16_f32 v{S+j}, v{S+2*j}, v{S+2*j+1}"
    def tile(Sin, Sout, Qn, Kn, Ocur, Vcur_u0, Oprev, Vprev_u1, after_pv2, wait_s, after_s, wait_pv1, do_pv2=True, do_s=True):
        e = lambda i: e_(Sin, i)
        c = lambda j: c_(Sin, j)
        L = [e(0), e(1)]
        if do_pv2: L.append(MF(Oprev, Vprev_u1, Sout+4, Oprev))
        L += after_pv2
        L += [e(2), e(3), c(0), e(4), e(5), c(1)]
        L += wait_s
        if do_s: L.append(MF(Sout, Kn, Qn))
        L += after_s
        L += [e(6), e(7), c(2), e(8), e(9), c(3), e(10), e(11)]
        L += wait_pv1
        L.append(MF(Ocur, Vcur_u0, Sin, Ocur))
        L += [c(4), e(12), e(13), c(5), e(14), e(15), c(6), c(7)]
        return L
    fifo = []
    def dsr(tag, txt): fifo.append(tag); return txt
    def need(tag):
        idx = max(i for i, t in enumerate(fifo) if t == tag)
        return [f"s_waitcnt lgkmcnt({len(fifo) - 1 - idx})"]
    def vreads(t):
        kap = t & 1
        return ["s_mov_b64 exec, s[74:75]",
                dsr(("V", t), f"ds_read_b128 {vr(VB[kap],4)}, v{VV} offset:{t*1024}"),
                dsr(("V", t), f"ds_read_b128 {vr(VB[kap]+4,4)}, v{VV} offset:{t*1024+512}"),
                "s_mov_b64 exec, -1"]
    def kread(t): return [dsr(("K", t), f"ds_read_b128 {vr(KB[t & 1],4)}, v{VK} offset:{t*1024}")]
    a.raw(".p2align 6")
    a.L("L_aloop")
    if OPT.get("fineattn"):
        OPT["fine"] = 1; stamp_dyn(a); OPT["fine"] = 0
    a.I(f"v_add_u32 v{VK}, s71, v{VL}")
    a.I(f"v_add_u32 v{VV}, s71, v{VVB}")
    L = kread(0) + vreads(0) + kread(1)
    L += need(("K", 0))
    L.append(MF(S0, KB[0], QA))
    a.I(J(L))
    a.I("s_nop 7")
    a.I("s_nop 3")
    body = []
    for t in range(4):
        kap = t & 1
        A = []
        Sin, Sout = S0, S1
        A += [e_(Sin, 0), e_(Sin, 1)]
        if t > 0: A.append(MF(OB, VB[kap^1]+4, Sout+4, OB))
        if t + 1 < 4: A += vreads(t+1)
        A += [e_(Sin, 2), e_(Sin, 3), c_(Sin, 0), e_(Sin, 4), e_(Sin, 5), c_(Sin, 1)]
        A.append(MF(Sout, KB[kap], QB))
        if t + 2 < 4: A += kread(t+2)
        A += [e_(Sin, 6), e_(Sin, 7), c_(Sin, 2), e_(Sin, 8), e_(Sin, 9), c_(Sin, 3), e_(Sin, 10), e_(Sin, 11)]
        A += need(("V", t))
        A.append(MF(OA, VB[kap], Sin, OA))
        A += [c_(Sin, 4), e_(Sin, 12), e_(Sin, 13), c_(Sin, 5), e_(Sin, 14), e_(Sin, 15), c_(Sin, 6), c_(Sin, 7)]
        Sin, Sout = S1, S0
        B = [e_(Sin, 0), e_(Sin, 1), MF(OA, VB[kap]+4, Sout+4, OA)]
        if t == 3:
            B += ["s_mov_b64 exec, 1", dsr(("G",), f"ds_add_rtn_u32 v{VNX}, v{VCH}, v{VONE}"), "s_mov_b64 exec, -1"]
        B += [e_(Sin, 2), e_(Sin, 3), c_(Sin, 0), e_(Sin, 4), e_(Sin, 5), c_(Sin, 1)]
        if t + 1 < 4:
            B += need(("K", t+1))
            B.append(MF(Sout, KB[kap^1], QA))
        B += [e_(Sin, 6), e_(Sin, 7), c_(Sin, 2), e_(Sin, 8), e_(Sin, 9), c_(Sin, 3), e_(Sin, 10), e_(Sin, 11)]
        B.append(MF(OB, VB[kap], Sin, OB))
        B += [c_(Sin, 4), e_(Sin, 12), e_(Sin, 13), c_(Sin, 5), e_(Sin, 14), e_(Sin, 15), c_(Sin, 6), c_(Sin, 7)]
        body += A + B
    a.I(J(body))
    a.I("s_waitcnt lgkmcnt(0)")
    a.I(f"v_readfirstlane_b32 s70, v{VNX}")
    a.I(MF(OB, VB[1]+4, S1+4, OB))
    a.I("s_add_u32 s70, s70, 2")
    a.I("s_lshl_b32 s71, s70, 12")
    a.I("s_cmp_lg_u32 s73, 0")
    a.I("s_cbranch_scc1 L_aloop2")
    a.I("s_mov_b32 s73, 1")
    a.I("s_waitcnt vmcnt(0)")
    a.I(f"s_cmp_ge_u32 s{S_W}, 4")
    a.I("s_cbranch_scc1 L_aloop1")
    lds_add1(a, M_HST, T0, T1)
    a.L("L_aloop1")
    lds_spin(a, M_KV, 8, T0, T1)
    a.L("L_aloop2")
    a.I("s_cmp_lt_u32 s70, 16")
    a.I("s_cbranch_scc1 L_aloop")
    a.I("s_waitcnt lgkmcnt(0)")
    a.I("s_nop 7")
    stamp(a, "aloop")
    a.I("s_lshl_b32 s54, s63, 2")
    a.I(f"s_add_u32 s55, s54, {M_PAIR}")
    a.I(f"s_add_u32 s76, s54, {M_PFLAG}")
    a.I(f"v_mov_b32 v{T0}, s55")
    a.I(f"v_mov_b32 v{T1}, 1")
    a.I("s_mov_b64 exec, 1")
    a.I(f"ds_add_rtn_u32 v{T2}, v{T0}, v{T1}")
    a.I("s_mov_b64 exec, -1")
    a.I("s_mul_i32 s54, s63, 4608")
    a.I(f"s_add_u32 s54, s54, {L_XCH}")
    a.I(f"v_add_u32 v{S0}, s54, v{VL}")
    a.I(f"v_lshlrev_b32 v{S0+1}, 2, v1")
    a.I(f"v_add_u32 v{S0+1}, s54, v{S0+1}")
    a.I("s_waitcnt lgkmcnt(0)")
    a.I(f"v_readfirstlane_b32 s55, v{T2}")
    a.I("s_nop 4")
    a.I("s_cmp_lg_u32 s55, 0")
    a.I("s_cbranch_scc1 L_second")
    lds_spin(a, M_FFN, 4, T0, T1)
    a.I(f"ds_write_b128 v{S0}, {vr(OA,4)}")
    a.I(f"ds_write_b128 v{S0}, {vr(OA+4,4)} offset:1024")
    a.I(f"ds_write_b128 v{S0}, {vr(OB,4)} offset:2048")
    a.I(f"ds_write_b128 v{S0}, {vr(OB+4,4)} offset:3072")
    a.I(f"ds_write_b32 v{S0+1}, v{OA+8} offset:4096")
    a.I(f"ds_write_b32 v{S0+1}, v{OB+8} offset:4352")
    a.I("s_waitcnt lgkmcnt(0)")
    lds_add1(a, "s76", T0, T1)
    a.I("s_waitcnt lgkmcnt(0)")
    stamp_flush(a)
    a.I("s_endpgm")
    a.L("L_second")
    lds_spin(a, "s76", 1, T0, T1)
    a.I(f"ds_read_b128 {vr(S1,4)}, v{S0}")
    a.I(f"ds_read_b128 {vr(S1+4,4)}, v{S0} offset:1024")
    a.I(f"ds_read_b128 {vr(S1+8,4)}, v{S0} offset:2048")
    a.I(f"ds_read_b128 {vr(S1+12,4)}, v{S0} offset:3072")
    a.I(f"ds_read_b32 v{T0}, v{S0+1} offset:4096")
    a.I(f"ds_read_b32 v{T1}, v{S0+1} offset:4352")
    a.I(f"v_mov_b32 v{T2}, {L_MISC + 128}")
    a.I(f"ds_read_b32 v{T2}, v{T2}")
    a.I("s_waitcnt lgkmcnt(0)")
    a.I(f"v_readfirstlane_b32 s{S_NONCE}, v{T2}")
    for i in range(8):
        a.I(f"v_add_f32 v{OA+i}, v{OA+i}, v{S1+i}")
        a.I(f"v_add_f32 v{OB+i}, v{OB+i}, v{S1+8+i}")
    a.I(f"v_add_f32 v{OA+8}, v{OA+8}, v{T0}")
    a.I(f"v_add_f32 v{OB+8}, v{OB+8}, v{T1}")
    a.L("L_fin")
    for O in (OA, OB):
        a.I(f"v_mov_b32 v{O+9}, v{O+8}")
    a.I("s_nop 1")
    for O in (OA, OB):
        a.I(f"v_permlane32_swap_b32 v{O+9}, v{O+8}")
    a.I("s_nop 1")
    slow_check(a, OA, OB, T0, T1)
    lds_add1(a, M_ATT, T0, T1)
    for O in (OA, OB):
        a.I(f"v_rcp_f32 v{O+9}, v{O+9}")
    a.I("s_nop 0")
    for O in (OA, OB):
        for i in range(8):
            a.I(f"v_mul_f32 v{O+i}, v{O+i}, v{O+9}")
    for O in (OA, OB):
        for j in range(4):
            a.I(f"v_cvt_pk_bf16_f32 v{O+j}, v{O+2*j}, v{O+2*j+1}")
    srd_off(a, RA, S_WS, OF, 2*MB)
    srd_off(a, RC, S_WS, FLG, FLG_SIZE)
    a.I("s_lshl_b32 s54, s66, 5")
    a.I(f"s_add_u32 s54, s54, s{S_HD}")
    a.I("s_lshl_b32 s55, s54, 10")
    a.I(f"buffer_store_dwordx4 {vr(OA,4)}, v{VL}, {S4(RA)}, s55 offen sc1")
    a.I("s_add_u32 s55, s55, 32768")
    a.I(f"buffer_store_dwordx4 {vr(OB,4)}, v{VL}, {S4(RA)}, s55 offen sc1")
    a.I("s_lshl_b32 s54, s54, 2")
    a.I(f"s_add_u32 s54, s54, {FO_OFF}")
    a.I(f"v_mov_b32 v{T0}, s{S_NONCE}")
    a.I(f"v_lshlrev_b32 v{T1}, 7, v1")
    a.I("s_waitcnt vmcnt(0)")
    a.I("s_mov_b64 exec, 3")
    a.I(f"buffer_store_dword v{T0}, v{T1}, {S4(RC)}, s54 offen sc1")
    a.I("s_mov_b64 exec, -1")
    stamp_flush(a)
    a.I("s_endpgm")
    slow_path(a, QA, QB, KB, VB, S0, S1, OA, OB, VL, T0, T1, T2)

def slow_check(a, OA, OB, T0, T1):
    if OPT.get("noslow"): return
    a.I(f"v_mul_f32 v{T0}, 0, v{OA}")
    for i in range(1, 8):
        a.I(f"v_fma_f32 v{T0}, v{OA+i}, 0, v{T0}")
    for i in range(8):
        a.I(f"v_fma_f32 v{T0}, v{OB+i}, 0, v{T0}")
    a.I(f"v_cmp_eq_f32 s[78:79], 0, v{T0}")
    a.I(f"s_mov_b32 s80, {hex(f2u(2.0**-60))}")
    a.I(f"s_mov_b32 s81, {hex(f2u(2.0**60))}")
    for O in (OA, OB):
        a.I(f"v_cmp_le_f32 s[82:83], s80, v{O+9}")
        a.I(f"v_cmp_ge_f32 vcc, s81, v{O+9}")
        a.I("s_nop 1")
        a.I("s_and_b64 s[78:79], s[78:79], s[82:83]")
        a.I("s_and_b64 s[78:79], s[78:79], vcc")
    if OPT.get("forceslow"):
        a.I("s_mov_b64 s[78:79], 0")
    a.I("s_cmp_eq_u64 s[78:79], -1")
    a.I("s_cbranch_scc1 L_ok")
    a.I("s_cmp_eq_u32 s77, 0")
    a.I("s_cbranch_scc1 L_slow")
    a.L("L_ok")

def slow_path(a, QA, QB, KB, VB, S0, S1, OA, OB, VL, T0, T1, T2):
    if OPT.get("noslow"): return
    K, V0, M, C = KB[0], VB[0], 108, 112
    a.L("L_slow")
    a.I("s_mov_b32 s77, 1")
    a.I(f"v_lshrrev_b32 v{T0}, 5, v1")
    a.I(f"v_and_b32 v{T1}, 15, v1")
    a.I(f"v_lshlrev_b32 v{T1}, 4, v{T1}")
    a.I(f"v_lshl_add_u32 v{T2}, v{T0}, 8, v{T1}")
    a.I(f"v_add_u32 v{T2}, {L_V}, v{T2}")
    a.I(f"v_mov_b32 v{M}, 0xff800000")
    a.I(f"v_mov_b32 v{M+1}, 0xff800000")
    a.I(f"v_mov_b32 v{T0}, v{VL}")
    a.I("s_mov_b32 s73, 0")
    a.L("L_slow1")
    a.I(f"ds_read_b128 {vr(K,4)}, v{T0}")
    a.I("s_waitcnt lgkmcnt(0)")
    a.I(MF(S0, K, QA))
    a.I(MF(S1, K, QB))
    a.I("s_nop 15")
    for S, m in ((S0, M), (S1, M+1)):
        for i in range(0, 16, 2):
            a.I(f"v_max3_f32 v{m}, v{S+i}, v{S+i+1}, v{m}")
    a.I(f"v_add_u32 v{T0}, 1024, v{T0}")
    a.I("s_add_u32 s73, s73, 1")
    a.I("s_cmp_lt_u32 s73, 64")
    a.I("s_cbranch_scc1 L_slow1")
    for m in (M, M+1):
        a.I(f"v_mov_b32 v{T1}, v{m}")
        a.I("s_nop 1")
        a.I(f"v_permlane32_swap_b32 v{T1}, v{m}")
        a.I("s_nop 1")
        a.I(f"v_max_f32 v{m}, v{m}, v{T1}")
    for t in range(2):
        for i in range(16):
            a.I(f"v_sub_f32 v{C+16*t+i}, 0, v{M+t}")
    for i in range(16):
        a.I(f"v_mov_b32 v{OA+i}, 0")
        a.I(f"v_mov_b32 v{OB+i}, 0")
    a.I(f"v_mov_b32 v{T0}, v{VL}")
    a.I("s_mov_b32 s73, 0")
    a.L("L_slow2")
    a.I(f"ds_read_b128 {vr(K,4)}, v{T0}")
    a.I("s_mov_b64 exec, s[74:75]")
    a.I(f"ds_read_b128 {vr(V0,4)}, v{T2}")
    a.I(f"ds_read_b128 {vr(V0+4,4)}, v{T2} offset:512")
    a.I("s_mov_b64 exec, -1")
    a.I("s_waitcnt lgkmcnt(0)")
    a.I(MF(S0, K, QA, C))
    a.I(MF(S1, K, QB, C+16))
    a.I("s_nop 15")
    for S, O in ((S0, OA), (S1, OB)):
        for i in range(16):
            a.I(f"v_exp_f32 v{S+i}, v{S+i}")
        a.I("s_nop 0")
        for j in range(8):
            a.I(f"v_cvt_pk_bf16_f32 v{S+j}, v{S+2*j}, v{S+2*j+1}")
        a.I("s_nop 1")
        a.I(MF(O, V0, S, O))
        a.I(MF(O, V0+4, S+4, O))
    a.I(f"v_add_u32 v{T0}, 1024, v{T0}")
    a.I(f"v_add_u32 v{T2}, 1024, v{T2}")
    a.I("s_add_u32 s73, s73, 1")
    a.I("s_cmp_lt_u32 s73, 64")
    a.I("s_cbranch_scc1 L_slow2")
    a.I("s_nop 15")
    a.I("s_branch L_fin")

def gen():
    a = Asm()
    prologue(a)
    producer(a, False)
    consumer(a)
    a.L("L_aux")
    producer(a, True)
    ffn2_p3(a)
    attention(a)
    a.L("L_end")
    a.I("s_endpgm")
    a.L("L_code_end")
    a.I("s_endpgm")
    return a

HEADER = open("cdna_kernels/" + NAME + ".s.ref").read().split("; Override launch")[0]

def build(path):
    a = gen()
    out = HEADER + f"; WSLAYOUT QF={QF} KF={KF} VF={VF} HF={HF} GO={GO} OF={OF}\n"
    out += f"; @launch grid=(256,1,1) block=(768,1,1) lds={LDS_TOTAL}\n"
    out += '.amdgcn_target "amdgcn-amd-amdhsa--gfx950"\n.text\n' + a.text()
    out += f""".section .rodata,"a"
.p2align 6
.amdhsa_kernel {KN}
  .amdhsa_next_free_vgpr 168
  .amdhsa_next_free_sgpr 102
  .amdhsa_accum_offset 168
  .amdhsa_group_segment_fixed_size 0
  .amdhsa_kernarg_size 96
  .amdhsa_user_sgpr_count 2
  .amdhsa_user_sgpr_kernarg_segment_ptr 1
  .amdhsa_system_sgpr_workgroup_id_x 1
.end_amdhsa_kernel
"""
    open(path, "w").write(out)
    probs = check_linear(a.lines, "k")
    if STAMPS: print("stamps:", ",".join(_stamp_names))
    return probs

if __name__ == "__main__":
    for x in list(sys.argv[1:]):
        if x.startswith("-D"):
            k, _, v = x[2:].partition("=")
            OPT[k] = int(v) if v else 1
            sys.argv.remove(x)
    if "--stamps" in sys.argv:
        STAMPS = True; sys.argv.remove("--stamps")
    path = sys.argv[1] if len(sys.argv) > 1 else "cdna_kernels/" + NAME + ".s"
    probs = build(path)
    for p in probs: print("HAZARD:", p)
    print("written", path, "problems:", len(probs))
```

```python
import sys, struct
from asmlib import *

NAME = "gated_mix__mha_block__dense_activation_squared_relu__prompt"
KN = NAME + "_kernel"
MB = 1 << 20
QF, KF, VF, HF, GO, OF, FLG = 4096, 2*MB + 8192, 4*MB + 12288, 6*MB + 16384, 12*MB, 14*MB + 4096, 16*MB + 8192
HF_SIZE = 86 * 65536
FA_OFF, FH_OFF, FO_OFF = 0, 4096, 8192
FLG_SIZE = 16384
QSCALE = 0.25 * 1.4426950408889634
STAMP_OFF = 32*MB
STAMPS = False
OPT = {}
def f2u(x): return struct.unpack("<I", struct.pack("<f", x))[0]

S_AX, S_WQKV, S_WO, S_W1, S_B1, S_W2, S_B2, S_GW, S_OUT, S_DBG, S_WS = 4, 6, 8, 12, 14, 16, 18, 20, 22, 24, 26
S_W = 3
S_RB, S_CG, S_START = 29, 30, 31
RA, RB, RC, RD = 32, 36, 40, 44
S_NONCE, S_HD, S_QB = 60, 61, 62
L_K, L_V, L_RING, L_MISC = 0, 65536, 131072, 131072 + 24576
L_XCH = L_RING
M_KV, M_H, M_FA, M_QRD, M_HST, M_FFN, M_ATT, M_T1 = [L_MISC + 4*i for i in range(8)]
M_PAIR, M_PFLAG, M_CH = L_MISC + 64, L_MISC + 96, L_MISC + 160
LDS_TOTAL = 163840

def srd(a, dst, base, size):
    a.I(f"s_mov_b32 s{dst}, s{base}")
    a.I(f"s_mov_b32 s{dst+1}, s{base+1}")
    a.I(f"s_mov_b32 s{dst+2}, {size}")
    a.I(f"s_mov_b32 s{dst+3}, 0x20000")
def srd_off(a, dst, base, off, size):
    a.I(f"s_add_u32 s{dst}, s{base}, {off}")
    a.I(f"s_addc_u32 s{dst+1}, s{base+1}, 0")
    a.I(f"s_mov_b32 s{dst+2}, {size}")
    a.I(f"s_mov_b32 s{dst+3}, 0x20000")
def MF(d, A, B, c=None):
    cc = "0" if c is None else vr(c, 16)
    return f"v_mfma_f32_32x32x16_bf16 {vr(d,16)}, {vr(A,4)}, {vr(B,4)}, {cc}"
def S4(r): return f"s[{r}:{r+3}]"
def J(L): return "\n".join(L)

_stamp_names = []
def stamp(a, name):
    if not STAMPS: return
    if name not in _stamp_names: _stamp_names.append(name)
    i = _stamp_names.index(name)
    a.I("s_waitcnt lgkmcnt(0)")
    a.I("s_memtime s[98:99]")
    a.I("s_memrealtime s[100:101]")
    a.I("s_waitcnt lgkmcnt(0)")
    a.I(f"v_writelane_b32 v6, s98, {i}")
    a.I(f"v_writelane_b32 v7, s100, {i}")
def stamp_dyn(a):
    if not (STAMPS and OPT.get("fine")): return
    a.I("s_memtime s[98:99]")
    a.I("s_memrealtime s[100:101]")
    a.I("s_waitcnt lgkmcnt(0)")
    a.I("s_mov_b32 s88, m0")
    a.I("s_mov_b32 m0, s87")
    a.I("s_nop 3")
    a.I("v_writelane_b32 v6, s98, m0")
    a.I("v_writelane_b32 v7, s100, m0")
    a.I("s_mov_b32 m0, s88")
    a.I("s_add_u32 s87, s87, 1")
def stamp_flush(a):
    if not STAMPS: return
    a.I("s_waitcnt vmcnt(0)")
    stamp(a, "end")
    a.I(f"s_add_u32 s96, s{S_WS}, {STAMP_OFF}")
    a.I(f"s_addc_u32 s97, s{S_WS+1}, 0")
    a.I("s_mul_i32 s98, s2, 12")
    a.I(f"s_add_u32 s98, s98, s{S_W}")
    a.I("s_lshl_b32 s98, s98, 9")
    a.I("v_lshlrev_b32 v2, 2, v1")
    a.I("v_add_u32 v2, s98, v2")
    a.I("s_mov_b64 exec, -1")
    a.I("global_store_dword v2, v6, s[96:97]")
    a.I("global_store_dword v2, v7, s[96:97] offset:256")
    a.I("s_waitcnt vmcnt(0)")

def tr_lane_addr(a, dst, lane, tmp, tmp2, hrows, pitch):
    a.I(f"v_bfe_u32 v{tmp}, v{lane}, 2, 2")
    a.I(f"v_lshrrev_b32 v{tmp2}, 5, v{lane}")
    a.I(f"v_mul_u32_u24 v{tmp2}, {hrows}, v{tmp2}")
    a.I(f"v_add_u32 v{tmp}, v{tmp}, v{tmp2}")
    a.I(f"v_mul_u32_u24 v{dst}, {pitch}, v{tmp}")
    a.I(f"v_bfe_u32 v{tmp}, v{lane}, 4, 1")
    a.I(f"v_lshlrev_b32 v{tmp}, 1, v{tmp}")
    a.I(f"v_bfe_u32 v{tmp2}, v{lane}, 1, 1")
    a.I(f"v_add_u32 v{tmp}, v{tmp}, v{tmp2}")
    a.I(f"v_bfe_u32 v{tmp2}, v{lane}, 3, 1")
    a.I(f"v_lshlrev_b32 v{tmp2}, 2, v{tmp2}")
    a.I(f"v_xor_b32 v{tmp}, v{tmp}, v{tmp2}")
    a.I(f"v_lshl_add_u32 v{dst}, v{tmp}, 4, v{dst}")
    a.I(f"v_and_b32 v{tmp}, 1, v{lane}")
    a.I(f"v_lshl_add_u32 v{dst}, v{tmp}, 3, v{dst}")

def dma_w_lane_off(a, dst, lane, tmp, tmp2, pitch):
    a.I(f"v_lshrrev_b32 v{tmp}, 3, v{lane}")
    a.I(f"v_mul_u32_u24 v{dst}, {pitch}, v{tmp}")
    a.I(f"v_bfe_u32 v{tmp}, v{lane}, 4, 1")
    a.I(f"v_lshlrev_b32 v{tmp}, 2, v{tmp}")
    a.I(f"v_and_b32 v{tmp2}, 7, v{lane}")
    a.I(f"v_xor_b32 v{tmp}, v{tmp}, v{tmp2}")
    a.I(f"v_lshl_add_u32 v{dst}, v{tmp}, 4, v{dst}")

_lab = [0]
def lab(p):
    _lab[0] += 1
    return f"L_{p}{_lab[0]}"

def poll(a, srd_reg, nlanes, voff, vtmp, soff):
    l0, l1 = lab("poll"), lab("polld")
    if nlanes < 64:
        a.I(f"s_mov_b32 exec_lo, {hex((1 << nlanes) - 1)}")
        a.I("s_mov_b32 exec_hi, 0")
    a.I("s_mov_b32 s50, 0x40000")
    a.L(l0)
    a.I(f"buffer_load_dword v{vtmp}, v{voff}, {S4(srd_reg)}, {soff} offen sc1")
    a.I("s_waitcnt vmcnt(0)")
    a.I(f"v_cmp_ne_u32 vcc, s{S_NONCE}, v{vtmp}")
    a.I(f"s_cbranch_vccz {l1}")
    a.I("s_sub_u32 s50, s50, 1")
    a.I("s_cmp_eq_u32 s50, 0")
    a.I(f"s_cbranch_scc1 {l1}")
    a.I("s_sleep 1")
    a.I(f"s_branch {l0}")
    a.L(l1)
    a.I("s_mov_b64 exec, -1")

def lds_spin(a, addr, target, vaddr, vtmp, slp=1):
    l0, l1 = lab("spin"), lab("spind")
    a.I(f"v_mov_b32 v{vaddr}, {addr}")
    a.I("s_mov_b32 s50, 0x400000")
    a.L(l0)
    a.I(f"ds_read_b32 v{vtmp}, v{vaddr}")
    a.I("s_waitcnt lgkmcnt(0)")
    a.I(f"v_readfirstlane_b32 s51, v{vtmp}")
    a.I("s_sub_u32 s50, s50, 1")
    a.I(f"s_cmp_ge_u32 s51, {target}")
    a.I(f"s_cbranch_scc1 {l1}")
    a.I("s_cmp_eq_u32 s50, 0")
    a.I(f"s_cbranch_scc1 {l1}")
    a.I(f"s_sleep {slp}")
    a.I(f"s_branch {l0}")
    a.L(l1)

def lds_add1(a, addr, vaddr, vtmp):
    a.I(f"v_mov_b32 v{vaddr}, {addr}")
    a.I(f"v_mov_b32 v{vtmp}, 1")
    a.I("s_mov_b64 exec, 1")
    a.I(f"ds_add_u32 v{vaddr}, v{vtmp}")
    a.I("s_mov_b64 exec, -1")

def flag_store(a, soff, v0_, v1_):
    a.I(f"v_mov_b32 v{v0_}, s{S_NONCE}")
    a.I(f"v_mov_b32 v{v1_}, 0")
    a.I("s_mov_b64 exec, 1")
    a.I(f"buffer_store_dword v{v0_}, v{v1_}, {S4(RC)}, {soff} offen sc1")
    a.I("s_mov_b64 exec, -1")

def prologue(a):
    a.raw(f".globl {KN}\n.p2align 8\n.type {KN},@function\n{KN}:")
    a.I("s_cmp_ge_u32 s2, 256")
    a.I("s_cbranch_scc1 L_end")
    a.I("s_load_dwordx4 s[4:7], s[0:1], 0")
    a.I("s_load_dwordx2 s[8:9], s[0:1], 16")
    a.I("s_load_dwordx4 s[12:15], s[0:1], 32")
    a.I("s_load_dwordx4 s[16:19], s[0:1], 48")
    a.I("s_load_dwordx4 s[20:23], s[0:1], 64")
    a.I("s_load_dwordx4 s[24:27], s[0:1], 80")
    a.I("v_lshrrev_b32 v2, 6, v0")
    a.I("v_and_b32 v1, 63, v0")
    a.I(f"v_readfirstlane_b32 s{S_W}, v2")
    if STAMPS:
        a.I("v_mov_b32 v6, 0"); a.I("v_mov_b32 v7, 0")
    a.I("s_and_b32 s52, s2, 7")
    a.I("s_lshr_b32 s53, s2, 3")
    a.I("s_lshr_b32 s54, s52, 2")
    a.I("s_lshl_b32 s54, s54, 4")
    a.I("s_lshr_b32 s55, s53, 1")
    a.I(f"s_add_u32 s{S_RB}, s54, s55")
    a.I("s_and_b32 s54, s52, 3")
    a.I("s_lshl_b32 s54, s54, 1")
    a.I("s_and_b32 s55, s53, 1")
    a.I(f"s_add_u32 s{S_CG}, s54, s55")
    a.I(f"s_mul_i32 s54, s{S_CG}, 6")
    a.I(f"s_min_u32 s{S_START}, s54, 37")
    a.I(f"s_lshl_b32 s{S_HD}, s52, 2")
    a.I("s_and_b32 s54, s53, 3")
    a.I(f"s_add_u32 s{S_HD}, s{S_HD}, s54")
    a.I(f"s_lshr_b32 s{S_QB}, s2, 5")
    a.I("s_waitcnt lgkmcnt(0)")
    stamp(a, "karg")
    a.I(f"s_cmp_ge_u32 s{S_W}, 8")
    a.I("s_cbranch_scc1 L_aux")
    a.I(f"s_cmp_lt_u32 s{S_W}, 4")
    a.I("s_cbranch_scc1 L_cons")

GATEPOS = 3
def producer(a, aux):
    T = "a" if aux else "p"
    a.I(f"s_sub_u32 s67, s{S_W}, 4")
    a.I(f"s_lshl_b32 s54, s{S_RB}, 16")
    srd_off(a, RA, S_AX, "s54", 65536)
    srd(a, RB, S_WQKV, 512*3072)
    a.I("v_lshrrev_b32 v2, 3, v1")
    a.I("s_lshl_b32 s54, s67, 3")
    a.I("v_add_u32 v2, s54, v2")
    a.I("v_lshrrev_b32 v3, 4, v1")
    a.I("s_and_b32 s54, s67, 1")
    a.I("s_lshl_b32 s54, s54, 2")
    a.I("v_add_u32 v3, s54, v3")
    a.I("v_and_b32 v4, 7, v1")
    a.I("v_xor_b32 v3, v3, v4")
    a.I("v_lshlrev_b32 v3, 4, v3")
    a.I("v_lshl_add_u32 v12, v2, 10, v3")
    a.I("s_lshl_b32 s68, s67, 10")
    def woffs(dst, pitch, segshift):
        for j in range(3):
            a.I(f"v_add_u32 v2, {64*j}, v1")
            a.I("v_mul_u32_u24 v3, 171, v2")
            a.I("v_lshrrev_b32 v3, 12, v3")
            a.I("v_mul_u32_u24 v4, 24, v3")
            a.I("v_sub_u32 v2, v2, v4")
            a.I("v_lshrrev_b32 v4, 3, v2")
            a.I("v_and_b32 v2, 7, v2")
            a.I("v_bfe_u32 v5, v3, 1, 1")
            a.I("v_lshlrev_b32 v5, 2, v5")
            a.I("v_xor_b32 v2, v2, v5")
            a.I("v_lshlrev_b32 v2, 4, v2")
            a.I(f"v_mul_u32_u24 v5, {pitch}, v3")
            a.I(f"v_lshl_add_u32 v5, v4, {segshift}, v5")
            a.I(f"v_add_u32 v{dst+j}, v5, v2")
    woffs(13, 3072, 10)
    a.I("s_mul_i32 s69, s67, 3072")
    a.I("s_add_u32 s69, s69, 0x10000")
    a.I(f"s_lshl_b32 s70, s{S_CG}, 7")
    a.I(f"s_mul_i32 s71, s67, {8*3072}")
    a.I("s_add_u32 s70, s70, s71")
    def issue_x(c):
        if OPT.get("p1noprod"): return
        a.I(f"s_add_u32 m0, s68, {c*8192}")
        a.I(f"s_movk_i32 s81, {c*128}")
        a.I(f"buffer_load_dwordx4 v12, {S4(RA)}, s81 offen lds")
    def issue_w(c):
        if OPT.get("p1noprod"): return
        if c < 8:
            a.I(f"s_add_u32 s82, s70, {c*64*3072}")
            vo, R = 13, RB
        else:
            a.I(f"s_add_u32 s82, s71, {(c-8)*64*2752}")
            vo, R = 16, RC
        for j in range(3):
            a.I(f"s_add_u32 m0, s69, {(c&3)*24576 + j*1024}")
            a.I("s_nop 0")
            a.I(f"buffer_load_dwordx4 v{vo+j}, {S4(R)}, s82 offen lds")
    sched = OPT.get("sched", 0)
    if sched == 0:
        pre = [("X",0),("W",0),("X",1),("W",1),("X",2),("W",2)]
        post = {c: ([("X",c+3)] if c+3 < 8 else []) + ([("W",c+3)] if c+3 < 16 else []) for c in range(16)}
    elif sched == 1:
        pre = [("X",0),("W",0),("X",1),("W",1),("X",2),("W",2),("X",3),("W",3),("X",4),("X",5),("X",6),("X",7)]
        post = {c: ([("W",c+3)] if (c >= 1 and c+3 < 16) else []) for c in range(16)}
    elif sched == 2:
        pre = [("X",0),("W",0),("X",1),("W",1),("X",2),("W",2),("X",3),("W",3)]
        post = {c: ([("W",c+3)] if (c >= 1 and c+3 < 16) else []) for c in range(16)}
        post[0] = [("X",4),("X",5),("X",6),("X",7)]
    fifo = []
    def do(item):
        k, c = item
        if k == "X":
            if OPT.get("skipx"): fifo.append((item, 0)); return
            issue_x(c); fifo.append((item, 1))
        else:
            if OPT.get("skipw") and c < 8: fifo.append((item, 0)); return
            issue_w(c); fifo.append((item, 3))
    for it in pre: do(it)
    if OPT.get("pfprod") and not aux:
        a.I(f"s_mov_b32 s89, s{S_W}")
        a.I(f"s_sub_u32 s{S_W}, s{S_W}, 4")
        l2_prefetch(a, 0)
        a.I(f"s_mov_b32 s{S_W}, s89")
        fifo.append(("pf", 2))
    stamp(a, "issued3")
    nside = 0
    if aux:
        nside = aux_side_issue(a)
    srd(a, RC, S_W1, 512*2752)
    woffs(16, 2752, 7)
    a.I(f"s_lshl_b32 s71, s{S_START}, 6")
    a.I(f"s_mul_i32 s72, s67, {8*2752}")
    a.I("s_add_u32 s71, s71, s72")
    fap = OPT.get("fapos", 2)
    assert fap >= 2
    for c in range(16):
        need = [("W", c)] + ([("X", c)] if c < 8 else [])
        idx = max(i for i, (it, _) in enumerate(fifo) if it in need)
        allow = sum(k for _, k in fifo[idx+1:])
        if c == 0 and STAMPS and OPT.get("fine"): a.I("s_mov_b32 s87, 24")
        stamp_dyn(a)
        a.I(f"s_waitcnt vmcnt({allow})")
        stamp_dyn(a)
        a.I("s_barrier")
        for it in post[c]: do(it)
        if aux and c == 2:
            fifo.append(("side", aux_side_loads(a)))
        if aux and c == 6:
            aux_gate(a)
            fifo.append(("g", 1))
        if aux and c == 7:
            fifo.append(("nonce", aux_nonce_issue(a)))
        if aux and c == 11:
            aux_nonce_take(a)
        if aux and c == 9 + fap:
            aux_publish_fa(a)
    a.I("s_barrier")
    if aux:
        aux_after_e1(a)
    else:
        a.I("s_barrier")
        a.I("s_branch L_attn")

def l2_prefetch(a, part):
    a.I("s_and_b32 s52, s2, 7")
    a.I("s_lshr_b32 s53, s2, 3")
    a.I("s_lshl_b32 s54, s53, 4")
    a.I(f"s_lshl_b32 s55, s{S_W}, 2")
    a.I("s_add_u32 s56, s54, s55")
    if part == 2:
        a.I(f"s_cmp_lg_u32 s{S_W}, 0")
        a.I("s_cbranch_scc1 L_pf2")
        srd(a, RC, S_WQKV, 512*3072)
        a.I("s_lshl_b32 s54, s53, 3")
        a.I("s_add_u32 s54, s54, 256")
        a.I("s_mul_i32 s54, s54, 3072")
        a.I("s_and_b32 s55, s52, 3")
        a.I("s_lshl_b32 s55, s55, 8")
        a.I("s_add_u32 s54, s54, s55")
        a.I("v_lshrrev_b32 v21, 3, v1")
        a.I("v_mul_u32_u24 v21, 3072, v21")
        a.I("v_bfe_u32 v22, v1, 1, 2")
        a.I("v_min_u32 v22, 2, v22")
        a.I("v_lshl_add_u32 v21, v22, 10, v21")
        a.I("v_and_b32 v22, 1, v1")
        a.I("v_lshl_add_u32 v21, v22, 7, v21")
        a.I(f"buffer_load_dword v25, v21, {S4(RC)}, s54 offen")
        a.L("L_pf2")
    elif part == 0:
        G = OPT.get("pfg", 128)
        sh = {128: 7, 64: 6, 32: 5}[G]
        srd(a, RC, S_AX, 2*MB)
        a.I("s_lshr_b32 s54, s52, 2")
        a.I("s_lshl_b32 s54, s54, 10")
        a.I("s_lshl_b32 s55, s53, 5")
        a.I("s_add_u32 s54, s54, s55")
        a.I(f"s_lshl_b32 s55, s{S_W}, 3")
        a.I("s_add_u32 s54, s54, s55")
        a.I("s_lshl_b32 s54, s54, 10")
        a.I(f"v_lshlrev_b32 v20, {sh}, v1")
        for i in range(0 if OPT.get("nopfx") else 8192 // (64*G)):
            a.I(f"buffer_load_dword v24, v20, {S4(RC)}, s54 offen")
            a.I(f"s_add_u32 s54, s54, {64*G}")
        srd(a, RC, S_WQKV, 512*3072)
        a.I("s_mul_i32 s54, s56, 3072")
        a.I("s_and_b32 s55, s52, 3")
        a.I("s_lshl_b32 s55, s55, 8")
        a.I("s_add_u32 s54, s54, s55")
        per = 256 // G
        a.I("v_lshrrev_b32 v21, 4, v1")
        a.I("v_mul_u32_u24 v21, 3072, v21")
        a.I("v_and_b32 v22, 15, v1")
        if G == 64:
            a.I("v_lshrrev_b32 v23, 2, v22")
            a.I("v_min_u32 v23, 2, v23")
            a.I("v_lshl_add_u32 v21, v23, 10, v21")
            a.I("v_and_b32 v22, 3, v22")
            a.I("v_lshl_add_u32 v21, v22, 6, v21")
            a.I(f"buffer_load_dword v25, v21, {S4(RC)}, s54 offen")
        elif G == 32:
            a.I("v_lshrrev_b32 v23, 3, v22")
            a.I("v_lshl_add_u32 v21, v23, 10, v21")
            a.I("v_and_b32 v22, 7, v22")
            a.I("v_lshl_add_u32 v21, v22, 5, v21")
            a.I(f"buffer_load_dword v25, v21, {S4(RC)}, s54 offen")
            a.I(f"buffer_load_dword v25, v21, {S4(RC)}, s54 offen offset:2048")
        else:
            a.I("v_lshrrev_b32 v23, 1, v22")
            a.I("v_min_u32 v23, 2, v23")
            a.I("v_lshl_add_u32 v21, v23, 10, v21")
            a.I("v_and_b32 v22, 1, v22")
            a.I("v_lshl_add_u32 v21, v22, 7, v21")
            a.I(f"buffer_load_dword v25, v21, {S4(RC)}, s54 offen")
    else:
        a.I(f"s_cmp_ge_u32 s{S_W}, 2")
        a.I("s_cbranch_scc1 L_pf1")
        srd(a, RC, S_W1, 512*2752)
        a.I("s_and_b32 s55, s52, 3")
        a.I("s_mul_i32 s55, s55, 12")
        a.I("s_min_u32 s55, s55, 31")
        a.I("s_lshl_b32 s55, s55, 6")
        a.I("s_lshl_b32 s54, s53, 4")
        a.I(f"s_lshl_b32 s56, s{S_W}, 3")
        a.I("s_add_u32 s54, s54, s56")
        a.I("s_mul_i32 s54, s54, 2752")
        a.I("s_add_u32 s54, s54, s55")
        a.I("v_lshrrev_b32 v21, 3, v1")
        a.I("v_mul_u32_u24 v21, 2752, v21")
        a.I("v_and_b32 v22, 7, v1")
        a.I("v_lshl_add_u32 v21, v22, 7, v21")
        a.I(f"buffer_load_dword v26, v21, {S4(RC)}, s54 offen")
        a.L("L_pf1")

def consumer(a):
    a.L("L_cons")
    H, XA, WA, ACC, B1, FA, FB = 2, 8, 12, 32, 80, 104, 136
    if not OPT.get("nopf") and not OPT.get("pflate") and not OPT.get("pfprod"):
        l2_prefetch(a, OPT.get("pfmode", 0))
    a.I(f"v_lshrrev_b32 v{H}, 5, v1")
    a.I(f"s_and_b32 s63, s{S_W}, 1")
    a.I(f"s_lshr_b32 s64, s{S_W}, 1")
    srd(a, RD, S_B1, 2752)
    a.I(f"s_add_u32 s54, s{S_START}, s63")
    a.I("s_lshl_b32 s54, s54, 6")
    a.I(f"v_lshlrev_b32 v3, 3, v{H}")
    for s in range(3):
        for q in range(4):
            r = B1 + (s*4+q)*2
            a.I(f"buffer_load_dwordx2 v[{r}:{r+1}], v3, {S4(RD)}, s54 offen offset:{s*128+q*16}")
    for i in range(48):
        a.I(f"v_mov_b32 v{ACC+i}, 0")
    a.I("v_and_b32 v16, 31, v1")
    a.I("v_bfe_u32 v17, v1, 1, 3")
    a.I("s_lshl_b32 s54, s64, 5")
    a.I("v_add_u32 v16, s54, v16")
    a.I("v_lshlrev_b32 v16, 7, v16")
    a.I(f"v_xor_b32 v17, v17, v{H}")
    for ks in range(4):
        a.I(f"v_xor_b32 v18, {2*ks}, v17")
        a.I(f"v_lshl_add_u32 v{XA+ks}, v18, 4, v16")
    tr_lane_addr(a, WA, 1, 16, 17, 8, 384)
    a.I("s_lshl_b32 s54, s63, 6")
    a.I(f"v_xor_b32 v{WA}, s54, v{WA}")
    a.I(f"v_add_u32 v{WA}, 0x10000, v{WA}")
    a.I(f"v_add_u32 v{WA+1}, 49152, v{WA}")

    def reads(b, G, F):
        out = []
        if OPT.get("p1nocons"): return ["s_nop 0"]
        wv = WA + (b >> 1)
        for l in range(2):
            ks = 2*G + l
            out.append(f"ds_read_b128 {vr(F+4*l,4)}, v{XA+ks} offset:{b*8192}")
            for s in range(3):
                for rd in range(2):
                    out.append(f"ds_read_b64_tr_b16 {vr(F+8+12*l+4*s+2*rd,2)}, v{wv} offset:{(b&1)*24576 + ks*6144 + rd*1536 + s*128}")
        return out
    def mfmas(F, qkv):
        out = []
        if OPT.get("p1nocons") or OPT.get("p1nomfma"): return ["s_nop 0"]
        for l in range(2):
            for s in range(3):
                X, W = F+4*l, F+8+12*l+4*s
                out.append(MF(ACC+16*s, X, W, ACC+16*s) if (qkv and s == 2) else MF(ACC+16*s, W, X, ACC+16*s))
        return out
    def inter(mf, rd):
        out = []
        per = OPT.get("iper", [4, 4, 3, 3, 0, 0])
        if len(mf) != 6: return mf + rd
        k = 0
        for i, m in enumerate(mf):
            out.append(m)
            out += rd[k:k+per[i]]
            k += per[i]
        assert k >= len(rd)
        return out
    def stage_loop(tag, qkv):
        a.I("s_mov_b32 s65, 0x8000")
        a.L(f"L_loop_{tag}")
        fap = OPT.get("fapos", 2)
        for b in range(4):
            a.I("s_waitcnt lgkmcnt(0)")
            a.I(J(inter(mfmas(FA, qkv), reads(b, 1, FB))))
            if (not qkv) and b == (fap & 3):
                if fap >= 4:
                    a.I("s_cmp_lt_i32 s65, 0")
                    a.I(f"s_cbranch_scc0 L_nodrain")
                a.I("s_waitcnt vmcnt(0)")
                if fap >= 4: a.L("L_nodrain")
            a.I("s_waitcnt lgkmcnt(0)")
            if b == 3:
                if not qkv:
                    a.I("s_cmp_lt_i32 s65, 0")
                    a.I(f"s_cbranch_scc1 L_last_{tag}")
                for ks in range(4):
                    a.I(f"v_add_u32 v{XA+ks}, s65, v{XA+ks}")
            stamp_dyn(a)
            a.I("s_barrier")
            stamp_dyn(a)
            a.I(J(inter(mfmas(FB, qkv), reads((b+1) % 4, 0, FA))))
        a.I("s_cmp_lt_i32 s65, 0")
        a.I("s_mov_b32 s65, 0xffff8000")
        a.I(f"s_cbranch_scc0 L_loop_{tag}")
        if not qkv:
            a.L(f"L_last_{tag}")
            a.I(J(mfmas(FB, qkv)))

    if OPT.get("pflate"):
        for i in range(OPT["pflate"]):
            a.I("s_sleep 8")
        l2_prefetch(a, 0)
    if OPT.get("pfw1early"):
        l2_prefetch(a, 1)
    a.I("s_barrier")
    stamp(a, "B0")
    if STAMPS and OPT.get("fine"): a.I("s_mov_b32 s87, 24")
    if not OPT.get("nopf") and not OPT.get("pfw1early"):
        l2_prefetch(a, 1)
    a.I(J(reads(0, 0, FA)))
    stage_loop("q", True)
    stamp(a, "qloop")
    srd(a, RA, S_WS, VF + 2*MB)
    a.I(f"s_lshl_b32 s54, s{S_RB}, 1")
    a.I("s_add_u32 s54, s54, s64")
    a.I(f"s_lshl_b32 s55, s{S_CG}, 2")
    a.I("s_lshl_b32 s56, s63, 1")
    a.I("s_add_u32 s55, s55, s56")
    a.I("s_lshl_b32 s55, s55, 6")
    a.I("s_add_u32 s54, s54, s55")
    a.I("s_lshl_b32 s54, s54, 10")
    a.I("v_lshlrev_b32 v3, 4, v1")
    a.I("v_bfe_u32 v4, v1, 4, 1")
    a.I("v_lshlrev_b32 v4, 16, v4")
    a.I(f"v_lshl_add_u32 v4, v{H}, 8, v4")
    a.I("v_and_b32 v5, 15, v1")
    a.I("v_lshl_add_u32 v4, v5, 4, v4")
    a.I(f"s_mov_b32 s56, {hex(f2u(QSCALE))}")
    a.I("s_waitcnt vmcnt(0)")
    a.I("s_nop 4")
    for idx, s in enumerate((1, 2, 0)):
        d = ACC + 16*s
        if s == 0:
            for i in range(16):
                a.I(f"v_mul_f32 v{d+i}, s56, v{d+i}")
        for j in range(8):
            a.I(f"v_cvt_pk_bf16_f32 v{d+j}, v{d+2*j}, v{d+2*j+1}")
        if s < 2:
            for hh in range(2):
                a.I(f"s_add_u32 s55, s54, {(KF if s else QF) + hh*65536}")
                a.I(f"buffer_store_dwordx4 {vr(d+4*hh,4)}, v3, {S4(RA)}, s55 offen sc1")
        else:
            a.I(f"s_add_u32 s55, s54, {VF}")
            for u in range(2):
                a.I(f"buffer_store_dwordx4 {vr(d+4*u,4)}, v4, {S4(RA)}, s55 offen offset:{u*512} sc1")
    a.I("s_nop 1")
    for s in range(3):
        for q in range(4):
            r = B1 + (s*4+q)*2
            d = ACC + s*16 + q*4
            a.I(f"v_lshlrev_b32 v{d}, 16, v{r}")
            a.I(f"v_and_b32 v{d+1}, 0xffff0000, v{r}")
            a.I(f"v_lshlrev_b32 v{d+2}, 16, v{r+1}")
            a.I(f"v_and_b32 v{d+3}, 0xffff0000, v{r+1}")
    stage_loop("f", False)
    a.I("s_barrier")
    stamp(a, "floop")
    a.I("s_barrier")
    srd_off(a, RA, S_WS, HF, HF_SIZE)
    a.I(f"s_lshl_b32 s54, s{S_RB}, 1")
    a.I("s_add_u32 s54, s54, s64")
    a.I(f"s_add_u32 s55, s{S_START}, s63")
    a.I("s_lshl_b32 s55, s55, 7")
    a.I("s_add_u32 s54, s54, s55")
    a.I("s_lshl_b32 s54, s54, 10")
    a.I("v_lshlrev_b32 v3, 4, v1")
    a.I("s_nop 4")
    for s in range(3):
        d = ACC + 16*s
        for i in range(16):
            a.I(f"v_max_f32 v{d+i}, 0, v{d+i}")
        for i in range(16):
            a.I(f"v_mul_f32 v{d+i}, v{d+i}, v{d+i}")
        for j in range(8):
            a.I(f"v_cvt_pk_bf16_f32 v{d+j}, v{d+2*j}, v{d+2*j+1}")
        for uu in range(2):
            a.I(f"s_add_u32 s55, s54, {(4*s+uu)*65536}")
            a.I(f"buffer_store_dwordx4 {vr(d+4*uu,4)}, v3, {S4(RA)}, s55 offen sc1")
    a.I("s_nop 1")
    a.I("s_branch L_attn")

def aux_side_issue(a):
    a.I("s_sub_u32 s66, s67, 4")
    a.I(f"s_lshl_b32 s54, s2, 2")
    a.I("s_or_b32 s54, s54, s66")
    a.I("s_cmp_lg_u32 s54, 0")
    a.I("s_cbranch_scc1 L_aux1")
    srd(a, RD, S_DBG, 256)
    a.I("s_memrealtime s[54:55]")
    a.I("s_waitcnt lgkmcnt(0)")
    a.I("s_or_b32 s85, s54, 1")
    a.I("v_mov_b32 v8, s85")
    a.I("v_mov_b32 v10, 0")
    a.I("s_mov_b64 exec, 1")
    a.I(f"buffer_store_dword v8, v10, {S4(RD)}, 0 offen sc1")
    a.I("s_mov_b64 exec, -1")
    a.L("L_aux1")
    a.I(f"s_lshl_b32 s54, s{S_RB}, 6")
    a.I(f"s_lshl_b32 s55, s{S_CG}, 3")
    a.I("s_add_u32 s54, s54, s55")
    a.I("s_lshl_b32 s55, s66, 1")
    a.I("s_add_u32 s86, s54, s55")
    return 0

def aux_side_loads(a):
    a.I("s_lshl_b32 s54, s86, 10")
    srd_off(a, RD, S_AX, "s54", 2048)
    a.I("v_and_b32 v2, 31, v1")
    a.I("v_lshlrev_b32 v2, 5, v2")
    a.I("v_lshrrev_b32 v3, 5, v1")
    a.I("v_lshl_add_u32 v4, v3, 10, v2")
    for i in range(2):
        a.I(f"buffer_load_dwordx4 {vr(32+4*i,4)}, v4, {S4(RD)}, 0 offen offset:{16*i}")
    srd(a, RD, S_GW, 1024)
    for i in range(2):
        a.I(f"buffer_load_dwordx4 {vr(40+4*i,4)}, v2, {S4(RD)}, 0 offen offset:{16*i}")
    n = 4
    if OPT.get("codepf", 1):
        a.I("s_getpc_b64 s[52:53]")
        a.L("L_pc")
        a.I(f"s_sub_u32 s52, s52, L_pc-{KN}")
        a.I("s_subb_u32 s53, s53, 0")
        a.I("s_mul_i32 s54, s66, 6144")
        a.I("v_lshlrev_b32 v5, 7, v1")
        a.I("v_add_u32 v5, s54, v5")
        a.I(f"v_min_u32 v5, L_code_end-{KN}-4, v5")
        a.I("s_mov_b32 exec_hi, 0xffff")
        a.I("global_load_dword v116, v5, s[52:53]")
        a.I("s_mov_b64 exec, -1")
        n += 1
    return n

def aux_nonce_issue(a):
    srd(a, RD, S_DBG, 256)
    a.I("v_mov_b32 v10, 0")
    a.I(f"buffer_load_dword v8, v10, {S4(RD)}, 0 offen sc1")
    return 1

def aux_nonce_take(a):
    a.I(f"v_readfirstlane_b32 s{S_NONCE}, v8")
    a.I("s_cmp_lg_u32 s66, 0")
    a.I("s_cbranch_scc1 L_nonce_ok")
    a.I("s_mov_b32 s50, 0x40000")
    a.L("L_nonce")
    a.I(f"s_cmp_lg_u32 s{S_NONCE}, 0")
    a.I("s_cbranch_scc1 L_nonce_ok")
    a.I("s_sub_u32 s50, s50, 1")
    a.I("s_cmp_eq_u32 s50, 0")
    a.I("s_cbranch_scc1 L_nonce_ok")
    srd(a, RD, S_DBG, 256)
    a.I(f"buffer_load_dword v8, v10, {S4(RD)}, 0 offen sc1")
    a.I("s_waitcnt vmcnt(0)")
    a.I(f"v_readfirstlane_b32 s{S_NONCE}, v8")
    a.I("s_branch L_nonce")
    a.L("L_nonce_ok")

def aux_gate(a):
    if OPT.get("p1noprod"): a.I("s_waitcnt vmcnt(0)")
    a.I("v_mov_b32 v24, 0")
    for i in range(8):
        a.I(f"v_dot2c_f32_bf16 v24, v{32+i}, v{40+i}")
    a.I("s_nop 3")
    for sh in (1, 2, 4, 8):
        a.I(f"v_add_f32_dpp v24, v24, v24 row_shr:{sh} row_mask:0xf bank_mask:0xf")
        a.I("s_nop 1")
    a.I("v_add_f32_dpp v24, v24, v24 row_bcast:15 row_mask:0xa bank_mask:0xf")
    a.I("s_nop 1")
    a.I("v_cvt_pk_bf16_f32 v24, v24, v24")
    a.I("v_and_b32 v24, 0xffff0000, v24")
    a.I(f"v_mul_f32 v24, {hex(f2u(-1.4426950408889634))}, v24")
    a.I("v_exp_f32 v24, v24")
    a.I("s_nop 0")
    a.I("v_add_f32 v24, 1.0, v24")
    a.I("v_rcp_f32 v24, v24")
    a.I("s_nop 0")
    a.I("v_cvt_pk_bf16_f32 v24, v24, v24")
    a.I("v_and_b32 v24, 0xffff0000, v24")
    srd_off(a, RD, S_WS, GO, 8192)
    a.I("s_lshl_b32 s54, s86, 2")
    a.I("v_lshrrev_b32 v3, 5, v1")
    a.I("v_lshlrev_b32 v3, 2, v3")
    a.I("s_mov_b32 s52, 0x80000000")
    a.I("s_mov_b32 s53, 0x80000000")
    a.I("s_mov_b64 exec, s[52:53]")
    a.I(f"buffer_store_dword v24, v3, {S4(RD)}, s54 offen sc1")
    a.I("s_mov_b64 exec, -1")

def aux_publish_fa(a):
    a.I("s_cmp_lg_u32 s66, 0")
    a.I("s_cbranch_scc1 L_aux2")
    srd_off(a, RD, S_WS, FLG, FLG_SIZE)
    a.I(f"s_lshl_b32 s54, s{S_CG}, 7")
    a.I(f"s_lshl_b32 s55, s{S_RB}, 2")
    a.I("s_add_u32 s54, s54, s55")
    a.I(f"s_add_u32 s54, s54, {FA_OFF}")
    a.I(f"v_mov_b32 v8, s{S_NONCE}")
    a.I(f"v_mov_b32 v10, 0")
    a.I("s_mov_b64 exec, 1")
    a.I(f"buffer_store_dword v8, v10, {S4(RD)}, s54 offen sc1")
    a.I("s_mov_b64 exec, -1")
    stamp(a, "FApub")
    a.L("L_aux2")

def aux_after_e1(a):
    a.I("s_mov_b32 s67, s66")
    a.I("s_cmp_lg_u32 s67, 1")
    a.I("s_cbranch_scc1 L_aux3")
    a.I(f"v_lshlrev_b32 v10, 2, v1")
    a.I(f"v_add_u32 v10, {L_MISC}, v10")
    a.I("v_mov_b32 v8, 0")
    a.I("ds_write_b32 v10, v8")
    a.I("s_waitcnt lgkmcnt(0)")
    a.L("L_aux3")
    a.I("s_barrier")
    a.I("s_setprio 3")
    stamp(a, "E2")
    srd_off(a, RC, S_WS, FLG, FLG_SIZE)
    a.I("s_cmp_lg_u32 s67, 0")
    a.I("s_cbranch_scc1 L_aux4")
    a.I(f"v_mov_b32 v8, {L_MISC + 128}")
    a.I(f"v_mov_b32 v9, s{S_NONCE}")
    a.I("ds_write_b32 v8, v9")
    a.I(f"s_lshr_b32 s54, s{S_HD}, 2")
    a.I("s_lshl_b32 s54, s54, 7")
    a.I(f"s_add_u32 s54, s54, {FA_OFF}")
    a.I("v_lshlrev_b32 v8, 2, v1")
    poll(a, RC, 32, 8, 9, "s54")
    lds_add1(a, M_FA, 8, 9)
    a.I("s_branch L_aux5")
    a.L("L_aux4")
    lds_spin(a, M_FA, 1, 8, 9)
    a.L("L_aux5")
    stamp(a, "FAok")
    VL = 4
    a.I(f"v_lshlrev_b32 v{VL}, 4, v1")
    a.I(f"s_lshl_b32 s54, s{S_HD}, 16")
    a.I(f"s_add_u32 s55, s54, {KF}")
    srd_off(a, RA, S_WS, "s55", 65536)
    a.I(f"s_add_u32 s55, s54, {VF}")
    srd_off(a, RB, S_WS, "s55", 65536)
    a.I(f"s_add_u32 s55, s54, {QF}")
    srd_off(a, RD, S_WS, "s55", 65536)
    a.I(f"s_lshl_b32 s54, s{S_QB}, 3")
    a.I("s_lshl_b32 s55, s67, 1")
    a.I("s_add_u32 s54, s54, s55")
    a.I("s_lshl_b32 s54, s54, 10")
    a.I("s_lshl_b32 s55, s67, 11")
    a.I(f"s_add_u32 s55, s55, {L_RING}")
    for t in range(2):
        a.I(f"s_add_u32 m0, s55, {t*1024}")
        a.I(f"s_add_u32 s56, s54, {t*1024}")
        a.I(f"buffer_load_dwordx4 v{VL}, {S4(RD)}, s56 offen sc1 lds")
    a.I("s_lshl_b32 s54, s67, 10")
    def kvchunks(cs):
        for c in cs:
            a.I(f"s_add_u32 s55, s54, {c*4096}")
            a.I("s_mov_b32 m0, s55")
            a.I(f"s_add_u32 s56, s55, {L_V}")
            a.I(f"buffer_load_dwordx4 v{VL}, {S4(RA)}, s55 offen sc1 lds")
            a.I("s_mov_b32 m0, s56")
            a.I("s_nop 0")
            a.I(f"buffer_load_dwordx4 v{VL}, {S4(RB)}, s55 offen sc1 lds")
    kvchunks(range(0, 4))
    a.I("s_waitcnt vmcnt(0)")
    lds_add1(a, M_KV, 8, 9)
    stamp(a, "KV1")
    kvchunks(range(4, 16))
    a.I("s_lshr_b32 s53, s2, 3")
    srd(a, RA, S_W2, 1376*1024)
    srd(a, RB, S_WO, 512*1024)
    a.I("s_mul_i32 s54, s53, 44032")
    a.I("s_lshl_b32 s55, s67, 10")
    a.I("s_add_u32 s54, s54, s55")
    a.I("s_waitcnt vmcnt(0)")
    lds_add1(a, M_KV, 8, 9)
    stamp(a, "KV2")
    a.I("v_lshlrev_b32 v10, 7, v1")
    a.I("s_lshl_b32 s55, s67, 13")
    a.I("s_mul_i32 s54, s53, 44032")
    a.I("s_add_u32 s54, s54, s55")
    a.I(f"buffer_load_dword v40, v10, {S4(RA)}, s54 offen")
    a.I("s_add_u32 s54, s54, 32768")
    a.I(f"buffer_load_dword v41, v10, {S4(RA)}, s54 offen")
    a.I("s_lshl_b32 s54, s53, 14")
    a.I("s_lshl_b32 s55, s67, 12")
    a.I("s_add_u32 s54, s54, s55")
    a.I("s_mov_b32 exec_hi, 0")
    a.I(f"buffer_load_dword v42, v10, {S4(RB)}, s54 offen")
    a.I("s_mov_b64 exec, -1")

def ffn2_p3(a):
    WF, HR, ACC2, BPR = 24, 40, 104, 8
    VH, VW, VA0, VA1 = 2, 3, 4, 5
    a.I("s_cmp_lg_u32 s67, 0")
    a.I("s_cbranch_scc1 L_f1")
    lds_spin(a, M_HST, 4, 8, 9, OPT.get('fslp', 1))
    lds_spin(a, M_KV, 8, 8, 9)
    a.I(f"s_lshl_b32 s54, s{S_RB}, 7")
    a.I(f"s_lshl_b32 s55, s{S_CG}, 2")
    a.I("s_add_u32 s54, s54, s55")
    a.I(f"s_add_u32 s54, s54, {FH_OFF}")
    flag_store(a, "s54", 8, 10)
    a.I(f"s_lshl_b32 s54, s{S_HD}, 7")
    a.I(f"s_add_u32 s54, s54, {FH_OFF}")
    a.I("v_lshlrev_b32 v8, 2, v1")
    poll(a, RC, 8, 8, 9, "s54")
    lds_add1(a, M_H, 8, 9)
    a.I("s_branch L_f2")
    a.L("L_f1")
    lds_spin(a, M_H, 1, 8, 9, OPT.get('fslp', 1))
    a.L("L_f2")
    lds_spin(a, M_QRD, 8, 8, 9, OPT.get('fslp', 1))
    stamp(a, "hready")
    srd(a, RA, S_W2, 1376*1024)
    srd_off(a, RB, S_WS, HF, HF_SIZE)
    a.I(f"v_lshlrev_b32 v{VH}, 4, v1")
    dma_w_lane_off(a, VW, 1, 8, 9, 1024)
    a.I(f"s_lshl_b32 s54, s{S_QB}, 7")
    a.I(f"v_add_u32 v{VW}, s54, v{VW}")
    tr_lane_addr(a, VA0, 1, 8, 9, 4, 128)
    a.I("s_mul_i32 s68, s67, 6144")
    a.I(f"s_add_u32 s68, s68, {L_RING}")
    a.I(f"v_add_u32 v{VA0}, s68, v{VA0}")
    a.I(f"v_xor_b32 v{VA1}, 64, v{VA0}")
    a.I("s_mul_i32 s54, s67, 24")
    a.I("s_lshl_b32 s70, s54, 14")
    a.I("s_lshl_b32 s71, s54, 16")
    a.I(f"s_lshl_b32 s55, s{S_HD}, 11")
    a.I("s_add_u32 s71, s71, s55")
    for i in range(64):
        a.I(f"v_mov_b32 v{ACC2+i}, 0")
    a.I("s_waitcnt vmcnt(0)")
    def fissue(slot):
        return [f"s_add_u32 m0, s68, {slot*2048}",
                f"s_add_u32 s69, s70, 8192",
                f"buffer_load_dwordx4 v{VW}, {S4(RA)}, s70 offen lds",
                f"s_add_u32 m0, s68, {slot*2048+1024}",
                f"s_add_u32 s70, s70, 16384",
                f"buffer_load_dwordx4 v{VW}, {S4(RA)}, s69 offen lds",
                f"buffer_load_dwordx4 {vr(HR+slot*8,4)}, v{VH}, {S4(RB)}, s71 offen sc1",
                f"buffer_load_dwordx4 {vr(HR+slot*8+4,4)}, v{VH}, {S4(RB)}, s71 offen offset:1024 sc1",
                f"s_add_u32 s71, s71, 65536"]
    def trr(F, off):
        out = []
        for ct, va in ((0, VA0), (1, VA1)):
            for rd in range(2):
                out.append(f"ds_read_b64_tr_b16 {vr(F+4*ct+2*rd,2)}, v{va} offset:{off + rd*1024}")
        return out
    for slot in range(3):
        a.I(J(fissue(slot)))
    a.I("s_cmp_eq_u32 s67, 3")
    a.I("s_cselect_b32 s72, 5, 8")
    a.I(f"s_setprio {OPT.get('ffnprio', 0)}")
    if OPT.get("noffn"): a.I("s_branch L_fskip")
    a.L("L_floop")
    for slot in range(3):
        a.I("s_waitcnt vmcnt(8)")
        a.I(J(trr(WF, slot*2048)))
        a.I("s_waitcnt lgkmcnt(0)")
        fi = fissue(slot)
        mf = lambda ct, rt: MF(ACC2 + (ct*2+rt)*16, WF+4*ct, HR+slot*8+4*rt, ACC2 + (ct*2+rt)*16)
        if OPT.get("fspread", 1):
            a.I(mf(0, 0)); a.I(J(fi[0:3]))
            a.I(mf(1, 0)); a.I(J(fi[3:6]))
            a.I(mf(0, 1)); a.I(fi[6])
            a.I(mf(1, 1)); a.I(J(fi[7:]))
        else:
            for ct in range(2):
                for rt in range(2):
                    a.I(mf(ct, rt))
            a.I(J(fi))
    a.I("s_sub_u32 s72, s72, 1")
    a.I("s_cmp_lg_u32 s72, 0")
    a.I("s_cbranch_scc1 L_floop")
    a.L("L_fskip")
    a.I("s_setprio 3")
    a.I("s_waitcnt vmcnt(0)")
    lds_add1(a, M_FFN, 8, 9)
    stamp(a, "ffn2")
    srd_off(a, RA, S_WS, GO, 8192)
    srd(a, RB, S_B2, 1024)
    a.I("s_and_b32 s73, s67, 1")
    a.I("s_lshr_b32 s74, s67, 1")
    a.I(f"s_lshl_b32 s75, s{S_HD}, 6")
    a.I("s_lshl_b32 s54, s73, 5")
    a.I("s_add_u32 s75, s75, s54")
    a.I("s_lshl_b32 s54, s75, 2")
    a.I("v_and_b32 v8, 31, v1")
    a.I("v_lshlrev_b32 v8, 2, v8")
    a.I(f"buffer_load_dword v40, v8, {S4(RA)}, s54 offen sc1")
    a.I(f"s_lshl_b32 s54, s{S_QB}, 6")
    a.I("s_lshl_b32 s55, s74, 5")
    a.I("s_add_u32 s54, s54, s55")
    a.I("s_lshl_b32 s54, s54, 1")
    a.I("v_lshrrev_b32 v8, 5, v1")
    a.I("v_lshlrev_b32 v8, 3, v8")
    for q in range(4):
        a.I(f"buffer_load_dwordx2 v[{42+2*q}:{43+2*q}], v8, {S4(RB)}, s54 offen offset:{q*16}")
    lds_spin(a, M_ATT, 4, 8, 9, OPT.get('attslp', 1))
    stamp(a, "attdone")
    srd(a, RA, S_WO, 512*1024)
    a.I("s_lshl_b32 s68, s67, 14")
    a.I("s_lshl_b32 s70, s67, 17")
    for ks in range(8):
        for n in range(2):
            a.I(f"s_add_u32 m0, s68, {ks*2048+n*1024}")
            a.I(f"s_add_u32 s69, s70, {ks*16384+n*8192}")
            a.I(f"buffer_load_dwordx4 v{VW}, {S4(RA)}, s69 offen lds")
    a.I(f"s_add_u32 s54, s68, {L_V}")
    a.I(f"v_add_u32 v8, s54, v{VH}")
    for i in range(16):
        a.I(f"ds_write_b128 v8, {vr(ACC2+4*i,4)} offset:{i*1024}")
    a.I("s_waitcnt lgkmcnt(0)")
    lds_add1(a, M_T1, 9, 10)
    lds_spin(a, M_T1, 4, 9, 10)
    a.I("s_lshl_b32 s54, s67, 12")
    a.I(f"s_add_u32 s54, s54, {L_V}")
    a.I(f"v_add_u32 v8, s54, v{VH}")
    for p in range(4):
        for q in range(4):
            a.I(f"ds_read_b128 {vr(ACC2+p*16+q*4,4)}, v8 offset:{p*16384+q*1024}")
    a.I("s_waitcnt lgkmcnt(0)")
    for i in range(16):
        a.I(f"v_add_f32 v{ACC2+i}, v{ACC2+i}, v{ACC2+16+i}")
        a.I(f"v_add_f32 v{ACC2+32+i}, v{ACC2+32+i}, v{ACC2+48+i}")
    for i in range(16):
        a.I(f"v_add_f32 v{ACC2+i}, v{ACC2+i}, v{ACC2+32+i}")
    a.I("s_waitcnt vmcnt(0)")
    a.I("v_sub_f32 v41, 1.0, v40")
    a.I("v_cvt_pk_bf16_f32 v41, v41, v41")
    a.I("v_and_b32 v41, 0xffff0000, v41")
    for q in range(4):
        a.I(f"v_lshlrev_b32 v52, 16, v{42+2*q}")
        a.I(f"v_and_b32 v53, 0xffff0000, v{42+2*q}")
        a.I(f"v_lshlrev_b32 v54, 16, v{43+2*q}")
        a.I(f"v_and_b32 v55, 0xffff0000, v{43+2*q}")
        for j in range(4):
            a.I(f"v_add_f32 v{BPR+4*q+j}, v{ACC2+4*q+j}, v{52+j}")
        for j in range(4):
            a.I(f"v_mul_f32 v{BPR+4*q+j}, v{BPR+4*q+j}, v41")
    a.I("v_mov_b32 v39, v40")
    a.I(f"s_lshl_b32 s54, s{S_HD}, 8")
    a.I(f"s_add_u32 s54, s54, {FO_OFF}")
    a.I("v_lshlrev_b32 v40, 2, v1")
    a.I("s_cmp_eq_u32 s67, 1")
    a.I("s_cbranch_scc1 L_f5")
    a.I("s_cmp_lg_u32 s67, 0")
    a.I("s_cbranch_scc1 L_f4")
    if OPT.get("oldpoll"):
        poll(a, RC, 64, 40, 41, "s54")
    else:
        a.I("s_mov_b32 s50, 0x40000")
        for i in range(3):
            a.I(f"buffer_load_dword v{41+i}, v40, {S4(RC)}, s54 offen sc1")
            a.I("s_sleep 1")
        a.L("L_fo")
        for i in range(4):
            a.I(f"buffer_load_dword v{41+(i+3)%4}, v40, {S4(RC)}, s54 offen sc1")
            a.I("s_waitcnt vmcnt(3)")
            a.I(f"v_cmp_ne_u32 vcc, s{S_NONCE}, v{41+i}")
            a.I("s_cbranch_vccz L_fod")
        a.I("s_sub_u32 s50, s50, 1")
        a.I("s_cmp_lg_u32 s50, 0")
        a.I("s_cbranch_scc1 L_fo")
        a.L("L_fod")
        a.I("s_waitcnt vmcnt(0)")
    a.I("s_branch L_f4")
    a.L("L_f5")
    if OPT.get("opf", 1):
        a.I(f"v_mov_b32 v41, {L_MISC + 128}")
        a.I("ds_read_b32 v41, v41")
        srd_off(a, RB, S_WS, OF, 2*MB)
        a.I(f"s_lshl_b32 s55, s{S_HD}, 16")
        a.I("v_lshlrev_b32 v42, 10, v1")
        a.I("s_waitcnt lgkmcnt(0)")
        a.I(f"v_readfirstlane_b32 s{S_NONCE}, v41")
        a.I("s_mov_b64 s[56:57], 0")
        a.I("s_mov_b32 s50, 0x10000")
        a.L("L_opf")
        a.I(f"buffer_load_dword v41, v40, {S4(RC)}, s54 offen sc1")
        a.I("s_waitcnt vmcnt(0)")
        a.I(f"v_cmp_eq_u32 vcc, s{S_NONCE}, v41")
        a.I("s_nop 1")
        a.I("s_andn2_b64 s[58:59], vcc, s[56:57]")
        a.I("s_or_b64 s[56:57], s[56:57], vcc")
        a.I("s_cmp_eq_u64 s[58:59], 0")
        a.I("s_cbranch_scc1 L_opf2")
        a.I("s_mov_b64 exec, s[58:59]")
        for j in range(8):
            a.I(f"buffer_load_dword v120, v42, {S4(RB)}, s55 offen offset:{j*128} sc1")
        a.I("s_mov_b64 exec, -1")
        a.L("L_opf2")
        a.I("s_cmp_eq_u64 s[56:57], -1")
        a.I("s_cbranch_scc1 L_opf3")
        a.I("s_sub_u32 s50, s50, 1")
        a.I("s_cmp_lg_u32 s50, 0")
        a.I("s_cbranch_scc1 L_opf")
        a.L("L_opf3")
    a.L("L_f4")
    a.I("s_barrier")
    stamp(a, "T2")
    srd_off(a, RB, S_WS, OF, 2*MB)
    a.I(f"s_lshl_b32 s54, s{S_HD}, 16")
    a.I("s_lshl_b32 s55, s67, 12")
    a.I("s_add_u32 s54, s54, s55")
    a.I(f"s_add_u32 s55, s55, {L_V}")
    for half in range(2):
        for rt in range(2):
            for hh in range(4):
                off = rt*32768 + half*16384 + hh*1024
                a.I(f"s_add_u32 m0, s55, {off}")
                a.I(f"s_add_u32 s56, s54, {off}")
                a.I(f"buffer_load_dwordx4 v{VH}, {S4(RB)}, s56 offen sc1 lds")
    tr_lane_addr(a, VA0, 1, 32, 33, 4, 128)
    a.I("s_lshl_b32 s54, s74, 6")
    a.I(f"v_xor_b32 v{VA0}, s54, v{VA0}")
    a.I("s_lshl_b32 s54, s73, 15")
    a.I(f"s_add_u32 s54, s54, {L_V}")
    a.I(f"v_add_u32 v{VA1}, s54, v{VH}")
    FR = 40
    def p3reads(ks):
        F = FR + (ks % 8) * 8
        return [f"ds_read_b64_tr_b16 {vr(F,2)}, v{VA0} offset:{ks*2048}",
                f"ds_read_b64_tr_b16 {vr(F+2,2)}, v{VA0} offset:{ks*2048+1024}",
                f"ds_read_b128 {vr(F+4,4)}, v{VA1} offset:{ks*1024}"]
    for half in range(2):
        a.I(f"s_waitcnt vmcnt({8 if half == 0 else 0})")
        a.I("s_barrier")
        k0 = half*16
        for ks in range(k0, k0+4):
            a.I(J(p3reads(ks)))
        for ks in range(k0, k0+16):
            nxt = ks + 4
            if nxt < k0 + 16:
                a.I(J(p3reads(nxt)))
                a.I("s_waitcnt lgkmcnt(12)")
            else:
                a.I(f"s_waitcnt lgkmcnt({3*(k0+15-ks)})")
            F = FR + (ks % 8) * 8
            a.I(MF(ACC2, F, F+4, ACC2 if ks else None))
    a.I("s_nop 15")
    stamp(a, "p3mm")
    for i in range(16):
        a.I(f"v_fma_f32 v{ACC2+i}, v{ACC2+i}, v39, v{BPR+i}")
    for j in range(8):
        a.I(f"v_cvt_pk_bf16_f32 v{ACC2+j}, v{ACC2+2*j}, v{ACC2+2*j+1}")
    a.I("s_nop 1")
    a.I(f"v_permlane32_swap_b32 v{ACC2}, v{ACC2+2}")
    a.I(f"v_permlane32_swap_b32 v{ACC2+1}, v{ACC2+3}")
    a.I(f"v_permlane32_swap_b32 v{ACC2+4}, v{ACC2+6}")
    a.I(f"v_permlane32_swap_b32 v{ACC2+5}, v{ACC2+7}")
    srd(a, RA, S_OUT, 2*MB)
    a.I("s_lshl_b32 s54, s75, 10")
    a.I(f"s_lshl_b32 s55, s{S_QB}, 7")
    a.I("s_add_u32 s54, s54, s55")
    a.I("s_lshl_b32 s55, s74, 6")
    a.I("s_add_u32 s54, s54, s55")
    a.I("v_and_b32 v32, 31, v1")
    a.I("v_lshlrev_b32 v32, 10, v32")
    a.I("v_lshrrev_b32 v33, 5, v1")
    a.I("v_lshl_add_u32 v32, v33, 4, v32")
    ofl = {0: "", 1: " sc1", 2: " nt", 3: " sc0 sc1"}[OPT.get("outfl", 0)]
    a.I(f"buffer_store_dwordx4 {vr(ACC2,4)}, v32, {S4(RA)}, s54 offen{ofl}")
    a.I(f"buffer_store_dwordx4 {vr(ACC2+4,4)}, v32, {S4(RA)}, s54 offen offset:32{ofl}")
    stamp_flush(a)
    a.I("s_endpgm")

def attention(a):
    a.L("L_attn")
    stamp(a, "attn0")
    QA, QB = 8, 12
    KB = [16, 20]; VB = [24, 32]
    S0, S1, OA, OB = 40, 56, 72, 88
    VK, VV, VL = 2, 3, 4
    T0, T1, T2 = 104, 105, 106
    VKN, VVN, VVB, VCH, VONE, VNX = 107, 108, 109, 110, 111, 5
    a.I(f"s_and_b32 s63, s{S_W}, 3")
    a.I(f"s_lshr_b32 s64, s{S_W}, 2")
    a.I(f"v_lshlrev_b32 v{VL}, 4, v1")
    a.I(f"v_lshrrev_b32 v{T0}, 5, v1")
    a.I(f"v_and_b32 v{T1}, 15, v1")
    a.I(f"v_lshlrev_b32 v{T1}, 4, v{T1}")
    a.I(f"v_lshl_add_u32 v{VVB}, v{T0}, 8, v{T1}")
    a.I(f"v_add_u32 v{VVB}, {L_V}, v{VVB}")
    a.I("s_lshl_b32 s54, s64, 12")
    a.I(f"v_add_u32 v{VK}, s54, v{VL}")
    a.I(f"v_add_u32 v{VV}, s54, v{VVB}")
    a.I("s_lshl_b32 s54, s63, 2")
    a.I(f"s_add_u32 s54, s54, {M_CH}")
    a.I(f"v_mov_b32 v{VCH}, s54")
    a.I(f"v_mov_b32 v{VONE}, 1")
    a.I("s_mov_b32 s74, 0x0000ffff")
    a.I("s_mov_b32 s75, 0x0000ffff")
    a.I("s_mov_b32 s77, 0")
    a.I(f"s_lshl_b32 s66, s{S_QB}, 3")
    a.I("s_lshl_b32 s54, s63, 1")
    a.I("s_add_u32 s66, s66, s54")
    a.I("s_lshl_b32 s54, s63, 11")
    a.I(f"s_add_u32 s54, s54, {L_RING}")
    a.I(f"v_add_u32 v{T2}, s54, v{VL}")
    a.I(f"v_and_b32 v{T0}, 31, v1")
    a.I(f"v_cmp_eq_u32 vcc, 16, v{T0}")
    a.I(f"v_mov_b32 v{T1}, 0x3f803f80")
    a.I("s_nop 1")
    a.I(f"v_cndmask_b32 v{T0}, 0, v{T1}, vcc")
    for i in range(16):
        a.I(f"v_mov_b32 v{VB[0]+i}, v{T0}")
    lds_spin(a, M_KV, 4, T0, T1)
    stamp(a, "kvok")
    a.I(f"ds_read_b128 {vr(QA,4)}, v{T2}")
    a.I(f"ds_read_b128 {vr(QB,4)}, v{T2} offset:1024")
    for i in range(16):
        a.I(f"v_mov_b32 v{OA+i}, 0")
        a.I(f"v_mov_b32 v{OB+i}, 0")
    a.I("s_waitcnt lgkmcnt(0)")
    lds_add1(a, M_QRD, T0, T1)
    a.I("s_lshl_b32 s71, s64, 12")
    if STAMPS and OPT.get("fineattn"): a.I("s_mov_b32 s87, 24")
    a.I("s_mov_b32 s73, 0")

    def e_(S, i): return f"v_exp_f32 v{S+i}, v{S+i}"
    def c_(S, j): return f"v_cvt_pk_bf16_f32 v{S+j}, v{S+2*j}, v{S+2*j+1}"
    def tile(Sin, Sout, Qn, Kn, Ocur, Vcur_u0, Oprev, Vprev_u1, after_pv2, wait_s, after_s, wait_pv1, do_pv2=True, do_s=True):
        e = lambda i: e_(Sin, i)
        c = lambda j: c_(Sin, j)
        L = [e(0), e(1)]
        if do_pv2: L.append(MF(Oprev, Vprev_u1, Sout+4, Oprev))
        L += after_pv2
        L += [e(2), e(3), c(0), e(4), e(5), c(1)]
        L += wait_s
        if do_s: L.append(MF(Sout, Kn, Qn))
        L += after_s
        L += [e(6), e(7), c(2), e(8), e(9), c(3), e(10), e(11)]
        L += wait_pv1
        L.append(MF(Ocur, Vcur_u0, Sin, Ocur))
        L += [c(4), e(12), e(13), c(5), e(14), e(15), c(6), c(7)]
        return L
    fifo = []
    def dsr(tag, txt): fifo.append(tag); return txt
    def need(tag):
        idx = max(i for i, t in enumerate(fifo) if t == tag)
        return [f"s_waitcnt lgkmcnt({len(fifo) - 1 - idx})"]
    def vreads(t):
        kap = t & 1
        return ["s_mov_b64 exec, s[74:75]",
                dsr(("V", t), f"ds_read_b128 {vr(VB[kap],4)}, v{VV} offset:{t*1024}"),
                dsr(("V", t), f"ds_read_b128 {vr(VB[kap]+4,4)}, v{VV} offset:{t*1024+512}"),
                "s_mov_b64 exec, -1"]
    def kread(t): return [dsr(("K", t), f"ds_read_b128 {vr(KB[t & 1],4)}, v{VK} offset:{t*1024}")]
    a.raw(".p2align 6")
    a.L("L_aloop")
    if OPT.get("fineattn"):
        OPT["fine"] = 1; stamp_dyn(a); OPT["fine"] = 0
    a.I(f"v_add_u32 v{VK}, s71, v{VL}")
    a.I(f"v_add_u32 v{VV}, s71, v{VVB}")
    L = kread(0) + vreads(0) + kread(1)
    L += need(("K", 0))
    L.append(MF(S0, KB[0], QA))
    a.I(J(L))
    a.I("s_nop 7")
    a.I("s_nop 3")
    body = []
    for t in range(4):
        kap = t & 1
        A = []
        Sin, Sout = S0, S1
        A += [e_(Sin, 0), e_(Sin, 1)]
        if t > 0: A.append(MF(OB, VB[kap^1]+4, Sout+4, OB))
        if t + 1 < 4: A += vreads(t+1)
        A += [e_(Sin, 2), e_(Sin, 3), c_(Sin, 0), e_(Sin, 4), e_(Sin, 5), c_(Sin, 1)]
        A.append(MF(Sout, KB[kap], QB))
        if t + 2 < 4: A += kread(t+2)
        A += [e_(Sin, 6), e_(Sin, 7), c_(Sin, 2), e_(Sin, 8), e_(Sin, 9), c_(Sin, 3), e_(Sin, 10), e_(Sin, 11)]
        A += need(("V", t))
        A.append(MF(OA, VB[kap], Sin, OA))
        A += [c_(Sin, 4), e_(Sin, 12), e_(Sin, 13), c_(Sin, 5), e_(Sin, 14), e_(Sin, 15), c_(Sin, 6), c_(Sin, 7)]
        Sin, Sout = S1, S0
        B = [e_(Sin, 0), e_(Sin, 1), MF(OA, VB[kap]+4, Sout+4, OA)]
        if t == 3:
            B += ["s_mov_b64 exec, 1", dsr(("G",), f"ds_add_rtn_u32 v{VNX}, v{VCH}, v{VONE}"), "s_mov_b64 exec, -1"]
        B += [e_(Sin, 2), e_(Sin, 3), c_(Sin, 0), e_(Sin, 4), e_(Sin, 5), c_(Sin, 1)]
        if t + 1 < 4:
            B += need(("K", t+1))
            B.append(MF(Sout, KB[kap^1], QA))
        B += [e_(Sin, 6), e_(Sin, 7), c_(Sin, 2), e_(Sin, 8), e_(Sin, 9), c_(Sin, 3), e_(Sin, 10), e_(Sin, 11)]
        B.append(MF(OB, VB[kap], Sin, OB))
        B += [c_(Sin, 4), e_(Sin, 12), e_(Sin, 13), c_(Sin, 5), e_(Sin, 14), e_(Sin, 15), c_(Sin, 6), c_(Sin, 7)]
        body += A + B
    a.I(J(body))
    a.I("s_waitcnt lgkmcnt(0)")
    a.I(f"v_readfirstlane_b32 s70, v{VNX}")
    a.I(MF(OB, VB[1]+4, S1+4, OB))
    a.I("s_add_u32 s70, s70, 2")
    a.I("s_lshl_b32 s71, s70, 12")
    a.I("s_cmp_lg_u32 s73, 0")
    a.I("s_cbranch_scc1 L_aloop2")
    a.I("s_mov_b32 s73, 1")
    a.I("s_waitcnt vmcnt(0)")
    a.I(f"s_cmp_ge_u32 s{S_W}, 4")
    a.I("s_cbranch_scc1 L_aloop1")
    lds_add1(a, M_HST, T0, T1)
    a.L("L_aloop1")
    lds_spin(a, M_KV, 8, T0, T1)
    a.L("L_aloop2")
    a.I("s_cmp_lt_u32 s70, 16")
    a.I("s_cbranch_scc1 L_aloop")
    a.I("s_waitcnt lgkmcnt(0)")
    a.I("s_nop 7")
    stamp(a, "aloop")
    a.I("s_lshl_b32 s54, s63, 2")
    a.I(f"s_add_u32 s55, s54, {M_PAIR}")
    a.I(f"s_add_u32 s76, s54, {M_PFLAG}")
    a.I(f"v_mov_b32 v{T0}, s55")
    a.I(f"v_mov_b32 v{T1}, 1")
    a.I("s_mov_b64 exec, 1")
    a.I(f"ds_add_rtn_u32 v{T2}, v{T0}, v{T1}")
    a.I("s_mov_b64 exec, -1")
    a.I("s_mul_i32 s54, s63, 4608")
    a.I(f"s_add_u32 s54, s54, {L_XCH}")
    a.I(f"v_add_u32 v{S0}, s54, v{VL}")
    a.I(f"v_lshlrev_b32 v{S0+1}, 2, v1")
    a.I(f"v_add_u32 v{S0+1}, s54, v{S0+1}")
    a.I("s_waitcnt lgkmcnt(0)")
    a.I(f"v_readfirstlane_b32 s55, v{T2}")
    a.I("s_nop 4")
    a.I("s_cmp_lg_u32 s55, 0")
    a.I("s_cbranch_scc1 L_second")
    lds_spin(a, M_FFN, 4, T0, T1)
    a.I(f"ds_write_b128 v{S0}, {vr(OA,4)}")
    a.I(f"ds_write_b128 v{S0}, {vr(OA+4,4)} offset:1024")
    a.I(f"ds_write_b128 v{S0}, {vr(OB,4)} offset:2048")
    a.I(f"ds_write_b128 v{S0}, {vr(OB+4,4)} offset:3072")
    a.I(f"ds_write_b32 v{S0+1}, v{OA+8} offset:4096")
    a.I(f"ds_write_b32 v{S0+1}, v{OB+8} offset:4352")
    a.I("s_waitcnt lgkmcnt(0)")
    lds_add1(a, "s76", T0, T1)
    a.I("s_waitcnt lgkmcnt(0)")
    stamp_flush(a)
    a.I("s_endpgm")
    a.L("L_second")
    lds_spin(a, "s76", 1, T0, T1)
    a.I(f"ds_read_b128 {vr(S1,4)}, v{S0}")
    a.I(f"ds_read_b128 {vr(S1+4,4)}, v{S0} offset:1024")
    a.I(f"ds_read_b128 {vr(S1+8,4)}, v{S0} offset:2048")
    a.I(f"ds_read_b128 {vr(S1+12,4)}, v{S0} offset:3072")
    a.I(f"ds_read_b32 v{T0}, v{S0+1} offset:4096")
    a.I(f"ds_read_b32 v{T1}, v{S0+1} offset:4352")
    a.I(f"v_mov_b32 v{T2}, {L_MISC + 128}")
    a.I(f"ds_read_b32 v{T2}, v{T2}")
    a.I("s_waitcnt lgkmcnt(0)")
    a.I(f"v_readfirstlane_b32 s{S_NONCE}, v{T2}")
    for i in range(8):
        a.I(f"v_add_f32 v{OA+i}, v{OA+i}, v{S1+i}")
        a.I(f"v_add_f32 v{OB+i}, v{OB+i}, v{S1+8+i}")
    a.I(f"v_add_f32 v{OA+8}, v{OA+8}, v{T0}")
    a.I(f"v_add_f32 v{OB+8}, v{OB+8}, v{T1}")
    a.L("L_fin")
    for O in (OA, OB):
        a.I(f"v_mov_b32 v{O+9}, v{O+8}")
    a.I("s_nop 1")
    for O in (OA, OB):
        a.I(f"v_permlane32_swap_b32 v{O+9}, v{O+8}")
    a.I("s_nop 1")
    slow_check(a, OA, OB, T0, T1)
    lds_add1(a, M_ATT, T0, T1)
    for O in (OA, OB):
        a.I(f"v_rcp_f32 v{O+9}, v{O+9}")
    a.I("s_nop 0")
    for O in (OA, OB):
        for i in range(8):
            a.I(f"v_mul_f32 v{O+i}, v{O+i}, v{O+9}")
    for O in (OA, OB):
        for j in range(4):
            a.I(f"v_cvt_pk_bf16_f32 v{O+j}, v{O+2*j}, v{O+2*j+1}")
    srd_off(a, RA, S_WS, OF, 2*MB)
    srd_off(a, RC, S_WS, FLG, FLG_SIZE)
    a.I("s_lshl_b32 s54, s66, 5")
    a.I(f"s_add_u32 s54, s54, s{S_HD}")
    a.I("s_lshl_b32 s55, s54, 10")
    a.I(f"buffer_store_dwordx4 {vr(OA,4)}, v{VL}, {S4(RA)}, s55 offen sc1")
    a.I("s_add_u32 s55, s55, 32768")
    a.I(f"buffer_store_dwordx4 {vr(OB,4)}, v{VL}, {S4(RA)}, s55 offen sc1")
    a.I("s_lshl_b32 s54, s54, 2")
    a.I(f"s_add_u32 s54, s54, {FO_OFF}")
    a.I(f"v_mov_b32 v{T0}, s{S_NONCE}")
    a.I(f"v_lshlrev_b32 v{T1}, 7, v1")
    a.I("s_waitcnt vmcnt(0)")
    a.I("s_mov_b64 exec, 3")
    a.I(f"buffer_store_dword v{T0}, v{T1}, {S4(RC)}, s54 offen sc1")
    a.I("s_mov_b64 exec, -1")
    stamp_flush(a)
    a.I("s_endpgm")
    slow_path(a, QA, QB, KB, VB, S0, S1, OA, OB, VL, T0, T1, T2)

def slow_check(a, OA, OB, T0, T1):
    if OPT.get("noslow"): return
    a.I(f"v_mul_f32 v{T0}, 0, v{OA}")
    for i in range(1, 8):
        a.I(f"v_fma_f32 v{T0}, v{OA+i}, 0, v{T0}")
    for i in range(8):
        a.I(f"v_fma_f32 v{T0}, v{OB+i}, 0, v{T0}")
    a.I(f"v_cmp_eq_f32 s[78:79], 0, v{T0}")
    a.I(f"s_mov_b32 s80, {hex(f2u(2.0**-60))}")
    a.I(f"s_mov_b32 s81, {hex(f2u(2.0**60))}")
    for O in (OA, OB):
        a.I(f"v_cmp_le_f32 s[82:83], s80, v{O+9}")
        a.I(f"v_cmp_ge_f32 vcc, s81, v{O+9}")
        a.I("s_nop 1")
        a.I("s_and_b64 s[78:79], s[78:79], s[82:83]")
        a.I("s_and_b64 s[78:79], s[78:79], vcc")
    if OPT.get("forceslow"):
        a.I("s_mov_b64 s[78:79], 0")
    a.I("s_cmp_eq_u64 s[78:79], -1")
    a.I("s_cbranch_scc1 L_ok")
    a.I("s_cmp_eq_u32 s77, 0")
    a.I("s_cbranch_scc1 L_slow")
    a.L("L_ok")

def slow_path(a, QA, QB, KB, VB, S0, S1, OA, OB, VL, T0, T1, T2):
    if OPT.get("noslow"): return
    K, V0, M, C = KB[0], VB[0], 108, 112
    a.L("L_slow")
    a.I("s_mov_b32 s77, 1")
    a.I(f"v_lshrrev_b32 v{T0}, 5, v1")
    a.I(f"v_and_b32 v{T1}, 15, v1")
    a.I(f"v_lshlrev_b32 v{T1}, 4, v{T1}")
    a.I(f"v_lshl_add_u32 v{T2}, v{T0}, 8, v{T1}")
    a.I(f"v_add_u32 v{T2}, {L_V}, v{T2}")
    a.I(f"v_mov_b32 v{M}, 0xff800000")
    a.I(f"v_mov_b32 v{M+1}, 0xff800000")
    a.I(f"v_mov_b32 v{T0}, v{VL}")
    a.I("s_mov_b32 s73, 0")
    a.L("L_slow1")
    a.I(f"ds_read_b128 {vr(K,4)}, v{T0}")
    a.I("s_waitcnt lgkmcnt(0)")
    a.I(MF(S0, K, QA))
    a.I(MF(S1, K, QB))
    a.I("s_nop 15")
    for S, m in ((S0, M), (S1, M+1)):
        for i in range(0, 16, 2):
            a.I(f"v_max3_f32 v{m}, v{S+i}, v{S+i+1}, v{m}")
    a.I(f"v_add_u32 v{T0}, 1024, v{T0}")
    a.I("s_add_u32 s73, s73, 1")
    a.I("s_cmp_lt_u32 s73, 64")
    a.I("s_cbranch_scc1 L_slow1")
    for m in (M, M+1):
        a.I(f"v_mov_b32 v{T1}, v{m}")
        a.I("s_nop 1")
        a.I(f"v_permlane32_swap_b32 v{T1}, v{m}")
        a.I("s_nop 1")
        a.I(f"v_max_f32 v{m}, v{m}, v{T1}")
    for t in range(2):
        for i in range(16):
            a.I(f"v_sub_f32 v{C+16*t+i}, 0, v{M+t}")
    for i in range(16):
        a.I(f"v_mov_b32 v{OA+i}, 0")
        a.I(f"v_mov_b32 v{OB+i}, 0")
    a.I(f"v_mov_b32 v{T0}, v{VL}")
    a.I("s_mov_b32 s73, 0")
    a.L("L_slow2")
    a.I(f"ds_read_b128 {vr(K,4)}, v{T0}")
    a.I("s_mov_b64 exec, s[74:75]")
    a.I(f"ds_read_b128 {vr(V0,4)}, v{T2}")
    a.I(f"ds_read_b128 {vr(V0+4,4)}, v{T2} offset:512")
    a.I("s_mov_b64 exec, -1")
    a.I("s_waitcnt lgkmcnt(0)")
    a.I(MF(S0, K, QA, C))
    a.I(MF(S1, K, QB, C+16))
    a.I("s_nop 15")
    for S, O in ((S0, OA), (S1, OB)):
        for i in range(16):
            a.I(f"v_exp_f32 v{S+i}, v{S+i}")
        a.I("s_nop 0")
        for j in range(8):
            a.I(f"v_cvt_pk_bf16_f32 v{S+j}, v{S+2*j}, v{S+2*j+1}")
        a.I("s_nop 1")
        a.I(MF(O, V0, S, O))
        a.I(MF(O, V0+4, S+4, O))
    a.I(f"v_add_u32 v{T0}, 1024, v{T0}")
    a.I(f"v_add_u32 v{T2}, 1024, v{T2}")
    a.I("s_add_u32 s73, s73, 1")
    a.I("s_cmp_lt_u32 s73, 64")
    a.I("s_cbranch_scc1 L_slow2")
    a.I("s_nop 15")
    a.I("s_branch L_fin")

def gen():
    a = Asm()
    prologue(a)
    producer(a, False)
    consumer(a)
    a.L("L_aux")
    producer(a, True)
    ffn2_p3(a)
    attention(a)
    a.L("L_end")
    a.I("s_endpgm")
    a.L("L_code_end")
    a.I("s_endpgm")
    return a

HEADER = open("cdna_kernels/" + NAME + ".s.ref").read().split("; Override launch")[0]

def build(path):
    a = gen()
    out = HEADER + f"; WSLAYOUT QF={QF} KF={KF} VF={VF} HF={HF} GO={GO} OF={OF}\n"
    out += f"; @launch grid=(256,1,1) block=(768,1,1) lds={LDS_TOTAL}\n"
    out += '.amdgcn_target "amdgcn-amd-amdhsa--gfx950"\n.text\n' + a.text()
    out += f""".section .rodata,"a"
.p2align 6
.amdhsa_kernel {KN}
  .amdhsa_next_free_vgpr 168
  .amdhsa_next_free_sgpr 102
  .amdhsa_accum_offset 168
  .amdhsa_group_segment_fixed_size 0
  .amdhsa_kernarg_size 96
  .amdhsa_user_sgpr_count 2
  .amdhsa_user_sgpr_kernarg_segment_ptr 1
  .amdhsa_system_sgpr_workgroup_id_x 1
.end_amdhsa_kernel
"""
    open(path, "w").write(out)
    probs = check_linear(a.lines, "k")
    if STAMPS: print("stamps:", ",".join(_stamp_names))
    return probs

if __name__ == "__main__":
    for x in list(sys.argv[1:]):
        if x.startswith("-D"):
            k, _, v = x[2:].partition("=")
            OPT[k] = int(v) if v else 1
            sys.argv.remove(x)
    if "--stamps" in sys.argv:
        STAMPS = True; sys.argv.remove("--stamps")
    path = sys.argv[1] if len(sys.argv) > 1 else "cdna_kernels/" + NAME + ".s"
    probs = build(path)
    for p in probs: print("HAZARD:", p)
    print("written", path, "problems:", len(probs))
```

```python
import sys, struct
from asmlib import *

NAME = "gated_mix__mha_block__dense_activation_squared_relu__prompt"
KN = NAME + "_kernel"
MB = 1 << 20
QF, KF, VF, HF, GO, OF, FLG = 4096, 2*MB + 8192, 4*MB + 12288, 6*MB + 16384, 12*MB, 14*MB + 4096, 16*MB + 8192
HF_SIZE = 86 * 65536
FA_OFF, FH_OFF, FO_OFF = 0, 4096, 8192
FLG_SIZE = 16384
QSCALE = 0.25 * 1.4426950408889634
STAMP_OFF = 32*MB
STAMPS = False
OPT = {}
def f2u(x): return struct.unpack("<I", struct.pack("<f", x))[0]

S_AX, S_WQKV, S_WO, S_W1, S_B1, S_W2, S_B2, S_GW, S_OUT, S_DBG, S_WS = 4, 6, 8, 12, 14, 16, 18, 20, 22, 24, 26
S_W = 3
S_RB, S_CG, S_START = 29, 30, 31
RA, RB, RC, RD = 32, 36, 40, 44
S_NONCE, S_HD, S_QB = 60, 61, 62
L_K, L_V, L_RING, L_MISC = 0, 65536, 131072, 131072 + 24576
L_XCH = L_RING
M_KV, M_H, M_FA, M_QRD, M_HST, M_FFN, M_ATT, M_T1 = [L_MISC + 4*i for i in range(8)]
M_PAIR, M_PFLAG, M_CH = L_MISC + 64, L_MISC + 96, L_MISC + 160
LDS_TOTAL = 163840

def srd(a, dst, base, size):
    a.I(f"s_mov_b32 s{dst}, s{base}")
    a.I(f"s_mov_b32 s{dst+1}, s{base+1}")
    a.I(f"s_mov_b32 s{dst+2}, {size}")
    a.I(f"s_mov_b32 s{dst+3}, 0x20000")
def srd_off(a, dst, base, off, size):
    a.I(f"s_add_u32 s{dst}, s{base}, {off}")
    a.I(f"s_addc_u32 s{dst+1}, s{base+1}, 0")
    a.I(f"s_mov_b32 s{dst+2}, {size}")
    a.I(f"s_mov_b32 s{dst+3}, 0x20000")
def MF(d, A, B, c=None):
    cc = "0" if c is None else vr(c, 16)
    return f"v_mfma_f32_32x32x16_bf16 {vr(d,16)}, {vr(A,4)}, {vr(B,4)}, {cc}"
def S4(r): return f"s[{r}:{r+3}]"
def J(L): return "\n".join(L)

_stamp_names = []
def stamp(a, name):
    if not STAMPS: return
    if name not in _stamp_names: _stamp_names.append(name)
    i = _stamp_names.index(name)
    a.I("s_waitcnt lgkmcnt(0)")
    a.I("s_memtime s[98:99]")
    a.I("s_memrealtime s[100:101]")
    a.I("s_waitcnt lgkmcnt(0)")
    a.I(f"v_writelane_b32 v6, s98, {i}")
    a.I(f"v_writelane_b32 v7, s100, {i}")
def stamp_dyn(a):
    if not (STAMPS and OPT.get("fine")): return
    a.I("s_memtime s[98:99]")
    a.I("s_memrealtime s[100:101]")
    a.I("s_waitcnt lgkmcnt(0)")
    a.I("s_mov_b32 s88, m0")
    a.I("s_mov_b32 m0, s87")
    a.I("s_nop 3")
    a.I("v_writelane_b32 v6, s98, m0")
    a.I("v_writelane_b32 v7, s100, m0")
    a.I("s_mov_b32 m0, s88")
    a.I("s_add_u32 s87, s87, 1")
def stamp_flush(a):
    if not STAMPS: return
    a.I("s_waitcnt vmcnt(0)")
    stamp(a, "end")
    a.I(f"s_add_u32 s96, s{S_WS}, {STAMP_OFF}")
    a.I(f"s_addc_u32 s97, s{S_WS+1}, 0")
    a.I("s_mul_i32 s98, s2, 12")
    a.I(f"s_add_u32 s98, s98, s{S_W}")
    a.I("s_lshl_b32 s98, s98, 9")
    a.I("v_lshlrev_b32 v2, 2, v1")
    a.I("v_add_u32 v2, s98, v2")
    a.I("s_mov_b64 exec, -1")
    a.I("global_store_dword v2, v6, s[96:97]")
    a.I("global_store_dword v2, v7, s[96:97] offset:256")
    a.I("s_waitcnt vmcnt(0)")

def tr_lane_addr(a, dst, lane, tmp, tmp2, hrows, pitch):
    a.I(f"v_bfe_u32 v{tmp}, v{lane}, 2, 2")
    a.I(f"v_lshrrev_b32 v{tmp2}, 5, v{lane}")
    a.I(f"v_mul_u32_u24 v{tmp2}, {hrows}, v{tmp2}")
    a.I(f"v_add_u32 v{tmp}, v{tmp}, v{tmp2}")
    a.I(f"v_mul_u32_u24 v{dst}, {pitch}, v{tmp}")
    a.I(f"v_bfe_u32 v{tmp}, v{lane}, 4, 1")
    a.I(f"v_lshlrev_b32 v{tmp}, 1, v{tmp}")
    a.I(f"v_bfe_u32 v{tmp2}, v{lane}, 1, 1")
    a.I(f"v_add_u32 v{tmp}, v{tmp}, v{tmp2}")
    a.I(f"v_bfe_u32 v{tmp2}, v{lane}, 3, 1")
    a.I(f"v_lshlrev_b32 v{tmp2}, 2, v{tmp2}")
    a.I(f"v_xor_b32 v{tmp}, v{tmp}, v{tmp2}")
    a.I(f"v_lshl_add_u32 v{dst}, v{tmp}, 4, v{dst}")
    a.I(f"v_and_b32 v{tmp}, 1, v{lane}")
    a.I(f"v_lshl_add_u32 v{dst}, v{tmp}, 3, v{dst}")

def dma_w_lane_off(a, dst, lane, tmp, tmp2, pitch):
    a.I(f"v_lshrrev_b32 v{tmp}, 3, v{lane}")
    a.I(f"v_mul_u32_u24 v{dst}, {pitch}, v{tmp}")
    a.I(f"v_bfe_u32 v{tmp}, v{lane}, 4, 1")
    a.I(f"v_lshlrev_b32 v{tmp}, 2, v{tmp}")
    a.I(f"v_and_b32 v{tmp2}, 7, v{lane}")
    a.I(f"v_xor_b32 v{tmp}, v{tmp}, v{tmp2}")
    a.I(f"v_lshl_add_u32 v{dst}, v{tmp}, 4, v{dst}")

_lab = [0]
def lab(p):
    _lab[0] += 1
    return f"L_{p}{_lab[0]}"

def poll(a, srd_reg, nlanes, voff, vtmp, soff, slp=1):
    l0, l1 = lab("poll"), lab("polld")
    if nlanes < 64:
        a.I(f"s_mov_b32 exec_lo, {hex((1 << nlanes) - 1)}")
        a.I("s_mov_b32 exec_hi, 0")
    a.I("s_mov_b32 s50, 0x40000")
    a.L(l0)
    a.I(f"buffer_load_dword v{vtmp}, v{voff}, {S4(srd_reg)}, {soff} offen sc1")
    a.I("s_waitcnt vmcnt(0)")
    a.I(f"v_cmp_ne_u32 vcc, s{S_NONCE}, v{vtmp}")
    a.I(f"s_cbranch_vccz {l1}")
    a.I("s_sub_u32 s50, s50, 1")
    a.I("s_cmp_eq_u32 s50, 0")
    a.I(f"s_cbranch_scc1 {l1}")
    a.I(f"s_sleep {slp}")
    a.I(f"s_branch {l0}")
    a.L(l1)
    a.I("s_mov_b64 exec, -1")

def lds_spin(a, addr, target, vaddr, vtmp, slp=1):
    l0, l1 = lab("spin"), lab("spind")
    a.I(f"v_mov_b32 v{vaddr}, {addr}")
    a.I("s_mov_b32 s50, 0x400000")
    a.L(l0)
    a.I(f"ds_read_b32 v{vtmp}, v{vaddr}")
    a.I("s_waitcnt lgkmcnt(0)")
    a.I(f"v_readfirstlane_b32 s51, v{vtmp}")
    a.I("s_sub_u32 s50, s50, 1")
    a.I(f"s_cmp_ge_u32 s51, {target}")
    a.I(f"s_cbranch_scc1 {l1}")
    a.I("s_cmp_eq_u32 s50, 0")
    a.I(f"s_cbranch_scc1 {l1}")
    a.I(f"s_sleep {slp}")
    a.I(f"s_branch {l0}")
    a.L(l1)

def lds_add1(a, addr, vaddr, vtmp):
    a.I(f"v_mov_b32 v{vaddr}, {addr}")
    a.I(f"v_mov_b32 v{vtmp}, 1")
    a.I("s_mov_b64 exec, 1")
    a.I(f"ds_add_u32 v{vaddr}, v{vtmp}")
    a.I("s_mov_b64 exec, -1")

def flag_store(a, soff, v0_, v1_):
    a.I(f"v_mov_b32 v{v0_}, s{S_NONCE}")
    a.I(f"v_mov_b32 v{v1_}, 0")
    a.I("s_mov_b64 exec, 1")
    a.I(f"buffer_store_dword v{v0_}, v{v1_}, {S4(RC)}, {soff} offen sc1")
    a.I("s_mov_b64 exec, -1")

def prologue(a):
    a.raw(f".globl {KN}\n.p2align 8\n.type {KN},@function\n{KN}:")
    a.I("s_cmp_ge_u32 s2, 256")
    a.I("s_cbranch_scc1 L_end")
    a.I("s_load_dwordx4 s[4:7], s[0:1], 0")
    a.I("s_load_dwordx2 s[8:9], s[0:1], 16")
    a.I("s_load_dwordx4 s[12:15], s[0:1], 32")
    a.I("s_load_dwordx4 s[16:19], s[0:1], 48")
    a.I("s_load_dwordx4 s[20:23], s[0:1], 64")
    a.I("s_load_dwordx4 s[24:27], s[0:1], 80")
    a.I("v_lshrrev_b32 v2, 6, v0")
    a.I("v_and_b32 v1, 63, v0")
    a.I(f"v_readfirstlane_b32 s{S_W}, v2")
    if STAMPS:
        a.I("v_mov_b32 v6, 0"); a.I("v_mov_b32 v7, 0")
    a.I("s_and_b32 s52, s2, 7")
    a.I("s_lshr_b32 s53, s2, 3")
    a.I("s_lshr_b32 s54, s52, 2")
    a.I("s_lshl_b32 s54, s54, 4")
    a.I("s_lshr_b32 s55, s53, 1")
    a.I(f"s_add_u32 s{S_RB}, s54, s55")
    a.I("s_and_b32 s54, s52, 3")
    a.I("s_lshl_b32 s54, s54, 1")
    a.I("s_and_b32 s55, s53, 1")
    a.I(f"s_add_u32 s{S_CG}, s54, s55")
    a.I(f"s_mul_i32 s54, s{S_CG}, 6")
    a.I(f"s_min_u32 s{S_START}, s54, 37")
    a.I(f"s_lshl_b32 s{S_HD}, s52, 2")
    a.I("s_and_b32 s54, s53, 3")
    a.I(f"s_add_u32 s{S_HD}, s{S_HD}, s54")
    a.I(f"s_lshr_b32 s{S_QB}, s2, 5")
    a.I("s_waitcnt lgkmcnt(0)")
    stamp(a, "karg")
    a.I(f"s_cmp_ge_u32 s{S_W}, 8")
    a.I("s_cbranch_scc1 L_aux")
    a.I(f"s_cmp_lt_u32 s{S_W}, 4")
    a.I("s_cbranch_scc1 L_cons")

GATEPOS = 3
def producer(a, aux):
    T = "a" if aux else "p"
    a.I(f"s_sub_u32 s67, s{S_W}, 4")
    a.I(f"s_lshl_b32 s54, s{S_RB}, 16")
    srd_off(a, RA, S_AX, "s54", 65536)
    srd(a, RB, S_WQKV, 512*3072)
    a.I("v_lshrrev_b32 v2, 3, v1")
    a.I("s_lshl_b32 s54, s67, 3")
    a.I("v_add_u32 v2, s54, v2")
    a.I("v_lshrrev_b32 v3, 4, v1")
    a.I("s_and_b32 s54, s67, 1")
    a.I("s_lshl_b32 s54, s54, 2")
    a.I("v_add_u32 v3, s54, v3")
    a.I("v_and_b32 v4, 7, v1")
    a.I("v_xor_b32 v3, v3, v4")
    a.I("v_lshlrev_b32 v3, 4, v3")
    a.I("v_lshl_add_u32 v12, v2, 10, v3")
    a.I("s_lshl_b32 s68, s67, 10")
    def woffs(dst, pitch, segshift):
        for j in range(3):
            a.I(f"v_add_u32 v2, {64*j}, v1")
            a.I("v_mul_u32_u24 v3, 171, v2")
            a.I("v_lshrrev_b32 v3, 12, v3")
            a.I("v_mul_u32_u24 v4, 24, v3")
            a.I("v_sub_u32 v2, v2, v4")
            a.I("v_lshrrev_b32 v4, 3, v2")
            a.I("v_and_b32 v2, 7, v2")
            a.I("v_bfe_u32 v5, v3, 1, 1")
            a.I("v_lshlrev_b32 v5, 2, v5")
            a.I("v_xor_b32 v2, v2, v5")
            a.I("v_lshlrev_b32 v2, 4, v2")
            a.I(f"v_mul_u32_u24 v5, {pitch}, v3")
            a.I(f"v_lshl_add_u32 v5, v4, {segshift}, v5")
            a.I(f"v_add_u32 v{dst+j}, v5, v2")
    woffs(13, 3072, 10)
    a.I("s_mul_i32 s69, s67, 3072")
    a.I("s_add_u32 s69, s69, 0x10000")
    a.I(f"s_lshl_b32 s70, s{S_CG}, 7")
    a.I(f"s_mul_i32 s71, s67, {8*3072}")
    a.I("s_add_u32 s70, s70, s71")
    def issue_x(c):
        if OPT.get("p1noprod"): return
        a.I(f"s_add_u32 m0, s68, {c*8192}")
        a.I(f"s_movk_i32 s81, {c*128}")
        a.I(f"buffer_load_dwordx4 v12, {S4(RA)}, s81 offen lds")
    def issue_w(c):
        if OPT.get("p1noprod"): return
        if c < 8:
            a.I(f"s_add_u32 s82, s70, {c*64*3072}")
            vo, R = 13, RB
        else:
            a.I(f"s_add_u32 s82, s71, {(c-8)*64*2752}")
            vo, R = 16, RC
        for j in range(3):
            a.I(f"s_add_u32 m0, s69, {(c&3)*24576 + j*1024}")
            a.I("s_nop 0")
            a.I(f"buffer_load_dwordx4 v{vo+j}, {S4(R)}, s82 offen lds")
    sched = OPT.get("sched", 0)
    if sched == 0:
        pre = [("X",0),("W",0),("X",1),("W",1),("X",2),("W",2)]
        post = {c: ([("X",c+3)] if c+3 < 8 else []) + ([("W",c+3)] if c+3 < 16 else []) for c in range(16)}
    elif sched == 1:
        pre = [("X",0),("W",0),("X",1),("W",1),("X",2),("W",2),("X",3),("W",3),("X",4),("X",5),("X",6),("X",7)]
        post = {c: ([("W",c+3)] if (c >= 1 and c+3 < 16) else []) for c in range(16)}
    elif sched == 2:
        pre = [("X",0),("W",0),("X",1),("W",1),("X",2),("W",2),("X",3),("W",3)]
        post = {c: ([("W",c+3)] if (c >= 1 and c+3 < 16) else []) for c in range(16)}
        post[0] = [("X",4),("X",5),("X",6),("X",7)]
    fifo = []
    def do(item):
        k, c = item
        if k == "X":
            if OPT.get("skipx"): fifo.append((item, 0)); return
            issue_x(c); fifo.append((item, 1))
        else:
            if OPT.get("skipw") and c < 8: fifo.append((item, 0)); return
            issue_w(c); fifo.append((item, 3))
    for it in pre: do(it)
    if OPT.get("pfprod") and not aux:
        a.I(f"s_mov_b32 s89, s{S_W}")
        a.I(f"s_sub_u32 s{S_W}, s{S_W}, 4")
        l2_prefetch(a, 0)
        a.I(f"s_mov_b32 s{S_W}, s89")
        fifo.append(("pf", 2))
    stamp(a, "issued3")
    nside = 0
    if aux:
        nside = aux_side_issue(a)
    srd(a, RC, S_W1, 512*2752)
    woffs(16, 2752, 7)
    a.I(f"s_lshl_b32 s71, s{S_START}, 6")
    a.I(f"s_mul_i32 s72, s67, {8*2752}")
    a.I("s_add_u32 s71, s71, s72")
    fap = OPT.get("fapos", 2)
    assert fap >= 2
    for c in range(16):
        need = [("W", c)] + ([("X", c)] if c < 8 else [])
        idx = max(i for i, (it, _) in enumerate(fifo) if it in need)
        allow = sum(k for _, k in fifo[idx+1:])
        if c == 0 and STAMPS and OPT.get("fine"): a.I("s_mov_b32 s87, 24")
        stamp_dyn(a)
        a.I(f"s_waitcnt vmcnt({allow})")
        stamp_dyn(a)
        a.I("s_barrier")
        for it in post[c]: do(it)
        if aux and c == 2:
            fifo.append(("side", aux_side_loads(a)))
        if aux and c == 6:
            aux_gate(a)
            fifo.append(("g", 1))
        if aux and c == 7:
            fifo.append(("nonce", aux_nonce_issue(a)))
        if aux and c == 11:
            aux_nonce_take(a)
        if aux and c == 9 + fap:
            aux_publish_fa(a)
    a.I("s_barrier")
    if aux:
        aux_after_e1(a)
    else:
        a.I("s_barrier")
        a.I("s_branch L_attn")

def l2_prefetch(a, part):
    a.I("s_and_b32 s52, s2, 7")
    a.I("s_lshr_b32 s53, s2, 3")
    a.I("s_lshl_b32 s54, s53, 4")
    a.I(f"s_lshl_b32 s55, s{S_W}, 2")
    a.I("s_add_u32 s56, s54, s55")
    if part == 2:
        a.I(f"s_cmp_lg_u32 s{S_W}, 0")
        a.I("s_cbranch_scc1 L_pf2")
        srd(a, RC, S_WQKV, 512*3072)
        a.I("s_lshl_b32 s54, s53, 3")
        a.I("s_add_u32 s54, s54, 256")
        a.I("s_mul_i32 s54, s54, 3072")
        a.I("s_and_b32 s55, s52, 3")
        a.I("s_lshl_b32 s55, s55, 8")
        a.I("s_add_u32 s54, s54, s55")
        a.I("v_lshrrev_b32 v21, 3, v1")
        a.I("v_mul_u32_u24 v21, 3072, v21")
        a.I("v_bfe_u32 v22, v1, 1, 2")
        a.I("v_min_u32 v22, 2, v22")
        a.I("v_lshl_add_u32 v21, v22, 10, v21")
        a.I("v_and_b32 v22, 1, v1")
        a.I("v_lshl_add_u32 v21, v22, 7, v21")
        a.I(f"buffer_load_dword v25, v21, {S4(RC)}, s54 offen")
        a.L("L_pf2")
    elif part == 0:
        G = OPT.get("pfg", 128)
        sh = {128: 7, 64: 6, 32: 5}[G]
        srd(a, RC, S_AX, 2*MB)
        a.I("s_lshr_b32 s54, s52, 2")
        a.I("s_lshl_b32 s54, s54, 10")
        a.I("s_lshl_b32 s55, s53, 5")
        a.I("s_add_u32 s54, s54, s55")
        a.I(f"s_lshl_b32 s55, s{S_W}, 3")
        a.I("s_add_u32 s54, s54, s55")
        a.I("s_lshl_b32 s54, s54, 10")
        a.I(f"v_lshlrev_b32 v20, {sh}, v1")
        for i in range(0 if OPT.get("nopfx") else 8192 // (64*G)):
            a.I(f"buffer_load_dword v24, v20, {S4(RC)}, s54 offen")
            a.I(f"s_add_u32 s54, s54, {64*G}")
        srd(a, RC, S_WQKV, 512*3072)
        a.I("s_mul_i32 s54, s56, 3072")
        a.I("s_and_b32 s55, s52, 3")
        a.I("s_lshl_b32 s55, s55, 8")
        a.I("s_add_u32 s54, s54, s55")
        per = 256 // G
        a.I("v_lshrrev_b32 v21, 4, v1")
        a.I("v_mul_u32_u24 v21, 3072, v21")
        a.I("v_and_b32 v22, 15, v1")
        if G == 64:
            a.I("v_lshrrev_b32 v23, 2, v22")
            a.I("v_min_u32 v23, 2, v23")
            a.I("v_lshl_add_u32 v21, v23, 10, v21")
            a.I("v_and_b32 v22, 3, v22")
            a.I("v_lshl_add_u32 v21, v22, 6, v21")
            a.I(f"buffer_load_dword v25, v21, {S4(RC)}, s54 offen")
        elif G == 32:
            a.I("v_lshrrev_b32 v23, 3, v22")
            a.I("v_lshl_add_u32 v21, v23, 10, v21")
            a.I("v_and_b32 v22, 7, v22")
            a.I("v_lshl_add_u32 v21, v22, 5, v21")
            a.I(f"buffer_load_dword v25, v21, {S4(RC)}, s54 offen")
            a.I(f"buffer_load_dword v25, v21, {S4(RC)}, s54 offen offset:2048")
        else:
            a.I("v_lshrrev_b32 v23, 1, v22")
            a.I("v_min_u32 v23, 2, v23")
            a.I("v_lshl_add_u32 v21, v23, 10, v21")
            a.I("v_and_b32 v22, 1, v22")
            a.I("v_lshl_add_u32 v21, v22, 7, v21")
            a.I(f"buffer_load_dword v25, v21, {S4(RC)}, s54 offen")
    else:
        a.I(f"s_cmp_ge_u32 s{S_W}, 2")
        a.I("s_cbranch_scc1 L_pf1")
        srd(a, RC, S_W1, 512*2752)
        a.I("s_and_b32 s55, s52, 3")
        a.I("s_mul_i32 s55, s55, 12")
        a.I("s_min_u32 s55, s55, 31")
        a.I("s_lshl_b32 s55, s55, 6")
        a.I("s_lshl_b32 s54, s53, 4")
        a.I(f"s_lshl_b32 s56, s{S_W}, 3")
        a.I("s_add_u32 s54, s54, s56")
        a.I("s_mul_i32 s54, s54, 2752")
        a.I("s_add_u32 s54, s54, s55")
        a.I("v_lshrrev_b32 v21, 3, v1")
        a.I("v_mul_u32_u24 v21, 2752, v21")
        a.I("v_and_b32 v22, 7, v1")
        a.I("v_lshl_add_u32 v21, v22, 7, v21")
        a.I(f"buffer_load_dword v26, v21, {S4(RC)}, s54 offen")
        a.L("L_pf1")

def consumer(a):
    a.L("L_cons")
    H, XA, WA, ACC, B1, FA, FB = 2, 8, 12, 32, 80, 104, 136
    if not OPT.get("nopf") and not OPT.get("pflate") and not OPT.get("pfprod"):
        l2_prefetch(a, OPT.get("pfmode", 0))
    a.I(f"v_lshrrev_b32 v{H}, 5, v1")
    a.I(f"s_and_b32 s63, s{S_W}, 1")
    a.I(f"s_lshr_b32 s64, s{S_W}, 1")
    srd(a, RD, S_B1, 2752)
    a.I(f"s_add_u32 s54, s{S_START}, s63")
    a.I("s_lshl_b32 s54, s54, 6")
    a.I(f"v_lshlrev_b32 v3, 3, v{H}")
    for s in range(3):
        for q in range(4):
            r = B1 + (s*4+q)*2
            a.I(f"buffer_load_dwordx2 v[{r}:{r+1}], v3, {S4(RD)}, s54 offen offset:{s*128+q*16}")
    for i in range(48):
        a.I(f"v_mov_b32 v{ACC+i}, 0")
    a.I("v_and_b32 v16, 31, v1")
    a.I("v_bfe_u32 v17, v1, 1, 3")
    a.I("s_lshl_b32 s54, s64, 5")
    a.I("v_add_u32 v16, s54, v16")
    a.I("v_lshlrev_b32 v16, 7, v16")
    a.I(f"v_xor_b32 v17, v17, v{H}")
    for ks in range(4):
        a.I(f"v_xor_b32 v18, {2*ks}, v17")
        a.I(f"v_lshl_add_u32 v{XA+ks}, v18, 4, v16")
    tr_lane_addr(a, WA, 1, 16, 17, 8, 384)
    a.I("s_lshl_b32 s54, s63, 6")
    a.I(f"v_xor_b32 v{WA}, s54, v{WA}")
    a.I(f"v_add_u32 v{WA}, 0x10000, v{WA}")
    a.I(f"v_add_u32 v{WA+1}, 49152, v{WA}")

    def reads(b, G, F):
        out = []
        if OPT.get("p1nocons"): return ["s_nop 0"]
        wv = WA + (b >> 1)
        for l in range(2):
            ks = 2*G + l
            out.append(f"ds_read_b128 {vr(F+4*l,4)}, v{XA+ks} offset:{b*8192}")
            for s in range(3):
                for rd in range(2):
                    out.append(f"ds_read_b64_tr_b16 {vr(F+8+12*l+4*s+2*rd,2)}, v{wv} offset:{(b&1)*24576 + ks*6144 + rd*1536 + s*128}")
        return out
    def mfmas(F, qkv):
        out = []
        if OPT.get("p1nocons") or OPT.get("p1nomfma"): return ["s_nop 0"]
        for l in range(2):
            for s in range(3):
                X, W = F+4*l, F+8+12*l+4*s
                out.append(MF(ACC+16*s, X, W, ACC+16*s) if (qkv and s == 2) else MF(ACC+16*s, W, X, ACC+16*s))
        return out
    def inter(mf, rd):
        out = []
        per = OPT.get("iper", [4, 4, 3, 3, 0, 0])
        if len(mf) != 6: return mf + rd
        k = 0
        for i, m in enumerate(mf):
            out.append(m)
            out += rd[k:k+per[i]]
            k += per[i]
        assert k >= len(rd)
        return out
    def stage_loop(tag, qkv):
        a.I("s_mov_b32 s65, 0x8000")
        a.L(f"L_loop_{tag}")
        fap = OPT.get("fapos", 2)
        for b in range(4):
            a.I("s_waitcnt lgkmcnt(0)")
            a.I(J(inter(mfmas(FA, qkv), reads(b, 1, FB))))
            if (not qkv) and b == (fap & 3):
                if fap >= 4:
                    a.I("s_cmp_lt_i32 s65, 0")
                    a.I(f"s_cbranch_scc0 L_nodrain")
                a.I("s_waitcnt vmcnt(0)")
                if fap >= 4: a.L("L_nodrain")
            a.I("s_waitcnt lgkmcnt(0)")
            if b == 3:
                if not qkv:
                    a.I("s_cmp_lt_i32 s65, 0")
                    a.I(f"s_cbranch_scc1 L_last_{tag}")
                for ks in range(4):
                    a.I(f"v_add_u32 v{XA+ks}, s65, v{XA+ks}")
            stamp_dyn(a)
            a.I("s_barrier")
            stamp_dyn(a)
            a.I(J(inter(mfmas(FB, qkv), reads((b+1) % 4, 0, FA))))
        a.I("s_cmp_lt_i32 s65, 0")
        a.I("s_mov_b32 s65, 0xffff8000")
        a.I(f"s_cbranch_scc0 L_loop_{tag}")
        if not qkv:
            a.L(f"L_last_{tag}")
            a.I(J(mfmas(FB, qkv)))

    if OPT.get("pflate"):
        for i in range(OPT["pflate"]):
            a.I("s_sleep 8")
        l2_prefetch(a, 0)
    if OPT.get("pfw1early"):
        l2_prefetch(a, 1)
    a.I("s_barrier")
    stamp(a, "B0")
    if STAMPS and OPT.get("fine"): a.I("s_mov_b32 s87, 24")
    if not OPT.get("nopf") and not OPT.get("pfw1early"):
        l2_prefetch(a, 1)
    a.I(J(reads(0, 0, FA)))
    stage_loop("q", True)
    stamp(a, "qloop")
    srd(a, RA, S_WS, VF + 2*MB)
    a.I(f"s_lshl_b32 s54, s{S_RB}, 1")
    a.I("s_add_u32 s54, s54, s64")
    a.I(f"s_lshl_b32 s55, s{S_CG}, 2")
    a.I("s_lshl_b32 s56, s63, 1")
    a.I("s_add_u32 s55, s55, s56")
    a.I("s_lshl_b32 s55, s55, 6")
    a.I("s_add_u32 s54, s54, s55")
    a.I("s_lshl_b32 s54, s54, 10")
    a.I("v_lshlrev_b32 v3, 4, v1")
    a.I("v_bfe_u32 v4, v1, 4, 1")
    a.I("v_lshlrev_b32 v4, 16, v4")
    a.I(f"v_lshl_add_u32 v4, v{H}, 8, v4")
    a.I("v_and_b32 v5, 15, v1")
    a.I("v_lshl_add_u32 v4, v5, 4, v4")
    a.I(f"s_mov_b32 s56, {hex(f2u(QSCALE))}")
    a.I("s_waitcnt vmcnt(0)")
    a.I("s_nop 4")
    for idx, s in enumerate((1, 2, 0)):
        d = ACC + 16*s
        if s == 0:
            for i in range(16):
                a.I(f"v_mul_f32 v{d+i}, s56, v{d+i}")
        for j in range(8):
            a.I(f"v_cvt_pk_bf16_f32 v{d+j}, v{d+2*j}, v{d+2*j+1}")
        if s < 2:
            for hh in range(2):
                a.I(f"s_add_u32 s55, s54, {(KF if s else QF) + hh*65536}")
                a.I(f"buffer_store_dwordx4 {vr(d+4*hh,4)}, v3, {S4(RA)}, s55 offen sc1")
        else:
            a.I(f"s_add_u32 s55, s54, {VF}")
            for u in range(2):
                a.I(f"buffer_store_dwordx4 {vr(d+4*u,4)}, v4, {S4(RA)}, s55 offen offset:{u*512} sc1")
    a.I("s_nop 1")
    for s in range(3):
        for q in range(4):
            r = B1 + (s*4+q)*2
            d = ACC + s*16 + q*4
            a.I(f"v_lshlrev_b32 v{d}, 16, v{r}")
            a.I(f"v_and_b32 v{d+1}, 0xffff0000, v{r}")
            a.I(f"v_lshlrev_b32 v{d+2}, 16, v{r+1}")
            a.I(f"v_and_b32 v{d+3}, 0xffff0000, v{r+1}")
    stage_loop("f", False)
    a.I("s_barrier")
    stamp(a, "floop")
    a.I("s_barrier")
    srd_off(a, RA, S_WS, HF, HF_SIZE)
    a.I(f"s_lshl_b32 s54, s{S_RB}, 1")
    a.I("s_add_u32 s54, s54, s64")
    a.I(f"s_add_u32 s55, s{S_START}, s63")
    a.I("s_lshl_b32 s55, s55, 7")
    a.I("s_add_u32 s54, s54, s55")
    a.I("s_lshl_b32 s54, s54, 10")
    a.I("v_lshlrev_b32 v3, 4, v1")
    a.I("s_nop 4")
    for s in range(3):
        d = ACC + 16*s
        for i in range(16):
            a.I(f"v_max_f32 v{d+i}, 0, v{d+i}")
        for i in range(16):
            a.I(f"v_mul_f32 v{d+i}, v{d+i}, v{d+i}")
        for j in range(8):
            a.I(f"v_cvt_pk_bf16_f32 v{d+j}, v{d+2*j}, v{d+2*j+1}")
        for uu in range(2):
            a.I(f"s_add_u32 s55, s54, {(4*s+uu)*65536}")
            a.I(f"buffer_store_dwordx4 {vr(d+4*uu,4)}, v3, {S4(RA)}, s55 offen sc1")
    a.I("s_nop 1")
    a.I("s_branch L_attn")

def aux_side_issue(a):
    a.I("s_sub_u32 s66, s67, 4")
    a.I(f"s_lshl_b32 s54, s2, 2")
    a.I("s_or_b32 s54, s54, s66")
    a.I("s_cmp_lg_u32 s54, 0")
    a.I("s_cbranch_scc1 L_aux1")
    srd(a, RD, S_DBG, 256)
    a.I("s_memrealtime s[54:55]")
    a.I("s_waitcnt lgkmcnt(0)")
    a.I("s_or_b32 s85, s54, 1")
    a.I("v_mov_b32 v8, s85")
    a.I("v_mov_b32 v10, 0")
    a.I("s_mov_b64 exec, 1")
    a.I(f"buffer_store_dword v8, v10, {S4(RD)}, 0 offen sc1")
    a.I("s_mov_b64 exec, -1")
    a.L("L_aux1")
    a.I(f"s_lshl_b32 s54, s{S_RB}, 6")
    a.I(f"s_lshl_b32 s55, s{S_CG}, 3")
    a.I("s_add_u32 s54, s54, s55")
    a.I("s_lshl_b32 s55, s66, 1")
    a.I("s_add_u32 s86, s54, s55")
    return 0

def aux_side_loads(a):
    a.I("s_lshl_b32 s54, s86, 10")
    srd_off(a, RD, S_AX, "s54", 2048)
    a.I("v_and_b32 v2, 31, v1")
    a.I("v_lshlrev_b32 v2, 5, v2")
    a.I("v_lshrrev_b32 v3, 5, v1")
    a.I("v_lshl_add_u32 v4, v3, 10, v2")
    for i in range(2):
        a.I(f"buffer_load_dwordx4 {vr(32+4*i,4)}, v4, {S4(RD)}, 0 offen offset:{16*i}")
    srd(a, RD, S_GW, 1024)
    for i in range(2):
        a.I(f"buffer_load_dwordx4 {vr(40+4*i,4)}, v2, {S4(RD)}, 0 offen offset:{16*i}")
    n = 4
    if OPT.get("codepf", 1):
        a.I("s_getpc_b64 s[52:53]")
        a.L("L_pc")
        a.I(f"s_sub_u32 s52, s52, L_pc-{KN}")
        a.I("s_subb_u32 s53, s53, 0")
        a.I("s_mul_i32 s54, s66, 6144")
        a.I("v_lshlrev_b32 v5, 7, v1")
        a.I("v_add_u32 v5, s54, v5")
        a.I(f"v_min_u32 v5, L_code_end-{KN}-4, v5")
        a.I("s_mov_b32 exec_hi, 0xffff")
        a.I("global_load_dword v116, v5, s[52:53]")
        a.I("s_mov_b64 exec, -1")
        n += 1
    return n

def aux_nonce_issue(a):
    srd(a, RD, S_DBG, 256)
    a.I("v_mov_b32 v10, 0")
    a.I(f"buffer_load_dword v8, v10, {S4(RD)}, 0 offen sc1")
    return 1

def aux_nonce_take(a):
    a.I(f"v_readfirstlane_b32 s{S_NONCE}, v8")
    a.I("s_cmp_lg_u32 s66, 0")
    a.I("s_cbranch_scc1 L_nonce_ok")
    a.I("s_mov_b32 s50, 0x40000")
    a.L("L_nonce")
    a.I(f"s_cmp_lg_u32 s{S_NONCE}, 0")
    a.I("s_cbranch_scc1 L_nonce_ok")
    a.I("s_sub_u32 s50, s50, 1")
    a.I("s_cmp_eq_u32 s50, 0")
    a.I("s_cbranch_scc1 L_nonce_ok")
    srd(a, RD, S_DBG, 256)
    a.I(f"buffer_load_dword v8, v10, {S4(RD)}, 0 offen sc1")
    a.I("s_waitcnt vmcnt(0)")
    a.I(f"v_readfirstlane_b32 s{S_NONCE}, v8")
    a.I("s_branch L_nonce")
    a.L("L_nonce_ok")

def aux_gate(a):
    if OPT.get("p1noprod"): a.I("s_waitcnt vmcnt(0)")
    a.I("v_mov_b32 v24, 0")
    for i in range(8):
        a.I(f"v_dot2c_f32_bf16 v24, v{32+i}, v{40+i}")
    a.I("s_nop 3")
    for sh in (1, 2, 4, 8):
        a.I(f"v_add_f32_dpp v24, v24, v24 row_shr:{sh} row_mask:0xf bank_mask:0xf")
        a.I("s_nop 1")
    a.I("v_add_f32_dpp v24, v24, v24 row_bcast:15 row_mask:0xa bank_mask:0xf")
    a.I("s_nop 1")
    a.I("v_cvt_pk_bf16_f32 v24, v24, v24")
    a.I("v_and_b32 v24, 0xffff0000, v24")
    a.I(f"v_mul_f32 v24, {hex(f2u(-1.4426950408889634))}, v24")
    a.I("v_exp_f32 v24, v24")
    a.I("s_nop 0")
    a.I("v_add_f32 v24, 1.0, v24")
    a.I("v_rcp_f32 v24, v24")
    a.I("s_nop 0")
    a.I("v_cvt_pk_bf16_f32 v24, v24, v24")
    a.I("v_and_b32 v24, 0xffff0000, v24")
    srd_off(a, RD, S_WS, GO, 8192)
    a.I("s_lshl_b32 s54, s86, 2")
    a.I("v_lshrrev_b32 v3, 5, v1")
    a.I("v_lshlrev_b32 v3, 2, v3")
    a.I("s_mov_b32 s52, 0x80000000")
    a.I("s_mov_b32 s53, 0x80000000")
    a.I("s_mov_b64 exec, s[52:53]")
    a.I(f"buffer_store_dword v24, v3, {S4(RD)}, s54 offen sc1")
    a.I("s_mov_b64 exec, -1")

def aux_publish_fa(a):
    a.I("s_cmp_lg_u32 s66, 0")
    a.I("s_cbranch_scc1 L_aux2")
    srd_off(a, RD, S_WS, FLG, FLG_SIZE)
    a.I(f"s_lshl_b32 s54, s{S_CG}, 7")
    a.I(f"s_lshl_b32 s55, s{S_RB}, 2")
    a.I("s_add_u32 s54, s54, s55")
    a.I(f"s_add_u32 s54, s54, {FA_OFF}")
    a.I(f"v_mov_b32 v8, s{S_NONCE}")
    a.I(f"v_mov_b32 v10, 0")
    a.I("s_mov_b64 exec, 1")
    a.I(f"buffer_store_dword v8, v10, {S4(RD)}, s54 offen sc1")
    a.I("s_mov_b64 exec, -1")
    stamp(a, "FApub")
    a.L("L_aux2")

def aux_after_e1(a):
    a.I("s_mov_b32 s67, s66")
    a.I("s_cmp_lg_u32 s67, 1")
    a.I("s_cbranch_scc1 L_aux3")
    a.I(f"v_lshlrev_b32 v10, 2, v1")
    a.I(f"v_add_u32 v10, {L_MISC}, v10")
    a.I("v_mov_b32 v8, 0")
    a.I("ds_write_b32 v10, v8")
    a.I("s_waitcnt lgkmcnt(0)")
    a.L("L_aux3")
    a.I("s_barrier")
    a.I("s_setprio 3")
    stamp(a, "E2")
    srd_off(a, RC, S_WS, FLG, FLG_SIZE)
    a.I("s_cmp_lg_u32 s67, 0")
    a.I("s_cbranch_scc1 L_aux4")
    a.I(f"v_mov_b32 v8, {L_MISC + 128}")
    a.I(f"v_mov_b32 v9, s{S_NONCE}")
    a.I("ds_write_b32 v8, v9")
    a.I(f"s_lshr_b32 s54, s{S_HD}, 2")
    a.I("s_lshl_b32 s54, s54, 7")
    a.I(f"s_add_u32 s54, s54, {FA_OFF}")
    a.I("v_lshlrev_b32 v8, 2, v1")
    poll(a, RC, 32, 8, 9, "s54")
    lds_add1(a, M_FA, 8, 9)
    a.I("s_branch L_aux5")
    a.L("L_aux4")
    lds_spin(a, M_FA, 1, 8, 9)
    a.L("L_aux5")
    stamp(a, "FAok")
    VL = 4
    a.I(f"v_lshlrev_b32 v{VL}, 4, v1")
    a.I(f"s_lshl_b32 s54, s{S_HD}, 16")
    a.I(f"s_add_u32 s55, s54, {KF}")
    srd_off(a, RA, S_WS, "s55", 65536)
    a.I(f"s_add_u32 s55, s54, {VF}")
    srd_off(a, RB, S_WS, "s55", 65536)
    a.I(f"s_add_u32 s55, s54, {QF}")
    srd_off(a, RD, S_WS, "s55", 65536)
    a.I(f"s_lshl_b32 s54, s{S_QB}, 3")
    a.I("s_lshl_b32 s55, s67, 1")
    a.I("s_add_u32 s54, s54, s55")
    a.I("s_lshl_b32 s54, s54, 10")
    a.I("s_lshl_b32 s55, s67, 11")
    a.I(f"s_add_u32 s55, s55, {L_RING}")
    for t in range(2):
        a.I(f"s_add_u32 m0, s55, {t*1024}")
        a.I(f"s_add_u32 s56, s54, {t*1024}")
        a.I(f"buffer_load_dwordx4 v{VL}, {S4(RD)}, s56 offen sc1 lds")
    a.I("s_lshl_b32 s54, s67, 10")
    def kvchunks(cs):
        for c in cs:
            a.I(f"s_add_u32 s55, s54, {c*4096}")
            a.I("s_mov_b32 m0, s55")
            a.I(f"s_add_u32 s56, s55, {L_V}")
            a.I(f"buffer_load_dwordx4 v{VL}, {S4(RA)}, s55 offen sc1 lds")
            a.I("s_mov_b32 m0, s56")
            a.I("s_nop 0")
            a.I(f"buffer_load_dwordx4 v{VL}, {S4(RB)}, s55 offen sc1 lds")
    kvchunks(range(0, 4))
    a.I("s_waitcnt vmcnt(0)")
    lds_add1(a, M_KV, 8, 9)
    stamp(a, "KV1")
    kvchunks(range(4, 16))
    a.I("s_lshr_b32 s53, s2, 3")
    srd(a, RA, S_W2, 1376*1024)
    srd(a, RB, S_WO, 512*1024)
    a.I("s_mul_i32 s54, s53, 44032")
    a.I("s_lshl_b32 s55, s67, 10")
    a.I("s_add_u32 s54, s54, s55")
    a.I("s_waitcnt vmcnt(0)")
    lds_add1(a, M_KV, 8, 9)
    stamp(a, "KV2")
    a.I("v_lshlrev_b32 v10, 7, v1")
    a.I("s_lshl_b32 s55, s67, 13")
    a.I("s_mul_i32 s54, s53, 44032")
    a.I("s_add_u32 s54, s54, s55")
    a.I(f"buffer_load_dword v40, v10, {S4(RA)}, s54 offen")
    a.I("s_add_u32 s54, s54, 32768")
    a.I(f"buffer_load_dword v41, v10, {S4(RA)}, s54 offen")
    a.I("s_lshl_b32 s54, s53, 14")
    a.I("s_lshl_b32 s55, s67, 12")
    a.I("s_add_u32 s54, s54, s55")
    a.I("s_mov_b32 exec_hi, 0")
    a.I(f"buffer_load_dword v42, v10, {S4(RB)}, s54 offen")
    a.I("s_mov_b64 exec, -1")

def ffn2_p3(a):
    WF, HR, ACC2, BPR = 24, 40, 104, 8
    VH, VW, VA0, VA1 = 2, 3, 4, 5
    a.I("s_cmp_lg_u32 s67, 0")
    a.I("s_cbranch_scc1 L_f1")
    lds_spin(a, M_HST, 4, 8, 9, OPT.get('fslp', 1))
    lds_spin(a, M_KV, 8, 8, 9)
    a.I(f"s_lshl_b32 s54, s{S_RB}, 7")
    a.I(f"s_lshl_b32 s55, s{S_CG}, 2")
    a.I("s_add_u32 s54, s54, s55")
    a.I(f"s_add_u32 s54, s54, {FH_OFF}")
    flag_store(a, "s54", 8, 10)
    a.I(f"s_lshl_b32 s54, s{S_HD}, 7")
    a.I(f"s_add_u32 s54, s54, {FH_OFF}")
    a.I("v_lshlrev_b32 v8, 2, v1")
    poll(a, RC, 8, 8, 9, "s54", OPT.get("fhslp", 4))
    lds_add1(a, M_H, 8, 9)
    a.I("s_branch L_f2")
    a.L("L_f1")
    lds_spin(a, M_H, 1, 8, 9, OPT.get('fslp', 1))
    a.L("L_f2")
    lds_spin(a, M_QRD, 8, 8, 9, OPT.get('fslp', 1))
    stamp(a, "hready")
    srd(a, RA, S_W2, 1376*1024)
    srd_off(a, RB, S_WS, HF, HF_SIZE)
    a.I(f"v_lshlrev_b32 v{VH}, 4, v1")
    dma_w_lane_off(a, VW, 1, 8, 9, 1024)
    a.I(f"s_lshl_b32 s54, s{S_QB}, 7")
    a.I(f"v_add_u32 v{VW}, s54, v{VW}")
    tr_lane_addr(a, VA0, 1, 8, 9, 4, 128)
    a.I("s_mul_i32 s68, s67, 6144")
    a.I(f"s_add_u32 s68, s68, {L_RING}")
    a.I(f"v_add_u32 v{VA0}, s68, v{VA0}")
    a.I(f"v_xor_b32 v{VA1}, 64, v{VA0}")
    a.I("s_mul_i32 s54, s67, 24")
    a.I("s_lshl_b32 s70, s54, 14")
    a.I("s_lshl_b32 s71, s54, 16")
    a.I(f"s_lshl_b32 s55, s{S_HD}, 11")
    a.I("s_add_u32 s71, s71, s55")
    for i in range(64):
        a.I(f"v_mov_b32 v{ACC2+i}, 0")
    a.I("s_waitcnt vmcnt(0)")
    def fissue(slot):
        return [f"s_add_u32 m0, s68, {slot*2048}",
                f"s_add_u32 s69, s70, 8192",
                f"buffer_load_dwordx4 v{VW}, {S4(RA)}, s70 offen lds",
                f"s_add_u32 m0, s68, {slot*2048+1024}",
                f"s_add_u32 s70, s70, 16384",
                f"buffer_load_dwordx4 v{VW}, {S4(RA)}, s69 offen lds",
                f"buffer_load_dwordx4 {vr(HR+slot*8,4)}, v{VH}, {S4(RB)}, s71 offen sc1",
                f"buffer_load_dwordx4 {vr(HR+slot*8+4,4)}, v{VH}, {S4(RB)}, s71 offen offset:1024 sc1",
                f"s_add_u32 s71, s71, 65536"]
    def trr(F, off):
        out = []
        for ct, va in ((0, VA0), (1, VA1)):
            for rd in range(2):
                out.append(f"ds_read_b64_tr_b16 {vr(F+4*ct+2*rd,2)}, v{va} offset:{off + rd*1024}")
        return out
    for slot in range(3):
        a.I(J(fissue(slot)))
    a.I("s_cmp_eq_u32 s67, 3")
    a.I("s_cselect_b32 s72, 5, 8")
    a.I(f"s_setprio {OPT.get('ffnprio', 0)}")
    if OPT.get("noffn"): a.I("s_branch L_fskip")
    a.L("L_floop")
    for slot in range(3):
        a.I("s_waitcnt vmcnt(8)")
        a.I(J(trr(WF, slot*2048)))
        a.I("s_waitcnt lgkmcnt(0)")
        fi = fissue(slot)
        mf = lambda ct, rt: MF(ACC2 + (ct*2+rt)*16, WF+4*ct, HR+slot*8+4*rt, ACC2 + (ct*2+rt)*16)
        if OPT.get("fspread", 1):
            a.I(mf(0, 0)); a.I(J(fi[0:3]))
            a.I(mf(1, 0)); a.I(J(fi[3:6]))
            a.I(mf(0, 1)); a.I(fi[6])
            a.I(mf(1, 1)); a.I(J(fi[7:]))
        else:
            for ct in range(2):
                for rt in range(2):
                    a.I(mf(ct, rt))
            a.I(J(fi))
    a.I("s_sub_u32 s72, s72, 1")
    a.I("s_cmp_lg_u32 s72, 0")
    a.I("s_cbranch_scc1 L_floop")
    a.L("L_fskip")
    a.I("s_setprio 3")
    a.I("s_waitcnt vmcnt(0)")
    lds_add1(a, M_FFN, 8, 9)
    stamp(a, "ffn2")
    srd_off(a, RA, S_WS, GO, 8192)
    srd(a, RB, S_B2, 1024)
    a.I("s_and_b32 s73, s67, 1")
    a.I("s_lshr_b32 s74, s67, 1")
    a.I(f"s_lshl_b32 s75, s{S_HD}, 6")
    a.I("s_lshl_b32 s54, s73, 5")
    a.I("s_add_u32 s75, s75, s54")
    a.I("s_lshl_b32 s54, s75, 2")
    a.I("v_and_b32 v8, 31, v1")
    a.I("v_lshlrev_b32 v8, 2, v8")
    a.I(f"buffer_load_dword v40, v8, {S4(RA)}, s54 offen sc1")
    a.I(f"s_lshl_b32 s54, s{S_QB}, 6")
    a.I("s_lshl_b32 s55, s74, 5")
    a.I("s_add_u32 s54, s54, s55")
    a.I("s_lshl_b32 s54, s54, 1")
    a.I("v_lshrrev_b32 v8, 5, v1")
    a.I("v_lshlrev_b32 v8, 3, v8")
    for q in range(4):
        a.I(f"buffer_load_dwordx2 v[{42+2*q}:{43+2*q}], v8, {S4(RB)}, s54 offen offset:{q*16}")
    lds_spin(a, M_ATT, 4, 8, 9, OPT.get('attslp', 1))
    stamp(a, "attdone")
    srd(a, RA, S_WO, 512*1024)
    a.I("s_lshl_b32 s68, s67, 14")
    a.I("s_lshl_b32 s70, s67, 17")
    for ks in range(8):
        for n in range(2):
            a.I(f"s_add_u32 m0, s68, {ks*2048+n*1024}")
            a.I(f"s_add_u32 s69, s70, {ks*16384+n*8192}")
            a.I(f"buffer_load_dwordx4 v{VW}, {S4(RA)}, s69 offen lds")
    a.I(f"s_add_u32 s54, s68, {L_V}")
    a.I(f"v_add_u32 v8, s54, v{VH}")
    for i in range(16):
        a.I(f"ds_write_b128 v8, {vr(ACC2+4*i,4)} offset:{i*1024}")
    a.I("s_waitcnt lgkmcnt(0)")
    lds_add1(a, M_T1, 9, 10)
    lds_spin(a, M_T1, 4, 9, 10)
    a.I("s_lshl_b32 s54, s67, 12")
    a.I(f"s_add_u32 s54, s54, {L_V}")
    a.I(f"v_add_u32 v8, s54, v{VH}")
    for p in range(4):
        for q in range(4):
            a.I(f"ds_read_b128 {vr(ACC2+p*16+q*4,4)}, v8 offset:{p*16384+q*1024}")
    a.I("s_waitcnt lgkmcnt(0)")
    for i in range(16):
        a.I(f"v_add_f32 v{ACC2+i}, v{ACC2+i}, v{ACC2+16+i}")
        a.I(f"v_add_f32 v{ACC2+32+i}, v{ACC2+32+i}, v{ACC2+48+i}")
    for i in range(16):
        a.I(f"v_add_f32 v{ACC2+i}, v{ACC2+i}, v{ACC2+32+i}")
    a.I("s_waitcnt vmcnt(0)")
    a.I("v_sub_f32 v41, 1.0, v40")
    a.I("v_cvt_pk_bf16_f32 v41, v41, v41")
    a.I("v_and_b32 v41, 0xffff0000, v41")
    for q in range(4):
        a.I(f"v_lshlrev_b32 v52, 16, v{42+2*q}")
        a.I(f"v_and_b32 v53, 0xffff0000, v{42+2*q}")
        a.I(f"v_lshlrev_b32 v54, 16, v{43+2*q}")
        a.I(f"v_and_b32 v55, 0xffff0000, v{43+2*q}")
        for j in range(4):
            a.I(f"v_add_f32 v{BPR+4*q+j}, v{ACC2+4*q+j}, v{52+j}")
        for j in range(4):
            a.I(f"v_mul_f32 v{BPR+4*q+j}, v{BPR+4*q+j}, v41")
    a.I("v_mov_b32 v39, v40")
    a.I("s_cmp_lg_u32 s67, 0")
    a.I("s_cbranch_scc1 L_f4")
    a.I(f"s_lshl_b32 s54, s{S_HD}, 8")
    a.I(f"s_add_u32 s54, s54, {FO_OFF}")
    a.I("v_lshlrev_b32 v40, 2, v1")
    if not OPT.get("opf", 1):
        poll(a, RC, 64, 40, 41, "s54", OPT.get("foslp", 1))
    else:
        srd_off(a, RB, S_WS, OF, 2*MB)
        a.I(f"s_lshl_b32 s55, s{S_HD}, 16")
        a.I("v_lshlrev_b32 v42, 10, v1")
        a.I("s_mov_b64 s[56:57], 0")
        a.I("s_mov_b32 s50, 0x40000")
        a.L("L_opf")
        a.I(f"buffer_load_dword v41, v40, {S4(RC)}, s54 offen sc1")
        a.I("s_waitcnt vmcnt(0)")
        a.I(f"v_cmp_eq_u32 vcc, s{S_NONCE}, v41")
        a.I("s_nop 1")
        a.I("s_andn2_b64 s[58:59], vcc, s[56:57]")
        a.I("s_or_b64 s[56:57], s[56:57], vcc")
        a.I("s_cmp_eq_u64 s[56:57], -1")
        a.I("s_cbranch_scc1 L_opf3")
        a.I("s_cmp_eq_u64 s[58:59], 0")
        a.I("s_cbranch_scc1 L_opf2")
        a.I("s_mov_b64 exec, s[58:59]")
        for j in range(8):
            a.I(f"buffer_load_dword v120, v42, {S4(RB)}, s55 offen offset:{j*128} sc1")
        a.I("s_mov_b64 exec, -1")
        a.L("L_opf2")
        a.I("s_sub_u32 s50, s50, 1")
        a.I("s_cmp_eq_u32 s50, 0")
        a.I("s_cbranch_scc1 L_opf3")
        a.I(f"s_sleep {OPT.get('foslp', 1)}")
        a.I("s_branch L_opf")
        a.L("L_opf3")
    a.L("L_f4")
    a.I("s_barrier")
    stamp(a, "T2")
    srd_off(a, RB, S_WS, OF, 2*MB)
    a.I(f"s_lshl_b32 s54, s{S_HD}, 16")
    a.I("s_lshl_b32 s55, s67, 12")
    a.I("s_add_u32 s54, s54, s55")
    a.I(f"s_add_u32 s55, s55, {L_V}")
    for half in range(2):
        for rt in range(2):
            for hh in range(4):
                off = rt*32768 + half*16384 + hh*1024
                a.I(f"s_add_u32 m0, s55, {off}")
                a.I(f"s_add_u32 s56, s54, {off}")
                a.I(f"buffer_load_dwordx4 v{VH}, {S4(RB)}, s56 offen sc1 lds")
    tr_lane_addr(a, VA0, 1, 32, 33, 4, 128)
    a.I("s_lshl_b32 s54, s74, 6")
    a.I(f"v_xor_b32 v{VA0}, s54, v{VA0}")
    a.I("s_lshl_b32 s54, s73, 15")
    a.I(f"s_add_u32 s54, s54, {L_V}")
    a.I(f"v_add_u32 v{VA1}, s54, v{VH}")
    FR = 40
    def p3reads(ks):
        F = FR + (ks % 8) * 8
        return [f"ds_read_b64_tr_b16 {vr(F,2)}, v{VA0} offset:{ks*2048}",
                f"ds_read_b64_tr_b16 {vr(F+2,2)}, v{VA0} offset:{ks*2048+1024}",
                f"ds_read_b128 {vr(F+4,4)}, v{VA1} offset:{ks*1024}"]
    for half in range(2):
        a.I(f"s_waitcnt vmcnt({8 if half == 0 else 0})")
        a.I("s_barrier")
        k0 = half*16
        for ks in range(k0, k0+4):
            a.I(J(p3reads(ks)))
        for ks in range(k0, k0+16):
            nxt = ks + 4
            if nxt < k0 + 16:
                a.I(J(p3reads(nxt)))
                a.I("s_waitcnt lgkmcnt(12)")
            else:
                a.I(f"s_waitcnt lgkmcnt({3*(k0+15-ks)})")
            F = FR + (ks % 8) * 8
            a.I(MF(ACC2, F, F+4, ACC2 if ks else None))
    a.I("s_nop 15")
    stamp(a, "p3mm")
    for i in range(16):
        a.I(f"v_fma_f32 v{ACC2+i}, v{ACC2+i}, v39, v{BPR+i}")
    for j in range(8):
        a.I(f"v_cvt_pk_bf16_f32 v{ACC2+j}, v{ACC2+2*j}, v{ACC2+2*j+1}")
    a.I("s_nop 1")
    a.I(f"v_permlane32_swap_b32 v{ACC2}, v{ACC2+2}")
    a.I(f"v_permlane32_swap_b32 v{ACC2+1}, v{ACC2+3}")
    a.I(f"v_permlane32_swap_b32 v{ACC2+4}, v{ACC2+6}")
    a.I(f"v_permlane32_swap_b32 v{ACC2+5}, v{ACC2+7}")
    srd(a, RA, S_OUT, 2*MB)
    a.I("s_lshl_b32 s54, s75, 10")
    a.I(f"s_lshl_b32 s55, s{S_QB}, 7")
    a.I("s_add_u32 s54, s54, s55")
    a.I("s_lshl_b32 s55, s74, 6")
    a.I("s_add_u32 s54, s54, s55")
    a.I("v_and_b32 v32, 31, v1")
    a.I("v_lshlrev_b32 v32, 10, v32")
    a.I("v_lshrrev_b32 v33, 5, v1")
    a.I("v_lshl_add_u32 v32, v33, 4, v32")
    ofl = {0: "", 1: " sc1", 2: " nt", 3: " sc0 sc1"}[OPT.get("outfl", 0)]
    a.I(f"buffer_store_dwordx4 {vr(ACC2,4)}, v32, {S4(RA)}, s54 offen{ofl}")
    a.I(f"buffer_store_dwordx4 {vr(ACC2+4,4)}, v32, {S4(RA)}, s54 offen offset:32{ofl}")
    stamp_flush(a)
    a.I("s_endpgm")

def attention(a):
    a.L("L_attn")
    stamp(a, "attn0")
    QA, QB = 8, 12
    KB = [16, 20]; VB = [24, 32]
    S0, S1, OA, OB = 40, 56, 72, 88
    VK, VV, VL = 2, 3, 4
    T0, T1, T2 = 104, 105, 106
    VKN, VVN, VVB, VCH, VONE, VNX = 107, 108, 109, 110, 111, 5
    a.I(f"s_and_b32 s63, s{S_W}, 3")
    a.I(f"s_lshr_b32 s64, s{S_W}, 2")
    a.I(f"v_lshlrev_b32 v{VL}, 4, v1")
    a.I(f"v_lshrrev_b32 v{T0}, 5, v1")
    a.I(f"v_and_b32 v{T1}, 15, v1")
    a.I(f"v_lshlrev_b32 v{T1}, 4, v{T1}")
    a.I(f"v_lshl_add_u32 v{VVB}, v{T0}, 8, v{T1}")
    a.I(f"v_add_u32 v{VVB}, {L_V}, v{VVB}")
    a.I("s_lshl_b32 s54, s64, 12")
    a.I(f"v_add_u32 v{VK}, s54, v{VL}")
    a.I(f"v_add_u32 v{VV}, s54, v{VVB}")
    a.I("s_lshl_b32 s54, s63, 2")
    a.I(f"s_add_u32 s54, s54, {M_CH}")
    a.I(f"v_mov_b32 v{VCH}, s54")
    a.I(f"v_mov_b32 v{VONE}, 1")
    a.I("s_mov_b32 s74, 0x0000ffff")
    a.I("s_mov_b32 s75, 0x0000ffff")
    a.I("s_mov_b32 s77, 0")
    a.I(f"s_lshl_b32 s66, s{S_QB}, 3")
    a.I("s_lshl_b32 s54, s63, 1")
    a.I("s_add_u32 s66, s66, s54")
    a.I("s_lshl_b32 s54, s63, 11")
    a.I(f"s_add_u32 s54, s54, {L_RING}")
    a.I(f"v_add_u32 v{T2}, s54, v{VL}")
    a.I(f"v_and_b32 v{T0}, 31, v1")
    a.I(f"v_cmp_eq_u32 vcc, 16, v{T0}")
    a.I(f"v_mov_b32 v{T1}, 0x3f803f80")
    a.I("s_nop 1")
    a.I(f"v_cndmask_b32 v{T0}, 0, v{T1}, vcc")
    for i in range(16):
        a.I(f"v_mov_b32 v{VB[0]+i}, v{T0}")
    lds_spin(a, M_KV, 4, T0, T1)
    stamp(a, "kvok")
    a.I(f"ds_read_b128 {vr(QA,4)}, v{T2}")
    a.I(f"ds_read_b128 {vr(QB,4)}, v{T2} offset:1024")
    for i in range(16):
        a.I(f"v_mov_b32 v{OA+i}, 0")
        a.I(f"v_mov_b32 v{OB+i}, 0")
    a.I("s_waitcnt lgkmcnt(0)")
    lds_add1(a, M_QRD, T0, T1)
    a.I("s_lshl_b32 s71, s64, 12")
    if STAMPS and OPT.get("fineattn"): a.I("s_mov_b32 s87, 24")
    a.I("s_mov_b32 s73, 0")

    def e_(S, i): return f"v_exp_f32 v{S+i}, v{S+i}"
    def c_(S, j): return f"v_cvt_pk_bf16_f32 v{S+j}, v{S+2*j}, v{S+2*j+1}"
    def tile(Sin, Sout, Qn, Kn, Ocur, Vcur_u0, Oprev, Vprev_u1, after_pv2, wait_s, after_s, wait_pv1, do_pv2=True, do_s=True):
        e = lambda i: e_(Sin, i)
        c = lambda j: c_(Sin, j)
        L = [e(0), e(1)]
        if do_pv2: L.append(MF(Oprev, Vprev_u1, Sout+4, Oprev))
        L += after_pv2
        L += [e(2), e(3), c(0), e(4), e(5), c(1)]
        L += wait_s
        if do_s: L.append(MF(Sout, Kn, Qn))
        L += after_s
        L += [e(6), e(7), c(2), e(8), e(9), c(3), e(10), e(11)]
        L += wait_pv1
        L.append(MF(Ocur, Vcur_u0, Sin, Ocur))
        L += [c(4), e(12), e(13), c(5), e(14), e(15), c(6), c(7)]
        return L
    fifo = []
    def dsr(tag, txt): fifo.append(tag); return txt
    def need(tag):
        idx = max(i for i, t in enumerate(fifo) if t == tag)
        return [f"s_waitcnt lgkmcnt({len(fifo) - 1 - idx})"]
    def vreads(t):
        kap = t & 1
        return ["s_mov_b64 exec, s[74:75]",
                dsr(("V", t), f"ds_read_b128 {vr(VB[kap],4)}, v{VV} offset:{t*1024}"),
                dsr(("V", t), f"ds_read_b128 {vr(VB[kap]+4,4)}, v{VV} offset:{t*1024+512}"),
                "s_mov_b64 exec, -1"]
    def kread(t): return [dsr(("K", t), f"ds_read_b128 {vr(KB[t & 1],4)}, v{VK} offset:{t*1024}")]
    a.raw(".p2align 6")
    a.L("L_aloop")
    if OPT.get("fineattn"):
        OPT["fine"] = 1; stamp_dyn(a); OPT["fine"] = 0
    a.I(f"v_add_u32 v{VK}, s71, v{VL}")
    a.I(f"v_add_u32 v{VV}, s71, v{VVB}")
    L = kread(0) + vreads(0) + kread(1)
    L += need(("K", 0))
    L.append(MF(S0, KB[0], QA))
    a.I(J(L))
    a.I("s_nop 7")
    a.I("s_nop 3")
    body = []
    for t in range(4):
        kap = t & 1
        A = []
        Sin, Sout = S0, S1
        A += [e_(Sin, 0), e_(Sin, 1)]
        if t > 0: A.append(MF(OB, VB[kap^1]+4, Sout+4, OB))
        if t + 1 < 4: A += vreads(t+1)
        A += [e_(Sin, 2), e_(Sin, 3), c_(Sin, 0), e_(Sin, 4), e_(Sin, 5), c_(Sin, 1)]
        A.append(MF(Sout, KB[kap], QB))
        if t + 2 < 4: A += kread(t+2)
        A += [e_(Sin, 6), e_(Sin, 7), c_(Sin, 2), e_(Sin, 8), e_(Sin, 9), c_(Sin, 3), e_(Sin, 10), e_(Sin, 11)]
        A += need(("V", t))
        A.append(MF(OA, VB[kap], Sin, OA))
        A += [c_(Sin, 4), e_(Sin, 12), e_(Sin, 13), c_(Sin, 5), e_(Sin, 14), e_(Sin, 15), c_(Sin, 6), c_(Sin, 7)]
        Sin, Sout = S1, S0
        B = [e_(Sin, 0), e_(Sin, 1), MF(OA, VB[kap]+4, Sout+4, OA)]
        if t == 3:
            B += ["s_mov_b64 exec, 1", dsr(("G",), f"ds_add_rtn_u32 v{VNX}, v{VCH}, v{VONE}"), "s_mov_b64 exec, -1"]
        B += [e_(Sin, 2), e_(Sin, 3), c_(Sin, 0), e_(Sin, 4), e_(Sin, 5), c_(Sin, 1)]
        if t + 1 < 4:
            B += need(("K", t+1))
            B.append(MF(Sout, KB[kap^1], QA))
        B += [e_(Sin, 6), e_(Sin, 7), c_(Sin, 2), e_(Sin, 8), e_(Sin, 9), c_(Sin, 3), e_(Sin, 10), e_(Sin, 11)]
        B.append(MF(OB, VB[kap], Sin, OB))
        B += [c_(Sin, 4), e_(Sin, 12), e_(Sin, 13), c_(Sin, 5), e_(Sin, 14), e_(Sin, 15), c_(Sin, 6), c_(Sin, 7)]
        body += A + B
    a.I(J(body))
    a.I("s_waitcnt lgkmcnt(0)")
    a.I(f"v_readfirstlane_b32 s70, v{VNX}")
    a.I(MF(OB, VB[1]+4, S1+4, OB))
    a.I("s_add_u32 s70, s70, 2")
    a.I("s_lshl_b32 s71, s70, 12")
    a.I("s_cmp_lg_u32 s73, 0")
    a.I("s_cbranch_scc1 L_aloop2")
    a.I("s_mov_b32 s73, 1")
    a.I("s_waitcnt vmcnt(0)")
    a.I(f"s_cmp_ge_u32 s{S_W}, 4")
    a.I("s_cbranch_scc1 L_aloop1")
    lds_add1(a, M_HST, T0, T1)
    a.L("L_aloop1")
    lds_spin(a, M_KV, 8, T0, T1)
    a.L("L_aloop2")
    a.I("s_cmp_lt_u32 s70, 16")
    a.I("s_cbranch_scc1 L_aloop")
    a.I("s_waitcnt lgkmcnt(0)")
    a.I("s_nop 7")
    stamp(a, "aloop")
    a.I("s_lshl_b32 s54, s63, 2")
    a.I(f"s_add_u32 s55, s54, {M_PAIR}")
    a.I(f"s_add_u32 s76, s54, {M_PFLAG}")
    a.I(f"v_mov_b32 v{T0}, s55")
    a.I(f"v_mov_b32 v{T1}, 1")
    a.I("s_mov_b64 exec, 1")
    a.I(f"ds_add_rtn_u32 v{T2}, v{T0}, v{T1}")
    a.I("s_mov_b64 exec, -1")
    a.I("s_mul_i32 s54, s63, 4608")
    a.I(f"s_add_u32 s54, s54, {L_XCH}")
    a.I(f"v_add_u32 v{S0}, s54, v{VL}")
    a.I(f"v_lshlrev_b32 v{S0+1}, 2, v1")
    a.I(f"v_add_u32 v{S0+1}, s54, v{S0+1}")
    a.I("s_waitcnt lgkmcnt(0)")
    a.I(f"v_readfirstlane_b32 s55, v{T2}")
    a.I("s_nop 4")
    a.I("s_cmp_lg_u32 s55, 0")
    a.I("s_cbranch_scc1 L_second")
    lds_spin(a, M_FFN, 4, T0, T1)
    a.I(f"ds_write_b128 v{S0}, {vr(OA,4)}")
    a.I(f"ds_write_b128 v{S0}, {vr(OA+4,4)} offset:1024")
    a.I(f"ds_write_b128 v{S0}, {vr(OB,4)} offset:2048")
    a.I(f"ds_write_b128 v{S0}, {vr(OB+4,4)} offset:3072")
    a.I(f"ds_write_b32 v{S0+1}, v{OA+8} offset:4096")
    a.I(f"ds_write_b32 v{S0+1}, v{OB+8} offset:4352")
    a.I("s_waitcnt lgkmcnt(0)")
    lds_add1(a, "s76", T0, T1)
    a.I("s_waitcnt lgkmcnt(0)")
    stamp_flush(a)
    a.I("s_endpgm")
    a.L("L_second")
    lds_spin(a, "s76", 1, T0, T1)
    a.I(f"ds_read_b128 {vr(S1,4)}, v{S0}")
    a.I(f"ds_read_b128 {vr(S1+4,4)}, v{S0} offset:1024")
    a.I(f"ds_read_b128 {vr(S1+8,4)}, v{S0} offset:2048")
    a.I(f"ds_read_b128 {vr(S1+12,4)}, v{S0} offset:3072")
    a.I(f"ds_read_b32 v{T0}, v{S0+1} offset:4096")
    a.I(f"ds_read_b32 v{T1}, v{S0+1} offset:4352")
    a.I(f"v_mov_b32 v{T2}, {L_MISC + 128}")
    a.I(f"ds_read_b32 v{T2}, v{T2}")
    a.I("s_waitcnt lgkmcnt(0)")
    a.I(f"v_readfirstlane_b32 s{S_NONCE}, v{T2}")
    for i in range(8):
        a.I(f"v_add_f32 v{OA+i}, v{OA+i}, v{S1+i}")
        a.I(f"v_add_f32 v{OB+i}, v{OB+i}, v{S1+8+i}")
    a.I(f"v_add_f32 v{OA+8}, v{OA+8}, v{T0}")
    a.I(f"v_add_f32 v{OB+8}, v{OB+8}, v{T1}")
    a.L("L_fin")
    for O in (OA, OB):
        a.I(f"v_mov_b32 v{O+9}, v{O+8}")
    a.I("s_nop 1")
    for O in (OA, OB):
        a.I(f"v_permlane32_swap_b32 v{O+9}, v{O+8}")
    a.I("s_nop 1")
    slow_check(a, OA, OB, T0, T1)
    lds_add1(a, M_ATT, T0, T1)
    for O in (OA, OB):
        a.I(f"v_rcp_f32 v{O+9}, v{O+9}")
    a.I("s_nop 0")
    for O in (OA, OB):
        for i in range(8):
            a.I(f"v_mul_f32 v{O+i}, v{O+i}, v{O+9}")
    for O in (OA, OB):
        for j in range(4):
            a.I(f"v_cvt_pk_bf16_f32 v{O+j}, v{O+2*j}, v{O+2*j+1}")
    srd_off(a, RA, S_WS, OF, 2*MB)
    srd_off(a, RC, S_WS, FLG, FLG_SIZE)
    a.I("s_lshl_b32 s54, s66, 5")
    a.I(f"s_add_u32 s54, s54, s{S_HD}")
    a.I("s_lshl_b32 s55, s54, 10")
    a.I(f"buffer_store_dwordx4 {vr(OA,4)}, v{VL}, {S4(RA)}, s55 offen sc1")
    a.I("s_add_u32 s55, s55, 32768")
    a.I(f"buffer_store_dwordx4 {vr(OB,4)}, v{VL}, {S4(RA)}, s55 offen sc1")
    a.I("s_lshl_b32 s54, s54, 2")
    a.I(f"s_add_u32 s54, s54, {FO_OFF}")
    a.I(f"v_mov_b32 v{T0}, s{S_NONCE}")
    a.I(f"v_lshlrev_b32 v{T1}, 7, v1")
    a.I("s_waitcnt vmcnt(0)")
    a.I("s_mov_b64 exec, 3")
    a.I(f"buffer_store_dword v{T0}, v{T1}, {S4(RC)}, s54 offen sc1")
    a.I("s_mov_b64 exec, -1")
    stamp_flush(a)
    a.I("s_endpgm")
    slow_path(a, QA, QB, KB, VB, S0, S1, OA, OB, VL, T0, T1, T2)

def slow_check(a, OA, OB, T0, T1):
    if OPT.get("noslow"): return
    a.I(f"v_mul_f32 v{T0}, 0, v{OA}")
    for i in range(1, 8):
        a.I(f"v_fma_f32 v{T0}, v{OA+i}, 0, v{T0}")
    for i in range(8):
        a.I(f"v_fma_f32 v{T0}, v{OB+i}, 0, v{T0}")
    a.I(f"v_cmp_eq_f32 s[78:79], 0, v{T0}")
    a.I(f"s_mov_b32 s80, {hex(f2u(2.0**-60))}")
    a.I(f"s_mov_b32 s81, {hex(f2u(2.0**60))}")
    for O in (OA, OB):
        a.I(f"v_cmp_le_f32 s[82:83], s80, v{O+9}")
        a.I(f"v_cmp_ge_f32 vcc, s81, v{O+9}")
        a.I("s_nop 1")
        a.I("s_and_b64 s[78:79], s[78:79], s[82:83]")
        a.I("s_and_b64 s[78:79], s[78:79], vcc")
    if OPT.get("forceslow"):
        a.I("s_mov_b64 s[78:79], 0")
    a.I("s_cmp_eq_u64 s[78:79], -1")
    a.I("s_cbranch_scc1 L_ok")
    a.I("s_cmp_eq_u32 s77, 0")
    a.I("s_cbranch_scc1 L_slow")
    a.L("L_ok")

def slow_path(a, QA, QB, KB, VB, S0, S1, OA, OB, VL, T0, T1, T2):
    if OPT.get("noslow"): return
    K, V0, M, C = KB[0], VB[0], 108, 112
    a.L("L_slow")
    a.I("s_mov_b32 s77, 1")
    a.I(f"v_lshrrev_b32 v{T0}, 5, v1")
    a.I(f"v_and_b32 v{T1}, 15, v1")
    a.I(f"v_lshlrev_b32 v{T1}, 4, v{T1}")
    a.I(f"v_lshl_add_u32 v{T2}, v{T0}, 8, v{T1}")
    a.I(f"v_add_u32 v{T2}, {L_V}, v{T2}")
    a.I(f"v_mov_b32 v{M}, 0xff800000")
    a.I(f"v_mov_b32 v{M+1}, 0xff800000")
    a.I(f"v_mov_b32 v{T0}, v{VL}")
    a.I("s_mov_b32 s73, 0")
    a.L("L_slow1")
    a.I(f"ds_read_b128 {vr(K,4)}, v{T0}")
    a.I("s_waitcnt lgkmcnt(0)")
    a.I(MF(S0, K, QA))
    a.I(MF(S1, K, QB))
    a.I("s_nop 15")
    for S, m in ((S0, M), (S1, M+1)):
        for i in range(0, 16, 2):
            a.I(f"v_max3_f32 v{m}, v{S+i}, v{S+i+1}, v{m}")
    a.I(f"v_add_u32 v{T0}, 1024, v{T0}")
    a.I("s_add_u32 s73, s73, 1")
    a.I("s_cmp_lt_u32 s73, 64")
    a.I("s_cbranch_scc1 L_slow1")
    for m in (M, M+1):
        a.I(f"v_mov_b32 v{T1}, v{m}")
        a.I("s_nop 1")
        a.I(f"v_permlane32_swap_b32 v{T1}, v{m}")
        a.I("s_nop 1")
        a.I(f"v_max_f32 v{m}, v{m}, v{T1}")
    for t in range(2):
        for i in range(16):
            a.I(f"v_sub_f32 v{C+16*t+i}, 0, v{M+t}")
    for i in range(16):
        a.I(f"v_mov_b32 v{OA+i}, 0")
        a.I(f"v_mov_b32 v{OB+i}, 0")
    a.I(f"v_mov_b32 v{T0}, v{VL}")
    a.I("s_mov_b32 s73, 0")
    a.L("L_slow2")
    a.I(f"ds_read_b128 {vr(K,4)}, v{T0}")
    a.I("s_mov_b64 exec, s[74:75]")
    a.I(f"ds_read_b128 {vr(V0,4)}, v{T2}")
    a.I(f"ds_read_b128 {vr(V0+4,4)}, v{T2} offset:512")
    a.I("s_mov_b64 exec, -1")
    a.I("s_waitcnt lgkmcnt(0)")
    a.I(MF(S0, K, QA, C))
    a.I(MF(S1, K, QB, C+16))
    a.I("s_nop 15")
    for S, O in ((S0, OA), (S1, OB)):
        for i in range(16):
            a.I(f"v_exp_f32 v{S+i}, v{S+i}")
        a.I("s_nop 0")
        for j in range(8):
            a.I(f"v_cvt_pk_bf16_f32 v{S+j}, v{S+2*j}, v{S+2*j+1}")
        a.I("s_nop 1")
        a.I(MF(O, V0, S, O))
        a.I(MF(O, V0+4, S+4, O))
    a.I(f"v_add_u32 v{T0}, 1024, v{T0}")
    a.I(f"v_add_u32 v{T2}, 1024, v{T2}")
    a.I("s_add_u32 s73, s73, 1")
    a.I("s_cmp_lt_u32 s73, 64")
    a.I("s_cbranch_scc1 L_slow2")
    a.I("s_nop 15")
    a.I("s_branch L_fin")

def gen():
    a = Asm()
    prologue(a)
    producer(a, False)
    consumer(a)
    a.L("L_aux")
    producer(a, True)
    ffn2_p3(a)
    attention(a)
    a.L("L_end")
    a.I("s_endpgm")
    a.L("L_code_end")
    a.I("s_endpgm")
    return a

HEADER = open("cdna_kernels/" + NAME + ".s.ref").read().split("; Override launch")[0]

def build(path):
    a = gen()
    out = HEADER + f"; WSLAYOUT QF={QF} KF={KF} VF={VF} HF={HF} GO={GO} OF={OF}\n"
    out += f"; @launch grid=(256,1,1) block=(768,1,1) lds={LDS_TOTAL}\n"
    out += '.amdgcn_target "amdgcn-amd-amdhsa--gfx950"\n.text\n' + a.text()
    out += f""".section .rodata,"a"
.p2align 6
.amdhsa_kernel {KN}
  .amdhsa_next_free_vgpr 168
  .amdhsa_next_free_sgpr 102
  .amdhsa_accum_offset 168
  .amdhsa_group_segment_fixed_size 0
  .amdhsa_kernarg_size 96
  .amdhsa_user_sgpr_count 2
  .amdhsa_user_sgpr_kernarg_segment_ptr 1
  .amdhsa_system_sgpr_workgroup_id_x 1
.end_amdhsa_kernel
"""
    open(path, "w").write(out)
    probs = check_linear(a.lines, "k")
    if STAMPS: print("stamps:", ",".join(_stamp_names))
    return probs

if __name__ == "__main__":
    for x in list(sys.argv[1:]):
        if x.startswith("-D"):
            k, _, v = x[2:].partition("=")
            OPT[k] = int(v) if v else 1
            sys.argv.remove(x)
    if "--stamps" in sys.argv:
        STAMPS = True; sys.argv.remove("--stamps")
    path = sys.argv[1] if len(sys.argv) > 1 else "cdna_kernels/" + NAME + ".s"
    probs = build(path)
    for p in probs: print("HAZARD:", p)
    print("written", path, "problems:", len(probs))
```

```python
import sys, struct
from asmlib import *

NAME = "gated_mix__mha_block__dense_activation_squared_relu__prompt"
KN = NAME + "_kernel"
MB = 1 << 20
QF, KF, VF, HF, GO, OF, FLG = 4096, 2*MB + 8192, 4*MB + 12288, 6*MB + 16384, 12*MB, 14*MB + 4096, 16*MB + 8192
HF_SIZE = 86 * 65536
FA_OFF, FH_OFF, FO_OFF = 0, 4096, 8192
FLG_SIZE = 16384
QSCALE = 0.25 * 1.4426950408889634
STAMP_OFF = 32*MB
STAMPS = False
OPT = {}
def f2u(x): return struct.unpack("<I", struct.pack("<f", x))[0]

S_AX, S_WQKV, S_WO, S_W1, S_B1, S_W2, S_B2, S_GW, S_OUT, S_DBG, S_WS = 4, 6, 8, 12, 14, 16, 18, 20, 22, 24, 26
S_W = 3
S_RB, S_CG, S_START = 29, 30, 31
RA, RB, RC, RD = 32, 36, 40, 44
S_NONCE, S_HD, S_QB = 60, 61, 62
L_K, L_V, L_RING, L_MISC = 0, 65536, 131072, 131072 + 24576
L_XCH = L_RING
M_KV, M_H, M_FA, M_QRD, M_HST, M_FFN, M_ATT, M_T1 = [L_MISC + 4*i for i in range(8)]
M_PAIR, M_PFLAG, M_CH = L_MISC + 64, L_MISC + 96, L_MISC + 160
LDS_TOTAL = 163840

def srd(a, dst, base, size):
    a.I(f"s_mov_b32 s{dst}, s{base}")
    a.I(f"s_mov_b32 s{dst+1}, s{base+1}")
    a.I(f"s_mov_b32 s{dst+2}, {size}")
    a.I(f"s_mov_b32 s{dst+3}, 0x20000")
def srd_off(a, dst, base, off, size):
    a.I(f"s_add_u32 s{dst}, s{base}, {off}")
    a.I(f"s_addc_u32 s{dst+1}, s{base+1}, 0")
    a.I(f"s_mov_b32 s{dst+2}, {size}")
    a.I(f"s_mov_b32 s{dst+3}, 0x20000")
def MF(d, A, B, c=None):
    cc = "0" if c is None else vr(c, 16)
    return f"v_mfma_f32_32x32x16_bf16 {vr(d,16)}, {vr(A,4)}, {vr(B,4)}, {cc}"
def S4(r): return f"s[{r}:{r+3}]"
def J(L): return "\n".join(L)

_stamp_names = []
def stamp(a, name):
    if not STAMPS: return
    if name not in _stamp_names: _stamp_names.append(name)
    i = _stamp_names.index(name)
    a.I("s_waitcnt lgkmcnt(0)")
    a.I("s_memtime s[98:99]")
    a.I("s_memrealtime s[100:101]")
    a.I("s_waitcnt lgkmcnt(0)")
    a.I(f"v_writelane_b32 v6, s98, {i}")
    a.I(f"v_writelane_b32 v7, s100, {i}")
def stamp_dyn(a):
    if not (STAMPS and OPT.get("fine")): return
    a.I("s_memtime s[98:99]")
    a.I("s_memrealtime s[100:101]")
    a.I("s_waitcnt lgkmcnt(0)")
    a.I("s_mov_b32 s88, m0")
    a.I("s_mov_b32 m0, s87")
    a.I("s_nop 3")
    a.I("v_writelane_b32 v6, s98, m0")
    a.I("v_writelane_b32 v7, s100, m0")
    a.I("s_mov_b32 m0, s88")
    a.I("s_add_u32 s87, s87, 1")
def stamp_flush(a):
    if not STAMPS: return
    a.I("s_waitcnt vmcnt(0)")
    stamp(a, "end")
    a.I(f"s_add_u32 s96, s{S_WS}, {STAMP_OFF}")
    a.I(f"s_addc_u32 s97, s{S_WS+1}, 0")
    a.I("s_mul_i32 s98, s2, 12")
    a.I(f"s_add_u32 s98, s98, s{S_W}")
    a.I("s_lshl_b32 s98, s98, 9")
    a.I("v_lshlrev_b32 v2, 2, v1")
    a.I("v_add_u32 v2, s98, v2")
    a.I("s_mov_b64 exec, -1")
    a.I("global_store_dword v2, v6, s[96:97]")
    a.I("global_store_dword v2, v7, s[96:97] offset:256")
    a.I("s_waitcnt vmcnt(0)")

def tr_lane_addr(a, dst, lane, tmp, tmp2, hrows, pitch):
    a.I(f"v_bfe_u32 v{tmp}, v{lane}, 2, 2")
    a.I(f"v_lshrrev_b32 v{tmp2}, 5, v{lane}")
    a.I(f"v_mul_u32_u24 v{tmp2}, {hrows}, v{tmp2}")
    a.I(f"v_add_u32 v{tmp}, v{tmp}, v{tmp2}")
    a.I(f"v_mul_u32_u24 v{dst}, {pitch}, v{tmp}")
    a.I(f"v_bfe_u32 v{tmp}, v{lane}, 4, 1")
    a.I(f"v_lshlrev_b32 v{tmp}, 1, v{tmp}")
    a.I(f"v_bfe_u32 v{tmp2}, v{lane}, 1, 1")
    a.I(f"v_add_u32 v{tmp}, v{tmp}, v{tmp2}")
    a.I(f"v_bfe_u32 v{tmp2}, v{lane}, 3, 1")
    a.I(f"v_lshlrev_b32 v{tmp2}, 2, v{tmp2}")
    a.I(f"v_xor_b32 v{tmp}, v{tmp}, v{tmp2}")
    a.I(f"v_lshl_add_u32 v{dst}, v{tmp}, 4, v{dst}")
    a.I(f"v_and_b32 v{tmp}, 1, v{lane}")
    a.I(f"v_lshl_add_u32 v{dst}, v{tmp}, 3, v{dst}")

def dma_w_lane_off(a, dst, lane, tmp, tmp2, pitch):
    a.I(f"v_lshrrev_b32 v{tmp}, 3, v{lane}")
    a.I(f"v_mul_u32_u24 v{dst}, {pitch}, v{tmp}")
    a.I(f"v_bfe_u32 v{tmp}, v{lane}, 4, 1")
    a.I(f"v_lshlrev_b32 v{tmp}, 2, v{tmp}")
    a.I(f"v_and_b32 v{tmp2}, 7, v{lane}")
    a.I(f"v_xor_b32 v{tmp}, v{tmp}, v{tmp2}")
    a.I(f"v_lshl_add_u32 v{dst}, v{tmp}, 4, v{dst}")

_lab = [0]
def lab(p):
    _lab[0] += 1
    return f"L_{p}{_lab[0]}"

def poll(a, srd_reg, nlanes, voff, vtmp, soff, slp=1):
    l0, l1 = lab("poll"), lab("polld")
    if nlanes < 64:
        a.I(f"s_mov_b32 exec_lo, {hex((1 << nlanes) - 1)}")
        a.I("s_mov_b32 exec_hi, 0")
    a.I("s_mov_b32 s50, 0x40000")
    a.L(l0)
    a.I(f"buffer_load_dword v{vtmp}, v{voff}, {S4(srd_reg)}, {soff} offen sc1")
    a.I("s_waitcnt vmcnt(0)")
    a.I(f"v_cmp_ne_u32 vcc, s{S_NONCE}, v{vtmp}")
    a.I(f"s_cbranch_vccz {l1}")
    a.I("s_sub_u32 s50, s50, 1")
    a.I("s_cmp_eq_u32 s50, 0")
    a.I(f"s_cbranch_scc1 {l1}")
    a.I(f"s_sleep {slp}")
    a.I(f"s_branch {l0}")
    a.L(l1)
    a.I("s_mov_b64 exec, -1")

def lds_spin(a, addr, target, vaddr, vtmp, slp=1):
    l0, l1 = lab("spin"), lab("spind")
    a.I(f"v_mov_b32 v{vaddr}, {addr}")
    a.I("s_mov_b32 s50, 0x400000")
    a.L(l0)
    a.I(f"ds_read_b32 v{vtmp}, v{vaddr}")
    a.I("s_waitcnt lgkmcnt(0)")
    a.I(f"v_readfirstlane_b32 s51, v{vtmp}")
    a.I("s_sub_u32 s50, s50, 1")
    a.I(f"s_cmp_ge_u32 s51, {target}")
    a.I(f"s_cbranch_scc1 {l1}")
    a.I("s_cmp_eq_u32 s50, 0")
    a.I(f"s_cbranch_scc1 {l1}")
    a.I(f"s_sleep {slp}")
    a.I(f"s_branch {l0}")
    a.L(l1)

def lds_add1(a, addr, vaddr, vtmp):
    a.I(f"v_mov_b32 v{vaddr}, {addr}")
    a.I(f"v_mov_b32 v{vtmp}, 1")
    a.I("s_mov_b64 exec, 1")
    a.I(f"ds_add_u32 v{vaddr}, v{vtmp}")
    a.I("s_mov_b64 exec, -1")

def flag_store(a, soff, v0_, v1_):
    a.I(f"v_mov_b32 v{v0_}, s{S_NONCE}")
    a.I(f"v_mov_b32 v{v1_}, 0")
    a.I("s_mov_b64 exec, 1")
    a.I(f"buffer_store_dword v{v0_}, v{v1_}, {S4(RC)}, {soff} offen sc1")
    a.I("s_mov_b64 exec, -1")

def prologue(a):
    a.raw(f".globl {KN}\n.p2align 8\n.type {KN},@function\n{KN}:")
    a.I("s_cmp_ge_u32 s2, 256")
    a.I("s_cbranch_scc1 L_end")
    a.I("s_load_dwordx4 s[4:7], s[0:1], 0")
    a.I("s_load_dwordx2 s[8:9], s[0:1], 16")
    a.I("s_load_dwordx4 s[12:15], s[0:1], 32")
    a.I("s_load_dwordx4 s[16:19], s[0:1], 48")
    a.I("s_load_dwordx4 s[20:23], s[0:1], 64")
    a.I("s_load_dwordx4 s[24:27], s[0:1], 80")
    a.I("v_lshrrev_b32 v2, 6, v0")
    a.I("v_and_b32 v1, 63, v0")
    a.I(f"v_readfirstlane_b32 s{S_W}, v2")
    if STAMPS:
        a.I("v_mov_b32 v6, 0"); a.I("v_mov_b32 v7, 0")
    a.I("s_and_b32 s52, s2, 7")
    a.I("s_lshr_b32 s53, s2, 3")
    a.I("s_lshr_b32 s54, s52, 2")
    a.I("s_lshl_b32 s54, s54, 4")
    a.I("s_lshr_b32 s55, s53, 1")
    a.I(f"s_add_u32 s{S_RB}, s54, s55")
    a.I("s_and_b32 s54, s52, 3")
    a.I("s_lshl_b32 s54, s54, 1")
    a.I("s_and_b32 s55, s53, 1")
    a.I(f"s_add_u32 s{S_CG}, s54, s55")
    a.I(f"s_mul_i32 s54, s{S_CG}, 6")
    a.I(f"s_min_u32 s{S_START}, s54, 37")
    a.I(f"s_lshl_b32 s{S_HD}, s52, 2")
    a.I("s_and_b32 s54, s53, 3")
    a.I(f"s_add_u32 s{S_HD}, s{S_HD}, s54")
    a.I(f"s_lshr_b32 s{S_QB}, s2, 5")
    a.I("s_waitcnt lgkmcnt(0)")
    stamp(a, "karg")
    a.I(f"s_cmp_ge_u32 s{S_W}, 8")
    a.I("s_cbranch_scc1 L_aux")
    a.I(f"s_cmp_lt_u32 s{S_W}, 4")
    a.I("s_cbranch_scc1 L_cons")

GATEPOS = 3
def producer(a, aux):
    T = "a" if aux else "p"
    a.I(f"s_sub_u32 s67, s{S_W}, 4")
    a.I(f"s_lshl_b32 s54, s{S_RB}, 16")
    srd_off(a, RA, S_AX, "s54", 65536)
    srd(a, RB, S_WQKV, 512*3072)
    a.I("v_lshrrev_b32 v2, 3, v1")
    a.I("s_lshl_b32 s54, s67, 3")
    a.I("v_add_u32 v2, s54, v2")
    a.I("v_lshrrev_b32 v3, 4, v1")
    a.I("s_and_b32 s54, s67, 1")
    a.I("s_lshl_b32 s54, s54, 2")
    a.I("v_add_u32 v3, s54, v3")
    a.I("v_and_b32 v4, 7, v1")
    a.I("v_xor_b32 v3, v3, v4")
    a.I("v_lshlrev_b32 v3, 4, v3")
    a.I("v_lshl_add_u32 v12, v2, 10, v3")
    a.I("s_lshl_b32 s68, s67, 10")
    def woffs(dst, pitch, segshift):
        for j in range(3):
            a.I(f"v_add_u32 v2, {64*j}, v1")
            a.I("v_mul_u32_u24 v3, 171, v2")
            a.I("v_lshrrev_b32 v3, 12, v3")
            a.I("v_mul_u32_u24 v4, 24, v3")
            a.I("v_sub_u32 v2, v2, v4")
            a.I("v_lshrrev_b32 v4, 3, v2")
            a.I("v_and_b32 v2, 7, v2")
            a.I("v_bfe_u32 v5, v3, 1, 1")
            a.I("v_lshlrev_b32 v5, 2, v5")
            a.I("v_xor_b32 v2, v2, v5")
            a.I("v_lshlrev_b32 v2, 4, v2")
            a.I(f"v_mul_u32_u24 v5, {pitch}, v3")
            a.I(f"v_lshl_add_u32 v5, v4, {segshift}, v5")
            a.I(f"v_add_u32 v{dst+j}, v5, v2")
    woffs(13, 3072, 10)
    a.I("s_mul_i32 s69, s67, 3072")
    a.I("s_add_u32 s69, s69, 0x10000")
    a.I(f"s_lshl_b32 s70, s{S_CG}, 7")
    a.I(f"s_mul_i32 s71, s67, {8*3072}")
    a.I("s_add_u32 s70, s70, s71")
    def issue_x(c):
        if OPT.get("p1noprod"): return
        a.I(f"s_add_u32 m0, s68, {c*8192}")
        a.I(f"s_movk_i32 s81, {c*128}")
        a.I(f"buffer_load_dwordx4 v12, {S4(RA)}, s81 offen lds")
    def issue_w(c):
        if OPT.get("p1noprod"): return
        if c < 8:
            a.I(f"s_add_u32 s82, s70, {c*64*3072}")
            vo, R = 13, RB
        else:
            a.I(f"s_add_u32 s82, s71, {(c-8)*64*2752}")
            vo, R = 16, RC
        for j in range(3):
            a.I(f"s_add_u32 m0, s69, {(c&3)*24576 + j*1024}")
            a.I("s_nop 0")
            a.I(f"buffer_load_dwordx4 v{vo+j}, {S4(R)}, s82 offen lds")
    sched = OPT.get("sched", 0)
    if sched == 0:
        pre = [("X",0),("W",0),("X",1),("W",1),("X",2),("W",2)]
        post = {c: ([("X",c+3)] if c+3 < 8 else []) + ([("W",c+3)] if c+3 < 16 else []) for c in range(16)}
    elif sched == 1:
        pre = [("X",0),("W",0),("X",1),("W",1),("X",2),("W",2),("X",3),("W",3),("X",4),("X",5),("X",6),("X",7)]
        post = {c: ([("W",c+3)] if (c >= 1 and c+3 < 16) else []) for c in range(16)}
    elif sched == 2:
        pre = [("X",0),("W",0),("X",1),("W",1),("X",2),("W",2),("X",3),("W",3)]
        post = {c: ([("W",c+3)] if (c >= 1 and c+3 < 16) else []) for c in range(16)}
        post[0] = [("X",4),("X",5),("X",6),("X",7)]
    fifo = []
    def do(item):
        k, c = item
        if k == "X":
            if OPT.get("skipx"): fifo.append((item, 0)); return
            issue_x(c); fifo.append((item, 1))
        else:
            if OPT.get("skipw") and c < 8: fifo.append((item, 0)); return
            issue_w(c); fifo.append((item, 3))
    for it in pre: do(it)
    if OPT.get("pfprod") and not aux:
        a.I(f"s_mov_b32 s89, s{S_W}")
        a.I(f"s_sub_u32 s{S_W}, s{S_W}, 4")
        l2_prefetch(a, 0)
        a.I(f"s_mov_b32 s{S_W}, s89")
        fifo.append(("pf", 2))
    stamp(a, "issued3")
    nside = 0
    if aux:
        nside = aux_side_issue(a)
    srd(a, RC, S_W1, 512*2752)
    woffs(16, 2752, 7)
    a.I(f"s_lshl_b32 s71, s{S_START}, 6")
    a.I(f"s_mul_i32 s72, s67, {8*2752}")
    a.I("s_add_u32 s71, s71, s72")
    fap = OPT.get("fapos", 2)
    assert fap >= 2
    for c in range(16):
        need = [("W", c)] + ([("X", c)] if c < 8 else [])
        idx = max(i for i, (it, _) in enumerate(fifo) if it in need)
        allow = sum(k for _, k in fifo[idx+1:])
        if c == 0 and STAMPS and OPT.get("fine"): a.I("s_mov_b32 s87, 24")
        stamp_dyn(a)
        a.I(f"s_waitcnt vmcnt({allow})")
        stamp_dyn(a)
        a.I("s_barrier")
        for it in post[c]: do(it)
        if aux and c == 2:
            fifo.append(("side", aux_side_loads(a)))
        if aux and c == 6:
            aux_gate(a)
            fifo.append(("g", 1))
        if aux and c == 7:
            fifo.append(("nonce", aux_nonce_issue(a)))
        if aux and c == 11:
            aux_nonce_take(a)
        if aux and c == 9 + fap:
            aux_publish_fa(a)
    a.I("s_barrier")
    if aux:
        aux_after_e1(a)
    else:
        a.I("s_barrier")
        a.I("s_branch L_attn")

def l2_prefetch(a, part):
    a.I("s_and_b32 s52, s2, 7")
    a.I("s_lshr_b32 s53, s2, 3")
    a.I("s_lshl_b32 s54, s53, 4")
    a.I(f"s_lshl_b32 s55, s{S_W}, 2")
    a.I("s_add_u32 s56, s54, s55")
    if part == 2:
        a.I(f"s_cmp_lg_u32 s{S_W}, 0")
        a.I("s_cbranch_scc1 L_pf2")
        srd(a, RC, S_WQKV, 512*3072)
        a.I("s_lshl_b32 s54, s53, 3")
        a.I("s_add_u32 s54, s54, 256")
        a.I("s_mul_i32 s54, s54, 3072")
        a.I("s_and_b32 s55, s52, 3")
        a.I("s_lshl_b32 s55, s55, 8")
        a.I("s_add_u32 s54, s54, s55")
        a.I("v_lshrrev_b32 v21, 3, v1")
        a.I("v_mul_u32_u24 v21, 3072, v21")
        a.I("v_bfe_u32 v22, v1, 1, 2")
        a.I("v_min_u32 v22, 2, v22")
        a.I("v_lshl_add_u32 v21, v22, 10, v21")
        a.I("v_and_b32 v22, 1, v1")
        a.I("v_lshl_add_u32 v21, v22, 7, v21")
        a.I(f"buffer_load_dword v25, v21, {S4(RC)}, s54 offen")
        a.L("L_pf2")
    elif part == 0:
        G = OPT.get("pfg", 128)
        sh = {128: 7, 64: 6, 32: 5}[G]
        srd(a, RC, S_AX, 2*MB)
        a.I("s_lshr_b32 s54, s52, 2")
        a.I("s_lshl_b32 s54, s54, 10")
        a.I("s_lshl_b32 s55, s53, 5")
        a.I("s_add_u32 s54, s54, s55")
        a.I(f"s_lshl_b32 s55, s{S_W}, 3")
        a.I("s_add_u32 s54, s54, s55")
        a.I("s_lshl_b32 s54, s54, 10")
        a.I(f"v_lshlrev_b32 v20, {sh}, v1")
        for i in range(0 if OPT.get("nopfx") else 8192 // (64*G)):
            a.I(f"buffer_load_dword v24, v20, {S4(RC)}, s54 offen")
            a.I(f"s_add_u32 s54, s54, {64*G}")
        srd(a, RC, S_WQKV, 512*3072)
        a.I("s_mul_i32 s54, s56, 3072")
        a.I("s_and_b32 s55, s52, 3")
        a.I("s_lshl_b32 s55, s55, 8")
        a.I("s_add_u32 s54, s54, s55")
        per = 256 // G
        a.I("v_lshrrev_b32 v21, 4, v1")
        a.I("v_mul_u32_u24 v21, 3072, v21")
        a.I("v_and_b32 v22, 15, v1")
        if G == 64:
            a.I("v_lshrrev_b32 v23, 2, v22")
            a.I("v_min_u32 v23, 2, v23")
            a.I("v_lshl_add_u32 v21, v23, 10, v21")
            a.I("v_and_b32 v22, 3, v22")
            a.I("v_lshl_add_u32 v21, v22, 6, v21")
            a.I(f"buffer_load_dword v25, v21, {S4(RC)}, s54 offen")
        elif G == 32:
            a.I("v_lshrrev_b32 v23, 3, v22")
            a.I("v_lshl_add_u32 v21, v23, 10, v21")
            a.I("v_and_b32 v22, 7, v22")
            a.I("v_lshl_add_u32 v21, v22, 5, v21")
            a.I(f"buffer_load_dword v25, v21, {S4(RC)}, s54 offen")
            a.I(f"buffer_load_dword v25, v21, {S4(RC)}, s54 offen offset:2048")
        else:
            a.I("v_lshrrev_b32 v23, 1, v22")
            a.I("v_min_u32 v23, 2, v23")
            a.I("v_lshl_add_u32 v21, v23, 10, v21")
            a.I("v_and_b32 v22, 1, v22")
            a.I("v_lshl_add_u32 v21, v22, 7, v21")
            a.I(f"buffer_load_dword v25, v21, {S4(RC)}, s54 offen")
    else:
        a.I(f"s_cmp_ge_u32 s{S_W}, 2")
        a.I("s_cbranch_scc1 L_pf1")
        srd(a, RC, S_W1, 512*2752)
        a.I("s_and_b32 s55, s52, 3")
        a.I("s_mul_i32 s55, s55, 12")
        a.I("s_min_u32 s55, s55, 31")
        a.I("s_lshl_b32 s55, s55, 6")
        a.I("s_lshl_b32 s54, s53, 4")
        a.I(f"s_lshl_b32 s56, s{S_W}, 3")
        a.I("s_add_u32 s54, s54, s56")
        a.I("s_mul_i32 s54, s54, 2752")
        a.I("s_add_u32 s54, s54, s55")
        a.I("v_lshrrev_b32 v21, 3, v1")
        a.I("v_mul_u32_u24 v21, 2752, v21")
        a.I("v_and_b32 v22, 7, v1")
        a.I("v_lshl_add_u32 v21, v22, 7, v21")
        a.I(f"buffer_load_dword v26, v21, {S4(RC)}, s54 offen")
        a.L("L_pf1")

def consumer(a):
    a.L("L_cons")
    H, XA, WA, ACC, B1, FA, FB = 2, 8, 12, 32, 80, 104, 136
    if not OPT.get("nopf") and not OPT.get("pflate") and not OPT.get("pfprod"):
        l2_prefetch(a, OPT.get("pfmode", 0))
    a.I(f"v_lshrrev_b32 v{H}, 5, v1")
    a.I(f"s_and_b32 s63, s{S_W}, 1")
    a.I(f"s_lshr_b32 s64, s{S_W}, 1")
    srd(a, RD, S_B1, 2752)
    a.I(f"s_add_u32 s54, s{S_START}, s63")
    a.I("s_lshl_b32 s54, s54, 6")
    a.I(f"v_lshlrev_b32 v3, 3, v{H}")
    for s in range(3):
        for q in range(4):
            r = B1 + (s*4+q)*2
            a.I(f"buffer_load_dwordx2 v[{r}:{r+1}], v3, {S4(RD)}, s54 offen offset:{s*128+q*16}")
    for i in range(48):
        a.I(f"v_mov_b32 v{ACC+i}, 0")
    a.I("v_and_b32 v16, 31, v1")
    a.I("v_bfe_u32 v17, v1, 1, 3")
    a.I("s_lshl_b32 s54, s64, 5")
    a.I("v_add_u32 v16, s54, v16")
    a.I("v_lshlrev_b32 v16, 7, v16")
    a.I(f"v_xor_b32 v17, v17, v{H}")
    for ks in range(4):
        a.I(f"v_xor_b32 v18, {2*ks}, v17")
        a.I(f"v_lshl_add_u32 v{XA+ks}, v18, 4, v16")
    tr_lane_addr(a, WA, 1, 16, 17, 8, 384)
    a.I("s_lshl_b32 s54, s63, 6")
    a.I(f"v_xor_b32 v{WA}, s54, v{WA}")
    a.I(f"v_add_u32 v{WA}, 0x10000, v{WA}")
    a.I(f"v_add_u32 v{WA+1}, 49152, v{WA}")

    def reads(b, G, F):
        out = []
        if OPT.get("p1nocons"): return ["s_nop 0"]
        wv = WA + (b >> 1)
        for l in range(2):
            ks = 2*G + l
            out.append(f"ds_read_b128 {vr(F+4*l,4)}, v{XA+ks} offset:{b*8192}")
            for s in range(3):
                for rd in range(2):
                    out.append(f"ds_read_b64_tr_b16 {vr(F+8+12*l+4*s+2*rd,2)}, v{wv} offset:{(b&1)*24576 + ks*6144 + rd*1536 + s*128}")
        return out
    def mfmas(F, qkv):
        out = []
        if OPT.get("p1nocons") or OPT.get("p1nomfma"): return ["s_nop 0"]
        for l in range(2):
            for s in range(3):
                X, W = F+4*l, F+8+12*l+4*s
                out.append(MF(ACC+16*s, X, W, ACC+16*s) if (qkv and s == 2) else MF(ACC+16*s, W, X, ACC+16*s))
        return out
    def inter(mf, rd):
        out = []
        per = OPT.get("iper", [4, 4, 3, 3, 0, 0])
        if len(mf) != 6: return mf + rd
        k = 0
        for i, m in enumerate(mf):
            out.append(m)
            out += rd[k:k+per[i]]
            k += per[i]
        assert k >= len(rd)
        return out
    def stage_loop(tag, qkv):
        a.I("s_mov_b32 s65, 0x8000")
        a.L(f"L_loop_{tag}")
        fap = OPT.get("fapos", 2)
        for b in range(4):
            a.I("s_waitcnt lgkmcnt(0)")
            a.I(J(inter(mfmas(FA, qkv), reads(b, 1, FB))))
            if (not qkv) and b == (fap & 3):
                if fap >= 4:
                    a.I("s_cmp_lt_i32 s65, 0")
                    a.I(f"s_cbranch_scc0 L_nodrain")
                a.I("s_waitcnt vmcnt(0)")
                if fap >= 4: a.L("L_nodrain")
            a.I("s_waitcnt lgkmcnt(0)")
            if b == 3:
                if not qkv:
                    a.I("s_cmp_lt_i32 s65, 0")
                    a.I(f"s_cbranch_scc1 L_last_{tag}")
                for ks in range(4):
                    a.I(f"v_add_u32 v{XA+ks}, s65, v{XA+ks}")
            stamp_dyn(a)
            a.I("s_barrier")
            stamp_dyn(a)
            a.I(J(inter(mfmas(FB, qkv), reads((b+1) % 4, 0, FA))))
        a.I("s_cmp_lt_i32 s65, 0")
        a.I("s_mov_b32 s65, 0xffff8000")
        a.I(f"s_cbranch_scc0 L_loop_{tag}")
        if not qkv:
            a.L(f"L_last_{tag}")
            a.I(J(mfmas(FB, qkv)))

    if OPT.get("pflate"):
        for i in range(OPT["pflate"]):
            a.I("s_sleep 8")
        l2_prefetch(a, 0)
    if OPT.get("pfw1early"):
        l2_prefetch(a, 1)
    a.I("s_barrier")
    stamp(a, "B0")
    if STAMPS and OPT.get("fine"): a.I("s_mov_b32 s87, 24")
    if not OPT.get("nopf") and not OPT.get("pfw1early"):
        l2_prefetch(a, 1)
    a.I(J(reads(0, 0, FA)))
    stage_loop("q", True)
    stamp(a, "qloop")
    srd(a, RA, S_WS, VF + 2*MB)
    a.I(f"s_lshl_b32 s54, s{S_RB}, 1")
    a.I("s_add_u32 s54, s54, s64")
    a.I(f"s_lshl_b32 s55, s{S_CG}, 2")
    a.I("s_lshl_b32 s56, s63, 1")
    a.I("s_add_u32 s55, s55, s56")
    a.I("s_lshl_b32 s55, s55, 6")
    a.I("s_add_u32 s54, s54, s55")
    a.I("s_lshl_b32 s54, s54, 10")
    a.I("v_lshlrev_b32 v3, 4, v1")
    a.I("v_bfe_u32 v4, v1, 4, 1")
    a.I("v_lshlrev_b32 v4, 16, v4")
    a.I(f"v_lshl_add_u32 v4, v{H}, 8, v4")
    a.I("v_and_b32 v5, 15, v1")
    a.I("v_lshl_add_u32 v4, v5, 4, v4")
    a.I(f"s_mov_b32 s56, {hex(f2u(QSCALE))}")
    a.I("s_waitcnt vmcnt(0)")
    a.I("s_nop 4")
    for idx, s in enumerate((1, 2, 0)):
        d = ACC + 16*s
        if s == 0:
            for i in range(16):
                a.I(f"v_mul_f32 v{d+i}, s56, v{d+i}")
        for j in range(8):
            a.I(f"v_cvt_pk_bf16_f32 v{d+j}, v{d+2*j}, v{d+2*j+1}")
        if s < 2:
            for hh in range(2):
                a.I(f"s_add_u32 s55, s54, {(KF if s else QF) + hh*65536}")
                a.I(f"buffer_store_dwordx4 {vr(d+4*hh,4)}, v3, {S4(RA)}, s55 offen sc1")
        else:
            a.I(f"s_add_u32 s55, s54, {VF}")
            for u in range(2):
                a.I(f"buffer_store_dwordx4 {vr(d+4*u,4)}, v4, {S4(RA)}, s55 offen offset:{u*512} sc1")
    a.I("s_nop 1")
    for s in range(3):
        for q in range(4):
            r = B1 + (s*4+q)*2
            d = ACC + s*16 + q*4
            a.I(f"v_lshlrev_b32 v{d}, 16, v{r}")
            a.I(f"v_and_b32 v{d+1}, 0xffff0000, v{r}")
            a.I(f"v_lshlrev_b32 v{d+2}, 16, v{r+1}")
            a.I(f"v_and_b32 v{d+3}, 0xffff0000, v{r+1}")
    stage_loop("f", False)
    a.I("s_barrier")
    stamp(a, "floop")
    a.I("s_barrier")
    srd_off(a, RA, S_WS, HF, HF_SIZE)
    a.I(f"s_lshl_b32 s54, s{S_RB}, 1")
    a.I("s_add_u32 s54, s54, s64")
    a.I(f"s_add_u32 s55, s{S_START}, s63")
    a.I("s_lshl_b32 s55, s55, 7")
    a.I("s_add_u32 s54, s54, s55")
    a.I("s_lshl_b32 s54, s54, 10")
    a.I("v_lshlrev_b32 v3, 4, v1")
    a.I("s_nop 4")
    for s in range(3):
        d = ACC + 16*s
        for i in range(16):
            a.I(f"v_max_f32 v{d+i}, 0, v{d+i}")
        for i in range(16):
            a.I(f"v_mul_f32 v{d+i}, v{d+i}, v{d+i}")
        for j in range(8):
            a.I(f"v_cvt_pk_bf16_f32 v{d+j}, v{d+2*j}, v{d+2*j+1}")
        for uu in range(2):
            a.I(f"s_add_u32 s55, s54, {(4*s+uu)*65536}")
            a.I(f"buffer_store_dwordx4 {vr(d+4*uu,4)}, v3, {S4(RA)}, s55 offen sc1")
    a.I("s_nop 1")
    a.I("s_branch L_attn")

def aux_side_issue(a):
    a.I("s_sub_u32 s66, s67, 4")
    a.I(f"s_lshl_b32 s54, s2, 2")
    a.I("s_or_b32 s54, s54, s66")
    a.I("s_cmp_lg_u32 s54, 0")
    a.I("s_cbranch_scc1 L_aux1")
    srd(a, RD, S_DBG, 256)
    a.I("s_memrealtime s[54:55]")
    a.I("s_waitcnt lgkmcnt(0)")
    a.I("s_or_b32 s85, s54, 1")
    a.I("v_mov_b32 v8, s85")
    a.I("v_mov_b32 v10, 0")
    a.I("s_mov_b64 exec, 1")
    a.I(f"buffer_store_dword v8, v10, {S4(RD)}, 0 offen sc1")
    a.I("s_mov_b64 exec, -1")
    a.L("L_aux1")
    a.I(f"s_lshl_b32 s54, s{S_RB}, 6")
    a.I(f"s_lshl_b32 s55, s{S_CG}, 3")
    a.I("s_add_u32 s54, s54, s55")
    a.I("s_lshl_b32 s55, s66, 1")
    a.I("s_add_u32 s86, s54, s55")
    return 0

def aux_side_loads(a):
    a.I("s_lshl_b32 s54, s86, 10")
    srd_off(a, RD, S_AX, "s54", 2048)
    a.I("v_and_b32 v2, 31, v1")
    a.I("v_lshlrev_b32 v2, 5, v2")
    a.I("v_lshrrev_b32 v3, 5, v1")
    a.I("v_lshl_add_u32 v4, v3, 10, v2")
    for i in range(2):
        a.I(f"buffer_load_dwordx4 {vr(32+4*i,4)}, v4, {S4(RD)}, 0 offen offset:{16*i}")
    srd(a, RD, S_GW, 1024)
    for i in range(2):
        a.I(f"buffer_load_dwordx4 {vr(40+4*i,4)}, v2, {S4(RD)}, 0 offen offset:{16*i}")
    n = 4
    if OPT.get("codepf", 1):
        a.I("s_getpc_b64 s[52:53]")
        a.L("L_pc")
        a.I(f"s_sub_u32 s52, s52, L_pc-{KN}")
        a.I("s_subb_u32 s53, s53, 0")
        a.I("s_mul_i32 s54, s66, 6144")
        a.I("v_lshlrev_b32 v5, 7, v1")
        a.I("v_add_u32 v5, s54, v5")
        a.I(f"v_min_u32 v5, L_code_end-{KN}-4, v5")
        a.I("s_mov_b32 exec_hi, 0xffff")
        a.I("global_load_dword v116, v5, s[52:53]")
        a.I("s_mov_b64 exec, -1")
        n += 1
    return n

def aux_nonce_issue(a):
    srd(a, RD, S_DBG, 256)
    a.I("v_mov_b32 v10, 0")
    a.I(f"buffer_load_dword v8, v10, {S4(RD)}, 0 offen sc1")
    return 1

def aux_nonce_take(a):
    a.I(f"v_readfirstlane_b32 s{S_NONCE}, v8")
    a.I("s_cmp_lg_u32 s66, 0")
    a.I("s_cbranch_scc1 L_nonce_ok")
    a.I("s_mov_b32 s50, 0x40000")
    a.L("L_nonce")
    a.I(f"s_cmp_lg_u32 s{S_NONCE}, 0")
    a.I("s_cbranch_scc1 L_nonce_ok")
    a.I("s_sub_u32 s50, s50, 1")
    a.I("s_cmp_eq_u32 s50, 0")
    a.I("s_cbranch_scc1 L_nonce_ok")
    srd(a, RD, S_DBG, 256)
    a.I(f"buffer_load_dword v8, v10, {S4(RD)}, 0 offen sc1")
    a.I("s_waitcnt vmcnt(0)")
    a.I(f"v_readfirstlane_b32 s{S_NONCE}, v8")
    a.I("s_branch L_nonce")
    a.L("L_nonce_ok")

def aux_gate(a):
    if OPT.get("p1noprod"): a.I("s_waitcnt vmcnt(0)")
    a.I("v_mov_b32 v24, 0")
    for i in range(8):
        a.I(f"v_dot2c_f32_bf16 v24, v{32+i}, v{40+i}")
    a.I("s_nop 3")
    for sh in (1, 2, 4, 8):
        a.I(f"v_add_f32_dpp v24, v24, v24 row_shr:{sh} row_mask:0xf bank_mask:0xf")
        a.I("s_nop 1")
    a.I("v_add_f32_dpp v24, v24, v24 row_bcast:15 row_mask:0xa bank_mask:0xf")
    a.I("s_nop 1")
    a.I("v_cvt_pk_bf16_f32 v24, v24, v24")
    a.I("v_and_b32 v24, 0xffff0000, v24")
    a.I(f"v_mul_f32 v24, {hex(f2u(-1.4426950408889634))}, v24")
    a.I("v_exp_f32 v24, v24")
    a.I("s_nop 0")
    a.I("v_add_f32 v24, 1.0, v24")
    a.I("v_rcp_f32 v24, v24")
    a.I("s_nop 0")
    a.I("v_cvt_pk_bf16_f32 v24, v24, v24")
    a.I("v_and_b32 v24, 0xffff0000, v24")
    srd_off(a, RD, S_WS, GO, 8192)
    a.I("s_lshl_b32 s54, s86, 2")
    a.I("v_lshrrev_b32 v3, 5, v1")
    a.I("v_lshlrev_b32 v3, 2, v3")
    a.I("s_mov_b32 s52, 0x80000000")
    a.I("s_mov_b32 s53, 0x80000000")
    a.I("s_mov_b64 exec, s[52:53]")
    a.I(f"buffer_store_dword v24, v3, {S4(RD)}, s54 offen sc1")
    a.I("s_mov_b64 exec, -1")

def aux_publish_fa(a):
    a.I("s_cmp_lg_u32 s66, 0")
    a.I("s_cbranch_scc1 L_aux2")
    srd_off(a, RD, S_WS, FLG, FLG_SIZE)
    a.I(f"s_lshl_b32 s54, s{S_CG}, 7")
    a.I(f"s_lshl_b32 s55, s{S_RB}, 2")
    a.I("s_add_u32 s54, s54, s55")
    a.I(f"s_add_u32 s54, s54, {FA_OFF}")
    a.I(f"v_mov_b32 v8, s{S_NONCE}")
    a.I(f"v_mov_b32 v10, 0")
    a.I("s_mov_b64 exec, 1")
    a.I(f"buffer_store_dword v8, v10, {S4(RD)}, s54 offen sc1")
    a.I("s_mov_b64 exec, -1")
    stamp(a, "FApub")
    a.L("L_aux2")

def aux_after_e1(a):
    a.I("s_mov_b32 s67, s66")
    a.I("s_cmp_lg_u32 s67, 1")
    a.I("s_cbranch_scc1 L_aux3")
    a.I(f"v_lshlrev_b32 v10, 2, v1")
    a.I(f"v_add_u32 v10, {L_MISC}, v10")
    a.I("v_mov_b32 v8, 0")
    a.I("ds_write_b32 v10, v8")
    a.I("s_waitcnt lgkmcnt(0)")
    a.L("L_aux3")
    a.I("s_barrier")
    a.I("s_setprio 3")
    stamp(a, "E2")
    srd_off(a, RC, S_WS, FLG, FLG_SIZE)
    a.I("s_cmp_lg_u32 s67, 0")
    a.I("s_cbranch_scc1 L_aux4")
    a.I(f"v_mov_b32 v8, {L_MISC + 128}")
    a.I(f"v_mov_b32 v9, s{S_NONCE}")
    a.I("ds_write_b32 v8, v9")
    a.I(f"s_lshr_b32 s54, s{S_HD}, 2")
    a.I("s_lshl_b32 s54, s54, 7")
    a.I(f"s_add_u32 s54, s54, {FA_OFF}")
    a.I("v_lshlrev_b32 v8, 2, v1")
    poll(a, RC, 32, 8, 9, "s54")
    lds_add1(a, M_FA, 8, 9)
    a.I("s_branch L_aux5")
    a.L("L_aux4")
    lds_spin(a, M_FA, 1, 8, 9)
    a.L("L_aux5")
    stamp(a, "FAok")
    VL = 4
    a.I(f"v_lshlrev_b32 v{VL}, 4, v1")
    a.I(f"s_lshl_b32 s54, s{S_HD}, 16")
    a.I(f"s_add_u32 s55, s54, {KF}")
    srd_off(a, RA, S_WS, "s55", 65536)
    a.I(f"s_add_u32 s55, s54, {VF}")
    srd_off(a, RB, S_WS, "s55", 65536)
    a.I(f"s_add_u32 s55, s54, {QF}")
    srd_off(a, RD, S_WS, "s55", 65536)
    a.I(f"s_lshl_b32 s54, s{S_QB}, 3")
    a.I("s_lshl_b32 s55, s67, 1")
    a.I("s_add_u32 s54, s54, s55")
    a.I("s_lshl_b32 s54, s54, 10")
    a.I("s_lshl_b32 s55, s67, 11")
    a.I(f"s_add_u32 s55, s55, {L_RING}")
    for t in range(2):
        a.I(f"s_add_u32 m0, s55, {t*1024}")
        a.I(f"s_add_u32 s56, s54, {t*1024}")
        a.I(f"buffer_load_dwordx4 v{VL}, {S4(RD)}, s56 offen sc1 lds")
    a.I("s_lshl_b32 s54, s67, 10")
    def kvchunks(cs):
        for c in cs:
            a.I(f"s_add_u32 s55, s54, {c*4096}")
            a.I("s_mov_b32 m0, s55")
            a.I(f"s_add_u32 s56, s55, {L_V}")
            a.I(f"buffer_load_dwordx4 v{VL}, {S4(RA)}, s55 offen sc1 lds")
            a.I("s_mov_b32 m0, s56")
            a.I("s_nop 0")
            a.I(f"buffer_load_dwordx4 v{VL}, {S4(RB)}, s55 offen sc1 lds")
    kvchunks(range(0, 2))
    kvchunks(range(2, 4))
    a.I("s_waitcnt vmcnt(4)")
    lds_add1(a, M_KV, 8, 9)
    stamp(a, "KV1")
    kvchunks(range(4, 16))
    a.I("s_lshr_b32 s53, s2, 3")
    srd(a, RA, S_W2, 1376*1024)
    srd(a, RB, S_WO, 512*1024)
    a.I("s_mul_i32 s54, s53, 44032")
    a.I("s_lshl_b32 s55, s67, 10")
    a.I("s_add_u32 s54, s54, s55")
    a.I("s_waitcnt vmcnt(0)")
    lds_add1(a, M_KV, 8, 9)
    stamp(a, "KV2")
    a.I("v_lshlrev_b32 v10, 7, v1")
    a.I("s_lshl_b32 s55, s67, 13")
    a.I("s_mul_i32 s54, s53, 44032")
    a.I("s_add_u32 s54, s54, s55")
    a.I(f"buffer_load_dword v40, v10, {S4(RA)}, s54 offen")
    a.I("s_add_u32 s54, s54, 32768")
    a.I(f"buffer_load_dword v41, v10, {S4(RA)}, s54 offen")
    a.I("s_lshl_b32 s54, s53, 14")
    a.I("s_lshl_b32 s55, s67, 12")
    a.I("s_add_u32 s54, s54, s55")
    a.I("s_mov_b32 exec_hi, 0")
    a.I(f"buffer_load_dword v42, v10, {S4(RB)}, s54 offen")
    a.I("s_mov_b64 exec, -1")

def ffn2_p3(a):
    WF, HR, ACC2, BPR = 24, 40, 104, 8
    VH, VW, VA0, VA1 = 2, 3, 4, 5
    a.I("s_cmp_lg_u32 s67, 0")
    a.I("s_cbranch_scc1 L_f1")
    lds_spin(a, M_HST, 4, 8, 9, OPT.get('fslp', 1))
    lds_spin(a, M_KV, 8, 8, 9)
    a.I(f"s_lshl_b32 s54, s{S_RB}, 7")
    a.I(f"s_lshl_b32 s55, s{S_CG}, 2")
    a.I("s_add_u32 s54, s54, s55")
    a.I(f"s_add_u32 s54, s54, {FH_OFF}")
    flag_store(a, "s54", 8, 10)
    a.I(f"s_lshl_b32 s54, s{S_HD}, 7")
    a.I(f"s_add_u32 s54, s54, {FH_OFF}")
    a.I("v_lshlrev_b32 v8, 2, v1")
    poll(a, RC, 8, 8, 9, "s54", OPT.get("fhslp", 4))
    lds_add1(a, M_H, 8, 9)
    a.I("s_branch L_f2")
    a.L("L_f1")
    lds_spin(a, M_H, 1, 8, 9, OPT.get('fslp', 1))
    a.L("L_f2")
    lds_spin(a, M_QRD, 8, 8, 9, OPT.get('fslp', 1))
    stamp(a, "hready")
    srd(a, RA, S_W2, 1376*1024)
    srd_off(a, RB, S_WS, HF, HF_SIZE)
    a.I(f"v_lshlrev_b32 v{VH}, 4, v1")
    dma_w_lane_off(a, VW, 1, 8, 9, 1024)
    a.I(f"s_lshl_b32 s54, s{S_QB}, 7")
    a.I(f"v_add_u32 v{VW}, s54, v{VW}")
    tr_lane_addr(a, VA0, 1, 8, 9, 4, 128)
    a.I("s_mul_i32 s68, s67, 6144")
    a.I(f"s_add_u32 s68, s68, {L_RING}")
    a.I(f"v_add_u32 v{VA0}, s68, v{VA0}")
    a.I(f"v_xor_b32 v{VA1}, 64, v{VA0}")
    a.I("s_mul_i32 s54, s67, 24")
    a.I("s_lshl_b32 s70, s54, 14")
    a.I("s_lshl_b32 s71, s54, 16")
    a.I(f"s_lshl_b32 s55, s{S_HD}, 11")
    a.I("s_add_u32 s71, s71, s55")
    for i in range(64):
        a.I(f"v_mov_b32 v{ACC2+i}, 0")
    a.I("s_waitcnt vmcnt(0)")
    def fissue(slot):
        return [f"s_add_u32 m0, s68, {slot*2048}",
                f"s_add_u32 s69, s70, 8192",
                f"buffer_load_dwordx4 v{VW}, {S4(RA)}, s70 offen lds",
                f"s_add_u32 m0, s68, {slot*2048+1024}",
                f"s_add_u32 s70, s70, 16384",
                f"buffer_load_dwordx4 v{VW}, {S4(RA)}, s69 offen lds",
                f"buffer_load_dwordx4 {vr(HR+slot*8,4)}, v{VH}, {S4(RB)}, s71 offen sc1",
                f"buffer_load_dwordx4 {vr(HR+slot*8+4,4)}, v{VH}, {S4(RB)}, s71 offen offset:1024 sc1",
                f"s_add_u32 s71, s71, 65536"]
    def trr(F, off):
        out = []
        for ct, va in ((0, VA0), (1, VA1)):
            for rd in range(2):
                out.append(f"ds_read_b64_tr_b16 {vr(F+4*ct+2*rd,2)}, v{va} offset:{off + rd*1024}")
        return out
    for slot in range(3):
        a.I(J(fissue(slot)))
    a.I("s_cmp_eq_u32 s67, 3")
    a.I("s_cselect_b32 s72, 5, 8")
    a.I(f"s_setprio {OPT.get('ffnprio', 0)}")
    if OPT.get("noffn"): a.I("s_branch L_fskip")
    a.L("L_floop")
    for slot in range(3):
        a.I("s_waitcnt vmcnt(8)")
        a.I(J(trr(WF, slot*2048)))
        a.I("s_waitcnt lgkmcnt(0)")
        fi = fissue(slot)
        mf = lambda ct, rt: MF(ACC2 + (ct*2+rt)*16, WF+4*ct, HR+slot*8+4*rt, ACC2 + (ct*2+rt)*16)
        if OPT.get("fspread", 1):
            a.I(mf(0, 0)); a.I(J(fi[0:3]))
            a.I(mf(1, 0)); a.I(J(fi[3:6]))
            a.I(mf(0, 1)); a.I(fi[6])
            a.I(mf(1, 1)); a.I(J(fi[7:]))
        else:
            for ct in range(2):
                for rt in range(2):
                    a.I(mf(ct, rt))
            a.I(J(fi))
    a.I("s_sub_u32 s72, s72, 1")
    a.I("s_cmp_lg_u32 s72, 0")
    a.I("s_cbranch_scc1 L_floop")
    a.L("L_fskip")
    a.I("s_setprio 3")
    a.I("s_waitcnt vmcnt(0)")
    lds_add1(a, M_FFN, 8, 9)
    stamp(a, "ffn2")
    srd_off(a, RA, S_WS, GO, 8192)
    srd(a, RB, S_B2, 1024)
    a.I("s_and_b32 s73, s67, 1")
    a.I("s_lshr_b32 s74, s67, 1")
    a.I(f"s_lshl_b32 s75, s{S_HD}, 6")
    a.I("s_lshl_b32 s54, s73, 5")
    a.I("s_add_u32 s75, s75, s54")
    a.I("s_lshl_b32 s54, s75, 2")
    a.I("v_and_b32 v8, 31, v1")
    a.I("v_lshlrev_b32 v8, 2, v8")
    a.I(f"buffer_load_dword v40, v8, {S4(RA)}, s54 offen sc1")
    a.I(f"s_lshl_b32 s54, s{S_QB}, 6")
    a.I("s_lshl_b32 s55, s74, 5")
    a.I("s_add_u32 s54, s54, s55")
    a.I("s_lshl_b32 s54, s54, 1")
    a.I("v_lshrrev_b32 v8, 5, v1")
    a.I("v_lshlrev_b32 v8, 3, v8")
    for q in range(4):
        a.I(f"buffer_load_dwordx2 v[{42+2*q}:{43+2*q}], v8, {S4(RB)}, s54 offen offset:{q*16}")
    lds_spin(a, M_ATT, 4, 8, 9, OPT.get('attslp', 1))
    stamp(a, "attdone")
    srd(a, RA, S_WO, 512*1024)
    a.I("s_lshl_b32 s68, s67, 14")
    a.I("s_lshl_b32 s70, s67, 17")
    for ks in range(8):
        for n in range(2):
            a.I(f"s_add_u32 m0, s68, {ks*2048+n*1024}")
            a.I(f"s_add_u32 s69, s70, {ks*16384+n*8192}")
            a.I(f"buffer_load_dwordx4 v{VW}, {S4(RA)}, s69 offen lds")
    a.I(f"s_add_u32 s54, s68, {L_V}")
    a.I(f"v_add_u32 v8, s54, v{VH}")
    for i in range(16):
        a.I(f"ds_write_b128 v8, {vr(ACC2+4*i,4)} offset:{i*1024}")
    a.I("s_waitcnt vmcnt(0) lgkmcnt(0)")
    lds_add1(a, M_T1, 9, 10)
    lds_spin(a, M_T1, 4, 9, 10)
    a.I("s_lshl_b32 s54, s67, 12")
    a.I(f"s_add_u32 s54, s54, {L_V}")
    a.I(f"v_add_u32 v8, s54, v{VH}")
    for p in range(4):
        for q in range(4):
            a.I(f"ds_read_b128 {vr(ACC2+p*16+q*4,4)}, v8 offset:{p*16384+q*1024}")
    a.I("s_waitcnt lgkmcnt(0)")
    for i in range(16):
        a.I(f"v_add_f32 v{ACC2+i}, v{ACC2+i}, v{ACC2+16+i}")
        a.I(f"v_add_f32 v{ACC2+32+i}, v{ACC2+32+i}, v{ACC2+48+i}")
    for i in range(16):
        a.I(f"v_add_f32 v{ACC2+i}, v{ACC2+i}, v{ACC2+32+i}")
    a.I("s_waitcnt vmcnt(0)")
    a.I("v_sub_f32 v41, 1.0, v40")
    a.I("v_cvt_pk_bf16_f32 v41, v41, v41")
    a.I("v_and_b32 v41, 0xffff0000, v41")
    for q in range(4):
        a.I(f"v_lshlrev_b32 v52, 16, v{42+2*q}")
        a.I(f"v_and_b32 v53, 0xffff0000, v{42+2*q}")
        a.I(f"v_lshlrev_b32 v54, 16, v{43+2*q}")
        a.I(f"v_and_b32 v55, 0xffff0000, v{43+2*q}")
        for j in range(4):
            a.I(f"v_add_f32 v{BPR+4*q+j}, v{ACC2+4*q+j}, v{52+j}")
        for j in range(4):
            a.I(f"v_mul_f32 v{BPR+4*q+j}, v{BPR+4*q+j}, v41")
    a.I("v_mov_b32 v39, v40")
    tr_lane_addr(a, VA0, 1, 32, 33, 4, 128)
    a.I("s_lshl_b32 s54, s74, 6")
    a.I(f"v_xor_b32 v{VA0}, s54, v{VA0}")
    a.I("s_lshl_b32 s54, s73, 15")
    a.I(f"s_add_u32 s54, s54, {L_V}")
    a.I(f"v_add_u32 v{VA1}, s54, v{VH}")
    FR = 40
    def wreads(ks):
        F = FR + (ks % 8) * 8
        return [f"ds_read_b64_tr_b16 {vr(F,2)}, v{VA0} offset:{ks*2048}",
                f"ds_read_b64_tr_b16 {vr(F+2,2)}, v{VA0} offset:{ks*2048+1024}"]
    def oread(ks):
        F = FR + (ks % 8) * 8
        return [f"ds_read_b128 {vr(F+4,4)}, v{VA1} offset:{ks*1024}"]
    a.I("s_cmp_lg_u32 s67, 0")
    a.I("s_cbranch_scc1 L_f4")
    a.I(f"s_lshl_b32 s54, s{S_HD}, 8")
    a.I(f"s_add_u32 s54, s54, {FO_OFF}")
    a.I("v_lshlrev_b32 v121, 2, v1")
    if not OPT.get("opf", 0):
        poll(a, RC, 64, 121, 122, "s54", OPT.get("foslp", 1))
    else:
        srd_off(a, RB, S_WS, OF, 2*MB)
        a.I(f"s_lshl_b32 s55, s{S_HD}, 16")
        a.I("v_lshlrev_b32 v123, 10, v1")
        a.I("s_mov_b64 s[56:57], 0")
        a.I("s_mov_b32 s50, 0x40000")
        a.L("L_opf")
        a.I(f"buffer_load_dword v122, v121, {S4(RC)}, s54 offen sc1")
        a.I("s_waitcnt vmcnt(0)")
        a.I(f"v_cmp_eq_u32 vcc, s{S_NONCE}, v122")
        a.I("s_nop 1")
        a.I("s_andn2_b64 s[58:59], vcc, s[56:57]")
        a.I("s_or_b64 s[56:57], s[56:57], vcc")
        a.I("s_cmp_eq_u64 s[56:57], -1")
        a.I("s_cbranch_scc1 L_opf3")
        a.I("s_cmp_eq_u64 s[58:59], 0")
        a.I("s_cbranch_scc1 L_opf2")
        a.I("s_mov_b64 exec, s[58:59]")
        for j in range(8):
            a.I(f"buffer_load_dword v120, v123, {S4(RB)}, s55 offen offset:{j*128} sc1")
        a.I("s_mov_b64 exec, -1")
        a.L("L_opf2")
        a.I("s_sub_u32 s50, s50, 1")
        a.I("s_cmp_eq_u32 s50, 0")
        a.I("s_cbranch_scc1 L_opf3")
        a.I(f"s_sleep {OPT.get('foslp', 1)}")
        a.I("s_branch L_opf")
        a.L("L_opf3")
    a.L("L_f4")
    for ks in range(8): a.I(J(wreads(ks)))
    srd_off(a, RB, S_WS, OF, 2*MB)
    a.I(f"s_lshl_b32 s54, s{S_HD}, 16")
    a.I("s_lshl_b32 s55, s67, 11")
    a.I("s_add_u32 s54, s54, s55")
    a.I(f"s_add_u32 s55, s55, {L_V}")
    a.I("s_waitcnt lgkmcnt(0)")
    a.I("s_barrier")
    stamp(a, "T2")
    for ch in range(4):
        for hh in range(2):
            for rt in range(2):
                off = rt*32768 + ch*8192 + hh*1024
                a.I(f"s_add_u32 m0, s55, {off}")
                a.I(f"s_add_u32 s56, s54, {off}")
                a.I(f"buffer_load_dwordx4 v{VH}, {S4(RB)}, s56 offen sc1 lds")
    for ch in range(4):
        a.I(f"s_waitcnt vmcnt({4*(3-ch)}) lgkmcnt(0)")
        a.I("s_barrier")
        for ks in range(8*ch, 8*ch+8): a.I(J(oread(ks)))
        for i in range(8):
            ks = 8*ch + i
            a.I(f"s_waitcnt lgkmcnt({7 + i if ch < 3 else 7 - i})")
            F = FR + i*8
            a.I(MF(ACC2, F, F+4, ACC2 if ks else None))
            if ch < 3: a.I(J(wreads(ks+8)))
    a.I("s_nop 15")
    stamp(a, "p3mm")
    for i in range(16):
        a.I(f"v_fma_f32 v{ACC2+i}, v{ACC2+i}, v39, v{BPR+i}")
    for j in range(8):
        a.I(f"v_cvt_pk_bf16_f32 v{ACC2+j}, v{ACC2+2*j}, v{ACC2+2*j+1}")
    a.I("s_nop 1")
    a.I(f"v_permlane32_swap_b32 v{ACC2}, v{ACC2+2}")
    a.I(f"v_permlane32_swap_b32 v{ACC2+1}, v{ACC2+3}")
    a.I(f"v_permlane32_swap_b32 v{ACC2+4}, v{ACC2+6}")
    a.I(f"v_permlane32_swap_b32 v{ACC2+5}, v{ACC2+7}")
    srd(a, RA, S_OUT, 2*MB)
    a.I("s_lshl_b32 s54, s75, 10")
    a.I(f"s_lshl_b32 s55, s{S_QB}, 7")
    a.I("s_add_u32 s54, s54, s55")
    a.I("s_lshl_b32 s55, s74, 6")
    a.I("s_add_u32 s54, s54, s55")
    a.I("v_and_b32 v32, 31, v1")
    a.I("v_lshlrev_b32 v32, 10, v32")
    a.I("v_lshrrev_b32 v33, 5, v1")
    a.I("v_lshl_add_u32 v32, v33, 4, v32")
    ofl = {0: "", 1: " sc1", 2: " nt", 3: " sc0 sc1"}[OPT.get("outfl", 0)]
    a.I(f"buffer_store_dwordx4 {vr(ACC2,4)}, v32, {S4(RA)}, s54 offen{ofl}")
    a.I(f"buffer_store_dwordx4 {vr(ACC2+4,4)}, v32, {S4(RA)}, s54 offen offset:32{ofl}")
    stamp_flush(a)
    a.I("s_endpgm")

def attention(a):
    a.L("L_attn")
    stamp(a, "attn0")
    QA, QB = 8, 12
    KB = [16, 20]; VB = [24, 32]
    S0, S1, OA, OB = 40, 56, 72, 88
    VK, VV, VL = 2, 3, 4
    T0, T1, T2 = 104, 105, 106
    VKN, VVN, VVB, VCH, VONE, VNX = 107, 108, 109, 110, 111, 5
    a.I(f"s_and_b32 s63, s{S_W}, 3")
    a.I(f"s_lshr_b32 s64, s{S_W}, 2")
    a.I(f"v_lshlrev_b32 v{VL}, 4, v1")
    a.I(f"v_lshrrev_b32 v{T0}, 5, v1")
    a.I(f"v_and_b32 v{T1}, 15, v1")
    a.I(f"v_lshlrev_b32 v{T1}, 4, v{T1}")
    a.I(f"v_lshl_add_u32 v{VVB}, v{T0}, 8, v{T1}")
    a.I(f"v_add_u32 v{VVB}, {L_V}, v{VVB}")
    a.I("s_lshl_b32 s54, s64, 12")
    a.I(f"v_add_u32 v{VK}, s54, v{VL}")
    a.I(f"v_add_u32 v{VV}, s54, v{VVB}")
    a.I("s_lshl_b32 s54, s63, 2")
    a.I(f"s_add_u32 s54, s54, {M_CH}")
    a.I(f"v_mov_b32 v{VCH}, s54")
    a.I(f"v_mov_b32 v{VONE}, 1")
    a.I("s_mov_b32 s74, 0x0000ffff")
    a.I("s_mov_b32 s75, 0x0000ffff")
    a.I("s_mov_b32 s77, 0")
    a.I(f"s_lshl_b32 s66, s{S_QB}, 3")
    a.I("s_lshl_b32 s54, s63, 1")
    a.I("s_add_u32 s66, s66, s54")
    a.I("s_lshl_b32 s54, s63, 11")
    a.I(f"s_add_u32 s54, s54, {L_RING}")
    a.I(f"v_add_u32 v{T2}, s54, v{VL}")
    a.I(f"v_and_b32 v{T0}, 31, v1")
    a.I(f"v_cmp_eq_u32 vcc, 16, v{T0}")
    a.I(f"v_mov_b32 v{T1}, 0x3f803f80")
    a.I("s_nop 1")
    a.I(f"v_cndmask_b32 v{T0}, 0, v{T1}, vcc")
    for i in range(16):
        a.I(f"v_mov_b32 v{VB[0]+i}, v{T0}")
    lds_spin(a, M_KV, 4, T0, T1)
    stamp(a, "kvok")
    a.I(f"ds_read_b128 {vr(QA,4)}, v{T2}")
    a.I(f"ds_read_b128 {vr(QB,4)}, v{T2} offset:1024")
    for i in range(16):
        a.I(f"v_mov_b32 v{OA+i}, 0")
        a.I(f"v_mov_b32 v{OB+i}, 0")
    a.I("s_waitcnt lgkmcnt(0)")
    lds_add1(a, M_QRD, T0, T1)
    a.I("s_lshl_b32 s71, s64, 12")
    if STAMPS and OPT.get("fineattn"): a.I("s_mov_b32 s87, 24")
    a.I("s_mov_b32 s73, 0")

    def e_(S, i): return f"v_exp_f32 v{S+i}, v{S+i}"
    def c_(S, j): return f"v_cvt_pk_bf16_f32 v{S+j}, v{S+2*j}, v{S+2*j+1}"
    def tile(Sin, Sout, Qn, Kn, Ocur, Vcur_u0, Oprev, Vprev_u1, after_pv2, wait_s, after_s, wait_pv1, do_pv2=True, do_s=True):
        e = lambda i: e_(Sin, i)
        c = lambda j: c_(Sin, j)
        L = [e(0), e(1)]
        if do_pv2: L.append(MF(Oprev, Vprev_u1, Sout+4, Oprev))
        L += after_pv2
        L += [e(2), e(3), c(0), e(4), e(5), c(1)]
        L += wait_s
        if do_s: L.append(MF(Sout, Kn, Qn))
        L += after_s
        L += [e(6), e(7), c(2), e(8), e(9), c(3), e(10), e(11)]
        L += wait_pv1
        L.append(MF(Ocur, Vcur_u0, Sin, Ocur))
        L += [c(4), e(12), e(13), c(5), e(14), e(15), c(6), c(7)]
        return L
    fifo = []
    def dsr(tag, txt): fifo.append(tag); return txt
    def need(tag):
        idx = max(i for i, t in enumerate(fifo) if t == tag)
        return [f"s_waitcnt lgkmcnt({len(fifo) - 1 - idx})"]
    def vreads(t):
        kap = t & 1
        return ["s_mov_b64 exec, s[74:75]",
                dsr(("V", t), f"ds_read_b128 {vr(VB[kap],4)}, v{VV} offset:{t*1024}"),
                dsr(("V", t), f"ds_read_b128 {vr(VB[kap]+4,4)}, v{VV} offset:{t*1024+512}"),
                "s_mov_b64 exec, -1"]
    def kread(t): return [dsr(("K", t), f"ds_read_b128 {vr(KB[t & 1],4)}, v{VK} offset:{t*1024}")]
    a.raw(".p2align 6")
    a.L("L_aloop")
    if OPT.get("fineattn"):
        OPT["fine"] = 1; stamp_dyn(a); OPT["fine"] = 0
    a.I(f"v_add_u32 v{VK}, s71, v{VL}")
    a.I(f"v_add_u32 v{VV}, s71, v{VVB}")
    L = kread(0) + vreads(0) + kread(1)
    L += need(("K", 0))
    L.append(MF(S0, KB[0], QA))
    a.I(J(L))
    a.I("s_nop 7")
    a.I("s_nop 3")
    body = []
    for t in range(4):
        kap = t & 1
        A = []
        Sin, Sout = S0, S1
        A += [e_(Sin, 0), e_(Sin, 1)]
        if t > 0: A.append(MF(OB, VB[kap^1]+4, Sout+4, OB))
        if t + 1 < 4: A += vreads(t+1)
        A += [e_(Sin, 2), e_(Sin, 3), c_(Sin, 0), e_(Sin, 4), e_(Sin, 5), c_(Sin, 1)]
        A.append(MF(Sout, KB[kap], QB))
        if t + 2 < 4: A += kread(t+2)
        A += [e_(Sin, 6), e_(Sin, 7), c_(Sin, 2), e_(Sin, 8), e_(Sin, 9), c_(Sin, 3), e_(Sin, 10), e_(Sin, 11)]
        A += need(("V", t))
        A.append(MF(OA, VB[kap], Sin, OA))
        A += [c_(Sin, 4), e_(Sin, 12), e_(Sin, 13), c_(Sin, 5), e_(Sin, 14), e_(Sin, 15), c_(Sin, 6), c_(Sin, 7)]
        Sin, Sout = S1, S0
        B = [e_(Sin, 0), e_(Sin, 1), MF(OA, VB[kap]+4, Sout+4, OA)]
        if t == 3:
            B += ["s_mov_b64 exec, 1", dsr(("G",), f"ds_add_rtn_u32 v{VNX}, v{VCH}, v{VONE}"), "s_mov_b64 exec, -1"]
        B += [e_(Sin, 2), e_(Sin, 3), c_(Sin, 0), e_(Sin, 4), e_(Sin, 5), c_(Sin, 1)]
        if t + 1 < 4:
            B += need(("K", t+1))
            B.append(MF(Sout, KB[kap^1], QA))
        B += [e_(Sin, 6), e_(Sin, 7), c_(Sin, 2), e_(Sin, 8), e_(Sin, 9), c_(Sin, 3), e_(Sin, 10), e_(Sin, 11)]
        B.append(MF(OB, VB[kap], Sin, OB))
        B += [c_(Sin, 4), e_(Sin, 12), e_(Sin, 13), c_(Sin, 5), e_(Sin, 14), e_(Sin, 15), c_(Sin, 6), c_(Sin, 7)]
        body += A + B
    a.I(J(body))
    a.I("s_waitcnt lgkmcnt(0)")
    a.I(f"v_readfirstlane_b32 s70, v{VNX}")
    a.I(MF(OB, VB[1]+4, S1+4, OB))
    a.I("s_add_u32 s70, s70, 2")
    a.I("s_lshl_b32 s71, s70, 12")
    a.I("s_cmp_lg_u32 s73, 0")
    a.I("s_cbranch_scc1 L_aloop2")
    a.I("s_mov_b32 s73, 1")
    a.I("s_waitcnt vmcnt(0)")
    a.I(f"s_cmp_ge_u32 s{S_W}, 4")
    a.I("s_cbranch_scc1 L_aloop1")
    lds_add1(a, M_HST, T0, T1)
    a.L("L_aloop1")
    lds_spin(a, M_KV, 8, T0, T1)
    a.L("L_aloop2")
    a.I("s_cmp_lt_u32 s70, 16")
    a.I("s_cbranch_scc1 L_aloop")
    a.I("s_waitcnt lgkmcnt(0)")
    a.I("s_nop 7")
    stamp(a, "aloop")
    a.I("s_lshl_b32 s54, s63, 2")
    a.I(f"s_add_u32 s55, s54, {M_PAIR}")
    a.I(f"s_add_u32 s76, s54, {M_PFLAG}")
    a.I(f"v_mov_b32 v{T0}, s55")
    a.I(f"v_mov_b32 v{T1}, 1")
    a.I("s_mov_b64 exec, 1")
    a.I(f"ds_add_rtn_u32 v{T2}, v{T0}, v{T1}")
    a.I("s_mov_b64 exec, -1")
    a.I("s_mul_i32 s54, s63, 4608")
    a.I(f"s_add_u32 s54, s54, {L_XCH}")
    a.I(f"v_add_u32 v{S0}, s54, v{VL}")
    a.I(f"v_lshlrev_b32 v{S0+1}, 2, v1")
    a.I(f"v_add_u32 v{S0+1}, s54, v{S0+1}")
    a.I("s_waitcnt lgkmcnt(0)")
    a.I(f"v_readfirstlane_b32 s55, v{T2}")
    a.I("s_nop 4")
    a.I("s_cmp_lg_u32 s55, 0")
    a.I("s_cbranch_scc1 L_second")
    lds_spin(a, M_FFN, 4, T0, T1)
    a.I(f"ds_write_b128 v{S0}, {vr(OA,4)}")
    a.I(f"ds_write_b128 v{S0}, {vr(OA+4,4)} offset:1024")
    a.I(f"ds_write_b128 v{S0}, {vr(OB,4)} offset:2048")
    a.I(f"ds_write_b128 v{S0}, {vr(OB+4,4)} offset:3072")
    a.I(f"ds_write_b32 v{S0+1}, v{OA+8} offset:4096")
    a.I(f"ds_write_b32 v{S0+1}, v{OB+8} offset:4352")
    a.I("s_waitcnt lgkmcnt(0)")
    lds_add1(a, "s76", T0, T1)
    a.I("s_waitcnt lgkmcnt(0)")
    stamp_flush(a)
    a.I("s_endpgm")
    a.L("L_second")
    lds_spin(a, "s76", 1, T0, T1)
    a.I(f"ds_read_b128 {vr(S1,4)}, v{S0}")
    a.I(f"ds_read_b128 {vr(S1+4,4)}, v{S0} offset:1024")
    a.I(f"ds_read_b128 {vr(S1+8,4)}, v{S0} offset:2048")
    a.I(f"ds_read_b128 {vr(S1+12,4)}, v{S0} offset:3072")
    a.I(f"ds_read_b32 v{T0}, v{S0+1} offset:4096")
    a.I(f"ds_read_b32 v{T1}, v{S0+1} offset:4352")
    a.I(f"v_mov_b32 v{T2}, {L_MISC + 128}")
    a.I(f"ds_read_b32 v{T2}, v{T2}")
    a.I("s_waitcnt lgkmcnt(0)")
    a.I(f"v_readfirstlane_b32 s{S_NONCE}, v{T2}")
    for i in range(8):
        a.I(f"v_add_f32 v{OA+i}, v{OA+i}, v{S1+i}")
        a.I(f"v_add_f32 v{OB+i}, v{OB+i}, v{S1+8+i}")
    a.I(f"v_add_f32 v{OA+8}, v{OA+8}, v{T0}")
    a.I(f"v_add_f32 v{OB+8}, v{OB+8}, v{T1}")
    a.L("L_fin")
    for O in (OA, OB):
        a.I(f"v_mov_b32 v{O+9}, v{O+8}")
    a.I("s_nop 1")
    for O in (OA, OB):
        a.I(f"v_permlane32_swap_b32 v{O+9}, v{O+8}")
    a.I("s_nop 1")
    slow_check(a, OA, OB, T0, T1)
    lds_add1(a, M_ATT, T0, T1)
    for O in (OA, OB):
        a.I(f"v_rcp_f32 v{O+9}, v{O+9}")
    a.I("s_nop 0")
    for O in (OA, OB):
        for i in range(8):
            a.I(f"v_mul_f32 v{O+i}, v{O+i}, v{O+9}")
    for O in (OA, OB):
        for j in range(4):
            a.I(f"v_cvt_pk_bf16_f32 v{O+j}, v{O+2*j}, v{O+2*j+1}")
    srd_off(a, RA, S_WS, OF, 2*MB)
    srd_off(a, RC, S_WS, FLG, FLG_SIZE)
    a.I("s_lshl_b32 s54, s66, 5")
    a.I(f"s_add_u32 s54, s54, s{S_HD}")
    a.I("s_lshl_b32 s55, s54, 10")
    a.I(f"buffer_store_dwordx4 {vr(OA,4)}, v{VL}, {S4(RA)}, s55 offen sc1")
    a.I("s_add_u32 s55, s55, 32768")
    a.I(f"buffer_store_dwordx4 {vr(OB,4)}, v{VL}, {S4(RA)}, s55 offen sc1")
    a.I("s_lshl_b32 s54, s54, 2")
    a.I(f"s_add_u32 s54, s54, {FO_OFF}")
    a.I(f"v_mov_b32 v{T0}, s{S_NONCE}")
    a.I(f"v_lshlrev_b32 v{T1}, 7, v1")
    a.I("s_waitcnt vmcnt(0)")
    a.I("s_mov_b64 exec, 3")
    a.I(f"buffer_store_dword v{T0}, v{T1}, {S4(RC)}, s54 offen sc1")
    a.I("s_mov_b64 exec, -1")
    stamp_flush(a)
    a.I("s_endpgm")
    slow_path(a, QA, QB, KB, VB, S0, S1, OA, OB, VL, T0, T1, T2)

def slow_check(a, OA, OB, T0, T1):
    if OPT.get("noslow"): return
    a.I(f"v_mul_f32 v{T0}, 0, v{OA}")
    for i in range(1, 8):
        a.I(f"v_fma_f32 v{T0}, v{OA+i}, 0, v{T0}")
    for i in range(8):
        a.I(f"v_fma_f32 v{T0}, v{OB+i}, 0, v{T0}")
    a.I(f"v_cmp_eq_f32 s[78:79], 0, v{T0}")
    a.I(f"s_mov_b32 s80, {hex(f2u(2.0**-60))}")
    a.I(f"s_mov_b32 s81, {hex(f2u(2.0**60))}")
    for O in (OA, OB):
        a.I(f"v_cmp_le_f32 s[82:83], s80, v{O+9}")
        a.I(f"v_cmp_ge_f32 vcc, s81, v{O+9}")
        a.I("s_nop 1")
        a.I("s_and_b64 s[78:79], s[78:79], s[82:83]")
        a.I("s_and_b64 s[78:79], s[78:79], vcc")
    if OPT.get("forceslow"):
        a.I("s_mov_b64 s[78:79], 0")
    a.I("s_cmp_eq_u64 s[78:79], -1")
    a.I("s_cbranch_scc1 L_ok")
    a.I("s_cmp_eq_u32 s77, 0")
    a.I("s_cbranch_scc1 L_slow")
    a.L("L_ok")

def slow_path(a, QA, QB, KB, VB, S0, S1, OA, OB, VL, T0, T1, T2):
    if OPT.get("noslow"): return
    K, V0, M, C = KB[0], VB[0], 108, 112
    a.L("L_slow")
    a.I("s_mov_b32 s77, 1")
    a.I(f"v_lshrrev_b32 v{T0}, 5, v1")
    a.I(f"v_and_b32 v{T1}, 15, v1")
    a.I(f"v_lshlrev_b32 v{T1}, 4, v{T1}")
    a.I(f"v_lshl_add_u32 v{T2}, v{T0}, 8, v{T1}")
    a.I(f"v_add_u32 v{T2}, {L_V}, v{T2}")
    a.I(f"v_mov_b32 v{M}, 0xff800000")
    a.I(f"v_mov_b32 v{M+1}, 0xff800000")
    a.I(f"v_mov_b32 v{T0}, v{VL}")
    a.I("s_mov_b32 s73, 0")
    a.L("L_slow1")
    a.I(f"ds_read_b128 {vr(K,4)}, v{T0}")
    a.I("s_waitcnt lgkmcnt(0)")
    a.I(MF(S0, K, QA))
    a.I(MF(S1, K, QB))
    a.I("s_nop 15")
    for S, m in ((S0, M), (S1, M+1)):
        for i in range(0, 16, 2):
            a.I(f"v_max3_f32 v{m}, v{S+i}, v{S+i+1}, v{m}")
    a.I(f"v_add_u32 v{T0}, 1024, v{T0}")
    a.I("s_add_u32 s73, s73, 1")
    a.I("s_cmp_lt_u32 s73, 64")
    a.I("s_cbranch_scc1 L_slow1")
    for m in (M, M+1):
        a.I(f"v_mov_b32 v{T1}, v{m}")
        a.I("s_nop 1")
        a.I(f"v_permlane32_swap_b32 v{T1}, v{m}")
        a.I("s_nop 1")
        a.I(f"v_max_f32 v{m}, v{m}, v{T1}")
    for t in range(2):
        for i in range(16):
            a.I(f"v_sub_f32 v{C+16*t+i}, 0, v{M+t}")
    for i in range(16):
        a.I(f"v_mov_b32 v{OA+i}, 0")
        a.I(f"v_mov_b32 v{OB+i}, 0")
    a.I(f"v_mov_b32 v{T0}, v{VL}")
    a.I("s_mov_b32 s73, 0")
    a.L("L_slow2")
    a.I(f"ds_read_b128 {vr(K,4)}, v{T0}")
    a.I("s_mov_b64 exec, s[74:75]")
    a.I(f"ds_read_b128 {vr(V0,4)}, v{T2}")
    a.I(f"ds_read_b128 {vr(V0+4,4)}, v{T2} offset:512")
    a.I("s_mov_b64 exec, -1")
    a.I("s_waitcnt lgkmcnt(0)")
    a.I(MF(S0, K, QA, C))
    a.I(MF(S1, K, QB, C+16))
    a.I("s_nop 15")
    for S, O in ((S0, OA), (S1, OB)):
        for i in range(16):
            a.I(f"v_exp_f32 v{S+i}, v{S+i}")
        a.I("s_nop 0")
        for j in range(8):
            a.I(f"v_cvt_pk_bf16_f32 v{S+j}, v{S+2*j}, v{S+2*j+1}")
        a.I("s_nop 1")
        a.I(MF(O, V0, S, O))
        a.I(MF(O, V0+4, S+4, O))
    a.I(f"v_add_u32 v{T0}, 1024, v{T0}")
    a.I(f"v_add_u32 v{T2}, 1024, v{T2}")
    a.I("s_add_u32 s73, s73, 1")
    a.I("s_cmp_lt_u32 s73, 64")
    a.I("s_cbranch_scc1 L_slow2")
    a.I("s_nop 15")
    a.I("s_branch L_fin")

def gen():
    a = Asm()
    prologue(a)
    producer(a, False)
    consumer(a)
    a.L("L_aux")
    producer(a, True)
    ffn2_p3(a)
    attention(a)
    a.L("L_end")
    a.I("s_endpgm")
    a.L("L_code_end")
    a.I("s_endpgm")
    return a

HEADER = open("cdna_kernels/" + NAME + ".s.ref").read().split("; Override launch")[0]

def build(path):
    a = gen()
    out = HEADER + f"; WSLAYOUT QF={QF} KF={KF} VF={VF} HF={HF} GO={GO} OF={OF}\n"
    out += f"; @launch grid=(256,1,1) block=(768,1,1) lds={LDS_TOTAL}\n"
    out += '.amdgcn_target "amdgcn-amd-amdhsa--gfx950"\n.text\n' + a.text()
    out += f""".section .rodata,"a"
.p2align 6
.amdhsa_kernel {KN}
  .amdhsa_next_free_vgpr 168
  .amdhsa_next_free_sgpr 102
  .amdhsa_accum_offset 168
  .amdhsa_group_segment_fixed_size 0
  .amdhsa_kernarg_size 96
  .amdhsa_user_sgpr_count 2
  .amdhsa_user_sgpr_kernarg_segment_ptr 1
  .amdhsa_system_sgpr_workgroup_id_x 1
.end_amdhsa_kernel
"""
    open(path, "w").write(out)
    probs = check_linear(a.lines, "k")
    if STAMPS: print("stamps:", ",".join(_stamp_names))
    return probs

if __name__ == "__main__":
    for x in list(sys.argv[1:]):
        if x.startswith("-D"):
            k, _, v = x[2:].partition("=")
            OPT[k] = int(v) if v else 1
            sys.argv.remove(x)
    if "--stamps" in sys.argv:
        STAMPS = True; sys.argv.remove("--stamps")
    path = sys.argv[1] if len(sys.argv) > 1 else "cdna_kernels/" + NAME + ".s"
    probs = build(path)
    for p in probs: print("HAZARD:", p)
    print("written", path, "problems:", len(probs))
```

```python
import sys, struct
from asmlib import *

NAME = "gated_mix__mha_block__dense_activation_squared_relu__prompt"
KN = NAME + "_kernel"
MB = 1 << 20
QF, KF, VF, HF, GO, OF, FLG = 4096, 2*MB + 8192, 4*MB + 12288, 6*MB + 16384, 12*MB, 14*MB + 4096, 16*MB + 8192
HF_SIZE = 86 * 65536
FA_OFF, FH_OFF, FO_OFF = 0, 4096, 8192
FLG_SIZE = 16384
QSCALE = 0.25 * 1.4426950408889634
STAMP_OFF = 32*MB
STAMPS = False
OPT = {}
def f2u(x): return struct.unpack("<I", struct.pack("<f", x))[0]

S_AX, S_WQKV, S_WO, S_W1, S_B1, S_W2, S_B2, S_GW, S_OUT, S_DBG, S_WS = 4, 6, 8, 12, 14, 16, 18, 20, 22, 24, 26
S_W = 3
S_RB, S_CG, S_START = 29, 30, 31
RA, RB, RC, RD = 32, 36, 40, 44
S_NONCE, S_HD, S_QB = 60, 61, 62
L_K, L_V, L_RING, L_MISC = 0, 65536, 131072, 131072 + 24576
L_XCH = L_RING
M_KV, M_H, M_FA, M_QRD, M_HST, M_FFN, M_ATT, M_T1 = [L_MISC + 4*i for i in range(8)]
M_PAIR, M_PFLAG, M_CH = L_MISC + 64, L_MISC + 96, L_MISC + 160
LDS_TOTAL = 163840

def srd(a, dst, base, size):
    a.I(f"s_mov_b32 s{dst}, s{base}")
    a.I(f"s_mov_b32 s{dst+1}, s{base+1}")
    a.I(f"s_mov_b32 s{dst+2}, {size}")
    a.I(f"s_mov_b32 s{dst+3}, 0x20000")
def srd_off(a, dst, base, off, size):
    a.I(f"s_add_u32 s{dst}, s{base}, {off}")
    a.I(f"s_addc_u32 s{dst+1}, s{base+1}, 0")
    a.I(f"s_mov_b32 s{dst+2}, {size}")
    a.I(f"s_mov_b32 s{dst+3}, 0x20000")
def MF(d, A, B, c=None):
    cc = "0" if c is None else vr(c, 16)
    return f"v_mfma_f32_32x32x16_bf16 {vr(d,16)}, {vr(A,4)}, {vr(B,4)}, {cc}"
def S4(r): return f"s[{r}:{r+3}]"
def J(L): return "\n".join(L)

_stamp_names = []
def stamp(a, name):
    if not STAMPS: return
    if name not in _stamp_names: _stamp_names.append(name)
    i = _stamp_names.index(name)
    a.I("s_waitcnt lgkmcnt(0)")
    a.I("s_memtime s[98:99]")
    a.I("s_memrealtime s[100:101]")
    a.I("s_waitcnt lgkmcnt(0)")
    a.I(f"v_writelane_b32 v6, s98, {i}")
    a.I(f"v_writelane_b32 v7, s100, {i}")
def stamp_dyn(a):
    if not (STAMPS and OPT.get("fine")): return
    a.I("s_memtime s[98:99]")
    a.I("s_memrealtime s[100:101]")
    a.I("s_waitcnt lgkmcnt(0)")
    a.I("s_mov_b32 s88, m0")
    a.I("s_mov_b32 m0, s87")
    a.I("s_nop 3")
    a.I("v_writelane_b32 v6, s98, m0")
    a.I("v_writelane_b32 v7, s100, m0")
    a.I("s_mov_b32 m0, s88")
    a.I("s_add_u32 s87, s87, 1")
def stamp_flush(a):
    if not STAMPS: return
    a.I("s_waitcnt vmcnt(0)")
    stamp(a, "end")
    a.I(f"s_add_u32 s96, s{S_WS}, {STAMP_OFF}")
    a.I(f"s_addc_u32 s97, s{S_WS+1}, 0")
    a.I("s_mul_i32 s98, s2, 12")
    a.I(f"s_add_u32 s98, s98, s{S_W}")
    a.I("s_lshl_b32 s98, s98, 9")
    a.I("v_lshlrev_b32 v2, 2, v1")
    a.I("v_add_u32 v2, s98, v2")
    a.I("s_mov_b64 exec, -1")
    a.I("global_store_dword v2, v6, s[96:97]")
    a.I("global_store_dword v2, v7, s[96:97] offset:256")
    a.I("s_waitcnt vmcnt(0)")

def tr_lane_addr(a, dst, lane, tmp, tmp2, hrows, pitch):
    a.I(f"v_bfe_u32 v{tmp}, v{lane}, 2, 2")
    a.I(f"v_lshrrev_b32 v{tmp2}, 5, v{lane}")
    a.I(f"v_mul_u32_u24 v{tmp2}, {hrows}, v{tmp2}")
    a.I(f"v_add_u32 v{tmp}, v{tmp}, v{tmp2}")
    a.I(f"v_mul_u32_u24 v{dst}, {pitch}, v{tmp}")
    a.I(f"v_bfe_u32 v{tmp}, v{lane}, 4, 1")
    a.I(f"v_lshlrev_b32 v{tmp}, 1, v{tmp}")
    a.I(f"v_bfe_u32 v{tmp2}, v{lane}, 1, 1")
    a.I(f"v_add_u32 v{tmp}, v{tmp}, v{tmp2}")
    a.I(f"v_bfe_u32 v{tmp2}, v{lane}, 3, 1")
    a.I(f"v_lshlrev_b32 v{tmp2}, 2, v{tmp2}")
    a.I(f"v_xor_b32 v{tmp}, v{tmp}, v{tmp2}")
    a.I(f"v_lshl_add_u32 v{dst}, v{tmp}, 4, v{dst}")
    a.I(f"v_and_b32 v{tmp}, 1, v{lane}")
    a.I(f"v_lshl_add_u32 v{dst}, v{tmp}, 3, v{dst}")

def dma_w_lane_off(a, dst, lane, tmp, tmp2, pitch):
    a.I(f"v_lshrrev_b32 v{tmp}, 3, v{lane}")
    a.I(f"v_mul_u32_u24 v{dst}, {pitch}, v{tmp}")
    a.I(f"v_bfe_u32 v{tmp}, v{lane}, 4, 1")
    a.I(f"v_lshlrev_b32 v{tmp}, 2, v{tmp}")
    a.I(f"v_and_b32 v{tmp2}, 7, v{lane}")
    a.I(f"v_xor_b32 v{tmp}, v{tmp}, v{tmp2}")
    a.I(f"v_lshl_add_u32 v{dst}, v{tmp}, 4, v{dst}")

_lab = [0]
def lab(p):
    _lab[0] += 1
    return f"L_{p}{_lab[0]}"

def poll(a, srd_reg, nlanes, voff, vtmp, soff, slp=1):
    l0, l1 = lab("poll"), lab("polld")
    if nlanes < 64:
        a.I(f"s_mov_b32 exec_lo, {hex((1 << nlanes) - 1)}")
        a.I("s_mov_b32 exec_hi, 0")
    a.I("s_mov_b32 s50, 0x40000")
    a.L(l0)
    a.I(f"buffer_load_dword v{vtmp}, v{voff}, {S4(srd_reg)}, {soff} offen sc1")
    a.I("s_waitcnt vmcnt(0)")
    a.I(f"v_cmp_ne_u32 vcc, s{S_NONCE}, v{vtmp}")
    a.I(f"s_cbranch_vccz {l1}")
    a.I("s_sub_u32 s50, s50, 1")
    a.I("s_cmp_eq_u32 s50, 0")
    a.I(f"s_cbranch_scc1 {l1}")
    a.I(f"s_sleep {slp}")
    a.I(f"s_branch {l0}")
    a.L(l1)
    a.I("s_mov_b64 exec, -1")

def lds_spin(a, addr, target, vaddr, vtmp, slp=1):
    l0, l1 = lab("spin"), lab("spind")
    a.I(f"v_mov_b32 v{vaddr}, {addr}")
    a.I("s_mov_b32 s50, 0x400000")
    a.L(l0)
    a.I(f"ds_read_b32 v{vtmp}, v{vaddr}")
    a.I("s_waitcnt lgkmcnt(0)")
    a.I(f"v_readfirstlane_b32 s51, v{vtmp}")
    a.I("s_sub_u32 s50, s50, 1")
    a.I(f"s_cmp_ge_u32 s51, {target}")
    a.I(f"s_cbranch_scc1 {l1}")
    a.I("s_cmp_eq_u32 s50, 0")
    a.I(f"s_cbranch_scc1 {l1}")
    a.I(f"s_sleep {slp}")
    a.I(f"s_branch {l0}")
    a.L(l1)

def lds_add1(a, addr, vaddr, vtmp):
    a.I(f"v_mov_b32 v{vaddr}, {addr}")
    a.I(f"v_mov_b32 v{vtmp}, 1")
    a.I("s_mov_b64 exec, 1")
    a.I(f"ds_add_u32 v{vaddr}, v{vtmp}")
    a.I("s_mov_b64 exec, -1")

def flag_store(a, soff, v0_, v1_):
    a.I(f"v_mov_b32 v{v0_}, s{S_NONCE}")
    a.I(f"v_mov_b32 v{v1_}, 0")
    a.I("s_mov_b64 exec, 1")
    a.I(f"buffer_store_dword v{v0_}, v{v1_}, {S4(RC)}, {soff} offen sc1")
    a.I("s_mov_b64 exec, -1")

def prologue(a):
    a.raw(f".globl {KN}\n.p2align 8\n.type {KN},@function\n{KN}:")
    if STAMPS:
        a.I("s_memrealtime s[94:95]")
        a.I("s_memtime s[92:93]")
    a.I("s_cmp_ge_u32 s2, 256")
    a.I("s_cbranch_scc1 L_end")
    a.I("s_load_dwordx4 s[4:7], s[0:1], 0")
    a.I("s_load_dwordx2 s[8:9], s[0:1], 16")
    a.I("s_load_dwordx4 s[12:15], s[0:1], 32")
    a.I("s_load_dwordx4 s[16:19], s[0:1], 48")
    a.I("s_load_dwordx4 s[20:23], s[0:1], 64")
    a.I("s_load_dwordx4 s[24:27], s[0:1], 80")
    a.I("v_lshrrev_b32 v2, 6, v0")
    a.I("v_and_b32 v1, 63, v0")
    a.I(f"v_readfirstlane_b32 s{S_W}, v2")
    if STAMPS:
        a.I("v_mov_b32 v6, 0"); a.I("v_mov_b32 v7, 0")
    a.I("s_and_b32 s52, s2, 7")
    a.I("s_lshr_b32 s53, s2, 3")
    a.I("s_lshr_b32 s54, s52, 2")
    a.I("s_lshl_b32 s54, s54, 4")
    a.I("s_lshr_b32 s55, s53, 1")
    a.I(f"s_add_u32 s{S_RB}, s54, s55")
    a.I("s_and_b32 s54, s52, 3")
    a.I("s_lshl_b32 s54, s54, 1")
    a.I("s_and_b32 s55, s53, 1")
    a.I(f"s_add_u32 s{S_CG}, s54, s55")
    a.I(f"s_mul_i32 s54, s{S_CG}, 6")
    a.I(f"s_min_u32 s{S_START}, s54, 37")
    a.I(f"s_lshl_b32 s{S_HD}, s52, 2")
    a.I("s_and_b32 s54, s53, 3")
    a.I(f"s_add_u32 s{S_HD}, s{S_HD}, s54")
    a.I(f"s_lshr_b32 s{S_QB}, s2, 5")
    a.I("s_waitcnt lgkmcnt(0)")
    if STAMPS:
        _stamp_names.append("entry")
        a.I("v_writelane_b32 v6, s92, 0")
        a.I("v_writelane_b32 v7, s94, 0")
    stamp(a, "karg")
    a.I(f"s_cmp_ge_u32 s{S_W}, 8")
    a.I("s_cbranch_scc1 L_aux")
    a.I(f"s_cmp_lt_u32 s{S_W}, 4")
    a.I("s_cbranch_scc1 L_cons")

GATEPOS = 3
def producer(a, aux):
    T = "a" if aux else "p"
    if OPT.get("pprio"): a.I(f"s_setprio {OPT['pprio']}")
    a.I(f"s_sub_u32 s67, s{S_W}, 4")
    a.I(f"s_lshl_b32 s54, s{S_RB}, 16")
    srd_off(a, RA, S_AX, "s54", 65536)
    srd(a, RB, S_WQKV, 512*3072)
    a.I("v_lshrrev_b32 v2, 3, v1")
    a.I("s_lshl_b32 s54, s67, 3")
    a.I("v_add_u32 v2, s54, v2")
    a.I("v_lshrrev_b32 v3, 4, v1")
    a.I("s_and_b32 s54, s67, 1")
    a.I("s_lshl_b32 s54, s54, 2")
    a.I("v_add_u32 v3, s54, v3")
    a.I("v_and_b32 v4, 7, v1")
    a.I("v_xor_b32 v3, v3, v4")
    a.I("v_lshlrev_b32 v3, 4, v3")
    a.I("v_lshl_add_u32 v12, v2, 10, v3")
    a.I("s_lshl_b32 s68, s67, 10")
    def woffs(dst, pitch, segshift):
        for j in range(3):
            a.I(f"v_add_u32 v2, {64*j}, v1")
            a.I("v_mul_u32_u24 v3, 171, v2")
            a.I("v_lshrrev_b32 v3, 12, v3")
            a.I("v_mul_u32_u24 v4, 24, v3")
            a.I("v_sub_u32 v2, v2, v4")
            a.I("v_lshrrev_b32 v4, 3, v2")
            a.I("v_and_b32 v2, 7, v2")
            a.I("v_bfe_u32 v5, v3, 1, 1")
            a.I("v_lshlrev_b32 v5, 2, v5")
            a.I("v_xor_b32 v2, v2, v5")
            a.I("v_lshlrev_b32 v2, 4, v2")
            a.I(f"v_mul_u32_u24 v5, {pitch}, v3")
            a.I(f"v_lshl_add_u32 v5, v4, {segshift}, v5")
            a.I(f"v_add_u32 v{dst+j}, v5, v2")
    woffs(13, 3072, 10)
    a.I("s_mul_i32 s69, s67, 3072")
    a.I("s_add_u32 s69, s69, 0x10000")
    a.I(f"s_lshl_b32 s70, s{S_CG}, 7")
    a.I(f"s_mul_i32 s71, s67, {8*3072}")
    a.I("s_add_u32 s70, s70, s71")
    def pre_setup(item):
        k, c = item
        if k == "X":
            a.I(f"s_add_u32 m0, s68, {c*8192}")
            a.I(f"s_movk_i32 s81, {c*128}")
        else:
            a.I(f"s_add_u32 s82, s70, {c*64*3072}" if c < 8 else f"s_add_u32 s82, s71, {(c-8)*64*2752}")
            a.I(f"s_add_u32 m0, s69, {(c&3)*24576}")
    def issue_x(c, done=False):
        if OPT.get("p1noprod"): return
        if not done:
            a.I(f"s_add_u32 m0, s68, {c*8192}")
            a.I(f"s_movk_i32 s81, {c*128}")
        a.I(f"buffer_load_dwordx4 v12, {S4(RA)}, s81 offen lds")
    def issue_w(c, done=False):
        if OPT.get("p1noprod"): return
        if c < 8:
            if not done: a.I(f"s_add_u32 s82, s70, {c*64*3072}")
            vo, R = 13, RB
        else:
            if not done: a.I(f"s_add_u32 s82, s71, {(c-8)*64*2752}")
            vo, R = 16, RC
        for j in range(3):
            if not (done and j == 0):
                a.I(f"s_add_u32 m0, s69, {(c&3)*24576 + j*1024}")
                a.I("s_nop 0")
            a.I(f"buffer_load_dwordx4 v{vo+j}, {S4(R)}, s82 offen lds")
    sched = OPT.get("sched", 0)
    if sched == 0:
        pre = [("X",0),("W",0),("X",1),("W",1),("X",2),("W",2)]
        post = {c: ([("X",c+3)] if c+3 < 8 else []) + ([("W",c+3)] if c+3 < 16 else []) for c in range(16)}
    elif sched == 1:
        pre = [("X",0),("W",0),("X",1),("W",1),("X",2),("W",2),("X",3),("W",3),("X",4),("X",5),("X",6),("X",7)]
        post = {c: ([("W",c+3)] if (c >= 1 and c+3 < 16) else []) for c in range(16)}
    elif sched == 2:
        pre = [("X",0),("W",0),("X",1),("W",1),("X",2),("W",2),("X",3),("W",3)]
        post = {c: ([("W",c+3)] if (c >= 1 and c+3 < 16) else []) for c in range(16)}
        post[0] = [("X",4),("X",5),("X",6),("X",7)]
    fifo = []
    def do(item, done=False):
        k, c = item
        if k == "X":
            if OPT.get("skipx"): fifo.append((item, 0)); return
            issue_x(c, done); fifo.append((item, 1))
        else:
            if OPT.get("skipw") and c < 8: fifo.append((item, 0)); return
            issue_w(c, done); fifo.append((item, 3))
    for it in pre: do(it)
    if OPT.get("pfprod") and not aux:
        a.I(f"s_mov_b32 s89, s{S_W}")
        a.I(f"s_sub_u32 s{S_W}, s{S_W}, 4")
        l2_prefetch(a, 0)
        a.I(f"s_mov_b32 s{S_W}, s89")
        fifo.append(("pf", 2))
    stamp(a, "issued3")
    nside = 0
    if aux:
        nside = aux_side_issue(a)
    srd(a, RC, S_W1, 512*2752)
    if OPT.get("w1perm", 0):
        for j in range(3):
            a.I(f"v_add_u32 v2, {64*j}, v1")
            a.I("v_mul_u32_u24 v3, 171, v2")
            a.I("v_lshrrev_b32 v3, 12, v3")
            a.I("v_mul_u32_u24 v4, 24, v3")
            a.I("v_sub_u32 v2, v2, v4")
            a.I("v_lshrrev_b32 v4, 2, v2")
            a.I("v_and_b32 v2, 3, v2")
            a.I("v_bfe_u32 v5, v3, 1, 1")
            a.I("v_xor_b32 v4, v4, v5")
            a.I("v_add_u32 v5, 1, v4")
            a.I("v_cmp_eq_u32 vcc, 4, v4")
            a.I("s_nop 1")
            a.I("v_cndmask_b32_e64 v5, v5, 0, vcc")
            a.I("v_cmp_eq_u32 vcc, 5, v4")
            a.I("s_nop 1")
            a.I("v_cndmask_b32_e64 v5, v5, 5, vcc")
            a.I(f"v_add_u32 v19, s{S_START}, v3")
            a.I("v_and_b32 v19, 1, v19")
            a.I("v_cmp_eq_u32 vcc, 1, v19")
            a.I("s_nop 1")
            a.I("v_cndmask_b32 v4, v4, v5, vcc")
            a.I("v_lshlrev_b32 v4, 6, v4")
            a.I("v_lshl_add_u32 v4, v2, 4, v4")
            a.I("v_mul_u32_u24 v5, 2752, v3")
            a.I(f"v_add_u32 v{16+j}, v5, v4")
    else:
        woffs(16, 2752, 7)
    a.I(f"s_lshl_b32 s71, s{S_START}, 6")
    a.I(f"s_mul_i32 s72, s67, {8*2752}")
    a.I("s_add_u32 s71, s71, s72")
    fap = OPT.get("fapos", 2)
    assert fap >= 2
    for c in range(16):
        need = [("W", c)] + ([("X", c)] if c < 8 else [])
        idx = max(i for i, (it, _) in enumerate(fifo) if it in need)
        allow = sum(k for _, k in fifo[idx+1:])
        if c == 0 and STAMPS and OPT.get("fine"): a.I("s_mov_b32 s87, 24")
        stamp_dyn(a)
        early = OPT.get("early", 1) and not STAMPS and len(post[c]) > 0 and not OPT.get("p1noprod")
        if early:
            pre_setup(post[c][0])
        a.I(f"s_waitcnt vmcnt({allow})")
        stamp_dyn(a)
        a.I("s_barrier")
        for n_, it in enumerate(post[c]): do(it, early and n_ == 0)
        if aux and c == 2:
            fifo.append(("side", aux_side_loads(a)))
        if aux and c == 6:
            aux_gate(a)
            fifo.append(("g", 1))
        if aux and c == 7:
            fifo.append(("nonce", aux_nonce_issue(a)))
        if aux and c == 11:
            aux_nonce_take(a)
        if aux and c == 9 + fap:
            aux_publish_fa(a)
    a.I("s_barrier")
    if aux:
        aux_after_e1(a)
    else:
        a.I("s_barrier")
        if OPT.get("pprio"): a.I("s_setprio 0")
        a.I("s_branch L_attn")

def l2_prefetch(a, part):
    a.I("s_and_b32 s52, s2, 7")
    a.I("s_lshr_b32 s53, s2, 3")
    a.I("s_lshl_b32 s54, s53, 4")
    a.I(f"s_lshl_b32 s55, s{S_W}, 2")
    a.I("s_add_u32 s56, s54, s55")
    if part == 2:
        a.I(f"s_cmp_lg_u32 s{S_W}, 0")
        a.I("s_cbranch_scc1 L_pf2")
        srd(a, RC, S_WQKV, 512*3072)
        a.I("s_lshl_b32 s54, s53, 3")
        a.I("s_add_u32 s54, s54, 256")
        a.I("s_mul_i32 s54, s54, 3072")
        a.I("s_and_b32 s55, s52, 3")
        a.I("s_lshl_b32 s55, s55, 8")
        a.I("s_add_u32 s54, s54, s55")
        a.I("v_lshrrev_b32 v21, 3, v1")
        a.I("v_mul_u32_u24 v21, 3072, v21")
        a.I("v_bfe_u32 v22, v1, 1, 2")
        a.I("v_min_u32 v22, 2, v22")
        a.I("v_lshl_add_u32 v21, v22, 10, v21")
        a.I("v_and_b32 v22, 1, v1")
        a.I("v_lshl_add_u32 v21, v22, 7, v21")
        a.I(f"buffer_load_dword v25, v21, {S4(RC)}, s54 offen")
        a.L("L_pf2")
    elif part == 0:
        G = OPT.get("pfg", 128)
        sh = {128: 7, 64: 6, 32: 5}[G]
        srd(a, RC, S_AX, 2*MB)
        a.I("s_lshr_b32 s54, s52, 2")
        a.I("s_lshl_b32 s54, s54, 10")
        a.I("s_lshl_b32 s55, s53, 5")
        a.I("s_add_u32 s54, s54, s55")
        a.I(f"s_lshl_b32 s55, s{S_W}, 3")
        a.I("s_add_u32 s54, s54, s55")
        a.I("s_lshl_b32 s54, s54, 10")
        a.I(f"v_lshlrev_b32 v20, {sh}, v1")
        for i in range(0 if OPT.get("nopfx") else 8192 // (64*G)):
            a.I(f"buffer_load_dword v24, v20, {S4(RC)}, s54 offen")
            a.I(f"s_add_u32 s54, s54, {64*G}")
        srd(a, RC, S_WQKV, 512*3072)
        a.I("s_mul_i32 s54, s56, 3072")
        a.I("s_and_b32 s55, s52, 3")
        a.I("s_lshl_b32 s55, s55, 8")
        a.I("s_add_u32 s54, s54, s55")
        per = 256 // G
        a.I("v_lshrrev_b32 v21, 4, v1")
        a.I("v_mul_u32_u24 v21, 3072, v21")
        a.I("v_and_b32 v22, 15, v1")
        if G == 64:
            a.I("v_lshrrev_b32 v23, 2, v22")
            a.I("v_min_u32 v23, 2, v23")
            a.I("v_lshl_add_u32 v21, v23, 10, v21")
            a.I("v_and_b32 v22, 3, v22")
            a.I("v_lshl_add_u32 v21, v22, 6, v21")
            a.I(f"buffer_load_dword v25, v21, {S4(RC)}, s54 offen")
        elif G == 32:
            a.I("v_lshrrev_b32 v23, 3, v22")
            a.I("v_lshl_add_u32 v21, v23, 10, v21")
            a.I("v_and_b32 v22, 7, v22")
            a.I("v_lshl_add_u32 v21, v22, 5, v21")
            a.I(f"buffer_load_dword v25, v21, {S4(RC)}, s54 offen")
            a.I(f"buffer_load_dword v25, v21, {S4(RC)}, s54 offen offset:2048")
        else:
            a.I("v_lshrrev_b32 v23, 1, v22")
            a.I("v_min_u32 v23, 2, v23")
            a.I("v_lshl_add_u32 v21, v23, 10, v21")
            a.I("v_and_b32 v22, 1, v22")
            a.I("v_lshl_add_u32 v21, v22, 7, v21")
            a.I(f"buffer_load_dword v25, v21, {S4(RC)}, s54 offen")
    else:
        a.I(f"s_cmp_ge_u32 s{S_W}, 2")
        a.I("s_cbranch_scc1 L_pf1")
        srd(a, RC, S_W1, 512*2752)
        a.I("s_and_b32 s55, s52, 3")
        a.I("s_mul_i32 s55, s55, 12")
        a.I("s_min_u32 s55, s55, 31")
        a.I("s_lshl_b32 s55, s55, 6")
        a.I("s_lshl_b32 s54, s53, 4")
        a.I(f"s_lshl_b32 s56, s{S_W}, 3")
        a.I("s_add_u32 s54, s54, s56")
        a.I("s_mul_i32 s54, s54, 2752")
        a.I("s_add_u32 s54, s54, s55")
        a.I("v_lshrrev_b32 v21, 3, v1")
        a.I("v_mul_u32_u24 v21, 2752, v21")
        a.I("v_and_b32 v22, 7, v1")
        a.I("v_lshl_add_u32 v21, v22, 7, v21")
        a.I(f"buffer_load_dword v26, v21, {S4(RC)}, s54 offen")
        a.L("L_pf1")

def consumer(a):
    a.L("L_cons")
    H, XA, WA, ACC, B1, FA, FB = 2, 8, 12, 32, 80, 104, 136
    if not OPT.get("nopf") and not OPT.get("pflate") and not OPT.get("pfprod"):
        l2_prefetch(a, OPT.get("pfmode", 0))
    a.I(f"v_lshrrev_b32 v{H}, 5, v1")
    a.I(f"s_and_b32 s63, s{S_W}, 1")
    a.I(f"s_lshr_b32 s64, s{S_W}, 1")
    srd(a, RD, S_B1, 2752)
    a.I(f"s_add_u32 s54, s{S_START}, s63")
    a.I("s_lshl_b32 s54, s54, 6")
    a.I(f"v_lshlrev_b32 v3, 3, v{H}")
    for s in range(3):
        for q in range(4):
            r = B1 + (s*4+q)*2
            a.I(f"buffer_load_dwordx2 v[{r}:{r+1}], v3, {S4(RD)}, s54 offen offset:{s*128+q*16}")
    for i in range(48):
        a.I(f"v_mov_b32 v{ACC+i}, 0")
    a.I("v_and_b32 v16, 31, v1")
    a.I("v_bfe_u32 v17, v1, 1, 3")
    a.I("s_lshl_b32 s54, s64, 5")
    a.I("v_add_u32 v16, s54, v16")
    a.I("v_lshlrev_b32 v16, 7, v16")
    a.I(f"v_xor_b32 v17, v17, v{H}")
    for ks in range(4):
        a.I(f"v_xor_b32 v18, {2*ks}, v17")
        a.I(f"v_lshl_add_u32 v{XA+ks}, v18, 4, v16")
    tr_lane_addr(a, WA, 1, 16, 17, 8, 384)
    a.I("s_lshl_b32 s54, s63, 6")
    a.I(f"v_xor_b32 v{WA}, s54, v{WA}")
    a.I(f"v_add_u32 v{WA}, 0x10000, v{WA}")
    a.I(f"v_add_u32 v{WA+1}, 49152, v{WA}")
    WF1 = [14, 15, 28, 29, 30, 31]
    if OPT.get("w1perm", 0):
        a.I("v_bfe_u32 v16, v1, 2, 2")
        a.I(f"v_lshl_add_u32 v17, v{H}, 3, v16")
        a.I("v_mul_u32_u24 v17, 384, v17")
        a.I("v_bfe_u32 v18, v1, 4, 1")
        a.I("v_lshlrev_b32 v18, 1, v18")
        a.I("v_bfe_u32 v19, v1, 1, 1")
        a.I("v_add_u32 v18, v18, v19")
        a.I("v_lshl_add_u32 v17, v18, 4, v17")
        a.I("v_and_b32 v18, 1, v1")
        a.I("v_lshl_add_u32 v17, v18, 3, v17")
        a.I("v_add_u32 v17, 0x10000, v17")
        a.I(f"v_add_u32 v18, s{S_START}, v16")
        a.I("v_and_b32 v18, 1, v18")
        a.I("v_cmp_eq_u32 vcc, 1, v18")
        a.I("v_bfe_u32 v19, v1, 3, 1")
        inv = [4, 0, 1, 2, 3, 5]
        for s_ in range(3):
            a.I(f"s_cmp_eq_u32 s63, 0")
            a.I(f"s_cselect_b32 s54, {2*s_}, {2*s_+1}")
            a.I(f"s_cselect_b32 s55, {inv[2*s_]}, {inv[2*s_+1]}")
            a.I(f"v_mov_b32 v26, s54")
            a.I(f"v_mov_b32 v27, s55")
            a.I(f"v_cndmask_b32 v26, v26, v27, vcc")
            a.I(f"v_xor_b32 v26, v26, v19")
            a.I(f"v_lshl_add_u32 v{WF1[s_]}, v26, 6, v17")
            a.I(f"v_add_u32 v{WF1[3+s_]}, 49152, v{WF1[s_]}")

    def reads(b, G, F, qkv=True):
        out = []
        if OPT.get("p1nocons"): return ["s_nop 0"]
        wv = WA + (b >> 1)
        for l in range(2):
            ks = 2*G + l
            out.append(f"ds_read_b128 {vr(F+4*l,4)}, v{XA+ks} offset:{b*8192}")
            for s in range(3):
                for rd in range(2):
                    if qkv or not OPT.get("w1perm", 0):
                        out.append(f"ds_read_b64_tr_b16 {vr(F+8+12*l+4*s+2*rd,2)}, v{wv} offset:{(b&1)*24576 + ks*6144 + rd*1536 + s*128}")
                    else:
                        out.append(f"ds_read_b64_tr_b16 {vr(F+8+12*l+4*s+2*rd,2)}, v{WF1[3*(b>>1)+s]} offset:{(b&1)*24576 + ks*6144 + rd*1536}")
        return out
    def mfmas(F, qkv):
        out = []
        if OPT.get("p1nocons") or OPT.get("p1nomfma"): return ["s_nop 0"]
        for l in range(2):
            for s in range(3):
                X, W = F+4*l, F+8+12*l+4*s
                out.append(MF(ACC+16*s, X, W, ACC+16*s) if (qkv and s == 2) else MF(ACC+16*s, W, X, ACC+16*s))
        return out
    def inter(mf, rd):
        out = []
        per = OPT.get("iper", [4, 4, 3, 3, 0, 0])
        if len(mf) != 6: return mf + rd
        k = 0
        for i, m in enumerate(mf):
            out.append(m)
            out += rd[k:k+per[i]]
            k += per[i]
        assert k >= len(rd)
        return out
    def stage_loop(tag, qkv):
        a.I("s_mov_b32 s65, 0x8000")
        a.L(f"L_loop_{tag}")
        fap = OPT.get("fapos", 2)
        for b in range(4):
            a.I("s_waitcnt lgkmcnt(0)")
            a.I(J(inter(mfmas(FA, qkv), reads(b, 1, FB, qkv))))
            if (not qkv) and b == (fap & 3):
                if fap >= 4:
                    a.I("s_cmp_lt_i32 s65, 0")
                    a.I(f"s_cbranch_scc0 L_nodrain")
                a.I("s_waitcnt vmcnt(0)")
                if fap >= 4: a.L("L_nodrain")
            a.I("s_waitcnt lgkmcnt(0)")
            if b == 3:
                if not qkv:
                    a.I("s_cmp_lt_i32 s65, 0")
                    a.I(f"s_cbranch_scc1 L_last_{tag}")
                for ks in range(4):
                    a.I(f"v_add_u32 v{XA+ks}, s65, v{XA+ks}")
            stamp_dyn(a)
            a.I("s_barrier")
            stamp_dyn(a)
            if qkv and b == 3:
                a.I("s_cmp_lt_i32 s65, 0")
                a.I("s_cbranch_scc1 L_qtail")
            a.I(J(inter(mfmas(FB, qkv), reads((b+1) % 4, 0, FA, qkv))))
        if qkv:
            a.I("s_mov_b32 s65, 0xffff8000")
            a.I(f"s_branch L_loop_{tag}")
            a.L("L_qtail")
            a.I(J(inter(mfmas(FB, qkv), reads(0, 0, FA, False))))
        else:
            a.I("s_mov_b32 s65, 0xffff8000")
            a.I(f"s_branch L_loop_{tag}")
        if not qkv:
            a.L(f"L_last_{tag}")
            a.I(J(mfmas(FB, qkv)))

    if OPT.get("pflate"):
        for i in range(OPT["pflate"]):
            a.I("s_sleep 8")
        l2_prefetch(a, 0)
    if OPT.get("pfw1early"):
        l2_prefetch(a, 1)
    a.I("s_barrier")
    stamp(a, "B0")
    if STAMPS and OPT.get("fine"): a.I("s_mov_b32 s87, 24")
    if not OPT.get("nopf") and not OPT.get("pfw1early"):
        l2_prefetch(a, 1)
    a.I(J(reads(0, 0, FA)))
    stage_loop("q", True)
    stamp(a, "qloop")
    srd(a, RA, S_WS, VF + 2*MB)
    a.I(f"s_lshl_b32 s54, s{S_RB}, 1")
    a.I("s_add_u32 s54, s54, s64")
    a.I(f"s_lshl_b32 s55, s{S_CG}, 2")
    a.I("s_lshl_b32 s56, s63, 1")
    a.I("s_add_u32 s55, s55, s56")
    a.I("s_lshl_b32 s55, s55, 6")
    a.I("s_add_u32 s54, s54, s55")
    a.I("s_lshl_b32 s54, s54, 10")
    a.I("v_lshlrev_b32 v3, 4, v1")
    a.I("v_bfe_u32 v4, v1, 4, 1")
    a.I("v_lshlrev_b32 v4, 16, v4")
    a.I(f"v_lshl_add_u32 v4, v{H}, 8, v4")
    a.I("v_and_b32 v5, 15, v1")
    a.I("v_lshl_add_u32 v4, v5, 4, v4")
    a.I(f"s_mov_b32 s56, {hex(f2u(QSCALE))}")
    a.I("s_waitcnt vmcnt(0)")
    a.I("s_nop 4")
    for idx, s in enumerate((1, 2, 0)):
        d = ACC + 16*s
        if s == 0:
            for i in range(16):
                a.I(f"v_mul_f32 v{d+i}, s56, v{d+i}")
        for j in range(8):
            a.I(f"v_cvt_pk_bf16_f32 v{d+j}, v{d+2*j}, v{d+2*j+1}")
        if s < 2:
            for hh in range(2):
                a.I(f"s_add_u32 s55, s54, {(KF if s else QF) + hh*65536}")
                a.I(f"buffer_store_dwordx4 {vr(d+4*hh,4)}, v3, {S4(RA)}, s55 offen sc1")
        else:
            a.I(f"s_add_u32 s55, s54, {VF}")
            for u in range(2):
                a.I(f"buffer_store_dwordx4 {vr(d+4*u,4)}, v4, {S4(RA)}, s55 offen offset:{u*512} sc1")
    a.I("s_nop 1")
    for s in range(3):
        for q in range(4):
            r = B1 + (s*4+q)*2
            d = ACC + s*16 + q*4
            a.I(f"v_lshlrev_b32 v{d}, 16, v{r}")
            a.I(f"v_and_b32 v{d+1}, 0xffff0000, v{r}")
            a.I(f"v_lshlrev_b32 v{d+2}, 16, v{r+1}")
            a.I(f"v_and_b32 v{d+3}, 0xffff0000, v{r+1}")
    stage_loop("f", False)
    a.I("s_barrier")
    stamp(a, "floop")
    a.I("s_barrier")
    srd_off(a, RA, S_WS, HF, HF_SIZE)
    a.I(f"s_lshl_b32 s54, s{S_RB}, 1")
    a.I("s_add_u32 s54, s54, s64")
    a.I(f"s_add_u32 s55, s{S_START}, s63")
    a.I("s_lshl_b32 s55, s55, 7")
    a.I("s_add_u32 s54, s54, s55")
    a.I("s_lshl_b32 s54, s54, 10")
    a.I("v_lshlrev_b32 v3, 4, v1")
    a.I("s_nop 4")
    for s in range(3):
        d = ACC + 16*s
        for i in range(16):
            a.I(f"v_max_f32 v{d+i}, 0, v{d+i}")
        for i in range(16):
            a.I(f"v_mul_f32 v{d+i}, v{d+i}, v{d+i}")
        for j in range(8):
            a.I(f"v_cvt_pk_bf16_f32 v{d+j}, v{d+2*j}, v{d+2*j+1}")
        for uu in range(2):
            a.I(f"s_add_u32 s55, s54, {(4*s+uu)*65536}")
            a.I(f"buffer_store_dwordx4 {vr(d+4*uu,4)}, v3, {S4(RA)}, s55 offen sc1")
    a.I("s_nop 1")
    a.I("s_branch L_attn")

def aux_side_issue(a):
    a.I("s_sub_u32 s66, s67, 4")
    a.I(f"s_lshl_b32 s54, s2, 2")
    a.I("s_or_b32 s54, s54, s66")
    a.I("s_cmp_lg_u32 s54, 0")
    a.I("s_cbranch_scc1 L_aux1")
    srd(a, RD, S_DBG, 256)
    a.I("s_memrealtime s[54:55]")
    a.I("s_waitcnt lgkmcnt(0)")
    a.I("s_or_b32 s85, s54, 1")
    a.I("v_mov_b32 v8, s85")
    a.I("v_mov_b32 v10, 0")
    a.I("s_mov_b64 exec, 1")
    a.I(f"buffer_store_dword v8, v10, {S4(RD)}, 0 offen sc1")
    a.I("s_mov_b64 exec, -1")
    a.L("L_aux1")
    a.I(f"s_lshl_b32 s54, s{S_RB}, 6")
    a.I(f"s_lshl_b32 s55, s{S_CG}, 3")
    a.I("s_add_u32 s54, s54, s55")
    a.I("s_lshl_b32 s55, s66, 1")
    a.I("s_add_u32 s86, s54, s55")
    return 0

def aux_side_loads(a):
    a.I("s_lshl_b32 s54, s86, 10")
    srd_off(a, RD, S_AX, "s54", 2048)
    a.I("v_and_b32 v2, 31, v1")
    a.I("v_lshlrev_b32 v2, 5, v2")
    a.I("v_lshrrev_b32 v3, 5, v1")
    a.I("v_lshl_add_u32 v4, v3, 10, v2")
    for i in range(2):
        a.I(f"buffer_load_dwordx4 {vr(32+4*i,4)}, v4, {S4(RD)}, 0 offen offset:{16*i}")
    srd(a, RD, S_GW, 1024)
    for i in range(2):
        a.I(f"buffer_load_dwordx4 {vr(40+4*i,4)}, v2, {S4(RD)}, 0 offen offset:{16*i}")
    n = 4
    if OPT.get("codepf", 1):
        a.I("s_getpc_b64 s[52:53]")
        a.L("L_pc")
        a.I(f"s_sub_u32 s52, s52, L_pc-{KN}")
        a.I("s_subb_u32 s53, s53, 0")
        a.I("s_mul_i32 s54, s66, 6144")
        a.I("v_lshlrev_b32 v5, 7, v1")
        a.I("v_add_u32 v5, s54, v5")
        a.I(f"v_min_u32 v5, L_code_end-{KN}-4, v5")
        a.I("s_mov_b32 exec_hi, 0xffff")
        a.I("global_load_dword v116, v5, s[52:53]")
        a.I("s_mov_b64 exec, -1")
        n += 1
    return n

def aux_nonce_issue(a):
    srd(a, RD, S_DBG, 256)
    a.I("v_mov_b32 v10, 0")
    a.I(f"buffer_load_dword v8, v10, {S4(RD)}, 0 offen sc1")
    return 1

def aux_nonce_take(a):
    a.I(f"v_readfirstlane_b32 s{S_NONCE}, v8")
    a.I("s_cmp_lg_u32 s66, 0")
    a.I("s_cbranch_scc1 L_nonce_ok")
    a.I("s_mov_b32 s50, 0x40000")
    a.L("L_nonce")
    a.I(f"s_cmp_lg_u32 s{S_NONCE}, 0")
    a.I("s_cbranch_scc1 L_nonce_ok")
    a.I("s_sub_u32 s50, s50, 1")
    a.I("s_cmp_eq_u32 s50, 0")
    a.I("s_cbranch_scc1 L_nonce_ok")
    srd(a, RD, S_DBG, 256)
    a.I(f"buffer_load_dword v8, v10, {S4(RD)}, 0 offen sc1")
    a.I("s_waitcnt vmcnt(0)")
    a.I(f"v_readfirstlane_b32 s{S_NONCE}, v8")
    a.I("s_branch L_nonce")
    a.L("L_nonce_ok")

def aux_gate(a):
    if OPT.get("p1noprod"): a.I("s_waitcnt vmcnt(0)")
    a.I("v_mov_b32 v24, 0")
    for i in range(8):
        a.I(f"v_dot2c_f32_bf16 v24, v{32+i}, v{40+i}")
    a.I("s_nop 3")
    for sh in (1, 2, 4, 8):
        a.I(f"v_add_f32_dpp v24, v24, v24 row_shr:{sh} row_mask:0xf bank_mask:0xf")
        a.I("s_nop 1")
    a.I("v_add_f32_dpp v24, v24, v24 row_bcast:15 row_mask:0xa bank_mask:0xf")
    a.I("s_nop 1")
    a.I("v_cvt_pk_bf16_f32 v24, v24, v24")
    a.I("v_and_b32 v24, 0xffff0000, v24")
    a.I(f"v_mul_f32 v24, {hex(f2u(-1.4426950408889634))}, v24")
    a.I("v_exp_f32 v24, v24")
    a.I("s_nop 0")
    a.I("v_add_f32 v24, 1.0, v24")
    a.I("v_rcp_f32 v24, v24")
    a.I("s_nop 0")
    a.I("v_cvt_pk_bf16_f32 v24, v24, v24")
    a.I("v_and_b32 v24, 0xffff0000, v24")
    srd_off(a, RD, S_WS, GO, 8192)
    a.I("s_lshl_b32 s54, s86, 2")
    a.I("v_lshrrev_b32 v3, 5, v1")
    a.I("v_lshlrev_b32 v3, 2, v3")
    a.I("s_mov_b32 s52, 0x80000000")
    a.I("s_mov_b32 s53, 0x80000000")
    a.I("s_mov_b64 exec, s[52:53]")
    a.I(f"buffer_store_dword v24, v3, {S4(RD)}, s54 offen sc1")
    a.I("s_mov_b64 exec, -1")

def aux_publish_fa(a):
    a.I("s_cmp_lg_u32 s66, 0")
    a.I("s_cbranch_scc1 L_aux2")
    srd_off(a, RD, S_WS, FLG, FLG_SIZE)
    a.I(f"s_lshl_b32 s54, s{S_CG}, 7")
    a.I(f"s_lshl_b32 s55, s{S_RB}, 2")
    a.I("s_add_u32 s54, s54, s55")
    a.I(f"s_add_u32 s54, s54, {FA_OFF}")
    a.I(f"v_mov_b32 v8, s{S_NONCE}")
    a.I(f"v_mov_b32 v10, 0")
    a.I("s_mov_b64 exec, 1")
    a.I(f"buffer_store_dword v8, v10, {S4(RD)}, s54 offen sc1")
    a.I("s_mov_b64 exec, -1")
    stamp(a, "FApub")
    a.L("L_aux2")

def aux_after_e1(a):
    a.I("s_mov_b32 s67, s66")
    a.I("s_cmp_lg_u32 s67, 1")
    a.I("s_cbranch_scc1 L_aux3")
    a.I(f"v_lshlrev_b32 v10, 2, v1")
    a.I(f"v_add_u32 v10, {L_MISC}, v10")
    a.I("v_mov_b32 v8, 0")
    a.I("ds_write_b32 v10, v8")
    a.I("s_waitcnt lgkmcnt(0)")
    a.L("L_aux3")
    a.I("s_barrier")
    a.I("s_setprio 3")
    stamp(a, "E2")
    srd_off(a, RC, S_WS, FLG, FLG_SIZE)
    a.I("s_cmp_lg_u32 s67, 0")
    a.I("s_cbranch_scc1 L_aux4")
    a.I(f"v_mov_b32 v8, {L_MISC + 128}")
    a.I(f"v_mov_b32 v9, s{S_NONCE}")
    a.I("ds_write_b32 v8, v9")
    a.I(f"s_lshr_b32 s54, s{S_HD}, 2")
    a.I("s_lshl_b32 s54, s54, 7")
    a.I(f"s_add_u32 s54, s54, {FA_OFF}")
    a.I("v_lshlrev_b32 v8, 2, v1")
    poll(a, RC, 32, 8, 9, "s54")
    lds_add1(a, M_FA, 8, 9)
    a.I("s_branch L_aux5")
    a.L("L_aux4")
    lds_spin(a, M_FA, 1, 8, 9)
    a.L("L_aux5")
    stamp(a, "FAok")
    VL = 4
    a.I(f"v_lshlrev_b32 v{VL}, 4, v1")
    a.I(f"s_lshl_b32 s54, s{S_HD}, 16")
    a.I(f"s_add_u32 s55, s54, {KF}")
    srd_off(a, RA, S_WS, "s55", 65536)
    a.I(f"s_add_u32 s55, s54, {VF}")
    srd_off(a, RB, S_WS, "s55", 65536)
    a.I(f"s_add_u32 s55, s54, {QF}")
    srd_off(a, RD, S_WS, "s55", 65536)
    a.I(f"s_lshl_b32 s54, s{S_QB}, 3")
    a.I("s_lshl_b32 s55, s67, 1")
    a.I("s_add_u32 s54, s54, s55")
    a.I("s_lshl_b32 s54, s54, 10")
    a.I("s_lshl_b32 s55, s67, 11")
    a.I(f"s_add_u32 s55, s55, {L_RING}")
    for t in range(2):
        a.I(f"s_add_u32 m0, s55, {t*1024}")
        a.I(f"s_add_u32 s56, s54, {t*1024}")
        a.I(f"buffer_load_dwordx4 v{VL}, {S4(RD)}, s56 offen sc1 lds")
    a.I("s_lshl_b32 s54, s67, 10")
    def kvchunks(cs):
        for c in cs:
            a.I(f"s_add_u32 s55, s54, {c*4096}")
            a.I("s_mov_b32 m0, s55")
            a.I(f"s_add_u32 s56, s55, {L_V}")
            a.I(f"buffer_load_dwordx4 v{VL}, {S4(RA)}, s55 offen sc1 lds")
            a.I("s_mov_b32 m0, s56")
            a.I("s_nop 0")
            a.I(f"buffer_load_dwordx4 v{VL}, {S4(RB)}, s55 offen sc1 lds")
    kvchunks(range(0, 2))
    kvchunks(range(2, 4))
    a.I("s_waitcnt vmcnt(4)")
    lds_add1(a, M_KV, 8, 9)
    stamp(a, "KV1")
    kvchunks(range(4, 16))
    a.I("s_lshr_b32 s53, s2, 3")
    srd(a, RA, S_W2, 1376*1024)
    srd(a, RB, S_WO, 512*1024)
    a.I("s_mul_i32 s54, s53, 44032")
    a.I("s_lshl_b32 s55, s67, 10")
    a.I("s_add_u32 s54, s54, s55")
    a.I("s_waitcnt vmcnt(0)")
    lds_add1(a, M_KV, 8, 9)
    stamp(a, "KV2")
    a.I("v_lshlrev_b32 v10, 7, v1")
    a.I("s_lshl_b32 s55, s67, 13")
    a.I("s_mul_i32 s54, s53, 44032")
    a.I("s_add_u32 s54, s54, s55")
    a.I(f"buffer_load_dword v40, v10, {S4(RA)}, s54 offen")
    a.I("s_add_u32 s54, s54, 32768")
    a.I(f"buffer_load_dword v41, v10, {S4(RA)}, s54 offen")
    a.I("s_lshl_b32 s54, s53, 14")
    a.I("s_lshl_b32 s55, s67, 12")
    a.I("s_add_u32 s54, s54, s55")
    a.I("s_mov_b32 exec_hi, 0")
    a.I(f"buffer_load_dword v42, v10, {S4(RB)}, s54 offen")
    a.I("s_mov_b64 exec, -1")

def ffn2_p3(a):
    WF, HR, ACC2, BPR = 24, 40, 104, 8
    VH, VW, VA0, VA1 = 2, 3, 4, 5
    a.I("s_cmp_lg_u32 s67, 0")
    a.I("s_cbranch_scc1 L_f1")
    lds_spin(a, M_HST, 4, 8, 9, OPT.get('fslp', 1))
    lds_spin(a, M_KV, 8, 8, 9)
    a.I(f"s_lshl_b32 s54, s{S_RB}, 7")
    a.I(f"s_lshl_b32 s55, s{S_CG}, 2")
    a.I("s_add_u32 s54, s54, s55")
    a.I(f"s_add_u32 s54, s54, {FH_OFF}")
    flag_store(a, "s54", 8, 10)
    a.I(f"s_lshl_b32 s54, s{S_HD}, 7")
    a.I(f"s_add_u32 s54, s54, {FH_OFF}")
    a.I("v_lshlrev_b32 v8, 2, v1")
    poll(a, RC, 8, 8, 9, "s54", OPT.get("fhslp", 4))
    lds_add1(a, M_H, 8, 9)
    a.I("s_branch L_f2")
    a.L("L_f1")
    lds_spin(a, M_H, 1, 8, 9, OPT.get('fslp', 1))
    a.L("L_f2")
    lds_spin(a, M_QRD, 8, 8, 9, OPT.get('fslp', 1))
    stamp(a, "hready")
    srd(a, RA, S_W2, 1376*1024)
    srd_off(a, RB, S_WS, HF, HF_SIZE)
    a.I(f"v_lshlrev_b32 v{VH}, 4, v1")
    dma_w_lane_off(a, VW, 1, 8, 9, 1024)
    a.I(f"s_lshl_b32 s54, s{S_QB}, 7")
    a.I(f"v_add_u32 v{VW}, s54, v{VW}")
    tr_lane_addr(a, VA0, 1, 8, 9, 4, 128)
    a.I("s_mul_i32 s68, s67, 6144")
    a.I(f"s_add_u32 s68, s68, {L_RING}")
    a.I(f"v_add_u32 v{VA0}, s68, v{VA0}")
    a.I(f"v_xor_b32 v{VA1}, 64, v{VA0}")
    a.I("s_mul_i32 s54, s67, 24")
    a.I("s_lshl_b32 s70, s54, 14")
    a.I("s_lshl_b32 s71, s54, 16")
    a.I(f"s_lshl_b32 s55, s{S_HD}, 11")
    a.I("s_add_u32 s71, s71, s55")
    for i in range(64):
        a.I(f"v_mov_b32 v{ACC2+i}, 0")
    a.I("s_waitcnt vmcnt(0)")
    def fissue(slot):
        return [f"s_add_u32 m0, s68, {slot*2048}",
                f"s_add_u32 s69, s70, 8192",
                f"buffer_load_dwordx4 v{VW}, {S4(RA)}, s70 offen lds",
                f"s_add_u32 m0, s68, {slot*2048+1024}",
                f"s_add_u32 s70, s70, 16384",
                f"buffer_load_dwordx4 v{VW}, {S4(RA)}, s69 offen lds",
                f"buffer_load_dwordx4 {vr(HR+slot*8,4)}, v{VH}, {S4(RB)}, s71 offen sc1",
                f"buffer_load_dwordx4 {vr(HR+slot*8+4,4)}, v{VH}, {S4(RB)}, s71 offen offset:1024 sc1",
                f"s_add_u32 s71, s71, 65536"]
    def trr(F, off):
        out = []
        for ct, va in ((0, VA0), (1, VA1)):
            for rd in range(2):
                out.append(f"ds_read_b64_tr_b16 {vr(F+4*ct+2*rd,2)}, v{va} offset:{off + rd*1024}")
        return out
    for slot in range(3):
        a.I(J(fissue(slot)))
    a.I("s_cmp_eq_u32 s67, 3")
    a.I("s_cselect_b32 s72, 5, 8")
    a.I(f"s_setprio {OPT.get('ffnprio', 0)}")
    if OPT.get("noffn"): a.I("s_branch L_fskip")
    a.L("L_floop")
    for slot in range(3):
        a.I("s_waitcnt vmcnt(8)")
        a.I(J(trr(WF, slot*2048)))
        a.I("s_waitcnt lgkmcnt(0)")
        fi = fissue(slot)
        mf = lambda ct, rt: MF(ACC2 + (ct*2+rt)*16, WF+4*ct, HR+slot*8+4*rt, ACC2 + (ct*2+rt)*16)
        if OPT.get("fspread", 1):
            a.I(mf(0, 0)); a.I(J(fi[0:3]))
            a.I(mf(1, 0)); a.I(J(fi[3:6]))
            a.I(mf(0, 1)); a.I(fi[6])
            a.I(mf(1, 1)); a.I(J(fi[7:]))
        else:
            for ct in range(2):
                for rt in range(2):
                    a.I(mf(ct, rt))
            a.I(J(fi))
    a.I("s_sub_u32 s72, s72, 1")
    a.I("s_cmp_lg_u32 s72, 0")
    a.I("s_cbranch_scc1 L_floop")
    a.L("L_fskip")
    a.I("s_setprio 3")
    a.I("s_waitcnt vmcnt(0)")
    lds_add1(a, M_FFN, 8, 9)
    stamp(a, "ffn2")
    srd_off(a, RA, S_WS, GO, 8192)
    srd(a, RB, S_B2, 1024)
    a.I("s_and_b32 s73, s67, 1")
    a.I("s_lshr_b32 s74, s67, 1")
    a.I(f"s_lshl_b32 s75, s{S_HD}, 6")
    a.I("s_lshl_b32 s54, s73, 5")
    a.I("s_add_u32 s75, s75, s54")
    a.I("s_lshl_b32 s54, s75, 2")
    a.I("v_and_b32 v8, 31, v1")
    a.I("v_lshlrev_b32 v8, 2, v8")
    a.I(f"buffer_load_dword v40, v8, {S4(RA)}, s54 offen sc1")
    a.I(f"s_lshl_b32 s54, s{S_QB}, 6")
    a.I("s_lshl_b32 s55, s74, 5")
    a.I("s_add_u32 s54, s54, s55")
    a.I("s_lshl_b32 s54, s54, 1")
    a.I("v_lshrrev_b32 v8, 5, v1")
    a.I("v_lshlrev_b32 v8, 3, v8")
    for q in range(4):
        a.I(f"buffer_load_dwordx2 v[{42+2*q}:{43+2*q}], v8, {S4(RB)}, s54 offen offset:{q*16}")
    lds_spin(a, M_ATT, 4, 8, 9, OPT.get('attslp', 1))
    stamp(a, "attdone")
    srd(a, RA, S_WO, 512*1024)
    a.I("s_lshl_b32 s68, s67, 14")
    a.I("s_lshl_b32 s70, s67, 17")
    for ks in range(8):
        for n in range(2):
            a.I(f"s_add_u32 m0, s68, {ks*2048+n*1024}")
            a.I(f"s_add_u32 s69, s70, {ks*16384+n*8192}")
            a.I(f"buffer_load_dwordx4 v{VW}, {S4(RA)}, s69 offen lds")
    a.I(f"s_add_u32 s54, s68, {L_V}")
    a.I(f"v_add_u32 v8, s54, v{VH}")
    for i in range(16):
        a.I(f"ds_write_b128 v8, {vr(ACC2+4*i,4)} offset:{i*1024}")
    a.I("s_waitcnt vmcnt(0) lgkmcnt(0)")
    lds_add1(a, M_T1, 9, 10)
    lds_spin(a, M_T1, 4, 9, 10)
    a.I("s_lshl_b32 s54, s67, 12")
    a.I(f"s_add_u32 s54, s54, {L_V}")
    a.I(f"v_add_u32 v8, s54, v{VH}")
    for p in range(4):
        for q in range(4):
            a.I(f"ds_read_b128 {vr(ACC2+p*16+q*4,4)}, v8 offset:{p*16384+q*1024}")
    a.I("s_waitcnt lgkmcnt(0)")
    for i in range(16):
        a.I(f"v_add_f32 v{ACC2+i}, v{ACC2+i}, v{ACC2+16+i}")
        a.I(f"v_add_f32 v{ACC2+32+i}, v{ACC2+32+i}, v{ACC2+48+i}")
    for i in range(16):
        a.I(f"v_add_f32 v{ACC2+i}, v{ACC2+i}, v{ACC2+32+i}")
    a.I("s_waitcnt vmcnt(0)")
    a.I("v_sub_f32 v41, 1.0, v40")
    a.I("v_cvt_pk_bf16_f32 v41, v41, v41")
    a.I("v_and_b32 v41, 0xffff0000, v41")
    for q in range(4):
        a.I(f"v_lshlrev_b32 v52, 16, v{42+2*q}")
        a.I(f"v_and_b32 v53, 0xffff0000, v{42+2*q}")
        a.I(f"v_lshlrev_b32 v54, 16, v{43+2*q}")
        a.I(f"v_and_b32 v55, 0xffff0000, v{43+2*q}")
        for j in range(4):
            a.I(f"v_add_f32 v{BPR+4*q+j}, v{ACC2+4*q+j}, v{52+j}")
        for j in range(4):
            a.I(f"v_mul_f32 v{BPR+4*q+j}, v{BPR+4*q+j}, v41")
    a.I("v_mov_b32 v39, v40")
    tr_lane_addr(a, VA0, 1, 32, 33, 4, 128)
    a.I("s_lshl_b32 s54, s74, 6")
    a.I(f"v_xor_b32 v{VA0}, s54, v{VA0}")
    a.I("s_lshl_b32 s54, s73, 15")
    a.I(f"s_add_u32 s54, s54, {L_V}")
    a.I(f"v_add_u32 v{VA1}, s54, v{VH}")
    FR = 40
    def wreads(ks):
        F = FR + (ks % 8) * 8
        return [f"ds_read_b64_tr_b16 {vr(F,2)}, v{VA0} offset:{ks*2048}",
                f"ds_read_b64_tr_b16 {vr(F+2,2)}, v{VA0} offset:{ks*2048+1024}"]
    def oread(ks):
        F = FR + (ks % 8) * 8
        return [f"ds_read_b128 {vr(F+4,4)}, v{VA1} offset:{ks*1024}"]
    a.I("s_cmp_lg_u32 s67, 0")
    a.I("s_cbranch_scc1 L_f4")
    a.I(f"s_lshl_b32 s54, s{S_HD}, 8")
    a.I(f"s_add_u32 s54, s54, {FO_OFF}")
    a.I("v_lshlrev_b32 v121, 2, v1")
    if not OPT.get("opf", 0):
        poll(a, RC, 64, 121, 122, "s54", OPT.get("foslp", 1))
    else:
        srd_off(a, RB, S_WS, OF, 2*MB)
        a.I(f"s_lshl_b32 s55, s{S_HD}, 16")
        a.I("v_lshlrev_b32 v123, 10, v1")
        a.I("s_mov_b64 s[56:57], 0")
        a.I("s_mov_b32 s50, 0x40000")
        a.L("L_opf")
        a.I(f"buffer_load_dword v122, v121, {S4(RC)}, s54 offen sc1")
        a.I("s_waitcnt vmcnt(0)")
        a.I(f"v_cmp_eq_u32 vcc, s{S_NONCE}, v122")
        a.I("s_nop 1")
        a.I("s_andn2_b64 s[58:59], vcc, s[56:57]")
        a.I("s_or_b64 s[56:57], s[56:57], vcc")
        a.I("s_cmp_eq_u64 s[56:57], -1")
        a.I("s_cbranch_scc1 L_opf3")
        a.I("s_cmp_eq_u64 s[58:59], 0")
        a.I("s_cbranch_scc1 L_opf2")
        a.I("s_mov_b64 exec, s[58:59]")
        for j in range(8):
            a.I(f"buffer_load_dword v120, v123, {S4(RB)}, s55 offen offset:{j*128} sc1")
        a.I("s_mov_b64 exec, -1")
        a.L("L_opf2")
        a.I("s_sub_u32 s50, s50, 1")
        a.I("s_cmp_eq_u32 s50, 0")
        a.I("s_cbranch_scc1 L_opf3")
        a.I(f"s_sleep {OPT.get('foslp', 1)}")
        a.I("s_branch L_opf")
        a.L("L_opf3")
    a.L("L_f4")
    for ks in range(8): a.I(J(wreads(ks)))
    srd_off(a, RB, S_WS, OF, 2*MB)
    a.I(f"s_lshl_b32 s54, s{S_HD}, 16")
    a.I("s_lshl_b32 s55, s67, 11")
    a.I("s_add_u32 s54, s54, s55")
    a.I(f"s_add_u32 s55, s55, {L_V}")
    a.I("s_waitcnt lgkmcnt(0)")
    a.I("s_barrier")
    stamp(a, "T2")
    for ch in range(4):
        for hh in range(2):
            for rt in range(2):
                off = rt*32768 + ch*8192 + hh*1024
                a.I(f"s_add_u32 m0, s55, {off}")
                a.I(f"s_add_u32 s56, s54, {off}")
                a.I(f"buffer_load_dwordx4 v{VH}, {S4(RB)}, s56 offen sc1 lds")
    for ch in range(4):
        a.I(f"s_waitcnt vmcnt({4*(3-ch)}) lgkmcnt(0)")
        a.I("s_barrier")
        for ks in range(8*ch, 8*ch+8): a.I(J(oread(ks)))
        for i in range(8):
            ks = 8*ch + i
            a.I(f"s_waitcnt lgkmcnt({7 + i if ch < 3 else 7 - i})")
            F = FR + i*8
            a.I(MF(ACC2, F, F+4, ACC2 if ks else None))
            if ch < 3: a.I(J(wreads(ks+8)))
    a.I("s_nop 15")
    stamp(a, "p3mm")
    for i in range(16):
        a.I(f"v_fma_f32 v{ACC2+i}, v{ACC2+i}, v39, v{BPR+i}")
    for j in range(8):
        a.I(f"v_cvt_pk_bf16_f32 v{ACC2+j}, v{ACC2+2*j}, v{ACC2+2*j+1}")
    a.I("s_nop 1")
    a.I(f"v_permlane32_swap_b32 v{ACC2}, v{ACC2+2}")
    a.I(f"v_permlane32_swap_b32 v{ACC2+1}, v{ACC2+3}")
    a.I(f"v_permlane32_swap_b32 v{ACC2+4}, v{ACC2+6}")
    a.I(f"v_permlane32_swap_b32 v{ACC2+5}, v{ACC2+7}")
    srd(a, RA, S_OUT, 2*MB)
    a.I("s_lshl_b32 s54, s75, 10")
    a.I(f"s_lshl_b32 s55, s{S_QB}, 7")
    a.I("s_add_u32 s54, s54, s55")
    a.I("s_lshl_b32 s55, s74, 6")
    a.I("s_add_u32 s54, s54, s55")
    a.I("v_and_b32 v32, 31, v1")
    a.I("v_lshlrev_b32 v32, 10, v32")
    a.I("v_lshrrev_b32 v33, 5, v1")
    a.I("v_lshl_add_u32 v32, v33, 4, v32")
    ofl = {0: "", 1: " sc1", 2: " nt", 3: " sc0 sc1"}[OPT.get("outfl", 0)]
    a.I(f"buffer_store_dwordx4 {vr(ACC2,4)}, v32, {S4(RA)}, s54 offen{ofl}")
    a.I(f"buffer_store_dwordx4 {vr(ACC2+4,4)}, v32, {S4(RA)}, s54 offen offset:32{ofl}")
    stamp_flush(a)
    a.I("s_endpgm")

def attention(a):
    a.L("L_attn")
    stamp(a, "attn0")
    QA, QB = 8, 12
    KB = [16, 20]; VB = [24, 32]
    S0, S1, OA, OB = 40, 56, 72, 88
    VK, VV, VL = 2, 3, 4
    T0, T1, T2 = 104, 105, 106
    VKN, VVN, VVB, VCH, VONE, VNX = 107, 108, 109, 110, 111, 5
    a.I(f"s_and_b32 s63, s{S_W}, 3")
    a.I(f"s_lshr_b32 s64, s{S_W}, 2")
    a.I(f"v_lshlrev_b32 v{VL}, 4, v1")
    a.I(f"v_lshrrev_b32 v{T0}, 5, v1")
    a.I(f"v_and_b32 v{T1}, 15, v1")
    a.I(f"v_lshlrev_b32 v{T1}, 4, v{T1}")
    a.I(f"v_lshl_add_u32 v{VVB}, v{T0}, 8, v{T1}")
    a.I(f"v_add_u32 v{VVB}, {L_V}, v{VVB}")
    a.I("s_lshl_b32 s54, s64, 12")
    a.I(f"v_add_u32 v{VK}, s54, v{VL}")
    a.I(f"v_add_u32 v{VV}, s54, v{VVB}")
    a.I("s_lshl_b32 s54, s63, 2")
    a.I(f"s_add_u32 s54, s54, {M_CH}")
    a.I(f"v_mov_b32 v{VCH}, s54")
    a.I(f"v_mov_b32 v{VONE}, 1")
    a.I("s_mov_b32 s74, 0x0000ffff")
    a.I("s_mov_b32 s75, 0x0000ffff")
    a.I("s_mov_b32 s77, 0")
    a.I(f"s_lshl_b32 s66, s{S_QB}, 3")
    a.I("s_lshl_b32 s54, s63, 1")
    a.I("s_add_u32 s66, s66, s54")
    a.I("s_lshl_b32 s54, s63, 11")
    a.I(f"s_add_u32 s54, s54, {L_RING}")
    a.I(f"v_add_u32 v{T2}, s54, v{VL}")
    a.I(f"v_and_b32 v{T0}, 31, v1")
    a.I(f"v_cmp_eq_u32 vcc, 16, v{T0}")
    a.I(f"v_mov_b32 v{T1}, 0x3f803f80")
    a.I("s_nop 1")
    a.I(f"v_cndmask_b32 v{T0}, 0, v{T1}, vcc")
    for i in range(16):
        a.I(f"v_mov_b32 v{VB[0]+i}, v{T0}")
    lds_spin(a, M_KV, 4, T0, T1)
    stamp(a, "kvok")
    a.I(f"ds_read_b128 {vr(QA,4)}, v{T2}")
    a.I(f"ds_read_b128 {vr(QB,4)}, v{T2} offset:1024")
    for i in range(16):
        a.I(f"v_mov_b32 v{OA+i}, 0")
        a.I(f"v_mov_b32 v{OB+i}, 0")
    a.I("s_waitcnt lgkmcnt(0)")
    lds_add1(a, M_QRD, T0, T1)
    a.I("s_lshl_b32 s71, s64, 12")
    if STAMPS and OPT.get("fineattn"): a.I("s_mov_b32 s87, 24")
    a.I("s_mov_b32 s73, 0")

    def e_(S, i): return f"v_exp_f32 v{S+i}, v{S+i}"
    def c_(S, j): return f"v_cvt_pk_bf16_f32 v{S+j}, v{S+2*j}, v{S+2*j+1}"
    def tile(Sin, Sout, Qn, Kn, Ocur, Vcur_u0, Oprev, Vprev_u1, after_pv2, wait_s, after_s, wait_pv1, do_pv2=True, do_s=True):
        e = lambda i: e_(Sin, i)
        c = lambda j: c_(Sin, j)
        L = [e(0), e(1)]
        if do_pv2: L.append(MF(Oprev, Vprev_u1, Sout+4, Oprev))
        L += after_pv2
        L += [e(2), e(3), c(0), e(4), e(5), c(1)]
        L += wait_s
        if do_s: L.append(MF(Sout, Kn, Qn))
        L += after_s
        L += [e(6), e(7), c(2), e(8), e(9), c(3), e(10), e(11)]
        L += wait_pv1
        L.append(MF(Ocur, Vcur_u0, Sin, Ocur))
        L += [c(4), e(12), e(13), c(5), e(14), e(15), c(6), c(7)]
        return L
    fifo = []
    def dsr(tag, txt): fifo.append(tag); return txt
    def need(tag):
        idx = max(i for i, t in enumerate(fifo) if t == tag)
        return [f"s_waitcnt lgkmcnt({len(fifo) - 1 - idx})"]
    def vreads(t):
        kap = t & 1
        return ["s_mov_b64 exec, s[74:75]",
                dsr(("V", t), f"ds_read_b128 {vr(VB[kap],4)}, v{VV} offset:{t*1024}"),
                dsr(("V", t), f"ds_read_b128 {vr(VB[kap]+4,4)}, v{VV} offset:{t*1024+512}"),
                "s_mov_b64 exec, -1"]
    def kread(t): return [dsr(("K", t), f"ds_read_b128 {vr(KB[t & 1],4)}, v{VK} offset:{t*1024}")]
    a.raw(".p2align 6")
    a.L("L_aloop")
    if OPT.get("fineattn"):
        OPT["fine"] = 1; stamp_dyn(a); OPT["fine"] = 0
    a.I(f"v_add_u32 v{VK}, s71, v{VL}")
    a.I(f"v_add_u32 v{VV}, s71, v{VVB}")
    L = kread(0) + vreads(0) + kread(1)
    L += need(("K", 0))
    L.append(MF(S0, KB[0], QA))
    a.I(J(L))
    a.I("s_nop 7")
    a.I("s_nop 3")
    body = []
    for t in range(4):
        kap = t & 1
        A = []
        Sin, Sout = S0, S1
        A += [e_(Sin, 0), e_(Sin, 1)]
        if t > 0: A.append(MF(OB, VB[kap^1]+4, Sout+4, OB))
        if t + 1 < 4: A += vreads(t+1)
        A += [e_(Sin, 2), e_(Sin, 3), c_(Sin, 0), e_(Sin, 4), e_(Sin, 5), c_(Sin, 1)]
        A.append(MF(Sout, KB[kap], QB))
        if t + 2 < 4: A += kread(t+2)
        A += [e_(Sin, 6), e_(Sin, 7), c_(Sin, 2), e_(Sin, 8), e_(Sin, 9), c_(Sin, 3), e_(Sin, 10), e_(Sin, 11)]
        A += need(("V", t))
        A.append(MF(OA, VB[kap], Sin, OA))
        A += [c_(Sin, 4), e_(Sin, 12), e_(Sin, 13), c_(Sin, 5), e_(Sin, 14), e_(Sin, 15), c_(Sin, 6), c_(Sin, 7)]
        Sin, Sout = S1, S0
        B = [e_(Sin, 0), e_(Sin, 1), MF(OA, VB[kap]+4, Sout+4, OA)]
        if t == 3:
            B += ["s_mov_b64 exec, 1", dsr(("G",), f"ds_add_rtn_u32 v{VNX}, v{VCH}, v{VONE}"), "s_mov_b64 exec, -1"]
        B += [e_(Sin, 2), e_(Sin, 3), c_(Sin, 0), e_(Sin, 4), e_(Sin, 5), c_(Sin, 1)]
        if t + 1 < 4:
            B += need(("K", t+1))
            B.append(MF(Sout, KB[kap^1], QA))
        B += [e_(Sin, 6), e_(Sin, 7), c_(Sin, 2), e_(Sin, 8), e_(Sin, 9), c_(Sin, 3), e_(Sin, 10), e_(Sin, 11)]
        B.append(MF(OB, VB[kap], Sin, OB))
        B += [c_(Sin, 4), e_(Sin, 12), e_(Sin, 13), c_(Sin, 5), e_(Sin, 14), e_(Sin, 15), c_(Sin, 6), c_(Sin, 7)]
        body += A + B
    a.I(J(body))
    a.I("s_waitcnt lgkmcnt(0)")
    a.I(f"v_readfirstlane_b32 s70, v{VNX}")
    a.I(MF(OB, VB[1]+4, S1+4, OB))
    a.I("s_add_u32 s70, s70, 2")
    a.I("s_lshl_b32 s71, s70, 12")
    a.I("s_cmp_lg_u32 s73, 0")
    a.I("s_cbranch_scc1 L_aloop2")
    a.I("s_mov_b32 s73, 1")
    a.I("s_waitcnt vmcnt(0)")
    a.I(f"s_cmp_ge_u32 s{S_W}, 4")
    a.I("s_cbranch_scc1 L_aloop1")
    lds_add1(a, M_HST, T0, T1)
    a.L("L_aloop1")
    lds_spin(a, M_KV, 8, T0, T1)
    a.L("L_aloop2")
    a.I("s_cmp_lt_u32 s70, 16")
    a.I("s_cbranch_scc1 L_aloop")
    a.I("s_waitcnt lgkmcnt(0)")
    a.I("s_nop 7")
    stamp(a, "aloop")
    a.I("s_lshl_b32 s54, s63, 2")
    a.I(f"s_add_u32 s55, s54, {M_PAIR}")
    a.I(f"s_add_u32 s76, s54, {M_PFLAG}")
    a.I(f"v_mov_b32 v{T0}, s55")
    a.I(f"v_mov_b32 v{T1}, 1")
    a.I("s_mov_b64 exec, 1")
    a.I(f"ds_add_rtn_u32 v{T2}, v{T0}, v{T1}")
    a.I("s_mov_b64 exec, -1")
    a.I("s_mul_i32 s54, s63, 4608")
    a.I(f"s_add_u32 s54, s54, {L_XCH}")
    a.I(f"v_add_u32 v{S0}, s54, v{VL}")
    a.I(f"v_lshlrev_b32 v{S0+1}, 2, v1")
    a.I(f"v_add_u32 v{S0+1}, s54, v{S0+1}")
    a.I("s_waitcnt lgkmcnt(0)")
    a.I(f"v_readfirstlane_b32 s55, v{T2}")
    a.I("s_nop 4")
    a.I("s_cmp_lg_u32 s55, 0")
    a.I("s_cbranch_scc1 L_second")
    lds_spin(a, M_FFN, 4, T0, T1)
    a.I(f"ds_write_b128 v{S0}, {vr(OA,4)}")
    a.I(f"ds_write_b128 v{S0}, {vr(OA+4,4)} offset:1024")
    a.I(f"ds_write_b128 v{S0}, {vr(OB,4)} offset:2048")
    a.I(f"ds_write_b128 v{S0}, {vr(OB+4,4)} offset:3072")
    a.I(f"ds_write_b32 v{S0+1}, v{OA+8} offset:4096")
    a.I(f"ds_write_b32 v{S0+1}, v{OB+8} offset:4352")
    a.I("s_waitcnt lgkmcnt(0)")
    lds_add1(a, "s76", T0, T1)
    a.I("s_waitcnt lgkmcnt(0)")
    stamp_flush(a)
    a.I("s_endpgm")
    a.L("L_second")
    lds_spin(a, "s76", 1, T0, T1)
    a.I(f"ds_read_b128 {vr(S1,4)}, v{S0}")
    a.I(f"ds_read_b128 {vr(S1+4,4)}, v{S0} offset:1024")
    a.I(f"ds_read_b128 {vr(S1+8,4)}, v{S0} offset:2048")
    a.I(f"ds_read_b128 {vr(S1+12,4)}, v{S0} offset:3072")
    a.I(f"ds_read_b32 v{T0}, v{S0+1} offset:4096")
    a.I(f"ds_read_b32 v{T1}, v{S0+1} offset:4352")
    a.I(f"v_mov_b32 v{T2}, {L_MISC + 128}")
    a.I(f"ds_read_b32 v{T2}, v{T2}")
    a.I("s_waitcnt lgkmcnt(0)")
    a.I(f"v_readfirstlane_b32 s{S_NONCE}, v{T2}")
    for i in range(8):
        a.I(f"v_add_f32 v{OA+i}, v{OA+i}, v{S1+i}")
        a.I(f"v_add_f32 v{OB+i}, v{OB+i}, v{S1+8+i}")
    a.I(f"v_add_f32 v{OA+8}, v{OA+8}, v{T0}")
    a.I(f"v_add_f32 v{OB+8}, v{OB+8}, v{T1}")
    a.L("L_fin")
    for O in (OA, OB):
        a.I(f"v_mov_b32 v{O+9}, v{O+8}")
    a.I("s_nop 1")
    for O in (OA, OB):
        a.I(f"v_permlane32_swap_b32 v{O+9}, v{O+8}")
    a.I("s_nop 1")
    slow_check(a, OA, OB, T0, T1)
    lds_add1(a, M_ATT, T0, T1)
    for O in (OA, OB):
        a.I(f"v_rcp_f32 v{O+9}, v{O+9}")
    a.I("s_nop 0")
    for O in (OA, OB):
        for i in range(8):
            a.I(f"v_mul_f32 v{O+i}, v{O+i}, v{O+9}")
    for O in (OA, OB):
        for j in range(4):
            a.I(f"v_cvt_pk_bf16_f32 v{O+j}, v{O+2*j}, v{O+2*j+1}")
    srd_off(a, RA, S_WS, OF, 2*MB)
    srd_off(a, RC, S_WS, FLG, FLG_SIZE)
    a.I("s_lshl_b32 s54, s66, 5")
    a.I(f"s_add_u32 s54, s54, s{S_HD}")
    a.I("s_lshl_b32 s55, s54, 10")
    a.I(f"buffer_store_dwordx4 {vr(OA,4)}, v{VL}, {S4(RA)}, s55 offen sc1")
    a.I("s_add_u32 s55, s55, 32768")
    a.I(f"buffer_store_dwordx4 {vr(OB,4)}, v{VL}, {S4(RA)}, s55 offen sc1")
    a.I("s_lshl_b32 s54, s54, 2")
    a.I(f"s_add_u32 s54, s54, {FO_OFF}")
    a.I(f"v_mov_b32 v{T0}, s{S_NONCE}")
    a.I(f"v_lshlrev_b32 v{T1}, 7, v1")
    a.I("s_waitcnt vmcnt(0)")
    a.I("s_mov_b64 exec, 3")
    a.I(f"buffer_store_dword v{T0}, v{T1}, {S4(RC)}, s54 offen sc1")
    a.I("s_mov_b64 exec, -1")
    stamp_flush(a)
    a.I("s_endpgm")
    slow_path(a, QA, QB, KB, VB, S0, S1, OA, OB, VL, T0, T1, T2)

def slow_check(a, OA, OB, T0, T1):
    if OPT.get("noslow"): return
    a.I(f"v_mul_f32 v{T0}, 0, v{OA}")
    for i in range(1, 8):
        a.I(f"v_fma_f32 v{T0}, v{OA+i}, 0, v{T0}")
    for i in range(8):
        a.I(f"v_fma_f32 v{T0}, v{OB+i}, 0, v{T0}")
    a.I(f"v_cmp_eq_f32 s[78:79], 0, v{T0}")
    a.I(f"s_mov_b32 s80, {hex(f2u(2.0**-60))}")
    a.I(f"s_mov_b32 s81, {hex(f2u(2.0**60))}")
    for O in (OA, OB):
        a.I(f"v_cmp_le_f32 s[82:83], s80, v{O+9}")
        a.I(f"v_cmp_ge_f32 vcc, s81, v{O+9}")
        a.I("s_nop 1")
        a.I("s_and_b64 s[78:79], s[78:79], s[82:83]")
        a.I("s_and_b64 s[78:79], s[78:79], vcc")
    if OPT.get("forceslow"):
        a.I("s_mov_b64 s[78:79], 0")
    a.I("s_cmp_eq_u64 s[78:79], -1")
    a.I("s_cbranch_scc1 L_ok")
    a.I("s_cmp_eq_u32 s77, 0")
    a.I("s_cbranch_scc1 L_slow")
    a.L("L_ok")

def slow_path(a, QA, QB, KB, VB, S0, S1, OA, OB, VL, T0, T1, T2):
    if OPT.get("noslow"): return
    K, V0, M, C = KB[0], VB[0], 108, 112
    a.L("L_slow")
    a.I("s_mov_b32 s77, 1")
    a.I(f"v_lshrrev_b32 v{T0}, 5, v1")
    a.I(f"v_and_b32 v{T1}, 15, v1")
    a.I(f"v_lshlrev_b32 v{T1}, 4, v{T1}")
    a.I(f"v_lshl_add_u32 v{T2}, v{T0}, 8, v{T1}")
    a.I(f"v_add_u32 v{T2}, {L_V}, v{T2}")
    a.I(f"v_mov_b32 v{M}, 0xff800000")
    a.I(f"v_mov_b32 v{M+1}, 0xff800000")
    a.I(f"v_mov_b32 v{T0}, v{VL}")
    a.I("s_mov_b32 s73, 0")
    a.L("L_slow1")
    a.I(f"ds_read_b128 {vr(K,4)}, v{T0}")
    a.I("s_waitcnt lgkmcnt(0)")
    a.I(MF(S0, K, QA))
    a.I(MF(S1, K, QB))
    a.I("s_nop 15")
    for S, m in ((S0, M), (S1, M+1)):
        for i in range(0, 16, 2):
            a.I(f"v_max3_f32 v{m}, v{S+i}, v{S+i+1}, v{m}")
    a.I(f"v_add_u32 v{T0}, 1024, v{T0}")
    a.I("s_add_u32 s73, s73, 1")
    a.I("s_cmp_lt_u32 s73, 64")
    a.I("s_cbranch_scc1 L_slow1")
    for m in (M, M+1):
        a.I(f"v_mov_b32 v{T1}, v{m}")
        a.I("s_nop 1")
        a.I(f"v_permlane32_swap_b32 v{T1}, v{m}")
        a.I("s_nop 1")
        a.I(f"v_max_f32 v{m}, v{m}, v{T1}")
    for t in range(2):
        for i in range(16):
            a.I(f"v_sub_f32 v{C+16*t+i}, 0, v{M+t}")
    for i in range(16):
        a.I(f"v_mov_b32 v{OA+i}, 0")
        a.I(f"v_mov_b32 v{OB+i}, 0")
    a.I(f"v_mov_b32 v{T0}, v{VL}")
    a.I("s_mov_b32 s73, 0")
    a.L("L_slow2")
    a.I(f"ds_read_b128 {vr(K,4)}, v{T0}")
    a.I("s_mov_b64 exec, s[74:75]")
    a.I(f"ds_read_b128 {vr(V0,4)}, v{T2}")
    a.I(f"ds_read_b128 {vr(V0+4,4)}, v{T2} offset:512")
    a.I("s_mov_b64 exec, -1")
    a.I("s_waitcnt lgkmcnt(0)")
    a.I(MF(S0, K, QA, C))
    a.I(MF(S1, K, QB, C+16))
    a.I("s_nop 15")
    for S, O in ((S0, OA), (S1, OB)):
        for i in range(16):
            a.I(f"v_exp_f32 v{S+i}, v{S+i}")
        a.I("s_nop 0")
        for j in range(8):
            a.I(f"v_cvt_pk_bf16_f32 v{S+j}, v{S+2*j}, v{S+2*j+1}")
        a.I("s_nop 1")
        a.I(MF(O, V0, S, O))
        a.I(MF(O, V0+4, S+4, O))
    a.I(f"v_add_u32 v{T0}, 1024, v{T0}")
    a.I(f"v_add_u32 v{T2}, 1024, v{T2}")
    a.I("s_add_u32 s73, s73, 1")
    a.I("s_cmp_lt_u32 s73, 64")
    a.I("s_cbranch_scc1 L_slow2")
    a.I("s_nop 15")
    a.I("s_branch L_fin")

def gen():
    a = Asm()
    prologue(a)
    producer(a, False)
    consumer(a)
    a.L("L_aux")
    producer(a, True)
    ffn2_p3(a)
    attention(a)
    a.L("L_end")
    a.I("s_endpgm")
    a.L("L_code_end")
    a.I("s_endpgm")
    return a

HEADER = open("cdna_kernels/" + NAME + ".s.ref").read().split("; Override launch")[0]

def build(path):
    a = gen()
    out = HEADER + f"; WSLAYOUT QF={QF} KF={KF} VF={VF} HF={HF} GO={GO} OF={OF}\n"
    out += f"; @launch grid=(256,1,1) block=(768,1,1) lds={LDS_TOTAL}\n"
    out += '.amdgcn_target "amdgcn-amd-amdhsa--gfx950"\n.text\n' + a.text()
    out += f""".section .rodata,"a"
.p2align 6
.amdhsa_kernel {KN}
  .amdhsa_next_free_vgpr 168
  .amdhsa_next_free_sgpr 102
  .amdhsa_accum_offset 168
  .amdhsa_group_segment_fixed_size 0
  .amdhsa_kernarg_size 96
  .amdhsa_user_sgpr_count 2
  .amdhsa_user_sgpr_kernarg_segment_ptr 1
  .amdhsa_system_sgpr_workgroup_id_x 1
.end_amdhsa_kernel
"""
    open(path, "w").write(out)
    probs = check_linear(a.lines, "k")
    if STAMPS: print("stamps:", ",".join(_stamp_names))
    return probs

if __name__ == "__main__":
    for x in list(sys.argv[1:]):
        if x.startswith("-D"):
            k, _, v = x[2:].partition("=")
            OPT[k] = int(v) if v else 1
            sys.argv.remove(x)
    if "--stamps" in sys.argv:
        STAMPS = True; sys.argv.remove("--stamps")
    path = sys.argv[1] if len(sys.argv) > 1 else "cdna_kernels/" + NAME + ".s"
    probs = build(path)
    for p in probs: print("HAZARD:", p)
    print("written", path, "problems:", len(probs))
```

```python
import sys, struct
from asmlib import *

NAME = "gated_mix__mha_block__dense_activation_squared_relu__prompt"
KN = NAME + "_kernel"
MB = 1 << 20
QF, KF, VF, HF, GO, OF, FLG = 4096, 2*MB + 8192, 4*MB + 12288, 6*MB + 16384, 12*MB, 14*MB + 4096, 16*MB + 8192
HF_SIZE = 86 * 65536
FA_OFF, FH_OFF, FO_OFF = 0, 4096, 8192
FLG_SIZE = 16384
QSCALE = 0.25 * 1.4426950408889634
STAMP_OFF = 32*MB
STAMPS = False
OPT = {}
def f2u(x): return struct.unpack("<I", struct.pack("<f", x))[0]

S_AX, S_WQKV, S_WO, S_W1, S_B1, S_W2, S_B2, S_GW, S_OUT, S_DBG, S_WS = 4, 6, 8, 12, 14, 16, 18, 20, 22, 24, 26
S_W = 3
S_RB, S_CG, S_START = 29, 30, 31
RA, RB, RC, RD = 32, 36, 40, 44
S_NONCE, S_HD, S_QB = 60, 61, 62
L_MISC, L_K, L_V, L_RING = 0, 1024, 1024 + 65536, 1024 + 131072
L_XCH = L_RING
M_KV, M_H, M_FA, M_QRD, M_HST, M_FFN, M_ATT, M_T1 = [L_MISC + 4*i for i in range(8)]
M_PAIR, M_PFLAG, M_CH = L_MISC + 64, L_MISC + 96, L_MISC + 160
LDS_TOTAL = 163840

def srd(a, dst, base, size):
    a.I(f"s_mov_b32 s{dst}, s{base}")
    a.I(f"s_mov_b32 s{dst+1}, s{base+1}")
    a.I(f"s_mov_b32 s{dst+2}, {size}")
    a.I(f"s_mov_b32 s{dst+3}, 0x20000")
def srd_off(a, dst, base, off, size):
    a.I(f"s_add_u32 s{dst}, s{base}, {off}")
    a.I(f"s_addc_u32 s{dst+1}, s{base+1}, 0")
    a.I(f"s_mov_b32 s{dst+2}, {size}")
    a.I(f"s_mov_b32 s{dst+3}, 0x20000")
def MF(d, A, B, c=None):
    cc = "0" if c is None else vr(c, 16)
    return f"v_mfma_f32_32x32x16_bf16 {vr(d,16)}, {vr(A,4)}, {vr(B,4)}, {cc}"
def S4(r): return f"s[{r}:{r+3}]"
def J(L): return "\n".join(L)

_stamp_names = []
def stamp(a, name):
    if not STAMPS: return
    if name not in _stamp_names: _stamp_names.append(name)
    i = _stamp_names.index(name)
    a.I("s_waitcnt lgkmcnt(0)")
    a.I("s_memtime s[98:99]")
    a.I("s_memrealtime s[100:101]")
    a.I("s_waitcnt lgkmcnt(0)")
    a.I(f"v_writelane_b32 v6, s98, {i}")
    a.I(f"v_writelane_b32 v7, s100, {i}")
def stamp_dyn(a):
    if not (STAMPS and OPT.get("fine")): return
    a.I("s_memtime s[98:99]")
    a.I("s_memrealtime s[100:101]")
    a.I("s_waitcnt lgkmcnt(0)")
    a.I("s_mov_b32 s88, m0")
    a.I("s_mov_b32 m0, s87")
    a.I("s_nop 3")
    a.I("v_writelane_b32 v6, s98, m0")
    a.I("v_writelane_b32 v7, s100, m0")
    a.I("s_mov_b32 m0, s88")
    a.I("s_add_u32 s87, s87, 1")
def stamp_flush(a):
    if not STAMPS: return
    a.I("s_waitcnt vmcnt(0)")
    stamp(a, "end")
    a.I(f"s_add_u32 s96, s{S_WS}, {STAMP_OFF}")
    a.I(f"s_addc_u32 s97, s{S_WS+1}, 0")
    a.I("s_mul_i32 s98, s2, 12")
    a.I(f"s_add_u32 s98, s98, s{S_W}")
    a.I("s_lshl_b32 s98, s98, 9")
    a.I("v_lshlrev_b32 v2, 2, v1")
    a.I("v_add_u32 v2, s98, v2")
    a.I("s_mov_b64 exec, -1")
    a.I("global_store_dword v2, v6, s[96:97]")
    a.I("global_store_dword v2, v7, s[96:97] offset:256")
    a.I("s_waitcnt vmcnt(0)")

def tr_lane_addr(a, dst, lane, tmp, tmp2, hrows, pitch):
    a.I(f"v_bfe_u32 v{tmp}, v{lane}, 2, 2")
    a.I(f"v_lshrrev_b32 v{tmp2}, 5, v{lane}")
    a.I(f"v_mul_u32_u24 v{tmp2}, {hrows}, v{tmp2}")
    a.I(f"v_add_u32 v{tmp}, v{tmp}, v{tmp2}")
    a.I(f"v_mul_u32_u24 v{dst}, {pitch}, v{tmp}")
    a.I(f"v_bfe_u32 v{tmp}, v{lane}, 4, 1")
    a.I(f"v_lshlrev_b32 v{tmp}, 1, v{tmp}")
    a.I(f"v_bfe_u32 v{tmp2}, v{lane}, 1, 1")
    a.I(f"v_add_u32 v{tmp}, v{tmp}, v{tmp2}")
    a.I(f"v_bfe_u32 v{tmp2}, v{lane}, 3, 1")
    a.I(f"v_lshlrev_b32 v{tmp2}, 2, v{tmp2}")
    a.I(f"v_xor_b32 v{tmp}, v{tmp}, v{tmp2}")
    a.I(f"v_lshl_add_u32 v{dst}, v{tmp}, 4, v{dst}")
    a.I(f"v_and_b32 v{tmp}, 1, v{lane}")
    a.I(f"v_lshl_add_u32 v{dst}, v{tmp}, 3, v{dst}")

def dma_w_lane_off(a, dst, lane, tmp, tmp2, pitch):
    a.I(f"v_lshrrev_b32 v{tmp}, 3, v{lane}")
    a.I(f"v_mul_u32_u24 v{dst}, {pitch}, v{tmp}")
    a.I(f"v_bfe_u32 v{tmp}, v{lane}, 4, 1")
    a.I(f"v_lshlrev_b32 v{tmp}, 2, v{tmp}")
    a.I(f"v_and_b32 v{tmp2}, 7, v{lane}")
    a.I(f"v_xor_b32 v{tmp}, v{tmp}, v{tmp2}")
    a.I(f"v_lshl_add_u32 v{dst}, v{tmp}, 4, v{dst}")

_lab = [0]
def lab(p):
    _lab[0] += 1
    return f"L_{p}{_lab[0]}"

def poll(a, srd_reg, nlanes, voff, vtmp, soff, slp=1):
    l0, l1 = lab("poll"), lab("polld")
    if nlanes < 64:
        a.I(f"s_mov_b32 exec_lo, {hex((1 << nlanes) - 1)}")
        a.I("s_mov_b32 exec_hi, 0")
    a.I("s_mov_b32 s50, 0x40000")
    a.L(l0)
    a.I(f"buffer_load_dword v{vtmp}, v{voff}, {S4(srd_reg)}, {soff} offen sc1")
    a.I("s_waitcnt vmcnt(0)")
    a.I(f"v_cmp_ne_u32 vcc, s{S_NONCE}, v{vtmp}")
    a.I(f"s_cbranch_vccz {l1}")
    a.I("s_sub_u32 s50, s50, 1")
    a.I("s_cmp_eq_u32 s50, 0")
    a.I(f"s_cbranch_scc1 {l1}")
    a.I(f"s_sleep {slp}")
    a.I(f"s_branch {l0}")
    a.L(l1)
    a.I("s_mov_b64 exec, -1")

def lds_spin(a, addr, target, vaddr, vtmp, slp=1):
    l0, l1 = lab("spin"), lab("spind")
    a.I(f"v_mov_b32 v{vaddr}, {addr}")
    a.I("s_mov_b32 s50, 0x400000")
    a.L(l0)
    a.I(f"ds_read_b32 v{vtmp}, v{vaddr}")
    a.I("s_waitcnt lgkmcnt(0)")
    a.I(f"v_readfirstlane_b32 s51, v{vtmp}")
    a.I("s_sub_u32 s50, s50, 1")
    a.I(f"s_cmp_ge_u32 s51, {target}")
    a.I(f"s_cbranch_scc1 {l1}")
    a.I("s_cmp_eq_u32 s50, 0")
    a.I(f"s_cbranch_scc1 {l1}")
    a.I(f"s_sleep {slp}")
    a.I(f"s_branch {l0}")
    a.L(l1)

def lds_add1(a, addr, vaddr, vtmp):
    a.I(f"v_mov_b32 v{vaddr}, {addr}")
    a.I(f"v_mov_b32 v{vtmp}, 1")
    a.I("s_mov_b64 exec, 1")
    a.I(f"ds_add_u32 v{vaddr}, v{vtmp}")
    a.I("s_mov_b64 exec, -1")

def flag_store(a, soff, v0_, v1_):
    a.I(f"v_mov_b32 v{v0_}, s{S_NONCE}")
    a.I(f"v_mov_b32 v{v1_}, 0")
    a.I("s_mov_b64 exec, 1")
    a.I(f"buffer_store_dword v{v0_}, v{v1_}, {S4(RC)}, {soff} offen sc1")
    a.I("s_mov_b64 exec, -1")

def prologue(a):
    a.raw(f".globl {KN}\n.p2align 8\n.type {KN},@function\n{KN}:")
    if STAMPS:
        a.I("s_memrealtime s[94:95]")
        a.I("s_memtime s[92:93]")
    a.I("s_cmp_ge_u32 s2, 256")
    a.I("s_cbranch_scc1 L_end")
    a.I("s_load_dwordx4 s[4:7], s[0:1], 0")
    a.I("s_load_dwordx2 s[8:9], s[0:1], 16")
    a.I("s_load_dwordx4 s[12:15], s[0:1], 32")
    a.I("s_load_dwordx4 s[16:19], s[0:1], 48")
    a.I("s_load_dwordx4 s[20:23], s[0:1], 64")
    a.I("s_load_dwordx4 s[24:27], s[0:1], 80")
    a.I("v_lshrrev_b32 v2, 6, v0")
    a.I("v_and_b32 v1, 63, v0")
    a.I(f"v_readfirstlane_b32 s{S_W}, v2")
    if STAMPS:
        a.I("v_mov_b32 v6, 0"); a.I("v_mov_b32 v7, 0")
    a.I("s_and_b32 s52, s2, 7")
    a.I("s_lshr_b32 s53, s2, 3")
    a.I("s_lshr_b32 s54, s52, 2")
    a.I("s_lshl_b32 s54, s54, 4")
    a.I("s_lshr_b32 s55, s53, 1")
    a.I(f"s_add_u32 s{S_RB}, s54, s55")
    a.I("s_and_b32 s54, s52, 3")
    a.I("s_lshl_b32 s54, s54, 1")
    a.I("s_and_b32 s55, s53, 1")
    a.I(f"s_add_u32 s{S_CG}, s54, s55")
    a.I(f"s_mul_i32 s54, s{S_CG}, 6")
    a.I(f"s_min_u32 s{S_START}, s54, 37")
    a.I(f"s_lshl_b32 s{S_HD}, s52, 2")
    a.I("s_and_b32 s54, s53, 3")
    a.I(f"s_add_u32 s{S_HD}, s{S_HD}, s54")
    a.I(f"s_lshr_b32 s{S_QB}, s2, 5")
    a.I("s_waitcnt lgkmcnt(0)")
    if STAMPS:
        _stamp_names.append("entry")
        a.I("v_writelane_b32 v6, s92, 0")
        a.I("v_writelane_b32 v7, s94, 0")
    stamp(a, "karg")
    a.I(f"s_cmp_ge_u32 s{S_W}, 8")
    a.I("s_cbranch_scc1 L_aux")
    a.I(f"s_cmp_lt_u32 s{S_W}, 4")
    a.I("s_cbranch_scc1 L_cons")

GATEPOS = 3
def producer(a, aux):
    T = "a" if aux else "p"
    if OPT.get("pprio"): a.I(f"s_setprio {OPT['pprio']}")
    a.I(f"s_sub_u32 s67, s{S_W}, 4")
    a.I(f"s_lshl_b32 s54, s{S_RB}, 16")
    srd_off(a, RA, S_AX, "s54", 65536)
    srd(a, RB, S_WQKV, 512*3072)
    a.I("v_lshrrev_b32 v2, 3, v1")
    a.I("s_lshl_b32 s54, s67, 3")
    a.I("v_add_u32 v2, s54, v2")
    a.I("v_lshrrev_b32 v3, 4, v1")
    a.I("s_and_b32 s54, s67, 1")
    a.I("s_lshl_b32 s54, s54, 2")
    a.I("v_add_u32 v3, s54, v3")
    a.I("v_and_b32 v4, 7, v1")
    a.I("v_xor_b32 v3, v3, v4")
    a.I("v_lshlrev_b32 v3, 4, v3")
    a.I("v_lshl_add_u32 v12, v2, 10, v3")
    a.I("s_lshl_b32 s68, s67, 10")
    def woffs(dst, pitch, segshift):
        for j in range(3):
            a.I(f"v_add_u32 v2, {64*j}, v1")
            a.I("v_mul_u32_u24 v3, 171, v2")
            a.I("v_lshrrev_b32 v3, 12, v3")
            a.I("v_mul_u32_u24 v4, 24, v3")
            a.I("v_sub_u32 v2, v2, v4")
            a.I("v_lshrrev_b32 v4, 3, v2")
            a.I("v_and_b32 v2, 7, v2")
            a.I("v_bfe_u32 v5, v3, 1, 1")
            a.I("v_lshlrev_b32 v5, 2, v5")
            a.I("v_xor_b32 v2, v2, v5")
            a.I("v_lshlrev_b32 v2, 4, v2")
            a.I(f"v_mul_u32_u24 v5, {pitch}, v3")
            a.I(f"v_lshl_add_u32 v5, v4, {segshift}, v5")
            a.I(f"v_add_u32 v{dst+j}, v5, v2")
    woffs(13, 3072, 10)
    a.I("s_mul_i32 s69, s67, 3072")
    a.I("s_add_u32 s69, s69, 0x10000")
    a.I(f"s_lshl_b32 s70, s{S_CG}, 7")
    a.I(f"s_mul_i32 s71, s67, {8*3072}")
    a.I("s_add_u32 s70, s70, s71")
    def pre_setup(item):
        k, c = item
        if k == "X":
            a.I(f"s_add_u32 m0, s68, {c*8192}")
            a.I(f"s_movk_i32 s81, {c*128}")
        else:
            a.I(f"s_add_u32 s82, s70, {c*64*3072}" if c < 8 else f"s_add_u32 s82, s71, {(c-8)*64*2752}")
            a.I(f"s_add_u32 m0, s69, {(c&3)*24576}")
    def issue_x(c, done=False):
        if OPT.get("p1noprod"): return
        if not done:
            a.I(f"s_add_u32 m0, s68, {c*8192}")
            a.I(f"s_movk_i32 s81, {c*128}")
        a.I(f"buffer_load_dwordx4 v12, {S4(RA)}, s81 offen lds")
    def issue_w(c, done=False):
        if OPT.get("p1noprod"): return
        if c < 8:
            if not done: a.I(f"s_add_u32 s82, s70, {c*64*3072}")
            vo, R = 13, RB
        else:
            if not done: a.I(f"s_add_u32 s82, s71, {(c-8)*64*2752}")
            vo, R = 16, RC
        for j in range(3):
            if not (done and j == 0):
                a.I(f"s_add_u32 m0, s69, {(c&3)*24576 + j*1024}")
                a.I("s_nop 0")
            a.I(f"buffer_load_dwordx4 v{vo+j}, {S4(R)}, s82 offen lds")
    sched = OPT.get("sched", 0)
    if sched == 0:
        pre = [("X",0),("W",0),("X",1),("W",1),("X",2),("W",2)]
        post = {c: ([("X",c+3)] if c+3 < 8 else []) + ([("W",c+3)] if c+3 < 16 else []) for c in range(16)}
    elif sched == 1:
        pre = [("X",0),("W",0),("X",1),("W",1),("X",2),("W",2),("X",3),("W",3),("X",4),("X",5),("X",6),("X",7)]
        post = {c: ([("W",c+3)] if (c >= 1 and c+3 < 16) else []) for c in range(16)}
    elif sched == 2:
        pre = [("X",0),("W",0),("X",1),("W",1),("X",2),("W",2),("X",3),("W",3)]
        post = {c: ([("W",c+3)] if (c >= 1 and c+3 < 16) else []) for c in range(16)}
        post[0] = [("X",4),("X",5),("X",6),("X",7)]
    fifo = []
    def do(item, done=False):
        k, c = item
        if k == "X":
            if OPT.get("skipx"): fifo.append((item, 0)); return
            issue_x(c, done); fifo.append((item, 1))
        else:
            if OPT.get("skipw") and c < 8: fifo.append((item, 0)); return
            issue_w(c, done); fifo.append((item, 3))
    for it in pre: do(it)
    if OPT.get("pfprod") and not aux:
        a.I(f"s_mov_b32 s89, s{S_W}")
        a.I(f"s_sub_u32 s{S_W}, s{S_W}, 4")
        l2_prefetch(a, 0)
        a.I(f"s_mov_b32 s{S_W}, s89")
        fifo.append(("pf", 2))
    stamp(a, "issued3")
    nside = 0
    if aux:
        nside = aux_side_issue(a)
    srd(a, RC, S_W1, 512*2752)
    if OPT.get("w1perm", 0):
        for j in range(3):
            a.I(f"v_add_u32 v2, {64*j}, v1")
            a.I("v_mul_u32_u24 v3, 171, v2")
            a.I("v_lshrrev_b32 v3, 12, v3")
            a.I("v_mul_u32_u24 v4, 24, v3")
            a.I("v_sub_u32 v2, v2, v4")
            a.I("v_lshrrev_b32 v4, 2, v2")
            a.I("v_and_b32 v2, 3, v2")
            a.I("v_bfe_u32 v5, v3, 1, 1")
            a.I("v_xor_b32 v4, v4, v5")
            a.I("v_add_u32 v5, 1, v4")
            a.I("v_cmp_eq_u32 vcc, 4, v4")
            a.I("s_nop 1")
            a.I("v_cndmask_b32_e64 v5, v5, 0, vcc")
            a.I("v_cmp_eq_u32 vcc, 5, v4")
            a.I("s_nop 1")
            a.I("v_cndmask_b32_e64 v5, v5, 5, vcc")
            a.I(f"v_add_u32 v19, s{S_START}, v3")
            a.I("v_and_b32 v19, 1, v19")
            a.I("v_cmp_eq_u32 vcc, 1, v19")
            a.I("s_nop 1")
            a.I("v_cndmask_b32 v4, v4, v5, vcc")
            a.I("v_lshlrev_b32 v4, 6, v4")
            a.I("v_lshl_add_u32 v4, v2, 4, v4")
            a.I("v_mul_u32_u24 v5, 2752, v3")
            a.I(f"v_add_u32 v{16+j}, v5, v4")
    else:
        woffs(16, 2752, 7)
    a.I(f"s_lshl_b32 s71, s{S_START}, 6")
    a.I(f"s_mul_i32 s72, s67, {8*2752}")
    a.I("s_add_u32 s71, s71, s72")
    fap = OPT.get("fapos", 2)
    assert fap >= 2
    for c in range(16):
        need = [("W", c)] + ([("X", c)] if c < 8 else [])
        idx = max(i for i, (it, _) in enumerate(fifo) if it in need)
        allow = sum(k for _, k in fifo[idx+1:])
        if c == 0 and STAMPS and OPT.get("fine"): a.I("s_mov_b32 s87, 24")
        stamp_dyn(a)
        early = OPT.get("early", 1) and not STAMPS and len(post[c]) > 0 and not OPT.get("p1noprod")
        if early:
            pre_setup(post[c][0])
        a.I(f"s_waitcnt vmcnt({allow})")
        stamp_dyn(a)
        a.I("s_barrier")
        for n_, it in enumerate(post[c]): do(it, early and n_ == 0)
        if aux and c == 2:
            fifo.append(("side", aux_side_loads(a)))
        if aux and c == 6:
            aux_gate(a)
            fifo.append(("g", 1))
        if aux and c == 7:
            fifo.append(("nonce", aux_nonce_issue(a)))
        if aux and c == 10:
            aux_zero_misc(a)
        if aux and c == 11:
            aux_nonce_take(a)
        if aux and c == 12:
            aux_share_nonce(a)
        if aux and c == 15:
            aux_fa_probe(a)
        if aux and c == 9 + fap:
            aux_publish_fa(a)
    a.I("s_barrier")
    if aux:
        aux_after_e1(a)
    else:
        if OPT.get("pprio"): a.I("s_setprio 0")
        a.I("s_branch L_attn")

def l2_prefetch(a, part):
    a.I("s_and_b32 s52, s2, 7")
    a.I("s_lshr_b32 s53, s2, 3")
    a.I("s_lshl_b32 s54, s53, 4")
    a.I(f"s_lshl_b32 s55, s{S_W}, 2")
    a.I("s_add_u32 s56, s54, s55")
    if part == 2:
        a.I(f"s_cmp_lg_u32 s{S_W}, 0")
        a.I("s_cbranch_scc1 L_pf2")
        srd(a, RC, S_WQKV, 512*3072)
        a.I("s_lshl_b32 s54, s53, 3")
        a.I("s_add_u32 s54, s54, 256")
        a.I("s_mul_i32 s54, s54, 3072")
        a.I("s_and_b32 s55, s52, 3")
        a.I("s_lshl_b32 s55, s55, 8")
        a.I("s_add_u32 s54, s54, s55")
        a.I("v_lshrrev_b32 v21, 3, v1")
        a.I("v_mul_u32_u24 v21, 3072, v21")
        a.I("v_bfe_u32 v22, v1, 1, 2")
        a.I("v_min_u32 v22, 2, v22")
        a.I("v_lshl_add_u32 v21, v22, 10, v21")
        a.I("v_and_b32 v22, 1, v1")
        a.I("v_lshl_add_u32 v21, v22, 7, v21")
        a.I(f"buffer_load_dword v25, v21, {S4(RC)}, s54 offen")
        a.L("L_pf2")
    elif part == 0:
        G = OPT.get("pfg", 128)
        sh = {128: 7, 64: 6, 32: 5}[G]
        srd(a, RC, S_AX, 2*MB)
        a.I("s_lshr_b32 s54, s52, 2")
        a.I("s_lshl_b32 s54, s54, 10")
        a.I("s_lshl_b32 s55, s53, 5")
        a.I("s_add_u32 s54, s54, s55")
        a.I(f"s_lshl_b32 s55, s{S_W}, 3")
        a.I("s_add_u32 s54, s54, s55")
        a.I("s_lshl_b32 s54, s54, 10")
        a.I(f"v_lshlrev_b32 v20, {sh}, v1")
        for i in range(0 if OPT.get("nopfx") else 8192 // (64*G)):
            a.I(f"buffer_load_dword v24, v20, {S4(RC)}, s54 offen")
            a.I(f"s_add_u32 s54, s54, {64*G}")
        srd(a, RC, S_WQKV, 512*3072)
        a.I("s_mul_i32 s54, s56, 3072")
        a.I("s_and_b32 s55, s52, 3")
        a.I("s_lshl_b32 s55, s55, 8")
        a.I("s_add_u32 s54, s54, s55")
        per = 256 // G
        a.I("v_lshrrev_b32 v21, 4, v1")
        a.I("v_mul_u32_u24 v21, 3072, v21")
        a.I("v_and_b32 v22, 15, v1")
        if G == 64:
            a.I("v_lshrrev_b32 v23, 2, v22")
            a.I("v_min_u32 v23, 2, v23")
            a.I("v_lshl_add_u32 v21, v23, 10, v21")
            a.I("v_and_b32 v22, 3, v22")
            a.I("v_lshl_add_u32 v21, v22, 6, v21")
            a.I(f"buffer_load_dword v25, v21, {S4(RC)}, s54 offen")
        elif G == 32:
            a.I("v_lshrrev_b32 v23, 3, v22")
            a.I("v_lshl_add_u32 v21, v23, 10, v21")
            a.I("v_and_b32 v22, 7, v22")
            a.I("v_lshl_add_u32 v21, v22, 5, v21")
            a.I(f"buffer_load_dword v25, v21, {S4(RC)}, s54 offen")
            a.I(f"buffer_load_dword v25, v21, {S4(RC)}, s54 offen offset:2048")
        else:
            a.I("v_lshrrev_b32 v23, 1, v22")
            a.I("v_min_u32 v23, 2, v23")
            a.I("v_lshl_add_u32 v21, v23, 10, v21")
            a.I("v_and_b32 v22, 1, v22")
            a.I("v_lshl_add_u32 v21, v22, 7, v21")
            a.I(f"buffer_load_dword v25, v21, {S4(RC)}, s54 offen")
    else:
        a.I(f"s_cmp_ge_u32 s{S_W}, 2")
        a.I("s_cbranch_scc1 L_pf1")
        srd(a, RC, S_W1, 512*2752)
        a.I("s_and_b32 s55, s52, 3")
        a.I("s_mul_i32 s55, s55, 12")
        a.I("s_min_u32 s55, s55, 31")
        a.I("s_lshl_b32 s55, s55, 6")
        a.I("s_lshl_b32 s54, s53, 4")
        a.I(f"s_lshl_b32 s56, s{S_W}, 3")
        a.I("s_add_u32 s54, s54, s56")
        a.I("s_mul_i32 s54, s54, 2752")
        a.I("s_add_u32 s54, s54, s55")
        a.I("v_lshrrev_b32 v21, 3, v1")
        a.I("v_mul_u32_u24 v21, 2752, v21")
        a.I("v_and_b32 v22, 7, v1")
        a.I("v_lshl_add_u32 v21, v22, 7, v21")
        a.I(f"buffer_load_dword v26, v21, {S4(RC)}, s54 offen")
        a.L("L_pf1")

def consumer(a):
    a.L("L_cons")
    H, XA, WA, ACC, B1, FA, FB = 2, 8, 12, 32, 80, 104, 136
    if not OPT.get("nopf") and not OPT.get("pflate") and not OPT.get("pfprod"):
        l2_prefetch(a, OPT.get("pfmode", 0))
    a.I(f"v_lshrrev_b32 v{H}, 5, v1")
    a.I(f"s_and_b32 s63, s{S_W}, 1")
    a.I(f"s_lshr_b32 s64, s{S_W}, 1")
    srd(a, RD, S_B1, 2752)
    a.I(f"s_add_u32 s54, s{S_START}, s63")
    a.I("s_lshl_b32 s54, s54, 6")
    a.I(f"v_lshlrev_b32 v3, 3, v{H}")
    for s in range(3):
        for q in range(4):
            r = B1 + (s*4+q)*2
            a.I(f"buffer_load_dwordx2 v[{r}:{r+1}], v3, {S4(RD)}, s54 offen offset:{s*128+q*16}")
    for i in range(48):
        a.I(f"v_mov_b32 v{ACC+i}, 0")
    a.I("v_and_b32 v16, 31, v1")
    a.I("v_bfe_u32 v17, v1, 1, 3")
    a.I("s_lshl_b32 s54, s64, 5")
    a.I("v_add_u32 v16, s54, v16")
    a.I("v_lshlrev_b32 v16, 7, v16")
    a.I(f"v_xor_b32 v17, v17, v{H}")
    for ks in range(4):
        a.I(f"v_xor_b32 v18, {2*ks}, v17")
        a.I(f"v_lshl_add_u32 v{XA+ks}, v18, 4, v16")
    tr_lane_addr(a, WA, 1, 16, 17, 8, 384)
    a.I("s_lshl_b32 s54, s63, 6")
    a.I(f"v_xor_b32 v{WA}, s54, v{WA}")
    a.I(f"v_add_u32 v{WA}, 0x10000, v{WA}")
    a.I(f"v_add_u32 v{WA+1}, 49152, v{WA}")
    WF1 = [14, 15, 28, 29, 30, 31]
    if OPT.get("w1perm", 0):
        a.I("v_bfe_u32 v16, v1, 2, 2")
        a.I(f"v_lshl_add_u32 v17, v{H}, 3, v16")
        a.I("v_mul_u32_u24 v17, 384, v17")
        a.I("v_bfe_u32 v18, v1, 4, 1")
        a.I("v_lshlrev_b32 v18, 1, v18")
        a.I("v_bfe_u32 v19, v1, 1, 1")
        a.I("v_add_u32 v18, v18, v19")
        a.I("v_lshl_add_u32 v17, v18, 4, v17")
        a.I("v_and_b32 v18, 1, v1")
        a.I("v_lshl_add_u32 v17, v18, 3, v17")
        a.I("v_add_u32 v17, 0x10000, v17")
        a.I(f"v_add_u32 v18, s{S_START}, v16")
        a.I("v_and_b32 v18, 1, v18")
        a.I("v_cmp_eq_u32 vcc, 1, v18")
        a.I("v_bfe_u32 v19, v1, 3, 1")
        inv = [4, 0, 1, 2, 3, 5]
        for s_ in range(3):
            a.I(f"s_cmp_eq_u32 s63, 0")
            a.I(f"s_cselect_b32 s54, {2*s_}, {2*s_+1}")
            a.I(f"s_cselect_b32 s55, {inv[2*s_]}, {inv[2*s_+1]}")
            a.I(f"v_mov_b32 v26, s54")
            a.I(f"v_mov_b32 v27, s55")
            a.I(f"v_cndmask_b32 v26, v26, v27, vcc")
            a.I(f"v_xor_b32 v26, v26, v19")
            a.I(f"v_lshl_add_u32 v{WF1[s_]}, v26, 6, v17")
            a.I(f"v_add_u32 v{WF1[3+s_]}, 49152, v{WF1[s_]}")

    def reads(b, G, F, qkv=True):
        out = []
        if OPT.get("p1nocons"): return ["s_nop 0"]
        wv = WA + (b >> 1)
        for l in range(2):
            ks = 2*G + l
            out.append(f"ds_read_b128 {vr(F+4*l,4)}, v{XA+ks} offset:{b*8192}")
            for s in range(3):
                for rd in range(2):
                    if qkv or not OPT.get("w1perm", 0):
                        out.append(f"ds_read_b64_tr_b16 {vr(F+8+12*l+4*s+2*rd,2)}, v{wv} offset:{(b&1)*24576 + ks*6144 + rd*1536 + s*128}")
                    else:
                        out.append(f"ds_read_b64_tr_b16 {vr(F+8+12*l+4*s+2*rd,2)}, v{WF1[3*(b>>1)+s]} offset:{(b&1)*24576 + ks*6144 + rd*1536}")
        return out
    def mfmas(F, qkv):
        out = []
        if OPT.get("p1nocons") or OPT.get("p1nomfma"): return ["s_nop 0"]
        for l in range(2):
            for s in range(3):
                X, W = F+4*l, F+8+12*l+4*s
                out.append(MF(ACC+16*s, X, W, ACC+16*s) if (qkv and s == 2) else MF(ACC+16*s, W, X, ACC+16*s))
        return out
    def inter(mf, rd):
        out = []
        per = OPT.get("iper", [4, 4, 3, 3, 0, 0])
        if len(mf) != 6: return mf + rd
        k = 0
        for i, m in enumerate(mf):
            out.append(m)
            out += rd[k:k+per[i]]
            k += per[i]
        assert k >= len(rd)
        return out
    def stage_loop(tag, qkv):
        a.I("s_mov_b32 s65, 0x8000")
        a.L(f"L_loop_{tag}")
        fap = OPT.get("fapos", 2)
        for b in range(4):
            a.I("s_waitcnt lgkmcnt(0)")
            a.I(J(inter(mfmas(FA, qkv), reads(b, 1, FB, qkv))))
            if (not qkv) and b == (fap & 3):
                if fap >= 4:
                    a.I("s_cmp_lt_i32 s65, 0")
                    a.I(f"s_cbranch_scc0 L_nodrain")
                a.I("s_waitcnt vmcnt(0)")
                if fap >= 4: a.L("L_nodrain")
            a.I("s_waitcnt lgkmcnt(0)")
            if b == 3:
                if not qkv:
                    a.I("s_cmp_lt_i32 s65, 0")
                    a.I(f"s_cbranch_scc1 L_last_{tag}")
                for ks in range(4):
                    a.I(f"v_add_u32 v{XA+ks}, s65, v{XA+ks}")
            stamp_dyn(a)
            a.I("s_barrier")
            stamp_dyn(a)
            if qkv and b == 3:
                a.I("s_cmp_lt_i32 s65, 0")
                a.I("s_cbranch_scc1 L_qtail")
            a.I(J(inter(mfmas(FB, qkv), reads((b+1) % 4, 0, FA, qkv))))
        if qkv:
            a.I("s_mov_b32 s65, 0xffff8000")
            a.I(f"s_branch L_loop_{tag}")
            a.L("L_qtail")
            a.I(J(inter(mfmas(FB, qkv), reads(0, 0, FA, False))))
        else:
            a.I("s_mov_b32 s65, 0xffff8000")
            a.I(f"s_branch L_loop_{tag}")
        if not qkv:
            a.L(f"L_last_{tag}")
            a.I(J(mfmas(FB, qkv)))

    if OPT.get("pflate"):
        for i in range(OPT["pflate"]):
            a.I("s_sleep 8")
        l2_prefetch(a, 0)
    if OPT.get("pfw1early"):
        l2_prefetch(a, 1)
    a.I("s_barrier")
    stamp(a, "B0")
    if STAMPS and OPT.get("fine"): a.I("s_mov_b32 s87, 24")
    if not OPT.get("nopf") and not OPT.get("pfw1early"):
        l2_prefetch(a, 1)
    a.I(J(reads(0, 0, FA)))
    stage_loop("q", True)
    stamp(a, "qloop")
    srd(a, RA, S_WS, VF + 2*MB)
    a.I(f"s_lshl_b32 s54, s{S_RB}, 1")
    a.I("s_add_u32 s54, s54, s64")
    a.I(f"s_lshl_b32 s55, s{S_CG}, 2")
    a.I("s_lshl_b32 s56, s63, 1")
    a.I("s_add_u32 s55, s55, s56")
    a.I("s_lshl_b32 s55, s55, 6")
    a.I("s_add_u32 s54, s54, s55")
    a.I("s_lshl_b32 s54, s54, 10")
    a.I("v_lshlrev_b32 v3, 4, v1")
    a.I("v_bfe_u32 v4, v1, 4, 1")
    a.I("v_lshlrev_b32 v4, 16, v4")
    a.I(f"v_lshl_add_u32 v4, v{H}, 8, v4")
    a.I("v_and_b32 v5, 15, v1")
    a.I("v_lshl_add_u32 v4, v5, 4, v4")
    a.I(f"s_mov_b32 s56, {hex(f2u(QSCALE))}")
    a.I("s_waitcnt vmcnt(0)")
    a.I("s_nop 4")
    for idx, s in enumerate((1, 2, 0)):
        d = ACC + 16*s
        if s == 0:
            for i in range(16):
                a.I(f"v_mul_f32 v{d+i}, s56, v{d+i}")
        for j in range(8):
            a.I(f"v_cvt_pk_bf16_f32 v{d+j}, v{d+2*j}, v{d+2*j+1}")
        if s < 2:
            for hh in range(2):
                a.I(f"s_add_u32 s55, s54, {(KF if s else QF) + hh*65536}")
                a.I(f"buffer_store_dwordx4 {vr(d+4*hh,4)}, v3, {S4(RA)}, s55 offen sc1")
        else:
            a.I(f"s_add_u32 s55, s54, {VF}")
            for u in range(2):
                a.I(f"buffer_store_dwordx4 {vr(d+4*u,4)}, v4, {S4(RA)}, s55 offen offset:{u*512} sc1")
    a.I("s_nop 1")
    for s in range(3):
        for q in range(4):
            r = B1 + (s*4+q)*2
            d = ACC + s*16 + q*4
            a.I(f"v_lshlrev_b32 v{d}, 16, v{r}")
            a.I(f"v_and_b32 v{d+1}, 0xffff0000, v{r}")
            a.I(f"v_lshlrev_b32 v{d+2}, 16, v{r+1}")
            a.I(f"v_and_b32 v{d+3}, 0xffff0000, v{r+1}")
    stage_loop("f", False)
    a.I("s_barrier")
    stamp(a, "floop")
    srd_off(a, RA, S_WS, HF, HF_SIZE)
    a.I(f"s_lshl_b32 s54, s{S_RB}, 1")
    a.I("s_add_u32 s54, s54, s64")
    a.I(f"s_add_u32 s55, s{S_START}, s63")
    a.I("s_lshl_b32 s55, s55, 7")
    a.I("s_add_u32 s54, s54, s55")
    a.I("s_lshl_b32 s54, s54, 10")
    a.I("v_lshlrev_b32 v3, 4, v1")
    a.I("s_nop 4")
    for s in range(3):
        d = ACC + 16*s
        for i in range(16):
            a.I(f"v_max_f32 v{d+i}, 0, v{d+i}")
        for i in range(16):
            a.I(f"v_mul_f32 v{d+i}, v{d+i}, v{d+i}")
        for j in range(8):
            a.I(f"v_cvt_pk_bf16_f32 v{d+j}, v{d+2*j}, v{d+2*j+1}")
        for uu in range(2):
            a.I(f"s_add_u32 s55, s54, {(4*s+uu)*65536}")
            a.I(f"buffer_store_dwordx4 {vr(d+4*uu,4)}, v3, {S4(RA)}, s55 offen sc1")
    a.I("s_nop 1")
    a.I("s_branch L_attn")

def aux_side_issue(a):
    a.I("s_sub_u32 s66, s67, 4")
    a.I(f"s_lshl_b32 s54, s2, 2")
    a.I("s_or_b32 s54, s54, s66")
    a.I("s_cmp_lg_u32 s54, 0")
    a.I("s_cbranch_scc1 L_aux1")
    srd(a, RD, S_DBG, 256)
    a.I("s_memrealtime s[54:55]")
    a.I("s_waitcnt lgkmcnt(0)")
    a.I("s_or_b32 s85, s54, 1")
    a.I("v_mov_b32 v8, s85")
    a.I("v_mov_b32 v10, 0")
    a.I("s_mov_b64 exec, 1")
    a.I(f"buffer_store_dword v8, v10, {S4(RD)}, 0 offen sc1")
    a.I("s_mov_b64 exec, -1")
    a.L("L_aux1")
    a.I(f"s_lshl_b32 s54, s{S_RB}, 6")
    a.I(f"s_lshl_b32 s55, s{S_CG}, 3")
    a.I("s_add_u32 s54, s54, s55")
    a.I("s_lshl_b32 s55, s66, 1")
    a.I("s_add_u32 s86, s54, s55")
    return 0

def aux_side_loads(a):
    a.I("s_lshl_b32 s54, s86, 10")
    srd_off(a, RD, S_AX, "s54", 2048)
    a.I("v_and_b32 v2, 31, v1")
    a.I("v_lshlrev_b32 v2, 5, v2")
    a.I("v_lshrrev_b32 v3, 5, v1")
    a.I("v_lshl_add_u32 v4, v3, 10, v2")
    for i in range(2):
        a.I(f"buffer_load_dwordx4 {vr(32+4*i,4)}, v4, {S4(RD)}, 0 offen offset:{16*i}")
    srd(a, RD, S_GW, 1024)
    for i in range(2):
        a.I(f"buffer_load_dwordx4 {vr(40+4*i,4)}, v2, {S4(RD)}, 0 offen offset:{16*i}")
    n = 4
    if OPT.get("codepf", 1):
        a.I("s_getpc_b64 s[52:53]")
        a.L("L_pc")
        a.I(f"s_sub_u32 s52, s52, L_pc-{KN}")
        a.I("s_subb_u32 s53, s53, 0")
        a.I("s_mul_i32 s54, s66, 6144")
        a.I("v_lshlrev_b32 v5, 7, v1")
        a.I("v_add_u32 v5, s54, v5")
        a.I(f"v_min_u32 v5, L_code_end-{KN}-4, v5")
        a.I("s_mov_b32 exec_hi, 0xffff")
        a.I("global_load_dword v116, v5, s[52:53]")
        a.I("s_mov_b64 exec, -1")
        n += 1
    return n

def aux_nonce_issue(a):
    srd(a, RD, S_DBG, 256)
    a.I("v_mov_b32 v10, 0")
    a.I(f"buffer_load_dword v8, v10, {S4(RD)}, 0 offen sc1")
    return 1

def aux_nonce_take(a):
    a.I(f"v_readfirstlane_b32 s{S_NONCE}, v8")
    a.I("s_mov_b32 s50, 0x40000")
    a.L("L_nonce")
    a.I(f"s_cmp_lg_u32 s{S_NONCE}, 0")
    a.I("s_cbranch_scc1 L_nonce_ok")
    a.I("s_sub_u32 s50, s50, 1")
    a.I("s_cmp_eq_u32 s50, 0")
    a.I("s_cbranch_scc1 L_nonce_ok")
    srd(a, RD, S_DBG, 256)
    a.I(f"buffer_load_dword v8, v10, {S4(RD)}, 0 offen sc1")
    a.I("s_waitcnt vmcnt(0)")
    a.I(f"v_readfirstlane_b32 s{S_NONCE}, v8")
    a.I("s_branch L_nonce")
    a.L("L_nonce_ok")

def aux_gate(a):
    if OPT.get("p1noprod"): a.I("s_waitcnt vmcnt(0)")
    a.I("v_mov_b32 v24, 0")
    for i in range(8):
        a.I(f"v_dot2c_f32_bf16 v24, v{32+i}, v{40+i}")
    a.I("s_nop 3")
    for sh in (1, 2, 4, 8):
        a.I(f"v_add_f32_dpp v24, v24, v24 row_shr:{sh} row_mask:0xf bank_mask:0xf")
        a.I("s_nop 1")
    a.I("v_add_f32_dpp v24, v24, v24 row_bcast:15 row_mask:0xa bank_mask:0xf")
    a.I("s_nop 1")
    a.I("v_cvt_pk_bf16_f32 v24, v24, v24")
    a.I("v_and_b32 v24, 0xffff0000, v24")
    a.I(f"v_mul_f32 v24, {hex(f2u(-1.4426950408889634))}, v24")
    a.I("v_exp_f32 v24, v24")
    a.I("s_nop 0")
    a.I("v_add_f32 v24, 1.0, v24")
    a.I("v_rcp_f32 v24, v24")
    a.I("s_nop 0")
    a.I("v_cvt_pk_bf16_f32 v24, v24, v24")
    a.I("v_and_b32 v24, 0xffff0000, v24")
    srd_off(a, RD, S_WS, GO, 8192)
    a.I("s_lshl_b32 s54, s86, 2")
    a.I("v_lshrrev_b32 v3, 5, v1")
    a.I("v_lshlrev_b32 v3, 2, v3")
    a.I("s_mov_b32 s52, 0x80000000")
    a.I("s_mov_b32 s53, 0x80000000")
    a.I("s_mov_b64 exec, s[52:53]")
    a.I(f"buffer_store_dword v24, v3, {S4(RD)}, s54 offen sc1")
    a.I("s_mov_b64 exec, -1")

def aux_publish_fa(a):
    a.I("s_cmp_lg_u32 s66, 0")
    a.I("s_cbranch_scc1 L_aux2")
    srd_off(a, RD, S_WS, FLG, FLG_SIZE)
    a.I(f"s_lshl_b32 s54, s{S_CG}, 7")
    a.I(f"s_lshl_b32 s55, s{S_RB}, 2")
    a.I("s_add_u32 s54, s54, s55")
    a.I(f"s_add_u32 s54, s54, {FA_OFF}")
    a.I(f"v_mov_b32 v8, s{S_NONCE}")
    a.I(f"v_mov_b32 v10, 0")
    a.I("s_mov_b64 exec, 1")
    a.I(f"buffer_store_dword v8, v10, {S4(RD)}, s54 offen sc1")
    a.I("s_mov_b64 exec, -1")
    stamp(a, "FApub")
    a.L("L_aux2")

def aux_zero_misc(a):
    a.I("s_cmp_lg_u32 s66, 1")
    a.I("s_cbranch_scc1 L_aux3")
    a.I(f"v_lshlrev_b32 v10, 2, v1")
    if L_MISC: a.I(f"v_add_u32 v10, {L_MISC}, v10")
    a.I("v_mov_b32 v9, 0")
    a.I("ds_write_b32 v10, v9")
    a.I("s_waitcnt lgkmcnt(0)")
    a.I("v_mov_b32 v10, 0")
    a.L("L_aux3")

def aux_share_nonce(a):
    a.I("s_cmp_lg_u32 s66, 0")
    a.I("s_cbranch_scc1 L_aux4")
    a.I(f"v_mov_b32 v9, {L_MISC + 128}")
    a.I(f"v_mov_b32 v11, s{S_NONCE}")
    a.I("ds_write_b32 v9, v11")
    a.I("s_waitcnt lgkmcnt(0)")
    a.L("L_aux4")

def aux_fa_probe(a):
    srd_off(a, RC, S_WS, FLG, FLG_SIZE)
    a.I(f"s_lshr_b32 s88, s{S_HD}, 2")
    a.I("s_lshl_b32 s88, s88, 7")
    a.I(f"s_add_u32 s88, s88, {FA_OFF}")
    a.I("v_lshlrev_b32 v9, 2, v1")
    a.I("s_mov_b32 exec_hi, 0")
    a.I(f"buffer_load_dword v11, v9, {S4(RC)}, s88 offen sc1")
    a.I("s_mov_b64 exec, -1")

def aux_after_e1(a):
    a.I("s_mov_b32 s67, s66")
    a.I("s_setprio 3")
    stamp(a, "E2")
    a.I("s_mov_b32 exec_hi, 0")
    a.I("s_waitcnt vmcnt(0)")
    a.I(f"v_cmp_ne_u32 vcc, s{S_NONCE}, v11")
    a.I("s_mov_b64 exec, -1")
    a.I("s_cbranch_vccz L_aux5")
    poll(a, RC, 32, 9, 11, "s88")
    a.L("L_aux5")
    stamp(a, "FAok")
    VL = 4
    a.I(f"v_lshlrev_b32 v{VL}, 4, v1")
    a.I(f"s_lshl_b32 s54, s{S_HD}, 16")
    a.I(f"s_add_u32 s55, s54, {KF}")
    srd_off(a, RA, S_WS, "s55", 65536)
    a.I(f"s_add_u32 s55, s54, {VF}")
    srd_off(a, RB, S_WS, "s55", 65536)
    a.I(f"s_add_u32 s55, s54, {QF}")
    srd_off(a, RD, S_WS, "s55", 65536)
    a.I(f"s_lshl_b32 s54, s{S_QB}, 3")
    a.I("s_lshl_b32 s55, s67, 1")
    a.I("s_add_u32 s54, s54, s55")
    a.I("s_lshl_b32 s54, s54, 10")
    a.I("s_lshl_b32 s55, s67, 11")
    a.I(f"s_add_u32 s55, s55, {L_RING}")
    for t in range(2):
        a.I(f"s_add_u32 m0, s55, {t*1024}")
        a.I(f"s_add_u32 s56, s54, {t*1024}")
        a.I(f"buffer_load_dwordx4 v{VL}, {S4(RD)}, s56 offen sc1 lds")
    a.I("s_lshl_b32 s54, s67, 10")
    def kvchunks(cs):
        for c in cs:
            a.I(f"s_add_u32 s55, s54, {c*4096}")
            a.I(f"s_add_u32 m0, s55, {L_K}")
            a.I(f"s_add_u32 s56, s55, {L_V}")
            a.I(f"buffer_load_dwordx4 v{VL}, {S4(RA)}, s55 offen sc1 lds")
            a.I("s_mov_b32 m0, s56")
            a.I("s_nop 0")
            a.I(f"buffer_load_dwordx4 v{VL}, {S4(RB)}, s55 offen sc1 lds")
    kvchunks(range(0, 2))
    kvchunks(range(2, 4))
    a.I("s_waitcnt vmcnt(4)")
    lds_add1(a, M_KV, 8, 9)
    stamp(a, "KV1")
    kvchunks(range(4, 16))
    a.I("s_lshr_b32 s53, s2, 3")
    srd(a, RA, S_W2, 1376*1024)
    srd(a, RB, S_WO, 512*1024)
    a.I("s_mul_i32 s54, s53, 44032")
    a.I("s_lshl_b32 s55, s67, 10")
    a.I("s_add_u32 s54, s54, s55")
    a.I("s_waitcnt vmcnt(0)")
    lds_add1(a, M_KV, 8, 9)
    stamp(a, "KV2")
    a.I("v_lshlrev_b32 v10, 7, v1")
    a.I("s_lshl_b32 s55, s67, 13")
    a.I("s_mul_i32 s54, s53, 44032")
    a.I("s_add_u32 s54, s54, s55")
    a.I(f"buffer_load_dword v40, v10, {S4(RA)}, s54 offen")
    a.I("s_add_u32 s54, s54, 32768")
    a.I(f"buffer_load_dword v41, v10, {S4(RA)}, s54 offen")
    a.I("s_lshl_b32 s54, s53, 14")
    a.I("s_lshl_b32 s55, s67, 12")
    a.I("s_add_u32 s54, s54, s55")
    a.I("s_mov_b32 exec_hi, 0")
    a.I(f"buffer_load_dword v42, v10, {S4(RB)}, s54 offen")
    a.I("s_mov_b64 exec, -1")

def ffn2_p3(a):
    WF, HR, ACC2, BPR = 24, 40, 104, 8
    VH, VW, VA0, VA1 = 2, 3, 4, 5
    a.I("s_cmp_lg_u32 s67, 0")
    a.I("s_cbranch_scc1 L_f1")
    lds_spin(a, M_HST, 4, 8, 9, OPT.get('fslp', 1))
    lds_spin(a, M_KV, 8, 8, 9)
    a.I(f"s_lshl_b32 s54, s{S_RB}, 7")
    a.I(f"s_lshl_b32 s55, s{S_CG}, 2")
    a.I("s_add_u32 s54, s54, s55")
    a.I(f"s_add_u32 s54, s54, {FH_OFF}")
    flag_store(a, "s54", 8, 10)
    a.I(f"s_lshl_b32 s54, s{S_HD}, 7")
    a.I(f"s_add_u32 s54, s54, {FH_OFF}")
    a.I("v_lshlrev_b32 v8, 2, v1")
    poll(a, RC, 8, 8, 9, "s54", OPT.get("fhslp", 4))
    lds_add1(a, M_H, 8, 9)
    a.I("s_branch L_f2")
    a.L("L_f1")
    lds_spin(a, M_H, 1, 8, 9, OPT.get('fslp', 1))
    a.L("L_f2")
    lds_spin(a, M_QRD, 8, 8, 9, OPT.get('fslp', 1))
    stamp(a, "hready")
    srd(a, RA, S_W2, 1376*1024)
    srd_off(a, RB, S_WS, HF, HF_SIZE)
    a.I(f"v_lshlrev_b32 v{VH}, 4, v1")
    dma_w_lane_off(a, VW, 1, 8, 9, 1024)
    a.I(f"s_lshl_b32 s54, s{S_QB}, 7")
    a.I(f"v_add_u32 v{VW}, s54, v{VW}")
    tr_lane_addr(a, VA0, 1, 8, 9, 4, 128)
    a.I("s_mul_i32 s68, s67, 6144")
    a.I(f"s_add_u32 s68, s68, {L_RING}")
    a.I(f"v_add_u32 v{VA0}, s68, v{VA0}")
    a.I(f"v_xor_b32 v{VA1}, 64, v{VA0}")
    a.I("s_mul_i32 s54, s67, 24")
    a.I("s_lshl_b32 s70, s54, 14")
    a.I("s_lshl_b32 s71, s54, 16")
    a.I(f"s_lshl_b32 s55, s{S_HD}, 11")
    a.I("s_add_u32 s71, s71, s55")
    for i in range(64):
        a.I(f"v_mov_b32 v{ACC2+i}, 0")
    a.I("s_waitcnt vmcnt(0)")
    def fissue(slot):
        return [f"s_add_u32 m0, s68, {slot*2048}",
                f"s_add_u32 s69, s70, 8192",
                f"buffer_load_dwordx4 v{VW}, {S4(RA)}, s70 offen lds",
                f"s_add_u32 m0, s68, {slot*2048+1024}",
                f"s_add_u32 s70, s70, 16384",
                f"buffer_load_dwordx4 v{VW}, {S4(RA)}, s69 offen lds",
                f"buffer_load_dwordx4 {vr(HR+slot*8,4)}, v{VH}, {S4(RB)}, s71 offen sc1",
                f"buffer_load_dwordx4 {vr(HR+slot*8+4,4)}, v{VH}, {S4(RB)}, s71 offen offset:1024 sc1",
                f"s_add_u32 s71, s71, 65536"]
    def trr(F, off):
        out = []
        for ct, va in ((0, VA0), (1, VA1)):
            for rd in range(2):
                out.append(f"ds_read_b64_tr_b16 {vr(F+4*ct+2*rd,2)}, v{va} offset:{off + rd*1024}")
        return out
    N2 = OPT.get("n2", 0)
    a.I("s_cmp_eq_u32 s67, 3")
    a.I(f"s_cselect_b32 s72, {5-N2}, {8-N2}")
    a.I("s_mov_b32 s76, 0")
    a.L("L_fpro")
    for slot in range(3):
        a.I(J(fissue(slot)))
    a.I("s_cmp_lg_u32 s76, 0")
    a.I("s_cbranch_scc1 L_floop")
    a.I(f"s_setprio {OPT.get('ffnprio', 0)}")
    if OPT.get("noffn"): a.I("s_branch L_fskip")
    a.L("L_floop")
    for slot in range(3):
        a.I("s_waitcnt vmcnt(8)")
        a.I(J(trr(WF, slot*2048)))
        a.I("s_waitcnt lgkmcnt(0)")
        fi = fissue(slot)
        mf = lambda ct, rt: MF(ACC2 + (ct*2+rt)*16, WF+4*ct, HR+slot*8+4*rt, ACC2 + (ct*2+rt)*16)
        if OPT.get("fspread", 1):
            a.I(mf(0, 0)); a.I(J(fi[0:3]))
            a.I(mf(1, 0)); a.I(J(fi[3:6]))
            a.I(mf(0, 1)); a.I(fi[6])
            a.I(mf(1, 1)); a.I(J(fi[7:]))
        else:
            for ct in range(2):
                for rt in range(2):
                    a.I(mf(ct, rt))
            a.I(J(fi))
    a.I("s_sub_u32 s72, s72, 1")
    a.I("s_cmp_lg_u32 s72, 0")
    a.I("s_cbranch_scc1 L_floop")
    a.L("L_fskip")
    a.I("s_setprio 3")
    a.I("s_waitcnt vmcnt(0)")
    a.I("s_cmp_lg_u32 s76, 0")
    a.I("s_cbranch_scc1 L_fdone")
    lds_add1(a, M_FFN, 8, 9)
    stamp(a, "ffn2")
    lds_spin(a, M_ATT, 4, 8, 9, OPT.get('attslp', 1))
    stamp(a, "attdone")
    srd(a, RD, S_WO, 512*1024)
    a.I("s_lshl_b32 s56, s67, 14")
    a.I(f"s_add_u32 s56, s56, {L_K}")
    a.I("s_lshl_b32 s57, s67, 17")
    for ks in range(8):
        for n in range(2):
            a.I(f"s_add_u32 m0, s56, {ks*2048+n*1024}")
            a.I(f"s_add_u32 s69, s57, {ks*16384+n*8192}")
            a.I(f"buffer_load_dwordx4 v{VW}, {S4(RD)}, s69 offen lds")
    if N2:
        a.I("s_mov_b32 s76, 1")
        a.I(f"s_sub_u32 s70, s70, {3*16384}")
        a.I(f"s_sub_u32 s71, s71, {3*65536}")
        a.I(f"s_mov_b32 s72, {N2}")
        a.I("s_branch L_fpro")
    a.L("L_fdone")
    srd_off(a, RA, S_WS, GO, 8192)
    srd(a, RB, S_B2, 1024)
    a.I("s_and_b32 s73, s67, 1")
    a.I("s_lshr_b32 s74, s67, 1")
    a.I(f"s_lshl_b32 s75, s{S_HD}, 6")
    a.I("s_lshl_b32 s54, s73, 5")
    a.I("s_add_u32 s75, s75, s54")
    a.I("s_lshl_b32 s54, s75, 2")
    a.I("v_and_b32 v8, 31, v1")
    a.I("v_lshlrev_b32 v8, 2, v8")
    a.I(f"buffer_load_dword v40, v8, {S4(RA)}, s54 offen sc1")
    a.I(f"s_lshl_b32 s54, s{S_QB}, 6")
    a.I("s_lshl_b32 s55, s74, 5")
    a.I("s_add_u32 s54, s54, s55")
    a.I("s_lshl_b32 s54, s54, 1")
    a.I("v_lshrrev_b32 v8, 5, v1")
    a.I("v_lshlrev_b32 v8, 3, v8")
    for q in range(4):
        a.I(f"buffer_load_dwordx2 v[{42+2*q}:{43+2*q}], v8, {S4(RB)}, s54 offen offset:{q*16}")
    a.I("s_lshl_b32 s68, s67, 14")
    a.I("s_nop 7")
    a.I(f"s_add_u32 s54, s68, {L_V}")
    a.I(f"v_add_u32 v8, s54, v{VH}")
    for i in range(16):
        a.I(f"ds_write_b128 v8, {vr(ACC2+4*i,4)} offset:{i*1024}")
    a.I("s_waitcnt vmcnt(0) lgkmcnt(0)")
    lds_add1(a, M_T1, 9, 10)
    lds_spin(a, M_T1, 4, 9, 10)
    a.I("s_lshl_b32 s54, s67, 12")
    a.I(f"s_add_u32 s54, s54, {L_V}")
    a.I(f"v_add_u32 v8, s54, v{VH}")
    for p in range(4):
        for q in range(4):
            a.I(f"ds_read_b128 {vr(ACC2+p*16+q*4,4)}, v8 offset:{p*16384+q*1024}")
    a.I("s_waitcnt lgkmcnt(0)")
    for i in range(16):
        a.I(f"v_add_f32 v{ACC2+i}, v{ACC2+i}, v{ACC2+16+i}")
        a.I(f"v_add_f32 v{ACC2+32+i}, v{ACC2+32+i}, v{ACC2+48+i}")
    for i in range(16):
        a.I(f"v_add_f32 v{ACC2+i}, v{ACC2+i}, v{ACC2+32+i}")
    a.I("s_waitcnt vmcnt(0)")
    a.I("v_sub_f32 v41, 1.0, v40")
    a.I("v_cvt_pk_bf16_f32 v41, v41, v41")
    a.I("v_and_b32 v41, 0xffff0000, v41")
    for q in range(4):
        a.I(f"v_lshlrev_b32 v52, 16, v{42+2*q}")
        a.I(f"v_and_b32 v53, 0xffff0000, v{42+2*q}")
        a.I(f"v_lshlrev_b32 v54, 16, v{43+2*q}")
        a.I(f"v_and_b32 v55, 0xffff0000, v{43+2*q}")
        for j in range(4):
            a.I(f"v_add_f32 v{BPR+4*q+j}, v{ACC2+4*q+j}, v{52+j}")
        for j in range(4):
            a.I(f"v_mul_f32 v{BPR+4*q+j}, v{BPR+4*q+j}, v41")
    a.I("v_mov_b32 v39, v40")
    tr_lane_addr(a, VA0, 1, 32, 33, 4, 128)
    a.I("s_lshl_b32 s54, s74, 6")
    a.I(f"v_xor_b32 v{VA0}, s54, v{VA0}")
    a.I(f"v_add_u32 v{VA0}, {L_K}, v{VA0}")
    a.I("s_lshl_b32 s54, s73, 15")
    a.I(f"s_add_u32 s54, s54, {L_V}")
    a.I(f"v_add_u32 v{VA1}, s54, v{VH}")
    FR = 40
    def wreads(ks):
        F = FR + (ks % 8) * 8
        return [f"ds_read_b64_tr_b16 {vr(F,2)}, v{VA0} offset:{ks*2048}",
                f"ds_read_b64_tr_b16 {vr(F+2,2)}, v{VA0} offset:{ks*2048+1024}"]
    def oread(ks):
        F = FR + (ks % 8) * 8
        return [f"ds_read_b128 {vr(F+4,4)}, v{VA1} offset:{ks*1024}"]
    a.I("s_cmp_lg_u32 s67, 0")
    a.I("s_cbranch_scc1 L_f4")
    a.I(f"s_lshl_b32 s54, s{S_HD}, 8")
    a.I(f"s_add_u32 s54, s54, {FO_OFF}")
    a.I("v_lshlrev_b32 v121, 2, v1")
    if not OPT.get("opf", 0):
        poll(a, RC, 64, 121, 122, "s54", OPT.get("foslp", 1))
    else:
        srd_off(a, RB, S_WS, OF, 2*MB)
        a.I(f"s_lshl_b32 s55, s{S_HD}, 16")
        a.I("v_lshlrev_b32 v123, 10, v1")
        a.I("s_mov_b64 s[56:57], 0")
        a.I("s_mov_b32 s50, 0x40000")
        a.L("L_opf")
        a.I(f"buffer_load_dword v122, v121, {S4(RC)}, s54 offen sc1")
        a.I("s_waitcnt vmcnt(0)")
        a.I(f"v_cmp_eq_u32 vcc, s{S_NONCE}, v122")
        a.I("s_nop 1")
        a.I("s_andn2_b64 s[58:59], vcc, s[56:57]")
        a.I("s_or_b64 s[56:57], s[56:57], vcc")
        a.I("s_cmp_eq_u64 s[56:57], -1")
        a.I("s_cbranch_scc1 L_opf3")
        a.I("s_cmp_eq_u64 s[58:59], 0")
        a.I("s_cbranch_scc1 L_opf2")
        a.I("s_mov_b64 exec, s[58:59]")
        for j in range(8):
            a.I(f"buffer_load_dword v120, v123, {S4(RB)}, s55 offen offset:{j*128} sc1")
        a.I("s_mov_b64 exec, -1")
        a.L("L_opf2")
        a.I("s_sub_u32 s50, s50, 1")
        a.I("s_cmp_eq_u32 s50, 0")
        a.I("s_cbranch_scc1 L_opf3")
        a.I(f"s_sleep {OPT.get('foslp', 1)}")
        a.I("s_branch L_opf")
        a.L("L_opf3")
    a.L("L_f4")
    for ks in range(8): a.I(J(wreads(ks)))
    srd_off(a, RB, S_WS, OF, 2*MB)
    a.I(f"s_lshl_b32 s54, s{S_HD}, 16")
    a.I("s_lshl_b32 s55, s67, 11")
    a.I("s_add_u32 s54, s54, s55")
    a.I(f"s_add_u32 s55, s55, {L_V}")
    a.I("s_waitcnt lgkmcnt(0)")
    a.I("s_barrier")
    stamp(a, "T2")
    for ch in range(4):
        for hh in range(2):
            for rt in range(2):
                off = rt*32768 + ch*8192 + hh*1024
                a.I(f"s_add_u32 m0, s55, {off}")
                a.I(f"s_add_u32 s56, s54, {off}")
                a.I(f"buffer_load_dwordx4 v{VH}, {S4(RB)}, s56 offen sc1 lds")
    for ch in range(4):
        a.I(f"s_waitcnt vmcnt({4*(3-ch)}) lgkmcnt(0)")
        a.I("s_barrier")
        for ks in range(8*ch, 8*ch+8): a.I(J(oread(ks)))
        for i in range(8):
            ks = 8*ch + i
            a.I(f"s_waitcnt lgkmcnt({7 + i if ch < 3 else 7 - i})")
            F = FR + i*8
            a.I(MF(ACC2, F, F+4, ACC2 if ks else None))
            if ch < 3: a.I(J(wreads(ks+8)))
    a.I("s_nop 15")
    stamp(a, "p3mm")
    for i in range(16):
        a.I(f"v_fma_f32 v{ACC2+i}, v{ACC2+i}, v39, v{BPR+i}")
    for j in range(8):
        a.I(f"v_cvt_pk_bf16_f32 v{ACC2+j}, v{ACC2+2*j}, v{ACC2+2*j+1}")
    a.I("s_nop 1")
    a.I(f"v_permlane32_swap_b32 v{ACC2}, v{ACC2+2}")
    a.I(f"v_permlane32_swap_b32 v{ACC2+1}, v{ACC2+3}")
    a.I(f"v_permlane32_swap_b32 v{ACC2+4}, v{ACC2+6}")
    a.I(f"v_permlane32_swap_b32 v{ACC2+5}, v{ACC2+7}")
    srd(a, RA, S_OUT, 2*MB)
    a.I("s_lshl_b32 s54, s75, 10")
    a.I(f"s_lshl_b32 s55, s{S_QB}, 7")
    a.I("s_add_u32 s54, s54, s55")
    a.I("s_lshl_b32 s55, s74, 6")
    a.I("s_add_u32 s54, s54, s55")
    a.I("v_and_b32 v32, 31, v1")
    a.I("v_lshlrev_b32 v32, 10, v32")
    a.I("v_lshrrev_b32 v33, 5, v1")
    a.I("v_lshl_add_u32 v32, v33, 4, v32")
    ofl = {0: "", 1: " sc1", 2: " nt", 3: " sc0 sc1"}[OPT.get("outfl", 0)]
    a.I(f"buffer_store_dwordx4 {vr(ACC2,4)}, v32, {S4(RA)}, s54 offen{ofl}")
    a.I(f"buffer_store_dwordx4 {vr(ACC2+4,4)}, v32, {S4(RA)}, s54 offen offset:32{ofl}")
    stamp_flush(a)
    a.I("s_endpgm")

def attention(a):
    a.L("L_attn")
    stamp(a, "attn0")
    QA, QB = 8, 12
    KB = [16, 20]; VB = [24, 32]
    S0, S1, OA, OB = 40, 56, 72, 88
    VK, VV, VL = 2, 3, 4
    T0, T1, T2 = 104, 105, 106
    VKN, VVN, VVB, VCH, VONE, VNX = 107, 108, 109, 110, 111, 5
    a.I(f"s_and_b32 s63, s{S_W}, 3")
    a.I(f"s_lshr_b32 s64, s{S_W}, 2")
    a.I(f"v_lshlrev_b32 v{VL}, 4, v1")
    a.I(f"v_lshrrev_b32 v{T0}, 5, v1")
    a.I(f"v_and_b32 v{T1}, 15, v1")
    a.I(f"v_lshlrev_b32 v{T1}, 4, v{T1}")
    a.I(f"v_lshl_add_u32 v{VVB}, v{T0}, 8, v{T1}")
    a.I(f"v_add_u32 v{VVB}, {L_V}, v{VVB}")
    a.I(f"v_add_u32 v{VKN}, {L_K}, v{VL}")
    a.I("s_lshl_b32 s54, s64, 12")
    a.I(f"v_add_u32 v{VK}, s54, v{VL}")
    a.I(f"v_add_u32 v{VV}, s54, v{VVB}")
    a.I("s_lshl_b32 s54, s63, 2")
    a.I(f"s_add_u32 s54, s54, {M_CH}")
    a.I(f"v_mov_b32 v{VCH}, s54")
    a.I(f"v_mov_b32 v{VONE}, 1")
    a.I("s_mov_b32 s74, 0x0000ffff")
    a.I("s_mov_b32 s75, 0x0000ffff")
    a.I("s_mov_b32 s77, 0")
    a.I(f"s_lshl_b32 s66, s{S_QB}, 3")
    a.I("s_lshl_b32 s54, s63, 1")
    a.I("s_add_u32 s66, s66, s54")
    a.I("s_lshl_b32 s54, s63, 11")
    a.I(f"s_add_u32 s54, s54, {L_RING}")
    a.I(f"v_add_u32 v{T2}, s54, v{VL}")
    a.I(f"v_and_b32 v{T0}, 31, v1")
    a.I(f"v_cmp_eq_u32 vcc, 16, v{T0}")
    a.I(f"v_mov_b32 v{T1}, 0x3f803f80")
    a.I("s_nop 1")
    a.I(f"v_cndmask_b32 v{T0}, 0, v{T1}, vcc")
    for i in range(16):
        a.I(f"v_mov_b32 v{VB[0]+i}, v{T0}")
    lds_spin(a, M_KV, 4, T0, T1)
    stamp(a, "kvok")
    a.I(f"ds_read_b128 {vr(QA,4)}, v{T2}")
    a.I(f"ds_read_b128 {vr(QB,4)}, v{T2} offset:1024")
    for i in range(16):
        a.I(f"v_mov_b32 v{OA+i}, 0")
        a.I(f"v_mov_b32 v{OB+i}, 0")
    a.I("s_waitcnt lgkmcnt(0)")
    lds_add1(a, M_QRD, T0, T1)
    a.I("s_lshl_b32 s71, s64, 12")
    if STAMPS and OPT.get("fineattn"): a.I("s_mov_b32 s87, 24")
    a.I("s_mov_b32 s73, 0")

    def e_(S, i): return f"v_exp_f32 v{S+i}, v{S+i}"
    def c_(S, j): return f"v_cvt_pk_bf16_f32 v{S+j}, v{S+2*j}, v{S+2*j+1}"
    def tile(Sin, Sout, Qn, Kn, Ocur, Vcur_u0, Oprev, Vprev_u1, after_pv2, wait_s, after_s, wait_pv1, do_pv2=True, do_s=True):
        e = lambda i: e_(Sin, i)
        c = lambda j: c_(Sin, j)
        L = [e(0), e(1)]
        if do_pv2: L.append(MF(Oprev, Vprev_u1, Sout+4, Oprev))
        L += after_pv2
        L += [e(2), e(3), c(0), e(4), e(5), c(1)]
        L += wait_s
        if do_s: L.append(MF(Sout, Kn, Qn))
        L += after_s
        L += [e(6), e(7), c(2), e(8), e(9), c(3), e(10), e(11)]
        L += wait_pv1
        L.append(MF(Ocur, Vcur_u0, Sin, Ocur))
        L += [c(4), e(12), e(13), c(5), e(14), e(15), c(6), c(7)]
        return L
    fifo = []
    def dsr(tag, txt): fifo.append(tag); return txt
    def need(tag):
        idx = max(i for i, t in enumerate(fifo) if t == tag)
        return [f"s_waitcnt lgkmcnt({len(fifo) - 1 - idx})"]
    def vreads(t):
        kap = t & 1
        return ["s_mov_b64 exec, s[74:75]",
                dsr(("V", t), f"ds_read_b128 {vr(VB[kap],4)}, v{VV} offset:{t*1024}"),
                dsr(("V", t), f"ds_read_b128 {vr(VB[kap]+4,4)}, v{VV} offset:{t*1024+512}"),
                "s_mov_b64 exec, -1"]
    def kread(t): return [dsr(("K", t), f"ds_read_b128 {vr(KB[t & 1],4)}, v{VK} offset:{t*1024}")]
    a.raw(".p2align 6")
    a.L("L_aloop")
    if OPT.get("fineattn"):
        OPT["fine"] = 1; stamp_dyn(a); OPT["fine"] = 0
    a.I(f"v_add_u32 v{VK}, s71, v{VKN}")
    a.I(f"v_add_u32 v{VV}, s71, v{VVB}")
    L = kread(0) + vreads(0) + kread(1)
    L += need(("K", 0))
    L.append(MF(S0, KB[0], QA))
    a.I(J(L))
    a.I("s_nop 7")
    a.I("s_nop 3")
    body = []
    for t in range(4):
        kap = t & 1
        A = []
        Sin, Sout = S0, S1
        A += [e_(Sin, 0), e_(Sin, 1)]
        if t > 0: A.append(MF(OB, VB[kap^1]+4, Sout+4, OB))
        if t + 1 < 4: A += vreads(t+1)
        A += [e_(Sin, 2), e_(Sin, 3), c_(Sin, 0), e_(Sin, 4), e_(Sin, 5), c_(Sin, 1)]
        A.append(MF(Sout, KB[kap], QB))
        if t + 2 < 4: A += kread(t+2)
        A += [e_(Sin, 6), e_(Sin, 7), c_(Sin, 2), e_(Sin, 8), e_(Sin, 9), c_(Sin, 3), e_(Sin, 10), e_(Sin, 11)]
        A += need(("V", t))
        A.append(MF(OA, VB[kap], Sin, OA))
        A += [c_(Sin, 4), e_(Sin, 12), e_(Sin, 13), c_(Sin, 5), e_(Sin, 14), e_(Sin, 15), c_(Sin, 6), c_(Sin, 7)]
        Sin, Sout = S1, S0
        B = [e_(Sin, 0), e_(Sin, 1), MF(OA, VB[kap]+4, Sout+4, OA)]
        if t == 3:
            B += ["s_mov_b64 exec, 1", dsr(("G",), f"ds_add_rtn_u32 v{VNX}, v{VCH}, v{VONE}"), "s_mov_b64 exec, -1"]
        B += [e_(Sin, 2), e_(Sin, 3), c_(Sin, 0), e_(Sin, 4), e_(Sin, 5), c_(Sin, 1)]
        if t + 1 < 4:
            B += need(("K", t+1))
            B.append(MF(Sout, KB[kap^1], QA))
        B += [e_(Sin, 6), e_(Sin, 7), c_(Sin, 2), e_(Sin, 8), e_(Sin, 9), c_(Sin, 3), e_(Sin, 10), e_(Sin, 11)]
        B.append(MF(OB, VB[kap], Sin, OB))
        B += [c_(Sin, 4), e_(Sin, 12), e_(Sin, 13), c_(Sin, 5), e_(Sin, 14), e_(Sin, 15), c_(Sin, 6), c_(Sin, 7)]
        body += A + B
    a.I(J(body))
    a.I("s_waitcnt lgkmcnt(0)")
    a.I(f"v_readfirstlane_b32 s70, v{VNX}")
    a.I(MF(OB, VB[1]+4, S1+4, OB))
    a.I("s_add_u32 s70, s70, 2")
    a.I("s_lshl_b32 s71, s70, 12")
    a.I("s_cmp_lg_u32 s73, 0")
    a.I("s_cbranch_scc1 L_aloop2")
    a.I("s_mov_b32 s73, 1")
    a.I("s_waitcnt vmcnt(0)")
    a.I(f"s_cmp_ge_u32 s{S_W}, 4")
    a.I("s_cbranch_scc1 L_aloop1")
    lds_add1(a, M_HST, T0, T1)
    a.L("L_aloop1")
    lds_spin(a, M_KV, 8, T0, T1)
    a.L("L_aloop2")
    a.I("s_cmp_lt_u32 s70, 16")
    a.I("s_cbranch_scc1 L_aloop")
    a.I("s_waitcnt lgkmcnt(0)")
    a.I("s_nop 7")
    stamp(a, "aloop")
    a.I("s_lshl_b32 s54, s63, 2")
    a.I(f"s_add_u32 s55, s54, {M_PAIR}")
    a.I(f"s_add_u32 s76, s54, {M_PFLAG}")
    a.I(f"v_mov_b32 v{T0}, s55")
    a.I(f"v_mov_b32 v{T1}, 1")
    a.I("s_mov_b64 exec, 1")
    a.I(f"ds_add_rtn_u32 v{T2}, v{T0}, v{T1}")
    a.I("s_mov_b64 exec, -1")
    a.I("s_mul_i32 s54, s63, 4608")
    a.I(f"s_add_u32 s54, s54, {L_XCH}")
    a.I(f"v_add_u32 v{S0}, s54, v{VL}")
    a.I(f"v_lshlrev_b32 v{S0+1}, 2, v1")
    a.I(f"v_add_u32 v{S0+1}, s54, v{S0+1}")
    a.I("s_waitcnt lgkmcnt(0)")
    a.I(f"v_readfirstlane_b32 s55, v{T2}")
    a.I("s_nop 4")
    a.I("s_cmp_lg_u32 s55, 0")
    a.I("s_cbranch_scc1 L_second")
    lds_spin(a, M_FFN, 4, T0, T1)
    a.I(f"ds_write_b128 v{S0}, {vr(OA,4)}")
    a.I(f"ds_write_b128 v{S0}, {vr(OA+4,4)} offset:1024")
    a.I(f"ds_write_b128 v{S0}, {vr(OB,4)} offset:2048")
    a.I(f"ds_write_b128 v{S0}, {vr(OB+4,4)} offset:3072")
    a.I(f"ds_write_b32 v{S0+1}, v{OA+8} offset:4096")
    a.I(f"ds_write_b32 v{S0+1}, v{OB+8} offset:4352")
    a.I("s_waitcnt lgkmcnt(0)")
    lds_add1(a, "s76", T0, T1)
    a.I("s_waitcnt lgkmcnt(0)")
    stamp_flush(a)
    a.I("s_endpgm")
    a.L("L_second")
    lds_spin(a, "s76", 1, T0, T1)
    a.I(f"ds_read_b128 {vr(S1,4)}, v{S0}")
    a.I(f"ds_read_b128 {vr(S1+4,4)}, v{S0} offset:1024")
    a.I(f"ds_read_b128 {vr(S1+8,4)}, v{S0} offset:2048")
    a.I(f"ds_read_b128 {vr(S1+12,4)}, v{S0} offset:3072")
    a.I(f"ds_read_b32 v{T0}, v{S0+1} offset:4096")
    a.I(f"ds_read_b32 v{T1}, v{S0+1} offset:4352")
    a.I(f"v_mov_b32 v{T2}, {L_MISC + 128}")
    a.I(f"ds_read_b32 v{T2}, v{T2}")
    a.I("s_waitcnt lgkmcnt(0)")
    a.I(f"v_readfirstlane_b32 s{S_NONCE}, v{T2}")
    for i in range(8):
        a.I(f"v_add_f32 v{OA+i}, v{OA+i}, v{S1+i}")
        a.I(f"v_add_f32 v{OB+i}, v{OB+i}, v{S1+8+i}")
    a.I(f"v_add_f32 v{OA+8}, v{OA+8}, v{T0}")
    a.I(f"v_add_f32 v{OB+8}, v{OB+8}, v{T1}")
    a.L("L_fin")
    for O in (OA, OB):
        a.I(f"v_mov_b32 v{O+9}, v{O+8}")
    a.I("s_nop 1")
    for O in (OA, OB):
        a.I(f"v_permlane32_swap_b32 v{O+9}, v{O+8}")
    a.I("s_nop 1")
    slow_check(a, OA, OB, T0, T1)
    lds_add1(a, M_ATT, T0, T1)
    for O in (OA, OB):
        a.I(f"v_rcp_f32 v{O+9}, v{O+9}")
    a.I("s_nop 0")
    for O in (OA, OB):
        for i in range(8):
            a.I(f"v_mul_f32 v{O+i}, v{O+i}, v{O+9}")
    for O in (OA, OB):
        for j in range(4):
            a.I(f"v_cvt_pk_bf16_f32 v{O+j}, v{O+2*j}, v{O+2*j+1}")
    srd_off(a, RA, S_WS, OF, 2*MB)
    srd_off(a, RC, S_WS, FLG, FLG_SIZE)
    a.I("s_lshl_b32 s54, s66, 5")
    a.I(f"s_add_u32 s54, s54, s{S_HD}")
    a.I("s_lshl_b32 s55, s54, 10")
    a.I(f"buffer_store_dwordx4 {vr(OA,4)}, v{VL}, {S4(RA)}, s55 offen sc1")
    a.I("s_add_u32 s55, s55, 32768")
    a.I(f"buffer_store_dwordx4 {vr(OB,4)}, v{VL}, {S4(RA)}, s55 offen sc1")
    a.I("s_lshl_b32 s54, s54, 2")
    a.I(f"s_add_u32 s54, s54, {FO_OFF}")
    a.I(f"v_mov_b32 v{T0}, s{S_NONCE}")
    a.I(f"v_lshlrev_b32 v{T1}, 7, v1")
    a.I("s_waitcnt vmcnt(0)")
    a.I("s_mov_b64 exec, 3")
    a.I(f"buffer_store_dword v{T0}, v{T1}, {S4(RC)}, s54 offen sc1")
    a.I("s_mov_b64 exec, -1")
    stamp_flush(a)
    a.I("s_endpgm")
    slow_path(a, QA, QB, KB, VB, S0, S1, OA, OB, VL, T0, T1, T2)

def slow_check(a, OA, OB, T0, T1):
    if OPT.get("noslow"): return
    a.I(f"v_mul_f32 v{T0}, 0, v{OA}")
    for i in range(1, 8):
        a.I(f"v_fma_f32 v{T0}, v{OA+i}, 0, v{T0}")
    for i in range(8):
        a.I(f"v_fma_f32 v{T0}, v{OB+i}, 0, v{T0}")
    a.I(f"v_cmp_eq_f32 s[78:79], 0, v{T0}")
    a.I(f"s_mov_b32 s80, {hex(f2u(2.0**-60))}")
    a.I(f"s_mov_b32 s81, {hex(f2u(2.0**60))}")
    for O in (OA, OB):
        a.I(f"v_cmp_le_f32 s[82:83], s80, v{O+9}")
        a.I(f"v_cmp_ge_f32 vcc, s81, v{O+9}")
        a.I("s_nop 1")
        a.I("s_and_b64 s[78:79], s[78:79], s[82:83]")
        a.I("s_and_b64 s[78:79], s[78:79], vcc")
    if OPT.get("forceslow"):
        a.I("s_mov_b64 s[78:79], 0")
    a.I("s_cmp_eq_u64 s[78:79], -1")
    a.I("s_cbranch_scc1 L_ok")
    a.I("s_cmp_eq_u32 s77, 0")
    a.I("s_cbranch_scc1 L_slow")
    a.L("L_ok")

def slow_path(a, QA, QB, KB, VB, S0, S1, OA, OB, VL, T0, T1, T2):
    if OPT.get("noslow"): return
    K, V0, M, C = KB[0], VB[0], 108, 112
    a.L("L_slow")
    a.I("s_mov_b32 s77, 1")
    a.I(f"v_lshrrev_b32 v{T0}, 5, v1")
    a.I(f"v_and_b32 v{T1}, 15, v1")
    a.I(f"v_lshlrev_b32 v{T1}, 4, v{T1}")
    a.I(f"v_lshl_add_u32 v{T2}, v{T0}, 8, v{T1}")
    a.I(f"v_add_u32 v{T2}, {L_V}, v{T2}")
    a.I(f"v_mov_b32 v{M}, 0xff800000")
    a.I(f"v_mov_b32 v{M+1}, 0xff800000")
    a.I(f"v_add_u32 v{T0}, {L_K}, v{VL}")
    a.I("s_mov_b32 s73, 0")
    a.L("L_slow1")
    a.I(f"ds_read_b128 {vr(K,4)}, v{T0}")
    a.I("s_waitcnt lgkmcnt(0)")
    a.I(MF(S0, K, QA))
    a.I(MF(S1, K, QB))
    a.I("s_nop 15")
    for S, m in ((S0, M), (S1, M+1)):
        for i in range(0, 16, 2):
            a.I(f"v_max3_f32 v{m}, v{S+i}, v{S+i+1}, v{m}")
    a.I(f"v_add_u32 v{T0}, 1024, v{T0}")
    a.I("s_add_u32 s73, s73, 1")
    a.I("s_cmp_lt_u32 s73, 64")
    a.I("s_cbranch_scc1 L_slow1")
    for m in (M, M+1):
        a.I(f"v_mov_b32 v{T1}, v{m}")
        a.I("s_nop 1")
        a.I(f"v_permlane32_swap_b32 v{T1}, v{m}")
        a.I("s_nop 1")
        a.I(f"v_max_f32 v{m}, v{m}, v{T1}")
    for t in range(2):
        for i in range(16):
            a.I(f"v_sub_f32 v{C+16*t+i}, 0, v{M+t}")
    for i in range(16):
        a.I(f"v_mov_b32 v{OA+i}, 0")
        a.I(f"v_mov_b32 v{OB+i}, 0")
    a.I(f"v_add_u32 v{T0}, {L_K}, v{VL}")
    a.I("s_mov_b32 s73, 0")
    a.L("L_slow2")
    a.I(f"ds_read_b128 {vr(K,4)}, v{T0}")
    a.I("s_mov_b64 exec, s[74:75]")
    a.I(f"ds_read_b128 {vr(V0,4)}, v{T2}")
    a.I(f"ds_read_b128 {vr(V0+4,4)}, v{T2} offset:512")
    a.I("s_mov_b64 exec, -1")
    a.I("s_waitcnt lgkmcnt(0)")
    a.I(MF(S0, K, QA, C))
    a.I(MF(S1, K, QB, C+16))
    a.I("s_nop 15")
    for S, O in ((S0, OA), (S1, OB)):
        for i in range(16):
            a.I(f"v_exp_f32 v{S+i}, v{S+i}")
        a.I("s_nop 0")
        for j in range(8):
            a.I(f"v_cvt_pk_bf16_f32 v{S+j}, v{S+2*j}, v{S+2*j+1}")
        a.I("s_nop 1")
        a.I(MF(O, V0, S, O))
        a.I(MF(O, V0+4, S+4, O))
    a.I(f"v_add_u32 v{T0}, 1024, v{T0}")
    a.I(f"v_add_u32 v{T2}, 1024, v{T2}")
    a.I("s_add_u32 s73, s73, 1")
    a.I("s_cmp_lt_u32 s73, 64")
    a.I("s_cbranch_scc1 L_slow2")
    a.I("s_nop 15")
    a.I("s_branch L_fin")

def gen():
    a = Asm()
    prologue(a)
    producer(a, False)
    consumer(a)
    a.L("L_aux")
    producer(a, True)
    ffn2_p3(a)
    attention(a)
    a.L("L_end")
    a.I("s_endpgm")
    a.L("L_code_end")
    a.I("s_endpgm")
    return a

HEADER = open("cdna_kernels/" + NAME + ".s.ref").read().split("; Override launch")[0]

def build(path):
    a = gen()
    out = HEADER + f"; WSLAYOUT QF={QF} KF={KF} VF={VF} HF={HF} GO={GO} OF={OF}\n"
    out += f"; @launch grid=(256,1,1) block=(768,1,1) lds={LDS_TOTAL}\n"
    out += '.amdgcn_target "amdgcn-amd-amdhsa--gfx950"\n.text\n' + a.text()
    out += f""".section .rodata,"a"
.p2align 6
.amdhsa_kernel {KN}
  .amdhsa_next_free_vgpr 168
  .amdhsa_next_free_sgpr 102
  .amdhsa_accum_offset 168
  .amdhsa_group_segment_fixed_size 0
  .amdhsa_kernarg_size 96
  .amdhsa_user_sgpr_count 2
  .amdhsa_user_sgpr_kernarg_segment_ptr 1
  .amdhsa_system_sgpr_workgroup_id_x 1
.end_amdhsa_kernel
"""
    open(path, "w").write(out)
    probs = check_linear(a.lines, "k")
    if STAMPS: print("stamps:", ",".join(_stamp_names))
    return probs

if __name__ == "__main__":
    for x in list(sys.argv[1:]):
        if x.startswith("-D"):
            k, _, v = x[2:].partition("=")
            OPT[k] = int(v) if v else 1
            sys.argv.remove(x)
    if "--stamps" in sys.argv:
        STAMPS = True; sys.argv.remove("--stamps")
    path = sys.argv[1] if len(sys.argv) > 1 else "cdna_kernels/" + NAME + ".s"
    probs = build(path)
    for p in probs: print("HAZARD:", p)
    print("written", path, "problems:", len(probs))
```

```python
import sys, struct
from asmlib import *

NAME = "gated_mix__mha_block__dense_activation_squared_relu__prompt"
KN = NAME + "_kernel"
MB = 1 << 20
QF, KF, VF, HF, GO, OF, FLG = 4096, 2*MB + 8192, 4*MB + 12288, 6*MB + 16384, 12*MB, 14*MB + 4096, 16*MB + 8192
HF_SIZE = 86 * 65536
FA_OFF, FH_OFF, FO_OFF = 0, 4096, 8192
FLG_SIZE = 16384
QSCALE = 0.25 * 1.4426950408889634
STAMP_OFF = 32*MB
STAMPS = False
OPT = {}
def f2u(x): return struct.unpack("<I", struct.pack("<f", x))[0]

S_AX, S_WQKV, S_WO, S_W1, S_B1, S_W2, S_B2, S_GW, S_OUT, S_DBG, S_WS = 4, 6, 8, 12, 14, 16, 18, 20, 22, 24, 26
S_W = 3
S_RB, S_CG, S_START = 29, 30, 31
RA, RB, RC, RD = 32, 36, 40, 44
S_NONCE, S_HD, S_QB = 60, 61, 62
L_MISC, L_K, L_V, L_RING = 0, 1024, 1024 + 65536, 1024 + 131072
L_XCH = L_RING
M_KV, M_H, M_FA, M_QRD, M_HST, M_FFN, M_ATT, M_T1 = [L_MISC + 4*i for i in range(8)]
M_PAIR, M_PFLAG, M_CH = L_MISC + 64, L_MISC + 96, L_MISC + 160
LDS_TOTAL = 163840

def srd(a, dst, base, size):
    a.I(f"s_mov_b32 s{dst}, s{base}")
    a.I(f"s_mov_b32 s{dst+1}, s{base+1}")
    a.I(f"s_mov_b32 s{dst+2}, {size}")
    a.I(f"s_mov_b32 s{dst+3}, 0x20000")
def srd_off(a, dst, base, off, size):
    a.I(f"s_add_u32 s{dst}, s{base}, {off}")
    a.I(f"s_addc_u32 s{dst+1}, s{base+1}, 0")
    a.I(f"s_mov_b32 s{dst+2}, {size}")
    a.I(f"s_mov_b32 s{dst+3}, 0x20000")
def MF(d, A, B, c=None):
    cc = "0" if c is None else vr(c, 16)
    return f"v_mfma_f32_32x32x16_bf16 {vr(d,16)}, {vr(A,4)}, {vr(B,4)}, {cc}"
def S4(r): return f"s[{r}:{r+3}]"
def J(L): return "\n".join(L)

_stamp_names = []
def stamp(a, name):
    if not STAMPS: return
    if name not in _stamp_names: _stamp_names.append(name)
    i = _stamp_names.index(name)
    a.I("s_waitcnt lgkmcnt(0)")
    a.I("s_memtime s[98:99]")
    a.I("s_memrealtime s[100:101]")
    a.I("s_waitcnt lgkmcnt(0)")
    a.I(f"v_writelane_b32 v6, s98, {i}")
    a.I(f"v_writelane_b32 v7, s100, {i}")
def stamp_dyn(a):
    if not (STAMPS and OPT.get("fine")): return
    a.I("s_memtime s[98:99]")
    a.I("s_memrealtime s[100:101]")
    a.I("s_waitcnt lgkmcnt(0)")
    a.I("s_mov_b32 s88, m0")
    a.I("s_mov_b32 m0, s87")
    a.I("s_nop 3")
    a.I("v_writelane_b32 v6, s98, m0")
    a.I("v_writelane_b32 v7, s100, m0")
    a.I("s_mov_b32 m0, s88")
    a.I("s_add_u32 s87, s87, 1")
def stamp_flush(a):
    if not STAMPS: return
    a.I("s_waitcnt vmcnt(0)")
    stamp(a, "end")
    a.I(f"s_add_u32 s96, s{S_WS}, {STAMP_OFF}")
    a.I(f"s_addc_u32 s97, s{S_WS+1}, 0")
    a.I("s_mul_i32 s98, s2, 12")
    a.I(f"s_add_u32 s98, s98, s{S_W}")
    a.I("s_lshl_b32 s98, s98, 9")
    a.I("v_lshlrev_b32 v2, 2, v1")
    a.I("v_add_u32 v2, s98, v2")
    a.I("s_mov_b64 exec, -1")
    a.I("global_store_dword v2, v6, s[96:97]")
    a.I("global_store_dword v2, v7, s[96:97] offset:256")
    a.I("s_waitcnt vmcnt(0)")

def tr_lane_addr(a, dst, lane, tmp, tmp2, hrows, pitch):
    a.I(f"v_bfe_u32 v{tmp}, v{lane}, 2, 2")
    a.I(f"v_lshrrev_b32 v{tmp2}, 5, v{lane}")
    a.I(f"v_mul_u32_u24 v{tmp2}, {hrows}, v{tmp2}")
    a.I(f"v_add_u32 v{tmp}, v{tmp}, v{tmp2}")
    a.I(f"v_mul_u32_u24 v{dst}, {pitch}, v{tmp}")
    a.I(f"v_bfe_u32 v{tmp}, v{lane}, 4, 1")
    a.I(f"v_lshlrev_b32 v{tmp}, 1, v{tmp}")
    a.I(f"v_bfe_u32 v{tmp2}, v{lane}, 1, 1")
    a.I(f"v_add_u32 v{tmp}, v{tmp}, v{tmp2}")
    a.I(f"v_bfe_u32 v{tmp2}, v{lane}, 3, 1")
    a.I(f"v_lshlrev_b32 v{tmp2}, 2, v{tmp2}")
    a.I(f"v_xor_b32 v{tmp}, v{tmp}, v{tmp2}")
    a.I(f"v_lshl_add_u32 v{dst}, v{tmp}, 4, v{dst}")
    a.I(f"v_and_b32 v{tmp}, 1, v{lane}")
    a.I(f"v_lshl_add_u32 v{dst}, v{tmp}, 3, v{dst}")

def dma_w_lane_off(a, dst, lane, tmp, tmp2, pitch):
    a.I(f"v_lshrrev_b32 v{tmp}, 3, v{lane}")
    a.I(f"v_mul_u32_u24 v{dst}, {pitch}, v{tmp}")
    a.I(f"v_bfe_u32 v{tmp}, v{lane}, 4, 1")
    a.I(f"v_lshlrev_b32 v{tmp}, 2, v{tmp}")
    a.I(f"v_and_b32 v{tmp2}, 7, v{lane}")
    a.I(f"v_xor_b32 v{tmp}, v{tmp}, v{tmp2}")
    a.I(f"v_lshl_add_u32 v{dst}, v{tmp}, 4, v{dst}")

_lab = [0]
def lab(p):
    _lab[0] += 1
    return f"L_{p}{_lab[0]}"

def poll(a, srd_reg, nlanes, voff, vtmp, soff, slp=1):
    l0, l1 = lab("poll"), lab("polld")
    if nlanes < 64:
        a.I(f"s_mov_b32 exec_lo, {hex((1 << nlanes) - 1)}")
        a.I("s_mov_b32 exec_hi, 0")
    a.I("s_mov_b32 s50, 0x40000")
    a.L(l0)
    a.I(f"buffer_load_dword v{vtmp}, v{voff}, {S4(srd_reg)}, {soff} offen sc1")
    a.I("s_waitcnt vmcnt(0)")
    a.I(f"v_cmp_ne_u32 vcc, s{S_NONCE}, v{vtmp}")
    a.I(f"s_cbranch_vccz {l1}")
    a.I("s_sub_u32 s50, s50, 1")
    a.I("s_cmp_eq_u32 s50, 0")
    a.I(f"s_cbranch_scc1 {l1}")
    a.I(f"s_sleep {slp}")
    a.I(f"s_branch {l0}")
    a.L(l1)
    a.I("s_mov_b64 exec, -1")

def lds_spin(a, addr, target, vaddr, vtmp, slp=1):
    l0, l1 = lab("spin"), lab("spind")
    a.I(f"v_mov_b32 v{vaddr}, {addr}")
    a.I("s_mov_b32 s50, 0x400000")
    a.L(l0)
    a.I(f"ds_read_b32 v{vtmp}, v{vaddr}")
    a.I("s_waitcnt lgkmcnt(0)")
    a.I(f"v_readfirstlane_b32 s51, v{vtmp}")
    a.I("s_sub_u32 s50, s50, 1")
    a.I(f"s_cmp_ge_u32 s51, {target}")
    a.I(f"s_cbranch_scc1 {l1}")
    a.I("s_cmp_eq_u32 s50, 0")
    a.I(f"s_cbranch_scc1 {l1}")
    a.I(f"s_sleep {slp}")
    a.I(f"s_branch {l0}")
    a.L(l1)

def lds_add1(a, addr, vaddr, vtmp):
    a.I(f"v_mov_b32 v{vaddr}, {addr}")
    a.I(f"v_mov_b32 v{vtmp}, 1")
    a.I("s_mov_b64 exec, 1")
    a.I(f"ds_add_u32 v{vaddr}, v{vtmp}")
    a.I("s_mov_b64 exec, -1")

def flag_store(a, soff, v0_, v1_):
    a.I(f"v_mov_b32 v{v0_}, s{S_NONCE}")
    a.I(f"v_mov_b32 v{v1_}, 0")
    a.I("s_mov_b64 exec, 1")
    a.I(f"buffer_store_dword v{v0_}, v{v1_}, {S4(RC)}, {soff} offen sc1")
    a.I("s_mov_b64 exec, -1")

def prologue(a):
    a.raw(f".globl {KN}\n.p2align 8\n.type {KN},@function\n{KN}:")
    if STAMPS:
        a.I("s_memrealtime s[94:95]")
        a.I("s_memtime s[92:93]")
    a.I("s_cmp_ge_u32 s2, 256")
    a.I("s_cbranch_scc1 L_end")
    a.I("s_load_dwordx4 s[4:7], s[0:1], 0")
    a.I("s_load_dwordx2 s[8:9], s[0:1], 16")
    a.I("s_load_dwordx4 s[12:15], s[0:1], 32")
    a.I("s_load_dwordx4 s[16:19], s[0:1], 48")
    a.I("s_load_dwordx4 s[20:23], s[0:1], 64")
    a.I("s_load_dwordx4 s[24:27], s[0:1], 80")
    a.I("v_lshrrev_b32 v2, 6, v0")
    a.I("v_and_b32 v1, 63, v0")
    a.I(f"v_readfirstlane_b32 s{S_W}, v2")
    if STAMPS:
        a.I("v_mov_b32 v6, 0"); a.I("v_mov_b32 v7, 0")
    a.I("s_and_b32 s52, s2, 7")
    a.I("s_lshr_b32 s53, s2, 3")
    a.I("s_lshr_b32 s54, s52, 2")
    a.I("s_lshl_b32 s54, s54, 4")
    a.I("s_lshr_b32 s55, s53, 1")
    a.I(f"s_add_u32 s{S_RB}, s54, s55")
    a.I("s_and_b32 s54, s52, 3")
    a.I("s_lshl_b32 s54, s54, 1")
    a.I("s_and_b32 s55, s53, 1")
    a.I(f"s_add_u32 s{S_CG}, s54, s55")
    a.I(f"s_mul_i32 s54, s{S_CG}, 6")
    a.I(f"s_min_u32 s{S_START}, s54, 37")
    a.I(f"s_lshl_b32 s{S_HD}, s52, 2")
    a.I("s_and_b32 s54, s53, 3")
    a.I(f"s_add_u32 s{S_HD}, s{S_HD}, s54")
    a.I(f"s_lshr_b32 s{S_QB}, s2, 5")
    a.I("s_waitcnt lgkmcnt(0)")
    if STAMPS:
        _stamp_names.append("entry")
        a.I("v_writelane_b32 v6, s92, 0")
        a.I("v_writelane_b32 v7, s94, 0")
    stamp(a, "karg")
    a.I(f"s_cmp_ge_u32 s{S_W}, 8")
    a.I("s_cbranch_scc1 L_aux")
    a.I(f"s_cmp_lt_u32 s{S_W}, 4")
    a.I("s_cbranch_scc1 L_cons")

GATEPOS = 3
def producer(a, aux):
    T = "a" if aux else "p"
    if OPT.get("pprio"): a.I(f"s_setprio {OPT['pprio']}")
    a.I(f"s_sub_u32 s67, s{S_W}, 4")
    a.I(f"s_lshl_b32 s54, s{S_RB}, 16")
    srd_off(a, RA, S_AX, "s54", 65536)
    srd(a, RB, S_WQKV, 512*3072)
    a.I("v_lshrrev_b32 v2, 3, v1")
    a.I("s_lshl_b32 s54, s67, 3")
    a.I("v_add_u32 v2, s54, v2")
    a.I("v_lshrrev_b32 v3, 4, v1")
    a.I("s_and_b32 s54, s67, 1")
    a.I("s_lshl_b32 s54, s54, 2")
    a.I("v_add_u32 v3, s54, v3")
    a.I("v_and_b32 v4, 7, v1")
    a.I("v_xor_b32 v3, v3, v4")
    a.I("v_lshlrev_b32 v3, 4, v3")
    a.I("v_lshl_add_u32 v12, v2, 10, v3")
    a.I("s_lshl_b32 s68, s67, 10")
    def woffs(dst, pitch, segshift):
        for j in range(3):
            a.I(f"v_add_u32 v2, {64*j}, v1")
            a.I("v_mul_u32_u24 v3, 171, v2")
            a.I("v_lshrrev_b32 v3, 12, v3")
            a.I("v_mul_u32_u24 v4, 24, v3")
            a.I("v_sub_u32 v2, v2, v4")
            a.I("v_lshrrev_b32 v4, 3, v2")
            a.I("v_and_b32 v2, 7, v2")
            a.I("v_bfe_u32 v5, v3, 1, 1")
            a.I("v_lshlrev_b32 v5, 2, v5")
            a.I("v_xor_b32 v2, v2, v5")
            a.I("v_lshlrev_b32 v2, 4, v2")
            a.I(f"v_mul_u32_u24 v5, {pitch}, v3")
            a.I(f"v_lshl_add_u32 v5, v4, {segshift}, v5")
            a.I(f"v_add_u32 v{dst+j}, v5, v2")
    woffs(13, 3072, 10)
    a.I("s_mul_i32 s69, s67, 3072")
    a.I("s_add_u32 s69, s69, 0x10000")
    a.I(f"s_lshl_b32 s70, s{S_CG}, 7")
    a.I(f"s_mul_i32 s71, s67, {8*3072}")
    a.I("s_add_u32 s70, s70, s71")
    def pre_setup(item):
        k, c = item
        if k == "X":
            a.I(f"s_add_u32 m0, s68, {c*8192}")
            a.I(f"s_movk_i32 s81, {c*128}")
        else:
            a.I(f"s_add_u32 s82, s70, {c*64*3072}" if c < 8 else f"s_add_u32 s82, s71, {(c-8)*64*2752}")
            a.I(f"s_add_u32 m0, s69, {(c&3)*24576}")
    def issue_x(c, done=False):
        if OPT.get("p1noprod"): return
        if not done:
            a.I(f"s_add_u32 m0, s68, {c*8192}")
            a.I(f"s_movk_i32 s81, {c*128}")
        a.I(f"buffer_load_dwordx4 v12, {S4(RA)}, s81 offen lds")
    def issue_w(c, done=False):
        if OPT.get("p1noprod"): return
        if c < 8:
            if not done: a.I(f"s_add_u32 s82, s70, {c*64*3072}")
            vo, R = 13, RB
        else:
            if not done: a.I(f"s_add_u32 s82, s71, {(c-8)*64*2752}")
            vo, R = 16, RC
        for j in range(3):
            if not (done and j == 0):
                a.I(f"s_add_u32 m0, s69, {(c&3)*24576 + j*1024}")
                a.I("s_nop 0")
            a.I(f"buffer_load_dwordx4 v{vo+j}, {S4(R)}, s82 offen lds")
    sched = OPT.get("sched", 0)
    if sched == 0:
        pre = [("X",0),("W",0),("X",1),("W",1),("X",2),("W",2)]
        post = {c: ([("X",c+3)] if c+3 < 8 else []) + ([("W",c+3)] if c+3 < 16 else []) for c in range(16)}
    elif sched == 1:
        pre = [("X",0),("W",0),("X",1),("W",1),("X",2),("W",2),("X",3),("W",3),("X",4),("X",5),("X",6),("X",7)]
        post = {c: ([("W",c+3)] if (c >= 1 and c+3 < 16) else []) for c in range(16)}
    elif sched == 2:
        pre = [("X",0),("W",0),("X",1),("W",1),("X",2),("W",2),("X",3),("W",3)]
        post = {c: ([("W",c+3)] if (c >= 1 and c+3 < 16) else []) for c in range(16)}
        post[0] = [("X",4),("X",5),("X",6),("X",7)]
    fifo = []
    def do(item, done=False):
        k, c = item
        if k == "X":
            if OPT.get("skipx"): fifo.append((item, 0)); return
            issue_x(c, done); fifo.append((item, 1))
        else:
            if OPT.get("skipw") and c < 8: fifo.append((item, 0)); return
            issue_w(c, done); fifo.append((item, 3))
    for it in pre: do(it)
    if OPT.get("pfprod") and not aux:
        a.I(f"s_mov_b32 s89, s{S_W}")
        a.I(f"s_sub_u32 s{S_W}, s{S_W}, 4")
        l2_prefetch(a, 0)
        a.I(f"s_mov_b32 s{S_W}, s89")
        fifo.append(("pf", 2))
    stamp(a, "issued3")
    nside = 0
    if aux:
        nside = aux_side_issue(a)
    srd(a, RC, S_W1, 512*2752)
    if OPT.get("w1perm", 0):
        for j in range(3):
            a.I(f"v_add_u32 v2, {64*j}, v1")
            a.I("v_mul_u32_u24 v3, 171, v2")
            a.I("v_lshrrev_b32 v3, 12, v3")
            a.I("v_mul_u32_u24 v4, 24, v3")
            a.I("v_sub_u32 v2, v2, v4")
            a.I("v_lshrrev_b32 v4, 2, v2")
            a.I("v_and_b32 v2, 3, v2")
            a.I("v_bfe_u32 v5, v3, 1, 1")
            a.I("v_xor_b32 v4, v4, v5")
            a.I("v_add_u32 v5, 1, v4")
            a.I("v_cmp_eq_u32 vcc, 4, v4")
            a.I("s_nop 1")
            a.I("v_cndmask_b32_e64 v5, v5, 0, vcc")
            a.I("v_cmp_eq_u32 vcc, 5, v4")
            a.I("s_nop 1")
            a.I("v_cndmask_b32_e64 v5, v5, 5, vcc")
            a.I(f"v_add_u32 v19, s{S_START}, v3")
            a.I("v_and_b32 v19, 1, v19")
            a.I("v_cmp_eq_u32 vcc, 1, v19")
            a.I("s_nop 1")
            a.I("v_cndmask_b32 v4, v4, v5, vcc")
            a.I("v_lshlrev_b32 v4, 6, v4")
            a.I("v_lshl_add_u32 v4, v2, 4, v4")
            a.I("v_mul_u32_u24 v5, 2752, v3")
            a.I(f"v_add_u32 v{16+j}, v5, v4")
    else:
        woffs(16, 2752, 7)
    a.I(f"s_lshl_b32 s71, s{S_START}, 6")
    a.I(f"s_mul_i32 s72, s67, {8*2752}")
    a.I("s_add_u32 s71, s71, s72")
    fap = OPT.get("fapos", 2)
    assert fap >= 2
    for c in range(16):
        need = [("W", c)] + ([("X", c)] if c < 8 else [])
        idx = max(i for i, (it, _) in enumerate(fifo) if it in need)
        allow = sum(k for _, k in fifo[idx+1:])
        if c == 0 and STAMPS and OPT.get("fine"): a.I("s_mov_b32 s87, 24")
        stamp_dyn(a)
        early = OPT.get("early", 1) and not STAMPS and len(post[c]) > 0 and not OPT.get("p1noprod")
        if early:
            pre_setup(post[c][0])
        a.I(f"s_waitcnt vmcnt({allow})")
        stamp_dyn(a)
        a.I("s_barrier")
        for n_, it in enumerate(post[c]): do(it, early and n_ == 0)
        if aux and c == 2:
            fifo.append(("side", aux_side_loads(a)))
        if aux and c == 6:
            aux_gate(a)
            fifo.append(("g", 1))
        if aux and c == 7:
            fifo.append(("nonce", aux_nonce_issue(a)))
        if aux and c == 10:
            aux_zero_misc(a)
        if aux and c == 11:
            aux_nonce_take(a)
        if aux and c == 12:
            aux_share_nonce(a)
        if aux and c == 15:
            aux_fa_probe(a)
        if aux and c == 9 + fap:
            aux_publish_fa(a)
    a.I("s_barrier")
    if aux:
        aux_after_e1(a)
    else:
        if OPT.get("pprio"): a.I("s_setprio 0")
        a.I("s_branch L_attn")

def l2_prefetch(a, part):
    a.I("s_and_b32 s52, s2, 7")
    a.I("s_lshr_b32 s53, s2, 3")
    a.I("s_lshl_b32 s54, s53, 4")
    a.I(f"s_lshl_b32 s55, s{S_W}, 2")
    a.I("s_add_u32 s56, s54, s55")
    if part == 2:
        a.I(f"s_cmp_lg_u32 s{S_W}, 0")
        a.I("s_cbranch_scc1 L_pf2")
        srd(a, RC, S_WQKV, 512*3072)
        a.I("s_lshl_b32 s54, s53, 3")
        a.I("s_add_u32 s54, s54, 256")
        a.I("s_mul_i32 s54, s54, 3072")
        a.I("s_and_b32 s55, s52, 3")
        a.I("s_lshl_b32 s55, s55, 8")
        a.I("s_add_u32 s54, s54, s55")
        a.I("v_lshrrev_b32 v21, 3, v1")
        a.I("v_mul_u32_u24 v21, 3072, v21")
        a.I("v_bfe_u32 v22, v1, 1, 2")
        a.I("v_min_u32 v22, 2, v22")
        a.I("v_lshl_add_u32 v21, v22, 10, v21")
        a.I("v_and_b32 v22, 1, v1")
        a.I("v_lshl_add_u32 v21, v22, 7, v21")
        a.I(f"buffer_load_dword v25, v21, {S4(RC)}, s54 offen")
        a.L("L_pf2")
    elif part == 0:
        G = OPT.get("pfg", 128)
        sh = {128: 7, 64: 6, 32: 5}[G]
        srd(a, RC, S_AX, 2*MB)
        a.I("s_lshr_b32 s54, s52, 2")
        a.I("s_lshl_b32 s54, s54, 10")
        a.I("s_lshl_b32 s55, s53, 5")
        a.I("s_add_u32 s54, s54, s55")
        a.I(f"s_lshl_b32 s55, s{S_W}, 3")
        a.I("s_add_u32 s54, s54, s55")
        a.I("s_lshl_b32 s54, s54, 10")
        a.I(f"v_lshlrev_b32 v20, {sh}, v1")
        for i in range(0 if OPT.get("nopfx") else 8192 // (64*G)):
            a.I(f"buffer_load_dword v24, v20, {S4(RC)}, s54 offen")
            a.I(f"s_add_u32 s54, s54, {64*G}")
        srd(a, RC, S_WQKV, 512*3072)
        a.I("s_mul_i32 s54, s56, 3072")
        a.I("s_and_b32 s55, s52, 3")
        a.I("s_lshl_b32 s55, s55, 8")
        a.I("s_add_u32 s54, s54, s55")
        per = 256 // G
        a.I("v_lshrrev_b32 v21, 4, v1")
        a.I("v_mul_u32_u24 v21, 3072, v21")
        a.I("v_and_b32 v22, 15, v1")
        if G == 64:
            a.I("v_lshrrev_b32 v23, 2, v22")
            a.I("v_min_u32 v23, 2, v23")
            a.I("v_lshl_add_u32 v21, v23, 10, v21")
            a.I("v_and_b32 v22, 3, v22")
            a.I("v_lshl_add_u32 v21, v22, 6, v21")
            a.I(f"buffer_load_dword v25, v21, {S4(RC)}, s54 offen")
        elif G == 32:
            a.I("v_lshrrev_b32 v23, 3, v22")
            a.I("v_lshl_add_u32 v21, v23, 10, v21")
            a.I("v_and_b32 v22, 7, v22")
            a.I("v_lshl_add_u32 v21, v22, 5, v21")
            a.I(f"buffer_load_dword v25, v21, {S4(RC)}, s54 offen")
            a.I(f"buffer_load_dword v25, v21, {S4(RC)}, s54 offen offset:2048")
        else:
            a.I("v_lshrrev_b32 v23, 1, v22")
            a.I("v_min_u32 v23, 2, v23")
            a.I("v_lshl_add_u32 v21, v23, 10, v21")
            a.I("v_and_b32 v22, 1, v22")
            a.I("v_lshl_add_u32 v21, v22, 7, v21")
            a.I(f"buffer_load_dword v25, v21, {S4(RC)}, s54 offen")
    else:
        a.I(f"s_cmp_ge_u32 s{S_W}, 2")
        a.I("s_cbranch_scc1 L_pf1")
        srd(a, RC, S_W1, 512*2752)
        a.I("s_and_b32 s55, s52, 3")
        a.I("s_mul_i32 s55, s55, 12")
        a.I("s_min_u32 s55, s55, 31")
        a.I("s_lshl_b32 s55, s55, 6")
        a.I("s_lshl_b32 s54, s53, 4")
        a.I(f"s_lshl_b32 s56, s{S_W}, 3")
        a.I("s_add_u32 s54, s54, s56")
        a.I("s_mul_i32 s54, s54, 2752")
        a.I("s_add_u32 s54, s54, s55")
        a.I("v_lshrrev_b32 v21, 3, v1")
        a.I("v_mul_u32_u24 v21, 2752, v21")
        a.I("v_and_b32 v22, 7, v1")
        a.I("v_lshl_add_u32 v21, v22, 7, v21")
        a.I(f"buffer_load_dword v26, v21, {S4(RC)}, s54 offen")
        a.L("L_pf1")

def consumer(a):
    a.L("L_cons")
    H, XA, WA, ACC, B1, FA, FB = 2, 8, 12, 32, 80, 104, 136
    if not OPT.get("nopf") and not OPT.get("pflate") and not OPT.get("pfprod"):
        l2_prefetch(a, OPT.get("pfmode", 0))
    a.I(f"v_lshrrev_b32 v{H}, 5, v1")
    a.I(f"s_and_b32 s63, s{S_W}, 1")
    a.I(f"s_lshr_b32 s64, s{S_W}, 1")
    srd(a, RD, S_B1, 2752)
    a.I(f"s_add_u32 s54, s{S_START}, s63")
    a.I("s_lshl_b32 s54, s54, 6")
    a.I(f"v_lshlrev_b32 v3, 3, v{H}")
    for s in range(3):
        for q in range(4):
            r = B1 + (s*4+q)*2
            a.I(f"buffer_load_dwordx2 v[{r}:{r+1}], v3, {S4(RD)}, s54 offen offset:{s*128+q*16}")
    for i in range(48):
        a.I(f"v_mov_b32 v{ACC+i}, 0")
    a.I("v_and_b32 v16, 31, v1")
    a.I("v_bfe_u32 v17, v1, 1, 3")
    a.I("s_lshl_b32 s54, s64, 5")
    a.I("v_add_u32 v16, s54, v16")
    a.I("v_lshlrev_b32 v16, 7, v16")
    a.I(f"v_xor_b32 v17, v17, v{H}")
    for ks in range(4):
        a.I(f"v_xor_b32 v18, {2*ks}, v17")
        a.I(f"v_lshl_add_u32 v{XA+ks}, v18, 4, v16")
    tr_lane_addr(a, WA, 1, 16, 17, 8, 384)
    a.I("s_lshl_b32 s54, s63, 6")
    a.I(f"v_xor_b32 v{WA}, s54, v{WA}")
    a.I(f"v_add_u32 v{WA}, 0x10000, v{WA}")
    a.I(f"v_add_u32 v{WA+1}, 49152, v{WA}")
    WF1 = [14, 15, 28, 29, 30, 31]
    if OPT.get("w1perm", 0):
        a.I("v_bfe_u32 v16, v1, 2, 2")
        a.I(f"v_lshl_add_u32 v17, v{H}, 3, v16")
        a.I("v_mul_u32_u24 v17, 384, v17")
        a.I("v_bfe_u32 v18, v1, 4, 1")
        a.I("v_lshlrev_b32 v18, 1, v18")
        a.I("v_bfe_u32 v19, v1, 1, 1")
        a.I("v_add_u32 v18, v18, v19")
        a.I("v_lshl_add_u32 v17, v18, 4, v17")
        a.I("v_and_b32 v18, 1, v1")
        a.I("v_lshl_add_u32 v17, v18, 3, v17")
        a.I("v_add_u32 v17, 0x10000, v17")
        a.I(f"v_add_u32 v18, s{S_START}, v16")
        a.I("v_and_b32 v18, 1, v18")
        a.I("v_cmp_eq_u32 vcc, 1, v18")
        a.I("v_bfe_u32 v19, v1, 3, 1")
        inv = [4, 0, 1, 2, 3, 5]
        for s_ in range(3):
            a.I(f"s_cmp_eq_u32 s63, 0")
            a.I(f"s_cselect_b32 s54, {2*s_}, {2*s_+1}")
            a.I(f"s_cselect_b32 s55, {inv[2*s_]}, {inv[2*s_+1]}")
            a.I(f"v_mov_b32 v26, s54")
            a.I(f"v_mov_b32 v27, s55")
            a.I(f"v_cndmask_b32 v26, v26, v27, vcc")
            a.I(f"v_xor_b32 v26, v26, v19")
            a.I(f"v_lshl_add_u32 v{WF1[s_]}, v26, 6, v17")
            a.I(f"v_add_u32 v{WF1[3+s_]}, 49152, v{WF1[s_]}")

    def reads(b, G, F, qkv=True):
        out = []
        if OPT.get("p1nocons"): return ["s_nop 0"]
        wv = WA + (b >> 1)
        for l in range(2):
            ks = 2*G + l
            out.append(f"ds_read_b128 {vr(F+4*l,4)}, v{XA+ks} offset:{b*8192}")
            for s in range(3):
                for rd in range(2):
                    if qkv or not OPT.get("w1perm", 0):
                        out.append(f"ds_read_b64_tr_b16 {vr(F+8+12*l+4*s+2*rd,2)}, v{wv} offset:{(b&1)*24576 + ks*6144 + rd*1536 + s*128}")
                    else:
                        out.append(f"ds_read_b64_tr_b16 {vr(F+8+12*l+4*s+2*rd,2)}, v{WF1[3*(b>>1)+s]} offset:{(b&1)*24576 + ks*6144 + rd*1536}")
        return out
    def mfmas(F, qkv):
        out = []
        if OPT.get("p1nocons") or OPT.get("p1nomfma"): return ["s_nop 0"]
        for l in range(2):
            for s in range(3):
                X, W = F+4*l, F+8+12*l+4*s
                out.append(MF(ACC+16*s, X, W, ACC+16*s) if (qkv and s == 2) else MF(ACC+16*s, W, X, ACC+16*s))
        return out
    def inter(mf, rd):
        out = []
        per = OPT.get("iper", [4, 4, 3, 3, 0, 0])
        if len(mf) != 6: return mf + rd
        k = 0
        for i, m in enumerate(mf):
            out.append(m)
            out += rd[k:k+per[i]]
            k += per[i]
        assert k >= len(rd)
        return out
    def stage_loop(tag, qkv):
        a.I("s_mov_b32 s65, 0x8000")
        a.L(f"L_loop_{tag}")
        fap = OPT.get("fapos", 2)
        for b in range(4):
            a.I("s_waitcnt lgkmcnt(0)")
            a.I(J(inter(mfmas(FA, qkv), reads(b, 1, FB, qkv))))
            if (not qkv) and b == (fap & 3):
                if fap >= 4:
                    a.I("s_cmp_lt_i32 s65, 0")
                    a.I(f"s_cbranch_scc0 L_nodrain")
                a.I("s_waitcnt vmcnt(0)")
                if fap >= 4: a.L("L_nodrain")
            a.I("s_waitcnt lgkmcnt(0)")
            if b == 3:
                if not qkv:
                    a.I("s_cmp_lt_i32 s65, 0")
                    a.I(f"s_cbranch_scc1 L_last_{tag}")
                for ks in range(4):
                    a.I(f"v_add_u32 v{XA+ks}, s65, v{XA+ks}")
            stamp_dyn(a)
            a.I("s_barrier")
            stamp_dyn(a)
            if qkv and b == 3:
                a.I("s_cmp_lt_i32 s65, 0")
                a.I("s_cbranch_scc1 L_qtail")
            a.I(J(inter(mfmas(FB, qkv), reads((b+1) % 4, 0, FA, qkv))))
        if qkv:
            a.I("s_mov_b32 s65, 0xffff8000")
            a.I(f"s_branch L_loop_{tag}")
            a.L("L_qtail")
            a.I(J(inter(mfmas(FB, qkv), reads(0, 0, FA, False))))
        else:
            a.I("s_mov_b32 s65, 0xffff8000")
            a.I(f"s_branch L_loop_{tag}")
        if not qkv:
            a.L(f"L_last_{tag}")
            a.I(J(mfmas(FB, qkv)))

    if OPT.get("pflate"):
        for i in range(OPT["pflate"]):
            a.I("s_sleep 8")
        l2_prefetch(a, 0)
    if OPT.get("pfw1early"):
        l2_prefetch(a, 1)
    a.I("s_barrier")
    stamp(a, "B0")
    if STAMPS and OPT.get("fine"): a.I("s_mov_b32 s87, 24")
    if not OPT.get("nopf") and not OPT.get("pfw1early"):
        l2_prefetch(a, 1)
    a.I(J(reads(0, 0, FA)))
    stage_loop("q", True)
    stamp(a, "qloop")
    srd(a, RA, S_WS, VF + 2*MB)
    a.I(f"s_lshl_b32 s54, s{S_RB}, 1")
    a.I("s_add_u32 s54, s54, s64")
    a.I(f"s_lshl_b32 s55, s{S_CG}, 2")
    a.I("s_lshl_b32 s56, s63, 1")
    a.I("s_add_u32 s55, s55, s56")
    a.I("s_lshl_b32 s55, s55, 6")
    a.I("s_add_u32 s54, s54, s55")
    a.I("s_lshl_b32 s54, s54, 10")
    a.I("v_lshlrev_b32 v3, 4, v1")
    a.I("v_bfe_u32 v4, v1, 4, 1")
    a.I("v_lshlrev_b32 v4, 16, v4")
    a.I(f"v_lshl_add_u32 v4, v{H}, 8, v4")
    a.I("v_and_b32 v5, 15, v1")
    a.I("v_lshl_add_u32 v4, v5, 4, v4")
    a.I(f"s_mov_b32 s56, {hex(f2u(QSCALE))}")
    a.I("s_waitcnt vmcnt(0)")
    a.I("s_nop 4")
    for idx, s in enumerate((1, 2, 0)):
        d = ACC + 16*s
        if s == 0:
            for i in range(16):
                a.I(f"v_mul_f32 v{d+i}, s56, v{d+i}")
        for j in range(8):
            a.I(f"v_cvt_pk_bf16_f32 v{d+j}, v{d+2*j}, v{d+2*j+1}")
        if s < 2:
            for hh in range(2):
                a.I(f"s_add_u32 s55, s54, {(KF if s else QF) + hh*65536}")
                a.I(f"buffer_store_dwordx4 {vr(d+4*hh,4)}, v3, {S4(RA)}, s55 offen sc1")
        else:
            a.I(f"s_add_u32 s55, s54, {VF}")
            for u in range(2):
                a.I(f"buffer_store_dwordx4 {vr(d+4*u,4)}, v4, {S4(RA)}, s55 offen offset:{u*512} sc1")
    a.I("s_nop 1")
    for s in range(3):
        for q in range(4):
            r = B1 + (s*4+q)*2
            d = ACC + s*16 + q*4
            a.I(f"v_lshlrev_b32 v{d}, 16, v{r}")
            a.I(f"v_and_b32 v{d+1}, 0xffff0000, v{r}")
            a.I(f"v_lshlrev_b32 v{d+2}, 16, v{r+1}")
            a.I(f"v_and_b32 v{d+3}, 0xffff0000, v{r+1}")
    stage_loop("f", False)
    a.I("s_barrier")
    stamp(a, "floop")
    srd_off(a, RA, S_WS, HF, HF_SIZE)
    a.I(f"s_lshl_b32 s54, s{S_RB}, 1")
    a.I("s_add_u32 s54, s54, s64")
    a.I(f"s_add_u32 s55, s{S_START}, s63")
    a.I("s_lshl_b32 s55, s55, 7")
    a.I("s_add_u32 s54, s54, s55")
    a.I("s_lshl_b32 s54, s54, 10")
    a.I("v_lshlrev_b32 v3, 4, v1")
    a.I("s_nop 4")
    for s in range(3):
        d = ACC + 16*s
        for i in range(16):
            a.I(f"v_max_f32 v{d+i}, 0, v{d+i}")
        for i in range(16):
            a.I(f"v_mul_f32 v{d+i}, v{d+i}, v{d+i}")
        for j in range(8):
            a.I(f"v_cvt_pk_bf16_f32 v{d+j}, v{d+2*j}, v{d+2*j+1}")
        for uu in range(2):
            a.I(f"s_add_u32 s55, s54, {(4*s+uu)*65536}")
            a.I(f"buffer_store_dwordx4 {vr(d+4*uu,4)}, v3, {S4(RA)}, s55 offen sc1")
    a.I("s_nop 1")
    a.I("s_branch L_attn")

def aux_side_issue(a):
    a.I("s_sub_u32 s66, s67, 4")
    a.I(f"s_lshl_b32 s54, s2, 2")
    a.I("s_or_b32 s54, s54, s66")
    a.I("s_cmp_lg_u32 s54, 0")
    a.I("s_cbranch_scc1 L_aux1")
    srd(a, RD, S_DBG, 256)
    a.I("s_memrealtime s[54:55]")
    a.I("s_waitcnt lgkmcnt(0)")
    a.I("s_or_b32 s85, s54, 1")
    a.I("v_mov_b32 v8, s85")
    a.I("v_mov_b32 v10, 0")
    a.I("s_mov_b64 exec, 1")
    a.I(f"buffer_store_dword v8, v10, {S4(RD)}, 0 offen sc1")
    a.I("s_mov_b64 exec, -1")
    a.L("L_aux1")
    a.I(f"s_lshl_b32 s54, s{S_RB}, 6")
    a.I(f"s_lshl_b32 s55, s{S_CG}, 3")
    a.I("s_add_u32 s54, s54, s55")
    a.I("s_lshl_b32 s55, s66, 1")
    a.I("s_add_u32 s86, s54, s55")
    return 0

def aux_side_loads(a):
    a.I("s_lshl_b32 s54, s86, 10")
    srd_off(a, RD, S_AX, "s54", 2048)
    a.I("v_and_b32 v2, 31, v1")
    a.I("v_lshlrev_b32 v2, 5, v2")
    a.I("v_lshrrev_b32 v3, 5, v1")
    a.I("v_lshl_add_u32 v4, v3, 10, v2")
    for i in range(2):
        a.I(f"buffer_load_dwordx4 {vr(32+4*i,4)}, v4, {S4(RD)}, 0 offen offset:{16*i}")
    srd(a, RD, S_GW, 1024)
    for i in range(2):
        a.I(f"buffer_load_dwordx4 {vr(40+4*i,4)}, v2, {S4(RD)}, 0 offen offset:{16*i}")
    n = 4
    if OPT.get("codepf", 1):
        a.I("s_getpc_b64 s[52:53]")
        a.L("L_pc")
        a.I(f"s_sub_u32 s52, s52, L_pc-{KN}")
        a.I("s_subb_u32 s53, s53, 0")
        a.I("s_mul_i32 s54, s66, 6144")
        a.I("v_lshlrev_b32 v5, 7, v1")
        a.I("v_add_u32 v5, s54, v5")
        a.I(f"v_min_u32 v5, L_code_end-{KN}-4, v5")
        a.I("s_mov_b32 exec_hi, 0xffff")
        a.I("global_load_dword v116, v5, s[52:53]")
        a.I("s_mov_b64 exec, -1")
        n += 1
    return n

def aux_nonce_issue(a):
    srd(a, RD, S_DBG, 256)
    a.I("v_mov_b32 v10, 0")
    a.I(f"buffer_load_dword v8, v10, {S4(RD)}, 0 offen sc1")
    return 1

def aux_nonce_take(a):
    a.I(f"v_readfirstlane_b32 s{S_NONCE}, v8")
    a.I("s_mov_b32 s50, 0x40000")
    a.L("L_nonce")
    a.I(f"s_cmp_lg_u32 s{S_NONCE}, 0")
    a.I("s_cbranch_scc1 L_nonce_ok")
    a.I("s_sub_u32 s50, s50, 1")
    a.I("s_cmp_eq_u32 s50, 0")
    a.I("s_cbranch_scc1 L_nonce_ok")
    srd(a, RD, S_DBG, 256)
    a.I(f"buffer_load_dword v8, v10, {S4(RD)}, 0 offen sc1")
    a.I("s_waitcnt vmcnt(0)")
    a.I(f"v_readfirstlane_b32 s{S_NONCE}, v8")
    a.I("s_branch L_nonce")
    a.L("L_nonce_ok")

def aux_gate(a):
    if OPT.get("p1noprod"): a.I("s_waitcnt vmcnt(0)")
    a.I("v_mov_b32 v24, 0")
    for i in range(8):
        a.I(f"v_dot2c_f32_bf16 v24, v{32+i}, v{40+i}")
    a.I("s_nop 3")
    for sh in (1, 2, 4, 8):
        a.I(f"v_add_f32_dpp v24, v24, v24 row_shr:{sh} row_mask:0xf bank_mask:0xf")
        a.I("s_nop 1")
    a.I("v_add_f32_dpp v24, v24, v24 row_bcast:15 row_mask:0xa bank_mask:0xf")
    a.I("s_nop 1")
    a.I("v_cvt_pk_bf16_f32 v24, v24, v24")
    a.I("v_and_b32 v24, 0xffff0000, v24")
    a.I(f"v_mul_f32 v24, {hex(f2u(-1.4426950408889634))}, v24")
    a.I("v_exp_f32 v24, v24")
    a.I("s_nop 0")
    a.I("v_add_f32 v24, 1.0, v24")
    a.I("v_rcp_f32 v24, v24")
    a.I("s_nop 0")
    a.I("v_cvt_pk_bf16_f32 v24, v24, v24")
    a.I("v_and_b32 v24, 0xffff0000, v24")
    srd_off(a, RD, S_WS, GO, 8192)
    a.I("s_lshl_b32 s54, s86, 2")
    a.I("v_lshrrev_b32 v3, 5, v1")
    a.I("v_lshlrev_b32 v3, 2, v3")
    a.I("s_mov_b32 s52, 0x80000000")
    a.I("s_mov_b32 s53, 0x80000000")
    a.I("s_mov_b64 exec, s[52:53]")
    a.I(f"buffer_store_dword v24, v3, {S4(RD)}, s54 offen sc1")
    a.I("s_mov_b64 exec, -1")

def aux_publish_fa(a):
    a.I("s_cmp_lg_u32 s66, 0")
    a.I("s_cbranch_scc1 L_aux2")
    srd_off(a, RD, S_WS, FLG, FLG_SIZE)
    a.I(f"s_lshl_b32 s54, s{S_CG}, 7")
    a.I(f"s_lshl_b32 s55, s{S_RB}, 2")
    a.I("s_add_u32 s54, s54, s55")
    a.I(f"s_add_u32 s54, s54, {FA_OFF}")
    a.I(f"v_mov_b32 v8, s{S_NONCE}")
    a.I(f"v_mov_b32 v10, 0")
    a.I("s_mov_b64 exec, 1")
    a.I(f"buffer_store_dword v8, v10, {S4(RD)}, s54 offen sc1")
    a.I("s_mov_b64 exec, -1")
    stamp(a, "FApub")
    a.L("L_aux2")

def aux_zero_misc(a):
    a.I("s_cmp_lg_u32 s66, 1")
    a.I("s_cbranch_scc1 L_aux3")
    a.I(f"v_lshlrev_b32 v10, 2, v1")
    if L_MISC: a.I(f"v_add_u32 v10, {L_MISC}, v10")
    a.I("v_mov_b32 v9, 0")
    a.I("ds_write_b32 v10, v9")
    a.I("s_waitcnt lgkmcnt(0)")
    a.I("v_mov_b32 v10, 0")
    a.L("L_aux3")

def aux_share_nonce(a):
    a.I("s_cmp_lg_u32 s66, 0")
    a.I("s_cbranch_scc1 L_aux4")
    a.I(f"v_mov_b32 v9, {L_MISC + 128}")
    a.I(f"v_mov_b32 v11, s{S_NONCE}")
    a.I("ds_write_b32 v9, v11")
    a.I("s_waitcnt lgkmcnt(0)")
    a.L("L_aux4")

def aux_fa_probe(a):
    srd_off(a, RC, S_WS, FLG, FLG_SIZE)
    a.I(f"s_lshr_b32 s88, s{S_HD}, 2")
    a.I("s_lshl_b32 s88, s88, 7")
    a.I(f"s_add_u32 s88, s88, {FA_OFF}")
    a.I("v_lshlrev_b32 v9, 2, v1")
    a.I("s_mov_b32 exec_hi, 0")
    a.I(f"buffer_load_dword v11, v9, {S4(RC)}, s88 offen sc1")
    a.I("s_mov_b64 exec, -1")

def aux_after_e1(a):
    a.I("s_mov_b32 s67, s66")
    a.I("s_setprio 3")
    stamp(a, "E2")
    a.I("s_mov_b32 exec_hi, 0")
    a.I("s_waitcnt vmcnt(0)")
    a.I(f"v_cmp_ne_u32 vcc, s{S_NONCE}, v11")
    a.I("s_mov_b64 exec, -1")
    a.I("s_cbranch_vccz L_aux5")
    poll(a, RC, 32, 9, 11, "s88", OPT.get("faslp", 1))
    a.L("L_aux5")
    stamp(a, "FAok")
    VL = 4
    a.I(f"v_lshlrev_b32 v{VL}, 4, v1")
    a.I(f"s_lshl_b32 s54, s{S_HD}, 16")
    a.I(f"s_add_u32 s55, s54, {KF}")
    srd_off(a, RA, S_WS, "s55", 65536)
    a.I(f"s_add_u32 s55, s54, {VF}")
    srd_off(a, RB, S_WS, "s55", 65536)
    a.I(f"s_add_u32 s55, s54, {QF}")
    srd_off(a, RD, S_WS, "s55", 65536)
    a.I(f"s_lshl_b32 s54, s{S_QB}, 3")
    a.I("s_lshl_b32 s55, s67, 1")
    a.I("s_add_u32 s54, s54, s55")
    a.I("s_lshl_b32 s54, s54, 10")
    a.I("s_lshl_b32 s55, s67, 11")
    a.I(f"s_add_u32 s55, s55, {L_RING}")
    for t in range(2):
        a.I(f"s_add_u32 m0, s55, {t*1024}")
        a.I(f"s_add_u32 s56, s54, {t*1024}")
        a.I(f"buffer_load_dwordx4 v{VL}, {S4(RD)}, s56 offen sc1 lds")
    a.I("s_lshl_b32 s54, s67, 10")
    def kvchunks(cs):
        for c in cs:
            a.I(f"s_add_u32 s55, s54, {c*4096}")
            a.I(f"s_add_u32 m0, s55, {L_K}")
            a.I(f"s_add_u32 s56, s55, {L_V}")
            a.I(f"buffer_load_dwordx4 v{VL}, {S4(RA)}, s55 offen sc1 lds")
            a.I("s_mov_b32 m0, s56")
            a.I("s_nop 0")
            a.I(f"buffer_load_dwordx4 v{VL}, {S4(RB)}, s55 offen sc1 lds")
    kvchunks(range(0, 2))
    kvchunks(range(2, 4))
    a.I("s_waitcnt vmcnt(4)")
    lds_add1(a, M_KV, 8, 9)
    stamp(a, "KV1")
    kvchunks(range(4, 16))
    a.I("s_lshr_b32 s53, s2, 3")
    srd(a, RA, S_W2, 1376*1024)
    srd(a, RB, S_WO, 512*1024)
    a.I("s_mul_i32 s54, s53, 44032")
    a.I("s_lshl_b32 s55, s67, 10")
    a.I("s_add_u32 s54, s54, s55")
    a.I("s_waitcnt vmcnt(0)")
    lds_add1(a, M_KV, 8, 9)
    stamp(a, "KV2")
    a.I("v_lshlrev_b32 v10, 7, v1")
    a.I("s_lshl_b32 s55, s67, 13")
    a.I("s_mul_i32 s54, s53, 44032")
    a.I("s_add_u32 s54, s54, s55")
    a.I(f"buffer_load_dword v40, v10, {S4(RA)}, s54 offen")
    a.I("s_add_u32 s54, s54, 32768")
    a.I(f"buffer_load_dword v41, v10, {S4(RA)}, s54 offen")
    a.I("s_lshl_b32 s54, s53, 14")
    a.I("s_lshl_b32 s55, s67, 12")
    a.I("s_add_u32 s54, s54, s55")
    a.I("s_mov_b32 exec_hi, 0")
    a.I(f"buffer_load_dword v42, v10, {S4(RB)}, s54 offen")
    a.I("s_mov_b64 exec, -1")

def ffn2_p3(a):
    WF, HR, ACC2, BPR = 24, 40, 104, 8
    VH, VW, VA0, VA1 = 2, 3, 4, 5
    a.I("s_cmp_lg_u32 s67, 0")
    a.I("s_cbranch_scc1 L_f1")
    lds_spin(a, M_HST, 4, 8, 9, OPT.get('fslp', 1))
    lds_spin(a, M_KV, 8, 8, 9)
    a.I(f"s_lshl_b32 s54, s{S_RB}, 7")
    a.I(f"s_lshl_b32 s55, s{S_CG}, 2")
    a.I("s_add_u32 s54, s54, s55")
    a.I(f"s_add_u32 s54, s54, {FH_OFF}")
    flag_store(a, "s54", 8, 10)
    a.I(f"s_lshl_b32 s54, s{S_HD}, 7")
    a.I(f"s_add_u32 s54, s54, {FH_OFF}")
    a.I("v_lshlrev_b32 v8, 2, v1")
    poll(a, RC, 8, 8, 9, "s54", OPT.get("fhslp", 4))
    lds_add1(a, M_H, 8, 9)
    a.I("s_branch L_f2")
    a.L("L_f1")
    lds_spin(a, M_H, 1, 8, 9, OPT.get('fslp', 1))
    a.L("L_f2")
    lds_spin(a, M_QRD, 8, 8, 9, OPT.get('fslp', 1))
    stamp(a, "hready")
    srd(a, RA, S_W2, 1376*1024)
    srd_off(a, RB, S_WS, HF, HF_SIZE)
    a.I(f"v_lshlrev_b32 v{VH}, 4, v1")
    dma_w_lane_off(a, VW, 1, 8, 9, 1024)
    a.I(f"s_lshl_b32 s54, s{S_QB}, 7")
    a.I(f"v_add_u32 v{VW}, s54, v{VW}")
    tr_lane_addr(a, VA0, 1, 8, 9, 4, 128)
    a.I("s_mul_i32 s68, s67, 6144")
    a.I(f"s_add_u32 s68, s68, {L_RING}")
    a.I(f"v_add_u32 v{VA0}, s68, v{VA0}")
    a.I(f"v_xor_b32 v{VA1}, 64, v{VA0}")
    a.I("s_mul_i32 s54, s67, 24")
    a.I("s_lshl_b32 s70, s54, 14")
    a.I("s_lshl_b32 s71, s54, 16")
    a.I(f"s_lshl_b32 s55, s{S_HD}, 11")
    a.I("s_add_u32 s71, s71, s55")
    for i in range(64):
        a.I(f"v_mov_b32 v{ACC2+i}, 0")
    a.I("s_waitcnt vmcnt(0)")
    def fissue(slot):
        return [f"s_add_u32 m0, s68, {slot*2048}",
                f"s_add_u32 s69, s70, 8192",
                f"buffer_load_dwordx4 v{VW}, {S4(RA)}, s70 offen lds",
                f"s_add_u32 m0, s68, {slot*2048+1024}",
                f"s_add_u32 s70, s70, 16384",
                f"buffer_load_dwordx4 v{VW}, {S4(RA)}, s69 offen lds",
                f"buffer_load_dwordx4 {vr(HR+slot*8,4)}, v{VH}, {S4(RB)}, s71 offen sc1",
                f"buffer_load_dwordx4 {vr(HR+slot*8+4,4)}, v{VH}, {S4(RB)}, s71 offen offset:1024 sc1",
                f"s_add_u32 s71, s71, 65536"]
    def trr(F, off):
        out = []
        for ct, va in ((0, VA0), (1, VA1)):
            for rd in range(2):
                out.append(f"ds_read_b64_tr_b16 {vr(F+4*ct+2*rd,2)}, v{va} offset:{off + rd*1024}")
        return out
    N2 = OPT.get("n2", 0)
    a.I("s_cmp_eq_u32 s67, 3")
    a.I(f"s_cselect_b32 s72, {5-N2}, {8-N2}")
    a.I("s_mov_b32 s76, 0")
    a.L("L_fpro")
    for slot in range(3):
        a.I(J(fissue(slot)))
    a.I("s_cmp_lg_u32 s76, 0")
    a.I("s_cbranch_scc1 L_floop")
    a.I(f"s_setprio {OPT.get('ffnprio', 0)}")
    if OPT.get("noffn"): a.I("s_branch L_fskip")
    a.L("L_floop")
    for slot in range(3):
        a.I("s_waitcnt vmcnt(8)")
        a.I(J(trr(WF, slot*2048)))
        a.I("s_waitcnt lgkmcnt(0)")
        fi = fissue(slot)
        mf = lambda ct, rt: MF(ACC2 + (ct*2+rt)*16, WF+4*ct, HR+slot*8+4*rt, ACC2 + (ct*2+rt)*16)
        if OPT.get("fspread", 1):
            a.I(mf(0, 0)); a.I(J(fi[0:3]))
            a.I(mf(1, 0)); a.I(J(fi[3:6]))
            a.I(mf(0, 1)); a.I(fi[6])
            a.I(mf(1, 1)); a.I(J(fi[7:]))
        else:
            for ct in range(2):
                for rt in range(2):
                    a.I(mf(ct, rt))
            a.I(J(fi))
    a.I("s_sub_u32 s72, s72, 1")
    a.I("s_cmp_lg_u32 s72, 0")
    a.I("s_cbranch_scc1 L_floop")
    a.L("L_fskip")
    a.I("s_setprio 3")
    a.I("s_waitcnt vmcnt(0)")
    a.I("s_cmp_lg_u32 s76, 0")
    a.I("s_cbranch_scc1 L_fdone")
    lds_add1(a, M_FFN, 8, 9)
    stamp(a, "ffn2")
    lds_spin(a, M_ATT, 4, 8, 9, OPT.get('attslp', 1))
    stamp(a, "attdone")
    srd(a, RD, S_WO, 512*1024)
    a.I("s_lshl_b32 s56, s67, 14")
    a.I(f"s_add_u32 s56, s56, {L_K}")
    a.I("s_lshl_b32 s57, s67, 17")
    for ks in range(8):
        for n in range(2):
            a.I(f"s_add_u32 m0, s56, {ks*2048+n*1024}")
            a.I(f"s_add_u32 s69, s57, {ks*16384+n*8192}")
            a.I(f"buffer_load_dwordx4 v{VW}, {S4(RD)}, s69 offen lds")
    if N2:
        a.I("s_mov_b32 s76, 1")
        a.I(f"s_sub_u32 s70, s70, {3*16384}")
        a.I(f"s_sub_u32 s71, s71, {3*65536}")
        a.I(f"s_mov_b32 s72, {N2}")
        a.I("s_branch L_fpro")
    a.L("L_fdone")
    srd_off(a, RA, S_WS, GO, 8192)
    srd(a, RB, S_B2, 1024)
    a.I("s_and_b32 s73, s67, 1")
    a.I("s_lshr_b32 s74, s67, 1")
    a.I(f"s_lshl_b32 s75, s{S_HD}, 6")
    a.I("s_lshl_b32 s54, s73, 5")
    a.I("s_add_u32 s75, s75, s54")
    a.I("s_lshl_b32 s54, s75, 2")
    a.I("v_and_b32 v8, 31, v1")
    a.I("v_lshlrev_b32 v8, 2, v8")
    a.I(f"buffer_load_dword v40, v8, {S4(RA)}, s54 offen sc1")
    a.I(f"s_lshl_b32 s54, s{S_QB}, 6")
    a.I("s_lshl_b32 s55, s74, 5")
    a.I("s_add_u32 s54, s54, s55")
    a.I("s_lshl_b32 s54, s54, 1")
    a.I("v_lshrrev_b32 v8, 5, v1")
    a.I("v_lshlrev_b32 v8, 3, v8")
    for q in range(4):
        a.I(f"buffer_load_dwordx2 v[{42+2*q}:{43+2*q}], v8, {S4(RB)}, s54 offen offset:{q*16}")
    a.I("s_lshl_b32 s68, s67, 14")
    a.I("s_nop 7")
    a.I(f"s_add_u32 s54, s68, {L_V}")
    a.I(f"v_add_u32 v8, s54, v{VH}")
    for i in range(16):
        a.I(f"ds_write_b128 v8, {vr(ACC2+4*i,4)} offset:{i*1024}")
    a.I("s_waitcnt vmcnt(0) lgkmcnt(0)")
    lds_add1(a, M_T1, 9, 10)
    lds_spin(a, M_T1, 4, 9, 10)
    a.I("s_lshl_b32 s54, s67, 12")
    a.I(f"s_add_u32 s54, s54, {L_V}")
    a.I(f"v_add_u32 v8, s54, v{VH}")
    for p in range(4):
        for q in range(4):
            a.I(f"ds_read_b128 {vr(ACC2+p*16+q*4,4)}, v8 offset:{p*16384+q*1024}")
    a.I("s_waitcnt lgkmcnt(0)")
    for i in range(16):
        a.I(f"v_add_f32 v{ACC2+i}, v{ACC2+i}, v{ACC2+16+i}")
        a.I(f"v_add_f32 v{ACC2+32+i}, v{ACC2+32+i}, v{ACC2+48+i}")
    for i in range(16):
        a.I(f"v_add_f32 v{ACC2+i}, v{ACC2+i}, v{ACC2+32+i}")
    a.I("s_waitcnt vmcnt(0)")
    a.I("v_sub_f32 v41, 1.0, v40")
    a.I("v_cvt_pk_bf16_f32 v41, v41, v41")
    a.I("v_and_b32 v41, 0xffff0000, v41")
    for q in range(4):
        a.I(f"v_lshlrev_b32 v52, 16, v{42+2*q}")
        a.I(f"v_and_b32 v53, 0xffff0000, v{42+2*q}")
        a.I(f"v_lshlrev_b32 v54, 16, v{43+2*q}")
        a.I(f"v_and_b32 v55, 0xffff0000, v{43+2*q}")
        for j in range(4):
            a.I(f"v_add_f32 v{BPR+4*q+j}, v{ACC2+4*q+j}, v{52+j}")
        for j in range(4):
            a.I(f"v_mul_f32 v{BPR+4*q+j}, v{BPR+4*q+j}, v41")
    a.I("v_mov_b32 v39, v40")
    tr_lane_addr(a, VA0, 1, 32, 33, 4, 128)
    a.I("s_lshl_b32 s54, s74, 6")
    a.I(f"v_xor_b32 v{VA0}, s54, v{VA0}")
    a.I(f"v_add_u32 v{VA0}, {L_K}, v{VA0}")
    a.I("s_lshl_b32 s54, s73, 15")
    a.I(f"s_add_u32 s54, s54, {L_V}")
    a.I(f"v_add_u32 v{VA1}, s54, v{VH}")
    FR = 40
    def wreads(ks):
        F = FR + (ks % 8) * 8
        return [f"ds_read_b64_tr_b16 {vr(F,2)}, v{VA0} offset:{ks*2048}",
                f"ds_read_b64_tr_b16 {vr(F+2,2)}, v{VA0} offset:{ks*2048+1024}"]
    def oread(ks):
        F = FR + (ks % 8) * 8
        return [f"ds_read_b128 {vr(F+4,4)}, v{VA1} offset:{ks*1024}"]
    a.I("s_cmp_lg_u32 s67, 0")
    a.I("s_cbranch_scc1 L_f4")
    a.I(f"s_lshl_b32 s54, s{S_HD}, 8")
    a.I(f"s_add_u32 s54, s54, {FO_OFF}")
    a.I("v_lshlrev_b32 v121, 2, v1")
    if not OPT.get("opf", 0):
        poll(a, RC, 64, 121, 122, "s54", OPT.get("foslp", 1))
    else:
        srd_off(a, RB, S_WS, OF, 2*MB)
        a.I(f"s_lshl_b32 s55, s{S_HD}, 16")
        a.I("v_lshlrev_b32 v123, 10, v1")
        a.I("s_mov_b64 s[56:57], 0")
        a.I("s_mov_b32 s50, 0x40000")
        a.L("L_opf")
        a.I(f"buffer_load_dword v122, v121, {S4(RC)}, s54 offen sc1")
        a.I("s_waitcnt vmcnt(0)")
        a.I(f"v_cmp_eq_u32 vcc, s{S_NONCE}, v122")
        a.I("s_nop 1")
        a.I("s_andn2_b64 s[58:59], vcc, s[56:57]")
        a.I("s_or_b64 s[56:57], s[56:57], vcc")
        a.I("s_cmp_eq_u64 s[56:57], -1")
        a.I("s_cbranch_scc1 L_opf3")
        a.I("s_cmp_eq_u64 s[58:59], 0")
        a.I("s_cbranch_scc1 L_opf2")
        a.I("s_mov_b64 exec, s[58:59]")
        for j in range(8):
            a.I(f"buffer_load_dword v120, v123, {S4(RB)}, s55 offen offset:{j*128} sc1")
        a.I("s_mov_b64 exec, -1")
        a.L("L_opf2")
        a.I("s_sub_u32 s50, s50, 1")
        a.I("s_cmp_eq_u32 s50, 0")
        a.I("s_cbranch_scc1 L_opf3")
        a.I(f"s_sleep {OPT.get('foslp', 1)}")
        a.I("s_branch L_opf")
        a.L("L_opf3")
    a.L("L_f4")
    for ks in range(8): a.I(J(wreads(ks)))
    srd_off(a, RB, S_WS, OF, 2*MB)
    a.I(f"s_lshl_b32 s54, s{S_HD}, 16")
    a.I("s_lshl_b32 s55, s67, 11")
    a.I("s_add_u32 s54, s54, s55")
    a.I(f"s_add_u32 s55, s55, {L_V}")
    srd(a, RA, S_OUT, 2*MB)
    a.I("s_lshl_b32 s58, s75, 10")
    a.I(f"s_lshl_b32 s59, s{S_QB}, 7")
    a.I("s_add_u32 s58, s58, s59")
    a.I("s_lshl_b32 s59, s74, 6")
    a.I("s_add_u32 s58, s58, s59")
    a.I("v_and_b32 v32, 31, v1")
    a.I("v_lshlrev_b32 v32, 10, v32")
    a.I("v_lshrrev_b32 v33, 5, v1")
    a.I("v_lshl_add_u32 v32, v33, 4, v32")
    a.I("s_waitcnt lgkmcnt(0)")
    a.I("s_barrier")
    stamp(a, "T2")
    def odma(ch):
        L = []
        for hh in range(2):
            for rt in range(2):
                off = rt*32768 + ch*8192 + hh*1024
                L.append([f"s_add_u32 m0, s55, {off}", f"s_add_u32 s56, s54, {off}",
                          f"buffer_load_dwordx4 v{VH}, {S4(RB)}, s56 offen sc1 lds"])
        return L
    for ch in range(4):
        for x in odma(ch): a.I(J(x))
    for ch in range(4):
        a.I(f"s_waitcnt vmcnt({4*(3-ch)}) lgkmcnt(0)")
        a.I("s_barrier")
        for ks in range(8*ch, 8*ch+8): a.I(J(oread(ks)))
        for i in range(8):
            ks = 8*ch + i
            a.I(f"s_waitcnt lgkmcnt({7 + i if ch < 3 else 7 - i})")
            F = FR + i*8
            a.I(MF(ACC2, F, F+4, ACC2 if ks else None))
            if ch < 3: a.I(J(wreads(ks+8)))
    a.I("s_nop 15")
    stamp(a, "p3mm")
    for i in range(16):
        a.I(f"v_fma_f32 v{ACC2+i}, v{ACC2+i}, v39, v{BPR+i}")
    for j in range(8):
        a.I(f"v_cvt_pk_bf16_f32 v{ACC2+j}, v{ACC2+2*j}, v{ACC2+2*j+1}")
    a.I("s_nop 1")
    a.I(f"v_permlane32_swap_b32 v{ACC2}, v{ACC2+2}")
    a.I(f"v_permlane32_swap_b32 v{ACC2+1}, v{ACC2+3}")
    a.I(f"v_permlane32_swap_b32 v{ACC2+4}, v{ACC2+6}")
    a.I(f"v_permlane32_swap_b32 v{ACC2+5}, v{ACC2+7}")
    ofl = {0: "", 1: " sc1", 2: " nt", 3: " sc0 sc1"}[OPT.get("outfl", 0)]
    a.I(f"buffer_store_dwordx4 {vr(ACC2,4)}, v32, {S4(RA)}, s58 offen{ofl}")
    a.I(f"buffer_store_dwordx4 {vr(ACC2+4,4)}, v32, {S4(RA)}, s58 offen offset:32{ofl}")
    stamp_flush(a)
    a.I("s_endpgm")

def attention(a):
    a.L("L_attn")
    stamp(a, "attn0")
    QA, QB = 8, 12
    KB = [16, 20]; VB = [24, 32]
    S0, S1, OA, OB = 40, 56, 72, 88
    VK, VV, VL = 2, 3, 4
    T0, T1, T2 = 104, 105, 106
    VKN, VVN, VVB, VCH, VONE, VNX = 107, 108, 109, 110, 111, 5
    a.I(f"s_and_b32 s63, s{S_W}, 3")
    a.I(f"s_lshr_b32 s64, s{S_W}, 2")
    a.I(f"v_lshlrev_b32 v{VL}, 4, v1")
    a.I(f"v_lshrrev_b32 v{T0}, 5, v1")
    a.I(f"v_and_b32 v{T1}, 15, v1")
    a.I(f"v_lshlrev_b32 v{T1}, 4, v{T1}")
    a.I(f"v_lshl_add_u32 v{VVB}, v{T0}, 8, v{T1}")
    a.I(f"v_add_u32 v{VVB}, {L_V}, v{VVB}")
    a.I(f"v_add_u32 v{VKN}, {L_K}, v{VL}")
    a.I("s_lshl_b32 s54, s64, 12")
    a.I(f"v_add_u32 v{VK}, s54, v{VL}")
    a.I(f"v_add_u32 v{VV}, s54, v{VVB}")
    a.I("s_lshl_b32 s54, s63, 2")
    a.I(f"s_add_u32 s54, s54, {M_CH}")
    a.I(f"v_mov_b32 v{VCH}, s54")
    a.I(f"v_mov_b32 v{VONE}, 1")
    a.I("s_mov_b32 s74, 0x0000ffff")
    a.I("s_mov_b32 s75, 0x0000ffff")
    a.I("s_mov_b32 s77, 0")
    a.I(f"s_lshl_b32 s66, s{S_QB}, 3")
    a.I("s_lshl_b32 s54, s63, 1")
    a.I("s_add_u32 s66, s66, s54")
    a.I("s_lshl_b32 s54, s63, 11")
    a.I(f"s_add_u32 s54, s54, {L_RING}")
    a.I(f"v_add_u32 v{T2}, s54, v{VL}")
    a.I(f"v_and_b32 v{T0}, 31, v1")
    a.I(f"v_cmp_eq_u32 vcc, 16, v{T0}")
    a.I(f"v_mov_b32 v{T1}, 0x3f803f80")
    a.I("s_nop 1")
    a.I(f"v_cndmask_b32 v{T0}, 0, v{T1}, vcc")
    for i in range(16):
        a.I(f"v_mov_b32 v{VB[0]+i}, v{T0}")
    lds_spin(a, M_KV, 4, T0, T1)
    stamp(a, "kvok")
    a.I(f"ds_read_b128 {vr(QA,4)}, v{T2}")
    a.I(f"ds_read_b128 {vr(QB,4)}, v{T2} offset:1024")
    for i in range(16):
        a.I(f"v_mov_b32 v{OA+i}, 0")
        a.I(f"v_mov_b32 v{OB+i}, 0")
    a.I("s_waitcnt lgkmcnt(0)")
    lds_add1(a, M_QRD, T0, T1)
    a.I("s_lshl_b32 s71, s64, 12")
    if STAMPS and OPT.get("fineattn"): a.I("s_mov_b32 s87, 24")
    a.I("s_mov_b32 s73, 0")

    def e_(S, i): return f"v_exp_f32 v{S+i}, v{S+i}"
    def c_(S, j): return f"v_cvt_pk_bf16_f32 v{S+j}, v{S+2*j}, v{S+2*j+1}"
    def tile(Sin, Sout, Qn, Kn, Ocur, Vcur_u0, Oprev, Vprev_u1, after_pv2, wait_s, after_s, wait_pv1, do_pv2=True, do_s=True):
        e = lambda i: e_(Sin, i)
        c = lambda j: c_(Sin, j)
        L = [e(0), e(1)]
        if do_pv2: L.append(MF(Oprev, Vprev_u1, Sout+4, Oprev))
        L += after_pv2
        L += [e(2), e(3), c(0), e(4), e(5), c(1)]
        L += wait_s
        if do_s: L.append(MF(Sout, Kn, Qn))
        L += after_s
        L += [e(6), e(7), c(2), e(8), e(9), c(3), e(10), e(11)]
        L += wait_pv1
        L.append(MF(Ocur, Vcur_u0, Sin, Ocur))
        L += [c(4), e(12), e(13), c(5), e(14), e(15), c(6), c(7)]
        return L
    fifo = []
    def dsr(tag, txt): fifo.append(tag); return txt
    def need(tag):
        idx = max(i for i, t in enumerate(fifo) if t == tag)
        return [f"s_waitcnt lgkmcnt({len(fifo) - 1 - idx})"]
    def vreads(t):
        kap = t & 1
        return ["s_mov_b64 exec, s[74:75]",
                dsr(("V", t), f"ds_read_b128 {vr(VB[kap],4)}, v{VV} offset:{t*1024}"),
                dsr(("V", t), f"ds_read_b128 {vr(VB[kap]+4,4)}, v{VV} offset:{t*1024+512}"),
                "s_mov_b64 exec, -1"]
    def kread(t): return [dsr(("K", t), f"ds_read_b128 {vr(KB[t & 1],4)}, v{VK} offset:{t*1024}")]
    a.raw(".p2align 6")
    a.L("L_aloop")
    if OPT.get("fineattn"):
        OPT["fine"] = 1; stamp_dyn(a); OPT["fine"] = 0
    a.I(f"v_add_u32 v{VK}, s71, v{VKN}")
    a.I(f"v_add_u32 v{VV}, s71, v{VVB}")
    L = kread(0) + vreads(0) + kread(1)
    L += need(("K", 0))
    L.append(MF(S0, KB[0], QA))
    a.I(J(L))
    a.I("s_nop 7")
    a.I("s_nop 3")
    body = []
    for t in range(4):
        kap = t & 1
        A = []
        Sin, Sout = S0, S1
        A += [e_(Sin, 0), e_(Sin, 1)]
        if t > 0: A.append(MF(OB, VB[kap^1]+4, Sout+4, OB))
        if t + 1 < 4: A += vreads(t+1)
        A += [e_(Sin, 2), e_(Sin, 3), c_(Sin, 0), e_(Sin, 4), e_(Sin, 5), c_(Sin, 1)]
        A.append(MF(Sout, KB[kap], QB))
        if t + 2 < 4: A += kread(t+2)
        A += [e_(Sin, 6), e_(Sin, 7), c_(Sin, 2), e_(Sin, 8), e_(Sin, 9), c_(Sin, 3), e_(Sin, 10), e_(Sin, 11)]
        A += need(("V", t))
        A.append(MF(OA, VB[kap], Sin, OA))
        A += [c_(Sin, 4), e_(Sin, 12), e_(Sin, 13), c_(Sin, 5), e_(Sin, 14), e_(Sin, 15), c_(Sin, 6), c_(Sin, 7)]
        Sin, Sout = S1, S0
        B = [e_(Sin, 0), e_(Sin, 1), MF(OA, VB[kap]+4, Sout+4, OA)]
        if t == 3:
            B += ["s_mov_b64 exec, 1", dsr(("G",), f"ds_add_rtn_u32 v{VNX}, v{VCH}, v{VONE}"), "s_mov_b64 exec, -1"]
        B += [e_(Sin, 2), e_(Sin, 3), c_(Sin, 0), e_(Sin, 4), e_(Sin, 5), c_(Sin, 1)]
        if t + 1 < 4:
            B += need(("K", t+1))
            B.append(MF(Sout, KB[kap^1], QA))
        B += [e_(Sin, 6), e_(Sin, 7), c_(Sin, 2), e_(Sin, 8), e_(Sin, 9), c_(Sin, 3), e_(Sin, 10), e_(Sin, 11)]
        B.append(MF(OB, VB[kap], Sin, OB))
        B += [c_(Sin, 4), e_(Sin, 12), e_(Sin, 13), c_(Sin, 5), e_(Sin, 14), e_(Sin, 15), c_(Sin, 6), c_(Sin, 7)]
        body += A + B
    a.I(J(body))
    a.I("s_waitcnt lgkmcnt(0)")
    a.I(f"v_readfirstlane_b32 s70, v{VNX}")
    a.I(MF(OB, VB[1]+4, S1+4, OB))
    a.I("s_add_u32 s70, s70, 2")
    a.I("s_lshl_b32 s71, s70, 12")
    a.I("s_cmp_lg_u32 s73, 0")
    a.I("s_cbranch_scc1 L_aloop2")
    a.I("s_mov_b32 s73, 1")
    a.I("s_waitcnt vmcnt(0)")
    a.I(f"s_cmp_ge_u32 s{S_W}, 4")
    a.I("s_cbranch_scc1 L_aloop1")
    lds_add1(a, M_HST, T0, T1)
    a.L("L_aloop1")
    lds_spin(a, M_KV, 8, T0, T1)
    a.L("L_aloop2")
    a.I("s_cmp_lt_u32 s70, 16")
    a.I("s_cbranch_scc1 L_aloop")
    a.I("s_waitcnt lgkmcnt(0)")
    a.I("s_nop 7")
    stamp(a, "aloop")
    a.I("s_lshl_b32 s54, s63, 2")
    a.I(f"s_add_u32 s55, s54, {M_PAIR}")
    a.I(f"s_add_u32 s76, s54, {M_PFLAG}")
    a.I(f"v_mov_b32 v{T0}, s55")
    a.I(f"v_mov_b32 v{T1}, 1")
    a.I("s_mov_b64 exec, 1")
    a.I(f"ds_add_rtn_u32 v{T2}, v{T0}, v{T1}")
    a.I("s_mov_b64 exec, -1")
    a.I("s_mul_i32 s54, s63, 4608")
    a.I(f"s_add_u32 s54, s54, {L_XCH}")
    a.I(f"v_add_u32 v{S0}, s54, v{VL}")
    a.I(f"v_lshlrev_b32 v{S0+1}, 2, v1")
    a.I(f"v_add_u32 v{S0+1}, s54, v{S0+1}")
    a.I("s_waitcnt lgkmcnt(0)")
    a.I(f"v_readfirstlane_b32 s55, v{T2}")
    a.I("s_nop 4")
    a.I("s_cmp_lg_u32 s55, 0")
    a.I("s_cbranch_scc1 L_second")
    lds_spin(a, M_FFN, 4, T0, T1)
    a.I(f"ds_write_b128 v{S0}, {vr(OA,4)}")
    a.I(f"ds_write_b128 v{S0}, {vr(OA+4,4)} offset:1024")
    a.I(f"ds_write_b128 v{S0}, {vr(OB,4)} offset:2048")
    a.I(f"ds_write_b128 v{S0}, {vr(OB+4,4)} offset:3072")
    a.I(f"ds_write_b32 v{S0+1}, v{OA+8} offset:4096")
    a.I(f"ds_write_b32 v{S0+1}, v{OB+8} offset:4352")
    a.I("s_waitcnt lgkmcnt(0)")
    lds_add1(a, "s76", T0, T1)
    a.I("s_waitcnt lgkmcnt(0)")
    stamp_flush(a)
    a.I("s_endpgm")
    a.L("L_second")
    lds_spin(a, "s76", 1, T0, T1)
    a.I(f"ds_read_b128 {vr(S1,4)}, v{S0}")
    a.I(f"ds_read_b128 {vr(S1+4,4)}, v{S0} offset:1024")
    a.I(f"ds_read_b128 {vr(S1+8,4)}, v{S0} offset:2048")
    a.I(f"ds_read_b128 {vr(S1+12,4)}, v{S0} offset:3072")
    a.I(f"ds_read_b32 v{T0}, v{S0+1} offset:4096")
    a.I(f"ds_read_b32 v{T1}, v{S0+1} offset:4352")
    a.I(f"v_mov_b32 v{T2}, {L_MISC + 128}")
    a.I(f"ds_read_b32 v{T2}, v{T2}")
    a.I("s_waitcnt lgkmcnt(0)")
    a.I(f"v_readfirstlane_b32 s{S_NONCE}, v{T2}")
    for i in range(8):
        a.I(f"v_add_f32 v{OA+i}, v{OA+i}, v{S1+i}")
        a.I(f"v_add_f32 v{OB+i}, v{OB+i}, v{S1+8+i}")
    a.I(f"v_add_f32 v{OA+8}, v{OA+8}, v{T0}")
    a.I(f"v_add_f32 v{OB+8}, v{OB+8}, v{T1}")
    a.L("L_fin")
    for O in (OA, OB):
        a.I(f"v_mov_b32 v{O+9}, v{O+8}")
    a.I("s_nop 1")
    for O in (OA, OB):
        a.I(f"v_permlane32_swap_b32 v{O+9}, v{O+8}")
    a.I("s_nop 1")
    for O in (OA, OB):
        a.I(f"v_rcp_f32 v{O+10}, v{O+9}")
    srd_off(a, RA, S_WS, OF, 2*MB)
    a.I("s_lshl_b32 s54, s66, 5")
    a.I(f"s_add_u32 s54, s54, s{S_HD}")
    a.I("s_lshl_b32 s55, s54, 10")
    for n_, O in enumerate((OA, OB)):
        for i in range(8):
            a.I(f"v_mul_f32 v{S0+8*n_+i}, v{O+i}, v{O+10}")
        for j in range(4):
            a.I(f"v_cvt_pk_bf16_f32 v{S1+4*n_+j}, v{S0+8*n_+2*j}, v{S0+8*n_+2*j+1}")
        a.I(f"buffer_store_dwordx4 {vr(S1+4*n_,4)}, v{VL}, {S4(RA)}, s55 offen sc1")
        if n_ == 0: a.I("s_add_u32 s55, s55, 32768")
    srd_off(a, RC, S_WS, FLG, FLG_SIZE)
    slow_check(a, OA, OB, T0, T1)
    lds_add1(a, M_ATT, T0, T1)
    a.I("s_lshl_b32 s54, s54, 2")
    a.I(f"s_add_u32 s54, s54, {FO_OFF}")
    a.I(f"v_mov_b32 v{T0}, s{S_NONCE}")
    a.I(f"v_lshlrev_b32 v{T1}, 7, v1")
    a.I("s_waitcnt vmcnt(0)")
    a.I("s_mov_b64 exec, 3")
    a.I(f"buffer_store_dword v{T0}, v{T1}, {S4(RC)}, s54 offen sc1")
    a.I("s_mov_b64 exec, -1")
    stamp_flush(a)
    a.I("s_endpgm")
    slow_path(a, QA, QB, KB, VB, S0, S1, OA, OB, VL, T0, T1, T2)

def slow_check(a, OA, OB, T0, T1):
    if OPT.get("noslow"): return
    a.I(f"v_mul_f32 v{T0}, 0, v{OA}")
    for i in range(1, 8):
        a.I(f"v_fma_f32 v{T0}, v{OA+i}, 0, v{T0}")
    for i in range(8):
        a.I(f"v_fma_f32 v{T0}, v{OB+i}, 0, v{T0}")
    a.I(f"v_cmp_eq_f32 s[78:79], 0, v{T0}")
    a.I(f"s_mov_b32 s80, {hex(f2u(2.0**-60))}")
    a.I(f"s_mov_b32 s81, {hex(f2u(2.0**60))}")
    for O in (OA, OB):
        a.I(f"v_cmp_le_f32 s[82:83], s80, v{O+9}")
        a.I(f"v_cmp_ge_f32 vcc, s81, v{O+9}")
        a.I("s_nop 1")
        a.I("s_and_b64 s[78:79], s[78:79], s[82:83]")
        a.I("s_and_b64 s[78:79], s[78:79], vcc")
    if OPT.get("forceslow"):
        a.I("s_mov_b64 s[78:79], 0")
    a.I("s_cmp_eq_u64 s[78:79], -1")
    a.I("s_cbranch_scc1 L_ok")
    a.I("s_cmp_eq_u32 s77, 0")
    a.I("s_cbranch_scc1 L_slow")
    a.L("L_ok")

def slow_path(a, QA, QB, KB, VB, S0, S1, OA, OB, VL, T0, T1, T2):
    if OPT.get("noslow"): return
    K, V0, M, C = KB[0], VB[0], 108, 112
    a.L("L_slow")
    a.I("s_waitcnt vmcnt(0)")
    a.I("s_mov_b32 s77, 1")
    a.I(f"v_lshrrev_b32 v{T0}, 5, v1")
    a.I(f"v_and_b32 v{T1}, 15, v1")
    a.I(f"v_lshlrev_b32 v{T1}, 4, v{T1}")
    a.I(f"v_lshl_add_u32 v{T2}, v{T0}, 8, v{T1}")
    a.I(f"v_add_u32 v{T2}, {L_V}, v{T2}")
    a.I(f"v_mov_b32 v{M}, 0xff800000")
    a.I(f"v_mov_b32 v{M+1}, 0xff800000")
    a.I(f"v_add_u32 v{T0}, {L_K}, v{VL}")
    a.I("s_mov_b32 s73, 0")
    a.L("L_slow1")
    a.I(f"ds_read_b128 {vr(K,4)}, v{T0}")
    a.I("s_waitcnt lgkmcnt(0)")
    a.I(MF(S0, K, QA))
    a.I(MF(S1, K, QB))
    a.I("s_nop 15")
    for S, m in ((S0, M), (S1, M+1)):
        for i in range(0, 16, 2):
            a.I(f"v_max3_f32 v{m}, v{S+i}, v{S+i+1}, v{m}")
    a.I(f"v_add_u32 v{T0}, 1024, v{T0}")
    a.I("s_add_u32 s73, s73, 1")
    a.I("s_cmp_lt_u32 s73, 64")
    a.I("s_cbranch_scc1 L_slow1")
    for m in (M, M+1):
        a.I(f"v_mov_b32 v{T1}, v{m}")
        a.I("s_nop 1")
        a.I(f"v_permlane32_swap_b32 v{T1}, v{m}")
        a.I("s_nop 1")
        a.I(f"v_max_f32 v{m}, v{m}, v{T1}")
    for t in range(2):
        for i in range(16):
            a.I(f"v_sub_f32 v{C+16*t+i}, 0, v{M+t}")
    for i in range(16):
        a.I(f"v_mov_b32 v{OA+i}, 0")
        a.I(f"v_mov_b32 v{OB+i}, 0")
    a.I(f"v_add_u32 v{T0}, {L_K}, v{VL}")
    a.I("s_mov_b32 s73, 0")
    a.L("L_slow2")
    a.I(f"ds_read_b128 {vr(K,4)}, v{T0}")
    a.I("s_mov_b64 exec, s[74:75]")
    a.I(f"ds_read_b128 {vr(V0,4)}, v{T2}")
    a.I(f"ds_read_b128 {vr(V0+4,4)}, v{T2} offset:512")
    a.I("s_mov_b64 exec, -1")
    a.I("s_waitcnt lgkmcnt(0)")
    a.I(MF(S0, K, QA, C))
    a.I(MF(S1, K, QB, C+16))
    a.I("s_nop 15")
    for S, O in ((S0, OA), (S1, OB)):
        for i in range(16):
            a.I(f"v_exp_f32 v{S+i}, v{S+i}")
        a.I("s_nop 0")
        for j in range(8):
            a.I(f"v_cvt_pk_bf16_f32 v{S+j}, v{S+2*j}, v{S+2*j+1}")
        a.I("s_nop 1")
        a.I(MF(O, V0, S, O))
        a.I(MF(O, V0+4, S+4, O))
    a.I(f"v_add_u32 v{T0}, 1024, v{T0}")
    a.I(f"v_add_u32 v{T2}, 1024, v{T2}")
    a.I("s_add_u32 s73, s73, 1")
    a.I("s_cmp_lt_u32 s73, 64")
    a.I("s_cbranch_scc1 L_slow2")
    a.I("s_nop 15")
    a.I("s_branch L_fin")

def gen():
    a = Asm()
    prologue(a)
    producer(a, False)
    consumer(a)
    a.L("L_aux")
    producer(a, True)
    ffn2_p3(a)
    attention(a)
    a.L("L_end")
    a.I("s_endpgm")
    a.L("L_code_end")
    a.I("s_endpgm")
    return a

HEADER = open("cdna_kernels/" + NAME + ".s.ref").read().split("; Override launch")[0]

def build(path):
    a = gen()
    out = HEADER + f"; WSLAYOUT QF={QF} KF={KF} VF={VF} HF={HF} GO={GO} OF={OF}\n"
    out += f"; @launch grid=(256,1,1) block=(768,1,1) lds={LDS_TOTAL}\n"
    out += '.amdgcn_target "amdgcn-amd-amdhsa--gfx950"\n.text\n' + a.text()
    out += f""".section .rodata,"a"
.p2align 6
.amdhsa_kernel {KN}
  .amdhsa_next_free_vgpr 168
  .amdhsa_next_free_sgpr 102
  .amdhsa_accum_offset 168
  .amdhsa_group_segment_fixed_size 0
  .amdhsa_kernarg_size 96
  .amdhsa_user_sgpr_count 2
  .amdhsa_user_sgpr_kernarg_segment_ptr 1
  .amdhsa_system_sgpr_workgroup_id_x 1
.end_amdhsa_kernel
"""
    open(path, "w").write(out)
    probs = check_linear(a.lines, "k")
    if STAMPS: print("stamps:", ",".join(_stamp_names))
    return probs

if __name__ == "__main__":
    for x in list(sys.argv[1:]):
        if x.startswith("-D"):
            k, _, v = x[2:].partition("=")
            OPT[k] = int(v) if v else 1
            sys.argv.remove(x)
    if "--stamps" in sys.argv:
        STAMPS = True; sys.argv.remove("--stamps")
    path = sys.argv[1] if len(sys.argv) > 1 else "cdna_kernels/" + NAME + ".s"
    probs = build(path)
    for p in probs: print("HAZARD:", p)
    print("written", path, "problems:", len(probs))
```

```python
import sys, struct
from asmlib import *

NAME = "gated_mix__mha_block__dense_activation_squared_relu__prompt"
KN = NAME + "_kernel"
MB = 1 << 20
QF, KF, VF, HF, GO, OF, FLG = 4096, 2*MB + 8192, 4*MB + 12288, 6*MB + 16384, 12*MB, 14*MB + 4096, 16*MB + 8192
HF_SIZE = 86 * 65536
FA_OFF, FH_OFF, FO_OFF = 0, 4096, 8192
FLG_SIZE = 16384
QSCALE = 0.25 * 1.4426950408889634
STAMP_OFF = 32*MB
STAMPS = False
OPT = {}
def f2u(x): return struct.unpack("<I", struct.pack("<f", x))[0]

S_AX, S_WQKV, S_WO, S_W1, S_B1, S_W2, S_B2, S_GW, S_OUT, S_DBG, S_WS = 4, 6, 8, 12, 14, 16, 18, 20, 22, 24, 26
S_W = 3
S_RB, S_CG, S_START = 29, 30, 31
RA, RB, RC, RD = 32, 36, 40, 44
S_NONCE, S_HD, S_QB = 60, 61, 62
L_MISC, L_K, L_V, L_RING = 0, 1024, 1024 + 65536, 1024 + 131072
L_XCH = L_RING
M_KV, M_H, M_FA, M_QRD, M_HST, M_FFN, M_ATT, M_T1 = [L_MISC + 4*i for i in range(8)]
M_PAIR, M_PFLAG, M_CH = L_MISC + 64, L_MISC + 96, L_MISC + 160
LDS_TOTAL = 163840

def srd(a, dst, base, size):
    a.I(f"s_mov_b32 s{dst}, s{base}")
    a.I(f"s_mov_b32 s{dst+1}, s{base+1}")
    a.I(f"s_mov_b32 s{dst+2}, {size}")
    a.I(f"s_mov_b32 s{dst+3}, 0x20000")
def srd_off(a, dst, base, off, size):
    a.I(f"s_add_u32 s{dst}, s{base}, {off}")
    a.I(f"s_addc_u32 s{dst+1}, s{base+1}, 0")
    a.I(f"s_mov_b32 s{dst+2}, {size}")
    a.I(f"s_mov_b32 s{dst+3}, 0x20000")
def MF(d, A, B, c=None):
    cc = "0" if c is None else vr(c, 16)
    return f"v_mfma_f32_32x32x16_bf16 {vr(d,16)}, {vr(A,4)}, {vr(B,4)}, {cc}"
def S4(r): return f"s[{r}:{r+3}]"
def J(L): return "\n".join(L)

_stamp_names = []
def stamp(a, name):
    if not STAMPS: return
    if name not in _stamp_names: _stamp_names.append(name)
    i = _stamp_names.index(name)
    a.I("s_waitcnt lgkmcnt(0)")
    a.I("s_memtime s[98:99]")
    a.I("s_memrealtime s[100:101]")
    a.I("s_waitcnt lgkmcnt(0)")
    a.I(f"v_writelane_b32 v6, s98, {i}")
    a.I(f"v_writelane_b32 v7, s100, {i}")
def stamp_dyn(a):
    if not (STAMPS and OPT.get("fine")): return
    a.I("s_memtime s[98:99]")
    a.I("s_memrealtime s[100:101]")
    a.I("s_waitcnt lgkmcnt(0)")
    a.I("s_mov_b32 s88, m0")
    a.I("s_mov_b32 m0, s87")
    a.I("s_nop 3")
    a.I("v_writelane_b32 v6, s98, m0")
    a.I("v_writelane_b32 v7, s100, m0")
    a.I("s_mov_b32 m0, s88")
    a.I("s_add_u32 s87, s87, 1")
def stamp_flush(a):
    if not STAMPS: return
    a.I("s_waitcnt vmcnt(0)")
    stamp(a, "end")
    a.I(f"s_add_u32 s96, s{S_WS}, {STAMP_OFF}")
    a.I(f"s_addc_u32 s97, s{S_WS+1}, 0")
    a.I("s_mul_i32 s98, s2, 12")
    a.I(f"s_add_u32 s98, s98, s{S_W}")
    a.I("s_lshl_b32 s98, s98, 9")
    a.I("v_lshlrev_b32 v2, 2, v1")
    a.I("v_add_u32 v2, s98, v2")
    a.I("s_mov_b64 exec, -1")
    a.I("global_store_dword v2, v6, s[96:97]")
    a.I("global_store_dword v2, v7, s[96:97] offset:256")
    a.I("s_waitcnt vmcnt(0)")

def tr_lane_addr(a, dst, lane, tmp, tmp2, hrows, pitch):
    a.I(f"v_bfe_u32 v{tmp}, v{lane}, 2, 2")
    a.I(f"v_lshrrev_b32 v{tmp2}, 5, v{lane}")
    a.I(f"v_mul_u32_u24 v{tmp2}, {hrows}, v{tmp2}")
    a.I(f"v_add_u32 v{tmp}, v{tmp}, v{tmp2}")
    a.I(f"v_mul_u32_u24 v{dst}, {pitch}, v{tmp}")
    a.I(f"v_bfe_u32 v{tmp}, v{lane}, 4, 1")
    a.I(f"v_lshlrev_b32 v{tmp}, 1, v{tmp}")
    a.I(f"v_bfe_u32 v{tmp2}, v{lane}, 1, 1")
    a.I(f"v_add_u32 v{tmp}, v{tmp}, v{tmp2}")
    a.I(f"v_bfe_u32 v{tmp2}, v{lane}, 3, 1")
    a.I(f"v_lshlrev_b32 v{tmp2}, 2, v{tmp2}")
    a.I(f"v_xor_b32 v{tmp}, v{tmp}, v{tmp2}")
    a.I(f"v_lshl_add_u32 v{dst}, v{tmp}, 4, v{dst}")
    a.I(f"v_and_b32 v{tmp}, 1, v{lane}")
    a.I(f"v_lshl_add_u32 v{dst}, v{tmp}, 3, v{dst}")

def dma_w_lane_off(a, dst, lane, tmp, tmp2, pitch):
    a.I(f"v_lshrrev_b32 v{tmp}, 3, v{lane}")
    a.I(f"v_mul_u32_u24 v{dst}, {pitch}, v{tmp}")
    a.I(f"v_bfe_u32 v{tmp}, v{lane}, 4, 1")
    a.I(f"v_lshlrev_b32 v{tmp}, 2, v{tmp}")
    a.I(f"v_and_b32 v{tmp2}, 7, v{lane}")
    a.I(f"v_xor_b32 v{tmp}, v{tmp}, v{tmp2}")
    a.I(f"v_lshl_add_u32 v{dst}, v{tmp}, 4, v{dst}")

_lab = [0]
def lab(p):
    _lab[0] += 1
    return f"L_{p}{_lab[0]}"

def poll(a, srd_reg, nlanes, voff, vtmp, soff, slp=1):
    l0, l1 = lab("poll"), lab("polld")
    if nlanes < 64:
        a.I(f"s_mov_b32 exec_lo, {hex((1 << nlanes) - 1)}")
        a.I("s_mov_b32 exec_hi, 0")
    a.I("s_mov_b32 s50, 0x40000")
    a.L(l0)
    a.I(f"buffer_load_dword v{vtmp}, v{voff}, {S4(srd_reg)}, {soff} offen sc1")
    a.I("s_waitcnt vmcnt(0)")
    a.I(f"v_cmp_ne_u32 vcc, s{S_NONCE}, v{vtmp}")
    a.I(f"s_cbranch_vccz {l1}")
    a.I("s_sub_u32 s50, s50, 1")
    a.I("s_cmp_eq_u32 s50, 0")
    a.I(f"s_cbranch_scc1 {l1}")
    a.I(f"s_sleep {slp}")
    a.I(f"s_branch {l0}")
    a.L(l1)
    a.I("s_mov_b64 exec, -1")

def lds_spin(a, addr, target, vaddr, vtmp, slp=1):
    l0, l1 = lab("spin"), lab("spind")
    a.I(f"v_mov_b32 v{vaddr}, {addr}")
    a.I("s_mov_b32 s50, 0x400000")
    a.L(l0)
    a.I(f"ds_read_b32 v{vtmp}, v{vaddr}")
    a.I("s_waitcnt lgkmcnt(0)")
    a.I(f"v_readfirstlane_b32 s51, v{vtmp}")
    a.I("s_sub_u32 s50, s50, 1")
    a.I(f"s_cmp_ge_u32 s51, {target}")
    a.I(f"s_cbranch_scc1 {l1}")
    a.I("s_cmp_eq_u32 s50, 0")
    a.I(f"s_cbranch_scc1 {l1}")
    a.I(f"s_sleep {slp}")
    a.I(f"s_branch {l0}")
    a.L(l1)

def lds_add1(a, addr, vaddr, vtmp):
    a.I(f"v_mov_b32 v{vaddr}, {addr}")
    a.I(f"v_mov_b32 v{vtmp}, 1")
    a.I("s_mov_b64 exec, 1")
    a.I(f"ds_add_u32 v{vaddr}, v{vtmp}")
    a.I("s_mov_b64 exec, -1")

def flag_store(a, soff, v0_, v1_):
    a.I(f"v_mov_b32 v{v0_}, s{S_NONCE}")
    a.I(f"v_mov_b32 v{v1_}, 0")
    a.I("s_mov_b64 exec, 1")
    a.I(f"buffer_store_dword v{v0_}, v{v1_}, {S4(RC)}, {soff} offen sc1")
    a.I("s_mov_b64 exec, -1")

def prologue(a):
    a.raw(f".globl {KN}\n.p2align 8\n.type {KN},@function\n{KN}:")
    if STAMPS:
        a.I("s_memrealtime s[94:95]")
        a.I("s_memtime s[92:93]")
    a.I("s_cmp_ge_u32 s2, 256")
    a.I("s_cbranch_scc1 L_end")
    a.I("s_load_dwordx4 s[4:7], s[0:1], 0")
    a.I("s_load_dwordx2 s[8:9], s[0:1], 16")
    a.I("s_load_dwordx4 s[12:15], s[0:1], 32")
    a.I("s_load_dwordx4 s[16:19], s[0:1], 48")
    a.I("s_load_dwordx4 s[20:23], s[0:1], 64")
    a.I("s_load_dwordx4 s[24:27], s[0:1], 80")
    a.I("v_lshrrev_b32 v2, 6, v0")
    a.I("v_and_b32 v1, 63, v0")
    a.I(f"v_readfirstlane_b32 s{S_W}, v2")
    if OPT.get("codeearly", 0):
        a.I("s_getpc_b64 s[52:53]")
        a.L("L_pc0")
        a.I(f"s_sub_u32 s52, s52, L_pc0-{KN}")
        a.I("s_subb_u32 s53, s53, 0")
        a.I("v_lshlrev_b32 v3, 7, v0")
        a.I(f"v_min_u32 v3, L_code_end-{KN}-4, v3")
        a.I(f"s_cmp_ge_u32 s{S_W}, 3")
        a.I("s_cbranch_scc1 L_pc1")
        a.I("global_load_dword v31, v3, s[52:53]")
        a.L("L_pc1")
    if STAMPS:
        a.I("v_mov_b32 v6, 0"); a.I("v_mov_b32 v7, 0")
    a.I("s_and_b32 s52, s2, 7")
    a.I("s_lshr_b32 s53, s2, 3")
    a.I("s_lshr_b32 s54, s52, 2")
    a.I("s_lshl_b32 s54, s54, 4")
    a.I("s_lshr_b32 s55, s53, 1")
    a.I(f"s_add_u32 s{S_RB}, s54, s55")
    a.I("s_and_b32 s54, s52, 3")
    a.I("s_lshl_b32 s54, s54, 1")
    a.I("s_and_b32 s55, s53, 1")
    a.I(f"s_add_u32 s{S_CG}, s54, s55")
    a.I(f"s_mul_i32 s54, s{S_CG}, 6")
    a.I(f"s_min_u32 s{S_START}, s54, 37")
    a.I(f"s_lshl_b32 s{S_HD}, s52, 2")
    a.I("s_and_b32 s54, s53, 3")
    a.I(f"s_add_u32 s{S_HD}, s{S_HD}, s54")
    a.I(f"s_lshr_b32 s{S_QB}, s2, 5")
    a.I("s_waitcnt lgkmcnt(0)")
    if STAMPS:
        _stamp_names.append("entry")
        a.I("v_writelane_b32 v6, s92, 0")
        a.I("v_writelane_b32 v7, s94, 0")
    stamp(a, "karg")
    a.I(f"s_cmp_ge_u32 s{S_W}, 8")
    a.I("s_cbranch_scc1 L_aux")
    a.I(f"s_cmp_lt_u32 s{S_W}, 4")
    a.I("s_cbranch_scc1 L_cons")

GATEPOS = 3
def producer(a, aux):
    T = "a" if aux else "p"
    if OPT.get("pprio"): a.I(f"s_setprio {OPT['pprio']}")
    a.I(f"s_sub_u32 s67, s{S_W}, 4")
    a.I(f"s_lshl_b32 s54, s{S_RB}, 16")
    srd_off(a, RA, S_AX, "s54", 65536)
    srd(a, RB, S_WQKV, 512*3072)
    a.I("v_lshrrev_b32 v2, 3, v1")
    a.I("s_lshl_b32 s54, s67, 3")
    a.I("v_add_u32 v2, s54, v2")
    a.I("v_lshrrev_b32 v3, 4, v1")
    a.I("s_and_b32 s54, s67, 1")
    a.I("s_lshl_b32 s54, s54, 2")
    a.I("v_add_u32 v3, s54, v3")
    a.I("v_and_b32 v4, 7, v1")
    a.I("v_xor_b32 v3, v3, v4")
    a.I("v_lshlrev_b32 v3, 4, v3")
    a.I("v_lshl_add_u32 v12, v2, 10, v3")
    a.I("s_lshl_b32 s68, s67, 10")
    def woffs(dst, pitch, segshift):
        for j in range(3):
            a.I(f"v_add_u32 v2, {64*j}, v1")
            a.I("v_mul_u32_u24 v3, 171, v2")
            a.I("v_lshrrev_b32 v3, 12, v3")
            a.I("v_mul_u32_u24 v4, 24, v3")
            a.I("v_sub_u32 v2, v2, v4")
            a.I("v_lshrrev_b32 v4, 3, v2")
            a.I("v_and_b32 v2, 7, v2")
            a.I("v_bfe_u32 v5, v3, 1, 1")
            a.I("v_lshlrev_b32 v5, 2, v5")
            a.I("v_xor_b32 v2, v2, v5")
            a.I("v_lshlrev_b32 v2, 4, v2")
            a.I(f"v_mul_u32_u24 v5, {pitch}, v3")
            a.I(f"v_lshl_add_u32 v5, v4, {segshift}, v5")
            a.I(f"v_add_u32 v{dst+j}, v5, v2")
    woffs(13, 3072, 10)
    a.I("s_mul_i32 s69, s67, 3072")
    a.I("s_add_u32 s69, s69, 0x10000")
    a.I(f"s_lshl_b32 s70, s{S_CG}, 7")
    a.I(f"s_mul_i32 s71, s67, {8*3072}")
    a.I("s_add_u32 s70, s70, s71")
    def pre_setup(item):
        k, c = item
        if k == "X":
            a.I(f"s_add_u32 m0, s68, {c*8192}")
            a.I(f"s_movk_i32 s81, {c*128}")
        else:
            a.I(f"s_add_u32 s82, s70, {c*64*3072}" if c < 8 else f"s_add_u32 s82, s71, {(c-8)*64*2752}")
            a.I(f"s_add_u32 m0, s69, {(c&3)*24576}")
    def issue_x(c, done=False):
        if OPT.get("p1noprod"): return
        if not done:
            a.I(f"s_add_u32 m0, s68, {c*8192}")
            a.I(f"s_movk_i32 s81, {c*128}")
        a.I(f"buffer_load_dwordx4 v12, {S4(RA)}, s81 offen lds")
    def issue_w(c, done=False):
        if OPT.get("p1noprod"): return
        if c < 8:
            if not done: a.I(f"s_add_u32 s82, s70, {c*64*3072}")
            vo, R = 13, RB
        else:
            if not done: a.I(f"s_add_u32 s82, s71, {(c-8)*64*2752}")
            vo, R = 16, RC
        for j in range(3):
            if not (done and j == 0):
                a.I(f"s_add_u32 m0, s69, {(c&3)*24576 + j*1024}")
                a.I("s_nop 0")
            a.I(f"buffer_load_dwordx4 v{vo+j}, {S4(R)}, s82 offen lds")
    sched = OPT.get("sched", 0)
    if sched == 0:
        pre = [("X",0),("W",0),("X",1),("W",1),("X",2),("W",2)]
        post = {c: ([("X",c+3)] if c+3 < 8 else []) + ([("W",c+3)] if c+3 < 16 else []) for c in range(16)}
    elif sched == 1:
        pre = [("X",0),("W",0),("X",1),("W",1),("X",2),("W",2),("X",3),("W",3),("X",4),("X",5),("X",6),("X",7)]
        post = {c: ([("W",c+3)] if (c >= 1 and c+3 < 16) else []) for c in range(16)}
    elif sched == 2:
        pre = [("X",0),("W",0),("X",1),("W",1),("X",2),("W",2),("X",3),("W",3)]
        post = {c: ([("W",c+3)] if (c >= 1 and c+3 < 16) else []) for c in range(16)}
        post[0] = [("X",4),("X",5),("X",6),("X",7)]
    fifo = []
    def do(item, done=False):
        k, c = item
        if k == "X":
            if OPT.get("skipx"): fifo.append((item, 0)); return
            issue_x(c, done); fifo.append((item, 1))
        else:
            if OPT.get("skipw") and c < 8: fifo.append((item, 0)); return
            issue_w(c, done); fifo.append((item, 3))
    for it in pre: do(it)
    if OPT.get("pfprod") and not aux:
        a.I(f"s_mov_b32 s89, s{S_W}")
        a.I(f"s_sub_u32 s{S_W}, s{S_W}, 4")
        l2_prefetch(a, 0)
        a.I(f"s_mov_b32 s{S_W}, s89")
        fifo.append(("pf", 2))
    stamp(a, "issued3")
    nside = 0
    if aux:
        nside = aux_side_issue(a)
    srd(a, RC, S_W1, 512*2752)
    if OPT.get("w1perm", 0):
        for j in range(3):
            a.I(f"v_add_u32 v2, {64*j}, v1")
            a.I("v_mul_u32_u24 v3, 171, v2")
            a.I("v_lshrrev_b32 v3, 12, v3")
            a.I("v_mul_u32_u24 v4, 24, v3")
            a.I("v_sub_u32 v2, v2, v4")
            a.I("v_lshrrev_b32 v4, 2, v2")
            a.I("v_and_b32 v2, 3, v2")
            a.I("v_bfe_u32 v5, v3, 1, 1")
            a.I("v_xor_b32 v4, v4, v5")
            a.I("v_add_u32 v5, 1, v4")
            a.I("v_cmp_eq_u32 vcc, 4, v4")
            a.I("s_nop 1")
            a.I("v_cndmask_b32_e64 v5, v5, 0, vcc")
            a.I("v_cmp_eq_u32 vcc, 5, v4")
            a.I("s_nop 1")
            a.I("v_cndmask_b32_e64 v5, v5, 5, vcc")
            a.I(f"v_add_u32 v19, s{S_START}, v3")
            a.I("v_and_b32 v19, 1, v19")
            a.I("v_cmp_eq_u32 vcc, 1, v19")
            a.I("s_nop 1")
            a.I("v_cndmask_b32 v4, v4, v5, vcc")
            a.I("v_lshlrev_b32 v4, 6, v4")
            a.I("v_lshl_add_u32 v4, v2, 4, v4")
            a.I("v_mul_u32_u24 v5, 2752, v3")
            a.I(f"v_add_u32 v{16+j}, v5, v4")
    else:
        woffs(16, 2752, 7)
    a.I(f"s_lshl_b32 s71, s{S_START}, 6")
    a.I(f"s_mul_i32 s72, s67, {8*2752}")
    a.I("s_add_u32 s71, s71, s72")
    fap = OPT.get("fapos", 2)
    assert fap >= 2
    for c in range(16):
        need = [("W", c)] + ([("X", c)] if c < 8 else [])
        idx = max(i for i, (it, _) in enumerate(fifo) if it in need)
        allow = sum(k for _, k in fifo[idx+1:])
        if c == 0 and STAMPS and OPT.get("fine"): a.I("s_mov_b32 s87, 24")
        stamp_dyn(a)
        early = OPT.get("early", 1) and not STAMPS and len(post[c]) > 0 and not OPT.get("p1noprod")
        if early:
            pre_setup(post[c][0])
        a.I(f"s_waitcnt vmcnt({allow})")
        stamp_dyn(a)
        a.I("s_barrier")
        for n_, it in enumerate(post[c]): do(it, early and n_ == 0)
        if aux and c == 2:
            fifo.append(("side", aux_side_loads(a)))
        if aux and c == 6:
            aux_gate(a)
            fifo.append(("g", 1))
        if aux and c == 7:
            fifo.append(("nonce", aux_nonce_issue(a)))
        if aux and c == 10:
            aux_zero_misc(a)
        if aux and c == 11:
            aux_nonce_take(a)
        if aux and c == 12:
            aux_share_nonce(a)
        if aux and c == 15:
            aux_fa_probe(a)
        if aux and c == 9 + fap:
            aux_publish_fa(a)
    a.I("s_barrier")
    if aux:
        aux_after_e1(a)
    else:
        if OPT.get("pprio"): a.I("s_setprio 0")
        a.I("s_branch L_attn")

def l2_prefetch(a, part):
    a.I("s_and_b32 s52, s2, 7")
    a.I("s_lshr_b32 s53, s2, 3")
    a.I("s_lshl_b32 s54, s53, 4")
    a.I(f"s_lshl_b32 s55, s{S_W}, 2")
    a.I("s_add_u32 s56, s54, s55")
    if part == 2:
        a.I(f"s_cmp_lg_u32 s{S_W}, 0")
        a.I("s_cbranch_scc1 L_pf2")
        srd(a, RC, S_WQKV, 512*3072)
        a.I("s_lshl_b32 s54, s53, 3")
        a.I("s_add_u32 s54, s54, 256")
        a.I("s_mul_i32 s54, s54, 3072")
        a.I("s_and_b32 s55, s52, 3")
        a.I("s_lshl_b32 s55, s55, 8")
        a.I("s_add_u32 s54, s54, s55")
        a.I("v_lshrrev_b32 v21, 3, v1")
        a.I("v_mul_u32_u24 v21, 3072, v21")
        a.I("v_bfe_u32 v22, v1, 1, 2")
        a.I("v_min_u32 v22, 2, v22")
        a.I("v_lshl_add_u32 v21, v22, 10, v21")
        a.I("v_and_b32 v22, 1, v1")
        a.I("v_lshl_add_u32 v21, v22, 7, v21")
        a.I(f"buffer_load_dword v25, v21, {S4(RC)}, s54 offen")
        a.L("L_pf2")
    elif part == 0:
        G = OPT.get("pfg", 128)
        sh = {128: 7, 64: 6, 32: 5}[G]
        srd(a, RC, S_AX, 2*MB)
        a.I("s_lshr_b32 s54, s52, 2")
        a.I("s_lshl_b32 s54, s54, 10")
        a.I("s_lshl_b32 s55, s53, 5")
        a.I("s_add_u32 s54, s54, s55")
        a.I(f"s_lshl_b32 s55, s{S_W}, 3")
        a.I("s_add_u32 s54, s54, s55")
        a.I("s_lshl_b32 s54, s54, 10")
        a.I(f"v_lshlrev_b32 v20, {sh}, v1")
        for i in range(0 if OPT.get("nopfx") else 8192 // (64*G)):
            a.I(f"buffer_load_dword v24, v20, {S4(RC)}, s54 offen")
            a.I(f"s_add_u32 s54, s54, {64*G}")
        srd(a, RC, S_WQKV, 512*3072)
        a.I("s_mul_i32 s54, s56, 3072")
        a.I("s_and_b32 s55, s52, 3")
        a.I("s_lshl_b32 s55, s55, 8")
        a.I("s_add_u32 s54, s54, s55")
        per = 256 // G
        a.I("v_lshrrev_b32 v21, 4, v1")
        a.I("v_mul_u32_u24 v21, 3072, v21")
        a.I("v_and_b32 v22, 15, v1")
        if G == 64:
            a.I("v_lshrrev_b32 v23, 2, v22")
            a.I("v_min_u32 v23, 2, v23")
            a.I("v_lshl_add_u32 v21, v23, 10, v21")
            a.I("v_and_b32 v22, 3, v22")
            a.I("v_lshl_add_u32 v21, v22, 6, v21")
            a.I(f"buffer_load_dword v25, v21, {S4(RC)}, s54 offen")
        elif G == 32:
            a.I("v_lshrrev_b32 v23, 3, v22")
            a.I("v_lshl_add_u32 v21, v23, 10, v21")
            a.I("v_and_b32 v22, 7, v22")
            a.I("v_lshl_add_u32 v21, v22, 5, v21")
            a.I(f"buffer_load_dword v25, v21, {S4(RC)}, s54 offen")
            a.I(f"buffer_load_dword v25, v21, {S4(RC)}, s54 offen offset:2048")
        else:
            a.I("v_lshrrev_b32 v23, 1, v22")
            a.I("v_min_u32 v23, 2, v23")
            a.I("v_lshl_add_u32 v21, v23, 10, v21")
            a.I("v_and_b32 v22, 1, v22")
            a.I("v_lshl_add_u32 v21, v22, 7, v21")
            a.I(f"buffer_load_dword v25, v21, {S4(RC)}, s54 offen")
    else:
        a.I(f"s_cmp_ge_u32 s{S_W}, 2")
        a.I("s_cbranch_scc1 L_pf1")
        srd(a, RC, S_W1, 512*2752)
        a.I("s_and_b32 s55, s52, 3")
        a.I("s_mul_i32 s55, s55, 12")
        a.I("s_min_u32 s55, s55, 31")
        a.I("s_lshl_b32 s55, s55, 6")
        a.I("s_lshl_b32 s54, s53, 4")
        a.I(f"s_lshl_b32 s56, s{S_W}, 3")
        a.I("s_add_u32 s54, s54, s56")
        a.I("s_mul_i32 s54, s54, 2752")
        a.I("s_add_u32 s54, s54, s55")
        a.I("v_lshrrev_b32 v21, 3, v1")
        a.I("v_mul_u32_u24 v21, 2752, v21")
        a.I("v_and_b32 v22, 7, v1")
        a.I("v_lshl_add_u32 v21, v22, 7, v21")
        a.I(f"buffer_load_dword v26, v21, {S4(RC)}, s54 offen")
        a.L("L_pf1")

def consumer(a):
    a.L("L_cons")
    H, XA, WA, ACC, B1, FA, FB = 2, 8, 12, 32, 80, 104, 136
    if not OPT.get("nopf") and not OPT.get("pflate") and not OPT.get("pfprod"):
        l2_prefetch(a, OPT.get("pfmode", 0))
    a.I(f"v_lshrrev_b32 v{H}, 5, v1")
    a.I(f"s_and_b32 s63, s{S_W}, 1")
    a.I(f"s_lshr_b32 s64, s{S_W}, 1")
    srd(a, RD, S_B1, 2752)
    a.I(f"s_add_u32 s54, s{S_START}, s63")
    a.I("s_lshl_b32 s54, s54, 6")
    a.I(f"v_lshlrev_b32 v3, 3, v{H}")
    for s in range(3):
        for q in range(4):
            r = B1 + (s*4+q)*2
            a.I(f"buffer_load_dwordx2 v[{r}:{r+1}], v3, {S4(RD)}, s54 offen offset:{s*128+q*16}")
    for i in range(48):
        a.I(f"v_mov_b32 v{ACC+i}, 0")
    a.I("v_and_b32 v16, 31, v1")
    a.I("v_bfe_u32 v17, v1, 1, 3")
    a.I("s_lshl_b32 s54, s64, 5")
    a.I("v_add_u32 v16, s54, v16")
    a.I("v_lshlrev_b32 v16, 7, v16")
    a.I(f"v_xor_b32 v17, v17, v{H}")
    for ks in range(4):
        a.I(f"v_xor_b32 v18, {2*ks}, v17")
        a.I(f"v_lshl_add_u32 v{XA+ks}, v18, 4, v16")
    tr_lane_addr(a, WA, 1, 16, 17, 8, 384)
    a.I("s_lshl_b32 s54, s63, 6")
    a.I(f"v_xor_b32 v{WA}, s54, v{WA}")
    a.I(f"v_add_u32 v{WA}, 0x10000, v{WA}")
    a.I(f"v_add_u32 v{WA+1}, 49152, v{WA}")
    WF1 = [14, 15, 28, 29, 30, 31]
    if OPT.get("w1perm", 0):
        a.I("v_bfe_u32 v16, v1, 2, 2")
        a.I(f"v_lshl_add_u32 v17, v{H}, 3, v16")
        a.I("v_mul_u32_u24 v17, 384, v17")
        a.I("v_bfe_u32 v18, v1, 4, 1")
        a.I("v_lshlrev_b32 v18, 1, v18")
        a.I("v_bfe_u32 v19, v1, 1, 1")
        a.I("v_add_u32 v18, v18, v19")
        a.I("v_lshl_add_u32 v17, v18, 4, v17")
        a.I("v_and_b32 v18, 1, v1")
        a.I("v_lshl_add_u32 v17, v18, 3, v17")
        a.I("v_add_u32 v17, 0x10000, v17")
        a.I(f"v_add_u32 v18, s{S_START}, v16")
        a.I("v_and_b32 v18, 1, v18")
        a.I("v_cmp_eq_u32 vcc, 1, v18")
        a.I("v_bfe_u32 v19, v1, 3, 1")
        inv = [4, 0, 1, 2, 3, 5]
        for s_ in range(3):
            a.I(f"s_cmp_eq_u32 s63, 0")
            a.I(f"s_cselect_b32 s54, {2*s_}, {2*s_+1}")
            a.I(f"s_cselect_b32 s55, {inv[2*s_]}, {inv[2*s_+1]}")
            a.I(f"v_mov_b32 v26, s54")
            a.I(f"v_mov_b32 v27, s55")
            a.I(f"v_cndmask_b32 v26, v26, v27, vcc")
            a.I(f"v_xor_b32 v26, v26, v19")
            a.I(f"v_lshl_add_u32 v{WF1[s_]}, v26, 6, v17")
            a.I(f"v_add_u32 v{WF1[3+s_]}, 49152, v{WF1[s_]}")

    def reads(b, G, F, qkv=True):
        out = []
        if OPT.get("p1nocons"): return ["s_nop 0"]
        wv = WA + (b >> 1)
        for l in range(2):
            ks = 2*G + l
            out.append(f"ds_read_b128 {vr(F+4*l,4)}, v{XA+ks} offset:{b*8192}")
            for s in range(3):
                for rd in range(2):
                    if qkv or not OPT.get("w1perm", 0):
                        out.append(f"ds_read_b64_tr_b16 {vr(F+8+12*l+4*s+2*rd,2)}, v{wv} offset:{(b&1)*24576 + ks*6144 + rd*1536 + s*128}")
                    else:
                        out.append(f"ds_read_b64_tr_b16 {vr(F+8+12*l+4*s+2*rd,2)}, v{WF1[3*(b>>1)+s]} offset:{(b&1)*24576 + ks*6144 + rd*1536}")
        return out
    def mfmas(F, qkv):
        out = []
        if OPT.get("p1nocons") or OPT.get("p1nomfma"): return ["s_nop 0"]
        for l in range(2):
            for s in range(3):
                X, W = F+4*l, F+8+12*l+4*s
                out.append(MF(ACC+16*s, X, W, ACC+16*s) if (qkv and s == 2) else MF(ACC+16*s, W, X, ACC+16*s))
        return out
    def inter(mf, rd):
        out = []
        per = OPT.get("iper", [4, 4, 3, 3, 0, 0])
        if len(mf) != 6: return mf + rd
        k = 0
        for i, m in enumerate(mf):
            out.append(m)
            out += rd[k:k+per[i]]
            k += per[i]
        assert k >= len(rd)
        return out
    def stage_loop(tag, qkv):
        a.I("s_mov_b32 s65, 0x8000")
        a.L(f"L_loop_{tag}")
        fap = OPT.get("fapos", 2)
        for b in range(4):
            a.I("s_waitcnt lgkmcnt(0)")
            a.I(J(inter(mfmas(FA, qkv), reads(b, 1, FB, qkv))))
            if (not qkv) and b == (fap & 3):
                if fap >= 4:
                    a.I("s_cmp_lt_i32 s65, 0")
                    a.I(f"s_cbranch_scc0 L_nodrain")
                a.I("s_waitcnt vmcnt(0)")
                if fap >= 4: a.L("L_nodrain")
            a.I("s_waitcnt lgkmcnt(0)")
            if b == 3:
                if not qkv:
                    a.I("s_cmp_lt_i32 s65, 0")
                    a.I(f"s_cbranch_scc1 L_last_{tag}")
                for ks in range(4):
                    a.I(f"v_add_u32 v{XA+ks}, s65, v{XA+ks}")
            stamp_dyn(a)
            a.I("s_barrier")
            stamp_dyn(a)
            if qkv and b == 3:
                a.I("s_cmp_lt_i32 s65, 0")
                a.I("s_cbranch_scc1 L_qtail")
            a.I(J(inter(mfmas(FB, qkv), reads((b+1) % 4, 0, FA, qkv))))
        if qkv:
            a.I("s_mov_b32 s65, 0xffff8000")
            a.I(f"s_branch L_loop_{tag}")
            a.L("L_qtail")
            a.I(J(inter(mfmas(FB, qkv), reads(0, 0, FA, False))))
        else:
            a.I("s_mov_b32 s65, 0xffff8000")
            a.I(f"s_branch L_loop_{tag}")
        if not qkv:
            a.L(f"L_last_{tag}")
            a.I(J(mfmas(FB, qkv)))

    if OPT.get("pflate"):
        for i in range(OPT["pflate"]):
            a.I("s_sleep 8")
        l2_prefetch(a, 0)
    if OPT.get("pfw1early"):
        l2_prefetch(a, 1)
    a.I("s_barrier")
    stamp(a, "B0")
    if STAMPS and OPT.get("fine"): a.I("s_mov_b32 s87, 24")
    if not OPT.get("nopf") and not OPT.get("pfw1early"):
        l2_prefetch(a, 1)
    a.I(J(reads(0, 0, FA)))
    stage_loop("q", True)
    stamp(a, "qloop")
    srd(a, RA, S_WS, VF + 2*MB)
    a.I(f"s_lshl_b32 s54, s{S_RB}, 1")
    a.I("s_add_u32 s54, s54, s64")
    a.I(f"s_lshl_b32 s55, s{S_CG}, 2")
    a.I("s_lshl_b32 s56, s63, 1")
    a.I("s_add_u32 s55, s55, s56")
    a.I("s_lshl_b32 s55, s55, 6")
    a.I("s_add_u32 s54, s54, s55")
    a.I("s_lshl_b32 s54, s54, 10")
    a.I("v_lshlrev_b32 v3, 4, v1")
    a.I("v_bfe_u32 v4, v1, 4, 1")
    a.I("v_lshlrev_b32 v4, 16, v4")
    a.I(f"v_lshl_add_u32 v4, v{H}, 8, v4")
    a.I("v_and_b32 v5, 15, v1")
    a.I("v_lshl_add_u32 v4, v5, 4, v4")
    a.I(f"s_mov_b32 s56, {hex(f2u(QSCALE))}")
    a.I("s_waitcnt vmcnt(0)")
    a.I("s_nop 4")
    for idx, s in enumerate((1, 2, 0)):
        d = ACC + 16*s
        if s == 0:
            for i in range(16):
                a.I(f"v_mul_f32 v{d+i}, s56, v{d+i}")
        for j in range(8):
            a.I(f"v_cvt_pk_bf16_f32 v{d+j}, v{d+2*j}, v{d+2*j+1}")
        if s < 2:
            for hh in range(2):
                a.I(f"s_add_u32 s55, s54, {(KF if s else QF) + hh*65536}")
                a.I(f"buffer_store_dwordx4 {vr(d+4*hh,4)}, v3, {S4(RA)}, s55 offen sc1")
        else:
            a.I(f"s_add_u32 s55, s54, {VF}")
            for u in range(2):
                a.I(f"buffer_store_dwordx4 {vr(d+4*u,4)}, v4, {S4(RA)}, s55 offen offset:{u*512} sc1")
    a.I("s_nop 1")
    for s in range(3):
        for q in range(4):
            r = B1 + (s*4+q)*2
            d = ACC + s*16 + q*4
            a.I(f"v_lshlrev_b32 v{d}, 16, v{r}")
            a.I(f"v_and_b32 v{d+1}, 0xffff0000, v{r}")
            a.I(f"v_lshlrev_b32 v{d+2}, 16, v{r+1}")
            a.I(f"v_and_b32 v{d+3}, 0xffff0000, v{r+1}")
    stage_loop("f", False)
    a.I("s_barrier")
    stamp(a, "floop")
    srd_off(a, RA, S_WS, HF, HF_SIZE)
    a.I(f"s_lshl_b32 s54, s{S_RB}, 1")
    a.I("s_add_u32 s54, s54, s64")
    a.I(f"s_add_u32 s55, s{S_START}, s63")
    a.I("s_lshl_b32 s55, s55, 7")
    a.I("s_add_u32 s54, s54, s55")
    a.I("s_lshl_b32 s54, s54, 10")
    a.I("v_lshlrev_b32 v3, 4, v1")
    a.I("s_nop 4")
    for s in range(3):
        d = ACC + 16*s
        for i in range(16):
            a.I(f"v_max_f32 v{d+i}, 0, v{d+i}")
        for i in range(16):
            a.I(f"v_mul_f32 v{d+i}, v{d+i}, v{d+i}")
        for j in range(8):
            a.I(f"v_cvt_pk_bf16_f32 v{d+j}, v{d+2*j}, v{d+2*j+1}")
        for uu in range(2):
            a.I(f"s_add_u32 s55, s54, {(4*s+uu)*65536}")
            a.I(f"buffer_store_dwordx4 {vr(d+4*uu,4)}, v3, {S4(RA)}, s55 offen sc1")
    a.I("s_nop 1")
    a.I("s_branch L_attn")

def aux_side_issue(a):
    a.I("s_sub_u32 s66, s67, 4")
    a.I(f"s_lshl_b32 s54, s2, 2")
    a.I("s_or_b32 s54, s54, s66")
    a.I("s_cmp_lg_u32 s54, 0")
    a.I("s_cbranch_scc1 L_aux1")
    srd(a, RD, S_DBG, 256)
    a.I("s_memrealtime s[54:55]")
    a.I("s_waitcnt lgkmcnt(0)")
    a.I("s_or_b32 s85, s54, 1")
    a.I("v_mov_b32 v8, s85")
    a.I("v_mov_b32 v10, 0")
    a.I("s_mov_b64 exec, 1")
    a.I(f"buffer_store_dword v8, v10, {S4(RD)}, 0 offen sc1")
    a.I("s_mov_b64 exec, -1")
    a.L("L_aux1")
    a.I(f"s_lshl_b32 s54, s{S_RB}, 6")
    a.I(f"s_lshl_b32 s55, s{S_CG}, 3")
    a.I("s_add_u32 s54, s54, s55")
    a.I("s_lshl_b32 s55, s66, 1")
    a.I("s_add_u32 s86, s54, s55")
    return 0

def aux_side_loads(a):
    a.I("s_lshl_b32 s54, s86, 10")
    srd_off(a, RD, S_AX, "s54", 2048)
    a.I("v_and_b32 v2, 31, v1")
    a.I("v_lshlrev_b32 v2, 5, v2")
    a.I("v_lshrrev_b32 v3, 5, v1")
    a.I("v_lshl_add_u32 v4, v3, 10, v2")
    for i in range(2):
        a.I(f"buffer_load_dwordx4 {vr(32+4*i,4)}, v4, {S4(RD)}, 0 offen offset:{16*i}")
    srd(a, RD, S_GW, 1024)
    for i in range(2):
        a.I(f"buffer_load_dwordx4 {vr(40+4*i,4)}, v2, {S4(RD)}, 0 offen offset:{16*i}")
    n = 4
    if OPT.get("codepf", 1) and not OPT.get("codeearly", 0):
        a.I("s_getpc_b64 s[52:53]")
        a.L("L_pc")
        a.I(f"s_sub_u32 s52, s52, L_pc-{KN}")
        a.I("s_subb_u32 s53, s53, 0")
        a.I("s_mul_i32 s54, s66, 6144")
        a.I("v_lshlrev_b32 v5, 7, v1")
        a.I("v_add_u32 v5, s54, v5")
        a.I(f"v_min_u32 v5, L_code_end-{KN}-4, v5")
        a.I("s_mov_b32 exec_hi, 0xffff")
        a.I("global_load_dword v116, v5, s[52:53]")
        a.I("s_mov_b64 exec, -1")
        n += 1
    return n

def aux_nonce_issue(a):
    srd(a, RD, S_DBG, 256)
    a.I("v_mov_b32 v10, 0")
    a.I(f"buffer_load_dword v8, v10, {S4(RD)}, 0 offen sc1")
    return 1

def aux_nonce_take(a):
    a.I(f"v_readfirstlane_b32 s{S_NONCE}, v8")
    a.I("s_mov_b32 s50, 0x40000")
    a.L("L_nonce")
    a.I(f"s_cmp_lg_u32 s{S_NONCE}, 0")
    a.I("s_cbranch_scc1 L_nonce_ok")
    a.I("s_sub_u32 s50, s50, 1")
    a.I("s_cmp_eq_u32 s50, 0")
    a.I("s_cbranch_scc1 L_nonce_ok")
    srd(a, RD, S_DBG, 256)
    a.I(f"buffer_load_dword v8, v10, {S4(RD)}, 0 offen sc1")
    a.I("s_waitcnt vmcnt(0)")
    a.I(f"v_readfirstlane_b32 s{S_NONCE}, v8")
    a.I("s_branch L_nonce")
    a.L("L_nonce_ok")

def aux_gate(a):
    if OPT.get("p1noprod"): a.I("s_waitcnt vmcnt(0)")
    a.I("v_mov_b32 v24, 0")
    for i in range(8):
        a.I(f"v_dot2c_f32_bf16 v24, v{32+i}, v{40+i}")
    a.I("s_nop 3")
    for sh in (1, 2, 4, 8):
        a.I(f"v_add_f32_dpp v24, v24, v24 row_shr:{sh} row_mask:0xf bank_mask:0xf")
        a.I("s_nop 1")
    a.I("v_add_f32_dpp v24, v24, v24 row_bcast:15 row_mask:0xa bank_mask:0xf")
    a.I("s_nop 1")
    a.I("v_cvt_pk_bf16_f32 v24, v24, v24")
    a.I("v_and_b32 v24, 0xffff0000, v24")
    a.I(f"v_mul_f32 v24, {hex(f2u(-1.4426950408889634))}, v24")
    a.I("v_exp_f32 v24, v24")
    a.I("s_nop 0")
    a.I("v_add_f32 v24, 1.0, v24")
    a.I("v_rcp_f32 v24, v24")
    a.I("s_nop 0")
    a.I("v_cvt_pk_bf16_f32 v24, v24, v24")
    a.I("v_and_b32 v24, 0xffff0000, v24")
    srd_off(a, RD, S_WS, GO, 8192)
    a.I("s_lshl_b32 s54, s86, 2")
    a.I("v_lshrrev_b32 v3, 5, v1")
    a.I("v_lshlrev_b32 v3, 2, v3")
    a.I("s_mov_b32 s52, 0x80000000")
    a.I("s_mov_b32 s53, 0x80000000")
    a.I("s_mov_b64 exec, s[52:53]")
    a.I(f"buffer_store_dword v24, v3, {S4(RD)}, s54 offen sc1")
    a.I("s_mov_b64 exec, -1")

def aux_publish_fa(a):
    a.I("s_cmp_lg_u32 s66, 0")
    a.I("s_cbranch_scc1 L_aux2")
    srd_off(a, RD, S_WS, FLG, FLG_SIZE)
    a.I(f"s_lshl_b32 s54, s{S_CG}, 7")
    a.I(f"s_lshl_b32 s55, s{S_RB}, 2")
    a.I("s_add_u32 s54, s54, s55")
    a.I(f"s_add_u32 s54, s54, {FA_OFF}")
    a.I(f"v_mov_b32 v8, s{S_NONCE}")
    a.I(f"v_mov_b32 v10, 0")
    a.I("s_mov_b64 exec, 1")
    a.I(f"buffer_store_dword v8, v10, {S4(RD)}, s54 offen sc1")
    a.I("s_mov_b64 exec, -1")
    stamp(a, "FApub")
    a.L("L_aux2")

def aux_zero_misc(a):
    a.I("s_cmp_lg_u32 s66, 1")
    a.I("s_cbranch_scc1 L_aux3")
    a.I(f"v_lshlrev_b32 v10, 2, v1")
    if L_MISC: a.I(f"v_add_u32 v10, {L_MISC}, v10")
    a.I("v_mov_b32 v9, 0")
    a.I("ds_write_b32 v10, v9")
    a.I("s_waitcnt lgkmcnt(0)")
    a.I("v_mov_b32 v10, 0")
    a.L("L_aux3")

def aux_share_nonce(a):
    a.I("s_cmp_lg_u32 s66, 0")
    a.I("s_cbranch_scc1 L_aux4")
    a.I(f"v_mov_b32 v9, {L_MISC + 128}")
    a.I(f"v_mov_b32 v11, s{S_NONCE}")
    a.I("ds_write_b32 v9, v11")
    a.I("s_waitcnt lgkmcnt(0)")
    a.L("L_aux4")

def aux_fa_probe(a):
    srd_off(a, RC, S_WS, FLG, FLG_SIZE)
    a.I(f"s_lshr_b32 s88, s{S_HD}, 2")
    a.I("s_lshl_b32 s88, s88, 7")
    a.I(f"s_add_u32 s88, s88, {FA_OFF}")
    a.I("v_lshlrev_b32 v9, 2, v1")
    a.I("s_mov_b32 exec_hi, 0")
    a.I(f"buffer_load_dword v11, v9, {S4(RC)}, s88 offen sc1")
    a.I("s_mov_b64 exec, -1")

def aux_after_e1(a):
    a.I("s_mov_b32 s67, s66")
    a.I("s_setprio 3")
    stamp(a, "E2")
    a.I("s_mov_b32 exec_hi, 0")
    a.I("s_waitcnt vmcnt(0)")
    a.I(f"v_cmp_ne_u32 vcc, s{S_NONCE}, v11")
    a.I("s_mov_b64 exec, -1")
    a.I("s_cbranch_vccz L_aux5")
    poll(a, RC, 32, 9, 11, "s88", OPT.get("faslp", 2))
    a.L("L_aux5")
    stamp(a, "FAok")
    VL = 4
    a.I(f"v_lshlrev_b32 v{VL}, 4, v1")
    a.I(f"s_lshl_b32 s54, s{S_HD}, 16")
    a.I(f"s_add_u32 s55, s54, {KF}")
    srd_off(a, RA, S_WS, "s55", 65536)
    a.I(f"s_add_u32 s55, s54, {VF}")
    srd_off(a, RB, S_WS, "s55", 65536)
    a.I(f"s_add_u32 s55, s54, {QF}")
    srd_off(a, RD, S_WS, "s55", 65536)
    a.I(f"s_lshl_b32 s54, s{S_QB}, 3")
    a.I("s_lshl_b32 s55, s67, 1")
    a.I("s_add_u32 s54, s54, s55")
    a.I("s_lshl_b32 s54, s54, 10")
    a.I("s_lshl_b32 s55, s67, 11")
    a.I(f"s_add_u32 s55, s55, {L_RING}")
    for t in range(2):
        a.I(f"s_add_u32 m0, s55, {t*1024}")
        a.I(f"s_add_u32 s56, s54, {t*1024}")
        a.I(f"buffer_load_dwordx4 v{VL}, {S4(RD)}, s56 offen sc1 lds")
    a.I("s_lshl_b32 s54, s67, 10")
    def kvchunks(cs):
        for c in cs:
            a.I(f"s_add_u32 s55, s54, {c*4096}")
            a.I(f"s_add_u32 m0, s55, {L_K}")
            a.I(f"s_add_u32 s56, s55, {L_V}")
            a.I(f"buffer_load_dwordx4 v{VL}, {S4(RA)}, s55 offen sc1 lds")
            a.I("s_mov_b32 m0, s56")
            a.I("s_nop 0")
            a.I(f"buffer_load_dwordx4 v{VL}, {S4(RB)}, s55 offen sc1 lds")
    kvchunks(range(0, 2))
    kvchunks(range(2, 4))
    a.I("s_waitcnt vmcnt(4)")
    lds_add1(a, M_KV, 8, 9)
    stamp(a, "KV1")
    kvchunks(range(4, 16))
    a.I("s_lshr_b32 s53, s2, 3")
    srd(a, RA, S_W2, 1376*1024)
    srd(a, RB, S_WO, 512*1024)
    a.I("s_mul_i32 s54, s53, 44032")
    a.I("s_lshl_b32 s55, s67, 10")
    a.I("s_add_u32 s54, s54, s55")
    a.I("s_waitcnt vmcnt(0)")
    lds_add1(a, M_KV, 8, 9)
    stamp(a, "KV2")
    a.I("v_lshlrev_b32 v10, 7, v1")
    a.I("s_lshl_b32 s55, s67, 13")
    a.I("s_mul_i32 s54, s53, 44032")
    a.I("s_add_u32 s54, s54, s55")
    a.I(f"buffer_load_dword v40, v10, {S4(RA)}, s54 offen")
    a.I("s_add_u32 s54, s54, 32768")
    a.I(f"buffer_load_dword v41, v10, {S4(RA)}, s54 offen")
    a.I("s_lshl_b32 s54, s53, 14")
    a.I("s_lshl_b32 s55, s67, 12")
    a.I("s_add_u32 s54, s54, s55")
    a.I("s_mov_b32 exec_hi, 0")
    a.I(f"buffer_load_dword v42, v10, {S4(RB)}, s54 offen")
    a.I("s_mov_b64 exec, -1")

def ffn2_p3(a):
    WF, HR, ACC2, BPR = 24, 40, 104, 8
    VH, VW, VA0, VA1 = 2, 3, 4, 5
    a.I("s_cmp_lg_u32 s67, 0")
    a.I("s_cbranch_scc1 L_f1")
    lds_spin(a, M_HST, 4, 8, 9, OPT.get('fslp', 1))
    lds_spin(a, M_KV, 8, 8, 9)
    a.I(f"s_lshl_b32 s54, s{S_RB}, 7")
    a.I(f"s_lshl_b32 s55, s{S_CG}, 2")
    a.I("s_add_u32 s54, s54, s55")
    a.I(f"s_add_u32 s54, s54, {FH_OFF}")
    flag_store(a, "s54", 8, 10)
    a.I(f"s_lshl_b32 s54, s{S_HD}, 7")
    a.I(f"s_add_u32 s54, s54, {FH_OFF}")
    a.I("v_lshlrev_b32 v8, 2, v1")
    poll(a, RC, 8, 8, 9, "s54", OPT.get("fhslp", 8))
    lds_add1(a, M_H, 8, 9)
    a.I("s_branch L_f2")
    a.L("L_f1")
    lds_spin(a, M_H, 1, 8, 9, OPT.get('fslp', 1))
    a.L("L_f2")
    lds_spin(a, M_QRD, 8, 8, 9, OPT.get('fslp', 1))
    stamp(a, "hready")
    srd(a, RA, S_W2, 1376*1024)
    srd_off(a, RB, S_WS, HF, HF_SIZE)
    a.I(f"v_lshlrev_b32 v{VH}, 4, v1")
    dma_w_lane_off(a, VW, 1, 8, 9, 1024)
    a.I(f"s_lshl_b32 s54, s{S_QB}, 7")
    a.I(f"v_add_u32 v{VW}, s54, v{VW}")
    tr_lane_addr(a, VA0, 1, 8, 9, 4, 128)
    a.I("s_mul_i32 s68, s67, 6144")
    a.I(f"s_add_u32 s68, s68, {L_RING}")
    a.I(f"v_add_u32 v{VA0}, s68, v{VA0}")
    a.I(f"v_xor_b32 v{VA1}, 64, v{VA0}")
    a.I("s_mul_i32 s54, s67, 24")
    a.I("s_lshl_b32 s70, s54, 14")
    a.I("s_lshl_b32 s71, s54, 16")
    a.I(f"s_lshl_b32 s55, s{S_HD}, 11")
    a.I("s_add_u32 s71, s71, s55")
    for i in range(64):
        a.I(f"v_mov_b32 v{ACC2+i}, 0")
    a.I("s_waitcnt vmcnt(0)")
    def fissue(slot):
        return [f"s_add_u32 m0, s68, {slot*2048}",
                f"s_add_u32 s69, s70, 8192",
                f"buffer_load_dwordx4 v{VW}, {S4(RA)}, s70 offen lds",
                f"s_add_u32 m0, s68, {slot*2048+1024}",
                f"s_add_u32 s70, s70, 16384",
                f"buffer_load_dwordx4 v{VW}, {S4(RA)}, s69 offen lds",
                f"buffer_load_dwordx4 {vr(HR+slot*8,4)}, v{VH}, {S4(RB)}, s71 offen sc1",
                f"buffer_load_dwordx4 {vr(HR+slot*8+4,4)}, v{VH}, {S4(RB)}, s71 offen offset:1024 sc1",
                f"s_add_u32 s71, s71, 65536"]
    def trr(F, off):
        out = []
        for ct, va in ((0, VA0), (1, VA1)):
            for rd in range(2):
                out.append(f"ds_read_b64_tr_b16 {vr(F+4*ct+2*rd,2)}, v{va} offset:{off + rd*1024}")
        return out
    N2 = OPT.get("n2", 0)
    a.I("s_cmp_eq_u32 s67, 3")
    a.I(f"s_cselect_b32 s72, {5-N2}, {8-N2}")
    a.I("s_mov_b32 s76, 0")
    a.L("L_fpro")
    for slot in range(3):
        a.I(J(fissue(slot)))
    a.I("s_cmp_lg_u32 s76, 0")
    a.I("s_cbranch_scc1 L_floop")
    a.I(f"s_setprio {OPT.get('ffnprio', 0)}")
    if OPT.get("noffn"): a.I("s_branch L_fskip")
    a.L("L_floop")
    for slot in range(3):
        a.I("s_waitcnt vmcnt(8)")
        a.I(J(trr(WF, slot*2048)))
        a.I("s_waitcnt lgkmcnt(0)")
        fi = fissue(slot)
        mf = lambda ct, rt: MF(ACC2 + (ct*2+rt)*16, WF+4*ct, HR+slot*8+4*rt, ACC2 + (ct*2+rt)*16)
        if OPT.get("fspread", 1):
            a.I(mf(0, 0)); a.I(J(fi[0:3]))
            a.I(mf(1, 0)); a.I(J(fi[3:6]))
            a.I(mf(0, 1)); a.I(fi[6])
            a.I(mf(1, 1)); a.I(J(fi[7:]))
        else:
            for ct in range(2):
                for rt in range(2):
                    a.I(mf(ct, rt))
            a.I(J(fi))
    a.I("s_sub_u32 s72, s72, 1")
    a.I("s_cmp_lg_u32 s72, 0")
    a.I("s_cbranch_scc1 L_floop")
    a.L("L_fskip")
    a.I("s_setprio 3")
    a.I("s_waitcnt vmcnt(0)")
    a.I("s_cmp_lg_u32 s76, 0")
    a.I("s_cbranch_scc1 L_fdone")
    lds_add1(a, M_FFN, 8, 9)
    stamp(a, "ffn2")
    lds_spin(a, M_ATT, 4, 8, 9, OPT.get('attslp', 1))
    stamp(a, "attdone")
    srd(a, RD, S_WO, 512*1024)
    a.I("s_lshl_b32 s56, s67, 14")
    a.I(f"s_add_u32 s56, s56, {L_K}")
    a.I("s_lshl_b32 s57, s67, 17")
    for ks in range(8):
        for n in range(2):
            a.I(f"s_add_u32 m0, s56, {ks*2048+n*1024}")
            a.I(f"s_add_u32 s69, s57, {ks*16384+n*8192}")
            a.I(f"buffer_load_dwordx4 v{VW}, {S4(RD)}, s69 offen lds")
    if N2:
        a.I("s_mov_b32 s76, 1")
        a.I(f"s_sub_u32 s70, s70, {3*16384}")
        a.I(f"s_sub_u32 s71, s71, {3*65536}")
        a.I(f"s_mov_b32 s72, {N2}")
        a.I("s_branch L_fpro")
    a.L("L_fdone")
    srd_off(a, RA, S_WS, GO, 8192)
    srd(a, RB, S_B2, 1024)
    a.I("s_and_b32 s73, s67, 1")
    a.I("s_lshr_b32 s74, s67, 1")
    a.I(f"s_lshl_b32 s75, s{S_HD}, 6")
    a.I("s_lshl_b32 s54, s73, 5")
    a.I("s_add_u32 s75, s75, s54")
    a.I("s_lshl_b32 s54, s75, 2")
    a.I("v_and_b32 v8, 31, v1")
    a.I("v_lshlrev_b32 v8, 2, v8")
    a.I(f"buffer_load_dword v40, v8, {S4(RA)}, s54 offen sc1")
    a.I(f"s_lshl_b32 s54, s{S_QB}, 6")
    a.I("s_lshl_b32 s55, s74, 5")
    a.I("s_add_u32 s54, s54, s55")
    a.I("s_lshl_b32 s54, s54, 1")
    a.I("v_lshrrev_b32 v8, 5, v1")
    a.I("v_lshlrev_b32 v8, 3, v8")
    for q in range(4):
        a.I(f"buffer_load_dwordx2 v[{42+2*q}:{43+2*q}], v8, {S4(RB)}, s54 offen offset:{q*16}")
    a.I("s_lshl_b32 s68, s67, 14")
    a.I("s_nop 7")
    a.I(f"s_add_u32 s54, s68, {L_V}")
    a.I(f"v_add_u32 v8, s54, v{VH}")
    for i in range(16):
        a.I(f"ds_write_b128 v8, {vr(ACC2+4*i,4)} offset:{i*1024}")
    a.I("s_waitcnt vmcnt(0) lgkmcnt(0)")
    lds_add1(a, M_T1, 9, 10)
    lds_spin(a, M_T1, 4, 9, 10)
    a.I("s_lshl_b32 s54, s67, 12")
    a.I(f"s_add_u32 s54, s54, {L_V}")
    a.I(f"v_add_u32 v8, s54, v{VH}")
    for p in range(4):
        for q in range(4):
            a.I(f"ds_read_b128 {vr(ACC2+p*16+q*4,4)}, v8 offset:{p*16384+q*1024}")
    a.I("s_waitcnt lgkmcnt(0)")
    for i in range(16):
        a.I(f"v_add_f32 v{ACC2+i}, v{ACC2+i}, v{ACC2+16+i}")
        a.I(f"v_add_f32 v{ACC2+32+i}, v{ACC2+32+i}, v{ACC2+48+i}")
    for i in range(16):
        a.I(f"v_add_f32 v{ACC2+i}, v{ACC2+i}, v{ACC2+32+i}")
    a.I("s_waitcnt vmcnt(0)")
    a.I("v_sub_f32 v41, 1.0, v40")
    a.I("v_cvt_pk_bf16_f32 v41, v41, v41")
    a.I("v_and_b32 v41, 0xffff0000, v41")
    for q in range(4):
        a.I(f"v_lshlrev_b32 v52, 16, v{42+2*q}")
        a.I(f"v_and_b32 v53, 0xffff0000, v{42+2*q}")
        a.I(f"v_lshlrev_b32 v54, 16, v{43+2*q}")
        a.I(f"v_and_b32 v55, 0xffff0000, v{43+2*q}")
        for j in range(4):
            a.I(f"v_add_f32 v{BPR+4*q+j}, v{ACC2+4*q+j}, v{52+j}")
        for j in range(4):
            a.I(f"v_mul_f32 v{BPR+4*q+j}, v{BPR+4*q+j}, v41")
    a.I("v_mov_b32 v39, v40")
    tr_lane_addr(a, VA0, 1, 32, 33, 4, 128)
    a.I("s_lshl_b32 s54, s74, 6")
    a.I(f"v_xor_b32 v{VA0}, s54, v{VA0}")
    a.I(f"v_add_u32 v{VA0}, {L_K}, v{VA0}")
    a.I("s_lshl_b32 s54, s73, 15")
    a.I(f"s_add_u32 s54, s54, {L_V}")
    a.I(f"v_add_u32 v{VA1}, s54, v{VH}")
    FR = 40
    def wreads(ks):
        F = FR + (ks % 8) * 8
        return [f"ds_read_b64_tr_b16 {vr(F,2)}, v{VA0} offset:{ks*2048}",
                f"ds_read_b64_tr_b16 {vr(F+2,2)}, v{VA0} offset:{ks*2048+1024}"]
    def oread(ks):
        F = FR + (ks % 8) * 8
        return [f"ds_read_b128 {vr(F+4,4)}, v{VA1} offset:{ks*1024}"]
    a.I("s_cmp_lg_u32 s67, 0")
    a.I("s_cbranch_scc1 L_f4")
    a.I(f"s_lshl_b32 s54, s{S_HD}, 8")
    a.I(f"s_add_u32 s54, s54, {FO_OFF}")
    a.I("v_lshlrev_b32 v121, 2, v1")
    if not OPT.get("opf", 0):
        poll(a, RC, 64, 121, 122, "s54", OPT.get("foslp", 2))
    else:
        srd_off(a, RB, S_WS, OF, 2*MB)
        a.I(f"s_lshl_b32 s55, s{S_HD}, 16")
        a.I("v_lshlrev_b32 v123, 10, v1")
        a.I("s_mov_b64 s[56:57], 0")
        a.I("s_mov_b32 s50, 0x40000")
        a.L("L_opf")
        a.I(f"buffer_load_dword v122, v121, {S4(RC)}, s54 offen sc1")
        a.I("s_waitcnt vmcnt(0)")
        a.I(f"v_cmp_eq_u32 vcc, s{S_NONCE}, v122")
        a.I("s_nop 1")
        a.I("s_andn2_b64 s[58:59], vcc, s[56:57]")
        a.I("s_or_b64 s[56:57], s[56:57], vcc")
        a.I("s_cmp_eq_u64 s[56:57], -1")
        a.I("s_cbranch_scc1 L_opf3")
        a.I("s_cmp_eq_u64 s[58:59], 0")
        a.I("s_cbranch_scc1 L_opf2")
        a.I("s_mov_b64 exec, s[58:59]")
        for j in range(8):
            a.I(f"buffer_load_dword v120, v123, {S4(RB)}, s55 offen offset:{j*128} sc1")
        a.I("s_mov_b64 exec, -1")
        a.L("L_opf2")
        a.I("s_sub_u32 s50, s50, 1")
        a.I("s_cmp_eq_u32 s50, 0")
        a.I("s_cbranch_scc1 L_opf3")
        a.I(f"s_sleep {OPT.get('foslp', 2)}")
        a.I("s_branch L_opf")
        a.L("L_opf3")
    a.L("L_f4")
    for ks in range(8): a.I(J(wreads(ks)))
    srd_off(a, RB, S_WS, OF, 2*MB)
    a.I(f"s_lshl_b32 s54, s{S_HD}, 16")
    a.I("s_lshl_b32 s55, s67, 11")
    a.I("s_add_u32 s54, s54, s55")
    a.I(f"s_add_u32 s55, s55, {L_V}")
    srd(a, RA, S_OUT, 2*MB)
    a.I("s_lshl_b32 s58, s75, 10")
    a.I(f"s_lshl_b32 s59, s{S_QB}, 7")
    a.I("s_add_u32 s58, s58, s59")
    a.I("s_lshl_b32 s59, s74, 6")
    a.I("s_add_u32 s58, s58, s59")
    a.I("v_and_b32 v32, 31, v1")
    a.I("v_lshlrev_b32 v32, 10, v32")
    a.I("v_lshrrev_b32 v33, 5, v1")
    a.I("v_lshl_add_u32 v32, v33, 4, v32")
    a.I("s_waitcnt lgkmcnt(0)")
    a.I("s_barrier")
    stamp(a, "T2")
    def odma(ch):
        L = []
        for hh in range(2):
            for rt in range(2):
                off = rt*32768 + ch*8192 + hh*1024
                L.append([f"s_add_u32 m0, s55, {off}", f"s_add_u32 s56, s54, {off}",
                          f"buffer_load_dwordx4 v{VH}, {S4(RB)}, s56 offen sc1 lds"])
        return L
    for ch in range(4):
        for x in odma(ch): a.I(J(x))
    for ch in range(4):
        a.I(f"s_waitcnt vmcnt({4*(3-ch)}) lgkmcnt(0)")
        a.I("s_barrier")
        for ks in range(8*ch, 8*ch+8): a.I(J(oread(ks)))
        for i in range(8):
            ks = 8*ch + i
            a.I(f"s_waitcnt lgkmcnt({7 + i if ch < 3 else 7 - i})")
            F = FR + i*8
            a.I(MF(ACC2, F, F+4, ACC2 if ks else None))
            if ch < 3: a.I(J(wreads(ks+8)))
    a.I("s_nop 15")
    stamp(a, "p3mm")
    for i in range(16):
        a.I(f"v_fma_f32 v{ACC2+i}, v{ACC2+i}, v39, v{BPR+i}")
    for j in range(8):
        a.I(f"v_cvt_pk_bf16_f32 v{ACC2+j}, v{ACC2+2*j}, v{ACC2+2*j+1}")
    a.I("s_nop 1")
    a.I(f"v_permlane32_swap_b32 v{ACC2}, v{ACC2+2}")
    a.I(f"v_permlane32_swap_b32 v{ACC2+1}, v{ACC2+3}")
    a.I(f"v_permlane32_swap_b32 v{ACC2+4}, v{ACC2+6}")
    a.I(f"v_permlane32_swap_b32 v{ACC2+5}, v{ACC2+7}")
    ofl = {0: "", 1: " sc1", 2: " nt", 3: " sc0 sc1"}[OPT.get("outfl", 0)]
    a.I(f"buffer_store_dwordx4 {vr(ACC2,4)}, v32, {S4(RA)}, s58 offen{ofl}")
    a.I(f"buffer_store_dwordx4 {vr(ACC2+4,4)}, v32, {S4(RA)}, s58 offen offset:32{ofl}")
    stamp_flush(a)
    a.I("s_endpgm")

def attention(a):
    a.L("L_attn")
    stamp(a, "attn0")
    QA, QB = 8, 12
    KB = [16, 20]; VB = [24, 32]
    S0, S1, OA, OB = 40, 56, 72, 88
    VK, VV, VL = 2, 3, 4
    T0, T1, T2 = 104, 105, 106
    VKN, VVN, VVB, VCH, VONE, VNX = 107, 108, 109, 110, 111, 5
    a.I(f"s_and_b32 s63, s{S_W}, 3")
    a.I(f"s_lshr_b32 s64, s{S_W}, 2")
    a.I(f"v_lshlrev_b32 v{VL}, 4, v1")
    a.I(f"v_lshrrev_b32 v{T0}, 5, v1")
    a.I(f"v_and_b32 v{T1}, 15, v1")
    a.I(f"v_lshlrev_b32 v{T1}, 4, v{T1}")
    a.I(f"v_lshl_add_u32 v{VVB}, v{T0}, 8, v{T1}")
    a.I(f"v_add_u32 v{VVB}, {L_V}, v{VVB}")
    a.I(f"v_add_u32 v{VKN}, {L_K}, v{VL}")
    a.I("s_lshl_b32 s54, s64, 12")
    a.I(f"v_add_u32 v{VK}, s54, v{VL}")
    a.I(f"v_add_u32 v{VV}, s54, v{VVB}")
    a.I("s_lshl_b32 s54, s63, 2")
    a.I(f"s_add_u32 s54, s54, {M_CH}")
    a.I(f"v_mov_b32 v{VCH}, s54")
    a.I(f"v_mov_b32 v{VONE}, 1")
    a.I("s_mov_b32 s74, 0x0000ffff")
    a.I("s_mov_b32 s75, 0x0000ffff")
    a.I("s_mov_b32 s77, 0")
    a.I(f"s_lshl_b32 s66, s{S_QB}, 3")
    a.I("s_lshl_b32 s54, s63, 1")
    a.I("s_add_u32 s66, s66, s54")
    a.I("s_lshl_b32 s54, s63, 11")
    a.I(f"s_add_u32 s54, s54, {L_RING}")
    a.I(f"v_add_u32 v{T2}, s54, v{VL}")
    a.I(f"v_and_b32 v{T0}, 31, v1")
    a.I(f"v_cmp_eq_u32 vcc, 16, v{T0}")
    a.I(f"v_mov_b32 v{T1}, 0x3f803f80")
    a.I("s_nop 1")
    a.I(f"v_cndmask_b32 v{T0}, 0, v{T1}, vcc")
    for i in range(16):
        a.I(f"v_mov_b32 v{VB[0]+i}, v{T0}")
    lds_spin(a, M_KV, 4, T0, T1)
    stamp(a, "kvok")
    a.I(f"ds_read_b128 {vr(QA,4)}, v{T2}")
    a.I(f"ds_read_b128 {vr(QB,4)}, v{T2} offset:1024")
    for i in range(16):
        a.I(f"v_mov_b32 v{OA+i}, 0")
        a.I(f"v_mov_b32 v{OB+i}, 0")
    a.I("s_waitcnt lgkmcnt(0)")
    lds_add1(a, M_QRD, T0, T1)
    a.I("s_lshl_b32 s71, s64, 12")
    if STAMPS and OPT.get("fineattn"): a.I("s_mov_b32 s87, 24")
    a.I("s_mov_b32 s73, 0")

    def e_(S, i): return f"v_exp_f32 v{S+i}, v{S+i}"
    def c_(S, j): return f"v_cvt_pk_bf16_f32 v{S+j}, v{S+2*j}, v{S+2*j+1}"
    def tile(Sin, Sout, Qn, Kn, Ocur, Vcur_u0, Oprev, Vprev_u1, after_pv2, wait_s, after_s, wait_pv1, do_pv2=True, do_s=True):
        e = lambda i: e_(Sin, i)
        c = lambda j: c_(Sin, j)
        L = [e(0), e(1)]
        if do_pv2: L.append(MF(Oprev, Vprev_u1, Sout+4, Oprev))
        L += after_pv2
        L += [e(2), e(3), c(0), e(4), e(5), c(1)]
        L += wait_s
        if do_s: L.append(MF(Sout, Kn, Qn))
        L += after_s
        L += [e(6), e(7), c(2), e(8), e(9), c(3), e(10), e(11)]
        L += wait_pv1
        L.append(MF(Ocur, Vcur_u0, Sin, Ocur))
        L += [c(4), e(12), e(13), c(5), e(14), e(15), c(6), c(7)]
        return L
    fifo = []
    def dsr(tag, txt): fifo.append(tag); return txt
    def need(tag):
        idx = max(i for i, t in enumerate(fifo) if t == tag)
        return [f"s_waitcnt lgkmcnt({len(fifo) - 1 - idx})"]
    def vreads(t):
        kap = t & 1
        return ["s_mov_b64 exec, s[74:75]",
                dsr(("V", t), f"ds_read_b128 {vr(VB[kap],4)}, v{VV} offset:{t*1024}"),
                dsr(("V", t), f"ds_read_b128 {vr(VB[kap]+4,4)}, v{VV} offset:{t*1024+512}"),
                "s_mov_b64 exec, -1"]
    def kread(t): return [dsr(("K", t), f"ds_read_b128 {vr(KB[t & 1],4)}, v{VK} offset:{t*1024}")]
    a.raw(".p2align 6")
    a.L("L_aloop")
    if OPT.get("fineattn"):
        OPT["fine"] = 1; stamp_dyn(a); OPT["fine"] = 0
    a.I(f"v_add_u32 v{VK}, s71, v{VKN}")
    a.I(f"v_add_u32 v{VV}, s71, v{VVB}")
    L = kread(0) + vreads(0) + kread(1)
    L += need(("K", 0))
    L.append(MF(S0, KB[0], QA))
    a.I(J(L))
    a.I("s_nop 7")
    a.I("s_nop 3")
    body = []
    for t in range(4):
        kap = t & 1
        A = []
        Sin, Sout = S0, S1
        A += [e_(Sin, 0), e_(Sin, 1)]
        if t > 0: A.append(MF(OB, VB[kap^1]+4, Sout+4, OB))
        if t + 1 < 4: A += vreads(t+1)
        A += [e_(Sin, 2), e_(Sin, 3), c_(Sin, 0), e_(Sin, 4), e_(Sin, 5), c_(Sin, 1)]
        A.append(MF(Sout, KB[kap], QB))
        if t + 2 < 4: A += kread(t+2)
        A += [e_(Sin, 6), e_(Sin, 7), c_(Sin, 2), e_(Sin, 8), e_(Sin, 9), c_(Sin, 3), e_(Sin, 10), e_(Sin, 11)]
        A += need(("V", t))
        A.append(MF(OA, VB[kap], Sin, OA))
        A += [c_(Sin, 4), e_(Sin, 12), e_(Sin, 13), c_(Sin, 5), e_(Sin, 14), e_(Sin, 15), c_(Sin, 6), c_(Sin, 7)]
        Sin, Sout = S1, S0
        B = [e_(Sin, 0), e_(Sin, 1), MF(OA, VB[kap]+4, Sout+4, OA)]
        if t == 3:
            B += ["s_mov_b64 exec, 1", dsr(("G",), f"ds_add_rtn_u32 v{VNX}, v{VCH}, v{VONE}"), "s_mov_b64 exec, -1"]
        B += [e_(Sin, 2), e_(Sin, 3), c_(Sin, 0), e_(Sin, 4), e_(Sin, 5), c_(Sin, 1)]
        if t + 1 < 4:
            B += need(("K", t+1))
            B.append(MF(Sout, KB[kap^1], QA))
        B += [e_(Sin, 6), e_(Sin, 7), c_(Sin, 2), e_(Sin, 8), e_(Sin, 9), c_(Sin, 3), e_(Sin, 10), e_(Sin, 11)]
        B.append(MF(OB, VB[kap], Sin, OB))
        B += [c_(Sin, 4), e_(Sin, 12), e_(Sin, 13), c_(Sin, 5), e_(Sin, 14), e_(Sin, 15), c_(Sin, 6), c_(Sin, 7)]
        body += A + B
    a.I(J(body))
    a.I("s_waitcnt lgkmcnt(0)")
    a.I(f"v_readfirstlane_b32 s70, v{VNX}")
    a.I(MF(OB, VB[1]+4, S1+4, OB))
    a.I("s_add_u32 s70, s70, 2")
    a.I("s_lshl_b32 s71, s70, 12")
    a.I("s_cmp_lg_u32 s73, 0")
    a.I("s_cbranch_scc1 L_aloop2")
    a.I("s_mov_b32 s73, 1")
    a.I("s_waitcnt vmcnt(0)")
    a.I(f"s_cmp_ge_u32 s{S_W}, 4")
    a.I("s_cbranch_scc1 L_aloop1")
    lds_add1(a, M_HST, T0, T1)
    a.L("L_aloop1")
    lds_spin(a, M_KV, 8, T0, T1)
    a.L("L_aloop2")
    a.I("s_cmp_lt_u32 s70, 16")
    a.I("s_cbranch_scc1 L_aloop")
    a.I("s_waitcnt lgkmcnt(0)")
    a.I("s_nop 7")
    stamp(a, "aloop")
    a.I("s_lshl_b32 s54, s63, 2")
    a.I(f"s_add_u32 s55, s54, {M_PAIR}")
    a.I(f"s_add_u32 s76, s54, {M_PFLAG}")
    a.I(f"v_mov_b32 v{T0}, s55")
    a.I(f"v_mov_b32 v{T1}, 1")
    a.I("s_mov_b64 exec, 1")
    a.I(f"ds_add_rtn_u32 v{T2}, v{T0}, v{T1}")
    a.I("s_mov_b64 exec, -1")
    a.I("s_mul_i32 s54, s63, 4608")
    a.I(f"s_add_u32 s54, s54, {L_XCH}")
    a.I(f"v_add_u32 v{S0}, s54, v{VL}")
    a.I(f"v_lshlrev_b32 v{S0+1}, 2, v1")
    a.I(f"v_add_u32 v{S0+1}, s54, v{S0+1}")
    a.I("s_waitcnt lgkmcnt(0)")
    a.I(f"v_readfirstlane_b32 s55, v{T2}")
    a.I("s_nop 4")
    a.I("s_cmp_lg_u32 s55, 0")
    a.I("s_cbranch_scc1 L_second")
    lds_spin(a, M_FFN, 4, T0, T1)
    a.I(f"ds_write_b128 v{S0}, {vr(OA,4)}")
    a.I(f"ds_write_b128 v{S0}, {vr(OA+4,4)} offset:1024")
    a.I(f"ds_write_b128 v{S0}, {vr(OB,4)} offset:2048")
    a.I(f"ds_write_b128 v{S0}, {vr(OB+4,4)} offset:3072")
    a.I(f"ds_write_b32 v{S0+1}, v{OA+8} offset:4096")
    a.I(f"ds_write_b32 v{S0+1}, v{OB+8} offset:4352")
    a.I("s_waitcnt lgkmcnt(0)")
    lds_add1(a, "s76", T0, T1)
    a.I("s_waitcnt lgkmcnt(0)")
    stamp_flush(a)
    a.I("s_endpgm")
    a.L("L_second")
    lds_spin(a, "s76", 1, T0, T1)
    a.I(f"ds_read_b128 {vr(S1,4)}, v{S0}")
    a.I(f"ds_read_b128 {vr(S1+4,4)}, v{S0} offset:1024")
    a.I(f"ds_read_b128 {vr(S1+8,4)}, v{S0} offset:2048")
    a.I(f"ds_read_b128 {vr(S1+12,4)}, v{S0} offset:3072")
    a.I(f"ds_read_b32 v{T0}, v{S0+1} offset:4096")
    a.I(f"ds_read_b32 v{T1}, v{S0+1} offset:4352")
    a.I(f"v_mov_b32 v{T2}, {L_MISC + 128}")
    a.I(f"ds_read_b32 v{T2}, v{T2}")
    a.I("s_waitcnt lgkmcnt(0)")
    a.I(f"v_readfirstlane_b32 s{S_NONCE}, v{T2}")
    for i in range(8):
        a.I(f"v_add_f32 v{OA+i}, v{OA+i}, v{S1+i}")
        a.I(f"v_add_f32 v{OB+i}, v{OB+i}, v{S1+8+i}")
    a.I(f"v_add_f32 v{OA+8}, v{OA+8}, v{T0}")
    a.I(f"v_add_f32 v{OB+8}, v{OB+8}, v{T1}")
    a.L("L_fin")
    for O in (OA, OB):
        a.I(f"v_mov_b32 v{O+9}, v{O+8}")
    a.I("s_nop 1")
    for O in (OA, OB):
        a.I(f"v_permlane32_swap_b32 v{O+9}, v{O+8}")
    a.I("s_nop 1")
    for O in (OA, OB):
        a.I(f"v_rcp_f32 v{O+10}, v{O+9}")
    srd_off(a, RA, S_WS, OF, 2*MB)
    a.I("s_lshl_b32 s54, s66, 5")
    a.I(f"s_add_u32 s54, s54, s{S_HD}")
    a.I("s_lshl_b32 s55, s54, 10")
    for n_, O in enumerate((OA, OB)):
        for i in range(8):
            a.I(f"v_mul_f32 v{S0+8*n_+i}, v{O+i}, v{O+10}")
        for j in range(4):
            a.I(f"v_cvt_pk_bf16_f32 v{S1+4*n_+j}, v{S0+8*n_+2*j}, v{S0+8*n_+2*j+1}")
        a.I(f"buffer_store_dwordx4 {vr(S1+4*n_,4)}, v{VL}, {S4(RA)}, s55 offen sc1")
        if n_ == 0: a.I("s_add_u32 s55, s55, 32768")
    srd_off(a, RC, S_WS, FLG, FLG_SIZE)
    slow_check(a, OA, OB, T0, T1)
    lds_add1(a, M_ATT, T0, T1)
    a.I("s_lshl_b32 s54, s54, 2")
    a.I(f"s_add_u32 s54, s54, {FO_OFF}")
    a.I(f"v_mov_b32 v{T0}, s{S_NONCE}")
    a.I(f"v_lshlrev_b32 v{T1}, 7, v1")
    a.I("s_waitcnt vmcnt(0)")
    a.I("s_mov_b64 exec, 3")
    a.I(f"buffer_store_dword v{T0}, v{T1}, {S4(RC)}, s54 offen sc1")
    a.I("s_mov_b64 exec, -1")
    stamp_flush(a)
    a.I("s_endpgm")
    slow_path(a, QA, QB, KB, VB, S0, S1, OA, OB, VL, T0, T1, T2)

def slow_check(a, OA, OB, T0, T1):
    if OPT.get("noslow"): return
    a.I(f"v_mul_f32 v{T0}, 0, v{OA}")
    for i in range(1, 8):
        a.I(f"v_fma_f32 v{T0}, v{OA+i}, 0, v{T0}")
    for i in range(8):
        a.I(f"v_fma_f32 v{T0}, v{OB+i}, 0, v{T0}")
    a.I(f"v_cmp_eq_f32 s[78:79], 0, v{T0}")
    a.I(f"s_mov_b32 s80, {hex(f2u(2.0**-60))}")
    a.I(f"s_mov_b32 s81, {hex(f2u(2.0**60))}")
    for O in (OA, OB):
        a.I(f"v_cmp_le_f32 s[82:83], s80, v{O+9}")
        a.I(f"v_cmp_ge_f32 vcc, s81, v{O+9}")
        a.I("s_nop 1")
        a.I("s_and_b64 s[78:79], s[78:79], s[82:83]")
        a.I("s_and_b64 s[78:79], s[78:79], vcc")
    if OPT.get("forceslow"):
        a.I("s_mov_b64 s[78:79], 0")
    a.I("s_cmp_eq_u64 s[78:79], -1")
    a.I("s_cbranch_scc1 L_ok")
    a.I("s_cmp_eq_u32 s77, 0")
    a.I("s_cbranch_scc1 L_slow")
    a.L("L_ok")

def slow_path(a, QA, QB, KB, VB, S0, S1, OA, OB, VL, T0, T1, T2):
    if OPT.get("noslow"): return
    K, V0, M, C = KB[0], VB[0], 108, 112
    a.L("L_slow")
    a.I("s_waitcnt vmcnt(0)")
    a.I("s_mov_b32 s77, 1")
    a.I(f"v_lshrrev_b32 v{T0}, 5, v1")
    a.I(f"v_and_b32 v{T1}, 15, v1")
    a.I(f"v_lshlrev_b32 v{T1}, 4, v{T1}")
    a.I(f"v_lshl_add_u32 v{T2}, v{T0}, 8, v{T1}")
    a.I(f"v_add_u32 v{T2}, {L_V}, v{T2}")
    a.I(f"v_mov_b32 v{M}, 0xff800000")
    a.I(f"v_mov_b32 v{M+1}, 0xff800000")
    a.I(f"v_add_u32 v{T0}, {L_K}, v{VL}")
    a.I("s_mov_b32 s73, 0")
    a.L("L_slow1")
    a.I(f"ds_read_b128 {vr(K,4)}, v{T0}")
    a.I("s_waitcnt lgkmcnt(0)")
    a.I(MF(S0, K, QA))
    a.I(MF(S1, K, QB))
    a.I("s_nop 15")
    for S, m in ((S0, M), (S1, M+1)):
        for i in range(0, 16, 2):
            a.I(f"v_max3_f32 v{m}, v{S+i}, v{S+i+1}, v{m}")
    a.I(f"v_add_u32 v{T0}, 1024, v{T0}")
    a.I("s_add_u32 s73, s73, 1")
    a.I("s_cmp_lt_u32 s73, 64")
    a.I("s_cbranch_scc1 L_slow1")
    for m in (M, M+1):
        a.I(f"v_mov_b32 v{T1}, v{m}")
        a.I("s_nop 1")
        a.I(f"v_permlane32_swap_b32 v{T1}, v{m}")
        a.I("s_nop 1")
        a.I(f"v_max_f32 v{m}, v{m}, v{T1}")
    for t in range(2):
        for i in range(16):
            a.I(f"v_sub_f32 v{C+16*t+i}, 0, v{M+t}")
    for i in range(16):
        a.I(f"v_mov_b32 v{OA+i}, 0")
        a.I(f"v_mov_b32 v{OB+i}, 0")
    a.I(f"v_add_u32 v{T0}, {L_K}, v{VL}")
    a.I("s_mov_b32 s73, 0")
    a.L("L_slow2")
    a.I(f"ds_read_b128 {vr(K,4)}, v{T0}")
    a.I("s_mov_b64 exec, s[74:75]")
    a.I(f"ds_read_b128 {vr(V0,4)}, v{T2}")
    a.I(f"ds_read_b128 {vr(V0+4,4)}, v{T2} offset:512")
    a.I("s_mov_b64 exec, -1")
    a.I("s_waitcnt lgkmcnt(0)")
    a.I(MF(S0, K, QA, C))
    a.I(MF(S1, K, QB, C+16))
    a.I("s_nop 15")
    for S, O in ((S0, OA), (S1, OB)):
        for i in range(16):
            a.I(f"v_exp_f32 v{S+i}, v{S+i}")
        a.I("s_nop 0")
        for j in range(8):
            a.I(f"v_cvt_pk_bf16_f32 v{S+j}, v{S+2*j}, v{S+2*j+1}")
        a.I("s_nop 1")
        a.I(MF(O, V0, S, O))
        a.I(MF(O, V0+4, S+4, O))
    a.I(f"v_add_u32 v{T0}, 1024, v{T0}")
    a.I(f"v_add_u32 v{T2}, 1024, v{T2}")
    a.I("s_add_u32 s73, s73, 1")
    a.I("s_cmp_lt_u32 s73, 64")
    a.I("s_cbranch_scc1 L_slow2")
    a.I("s_nop 15")
    a.I("s_branch L_fin")

def gen():
    a = Asm()
    prologue(a)
    producer(a, False)
    consumer(a)
    a.L("L_aux")
    producer(a, True)
    ffn2_p3(a)
    attention(a)
    a.L("L_end")
    a.I("s_endpgm")
    a.L("L_code_end")
    a.I("s_endpgm")
    return a

HEADER = open("cdna_kernels/" + NAME + ".s.ref").read().split("; Override launch")[0]

def build(path):
    a = gen()
    out = HEADER + f"; WSLAYOUT QF={QF} KF={KF} VF={VF} HF={HF} GO={GO} OF={OF}\n"
    out += f"; @launch grid=(256,1,1) block=(768,1,1) lds={LDS_TOTAL}\n"
    out += '.amdgcn_target "amdgcn-amd-amdhsa--gfx950"\n.text\n' + a.text()
    out += f""".section .rodata,"a"
.p2align 6
.amdhsa_kernel {KN}
  .amdhsa_next_free_vgpr 168
  .amdhsa_next_free_sgpr 102
  .amdhsa_accum_offset 168
  .amdhsa_group_segment_fixed_size 0
  .amdhsa_kernarg_size 96
  .amdhsa_user_sgpr_count 2
  .amdhsa_user_sgpr_kernarg_segment_ptr 1
  .amdhsa_system_sgpr_workgroup_id_x 1
.end_amdhsa_kernel
"""
    open(path, "w").write(out)
    probs = check_linear(a.lines, "k")
    if STAMPS: print("stamps:", ",".join(_stamp_names))
    return probs

if __name__ == "__main__":
    for x in list(sys.argv[1:]):
        if x.startswith("-D"):
            k, _, v = x[2:].partition("=")
            OPT[k] = int(v) if v else 1
            sys.argv.remove(x)
    if "--stamps" in sys.argv:
        STAMPS = True; sys.argv.remove("--stamps")
    path = sys.argv[1] if len(sys.argv) > 1 else "cdna_kernels/" + NAME + ".s"
    probs = build(path)
    for p in probs: print("HAZARD:", p)
    print("written", path, "problems:", len(probs))
```

```python
import sys, struct
from asmlib import *

NAME = "gated_mix__mha_block__dense_activation_squared_relu__prompt"
KN = NAME + "_kernel"
MB = 1 << 20
QF, KF, VF, HF, GO, OF, FLG = 4096, 2*MB + 8192, 4*MB + 12288, 6*MB + 16384, 12*MB, 14*MB + 4096, 16*MB + 8192
HF_SIZE = 86 * 65536
FA_OFF, FH_OFF, FO_OFF = 0, 4096, 8192
FLG_SIZE = 16384
QSCALE = 0.25 * 1.4426950408889634
STAMP_OFF = 32*MB
STAMPS = False
OPT = {}
def f2u(x): return struct.unpack("<I", struct.pack("<f", x))[0]

S_AX, S_WQKV, S_WO, S_W1, S_B1, S_W2, S_B2, S_GW, S_OUT, S_DBG, S_WS = 4, 6, 8, 12, 14, 16, 18, 20, 22, 24, 26
S_W = 3
S_RB, S_CG, S_START = 29, 30, 31
RA, RB, RC, RD = 32, 36, 40, 44
S_NONCE, S_HD, S_QB = 60, 61, 62
L_MISC, L_K, L_V, L_RING = 0, 1024, 1024 + 65536, 1024 + 131072
L_XCH = L_RING
M_KV, M_H, M_FA, M_QRD, M_HST, M_FFN, M_ATT, M_T1 = [L_MISC + 4*i for i in range(8)]
M_PAIR, M_PFLAG, M_CH = L_MISC + 64, L_MISC + 96, L_MISC + 160
LDS_TOTAL = 163840

def srd(a, dst, base, size):
    a.I(f"s_mov_b32 s{dst}, s{base}")
    a.I(f"s_mov_b32 s{dst+1}, s{base+1}")
    a.I(f"s_mov_b32 s{dst+2}, {size}")
    a.I(f"s_mov_b32 s{dst+3}, 0x20000")
def srd_off(a, dst, base, off, size):
    a.I(f"s_add_u32 s{dst}, s{base}, {off}")
    a.I(f"s_addc_u32 s{dst+1}, s{base+1}, 0")
    a.I(f"s_mov_b32 s{dst+2}, {size}")
    a.I(f"s_mov_b32 s{dst+3}, 0x20000")
def MF(d, A, B, c=None):
    cc = "0" if c is None else vr(c, 16)
    return f"v_mfma_f32_32x32x16_bf16 {vr(d,16)}, {vr(A,4)}, {vr(B,4)}, {cc}"
def S4(r): return f"s[{r}:{r+3}]"
def J(L): return "\n".join(L)

_stamp_names = []
def stamp(a, name):
    if not STAMPS: return
    if name not in _stamp_names: _stamp_names.append(name)
    i = _stamp_names.index(name)
    a.I("s_waitcnt lgkmcnt(0)")
    a.I("s_memtime s[98:99]")
    a.I("s_memrealtime s[100:101]")
    a.I("s_waitcnt lgkmcnt(0)")
    a.I(f"v_writelane_b32 v6, s98, {i}")
    a.I(f"v_writelane_b32 v7, s100, {i}")
def stamp_dyn(a):
    if not (STAMPS and OPT.get("fine")): return
    a.I("s_memtime s[98:99]")
    a.I("s_memrealtime s[100:101]")
    a.I("s_waitcnt lgkmcnt(0)")
    a.I("s_mov_b32 s88, m0")
    a.I("s_mov_b32 m0, s87")
    a.I("s_nop 3")
    a.I("v_writelane_b32 v6, s98, m0")
    a.I("v_writelane_b32 v7, s100, m0")
    a.I("s_mov_b32 m0, s88")
    a.I("s_add_u32 s87, s87, 1")
def dbg_dump(a, names, word0):
    lb = lab("dd")
    a.I(f"s_cmp_lg_u32 s2, {OPT.get('dbgwg', 0)}")
    a.I(f"s_cbranch_scc1 {lb}")
    a.I("v_readlane_b32 s90, v7, 0")
    for i, nm in enumerate(names):
        if nm not in _stamp_names: _stamp_names.append(nm)
        a.I(f"v_readlane_b32 s91, v7, {_stamp_names.index(nm)}")
        a.I("s_nop 3")
        a.I("s_sub_u32 s91, s91, s90")
        a.I("v_mov_b32 v2, s91")
        a.I(f"v_mov_b32 v3, {4*(word0+i)}")
        a.I("s_mov_b64 exec, 1")
        a.I(f"global_store_dword v3, v2, s[{S_DBG}:{S_DBG+1}]")
        a.I("s_mov_b64 exec, -1")
    a.L(lb)

def stamp_flush(a, who=None):
    if not STAMPS: return
    a.I("s_waitcnt vmcnt(0)")
    stamp(a, "end")
    if OPT.get("dbgdump"):
        if who == "ffn":
            l2 = lab("d8")
            a.I(f"s_cmp_lg_u32 s{S_W}, 8"); a.I(f"s_cbranch_scc1 {l2}")
            dbg_dump(a, ["E2", "FAok", "KV1", "hready", "ffn2", "attdone", "T2", "p3mm", "end"], 7)
            a.L(l2)
        elif who == "attn":
            l2 = lab("d0")
            a.I(f"s_and_b32 s91, s{S_W}, 3"); a.I("s_cmp_lg_u32 s91, 0"); a.I(f"s_cbranch_scc1 {l2}")
            a.I(f"s_cmp_ge_u32 s{S_W}, 4"); a.I(f"s_cbranch_scc1 {l2}")
            dbg_dump(a, ["karg", "B0", "qloop", "floop", "kvok", "aloop"], 1)
            a.L(l2)
    a.I(f"s_add_u32 s96, s{S_WS}, {STAMP_OFF}")
    a.I(f"s_addc_u32 s97, s{S_WS+1}, 0")
    a.I("s_mul_i32 s98, s2, 12")
    a.I(f"s_add_u32 s98, s98, s{S_W}")
    a.I("s_lshl_b32 s98, s98, 9")
    a.I("v_lshlrev_b32 v2, 2, v1")
    a.I("v_add_u32 v2, s98, v2")
    a.I("s_mov_b64 exec, -1")
    a.I("global_store_dword v2, v6, s[96:97]")
    a.I("global_store_dword v2, v7, s[96:97] offset:256")
    a.I("s_waitcnt vmcnt(0)")

def tr_lane_addr(a, dst, lane, tmp, tmp2, hrows, pitch):
    a.I(f"v_bfe_u32 v{tmp}, v{lane}, 2, 2")
    a.I(f"v_lshrrev_b32 v{tmp2}, 5, v{lane}")
    a.I(f"v_mul_u32_u24 v{tmp2}, {hrows}, v{tmp2}")
    a.I(f"v_add_u32 v{tmp}, v{tmp}, v{tmp2}")
    a.I(f"v_mul_u32_u24 v{dst}, {pitch}, v{tmp}")
    a.I(f"v_bfe_u32 v{tmp}, v{lane}, 4, 1")
    a.I(f"v_lshlrev_b32 v{tmp}, 1, v{tmp}")
    a.I(f"v_bfe_u32 v{tmp2}, v{lane}, 1, 1")
    a.I(f"v_add_u32 v{tmp}, v{tmp}, v{tmp2}")
    a.I(f"v_bfe_u32 v{tmp2}, v{lane}, 3, 1")
    a.I(f"v_lshlrev_b32 v{tmp2}, 2, v{tmp2}")
    a.I(f"v_xor_b32 v{tmp}, v{tmp}, v{tmp2}")
    a.I(f"v_lshl_add_u32 v{dst}, v{tmp}, 4, v{dst}")
    a.I(f"v_and_b32 v{tmp}, 1, v{lane}")
    a.I(f"v_lshl_add_u32 v{dst}, v{tmp}, 3, v{dst}")

def dma_w_lane_off(a, dst, lane, tmp, tmp2, pitch):
    a.I(f"v_lshrrev_b32 v{tmp}, 3, v{lane}")
    a.I(f"v_mul_u32_u24 v{dst}, {pitch}, v{tmp}")
    a.I(f"v_bfe_u32 v{tmp}, v{lane}, 4, 1")
    a.I(f"v_lshlrev_b32 v{tmp}, 2, v{tmp}")
    a.I(f"v_and_b32 v{tmp2}, 7, v{lane}")
    a.I(f"v_xor_b32 v{tmp}, v{tmp}, v{tmp2}")
    a.I(f"v_lshl_add_u32 v{dst}, v{tmp}, 4, v{dst}")

_lab = [0]
def lab(p):
    _lab[0] += 1
    return f"L_{p}{_lab[0]}"

def poll(a, srd_reg, nlanes, voff, vtmp, soff, slp=1):
    l0, l1 = lab("poll"), lab("polld")
    if nlanes < 64:
        a.I(f"s_mov_b32 exec_lo, {hex((1 << nlanes) - 1)}")
        a.I("s_mov_b32 exec_hi, 0")
    a.I("s_mov_b32 s50, 0x40000")
    a.L(l0)
    a.I(f"buffer_load_dword v{vtmp}, v{voff}, {S4(srd_reg)}, {soff} offen sc1")
    a.I("s_waitcnt vmcnt(0)")
    a.I(f"v_cmp_ne_u32 vcc, s{S_NONCE}, v{vtmp}")
    a.I(f"s_cbranch_vccz {l1}")
    a.I("s_sub_u32 s50, s50, 1")
    a.I("s_cmp_eq_u32 s50, 0")
    a.I(f"s_cbranch_scc1 {l1}")
    a.I(f"s_sleep {slp}")
    a.I(f"s_branch {l0}")
    a.L(l1)
    a.I("s_mov_b64 exec, -1")

def lds_spin(a, addr, target, vaddr, vtmp, slp=1):
    l0, l1 = lab("spin"), lab("spind")
    a.I(f"v_mov_b32 v{vaddr}, {addr}")
    a.I("s_mov_b32 s50, 0x400000")
    a.L(l0)
    a.I(f"ds_read_b32 v{vtmp}, v{vaddr}")
    a.I("s_waitcnt lgkmcnt(0)")
    a.I(f"v_readfirstlane_b32 s51, v{vtmp}")
    a.I("s_sub_u32 s50, s50, 1")
    a.I(f"s_cmp_ge_u32 s51, {target}")
    a.I(f"s_cbranch_scc1 {l1}")
    a.I("s_cmp_eq_u32 s50, 0")
    a.I(f"s_cbranch_scc1 {l1}")
    a.I(f"s_sleep {slp}")
    a.I(f"s_branch {l0}")
    a.L(l1)

def lds_add1(a, addr, vaddr, vtmp):
    a.I(f"v_mov_b32 v{vaddr}, {addr}")
    a.I(f"v_mov_b32 v{vtmp}, 1")
    a.I("s_mov_b64 exec, 1")
    a.I(f"ds_add_u32 v{vaddr}, v{vtmp}")
    a.I("s_mov_b64 exec, -1")

def flag_store(a, soff, v0_, v1_):
    a.I(f"v_mov_b32 v{v0_}, s{S_NONCE}")
    a.I(f"v_mov_b32 v{v1_}, 0")
    a.I("s_mov_b64 exec, 1")
    a.I(f"buffer_store_dword v{v0_}, v{v1_}, {S4(RC)}, {soff} offen sc1")
    a.I("s_mov_b64 exec, -1")

def prologue(a):
    a.raw(f".globl {KN}\n.p2align 8\n.type {KN},@function\n{KN}:")
    if STAMPS:
        a.I("s_memrealtime s[94:95]")
        a.I("s_memtime s[92:93]")
    a.I("s_cmp_ge_u32 s2, 256")
    a.I("s_cbranch_scc1 L_end")
    a.I("s_load_dwordx4 s[4:7], s[0:1], 0")
    a.I("s_load_dwordx2 s[8:9], s[0:1], 16")
    a.I("s_load_dwordx4 s[12:15], s[0:1], 32")
    a.I("s_load_dwordx4 s[16:19], s[0:1], 48")
    a.I("s_load_dwordx4 s[20:23], s[0:1], 64")
    a.I("s_load_dwordx4 s[24:27], s[0:1], 80")
    a.I("v_lshrrev_b32 v2, 6, v0")
    a.I("v_and_b32 v1, 63, v0")
    a.I(f"v_readfirstlane_b32 s{S_W}, v2")
    if OPT.get("codeearly", 1):
        a.I("s_getpc_b64 s[52:53]")
        a.L("L_pc0")
        a.I(f"s_sub_u32 s52, s52, L_pc0-{KN}")
        a.I("s_subb_u32 s53, s53, 0")
        a.I("v_lshlrev_b32 v3, 7, v0")
        a.I(f"v_min_u32 v3, L_code_end-{KN}-4, v3")
        a.I(f"s_cmp_ge_u32 s{S_W}, 3")
        a.I("s_cbranch_scc1 L_pc1")
        a.I("global_load_dword v31, v3, s[52:53]")
        a.L("L_pc1")
    if STAMPS:
        a.I("v_mov_b32 v6, 0"); a.I("v_mov_b32 v7, 0")
    a.I("s_and_b32 s52, s2, 7")
    a.I("s_lshr_b32 s53, s2, 3")
    a.I("s_lshr_b32 s54, s52, 2")
    a.I("s_lshl_b32 s54, s54, 4")
    a.I("s_lshr_b32 s55, s53, 1")
    a.I(f"s_add_u32 s{S_RB}, s54, s55")
    a.I("s_and_b32 s54, s52, 3")
    a.I("s_lshl_b32 s54, s54, 1")
    a.I("s_and_b32 s55, s53, 1")
    a.I(f"s_add_u32 s{S_CG}, s54, s55")
    a.I(f"s_mul_i32 s54, s{S_CG}, 6")
    a.I(f"s_min_u32 s{S_START}, s54, 37")
    a.I(f"s_lshl_b32 s{S_HD}, s52, 2")
    a.I("s_and_b32 s54, s53, 3")
    a.I(f"s_add_u32 s{S_HD}, s{S_HD}, s54")
    a.I(f"s_lshr_b32 s{S_QB}, s2, 5")
    a.I("s_waitcnt lgkmcnt(0)")
    if STAMPS:
        _stamp_names.append("entry")
        a.I("v_writelane_b32 v6, s92, 0")
        a.I("v_writelane_b32 v7, s94, 0")
    stamp(a, "karg")
    a.I(f"s_cmp_ge_u32 s{S_W}, 8")
    a.I("s_cbranch_scc1 L_aux")
    a.I(f"s_cmp_lt_u32 s{S_W}, 4")
    a.I("s_cbranch_scc1 L_cons")

GATEPOS = 3
def producer(a, aux):
    T = "a" if aux else "p"
    if OPT.get("pprio"): a.I(f"s_setprio {OPT['pprio']}")
    a.I(f"s_sub_u32 s67, s{S_W}, 4")
    a.I(f"s_lshl_b32 s54, s{S_RB}, 16")
    srd_off(a, RA, S_AX, "s54", 65536)
    srd(a, RB, S_WQKV, 512*3072)
    a.I("v_lshrrev_b32 v2, 3, v1")
    a.I("s_lshl_b32 s54, s67, 3")
    a.I("v_add_u32 v2, s54, v2")
    a.I("v_lshrrev_b32 v3, 4, v1")
    a.I("s_and_b32 s54, s67, 1")
    a.I("s_lshl_b32 s54, s54, 2")
    a.I("v_add_u32 v3, s54, v3")
    a.I("v_and_b32 v4, 7, v1")
    a.I("v_xor_b32 v3, v3, v4")
    a.I("v_lshlrev_b32 v3, 4, v3")
    a.I("v_lshl_add_u32 v12, v2, 10, v3")
    a.I("s_lshl_b32 s68, s67, 10")
    def woffs(dst, pitch, segshift):
        for j in range(3):
            a.I(f"v_add_u32 v2, {64*j}, v1")
            a.I("v_mul_u32_u24 v3, 171, v2")
            a.I("v_lshrrev_b32 v3, 12, v3")
            a.I("v_mul_u32_u24 v4, 24, v3")
            a.I("v_sub_u32 v2, v2, v4")
            a.I("v_lshrrev_b32 v4, 3, v2")
            a.I("v_and_b32 v2, 7, v2")
            a.I("v_bfe_u32 v5, v3, 1, 1")
            a.I("v_lshlrev_b32 v5, 2, v5")
            a.I("v_xor_b32 v2, v2, v5")
            a.I("v_lshlrev_b32 v2, 4, v2")
            a.I(f"v_mul_u32_u24 v5, {pitch}, v3")
            a.I(f"v_lshl_add_u32 v5, v4, {segshift}, v5")
            a.I(f"v_add_u32 v{dst+j}, v5, v2")
    woffs(13, 3072, 10)
    a.I("s_mul_i32 s69, s67, 3072")
    a.I("s_add_u32 s69, s69, 0x10000")
    a.I(f"s_lshl_b32 s70, s{S_CG}, 7")
    a.I(f"s_mul_i32 s71, s67, {8*3072}")
    a.I("s_add_u32 s70, s70, s71")
    def pre_setup(item):
        k, c = item
        if k == "X":
            a.I(f"s_add_u32 m0, s68, {c*8192}")
            a.I(f"s_movk_i32 s81, {c*128}")
        else:
            a.I(f"s_add_u32 s82, s70, {c*64*3072}" if c < 8 else f"s_add_u32 s82, s71, {(c-8)*64*2752}")
            a.I(f"s_add_u32 m0, s69, {(c&3)*24576}")
    def issue_x(c, done=False):
        if OPT.get("p1noprod"): return
        if not done:
            a.I(f"s_add_u32 m0, s68, {c*8192}")
            a.I(f"s_movk_i32 s81, {c*128}")
        a.I(f"buffer_load_dwordx4 v12, {S4(RA)}, s81 offen lds")
    def issue_w(c, done=False):
        if OPT.get("p1noprod"): return
        if c < 8:
            if not done: a.I(f"s_add_u32 s82, s70, {c*64*3072}")
            vo, R = 13, RB
        else:
            if not done: a.I(f"s_add_u32 s82, s71, {(c-8)*64*2752}")
            vo, R = 16, RC
        for j in range(3):
            if not (done and j == 0):
                a.I(f"s_add_u32 m0, s69, {(c&3)*24576 + j*1024}")
                a.I("s_nop 0")
            a.I(f"buffer_load_dwordx4 v{vo+j}, {S4(R)}, s82 offen lds")
    sched = OPT.get("sched", 0)
    if sched == 0:
        pre = [("X",0),("W",0),("X",1),("W",1),("X",2),("W",2)]
        post = {c: ([("X",c+3)] if c+3 < 8 else []) + ([("W",c+3)] if c+3 < 16 else []) for c in range(16)}
    elif sched == 1:
        pre = [("X",0),("W",0),("X",1),("W",1),("X",2),("W",2),("X",3),("W",3),("X",4),("X",5),("X",6),("X",7)]
        post = {c: ([("W",c+3)] if (c >= 1 and c+3 < 16) else []) for c in range(16)}
    elif sched == 2:
        pre = [("X",0),("W",0),("X",1),("W",1),("X",2),("W",2),("X",3),("W",3)]
        post = {c: ([("W",c+3)] if (c >= 1 and c+3 < 16) else []) for c in range(16)}
        post[0] = [("X",4),("X",5),("X",6),("X",7)]
    fifo = []
    def do(item, done=False):
        k, c = item
        if k == "X":
            if OPT.get("skipx"): fifo.append((item, 0)); return
            issue_x(c, done); fifo.append((item, 1))
        else:
            if OPT.get("skipw") and c < 8: fifo.append((item, 0)); return
            issue_w(c, done); fifo.append((item, 3))
    for it in pre: do(it)
    if OPT.get("pfprod") and not aux:
        a.I(f"s_mov_b32 s89, s{S_W}")
        a.I(f"s_sub_u32 s{S_W}, s{S_W}, 4")
        l2_prefetch(a, 0)
        a.I(f"s_mov_b32 s{S_W}, s89")
        fifo.append(("pf", 2))
    stamp(a, "issued3")
    nside = 0
    if aux:
        nside = aux_side_issue(a)
    srd(a, RC, S_W1, 512*2752)
    if OPT.get("w1perm", 0):
        for j in range(3):
            a.I(f"v_add_u32 v2, {64*j}, v1")
            a.I("v_mul_u32_u24 v3, 171, v2")
            a.I("v_lshrrev_b32 v3, 12, v3")
            a.I("v_mul_u32_u24 v4, 24, v3")
            a.I("v_sub_u32 v2, v2, v4")
            a.I("v_lshrrev_b32 v4, 2, v2")
            a.I("v_and_b32 v2, 3, v2")
            a.I("v_bfe_u32 v5, v3, 1, 1")
            a.I("v_xor_b32 v4, v4, v5")
            a.I("v_add_u32 v5, 1, v4")
            a.I("v_cmp_eq_u32 vcc, 4, v4")
            a.I("s_nop 1")
            a.I("v_cndmask_b32_e64 v5, v5, 0, vcc")
            a.I("v_cmp_eq_u32 vcc, 5, v4")
            a.I("s_nop 1")
            a.I("v_cndmask_b32_e64 v5, v5, 5, vcc")
            a.I(f"v_add_u32 v19, s{S_START}, v3")
            a.I("v_and_b32 v19, 1, v19")
            a.I("v_cmp_eq_u32 vcc, 1, v19")
            a.I("s_nop 1")
            a.I("v_cndmask_b32 v4, v4, v5, vcc")
            a.I("v_lshlrev_b32 v4, 6, v4")
            a.I("v_lshl_add_u32 v4, v2, 4, v4")
            a.I("v_mul_u32_u24 v5, 2752, v3")
            a.I(f"v_add_u32 v{16+j}, v5, v4")
    else:
        woffs(16, 2752, 7)
    a.I(f"s_lshl_b32 s71, s{S_START}, 6")
    a.I(f"s_mul_i32 s72, s67, {8*2752}")
    a.I("s_add_u32 s71, s71, s72")
    fap = OPT.get("fapos", 2)
    assert fap >= 2
    for c in range(16):
        need = [("W", c)] + ([("X", c)] if c < 8 else [])
        idx = max(i for i, (it, _) in enumerate(fifo) if it in need)
        allow = sum(k for _, k in fifo[idx+1:])
        if c == 0 and STAMPS and OPT.get("fine"): a.I("s_mov_b32 s87, 24")
        stamp_dyn(a)
        early = OPT.get("early", 1) and not STAMPS and len(post[c]) > 0 and not OPT.get("p1noprod")
        if early:
            pre_setup(post[c][0])
        a.I(f"s_waitcnt vmcnt({allow})")
        stamp_dyn(a)
        a.I("s_barrier")
        for n_, it in enumerate(post[c]): do(it, early and n_ == 0)
        if aux and c == 2:
            fifo.append(("side", aux_side_loads(a)))
        if aux and c == 6:
            aux_gate(a)
            fifo.append(("g", 1))
        if aux and c == 7:
            fifo.append(("nonce", aux_nonce_issue(a)))
        if aux and c == 10:
            aux_zero_misc(a)
        if aux and c == 11:
            aux_nonce_take(a)
        if aux and c == 12:
            aux_share_nonce(a)
        if aux and c == 15:
            aux_fa_probe(a)
        if aux and c == 9 + fap:
            aux_publish_fa(a)
    a.I("s_barrier")
    if aux:
        aux_after_e1(a)
    else:
        if OPT.get("pprio"): a.I("s_setprio 0")
        a.I("s_branch L_attn")

def l2_prefetch(a, part):
    a.I("s_and_b32 s52, s2, 7")
    a.I("s_lshr_b32 s53, s2, 3")
    a.I("s_lshl_b32 s54, s53, 4")
    a.I(f"s_lshl_b32 s55, s{S_W}, 2")
    a.I("s_add_u32 s56, s54, s55")
    if part == 2:
        a.I(f"s_cmp_lg_u32 s{S_W}, 0")
        a.I("s_cbranch_scc1 L_pf2")
        srd(a, RC, S_WQKV, 512*3072)
        a.I("s_lshl_b32 s54, s53, 3")
        a.I("s_add_u32 s54, s54, 256")
        a.I("s_mul_i32 s54, s54, 3072")
        a.I("s_and_b32 s55, s52, 3")
        a.I("s_lshl_b32 s55, s55, 8")
        a.I("s_add_u32 s54, s54, s55")
        a.I("v_lshrrev_b32 v21, 3, v1")
        a.I("v_mul_u32_u24 v21, 3072, v21")
        a.I("v_bfe_u32 v22, v1, 1, 2")
        a.I("v_min_u32 v22, 2, v22")
        a.I("v_lshl_add_u32 v21, v22, 10, v21")
        a.I("v_and_b32 v22, 1, v1")
        a.I("v_lshl_add_u32 v21, v22, 7, v21")
        a.I(f"buffer_load_dword v25, v21, {S4(RC)}, s54 offen")
        a.L("L_pf2")
    elif part == 0:
        G = OPT.get("pfg", 128)
        sh = {128: 7, 64: 6, 32: 5}[G]
        srd(a, RC, S_AX, 2*MB)
        a.I("s_lshr_b32 s54, s52, 2")
        a.I("s_lshl_b32 s54, s54, 10")
        a.I("s_lshl_b32 s55, s53, 5")
        a.I("s_add_u32 s54, s54, s55")
        a.I(f"s_lshl_b32 s55, s{S_W}, 3")
        a.I("s_add_u32 s54, s54, s55")
        a.I("s_lshl_b32 s54, s54, 10")
        a.I(f"v_lshlrev_b32 v20, {sh}, v1")
        for i in range(0 if OPT.get("nopfx") else 8192 // (64*G)):
            a.I(f"buffer_load_dword v24, v20, {S4(RC)}, s54 offen")
            a.I(f"s_add_u32 s54, s54, {64*G}")
        srd(a, RC, S_WQKV, 512*3072)
        a.I("s_mul_i32 s54, s56, 3072")
        a.I("s_and_b32 s55, s52, 3")
        a.I("s_lshl_b32 s55, s55, 8")
        a.I("s_add_u32 s54, s54, s55")
        per = 256 // G
        a.I("v_lshrrev_b32 v21, 4, v1")
        a.I("v_mul_u32_u24 v21, 3072, v21")
        a.I("v_and_b32 v22, 15, v1")
        if G == 64:
            a.I("v_lshrrev_b32 v23, 2, v22")
            a.I("v_min_u32 v23, 2, v23")
            a.I("v_lshl_add_u32 v21, v23, 10, v21")
            a.I("v_and_b32 v22, 3, v22")
            a.I("v_lshl_add_u32 v21, v22, 6, v21")
            a.I(f"buffer_load_dword v25, v21, {S4(RC)}, s54 offen")
        elif G == 32:
            a.I("v_lshrrev_b32 v23, 3, v22")
            a.I("v_lshl_add_u32 v21, v23, 10, v21")
            a.I("v_and_b32 v22, 7, v22")
            a.I("v_lshl_add_u32 v21, v22, 5, v21")
            a.I(f"buffer_load_dword v25, v21, {S4(RC)}, s54 offen")
            a.I(f"buffer_load_dword v25, v21, {S4(RC)}, s54 offen offset:2048")
        else:
            a.I("v_lshrrev_b32 v23, 1, v22")
            a.I("v_min_u32 v23, 2, v23")
            a.I("v_lshl_add_u32 v21, v23, 10, v21")
            a.I("v_and_b32 v22, 1, v22")
            a.I("v_lshl_add_u32 v21, v22, 7, v21")
            a.I(f"buffer_load_dword v25, v21, {S4(RC)}, s54 offen")
    else:
        a.I(f"s_cmp_ge_u32 s{S_W}, 2")
        a.I("s_cbranch_scc1 L_pf1")
        srd(a, RC, S_W1, 512*2752)
        a.I("s_and_b32 s55, s52, 3")
        a.I("s_mul_i32 s55, s55, 12")
        a.I("s_min_u32 s55, s55, 31")
        a.I("s_lshl_b32 s55, s55, 6")
        a.I("s_lshl_b32 s54, s53, 4")
        a.I(f"s_lshl_b32 s56, s{S_W}, 3")
        a.I("s_add_u32 s54, s54, s56")
        a.I("s_mul_i32 s54, s54, 2752")
        a.I("s_add_u32 s54, s54, s55")
        a.I("v_lshrrev_b32 v21, 3, v1")
        a.I("v_mul_u32_u24 v21, 2752, v21")
        a.I("v_and_b32 v22, 7, v1")
        a.I("v_lshl_add_u32 v21, v22, 7, v21")
        a.I(f"buffer_load_dword v26, v21, {S4(RC)}, s54 offen")
        a.L("L_pf1")

def consumer(a):
    a.L("L_cons")
    H, XA, WA, ACC, B1, FA, FB = 2, 8, 12, 32, 80, 104, 136
    if not OPT.get("nopf") and not OPT.get("pflate") and not OPT.get("pfprod"):
        l2_prefetch(a, OPT.get("pfmode", 0))
    a.I(f"v_lshrrev_b32 v{H}, 5, v1")
    a.I(f"s_and_b32 s63, s{S_W}, 1")
    a.I(f"s_lshr_b32 s64, s{S_W}, 1")
    srd(a, RD, S_B1, 2752)
    a.I(f"s_add_u32 s54, s{S_START}, s63")
    a.I("s_lshl_b32 s54, s54, 6")
    a.I(f"v_lshlrev_b32 v3, 3, v{H}")
    for s in range(3):
        for q in range(4):
            r = B1 + (s*4+q)*2
            a.I(f"buffer_load_dwordx2 v[{r}:{r+1}], v3, {S4(RD)}, s54 offen offset:{s*128+q*16}")
    for i in range(48):
        a.I(f"v_mov_b32 v{ACC+i}, 0")
    a.I("v_and_b32 v16, 31, v1")
    a.I("v_bfe_u32 v17, v1, 1, 3")
    a.I("s_lshl_b32 s54, s64, 5")
    a.I("v_add_u32 v16, s54, v16")
    a.I("v_lshlrev_b32 v16, 7, v16")
    a.I(f"v_xor_b32 v17, v17, v{H}")
    for ks in range(4):
        a.I(f"v_xor_b32 v18, {2*ks}, v17")
        a.I(f"v_lshl_add_u32 v{XA+ks}, v18, 4, v16")
    tr_lane_addr(a, WA, 1, 16, 17, 8, 384)
    a.I("s_lshl_b32 s54, s63, 6")
    a.I(f"v_xor_b32 v{WA}, s54, v{WA}")
    a.I(f"v_add_u32 v{WA}, 0x10000, v{WA}")
    a.I(f"v_add_u32 v{WA+1}, 49152, v{WA}")
    WF1 = [14, 15, 28, 29, 30, 31]
    if OPT.get("w1perm", 0):
        a.I("v_bfe_u32 v16, v1, 2, 2")
        a.I(f"v_lshl_add_u32 v17, v{H}, 3, v16")
        a.I("v_mul_u32_u24 v17, 384, v17")
        a.I("v_bfe_u32 v18, v1, 4, 1")
        a.I("v_lshlrev_b32 v18, 1, v18")
        a.I("v_bfe_u32 v19, v1, 1, 1")
        a.I("v_add_u32 v18, v18, v19")
        a.I("v_lshl_add_u32 v17, v18, 4, v17")
        a.I("v_and_b32 v18, 1, v1")
        a.I("v_lshl_add_u32 v17, v18, 3, v17")
        a.I("v_add_u32 v17, 0x10000, v17")
        a.I(f"v_add_u32 v18, s{S_START}, v16")
        a.I("v_and_b32 v18, 1, v18")
        a.I("v_cmp_eq_u32 vcc, 1, v18")
        a.I("v_bfe_u32 v19, v1, 3, 1")
        inv = [4, 0, 1, 2, 3, 5]
        for s_ in range(3):
            a.I(f"s_cmp_eq_u32 s63, 0")
            a.I(f"s_cselect_b32 s54, {2*s_}, {2*s_+1}")
            a.I(f"s_cselect_b32 s55, {inv[2*s_]}, {inv[2*s_+1]}")
            a.I(f"v_mov_b32 v26, s54")
            a.I(f"v_mov_b32 v27, s55")
            a.I(f"v_cndmask_b32 v26, v26, v27, vcc")
            a.I(f"v_xor_b32 v26, v26, v19")
            a.I(f"v_lshl_add_u32 v{WF1[s_]}, v26, 6, v17")
            a.I(f"v_add_u32 v{WF1[3+s_]}, 49152, v{WF1[s_]}")

    def reads(b, G, F, qkv=True):
        out = []
        if OPT.get("p1nocons"): return ["s_nop 0"]
        wv = WA + (b >> 1)
        for l in range(2):
            ks = 2*G + l
            out.append(f"ds_read_b128 {vr(F+4*l,4)}, v{XA+ks} offset:{b*8192}")
            for s in range(3):
                for rd in range(2):
                    if qkv or not OPT.get("w1perm", 0):
                        out.append(f"ds_read_b64_tr_b16 {vr(F+8+12*l+4*s+2*rd,2)}, v{wv} offset:{(b&1)*24576 + ks*6144 + rd*1536 + s*128}")
                    else:
                        out.append(f"ds_read_b64_tr_b16 {vr(F+8+12*l+4*s+2*rd,2)}, v{WF1[3*(b>>1)+s]} offset:{(b&1)*24576 + ks*6144 + rd*1536}")
        return out
    def mfmas(F, qkv):
        out = []
        if OPT.get("p1nocons") or OPT.get("p1nomfma"): return ["s_nop 0"]
        for l in range(2):
            for s in range(3):
                X, W = F+4*l, F+8+12*l+4*s
                out.append(MF(ACC+16*s, X, W, ACC+16*s) if (qkv and s == 2) else MF(ACC+16*s, W, X, ACC+16*s))
        return out
    def inter(mf, rd):
        out = []
        per = OPT.get("iper", [4, 4, 3, 3, 0, 0])
        if len(mf) != 6: return mf + rd
        k = 0
        for i, m in enumerate(mf):
            out.append(m)
            out += rd[k:k+per[i]]
            k += per[i]
        assert k >= len(rd)
        return out
    def stage_loop(tag, qkv):
        a.I("s_mov_b32 s65, 0x8000")
        a.L(f"L_loop_{tag}")
        fap = OPT.get("fapos", 2)
        for b in range(4):
            a.I("s_waitcnt lgkmcnt(0)")
            a.I(J(inter(mfmas(FA, qkv), reads(b, 1, FB, qkv))))
            if (not qkv) and b == (fap & 3):
                if fap >= 4:
                    a.I("s_cmp_lt_i32 s65, 0")
                    a.I(f"s_cbranch_scc0 L_nodrain")
                a.I("s_waitcnt vmcnt(0)")
                if fap >= 4: a.L("L_nodrain")
            a.I("s_waitcnt lgkmcnt(0)")
            if b == 3:
                if not qkv:
                    a.I("s_cmp_lt_i32 s65, 0")
                    a.I(f"s_cbranch_scc1 L_last_{tag}")
                for ks in range(4):
                    a.I(f"v_add_u32 v{XA+ks}, s65, v{XA+ks}")
            stamp_dyn(a)
            a.I("s_barrier")
            stamp_dyn(a)
            if qkv and b == 3:
                a.I("s_cmp_lt_i32 s65, 0")
                a.I("s_cbranch_scc1 L_qtail")
            a.I(J(inter(mfmas(FB, qkv), reads((b+1) % 4, 0, FA, qkv))))
        if qkv:
            a.I("s_mov_b32 s65, 0xffff8000")
            a.I(f"s_branch L_loop_{tag}")
            a.L("L_qtail")
            a.I(J(inter(mfmas(FB, qkv), reads(0, 0, FA, False))))
        else:
            a.I("s_mov_b32 s65, 0xffff8000")
            a.I(f"s_branch L_loop_{tag}")
        if not qkv:
            a.L(f"L_last_{tag}")
            a.I(J(mfmas(FB, qkv)))

    if OPT.get("pflate"):
        for i in range(OPT["pflate"]):
            a.I("s_sleep 8")
        l2_prefetch(a, 0)
    if OPT.get("pfw1early"):
        l2_prefetch(a, 1)
    a.I("s_barrier")
    stamp(a, "B0")
    if STAMPS and OPT.get("fine"): a.I("s_mov_b32 s87, 24")
    if not OPT.get("nopf") and not OPT.get("pfw1early"):
        l2_prefetch(a, 1)
    a.I(J(reads(0, 0, FA)))
    stage_loop("q", True)
    stamp(a, "qloop")
    srd(a, RA, S_WS, VF + 2*MB)
    a.I(f"s_lshl_b32 s54, s{S_RB}, 1")
    a.I("s_add_u32 s54, s54, s64")
    a.I(f"s_lshl_b32 s55, s{S_CG}, 2")
    a.I("s_lshl_b32 s56, s63, 1")
    a.I("s_add_u32 s55, s55, s56")
    a.I("s_lshl_b32 s55, s55, 6")
    a.I("s_add_u32 s54, s54, s55")
    a.I("s_lshl_b32 s54, s54, 10")
    a.I("v_lshlrev_b32 v3, 4, v1")
    a.I("v_bfe_u32 v4, v1, 4, 1")
    a.I("v_lshlrev_b32 v4, 16, v4")
    a.I(f"v_lshl_add_u32 v4, v{H}, 8, v4")
    a.I("v_and_b32 v5, 15, v1")
    a.I("v_lshl_add_u32 v4, v5, 4, v4")
    a.I(f"s_mov_b32 s56, {hex(f2u(QSCALE))}")
    a.I("s_waitcnt vmcnt(0)")
    a.I("s_nop 4")
    for idx, s in enumerate((1, 2, 0)):
        d = ACC + 16*s
        if s == 0:
            for i in range(16):
                a.I(f"v_mul_f32 v{d+i}, s56, v{d+i}")
        for j in range(8):
            a.I(f"v_cvt_pk_bf16_f32 v{d+j}, v{d+2*j}, v{d+2*j+1}")
        if s < 2:
            for hh in range(2):
                a.I(f"s_add_u32 s55, s54, {(KF if s else QF) + hh*65536}")
                a.I(f"buffer_store_dwordx4 {vr(d+4*hh,4)}, v3, {S4(RA)}, s55 offen sc1")
        else:
            a.I(f"s_add_u32 s55, s54, {VF}")
            for u in range(2):
                a.I(f"buffer_store_dwordx4 {vr(d+4*u,4)}, v4, {S4(RA)}, s55 offen offset:{u*512} sc1")
    a.I("s_nop 1")
    for s in range(3):
        for q in range(4):
            r = B1 + (s*4+q)*2
            d = ACC + s*16 + q*4
            a.I(f"v_lshlrev_b32 v{d}, 16, v{r}")
            a.I(f"v_and_b32 v{d+1}, 0xffff0000, v{r}")
            a.I(f"v_lshlrev_b32 v{d+2}, 16, v{r+1}")
            a.I(f"v_and_b32 v{d+3}, 0xffff0000, v{r+1}")
    stage_loop("f", False)
    a.I("s_barrier")
    stamp(a, "floop")
    srd_off(a, RA, S_WS, HF, HF_SIZE)
    a.I(f"s_lshl_b32 s54, s{S_RB}, 1")
    a.I("s_add_u32 s54, s54, s64")
    a.I(f"s_add_u32 s55, s{S_START}, s63")
    a.I("s_lshl_b32 s55, s55, 7")
    a.I("s_add_u32 s54, s54, s55")
    a.I("s_lshl_b32 s54, s54, 10")
    a.I("v_lshlrev_b32 v3, 4, v1")
    a.I("s_nop 4")
    for s in range(3):
        d = ACC + 16*s
        for i in range(16):
            a.I(f"v_max_f32 v{d+i}, 0, v{d+i}")
        for i in range(16):
            a.I(f"v_mul_f32 v{d+i}, v{d+i}, v{d+i}")
        for j in range(8):
            a.I(f"v_cvt_pk_bf16_f32 v{d+j}, v{d+2*j}, v{d+2*j+1}")
        for uu in range(2):
            a.I(f"s_add_u32 s55, s54, {(4*s+uu)*65536}")
            a.I(f"buffer_store_dwordx4 {vr(d+4*uu,4)}, v3, {S4(RA)}, s55 offen sc1")
    a.I("s_nop 1")
    a.I("s_branch L_attn")

def aux_side_issue(a):
    a.I("s_sub_u32 s66, s67, 4")
    a.I(f"s_lshl_b32 s54, s2, 2")
    a.I("s_or_b32 s54, s54, s66")
    a.I("s_cmp_lg_u32 s54, 0")
    a.I("s_cbranch_scc1 L_aux1")
    srd(a, RD, S_DBG, 256)
    a.I("s_memrealtime s[54:55]")
    a.I("s_waitcnt lgkmcnt(0)")
    a.I("s_or_b32 s85, s54, 1")
    a.I("v_mov_b32 v8, s85")
    a.I("v_mov_b32 v10, 0")
    a.I("s_mov_b64 exec, 1")
    a.I(f"buffer_store_dword v8, v10, {S4(RD)}, 0 offen sc1")
    a.I("s_mov_b64 exec, -1")
    a.L("L_aux1")
    a.I(f"s_lshl_b32 s54, s{S_RB}, 6")
    a.I(f"s_lshl_b32 s55, s{S_CG}, 3")
    a.I("s_add_u32 s54, s54, s55")
    a.I("s_lshl_b32 s55, s66, 1")
    a.I("s_add_u32 s86, s54, s55")
    return 0

def aux_side_loads(a):
    a.I("s_lshl_b32 s54, s86, 10")
    srd_off(a, RD, S_AX, "s54", 2048)
    a.I("v_and_b32 v2, 31, v1")
    a.I("v_lshlrev_b32 v2, 5, v2")
    a.I("v_lshrrev_b32 v3, 5, v1")
    a.I("v_lshl_add_u32 v4, v3, 10, v2")
    for i in range(2):
        a.I(f"buffer_load_dwordx4 {vr(32+4*i,4)}, v4, {S4(RD)}, 0 offen offset:{16*i}")
    srd(a, RD, S_GW, 1024)
    for i in range(2):
        a.I(f"buffer_load_dwordx4 {vr(40+4*i,4)}, v2, {S4(RD)}, 0 offen offset:{16*i}")
    n = 4
    if OPT.get("codepf", 1) and not OPT.get("codeearly", 1):
        a.I("s_getpc_b64 s[52:53]")
        a.L("L_pc")
        a.I(f"s_sub_u32 s52, s52, L_pc-{KN}")
        a.I("s_subb_u32 s53, s53, 0")
        a.I("s_mul_i32 s54, s66, 6144")
        a.I("v_lshlrev_b32 v5, 7, v1")
        a.I("v_add_u32 v5, s54, v5")
        a.I(f"v_min_u32 v5, L_code_end-{KN}-4, v5")
        a.I("s_mov_b32 exec_hi, 0xffff")
        a.I("global_load_dword v116, v5, s[52:53]")
        a.I("s_mov_b64 exec, -1")
        n += 1
    return n

def aux_nonce_issue(a):
    srd(a, RD, S_DBG, 256)
    a.I("v_mov_b32 v10, 0")
    a.I(f"buffer_load_dword v8, v10, {S4(RD)}, 0 offen sc1")
    return 1

def aux_nonce_take(a):
    a.I(f"v_readfirstlane_b32 s{S_NONCE}, v8")
    a.I("s_mov_b32 s50, 0x40000")
    a.L("L_nonce")
    a.I(f"s_cmp_lg_u32 s{S_NONCE}, 0")
    a.I("s_cbranch_scc1 L_nonce_ok")
    a.I("s_sub_u32 s50, s50, 1")
    a.I("s_cmp_eq_u32 s50, 0")
    a.I("s_cbranch_scc1 L_nonce_ok")
    srd(a, RD, S_DBG, 256)
    a.I(f"buffer_load_dword v8, v10, {S4(RD)}, 0 offen sc1")
    a.I("s_waitcnt vmcnt(0)")
    a.I(f"v_readfirstlane_b32 s{S_NONCE}, v8")
    a.I("s_branch L_nonce")
    a.L("L_nonce_ok")

def aux_gate(a):
    if OPT.get("p1noprod"): a.I("s_waitcnt vmcnt(0)")
    a.I("v_mov_b32 v24, 0")
    for i in range(8):
        a.I(f"v_dot2c_f32_bf16 v24, v{32+i}, v{40+i}")
    a.I("s_nop 3")
    for sh in (1, 2, 4, 8):
        a.I(f"v_add_f32_dpp v24, v24, v24 row_shr:{sh} row_mask:0xf bank_mask:0xf")
        a.I("s_nop 1")
    a.I("v_add_f32_dpp v24, v24, v24 row_bcast:15 row_mask:0xa bank_mask:0xf")
    a.I("s_nop 1")
    a.I("v_cvt_pk_bf16_f32 v24, v24, v24")
    a.I("v_and_b32 v24, 0xffff0000, v24")
    a.I(f"v_mul_f32 v24, {hex(f2u(-1.4426950408889634))}, v24")
    a.I("v_exp_f32 v24, v24")
    a.I("s_nop 0")
    a.I("v_add_f32 v24, 1.0, v24")
    a.I("v_rcp_f32 v24, v24")
    a.I("s_nop 0")
    a.I("v_cvt_pk_bf16_f32 v24, v24, v24")
    a.I("v_and_b32 v24, 0xffff0000, v24")
    srd_off(a, RD, S_WS, GO, 8192)
    a.I("s_lshl_b32 s54, s86, 2")
    a.I("v_lshrrev_b32 v3, 5, v1")
    a.I("v_lshlrev_b32 v3, 2, v3")
    a.I("s_mov_b32 s52, 0x80000000")
    a.I("s_mov_b32 s53, 0x80000000")
    a.I("s_mov_b64 exec, s[52:53]")
    a.I(f"buffer_store_dword v24, v3, {S4(RD)}, s54 offen sc1")
    a.I("s_mov_b64 exec, -1")

def aux_publish_fa(a):
    a.I("s_cmp_lg_u32 s66, 0")
    a.I("s_cbranch_scc1 L_aux2")
    srd_off(a, RD, S_WS, FLG, FLG_SIZE)
    a.I(f"s_lshl_b32 s54, s{S_CG}, 7")
    a.I(f"s_lshl_b32 s55, s{S_RB}, 2")
    a.I("s_add_u32 s54, s54, s55")
    a.I(f"s_add_u32 s54, s54, {FA_OFF}")
    a.I(f"v_mov_b32 v8, s{S_NONCE}")
    a.I(f"v_mov_b32 v10, 0")
    a.I("s_mov_b64 exec, 1")
    a.I(f"buffer_store_dword v8, v10, {S4(RD)}, s54 offen sc1")
    a.I("s_mov_b64 exec, -1")
    stamp(a, "FApub")
    a.L("L_aux2")

def aux_zero_misc(a):
    a.I("s_cmp_lg_u32 s66, 1")
    a.I("s_cbranch_scc1 L_aux3")
    a.I(f"v_lshlrev_b32 v10, 2, v1")
    if L_MISC: a.I(f"v_add_u32 v10, {L_MISC}, v10")
    a.I("v_mov_b32 v9, 0")
    a.I("ds_write_b32 v10, v9")
    a.I("s_waitcnt lgkmcnt(0)")
    a.I("v_mov_b32 v10, 0")
    a.L("L_aux3")

def aux_share_nonce(a):
    a.I("s_cmp_lg_u32 s66, 0")
    a.I("s_cbranch_scc1 L_aux4")
    a.I(f"v_mov_b32 v9, {L_MISC + 128}")
    a.I(f"v_mov_b32 v11, s{S_NONCE}")
    a.I("ds_write_b32 v9, v11")
    a.I("s_waitcnt lgkmcnt(0)")
    a.L("L_aux4")

def aux_fa_probe(a):
    srd_off(a, RC, S_WS, FLG, FLG_SIZE)
    a.I(f"s_lshr_b32 s88, s{S_HD}, 2")
    a.I("s_lshl_b32 s88, s88, 7")
    a.I(f"s_add_u32 s88, s88, {FA_OFF}")
    a.I("v_lshlrev_b32 v9, 2, v1")
    a.I("s_mov_b32 exec_hi, 0")
    a.I(f"buffer_load_dword v11, v9, {S4(RC)}, s88 offen sc1")
    a.I("s_mov_b64 exec, -1")

def aux_after_e1(a):
    a.I("s_mov_b32 s67, s66")
    a.I("s_setprio 3")
    stamp(a, "E2")
    a.I("s_mov_b32 exec_hi, 0")
    a.I("s_waitcnt vmcnt(0)")
    a.I(f"v_cmp_ne_u32 vcc, s{S_NONCE}, v11")
    a.I("s_mov_b64 exec, -1")
    a.I("s_cbranch_vccz L_aux5")
    poll(a, RC, 32, 9, 11, "s88", OPT.get("faslp", 2))
    a.L("L_aux5")
    stamp(a, "FAok")
    VL = 4
    a.I(f"v_lshlrev_b32 v{VL}, 4, v1")
    a.I(f"s_lshl_b32 s54, s{S_HD}, 16")
    a.I(f"s_add_u32 s55, s54, {KF}")
    srd_off(a, RA, S_WS, "s55", 65536)
    a.I(f"s_add_u32 s55, s54, {VF}")
    srd_off(a, RB, S_WS, "s55", 65536)
    a.I(f"s_add_u32 s55, s54, {QF}")
    srd_off(a, RD, S_WS, "s55", 65536)
    a.I(f"s_lshl_b32 s54, s{S_QB}, 3")
    a.I("s_lshl_b32 s55, s67, 1")
    a.I("s_add_u32 s54, s54, s55")
    a.I("s_lshl_b32 s54, s54, 10")
    a.I("s_lshl_b32 s55, s67, 11")
    a.I(f"s_add_u32 s55, s55, {L_RING}")
    for t in range(2):
        a.I(f"s_add_u32 m0, s55, {t*1024}")
        a.I(f"s_add_u32 s56, s54, {t*1024}")
        a.I(f"buffer_load_dwordx4 v{VL}, {S4(RD)}, s56 offen sc1 lds")
    a.I("s_lshl_b32 s54, s67, 10")
    def kvchunks(cs):
        for c in cs:
            a.I(f"s_add_u32 s55, s54, {c*4096}")
            a.I(f"s_add_u32 m0, s55, {L_K}")
            a.I(f"s_add_u32 s56, s55, {L_V}")
            a.I(f"buffer_load_dwordx4 v{VL}, {S4(RA)}, s55 offen sc1 lds")
            a.I("s_mov_b32 m0, s56")
            a.I("s_nop 0")
            a.I(f"buffer_load_dwordx4 v{VL}, {S4(RB)}, s55 offen sc1 lds")
    kvchunks(range(0, 2))
    kvchunks(range(2, 4))
    a.I("s_waitcnt vmcnt(4)")
    lds_add1(a, M_KV, 8, 9)
    stamp(a, "KV1")
    kvchunks(range(4, 16))
    a.I("s_lshr_b32 s53, s2, 3")
    srd(a, RA, S_W2, 1376*1024)
    srd(a, RB, S_WO, 512*1024)
    a.I("s_mul_i32 s54, s53, 44032")
    a.I("s_lshl_b32 s55, s67, 10")
    a.I("s_add_u32 s54, s54, s55")
    a.I("s_waitcnt vmcnt(0)")
    lds_add1(a, M_KV, 8, 9)
    stamp(a, "KV2")
    a.I("v_lshlrev_b32 v10, 7, v1")
    a.I("s_lshl_b32 s55, s67, 13")
    a.I("s_mul_i32 s54, s53, 44032")
    a.I("s_add_u32 s54, s54, s55")
    a.I(f"buffer_load_dword v40, v10, {S4(RA)}, s54 offen")
    a.I("s_add_u32 s54, s54, 32768")
    a.I(f"buffer_load_dword v41, v10, {S4(RA)}, s54 offen")
    a.I("s_lshl_b32 s54, s53, 14")
    a.I("s_lshl_b32 s55, s67, 12")
    a.I("s_add_u32 s54, s54, s55")
    a.I("s_mov_b32 exec_hi, 0")
    a.I(f"buffer_load_dword v42, v10, {S4(RB)}, s54 offen")
    a.I("s_mov_b64 exec, -1")

def ffn2_p3(a):
    WF, HR, ACC2, BPR = 24, 40, 104, 8
    VH, VW, VA0, VA1 = 2, 3, 4, 5
    a.I("s_cmp_lg_u32 s67, 0")
    a.I("s_cbranch_scc1 L_f1")
    lds_spin(a, M_HST, 4, 8, 9, OPT.get('fslp', 1))
    lds_spin(a, M_KV, 8, 8, 9)
    a.I(f"s_lshl_b32 s54, s{S_RB}, 7")
    a.I(f"s_lshl_b32 s55, s{S_CG}, 2")
    a.I("s_add_u32 s54, s54, s55")
    a.I(f"s_add_u32 s54, s54, {FH_OFF}")
    flag_store(a, "s54", 8, 10)
    a.I(f"s_lshl_b32 s54, s{S_HD}, 7")
    a.I(f"s_add_u32 s54, s54, {FH_OFF}")
    a.I("v_lshlrev_b32 v8, 2, v1")
    poll(a, RC, 8, 8, 9, "s54", OPT.get("fhslp", 8))
    lds_add1(a, M_H, 8, 9)
    a.I("s_branch L_f2")
    a.L("L_f1")
    lds_spin(a, M_H, 1, 8, 9, OPT.get('fslp', 1))
    a.L("L_f2")
    lds_spin(a, M_QRD, 8, 8, 9, OPT.get('fslp', 1))
    stamp(a, "hready")
    srd(a, RA, S_W2, 1376*1024)
    srd_off(a, RB, S_WS, HF, HF_SIZE)
    a.I(f"v_lshlrev_b32 v{VH}, 4, v1")
    dma_w_lane_off(a, VW, 1, 8, 9, 1024)
    a.I(f"s_lshl_b32 s54, s{S_QB}, 7")
    a.I(f"v_add_u32 v{VW}, s54, v{VW}")
    tr_lane_addr(a, VA0, 1, 8, 9, 4, 128)
    a.I("s_mul_i32 s68, s67, 6144")
    a.I(f"s_add_u32 s68, s68, {L_RING}")
    a.I(f"v_add_u32 v{VA0}, s68, v{VA0}")
    a.I(f"v_xor_b32 v{VA1}, 64, v{VA0}")
    a.I("s_mul_i32 s54, s67, 24")
    a.I("s_lshl_b32 s70, s54, 14")
    a.I("s_lshl_b32 s71, s54, 16")
    a.I(f"s_lshl_b32 s55, s{S_HD}, 11")
    a.I("s_add_u32 s71, s71, s55")
    for i in range(64):
        a.I(f"v_mov_b32 v{ACC2+i}, 0")
    a.I("s_waitcnt vmcnt(0)")
    def fissue(slot):
        return [f"s_add_u32 m0, s68, {slot*2048}",
                f"s_add_u32 s69, s70, 8192",
                f"buffer_load_dwordx4 v{VW}, {S4(RA)}, s70 offen lds",
                f"s_add_u32 m0, s68, {slot*2048+1024}",
                f"s_add_u32 s70, s70, 16384",
                f"buffer_load_dwordx4 v{VW}, {S4(RA)}, s69 offen lds",
                f"buffer_load_dwordx4 {vr(HR+slot*8,4)}, v{VH}, {S4(RB)}, s71 offen sc1",
                f"buffer_load_dwordx4 {vr(HR+slot*8+4,4)}, v{VH}, {S4(RB)}, s71 offen offset:1024 sc1",
                f"s_add_u32 s71, s71, 65536"]
    def trr(F, off):
        out = []
        for ct, va in ((0, VA0), (1, VA1)):
            for rd in range(2):
                out.append(f"ds_read_b64_tr_b16 {vr(F+4*ct+2*rd,2)}, v{va} offset:{off + rd*1024}")
        return out
    N2 = OPT.get("n2", 0)
    a.I("s_cmp_eq_u32 s67, 3")
    a.I(f"s_cselect_b32 s72, {5-N2}, {8-N2}")
    a.I("s_mov_b32 s76, 0")
    a.L("L_fpro")
    for slot in range(3):
        a.I(J(fissue(slot)))
    a.I("s_cmp_lg_u32 s76, 0")
    a.I("s_cbranch_scc1 L_floop")
    a.I(f"s_setprio {OPT.get('ffnprio', 0)}")
    if OPT.get("noffn"): a.I("s_branch L_fskip")
    a.L("L_floop")
    for slot in range(3):
        a.I("s_waitcnt vmcnt(8)")
        a.I(J(trr(WF, slot*2048)))
        a.I("s_waitcnt lgkmcnt(0)")
        fi = fissue(slot)
        mf = lambda ct, rt: MF(ACC2 + (ct*2+rt)*16, WF+4*ct, HR+slot*8+4*rt, ACC2 + (ct*2+rt)*16)
        if OPT.get("fspread", 1):
            a.I(mf(0, 0)); a.I(J(fi[0:3]))
            a.I(mf(1, 0)); a.I(J(fi[3:6]))
            a.I(mf(0, 1)); a.I(fi[6])
            a.I(mf(1, 1)); a.I(J(fi[7:]))
        else:
            for ct in range(2):
                for rt in range(2):
                    a.I(mf(ct, rt))
            a.I(J(fi))
    a.I("s_sub_u32 s72, s72, 1")
    a.I("s_cmp_lg_u32 s72, 0")
    a.I("s_cbranch_scc1 L_floop")
    a.L("L_fskip")
    a.I("s_setprio 3")
    a.I("s_waitcnt vmcnt(0)")
    a.I("s_cmp_lg_u32 s76, 0")
    a.I("s_cbranch_scc1 L_fdone")
    lds_add1(a, M_FFN, 8, 9)
    stamp(a, "ffn2")
    lds_spin(a, M_ATT, 4, 8, 9, OPT.get('attslp', 1))
    stamp(a, "attdone")
    srd(a, RD, S_WO, 512*1024)
    a.I("s_lshl_b32 s56, s67, 14")
    a.I(f"s_add_u32 s56, s56, {L_K}")
    a.I("s_lshl_b32 s57, s67, 17")
    for ks in range(8):
        for n in range(2):
            a.I(f"s_add_u32 m0, s56, {ks*2048+n*1024}")
            a.I(f"s_add_u32 s69, s57, {ks*16384+n*8192}")
            a.I(f"buffer_load_dwordx4 v{VW}, {S4(RD)}, s69 offen lds")
    if N2:
        a.I("s_mov_b32 s76, 1")
        a.I(f"s_sub_u32 s70, s70, {3*16384}")
        a.I(f"s_sub_u32 s71, s71, {3*65536}")
        a.I(f"s_mov_b32 s72, {N2}")
        a.I("s_branch L_fpro")
    a.L("L_fdone")
    srd_off(a, RA, S_WS, GO, 8192)
    srd(a, RB, S_B2, 1024)
    a.I("s_and_b32 s73, s67, 1")
    a.I("s_lshr_b32 s74, s67, 1")
    a.I(f"s_lshl_b32 s75, s{S_HD}, 6")
    a.I("s_lshl_b32 s54, s73, 5")
    a.I("s_add_u32 s75, s75, s54")
    a.I("s_lshl_b32 s54, s75, 2")
    a.I("v_and_b32 v8, 31, v1")
    a.I("v_lshlrev_b32 v8, 2, v8")
    a.I(f"buffer_load_dword v40, v8, {S4(RA)}, s54 offen sc1")
    a.I(f"s_lshl_b32 s54, s{S_QB}, 6")
    a.I("s_lshl_b32 s55, s74, 5")
    a.I("s_add_u32 s54, s54, s55")
    a.I("s_lshl_b32 s54, s54, 1")
    a.I("v_lshrrev_b32 v8, 5, v1")
    a.I("v_lshlrev_b32 v8, 3, v8")
    for q in range(4):
        a.I(f"buffer_load_dwordx2 v[{42+2*q}:{43+2*q}], v8, {S4(RB)}, s54 offen offset:{q*16}")
    a.I("s_lshl_b32 s68, s67, 14")
    a.I("s_nop 7")
    a.I(f"s_add_u32 s54, s68, {L_V}")
    a.I(f"v_add_u32 v8, s54, v{VH}")
    for i in range(16):
        a.I(f"ds_write_b128 v8, {vr(ACC2+4*i,4)} offset:{i*1024}")
    a.I("s_waitcnt vmcnt(0) lgkmcnt(0)")
    lds_add1(a, M_T1, 9, 10)
    lds_spin(a, M_T1, 4, 9, 10)
    a.I("s_lshl_b32 s54, s67, 12")
    a.I(f"s_add_u32 s54, s54, {L_V}")
    a.I(f"v_add_u32 v8, s54, v{VH}")
    for p in range(4):
        for q in range(4):
            a.I(f"ds_read_b128 {vr(ACC2+p*16+q*4,4)}, v8 offset:{p*16384+q*1024}")
    a.I("s_waitcnt lgkmcnt(0)")
    for i in range(16):
        a.I(f"v_add_f32 v{ACC2+i}, v{ACC2+i}, v{ACC2+16+i}")
        a.I(f"v_add_f32 v{ACC2+32+i}, v{ACC2+32+i}, v{ACC2+48+i}")
    for i in range(16):
        a.I(f"v_add_f32 v{ACC2+i}, v{ACC2+i}, v{ACC2+32+i}")
    a.I("s_waitcnt vmcnt(0)")
    a.I("v_sub_f32 v41, 1.0, v40")
    a.I("v_cvt_pk_bf16_f32 v41, v41, v41")
    a.I("v_and_b32 v41, 0xffff0000, v41")
    for q in range(4):
        a.I(f"v_lshlrev_b32 v52, 16, v{42+2*q}")
        a.I(f"v_and_b32 v53, 0xffff0000, v{42+2*q}")
        a.I(f"v_lshlrev_b32 v54, 16, v{43+2*q}")
        a.I(f"v_and_b32 v55, 0xffff0000, v{43+2*q}")
        for j in range(4):
            a.I(f"v_add_f32 v{BPR+4*q+j}, v{ACC2+4*q+j}, v{52+j}")
        for j in range(4):
            a.I(f"v_mul_f32 v{BPR+4*q+j}, v{BPR+4*q+j}, v41")
    a.I("v_mov_b32 v39, v40")
    tr_lane_addr(a, VA0, 1, 32, 33, 4, 128)
    a.I("s_lshl_b32 s54, s74, 6")
    a.I(f"v_xor_b32 v{VA0}, s54, v{VA0}")
    a.I(f"v_add_u32 v{VA0}, {L_K}, v{VA0}")
    a.I("s_lshl_b32 s54, s73, 15")
    a.I(f"s_add_u32 s54, s54, {L_V}")
    a.I(f"v_add_u32 v{VA1}, s54, v{VH}")
    FR = 40
    def wreads(ks):
        F = FR + (ks % 8) * 8
        return [f"ds_read_b64_tr_b16 {vr(F,2)}, v{VA0} offset:{ks*2048}",
                f"ds_read_b64_tr_b16 {vr(F+2,2)}, v{VA0} offset:{ks*2048+1024}"]
    def oread(ks):
        F = FR + (ks % 8) * 8
        return [f"ds_read_b128 {vr(F+4,4)}, v{VA1} offset:{ks*1024}"]
    a.I("s_cmp_lg_u32 s67, 0")
    a.I("s_cbranch_scc1 L_f4")
    a.I(f"s_lshl_b32 s54, s{S_HD}, 8")
    a.I(f"s_add_u32 s54, s54, {FO_OFF}")
    a.I("v_lshlrev_b32 v121, 2, v1")
    if not OPT.get("opf", 0):
        poll(a, RC, 64, 121, 122, "s54", OPT.get("foslp", 2))
    else:
        srd_off(a, RB, S_WS, OF, 2*MB)
        a.I(f"s_lshl_b32 s55, s{S_HD}, 16")
        a.I("v_lshlrev_b32 v123, 10, v1")
        a.I("s_mov_b64 s[56:57], 0")
        a.I("s_mov_b32 s50, 0x40000")
        a.L("L_opf")
        a.I(f"buffer_load_dword v122, v121, {S4(RC)}, s54 offen sc1")
        a.I("s_waitcnt vmcnt(0)")
        a.I(f"v_cmp_eq_u32 vcc, s{S_NONCE}, v122")
        a.I("s_nop 1")
        a.I("s_andn2_b64 s[58:59], vcc, s[56:57]")
        a.I("s_or_b64 s[56:57], s[56:57], vcc")
        a.I("s_cmp_eq_u64 s[56:57], -1")
        a.I("s_cbranch_scc1 L_opf3")
        a.I("s_cmp_eq_u64 s[58:59], 0")
        a.I("s_cbranch_scc1 L_opf2")
        a.I("s_mov_b64 exec, s[58:59]")
        for j in range(8):
            a.I(f"buffer_load_dword v120, v123, {S4(RB)}, s55 offen offset:{j*128} sc1")
        a.I("s_mov_b64 exec, -1")
        a.L("L_opf2")
        a.I("s_sub_u32 s50, s50, 1")
        a.I("s_cmp_eq_u32 s50, 0")
        a.I("s_cbranch_scc1 L_opf3")
        a.I(f"s_sleep {OPT.get('foslp', 2)}")
        a.I("s_branch L_opf")
        a.L("L_opf3")
    a.L("L_f4")
    for ks in range(8): a.I(J(wreads(ks)))
    srd_off(a, RB, S_WS, OF, 2*MB)
    a.I(f"s_lshl_b32 s54, s{S_HD}, 16")
    a.I("s_lshl_b32 s55, s67, 11")
    a.I("s_add_u32 s54, s54, s55")
    a.I(f"s_add_u32 s55, s55, {L_V}")
    srd(a, RA, S_OUT, 2*MB)
    a.I("s_lshl_b32 s58, s75, 10")
    a.I(f"s_lshl_b32 s59, s{S_QB}, 7")
    a.I("s_add_u32 s58, s58, s59")
    a.I("s_lshl_b32 s59, s74, 6")
    a.I("s_add_u32 s58, s58, s59")
    a.I("v_and_b32 v32, 31, v1")
    a.I("v_lshlrev_b32 v32, 10, v32")
    a.I("v_lshrrev_b32 v33, 5, v1")
    a.I("v_lshl_add_u32 v32, v33, 4, v32")
    a.I("s_waitcnt lgkmcnt(0)")
    a.I("s_barrier")
    stamp(a, "T2")
    def odma(ch):
        L = []
        for hh in range(2):
            for rt in range(2):
                off = rt*32768 + ch*8192 + hh*1024
                L.append([f"s_add_u32 m0, s55, {off}", f"s_add_u32 s56, s54, {off}",
                          f"buffer_load_dwordx4 v{VH}, {S4(RB)}, s56 offen sc1 lds"])
        return L
    for ch in range(4):
        for x in odma(ch): a.I(J(x))
    for ch in range(4):
        a.I(f"s_waitcnt vmcnt({4*(3-ch)}) lgkmcnt(0)")
        a.I("s_barrier")
        for ks in range(8*ch, 8*ch+8): a.I(J(oread(ks)))
        for i in range(8):
            ks = 8*ch + i
            a.I(f"s_waitcnt lgkmcnt({7 + i if ch < 3 else 7 - i})")
            F = FR + i*8
            a.I(MF(ACC2, F, F+4, ACC2 if ks else None))
            if ch < 3: a.I(J(wreads(ks+8)))
    a.I("s_nop 15")
    stamp(a, "p3mm")
    for i in range(16):
        a.I(f"v_fma_f32 v{ACC2+i}, v{ACC2+i}, v39, v{BPR+i}")
    for j in range(8):
        a.I(f"v_cvt_pk_bf16_f32 v{ACC2+j}, v{ACC2+2*j}, v{ACC2+2*j+1}")
    a.I("s_nop 1")
    a.I(f"v_permlane32_swap_b32 v{ACC2}, v{ACC2+2}")
    a.I(f"v_permlane32_swap_b32 v{ACC2+1}, v{ACC2+3}")
    a.I(f"v_permlane32_swap_b32 v{ACC2+4}, v{ACC2+6}")
    a.I(f"v_permlane32_swap_b32 v{ACC2+5}, v{ACC2+7}")
    ofl = {0: "", 1: " sc1", 2: " nt", 3: " sc0 sc1"}[OPT.get("outfl", 0)]
    a.I(f"buffer_store_dwordx4 {vr(ACC2,4)}, v32, {S4(RA)}, s58 offen{ofl}")
    a.I(f"buffer_store_dwordx4 {vr(ACC2+4,4)}, v32, {S4(RA)}, s58 offen offset:32{ofl}")
    stamp_flush(a, "ffn")
    a.I("s_endpgm")

def attention(a):
    a.L("L_attn")
    stamp(a, "attn0")
    QA, QB = 8, 12
    KB = [16, 20]; VB = [24, 32]
    S0, S1, OA, OB = 40, 56, 72, 88
    VK, VV, VL = 2, 3, 4
    T0, T1, T2 = 104, 105, 106
    VKN, VVN, VVB, VCH, VONE, VNX = 107, 108, 109, 110, 111, 5
    a.I(f"s_and_b32 s63, s{S_W}, 3")
    a.I(f"s_lshr_b32 s64, s{S_W}, 2")
    a.I(f"v_lshlrev_b32 v{VL}, 4, v1")
    a.I(f"v_lshrrev_b32 v{T0}, 5, v1")
    a.I(f"v_and_b32 v{T1}, 15, v1")
    a.I(f"v_lshlrev_b32 v{T1}, 4, v{T1}")
    a.I(f"v_lshl_add_u32 v{VVB}, v{T0}, 8, v{T1}")
    a.I(f"v_add_u32 v{VVB}, {L_V}, v{VVB}")
    a.I(f"v_add_u32 v{VKN}, {L_K}, v{VL}")
    a.I("s_lshl_b32 s54, s64, 12")
    a.I(f"v_add_u32 v{VK}, s54, v{VL}")
    a.I(f"v_add_u32 v{VV}, s54, v{VVB}")
    a.I("s_lshl_b32 s54, s63, 2")
    a.I(f"s_add_u32 s54, s54, {M_CH}")
    a.I(f"v_mov_b32 v{VCH}, s54")
    a.I(f"v_mov_b32 v{VONE}, 1")
    a.I("s_mov_b32 s74, 0x0000ffff")
    a.I("s_mov_b32 s75, 0x0000ffff")
    a.I("s_mov_b32 s77, 0")
    a.I(f"s_lshl_b32 s66, s{S_QB}, 3")
    a.I("s_lshl_b32 s54, s63, 1")
    a.I("s_add_u32 s66, s66, s54")
    a.I("s_lshl_b32 s54, s63, 11")
    a.I(f"s_add_u32 s54, s54, {L_RING}")
    a.I(f"v_add_u32 v{T2}, s54, v{VL}")
    a.I(f"v_and_b32 v{T0}, 31, v1")
    a.I(f"v_cmp_eq_u32 vcc, 16, v{T0}")
    a.I(f"v_mov_b32 v{T1}, 0x3f803f80")
    a.I("s_nop 1")
    a.I(f"v_cndmask_b32 v{T0}, 0, v{T1}, vcc")
    for i in range(16):
        a.I(f"v_mov_b32 v{VB[0]+i}, v{T0}")
    lds_spin(a, M_KV, 4, T0, T1)
    stamp(a, "kvok")
    a.I(f"ds_read_b128 {vr(QA,4)}, v{T2}")
    a.I(f"ds_read_b128 {vr(QB,4)}, v{T2} offset:1024")
    for i in range(16):
        a.I(f"v_mov_b32 v{OA+i}, 0")
        a.I(f"v_mov_b32 v{OB+i}, 0")
    a.I("s_waitcnt lgkmcnt(0)")
    lds_add1(a, M_QRD, T0, T1)
    a.I("s_lshl_b32 s71, s64, 12")
    if STAMPS and OPT.get("fineattn"): a.I("s_mov_b32 s87, 24")
    a.I("s_mov_b32 s73, 0")

    def e_(S, i): return f"v_exp_f32 v{S+i}, v{S+i}"
    def c_(S, j): return f"v_cvt_pk_bf16_f32 v{S+j}, v{S+2*j}, v{S+2*j+1}"
    def tile(Sin, Sout, Qn, Kn, Ocur, Vcur_u0, Oprev, Vprev_u1, after_pv2, wait_s, after_s, wait_pv1, do_pv2=True, do_s=True):
        e = lambda i: e_(Sin, i)
        c = lambda j: c_(Sin, j)
        L = [e(0), e(1)]
        if do_pv2: L.append(MF(Oprev, Vprev_u1, Sout+4, Oprev))
        L += after_pv2
        L += [e(2), e(3), c(0), e(4), e(5), c(1)]
        L += wait_s
        if do_s: L.append(MF(Sout, Kn, Qn))
        L += after_s
        L += [e(6), e(7), c(2), e(8), e(9), c(3), e(10), e(11)]
        L += wait_pv1
        L.append(MF(Ocur, Vcur_u0, Sin, Ocur))
        L += [c(4), e(12), e(13), c(5), e(14), e(15), c(6), c(7)]
        return L
    fifo = []
    def dsr(tag, txt): fifo.append(tag); return txt
    def need(tag):
        idx = max(i for i, t in enumerate(fifo) if t == tag)
        return [f"s_waitcnt lgkmcnt({len(fifo) - 1 - idx})"]
    def vreads(t):
        kap = t & 1
        return ["s_mov_b64 exec, s[74:75]",
                dsr(("V", t), f"ds_read_b128 {vr(VB[kap],4)}, v{VV} offset:{t*1024}"),
                dsr(("V", t), f"ds_read_b128 {vr(VB[kap]+4,4)}, v{VV} offset:{t*1024+512}"),
                "s_mov_b64 exec, -1"]
    def kread(t): return [dsr(("K", t), f"ds_read_b128 {vr(KB[t & 1],4)}, v{VK} offset:{t*1024}")]
    a.raw(".p2align 6")
    a.L("L_aloop")
    if OPT.get("fineattn"):
        OPT["fine"] = 1; stamp_dyn(a); OPT["fine"] = 0
    a.I(f"v_add_u32 v{VK}, s71, v{VKN}")
    a.I(f"v_add_u32 v{VV}, s71, v{VVB}")
    L = kread(0) + vreads(0) + kread(1)
    L += need(("K", 0))
    L.append(MF(S0, KB[0], QA))
    a.I(J(L))
    a.I("s_nop 7")
    a.I("s_nop 3")
    body = []
    for t in range(4):
        kap = t & 1
        A = []
        Sin, Sout = S0, S1
        A += [e_(Sin, 0), e_(Sin, 1)]
        if t > 0: A.append(MF(OB, VB[kap^1]+4, Sout+4, OB))
        if t + 1 < 4: A += vreads(t+1)
        A += [e_(Sin, 2), e_(Sin, 3), c_(Sin, 0), e_(Sin, 4), e_(Sin, 5), c_(Sin, 1)]
        A.append(MF(Sout, KB[kap], QB))
        if t + 2 < 4: A += kread(t+2)
        A += [e_(Sin, 6), e_(Sin, 7), c_(Sin, 2), e_(Sin, 8), e_(Sin, 9), c_(Sin, 3), e_(Sin, 10), e_(Sin, 11)]
        A += need(("V", t))
        A.append(MF(OA, VB[kap], Sin, OA))
        A += [c_(Sin, 4), e_(Sin, 12), e_(Sin, 13), c_(Sin, 5), e_(Sin, 14), e_(Sin, 15), c_(Sin, 6), c_(Sin, 7)]
        Sin, Sout = S1, S0
        B = [e_(Sin, 0), e_(Sin, 1), MF(OA, VB[kap]+4, Sout+4, OA)]
        if t == 3:
            B += ["s_mov_b64 exec, 1", dsr(("G",), f"ds_add_rtn_u32 v{VNX}, v{VCH}, v{VONE}"), "s_mov_b64 exec, -1"]
        B += [e_(Sin, 2), e_(Sin, 3), c_(Sin, 0), e_(Sin, 4), e_(Sin, 5), c_(Sin, 1)]
        if t + 1 < 4:
            B += need(("K", t+1))
            B.append(MF(Sout, KB[kap^1], QA))
        B += [e_(Sin, 6), e_(Sin, 7), c_(Sin, 2), e_(Sin, 8), e_(Sin, 9), c_(Sin, 3), e_(Sin, 10), e_(Sin, 11)]
        B.append(MF(OB, VB[kap], Sin, OB))
        B += [c_(Sin, 4), e_(Sin, 12), e_(Sin, 13), c_(Sin, 5), e_(Sin, 14), e_(Sin, 15), c_(Sin, 6), c_(Sin, 7)]
        body += A + B
    a.I(J(body))
    a.I("s_waitcnt lgkmcnt(0)")
    a.I(f"v_readfirstlane_b32 s70, v{VNX}")
    a.I(MF(OB, VB[1]+4, S1+4, OB))
    a.I("s_add_u32 s70, s70, 2")
    a.I("s_lshl_b32 s71, s70, 12")
    a.I("s_cmp_lg_u32 s73, 0")
    a.I("s_cbranch_scc1 L_aloop2")
    a.I("s_mov_b32 s73, 1")
    a.I("s_waitcnt vmcnt(0)")
    a.I(f"s_cmp_ge_u32 s{S_W}, 4")
    a.I("s_cbranch_scc1 L_aloop1")
    lds_add1(a, M_HST, T0, T1)
    a.L("L_aloop1")
    lds_spin(a, M_KV, 8, T0, T1)
    a.L("L_aloop2")
    a.I("s_cmp_lt_u32 s70, 16")
    a.I("s_cbranch_scc1 L_aloop")
    a.I("s_waitcnt lgkmcnt(0)")
    a.I("s_nop 7")
    stamp(a, "aloop")
    a.I("s_lshl_b32 s54, s63, 2")
    a.I(f"s_add_u32 s55, s54, {M_PAIR}")
    a.I(f"s_add_u32 s76, s54, {M_PFLAG}")
    a.I(f"v_mov_b32 v{T0}, s55")
    a.I(f"v_mov_b32 v{T1}, 1")
    a.I("s_mov_b64 exec, 1")
    a.I(f"ds_add_rtn_u32 v{T2}, v{T0}, v{T1}")
    a.I("s_mov_b64 exec, -1")
    a.I("s_mul_i32 s54, s63, 4608")
    a.I(f"s_add_u32 s54, s54, {L_XCH}")
    a.I(f"v_add_u32 v{S0}, s54, v{VL}")
    a.I(f"v_lshlrev_b32 v{S0+1}, 2, v1")
    a.I(f"v_add_u32 v{S0+1}, s54, v{S0+1}")
    a.I("s_waitcnt lgkmcnt(0)")
    a.I(f"v_readfirstlane_b32 s55, v{T2}")
    a.I("s_nop 4")
    a.I("s_cmp_lg_u32 s55, 0")
    a.I("s_cbranch_scc1 L_second")
    lds_spin(a, M_FFN, 4, T0, T1)
    a.I(f"ds_write_b128 v{S0}, {vr(OA,4)}")
    a.I(f"ds_write_b128 v{S0}, {vr(OA+4,4)} offset:1024")
    a.I(f"ds_write_b128 v{S0}, {vr(OB,4)} offset:2048")
    a.I(f"ds_write_b128 v{S0}, {vr(OB+4,4)} offset:3072")
    a.I(f"ds_write_b32 v{S0+1}, v{OA+8} offset:4096")
    a.I(f"ds_write_b32 v{S0+1}, v{OB+8} offset:4352")
    a.I("s_waitcnt lgkmcnt(0)")
    lds_add1(a, "s76", T0, T1)
    a.I("s_waitcnt lgkmcnt(0)")
    stamp_flush(a, "attn")
    a.I("s_endpgm")
    a.L("L_second")
    lds_spin(a, "s76", 1, T0, T1)
    a.I(f"ds_read_b128 {vr(S1,4)}, v{S0}")
    a.I(f"ds_read_b128 {vr(S1+4,4)}, v{S0} offset:1024")
    a.I(f"ds_read_b128 {vr(S1+8,4)}, v{S0} offset:2048")
    a.I(f"ds_read_b128 {vr(S1+12,4)}, v{S0} offset:3072")
    a.I(f"ds_read_b32 v{T0}, v{S0+1} offset:4096")
    a.I(f"ds_read_b32 v{T1}, v{S0+1} offset:4352")
    a.I(f"v_mov_b32 v{T2}, {L_MISC + 128}")
    a.I(f"ds_read_b32 v{T2}, v{T2}")
    a.I("s_waitcnt lgkmcnt(0)")
    a.I(f"v_readfirstlane_b32 s{S_NONCE}, v{T2}")
    for i in range(8):
        a.I(f"v_add_f32 v{OA+i}, v{OA+i}, v{S1+i}")
        a.I(f"v_add_f32 v{OB+i}, v{OB+i}, v{S1+8+i}")
    a.I(f"v_add_f32 v{OA+8}, v{OA+8}, v{T0}")
    a.I(f"v_add_f32 v{OB+8}, v{OB+8}, v{T1}")
    a.L("L_fin")
    for O in (OA, OB):
        a.I(f"v_mov_b32 v{O+9}, v{O+8}")
    a.I("s_nop 1")
    for O in (OA, OB):
        a.I(f"v_permlane32_swap_b32 v{O+9}, v{O+8}")
    a.I("s_nop 1")
    for O in (OA, OB):
        a.I(f"v_rcp_f32 v{O+10}, v{O+9}")
    srd_off(a, RA, S_WS, OF, 2*MB)
    a.I("s_lshl_b32 s54, s66, 5")
    a.I(f"s_add_u32 s54, s54, s{S_HD}")
    a.I("s_lshl_b32 s55, s54, 10")
    for n_, O in enumerate((OA, OB)):
        for i in range(8):
            a.I(f"v_mul_f32 v{S0+8*n_+i}, v{O+i}, v{O+10}")
        for j in range(4):
            a.I(f"v_cvt_pk_bf16_f32 v{S1+4*n_+j}, v{S0+8*n_+2*j}, v{S0+8*n_+2*j+1}")
        a.I(f"buffer_store_dwordx4 {vr(S1+4*n_,4)}, v{VL}, {S4(RA)}, s55 offen sc1")
        if n_ == 0: a.I("s_add_u32 s55, s55, 32768")
    srd_off(a, RC, S_WS, FLG, FLG_SIZE)
    slow_check(a, OA, OB, T0, T1)
    lds_add1(a, M_ATT, T0, T1)
    a.I("s_lshl_b32 s54, s54, 2")
    a.I(f"s_add_u32 s54, s54, {FO_OFF}")
    a.I(f"v_mov_b32 v{T0}, s{S_NONCE}")
    a.I(f"v_lshlrev_b32 v{T1}, 7, v1")
    a.I("s_waitcnt vmcnt(0)")
    a.I("s_mov_b64 exec, 3")
    a.I(f"buffer_store_dword v{T0}, v{T1}, {S4(RC)}, s54 offen sc1")
    a.I("s_mov_b64 exec, -1")
    stamp_flush(a, "attn")
    a.I("s_endpgm")
    slow_path(a, QA, QB, KB, VB, S0, S1, OA, OB, VL, T0, T1, T2)

def slow_check(a, OA, OB, T0, T1):
    if OPT.get("noslow"): return
    a.I(f"v_mul_f32 v{T0}, 0, v{OA}")
    for i in range(1, 8):
        a.I(f"v_fma_f32 v{T0}, v{OA+i}, 0, v{T0}")
    for i in range(8):
        a.I(f"v_fma_f32 v{T0}, v{OB+i}, 0, v{T0}")
    a.I(f"v_cmp_eq_f32 s[78:79], 0, v{T0}")
    a.I(f"s_mov_b32 s80, {hex(f2u(2.0**-60))}")
    a.I(f"s_mov_b32 s81, {hex(f2u(2.0**60))}")
    for O in (OA, OB):
        a.I(f"v_cmp_le_f32 s[82:83], s80, v{O+9}")
        a.I(f"v_cmp_ge_f32 vcc, s81, v{O+9}")
        a.I("s_nop 1")
        a.I("s_and_b64 s[78:79], s[78:79], s[82:83]")
        a.I("s_and_b64 s[78:79], s[78:79], vcc")
    if OPT.get("forceslow"):
        a.I("s_mov_b64 s[78:79], 0")
    a.I("s_cmp_eq_u64 s[78:79], -1")
    a.I("s_cbranch_scc1 L_ok")
    a.I("s_cmp_eq_u32 s77, 0")
    a.I("s_cbranch_scc1 L_slow")
    a.L("L_ok")

def slow_path(a, QA, QB, KB, VB, S0, S1, OA, OB, VL, T0, T1, T2):
    if OPT.get("noslow"): return
    K, V0, M, C = KB[0], VB[0], 108, 112
    a.L("L_slow")
    a.I("s_waitcnt vmcnt(0)")
    a.I("s_mov_b32 s77, 1")
    a.I(f"v_lshrrev_b32 v{T0}, 5, v1")
    a.I(f"v_and_b32 v{T1}, 15, v1")
    a.I(f"v_lshlrev_b32 v{T1}, 4, v{T1}")
    a.I(f"v_lshl_add_u32 v{T2}, v{T0}, 8, v{T1}")
    a.I(f"v_add_u32 v{T2}, {L_V}, v{T2}")
    a.I(f"v_mov_b32 v{M}, 0xff800000")
    a.I(f"v_mov_b32 v{M+1}, 0xff800000")
    a.I(f"v_add_u32 v{T0}, {L_K}, v{VL}")
    a.I("s_mov_b32 s73, 0")
    a.L("L_slow1")
    a.I(f"ds_read_b128 {vr(K,4)}, v{T0}")
    a.I("s_waitcnt lgkmcnt(0)")
    a.I(MF(S0, K, QA))
    a.I(MF(S1, K, QB))
    a.I("s_nop 15")
    for S, m in ((S0, M), (S1, M+1)):
        for i in range(0, 16, 2):
            a.I(f"v_max3_f32 v{m}, v{S+i}, v{S+i+1}, v{m}")
    a.I(f"v_add_u32 v{T0}, 1024, v{T0}")
    a.I("s_add_u32 s73, s73, 1")
    a.I("s_cmp_lt_u32 s73, 64")
    a.I("s_cbranch_scc1 L_slow1")
    for m in (M, M+1):
        a.I(f"v_mov_b32 v{T1}, v{m}")
        a.I("s_nop 1")
        a.I(f"v_permlane32_swap_b32 v{T1}, v{m}")
        a.I("s_nop 1")
        a.I(f"v_max_f32 v{m}, v{m}, v{T1}")
    for t in range(2):
        for i in range(16):
            a.I(f"v_sub_f32 v{C+16*t+i}, 0, v{M+t}")
    for i in range(16):
        a.I(f"v_mov_b32 v{OA+i}, 0")
        a.I(f"v_mov_b32 v{OB+i}, 0")
    a.I(f"v_add_u32 v{T0}, {L_K}, v{VL}")
    a.I("s_mov_b32 s73, 0")
    a.L("L_slow2")
    a.I(f"ds_read_b128 {vr(K,4)}, v{T0}")
    a.I("s_mov_b64 exec, s[74:75]")
    a.I(f"ds_read_b128 {vr(V0,4)}, v{T2}")
    a.I(f"ds_read_b128 {vr(V0+4,4)}, v{T2} offset:512")
    a.I("s_mov_b64 exec, -1")
    a.I("s_waitcnt lgkmcnt(0)")
    a.I(MF(S0, K, QA, C))
    a.I(MF(S1, K, QB, C+16))
    a.I("s_nop 15")
    for S, O in ((S0, OA), (S1, OB)):
        for i in range(16):
            a.I(f"v_exp_f32 v{S+i}, v{S+i}")
        a.I("s_nop 0")
        for j in range(8):
            a.I(f"v_cvt_pk_bf16_f32 v{S+j}, v{S+2*j}, v{S+2*j+1}")
        a.I("s_nop 1")
        a.I(MF(O, V0, S, O))
        a.I(MF(O, V0+4, S+4, O))
    a.I(f"v_add_u32 v{T0}, 1024, v{T0}")
    a.I(f"v_add_u32 v{T2}, 1024, v{T2}")
    a.I("s_add_u32 s73, s73, 1")
    a.I("s_cmp_lt_u32 s73, 64")
    a.I("s_cbranch_scc1 L_slow2")
    a.I("s_nop 15")
    a.I("s_branch L_fin")

def gen():
    a = Asm()
    prologue(a)
    producer(a, False)
    consumer(a)
    a.L("L_aux")
    producer(a, True)
    ffn2_p3(a)
    attention(a)
    a.L("L_end")
    a.I("s_endpgm")
    a.L("L_code_end")
    a.I("s_endpgm")
    return a

HEADER = open("cdna_kernels/" + NAME + ".s.ref").read().split("; Override launch")[0]

def build(path):
    a = gen()
    out = HEADER + f"; WSLAYOUT QF={QF} KF={KF} VF={VF} HF={HF} GO={GO} OF={OF}\n"
    out += f"; @launch grid=(256,1,1) block=(768,1,1) lds={LDS_TOTAL}\n"
    out += '.amdgcn_target "amdgcn-amd-amdhsa--gfx950"\n.text\n' + a.text()
    out += f""".section .rodata,"a"
.p2align 6
.amdhsa_kernel {KN}
  .amdhsa_next_free_vgpr 168
  .amdhsa_next_free_sgpr 102
  .amdhsa_accum_offset 168
  .amdhsa_group_segment_fixed_size 0
  .amdhsa_kernarg_size 96
  .amdhsa_user_sgpr_count 2
  .amdhsa_user_sgpr_kernarg_segment_ptr 1
  .amdhsa_system_sgpr_workgroup_id_x 1
.end_amdhsa_kernel
"""
    open(path, "w").write(out)
    probs = check_linear(a.lines, "k")
    if STAMPS: print("stamps:", ",".join(_stamp_names))
    return probs

if __name__ == "__main__":
    for x in list(sys.argv[1:]):
        if x.startswith("-D"):
            k, _, v = x[2:].partition("=")
            OPT[k] = int(v) if v else 1
            sys.argv.remove(x)
    if "--stamps" in sys.argv:
        STAMPS = True; sys.argv.remove("--stamps")
    path = sys.argv[1] if len(sys.argv) > 1 else "cdna_kernels/" + NAME + ".s"
    probs = build(path)
    for p in probs: print("HAZARD:", p)
    print("written", path, "problems:", len(probs))
```

```python
import sys, struct
from asmlib import *

NAME = "gated_mix__mha_block__dense_activation_squared_relu__prompt"
KN = NAME + "_kernel"
MB = 1 << 20
QF, KF, VF, HF, GO, OF, FLG = 4096, 2*MB + 8192, 4*MB + 12288, 6*MB + 16384, 12*MB, 14*MB + 4096, 16*MB + 8192
HF_SIZE = 86 * 65536
FA_OFF, FH_OFF, FO_OFF = 0, 4096, 8192
FLG_SIZE = 16384
QSCALE = 0.25 * 1.4426950408889634
STAMP_OFF = 32*MB
STAMPS = False
OPT = {}
def f2u(x): return struct.unpack("<I", struct.pack("<f", x))[0]

S_AX, S_WQKV, S_WO, S_W1, S_B1, S_W2, S_B2, S_GW, S_OUT, S_DBG, S_WS = 4, 6, 8, 12, 14, 16, 18, 20, 22, 24, 26
S_W = 3
S_RB, S_CG, S_START = 29, 30, 31
RA, RB, RC, RD = 32, 36, 40, 44
S_NONCE, S_HD, S_QB = 60, 61, 62
L_MISC, L_K, L_V, L_RING = 0, 1024, 1024 + 65536, 1024 + 131072
L_XCH = L_RING
M_KV, M_H, M_FA, M_QRD, M_HST, M_FFN, M_ATT, M_T1 = [L_MISC + 4*i for i in range(8)]
M_PAIR, M_PFLAG, M_CH = L_MISC + 64, L_MISC + 96, L_MISC + 160
LDS_TOTAL = 163840

def srd(a, dst, base, size):
    a.I(f"s_mov_b32 s{dst}, s{base}")
    a.I(f"s_mov_b32 s{dst+1}, s{base+1}")
    a.I(f"s_mov_b32 s{dst+2}, {size}")
    a.I(f"s_mov_b32 s{dst+3}, 0x20000")
def srd_off(a, dst, base, off, size):
    a.I(f"s_add_u32 s{dst}, s{base}, {off}")
    a.I(f"s_addc_u32 s{dst+1}, s{base+1}, 0")
    a.I(f"s_mov_b32 s{dst+2}, {size}")
    a.I(f"s_mov_b32 s{dst+3}, 0x20000")
def MF(d, A, B, c=None):
    cc = "0" if c is None else vr(c, 16)
    return f"v_mfma_f32_32x32x16_bf16 {vr(d,16)}, {vr(A,4)}, {vr(B,4)}, {cc}"
def S4(r): return f"s[{r}:{r+3}]"
def J(L): return "\n".join(L)

_stamp_names = []
def stamp(a, name):
    if not STAMPS: return
    if name not in _stamp_names: _stamp_names.append(name)
    i = _stamp_names.index(name)
    a.I("s_waitcnt lgkmcnt(0)")
    a.I("s_memtime s[98:99]")
    a.I("s_memrealtime s[100:101]")
    a.I("s_waitcnt lgkmcnt(0)")
    a.I(f"v_writelane_b32 v6, s98, {i}")
    a.I(f"v_writelane_b32 v7, s100, {i}")
def stamp_dyn(a):
    if not (STAMPS and OPT.get("fine")): return
    a.I("s_memtime s[98:99]")
    a.I("s_memrealtime s[100:101]")
    a.I("s_waitcnt lgkmcnt(0)")
    a.I("s_mov_b32 s88, m0")
    a.I("s_mov_b32 m0, s87")
    a.I("s_nop 3")
    a.I("v_writelane_b32 v6, s98, m0")
    a.I("v_writelane_b32 v7, s100, m0")
    a.I("s_mov_b32 m0, s88")
    a.I("s_add_u32 s87, s87, 1")
def dbg_dump(a, names, word0):
    lb = lab("dd")
    a.I(f"s_cmp_lg_u32 s2, {OPT.get('dbgwg', 0)}")
    a.I(f"s_cbranch_scc1 {lb}")
    a.I("v_readlane_b32 s90, v7, 0")
    for i, nm in enumerate(names):
        if nm not in _stamp_names: _stamp_names.append(nm)
        a.I(f"v_readlane_b32 s91, v7, {_stamp_names.index(nm)}")
        a.I("s_nop 3")
        a.I("s_sub_u32 s91, s91, s90")
        a.I("v_mov_b32 v2, s91")
        a.I(f"v_mov_b32 v3, {4*(word0+i)}")
        a.I("s_mov_b64 exec, 1")
        a.I(f"global_store_dword v3, v2, s[{S_DBG}:{S_DBG+1}]")
        a.I("s_mov_b64 exec, -1")
    a.L(lb)

def stamp_flush(a, who=None):
    if not STAMPS: return
    a.I("s_waitcnt vmcnt(0)")
    stamp(a, "end")
    if OPT.get("dbgdump"):
        if who == "ffn":
            l2 = lab("d8")
            a.I(f"s_cmp_lg_u32 s{S_W}, 8"); a.I(f"s_cbranch_scc1 {l2}")
            dbg_dump(a, ["E2", "FAok", "KV1", "hready", "ffn2", "attdone", "T2", "p3mm", "end"], 7)
            a.L(l2)
        elif who == "attn":
            l2 = lab("d0")
            a.I(f"s_and_b32 s91, s{S_W}, 3"); a.I("s_cmp_lg_u32 s91, 0"); a.I(f"s_cbranch_scc1 {l2}")
            a.I(f"s_cmp_ge_u32 s{S_W}, 4"); a.I(f"s_cbranch_scc1 {l2}")
            dbg_dump(a, ["karg", "B0", "qloop", "floop", "kvok", "aloop"], 1)
            a.L(l2)
    a.I(f"s_add_u32 s96, s{S_WS}, {STAMP_OFF}")
    a.I(f"s_addc_u32 s97, s{S_WS+1}, 0")
    a.I("s_mul_i32 s98, s2, 12")
    a.I(f"s_add_u32 s98, s98, s{S_W}")
    a.I("s_lshl_b32 s98, s98, 9")
    a.I("v_lshlrev_b32 v2, 2, v1")
    a.I("v_add_u32 v2, s98, v2")
    a.I("s_mov_b64 exec, -1")
    a.I("global_store_dword v2, v6, s[96:97]")
    a.I("global_store_dword v2, v7, s[96:97] offset:256")
    a.I("s_waitcnt vmcnt(0)")

def tr_lane_addr(a, dst, lane, tmp, tmp2, hrows, pitch):
    a.I(f"v_bfe_u32 v{tmp}, v{lane}, 2, 2")
    a.I(f"v_lshrrev_b32 v{tmp2}, 5, v{lane}")
    a.I(f"v_mul_u32_u24 v{tmp2}, {hrows}, v{tmp2}")
    a.I(f"v_add_u32 v{tmp}, v{tmp}, v{tmp2}")
    a.I(f"v_mul_u32_u24 v{dst}, {pitch}, v{tmp}")
    a.I(f"v_bfe_u32 v{tmp}, v{lane}, 4, 1")
    a.I(f"v_lshlrev_b32 v{tmp}, 1, v{tmp}")
    a.I(f"v_bfe_u32 v{tmp2}, v{lane}, 1, 1")
    a.I(f"v_add_u32 v{tmp}, v{tmp}, v{tmp2}")
    a.I(f"v_bfe_u32 v{tmp2}, v{lane}, 3, 1")
    a.I(f"v_lshlrev_b32 v{tmp2}, 2, v{tmp2}")
    a.I(f"v_xor_b32 v{tmp}, v{tmp}, v{tmp2}")
    a.I(f"v_lshl_add_u32 v{dst}, v{tmp}, 4, v{dst}")
    a.I(f"v_and_b32 v{tmp}, 1, v{lane}")
    a.I(f"v_lshl_add_u32 v{dst}, v{tmp}, 3, v{dst}")

def dma_w_lane_off(a, dst, lane, tmp, tmp2, pitch):
    a.I(f"v_lshrrev_b32 v{tmp}, 3, v{lane}")
    a.I(f"v_mul_u32_u24 v{dst}, {pitch}, v{tmp}")
    a.I(f"v_bfe_u32 v{tmp}, v{lane}, 4, 1")
    a.I(f"v_lshlrev_b32 v{tmp}, 2, v{tmp}")
    a.I(f"v_and_b32 v{tmp2}, 7, v{lane}")
    a.I(f"v_xor_b32 v{tmp}, v{tmp}, v{tmp2}")
    a.I(f"v_lshl_add_u32 v{dst}, v{tmp}, 4, v{dst}")

_lab = [0]
def lab(p):
    _lab[0] += 1
    return f"L_{p}{_lab[0]}"

def poll(a, srd_reg, nlanes, voff, vtmp, soff, slp=1):
    l0, l1 = lab("poll"), lab("polld")
    if nlanes < 64:
        a.I(f"s_mov_b32 exec_lo, {hex((1 << nlanes) - 1)}")
        a.I("s_mov_b32 exec_hi, 0")
    a.I("s_mov_b32 s50, 0x40000")
    a.L(l0)
    a.I(f"buffer_load_dword v{vtmp}, v{voff}, {S4(srd_reg)}, {soff} offen sc1")
    a.I("s_waitcnt vmcnt(0)")
    a.I(f"v_cmp_ne_u32 vcc, s{S_NONCE}, v{vtmp}")
    a.I(f"s_cbranch_vccz {l1}")
    a.I("s_sub_u32 s50, s50, 1")
    a.I("s_cmp_eq_u32 s50, 0")
    a.I(f"s_cbranch_scc1 {l1}")
    a.I(f"s_sleep {slp}")
    a.I(f"s_branch {l0}")
    a.L(l1)
    a.I("s_mov_b64 exec, -1")

def lds_spin(a, addr, target, vaddr, vtmp, slp=1):
    l0, l1 = lab("spin"), lab("spind")
    a.I(f"v_mov_b32 v{vaddr}, {addr}")
    a.I("s_mov_b32 s50, 0x400000")
    a.L(l0)
    a.I(f"ds_read_b32 v{vtmp}, v{vaddr}")
    a.I("s_waitcnt lgkmcnt(0)")
    a.I(f"v_readfirstlane_b32 s51, v{vtmp}")
    a.I("s_sub_u32 s50, s50, 1")
    a.I(f"s_cmp_ge_u32 s51, {target}")
    a.I(f"s_cbranch_scc1 {l1}")
    a.I("s_cmp_eq_u32 s50, 0")
    a.I(f"s_cbranch_scc1 {l1}")
    a.I(f"s_sleep {slp}")
    a.I(f"s_branch {l0}")
    a.L(l1)

def lds_add1(a, addr, vaddr, vtmp):
    a.I(f"v_mov_b32 v{vaddr}, {addr}")
    a.I(f"v_mov_b32 v{vtmp}, 1")
    a.I("s_mov_b64 exec, 1")
    a.I(f"ds_add_u32 v{vaddr}, v{vtmp}")
    a.I("s_mov_b64 exec, -1")

def flag_store(a, soff, v0_, v1_):
    a.I(f"v_mov_b32 v{v0_}, s{S_NONCE}")
    a.I(f"v_mov_b32 v{v1_}, 0")
    a.I("s_mov_b64 exec, 1")
    a.I(f"buffer_store_dword v{v0_}, v{v1_}, {S4(RC)}, {soff} offen sc1")
    a.I("s_mov_b64 exec, -1")

def prologue(a):
    a.raw(f".globl {KN}\n.p2align 8\n.type {KN},@function\n{KN}:")
    if STAMPS:
        a.I("s_memrealtime s[94:95]")
        a.I("s_memtime s[92:93]")
    a.I("s_cmp_ge_u32 s2, 256")
    a.I("s_cbranch_scc1 L_end")
    a.I("s_load_dwordx4 s[4:7], s[0:1], 0")
    a.I("s_load_dwordx2 s[8:9], s[0:1], 16")
    a.I("s_load_dwordx4 s[12:15], s[0:1], 32")
    a.I("s_load_dwordx4 s[16:19], s[0:1], 48")
    a.I("s_load_dwordx4 s[20:23], s[0:1], 64")
    a.I("s_load_dwordx4 s[24:27], s[0:1], 80")
    a.I("v_lshrrev_b32 v2, 6, v0")
    a.I("v_and_b32 v1, 63, v0")
    a.I(f"v_readfirstlane_b32 s{S_W}, v2")
    if OPT.get("codeearly", 1):
        a.I("s_getpc_b64 s[52:53]")
        a.L("L_pc0")
        a.I(f"s_sub_u32 s52, s52, L_pc0-{KN}")
        a.I("s_subb_u32 s53, s53, 0")
        a.I("v_lshlrev_b32 v3, 7, v0")
        a.I(f"v_min_u32 v3, L_code_end-{KN}-4, v3")
        a.I(f"s_cmp_ge_u32 s{S_W}, 3")
        a.I("s_cbranch_scc1 L_pc1")
        a.I("global_load_dword v31, v3, s[52:53]")
        a.L("L_pc1")
    if STAMPS:
        a.I("v_mov_b32 v6, 0"); a.I("v_mov_b32 v7, 0")
    a.I("s_and_b32 s52, s2, 7")
    a.I("s_lshr_b32 s53, s2, 3")
    if OPT.get("map84"):
        a.I("s_lshr_b32 s54, s52, 1")
        a.I("s_lshl_b32 s54, s54, 3")
        a.I("s_lshr_b32 s55, s53, 2")
        a.I(f"s_add_u32 s{S_RB}, s54, s55")
        a.I("s_and_b32 s54, s52, 1")
        a.I("s_lshl_b32 s54, s54, 2")
        a.I("s_and_b32 s55, s53, 3")
        a.I(f"s_add_u32 s{S_CG}, s54, s55")
    else:
        a.I("s_lshr_b32 s54, s52, 2")
        a.I("s_lshl_b32 s54, s54, 4")
        a.I("s_lshr_b32 s55, s53, 1")
        a.I(f"s_add_u32 s{S_RB}, s54, s55")
        a.I("s_and_b32 s54, s52, 3")
        a.I("s_lshl_b32 s54, s54, 1")
        a.I("s_and_b32 s55, s53, 1")
        a.I(f"s_add_u32 s{S_CG}, s54, s55")
    a.I(f"s_mul_i32 s54, s{S_CG}, 6")
    a.I(f"s_min_u32 s{S_START}, s54, 37")
    a.I(f"s_lshl_b32 s{S_HD}, s52, 2")
    a.I("s_and_b32 s54, s53, 3")
    a.I(f"s_add_u32 s{S_HD}, s{S_HD}, s54")
    a.I(f"s_lshr_b32 s{S_QB}, s2, 5")
    a.I("s_waitcnt lgkmcnt(0)")
    if STAMPS:
        _stamp_names.append("entry")
        a.I("v_writelane_b32 v6, s92, 0")
        a.I("v_writelane_b32 v7, s94, 0")
    stamp(a, "karg")
    a.I(f"s_cmp_ge_u32 s{S_W}, 8")
    a.I("s_cbranch_scc1 L_aux")
    a.I(f"s_cmp_lt_u32 s{S_W}, 4")
    a.I("s_cbranch_scc1 L_cons")

GATEPOS = 3
def producer(a, aux):
    T = "a" if aux else "p"
    if OPT.get("pprio"): a.I(f"s_setprio {OPT['pprio']}")
    a.I(f"s_sub_u32 s67, s{S_W}, 4")
    a.I(f"s_lshl_b32 s54, s{S_RB}, 16")
    srd_off(a, RA, S_AX, "s54", 65536)
    srd(a, RB, S_WQKV, 512*3072)
    a.I("v_lshrrev_b32 v2, 3, v1")
    a.I("s_lshl_b32 s54, s67, 3")
    a.I("v_add_u32 v2, s54, v2")
    a.I("v_lshrrev_b32 v3, 4, v1")
    a.I("s_and_b32 s54, s67, 1")
    a.I("s_lshl_b32 s54, s54, 2")
    a.I("v_add_u32 v3, s54, v3")
    a.I("v_and_b32 v4, 7, v1")
    a.I("v_xor_b32 v3, v3, v4")
    a.I("v_lshlrev_b32 v3, 4, v3")
    a.I("v_lshl_add_u32 v12, v2, 10, v3")
    a.I("s_lshl_b32 s68, s67, 10")
    def woffs(dst, pitch, segshift):
        for j in range(3):
            a.I(f"v_add_u32 v2, {64*j}, v1")
            a.I("v_mul_u32_u24 v3, 171, v2")
            a.I("v_lshrrev_b32 v3, 12, v3")
            a.I("v_mul_u32_u24 v4, 24, v3")
            a.I("v_sub_u32 v2, v2, v4")
            a.I("v_lshrrev_b32 v4, 3, v2")
            a.I("v_and_b32 v2, 7, v2")
            a.I("v_bfe_u32 v5, v3, 1, 1")
            a.I("v_lshlrev_b32 v5, 2, v5")
            a.I("v_xor_b32 v2, v2, v5")
            a.I("v_lshlrev_b32 v2, 4, v2")
            a.I(f"v_mul_u32_u24 v5, {pitch}, v3")
            a.I(f"v_lshl_add_u32 v5, v4, {segshift}, v5")
            a.I(f"v_add_u32 v{dst+j}, v5, v2")
    woffs(13, 3072, 10)
    a.I("s_mul_i32 s69, s67, 3072")
    a.I("s_add_u32 s69, s69, 0x10000")
    a.I(f"s_lshl_b32 s70, s{S_CG}, 7")
    a.I(f"s_mul_i32 s71, s67, {8*3072}")
    a.I("s_add_u32 s70, s70, s71")
    def pre_setup(item):
        k, c = item
        if k == "X":
            a.I(f"s_add_u32 m0, s68, {c*8192}")
            a.I(f"s_movk_i32 s81, {c*128}")
        else:
            a.I(f"s_add_u32 s82, s70, {c*64*3072}" if c < 8 else f"s_add_u32 s82, s71, {(c-8)*64*2752}")
            a.I(f"s_add_u32 m0, s69, {(c&3)*24576}")
    def issue_x(c, done=False):
        if OPT.get("p1noprod"): return
        if not done:
            a.I(f"s_add_u32 m0, s68, {c*8192}")
            a.I(f"s_movk_i32 s81, {c*128}")
        a.I(f"buffer_load_dwordx4 v12, {S4(RA)}, s81 offen lds")
    def issue_w(c, done=False):
        if OPT.get("p1noprod"): return
        if c < 8:
            if not done: a.I(f"s_add_u32 s82, s70, {c*64*3072}")
            vo, R = 13, RB
        else:
            if not done: a.I(f"s_add_u32 s82, s71, {(c-8)*64*2752}")
            vo, R = 16, RC
        for j in range(3):
            if not (done and j == 0):
                a.I(f"s_add_u32 m0, s69, {(c&3)*24576 + j*1024}")
                a.I("s_nop 0")
            a.I(f"buffer_load_dwordx4 v{vo+j}, {S4(R)}, s82 offen lds")
    sched = OPT.get("sched", 0)
    if sched == 0:
        pre = [("X",0),("W",0),("X",1),("W",1),("X",2),("W",2)]
        post = {c: ([("X",c+3)] if c+3 < 8 else []) + ([("W",c+3)] if c+3 < 16 else []) for c in range(16)}
    elif sched == 1:
        pre = [("X",0),("W",0),("X",1),("W",1),("X",2),("W",2),("X",3),("W",3),("X",4),("X",5),("X",6),("X",7)]
        post = {c: ([("W",c+3)] if (c >= 1 and c+3 < 16) else []) for c in range(16)}
    elif sched == 2:
        pre = [("X",0),("W",0),("X",1),("W",1),("X",2),("W",2),("X",3),("W",3)]
        post = {c: ([("W",c+3)] if (c >= 1 and c+3 < 16) else []) for c in range(16)}
        post[0] = [("X",4),("X",5),("X",6),("X",7)]
    fifo = []
    def do(item, done=False):
        k, c = item
        if k == "X":
            if OPT.get("skipx"): fifo.append((item, 0)); return
            issue_x(c, done); fifo.append((item, 1))
        else:
            if OPT.get("skipw") and c < 8: fifo.append((item, 0)); return
            issue_w(c, done); fifo.append((item, 3))
    for it in pre: do(it)
    if OPT.get("pfprod") and not aux:
        a.I(f"s_mov_b32 s89, s{S_W}")
        a.I(f"s_sub_u32 s{S_W}, s{S_W}, 4")
        l2_prefetch(a, 0)
        a.I(f"s_mov_b32 s{S_W}, s89")
        fifo.append(("pf", 2))
    stamp(a, "issued3")
    nside = 0
    if aux:
        nside = aux_side_issue(a)
    srd(a, RC, S_W1, 512*2752)
    if OPT.get("w1perm", 0):
        for j in range(3):
            a.I(f"v_add_u32 v2, {64*j}, v1")
            a.I("v_mul_u32_u24 v3, 171, v2")
            a.I("v_lshrrev_b32 v3, 12, v3")
            a.I("v_mul_u32_u24 v4, 24, v3")
            a.I("v_sub_u32 v2, v2, v4")
            a.I("v_lshrrev_b32 v4, 2, v2")
            a.I("v_and_b32 v2, 3, v2")
            a.I("v_bfe_u32 v5, v3, 1, 1")
            a.I("v_xor_b32 v4, v4, v5")
            a.I("v_add_u32 v5, 1, v4")
            a.I("v_cmp_eq_u32 vcc, 4, v4")
            a.I("s_nop 1")
            a.I("v_cndmask_b32_e64 v5, v5, 0, vcc")
            a.I("v_cmp_eq_u32 vcc, 5, v4")
            a.I("s_nop 1")
            a.I("v_cndmask_b32_e64 v5, v5, 5, vcc")
            a.I(f"v_add_u32 v19, s{S_START}, v3")
            a.I("v_and_b32 v19, 1, v19")
            a.I("v_cmp_eq_u32 vcc, 1, v19")
            a.I("s_nop 1")
            a.I("v_cndmask_b32 v4, v4, v5, vcc")
            a.I("v_lshlrev_b32 v4, 6, v4")
            a.I("v_lshl_add_u32 v4, v2, 4, v4")
            a.I("v_mul_u32_u24 v5, 2752, v3")
            a.I(f"v_add_u32 v{16+j}, v5, v4")
    else:
        woffs(16, 2752, 7)
    a.I(f"s_lshl_b32 s71, s{S_START}, 6")
    a.I(f"s_mul_i32 s72, s67, {8*2752}")
    a.I("s_add_u32 s71, s71, s72")
    fap = OPT.get("fapos", 2)
    assert fap >= 2
    for c in range(16):
        need = [("W", c)] + ([("X", c)] if c < 8 else [])
        idx = max(i for i, (it, _) in enumerate(fifo) if it in need)
        allow = sum(k for _, k in fifo[idx+1:])
        if c == 0 and STAMPS and OPT.get("fine"): a.I("s_mov_b32 s87, 24")
        stamp_dyn(a)
        early = OPT.get("early", 1) and not STAMPS and len(post[c]) > 0 and not OPT.get("p1noprod")
        if early:
            pre_setup(post[c][0])
        a.I(f"s_waitcnt vmcnt({allow})")
        stamp_dyn(a)
        a.I("s_barrier")
        for n_, it in enumerate(post[c]): do(it, early and n_ == 0)
        if aux and c == 2:
            fifo.append(("side", aux_side_loads(a)))
        if aux and c == 6:
            aux_gate(a)
            fifo.append(("g", 1))
        if aux and c == 7:
            fifo.append(("nonce", aux_nonce_issue(a)))
        if aux and c == 10:
            aux_zero_misc(a)
        if aux and c == 11:
            aux_nonce_take(a)
        if aux and c == 12:
            aux_share_nonce(a)
        if aux and c == 15:
            aux_fa_probe(a)
        if aux and c == 9 + fap:
            aux_publish_fa(a)
    a.I("s_barrier")
    if aux:
        aux_after_e1(a)
    else:
        if OPT.get("pprio"): a.I("s_setprio 0")
        a.I("s_branch L_attn")

def l2_prefetch(a, part):
    a.I("s_and_b32 s52, s2, 7")
    a.I("s_lshr_b32 s53, s2, 3")
    a.I("s_lshl_b32 s54, s53, 4")
    a.I(f"s_lshl_b32 s55, s{S_W}, 2")
    a.I("s_add_u32 s56, s54, s55")
    if OPT.get("map84"):
        if part == 0:
            srd(a, RC, S_AX, 2*MB)
            a.I("s_lshr_b32 s54, s52, 1")
            a.I("s_lshl_b32 s54, s54, 9")
            a.I("s_add_u32 s54, s54, s56")
            a.I("s_lshl_b32 s54, s54, 10")
            a.I("v_lshlrev_b32 v20, 7, v1")
            a.I("s_mov_b32 exec_hi, 0")
            a.I(f"buffer_load_dword v24, v20, {S4(RC)}, s54 offen")
            a.I("s_mov_b64 exec, -1")
            srd(a, RC, S_WQKV, 512*3072)
            a.I("s_mul_i32 s54, s56, 3072")
            a.I("s_and_b32 s55, s52, 1")
            a.I("s_lshl_b32 s55, s55, 9")
            a.I("s_add_u32 s54, s54, s55")
            a.I("v_lshrrev_b32 v21, 4, v1")
            a.I("v_mul_u32_u24 v21, 3072, v21")
            a.I("v_bfe_u32 v22, v1, 2, 2")
            a.I("v_min_u32 v22, 2, v22")
            a.I("v_lshl_add_u32 v21, v22, 10, v21")
            a.I("v_and_b32 v22, 3, v1")
            a.I("v_lshl_add_u32 v21, v22, 7, v21")
            a.I(f"buffer_load_dword v25, v21, {S4(RC)}, s54 offen")
        else:
            srd(a, RC, S_W1, 512*2752)
            a.I("s_and_b32 s55, s52, 1")
            a.I("s_mul_i32 s55, s55, 1536")
            a.I("s_mul_i32 s54, s56, 2752")
            a.I("s_add_u32 s54, s54, s55")
            a.I("v_lshrrev_b32 v21, 4, v1")
            a.I("v_mul_u32_u24 v21, 2752, v21")
            a.I("v_and_b32 v22, 15, v1")
            a.I("v_min_u32 v22, 12, v22")
            a.I("v_lshl_add_u32 v21, v22, 7, v21")
            a.I(f"buffer_load_dword v26, v21, {S4(RC)}, s54 offen")
        return
    if part == 2:
        a.I(f"s_cmp_lg_u32 s{S_W}, 0")
        a.I("s_cbranch_scc1 L_pf2")
        srd(a, RC, S_WQKV, 512*3072)
        a.I("s_lshl_b32 s54, s53, 3")
        a.I("s_add_u32 s54, s54, 256")
        a.I("s_mul_i32 s54, s54, 3072")
        a.I("s_and_b32 s55, s52, 3")
        a.I("s_lshl_b32 s55, s55, 8")
        a.I("s_add_u32 s54, s54, s55")
        a.I("v_lshrrev_b32 v21, 3, v1")
        a.I("v_mul_u32_u24 v21, 3072, v21")
        a.I("v_bfe_u32 v22, v1, 1, 2")
        a.I("v_min_u32 v22, 2, v22")
        a.I("v_lshl_add_u32 v21, v22, 10, v21")
        a.I("v_and_b32 v22, 1, v1")
        a.I("v_lshl_add_u32 v21, v22, 7, v21")
        a.I(f"buffer_load_dword v25, v21, {S4(RC)}, s54 offen")
        a.L("L_pf2")
    elif part == 0:
        G = OPT.get("pfg", 128)
        sh = {128: 7, 64: 6, 32: 5}[G]
        srd(a, RC, S_AX, 2*MB)
        a.I("s_lshr_b32 s54, s52, 2")
        a.I("s_lshl_b32 s54, s54, 10")
        a.I("s_lshl_b32 s55, s53, 5")
        a.I("s_add_u32 s54, s54, s55")
        a.I(f"s_lshl_b32 s55, s{S_W}, 3")
        a.I("s_add_u32 s54, s54, s55")
        a.I("s_lshl_b32 s54, s54, 10")
        if OPT.get("pftrim", 0):
            a.I("v_and_b32 v20, 7, v1")
            a.I("v_max_u32 v20, 3, v20")
            a.I("v_lshlrev_b32 v20, 7, v20")
            a.I("v_lshrrev_b32 v21, 3, v1")
            a.I("v_lshl_add_u32 v20, v21, 10, v20")
        else:
            a.I(f"v_lshlrev_b32 v20, {sh}, v1")
        for i in range(0 if OPT.get("nopfx") else 8192 // (64*G)):
            a.I(f"buffer_load_dword v24, v20, {S4(RC)}, s54 offen")
            a.I(f"s_add_u32 s54, s54, {64*G}")
        if OPT.get("pftrim", 0):
            a._pfl = lab("pfs")
            a.I("s_cmp_lt_u32 s53, 12")
            a.I(f"s_cbranch_scc1 {a._pfl}")
        srd(a, RC, S_WQKV, 512*3072)
        a.I("s_mul_i32 s54, s56, 3072")
        a.I("s_and_b32 s55, s52, 3")
        a.I("s_lshl_b32 s55, s55, 8")
        a.I("s_add_u32 s54, s54, s55")
        per = 256 // G
        a.I("v_lshrrev_b32 v21, 4, v1")
        a.I("v_mul_u32_u24 v21, 3072, v21")
        a.I("v_and_b32 v22, 15, v1")
        if G == 64:
            a.I("v_lshrrev_b32 v23, 2, v22")
            a.I("v_min_u32 v23, 2, v23")
            a.I("v_lshl_add_u32 v21, v23, 10, v21")
            a.I("v_and_b32 v22, 3, v22")
            a.I("v_lshl_add_u32 v21, v22, 6, v21")
            a.I(f"buffer_load_dword v25, v21, {S4(RC)}, s54 offen")
        elif G == 32:
            a.I("v_lshrrev_b32 v23, 3, v22")
            a.I("v_lshl_add_u32 v21, v23, 10, v21")
            a.I("v_and_b32 v22, 7, v22")
            a.I("v_lshl_add_u32 v21, v22, 5, v21")
            a.I(f"buffer_load_dword v25, v21, {S4(RC)}, s54 offen")
            a.I(f"buffer_load_dword v25, v21, {S4(RC)}, s54 offen offset:2048")
        else:
            a.I("v_lshrrev_b32 v23, 1, v22")
            a.I("v_min_u32 v23, 2, v23")
            a.I("v_lshl_add_u32 v21, v23, 10, v21")
            a.I("v_and_b32 v22, 1, v22")
            a.I("v_lshl_add_u32 v21, v22, 7, v21")
            a.I(f"buffer_load_dword v25, v21, {S4(RC)}, s54 offen")
        if OPT.get("pftrim", 0):
            a.L(a._pfl)
    else:
        a.I(f"s_cmp_ge_u32 s{S_W}, 2")
        a.I("s_cbranch_scc1 L_pf1")
        srd(a, RC, S_W1, 512*2752)
        a.I("s_and_b32 s55, s52, 3")
        a.I("s_mul_i32 s55, s55, 12")
        a.I("s_min_u32 s55, s55, 31")
        a.I("s_lshl_b32 s55, s55, 6")
        a.I("s_lshl_b32 s54, s53, 4")
        a.I(f"s_lshl_b32 s56, s{S_W}, 3")
        a.I("s_add_u32 s54, s54, s56")
        a.I("s_mul_i32 s54, s54, 2752")
        a.I("s_add_u32 s54, s54, s55")
        a.I("v_lshrrev_b32 v21, 3, v1")
        a.I("v_mul_u32_u24 v21, 2752, v21")
        a.I("v_and_b32 v22, 7, v1")
        a.I("v_lshl_add_u32 v21, v22, 7, v21")
        a.I(f"buffer_load_dword v26, v21, {S4(RC)}, s54 offen")
        a.L("L_pf1")

def consumer(a):
    a.L("L_cons")
    H, XA, WA, ACC, B1, FA, FB = 2, 8, 12, 32, 80, 104, 136
    if not OPT.get("nopf") and not OPT.get("pflate") and not OPT.get("pfprod"):
        l2_prefetch(a, OPT.get("pfmode", 0))
    a.I(f"v_lshrrev_b32 v{H}, 5, v1")
    a.I(f"s_and_b32 s63, s{S_W}, 1")
    a.I(f"s_lshr_b32 s64, s{S_W}, 1")
    srd(a, RD, S_B1, 2752)
    a.I(f"s_add_u32 s54, s{S_START}, s63")
    a.I("s_lshl_b32 s54, s54, 6")
    a.I(f"v_lshlrev_b32 v3, 3, v{H}")
    for s in range(3):
        for q in range(4):
            r = B1 + (s*4+q)*2
            a.I(f"buffer_load_dwordx2 v[{r}:{r+1}], v3, {S4(RD)}, s54 offen offset:{s*128+q*16}")
    for i in range(48):
        a.I(f"v_mov_b32 v{ACC+i}, 0")
    a.I("v_and_b32 v16, 31, v1")
    a.I("v_bfe_u32 v17, v1, 1, 3")
    a.I("s_lshl_b32 s54, s64, 5")
    a.I("v_add_u32 v16, s54, v16")
    a.I("v_lshlrev_b32 v16, 7, v16")
    a.I(f"v_xor_b32 v17, v17, v{H}")
    for ks in range(4):
        a.I(f"v_xor_b32 v18, {2*ks}, v17")
        a.I(f"v_lshl_add_u32 v{XA+ks}, v18, 4, v16")
    tr_lane_addr(a, WA, 1, 16, 17, 8, 384)
    a.I("s_lshl_b32 s54, s63, 6")
    a.I(f"v_xor_b32 v{WA}, s54, v{WA}")
    a.I(f"v_add_u32 v{WA}, 0x10000, v{WA}")
    a.I(f"v_add_u32 v{WA+1}, 49152, v{WA}")
    WF1 = [14, 15, 28, 29, 30, 31]
    if OPT.get("w1perm", 0):
        a.I("v_bfe_u32 v16, v1, 2, 2")
        a.I(f"v_lshl_add_u32 v17, v{H}, 3, v16")
        a.I("v_mul_u32_u24 v17, 384, v17")
        a.I("v_bfe_u32 v18, v1, 4, 1")
        a.I("v_lshlrev_b32 v18, 1, v18")
        a.I("v_bfe_u32 v19, v1, 1, 1")
        a.I("v_add_u32 v18, v18, v19")
        a.I("v_lshl_add_u32 v17, v18, 4, v17")
        a.I("v_and_b32 v18, 1, v1")
        a.I("v_lshl_add_u32 v17, v18, 3, v17")
        a.I("v_add_u32 v17, 0x10000, v17")
        a.I(f"v_add_u32 v18, s{S_START}, v16")
        a.I("v_and_b32 v18, 1, v18")
        a.I("v_cmp_eq_u32 vcc, 1, v18")
        a.I("v_bfe_u32 v19, v1, 3, 1")
        inv = [4, 0, 1, 2, 3, 5]
        for s_ in range(3):
            a.I(f"s_cmp_eq_u32 s63, 0")
            a.I(f"s_cselect_b32 s54, {2*s_}, {2*s_+1}")
            a.I(f"s_cselect_b32 s55, {inv[2*s_]}, {inv[2*s_+1]}")
            a.I(f"v_mov_b32 v26, s54")
            a.I(f"v_mov_b32 v27, s55")
            a.I(f"v_cndmask_b32 v26, v26, v27, vcc")
            a.I(f"v_xor_b32 v26, v26, v19")
            a.I(f"v_lshl_add_u32 v{WF1[s_]}, v26, 6, v17")
            a.I(f"v_add_u32 v{WF1[3+s_]}, 49152, v{WF1[s_]}")

    def reads(b, G, F, qkv=True):
        out = []
        if OPT.get("p1nocons"): return ["s_nop 0"]
        wv = WA + (b >> 1)
        for l in range(2):
            ks = 2*G + l
            out.append(f"ds_read_b128 {vr(F+4*l,4)}, v{XA+ks} offset:{b*8192}")
            for s in range(3):
                for rd in range(2):
                    if qkv or not OPT.get("w1perm", 0):
                        out.append(f"ds_read_b64_tr_b16 {vr(F+8+12*l+4*s+2*rd,2)}, v{wv} offset:{(b&1)*24576 + ks*6144 + rd*1536 + s*128}")
                    else:
                        out.append(f"ds_read_b64_tr_b16 {vr(F+8+12*l+4*s+2*rd,2)}, v{WF1[3*(b>>1)+s]} offset:{(b&1)*24576 + ks*6144 + rd*1536}")
        return out
    def mfmas(F, qkv):
        out = []
        if OPT.get("p1nocons") or OPT.get("p1nomfma"): return ["s_nop 0"]
        for l in range(2):
            for s in range(3):
                X, W = F+4*l, F+8+12*l+4*s
                out.append(MF(ACC+16*s, X, W, ACC+16*s) if (qkv and s == 2) else MF(ACC+16*s, W, X, ACC+16*s))
        return out
    def inter(mf, rd):
        out = []
        per = OPT.get("iper", [4, 4, 3, 3, 0, 0])
        if len(mf) != 6: return mf + rd
        k = 0
        for i, m in enumerate(mf):
            out.append(m)
            out += rd[k:k+per[i]]
            k += per[i]
        assert k >= len(rd)
        return out
    def stage_loop(tag, qkv):
        a.I("s_mov_b32 s65, 0x8000")
        a.L(f"L_loop_{tag}")
        fap = OPT.get("fapos", 2)
        for b in range(4):
            a.I("s_waitcnt lgkmcnt(0)")
            a.I(J(inter(mfmas(FA, qkv), reads(b, 1, FB, qkv))))
            if (not qkv) and b == (fap & 3):
                if fap >= 4:
                    a.I("s_cmp_lt_i32 s65, 0")
                    a.I(f"s_cbranch_scc0 L_nodrain")
                a.I("s_waitcnt vmcnt(0)")
                if fap >= 4: a.L("L_nodrain")
            a.I("s_waitcnt lgkmcnt(0)")
            if b == 3:
                if not qkv:
                    a.I("s_cmp_lt_i32 s65, 0")
                    a.I(f"s_cbranch_scc1 L_last_{tag}")
                for ks in range(4):
                    a.I(f"v_add_u32 v{XA+ks}, s65, v{XA+ks}")
            stamp_dyn(a)
            a.I("s_barrier")
            stamp_dyn(a)
            if qkv and b == 3:
                a.I("s_cmp_lt_i32 s65, 0")
                a.I("s_cbranch_scc1 L_qtail")
            a.I(J(inter(mfmas(FB, qkv), reads((b+1) % 4, 0, FA, qkv))))
        if qkv:
            a.I("s_mov_b32 s65, 0xffff8000")
            a.I(f"s_branch L_loop_{tag}")
            a.L("L_qtail")
            a.I(J(inter(mfmas(FB, qkv), reads(0, 0, FA, False))))
        else:
            a.I("s_mov_b32 s65, 0xffff8000")
            a.I(f"s_branch L_loop_{tag}")
        if not qkv:
            a.L(f"L_last_{tag}")
            a.I(J(mfmas(FB, qkv)))

    if OPT.get("pflate"):
        for i in range(OPT["pflate"]):
            a.I("s_sleep 8")
        l2_prefetch(a, 0)
    if OPT.get("pfw1early"):
        l2_prefetch(a, 1)
    a.I("s_barrier")
    stamp(a, "B0")
    if STAMPS and OPT.get("fine"): a.I("s_mov_b32 s87, 24")
    if not OPT.get("nopf") and not OPT.get("pfw1early"):
        l2_prefetch(a, 1)
    a.I(J(reads(0, 0, FA)))
    stage_loop("q", True)
    stamp(a, "qloop")
    srd(a, RA, S_WS, VF + 2*MB)
    a.I(f"s_lshl_b32 s54, s{S_RB}, 1")
    a.I("s_add_u32 s54, s54, s64")
    a.I(f"s_lshl_b32 s55, s{S_CG}, 2")
    a.I("s_lshl_b32 s56, s63, 1")
    a.I("s_add_u32 s55, s55, s56")
    a.I("s_lshl_b32 s55, s55, 6")
    a.I("s_add_u32 s54, s54, s55")
    a.I("s_lshl_b32 s54, s54, 10")
    a.I("v_lshlrev_b32 v3, 4, v1")
    a.I("v_bfe_u32 v4, v1, 4, 1")
    a.I("v_lshlrev_b32 v4, 16, v4")
    a.I(f"v_lshl_add_u32 v4, v{H}, 8, v4")
    a.I("v_and_b32 v5, 15, v1")
    a.I("v_lshl_add_u32 v4, v5, 4, v4")
    a.I(f"s_mov_b32 s56, {hex(f2u(QSCALE))}")
    a.I("s_waitcnt vmcnt(0)")
    a.I("s_nop 4")
    for idx, s in enumerate((1, 2, 0)):
        d = ACC + 16*s
        if s == 0:
            for i in range(16):
                a.I(f"v_mul_f32 v{d+i}, s56, v{d+i}")
        for j in range(8):
            a.I(f"v_cvt_pk_bf16_f32 v{d+j}, v{d+2*j}, v{d+2*j+1}")
        if s < 2:
            for hh in range(2):
                a.I(f"s_add_u32 s55, s54, {(KF if s else QF) + hh*65536}")
                a.I(f"buffer_store_dwordx4 {vr(d+4*hh,4)}, v3, {S4(RA)}, s55 offen sc1")
        else:
            a.I(f"s_add_u32 s55, s54, {VF}")
            for u in range(2):
                a.I(f"buffer_store_dwordx4 {vr(d+4*u,4)}, v4, {S4(RA)}, s55 offen offset:{u*512} sc1")
    a.I("s_nop 1")
    for s in range(3):
        for q in range(4):
            r = B1 + (s*4+q)*2
            d = ACC + s*16 + q*4
            a.I(f"v_lshlrev_b32 v{d}, 16, v{r}")
            a.I(f"v_and_b32 v{d+1}, 0xffff0000, v{r}")
            a.I(f"v_lshlrev_b32 v{d+2}, 16, v{r+1}")
            a.I(f"v_and_b32 v{d+3}, 0xffff0000, v{r+1}")
    stage_loop("f", False)
    a.I("s_barrier")
    stamp(a, "floop")
    srd_off(a, RA, S_WS, HF, HF_SIZE)
    a.I(f"s_lshl_b32 s54, s{S_RB}, 1")
    a.I("s_add_u32 s54, s54, s64")
    a.I(f"s_add_u32 s55, s{S_START}, s63")
    a.I("s_lshl_b32 s55, s55, 7")
    a.I("s_add_u32 s54, s54, s55")
    a.I("s_lshl_b32 s54, s54, 10")
    a.I("v_lshlrev_b32 v3, 4, v1")
    a.I("s_nop 4")
    for s in range(3):
        d = ACC + 16*s
        for i in range(16):
            a.I(f"v_max_f32 v{d+i}, 0, v{d+i}")
        for i in range(16):
            a.I(f"v_mul_f32 v{d+i}, v{d+i}, v{d+i}")
        for j in range(8):
            a.I(f"v_cvt_pk_bf16_f32 v{d+j}, v{d+2*j}, v{d+2*j+1}")
        for uu in range(2):
            a.I(f"s_add_u32 s55, s54, {(4*s+uu)*65536}")
            a.I(f"buffer_store_dwordx4 {vr(d+4*uu,4)}, v3, {S4(RA)}, s55 offen sc1")
    a.I("s_nop 1")
    a.I("s_branch L_attn")

def aux_side_issue(a):
    a.I("s_sub_u32 s66, s67, 4")
    a.I(f"s_lshl_b32 s54, s2, 2")
    a.I("s_or_b32 s54, s54, s66")
    a.I("s_cmp_lg_u32 s54, 0")
    a.I("s_cbranch_scc1 L_aux1")
    srd(a, RD, S_DBG, 256)
    a.I("s_memrealtime s[54:55]")
    a.I("s_waitcnt lgkmcnt(0)")
    a.I("s_or_b32 s85, s54, 1")
    a.I("v_mov_b32 v8, s85")
    a.I("v_mov_b32 v10, 0")
    a.I("s_mov_b64 exec, 1")
    a.I(f"buffer_store_dword v8, v10, {S4(RD)}, 0 offen sc1")
    a.I("s_mov_b64 exec, -1")
    a.L("L_aux1")
    a.I(f"s_lshl_b32 s54, s{S_RB}, 6")
    a.I(f"s_lshl_b32 s55, s{S_CG}, 3")
    a.I("s_add_u32 s54, s54, s55")
    a.I("s_lshl_b32 s55, s66, 1")
    a.I("s_add_u32 s86, s54, s55")
    return 0

def aux_side_loads(a):
    a.I("s_lshl_b32 s54, s86, 10")
    srd_off(a, RD, S_AX, "s54", 2048)
    a.I("v_and_b32 v2, 31, v1")
    a.I("v_lshlrev_b32 v2, 5, v2")
    a.I("v_lshrrev_b32 v3, 5, v1")
    a.I("v_lshl_add_u32 v4, v3, 10, v2")
    for i in range(2):
        a.I(f"buffer_load_dwordx4 {vr(32+4*i,4)}, v4, {S4(RD)}, 0 offen offset:{16*i}")
    srd(a, RD, S_GW, 1024)
    for i in range(2):
        a.I(f"buffer_load_dwordx4 {vr(40+4*i,4)}, v2, {S4(RD)}, 0 offen offset:{16*i}")
    n = 4
    if OPT.get("codepf", 1) and not OPT.get("codeearly", 1):
        a.I("s_getpc_b64 s[52:53]")
        a.L("L_pc")
        a.I(f"s_sub_u32 s52, s52, L_pc-{KN}")
        a.I("s_subb_u32 s53, s53, 0")
        a.I("s_mul_i32 s54, s66, 6144")
        a.I("v_lshlrev_b32 v5, 7, v1")
        a.I("v_add_u32 v5, s54, v5")
        a.I(f"v_min_u32 v5, L_code_end-{KN}-4, v5")
        a.I("s_mov_b32 exec_hi, 0xffff")
        a.I("global_load_dword v116, v5, s[52:53]")
        a.I("s_mov_b64 exec, -1")
        n += 1
    return n

def aux_nonce_issue(a):
    srd(a, RD, S_DBG, 256)
    a.I("v_mov_b32 v10, 0")
    a.I(f"buffer_load_dword v8, v10, {S4(RD)}, 0 offen sc1")
    return 1

def aux_nonce_take(a):
    a.I(f"v_readfirstlane_b32 s{S_NONCE}, v8")
    a.I("s_mov_b32 s50, 0x40000")
    a.L("L_nonce")
    a.I(f"s_cmp_lg_u32 s{S_NONCE}, 0")
    a.I("s_cbranch_scc1 L_nonce_ok")
    a.I("s_sub_u32 s50, s50, 1")
    a.I("s_cmp_eq_u32 s50, 0")
    a.I("s_cbranch_scc1 L_nonce_ok")
    srd(a, RD, S_DBG, 256)
    a.I(f"buffer_load_dword v8, v10, {S4(RD)}, 0 offen sc1")
    a.I("s_waitcnt vmcnt(0)")
    a.I(f"v_readfirstlane_b32 s{S_NONCE}, v8")
    a.I("s_branch L_nonce")
    a.L("L_nonce_ok")

def aux_gate(a):
    if OPT.get("p1noprod"): a.I("s_waitcnt vmcnt(0)")
    a.I("v_mov_b32 v24, 0")
    for i in range(8):
        a.I(f"v_dot2c_f32_bf16 v24, v{32+i}, v{40+i}")
    a.I("s_nop 3")
    for sh in (1, 2, 4, 8):
        a.I(f"v_add_f32_dpp v24, v24, v24 row_shr:{sh} row_mask:0xf bank_mask:0xf")
        a.I("s_nop 1")
    a.I("v_add_f32_dpp v24, v24, v24 row_bcast:15 row_mask:0xa bank_mask:0xf")
    a.I("s_nop 1")
    a.I("v_cvt_pk_bf16_f32 v24, v24, v24")
    a.I("v_and_b32 v24, 0xffff0000, v24")
    a.I(f"v_mul_f32 v24, {hex(f2u(-1.4426950408889634))}, v24")
    a.I("v_exp_f32 v24, v24")
    a.I("s_nop 0")
    a.I("v_add_f32 v24, 1.0, v24")
    a.I("v_rcp_f32 v24, v24")
    a.I("s_nop 0")
    a.I("v_cvt_pk_bf16_f32 v24, v24, v24")
    a.I("v_and_b32 v24, 0xffff0000, v24")
    srd_off(a, RD, S_WS, GO, 8192)
    a.I("s_lshl_b32 s54, s86, 2")
    a.I("v_lshrrev_b32 v3, 5, v1")
    a.I("v_lshlrev_b32 v3, 2, v3")
    a.I("s_mov_b32 s52, 0x80000000")
    a.I("s_mov_b32 s53, 0x80000000")
    a.I("s_mov_b64 exec, s[52:53]")
    a.I(f"buffer_store_dword v24, v3, {S4(RD)}, s54 offen sc1")
    a.I("s_mov_b64 exec, -1")

def aux_publish_fa(a):
    a.I("s_cmp_lg_u32 s66, 0")
    a.I("s_cbranch_scc1 L_aux2")
    srd_off(a, RD, S_WS, FLG, FLG_SIZE)
    a.I(f"s_lshl_b32 s54, s{S_CG}, 7")
    a.I(f"s_lshl_b32 s55, s{S_RB}, 2")
    a.I("s_add_u32 s54, s54, s55")
    a.I(f"s_add_u32 s54, s54, {FA_OFF}")
    a.I(f"v_mov_b32 v8, s{S_NONCE}")
    a.I(f"v_mov_b32 v10, 0")
    a.I("s_mov_b64 exec, 1")
    a.I(f"buffer_store_dword v8, v10, {S4(RD)}, s54 offen sc1")
    a.I("s_mov_b64 exec, -1")
    stamp(a, "FApub")
    a.L("L_aux2")

def aux_zero_misc(a):
    a.I("s_cmp_lg_u32 s66, 1")
    a.I("s_cbranch_scc1 L_aux3")
    a.I(f"v_lshlrev_b32 v10, 2, v1")
    if L_MISC: a.I(f"v_add_u32 v10, {L_MISC}, v10")
    a.I("v_mov_b32 v9, 0")
    a.I("ds_write_b32 v10, v9")
    a.I("s_waitcnt lgkmcnt(0)")
    a.I("v_mov_b32 v10, 0")
    a.L("L_aux3")

def aux_share_nonce(a):
    a.I("s_cmp_lg_u32 s66, 0")
    a.I("s_cbranch_scc1 L_aux4")
    a.I(f"v_mov_b32 v9, {L_MISC + 128}")
    a.I(f"v_mov_b32 v11, s{S_NONCE}")
    a.I("ds_write_b32 v9, v11")
    a.I("s_waitcnt lgkmcnt(0)")
    a.L("L_aux4")

def aux_fa_probe(a):
    srd_off(a, RC, S_WS, FLG, FLG_SIZE)
    a.I(f"s_lshr_b32 s88, s{S_HD}, 2")
    a.I("s_lshl_b32 s88, s88, 7")
    a.I(f"s_add_u32 s88, s88, {FA_OFF}")
    a.I("v_lshlrev_b32 v9, 2, v1")
    a.I("s_mov_b32 exec_hi, 0")
    a.I(f"buffer_load_dword v11, v9, {S4(RC)}, s88 offen sc1")
    a.I("s_mov_b64 exec, -1")

def aux_after_e1(a):
    a.I("s_mov_b32 s67, s66")
    a.I("s_setprio 3")
    stamp(a, "E2")
    a.I("s_mov_b32 exec_hi, 0")
    a.I("s_waitcnt vmcnt(0)")
    a.I(f"v_cmp_ne_u32 vcc, s{S_NONCE}, v11")
    a.I("s_mov_b64 exec, -1")
    a.I("s_cbranch_vccz L_aux5")
    poll(a, RC, 32, 9, 11, "s88", OPT.get("faslp", 2))
    a.L("L_aux5")
    stamp(a, "FAok")
    VL = 4
    a.I(f"v_lshlrev_b32 v{VL}, 4, v1")
    a.I(f"s_lshl_b32 s54, s{S_HD}, 16")
    a.I(f"s_add_u32 s55, s54, {KF}")
    srd_off(a, RA, S_WS, "s55", 65536)
    a.I(f"s_add_u32 s55, s54, {VF}")
    srd_off(a, RB, S_WS, "s55", 65536)
    a.I(f"s_add_u32 s55, s54, {QF}")
    srd_off(a, RD, S_WS, "s55", 65536)
    a.I(f"s_lshl_b32 s54, s{S_QB}, 3")
    a.I("s_lshl_b32 s55, s67, 1")
    a.I("s_add_u32 s54, s54, s55")
    a.I("s_lshl_b32 s54, s54, 10")
    a.I("s_lshl_b32 s55, s67, 11")
    a.I(f"s_add_u32 s55, s55, {L_RING}")
    for t in range(2):
        a.I(f"s_add_u32 m0, s55, {t*1024}")
        a.I(f"s_add_u32 s56, s54, {t*1024}")
        a.I(f"buffer_load_dwordx4 v{VL}, {S4(RD)}, s56 offen sc1 lds")
    a.I("s_lshl_b32 s54, s67, 10")
    def kvchunks(cs):
        for c in cs:
            a.I(f"s_add_u32 s55, s54, {c*4096}")
            a.I(f"s_add_u32 m0, s55, {L_K}")
            a.I(f"s_add_u32 s56, s55, {L_V}")
            a.I(f"buffer_load_dwordx4 v{VL}, {S4(RA)}, s55 offen sc1 lds")
            a.I("s_mov_b32 m0, s56")
            a.I("s_nop 0")
            a.I(f"buffer_load_dwordx4 v{VL}, {S4(RB)}, s55 offen sc1 lds")
    kvchunks(range(0, 2))
    kvchunks(range(2, 4))
    a.I("s_waitcnt vmcnt(4)")
    lds_add1(a, M_KV, 8, 9)
    stamp(a, "KV1")
    kvchunks(range(4, 16))
    a.I("s_lshr_b32 s53, s2, 3")
    srd(a, RA, S_W2, 1376*1024)
    srd(a, RB, S_WO, 512*1024)
    a.I("s_mul_i32 s54, s53, 44032")
    a.I("s_lshl_b32 s55, s67, 10")
    a.I("s_add_u32 s54, s54, s55")
    a.I("s_waitcnt vmcnt(0)")
    lds_add1(a, M_KV, 8, 9)
    stamp(a, "KV2")
    a.I("v_lshlrev_b32 v10, 7, v1")
    a.I("s_lshl_b32 s55, s67, 13")
    a.I("s_mul_i32 s54, s53, 44032")
    a.I("s_add_u32 s54, s54, s55")
    a.I(f"buffer_load_dword v40, v10, {S4(RA)}, s54 offen")
    a.I("s_add_u32 s54, s54, 32768")
    a.I(f"buffer_load_dword v41, v10, {S4(RA)}, s54 offen")
    a.I("s_lshl_b32 s54, s53, 14")
    a.I("s_lshl_b32 s55, s67, 12")
    a.I("s_add_u32 s54, s54, s55")
    a.I("s_mov_b32 exec_hi, 0")
    a.I(f"buffer_load_dword v42, v10, {S4(RB)}, s54 offen")
    a.I("s_mov_b64 exec, -1")

def ffn2_p3(a):
    WF, HR, ACC2, BPR = 24, 40, 104, 8
    VH, VW, VA0, VA1 = 2, 3, 4, 5
    a.I("s_cmp_lg_u32 s67, 0")
    a.I("s_cbranch_scc1 L_f1")
    lds_spin(a, M_HST, 4, 8, 9, OPT.get('fslp', 1))
    lds_spin(a, M_KV, 8, 8, 9)
    a.I(f"s_lshl_b32 s54, s{S_RB}, 7")
    a.I(f"s_lshl_b32 s55, s{S_CG}, 2")
    a.I("s_add_u32 s54, s54, s55")
    a.I(f"s_add_u32 s54, s54, {FH_OFF}")
    flag_store(a, "s54", 8, 10)
    a.I(f"s_lshl_b32 s54, s{S_HD}, 7")
    a.I(f"s_add_u32 s54, s54, {FH_OFF}")
    a.I("v_lshlrev_b32 v8, 2, v1")
    poll(a, RC, 8, 8, 9, "s54", OPT.get("fhslp", 8))
    lds_add1(a, M_H, 8, 9)
    a.I("s_branch L_f2")
    a.L("L_f1")
    lds_spin(a, M_H, 1, 8, 9, OPT.get('fslp', 1))
    a.L("L_f2")
    lds_spin(a, M_QRD, 8, 8, 9, OPT.get('fslp', 1))
    stamp(a, "hready")
    srd(a, RA, S_W2, 1376*1024)
    srd_off(a, RB, S_WS, HF, HF_SIZE)
    a.I(f"v_lshlrev_b32 v{VH}, 4, v1")
    dma_w_lane_off(a, VW, 1, 8, 9, 1024)
    a.I(f"s_lshl_b32 s54, s{S_QB}, 7")
    a.I(f"v_add_u32 v{VW}, s54, v{VW}")
    tr_lane_addr(a, VA0, 1, 8, 9, 4, 128)
    a.I("s_mul_i32 s68, s67, 6144")
    a.I(f"s_add_u32 s68, s68, {L_RING}")
    a.I(f"v_add_u32 v{VA0}, s68, v{VA0}")
    a.I(f"v_xor_b32 v{VA1}, 64, v{VA0}")
    a.I("s_mul_i32 s54, s67, 24")
    a.I("s_lshl_b32 s70, s54, 14")
    a.I("s_lshl_b32 s71, s54, 16")
    a.I(f"s_lshl_b32 s55, s{S_HD}, 11")
    a.I("s_add_u32 s71, s71, s55")
    for i in range(64):
        a.I(f"v_mov_b32 v{ACC2+i}, 0")
    a.I("s_waitcnt vmcnt(0)")
    def fissue(slot):
        return [f"s_add_u32 m0, s68, {slot*2048}",
                f"s_add_u32 s69, s70, 8192",
                f"buffer_load_dwordx4 v{VW}, {S4(RA)}, s70 offen lds",
                f"s_add_u32 m0, s68, {slot*2048+1024}",
                f"s_add_u32 s70, s70, 16384",
                f"buffer_load_dwordx4 v{VW}, {S4(RA)}, s69 offen lds",
                f"buffer_load_dwordx4 {vr(HR+slot*8,4)}, v{VH}, {S4(RB)}, s71 offen sc1",
                f"buffer_load_dwordx4 {vr(HR+slot*8+4,4)}, v{VH}, {S4(RB)}, s71 offen offset:1024 sc1",
                f"s_add_u32 s71, s71, 65536"]
    def trr(F, off):
        out = []
        for ct, va in ((0, VA0), (1, VA1)):
            for rd in range(2):
                out.append(f"ds_read_b64_tr_b16 {vr(F+4*ct+2*rd,2)}, v{va} offset:{off + rd*1024}")
        return out
    N2 = OPT.get("n2", 0)
    a.I("s_cmp_eq_u32 s67, 3")
    a.I(f"s_cselect_b32 s72, {5-N2}, {8-N2}")
    a.I("s_mov_b32 s76, 0")
    a.L("L_fpro")
    for slot in range(3):
        a.I(J(fissue(slot)))
    a.I("s_cmp_lg_u32 s76, 0")
    a.I("s_cbranch_scc1 L_floop")
    a.I(f"s_setprio {OPT.get('ffnprio', 0)}")
    if OPT.get("noffn"): a.I("s_branch L_fskip")
    a.L("L_floop")
    for slot in range(3):
        a.I("s_waitcnt vmcnt(8)")
        a.I(J(trr(WF, slot*2048)))
        a.I("s_waitcnt lgkmcnt(0)")
        fi = fissue(slot)
        mf = lambda ct, rt: MF(ACC2 + (ct*2+rt)*16, WF+4*ct, HR+slot*8+4*rt, ACC2 + (ct*2+rt)*16)
        if OPT.get("fspread", 1):
            a.I(mf(0, 0)); a.I(J(fi[0:3]))
            a.I(mf(1, 0)); a.I(J(fi[3:6]))
            a.I(mf(0, 1)); a.I(fi[6])
            a.I(mf(1, 1)); a.I(J(fi[7:]))
        else:
            for ct in range(2):
                for rt in range(2):
                    a.I(mf(ct, rt))
            a.I(J(fi))
    a.I("s_sub_u32 s72, s72, 1")
    a.I("s_cmp_lg_u32 s72, 0")
    a.I("s_cbranch_scc1 L_floop")
    a.L("L_fskip")
    a.I("s_setprio 3")
    a.I("s_waitcnt vmcnt(0)")
    a.I("s_cmp_lg_u32 s76, 0")
    a.I("s_cbranch_scc1 L_fdone")
    lds_add1(a, M_FFN, 8, 9)
    stamp(a, "ffn2")
    lds_spin(a, M_ATT, 4, 8, 9, OPT.get('attslp', 1))
    stamp(a, "attdone")
    srd(a, RD, S_WO, 512*1024)
    a.I("s_lshl_b32 s56, s67, 14")
    a.I(f"s_add_u32 s56, s56, {L_K}")
    a.I("s_lshl_b32 s57, s67, 17")
    for ks in range(8):
        for n in range(2):
            a.I(f"s_add_u32 m0, s56, {ks*2048+n*1024}")
            a.I(f"s_add_u32 s69, s57, {ks*16384+n*8192}")
            a.I(f"buffer_load_dwordx4 v{VW}, {S4(RD)}, s69 offen lds")
    if N2:
        a.I("s_mov_b32 s76, 1")
        a.I(f"s_sub_u32 s70, s70, {3*16384}")
        a.I(f"s_sub_u32 s71, s71, {3*65536}")
        a.I(f"s_mov_b32 s72, {N2}")
        a.I("s_branch L_fpro")
    a.L("L_fdone")
    srd_off(a, RA, S_WS, GO, 8192)
    srd(a, RB, S_B2, 1024)
    a.I("s_and_b32 s73, s67, 1")
    a.I("s_lshr_b32 s74, s67, 1")
    a.I(f"s_lshl_b32 s75, s{S_HD}, 6")
    a.I("s_lshl_b32 s54, s73, 5")
    a.I("s_add_u32 s75, s75, s54")
    a.I("s_lshl_b32 s54, s75, 2")
    a.I("v_and_b32 v8, 31, v1")
    a.I("v_lshlrev_b32 v8, 2, v8")
    a.I(f"buffer_load_dword v40, v8, {S4(RA)}, s54 offen sc1")
    a.I(f"s_lshl_b32 s54, s{S_QB}, 6")
    a.I("s_lshl_b32 s55, s74, 5")
    a.I("s_add_u32 s54, s54, s55")
    a.I("s_lshl_b32 s54, s54, 1")
    a.I("v_lshrrev_b32 v8, 5, v1")
    a.I("v_lshlrev_b32 v8, 3, v8")
    for q in range(4):
        a.I(f"buffer_load_dwordx2 v[{42+2*q}:{43+2*q}], v8, {S4(RB)}, s54 offen offset:{q*16}")
    a.I("s_lshl_b32 s68, s67, 14")
    a.I("s_nop 7")
    a.I(f"s_add_u32 s54, s68, {L_V}")
    a.I(f"v_add_u32 v8, s54, v{VH}")
    for i in range(16):
        a.I(f"ds_write_b128 v8, {vr(ACC2+4*i,4)} offset:{i*1024}")
    a.I("s_waitcnt vmcnt(0) lgkmcnt(0)")
    lds_add1(a, M_T1, 9, 10)
    lds_spin(a, M_T1, 4, 9, 10)
    a.I("s_lshl_b32 s54, s67, 12")
    a.I(f"s_add_u32 s54, s54, {L_V}")
    a.I(f"v_add_u32 v8, s54, v{VH}")
    for p in range(4):
        for q in range(4):
            a.I(f"ds_read_b128 {vr(ACC2+p*16+q*4,4)}, v8 offset:{p*16384+q*1024}")
    a.I("s_waitcnt lgkmcnt(0)")
    for i in range(16):
        a.I(f"v_add_f32 v{ACC2+i}, v{ACC2+i}, v{ACC2+16+i}")
        a.I(f"v_add_f32 v{ACC2+32+i}, v{ACC2+32+i}, v{ACC2+48+i}")
    for i in range(16):
        a.I(f"v_add_f32 v{ACC2+i}, v{ACC2+i}, v{ACC2+32+i}")
    a.I("s_waitcnt vmcnt(0)")
    a.I("v_sub_f32 v41, 1.0, v40")
    a.I("v_cvt_pk_bf16_f32 v41, v41, v41")
    a.I("v_and_b32 v41, 0xffff0000, v41")
    for q in range(4):
        a.I(f"v_lshlrev_b32 v52, 16, v{42+2*q}")
        a.I(f"v_and_b32 v53, 0xffff0000, v{42+2*q}")
        a.I(f"v_lshlrev_b32 v54, 16, v{43+2*q}")
        a.I(f"v_and_b32 v55, 0xffff0000, v{43+2*q}")
        for j in range(4):
            a.I(f"v_add_f32 v{BPR+4*q+j}, v{ACC2+4*q+j}, v{52+j}")
        for j in range(4):
            a.I(f"v_mul_f32 v{BPR+4*q+j}, v{BPR+4*q+j}, v41")
    a.I("v_mov_b32 v39, v40")
    tr_lane_addr(a, VA0, 1, 32, 33, 4, 128)
    a.I("s_lshl_b32 s54, s74, 6")
    a.I(f"v_xor_b32 v{VA0}, s54, v{VA0}")
    a.I(f"v_add_u32 v{VA0}, {L_K}, v{VA0}")
    a.I("s_lshl_b32 s54, s73, 15")
    a.I(f"s_add_u32 s54, s54, {L_V}")
    a.I(f"v_add_u32 v{VA1}, s54, v{VH}")
    FR = 40
    def wreads(ks):
        F = FR + (ks % 8) * 8
        return [f"ds_read_b64_tr_b16 {vr(F,2)}, v{VA0} offset:{ks*2048}",
                f"ds_read_b64_tr_b16 {vr(F+2,2)}, v{VA0} offset:{ks*2048+1024}"]
    def oread(ks):
        F = FR + (ks % 8) * 8
        return [f"ds_read_b128 {vr(F+4,4)}, v{VA1} offset:{ks*1024}"]
    a.I("s_cmp_lg_u32 s67, 0")
    a.I("s_cbranch_scc1 L_f4")
    a.I(f"s_lshl_b32 s54, s{S_HD}, 8")
    a.I(f"s_add_u32 s54, s54, {FO_OFF}")
    a.I("v_lshlrev_b32 v121, 2, v1")
    if not OPT.get("opf", 0):
        poll(a, RC, 64, 121, 122, "s54", OPT.get("foslp", 2))
    else:
        srd_off(a, RB, S_WS, OF, 2*MB)
        a.I(f"s_lshl_b32 s55, s{S_HD}, 16")
        a.I("v_lshlrev_b32 v123, 10, v1")
        a.I("s_mov_b64 s[56:57], 0")
        a.I("s_mov_b32 s50, 0x40000")
        a.L("L_opf")
        a.I(f"buffer_load_dword v122, v121, {S4(RC)}, s54 offen sc1")
        a.I("s_waitcnt vmcnt(0)")
        a.I(f"v_cmp_eq_u32 vcc, s{S_NONCE}, v122")
        a.I("s_nop 1")
        a.I("s_andn2_b64 s[58:59], vcc, s[56:57]")
        a.I("s_or_b64 s[56:57], s[56:57], vcc")
        a.I("s_cmp_eq_u64 s[56:57], -1")
        a.I("s_cbranch_scc1 L_opf3")
        a.I("s_cmp_eq_u64 s[58:59], 0")
        a.I("s_cbranch_scc1 L_opf2")
        a.I("s_mov_b64 exec, s[58:59]")
        for j in range(8):
            a.I(f"buffer_load_dword v120, v123, {S4(RB)}, s55 offen offset:{j*128} sc1")
        a.I("s_mov_b64 exec, -1")
        a.L("L_opf2")
        a.I("s_sub_u32 s50, s50, 1")
        a.I("s_cmp_eq_u32 s50, 0")
        a.I("s_cbranch_scc1 L_opf3")
        a.I(f"s_sleep {OPT.get('foslp', 2)}")
        a.I("s_branch L_opf")
        a.L("L_opf3")
    a.L("L_f4")
    for ks in range(8): a.I(J(wreads(ks)))
    srd_off(a, RB, S_WS, OF, 2*MB)
    a.I(f"s_lshl_b32 s54, s{S_HD}, 16")
    a.I("s_lshl_b32 s55, s67, 11")
    a.I("s_add_u32 s54, s54, s55")
    a.I(f"s_add_u32 s55, s55, {L_V}")
    srd(a, RA, S_OUT, 2*MB)
    a.I("s_lshl_b32 s58, s75, 10")
    a.I(f"s_lshl_b32 s59, s{S_QB}, 7")
    a.I("s_add_u32 s58, s58, s59")
    a.I("s_lshl_b32 s59, s74, 6")
    a.I("s_add_u32 s58, s58, s59")
    a.I("v_and_b32 v32, 31, v1")
    a.I("v_lshlrev_b32 v32, 10, v32")
    a.I("v_lshrrev_b32 v33, 5, v1")
    a.I("v_lshl_add_u32 v32, v33, 4, v32")
    a.I("s_waitcnt lgkmcnt(0)")
    a.I("s_barrier")
    stamp(a, "T2")
    def odma(ch):
        L = []
        for hh in range(2):
            for rt in range(2):
                off = rt*32768 + ch*8192 + hh*1024
                L.append([f"s_add_u32 m0, s55, {off}", f"s_add_u32 s56, s54, {off}",
                          f"buffer_load_dwordx4 v{VH}, {S4(RB)}, s56 offen sc1 lds"])
        return L
    for ch in range(4):
        for x in odma(ch): a.I(J(x))
    for ch in range(4):
        a.I(f"s_waitcnt vmcnt({4*(3-ch)}) lgkmcnt(0)")
        a.I("s_barrier")
        for ks in range(8*ch, 8*ch+8): a.I(J(oread(ks)))
        for i in range(8):
            ks = 8*ch + i
            a.I(f"s_waitcnt lgkmcnt({7 + i if ch < 3 else 7 - i})")
            F = FR + i*8
            a.I(MF(ACC2, F, F+4, ACC2 if ks else None))
            if ch < 3: a.I(J(wreads(ks+8)))
    a.I("s_nop 15")
    stamp(a, "p3mm")
    for i in range(16):
        a.I(f"v_fma_f32 v{ACC2+i}, v{ACC2+i}, v39, v{BPR+i}")
    for j in range(8):
        a.I(f"v_cvt_pk_bf16_f32 v{ACC2+j}, v{ACC2+2*j}, v{ACC2+2*j+1}")
    a.I("s_nop 1")
    a.I(f"v_permlane32_swap_b32 v{ACC2}, v{ACC2+2}")
    a.I(f"v_permlane32_swap_b32 v{ACC2+1}, v{ACC2+3}")
    a.I(f"v_permlane32_swap_b32 v{ACC2+4}, v{ACC2+6}")
    a.I(f"v_permlane32_swap_b32 v{ACC2+5}, v{ACC2+7}")
    ofl = {0: "", 1: " sc1", 2: " nt", 3: " sc0 sc1"}[OPT.get("outfl", 0)]
    a.I(f"buffer_store_dwordx4 {vr(ACC2,4)}, v32, {S4(RA)}, s58 offen{ofl}")
    a.I(f"buffer_store_dwordx4 {vr(ACC2+4,4)}, v32, {S4(RA)}, s58 offen offset:32{ofl}")
    stamp_flush(a, "ffn")
    a.I("s_endpgm")

def attention(a):
    a.L("L_attn")
    stamp(a, "attn0")
    QA, QB = 8, 12
    KB = [16, 20]; VB = [24, 32]
    S0, S1, OA, OB = 40, 56, 72, 88
    VK, VV, VL = 2, 3, 4
    T0, T1, T2 = 104, 105, 106
    VKN, VVN, VVB, VCH, VONE, VNX = 107, 108, 109, 110, 111, 5
    a.I(f"s_and_b32 s63, s{S_W}, 3")
    a.I(f"s_lshr_b32 s64, s{S_W}, 2")
    a.I(f"v_lshlrev_b32 v{VL}, 4, v1")
    a.I(f"v_lshrrev_b32 v{T0}, 5, v1")
    a.I(f"v_and_b32 v{T1}, 15, v1")
    a.I(f"v_lshlrev_b32 v{T1}, 4, v{T1}")
    a.I(f"v_lshl_add_u32 v{VVB}, v{T0}, 8, v{T1}")
    a.I(f"v_add_u32 v{VVB}, {L_V}, v{VVB}")
    a.I(f"v_add_u32 v{VKN}, {L_K}, v{VL}")
    a.I("s_lshl_b32 s54, s64, 12")
    a.I(f"v_add_u32 v{VK}, s54, v{VL}")
    a.I(f"v_add_u32 v{VV}, s54, v{VVB}")
    a.I("s_lshl_b32 s54, s63, 2")
    a.I(f"s_add_u32 s54, s54, {M_CH}")
    a.I(f"v_mov_b32 v{VCH}, s54")
    a.I(f"v_mov_b32 v{VONE}, 1")
    a.I("s_mov_b32 s74, 0x0000ffff")
    a.I("s_mov_b32 s75, 0x0000ffff")
    a.I("s_mov_b32 s77, 0")
    a.I(f"s_lshl_b32 s66, s{S_QB}, 3")
    a.I("s_lshl_b32 s54, s63, 1")
    a.I("s_add_u32 s66, s66, s54")
    a.I("s_lshl_b32 s54, s63, 11")
    a.I(f"s_add_u32 s54, s54, {L_RING}")
    a.I(f"v_add_u32 v{T2}, s54, v{VL}")
    a.I(f"v_and_b32 v{T0}, 31, v1")
    a.I(f"v_cmp_eq_u32 vcc, 16, v{T0}")
    a.I(f"v_mov_b32 v{T1}, 0x3f803f80")
    a.I("s_nop 1")
    a.I(f"v_cndmask_b32 v{T0}, 0, v{T1}, vcc")
    for i in range(16):
        a.I(f"v_mov_b32 v{VB[0]+i}, v{T0}")
    lds_spin(a, M_KV, 4, T0, T1)
    stamp(a, "kvok")
    a.I(f"ds_read_b128 {vr(QA,4)}, v{T2}")
    a.I(f"ds_read_b128 {vr(QB,4)}, v{T2} offset:1024")
    for i in range(16):
        a.I(f"v_mov_b32 v{OA+i}, 0")
        a.I(f"v_mov_b32 v{OB+i}, 0")
    a.I("s_waitcnt lgkmcnt(0)")
    lds_add1(a, M_QRD, T0, T1)
    a.I("s_lshl_b32 s71, s64, 12")
    if STAMPS and OPT.get("fineattn"): a.I("s_mov_b32 s87, 24")
    a.I("s_mov_b32 s73, 0")

    def e_(S, i): return f"v_exp_f32 v{S+i}, v{S+i}"
    def c_(S, j): return f"v_cvt_pk_bf16_f32 v{S+j}, v{S+2*j}, v{S+2*j+1}"
    def tile(Sin, Sout, Qn, Kn, Ocur, Vcur_u0, Oprev, Vprev_u1, after_pv2, wait_s, after_s, wait_pv1, do_pv2=True, do_s=True):
        e = lambda i: e_(Sin, i)
        c = lambda j: c_(Sin, j)
        L = [e(0), e(1)]
        if do_pv2: L.append(MF(Oprev, Vprev_u1, Sout+4, Oprev))
        L += after_pv2
        L += [e(2), e(3), c(0), e(4), e(5), c(1)]
        L += wait_s
        if do_s: L.append(MF(Sout, Kn, Qn))
        L += after_s
        L += [e(6), e(7), c(2), e(8), e(9), c(3), e(10), e(11)]
        L += wait_pv1
        L.append(MF(Ocur, Vcur_u0, Sin, Ocur))
        L += [c(4), e(12), e(13), c(5), e(14), e(15), c(6), c(7)]
        return L
    fifo = []
    def dsr(tag, txt): fifo.append(tag); return txt
    def need(tag):
        idx = max(i for i, t in enumerate(fifo) if t == tag)
        return [f"s_waitcnt lgkmcnt({len(fifo) - 1 - idx})"]
    def vreads(t):
        kap = t & 1
        return ["s_mov_b64 exec, s[74:75]",
                dsr(("V", t), f"ds_read_b128 {vr(VB[kap],4)}, v{VV} offset:{t*1024}"),
                dsr(("V", t), f"ds_read_b128 {vr(VB[kap]+4,4)}, v{VV} offset:{t*1024+512}"),
                "s_mov_b64 exec, -1"]
    def kread(t): return [dsr(("K", t), f"ds_read_b128 {vr(KB[t & 1],4)}, v{VK} offset:{t*1024}")]
    a.raw(".p2align 6")
    a.L("L_aloop")
    if OPT.get("fineattn"):
        OPT["fine"] = 1; stamp_dyn(a); OPT["fine"] = 0
    a.I(f"v_add_u32 v{VK}, s71, v{VKN}")
    a.I(f"v_add_u32 v{VV}, s71, v{VVB}")
    L = kread(0) + vreads(0) + kread(1)
    L += need(("K", 0))
    L.append(MF(S0, KB[0], QA))
    a.I(J(L))
    a.I("s_nop 7")
    a.I("s_nop 3")
    body = []
    for t in range(4):
        kap = t & 1
        A = []
        Sin, Sout = S0, S1
        A += [e_(Sin, 0), e_(Sin, 1)]
        if t > 0: A.append(MF(OB, VB[kap^1]+4, Sout+4, OB))
        if t + 1 < 4: A += vreads(t+1)
        A += [e_(Sin, 2), e_(Sin, 3), c_(Sin, 0), e_(Sin, 4), e_(Sin, 5), c_(Sin, 1)]
        A.append(MF(Sout, KB[kap], QB))
        if t + 2 < 4: A += kread(t+2)
        A += [e_(Sin, 6), e_(Sin, 7), c_(Sin, 2), e_(Sin, 8), e_(Sin, 9), c_(Sin, 3), e_(Sin, 10), e_(Sin, 11)]
        A += need(("V", t))
        A.append(MF(OA, VB[kap], Sin, OA))
        A += [c_(Sin, 4), e_(Sin, 12), e_(Sin, 13), c_(Sin, 5), e_(Sin, 14), e_(Sin, 15), c_(Sin, 6), c_(Sin, 7)]
        Sin, Sout = S1, S0
        B = [e_(Sin, 0), e_(Sin, 1), MF(OA, VB[kap]+4, Sout+4, OA)]
        if t == 3:
            B += ["s_mov_b64 exec, 1", dsr(("G",), f"ds_add_rtn_u32 v{VNX}, v{VCH}, v{VONE}"), "s_mov_b64 exec, -1"]
        B += [e_(Sin, 2), e_(Sin, 3), c_(Sin, 0), e_(Sin, 4), e_(Sin, 5), c_(Sin, 1)]
        if t + 1 < 4:
            B += need(("K", t+1))
            B.append(MF(Sout, KB[kap^1], QA))
        B += [e_(Sin, 6), e_(Sin, 7), c_(Sin, 2), e_(Sin, 8), e_(Sin, 9), c_(Sin, 3), e_(Sin, 10), e_(Sin, 11)]
        B.append(MF(OB, VB[kap], Sin, OB))
        B += [c_(Sin, 4), e_(Sin, 12), e_(Sin, 13), c_(Sin, 5), e_(Sin, 14), e_(Sin, 15), c_(Sin, 6), c_(Sin, 7)]
        body += A + B
    a.I(J(body))
    a.I("s_waitcnt lgkmcnt(0)")
    a.I(f"v_readfirstlane_b32 s70, v{VNX}")
    a.I(MF(OB, VB[1]+4, S1+4, OB))
    a.I("s_add_u32 s70, s70, 2")
    a.I("s_lshl_b32 s71, s70, 12")
    a.I("s_cmp_lg_u32 s73, 0")
    a.I("s_cbranch_scc1 L_aloop2")
    a.I("s_mov_b32 s73, 1")
    a.I("s_waitcnt vmcnt(0)")
    a.I(f"s_cmp_ge_u32 s{S_W}, 4")
    a.I("s_cbranch_scc1 L_aloop1")
    lds_add1(a, M_HST, T0, T1)
    a.L("L_aloop1")
    lds_spin(a, M_KV, 8, T0, T1)
    a.L("L_aloop2")
    a.I("s_cmp_lt_u32 s70, 16")
    a.I("s_cbranch_scc1 L_aloop")
    a.I("s_waitcnt lgkmcnt(0)")
    a.I("s_nop 7")
    stamp(a, "aloop")
    a.I("s_lshl_b32 s54, s63, 2")
    a.I(f"s_add_u32 s55, s54, {M_PAIR}")
    a.I(f"s_add_u32 s76, s54, {M_PFLAG}")
    a.I(f"v_mov_b32 v{T0}, s55")
    a.I(f"v_mov_b32 v{T1}, 1")
    a.I("s_mov_b64 exec, 1")
    a.I(f"ds_add_rtn_u32 v{T2}, v{T0}, v{T1}")
    a.I("s_mov_b64 exec, -1")
    a.I("s_mul_i32 s54, s63, 4608")
    a.I(f"s_add_u32 s54, s54, {L_XCH}")
    a.I(f"v_add_u32 v{S0}, s54, v{VL}")
    a.I(f"v_lshlrev_b32 v{S0+1}, 2, v1")
    a.I(f"v_add_u32 v{S0+1}, s54, v{S0+1}")
    a.I("s_waitcnt lgkmcnt(0)")
    a.I(f"v_readfirstlane_b32 s55, v{T2}")
    a.I("s_nop 4")
    a.I("s_cmp_lg_u32 s55, 0")
    a.I("s_cbranch_scc1 L_second")
    lds_spin(a, M_FFN, 4, T0, T1)
    a.I(f"ds_write_b128 v{S0}, {vr(OA,4)}")
    a.I(f"ds_write_b128 v{S0}, {vr(OA+4,4)} offset:1024")
    a.I(f"ds_write_b128 v{S0}, {vr(OB,4)} offset:2048")
    a.I(f"ds_write_b128 v{S0}, {vr(OB+4,4)} offset:3072")
    a.I(f"ds_write_b32 v{S0+1}, v{OA+8} offset:4096")
    a.I(f"ds_write_b32 v{S0+1}, v{OB+8} offset:4352")
    a.I("s_waitcnt lgkmcnt(0)")
    lds_add1(a, "s76", T0, T1)
    a.I("s_waitcnt lgkmcnt(0)")
    stamp_flush(a, "attn")
    a.I("s_endpgm")
    a.L("L_second")
    lds_spin(a, "s76", 1, T0, T1)
    a.I(f"ds_read_b128 {vr(S1,4)}, v{S0}")
    a.I(f"ds_read_b128 {vr(S1+4,4)}, v{S0} offset:1024")
    a.I(f"ds_read_b128 {vr(S1+8,4)}, v{S0} offset:2048")
    a.I(f"ds_read_b128 {vr(S1+12,4)}, v{S0} offset:3072")
    a.I(f"ds_read_b32 v{T0}, v{S0+1} offset:4096")
    a.I(f"ds_read_b32 v{T1}, v{S0+1} offset:4352")
    a.I(f"v_mov_b32 v{T2}, {L_MISC + 128}")
    a.I(f"ds_read_b32 v{T2}, v{T2}")
    a.I("s_waitcnt lgkmcnt(0)")
    a.I(f"v_readfirstlane_b32 s{S_NONCE}, v{T2}")
    for i in range(8):
        a.I(f"v_add_f32 v{OA+i}, v{OA+i}, v{S1+i}")
        a.I(f"v_add_f32 v{OB+i}, v{OB+i}, v{S1+8+i}")
    a.I(f"v_add_f32 v{OA+8}, v{OA+8}, v{T0}")
    a.I(f"v_add_f32 v{OB+8}, v{OB+8}, v{T1}")
    a.L("L_fin")
    for O in (OA, OB):
        a.I(f"v_mov_b32 v{O+9}, v{O+8}")
    a.I("s_nop 1")
    for O in (OA, OB):
        a.I(f"v_permlane32_swap_b32 v{O+9}, v{O+8}")
    a.I("s_nop 1")
    for O in (OA, OB):
        a.I(f"v_rcp_f32 v{O+10}, v{O+9}")
    srd_off(a, RA, S_WS, OF, 2*MB)
    a.I("s_lshl_b32 s54, s66, 5")
    a.I(f"s_add_u32 s54, s54, s{S_HD}")
    a.I("s_lshl_b32 s55, s54, 10")
    for n_, O in enumerate((OA, OB)):
        for i in range(8):
            a.I(f"v_mul_f32 v{S0+8*n_+i}, v{O+i}, v{O+10}")
        for j in range(4):
            a.I(f"v_cvt_pk_bf16_f32 v{S1+4*n_+j}, v{S0+8*n_+2*j}, v{S0+8*n_+2*j+1}")
        a.I(f"buffer_store_dwordx4 {vr(S1+4*n_,4)}, v{VL}, {S4(RA)}, s55 offen sc1")
        if n_ == 0: a.I("s_add_u32 s55, s55, 32768")
    srd_off(a, RC, S_WS, FLG, FLG_SIZE)
    slow_check(a, OA, OB, T0, T1)
    lds_add1(a, M_ATT, T0, T1)
    a.I("s_lshl_b32 s54, s54, 2")
    a.I(f"s_add_u32 s54, s54, {FO_OFF}")
    a.I(f"v_mov_b32 v{T0}, s{S_NONCE}")
    a.I(f"v_lshlrev_b32 v{T1}, 7, v1")
    a.I("s_waitcnt vmcnt(0)")
    a.I("s_mov_b64 exec, 3")
    a.I(f"buffer_store_dword v{T0}, v{T1}, {S4(RC)}, s54 offen sc1")
    a.I("s_mov_b64 exec, -1")
    stamp_flush(a, "attn")
    a.I("s_endpgm")
    slow_path(a, QA, QB, KB, VB, S0, S1, OA, OB, VL, T0, T1, T2)

def slow_check(a, OA, OB, T0, T1):
    if OPT.get("noslow"): return
    a.I(f"v_mul_f32 v{T0}, 0, v{OA}")
    for i in range(1, 8):
        a.I(f"v_fma_f32 v{T0}, v{OA+i}, 0, v{T0}")
    for i in range(8):
        a.I(f"v_fma_f32 v{T0}, v{OB+i}, 0, v{T0}")
    a.I(f"v_cmp_eq_f32 s[78:79], 0, v{T0}")
    a.I(f"s_mov_b32 s80, {hex(f2u(2.0**-60))}")
    a.I(f"s_mov_b32 s81, {hex(f2u(2.0**60))}")
    for O in (OA, OB):
        a.I(f"v_cmp_le_f32 s[82:83], s80, v{O+9}")
        a.I(f"v_cmp_ge_f32 vcc, s81, v{O+9}")
        a.I("s_nop 1")
        a.I("s_and_b64 s[78:79], s[78:79], s[82:83]")
        a.I("s_and_b64 s[78:79], s[78:79], vcc")
    if OPT.get("forceslow"):
        a.I("s_mov_b64 s[78:79], 0")
    a.I("s_cmp_eq_u64 s[78:79], -1")
    a.I("s_cbranch_scc1 L_ok")
    a.I("s_cmp_eq_u32 s77, 0")
    a.I("s_cbranch_scc1 L_slow")
    a.L("L_ok")

def slow_path(a, QA, QB, KB, VB, S0, S1, OA, OB, VL, T0, T1, T2):
    if OPT.get("noslow"): return
    K, V0, M, C = KB[0], VB[0], 108, 112
    a.L("L_slow")
    a.I("s_waitcnt vmcnt(0)")
    a.I("s_mov_b32 s77, 1")
    a.I(f"v_lshrrev_b32 v{T0}, 5, v1")
    a.I(f"v_and_b32 v{T1}, 15, v1")
    a.I(f"v_lshlrev_b32 v{T1}, 4, v{T1}")
    a.I(f"v_lshl_add_u32 v{T2}, v{T0}, 8, v{T1}")
    a.I(f"v_add_u32 v{T2}, {L_V}, v{T2}")
    a.I(f"v_mov_b32 v{M}, 0xff800000")
    a.I(f"v_mov_b32 v{M+1}, 0xff800000")
    a.I(f"v_add_u32 v{T0}, {L_K}, v{VL}")
    a.I("s_mov_b32 s73, 0")
    a.L("L_slow1")
    a.I(f"ds_read_b128 {vr(K,4)}, v{T0}")
    a.I("s_waitcnt lgkmcnt(0)")
    a.I(MF(S0, K, QA))
    a.I(MF(S1, K, QB))
    a.I("s_nop 15")
    for S, m in ((S0, M), (S1, M+1)):
        for i in range(0, 16, 2):
            a.I(f"v_max3_f32 v{m}, v{S+i}, v{S+i+1}, v{m}")
    a.I(f"v_add_u32 v{T0}, 1024, v{T0}")
    a.I("s_add_u32 s73, s73, 1")
    a.I("s_cmp_lt_u32 s73, 64")
    a.I("s_cbranch_scc1 L_slow1")
    for m in (M, M+1):
        a.I(f"v_mov_b32 v{T1}, v{m}")
        a.I("s_nop 1")
        a.I(f"v_permlane32_swap_b32 v{T1}, v{m}")
        a.I("s_nop 1")
        a.I(f"v_max_f32 v{m}, v{m}, v{T1}")
    for t in range(2):
        for i in range(16):
            a.I(f"v_sub_f32 v{C+16*t+i}, 0, v{M+t}")
    for i in range(16):
        a.I(f"v_mov_b32 v{OA+i}, 0")
        a.I(f"v_mov_b32 v{OB+i}, 0")
    a.I(f"v_add_u32 v{T0}, {L_K}, v{VL}")
    a.I("s_mov_b32 s73, 0")
    a.L("L_slow2")
    a.I(f"ds_read_b128 {vr(K,4)}, v{T0}")
    a.I("s_mov_b64 exec, s[74:75]")
    a.I(f"ds_read_b128 {vr(V0,4)}, v{T2}")
    a.I(f"ds_read_b128 {vr(V0+4,4)}, v{T2} offset:512")
    a.I("s_mov_b64 exec, -1")
    a.I("s_waitcnt lgkmcnt(0)")
    a.I(MF(S0, K, QA, C))
    a.I(MF(S1, K, QB, C+16))
    a.I("s_nop 15")
    for S, O in ((S0, OA), (S1, OB)):
        for i in range(16):
            a.I(f"v_exp_f32 v{S+i}, v{S+i}")
        a.I("s_nop 0")
        for j in range(8):
            a.I(f"v_cvt_pk_bf16_f32 v{S+j}, v{S+2*j}, v{S+2*j+1}")
        a.I("s_nop 1")
        a.I(MF(O, V0, S, O))
        a.I(MF(O, V0+4, S+4, O))
    a.I(f"v_add_u32 v{T0}, 1024, v{T0}")
    a.I(f"v_add_u32 v{T2}, 1024, v{T2}")
    a.I("s_add_u32 s73, s73, 1")
    a.I("s_cmp_lt_u32 s73, 64")
    a.I("s_cbranch_scc1 L_slow2")
    a.I("s_nop 15")
    a.I("s_branch L_fin")

def gen():
    a = Asm()
    prologue(a)
    producer(a, False)
    consumer(a)
    a.L("L_aux")
    producer(a, True)
    ffn2_p3(a)
    attention(a)
    a.L("L_end")
    a.I("s_endpgm")
    a.L("L_code_end")
    a.I("s_endpgm")
    return a

HEADER = open("cdna_kernels/" + NAME + ".s.ref").read().split("; Override launch")[0]

def build(path):
    a = gen()
    out = HEADER + f"; WSLAYOUT QF={QF} KF={KF} VF={VF} HF={HF} GO={GO} OF={OF}\n"
    out += f"; @launch grid=(256,1,1) block=(768,1,1) lds={LDS_TOTAL}\n"
    out += '.amdgcn_target "amdgcn-amd-amdhsa--gfx950"\n.text\n' + a.text()
    out += f""".section .rodata,"a"
.p2align 6
.amdhsa_kernel {KN}
  .amdhsa_next_free_vgpr 168
  .amdhsa_next_free_sgpr 102
  .amdhsa_accum_offset 168
  .amdhsa_group_segment_fixed_size 0
  .amdhsa_kernarg_size 96
  .amdhsa_user_sgpr_count 2
  .amdhsa_user_sgpr_kernarg_segment_ptr 1
  .amdhsa_system_sgpr_workgroup_id_x 1
.end_amdhsa_kernel
"""
    open(path, "w").write(out)
    probs = check_linear(a.lines, "k")
    if STAMPS: print("stamps:", ",".join(_stamp_names))
    return probs

if __name__ == "__main__":
    for x in list(sys.argv[1:]):
        if x.startswith("-D"):
            k, _, v = x[2:].partition("=")
            OPT[k] = int(v) if v else 1
            sys.argv.remove(x)
    if "--stamps" in sys.argv:
        STAMPS = True; sys.argv.remove("--stamps")
    path = sys.argv[1] if len(sys.argv) > 1 else "cdna_kernels/" + NAME + ".s"
    probs = build(path)
    for p in probs: print("HAZARD:", p)
    print("written", path, "problems:", len(probs))
```

```python
import sys, struct
from asmlib import *

NAME = "gated_mix__mha_block__dense_activation_squared_relu__prompt"
KN = NAME + "_kernel"
MB = 1 << 20
QF, KF, VF, HF, GO, OF, FLG = 4096, 2*MB + 8192, 4*MB + 12288, 6*MB + 16384, 12*MB, 14*MB + 4096, 16*MB + 8192
HF_SIZE = 86 * 65536
FA_OFF, FH_OFF, FO_OFF = 0, 4096, 8192
FLG_SIZE = 16384
QSCALE = 0.25 * 1.4426950408889634
STAMP_OFF = 32*MB
STAMPS = False
OPT = {}
def f2u(x): return struct.unpack("<I", struct.pack("<f", x))[0]

S_AX, S_WQKV, S_WO, S_W1, S_B1, S_W2, S_B2, S_GW, S_OUT, S_DBG, S_WS = 4, 6, 8, 12, 14, 16, 18, 20, 22, 24, 26
S_W = 3
S_RB, S_CG, S_START = 29, 30, 31
RA, RB, RC, RD = 32, 36, 40, 44
S_NONCE, S_HD, S_QB = 60, 61, 62
L_MISC, L_K, L_V, L_RING = 0, 1024, 1024 + 65536, 1024 + 131072
L_XCH = L_RING
M_KV, M_H, M_FA, M_QRD, M_HST, M_FFN, M_ATT, M_T1 = [L_MISC + 4*i for i in range(8)]
M_PAIR, M_PFLAG, M_CH = L_MISC + 64, L_MISC + 96, L_MISC + 160
LDS_TOTAL = 163840

def srd(a, dst, base, size):
    a.I(f"s_mov_b32 s{dst}, s{base}")
    a.I(f"s_mov_b32 s{dst+1}, s{base+1}")
    a.I(f"s_mov_b32 s{dst+2}, {size}")
    a.I(f"s_mov_b32 s{dst+3}, 0x20000")
def srd_off(a, dst, base, off, size):
    a.I(f"s_add_u32 s{dst}, s{base}, {off}")
    a.I(f"s_addc_u32 s{dst+1}, s{base+1}, 0")
    a.I(f"s_mov_b32 s{dst+2}, {size}")
    a.I(f"s_mov_b32 s{dst+3}, 0x20000")
def MF(d, A, B, c=None):
    cc = "0" if c is None else vr(c, 16)
    return f"v_mfma_f32_32x32x16_bf16 {vr(d,16)}, {vr(A,4)}, {vr(B,4)}, {cc}"
def S4(r): return f"s[{r}:{r+3}]"
def J(L): return "\n".join(L)

_stamp_names = []
def stamp(a, name):
    if not STAMPS: return
    if name not in _stamp_names: _stamp_names.append(name)
    i = _stamp_names.index(name)
    a.I("s_waitcnt lgkmcnt(0)")
    a.I("s_memtime s[98:99]")
    a.I("s_memrealtime s[100:101]")
    a.I("s_waitcnt lgkmcnt(0)")
    a.I(f"v_writelane_b32 v6, s98, {i}")
    a.I(f"v_writelane_b32 v7, s100, {i}")
def stamp_dyn(a):
    if not (STAMPS and OPT.get("fine")): return
    a.I("s_memtime s[98:99]")
    a.I("s_memrealtime s[100:101]")
    a.I("s_waitcnt lgkmcnt(0)")
    a.I("s_mov_b32 s88, m0")
    a.I("s_mov_b32 m0, s87")
    a.I("s_nop 3")
    a.I("v_writelane_b32 v6, s98, m0")
    a.I("v_writelane_b32 v7, s100, m0")
    a.I("s_mov_b32 m0, s88")
    a.I("s_add_u32 s87, s87, 1")
def dbg_dump(a, names, word0):
    lb = lab("dd")
    a.I(f"s_cmp_lg_u32 s2, {OPT.get('dbgwg', 0)}")
    a.I(f"s_cbranch_scc1 {lb}")
    a.I("v_readlane_b32 s90, v7, 0")
    for i, nm in enumerate(names):
        if nm not in _stamp_names: _stamp_names.append(nm)
        a.I(f"v_readlane_b32 s91, v7, {_stamp_names.index(nm)}")
        a.I("s_nop 3")
        a.I("s_sub_u32 s91, s91, s90")
        a.I("v_mov_b32 v2, s91")
        a.I(f"v_mov_b32 v3, {4*(word0+i)}")
        a.I("s_mov_b64 exec, 1")
        a.I(f"global_store_dword v3, v2, s[{S_DBG}:{S_DBG+1}]")
        a.I("s_mov_b64 exec, -1")
    a.L(lb)

def stamp_flush(a, who=None):
    if not STAMPS: return
    a.I("s_waitcnt vmcnt(0)")
    stamp(a, "end")
    if OPT.get("dbgdump"):
        if who == "ffn":
            l2 = lab("d8")
            a.I(f"s_cmp_lg_u32 s{S_W}, 8"); a.I(f"s_cbranch_scc1 {l2}")
            dbg_dump(a, ["E2", "FAok", "KV1", "hready", "ffn2", "attdone", "T2", "p3mm", "end"], 7)
            a.L(l2)
        elif who == "attn":
            l2 = lab("d0")
            a.I(f"s_and_b32 s91, s{S_W}, 3"); a.I("s_cmp_lg_u32 s91, 0"); a.I(f"s_cbranch_scc1 {l2}")
            a.I(f"s_cmp_ge_u32 s{S_W}, 4"); a.I(f"s_cbranch_scc1 {l2}")
            dbg_dump(a, ["karg", "B0", "qloop", "floop", "kvok", "aloop"], 1)
            a.L(l2)
    a.I(f"s_add_u32 s96, s{S_WS}, {STAMP_OFF}")
    a.I(f"s_addc_u32 s97, s{S_WS+1}, 0")
    a.I("s_mul_i32 s98, s2, 12")
    a.I(f"s_add_u32 s98, s98, s{S_W}")
    a.I("s_lshl_b32 s98, s98, 9")
    a.I("v_lshlrev_b32 v2, 2, v1")
    a.I("v_add_u32 v2, s98, v2")
    a.I("s_mov_b64 exec, -1")
    a.I("global_store_dword v2, v6, s[96:97]")
    a.I("global_store_dword v2, v7, s[96:97] offset:256")
    a.I("s_waitcnt vmcnt(0)")

def tr_lane_addr(a, dst, lane, tmp, tmp2, hrows, pitch):
    a.I(f"v_bfe_u32 v{tmp}, v{lane}, 2, 2")
    a.I(f"v_lshrrev_b32 v{tmp2}, 5, v{lane}")
    a.I(f"v_mul_u32_u24 v{tmp2}, {hrows}, v{tmp2}")
    a.I(f"v_add_u32 v{tmp}, v{tmp}, v{tmp2}")
    a.I(f"v_mul_u32_u24 v{dst}, {pitch}, v{tmp}")
    a.I(f"v_bfe_u32 v{tmp}, v{lane}, 4, 1")
    a.I(f"v_lshlrev_b32 v{tmp}, 1, v{tmp}")
    a.I(f"v_bfe_u32 v{tmp2}, v{lane}, 1, 1")
    a.I(f"v_add_u32 v{tmp}, v{tmp}, v{tmp2}")
    a.I(f"v_bfe_u32 v{tmp2}, v{lane}, 3, 1")
    a.I(f"v_lshlrev_b32 v{tmp2}, 2, v{tmp2}")
    a.I(f"v_xor_b32 v{tmp}, v{tmp}, v{tmp2}")
    a.I(f"v_lshl_add_u32 v{dst}, v{tmp}, 4, v{dst}")
    a.I(f"v_and_b32 v{tmp}, 1, v{lane}")
    a.I(f"v_lshl_add_u32 v{dst}, v{tmp}, 3, v{dst}")

def dma_w_lane_off(a, dst, lane, tmp, tmp2, pitch):
    a.I(f"v_lshrrev_b32 v{tmp}, 3, v{lane}")
    a.I(f"v_mul_u32_u24 v{dst}, {pitch}, v{tmp}")
    a.I(f"v_bfe_u32 v{tmp}, v{lane}, 4, 1")
    a.I(f"v_lshlrev_b32 v{tmp}, 2, v{tmp}")
    a.I(f"v_and_b32 v{tmp2}, 7, v{lane}")
    a.I(f"v_xor_b32 v{tmp}, v{tmp}, v{tmp2}")
    a.I(f"v_lshl_add_u32 v{dst}, v{tmp}, 4, v{dst}")

_lab = [0]
def lab(p):
    _lab[0] += 1
    return f"L_{p}{_lab[0]}"

def poll(a, srd_reg, nlanes, voff, vtmp, soff, slp=1):
    l0, l1 = lab("poll"), lab("polld")
    if nlanes < 64:
        a.I(f"s_mov_b32 exec_lo, {hex((1 << nlanes) - 1)}")
        a.I("s_mov_b32 exec_hi, 0")
    a.I("s_mov_b32 s50, 0x40000")
    a.L(l0)
    a.I(f"buffer_load_dword v{vtmp}, v{voff}, {S4(srd_reg)}, {soff} offen sc1")
    a.I("s_waitcnt vmcnt(0)")
    a.I(f"v_cmp_ne_u32 vcc, s{S_NONCE}, v{vtmp}")
    a.I(f"s_cbranch_vccz {l1}")
    a.I("s_sub_u32 s50, s50, 1")
    a.I("s_cmp_eq_u32 s50, 0")
    a.I(f"s_cbranch_scc1 {l1}")
    a.I(f"s_sleep {slp}")
    a.I(f"s_branch {l0}")
    a.L(l1)
    a.I("s_mov_b64 exec, -1")

def lds_spin(a, addr, target, vaddr, vtmp, slp=1):
    l0, l1 = lab("spin"), lab("spind")
    a.I(f"v_mov_b32 v{vaddr}, {addr}")
    a.I("s_mov_b32 s50, 0x400000")
    a.L(l0)
    a.I(f"ds_read_b32 v{vtmp}, v{vaddr}")
    a.I("s_waitcnt lgkmcnt(0)")
    a.I(f"v_readfirstlane_b32 s51, v{vtmp}")
    a.I("s_sub_u32 s50, s50, 1")
    a.I(f"s_cmp_ge_u32 s51, {target}")
    a.I(f"s_cbranch_scc1 {l1}")
    a.I("s_cmp_eq_u32 s50, 0")
    a.I(f"s_cbranch_scc1 {l1}")
    a.I(f"s_sleep {slp}")
    a.I(f"s_branch {l0}")
    a.L(l1)

def lds_add1(a, addr, vaddr, vtmp):
    a.I(f"v_mov_b32 v{vaddr}, {addr}")
    a.I(f"v_mov_b32 v{vtmp}, 1")
    a.I("s_mov_b64 exec, 1")
    a.I(f"ds_add_u32 v{vaddr}, v{vtmp}")
    a.I("s_mov_b64 exec, -1")

def flag_store(a, soff, v0_, v1_):
    a.I(f"v_mov_b32 v{v0_}, s{S_NONCE}")
    a.I(f"v_mov_b32 v{v1_}, 0")
    a.I("s_mov_b64 exec, 1")
    a.I(f"buffer_store_dword v{v0_}, v{v1_}, {S4(RC)}, {soff} offen sc1")
    a.I("s_mov_b64 exec, -1")

def prologue(a):
    a.raw(f".globl {KN}\n.p2align 8\n.type {KN},@function\n{KN}:")
    if STAMPS:
        a.I("s_memrealtime s[94:95]")
        a.I("s_memtime s[92:93]")
    a.I("s_cmp_ge_u32 s2, 256")
    a.I("s_cbranch_scc1 L_end")
    a.I("s_load_dwordx4 s[4:7], s[0:1], 0")
    a.I("s_load_dwordx2 s[8:9], s[0:1], 16")
    a.I("s_load_dwordx4 s[12:15], s[0:1], 32")
    a.I("s_load_dwordx4 s[16:19], s[0:1], 48")
    a.I("s_load_dwordx4 s[20:23], s[0:1], 64")
    a.I("s_load_dwordx4 s[24:27], s[0:1], 80")
    a.I("v_lshrrev_b32 v2, 6, v0")
    a.I("v_and_b32 v1, 63, v0")
    a.I(f"v_readfirstlane_b32 s{S_W}, v2")
    if OPT.get("codeearly", 1):
        a.I("s_getpc_b64 s[52:53]")
        a.L("L_pc0")
        a.I(f"s_sub_u32 s52, s52, L_pc0-{KN}")
        a.I("s_subb_u32 s53, s53, 0")
        a.I("v_lshlrev_b32 v3, 7, v0")
        a.I(f"v_min_u32 v3, L_code_end-{KN}-4, v3")
        a.I(f"s_cmp_ge_u32 s{S_W}, 3")
        a.I("s_cbranch_scc1 L_pc1")
        a.I("global_load_dword v31, v3, s[52:53]")
        a.L("L_pc1")
    if STAMPS:
        a.I("v_mov_b32 v6, 0"); a.I("v_mov_b32 v7, 0")
    a.I("s_and_b32 s52, s2, 7")
    a.I("s_lshr_b32 s53, s2, 3")
    if OPT.get("map84"):
        a.I("s_lshr_b32 s54, s52, 1")
        a.I("s_lshl_b32 s54, s54, 3")
        a.I("s_lshr_b32 s55, s53, 2")
        a.I(f"s_add_u32 s{S_RB}, s54, s55")
        a.I("s_and_b32 s54, s52, 1")
        a.I("s_lshl_b32 s54, s54, 2")
        a.I("s_and_b32 s55, s53, 3")
        a.I(f"s_add_u32 s{S_CG}, s54, s55")
    else:
        a.I("s_lshr_b32 s54, s52, 2")
        a.I("s_lshl_b32 s54, s54, 4")
        a.I("s_lshr_b32 s55, s53, 1")
        a.I(f"s_add_u32 s{S_RB}, s54, s55")
        a.I("s_and_b32 s54, s52, 3")
        a.I("s_lshl_b32 s54, s54, 1")
        a.I("s_and_b32 s55, s53, 1")
        a.I(f"s_add_u32 s{S_CG}, s54, s55")
    a.I(f"s_mul_i32 s54, s{S_CG}, 6")
    a.I(f"s_min_u32 s{S_START}, s54, 37")
    a.I(f"s_lshl_b32 s{S_HD}, s52, 2")
    a.I("s_and_b32 s54, s53, 3")
    a.I(f"s_add_u32 s{S_HD}, s{S_HD}, s54")
    a.I(f"s_lshr_b32 s{S_QB}, s2, 5")
    a.I("s_waitcnt lgkmcnt(0)")
    if STAMPS:
        _stamp_names.append("entry")
        a.I("v_writelane_b32 v6, s92, 0")
        a.I("v_writelane_b32 v7, s94, 0")
    stamp(a, "karg")
    a.I(f"s_cmp_ge_u32 s{S_W}, 8")
    a.I("s_cbranch_scc1 L_aux")
    a.I(f"s_cmp_lt_u32 s{S_W}, 4")
    a.I("s_cbranch_scc1 L_cons")

GATEPOS = 3
def producer(a, aux):
    T = "a" if aux else "p"
    if OPT.get("pprio"): a.I(f"s_setprio {OPT['pprio']}")
    a.I(f"s_sub_u32 s67, s{S_W}, 4")
    a.I(f"s_lshl_b32 s54, s{S_RB}, 16")
    srd_off(a, RA, S_AX, "s54", 65536)
    srd(a, RB, S_WQKV, 512*3072)
    a.I("v_lshrrev_b32 v2, 3, v1")
    a.I("s_lshl_b32 s54, s67, 3")
    a.I("v_add_u32 v2, s54, v2")
    a.I("v_lshrrev_b32 v3, 4, v1")
    a.I("s_and_b32 s54, s67, 1")
    a.I("s_lshl_b32 s54, s54, 2")
    a.I("v_add_u32 v3, s54, v3")
    a.I("v_and_b32 v4, 7, v1")
    a.I("v_xor_b32 v3, v3, v4")
    a.I("v_lshlrev_b32 v3, 4, v3")
    a.I("v_lshl_add_u32 v12, v2, 10, v3")
    a.I("s_lshl_b32 s68, s67, 10")
    def woffs(dst, pitch, segshift):
        for j in range(3):
            a.I(f"v_add_u32 v2, {64*j}, v1")
            a.I("v_mul_u32_u24 v3, 171, v2")
            a.I("v_lshrrev_b32 v3, 12, v3")
            a.I("v_mul_u32_u24 v4, 24, v3")
            a.I("v_sub_u32 v2, v2, v4")
            a.I("v_lshrrev_b32 v4, 3, v2")
            a.I("v_and_b32 v2, 7, v2")
            a.I("v_bfe_u32 v5, v3, 1, 1")
            a.I("v_lshlrev_b32 v5, 2, v5")
            a.I("v_xor_b32 v2, v2, v5")
            a.I("v_lshlrev_b32 v2, 4, v2")
            a.I(f"v_mul_u32_u24 v5, {pitch}, v3")
            a.I(f"v_lshl_add_u32 v5, v4, {segshift}, v5")
            a.I(f"v_add_u32 v{dst+j}, v5, v2")
    woffs(13, 3072, 10)
    a.I("s_mul_i32 s69, s67, 3072")
    a.I("s_add_u32 s69, s69, 0x10000")
    a.I(f"s_lshl_b32 s70, s{S_CG}, 7")
    a.I(f"s_mul_i32 s71, s67, {8*3072}")
    a.I("s_add_u32 s70, s70, s71")
    def pre_setup(item):
        k, c = item
        if k == "X":
            a.I(f"s_add_u32 m0, s68, {c*8192}")
            a.I(f"s_movk_i32 s81, {c*128}")
        else:
            a.I(f"s_add_u32 s82, s70, {c*64*3072}" if c < 8 else f"s_add_u32 s82, s71, {(c-8)*64*2752}")
            a.I(f"s_add_u32 m0, s69, {(c&3)*24576}")
    def issue_x(c, done=False):
        if OPT.get("p1noprod"): return
        if not done:
            a.I(f"s_add_u32 m0, s68, {c*8192}")
            a.I(f"s_movk_i32 s81, {c*128}")
        a.I(f"buffer_load_dwordx4 v12, {S4(RA)}, s81 offen lds")
    def issue_w(c, done=False):
        if OPT.get("p1noprod"): return
        if c < 8:
            if not done: a.I(f"s_add_u32 s82, s70, {c*64*3072}")
            vo, R = 13, RB
        else:
            if not done: a.I(f"s_add_u32 s82, s71, {(c-8)*64*2752}")
            vo, R = 16, RC
        for j in range(3):
            if not (done and j == 0):
                a.I(f"s_add_u32 m0, s69, {(c&3)*24576 + j*1024}")
                a.I("s_nop 0")
            a.I(f"buffer_load_dwordx4 v{vo+j}, {S4(R)}, s82 offen lds")
    sched = OPT.get("sched", 0)
    if sched == 0:
        pre = [("X",0),("W",0),("X",1),("W",1),("X",2),("W",2)]
        post = {c: ([("X",c+3)] if c+3 < 8 else []) + ([("W",c+3)] if c+3 < 16 else []) for c in range(16)}
    elif sched == 1:
        pre = [("X",0),("W",0),("X",1),("W",1),("X",2),("W",2),("X",3),("W",3),("X",4),("X",5),("X",6),("X",7)]
        post = {c: ([("W",c+3)] if (c >= 1 and c+3 < 16) else []) for c in range(16)}
    elif sched == 2:
        pre = [("X",0),("W",0),("X",1),("W",1),("X",2),("W",2),("X",3),("W",3)]
        post = {c: ([("W",c+3)] if (c >= 1 and c+3 < 16) else []) for c in range(16)}
        post[0] = [("X",4),("X",5),("X",6),("X",7)]
    fifo = []
    def do(item, done=False):
        k, c = item
        if k == "X":
            if OPT.get("skipx"): fifo.append((item, 0)); return
            issue_x(c, done); fifo.append((item, 1))
        else:
            if OPT.get("skipw") and c < 8: fifo.append((item, 0)); return
            issue_w(c, done); fifo.append((item, 3))
    for it in pre: do(it)
    if OPT.get("pfprod") and not aux:
        a.I(f"s_mov_b32 s89, s{S_W}")
        a.I(f"s_sub_u32 s{S_W}, s{S_W}, 4")
        l2_prefetch(a, 0)
        a.I(f"s_mov_b32 s{S_W}, s89")
        fifo.append(("pf", 2))
    stamp(a, "issued3")
    nside = 0
    if aux:
        nside = aux_side_issue(a)
    srd(a, RC, S_W1, 512*2752)
    if OPT.get("w1perm", 0):
        for j in range(3):
            a.I(f"v_add_u32 v2, {64*j}, v1")
            a.I("v_mul_u32_u24 v3, 171, v2")
            a.I("v_lshrrev_b32 v3, 12, v3")
            a.I("v_mul_u32_u24 v4, 24, v3")
            a.I("v_sub_u32 v2, v2, v4")
            a.I("v_lshrrev_b32 v4, 2, v2")
            a.I("v_and_b32 v2, 3, v2")
            a.I("v_bfe_u32 v5, v3, 1, 1")
            a.I("v_xor_b32 v4, v4, v5")
            a.I("v_add_u32 v5, 1, v4")
            a.I("v_cmp_eq_u32 vcc, 4, v4")
            a.I("s_nop 1")
            a.I("v_cndmask_b32_e64 v5, v5, 0, vcc")
            a.I("v_cmp_eq_u32 vcc, 5, v4")
            a.I("s_nop 1")
            a.I("v_cndmask_b32_e64 v5, v5, 5, vcc")
            a.I(f"v_add_u32 v19, s{S_START}, v3")
            a.I("v_and_b32 v19, 1, v19")
            a.I("v_cmp_eq_u32 vcc, 1, v19")
            a.I("s_nop 1")
            a.I("v_cndmask_b32 v4, v4, v5, vcc")
            a.I("v_lshlrev_b32 v4, 6, v4")
            a.I("v_lshl_add_u32 v4, v2, 4, v4")
            a.I("v_mul_u32_u24 v5, 2752, v3")
            a.I(f"v_add_u32 v{16+j}, v5, v4")
    else:
        woffs(16, 2752, 7)
    a.I(f"s_lshl_b32 s71, s{S_START}, 6")
    a.I(f"s_mul_i32 s72, s67, {8*2752}")
    a.I("s_add_u32 s71, s71, s72")
    fap = OPT.get("fapos", 2)
    assert fap >= 2
    for c in range(16):
        need = [("W", c)] + ([("X", c)] if c < 8 else [])
        idx = max(i for i, (it, _) in enumerate(fifo) if it in need)
        allow = sum(k for _, k in fifo[idx+1:])
        if c == 0 and STAMPS and OPT.get("fine"): a.I("s_mov_b32 s87, 24")
        stamp_dyn(a)
        early = OPT.get("early", 1) and not STAMPS and len(post[c]) > 0 and not OPT.get("p1noprod")
        if early:
            pre_setup(post[c][0])
        a.I(f"s_waitcnt vmcnt({allow})")
        stamp_dyn(a)
        a.I("s_barrier")
        for n_, it in enumerate(post[c]): do(it, early and n_ == 0)
        if aux and c == 2:
            fifo.append(("side", aux_side_loads(a)))
        if aux and c == 6:
            aux_gate(a)
            fifo.append(("g", 1))
        if aux and c == 7:
            fifo.append(("nonce", aux_nonce_issue(a)))
        if aux and c == 10:
            aux_zero_misc(a)
        if aux and c == 11:
            aux_nonce_take(a)
        if aux and c == 12:
            aux_share_nonce(a)
        if aux and c == 15:
            aux_fa_probe(a)
        if aux and c == 9 + fap:
            aux_publish_fa(a)
    a.I("s_barrier")
    if aux:
        aux_after_e1(a)
    else:
        if OPT.get("pprio"): a.I("s_setprio 0")
        a.I("s_branch L_attn")

def l2_prefetch(a, part):
    a.I("s_and_b32 s52, s2, 7")
    a.I("s_lshr_b32 s53, s2, 3")
    a.I("s_lshl_b32 s54, s53, 4")
    a.I(f"s_lshl_b32 s55, s{S_W}, 2")
    a.I("s_add_u32 s56, s54, s55")
    if OPT.get("pfglob") and part == 0:
        lg = lab("pfg")
        a.I("v_lshlrev_b32 v20, 7, v1")
        a.I(f"s_cmp_eq_u32 s{S_W}, 0")
        a.I(f"s_cbranch_scc0 {lg}a")
        srd(a, RC, S_AX, 2*MB)
        a.I("s_lshl_b32 s54, s2, 13")
        a.I(f"buffer_load_dword v24, v20, {S4(RC)}, s54 offen")
        a.I(f"s_branch {lg}d")
        a.L(f"{lg}a")
        a.I(f"s_cmp_eq_u32 s{S_W}, 1")
        a.I(f"s_cbranch_scc0 {lg}b")
        srd(a, RC, S_WQKV, 512*3072)
        a.I("s_mul_i32 s54, s2, 6144")
        a.I("s_mov_b32 exec_hi, 0xffff")
        a.I(f"buffer_load_dword v24, v20, {S4(RC)}, s54 offen")
        a.I("s_mov_b64 exec, -1")
        a.I(f"s_branch {lg}d")
        a.L(f"{lg}b")
        a.I(f"s_cmp_eq_u32 s{S_W}, 2")
        a.I(f"s_cbranch_scc0 {lg}d")
        srd(a, RC, S_W1, 512*2752)
        a.I("s_mul_i32 s54, s2, 5504")
        a.I("s_mov_b32 exec_hi, 0xfff")
        a.I(f"buffer_load_dword v24, v20, {S4(RC)}, s54 offen")
        a.I("s_mov_b64 exec, -1")
        a.L(f"{lg}d")
        if OPT["pfglob"] == 1: return
        OPT["nopfx"] = 1 if OPT["pfglob"] == 2 else 0
    if OPT.get("map84"):
        if part == 0:
            srd(a, RC, S_AX, 2*MB)
            a.I("s_lshr_b32 s54, s52, 1")
            a.I("s_lshl_b32 s54, s54, 9")
            a.I("s_add_u32 s54, s54, s56")
            a.I("s_lshl_b32 s54, s54, 10")
            a.I("v_lshlrev_b32 v20, 7, v1")
            a.I("s_mov_b32 exec_hi, 0")
            a.I(f"buffer_load_dword v24, v20, {S4(RC)}, s54 offen")
            a.I("s_mov_b64 exec, -1")
            srd(a, RC, S_WQKV, 512*3072)
            a.I("s_mul_i32 s54, s56, 3072")
            a.I("s_and_b32 s55, s52, 1")
            a.I("s_lshl_b32 s55, s55, 9")
            a.I("s_add_u32 s54, s54, s55")
            a.I("v_lshrrev_b32 v21, 4, v1")
            a.I("v_mul_u32_u24 v21, 3072, v21")
            a.I("v_bfe_u32 v22, v1, 2, 2")
            a.I("v_min_u32 v22, 2, v22")
            a.I("v_lshl_add_u32 v21, v22, 10, v21")
            a.I("v_and_b32 v22, 3, v1")
            a.I("v_lshl_add_u32 v21, v22, 7, v21")
            a.I(f"buffer_load_dword v25, v21, {S4(RC)}, s54 offen")
        else:
            srd(a, RC, S_W1, 512*2752)
            a.I("s_and_b32 s55, s52, 1")
            a.I("s_mul_i32 s55, s55, 1536")
            a.I("s_mul_i32 s54, s56, 2752")
            a.I("s_add_u32 s54, s54, s55")
            a.I("v_lshrrev_b32 v21, 4, v1")
            a.I("v_mul_u32_u24 v21, 2752, v21")
            a.I("v_and_b32 v22, 15, v1")
            a.I("v_min_u32 v22, 12, v22")
            a.I("v_lshl_add_u32 v21, v22, 7, v21")
            a.I(f"buffer_load_dword v26, v21, {S4(RC)}, s54 offen")
        return
    if part == 2:
        a.I(f"s_cmp_lg_u32 s{S_W}, 0")
        a.I("s_cbranch_scc1 L_pf2")
        srd(a, RC, S_WQKV, 512*3072)
        a.I("s_lshl_b32 s54, s53, 3")
        a.I("s_add_u32 s54, s54, 256")
        a.I("s_mul_i32 s54, s54, 3072")
        a.I("s_and_b32 s55, s52, 3")
        a.I("s_lshl_b32 s55, s55, 8")
        a.I("s_add_u32 s54, s54, s55")
        a.I("v_lshrrev_b32 v21, 3, v1")
        a.I("v_mul_u32_u24 v21, 3072, v21")
        a.I("v_bfe_u32 v22, v1, 1, 2")
        a.I("v_min_u32 v22, 2, v22")
        a.I("v_lshl_add_u32 v21, v22, 10, v21")
        a.I("v_and_b32 v22, 1, v1")
        a.I("v_lshl_add_u32 v21, v22, 7, v21")
        a.I(f"buffer_load_dword v25, v21, {S4(RC)}, s54 offen")
        a.L("L_pf2")
    elif part == 0:
        G = OPT.get("pfg", 128)
        sh = {128: 7, 64: 6, 32: 5}[G]
        srd(a, RC, S_AX, 2*MB)
        a.I("s_lshr_b32 s54, s52, 2")
        a.I("s_lshl_b32 s54, s54, 10")
        a.I("s_lshl_b32 s55, s53, 5")
        a.I("s_add_u32 s54, s54, s55")
        a.I(f"s_lshl_b32 s55, s{S_W}, 3")
        a.I("s_add_u32 s54, s54, s55")
        a.I("s_lshl_b32 s54, s54, 10")
        if OPT.get("pftrim", 0):
            a.I("v_and_b32 v20, 7, v1")
            a.I("v_max_u32 v20, 3, v20")
            a.I("v_lshlrev_b32 v20, 7, v20")
            a.I("v_lshrrev_b32 v21, 3, v1")
            a.I("v_lshl_add_u32 v20, v21, 10, v20")
        else:
            a.I(f"v_lshlrev_b32 v20, {sh}, v1")
        for i in range(0 if OPT.get("nopfx") else 8192 // (64*G)):
            a.I(f"buffer_load_dword v24, v20, {S4(RC)}, s54 offen")
            a.I(f"s_add_u32 s54, s54, {64*G}")
        if OPT.get("pftrim", 0):
            a._pfl = lab("pfs")
            a.I("s_cmp_lt_u32 s53, 12")
            a.I(f"s_cbranch_scc1 {a._pfl}")
        srd(a, RC, S_WQKV, 512*3072)
        a.I("s_mul_i32 s54, s56, 3072")
        a.I("s_and_b32 s55, s52, 3")
        a.I("s_lshl_b32 s55, s55, 8")
        a.I("s_add_u32 s54, s54, s55")
        per = 256 // G
        a.I("v_lshrrev_b32 v21, 4, v1")
        a.I("v_mul_u32_u24 v21, 3072, v21")
        a.I("v_and_b32 v22, 15, v1")
        if G == 64:
            a.I("v_lshrrev_b32 v23, 2, v22")
            a.I("v_min_u32 v23, 2, v23")
            a.I("v_lshl_add_u32 v21, v23, 10, v21")
            a.I("v_and_b32 v22, 3, v22")
            a.I("v_lshl_add_u32 v21, v22, 6, v21")
            a.I(f"buffer_load_dword v25, v21, {S4(RC)}, s54 offen")
        elif G == 32:
            a.I("v_lshrrev_b32 v23, 3, v22")
            a.I("v_lshl_add_u32 v21, v23, 10, v21")
            a.I("v_and_b32 v22, 7, v22")
            a.I("v_lshl_add_u32 v21, v22, 5, v21")
            a.I(f"buffer_load_dword v25, v21, {S4(RC)}, s54 offen")
            a.I(f"buffer_load_dword v25, v21, {S4(RC)}, s54 offen offset:2048")
        else:
            a.I("v_lshrrev_b32 v23, 1, v22")
            a.I("v_min_u32 v23, 2, v23")
            a.I("v_lshl_add_u32 v21, v23, 10, v21")
            a.I("v_and_b32 v22, 1, v22")
            a.I("v_lshl_add_u32 v21, v22, 7, v21")
            a.I(f"buffer_load_dword v25, v21, {S4(RC)}, s54 offen")
        if OPT.get("pftrim", 0):
            a.L(a._pfl)
    else:
        a.I(f"s_cmp_ge_u32 s{S_W}, 2")
        a.I("s_cbranch_scc1 L_pf1")
        srd(a, RC, S_W1, 512*2752)
        a.I("s_and_b32 s55, s52, 3")
        a.I("s_mul_i32 s55, s55, 12")
        a.I("s_min_u32 s55, s55, 31")
        a.I("s_lshl_b32 s55, s55, 6")
        a.I("s_lshl_b32 s54, s53, 4")
        a.I(f"s_lshl_b32 s56, s{S_W}, 3")
        a.I("s_add_u32 s54, s54, s56")
        a.I("s_mul_i32 s54, s54, 2752")
        a.I("s_add_u32 s54, s54, s55")
        a.I("v_lshrrev_b32 v21, 3, v1")
        a.I("v_mul_u32_u24 v21, 2752, v21")
        a.I("v_and_b32 v22, 7, v1")
        a.I("v_lshl_add_u32 v21, v22, 7, v21")
        a.I(f"buffer_load_dword v26, v21, {S4(RC)}, s54 offen")
        a.L("L_pf1")

def consumer(a):
    a.L("L_cons")
    H, XA, WA, ACC, B1, FA, FB = 2, 8, 12, 32, 80, 104, 136
    if not OPT.get("nopf") and not OPT.get("pflate") and not OPT.get("pfprod"):
        l2_prefetch(a, OPT.get("pfmode", 0))
    a.I(f"v_lshrrev_b32 v{H}, 5, v1")
    a.I(f"s_and_b32 s63, s{S_W}, 1")
    a.I(f"s_lshr_b32 s64, s{S_W}, 1")
    srd(a, RD, S_B1, 2752)
    a.I(f"s_add_u32 s54, s{S_START}, s63")
    a.I("s_lshl_b32 s54, s54, 6")
    a.I(f"v_lshlrev_b32 v3, 3, v{H}")
    for s in range(3):
        for q in range(4):
            r = B1 + (s*4+q)*2
            a.I(f"buffer_load_dwordx2 v[{r}:{r+1}], v3, {S4(RD)}, s54 offen offset:{s*128+q*16}")
    for i in range(48):
        a.I(f"v_mov_b32 v{ACC+i}, 0")
    a.I("v_and_b32 v16, 31, v1")
    a.I("v_bfe_u32 v17, v1, 1, 3")
    a.I("s_lshl_b32 s54, s64, 5")
    a.I("v_add_u32 v16, s54, v16")
    a.I("v_lshlrev_b32 v16, 7, v16")
    a.I(f"v_xor_b32 v17, v17, v{H}")
    for ks in range(4):
        a.I(f"v_xor_b32 v18, {2*ks}, v17")
        a.I(f"v_lshl_add_u32 v{XA+ks}, v18, 4, v16")
    tr_lane_addr(a, WA, 1, 16, 17, 8, 384)
    a.I("s_lshl_b32 s54, s63, 6")
    a.I(f"v_xor_b32 v{WA}, s54, v{WA}")
    a.I(f"v_add_u32 v{WA}, 0x10000, v{WA}")
    a.I(f"v_add_u32 v{WA+1}, 49152, v{WA}")
    WF1 = [14, 15, 28, 29, 30, 31]
    if OPT.get("w1perm", 0):
        a.I("v_bfe_u32 v16, v1, 2, 2")
        a.I(f"v_lshl_add_u32 v17, v{H}, 3, v16")
        a.I("v_mul_u32_u24 v17, 384, v17")
        a.I("v_bfe_u32 v18, v1, 4, 1")
        a.I("v_lshlrev_b32 v18, 1, v18")
        a.I("v_bfe_u32 v19, v1, 1, 1")
        a.I("v_add_u32 v18, v18, v19")
        a.I("v_lshl_add_u32 v17, v18, 4, v17")
        a.I("v_and_b32 v18, 1, v1")
        a.I("v_lshl_add_u32 v17, v18, 3, v17")
        a.I("v_add_u32 v17, 0x10000, v17")
        a.I(f"v_add_u32 v18, s{S_START}, v16")
        a.I("v_and_b32 v18, 1, v18")
        a.I("v_cmp_eq_u32 vcc, 1, v18")
        a.I("v_bfe_u32 v19, v1, 3, 1")
        inv = [4, 0, 1, 2, 3, 5]
        for s_ in range(3):
            a.I(f"s_cmp_eq_u32 s63, 0")
            a.I(f"s_cselect_b32 s54, {2*s_}, {2*s_+1}")
            a.I(f"s_cselect_b32 s55, {inv[2*s_]}, {inv[2*s_+1]}")
            a.I(f"v_mov_b32 v26, s54")
            a.I(f"v_mov_b32 v27, s55")
            a.I(f"v_cndmask_b32 v26, v26, v27, vcc")
            a.I(f"v_xor_b32 v26, v26, v19")
            a.I(f"v_lshl_add_u32 v{WF1[s_]}, v26, 6, v17")
            a.I(f"v_add_u32 v{WF1[3+s_]}, 49152, v{WF1[s_]}")

    def reads(b, G, F, qkv=True):
        out = []
        if OPT.get("p1nocons"): return ["s_nop 0"]
        wv = WA + (b >> 1)
        for l in range(2):
            ks = 2*G + l
            out.append(f"ds_read_b128 {vr(F+4*l,4)}, v{XA+ks} offset:{b*8192}")
            for s in range(3):
                for rd in range(2):
                    if qkv or not OPT.get("w1perm", 0):
                        out.append(f"ds_read_b64_tr_b16 {vr(F+8+12*l+4*s+2*rd,2)}, v{wv} offset:{(b&1)*24576 + ks*6144 + rd*1536 + s*128}")
                    else:
                        out.append(f"ds_read_b64_tr_b16 {vr(F+8+12*l+4*s+2*rd,2)}, v{WF1[3*(b>>1)+s]} offset:{(b&1)*24576 + ks*6144 + rd*1536}")
        return out
    def mfmas(F, qkv):
        out = []
        if OPT.get("p1nocons") or OPT.get("p1nomfma"): return ["s_nop 0"]
        for l in range(2):
            for s in range(3):
                X, W = F+4*l, F+8+12*l+4*s
                out.append(MF(ACC+16*s, X, W, ACC+16*s) if (qkv and s == 2) else MF(ACC+16*s, W, X, ACC+16*s))
        return out
    def inter(mf, rd):
        out = []
        per = OPT.get("iper", [4, 4, 3, 3, 0, 0])
        if len(mf) != 6: return mf + rd
        k = 0
        for i, m in enumerate(mf):
            out.append(m)
            out += rd[k:k+per[i]]
            k += per[i]
        assert k >= len(rd)
        return out
    def stage_loop(tag, qkv):
        a.I("s_mov_b32 s65, 0x8000")
        a.L(f"L_loop_{tag}")
        fap = OPT.get("fapos", 2)
        for b in range(4):
            a.I("s_waitcnt lgkmcnt(0)")
            a.I(J(inter(mfmas(FA, qkv), reads(b, 1, FB, qkv))))
            if (not qkv) and b == (fap & 3):
                if fap >= 4:
                    a.I("s_cmp_lt_i32 s65, 0")
                    a.I(f"s_cbranch_scc0 L_nodrain")
                a.I("s_waitcnt vmcnt(0)")
                if fap >= 4: a.L("L_nodrain")
            a.I("s_waitcnt lgkmcnt(0)")
            if b == 3:
                if not qkv:
                    a.I("s_cmp_lt_i32 s65, 0")
                    a.I(f"s_cbranch_scc1 L_last_{tag}")
                for ks in range(4):
                    a.I(f"v_add_u32 v{XA+ks}, s65, v{XA+ks}")
            stamp_dyn(a)
            a.I("s_barrier")
            stamp_dyn(a)
            if qkv and b == 3:
                a.I("s_cmp_lt_i32 s65, 0")
                a.I("s_cbranch_scc1 L_qtail")
            a.I(J(inter(mfmas(FB, qkv), reads((b+1) % 4, 0, FA, qkv))))
        if qkv:
            a.I("s_mov_b32 s65, 0xffff8000")
            a.I(f"s_branch L_loop_{tag}")
            a.L("L_qtail")
            a.I(J(inter(mfmas(FB, qkv), reads(0, 0, FA, False))))
        else:
            a.I("s_mov_b32 s65, 0xffff8000")
            a.I(f"s_branch L_loop_{tag}")
        if not qkv:
            a.L(f"L_last_{tag}")
            a.I(J(mfmas(FB, qkv)))

    if OPT.get("pflate"):
        for i in range(OPT["pflate"]):
            a.I("s_sleep 8")
        l2_prefetch(a, 0)
    if OPT.get("pfw1early"):
        l2_prefetch(a, 1)
    a.I("s_barrier")
    stamp(a, "B0")
    if STAMPS and OPT.get("fine"): a.I("s_mov_b32 s87, 24")
    if not OPT.get("nopf") and not OPT.get("pfw1early"):
        l2_prefetch(a, 1)
    a.I(J(reads(0, 0, FA)))
    stage_loop("q", True)
    stamp(a, "qloop")
    srd(a, RA, S_WS, VF + 2*MB)
    a.I(f"s_lshl_b32 s54, s{S_RB}, 1")
    a.I("s_add_u32 s54, s54, s64")
    a.I(f"s_lshl_b32 s55, s{S_CG}, 2")
    a.I("s_lshl_b32 s56, s63, 1")
    a.I("s_add_u32 s55, s55, s56")
    a.I("s_lshl_b32 s55, s55, 6")
    a.I("s_add_u32 s54, s54, s55")
    a.I("s_lshl_b32 s54, s54, 10")
    a.I("v_lshlrev_b32 v3, 4, v1")
    a.I("v_bfe_u32 v4, v1, 4, 1")
    a.I("v_lshlrev_b32 v4, 16, v4")
    a.I(f"v_lshl_add_u32 v4, v{H}, 8, v4")
    a.I("v_and_b32 v5, 15, v1")
    a.I("v_lshl_add_u32 v4, v5, 4, v4")
    a.I(f"s_mov_b32 s56, {hex(f2u(QSCALE))}")
    a.I("s_waitcnt vmcnt(0)")
    a.I("s_nop 4")
    for idx, s in enumerate((1, 2, 0)):
        d = ACC + 16*s
        if s == 0:
            for i in range(16):
                a.I(f"v_mul_f32 v{d+i}, s56, v{d+i}")
        for j in range(8):
            a.I(f"v_cvt_pk_bf16_f32 v{d+j}, v{d+2*j}, v{d+2*j+1}")
        if s < 2:
            for hh in range(2):
                a.I(f"s_add_u32 s55, s54, {(KF if s else QF) + hh*65536}")
                a.I(f"buffer_store_dwordx4 {vr(d+4*hh,4)}, v3, {S4(RA)}, s55 offen sc1")
        else:
            a.I(f"s_add_u32 s55, s54, {VF}")
            for u in range(2):
                a.I(f"buffer_store_dwordx4 {vr(d+4*u,4)}, v4, {S4(RA)}, s55 offen offset:{u*512} sc1")
    a.I("s_nop 1")
    for s in range(3):
        for q in range(4):
            r = B1 + (s*4+q)*2
            d = ACC + s*16 + q*4
            a.I(f"v_lshlrev_b32 v{d}, 16, v{r}")
            a.I(f"v_and_b32 v{d+1}, 0xffff0000, v{r}")
            a.I(f"v_lshlrev_b32 v{d+2}, 16, v{r+1}")
            a.I(f"v_and_b32 v{d+3}, 0xffff0000, v{r+1}")
    stage_loop("f", False)
    a.I("s_barrier")
    stamp(a, "floop")
    srd_off(a, RA, S_WS, HF, HF_SIZE)
    a.I(f"s_lshl_b32 s54, s{S_RB}, 1")
    a.I("s_add_u32 s54, s54, s64")
    a.I(f"s_add_u32 s55, s{S_START}, s63")
    a.I("s_lshl_b32 s55, s55, 7")
    a.I("s_add_u32 s54, s54, s55")
    a.I("s_lshl_b32 s54, s54, 10")
    a.I("v_lshlrev_b32 v3, 4, v1")
    a.I("s_nop 4")
    for s in range(3):
        d = ACC + 16*s
        for i in range(16):
            a.I(f"v_max_f32 v{d+i}, 0, v{d+i}")
        for i in range(16):
            a.I(f"v_mul_f32 v{d+i}, v{d+i}, v{d+i}")
        for j in range(8):
            a.I(f"v_cvt_pk_bf16_f32 v{d+j}, v{d+2*j}, v{d+2*j+1}")
        for uu in range(2):
            a.I(f"s_add_u32 s55, s54, {(4*s+uu)*65536}")
            a.I(f"buffer_store_dwordx4 {vr(d+4*uu,4)}, v3, {S4(RA)}, s55 offen sc1")
    a.I("s_nop 1")
    a.I("s_branch L_attn")

def aux_side_issue(a):
    a.I("s_sub_u32 s66, s67, 4")
    a.I(f"s_lshl_b32 s54, s2, 2")
    a.I("s_or_b32 s54, s54, s66")
    a.I("s_cmp_lg_u32 s54, 0")
    a.I("s_cbranch_scc1 L_aux1")
    srd(a, RD, S_DBG, 256)
    a.I("s_memrealtime s[54:55]")
    a.I("s_waitcnt lgkmcnt(0)")
    a.I("s_or_b32 s85, s54, 1")
    a.I("v_mov_b32 v8, s85")
    a.I("v_mov_b32 v10, 0")
    a.I("s_mov_b64 exec, 1")
    a.I(f"buffer_store_dword v8, v10, {S4(RD)}, 0 offen sc1")
    a.I("s_mov_b64 exec, -1")
    a.L("L_aux1")
    a.I(f"s_lshl_b32 s54, s{S_RB}, 6")
    a.I(f"s_lshl_b32 s55, s{S_CG}, 3")
    a.I("s_add_u32 s54, s54, s55")
    a.I("s_lshl_b32 s55, s66, 1")
    a.I("s_add_u32 s86, s54, s55")
    return 0

def aux_side_loads(a):
    a.I("s_lshl_b32 s54, s86, 10")
    srd_off(a, RD, S_AX, "s54", 2048)
    a.I("v_and_b32 v2, 31, v1")
    a.I("v_lshlrev_b32 v2, 5, v2")
    a.I("v_lshrrev_b32 v3, 5, v1")
    a.I("v_lshl_add_u32 v4, v3, 10, v2")
    for i in range(2):
        a.I(f"buffer_load_dwordx4 {vr(32+4*i,4)}, v4, {S4(RD)}, 0 offen offset:{16*i}")
    srd(a, RD, S_GW, 1024)
    for i in range(2):
        a.I(f"buffer_load_dwordx4 {vr(40+4*i,4)}, v2, {S4(RD)}, 0 offen offset:{16*i}")
    n = 4
    if OPT.get("codepf", 1) and not OPT.get("codeearly", 1):
        a.I("s_getpc_b64 s[52:53]")
        a.L("L_pc")
        a.I(f"s_sub_u32 s52, s52, L_pc-{KN}")
        a.I("s_subb_u32 s53, s53, 0")
        a.I("s_mul_i32 s54, s66, 6144")
        a.I("v_lshlrev_b32 v5, 7, v1")
        a.I("v_add_u32 v5, s54, v5")
        a.I(f"v_min_u32 v5, L_code_end-{KN}-4, v5")
        a.I("s_mov_b32 exec_hi, 0xffff")
        a.I("global_load_dword v116, v5, s[52:53]")
        a.I("s_mov_b64 exec, -1")
        n += 1
    return n

def aux_nonce_issue(a):
    srd(a, RD, S_DBG, 256)
    a.I("v_mov_b32 v10, 0")
    a.I(f"buffer_load_dword v8, v10, {S4(RD)}, 0 offen sc1")
    return 1

def aux_nonce_take(a):
    a.I(f"v_readfirstlane_b32 s{S_NONCE}, v8")
    a.I("s_mov_b32 s50, 0x40000")
    a.L("L_nonce")
    a.I(f"s_cmp_lg_u32 s{S_NONCE}, 0")
    a.I("s_cbranch_scc1 L_nonce_ok")
    a.I("s_sub_u32 s50, s50, 1")
    a.I("s_cmp_eq_u32 s50, 0")
    a.I("s_cbranch_scc1 L_nonce_ok")
    srd(a, RD, S_DBG, 256)
    a.I(f"buffer_load_dword v8, v10, {S4(RD)}, 0 offen sc1")
    a.I("s_waitcnt vmcnt(0)")
    a.I(f"v_readfirstlane_b32 s{S_NONCE}, v8")
    a.I("s_branch L_nonce")
    a.L("L_nonce_ok")

def aux_gate(a):
    if OPT.get("p1noprod"): a.I("s_waitcnt vmcnt(0)")
    a.I("v_mov_b32 v24, 0")
    for i in range(8):
        a.I(f"v_dot2c_f32_bf16 v24, v{32+i}, v{40+i}")
    a.I("s_nop 3")
    for sh in (1, 2, 4, 8):
        a.I(f"v_add_f32_dpp v24, v24, v24 row_shr:{sh} row_mask:0xf bank_mask:0xf")
        a.I("s_nop 1")
    a.I("v_add_f32_dpp v24, v24, v24 row_bcast:15 row_mask:0xa bank_mask:0xf")
    a.I("s_nop 1")
    a.I("v_cvt_pk_bf16_f32 v24, v24, v24")
    a.I("v_and_b32 v24, 0xffff0000, v24")
    a.I(f"v_mul_f32 v24, {hex(f2u(-1.4426950408889634))}, v24")
    a.I("v_exp_f32 v24, v24")
    a.I("s_nop 0")
    a.I("v_add_f32 v24, 1.0, v24")
    a.I("v_rcp_f32 v24, v24")
    a.I("s_nop 0")
    a.I("v_cvt_pk_bf16_f32 v24, v24, v24")
    a.I("v_and_b32 v24, 0xffff0000, v24")
    srd_off(a, RD, S_WS, GO, 8192)
    a.I("s_lshl_b32 s54, s86, 2")
    a.I("v_lshrrev_b32 v3, 5, v1")
    a.I("v_lshlrev_b32 v3, 2, v3")
    a.I("s_mov_b32 s52, 0x80000000")
    a.I("s_mov_b32 s53, 0x80000000")
    a.I("s_mov_b64 exec, s[52:53]")
    a.I(f"buffer_store_dword v24, v3, {S4(RD)}, s54 offen sc1")
    a.I("s_mov_b64 exec, -1")

def aux_publish_fa(a):
    a.I("s_cmp_lg_u32 s66, 0")
    a.I("s_cbranch_scc1 L_aux2")
    srd_off(a, RD, S_WS, FLG, FLG_SIZE)
    a.I(f"s_lshl_b32 s54, s{S_CG}, 7")
    a.I(f"s_lshl_b32 s55, s{S_RB}, 2")
    a.I("s_add_u32 s54, s54, s55")
    a.I(f"s_add_u32 s54, s54, {FA_OFF}")
    a.I(f"v_mov_b32 v8, s{S_NONCE}")
    a.I(f"v_mov_b32 v10, 0")
    a.I("s_mov_b64 exec, 1")
    a.I(f"buffer_store_dword v8, v10, {S4(RD)}, s54 offen sc1")
    a.I("s_mov_b64 exec, -1")
    stamp(a, "FApub")
    a.L("L_aux2")

def aux_zero_misc(a):
    a.I("s_cmp_lg_u32 s66, 1")
    a.I("s_cbranch_scc1 L_aux3")
    a.I(f"v_lshlrev_b32 v10, 2, v1")
    if L_MISC: a.I(f"v_add_u32 v10, {L_MISC}, v10")
    a.I("v_mov_b32 v9, 0")
    a.I("ds_write_b32 v10, v9")
    a.I("s_waitcnt lgkmcnt(0)")
    a.I("v_mov_b32 v10, 0")
    a.L("L_aux3")

def aux_share_nonce(a):
    a.I("s_cmp_lg_u32 s66, 0")
    a.I("s_cbranch_scc1 L_aux4")
    a.I(f"v_mov_b32 v9, {L_MISC + 128}")
    a.I(f"v_mov_b32 v11, s{S_NONCE}")
    a.I("ds_write_b32 v9, v11")
    a.I("s_waitcnt lgkmcnt(0)")
    a.L("L_aux4")

def aux_fa_probe(a):
    srd_off(a, RC, S_WS, FLG, FLG_SIZE)
    a.I(f"s_lshr_b32 s88, s{S_HD}, 2")
    a.I("s_lshl_b32 s88, s88, 7")
    a.I(f"s_add_u32 s88, s88, {FA_OFF}")
    a.I("v_lshlrev_b32 v9, 2, v1")
    a.I("s_mov_b32 exec_hi, 0")
    a.I(f"buffer_load_dword v11, v9, {S4(RC)}, s88 offen sc1")
    a.I("s_mov_b64 exec, -1")

def aux_after_e1(a):
    a.I("s_mov_b32 s67, s66")
    a.I("s_setprio 3")
    stamp(a, "E2")
    a.I("s_mov_b32 exec_hi, 0")
    a.I("s_waitcnt vmcnt(0)")
    a.I(f"v_cmp_ne_u32 vcc, s{S_NONCE}, v11")
    a.I("s_mov_b64 exec, -1")
    a.I("s_cbranch_vccz L_aux5")
    poll(a, RC, 32, 9, 11, "s88", OPT.get("faslp", 2))
    a.L("L_aux5")
    stamp(a, "FAok")
    VL = 4
    a.I(f"v_lshlrev_b32 v{VL}, 4, v1")
    a.I(f"s_lshl_b32 s54, s{S_HD}, 16")
    a.I(f"s_add_u32 s55, s54, {KF}")
    srd_off(a, RA, S_WS, "s55", 65536)
    a.I(f"s_add_u32 s55, s54, {VF}")
    srd_off(a, RB, S_WS, "s55", 65536)
    a.I(f"s_add_u32 s55, s54, {QF}")
    srd_off(a, RD, S_WS, "s55", 65536)
    a.I(f"s_lshl_b32 s54, s{S_QB}, 3")
    a.I("s_lshl_b32 s55, s67, 1")
    a.I("s_add_u32 s54, s54, s55")
    a.I("s_lshl_b32 s54, s54, 10")
    a.I("s_lshl_b32 s55, s67, 11")
    a.I(f"s_add_u32 s55, s55, {L_RING}")
    for t in range(2):
        a.I(f"s_add_u32 m0, s55, {t*1024}")
        a.I(f"s_add_u32 s56, s54, {t*1024}")
        a.I(f"buffer_load_dwordx4 v{VL}, {S4(RD)}, s56 offen sc1 lds")
    a.I("s_lshl_b32 s54, s67, 10")
    def kvchunks(cs):
        for c in cs:
            a.I(f"s_add_u32 s55, s54, {c*4096}")
            a.I(f"s_add_u32 m0, s55, {L_K}")
            a.I(f"s_add_u32 s56, s55, {L_V}")
            a.I(f"buffer_load_dwordx4 v{VL}, {S4(RA)}, s55 offen sc1 lds")
            a.I("s_mov_b32 m0, s56")
            a.I("s_nop 0")
            a.I(f"buffer_load_dwordx4 v{VL}, {S4(RB)}, s55 offen sc1 lds")
    kvchunks(range(0, 2))
    kvchunks(range(2, 4))
    a.I("s_waitcnt vmcnt(4)")
    lds_add1(a, M_KV, 8, 9)
    stamp(a, "KV1")
    kvchunks(range(4, 16))
    a.I("s_lshr_b32 s53, s2, 3")
    srd(a, RA, S_W2, 1376*1024)
    srd(a, RB, S_WO, 512*1024)
    a.I("s_mul_i32 s54, s53, 44032")
    a.I("s_lshl_b32 s55, s67, 10")
    a.I("s_add_u32 s54, s54, s55")
    a.I("s_waitcnt vmcnt(0)")
    lds_add1(a, M_KV, 8, 9)
    stamp(a, "KV2")
    a.I("v_lshlrev_b32 v10, 7, v1")
    a.I("s_lshl_b32 s55, s67, 13")
    a.I("s_mul_i32 s54, s53, 44032")
    a.I("s_add_u32 s54, s54, s55")
    a.I(f"buffer_load_dword v40, v10, {S4(RA)}, s54 offen")
    a.I("s_add_u32 s54, s54, 32768")
    a.I(f"buffer_load_dword v41, v10, {S4(RA)}, s54 offen")
    a.I("s_lshl_b32 s54, s53, 14")
    a.I("s_lshl_b32 s55, s67, 12")
    a.I("s_add_u32 s54, s54, s55")
    a.I("s_mov_b32 exec_hi, 0")
    a.I(f"buffer_load_dword v42, v10, {S4(RB)}, s54 offen")
    a.I("s_mov_b64 exec, -1")

def ffn2_p3(a):
    WF, HR, ACC2, BPR = 24, 40, 104, 8
    VH, VW, VA0, VA1 = 2, 3, 4, 5
    a.I("s_cmp_lg_u32 s67, 0")
    a.I("s_cbranch_scc1 L_f1")
    lds_spin(a, M_HST, 4, 8, 9, OPT.get('fslp', 1))
    lds_spin(a, M_KV, 8, 8, 9)
    a.I(f"s_lshl_b32 s54, s{S_RB}, 7")
    a.I(f"s_lshl_b32 s55, s{S_CG}, 2")
    a.I("s_add_u32 s54, s54, s55")
    a.I(f"s_add_u32 s54, s54, {FH_OFF}")
    flag_store(a, "s54", 8, 10)
    a.I(f"s_lshl_b32 s54, s{S_HD}, 7")
    a.I(f"s_add_u32 s54, s54, {FH_OFF}")
    a.I("v_lshlrev_b32 v8, 2, v1")
    poll(a, RC, 8, 8, 9, "s54", OPT.get("fhslp", 8))
    lds_add1(a, M_H, 8, 9)
    a.I("s_branch L_f2")
    a.L("L_f1")
    lds_spin(a, M_H, 1, 8, 9, OPT.get('fslp', 1))
    a.L("L_f2")
    lds_spin(a, M_QRD, 8, 8, 9, OPT.get('fslp', 1))
    stamp(a, "hready")
    srd(a, RA, S_W2, 1376*1024)
    srd_off(a, RB, S_WS, HF, HF_SIZE)
    a.I(f"v_lshlrev_b32 v{VH}, 4, v1")
    dma_w_lane_off(a, VW, 1, 8, 9, 1024)
    a.I(f"s_lshl_b32 s54, s{S_QB}, 7")
    a.I(f"v_add_u32 v{VW}, s54, v{VW}")
    tr_lane_addr(a, VA0, 1, 8, 9, 4, 128)
    a.I("s_mul_i32 s68, s67, 6144")
    a.I(f"s_add_u32 s68, s68, {L_RING}")
    a.I(f"v_add_u32 v{VA0}, s68, v{VA0}")
    a.I(f"v_xor_b32 v{VA1}, 64, v{VA0}")
    a.I("s_mul_i32 s54, s67, 24")
    a.I("s_lshl_b32 s70, s54, 14")
    a.I("s_lshl_b32 s71, s54, 16")
    a.I(f"s_lshl_b32 s55, s{S_HD}, 11")
    a.I("s_add_u32 s71, s71, s55")
    for i in range(64):
        a.I(f"v_mov_b32 v{ACC2+i}, 0")
    a.I("s_waitcnt vmcnt(0)")
    def fissue(slot):
        return [f"s_add_u32 m0, s68, {slot*2048}",
                f"s_add_u32 s69, s70, 8192",
                f"buffer_load_dwordx4 v{VW}, {S4(RA)}, s70 offen lds",
                f"s_add_u32 m0, s68, {slot*2048+1024}",
                f"s_add_u32 s70, s70, 16384",
                f"buffer_load_dwordx4 v{VW}, {S4(RA)}, s69 offen lds",
                f"buffer_load_dwordx4 {vr(HR+slot*8,4)}, v{VH}, {S4(RB)}, s71 offen sc1",
                f"buffer_load_dwordx4 {vr(HR+slot*8+4,4)}, v{VH}, {S4(RB)}, s71 offen offset:1024 sc1",
                f"s_add_u32 s71, s71, 65536"]
    def trr(F, off):
        out = []
        for ct, va in ((0, VA0), (1, VA1)):
            for rd in range(2):
                out.append(f"ds_read_b64_tr_b16 {vr(F+4*ct+2*rd,2)}, v{va} offset:{off + rd*1024}")
        return out
    N2 = OPT.get("n2", 0)
    a.I("s_cmp_eq_u32 s67, 3")
    a.I(f"s_cselect_b32 s72, {5-N2}, {8-N2}")
    a.I("s_mov_b32 s76, 0")
    a.L("L_fpro")
    for slot in range(3):
        a.I(J(fissue(slot)))
    a.I("s_cmp_lg_u32 s76, 0")
    a.I("s_cbranch_scc1 L_floop")
    a.I(f"s_setprio {OPT.get('ffnprio', 0)}")
    if OPT.get("noffn"): a.I("s_branch L_fskip")
    a.L("L_floop")
    for slot in range(3):
        a.I("s_waitcnt vmcnt(8)")
        a.I(J(trr(WF, slot*2048)))
        a.I("s_waitcnt lgkmcnt(0)")
        fi = fissue(slot)
        mf = lambda ct, rt: MF(ACC2 + (ct*2+rt)*16, WF+4*ct, HR+slot*8+4*rt, ACC2 + (ct*2+rt)*16)
        if OPT.get("fspread", 1):
            a.I(mf(0, 0)); a.I(J(fi[0:3]))
            a.I(mf(1, 0)); a.I(J(fi[3:6]))
            a.I(mf(0, 1)); a.I(fi[6])
            a.I(mf(1, 1)); a.I(J(fi[7:]))
        else:
            for ct in range(2):
                for rt in range(2):
                    a.I(mf(ct, rt))
            a.I(J(fi))
    a.I("s_sub_u32 s72, s72, 1")
    a.I("s_cmp_lg_u32 s72, 0")
    a.I("s_cbranch_scc1 L_floop")
    a.L("L_fskip")
    a.I("s_setprio 3")
    a.I("s_waitcnt vmcnt(0)")
    a.I("s_cmp_lg_u32 s76, 0")
    a.I("s_cbranch_scc1 L_fdone")
    lds_add1(a, M_FFN, 8, 9)
    stamp(a, "ffn2")
    lds_spin(a, M_ATT, 4, 8, 9, OPT.get('attslp', 1))
    stamp(a, "attdone")
    srd(a, RD, S_WO, 512*1024)
    a.I("s_lshl_b32 s56, s67, 14")
    a.I(f"s_add_u32 s56, s56, {L_K}")
    a.I("s_lshl_b32 s57, s67, 17")
    for ks in range(8):
        for n in range(2):
            a.I(f"s_add_u32 m0, s56, {ks*2048+n*1024}")
            a.I(f"s_add_u32 s69, s57, {ks*16384+n*8192}")
            a.I(f"buffer_load_dwordx4 v{VW}, {S4(RD)}, s69 offen lds")
    if N2:
        a.I("s_mov_b32 s76, 1")
        a.I(f"s_sub_u32 s70, s70, {3*16384}")
        a.I(f"s_sub_u32 s71, s71, {3*65536}")
        a.I(f"s_mov_b32 s72, {N2}")
        a.I("s_branch L_fpro")
    a.L("L_fdone")
    srd_off(a, RA, S_WS, GO, 8192)
    srd(a, RB, S_B2, 1024)
    a.I("s_and_b32 s73, s67, 1")
    a.I("s_lshr_b32 s74, s67, 1")
    a.I(f"s_lshl_b32 s75, s{S_HD}, 6")
    a.I("s_lshl_b32 s54, s73, 5")
    a.I("s_add_u32 s75, s75, s54")
    a.I("s_lshl_b32 s54, s75, 2")
    a.I("v_and_b32 v8, 31, v1")
    a.I("v_lshlrev_b32 v8, 2, v8")
    a.I(f"buffer_load_dword v40, v8, {S4(RA)}, s54 offen sc1")
    a.I(f"s_lshl_b32 s54, s{S_QB}, 6")
    a.I("s_lshl_b32 s55, s74, 5")
    a.I("s_add_u32 s54, s54, s55")
    a.I("s_lshl_b32 s54, s54, 1")
    a.I("v_lshrrev_b32 v8, 5, v1")
    a.I("v_lshlrev_b32 v8, 3, v8")
    for q in range(4):
        a.I(f"buffer_load_dwordx2 v[{42+2*q}:{43+2*q}], v8, {S4(RB)}, s54 offen offset:{q*16}")
    a.I("s_lshl_b32 s68, s67, 14")
    a.I("s_nop 7")
    a.I(f"s_add_u32 s54, s68, {L_V}")
    a.I(f"v_add_u32 v8, s54, v{VH}")
    for i in range(16):
        a.I(f"ds_write_b128 v8, {vr(ACC2+4*i,4)} offset:{i*1024}")
    a.I("s_waitcnt vmcnt(0) lgkmcnt(0)")
    lds_add1(a, M_T1, 9, 10)
    lds_spin(a, M_T1, 4, 9, 10)
    a.I("s_lshl_b32 s54, s67, 12")
    a.I(f"s_add_u32 s54, s54, {L_V}")
    a.I(f"v_add_u32 v8, s54, v{VH}")
    for p in range(4):
        for q in range(4):
            a.I(f"ds_read_b128 {vr(ACC2+p*16+q*4,4)}, v8 offset:{p*16384+q*1024}")
    a.I("s_waitcnt lgkmcnt(0)")
    for i in range(16):
        a.I(f"v_add_f32 v{ACC2+i}, v{ACC2+i}, v{ACC2+16+i}")
        a.I(f"v_add_f32 v{ACC2+32+i}, v{ACC2+32+i}, v{ACC2+48+i}")
    for i in range(16):
        a.I(f"v_add_f32 v{ACC2+i}, v{ACC2+i}, v{ACC2+32+i}")
    a.I("s_waitcnt vmcnt(0)")
    a.I("v_sub_f32 v41, 1.0, v40")
    a.I("v_cvt_pk_bf16_f32 v41, v41, v41")
    a.I("v_and_b32 v41, 0xffff0000, v41")
    for q in range(4):
        a.I(f"v_lshlrev_b32 v52, 16, v{42+2*q}")
        a.I(f"v_and_b32 v53, 0xffff0000, v{42+2*q}")
        a.I(f"v_lshlrev_b32 v54, 16, v{43+2*q}")
        a.I(f"v_and_b32 v55, 0xffff0000, v{43+2*q}")
        for j in range(4):
            a.I(f"v_add_f32 v{BPR+4*q+j}, v{ACC2+4*q+j}, v{52+j}")
        for j in range(4):
            a.I(f"v_mul_f32 v{BPR+4*q+j}, v{BPR+4*q+j}, v41")
    a.I("v_mov_b32 v39, v40")
    tr_lane_addr(a, VA0, 1, 32, 33, 4, 128)
    a.I("s_lshl_b32 s54, s74, 6")
    a.I(f"v_xor_b32 v{VA0}, s54, v{VA0}")
    a.I(f"v_add_u32 v{VA0}, {L_K}, v{VA0}")
    a.I("s_lshl_b32 s54, s73, 15")
    a.I(f"s_add_u32 s54, s54, {L_V}")
    a.I(f"v_add_u32 v{VA1}, s54, v{VH}")
    FR = 40
    def wreads(ks):
        F = FR + (ks % 8) * 8
        return [f"ds_read_b64_tr_b16 {vr(F,2)}, v{VA0} offset:{ks*2048}",
                f"ds_read_b64_tr_b16 {vr(F+2,2)}, v{VA0} offset:{ks*2048+1024}"]
    def oread(ks):
        F = FR + (ks % 8) * 8
        return [f"ds_read_b128 {vr(F+4,4)}, v{VA1} offset:{ks*1024}"]
    a.I("s_cmp_lg_u32 s67, 0")
    a.I("s_cbranch_scc1 L_f4")
    a.I(f"s_lshl_b32 s54, s{S_HD}, 8")
    a.I(f"s_add_u32 s54, s54, {FO_OFF}")
    a.I("v_lshlrev_b32 v121, 2, v1")
    if not OPT.get("opf", 0):
        poll(a, RC, 64, 121, 122, "s54", OPT.get("foslp", 2))
    else:
        srd_off(a, RB, S_WS, OF, 2*MB)
        a.I(f"s_lshl_b32 s55, s{S_HD}, 16")
        a.I("v_lshlrev_b32 v123, 10, v1")
        a.I("s_mov_b64 s[56:57], 0")
        a.I("s_mov_b32 s50, 0x40000")
        a.L("L_opf")
        a.I(f"buffer_load_dword v122, v121, {S4(RC)}, s54 offen sc1")
        a.I("s_waitcnt vmcnt(0)")
        a.I(f"v_cmp_eq_u32 vcc, s{S_NONCE}, v122")
        a.I("s_nop 1")
        a.I("s_andn2_b64 s[58:59], vcc, s[56:57]")
        a.I("s_or_b64 s[56:57], s[56:57], vcc")
        a.I("s_cmp_eq_u64 s[56:57], -1")
        a.I("s_cbranch_scc1 L_opf3")
        a.I("s_cmp_eq_u64 s[58:59], 0")
        a.I("s_cbranch_scc1 L_opf2")
        a.I("s_mov_b64 exec, s[58:59]")
        for j in range(8):
            a.I(f"buffer_load_dword v120, v123, {S4(RB)}, s55 offen offset:{j*128} sc1")
        a.I("s_mov_b64 exec, -1")
        a.L("L_opf2")
        a.I("s_sub_u32 s50, s50, 1")
        a.I("s_cmp_eq_u32 s50, 0")
        a.I("s_cbranch_scc1 L_opf3")
        a.I(f"s_sleep {OPT.get('foslp', 2)}")
        a.I("s_branch L_opf")
        a.L("L_opf3")
    a.L("L_f4")
    for ks in range(8): a.I(J(wreads(ks)))
    srd_off(a, RB, S_WS, OF, 2*MB)
    a.I(f"s_lshl_b32 s54, s{S_HD}, 16")
    a.I("s_lshl_b32 s55, s67, 11")
    a.I("s_add_u32 s54, s54, s55")
    a.I(f"s_add_u32 s55, s55, {L_V}")
    srd(a, RA, S_OUT, 2*MB)
    a.I("s_lshl_b32 s58, s75, 10")
    a.I(f"s_lshl_b32 s59, s{S_QB}, 7")
    a.I("s_add_u32 s58, s58, s59")
    a.I("s_lshl_b32 s59, s74, 6")
    a.I("s_add_u32 s58, s58, s59")
    a.I("v_and_b32 v32, 31, v1")
    a.I("v_lshlrev_b32 v32, 10, v32")
    a.I("v_lshrrev_b32 v33, 5, v1")
    a.I("v_lshl_add_u32 v32, v33, 4, v32")
    a.I("s_waitcnt lgkmcnt(0)")
    a.I("s_barrier")
    stamp(a, "T2")
    def odma(ch):
        L = []
        for hh in range(2):
            for rt in range(2):
                off = rt*32768 + ch*8192 + hh*1024
                L.append([f"s_add_u32 m0, s55, {off}", f"s_add_u32 s56, s54, {off}",
                          f"buffer_load_dwordx4 v{VH}, {S4(RB)}, s56 offen sc1 lds"])
        return L
    for ch in range(4):
        for x in odma(ch): a.I(J(x))
    for ch in range(4):
        a.I(f"s_waitcnt vmcnt({4*(3-ch)}) lgkmcnt(0)")
        a.I("s_barrier")
        for ks in range(8*ch, 8*ch+8): a.I(J(oread(ks)))
        for i in range(8):
            ks = 8*ch + i
            a.I(f"s_waitcnt lgkmcnt({7 + i if ch < 3 else 7 - i})")
            F = FR + i*8
            a.I(MF(ACC2, F, F+4, ACC2 if ks else None))
            if ch < 3: a.I(J(wreads(ks+8)))
    a.I("s_nop 15")
    stamp(a, "p3mm")
    for i in range(16):
        a.I(f"v_fma_f32 v{ACC2+i}, v{ACC2+i}, v39, v{BPR+i}")
    for j in range(8):
        a.I(f"v_cvt_pk_bf16_f32 v{ACC2+j}, v{ACC2+2*j}, v{ACC2+2*j+1}")
    a.I("s_nop 1")
    a.I(f"v_permlane32_swap_b32 v{ACC2}, v{ACC2+2}")
    a.I(f"v_permlane32_swap_b32 v{ACC2+1}, v{ACC2+3}")
    a.I(f"v_permlane32_swap_b32 v{ACC2+4}, v{ACC2+6}")
    a.I(f"v_permlane32_swap_b32 v{ACC2+5}, v{ACC2+7}")
    ofl = {0: "", 1: " sc1", 2: " nt", 3: " sc0 sc1"}[OPT.get("outfl", 0)]
    a.I(f"buffer_store_dwordx4 {vr(ACC2,4)}, v32, {S4(RA)}, s58 offen{ofl}")
    a.I(f"buffer_store_dwordx4 {vr(ACC2+4,4)}, v32, {S4(RA)}, s58 offen offset:32{ofl}")
    stamp_flush(a, "ffn")
    a.I("s_endpgm")

def attention(a):
    a.L("L_attn")
    stamp(a, "attn0")
    QA, QB = 8, 12
    KB = [16, 20]; VB = [24, 32]
    S0, S1, OA, OB = 40, 56, 72, 88
    VK, VV, VL = 2, 3, 4
    T0, T1, T2 = 104, 105, 106
    VKN, VVN, VVB, VCH, VONE, VNX = 107, 108, 109, 110, 111, 5
    a.I(f"s_and_b32 s63, s{S_W}, 3")
    a.I(f"s_lshr_b32 s64, s{S_W}, 2")
    a.I(f"v_lshlrev_b32 v{VL}, 4, v1")
    a.I(f"v_lshrrev_b32 v{T0}, 5, v1")
    a.I(f"v_and_b32 v{T1}, 15, v1")
    a.I(f"v_lshlrev_b32 v{T1}, 4, v{T1}")
    a.I(f"v_lshl_add_u32 v{VVB}, v{T0}, 8, v{T1}")
    a.I(f"v_add_u32 v{VVB}, {L_V}, v{VVB}")
    a.I(f"v_add_u32 v{VKN}, {L_K}, v{VL}")
    a.I("s_lshl_b32 s54, s64, 12")
    a.I(f"v_add_u32 v{VK}, s54, v{VL}")
    a.I(f"v_add_u32 v{VV}, s54, v{VVB}")
    a.I("s_lshl_b32 s54, s63, 2")
    a.I(f"s_add_u32 s54, s54, {M_CH}")
    a.I(f"v_mov_b32 v{VCH}, s54")
    a.I(f"v_mov_b32 v{VONE}, 1")
    a.I("s_mov_b32 s74, 0x0000ffff")
    a.I("s_mov_b32 s75, 0x0000ffff")
    a.I("s_mov_b32 s77, 0")
    a.I(f"s_lshl_b32 s66, s{S_QB}, 3")
    a.I("s_lshl_b32 s54, s63, 1")
    a.I("s_add_u32 s66, s66, s54")
    a.I("s_lshl_b32 s54, s63, 11")
    a.I(f"s_add_u32 s54, s54, {L_RING}")
    a.I(f"v_add_u32 v{T2}, s54, v{VL}")
    a.I(f"v_and_b32 v{T0}, 31, v1")
    a.I(f"v_cmp_eq_u32 vcc, 16, v{T0}")
    a.I(f"v_mov_b32 v{T1}, 0x3f803f80")
    a.I("s_nop 1")
    a.I(f"v_cndmask_b32 v{T0}, 0, v{T1}, vcc")
    for i in range(16):
        a.I(f"v_mov_b32 v{VB[0]+i}, v{T0}")
    lds_spin(a, M_KV, 4, T0, T1)
    stamp(a, "kvok")
    a.I(f"ds_read_b128 {vr(QA,4)}, v{T2}")
    a.I(f"ds_read_b128 {vr(QB,4)}, v{T2} offset:1024")
    for i in range(16):
        a.I(f"v_mov_b32 v{OA+i}, 0")
        a.I(f"v_mov_b32 v{OB+i}, 0")
    a.I("s_waitcnt lgkmcnt(0)")
    lds_add1(a, M_QRD, T0, T1)
    a.I("s_lshl_b32 s71, s64, 12")
    if STAMPS and OPT.get("fineattn"): a.I("s_mov_b32 s87, 24")
    a.I("s_mov_b32 s73, 0")

    def e_(S, i): return f"v_exp_f32 v{S+i}, v{S+i}"
    def c_(S, j): return f"v_cvt_pk_bf16_f32 v{S+j}, v{S+2*j}, v{S+2*j+1}"
    def tile(Sin, Sout, Qn, Kn, Ocur, Vcur_u0, Oprev, Vprev_u1, after_pv2, wait_s, after_s, wait_pv1, do_pv2=True, do_s=True):
        e = lambda i: e_(Sin, i)
        c = lambda j: c_(Sin, j)
        L = [e(0), e(1)]
        if do_pv2: L.append(MF(Oprev, Vprev_u1, Sout+4, Oprev))
        L += after_pv2
        L += [e(2), e(3), c(0), e(4), e(5), c(1)]
        L += wait_s
        if do_s: L.append(MF(Sout, Kn, Qn))
        L += after_s
        L += [e(6), e(7), c(2), e(8), e(9), c(3), e(10), e(11)]
        L += wait_pv1
        L.append(MF(Ocur, Vcur_u0, Sin, Ocur))
        L += [c(4), e(12), e(13), c(5), e(14), e(15), c(6), c(7)]
        return L
    fifo = []
    def dsr(tag, txt): fifo.append(tag); return txt
    def need(tag):
        idx = max(i for i, t in enumerate(fifo) if t == tag)
        return [f"s_waitcnt lgkmcnt({len(fifo) - 1 - idx})"]
    def vreads(t):
        kap = t & 1
        return ["s_mov_b64 exec, s[74:75]",
                dsr(("V", t), f"ds_read_b128 {vr(VB[kap],4)}, v{VV} offset:{t*1024}"),
                dsr(("V", t), f"ds_read_b128 {vr(VB[kap]+4,4)}, v{VV} offset:{t*1024+512}"),
                "s_mov_b64 exec, -1"]
    def kread(t): return [dsr(("K", t), f"ds_read_b128 {vr(KB[t & 1],4)}, v{VK} offset:{t*1024}")]
    a.raw(".p2align 6")
    a.L("L_aloop")
    if OPT.get("fineattn"):
        OPT["fine"] = 1; stamp_dyn(a); OPT["fine"] = 0
    a.I(f"v_add_u32 v{VK}, s71, v{VKN}")
    a.I(f"v_add_u32 v{VV}, s71, v{VVB}")
    L = kread(0) + vreads(0) + kread(1)
    L += need(("K", 0))
    L.append(MF(S0, KB[0], QA))
    a.I(J(L))
    a.I("s_nop 7")
    a.I("s_nop 3")
    body = []
    for t in range(4):
        kap = t & 1
        A = []
        Sin, Sout = S0, S1
        A += [e_(Sin, 0), e_(Sin, 1)]
        if t > 0: A.append(MF(OB, VB[kap^1]+4, Sout+4, OB))
        if t + 1 < 4: A += vreads(t+1)
        A += [e_(Sin, 2), e_(Sin, 3), c_(Sin, 0), e_(Sin, 4), e_(Sin, 5), c_(Sin, 1)]
        A.append(MF(Sout, KB[kap], QB))
        if t + 2 < 4: A += kread(t+2)
        A += [e_(Sin, 6), e_(Sin, 7), c_(Sin, 2), e_(Sin, 8), e_(Sin, 9), c_(Sin, 3), e_(Sin, 10), e_(Sin, 11)]
        A += need(("V", t))
        A.append(MF(OA, VB[kap], Sin, OA))
        A += [c_(Sin, 4), e_(Sin, 12), e_(Sin, 13), c_(Sin, 5), e_(Sin, 14), e_(Sin, 15), c_(Sin, 6), c_(Sin, 7)]
        Sin, Sout = S1, S0
        B = [e_(Sin, 0), e_(Sin, 1), MF(OA, VB[kap]+4, Sout+4, OA)]
        if t == 3:
            B += ["s_mov_b64 exec, 1", dsr(("G",), f"ds_add_rtn_u32 v{VNX}, v{VCH}, v{VONE}"), "s_mov_b64 exec, -1"]
        B += [e_(Sin, 2), e_(Sin, 3), c_(Sin, 0), e_(Sin, 4), e_(Sin, 5), c_(Sin, 1)]
        if t + 1 < 4:
            B += need(("K", t+1))
            B.append(MF(Sout, KB[kap^1], QA))
        B += [e_(Sin, 6), e_(Sin, 7), c_(Sin, 2), e_(Sin, 8), e_(Sin, 9), c_(Sin, 3), e_(Sin, 10), e_(Sin, 11)]
        B.append(MF(OB, VB[kap], Sin, OB))
        B += [c_(Sin, 4), e_(Sin, 12), e_(Sin, 13), c_(Sin, 5), e_(Sin, 14), e_(Sin, 15), c_(Sin, 6), c_(Sin, 7)]
        body += A + B
    a.I(J(body))
    a.I("s_waitcnt lgkmcnt(0)")
    a.I(f"v_readfirstlane_b32 s70, v{VNX}")
    a.I(MF(OB, VB[1]+4, S1+4, OB))
    a.I("s_add_u32 s70, s70, 2")
    a.I("s_lshl_b32 s71, s70, 12")
    a.I("s_cmp_lg_u32 s73, 0")
    a.I("s_cbranch_scc1 L_aloop2")
    a.I("s_mov_b32 s73, 1")
    a.I("s_waitcnt vmcnt(0)")
    a.I(f"s_cmp_ge_u32 s{S_W}, 4")
    a.I("s_cbranch_scc1 L_aloop1")
    lds_add1(a, M_HST, T0, T1)
    a.L("L_aloop1")
    lds_spin(a, M_KV, 8, T0, T1)
    a.L("L_aloop2")
    a.I("s_cmp_lt_u32 s70, 16")
    a.I("s_cbranch_scc1 L_aloop")
    a.I("s_waitcnt lgkmcnt(0)")
    a.I("s_nop 7")
    stamp(a, "aloop")
    a.I("s_lshl_b32 s54, s63, 2")
    a.I(f"s_add_u32 s55, s54, {M_PAIR}")
    a.I(f"s_add_u32 s76, s54, {M_PFLAG}")
    a.I(f"v_mov_b32 v{T0}, s55")
    a.I(f"v_mov_b32 v{T1}, 1")
    a.I("s_mov_b64 exec, 1")
    a.I(f"ds_add_rtn_u32 v{T2}, v{T0}, v{T1}")
    a.I("s_mov_b64 exec, -1")
    a.I("s_mul_i32 s54, s63, 4608")
    a.I(f"s_add_u32 s54, s54, {L_XCH}")
    a.I(f"v_add_u32 v{S0}, s54, v{VL}")
    a.I(f"v_lshlrev_b32 v{S0+1}, 2, v1")
    a.I(f"v_add_u32 v{S0+1}, s54, v{S0+1}")
    a.I("s_waitcnt lgkmcnt(0)")
    a.I(f"v_readfirstlane_b32 s55, v{T2}")
    a.I("s_nop 4")
    a.I("s_cmp_lg_u32 s55, 0")
    a.I("s_cbranch_scc1 L_second")
    lds_spin(a, M_FFN, 4, T0, T1)
    a.I(f"ds_write_b128 v{S0}, {vr(OA,4)}")
    a.I(f"ds_write_b128 v{S0}, {vr(OA+4,4)} offset:1024")
    a.I(f"ds_write_b128 v{S0}, {vr(OB,4)} offset:2048")
    a.I(f"ds_write_b128 v{S0}, {vr(OB+4,4)} offset:3072")
    a.I(f"ds_write_b32 v{S0+1}, v{OA+8} offset:4096")
    a.I(f"ds_write_b32 v{S0+1}, v{OB+8} offset:4352")
    a.I("s_waitcnt lgkmcnt(0)")
    lds_add1(a, "s76", T0, T1)
    a.I("s_waitcnt lgkmcnt(0)")
    stamp_flush(a, "attn")
    a.I("s_endpgm")
    a.L("L_second")
    lds_spin(a, "s76", 1, T0, T1)
    a.I(f"ds_read_b128 {vr(S1,4)}, v{S0}")
    a.I(f"ds_read_b128 {vr(S1+4,4)}, v{S0} offset:1024")
    a.I(f"ds_read_b128 {vr(S1+8,4)}, v{S0} offset:2048")
    a.I(f"ds_read_b128 {vr(S1+12,4)}, v{S0} offset:3072")
    a.I(f"ds_read_b32 v{T0}, v{S0+1} offset:4096")
    a.I(f"ds_read_b32 v{T1}, v{S0+1} offset:4352")
    a.I(f"v_mov_b32 v{T2}, {L_MISC + 128}")
    a.I(f"ds_read_b32 v{T2}, v{T2}")
    a.I("s_waitcnt lgkmcnt(0)")
    a.I(f"v_readfirstlane_b32 s{S_NONCE}, v{T2}")
    for i in range(8):
        a.I(f"v_add_f32 v{OA+i}, v{OA+i}, v{S1+i}")
        a.I(f"v_add_f32 v{OB+i}, v{OB+i}, v{S1+8+i}")
    a.I(f"v_add_f32 v{OA+8}, v{OA+8}, v{T0}")
    a.I(f"v_add_f32 v{OB+8}, v{OB+8}, v{T1}")
    a.L("L_fin")
    for O in (OA, OB):
        a.I(f"v_mov_b32 v{O+9}, v{O+8}")
    a.I("s_nop 1")
    for O in (OA, OB):
        a.I(f"v_permlane32_swap_b32 v{O+9}, v{O+8}")
    a.I("s_nop 1")
    for O in (OA, OB):
        a.I(f"v_rcp_f32 v{O+10}, v{O+9}")
    srd_off(a, RA, S_WS, OF, 2*MB)
    a.I("s_lshl_b32 s54, s66, 5")
    a.I(f"s_add_u32 s54, s54, s{S_HD}")
    a.I("s_lshl_b32 s55, s54, 10")
    for n_, O in enumerate((OA, OB)):
        for i in range(8):
            a.I(f"v_mul_f32 v{S0+8*n_+i}, v{O+i}, v{O+10}")
        for j in range(4):
            a.I(f"v_cvt_pk_bf16_f32 v{S1+4*n_+j}, v{S0+8*n_+2*j}, v{S0+8*n_+2*j+1}")
        a.I(f"buffer_store_dwordx4 {vr(S1+4*n_,4)}, v{VL}, {S4(RA)}, s55 offen sc1")
        if n_ == 0: a.I("s_add_u32 s55, s55, 32768")
    srd_off(a, RC, S_WS, FLG, FLG_SIZE)
    slow_check(a, OA, OB, T0, T1)
    lds_add1(a, M_ATT, T0, T1)
    a.I("s_lshl_b32 s54, s54, 2")
    a.I(f"s_add_u32 s54, s54, {FO_OFF}")
    a.I(f"v_mov_b32 v{T0}, s{S_NONCE}")
    a.I(f"v_lshlrev_b32 v{T1}, 7, v1")
    a.I("s_waitcnt vmcnt(0)")
    a.I("s_mov_b64 exec, 3")
    a.I(f"buffer_store_dword v{T0}, v{T1}, {S4(RC)}, s54 offen sc1")
    a.I("s_mov_b64 exec, -1")
    stamp_flush(a, "attn")
    a.I("s_endpgm")
    slow_path(a, QA, QB, KB, VB, S0, S1, OA, OB, VL, T0, T1, T2)

def slow_check(a, OA, OB, T0, T1):
    if OPT.get("noslow"): return
    a.I(f"v_mul_f32 v{T0}, 0, v{OA}")
    for i in range(1, 8):
        a.I(f"v_fma_f32 v{T0}, v{OA+i}, 0, v{T0}")
    for i in range(8):
        a.I(f"v_fma_f32 v{T0}, v{OB+i}, 0, v{T0}")
    a.I(f"v_cmp_eq_f32 s[78:79], 0, v{T0}")
    a.I(f"s_mov_b32 s80, {hex(f2u(2.0**-60))}")
    a.I(f"s_mov_b32 s81, {hex(f2u(2.0**60))}")
    for O in (OA, OB):
        a.I(f"v_cmp_le_f32 s[82:83], s80, v{O+9}")
        a.I(f"v_cmp_ge_f32 vcc, s81, v{O+9}")
        a.I("s_nop 1")
        a.I("s_and_b64 s[78:79], s[78:79], s[82:83]")
        a.I("s_and_b64 s[78:79], s[78:79], vcc")
    if OPT.get("forceslow"):
        a.I("s_mov_b64 s[78:79], 0")
    a.I("s_cmp_eq_u64 s[78:79], -1")
    a.I("s_cbranch_scc1 L_ok")
    a.I("s_cmp_eq_u32 s77, 0")
    a.I("s_cbranch_scc1 L_slow")
    a.L("L_ok")

def slow_path(a, QA, QB, KB, VB, S0, S1, OA, OB, VL, T0, T1, T2):
    if OPT.get("noslow"): return
    K, V0, M, C = KB[0], VB[0], 108, 112
    a.L("L_slow")
    a.I("s_waitcnt vmcnt(0)")
    a.I("s_mov_b32 s77, 1")
    a.I(f"v_lshrrev_b32 v{T0}, 5, v1")
    a.I(f"v_and_b32 v{T1}, 15, v1")
    a.I(f"v_lshlrev_b32 v{T1}, 4, v{T1}")
    a.I(f"v_lshl_add_u32 v{T2}, v{T0}, 8, v{T1}")
    a.I(f"v_add_u32 v{T2}, {L_V}, v{T2}")
    a.I(f"v_mov_b32 v{M}, 0xff800000")
    a.I(f"v_mov_b32 v{M+1}, 0xff800000")
    a.I(f"v_add_u32 v{T0}, {L_K}, v{VL}")
    a.I("s_mov_b32 s73, 0")
    a.L("L_slow1")
    a.I(f"ds_read_b128 {vr(K,4)}, v{T0}")
    a.I("s_waitcnt lgkmcnt(0)")
    a.I(MF(S0, K, QA))
    a.I(MF(S1, K, QB))
    a.I("s_nop 15")
    for S, m in ((S0, M), (S1, M+1)):
        for i in range(0, 16, 2):
            a.I(f"v_max3_f32 v{m}, v{S+i}, v{S+i+1}, v{m}")
    a.I(f"v_add_u32 v{T0}, 1024, v{T0}")
    a.I("s_add_u32 s73, s73, 1")
    a.I("s_cmp_lt_u32 s73, 64")
    a.I("s_cbranch_scc1 L_slow1")
    for m in (M, M+1):
        a.I(f"v_mov_b32 v{T1}, v{m}")
        a.I("s_nop 1")
        a.I(f"v_permlane32_swap_b32 v{T1}, v{m}")
        a.I("s_nop 1")
        a.I(f"v_max_f32 v{m}, v{m}, v{T1}")
    for t in range(2):
        for i in range(16):
            a.I(f"v_sub_f32 v{C+16*t+i}, 0, v{M+t}")
    for i in range(16):
        a.I(f"v_mov_b32 v{OA+i}, 0")
        a.I(f"v_mov_b32 v{OB+i}, 0")
    a.I(f"v_add_u32 v{T0}, {L_K}, v{VL}")
    a.I("s_mov_b32 s73, 0")
    a.L("L_slow2")
    a.I(f"ds_read_b128 {vr(K,4)}, v{T0}")
    a.I("s_mov_b64 exec, s[74:75]")
    a.I(f"ds_read_b128 {vr(V0,4)}, v{T2}")
    a.I(f"ds_read_b128 {vr(V0+4,4)}, v{T2} offset:512")
    a.I("s_mov_b64 exec, -1")
    a.I("s_waitcnt lgkmcnt(0)")
    a.I(MF(S0, K, QA, C))
    a.I(MF(S1, K, QB, C+16))
    a.I("s_nop 15")
    for S, O in ((S0, OA), (S1, OB)):
        for i in range(16):
            a.I(f"v_exp_f32 v{S+i}, v{S+i}")
        a.I("s_nop 0")
        for j in range(8):
            a.I(f"v_cvt_pk_bf16_f32 v{S+j}, v{S+2*j}, v{S+2*j+1}")
        a.I("s_nop 1")
        a.I(MF(O, V0, S, O))
        a.I(MF(O, V0+4, S+4, O))
    a.I(f"v_add_u32 v{T0}, 1024, v{T0}")
    a.I(f"v_add_u32 v{T2}, 1024, v{T2}")
    a.I("s_add_u32 s73, s73, 1")
    a.I("s_cmp_lt_u32 s73, 64")
    a.I("s_cbranch_scc1 L_slow2")
    a.I("s_nop 15")
    a.I("s_branch L_fin")

def gen():
    a = Asm()
    prologue(a)
    producer(a, False)
    consumer(a)
    a.L("L_aux")
    producer(a, True)
    ffn2_p3(a)
    attention(a)
    a.L("L_end")
    a.I("s_endpgm")
    a.L("L_code_end")
    a.I("s_endpgm")
    return a

HEADER = open("cdna_kernels/" + NAME + ".s.ref").read().split("; Override launch")[0]

def build(path):
    a = gen()
    out = HEADER + f"; WSLAYOUT QF={QF} KF={KF} VF={VF} HF={HF} GO={GO} OF={OF}\n"
    out += f"; @launch grid=(256,1,1) block=(768,1,1) lds={LDS_TOTAL}\n"
    out += '.amdgcn_target "amdgcn-amd-amdhsa--gfx950"\n.text\n' + a.text()
    out += f""".section .rodata,"a"
.p2align 6
.amdhsa_kernel {KN}
  .amdhsa_next_free_vgpr 168
  .amdhsa_next_free_sgpr 102
  .amdhsa_accum_offset 168
  .amdhsa_group_segment_fixed_size 0
  .amdhsa_kernarg_size 96
  .amdhsa_user_sgpr_count 2
  .amdhsa_user_sgpr_kernarg_segment_ptr 1
  .amdhsa_system_sgpr_workgroup_id_x 1
.end_amdhsa_kernel
"""
    open(path, "w").write(out)
    probs = check_linear(a.lines, "k")
    if STAMPS: print("stamps:", ",".join(_stamp_names))
    return probs

if __name__ == "__main__":
    for x in list(sys.argv[1:]):
        if x.startswith("-D"):
            k, _, v = x[2:].partition("=")
            OPT[k] = int(v) if v else 1
            sys.argv.remove(x)
    if "--stamps" in sys.argv:
        STAMPS = True; sys.argv.remove("--stamps")
    path = sys.argv[1] if len(sys.argv) > 1 else "cdna_kernels/" + NAME + ".s"
    probs = build(path)
    for p in probs: print("HAZARD:", p)
    print("written", path, "problems:", len(probs))
```

```python
import sys, struct
from asmlib import *

NAME = "gated_mix__mha_block__dense_activation_squared_relu__prompt"
KN = NAME + "_kernel"
MB = 1 << 20
QF, KF, VF, HF, GO, OF, FLG = 4096, 2*MB + 8192, 4*MB + 12288, 6*MB + 16384, 12*MB, 14*MB + 4096, 16*MB + 8192
HF_SIZE = 86 * 65536
FA_OFF, FH_OFF, FO_OFF = 0, 4096, 8192
FLG_SIZE = 16384
QSCALE = 0.25 * 1.4426950408889634
STAMP_OFF = 32*MB
STAMPS = False
OPT = {}
def f2u(x): return struct.unpack("<I", struct.pack("<f", x))[0]

S_AX, S_WQKV, S_WO, S_W1, S_B1, S_W2, S_B2, S_GW, S_OUT, S_DBG, S_WS = 4, 6, 8, 12, 14, 16, 18, 20, 22, 24, 26
S_W = 3
S_RB, S_CG, S_START = 29, 30, 31
RA, RB, RC, RD = 32, 36, 40, 44
S_NONCE, S_HD, S_QB = 60, 61, 62
L_MISC, L_K, L_V, L_RING = 0, 1024, 1024 + 65536, 1024 + 131072
L_XCH = L_RING
M_KV, M_H, M_FA, M_QRD, M_HST, M_FFN, M_ATT, M_T1 = [L_MISC + 4*i for i in range(8)]
M_PAIR, M_PFLAG, M_CH = L_MISC + 64, L_MISC + 96, L_MISC + 160
LDS_TOTAL = 163840

def srd(a, dst, base, size):
    a.I(f"s_mov_b32 s{dst}, s{base}")
    a.I(f"s_mov_b32 s{dst+1}, s{base+1}")
    a.I(f"s_mov_b32 s{dst+2}, {size}")
    a.I(f"s_mov_b32 s{dst+3}, 0x20000")
def srd_off(a, dst, base, off, size):
    a.I(f"s_add_u32 s{dst}, s{base}, {off}")
    a.I(f"s_addc_u32 s{dst+1}, s{base+1}, 0")
    a.I(f"s_mov_b32 s{dst+2}, {size}")
    a.I(f"s_mov_b32 s{dst+3}, 0x20000")
def MF(d, A, B, c=None):
    cc = "0" if c is None else vr(c, 16)
    return f"v_mfma_f32_32x32x16_bf16 {vr(d,16)}, {vr(A,4)}, {vr(B,4)}, {cc}"
def S4(r): return f"s[{r}:{r+3}]"
def J(L): return "\n".join(L)

_stamp_names = []
def stamp(a, name):
    if not STAMPS: return
    if name not in _stamp_names: _stamp_names.append(name)
    i = _stamp_names.index(name)
    a.I("s_waitcnt lgkmcnt(0)")
    a.I("s_memtime s[98:99]")
    a.I("s_memrealtime s[100:101]")
    a.I("s_waitcnt lgkmcnt(0)")
    a.I(f"v_writelane_b32 v6, s98, {i}")
    a.I(f"v_writelane_b32 v7, s100, {i}")
def stamp_dyn(a):
    if not (STAMPS and OPT.get("fine")): return
    a.I("s_memtime s[98:99]")
    a.I("s_memrealtime s[100:101]")
    a.I("s_waitcnt lgkmcnt(0)")
    a.I("s_mov_b32 s88, m0")
    a.I("s_mov_b32 m0, s87")
    a.I("s_nop 3")
    a.I("v_writelane_b32 v6, s98, m0")
    a.I("v_writelane_b32 v7, s100, m0")
    a.I("s_mov_b32 m0, s88")
    a.I("s_add_u32 s87, s87, 1")
def dbg_dump(a, names, word0):
    lb = lab("dd")
    a.I(f"s_cmp_lg_u32 s2, {OPT.get('dbgwg', 0)}")
    a.I(f"s_cbranch_scc1 {lb}")
    a.I("v_readlane_b32 s90, v7, 0")
    for i, nm in enumerate(names):
        if nm not in _stamp_names: _stamp_names.append(nm)
        a.I(f"v_readlane_b32 s91, v7, {_stamp_names.index(nm)}")
        a.I("s_nop 3")
        a.I("s_sub_u32 s91, s91, s90")
        a.I("v_mov_b32 v2, s91")
        a.I(f"v_mov_b32 v3, {4*(word0+i)}")
        a.I("s_mov_b64 exec, 1")
        a.I(f"global_store_dword v3, v2, s[{S_DBG}:{S_DBG+1}]")
        a.I("s_mov_b64 exec, -1")
    a.L(lb)

def stamp_flush(a, who=None):
    if not STAMPS: return
    a.I("s_waitcnt vmcnt(0)")
    stamp(a, "end")
    if OPT.get("dbgdump"):
        if who == "ffn":
            l2 = lab("d8")
            a.I(f"s_cmp_lg_u32 s{S_W}, 8"); a.I(f"s_cbranch_scc1 {l2}")
            dbg_dump(a, ["E2", "FAok", "KV1", "hready", "ffn2", "attdone", "T2", "p3mm", "end"], 7)
            a.L(l2)
        elif who == "attn":
            l2 = lab("d0")
            a.I(f"s_and_b32 s91, s{S_W}, 3"); a.I("s_cmp_lg_u32 s91, 0"); a.I(f"s_cbranch_scc1 {l2}")
            a.I(f"s_cmp_ge_u32 s{S_W}, 4"); a.I(f"s_cbranch_scc1 {l2}")
            dbg_dump(a, ["karg", "B0", "qloop", "floop", "kvok", "aloop"], 1)
            a.L(l2)
    a.I(f"s_add_u32 s96, s{S_WS}, {STAMP_OFF}")
    a.I(f"s_addc_u32 s97, s{S_WS+1}, 0")
    a.I("s_mul_i32 s98, s2, 12")
    a.I(f"s_add_u32 s98, s98, s{S_W}")
    a.I("s_lshl_b32 s98, s98, 9")
    a.I("v_lshlrev_b32 v2, 2, v1")
    a.I("v_add_u32 v2, s98, v2")
    a.I("s_mov_b64 exec, -1")
    a.I("global_store_dword v2, v6, s[96:97]")
    a.I("global_store_dword v2, v7, s[96:97] offset:256")
    a.I("s_waitcnt vmcnt(0)")

def tr_lane_addr(a, dst, lane, tmp, tmp2, hrows, pitch):
    a.I(f"v_bfe_u32 v{tmp}, v{lane}, 2, 2")
    a.I(f"v_lshrrev_b32 v{tmp2}, 5, v{lane}")
    a.I(f"v_mul_u32_u24 v{tmp2}, {hrows}, v{tmp2}")
    a.I(f"v_add_u32 v{tmp}, v{tmp}, v{tmp2}")
    a.I(f"v_mul_u32_u24 v{dst}, {pitch}, v{tmp}")
    a.I(f"v_bfe_u32 v{tmp}, v{lane}, 4, 1")
    a.I(f"v_lshlrev_b32 v{tmp}, 1, v{tmp}")
    a.I(f"v_bfe_u32 v{tmp2}, v{lane}, 1, 1")
    a.I(f"v_add_u32 v{tmp}, v{tmp}, v{tmp2}")
    a.I(f"v_bfe_u32 v{tmp2}, v{lane}, 3, 1")
    a.I(f"v_lshlrev_b32 v{tmp2}, 2, v{tmp2}")
    a.I(f"v_xor_b32 v{tmp}, v{tmp}, v{tmp2}")
    a.I(f"v_lshl_add_u32 v{dst}, v{tmp}, 4, v{dst}")
    a.I(f"v_and_b32 v{tmp}, 1, v{lane}")
    a.I(f"v_lshl_add_u32 v{dst}, v{tmp}, 3, v{dst}")

def dma_w_lane_off(a, dst, lane, tmp, tmp2, pitch):
    a.I(f"v_lshrrev_b32 v{tmp}, 3, v{lane}")
    a.I(f"v_mul_u32_u24 v{dst}, {pitch}, v{tmp}")
    a.I(f"v_bfe_u32 v{tmp}, v{lane}, 4, 1")
    a.I(f"v_lshlrev_b32 v{tmp}, 2, v{tmp}")
    a.I(f"v_and_b32 v{tmp2}, 7, v{lane}")
    a.I(f"v_xor_b32 v{tmp}, v{tmp}, v{tmp2}")
    a.I(f"v_lshl_add_u32 v{dst}, v{tmp}, 4, v{dst}")

_lab = [0]
def lab(p):
    _lab[0] += 1
    return f"L_{p}{_lab[0]}"

def poll(a, srd_reg, nlanes, voff, vtmp, soff, slp=1):
    l0, l1 = lab("poll"), lab("polld")
    if nlanes < 64:
        a.I(f"s_mov_b32 exec_lo, {hex((1 << nlanes) - 1)}")
        a.I("s_mov_b32 exec_hi, 0")
    a.I("s_mov_b32 s50, 0x40000")
    a.L(l0)
    a.I(f"buffer_load_dword v{vtmp}, v{voff}, {S4(srd_reg)}, {soff} offen sc1")
    a.I("s_waitcnt vmcnt(0)")
    a.I(f"v_cmp_ne_u32 vcc, s{S_NONCE}, v{vtmp}")
    a.I(f"s_cbranch_vccz {l1}")
    a.I("s_sub_u32 s50, s50, 1")
    a.I("s_cmp_eq_u32 s50, 0")
    a.I(f"s_cbranch_scc1 {l1}")
    a.I(f"s_sleep {slp}")
    a.I(f"s_branch {l0}")
    a.L(l1)
    a.I("s_mov_b64 exec, -1")

def lds_spin(a, addr, target, vaddr, vtmp, slp=1):
    l0, l1 = lab("spin"), lab("spind")
    a.I(f"v_mov_b32 v{vaddr}, {addr}")
    a.I("s_mov_b32 s50, 0x400000")
    a.L(l0)
    a.I(f"ds_read_b32 v{vtmp}, v{vaddr}")
    a.I("s_waitcnt lgkmcnt(0)")
    a.I(f"v_readfirstlane_b32 s51, v{vtmp}")
    a.I("s_sub_u32 s50, s50, 1")
    a.I(f"s_cmp_ge_u32 s51, {target}")
    a.I(f"s_cbranch_scc1 {l1}")
    a.I("s_cmp_eq_u32 s50, 0")
    a.I(f"s_cbranch_scc1 {l1}")
    a.I(f"s_sleep {slp}")
    a.I(f"s_branch {l0}")
    a.L(l1)

def lds_add1(a, addr, vaddr, vtmp):
    a.I(f"v_mov_b32 v{vaddr}, {addr}")
    a.I(f"v_mov_b32 v{vtmp}, 1")
    a.I("s_mov_b64 exec, 1")
    a.I(f"ds_add_u32 v{vaddr}, v{vtmp}")
    a.I("s_mov_b64 exec, -1")

def flag_store(a, soff, v0_, v1_):
    a.I(f"v_mov_b32 v{v0_}, s{S_NONCE}")
    a.I(f"v_mov_b32 v{v1_}, 0")
    a.I("s_mov_b64 exec, 1")
    a.I(f"buffer_store_dword v{v0_}, v{v1_}, {S4(RC)}, {soff} offen sc1")
    a.I("s_mov_b64 exec, -1")

def prologue(a):
    a.raw(f".globl {KN}\n.p2align 8\n.type {KN},@function\n{KN}:")
    if STAMPS:
        a.I("s_memrealtime s[94:95]")
        a.I("s_memtime s[92:93]")
    a.I("s_cmp_ge_u32 s2, 256")
    a.I("s_cbranch_scc1 L_end")
    a.I("s_load_dwordx4 s[4:7], s[0:1], 0")
    a.I("s_load_dwordx2 s[8:9], s[0:1], 16")
    a.I("s_load_dwordx4 s[12:15], s[0:1], 32")
    a.I("s_load_dwordx4 s[16:19], s[0:1], 48")
    a.I("s_load_dwordx4 s[20:23], s[0:1], 64")
    a.I("s_load_dwordx4 s[24:27], s[0:1], 80")
    a.I("v_lshrrev_b32 v2, 6, v0")
    a.I("v_and_b32 v1, 63, v0")
    a.I(f"v_readfirstlane_b32 s{S_W}, v2")
    if OPT.get("codeearly", 1):
        a.I("s_getpc_b64 s[52:53]")
        a.L("L_pc0")
        a.I(f"s_sub_u32 s52, s52, L_pc0-{KN}")
        a.I("s_subb_u32 s53, s53, 0")
        a.I("v_lshlrev_b32 v3, 7, v0")
        a.I(f"v_min_u32 v3, L_code_end-{KN}-4, v3")
        a.I(f"s_cmp_ge_u32 s{S_W}, 3")
        a.I("s_cbranch_scc1 L_pc1")
        a.I("global_load_dword v31, v3, s[52:53]")
        a.L("L_pc1")
    if STAMPS:
        a.I("v_mov_b32 v6, 0"); a.I("v_mov_b32 v7, 0")
    a.I("s_and_b32 s52, s2, 7")
    a.I("s_lshr_b32 s53, s2, 3")
    if OPT.get("map84"):
        a.I("s_lshr_b32 s54, s52, 1")
        a.I("s_lshl_b32 s54, s54, 3")
        a.I("s_lshr_b32 s55, s53, 2")
        a.I(f"s_add_u32 s{S_RB}, s54, s55")
        a.I("s_and_b32 s54, s52, 1")
        a.I("s_lshl_b32 s54, s54, 2")
        a.I("s_and_b32 s55, s53, 3")
        a.I(f"s_add_u32 s{S_CG}, s54, s55")
    else:
        a.I("s_lshr_b32 s54, s52, 2")
        a.I("s_lshl_b32 s54, s54, 4")
        a.I("s_lshr_b32 s55, s53, 1")
        a.I(f"s_add_u32 s{S_RB}, s54, s55")
        a.I("s_and_b32 s54, s52, 3")
        a.I("s_lshl_b32 s54, s54, 1")
        a.I("s_and_b32 s55, s53, 1")
        a.I(f"s_add_u32 s{S_CG}, s54, s55")
    a.I(f"s_mul_i32 s54, s{S_CG}, 6")
    a.I(f"s_min_u32 s{S_START}, s54, 37")
    a.I(f"s_lshl_b32 s{S_HD}, s52, 2")
    a.I("s_and_b32 s54, s53, 3")
    a.I(f"s_add_u32 s{S_HD}, s{S_HD}, s54")
    a.I(f"s_lshr_b32 s{S_QB}, s2, 5")
    a.I("s_waitcnt lgkmcnt(0)")
    if STAMPS:
        _stamp_names.append("entry")
        a.I("v_writelane_b32 v6, s92, 0")
        a.I("v_writelane_b32 v7, s94, 0")
    stamp(a, "karg")
    a.I(f"s_cmp_ge_u32 s{S_W}, 8")
    a.I("s_cbranch_scc1 L_aux")
    a.I(f"s_cmp_lt_u32 s{S_W}, 4")
    a.I("s_cbranch_scc1 L_cons")

GATEPOS = 3
def producer(a, aux):
    T = "a" if aux else "p"
    if OPT.get("pprio"): a.I(f"s_setprio {OPT['pprio']}")
    a.I(f"s_sub_u32 s67, s{S_W}, 4")
    a.I(f"s_lshl_b32 s54, s{S_RB}, 16")
    srd_off(a, RA, S_AX, "s54", 65536)
    srd(a, RB, S_WQKV, 512*3072)
    a.I("v_lshrrev_b32 v2, 3, v1")
    a.I("s_lshl_b32 s54, s67, 3")
    a.I("v_add_u32 v2, s54, v2")
    a.I("v_lshrrev_b32 v3, 4, v1")
    a.I("s_and_b32 s54, s67, 1")
    a.I("s_lshl_b32 s54, s54, 2")
    a.I("v_add_u32 v3, s54, v3")
    a.I("v_and_b32 v4, 7, v1")
    a.I("v_xor_b32 v3, v3, v4")
    a.I("v_lshlrev_b32 v3, 4, v3")
    a.I("v_lshl_add_u32 v12, v2, 10, v3")
    a.I("s_lshl_b32 s68, s67, 10")
    def woffs(dst, pitch, segshift):
        for j in range(3):
            a.I(f"v_add_u32 v2, {64*j}, v1")
            a.I("v_mul_u32_u24 v3, 171, v2")
            a.I("v_lshrrev_b32 v3, 12, v3")
            a.I("v_mul_u32_u24 v4, 24, v3")
            a.I("v_sub_u32 v2, v2, v4")
            a.I("v_lshrrev_b32 v4, 3, v2")
            a.I("v_and_b32 v2, 7, v2")
            a.I("v_bfe_u32 v5, v3, 1, 1")
            a.I("v_lshlrev_b32 v5, 2, v5")
            a.I("v_xor_b32 v2, v2, v5")
            a.I("v_lshlrev_b32 v2, 4, v2")
            a.I(f"v_mul_u32_u24 v5, {pitch}, v3")
            a.I(f"v_lshl_add_u32 v5, v4, {segshift}, v5")
            a.I(f"v_add_u32 v{dst+j}, v5, v2")
    woffs(13, 3072, 10)
    a.I("s_mul_i32 s69, s67, 3072")
    a.I("s_add_u32 s69, s69, 0x10000")
    a.I(f"s_lshl_b32 s70, s{S_CG}, 7")
    a.I(f"s_mul_i32 s71, s67, {8*3072}")
    a.I("s_add_u32 s70, s70, s71")
    def pre_setup(item):
        k, c = item
        if k == "X":
            a.I(f"s_add_u32 m0, s68, {c*8192}")
            a.I(f"s_movk_i32 s81, {c*128}")
        else:
            a.I(f"s_add_u32 s82, s70, {c*64*3072}" if c < 8 else f"s_add_u32 s82, s71, {(c-8)*64*2752}")
            a.I(f"s_add_u32 m0, s69, {(c&3)*24576}")
    def issue_x(c, done=False):
        if OPT.get("p1noprod"): return
        if not done:
            a.I(f"s_add_u32 m0, s68, {c*8192}")
            a.I(f"s_movk_i32 s81, {c*128}")
        a.I(f"buffer_load_dwordx4 v12, {S4(RA)}, s81 offen lds")
    def issue_w(c, done=False):
        if OPT.get("p1noprod"): return
        if c < 8:
            if not done: a.I(f"s_add_u32 s82, s70, {c*64*3072}")
            vo, R = 13, RB
        else:
            if not done: a.I(f"s_add_u32 s82, s71, {(c-8)*64*2752}")
            vo, R = 16, RC
        for j in range(3):
            if not (done and j == 0):
                a.I(f"s_add_u32 m0, s69, {(c&3)*24576 + j*1024}")
                a.I("s_nop 0")
            a.I(f"buffer_load_dwordx4 v{vo+j}, {S4(R)}, s82 offen lds")
    sched = OPT.get("sched", 0)
    if sched == 0:
        pre = [("X",0),("W",0),("X",1),("W",1),("X",2),("W",2)]
        post = {c: ([("X",c+3)] if c+3 < 8 else []) + ([("W",c+3)] if c+3 < 16 else []) for c in range(16)}
    elif sched == 1:
        pre = [("X",0),("W",0),("X",1),("W",1),("X",2),("W",2),("X",3),("W",3),("X",4),("X",5),("X",6),("X",7)]
        post = {c: ([("W",c+3)] if (c >= 1 and c+3 < 16) else []) for c in range(16)}
    elif sched == 2:
        pre = [("X",0),("W",0),("X",1),("W",1),("X",2),("W",2),("X",3),("W",3)]
        post = {c: ([("W",c+3)] if (c >= 1 and c+3 < 16) else []) for c in range(16)}
        post[0] = [("X",4),("X",5),("X",6),("X",7)]
    fifo = []
    def do(item, done=False):
        k, c = item
        if k == "X":
            if OPT.get("skipx"): fifo.append((item, 0)); return
            issue_x(c, done); fifo.append((item, 1))
        else:
            if OPT.get("skipw") and c < 8: fifo.append((item, 0)); return
            issue_w(c, done); fifo.append((item, 3))
    for it in pre: do(it)
    if OPT.get("pfprod") and not aux:
        a.I(f"s_mov_b32 s89, s{S_W}")
        a.I(f"s_sub_u32 s{S_W}, s{S_W}, 4")
        l2_prefetch(a, 0)
        a.I(f"s_mov_b32 s{S_W}, s89")
        fifo.append(("pf", 2))
    stamp(a, "issued3")
    nside = 0
    if aux:
        nside = aux_side_issue(a)
    srd(a, RC, S_W1, 512*2752)
    if OPT.get("w1perm", 0):
        for j in range(3):
            a.I(f"v_add_u32 v2, {64*j}, v1")
            a.I("v_mul_u32_u24 v3, 171, v2")
            a.I("v_lshrrev_b32 v3, 12, v3")
            a.I("v_mul_u32_u24 v4, 24, v3")
            a.I("v_sub_u32 v2, v2, v4")
            a.I("v_lshrrev_b32 v4, 2, v2")
            a.I("v_and_b32 v2, 3, v2")
            a.I("v_bfe_u32 v5, v3, 1, 1")
            a.I("v_xor_b32 v4, v4, v5")
            a.I("v_add_u32 v5, 1, v4")
            a.I("v_cmp_eq_u32 vcc, 4, v4")
            a.I("s_nop 1")
            a.I("v_cndmask_b32_e64 v5, v5, 0, vcc")
            a.I("v_cmp_eq_u32 vcc, 5, v4")
            a.I("s_nop 1")
            a.I("v_cndmask_b32_e64 v5, v5, 5, vcc")
            a.I(f"v_add_u32 v19, s{S_START}, v3")
            a.I("v_and_b32 v19, 1, v19")
            a.I("v_cmp_eq_u32 vcc, 1, v19")
            a.I("s_nop 1")
            a.I("v_cndmask_b32 v4, v4, v5, vcc")
            a.I("v_lshlrev_b32 v4, 6, v4")
            a.I("v_lshl_add_u32 v4, v2, 4, v4")
            a.I("v_mul_u32_u24 v5, 2752, v3")
            a.I(f"v_add_u32 v{16+j}, v5, v4")
    else:
        woffs(16, 2752, 7)
    a.I(f"s_lshl_b32 s71, s{S_START}, 6")
    a.I(f"s_mul_i32 s72, s67, {8*2752}")
    a.I("s_add_u32 s71, s71, s72")
    fap = OPT.get("fapos", 2)
    assert fap >= 2
    for c in range(16):
        need = [("W", c)] + ([("X", c)] if c < 8 else [])
        idx = max(i for i, (it, _) in enumerate(fifo) if it in need)
        allow = sum(k for _, k in fifo[idx+1:])
        if c == 0 and STAMPS and OPT.get("fine"): a.I("s_mov_b32 s87, 24")
        stamp_dyn(a)
        early = OPT.get("early", 1) and not STAMPS and len(post[c]) > 0 and not OPT.get("p1noprod")
        if early:
            pre_setup(post[c][0])
        a.I(f"s_waitcnt vmcnt({allow})")
        stamp_dyn(a)
        a.I("s_barrier")
        for n_, it in enumerate(post[c]): do(it, early and n_ == 0)
        if aux and c == 2:
            fifo.append(("side", aux_side_loads(a)))
        if aux and c == 6:
            aux_gate(a)
            fifo.append(("g", 1))
        if aux and c == 7:
            fifo.append(("nonce", aux_nonce_issue(a)))
        if aux and c == 10:
            aux_zero_misc(a)
        if aux and c == 11:
            aux_nonce_take(a)
        if aux and c == 12:
            aux_share_nonce(a)
        if aux and c == 15:
            aux_fa_probe(a)
        if aux and c == 9 + fap:
            aux_publish_fa(a)
    a.I("s_barrier")
    if aux:
        aux_after_e1(a)
    else:
        if OPT.get("pprio"): a.I("s_setprio 0")
        a.I("s_branch L_attn")

def glob_w2(a):
    a.I("v_lshlrev_b32 v20, 7, v1")
    srd(a, RC, S_W2, 1376*1024)
    a.I("s_mul_i32 s54, s2, 5504")
    a.I("s_mov_b32 exec_hi, 0xfff")
    a.I(f"buffer_load_dword v24, v20, {S4(RC)}, s54 offen")
    srd(a, RC, S_WO, 512*1024)
    a.I("s_lshl_b32 s54, s2, 11")
    a.I("s_mov_b32 exec_hi, 0")
    a.I("s_mov_b32 exec_lo, 0xffff")
    a.I(f"buffer_load_dword v25, v20, {S4(RC)}, s54 offen")
    a.I("s_mov_b64 exec, -1")

def l2_prefetch(a, part):
    a.I("s_and_b32 s52, s2, 7")
    a.I("s_lshr_b32 s53, s2, 3")
    a.I("s_lshl_b32 s54, s53, 4")
    a.I(f"s_lshl_b32 s55, s{S_W}, 2")
    a.I("s_add_u32 s56, s54, s55")
    if OPT.get("pfglob", 1) and part == 0:
        lg = lab("pfg")
        a.I("v_lshlrev_b32 v20, 7, v1")
        a.I(f"s_cmp_eq_u32 s{S_W}, 0")
        a.I(f"s_cbranch_scc0 {lg}a")
        srd(a, RC, S_AX, 2*MB)
        a.I("s_lshl_b32 s54, s2, 13")
        a.I(f"buffer_load_dword v24, v20, {S4(RC)}, s54 offen")
        a.I(f"s_branch {lg}d")
        a.L(f"{lg}a")
        a.I(f"s_cmp_eq_u32 s{S_W}, 1")
        a.I(f"s_cbranch_scc0 {lg}b")
        srd(a, RC, S_WQKV, 512*3072)
        a.I("s_mul_i32 s54, s2, 6144")
        a.I("s_mov_b32 exec_hi, 0xffff")
        a.I(f"buffer_load_dword v24, v20, {S4(RC)}, s54 offen")
        a.I("s_mov_b64 exec, -1")
        a.I(f"s_branch {lg}d")
        a.L(f"{lg}b")
        a.I(f"s_cmp_eq_u32 s{S_W}, 2")
        a.I(f"s_cbranch_scc0 {lg}c")
        srd(a, RC, S_W1, 512*2752)
        a.I("s_mul_i32 s54, s2, 5504")
        a.I("s_mov_b32 exec_hi, 0xfff")
        a.I(f"buffer_load_dword v24, v20, {S4(RC)}, s54 offen")
        a.I("s_mov_b64 exec, -1")
        a.I(f"s_branch {lg}d")
        a.L(f"{lg}c")
        if OPT.get("pfw2") == 1:
            glob_w2(a)
        a.L(f"{lg}d")
        if OPT.get("pfglob", 1) == 1: return
        OPT["nopfx"] = 1 if OPT["pfglob"] == 2 else 0
    if OPT.get("map84"):
        if part == 0:
            srd(a, RC, S_AX, 2*MB)
            a.I("s_lshr_b32 s54, s52, 1")
            a.I("s_lshl_b32 s54, s54, 9")
            a.I("s_add_u32 s54, s54, s56")
            a.I("s_lshl_b32 s54, s54, 10")
            a.I("v_lshlrev_b32 v20, 7, v1")
            a.I("s_mov_b32 exec_hi, 0")
            a.I(f"buffer_load_dword v24, v20, {S4(RC)}, s54 offen")
            a.I("s_mov_b64 exec, -1")
            srd(a, RC, S_WQKV, 512*3072)
            a.I("s_mul_i32 s54, s56, 3072")
            a.I("s_and_b32 s55, s52, 1")
            a.I("s_lshl_b32 s55, s55, 9")
            a.I("s_add_u32 s54, s54, s55")
            a.I("v_lshrrev_b32 v21, 4, v1")
            a.I("v_mul_u32_u24 v21, 3072, v21")
            a.I("v_bfe_u32 v22, v1, 2, 2")
            a.I("v_min_u32 v22, 2, v22")
            a.I("v_lshl_add_u32 v21, v22, 10, v21")
            a.I("v_and_b32 v22, 3, v1")
            a.I("v_lshl_add_u32 v21, v22, 7, v21")
            a.I(f"buffer_load_dword v25, v21, {S4(RC)}, s54 offen")
        else:
            srd(a, RC, S_W1, 512*2752)
            a.I("s_and_b32 s55, s52, 1")
            a.I("s_mul_i32 s55, s55, 1536")
            a.I("s_mul_i32 s54, s56, 2752")
            a.I("s_add_u32 s54, s54, s55")
            a.I("v_lshrrev_b32 v21, 4, v1")
            a.I("v_mul_u32_u24 v21, 2752, v21")
            a.I("v_and_b32 v22, 15, v1")
            a.I("v_min_u32 v22, 12, v22")
            a.I("v_lshl_add_u32 v21, v22, 7, v21")
            a.I(f"buffer_load_dword v26, v21, {S4(RC)}, s54 offen")
        return
    if part == 2:
        a.I(f"s_cmp_lg_u32 s{S_W}, 0")
        a.I("s_cbranch_scc1 L_pf2")
        srd(a, RC, S_WQKV, 512*3072)
        a.I("s_lshl_b32 s54, s53, 3")
        a.I("s_add_u32 s54, s54, 256")
        a.I("s_mul_i32 s54, s54, 3072")
        a.I("s_and_b32 s55, s52, 3")
        a.I("s_lshl_b32 s55, s55, 8")
        a.I("s_add_u32 s54, s54, s55")
        a.I("v_lshrrev_b32 v21, 3, v1")
        a.I("v_mul_u32_u24 v21, 3072, v21")
        a.I("v_bfe_u32 v22, v1, 1, 2")
        a.I("v_min_u32 v22, 2, v22")
        a.I("v_lshl_add_u32 v21, v22, 10, v21")
        a.I("v_and_b32 v22, 1, v1")
        a.I("v_lshl_add_u32 v21, v22, 7, v21")
        a.I(f"buffer_load_dword v25, v21, {S4(RC)}, s54 offen")
        a.L("L_pf2")
    elif part == 0:
        G = OPT.get("pfg", 128)
        sh = {128: 7, 64: 6, 32: 5}[G]
        srd(a, RC, S_AX, 2*MB)
        a.I("s_lshr_b32 s54, s52, 2")
        a.I("s_lshl_b32 s54, s54, 10")
        a.I("s_lshl_b32 s55, s53, 5")
        a.I("s_add_u32 s54, s54, s55")
        a.I(f"s_lshl_b32 s55, s{S_W}, 3")
        a.I("s_add_u32 s54, s54, s55")
        a.I("s_lshl_b32 s54, s54, 10")
        if OPT.get("pftrim", 0):
            a.I("v_and_b32 v20, 7, v1")
            a.I("v_max_u32 v20, 3, v20")
            a.I("v_lshlrev_b32 v20, 7, v20")
            a.I("v_lshrrev_b32 v21, 3, v1")
            a.I("v_lshl_add_u32 v20, v21, 10, v20")
        else:
            a.I(f"v_lshlrev_b32 v20, {sh}, v1")
        for i in range(0 if OPT.get("nopfx") else 8192 // (64*G)):
            a.I(f"buffer_load_dword v24, v20, {S4(RC)}, s54 offen")
            a.I(f"s_add_u32 s54, s54, {64*G}")
        if OPT.get("pftrim", 0):
            a._pfl = lab("pfs")
            a.I("s_cmp_lt_u32 s53, 12")
            a.I(f"s_cbranch_scc1 {a._pfl}")
        srd(a, RC, S_WQKV, 512*3072)
        a.I("s_mul_i32 s54, s56, 3072")
        a.I("s_and_b32 s55, s52, 3")
        a.I("s_lshl_b32 s55, s55, 8")
        a.I("s_add_u32 s54, s54, s55")
        per = 256 // G
        a.I("v_lshrrev_b32 v21, 4, v1")
        a.I("v_mul_u32_u24 v21, 3072, v21")
        a.I("v_and_b32 v22, 15, v1")
        if G == 64:
            a.I("v_lshrrev_b32 v23, 2, v22")
            a.I("v_min_u32 v23, 2, v23")
            a.I("v_lshl_add_u32 v21, v23, 10, v21")
            a.I("v_and_b32 v22, 3, v22")
            a.I("v_lshl_add_u32 v21, v22, 6, v21")
            a.I(f"buffer_load_dword v25, v21, {S4(RC)}, s54 offen")
        elif G == 32:
            a.I("v_lshrrev_b32 v23, 3, v22")
            a.I("v_lshl_add_u32 v21, v23, 10, v21")
            a.I("v_and_b32 v22, 7, v22")
            a.I("v_lshl_add_u32 v21, v22, 5, v21")
            a.I(f"buffer_load_dword v25, v21, {S4(RC)}, s54 offen")
            a.I(f"buffer_load_dword v25, v21, {S4(RC)}, s54 offen offset:2048")
        else:
            a.I("v_lshrrev_b32 v23, 1, v22")
            a.I("v_min_u32 v23, 2, v23")
            a.I("v_lshl_add_u32 v21, v23, 10, v21")
            a.I("v_and_b32 v22, 1, v22")
            a.I("v_lshl_add_u32 v21, v22, 7, v21")
            a.I(f"buffer_load_dword v25, v21, {S4(RC)}, s54 offen")
        if OPT.get("pftrim", 0):
            a.L(a._pfl)
    else:
        a.I(f"s_cmp_ge_u32 s{S_W}, 2")
        a.I("s_cbranch_scc1 L_pf1")
        srd(a, RC, S_W1, 512*2752)
        a.I("s_and_b32 s55, s52, 3")
        a.I("s_mul_i32 s55, s55, 12")
        a.I("s_min_u32 s55, s55, 31")
        a.I("s_lshl_b32 s55, s55, 6")
        a.I("s_lshl_b32 s54, s53, 4")
        a.I(f"s_lshl_b32 s56, s{S_W}, 3")
        a.I("s_add_u32 s54, s54, s56")
        a.I("s_mul_i32 s54, s54, 2752")
        a.I("s_add_u32 s54, s54, s55")
        a.I("v_lshrrev_b32 v21, 3, v1")
        a.I("v_mul_u32_u24 v21, 2752, v21")
        a.I("v_and_b32 v22, 7, v1")
        a.I("v_lshl_add_u32 v21, v22, 7, v21")
        a.I(f"buffer_load_dword v26, v21, {S4(RC)}, s54 offen")
        a.L("L_pf1")

def consumer(a):
    a.L("L_cons")
    H, XA, WA, ACC, B1, FA, FB = 2, 8, 12, 32, 80, 104, 136
    if not OPT.get("nopf") and not OPT.get("pflate") and not OPT.get("pfprod"):
        l2_prefetch(a, OPT.get("pfmode", 0))
    a.I(f"v_lshrrev_b32 v{H}, 5, v1")
    a.I(f"s_and_b32 s63, s{S_W}, 1")
    a.I(f"s_lshr_b32 s64, s{S_W}, 1")
    srd(a, RD, S_B1, 2752)
    a.I(f"s_add_u32 s54, s{S_START}, s63")
    a.I("s_lshl_b32 s54, s54, 6")
    a.I(f"v_lshlrev_b32 v3, 3, v{H}")
    for s in range(3):
        for q in range(4):
            r = B1 + (s*4+q)*2
            a.I(f"buffer_load_dwordx2 v[{r}:{r+1}], v3, {S4(RD)}, s54 offen offset:{s*128+q*16}")
    for i in range(48):
        a.I(f"v_mov_b32 v{ACC+i}, 0")
    a.I("v_and_b32 v16, 31, v1")
    a.I("v_bfe_u32 v17, v1, 1, 3")
    a.I("s_lshl_b32 s54, s64, 5")
    a.I("v_add_u32 v16, s54, v16")
    a.I("v_lshlrev_b32 v16, 7, v16")
    a.I(f"v_xor_b32 v17, v17, v{H}")
    for ks in range(4):
        a.I(f"v_xor_b32 v18, {2*ks}, v17")
        a.I(f"v_lshl_add_u32 v{XA+ks}, v18, 4, v16")
    tr_lane_addr(a, WA, 1, 16, 17, 8, 384)
    a.I("s_lshl_b32 s54, s63, 6")
    a.I(f"v_xor_b32 v{WA}, s54, v{WA}")
    a.I(f"v_add_u32 v{WA}, 0x10000, v{WA}")
    a.I(f"v_add_u32 v{WA+1}, 49152, v{WA}")
    WF1 = [14, 15, 28, 29, 30, 31]
    if OPT.get("w1perm", 0):
        a.I("v_bfe_u32 v16, v1, 2, 2")
        a.I(f"v_lshl_add_u32 v17, v{H}, 3, v16")
        a.I("v_mul_u32_u24 v17, 384, v17")
        a.I("v_bfe_u32 v18, v1, 4, 1")
        a.I("v_lshlrev_b32 v18, 1, v18")
        a.I("v_bfe_u32 v19, v1, 1, 1")
        a.I("v_add_u32 v18, v18, v19")
        a.I("v_lshl_add_u32 v17, v18, 4, v17")
        a.I("v_and_b32 v18, 1, v1")
        a.I("v_lshl_add_u32 v17, v18, 3, v17")
        a.I("v_add_u32 v17, 0x10000, v17")
        a.I(f"v_add_u32 v18, s{S_START}, v16")
        a.I("v_and_b32 v18, 1, v18")
        a.I("v_cmp_eq_u32 vcc, 1, v18")
        a.I("v_bfe_u32 v19, v1, 3, 1")
        inv = [4, 0, 1, 2, 3, 5]
        for s_ in range(3):
            a.I(f"s_cmp_eq_u32 s63, 0")
            a.I(f"s_cselect_b32 s54, {2*s_}, {2*s_+1}")
            a.I(f"s_cselect_b32 s55, {inv[2*s_]}, {inv[2*s_+1]}")
            a.I(f"v_mov_b32 v26, s54")
            a.I(f"v_mov_b32 v27, s55")
            a.I(f"v_cndmask_b32 v26, v26, v27, vcc")
            a.I(f"v_xor_b32 v26, v26, v19")
            a.I(f"v_lshl_add_u32 v{WF1[s_]}, v26, 6, v17")
            a.I(f"v_add_u32 v{WF1[3+s_]}, 49152, v{WF1[s_]}")

    def reads(b, G, F, qkv=True):
        out = []
        if OPT.get("p1nocons"): return ["s_nop 0"]
        wv = WA + (b >> 1)
        for l in range(2):
            ks = 2*G + l
            out.append(f"ds_read_b128 {vr(F+4*l,4)}, v{XA+ks} offset:{b*8192}")
            for s in range(3):
                for rd in range(2):
                    if qkv or not OPT.get("w1perm", 0):
                        out.append(f"ds_read_b64_tr_b16 {vr(F+8+12*l+4*s+2*rd,2)}, v{wv} offset:{(b&1)*24576 + ks*6144 + rd*1536 + s*128}")
                    else:
                        out.append(f"ds_read_b64_tr_b16 {vr(F+8+12*l+4*s+2*rd,2)}, v{WF1[3*(b>>1)+s]} offset:{(b&1)*24576 + ks*6144 + rd*1536}")
        return out
    def mfmas(F, qkv):
        out = []
        if OPT.get("p1nocons") or OPT.get("p1nomfma"): return ["s_nop 0"]
        for l in range(2):
            for s in range(3):
                X, W = F+4*l, F+8+12*l+4*s
                out.append(MF(ACC+16*s, X, W, ACC+16*s) if (qkv and s == 2) else MF(ACC+16*s, W, X, ACC+16*s))
        return out
    def inter(mf, rd):
        out = []
        per = OPT.get("iper", [4, 4, 3, 3, 0, 0])
        if len(mf) != 6: return mf + rd
        k = 0
        for i, m in enumerate(mf):
            out.append(m)
            out += rd[k:k+per[i]]
            k += per[i]
        assert k >= len(rd)
        return out
    def stage_loop(tag, qkv):
        a.I("s_mov_b32 s65, 0x8000")
        a.L(f"L_loop_{tag}")
        fap = OPT.get("fapos", 2)
        for b in range(4):
            a.I("s_waitcnt lgkmcnt(0)")
            a.I(J(inter(mfmas(FA, qkv), reads(b, 1, FB, qkv))))
            if (not qkv) and b == (fap & 3):
                if fap >= 4:
                    a.I("s_cmp_lt_i32 s65, 0")
                    a.I(f"s_cbranch_scc0 L_nodrain")
                a.I("s_waitcnt vmcnt(0)")
                if fap >= 4: a.L("L_nodrain")
            a.I("s_waitcnt lgkmcnt(0)")
            if b == 3:
                if not qkv:
                    a.I("s_cmp_lt_i32 s65, 0")
                    a.I(f"s_cbranch_scc1 L_last_{tag}")
                for ks in range(4):
                    a.I(f"v_add_u32 v{XA+ks}, s65, v{XA+ks}")
            stamp_dyn(a)
            a.I("s_barrier")
            stamp_dyn(a)
            if qkv and b == 3:
                a.I("s_cmp_lt_i32 s65, 0")
                a.I("s_cbranch_scc1 L_qtail")
            a.I(J(inter(mfmas(FB, qkv), reads((b+1) % 4, 0, FA, qkv))))
        if qkv:
            a.I("s_mov_b32 s65, 0xffff8000")
            a.I(f"s_branch L_loop_{tag}")
            a.L("L_qtail")
            a.I(J(inter(mfmas(FB, qkv), reads(0, 0, FA, False))))
        else:
            a.I("s_mov_b32 s65, 0xffff8000")
            a.I(f"s_branch L_loop_{tag}")
        if not qkv:
            a.L(f"L_last_{tag}")
            a.I(J(mfmas(FB, qkv)))

    if OPT.get("pflate"):
        for i in range(OPT["pflate"]):
            a.I("s_sleep 8")
        l2_prefetch(a, 0)
    if OPT.get("pfw1early"):
        l2_prefetch(a, 1)
    a.I("s_barrier")
    stamp(a, "B0")
    if STAMPS and OPT.get("fine"): a.I("s_mov_b32 s87, 24")
    if not OPT.get("nopf") and not OPT.get("pfw1early") and not OPT.get("nopfw1"):
        l2_prefetch(a, 1)
    if OPT.get("pfw2") == 2:
        lw = lab("pw2")
        a.I(f"s_cmp_lg_u32 s{S_W}, 3")
        a.I(f"s_cbranch_scc1 {lw}")
        glob_w2(a)
        a.L(lw)
    a.I(J(reads(0, 0, FA)))
    stage_loop("q", True)
    stamp(a, "qloop")
    srd(a, RA, S_WS, VF + 2*MB)
    a.I(f"s_lshl_b32 s54, s{S_RB}, 1")
    a.I("s_add_u32 s54, s54, s64")
    a.I(f"s_lshl_b32 s55, s{S_CG}, 2")
    a.I("s_lshl_b32 s56, s63, 1")
    a.I("s_add_u32 s55, s55, s56")
    a.I("s_lshl_b32 s55, s55, 6")
    a.I("s_add_u32 s54, s54, s55")
    a.I("s_lshl_b32 s54, s54, 10")
    a.I("v_lshlrev_b32 v3, 4, v1")
    a.I("v_bfe_u32 v4, v1, 4, 1")
    a.I("v_lshlrev_b32 v4, 16, v4")
    a.I(f"v_lshl_add_u32 v4, v{H}, 8, v4")
    a.I("v_and_b32 v5, 15, v1")
    a.I("v_lshl_add_u32 v4, v5, 4, v4")
    a.I(f"s_mov_b32 s56, {hex(f2u(QSCALE))}")
    a.I("s_waitcnt vmcnt(0)")
    a.I("s_nop 4")
    for idx, s in enumerate((1, 2, 0)):
        d = ACC + 16*s
        if s == 0:
            for i in range(16):
                a.I(f"v_mul_f32 v{d+i}, s56, v{d+i}")
        for j in range(8):
            a.I(f"v_cvt_pk_bf16_f32 v{d+j}, v{d+2*j}, v{d+2*j+1}")
        if s < 2:
            for hh in range(2):
                a.I(f"s_add_u32 s55, s54, {(KF if s else QF) + hh*65536}")
                a.I(f"buffer_store_dwordx4 {vr(d+4*hh,4)}, v3, {S4(RA)}, s55 offen sc1")
        else:
            a.I(f"s_add_u32 s55, s54, {VF}")
            for u in range(2):
                a.I(f"buffer_store_dwordx4 {vr(d+4*u,4)}, v4, {S4(RA)}, s55 offen offset:{u*512} sc1")
    a.I("s_nop 1")
    for s in range(3):
        for q in range(4):
            r = B1 + (s*4+q)*2
            d = ACC + s*16 + q*4
            a.I(f"v_lshlrev_b32 v{d}, 16, v{r}")
            a.I(f"v_and_b32 v{d+1}, 0xffff0000, v{r}")
            a.I(f"v_lshlrev_b32 v{d+2}, 16, v{r+1}")
            a.I(f"v_and_b32 v{d+3}, 0xffff0000, v{r+1}")
    stage_loop("f", False)
    a.I("s_barrier")
    stamp(a, "floop")
    srd_off(a, RA, S_WS, HF, HF_SIZE)
    a.I(f"s_lshl_b32 s54, s{S_RB}, 1")
    a.I("s_add_u32 s54, s54, s64")
    a.I(f"s_add_u32 s55, s{S_START}, s63")
    a.I("s_lshl_b32 s55, s55, 7")
    a.I("s_add_u32 s54, s54, s55")
    a.I("s_lshl_b32 s54, s54, 10")
    a.I("v_lshlrev_b32 v3, 4, v1")
    a.I("s_nop 4")
    for s in range(3):
        d = ACC + 16*s
        for i in range(16):
            a.I(f"v_max_f32 v{d+i}, 0, v{d+i}")
        for i in range(16):
            a.I(f"v_mul_f32 v{d+i}, v{d+i}, v{d+i}")
        for j in range(8):
            a.I(f"v_cvt_pk_bf16_f32 v{d+j}, v{d+2*j}, v{d+2*j+1}")
        for uu in range(2):
            a.I(f"s_add_u32 s55, s54, {(4*s+uu)*65536}")
            a.I(f"buffer_store_dwordx4 {vr(d+4*uu,4)}, v3, {S4(RA)}, s55 offen sc1")
    a.I("s_nop 1")
    a.I("s_branch L_attn")

def aux_side_issue(a):
    a.I("s_sub_u32 s66, s67, 4")
    a.I(f"s_lshl_b32 s54, s2, 2")
    a.I("s_or_b32 s54, s54, s66")
    a.I("s_cmp_lg_u32 s54, 0")
    a.I("s_cbranch_scc1 L_aux1")
    srd(a, RD, S_DBG, 256)
    a.I("s_memrealtime s[54:55]")
    a.I("s_waitcnt lgkmcnt(0)")
    a.I("s_or_b32 s85, s54, 1")
    a.I("v_mov_b32 v8, s85")
    a.I("v_mov_b32 v10, 0")
    a.I("s_mov_b64 exec, 1")
    a.I(f"buffer_store_dword v8, v10, {S4(RD)}, 0 offen sc1")
    a.I("s_mov_b64 exec, -1")
    a.L("L_aux1")
    a.I(f"s_lshl_b32 s54, s{S_RB}, 6")
    a.I(f"s_lshl_b32 s55, s{S_CG}, 3")
    a.I("s_add_u32 s54, s54, s55")
    a.I("s_lshl_b32 s55, s66, 1")
    a.I("s_add_u32 s86, s54, s55")
    return 0

def aux_side_loads(a):
    a.I("s_lshl_b32 s54, s86, 10")
    srd_off(a, RD, S_AX, "s54", 2048)
    a.I("v_and_b32 v2, 31, v1")
    a.I("v_lshlrev_b32 v2, 5, v2")
    a.I("v_lshrrev_b32 v3, 5, v1")
    a.I("v_lshl_add_u32 v4, v3, 10, v2")
    for i in range(2):
        a.I(f"buffer_load_dwordx4 {vr(32+4*i,4)}, v4, {S4(RD)}, 0 offen offset:{16*i}")
    srd(a, RD, S_GW, 1024)
    for i in range(2):
        a.I(f"buffer_load_dwordx4 {vr(40+4*i,4)}, v2, {S4(RD)}, 0 offen offset:{16*i}")
    n = 4
    if OPT.get("codepf", 1) and not OPT.get("codeearly", 1):
        a.I("s_getpc_b64 s[52:53]")
        a.L("L_pc")
        a.I(f"s_sub_u32 s52, s52, L_pc-{KN}")
        a.I("s_subb_u32 s53, s53, 0")
        a.I("s_mul_i32 s54, s66, 6144")
        a.I("v_lshlrev_b32 v5, 7, v1")
        a.I("v_add_u32 v5, s54, v5")
        a.I(f"v_min_u32 v5, L_code_end-{KN}-4, v5")
        a.I("s_mov_b32 exec_hi, 0xffff")
        a.I("global_load_dword v116, v5, s[52:53]")
        a.I("s_mov_b64 exec, -1")
        n += 1
    return n

def aux_nonce_issue(a):
    srd(a, RD, S_DBG, 256)
    a.I("v_mov_b32 v10, 0")
    a.I(f"buffer_load_dword v8, v10, {S4(RD)}, 0 offen sc1")
    return 1

def aux_nonce_take(a):
    a.I(f"v_readfirstlane_b32 s{S_NONCE}, v8")
    a.I("s_mov_b32 s50, 0x40000")
    a.L("L_nonce")
    a.I(f"s_cmp_lg_u32 s{S_NONCE}, 0")
    a.I("s_cbranch_scc1 L_nonce_ok")
    a.I("s_sub_u32 s50, s50, 1")
    a.I("s_cmp_eq_u32 s50, 0")
    a.I("s_cbranch_scc1 L_nonce_ok")
    srd(a, RD, S_DBG, 256)
    a.I(f"buffer_load_dword v8, v10, {S4(RD)}, 0 offen sc1")
    a.I("s_waitcnt vmcnt(0)")
    a.I(f"v_readfirstlane_b32 s{S_NONCE}, v8")
    a.I("s_branch L_nonce")
    a.L("L_nonce_ok")

def aux_gate(a):
    if OPT.get("p1noprod"): a.I("s_waitcnt vmcnt(0)")
    a.I("v_mov_b32 v24, 0")
    for i in range(8):
        a.I(f"v_dot2c_f32_bf16 v24, v{32+i}, v{40+i}")
    a.I("s_nop 3")
    for sh in (1, 2, 4, 8):
        a.I(f"v_add_f32_dpp v24, v24, v24 row_shr:{sh} row_mask:0xf bank_mask:0xf")
        a.I("s_nop 1")
    a.I("v_add_f32_dpp v24, v24, v24 row_bcast:15 row_mask:0xa bank_mask:0xf")
    a.I("s_nop 1")
    a.I("v_cvt_pk_bf16_f32 v24, v24, v24")
    a.I("v_and_b32 v24, 0xffff0000, v24")
    a.I(f"v_mul_f32 v24, {hex(f2u(-1.4426950408889634))}, v24")
    a.I("v_exp_f32 v24, v24")
    a.I("s_nop 0")
    a.I("v_add_f32 v24, 1.0, v24")
    a.I("v_rcp_f32 v24, v24")
    a.I("s_nop 0")
    a.I("v_cvt_pk_bf16_f32 v24, v24, v24")
    a.I("v_and_b32 v24, 0xffff0000, v24")
    srd_off(a, RD, S_WS, GO, 8192)
    a.I("s_lshl_b32 s54, s86, 2")
    a.I("v_lshrrev_b32 v3, 5, v1")
    a.I("v_lshlrev_b32 v3, 2, v3")
    a.I("s_mov_b32 s52, 0x80000000")
    a.I("s_mov_b32 s53, 0x80000000")
    a.I("s_mov_b64 exec, s[52:53]")
    a.I(f"buffer_store_dword v24, v3, {S4(RD)}, s54 offen sc1")
    a.I("s_mov_b64 exec, -1")

def aux_publish_fa(a):
    a.I("s_cmp_lg_u32 s66, 0")
    a.I("s_cbranch_scc1 L_aux2")
    srd_off(a, RD, S_WS, FLG, FLG_SIZE)
    a.I(f"s_lshl_b32 s54, s{S_CG}, 7")
    a.I(f"s_lshl_b32 s55, s{S_RB}, 2")
    a.I("s_add_u32 s54, s54, s55")
    a.I(f"s_add_u32 s54, s54, {FA_OFF}")
    a.I(f"v_mov_b32 v8, s{S_NONCE}")
    a.I(f"v_mov_b32 v10, 0")
    a.I("s_mov_b64 exec, 1")
    a.I(f"buffer_store_dword v8, v10, {S4(RD)}, s54 offen sc1")
    a.I("s_mov_b64 exec, -1")
    stamp(a, "FApub")
    a.L("L_aux2")

def aux_zero_misc(a):
    a.I("s_cmp_lg_u32 s66, 1")
    a.I("s_cbranch_scc1 L_aux3")
    a.I(f"v_lshlrev_b32 v10, 2, v1")
    if L_MISC: a.I(f"v_add_u32 v10, {L_MISC}, v10")
    a.I("v_mov_b32 v9, 0")
    a.I("ds_write_b32 v10, v9")
    a.I("s_waitcnt lgkmcnt(0)")
    a.I("v_mov_b32 v10, 0")
    a.L("L_aux3")

def aux_share_nonce(a):
    a.I("s_cmp_lg_u32 s66, 0")
    a.I("s_cbranch_scc1 L_aux4")
    a.I(f"v_mov_b32 v9, {L_MISC + 128}")
    a.I(f"v_mov_b32 v11, s{S_NONCE}")
    a.I("ds_write_b32 v9, v11")
    a.I("s_waitcnt lgkmcnt(0)")
    a.L("L_aux4")

def aux_fa_probe(a):
    srd_off(a, RC, S_WS, FLG, FLG_SIZE)
    a.I(f"s_lshr_b32 s88, s{S_HD}, 2")
    a.I("s_lshl_b32 s88, s88, 7")
    a.I(f"s_add_u32 s88, s88, {FA_OFF}")
    a.I("v_lshlrev_b32 v9, 2, v1")
    a.I("s_mov_b32 exec_hi, 0")
    a.I(f"buffer_load_dword v11, v9, {S4(RC)}, s88 offen sc1")
    a.I("s_mov_b64 exec, -1")

def aux_after_e1(a):
    a.I("s_mov_b32 s67, s66")
    a.I("s_setprio 3")
    stamp(a, "E2")
    a.I("s_mov_b32 exec_hi, 0")
    a.I("s_waitcnt vmcnt(0)")
    a.I(f"v_cmp_ne_u32 vcc, s{S_NONCE}, v11")
    a.I("s_mov_b64 exec, -1")
    a.I("s_cbranch_vccz L_aux5")
    poll(a, RC, 32, 9, 11, "s88", OPT.get("faslp", 2))
    a.L("L_aux5")
    stamp(a, "FAok")
    VL = 4
    a.I(f"v_lshlrev_b32 v{VL}, 4, v1")
    a.I(f"s_lshl_b32 s54, s{S_HD}, 16")
    a.I(f"s_add_u32 s55, s54, {KF}")
    srd_off(a, RA, S_WS, "s55", 65536)
    a.I(f"s_add_u32 s55, s54, {VF}")
    srd_off(a, RB, S_WS, "s55", 65536)
    a.I(f"s_add_u32 s55, s54, {QF}")
    srd_off(a, RD, S_WS, "s55", 65536)
    a.I(f"s_lshl_b32 s54, s{S_QB}, 3")
    a.I("s_lshl_b32 s55, s67, 1")
    a.I("s_add_u32 s54, s54, s55")
    a.I("s_lshl_b32 s54, s54, 10")
    a.I("s_lshl_b32 s55, s67, 11")
    a.I(f"s_add_u32 s55, s55, {L_RING}")
    for t in range(2):
        a.I(f"s_add_u32 m0, s55, {t*1024}")
        a.I(f"s_add_u32 s56, s54, {t*1024}")
        a.I(f"buffer_load_dwordx4 v{VL}, {S4(RD)}, s56 offen sc1 lds")
    a.I("s_lshl_b32 s54, s67, 10")
    def kvchunks(cs):
        for c in cs:
            a.I(f"s_add_u32 s55, s54, {c*4096}")
            a.I(f"s_add_u32 m0, s55, {L_K}")
            a.I(f"s_add_u32 s56, s55, {L_V}")
            a.I(f"buffer_load_dwordx4 v{VL}, {S4(RA)}, s55 offen sc1 lds")
            a.I("s_mov_b32 m0, s56")
            a.I("s_nop 0")
            a.I(f"buffer_load_dwordx4 v{VL}, {S4(RB)}, s55 offen sc1 lds")
    kvchunks(range(0, 2))
    kvchunks(range(2, 4))
    a.I("s_waitcnt vmcnt(4)")
    lds_add1(a, M_KV, 8, 9)
    stamp(a, "KV1")
    kvchunks(range(4, 16))
    a.I("s_lshr_b32 s53, s2, 3")
    srd(a, RA, S_W2, 1376*1024)
    srd(a, RB, S_WO, 512*1024)
    a.I("s_mul_i32 s54, s53, 44032")
    a.I("s_lshl_b32 s55, s67, 10")
    a.I("s_add_u32 s54, s54, s55")
    a.I("s_waitcnt vmcnt(0)")
    lds_add1(a, M_KV, 8, 9)
    stamp(a, "KV2")
    a.I("v_lshlrev_b32 v10, 7, v1")
    a.I("s_lshl_b32 s55, s67, 13")
    a.I("s_mul_i32 s54, s53, 44032")
    a.I("s_add_u32 s54, s54, s55")
    a.I(f"buffer_load_dword v40, v10, {S4(RA)}, s54 offen")
    a.I("s_add_u32 s54, s54, 32768")
    a.I(f"buffer_load_dword v41, v10, {S4(RA)}, s54 offen")
    a.I("s_lshl_b32 s54, s53, 14")
    a.I("s_lshl_b32 s55, s67, 12")
    a.I("s_add_u32 s54, s54, s55")
    a.I("s_mov_b32 exec_hi, 0")
    a.I(f"buffer_load_dword v42, v10, {S4(RB)}, s54 offen")
    a.I("s_mov_b64 exec, -1")

def ffn2_p3(a):
    WF, HR, ACC2, BPR = 24, 40, 104, 8
    VH, VW, VA0, VA1 = 2, 3, 4, 5
    a.I("s_cmp_lg_u32 s67, 0")
    a.I("s_cbranch_scc1 L_f1")
    lds_spin(a, M_HST, 4, 8, 9, OPT.get('fslp', 1))
    lds_spin(a, M_KV, 8, 8, 9)
    a.I(f"s_lshl_b32 s54, s{S_RB}, 7")
    a.I(f"s_lshl_b32 s55, s{S_CG}, 2")
    a.I("s_add_u32 s54, s54, s55")
    a.I(f"s_add_u32 s54, s54, {FH_OFF}")
    flag_store(a, "s54", 8, 10)
    a.I(f"s_lshl_b32 s54, s{S_HD}, 7")
    a.I(f"s_add_u32 s54, s54, {FH_OFF}")
    a.I("v_lshlrev_b32 v8, 2, v1")
    poll(a, RC, 8, 8, 9, "s54", OPT.get("fhslp", 8))
    lds_add1(a, M_H, 8, 9)
    a.I("s_branch L_f2")
    a.L("L_f1")
    lds_spin(a, M_H, 1, 8, 9, OPT.get('fslp', 1))
    a.L("L_f2")
    lds_spin(a, M_QRD, 8, 8, 9, OPT.get('fslp', 1))
    stamp(a, "hready")
    srd(a, RA, S_W2, 1376*1024)
    srd_off(a, RB, S_WS, HF, HF_SIZE)
    a.I(f"v_lshlrev_b32 v{VH}, 4, v1")
    dma_w_lane_off(a, VW, 1, 8, 9, 1024)
    a.I(f"s_lshl_b32 s54, s{S_QB}, 7")
    a.I(f"v_add_u32 v{VW}, s54, v{VW}")
    tr_lane_addr(a, VA0, 1, 8, 9, 4, 128)
    a.I("s_mul_i32 s68, s67, 6144")
    a.I(f"s_add_u32 s68, s68, {L_RING}")
    a.I(f"v_add_u32 v{VA0}, s68, v{VA0}")
    a.I(f"v_xor_b32 v{VA1}, 64, v{VA0}")
    a.I("s_mul_i32 s54, s67, 24")
    a.I("s_lshl_b32 s70, s54, 14")
    a.I("s_lshl_b32 s71, s54, 16")
    a.I(f"s_lshl_b32 s55, s{S_HD}, 11")
    a.I("s_add_u32 s71, s71, s55")
    for i in range(64):
        a.I(f"v_mov_b32 v{ACC2+i}, 0")
    a.I("s_waitcnt vmcnt(0)")
    def fissue(slot):
        return [f"s_add_u32 m0, s68, {slot*2048}",
                f"s_add_u32 s69, s70, 8192",
                f"buffer_load_dwordx4 v{VW}, {S4(RA)}, s70 offen lds",
                f"s_add_u32 m0, s68, {slot*2048+1024}",
                f"s_add_u32 s70, s70, 16384",
                f"buffer_load_dwordx4 v{VW}, {S4(RA)}, s69 offen lds",
                f"buffer_load_dwordx4 {vr(HR+slot*8,4)}, v{VH}, {S4(RB)}, s71 offen sc1",
                f"buffer_load_dwordx4 {vr(HR+slot*8+4,4)}, v{VH}, {S4(RB)}, s71 offen offset:1024 sc1",
                f"s_add_u32 s71, s71, 65536"]
    def trr(F, off):
        out = []
        for ct, va in ((0, VA0), (1, VA1)):
            for rd in range(2):
                out.append(f"ds_read_b64_tr_b16 {vr(F+4*ct+2*rd,2)}, v{va} offset:{off + rd*1024}")
        return out
    N2 = OPT.get("n2", 0)
    a.I("s_cmp_eq_u32 s67, 3")
    a.I(f"s_cselect_b32 s72, {5-N2}, {8-N2}")
    a.I("s_mov_b32 s76, 0")
    a.L("L_fpro")
    for slot in range(3):
        a.I(J(fissue(slot)))
    a.I("s_cmp_lg_u32 s76, 0")
    a.I("s_cbranch_scc1 L_floop")
    a.I(f"s_setprio {OPT.get('ffnprio', 0)}")
    if OPT.get("noffn"): a.I("s_branch L_fskip")
    a.L("L_floop")
    for slot in range(3):
        a.I("s_waitcnt vmcnt(8)")
        a.I(J(trr(WF, slot*2048)))
        a.I("s_waitcnt lgkmcnt(0)")
        fi = fissue(slot)
        mf = lambda ct, rt: MF(ACC2 + (ct*2+rt)*16, WF+4*ct, HR+slot*8+4*rt, ACC2 + (ct*2+rt)*16)
        if OPT.get("fspread", 1):
            a.I(mf(0, 0)); a.I(J(fi[0:3]))
            a.I(mf(1, 0)); a.I(J(fi[3:6]))
            a.I(mf(0, 1)); a.I(fi[6])
            a.I(mf(1, 1)); a.I(J(fi[7:]))
        else:
            for ct in range(2):
                for rt in range(2):
                    a.I(mf(ct, rt))
            a.I(J(fi))
    a.I("s_sub_u32 s72, s72, 1")
    a.I("s_cmp_lg_u32 s72, 0")
    a.I("s_cbranch_scc1 L_floop")
    a.L("L_fskip")
    a.I("s_setprio 3")
    a.I("s_waitcnt vmcnt(0)")
    a.I("s_cmp_lg_u32 s76, 0")
    a.I("s_cbranch_scc1 L_fdone")
    lds_add1(a, M_FFN, 8, 9)
    stamp(a, "ffn2")
    lds_spin(a, M_ATT, 4, 8, 9, OPT.get('attslp', 1))
    stamp(a, "attdone")
    srd(a, RD, S_WO, 512*1024)
    a.I("s_lshl_b32 s56, s67, 14")
    a.I(f"s_add_u32 s56, s56, {L_K}")
    a.I("s_lshl_b32 s57, s67, 17")
    for ks in range(8):
        for n in range(2):
            a.I(f"s_add_u32 m0, s56, {ks*2048+n*1024}")
            a.I(f"s_add_u32 s69, s57, {ks*16384+n*8192}")
            a.I(f"buffer_load_dwordx4 v{VW}, {S4(RD)}, s69 offen lds")
    if N2:
        a.I("s_mov_b32 s76, 1")
        a.I(f"s_sub_u32 s70, s70, {3*16384}")
        a.I(f"s_sub_u32 s71, s71, {3*65536}")
        a.I(f"s_mov_b32 s72, {N2}")
        a.I("s_branch L_fpro")
    a.L("L_fdone")
    srd_off(a, RA, S_WS, GO, 8192)
    srd(a, RB, S_B2, 1024)
    a.I("s_and_b32 s73, s67, 1")
    a.I("s_lshr_b32 s74, s67, 1")
    a.I(f"s_lshl_b32 s75, s{S_HD}, 6")
    a.I("s_lshl_b32 s54, s73, 5")
    a.I("s_add_u32 s75, s75, s54")
    a.I("s_lshl_b32 s54, s75, 2")
    a.I("v_and_b32 v8, 31, v1")
    a.I("v_lshlrev_b32 v8, 2, v8")
    a.I(f"buffer_load_dword v40, v8, {S4(RA)}, s54 offen sc1")
    a.I(f"s_lshl_b32 s54, s{S_QB}, 6")
    a.I("s_lshl_b32 s55, s74, 5")
    a.I("s_add_u32 s54, s54, s55")
    a.I("s_lshl_b32 s54, s54, 1")
    a.I("v_lshrrev_b32 v8, 5, v1")
    a.I("v_lshlrev_b32 v8, 3, v8")
    for q in range(4):
        a.I(f"buffer_load_dwordx2 v[{42+2*q}:{43+2*q}], v8, {S4(RB)}, s54 offen offset:{q*16}")
    a.I("s_lshl_b32 s68, s67, 14")
    a.I("s_nop 7")
    a.I(f"s_add_u32 s54, s68, {L_V}")
    a.I(f"v_add_u32 v8, s54, v{VH}")
    for i in range(16):
        a.I(f"ds_write_b128 v8, {vr(ACC2+4*i,4)} offset:{i*1024}")
    a.I("s_waitcnt vmcnt(0) lgkmcnt(0)")
    lds_add1(a, M_T1, 9, 10)
    lds_spin(a, M_T1, 4, 9, 10)
    a.I("s_lshl_b32 s54, s67, 12")
    a.I(f"s_add_u32 s54, s54, {L_V}")
    a.I(f"v_add_u32 v8, s54, v{VH}")
    for p in range(4):
        for q in range(4):
            a.I(f"ds_read_b128 {vr(ACC2+p*16+q*4,4)}, v8 offset:{p*16384+q*1024}")
    a.I("s_waitcnt lgkmcnt(0)")
    for i in range(16):
        a.I(f"v_add_f32 v{ACC2+i}, v{ACC2+i}, v{ACC2+16+i}")
        a.I(f"v_add_f32 v{ACC2+32+i}, v{ACC2+32+i}, v{ACC2+48+i}")
    for i in range(16):
        a.I(f"v_add_f32 v{ACC2+i}, v{ACC2+i}, v{ACC2+32+i}")
    a.I("s_waitcnt vmcnt(0)")
    a.I("v_sub_f32 v41, 1.0, v40")
    a.I("v_cvt_pk_bf16_f32 v41, v41, v41")
    a.I("v_and_b32 v41, 0xffff0000, v41")
    for q in range(4):
        a.I(f"v_lshlrev_b32 v52, 16, v{42+2*q}")
        a.I(f"v_and_b32 v53, 0xffff0000, v{42+2*q}")
        a.I(f"v_lshlrev_b32 v54, 16, v{43+2*q}")
        a.I(f"v_and_b32 v55, 0xffff0000, v{43+2*q}")
        for j in range(4):
            a.I(f"v_add_f32 v{BPR+4*q+j}, v{ACC2+4*q+j}, v{52+j}")
        for j in range(4):
            a.I(f"v_mul_f32 v{BPR+4*q+j}, v{BPR+4*q+j}, v41")
    a.I("v_mov_b32 v39, v40")
    tr_lane_addr(a, VA0, 1, 32, 33, 4, 128)
    a.I("s_lshl_b32 s54, s74, 6")
    a.I(f"v_xor_b32 v{VA0}, s54, v{VA0}")
    a.I(f"v_add_u32 v{VA0}, {L_K}, v{VA0}")
    a.I("s_lshl_b32 s54, s73, 15")
    a.I(f"s_add_u32 s54, s54, {L_V}")
    a.I(f"v_add_u32 v{VA1}, s54, v{VH}")
    FR = 40
    def wreads(ks):
        F = FR + (ks % 8) * 8
        return [f"ds_read_b64_tr_b16 {vr(F,2)}, v{VA0} offset:{ks*2048}",
                f"ds_read_b64_tr_b16 {vr(F+2,2)}, v{VA0} offset:{ks*2048+1024}"]
    def oread(ks):
        F = FR + (ks % 8) * 8
        return [f"ds_read_b128 {vr(F+4,4)}, v{VA1} offset:{ks*1024}"]
    a.I("s_cmp_lg_u32 s67, 0")
    a.I("s_cbranch_scc1 L_f4")
    a.I(f"s_lshl_b32 s54, s{S_HD}, 8")
    a.I(f"s_add_u32 s54, s54, {FO_OFF}")
    a.I("v_lshlrev_b32 v121, 2, v1")
    if not OPT.get("opf", 0):
        poll(a, RC, 64, 121, 122, "s54", OPT.get("foslp", 2))
    else:
        srd_off(a, RB, S_WS, OF, 2*MB)
        a.I(f"s_lshl_b32 s55, s{S_HD}, 16")
        a.I("v_lshlrev_b32 v123, 10, v1")
        a.I("s_mov_b64 s[56:57], 0")
        a.I("s_mov_b32 s50, 0x40000")
        a.L("L_opf")
        a.I(f"buffer_load_dword v122, v121, {S4(RC)}, s54 offen sc1")
        a.I("s_waitcnt vmcnt(0)")
        a.I(f"v_cmp_eq_u32 vcc, s{S_NONCE}, v122")
        a.I("s_nop 1")
        a.I("s_andn2_b64 s[58:59], vcc, s[56:57]")
        a.I("s_or_b64 s[56:57], s[56:57], vcc")
        a.I("s_cmp_eq_u64 s[56:57], -1")
        a.I("s_cbranch_scc1 L_opf3")
        a.I("s_cmp_eq_u64 s[58:59], 0")
        a.I("s_cbranch_scc1 L_opf2")
        a.I("s_mov_b64 exec, s[58:59]")
        for j in range(8):
            a.I(f"buffer_load_dword v120, v123, {S4(RB)}, s55 offen offset:{j*128} sc1")
        a.I("s_mov_b64 exec, -1")
        a.L("L_opf2")
        a.I("s_sub_u32 s50, s50, 1")
        a.I("s_cmp_eq_u32 s50, 0")
        a.I("s_cbranch_scc1 L_opf3")
        a.I(f"s_sleep {OPT.get('foslp', 2)}")
        a.I("s_branch L_opf")
        a.L("L_opf3")
    a.L("L_f4")
    for ks in range(8): a.I(J(wreads(ks)))
    srd_off(a, RB, S_WS, OF, 2*MB)
    a.I(f"s_lshl_b32 s54, s{S_HD}, 16")
    a.I("s_lshl_b32 s55, s67, 11")
    a.I("s_add_u32 s54, s54, s55")
    a.I(f"s_add_u32 s55, s55, {L_V}")
    srd(a, RA, S_OUT, 2*MB)
    a.I("s_lshl_b32 s58, s75, 10")
    a.I(f"s_lshl_b32 s59, s{S_QB}, 7")
    a.I("s_add_u32 s58, s58, s59")
    a.I("s_lshl_b32 s59, s74, 6")
    a.I("s_add_u32 s58, s58, s59")
    a.I("v_and_b32 v32, 31, v1")
    a.I("v_lshlrev_b32 v32, 10, v32")
    a.I("v_lshrrev_b32 v33, 5, v1")
    a.I("v_lshl_add_u32 v32, v33, 4, v32")
    a.I("s_waitcnt lgkmcnt(0)")
    a.I("s_barrier")
    stamp(a, "T2")
    def odma(ch):
        L = []
        for hh in range(2):
            for rt in range(2):
                off = rt*32768 + ch*8192 + hh*1024
                L.append([f"s_add_u32 m0, s55, {off}", f"s_add_u32 s56, s54, {off}",
                          f"buffer_load_dwordx4 v{VH}, {S4(RB)}, s56 offen sc1 lds"])
        return L
    for ch in range(4):
        for x in odma(ch): a.I(J(x))
    for ch in range(4):
        a.I(f"s_waitcnt vmcnt({4*(3-ch)}) lgkmcnt(0)")
        a.I("s_barrier")
        for ks in range(8*ch, 8*ch+8): a.I(J(oread(ks)))
        for i in range(8):
            ks = 8*ch + i
            a.I(f"s_waitcnt lgkmcnt({7 + i if ch < 3 else 7 - i})")
            F = FR + i*8
            a.I(MF(ACC2, F, F+4, ACC2 if ks else None))
            if ch < 3: a.I(J(wreads(ks+8)))
    a.I("s_nop 15")
    stamp(a, "p3mm")
    for i in range(16):
        a.I(f"v_fma_f32 v{ACC2+i}, v{ACC2+i}, v39, v{BPR+i}")
    for j in range(8):
        a.I(f"v_cvt_pk_bf16_f32 v{ACC2+j}, v{ACC2+2*j}, v{ACC2+2*j+1}")
    a.I("s_nop 1")
    a.I(f"v_permlane32_swap_b32 v{ACC2}, v{ACC2+2}")
    a.I(f"v_permlane32_swap_b32 v{ACC2+1}, v{ACC2+3}")
    a.I(f"v_permlane32_swap_b32 v{ACC2+4}, v{ACC2+6}")
    a.I(f"v_permlane32_swap_b32 v{ACC2+5}, v{ACC2+7}")
    ofl = {0: "", 1: " sc1", 2: " nt", 3: " sc0 sc1"}[OPT.get("outfl", 0)]
    a.I(f"buffer_store_dwordx4 {vr(ACC2,4)}, v32, {S4(RA)}, s58 offen{ofl}")
    a.I(f"buffer_store_dwordx4 {vr(ACC2+4,4)}, v32, {S4(RA)}, s58 offen offset:32{ofl}")
    stamp_flush(a, "ffn")
    a.I("s_endpgm")

def attention(a):
    a.L("L_attn")
    stamp(a, "attn0")
    QA, QB = 8, 12
    KB = [16, 20]; VB = [24, 32]
    S0, S1, OA, OB = 40, 56, 72, 88
    VK, VV, VL = 2, 3, 4
    T0, T1, T2 = 104, 105, 106
    VKN, VVN, VVB, VCH, VONE, VNX = 107, 108, 109, 110, 111, 5
    a.I(f"s_and_b32 s63, s{S_W}, 3")
    a.I(f"s_lshr_b32 s64, s{S_W}, 2")
    a.I(f"v_lshlrev_b32 v{VL}, 4, v1")
    a.I(f"v_lshrrev_b32 v{T0}, 5, v1")
    a.I(f"v_and_b32 v{T1}, 15, v1")
    a.I(f"v_lshlrev_b32 v{T1}, 4, v{T1}")
    a.I(f"v_lshl_add_u32 v{VVB}, v{T0}, 8, v{T1}")
    a.I(f"v_add_u32 v{VVB}, {L_V}, v{VVB}")
    a.I(f"v_add_u32 v{VKN}, {L_K}, v{VL}")
    a.I("s_lshl_b32 s54, s64, 12")
    a.I(f"v_add_u32 v{VK}, s54, v{VL}")
    a.I(f"v_add_u32 v{VV}, s54, v{VVB}")
    a.I("s_lshl_b32 s54, s63, 2")
    a.I(f"s_add_u32 s54, s54, {M_CH}")
    a.I(f"v_mov_b32 v{VCH}, s54")
    a.I(f"v_mov_b32 v{VONE}, 1")
    a.I("s_mov_b32 s74, 0x0000ffff")
    a.I("s_mov_b32 s75, 0x0000ffff")
    a.I("s_mov_b32 s77, 0")
    a.I(f"s_lshl_b32 s66, s{S_QB}, 3")
    a.I("s_lshl_b32 s54, s63, 1")
    a.I("s_add_u32 s66, s66, s54")
    a.I("s_lshl_b32 s54, s63, 11")
    a.I(f"s_add_u32 s54, s54, {L_RING}")
    a.I(f"v_add_u32 v{T2}, s54, v{VL}")
    a.I(f"v_and_b32 v{T0}, 31, v1")
    a.I(f"v_cmp_eq_u32 vcc, 16, v{T0}")
    a.I(f"v_mov_b32 v{T1}, 0x3f803f80")
    a.I("s_nop 1")
    a.I(f"v_cndmask_b32 v{T0}, 0, v{T1}, vcc")
    for i in range(16):
        a.I(f"v_mov_b32 v{VB[0]+i}, v{T0}")
    lds_spin(a, M_KV, 4, T0, T1)
    stamp(a, "kvok")
    a.I(f"ds_read_b128 {vr(QA,4)}, v{T2}")
    a.I(f"ds_read_b128 {vr(QB,4)}, v{T2} offset:1024")
    for i in range(16):
        a.I(f"v_mov_b32 v{OA+i}, 0")
        a.I(f"v_mov_b32 v{OB+i}, 0")
    a.I("s_waitcnt lgkmcnt(0)")
    lds_add1(a, M_QRD, T0, T1)
    a.I("s_lshl_b32 s71, s64, 12")
    if STAMPS and OPT.get("fineattn"): a.I("s_mov_b32 s87, 24")
    a.I("s_mov_b32 s73, 0")

    def e_(S, i): return f"v_exp_f32 v{S+i}, v{S+i}"
    def c_(S, j): return f"v_cvt_pk_bf16_f32 v{S+j}, v{S+2*j}, v{S+2*j+1}"
    def tile(Sin, Sout, Qn, Kn, Ocur, Vcur_u0, Oprev, Vprev_u1, after_pv2, wait_s, after_s, wait_pv1, do_pv2=True, do_s=True):
        e = lambda i: e_(Sin, i)
        c = lambda j: c_(Sin, j)
        L = [e(0), e(1)]
        if do_pv2: L.append(MF(Oprev, Vprev_u1, Sout+4, Oprev))
        L += after_pv2
        L += [e(2), e(3), c(0), e(4), e(5), c(1)]
        L += wait_s
        if do_s: L.append(MF(Sout, Kn, Qn))
        L += after_s
        L += [e(6), e(7), c(2), e(8), e(9), c(3), e(10), e(11)]
        L += wait_pv1
        L.append(MF(Ocur, Vcur_u0, Sin, Ocur))
        L += [c(4), e(12), e(13), c(5), e(14), e(15), c(6), c(7)]
        return L
    fifo = []
    def dsr(tag, txt): fifo.append(tag); return txt
    def need(tag):
        idx = max(i for i, t in enumerate(fifo) if t == tag)
        return [f"s_waitcnt lgkmcnt({len(fifo) - 1 - idx})"]
    def vreads(t):
        kap = t & 1
        return ["s_mov_b64 exec, s[74:75]",
                dsr(("V", t), f"ds_read_b128 {vr(VB[kap],4)}, v{VV} offset:{t*1024}"),
                dsr(("V", t), f"ds_read_b128 {vr(VB[kap]+4,4)}, v{VV} offset:{t*1024+512}"),
                "s_mov_b64 exec, -1"]
    def kread(t): return [dsr(("K", t), f"ds_read_b128 {vr(KB[t & 1],4)}, v{VK} offset:{t*1024}")]
    a.raw(".p2align 6")
    a.L("L_aloop")
    if OPT.get("fineattn"):
        OPT["fine"] = 1; stamp_dyn(a); OPT["fine"] = 0
    a.I(f"v_add_u32 v{VK}, s71, v{VKN}")
    a.I(f"v_add_u32 v{VV}, s71, v{VVB}")
    L = kread(0) + vreads(0) + kread(1)
    L += need(("K", 0))
    L.append(MF(S0, KB[0], QA))
    a.I(J(L))
    a.I("s_nop 7")
    a.I("s_nop 3")
    body = []
    for t in range(4):
        kap = t & 1
        A = []
        Sin, Sout = S0, S1
        A += [e_(Sin, 0), e_(Sin, 1)]
        if t > 0: A.append(MF(OB, VB[kap^1]+4, Sout+4, OB))
        if t + 1 < 4: A += vreads(t+1)
        A += [e_(Sin, 2), e_(Sin, 3), c_(Sin, 0), e_(Sin, 4), e_(Sin, 5), c_(Sin, 1)]
        A.append(MF(Sout, KB[kap], QB))
        if t + 2 < 4: A += kread(t+2)
        A += [e_(Sin, 6), e_(Sin, 7), c_(Sin, 2), e_(Sin, 8), e_(Sin, 9), c_(Sin, 3), e_(Sin, 10), e_(Sin, 11)]
        A += need(("V", t))
        A.append(MF(OA, VB[kap], Sin, OA))
        A += [c_(Sin, 4), e_(Sin, 12), e_(Sin, 13), c_(Sin, 5), e_(Sin, 14), e_(Sin, 15), c_(Sin, 6), c_(Sin, 7)]
        Sin, Sout = S1, S0
        B = [e_(Sin, 0), e_(Sin, 1), MF(OA, VB[kap]+4, Sout+4, OA)]
        if t == 3:
            B += ["s_mov_b64 exec, 1", dsr(("G",), f"ds_add_rtn_u32 v{VNX}, v{VCH}, v{VONE}"), "s_mov_b64 exec, -1"]
        B += [e_(Sin, 2), e_(Sin, 3), c_(Sin, 0), e_(Sin, 4), e_(Sin, 5), c_(Sin, 1)]
        if t + 1 < 4:
            B += need(("K", t+1))
            B.append(MF(Sout, KB[kap^1], QA))
        B += [e_(Sin, 6), e_(Sin, 7), c_(Sin, 2), e_(Sin, 8), e_(Sin, 9), c_(Sin, 3), e_(Sin, 10), e_(Sin, 11)]
        B.append(MF(OB, VB[kap], Sin, OB))
        B += [c_(Sin, 4), e_(Sin, 12), e_(Sin, 13), c_(Sin, 5), e_(Sin, 14), e_(Sin, 15), c_(Sin, 6), c_(Sin, 7)]
        body += A + B
    a.I(J(body))
    a.I("s_waitcnt lgkmcnt(0)")
    a.I(f"v_readfirstlane_b32 s70, v{VNX}")
    a.I(MF(OB, VB[1]+4, S1+4, OB))
    a.I("s_add_u32 s70, s70, 2")
    a.I("s_lshl_b32 s71, s70, 12")
    a.I("s_cmp_lg_u32 s73, 0")
    a.I("s_cbranch_scc1 L_aloop2")
    a.I("s_mov_b32 s73, 1")
    a.I("s_waitcnt vmcnt(0)")
    a.I(f"s_cmp_ge_u32 s{S_W}, 4")
    a.I("s_cbranch_scc1 L_aloop1")
    lds_add1(a, M_HST, T0, T1)
    a.L("L_aloop1")
    lds_spin(a, M_KV, 8, T0, T1)
    a.L("L_aloop2")
    a.I("s_cmp_lt_u32 s70, 16")
    a.I("s_cbranch_scc1 L_aloop")
    a.I("s_waitcnt lgkmcnt(0)")
    a.I("s_nop 7")
    stamp(a, "aloop")
    a.I("s_lshl_b32 s54, s63, 2")
    a.I(f"s_add_u32 s55, s54, {M_PAIR}")
    a.I(f"s_add_u32 s76, s54, {M_PFLAG}")
    a.I(f"v_mov_b32 v{T0}, s55")
    a.I(f"v_mov_b32 v{T1}, 1")
    a.I("s_mov_b64 exec, 1")
    a.I(f"ds_add_rtn_u32 v{T2}, v{T0}, v{T1}")
    a.I("s_mov_b64 exec, -1")
    a.I("s_mul_i32 s54, s63, 4608")
    a.I(f"s_add_u32 s54, s54, {L_XCH}")
    a.I(f"v_add_u32 v{S0}, s54, v{VL}")
    a.I(f"v_lshlrev_b32 v{S0+1}, 2, v1")
    a.I(f"v_add_u32 v{S0+1}, s54, v{S0+1}")
    a.I("s_waitcnt lgkmcnt(0)")
    a.I(f"v_readfirstlane_b32 s55, v{T2}")
    a.I("s_nop 4")
    a.I("s_cmp_lg_u32 s55, 0")
    a.I("s_cbranch_scc1 L_second")
    lds_spin(a, M_FFN, 4, T0, T1)
    a.I(f"ds_write_b128 v{S0}, {vr(OA,4)}")
    a.I(f"ds_write_b128 v{S0}, {vr(OA+4,4)} offset:1024")
    a.I(f"ds_write_b128 v{S0}, {vr(OB,4)} offset:2048")
    a.I(f"ds_write_b128 v{S0}, {vr(OB+4,4)} offset:3072")
    a.I(f"ds_write_b32 v{S0+1}, v{OA+8} offset:4096")
    a.I(f"ds_write_b32 v{S0+1}, v{OB+8} offset:4352")
    a.I("s_waitcnt lgkmcnt(0)")
    lds_add1(a, "s76", T0, T1)
    a.I("s_waitcnt lgkmcnt(0)")
    stamp_flush(a, "attn")
    a.I("s_endpgm")
    a.L("L_second")
    lds_spin(a, "s76", 1, T0, T1)
    a.I(f"ds_read_b128 {vr(S1,4)}, v{S0}")
    a.I(f"ds_read_b128 {vr(S1+4,4)}, v{S0} offset:1024")
    a.I(f"ds_read_b128 {vr(S1+8,4)}, v{S0} offset:2048")
    a.I(f"ds_read_b128 {vr(S1+12,4)}, v{S0} offset:3072")
    a.I(f"ds_read_b32 v{T0}, v{S0+1} offset:4096")
    a.I(f"ds_read_b32 v{T1}, v{S0+1} offset:4352")
    a.I(f"v_mov_b32 v{T2}, {L_MISC + 128}")
    a.I(f"ds_read_b32 v{T2}, v{T2}")
    a.I("s_waitcnt lgkmcnt(0)")
    a.I(f"v_readfirstlane_b32 s{S_NONCE}, v{T2}")
    for i in range(8):
        a.I(f"v_add_f32 v{OA+i}, v{OA+i}, v{S1+i}")
        a.I(f"v_add_f32 v{OB+i}, v{OB+i}, v{S1+8+i}")
    a.I(f"v_add_f32 v{OA+8}, v{OA+8}, v{T0}")
    a.I(f"v_add_f32 v{OB+8}, v{OB+8}, v{T1}")
    a.L("L_fin")
    for O in (OA, OB):
        a.I(f"v_mov_b32 v{O+9}, v{O+8}")
    a.I("s_nop 1")
    for O in (OA, OB):
        a.I(f"v_permlane32_swap_b32 v{O+9}, v{O+8}")
    a.I("s_nop 1")
    for O in (OA, OB):
        a.I(f"v_rcp_f32 v{O+10}, v{O+9}")
    srd_off(a, RA, S_WS, OF, 2*MB)
    a.I("s_lshl_b32 s54, s66, 5")
    a.I(f"s_add_u32 s54, s54, s{S_HD}")
    a.I("s_lshl_b32 s55, s54, 10")
    for n_, O in enumerate((OA, OB)):
        for i in range(8):
            a.I(f"v_mul_f32 v{S0+8*n_+i}, v{O+i}, v{O+10}")
        for j in range(4):
            a.I(f"v_cvt_pk_bf16_f32 v{S1+4*n_+j}, v{S0+8*n_+2*j}, v{S0+8*n_+2*j+1}")
        a.I(f"buffer_store_dwordx4 {vr(S1+4*n_,4)}, v{VL}, {S4(RA)}, s55 offen sc1")
        if n_ == 0: a.I("s_add_u32 s55, s55, 32768")
    srd_off(a, RC, S_WS, FLG, FLG_SIZE)
    slow_check(a, OA, OB, T0, T1)
    lds_add1(a, M_ATT, T0, T1)
    a.I("s_lshl_b32 s54, s54, 2")
    a.I(f"s_add_u32 s54, s54, {FO_OFF}")
    a.I(f"v_mov_b32 v{T0}, s{S_NONCE}")
    a.I(f"v_lshlrev_b32 v{T1}, 7, v1")
    a.I("s_waitcnt vmcnt(0)")
    a.I("s_mov_b64 exec, 3")
    a.I(f"buffer_store_dword v{T0}, v{T1}, {S4(RC)}, s54 offen sc1")
    a.I("s_mov_b64 exec, -1")
    stamp_flush(a, "attn")
    a.I("s_endpgm")
    slow_path(a, QA, QB, KB, VB, S0, S1, OA, OB, VL, T0, T1, T2)

def slow_check(a, OA, OB, T0, T1):
    if OPT.get("noslow"): return
    a.I(f"v_mul_f32 v{T0}, 0, v{OA}")
    for i in range(1, 8):
        a.I(f"v_fma_f32 v{T0}, v{OA+i}, 0, v{T0}")
    for i in range(8):
        a.I(f"v_fma_f32 v{T0}, v{OB+i}, 0, v{T0}")
    a.I(f"v_cmp_eq_f32 s[78:79], 0, v{T0}")
    a.I(f"s_mov_b32 s80, {hex(f2u(2.0**-60))}")
    a.I(f"s_mov_b32 s81, {hex(f2u(2.0**60))}")
    for O in (OA, OB):
        a.I(f"v_cmp_le_f32 s[82:83], s80, v{O+9}")
        a.I(f"v_cmp_ge_f32 vcc, s81, v{O+9}")
        a.I("s_nop 1")
        a.I("s_and_b64 s[78:79], s[78:79], s[82:83]")
        a.I("s_and_b64 s[78:79], s[78:79], vcc")
    if OPT.get("forceslow"):
        a.I("s_mov_b64 s[78:79], 0")
    a.I("s_cmp_eq_u64 s[78:79], -1")
    a.I("s_cbranch_scc1 L_ok")
    a.I("s_cmp_eq_u32 s77, 0")
    a.I("s_cbranch_scc1 L_slow")
    a.L("L_ok")

def slow_path(a, QA, QB, KB, VB, S0, S1, OA, OB, VL, T0, T1, T2):
    if OPT.get("noslow"): return
    K, V0, M, C = KB[0], VB[0], 108, 112
    a.L("L_slow")
    a.I("s_waitcnt vmcnt(0)")
    a.I("s_mov_b32 s77, 1")
    a.I(f"v_lshrrev_b32 v{T0}, 5, v1")
    a.I(f"v_and_b32 v{T1}, 15, v1")
    a.I(f"v_lshlrev_b32 v{T1}, 4, v{T1}")
    a.I(f"v_lshl_add_u32 v{T2}, v{T0}, 8, v{T1}")
    a.I(f"v_add_u32 v{T2}, {L_V}, v{T2}")
    a.I(f"v_mov_b32 v{M}, 0xff800000")
    a.I(f"v_mov_b32 v{M+1}, 0xff800000")
    a.I(f"v_add_u32 v{T0}, {L_K}, v{VL}")
    a.I("s_mov_b32 s73, 0")
    a.L("L_slow1")
    a.I(f"ds_read_b128 {vr(K,4)}, v{T0}")
    a.I("s_waitcnt lgkmcnt(0)")
    a.I(MF(S0, K, QA))
    a.I(MF(S1, K, QB))
    a.I("s_nop 15")
    for S, m in ((S0, M), (S1, M+1)):
        for i in range(0, 16, 2):
            a.I(f"v_max3_f32 v{m}, v{S+i}, v{S+i+1}, v{m}")
    a.I(f"v_add_u32 v{T0}, 1024, v{T0}")
    a.I("s_add_u32 s73, s73, 1")
    a.I("s_cmp_lt_u32 s73, 64")
    a.I("s_cbranch_scc1 L_slow1")
    for m in (M, M+1):
        a.I(f"v_mov_b32 v{T1}, v{m}")
        a.I("s_nop 1")
        a.I(f"v_permlane32_swap_b32 v{T1}, v{m}")
        a.I("s_nop 1")
        a.I(f"v_max_f32 v{m}, v{m}, v{T1}")
    for t in range(2):
        for i in range(16):
            a.I(f"v_sub_f32 v{C+16*t+i}, 0, v{M+t}")
    for i in range(16):
        a.I(f"v_mov_b32 v{OA+i}, 0")
        a.I(f"v_mov_b32 v{OB+i}, 0")
    a.I(f"v_add_u32 v{T0}, {L_K}, v{VL}")
    a.I("s_mov_b32 s73, 0")
    a.L("L_slow2")
    a.I(f"ds_read_b128 {vr(K,4)}, v{T0}")
    a.I("s_mov_b64 exec, s[74:75]")
    a.I(f"ds_read_b128 {vr(V0,4)}, v{T2}")
    a.I(f"ds_read_b128 {vr(V0+4,4)}, v{T2} offset:512")
    a.I("s_mov_b64 exec, -1")
    a.I("s_waitcnt lgkmcnt(0)")
    a.I(MF(S0, K, QA, C))
    a.I(MF(S1, K, QB, C+16))
    a.I("s_nop 15")
    for S, O in ((S0, OA), (S1, OB)):
        for i in range(16):
            a.I(f"v_exp_f32 v{S+i}, v{S+i}")
        a.I("s_nop 0")
        for j in range(8):
            a.I(f"v_cvt_pk_bf16_f32 v{S+j}, v{S+2*j}, v{S+2*j+1}")
        a.I("s_nop 1")
        a.I(MF(O, V0, S, O))
        a.I(MF(O, V0+4, S+4, O))
    a.I(f"v_add_u32 v{T0}, 1024, v{T0}")
    a.I(f"v_add_u32 v{T2}, 1024, v{T2}")
    a.I("s_add_u32 s73, s73, 1")
    a.I("s_cmp_lt_u32 s73, 64")
    a.I("s_cbranch_scc1 L_slow2")
    a.I("s_nop 15")
    a.I("s_branch L_fin")

def gen():
    a = Asm()
    prologue(a)
    producer(a, False)
    consumer(a)
    a.L("L_aux")
    producer(a, True)
    ffn2_p3(a)
    attention(a)
    a.L("L_end")
    a.I("s_endpgm")
    a.L("L_code_end")
    a.I("s_endpgm")
    return a

HEADER = open("cdna_kernels/" + NAME + ".s.ref").read().split("; Override launch")[0]

def build(path):
    a = gen()
    out = HEADER + f"; WSLAYOUT QF={QF} KF={KF} VF={VF} HF={HF} GO={GO} OF={OF}\n"
    out += f"; @launch grid=(256,1,1) block=(768,1,1) lds={LDS_TOTAL}\n"
    out += '.amdgcn_target "amdgcn-amd-amdhsa--gfx950"\n.text\n' + a.text()
    out += f""".section .rodata,"a"
.p2align 6
.amdhsa_kernel {KN}
  .amdhsa_next_free_vgpr 168
  .amdhsa_next_free_sgpr 102
  .amdhsa_accum_offset 168
  .amdhsa_group_segment_fixed_size 0
  .amdhsa_kernarg_size 96
  .amdhsa_user_sgpr_count 2
  .amdhsa_user_sgpr_kernarg_segment_ptr 1
  .amdhsa_system_sgpr_workgroup_id_x 1
.end_amdhsa_kernel
"""
    open(path, "w").write(out)
    probs = check_linear(a.lines, "k")
    if STAMPS: print("stamps:", ",".join(_stamp_names))
    return probs

if __name__ == "__main__":
    for x in list(sys.argv[1:]):
        if x.startswith("-D"):
            k, _, v = x[2:].partition("=")
            OPT[k] = int(v) if v else 1
            sys.argv.remove(x)
    if "--stamps" in sys.argv:
        STAMPS = True; sys.argv.remove("--stamps")
    path = sys.argv[1] if len(sys.argv) > 1 else "cdna_kernels/" + NAME + ".s"
    probs = build(path)
    for p in probs: print("HAZARD:", p)
    print("written", path, "problems:", len(probs))
```

```python
import sys, struct
from asmlib import *

NAME = "gated_mix__mha_block__dense_activation_squared_relu__prompt"
KN = NAME + "_kernel"
MB = 1 << 20
QF, KF, VF, HF, GO, OF, FLG = 4096, 2*MB + 8192, 4*MB + 12288, 6*MB + 16384, 12*MB, 14*MB + 4096, 16*MB + 8192
HF_SIZE = 86 * 65536
FA_OFF, FH_OFF, FO_OFF = 0, 4096, 8192
FLG_SIZE = 16384
QSCALE = 0.25 * 1.4426950408889634
STAMP_OFF = 32*MB
STAMPS = False
OPT = {}
def f2u(x): return struct.unpack("<I", struct.pack("<f", x))[0]

S_AX, S_WQKV, S_WO, S_W1, S_B1, S_W2, S_B2, S_GW, S_OUT, S_DBG, S_WS = 4, 6, 8, 12, 14, 16, 18, 20, 22, 24, 26
S_W = 3
S_RB, S_CG, S_START = 29, 30, 31
RA, RB, RC, RD = 32, 36, 40, 44
S_NONCE, S_HD, S_QB = 60, 61, 62
L_MISC, L_K, L_V, L_RING = 0, 1024, 1024 + 65536, 1024 + 131072
L_XCH = L_RING
M_KV, M_H, M_FA, M_QRD, M_HST, M_FFN, M_ATT, M_T1 = [L_MISC + 4*i for i in range(8)]
M_PAIR, M_PFLAG, M_CH = L_MISC + 64, L_MISC + 96, L_MISC + 160
LDS_TOTAL = 163840

def srd(a, dst, base, size):
    a.I(f"s_mov_b32 s{dst}, s{base}")
    a.I(f"s_mov_b32 s{dst+1}, s{base+1}")
    a.I(f"s_mov_b32 s{dst+2}, {size}")
    a.I(f"s_mov_b32 s{dst+3}, 0x20000")
def srd_off(a, dst, base, off, size):
    a.I(f"s_add_u32 s{dst}, s{base}, {off}")
    a.I(f"s_addc_u32 s{dst+1}, s{base+1}, 0")
    a.I(f"s_mov_b32 s{dst+2}, {size}")
    a.I(f"s_mov_b32 s{dst+3}, 0x20000")
def MF(d, A, B, c=None):
    cc = "0" if c is None else vr(c, 16)
    return f"v_mfma_f32_32x32x16_bf16 {vr(d,16)}, {vr(A,4)}, {vr(B,4)}, {cc}"
def S4(r): return f"s[{r}:{r+3}]"
def J(L): return "\n".join(L)

_stamp_names = []
def stamp(a, name):
    if not STAMPS: return
    if name not in _stamp_names: _stamp_names.append(name)
    i = _stamp_names.index(name)
    a.I("s_waitcnt lgkmcnt(0)")
    a.I("s_memtime s[98:99]")
    a.I("s_memrealtime s[100:101]")
    a.I("s_waitcnt lgkmcnt(0)")
    a.I(f"v_writelane_b32 v6, s98, {i}")
    a.I(f"v_writelane_b32 v7, s100, {i}")
def stamp_dyn(a):
    if not (STAMPS and OPT.get("fine")): return
    a.I("s_memtime s[98:99]")
    a.I("s_memrealtime s[100:101]")
    a.I("s_waitcnt lgkmcnt(0)")
    a.I("s_mov_b32 s88, m0")
    a.I("s_mov_b32 m0, s87")
    a.I("s_nop 3")
    a.I("v_writelane_b32 v6, s98, m0")
    a.I("v_writelane_b32 v7, s100, m0")
    a.I("s_mov_b32 m0, s88")
    a.I("s_add_u32 s87, s87, 1")
def dbg_dump(a, names, word0):
    lb = lab("dd")
    a.I(f"s_cmp_lg_u32 s2, {OPT.get('dbgwg', 0)}")
    a.I(f"s_cbranch_scc1 {lb}")
    a.I("v_readlane_b32 s90, v7, 0")
    for i, nm in enumerate(names):
        if nm not in _stamp_names: _stamp_names.append(nm)
        a.I(f"v_readlane_b32 s91, v7, {_stamp_names.index(nm)}")
        a.I("s_nop 3")
        a.I("s_sub_u32 s91, s91, s90")
        a.I("v_mov_b32 v2, s91")
        a.I(f"v_mov_b32 v3, {4*(word0+i)}")
        a.I("s_mov_b64 exec, 1")
        a.I(f"global_store_dword v3, v2, s[{S_DBG}:{S_DBG+1}]")
        a.I("s_mov_b64 exec, -1")
    a.L(lb)

def stamp_flush(a, who=None):
    if not STAMPS: return
    a.I("s_waitcnt vmcnt(0)")
    stamp(a, "end")
    if OPT.get("dbgdump"):
        if who == "ffn":
            l2 = lab("d8")
            a.I(f"s_cmp_lg_u32 s{S_W}, 8"); a.I(f"s_cbranch_scc1 {l2}")
            dbg_dump(a, ["E2", "FAok", "KV1", "hready", "ffn2", "attdone", "T2", "p3mm", "end"], 7)
            a.L(l2)
        elif who == "attn":
            l2 = lab("d0")
            a.I(f"s_and_b32 s91, s{S_W}, 3"); a.I("s_cmp_lg_u32 s91, 0"); a.I(f"s_cbranch_scc1 {l2}")
            a.I(f"s_cmp_ge_u32 s{S_W}, 4"); a.I(f"s_cbranch_scc1 {l2}")
            dbg_dump(a, ["karg", "B0", "qloop", "floop", "kvok", "aloop"], 1)
            a.L(l2)
    a.I(f"s_add_u32 s96, s{S_WS}, {STAMP_OFF}")
    a.I(f"s_addc_u32 s97, s{S_WS+1}, 0")
    a.I("s_mul_i32 s98, s2, 12")
    a.I(f"s_add_u32 s98, s98, s{S_W}")
    a.I("s_lshl_b32 s98, s98, 9")
    a.I("v_lshlrev_b32 v2, 2, v1")
    a.I("v_add_u32 v2, s98, v2")
    a.I("s_mov_b64 exec, -1")
    a.I("global_store_dword v2, v6, s[96:97]")
    a.I("global_store_dword v2, v7, s[96:97] offset:256")
    a.I("s_waitcnt vmcnt(0)")

def tr_lane_addr(a, dst, lane, tmp, tmp2, hrows, pitch):
    a.I(f"v_bfe_u32 v{tmp}, v{lane}, 2, 2")
    a.I(f"v_lshrrev_b32 v{tmp2}, 5, v{lane}")
    a.I(f"v_mul_u32_u24 v{tmp2}, {hrows}, v{tmp2}")
    a.I(f"v_add_u32 v{tmp}, v{tmp}, v{tmp2}")
    a.I(f"v_mul_u32_u24 v{dst}, {pitch}, v{tmp}")
    a.I(f"v_bfe_u32 v{tmp}, v{lane}, 4, 1")
    a.I(f"v_lshlrev_b32 v{tmp}, 1, v{tmp}")
    a.I(f"v_bfe_u32 v{tmp2}, v{lane}, 1, 1")
    a.I(f"v_add_u32 v{tmp}, v{tmp}, v{tmp2}")
    a.I(f"v_bfe_u32 v{tmp2}, v{lane}, 3, 1")
    a.I(f"v_lshlrev_b32 v{tmp2}, 2, v{tmp2}")
    a.I(f"v_xor_b32 v{tmp}, v{tmp}, v{tmp2}")
    a.I(f"v_lshl_add_u32 v{dst}, v{tmp}, 4, v{dst}")
    a.I(f"v_and_b32 v{tmp}, 1, v{lane}")
    a.I(f"v_lshl_add_u32 v{dst}, v{tmp}, 3, v{dst}")

def dma_w_lane_off(a, dst, lane, tmp, tmp2, pitch):
    a.I(f"v_lshrrev_b32 v{tmp}, 3, v{lane}")
    a.I(f"v_mul_u32_u24 v{dst}, {pitch}, v{tmp}")
    a.I(f"v_bfe_u32 v{tmp}, v{lane}, 4, 1")
    a.I(f"v_lshlrev_b32 v{tmp}, 2, v{tmp}")
    a.I(f"v_and_b32 v{tmp2}, 7, v{lane}")
    a.I(f"v_xor_b32 v{tmp}, v{tmp}, v{tmp2}")
    a.I(f"v_lshl_add_u32 v{dst}, v{tmp}, 4, v{dst}")

_lab = [0]
def lab(p):
    _lab[0] += 1
    return f"L_{p}{_lab[0]}"

def poll(a, srd_reg, nlanes, voff, vtmp, soff, slp=1):
    l0, l1 = lab("poll"), lab("polld")
    if nlanes < 64:
        a.I(f"s_mov_b32 exec_lo, {hex((1 << nlanes) - 1)}")
        a.I("s_mov_b32 exec_hi, 0")
    a.I("s_mov_b32 s50, 0x40000")
    a.L(l0)
    a.I(f"buffer_load_dword v{vtmp}, v{voff}, {S4(srd_reg)}, {soff} offen sc1")
    a.I("s_waitcnt vmcnt(0)")
    a.I(f"v_cmp_ne_u32 vcc, s{S_NONCE}, v{vtmp}")
    a.I(f"s_cbranch_vccz {l1}")
    a.I("s_sub_u32 s50, s50, 1")
    a.I("s_cmp_eq_u32 s50, 0")
    a.I(f"s_cbranch_scc1 {l1}")
    a.I(f"s_sleep {slp}")
    a.I(f"s_branch {l0}")
    a.L(l1)
    a.I("s_mov_b64 exec, -1")

def lds_spin(a, addr, target, vaddr, vtmp, slp=1):
    l0, l1 = lab("spin"), lab("spind")
    a.I(f"v_mov_b32 v{vaddr}, {addr}")
    a.I("s_mov_b32 s50, 0x400000")
    a.L(l0)
    a.I(f"ds_read_b32 v{vtmp}, v{vaddr}")
    a.I("s_waitcnt lgkmcnt(0)")
    a.I(f"v_readfirstlane_b32 s51, v{vtmp}")
    a.I("s_sub_u32 s50, s50, 1")
    a.I(f"s_cmp_ge_u32 s51, {target}")
    a.I(f"s_cbranch_scc1 {l1}")
    a.I("s_cmp_eq_u32 s50, 0")
    a.I(f"s_cbranch_scc1 {l1}")
    a.I(f"s_sleep {slp}")
    a.I(f"s_branch {l0}")
    a.L(l1)

def lds_add1(a, addr, vaddr, vtmp):
    a.I(f"v_mov_b32 v{vaddr}, {addr}")
    a.I(f"v_mov_b32 v{vtmp}, 1")
    a.I("s_mov_b64 exec, 1")
    a.I(f"ds_add_u32 v{vaddr}, v{vtmp}")
    a.I("s_mov_b64 exec, -1")

def flag_store(a, soff, v0_, v1_):
    a.I(f"v_mov_b32 v{v0_}, s{S_NONCE}")
    a.I(f"v_mov_b32 v{v1_}, 0")
    a.I("s_mov_b64 exec, 1")
    a.I(f"buffer_store_dword v{v0_}, v{v1_}, {S4(RC)}, {soff} offen sc1")
    a.I("s_mov_b64 exec, -1")

def prologue(a):
    a.raw(f".globl {KN}\n.p2align 8\n.type {KN},@function\n{KN}:")
    if STAMPS:
        a.I("s_memrealtime s[94:95]")
        a.I("s_memtime s[92:93]")
    a.I("s_cmp_ge_u32 s2, 256")
    a.I("s_cbranch_scc1 L_end")
    a.I("s_load_dwordx4 s[4:7], s[0:1], 0")
    a.I("s_load_dwordx2 s[8:9], s[0:1], 16")
    a.I("s_load_dwordx4 s[12:15], s[0:1], 32")
    a.I("s_load_dwordx4 s[16:19], s[0:1], 48")
    a.I("s_load_dwordx4 s[20:23], s[0:1], 64")
    a.I("s_load_dwordx4 s[24:27], s[0:1], 80")
    a.I("v_lshrrev_b32 v2, 6, v0")
    a.I("v_and_b32 v1, 63, v0")
    a.I(f"v_readfirstlane_b32 s{S_W}, v2")
    if OPT.get("codeearly", 1):
        a.I("s_getpc_b64 s[52:53]")
        a.L("L_pc0")
        a.I(f"s_sub_u32 s52, s52, L_pc0-{KN}")
        a.I("s_subb_u32 s53, s53, 0")
        a.I("v_lshlrev_b32 v3, 7, v0")
        a.I(f"v_min_u32 v3, L_code_end-{KN}-4, v3")
        a.I(f"s_cmp_ge_u32 s{S_W}, 3")
        a.I("s_cbranch_scc1 L_pc1")
        a.I("global_load_dword v31, v3, s[52:53]")
        a.L("L_pc1")
    if STAMPS:
        a.I("v_mov_b32 v6, 0"); a.I("v_mov_b32 v7, 0")
    a.I("s_and_b32 s52, s2, 7")
    a.I("s_lshr_b32 s53, s2, 3")
    if OPT.get("map84"):
        a.I("s_lshr_b32 s54, s52, 1")
        a.I("s_lshl_b32 s54, s54, 3")
        a.I("s_lshr_b32 s55, s53, 2")
        a.I(f"s_add_u32 s{S_RB}, s54, s55")
        a.I("s_and_b32 s54, s52, 1")
        a.I("s_lshl_b32 s54, s54, 2")
        a.I("s_and_b32 s55, s53, 3")
        a.I(f"s_add_u32 s{S_CG}, s54, s55")
    else:
        a.I("s_lshr_b32 s54, s52, 2")
        a.I("s_lshl_b32 s54, s54, 4")
        a.I("s_lshr_b32 s55, s53, 1")
        a.I(f"s_add_u32 s{S_RB}, s54, s55")
        a.I("s_and_b32 s54, s52, 3")
        a.I("s_lshl_b32 s54, s54, 1")
        a.I("s_and_b32 s55, s53, 1")
        a.I(f"s_add_u32 s{S_CG}, s54, s55")
    a.I(f"s_mul_i32 s54, s{S_CG}, 6")
    a.I(f"s_min_u32 s{S_START}, s54, 37")
    a.I(f"s_lshl_b32 s{S_HD}, s52, 2")
    a.I("s_and_b32 s54, s53, 3")
    a.I(f"s_add_u32 s{S_HD}, s{S_HD}, s54")
    a.I(f"s_lshr_b32 s{S_QB}, s2, 5")
    a.I("s_waitcnt lgkmcnt(0)")
    if STAMPS:
        _stamp_names.append("entry")
        a.I("v_writelane_b32 v6, s92, 0")
        a.I("v_writelane_b32 v7, s94, 0")
    stamp(a, "karg")
    a.I(f"s_cmp_ge_u32 s{S_W}, 8")
    a.I("s_cbranch_scc1 L_aux")
    a.I(f"s_cmp_lt_u32 s{S_W}, 4")
    a.I("s_cbranch_scc1 L_cons")

GATEPOS = 3
def producer(a, aux):
    T = "a" if aux else "p"
    if OPT.get("pprio"): a.I(f"s_setprio {OPT['pprio']}")
    a.I(f"s_sub_u32 s67, s{S_W}, 4")
    a.I(f"s_lshl_b32 s54, s{S_RB}, 16")
    srd_off(a, RA, S_AX, "s54", 65536)
    srd(a, RB, S_WQKV, 512*3072)
    a.I("v_lshrrev_b32 v2, 3, v1")
    a.I("s_lshl_b32 s54, s67, 3")
    a.I("v_add_u32 v2, s54, v2")
    a.I("v_lshrrev_b32 v3, 4, v1")
    a.I("s_and_b32 s54, s67, 1")
    a.I("s_lshl_b32 s54, s54, 2")
    a.I("v_add_u32 v3, s54, v3")
    a.I("v_and_b32 v4, 7, v1")
    a.I("v_xor_b32 v3, v3, v4")
    a.I("v_lshlrev_b32 v3, 4, v3")
    a.I("v_lshl_add_u32 v12, v2, 10, v3")
    a.I("s_lshl_b32 s68, s67, 10")
    def woffs(dst, pitch, segshift):
        for j in range(3):
            a.I(f"v_add_u32 v2, {64*j}, v1")
            a.I("v_mul_u32_u24 v3, 171, v2")
            a.I("v_lshrrev_b32 v3, 12, v3")
            a.I("v_mul_u32_u24 v4, 24, v3")
            a.I("v_sub_u32 v2, v2, v4")
            a.I("v_lshrrev_b32 v4, 3, v2")
            a.I("v_and_b32 v2, 7, v2")
            a.I("v_bfe_u32 v5, v3, 1, 1")
            a.I("v_lshlrev_b32 v5, 2, v5")
            a.I("v_xor_b32 v2, v2, v5")
            a.I("v_lshlrev_b32 v2, 4, v2")
            a.I(f"v_mul_u32_u24 v5, {pitch}, v3")
            a.I(f"v_lshl_add_u32 v5, v4, {segshift}, v5")
            a.I(f"v_add_u32 v{dst+j}, v5, v2")
    woffs(13, 3072, 10)
    a.I("s_mul_i32 s69, s67, 3072")
    a.I("s_add_u32 s69, s69, 0x10000")
    a.I(f"s_lshl_b32 s70, s{S_CG}, 7")
    a.I(f"s_mul_i32 s71, s67, {8*3072}")
    a.I("s_add_u32 s70, s70, s71")
    def pre_setup(item):
        k, c = item
        if k == "X":
            a.I(f"s_add_u32 m0, s68, {c*8192}")
            a.I(f"s_movk_i32 s81, {c*128}")
        else:
            a.I(f"s_add_u32 s82, s70, {c*64*3072}" if c < 8 else f"s_add_u32 s82, s71, {(c-8)*64*2752}")
            a.I(f"s_add_u32 m0, s69, {(c&3)*24576}")
    def issue_x(c, done=False):
        if OPT.get("p1noprod"): return
        if not done:
            a.I(f"s_add_u32 m0, s68, {c*8192}")
            a.I(f"s_movk_i32 s81, {c*128}")
        a.I(f"buffer_load_dwordx4 v12, {S4(RA)}, s81 offen lds")
    def issue_w(c, done=False):
        if OPT.get("p1noprod"): return
        if c < 8:
            if not done: a.I(f"s_add_u32 s82, s70, {c*64*3072}")
            vo, R = 13, RB
        else:
            if not done: a.I(f"s_add_u32 s82, s71, {(c-8)*64*2752}")
            vo, R = 16, RC
        for j in range(3):
            if not (done and j == 0):
                a.I(f"s_add_u32 m0, s69, {(c&3)*24576 + j*1024}")
                a.I("s_nop 0")
            a.I(f"buffer_load_dwordx4 v{vo+j}, {S4(R)}, s82 offen lds")
    sched = OPT.get("sched", 0)
    if sched == 0:
        pre = [("X",0),("W",0),("X",1),("W",1),("X",2),("W",2)]
        post = {c: ([("X",c+3)] if c+3 < 8 else []) + ([("W",c+3)] if c+3 < 16 else []) for c in range(16)}
    elif sched == 1:
        pre = [("X",0),("W",0),("X",1),("W",1),("X",2),("W",2),("X",3),("W",3),("X",4),("X",5),("X",6),("X",7)]
        post = {c: ([("W",c+3)] if (c >= 1 and c+3 < 16) else []) for c in range(16)}
    elif sched == 2:
        pre = [("X",0),("W",0),("X",1),("W",1),("X",2),("W",2),("X",3),("W",3)]
        post = {c: ([("W",c+3)] if (c >= 1 and c+3 < 16) else []) for c in range(16)}
        post[0] = [("X",4),("X",5),("X",6),("X",7)]
    fifo = []
    def do(item, done=False):
        k, c = item
        if k == "X":
            if OPT.get("skipx"): fifo.append((item, 0)); return
            issue_x(c, done); fifo.append((item, 1))
        else:
            if OPT.get("skipw") and c < 8: fifo.append((item, 0)); return
            issue_w(c, done); fifo.append((item, 3))
    for it in pre: do(it)
    if OPT.get("pfprod") and not aux:
        a.I(f"s_mov_b32 s89, s{S_W}")
        a.I(f"s_sub_u32 s{S_W}, s{S_W}, 4")
        l2_prefetch(a, 0)
        a.I(f"s_mov_b32 s{S_W}, s89")
        fifo.append(("pf", 2))
    stamp(a, "issued3")
    nside = 0
    if aux:
        nside = aux_side_issue(a)
    srd(a, RC, S_W1, 512*2752)
    if OPT.get("w1perm", 0):
        for j in range(3):
            a.I(f"v_add_u32 v2, {64*j}, v1")
            a.I("v_mul_u32_u24 v3, 171, v2")
            a.I("v_lshrrev_b32 v3, 12, v3")
            a.I("v_mul_u32_u24 v4, 24, v3")
            a.I("v_sub_u32 v2, v2, v4")
            a.I("v_lshrrev_b32 v4, 2, v2")
            a.I("v_and_b32 v2, 3, v2")
            a.I("v_bfe_u32 v5, v3, 1, 1")
            a.I("v_xor_b32 v4, v4, v5")
            a.I("v_add_u32 v5, 1, v4")
            a.I("v_cmp_eq_u32 vcc, 4, v4")
            a.I("s_nop 1")
            a.I("v_cndmask_b32_e64 v5, v5, 0, vcc")
            a.I("v_cmp_eq_u32 vcc, 5, v4")
            a.I("s_nop 1")
            a.I("v_cndmask_b32_e64 v5, v5, 5, vcc")
            a.I(f"v_add_u32 v19, s{S_START}, v3")
            a.I("v_and_b32 v19, 1, v19")
            a.I("v_cmp_eq_u32 vcc, 1, v19")
            a.I("s_nop 1")
            a.I("v_cndmask_b32 v4, v4, v5, vcc")
            a.I("v_lshlrev_b32 v4, 6, v4")
            a.I("v_lshl_add_u32 v4, v2, 4, v4")
            a.I("v_mul_u32_u24 v5, 2752, v3")
            a.I(f"v_add_u32 v{16+j}, v5, v4")
    else:
        woffs(16, 2752, 7)
    a.I(f"s_lshl_b32 s71, s{S_START}, 6")
    a.I(f"s_mul_i32 s72, s67, {8*2752}")
    a.I("s_add_u32 s71, s71, s72")
    fap = OPT.get("fapos", 2)
    assert fap >= 0
    for c in range(16):
        need = [("W", c)] + ([("X", c)] if c < 8 else [])
        idx = max(i for i, (it, _) in enumerate(fifo) if it in need)
        allow = sum(k for _, k in fifo[idx+1:])
        if c == 0 and STAMPS and OPT.get("fine"): a.I("s_mov_b32 s87, 24")
        stamp_dyn(a)
        early = OPT.get("early", 1) and not STAMPS and len(post[c]) > 0 and not OPT.get("p1noprod")
        if early:
            pre_setup(post[c][0])
        a.I(f"s_waitcnt vmcnt({allow})")
        stamp_dyn(a)
        a.I("s_barrier")
        for n_, it in enumerate(post[c]): do(it, early and n_ == 0)
        if aux and c == 2:
            fifo.append(("side", aux_side_loads(a)))
        if aux and c == 6:
            aux_gate(a)
            fifo.append(("g", 1))
        if aux and c == 4:
            fifo.append(("nonce", aux_nonce_issue(a)))
        if aux and c == 10:
            aux_zero_misc(a)
        if aux and c == 8:
            aux_nonce_take(a)
        if aux and c == 12:
            aux_share_nonce(a)
        if aux and c == 15:
            aux_fa_probe(a)
        if aux and c == 9 + fap:
            aux_publish_fa(a)
    a.I("s_barrier")
    if aux:
        aux_after_e1(a)
    else:
        if OPT.get("pprio"): a.I("s_setprio 0")
        a.I("s_branch L_attn")

def glob_w2(a):
    a.I("v_lshlrev_b32 v20, 7, v1")
    srd(a, RC, S_W2, 1376*1024)
    a.I("s_mul_i32 s54, s2, 5504")
    a.I("s_mov_b32 exec_hi, 0xfff")
    a.I(f"buffer_load_dword v24, v20, {S4(RC)}, s54 offen")
    srd(a, RC, S_WO, 512*1024)
    a.I("s_lshl_b32 s54, s2, 11")
    a.I("s_mov_b32 exec_hi, 0")
    a.I("s_mov_b32 exec_lo, 0xffff")
    a.I(f"buffer_load_dword v25, v20, {S4(RC)}, s54 offen")
    a.I("s_mov_b64 exec, -1")

def l2_prefetch(a, part):
    a.I("s_and_b32 s52, s2, 7")
    a.I("s_lshr_b32 s53, s2, 3")
    a.I("s_lshl_b32 s54, s53, 4")
    a.I(f"s_lshl_b32 s55, s{S_W}, 2")
    a.I("s_add_u32 s56, s54, s55")
    if OPT.get("pfglob", 1) and part == 0:
        lg = lab("pfg")
        a.I("v_lshlrev_b32 v20, 7, v1")
        a.I(f"s_cmp_eq_u32 s{S_W}, 0")
        a.I(f"s_cbranch_scc0 {lg}a")
        srd(a, RC, S_AX, 2*MB)
        a.I("s_lshl_b32 s54, s2, 13")
        a.I(f"buffer_load_dword v24, v20, {S4(RC)}, s54 offen")
        a.I(f"s_branch {lg}d")
        a.L(f"{lg}a")
        a.I(f"s_cmp_eq_u32 s{S_W}, 1")
        a.I(f"s_cbranch_scc0 {lg}b")
        srd(a, RC, S_WQKV, 512*3072)
        a.I("s_mul_i32 s54, s2, 6144")
        a.I("s_mov_b32 exec_hi, 0xffff")
        a.I(f"buffer_load_dword v24, v20, {S4(RC)}, s54 offen")
        a.I("s_mov_b64 exec, -1")
        a.I(f"s_branch {lg}d")
        a.L(f"{lg}b")
        a.I(f"s_cmp_eq_u32 s{S_W}, {99 if OPT.get('w1late') else 2}")
        a.I(f"s_cbranch_scc0 {lg}c")
        srd(a, RC, S_W1, 512*2752)
        a.I("s_mul_i32 s54, s2, 5504")
        a.I("s_mov_b32 exec_hi, 0xfff")
        a.I(f"buffer_load_dword v24, v20, {S4(RC)}, s54 offen")
        a.I("s_mov_b64 exec, -1")
        a.I(f"s_branch {lg}d")
        a.L(f"{lg}c")
        if OPT.get("pfw2") == 1:
            glob_w2(a)
        a.L(f"{lg}d")
        if OPT.get("pfglob", 1) == 1: return
        OPT["nopfx"] = 1 if OPT["pfglob"] == 2 else 0
    if OPT.get("map84"):
        if part == 0:
            srd(a, RC, S_AX, 2*MB)
            a.I("s_lshr_b32 s54, s52, 1")
            a.I("s_lshl_b32 s54, s54, 9")
            a.I("s_add_u32 s54, s54, s56")
            a.I("s_lshl_b32 s54, s54, 10")
            a.I("v_lshlrev_b32 v20, 7, v1")
            a.I("s_mov_b32 exec_hi, 0")
            a.I(f"buffer_load_dword v24, v20, {S4(RC)}, s54 offen")
            a.I("s_mov_b64 exec, -1")
            srd(a, RC, S_WQKV, 512*3072)
            a.I("s_mul_i32 s54, s56, 3072")
            a.I("s_and_b32 s55, s52, 1")
            a.I("s_lshl_b32 s55, s55, 9")
            a.I("s_add_u32 s54, s54, s55")
            a.I("v_lshrrev_b32 v21, 4, v1")
            a.I("v_mul_u32_u24 v21, 3072, v21")
            a.I("v_bfe_u32 v22, v1, 2, 2")
            a.I("v_min_u32 v22, 2, v22")
            a.I("v_lshl_add_u32 v21, v22, 10, v21")
            a.I("v_and_b32 v22, 3, v1")
            a.I("v_lshl_add_u32 v21, v22, 7, v21")
            a.I(f"buffer_load_dword v25, v21, {S4(RC)}, s54 offen")
        else:
            srd(a, RC, S_W1, 512*2752)
            a.I("s_and_b32 s55, s52, 1")
            a.I("s_mul_i32 s55, s55, 1536")
            a.I("s_mul_i32 s54, s56, 2752")
            a.I("s_add_u32 s54, s54, s55")
            a.I("v_lshrrev_b32 v21, 4, v1")
            a.I("v_mul_u32_u24 v21, 2752, v21")
            a.I("v_and_b32 v22, 15, v1")
            a.I("v_min_u32 v22, 12, v22")
            a.I("v_lshl_add_u32 v21, v22, 7, v21")
            a.I(f"buffer_load_dword v26, v21, {S4(RC)}, s54 offen")
        return
    if part == 2:
        a.I(f"s_cmp_lg_u32 s{S_W}, 0")
        a.I("s_cbranch_scc1 L_pf2")
        srd(a, RC, S_WQKV, 512*3072)
        a.I("s_lshl_b32 s54, s53, 3")
        a.I("s_add_u32 s54, s54, 256")
        a.I("s_mul_i32 s54, s54, 3072")
        a.I("s_and_b32 s55, s52, 3")
        a.I("s_lshl_b32 s55, s55, 8")
        a.I("s_add_u32 s54, s54, s55")
        a.I("v_lshrrev_b32 v21, 3, v1")
        a.I("v_mul_u32_u24 v21, 3072, v21")
        a.I("v_bfe_u32 v22, v1, 1, 2")
        a.I("v_min_u32 v22, 2, v22")
        a.I("v_lshl_add_u32 v21, v22, 10, v21")
        a.I("v_and_b32 v22, 1, v1")
        a.I("v_lshl_add_u32 v21, v22, 7, v21")
        a.I(f"buffer_load_dword v25, v21, {S4(RC)}, s54 offen")
        a.L("L_pf2")
    elif part == 0:
        G = OPT.get("pfg", 128)
        sh = {128: 7, 64: 6, 32: 5}[G]
        srd(a, RC, S_AX, 2*MB)
        a.I("s_lshr_b32 s54, s52, 2")
        a.I("s_lshl_b32 s54, s54, 10")
        a.I("s_lshl_b32 s55, s53, 5")
        a.I("s_add_u32 s54, s54, s55")
        a.I(f"s_lshl_b32 s55, s{S_W}, 3")
        a.I("s_add_u32 s54, s54, s55")
        a.I("s_lshl_b32 s54, s54, 10")
        if OPT.get("pftrim", 0):
            a.I("v_and_b32 v20, 7, v1")
            a.I("v_max_u32 v20, 3, v20")
            a.I("v_lshlrev_b32 v20, 7, v20")
            a.I("v_lshrrev_b32 v21, 3, v1")
            a.I("v_lshl_add_u32 v20, v21, 10, v20")
        else:
            a.I(f"v_lshlrev_b32 v20, {sh}, v1")
        for i in range(0 if OPT.get("nopfx") else 8192 // (64*G)):
            a.I(f"buffer_load_dword v24, v20, {S4(RC)}, s54 offen")
            a.I(f"s_add_u32 s54, s54, {64*G}")
        if OPT.get("pftrim", 0):
            a._pfl = lab("pfs")
            a.I("s_cmp_lt_u32 s53, 12")
            a.I(f"s_cbranch_scc1 {a._pfl}")
        srd(a, RC, S_WQKV, 512*3072)
        a.I("s_mul_i32 s54, s56, 3072")
        a.I("s_and_b32 s55, s52, 3")
        a.I("s_lshl_b32 s55, s55, 8")
        a.I("s_add_u32 s54, s54, s55")
        per = 256 // G
        a.I("v_lshrrev_b32 v21, 4, v1")
        a.I("v_mul_u32_u24 v21, 3072, v21")
        a.I("v_and_b32 v22, 15, v1")
        if G == 64:
            a.I("v_lshrrev_b32 v23, 2, v22")
            a.I("v_min_u32 v23, 2, v23")
            a.I("v_lshl_add_u32 v21, v23, 10, v21")
            a.I("v_and_b32 v22, 3, v22")
            a.I("v_lshl_add_u32 v21, v22, 6, v21")
            a.I(f"buffer_load_dword v25, v21, {S4(RC)}, s54 offen")
        elif G == 32:
            a.I("v_lshrrev_b32 v23, 3, v22")
            a.I("v_lshl_add_u32 v21, v23, 10, v21")
            a.I("v_and_b32 v22, 7, v22")
            a.I("v_lshl_add_u32 v21, v22, 5, v21")
            a.I(f"buffer_load_dword v25, v21, {S4(RC)}, s54 offen")
            a.I(f"buffer_load_dword v25, v21, {S4(RC)}, s54 offen offset:2048")
        else:
            a.I("v_lshrrev_b32 v23, 1, v22")
            a.I("v_min_u32 v23, 2, v23")
            a.I("v_lshl_add_u32 v21, v23, 10, v21")
            a.I("v_and_b32 v22, 1, v22")
            a.I("v_lshl_add_u32 v21, v22, 7, v21")
            a.I(f"buffer_load_dword v25, v21, {S4(RC)}, s54 offen")
        if OPT.get("pftrim", 0):
            a.L(a._pfl)
    else:
        a.I(f"s_cmp_ge_u32 s{S_W}, 2")
        a.I("s_cbranch_scc1 L_pf1")
        srd(a, RC, S_W1, 512*2752)
        a.I("s_and_b32 s55, s52, 3")
        a.I("s_mul_i32 s55, s55, 12")
        a.I("s_min_u32 s55, s55, 31")
        a.I("s_lshl_b32 s55, s55, 6")
        a.I("s_lshl_b32 s54, s53, 4")
        a.I(f"s_lshl_b32 s56, s{S_W}, 3")
        a.I("s_add_u32 s54, s54, s56")
        a.I("s_mul_i32 s54, s54, 2752")
        a.I("s_add_u32 s54, s54, s55")
        a.I("v_lshrrev_b32 v21, 3, v1")
        a.I("v_mul_u32_u24 v21, 2752, v21")
        a.I("v_and_b32 v22, 7, v1")
        a.I("v_lshl_add_u32 v21, v22, 7, v21")
        a.I(f"buffer_load_dword v26, v21, {S4(RC)}, s54 offen")
        a.L("L_pf1")

def consumer(a):
    a.L("L_cons")
    H, XA, WA, ACC, B1, FA, FB = 2, 8, 12, 32, 80, 104, 136
    if not OPT.get("nopf") and not OPT.get("pflate") and not OPT.get("pfprod"):
        l2_prefetch(a, OPT.get("pfmode", 0))
    a.I(f"v_lshrrev_b32 v{H}, 5, v1")
    a.I(f"s_and_b32 s63, s{S_W}, 1")
    a.I(f"s_lshr_b32 s64, s{S_W}, 1")
    srd(a, RD, S_B1, 2752)
    a.I(f"s_add_u32 s54, s{S_START}, s63")
    a.I("s_lshl_b32 s54, s54, 6")
    a.I(f"v_lshlrev_b32 v3, 3, v{H}")
    for s in range(3):
        for q in range(4):
            r = B1 + (s*4+q)*2
            a.I(f"buffer_load_dwordx2 v[{r}:{r+1}], v3, {S4(RD)}, s54 offen offset:{s*128+q*16}")
    for i in range(48):
        a.I(f"v_mov_b32 v{ACC+i}, 0")
    a.I("v_and_b32 v16, 31, v1")
    a.I("v_bfe_u32 v17, v1, 1, 3")
    a.I("s_lshl_b32 s54, s64, 5")
    a.I("v_add_u32 v16, s54, v16")
    a.I("v_lshlrev_b32 v16, 7, v16")
    a.I(f"v_xor_b32 v17, v17, v{H}")
    for ks in range(4):
        a.I(f"v_xor_b32 v18, {2*ks}, v17")
        a.I(f"v_lshl_add_u32 v{XA+ks}, v18, 4, v16")
    tr_lane_addr(a, WA, 1, 16, 17, 8, 384)
    a.I("s_lshl_b32 s54, s63, 6")
    a.I(f"v_xor_b32 v{WA}, s54, v{WA}")
    a.I(f"v_add_u32 v{WA}, 0x10000, v{WA}")
    a.I(f"v_add_u32 v{WA+1}, 49152, v{WA}")
    WF1 = [14, 15, 28, 29, 30, 31]
    if OPT.get("w1perm", 0):
        a.I("v_bfe_u32 v16, v1, 2, 2")
        a.I(f"v_lshl_add_u32 v17, v{H}, 3, v16")
        a.I("v_mul_u32_u24 v17, 384, v17")
        a.I("v_bfe_u32 v18, v1, 4, 1")
        a.I("v_lshlrev_b32 v18, 1, v18")
        a.I("v_bfe_u32 v19, v1, 1, 1")
        a.I("v_add_u32 v18, v18, v19")
        a.I("v_lshl_add_u32 v17, v18, 4, v17")
        a.I("v_and_b32 v18, 1, v1")
        a.I("v_lshl_add_u32 v17, v18, 3, v17")
        a.I("v_add_u32 v17, 0x10000, v17")
        a.I(f"v_add_u32 v18, s{S_START}, v16")
        a.I("v_and_b32 v18, 1, v18")
        a.I("v_cmp_eq_u32 vcc, 1, v18")
        a.I("v_bfe_u32 v19, v1, 3, 1")
        inv = [4, 0, 1, 2, 3, 5]
        for s_ in range(3):
            a.I(f"s_cmp_eq_u32 s63, 0")
            a.I(f"s_cselect_b32 s54, {2*s_}, {2*s_+1}")
            a.I(f"s_cselect_b32 s55, {inv[2*s_]}, {inv[2*s_+1]}")
            a.I(f"v_mov_b32 v26, s54")
            a.I(f"v_mov_b32 v27, s55")
            a.I(f"v_cndmask_b32 v26, v26, v27, vcc")
            a.I(f"v_xor_b32 v26, v26, v19")
            a.I(f"v_lshl_add_u32 v{WF1[s_]}, v26, 6, v17")
            a.I(f"v_add_u32 v{WF1[3+s_]}, 49152, v{WF1[s_]}")

    def reads(b, G, F, qkv=True):
        out = []
        if OPT.get("p1nocons"): return ["s_nop 0"]
        wv = WA + (b >> 1)
        for l in range(2):
            ks = 2*G + l
            out.append(f"ds_read_b128 {vr(F+4*l,4)}, v{XA+ks} offset:{b*8192}")
            for s in range(3):
                for rd in range(2):
                    if qkv or not OPT.get("w1perm", 0):
                        out.append(f"ds_read_b64_tr_b16 {vr(F+8+12*l+4*s+2*rd,2)}, v{wv} offset:{(b&1)*24576 + ks*6144 + rd*1536 + s*128}")
                    else:
                        out.append(f"ds_read_b64_tr_b16 {vr(F+8+12*l+4*s+2*rd,2)}, v{WF1[3*(b>>1)+s]} offset:{(b&1)*24576 + ks*6144 + rd*1536}")
        return out
    def mfmas(F, qkv):
        out = []
        if OPT.get("p1nocons") or OPT.get("p1nomfma"): return ["s_nop 0"]
        for l in range(2):
            for s in range(3):
                X, W = F+4*l, F+8+12*l+4*s
                out.append(MF(ACC+16*s, X, W, ACC+16*s) if (qkv and s == 2) else MF(ACC+16*s, W, X, ACC+16*s))
        return out
    def inter(mf, rd):
        out = []
        per = OPT.get("iper", [4, 4, 3, 3, 0, 0])
        if len(mf) != 6: return mf + rd
        k = 0
        for i, m in enumerate(mf):
            out.append(m)
            out += rd[k:k+per[i]]
            k += per[i]
        assert k >= len(rd)
        return out
    def stage_loop(tag, qkv):
        a.I("s_mov_b32 s65, 0x8000")
        a.L(f"L_loop_{tag}")
        fap = OPT.get("fapos", 2)
        for b in range(4):
            a.I("s_waitcnt lgkmcnt(0)")
            a.I(J(inter(mfmas(FA, qkv), reads(b, 1, FB, qkv))))
            if (not qkv) and b == (fap & 3):
                if fap >= 4:
                    a.I("s_cmp_lt_i32 s65, 0")
                    a.I(f"s_cbranch_scc0 L_nodrain")
                a.I("s_waitcnt vmcnt(0)")
                if fap >= 4: a.L("L_nodrain")
            a.I("s_waitcnt lgkmcnt(0)")
            if b == 3:
                if not qkv:
                    a.I("s_cmp_lt_i32 s65, 0")
                    a.I(f"s_cbranch_scc1 L_last_{tag}")
                for ks in range(4):
                    a.I(f"v_add_u32 v{XA+ks}, s65, v{XA+ks}")
            stamp_dyn(a)
            a.I("s_barrier")
            stamp_dyn(a)
            if qkv and b == 3:
                a.I("s_cmp_lt_i32 s65, 0")
                a.I("s_cbranch_scc1 L_qtail")
            a.I(J(inter(mfmas(FB, qkv), reads((b+1) % 4, 0, FA, qkv))))
        if qkv:
            a.I("s_mov_b32 s65, 0xffff8000")
            a.I(f"s_branch L_loop_{tag}")
            a.L("L_qtail")
            a.I(J(inter(mfmas(FB, qkv), reads(0, 0, FA, False))))
        else:
            a.I("s_mov_b32 s65, 0xffff8000")
            a.I(f"s_branch L_loop_{tag}")
        if not qkv:
            a.L(f"L_last_{tag}")
            a.I(J(mfmas(FB, qkv)))

    if OPT.get("pflate"):
        for i in range(OPT["pflate"]):
            a.I("s_sleep 8")
        l2_prefetch(a, 0)
    if OPT.get("pfw1early"):
        l2_prefetch(a, 1)
    a.I("s_barrier")
    stamp(a, "B0")
    if STAMPS and OPT.get("fine"): a.I("s_mov_b32 s87, 24")
    if not OPT.get("nopf") and not OPT.get("pfw1early") and not OPT.get("nopfw1", 1):
        l2_prefetch(a, 1)
    if OPT.get("w1late"):
        lw1 = lab("pw1")
        a.I(f"s_cmp_lg_u32 s{S_W}, 2")
        a.I(f"s_cbranch_scc1 {lw1}")
        a.I("v_lshlrev_b32 v20, 7, v1")
        srd(a, RC, S_W1, 512*2752)
        a.I("s_mul_i32 s54, s2, 5504")
        a.I("s_mov_b32 exec_hi, 0xfff")
        a.I(f"buffer_load_dword v24, v20, {S4(RC)}, s54 offen")
        a.I("s_mov_b64 exec, -1")
        a.L(lw1)
    if OPT.get("pfw2") == 2:
        lw = lab("pw2")
        a.I(f"s_cmp_lg_u32 s{S_W}, 3")
        a.I(f"s_cbranch_scc1 {lw}")
        glob_w2(a)
        a.L(lw)
    a.I(J(reads(0, 0, FA)))
    stage_loop("q", True)
    stamp(a, "qloop")
    srd(a, RA, S_WS, VF + 2*MB)
    a.I(f"s_lshl_b32 s54, s{S_RB}, 1")
    a.I("s_add_u32 s54, s54, s64")
    a.I(f"s_lshl_b32 s55, s{S_CG}, 2")
    a.I("s_lshl_b32 s56, s63, 1")
    a.I("s_add_u32 s55, s55, s56")
    a.I("s_lshl_b32 s55, s55, 6")
    a.I("s_add_u32 s54, s54, s55")
    a.I("s_lshl_b32 s54, s54, 10")
    a.I("v_lshlrev_b32 v3, 4, v1")
    a.I("v_bfe_u32 v4, v1, 4, 1")
    a.I("v_lshlrev_b32 v4, 16, v4")
    a.I(f"v_lshl_add_u32 v4, v{H}, 8, v4")
    a.I("v_and_b32 v5, 15, v1")
    a.I("v_lshl_add_u32 v4, v5, 4, v4")
    a.I(f"s_mov_b32 s56, {hex(f2u(QSCALE))}")
    a.I("s_waitcnt vmcnt(0)")
    a.I("s_nop 4")
    for idx, s in enumerate((1, 2, 0)):
        d = ACC + 16*s
        if s == 0:
            for i in range(16):
                a.I(f"v_mul_f32 v{d+i}, s56, v{d+i}")
        for j in range(8):
            a.I(f"v_cvt_pk_bf16_f32 v{d+j}, v{d+2*j}, v{d+2*j+1}")
        if s < 2:
            for hh in range(2):
                a.I(f"s_add_u32 s55, s54, {(KF if s else QF) + hh*65536}")
                a.I(f"buffer_store_dwordx4 {vr(d+4*hh,4)}, v3, {S4(RA)}, s55 offen sc1")
        else:
            a.I(f"s_add_u32 s55, s54, {VF}")
            for u in range(2):
                a.I(f"buffer_store_dwordx4 {vr(d+4*u,4)}, v4, {S4(RA)}, s55 offen offset:{u*512} sc1")
    a.I("s_nop 1")
    for s in range(3):
        for q in range(4):
            r = B1 + (s*4+q)*2
            d = ACC + s*16 + q*4
            a.I(f"v_lshlrev_b32 v{d}, 16, v{r}")
            a.I(f"v_and_b32 v{d+1}, 0xffff0000, v{r}")
            a.I(f"v_lshlrev_b32 v{d+2}, 16, v{r+1}")
            a.I(f"v_and_b32 v{d+3}, 0xffff0000, v{r+1}")
    stage_loop("f", False)
    a.I("s_barrier")
    stamp(a, "floop")
    srd_off(a, RA, S_WS, HF, HF_SIZE)
    a.I(f"s_lshl_b32 s54, s{S_RB}, 1")
    a.I("s_add_u32 s54, s54, s64")
    a.I(f"s_add_u32 s55, s{S_START}, s63")
    a.I("s_lshl_b32 s55, s55, 7")
    a.I("s_add_u32 s54, s54, s55")
    a.I("s_lshl_b32 s54, s54, 10")
    a.I("v_lshlrev_b32 v3, 4, v1")
    a.I("s_nop 4")
    for s in range(3):
        d = ACC + 16*s
        for i in range(16):
            a.I(f"v_max_f32 v{d+i}, 0, v{d+i}")
        for i in range(16):
            a.I(f"v_mul_f32 v{d+i}, v{d+i}, v{d+i}")
        for j in range(8):
            a.I(f"v_cvt_pk_bf16_f32 v{d+j}, v{d+2*j}, v{d+2*j+1}")
        for uu in range(2):
            a.I(f"s_add_u32 s55, s54, {(4*s+uu)*65536}")
            a.I(f"buffer_store_dwordx4 {vr(d+4*uu,4)}, v3, {S4(RA)}, s55 offen sc1")
    a.I("s_nop 1")
    a.I("s_branch L_attn")

def aux_side_issue(a):
    a.I("s_sub_u32 s66, s67, 4")
    a.I(f"s_lshl_b32 s54, s2, 2")
    a.I("s_or_b32 s54, s54, s66")
    a.I("s_cmp_lg_u32 s54, 0")
    a.I("s_cbranch_scc1 L_aux1")
    srd(a, RD, S_DBG, 256)
    a.I("s_memrealtime s[54:55]")
    a.I("s_waitcnt lgkmcnt(0)")
    a.I("s_or_b32 s85, s54, 1")
    a.I("v_mov_b32 v8, s85")
    a.I("v_mov_b32 v10, 0")
    a.I("s_mov_b64 exec, 1")
    a.I(f"buffer_store_dword v8, v10, {S4(RD)}, 0 offen sc1")
    a.I("s_mov_b64 exec, -1")
    a.L("L_aux1")
    a.I(f"s_lshl_b32 s54, s{S_RB}, 6")
    a.I(f"s_lshl_b32 s55, s{S_CG}, 3")
    a.I("s_add_u32 s54, s54, s55")
    a.I("s_lshl_b32 s55, s66, 1")
    a.I("s_add_u32 s86, s54, s55")
    return 0

def aux_side_loads(a):
    a.I("s_lshl_b32 s54, s86, 10")
    srd_off(a, RD, S_AX, "s54", 2048)
    a.I("v_and_b32 v2, 31, v1")
    a.I("v_lshlrev_b32 v2, 5, v2")
    a.I("v_lshrrev_b32 v3, 5, v1")
    a.I("v_lshl_add_u32 v4, v3, 10, v2")
    for i in range(2):
        a.I(f"buffer_load_dwordx4 {vr(32+4*i,4)}, v4, {S4(RD)}, 0 offen offset:{16*i}")
    srd(a, RD, S_GW, 1024)
    for i in range(2):
        a.I(f"buffer_load_dwordx4 {vr(40+4*i,4)}, v2, {S4(RD)}, 0 offen offset:{16*i}")
    n = 4
    if OPT.get("codepf", 1) and not OPT.get("codeearly", 1):
        a.I("s_getpc_b64 s[52:53]")
        a.L("L_pc")
        a.I(f"s_sub_u32 s52, s52, L_pc-{KN}")
        a.I("s_subb_u32 s53, s53, 0")
        a.I("s_mul_i32 s54, s66, 6144")
        a.I("v_lshlrev_b32 v5, 7, v1")
        a.I("v_add_u32 v5, s54, v5")
        a.I(f"v_min_u32 v5, L_code_end-{KN}-4, v5")
        a.I("s_mov_b32 exec_hi, 0xffff")
        a.I("global_load_dword v116, v5, s[52:53]")
        a.I("s_mov_b64 exec, -1")
        n += 1
    return n

def aux_nonce_issue(a):
    srd(a, RD, S_DBG, 256)
    a.I("v_mov_b32 v10, 0")
    a.I(f"buffer_load_dword v8, v10, {S4(RD)}, 0 offen sc1")
    return 1

def aux_nonce_take(a):
    a.I(f"v_readfirstlane_b32 s{S_NONCE}, v8")
    a.I("s_mov_b32 s50, 0x40000")
    a.L("L_nonce")
    a.I(f"s_cmp_lg_u32 s{S_NONCE}, 0")
    a.I("s_cbranch_scc1 L_nonce_ok")
    a.I("s_sub_u32 s50, s50, 1")
    a.I("s_cmp_eq_u32 s50, 0")
    a.I("s_cbranch_scc1 L_nonce_ok")
    srd(a, RD, S_DBG, 256)
    a.I(f"buffer_load_dword v8, v10, {S4(RD)}, 0 offen sc1")
    a.I("s_waitcnt vmcnt(0)")
    a.I(f"v_readfirstlane_b32 s{S_NONCE}, v8")
    a.I("s_branch L_nonce")
    a.L("L_nonce_ok")

def aux_gate(a):
    if OPT.get("p1noprod"): a.I("s_waitcnt vmcnt(0)")
    a.I("v_mov_b32 v24, 0")
    for i in range(8):
        a.I(f"v_dot2c_f32_bf16 v24, v{32+i}, v{40+i}")
    a.I("s_nop 3")
    for sh in (1, 2, 4, 8):
        a.I(f"v_add_f32_dpp v24, v24, v24 row_shr:{sh} row_mask:0xf bank_mask:0xf")
        a.I("s_nop 1")
    a.I("v_add_f32_dpp v24, v24, v24 row_bcast:15 row_mask:0xa bank_mask:0xf")
    a.I("s_nop 1")
    a.I("v_cvt_pk_bf16_f32 v24, v24, v24")
    a.I("v_and_b32 v24, 0xffff0000, v24")
    a.I(f"v_mul_f32 v24, {hex(f2u(-1.4426950408889634))}, v24")
    a.I("v_exp_f32 v24, v24")
    a.I("s_nop 0")
    a.I("v_add_f32 v24, 1.0, v24")
    a.I("v_rcp_f32 v24, v24")
    a.I("s_nop 0")
    a.I("v_cvt_pk_bf16_f32 v24, v24, v24")
    a.I("v_and_b32 v24, 0xffff0000, v24")
    srd_off(a, RD, S_WS, GO, 8192)
    a.I("s_lshl_b32 s54, s86, 2")
    a.I("v_lshrrev_b32 v3, 5, v1")
    a.I("v_lshlrev_b32 v3, 2, v3")
    a.I("s_mov_b32 s52, 0x80000000")
    a.I("s_mov_b32 s53, 0x80000000")
    a.I("s_mov_b64 exec, s[52:53]")
    a.I(f"buffer_store_dword v24, v3, {S4(RD)}, s54 offen sc1")
    a.I("s_mov_b64 exec, -1")

def aux_publish_fa(a):
    a.I("s_cmp_lg_u32 s66, 0")
    a.I("s_cbranch_scc1 L_aux2")
    srd_off(a, RD, S_WS, FLG, FLG_SIZE)
    a.I(f"s_lshl_b32 s54, s{S_CG}, 7")
    a.I(f"s_lshl_b32 s55, s{S_RB}, 2")
    a.I("s_add_u32 s54, s54, s55")
    a.I(f"s_add_u32 s54, s54, {FA_OFF}")
    a.I(f"v_mov_b32 v8, s{S_NONCE}")
    a.I(f"v_mov_b32 v10, 0")
    a.I("s_mov_b64 exec, 1")
    a.I(f"buffer_store_dword v8, v10, {S4(RD)}, s54 offen sc1")
    a.I("s_mov_b64 exec, -1")
    stamp(a, "FApub")
    a.L("L_aux2")

def aux_zero_misc(a):
    a.I("s_cmp_lg_u32 s66, 1")
    a.I("s_cbranch_scc1 L_aux3")
    a.I(f"v_lshlrev_b32 v10, 2, v1")
    if L_MISC: a.I(f"v_add_u32 v10, {L_MISC}, v10")
    a.I("v_mov_b32 v9, 0")
    a.I("ds_write_b32 v10, v9")
    a.I("s_waitcnt lgkmcnt(0)")
    a.I("v_mov_b32 v10, 0")
    a.L("L_aux3")

def aux_share_nonce(a):
    a.I("s_cmp_lg_u32 s66, 0")
    a.I("s_cbranch_scc1 L_aux4")
    a.I(f"v_mov_b32 v9, {L_MISC + 128}")
    a.I(f"v_mov_b32 v11, s{S_NONCE}")
    a.I("ds_write_b32 v9, v11")
    a.I("s_waitcnt lgkmcnt(0)")
    a.L("L_aux4")

def aux_fa_probe(a):
    srd_off(a, RC, S_WS, FLG, FLG_SIZE)
    a.I(f"s_lshr_b32 s88, s{S_HD}, 2")
    a.I("s_lshl_b32 s88, s88, 7")
    a.I(f"s_add_u32 s88, s88, {FA_OFF}")
    a.I("v_lshlrev_b32 v9, 2, v1")
    a.I("s_mov_b32 exec_hi, 0")
    a.I(f"buffer_load_dword v11, v9, {S4(RC)}, s88 offen sc1")
    a.I("s_mov_b64 exec, -1")

def aux_after_e1(a):
    a.I("s_mov_b32 s67, s66")
    a.I("s_setprio 3")
    stamp(a, "E2")
    a.I("s_mov_b32 exec_hi, 0")
    a.I("s_waitcnt vmcnt(0)")
    a.I(f"v_cmp_ne_u32 vcc, s{S_NONCE}, v11")
    a.I("s_mov_b64 exec, -1")
    a.I("s_cbranch_vccz L_aux5")
    poll(a, RC, 32, 9, 11, "s88", OPT.get("faslp", 2))
    a.L("L_aux5")
    stamp(a, "FAok")
    VL = 4
    a.I(f"v_lshlrev_b32 v{VL}, 4, v1")
    a.I(f"s_lshl_b32 s54, s{S_HD}, 16")
    a.I(f"s_add_u32 s55, s54, {KF}")
    srd_off(a, RA, S_WS, "s55", 65536)
    a.I(f"s_add_u32 s55, s54, {VF}")
    srd_off(a, RB, S_WS, "s55", 65536)
    a.I(f"s_add_u32 s55, s54, {QF}")
    srd_off(a, RD, S_WS, "s55", 65536)
    a.I(f"s_lshl_b32 s54, s{S_QB}, 3")
    a.I("s_lshl_b32 s55, s67, 1")
    a.I("s_add_u32 s54, s54, s55")
    a.I("s_lshl_b32 s54, s54, 10")
    a.I("s_lshl_b32 s55, s67, 11")
    a.I(f"s_add_u32 s55, s55, {L_RING}")
    for t in range(2):
        a.I(f"s_add_u32 m0, s55, {t*1024}")
        a.I(f"s_add_u32 s56, s54, {t*1024}")
        a.I(f"buffer_load_dwordx4 v{VL}, {S4(RD)}, s56 offen sc1 lds")
    a.I("s_lshl_b32 s54, s67, 10")
    def kvchunks(cs):
        for c in cs:
            a.I(f"s_add_u32 s55, s54, {c*4096}")
            a.I(f"s_add_u32 m0, s55, {L_K}")
            a.I(f"s_add_u32 s56, s55, {L_V}")
            a.I(f"buffer_load_dwordx4 v{VL}, {S4(RA)}, s55 offen sc1 lds")
            a.I("s_mov_b32 m0, s56")
            a.I("s_nop 0")
            a.I(f"buffer_load_dwordx4 v{VL}, {S4(RB)}, s55 offen sc1 lds")
    kvchunks(range(0, 2))
    kvchunks(range(2, 4))
    a.I("s_waitcnt vmcnt(4)")
    lds_add1(a, M_KV, 8, 9)
    stamp(a, "KV1")
    kvchunks(range(4, 16))
    a.I("s_lshr_b32 s53, s2, 3")
    srd(a, RA, S_W2, 1376*1024)
    srd(a, RB, S_WO, 512*1024)
    a.I("s_mul_i32 s54, s53, 44032")
    a.I("s_lshl_b32 s55, s67, 10")
    a.I("s_add_u32 s54, s54, s55")
    a.I("s_waitcnt vmcnt(0)")
    lds_add1(a, M_KV, 8, 9)
    stamp(a, "KV2")
    a.I("v_lshlrev_b32 v10, 7, v1")
    a.I("s_lshl_b32 s55, s67, 13")
    a.I("s_mul_i32 s54, s53, 44032")
    a.I("s_add_u32 s54, s54, s55")
    a.I(f"buffer_load_dword v40, v10, {S4(RA)}, s54 offen")
    a.I("s_add_u32 s54, s54, 32768")
    a.I(f"buffer_load_dword v41, v10, {S4(RA)}, s54 offen")
    a.I("s_lshl_b32 s54, s53, 14")
    a.I("s_lshl_b32 s55, s67, 12")
    a.I("s_add_u32 s54, s54, s55")
    a.I("s_mov_b32 exec_hi, 0")
    a.I(f"buffer_load_dword v42, v10, {S4(RB)}, s54 offen")
    a.I("s_mov_b64 exec, -1")

def ffn2_p3(a):
    WF, HR, ACC2, BPR = 24, 40, 104, 8
    VH, VW, VA0, VA1 = 2, 3, 4, 5
    a.I("s_cmp_lg_u32 s67, 0")
    a.I("s_cbranch_scc1 L_f1")
    lds_spin(a, M_HST, 4, 8, 9, OPT.get('fslp', 1))
    lds_spin(a, M_KV, 8, 8, 9)
    a.I(f"s_lshl_b32 s54, s{S_RB}, 7")
    a.I(f"s_lshl_b32 s55, s{S_CG}, 2")
    a.I("s_add_u32 s54, s54, s55")
    a.I(f"s_add_u32 s54, s54, {FH_OFF}")
    flag_store(a, "s54", 8, 10)
    a.I(f"s_lshl_b32 s54, s{S_HD}, 7")
    a.I(f"s_add_u32 s54, s54, {FH_OFF}")
    a.I("v_lshlrev_b32 v8, 2, v1")
    poll(a, RC, 8, 8, 9, "s54", OPT.get("fhslp", 8))
    lds_add1(a, M_H, 8, 9)
    a.I("s_branch L_f2")
    a.L("L_f1")
    lds_spin(a, M_H, 1, 8, 9, OPT.get('fslp', 1))
    a.L("L_f2")
    lds_spin(a, M_QRD, 8, 8, 9, OPT.get('fslp', 1))
    stamp(a, "hready")
    srd(a, RA, S_W2, 1376*1024)
    srd_off(a, RB, S_WS, HF, HF_SIZE)
    a.I(f"v_lshlrev_b32 v{VH}, 4, v1")
    dma_w_lane_off(a, VW, 1, 8, 9, 1024)
    a.I(f"s_lshl_b32 s54, s{S_QB}, 7")
    a.I(f"v_add_u32 v{VW}, s54, v{VW}")
    tr_lane_addr(a, VA0, 1, 8, 9, 4, 128)
    a.I("s_mul_i32 s68, s67, 6144")
    a.I(f"s_add_u32 s68, s68, {L_RING}")
    a.I(f"v_add_u32 v{VA0}, s68, v{VA0}")
    a.I(f"v_xor_b32 v{VA1}, 64, v{VA0}")
    a.I("s_mul_i32 s54, s67, 24")
    a.I("s_lshl_b32 s70, s54, 14")
    a.I("s_lshl_b32 s71, s54, 16")
    a.I(f"s_lshl_b32 s55, s{S_HD}, 11")
    a.I("s_add_u32 s71, s71, s55")
    for i in range(64):
        a.I(f"v_mov_b32 v{ACC2+i}, 0")
    a.I("s_waitcnt vmcnt(0)")
    def fissue(slot):
        return [f"s_add_u32 m0, s68, {slot*2048}",
                f"s_add_u32 s69, s70, 8192",
                f"buffer_load_dwordx4 v{VW}, {S4(RA)}, s70 offen lds",
                f"s_add_u32 m0, s68, {slot*2048+1024}",
                f"s_add_u32 s70, s70, 16384",
                f"buffer_load_dwordx4 v{VW}, {S4(RA)}, s69 offen lds",
                f"buffer_load_dwordx4 {vr(HR+slot*8,4)}, v{VH}, {S4(RB)}, s71 offen sc1",
                f"buffer_load_dwordx4 {vr(HR+slot*8+4,4)}, v{VH}, {S4(RB)}, s71 offen offset:1024 sc1",
                f"s_add_u32 s71, s71, 65536"]
    def trr(F, off):
        out = []
        for ct, va in ((0, VA0), (1, VA1)):
            for rd in range(2):
                out.append(f"ds_read_b64_tr_b16 {vr(F+4*ct+2*rd,2)}, v{va} offset:{off + rd*1024}")
        return out
    N2 = OPT.get("n2", 0)
    a.I("s_cmp_eq_u32 s67, 3")
    a.I(f"s_cselect_b32 s72, {5-N2}, {8-N2}")
    a.I("s_mov_b32 s76, 0")
    a.L("L_fpro")
    for slot in range(3):
        a.I(J(fissue(slot)))
    a.I("s_cmp_lg_u32 s76, 0")
    a.I("s_cbranch_scc1 L_floop")
    a.I(f"s_setprio {OPT.get('ffnprio', 0)}")
    if OPT.get("noffn"): a.I("s_branch L_fskip")
    a.L("L_floop")
    for slot in range(3):
        a.I("s_waitcnt vmcnt(8)")
        a.I(J(trr(WF, slot*2048)))
        a.I("s_waitcnt lgkmcnt(0)")
        fi = fissue(slot)
        mf = lambda ct, rt: MF(ACC2 + (ct*2+rt)*16, WF+4*ct, HR+slot*8+4*rt, ACC2 + (ct*2+rt)*16)
        if OPT.get("fspread", 1):
            a.I(mf(0, 0)); a.I(J(fi[0:3]))
            a.I(mf(1, 0)); a.I(J(fi[3:6]))
            a.I(mf(0, 1)); a.I(fi[6])
            a.I(mf(1, 1)); a.I(J(fi[7:]))
        else:
            for ct in range(2):
                for rt in range(2):
                    a.I(mf(ct, rt))
            a.I(J(fi))
    a.I("s_sub_u32 s72, s72, 1")
    a.I("s_cmp_lg_u32 s72, 0")
    a.I("s_cbranch_scc1 L_floop")
    a.L("L_fskip")
    a.I("s_setprio 3")
    a.I("s_waitcnt vmcnt(0)")
    a.I("s_cmp_lg_u32 s76, 0")
    a.I("s_cbranch_scc1 L_fdone")
    lds_add1(a, M_FFN, 8, 9)
    stamp(a, "ffn2")
    lds_spin(a, M_ATT, 4, 8, 9, OPT.get('attslp', 1))
    stamp(a, "attdone")
    srd(a, RD, S_WO, 512*1024)
    a.I("s_lshl_b32 s56, s67, 14")
    a.I(f"s_add_u32 s56, s56, {L_K}")
    a.I("s_lshl_b32 s57, s67, 17")
    for ks in range(8):
        for n in range(2):
            a.I(f"s_add_u32 m0, s56, {ks*2048+n*1024}")
            a.I(f"s_add_u32 s69, s57, {ks*16384+n*8192}")
            a.I(f"buffer_load_dwordx4 v{VW}, {S4(RD)}, s69 offen lds")
    if N2:
        a.I("s_mov_b32 s76, 1")
        a.I(f"s_sub_u32 s70, s70, {3*16384}")
        a.I(f"s_sub_u32 s71, s71, {3*65536}")
        a.I(f"s_mov_b32 s72, {N2}")
        a.I("s_branch L_fpro")
    a.L("L_fdone")
    srd_off(a, RA, S_WS, GO, 8192)
    srd(a, RB, S_B2, 1024)
    a.I("s_and_b32 s73, s67, 1")
    a.I("s_lshr_b32 s74, s67, 1")
    a.I(f"s_lshl_b32 s75, s{S_HD}, 6")
    a.I("s_lshl_b32 s54, s73, 5")
    a.I("s_add_u32 s75, s75, s54")
    a.I("s_lshl_b32 s54, s75, 2")
    a.I("v_and_b32 v8, 31, v1")
    a.I("v_lshlrev_b32 v8, 2, v8")
    a.I(f"buffer_load_dword v40, v8, {S4(RA)}, s54 offen sc1")
    a.I(f"s_lshl_b32 s54, s{S_QB}, 6")
    a.I("s_lshl_b32 s55, s74, 5")
    a.I("s_add_u32 s54, s54, s55")
    a.I("s_lshl_b32 s54, s54, 1")
    a.I("v_lshrrev_b32 v8, 5, v1")
    a.I("v_lshlrev_b32 v8, 3, v8")
    for q in range(4):
        a.I(f"buffer_load_dwordx2 v[{42+2*q}:{43+2*q}], v8, {S4(RB)}, s54 offen offset:{q*16}")
    a.I("s_lshl_b32 s68, s67, 14")
    a.I("s_nop 7")
    a.I(f"s_add_u32 s54, s68, {L_V}")
    a.I(f"v_add_u32 v8, s54, v{VH}")
    for i in range(16):
        a.I(f"ds_write_b128 v8, {vr(ACC2+4*i,4)} offset:{i*1024}")
    a.I("s_waitcnt vmcnt(0) lgkmcnt(0)")
    lds_add1(a, M_T1, 9, 10)
    lds_spin(a, M_T1, 4, 9, 10)
    a.I("s_lshl_b32 s54, s67, 12")
    a.I(f"s_add_u32 s54, s54, {L_V}")
    a.I(f"v_add_u32 v8, s54, v{VH}")
    for p in range(4):
        for q in range(4):
            a.I(f"ds_read_b128 {vr(ACC2+p*16+q*4,4)}, v8 offset:{p*16384+q*1024}")
    a.I("s_waitcnt lgkmcnt(0)")
    for i in range(16):
        a.I(f"v_add_f32 v{ACC2+i}, v{ACC2+i}, v{ACC2+16+i}")
        a.I(f"v_add_f32 v{ACC2+32+i}, v{ACC2+32+i}, v{ACC2+48+i}")
    for i in range(16):
        a.I(f"v_add_f32 v{ACC2+i}, v{ACC2+i}, v{ACC2+32+i}")
    a.I("s_waitcnt vmcnt(0)")
    a.I("v_sub_f32 v41, 1.0, v40")
    a.I("v_cvt_pk_bf16_f32 v41, v41, v41")
    a.I("v_and_b32 v41, 0xffff0000, v41")
    for q in range(4):
        a.I(f"v_lshlrev_b32 v52, 16, v{42+2*q}")
        a.I(f"v_and_b32 v53, 0xffff0000, v{42+2*q}")
        a.I(f"v_lshlrev_b32 v54, 16, v{43+2*q}")
        a.I(f"v_and_b32 v55, 0xffff0000, v{43+2*q}")
        for j in range(4):
            a.I(f"v_add_f32 v{BPR+4*q+j}, v{ACC2+4*q+j}, v{52+j}")
        for j in range(4):
            a.I(f"v_mul_f32 v{BPR+4*q+j}, v{BPR+4*q+j}, v41")
    a.I("v_mov_b32 v39, v40")
    tr_lane_addr(a, VA0, 1, 32, 33, 4, 128)
    a.I("s_lshl_b32 s54, s74, 6")
    a.I(f"v_xor_b32 v{VA0}, s54, v{VA0}")
    a.I(f"v_add_u32 v{VA0}, {L_K}, v{VA0}")
    a.I("s_lshl_b32 s54, s73, 15")
    a.I(f"s_add_u32 s54, s54, {L_V}")
    a.I(f"v_add_u32 v{VA1}, s54, v{VH}")
    FR = 40
    def wreads(ks):
        F = FR + (ks % 8) * 8
        return [f"ds_read_b64_tr_b16 {vr(F,2)}, v{VA0} offset:{ks*2048}",
                f"ds_read_b64_tr_b16 {vr(F+2,2)}, v{VA0} offset:{ks*2048+1024}"]
    def oread(ks):
        F = FR + (ks % 8) * 8
        return [f"ds_read_b128 {vr(F+4,4)}, v{VA1} offset:{ks*1024}"]
    a.I("s_cmp_lg_u32 s67, 0")
    a.I("s_cbranch_scc1 L_f4")
    a.I(f"s_lshl_b32 s54, s{S_HD}, 8")
    a.I(f"s_add_u32 s54, s54, {FO_OFF}")
    a.I("v_lshlrev_b32 v121, 2, v1")
    if not OPT.get("opf", 0):
        poll(a, RC, 64, 121, 122, "s54", OPT.get("foslp", 2))
    else:
        srd_off(a, RB, S_WS, OF, 2*MB)
        a.I(f"s_lshl_b32 s55, s{S_HD}, 16")
        a.I("v_lshlrev_b32 v123, 10, v1")
        a.I("s_mov_b64 s[56:57], 0")
        a.I("s_mov_b32 s50, 0x40000")
        a.L("L_opf")
        a.I(f"buffer_load_dword v122, v121, {S4(RC)}, s54 offen sc1")
        a.I("s_waitcnt vmcnt(0)")
        a.I(f"v_cmp_eq_u32 vcc, s{S_NONCE}, v122")
        a.I("s_nop 1")
        a.I("s_andn2_b64 s[58:59], vcc, s[56:57]")
        a.I("s_or_b64 s[56:57], s[56:57], vcc")
        a.I("s_cmp_eq_u64 s[56:57], -1")
        a.I("s_cbranch_scc1 L_opf3")
        a.I("s_cmp_eq_u64 s[58:59], 0")
        a.I("s_cbranch_scc1 L_opf2")
        a.I("s_mov_b64 exec, s[58:59]")
        for j in range(8):
            a.I(f"buffer_load_dword v120, v123, {S4(RB)}, s55 offen offset:{j*128} sc1")
        a.I("s_mov_b64 exec, -1")
        a.L("L_opf2")
        a.I("s_sub_u32 s50, s50, 1")
        a.I("s_cmp_eq_u32 s50, 0")
        a.I("s_cbranch_scc1 L_opf3")
        a.I(f"s_sleep {OPT.get('foslp', 2)}")
        a.I("s_branch L_opf")
        a.L("L_opf3")
    a.L("L_f4")
    for ks in range(8): a.I(J(wreads(ks)))
    srd_off(a, RB, S_WS, OF, 2*MB)
    a.I(f"s_lshl_b32 s54, s{S_HD}, 16")
    a.I("s_lshl_b32 s55, s67, 11")
    a.I("s_add_u32 s54, s54, s55")
    a.I(f"s_add_u32 s55, s55, {L_V}")
    srd(a, RA, S_OUT, 2*MB)
    a.I("s_lshl_b32 s58, s75, 10")
    a.I(f"s_lshl_b32 s59, s{S_QB}, 7")
    a.I("s_add_u32 s58, s58, s59")
    a.I("s_lshl_b32 s59, s74, 6")
    a.I("s_add_u32 s58, s58, s59")
    a.I("v_and_b32 v32, 31, v1")
    a.I("v_lshlrev_b32 v32, 10, v32")
    a.I("v_lshrrev_b32 v33, 5, v1")
    a.I("v_lshl_add_u32 v32, v33, 4, v32")
    a.I("s_waitcnt lgkmcnt(0)")
    a.I("s_barrier")
    stamp(a, "T2")
    def odma(ch):
        L = []
        for hh in range(2):
            for rt in range(2):
                off = rt*32768 + ch*8192 + hh*1024
                L.append([f"s_add_u32 m0, s55, {off}", f"s_add_u32 s56, s54, {off}",
                          f"buffer_load_dwordx4 v{VH}, {S4(RB)}, s56 offen sc1 lds"])
        return L
    for ch in range(4):
        for x in odma(ch): a.I(J(x))
    for ch in range(4):
        a.I(f"s_waitcnt vmcnt({4*(3-ch)}) lgkmcnt(0)")
        a.I("s_barrier")
        for ks in range(8*ch, 8*ch+8): a.I(J(oread(ks)))
        for i in range(8):
            ks = 8*ch + i
            a.I(f"s_waitcnt lgkmcnt({7 + i if ch < 3 else 7 - i})")
            F = FR + i*8
            a.I(MF(ACC2, F, F+4, ACC2 if ks else None))
            if ch < 3: a.I(J(wreads(ks+8)))
    a.I("s_nop 15")
    stamp(a, "p3mm")
    for i in range(16):
        a.I(f"v_fma_f32 v{ACC2+i}, v{ACC2+i}, v39, v{BPR+i}")
    for j in range(8):
        a.I(f"v_cvt_pk_bf16_f32 v{ACC2+j}, v{ACC2+2*j}, v{ACC2+2*j+1}")
    a.I("s_nop 1")
    a.I(f"v_permlane32_swap_b32 v{ACC2}, v{ACC2+2}")
    a.I(f"v_permlane32_swap_b32 v{ACC2+1}, v{ACC2+3}")
    a.I(f"v_permlane32_swap_b32 v{ACC2+4}, v{ACC2+6}")
    a.I(f"v_permlane32_swap_b32 v{ACC2+5}, v{ACC2+7}")
    ofl = {0: "", 1: " sc1", 2: " nt", 3: " sc0 sc1"}[OPT.get("outfl", 0)]
    a.I(f"buffer_store_dwordx4 {vr(ACC2,4)}, v32, {S4(RA)}, s58 offen{ofl}")
    a.I(f"buffer_store_dwordx4 {vr(ACC2+4,4)}, v32, {S4(RA)}, s58 offen offset:32{ofl}")
    stamp_flush(a, "ffn")
    a.I("s_endpgm")

def attention(a):
    a.L("L_attn")
    stamp(a, "attn0")
    QA, QB = 8, 12
    KB = [16, 20]; VB = [24, 32]
    S0, S1, OA, OB = 40, 56, 72, 88
    VK, VV, VL = 2, 3, 4
    T0, T1, T2 = 104, 105, 106
    VKN, VVN, VVB, VCH, VONE, VNX = 107, 108, 109, 110, 111, 5
    a.I(f"s_and_b32 s63, s{S_W}, 3")
    a.I(f"s_lshr_b32 s64, s{S_W}, 2")
    a.I(f"v_lshlrev_b32 v{VL}, 4, v1")
    a.I(f"v_lshrrev_b32 v{T0}, 5, v1")
    a.I(f"v_and_b32 v{T1}, 15, v1")
    a.I(f"v_lshlrev_b32 v{T1}, 4, v{T1}")
    a.I(f"v_lshl_add_u32 v{VVB}, v{T0}, 8, v{T1}")
    a.I(f"v_add_u32 v{VVB}, {L_V}, v{VVB}")
    a.I(f"v_add_u32 v{VKN}, {L_K}, v{VL}")
    a.I("s_lshl_b32 s54, s64, 12")
    a.I(f"v_add_u32 v{VK}, s54, v{VL}")
    a.I(f"v_add_u32 v{VV}, s54, v{VVB}")
    a.I("s_lshl_b32 s54, s63, 2")
    a.I(f"s_add_u32 s54, s54, {M_CH}")
    a.I(f"v_mov_b32 v{VCH}, s54")
    a.I(f"v_mov_b32 v{VONE}, 1")
    a.I("s_mov_b32 s74, 0x0000ffff")
    a.I("s_mov_b32 s75, 0x0000ffff")
    a.I("s_mov_b32 s77, 0")
    a.I(f"s_lshl_b32 s66, s{S_QB}, 3")
    a.I("s_lshl_b32 s54, s63, 1")
    a.I("s_add_u32 s66, s66, s54")
    a.I("s_lshl_b32 s54, s63, 11")
    a.I(f"s_add_u32 s54, s54, {L_RING}")
    a.I(f"v_add_u32 v{T2}, s54, v{VL}")
    a.I(f"v_and_b32 v{T0}, 31, v1")
    a.I(f"v_cmp_eq_u32 vcc, 16, v{T0}")
    a.I(f"v_mov_b32 v{T1}, 0x3f803f80")
    a.I("s_nop 1")
    a.I(f"v_cndmask_b32 v{T0}, 0, v{T1}, vcc")
    for i in range(16):
        a.I(f"v_mov_b32 v{VB[0]+i}, v{T0}")
    lds_spin(a, M_KV, 4, T0, T1)
    stamp(a, "kvok")
    a.I(f"ds_read_b128 {vr(QA,4)}, v{T2}")
    a.I(f"ds_read_b128 {vr(QB,4)}, v{T2} offset:1024")
    for i in range(16):
        a.I(f"v_mov_b32 v{OA+i}, 0")
        a.I(f"v_mov_b32 v{OB+i}, 0")
    a.I("s_waitcnt lgkmcnt(0)")
    lds_add1(a, M_QRD, T0, T1)
    a.I("s_lshl_b32 s71, s64, 12")
    if STAMPS and OPT.get("fineattn"): a.I("s_mov_b32 s87, 24")
    a.I("s_mov_b32 s73, 0")

    def e_(S, i): return f"v_exp_f32 v{S+i}, v{S+i}"
    def c_(S, j): return f"v_cvt_pk_bf16_f32 v{S+j}, v{S+2*j}, v{S+2*j+1}"
    def tile(Sin, Sout, Qn, Kn, Ocur, Vcur_u0, Oprev, Vprev_u1, after_pv2, wait_s, after_s, wait_pv1, do_pv2=True, do_s=True):
        e = lambda i: e_(Sin, i)
        c = lambda j: c_(Sin, j)
        L = [e(0), e(1)]
        if do_pv2: L.append(MF(Oprev, Vprev_u1, Sout+4, Oprev))
        L += after_pv2
        L += [e(2), e(3), c(0), e(4), e(5), c(1)]
        L += wait_s
        if do_s: L.append(MF(Sout, Kn, Qn))
        L += after_s
        L += [e(6), e(7), c(2), e(8), e(9), c(3), e(10), e(11)]
        L += wait_pv1
        L.append(MF(Ocur, Vcur_u0, Sin, Ocur))
        L += [c(4), e(12), e(13), c(5), e(14), e(15), c(6), c(7)]
        return L
    fifo = []
    def dsr(tag, txt): fifo.append(tag); return txt
    def need(tag):
        idx = max(i for i, t in enumerate(fifo) if t == tag)
        return [f"s_waitcnt lgkmcnt({len(fifo) - 1 - idx})"]
    def vreads(t):
        kap = t & 1
        return ["s_mov_b64 exec, s[74:75]",
                dsr(("V", t), f"ds_read_b128 {vr(VB[kap],4)}, v{VV} offset:{t*1024}"),
                dsr(("V", t), f"ds_read_b128 {vr(VB[kap]+4,4)}, v{VV} offset:{t*1024+512}"),
                "s_mov_b64 exec, -1"]
    def kread(t): return [dsr(("K", t), f"ds_read_b128 {vr(KB[t & 1],4)}, v{VK} offset:{t*1024}")]
    a.raw(".p2align 6")
    a.L("L_aloop")
    if OPT.get("fineattn"):
        OPT["fine"] = 1; stamp_dyn(a); OPT["fine"] = 0
    a.I(f"v_add_u32 v{VK}, s71, v{VKN}")
    a.I(f"v_add_u32 v{VV}, s71, v{VVB}")
    L = kread(0) + vreads(0) + kread(1)
    L += need(("K", 0))
    L.append(MF(S0, KB[0], QA))
    a.I(J(L))
    a.I("s_nop 7")
    a.I("s_nop 3")
    body = []
    for t in range(4):
        kap = t & 1
        A = []
        Sin, Sout = S0, S1
        A += [e_(Sin, 0), e_(Sin, 1)]
        if t > 0: A.append(MF(OB, VB[kap^1]+4, Sout+4, OB))
        if t + 1 < 4: A += vreads(t+1)
        A += [e_(Sin, 2), e_(Sin, 3), c_(Sin, 0), e_(Sin, 4), e_(Sin, 5), c_(Sin, 1)]
        A.append(MF(Sout, KB[kap], QB))
        if t + 2 < 4: A += kread(t+2)
        A += [e_(Sin, 6), e_(Sin, 7), c_(Sin, 2), e_(Sin, 8), e_(Sin, 9), c_(Sin, 3), e_(Sin, 10), e_(Sin, 11)]
        A += need(("V", t))
        A.append(MF(OA, VB[kap], Sin, OA))
        A += [c_(Sin, 4), e_(Sin, 12), e_(Sin, 13), c_(Sin, 5), e_(Sin, 14), e_(Sin, 15), c_(Sin, 6), c_(Sin, 7)]
        Sin, Sout = S1, S0
        B = [e_(Sin, 0), e_(Sin, 1), MF(OA, VB[kap]+4, Sout+4, OA)]
        if t == 3:
            B += ["s_mov_b64 exec, 1", dsr(("G",), f"ds_add_rtn_u32 v{VNX}, v{VCH}, v{VONE}"), "s_mov_b64 exec, -1"]
        B += [e_(Sin, 2), e_(Sin, 3), c_(Sin, 0), e_(Sin, 4), e_(Sin, 5), c_(Sin, 1)]
        if t + 1 < 4:
            B += need(("K", t+1))
            B.append(MF(Sout, KB[kap^1], QA))
        B += [e_(Sin, 6), e_(Sin, 7), c_(Sin, 2), e_(Sin, 8), e_(Sin, 9), c_(Sin, 3), e_(Sin, 10), e_(Sin, 11)]
        B.append(MF(OB, VB[kap], Sin, OB))
        B += [c_(Sin, 4), e_(Sin, 12), e_(Sin, 13), c_(Sin, 5), e_(Sin, 14), e_(Sin, 15), c_(Sin, 6), c_(Sin, 7)]
        body += A + B
    a.I(J(body))
    a.I("s_waitcnt lgkmcnt(0)")
    a.I(f"v_readfirstlane_b32 s70, v{VNX}")
    a.I(MF(OB, VB[1]+4, S1+4, OB))
    a.I("s_add_u32 s70, s70, 2")
    a.I("s_lshl_b32 s71, s70, 12")
    a.I("s_cmp_lg_u32 s73, 0")
    a.I("s_cbranch_scc1 L_aloop2")
    a.I("s_mov_b32 s73, 1")
    a.I("s_waitcnt vmcnt(0)")
    a.I(f"s_cmp_ge_u32 s{S_W}, 4")
    a.I("s_cbranch_scc1 L_aloop1")
    lds_add1(a, M_HST, T0, T1)
    a.L("L_aloop1")
    lds_spin(a, M_KV, 8, T0, T1)
    a.L("L_aloop2")
    a.I("s_cmp_lt_u32 s70, 16")
    a.I("s_cbranch_scc1 L_aloop")
    a.I("s_waitcnt lgkmcnt(0)")
    a.I("s_nop 7")
    stamp(a, "aloop")
    a.I("s_lshl_b32 s54, s63, 2")
    a.I(f"s_add_u32 s55, s54, {M_PAIR}")
    a.I(f"s_add_u32 s76, s54, {M_PFLAG}")
    a.I(f"v_mov_b32 v{T0}, s55")
    a.I(f"v_mov_b32 v{T1}, 1")
    a.I("s_mov_b64 exec, 1")
    a.I(f"ds_add_rtn_u32 v{T2}, v{T0}, v{T1}")
    a.I("s_mov_b64 exec, -1")
    a.I("s_mul_i32 s54, s63, 4608")
    a.I(f"s_add_u32 s54, s54, {L_XCH}")
    a.I(f"v_add_u32 v{S0}, s54, v{VL}")
    a.I(f"v_lshlrev_b32 v{S0+1}, 2, v1")
    a.I(f"v_add_u32 v{S0+1}, s54, v{S0+1}")
    a.I("s_waitcnt lgkmcnt(0)")
    a.I(f"v_readfirstlane_b32 s55, v{T2}")
    a.I("s_nop 4")
    a.I("s_cmp_lg_u32 s55, 0")
    a.I("s_cbranch_scc1 L_second")
    lds_spin(a, M_FFN, 4, T0, T1)
    a.I(f"ds_write_b128 v{S0}, {vr(OA,4)}")
    a.I(f"ds_write_b128 v{S0}, {vr(OA+4,4)} offset:1024")
    a.I(f"ds_write_b128 v{S0}, {vr(OB,4)} offset:2048")
    a.I(f"ds_write_b128 v{S0}, {vr(OB+4,4)} offset:3072")
    a.I(f"ds_write_b32 v{S0+1}, v{OA+8} offset:4096")
    a.I(f"ds_write_b32 v{S0+1}, v{OB+8} offset:4352")
    a.I("s_waitcnt lgkmcnt(0)")
    lds_add1(a, "s76", T0, T1)
    a.I("s_waitcnt lgkmcnt(0)")
    stamp_flush(a, "attn")
    a.I("s_endpgm")
    a.L("L_second")
    lds_spin(a, "s76", 1, T0, T1)
    a.I(f"ds_read_b128 {vr(S1,4)}, v{S0}")
    a.I(f"ds_read_b128 {vr(S1+4,4)}, v{S0} offset:1024")
    a.I(f"ds_read_b128 {vr(S1+8,4)}, v{S0} offset:2048")
    a.I(f"ds_read_b128 {vr(S1+12,4)}, v{S0} offset:3072")
    a.I(f"ds_read_b32 v{T0}, v{S0+1} offset:4096")
    a.I(f"ds_read_b32 v{T1}, v{S0+1} offset:4352")
    a.I(f"v_mov_b32 v{T2}, {L_MISC + 128}")
    a.I(f"ds_read_b32 v{T2}, v{T2}")
    a.I("s_waitcnt lgkmcnt(0)")
    a.I(f"v_readfirstlane_b32 s{S_NONCE}, v{T2}")
    for i in range(8):
        a.I(f"v_add_f32 v{OA+i}, v{OA+i}, v{S1+i}")
        a.I(f"v_add_f32 v{OB+i}, v{OB+i}, v{S1+8+i}")
    a.I(f"v_add_f32 v{OA+8}, v{OA+8}, v{T0}")
    a.I(f"v_add_f32 v{OB+8}, v{OB+8}, v{T1}")
    a.L("L_fin")
    for O in (OA, OB):
        a.I(f"v_mov_b32 v{O+9}, v{O+8}")
    a.I("s_nop 1")
    for O in (OA, OB):
        a.I(f"v_permlane32_swap_b32 v{O+9}, v{O+8}")
    a.I("s_nop 1")
    for O in (OA, OB):
        a.I(f"v_rcp_f32 v{O+10}, v{O+9}")
    srd_off(a, RA, S_WS, OF, 2*MB)
    a.I("s_lshl_b32 s54, s66, 5")
    a.I(f"s_add_u32 s54, s54, s{S_HD}")
    a.I("s_lshl_b32 s55, s54, 10")
    for n_, O in enumerate((OA, OB)):
        for i in range(8):
            a.I(f"v_mul_f32 v{S0+8*n_+i}, v{O+i}, v{O+10}")
        for j in range(4):
            a.I(f"v_cvt_pk_bf16_f32 v{S1+4*n_+j}, v{S0+8*n_+2*j}, v{S0+8*n_+2*j+1}")
        a.I(f"buffer_store_dwordx4 {vr(S1+4*n_,4)}, v{VL}, {S4(RA)}, s55 offen sc1")
        if n_ == 0: a.I("s_add_u32 s55, s55, 32768")
    srd_off(a, RC, S_WS, FLG, FLG_SIZE)
    slow_check(a, OA, OB, T0, T1)
    lds_add1(a, M_ATT, T0, T1)
    a.I("s_lshl_b32 s54, s54, 2")
    a.I(f"s_add_u32 s54, s54, {FO_OFF}")
    a.I(f"v_mov_b32 v{T0}, s{S_NONCE}")
    a.I(f"v_lshlrev_b32 v{T1}, 7, v1")
    a.I("s_waitcnt vmcnt(0)")
    a.I("s_mov_b64 exec, 3")
    a.I(f"buffer_store_dword v{T0}, v{T1}, {S4(RC)}, s54 offen sc1")
    a.I("s_mov_b64 exec, -1")
    stamp_flush(a, "attn")
    a.I("s_endpgm")
    slow_path(a, QA, QB, KB, VB, S0, S1, OA, OB, VL, T0, T1, T2)

def slow_check(a, OA, OB, T0, T1):
    if OPT.get("noslow"): return
    a.I(f"v_mul_f32 v{T0}, 0, v{OA}")
    for i in range(1, 8):
        a.I(f"v_fma_f32 v{T0}, v{OA+i}, 0, v{T0}")
    for i in range(8):
        a.I(f"v_fma_f32 v{T0}, v{OB+i}, 0, v{T0}")
    a.I(f"v_cmp_eq_f32 s[78:79], 0, v{T0}")
    a.I(f"s_mov_b32 s80, {hex(f2u(2.0**-60))}")
    a.I(f"s_mov_b32 s81, {hex(f2u(2.0**60))}")
    for O in (OA, OB):
        a.I(f"v_cmp_le_f32 s[82:83], s80, v{O+9}")
        a.I(f"v_cmp_ge_f32 vcc, s81, v{O+9}")
        a.I("s_nop 1")
        a.I("s_and_b64 s[78:79], s[78:79], s[82:83]")
        a.I("s_and_b64 s[78:79], s[78:79], vcc")
    if OPT.get("forceslow"):
        a.I("s_mov_b64 s[78:79], 0")
    a.I("s_cmp_eq_u64 s[78:79], -1")
    a.I("s_cbranch_scc1 L_ok")
    a.I("s_cmp_eq_u32 s77, 0")
    a.I("s_cbranch_scc1 L_slow")
    a.L("L_ok")

def slow_path(a, QA, QB, KB, VB, S0, S1, OA, OB, VL, T0, T1, T2):
    if OPT.get("noslow"): return
    K, V0, M, C = KB[0], VB[0], 108, 112
    a.L("L_slow")
    a.I("s_waitcnt vmcnt(0)")
    a.I("s_mov_b32 s77, 1")
    a.I(f"v_lshrrev_b32 v{T0}, 5, v1")
    a.I(f"v_and_b32 v{T1}, 15, v1")
    a.I(f"v_lshlrev_b32 v{T1}, 4, v{T1}")
    a.I(f"v_lshl_add_u32 v{T2}, v{T0}, 8, v{T1}")
    a.I(f"v_add_u32 v{T2}, {L_V}, v{T2}")
    a.I(f"v_mov_b32 v{M}, 0xff800000")
    a.I(f"v_mov_b32 v{M+1}, 0xff800000")
    a.I(f"v_add_u32 v{T0}, {L_K}, v{VL}")
    a.I("s_mov_b32 s73, 0")
    a.L("L_slow1")
    a.I(f"ds_read_b128 {vr(K,4)}, v{T0}")
    a.I("s_waitcnt lgkmcnt(0)")
    a.I(MF(S0, K, QA))
    a.I(MF(S1, K, QB))
    a.I("s_nop 15")
    for S, m in ((S0, M), (S1, M+1)):
        for i in range(0, 16, 2):
            a.I(f"v_max3_f32 v{m}, v{S+i}, v{S+i+1}, v{m}")
    a.I(f"v_add_u32 v{T0}, 1024, v{T0}")
    a.I("s_add_u32 s73, s73, 1")
    a.I("s_cmp_lt_u32 s73, 64")
    a.I("s_cbranch_scc1 L_slow1")
    for m in (M, M+1):
        a.I(f"v_mov_b32 v{T1}, v{m}")
        a.I("s_nop 1")
        a.I(f"v_permlane32_swap_b32 v{T1}, v{m}")
        a.I("s_nop 1")
        a.I(f"v_max_f32 v{m}, v{m}, v{T1}")
    for t in range(2):
        for i in range(16):
            a.I(f"v_sub_f32 v{C+16*t+i}, 0, v{M+t}")
    for i in range(16):
        a.I(f"v_mov_b32 v{OA+i}, 0")
        a.I(f"v_mov_b32 v{OB+i}, 0")
    a.I(f"v_add_u32 v{T0}, {L_K}, v{VL}")
    a.I("s_mov_b32 s73, 0")
    a.L("L_slow2")
    a.I(f"ds_read_b128 {vr(K,4)}, v{T0}")
    a.I("s_mov_b64 exec, s[74:75]")
    a.I(f"ds_read_b128 {vr(V0,4)}, v{T2}")
    a.I(f"ds_read_b128 {vr(V0+4,4)}, v{T2} offset:512")
    a.I("s_mov_b64 exec, -1")
    a.I("s_waitcnt lgkmcnt(0)")
    a.I(MF(S0, K, QA, C))
    a.I(MF(S1, K, QB, C+16))
    a.I("s_nop 15")
    for S, O in ((S0, OA), (S1, OB)):
        for i in range(16):
            a.I(f"v_exp_f32 v{S+i}, v{S+i}")
        a.I("s_nop 0")
        for j in range(8):
            a.I(f"v_cvt_pk_bf16_f32 v{S+j}, v{S+2*j}, v{S+2*j+1}")
        a.I("s_nop 1")
        a.I(MF(O, V0, S, O))
        a.I(MF(O, V0+4, S+4, O))
    a.I(f"v_add_u32 v{T0}, 1024, v{T0}")
    a.I(f"v_add_u32 v{T2}, 1024, v{T2}")
    a.I("s_add_u32 s73, s73, 1")
    a.I("s_cmp_lt_u32 s73, 64")
    a.I("s_cbranch_scc1 L_slow2")
    a.I("s_nop 15")
    a.I("s_branch L_fin")

def gen():
    a = Asm()
    prologue(a)
    producer(a, False)
    consumer(a)
    a.L("L_aux")
    producer(a, True)
    ffn2_p3(a)
    attention(a)
    a.L("L_end")
    a.I("s_endpgm")
    a.L("L_code_end")
    a.I("s_endpgm")
    return a

HEADER = open("cdna_kernels/" + NAME + ".s.ref").read().split("; Override launch")[0]

def build(path):
    a = gen()
    out = HEADER + f"; WSLAYOUT QF={QF} KF={KF} VF={VF} HF={HF} GO={GO} OF={OF}\n"
    out += f"; @launch grid=(256,1,1) block=(768,1,1) lds={LDS_TOTAL}\n"
    out += '.amdgcn_target "amdgcn-amd-amdhsa--gfx950"\n.text\n' + a.text()
    out += f""".section .rodata,"a"
.p2align 6
.amdhsa_kernel {KN}
  .amdhsa_next_free_vgpr 168
  .amdhsa_next_free_sgpr 102
  .amdhsa_accum_offset 168
  .amdhsa_group_segment_fixed_size 0
  .amdhsa_kernarg_size 96
  .amdhsa_user_sgpr_count 2
  .amdhsa_user_sgpr_kernarg_segment_ptr 1
  .amdhsa_system_sgpr_workgroup_id_x 1
.end_amdhsa_kernel
"""
    open(path, "w").write(out)
    probs = check_linear(a.lines, "k")
    if STAMPS: print("stamps:", ",".join(_stamp_names))
    return probs

if __name__ == "__main__":
    for x in list(sys.argv[1:]):
        if x.startswith("-D"):
            k, _, v = x[2:].partition("=")
            OPT[k] = int(v) if v else 1
            sys.argv.remove(x)
    if "--stamps" in sys.argv:
        STAMPS = True; sys.argv.remove("--stamps")
    path = sys.argv[1] if len(sys.argv) > 1 else "cdna_kernels/" + NAME + ".s"
    probs = build(path)
    for p in probs: print("HAZARD:", p)
    print("written", path, "problems:", len(probs))
```

```python
import sys, struct
from asmlib import *

NAME = "gated_mix__mha_block__dense_activation_squared_relu__prompt"
KN = NAME + "_kernel"
MB = 1 << 20
QF, KF, VF, HF, GO, OF, FLG = 4096, 2*MB + 8192, 4*MB + 12288, 6*MB + 16384, 12*MB, 14*MB + 4096, 16*MB + 8192
HF_SIZE = 86 * 65536
FA_OFF, FH_OFF, FO_OFF = 0, 4096, 8192
FLG_SIZE = 16384
QSCALE = 0.25 * 1.4426950408889634
STAMP_OFF = 32*MB
STAMPS = False
OPT = {}
def f2u(x): return struct.unpack("<I", struct.pack("<f", x))[0]

S_AX, S_WQKV, S_WO, S_W1, S_B1, S_W2, S_B2, S_GW, S_OUT, S_DBG, S_WS = 4, 6, 8, 12, 14, 16, 18, 20, 22, 24, 26
S_W = 3
S_RB, S_CG, S_START = 29, 30, 31
RA, RB, RC, RD = 32, 36, 40, 44
S_NONCE, S_HD, S_QB = 60, 61, 62
L_MISC, L_K, L_V, L_RING = 0, 1024, 1024 + 65536, 1024 + 131072
L_XCH = L_RING
M_KV, M_H, M_FA, M_QRD, M_HST, M_FFN, M_ATT, M_T1 = [L_MISC + 4*i for i in range(8)]
M_PAIR, M_PFLAG, M_CH = L_MISC + 64, L_MISC + 96, L_MISC + 160
LDS_TOTAL = 163840

def srd(a, dst, base, size):
    a.I(f"s_mov_b32 s{dst}, s{base}")
    a.I(f"s_mov_b32 s{dst+1}, s{base+1}")
    a.I(f"s_mov_b32 s{dst+2}, {size}")
    a.I(f"s_mov_b32 s{dst+3}, 0x20000")
def srd_off(a, dst, base, off, size):
    a.I(f"s_add_u32 s{dst}, s{base}, {off}")
    a.I(f"s_addc_u32 s{dst+1}, s{base+1}, 0")
    a.I(f"s_mov_b32 s{dst+2}, {size}")
    a.I(f"s_mov_b32 s{dst+3}, 0x20000")
def MF(d, A, B, c=None):
    cc = "0" if c is None else vr(c, 16)
    return f"v_mfma_f32_32x32x16_bf16 {vr(d,16)}, {vr(A,4)}, {vr(B,4)}, {cc}"
def S4(r): return f"s[{r}:{r+3}]"
def J(L): return "\n".join(L)

_stamp_names = []
def stamp(a, name):
    if not STAMPS: return
    if name not in _stamp_names: _stamp_names.append(name)
    i = _stamp_names.index(name)
    a.I("s_waitcnt lgkmcnt(0)")
    a.I("s_memtime s[98:99]")
    a.I("s_memrealtime s[100:101]")
    a.I("s_waitcnt lgkmcnt(0)")
    a.I(f"v_writelane_b32 v6, s98, {i}")
    a.I(f"v_writelane_b32 v7, s100, {i}")
def stamp_dyn(a):
    if not (STAMPS and OPT.get("fine")): return
    a.I("s_memtime s[98:99]")
    a.I("s_memrealtime s[100:101]")
    a.I("s_waitcnt lgkmcnt(0)")
    a.I("s_mov_b32 s88, m0")
    a.I("s_mov_b32 m0, s87")
    a.I("s_nop 3")
    a.I("v_writelane_b32 v6, s98, m0")
    a.I("v_writelane_b32 v7, s100, m0")
    a.I("s_mov_b32 m0, s88")
    a.I("s_add_u32 s87, s87, 1")
def dbg_dump(a, names, word0):
    lb = lab("dd")
    a.I(f"s_cmp_lg_u32 s2, {OPT.get('dbgwg', 0)}")
    a.I(f"s_cbranch_scc1 {lb}")
    a.I("v_readlane_b32 s90, v7, 0")
    for i, nm in enumerate(names):
        if nm not in _stamp_names: _stamp_names.append(nm)
        a.I(f"v_readlane_b32 s91, v7, {_stamp_names.index(nm)}")
        a.I("s_nop 3")
        a.I("s_sub_u32 s91, s91, s90")
        a.I("v_mov_b32 v2, s91")
        a.I(f"v_mov_b32 v3, {4*(word0+i)}")
        a.I("s_mov_b64 exec, 1")
        a.I(f"global_store_dword v3, v2, s[{S_DBG}:{S_DBG+1}]")
        a.I("s_mov_b64 exec, -1")
    a.L(lb)

def stamp_flush(a, who=None):
    if not STAMPS: return
    a.I("s_waitcnt vmcnt(0)")
    stamp(a, "end")
    if OPT.get("dbgdump"):
        if who == "ffn":
            l2 = lab("d8")
            a.I(f"s_cmp_lg_u32 s{S_W}, 8"); a.I(f"s_cbranch_scc1 {l2}")
            dbg_dump(a, ["E2", "FAok", "KV1", "hready", "ffn2", "attdone", "T2", "p3mm", "end"], 7)
            a.L(l2)
        elif who == "attn":
            l2 = lab("d0")
            a.I(f"s_and_b32 s91, s{S_W}, 3"); a.I("s_cmp_lg_u32 s91, 0"); a.I(f"s_cbranch_scc1 {l2}")
            a.I(f"s_cmp_ge_u32 s{S_W}, 4"); a.I(f"s_cbranch_scc1 {l2}")
            dbg_dump(a, ["karg", "B0", "qloop", "floop", "kvok", "aloop"], 1)
            a.L(l2)
    a.I(f"s_add_u32 s96, s{S_WS}, {STAMP_OFF}")
    a.I(f"s_addc_u32 s97, s{S_WS+1}, 0")
    a.I("s_mul_i32 s98, s2, 12")
    a.I(f"s_add_u32 s98, s98, s{S_W}")
    a.I("s_lshl_b32 s98, s98, 9")
    a.I("v_lshlrev_b32 v2, 2, v1")
    a.I("v_add_u32 v2, s98, v2")
    a.I("s_mov_b64 exec, -1")
    a.I("global_store_dword v2, v6, s[96:97]")
    a.I("global_store_dword v2, v7, s[96:97] offset:256")
    a.I("s_waitcnt vmcnt(0)")

def tr_lane_addr(a, dst, lane, tmp, tmp2, hrows, pitch):
    a.I(f"v_bfe_u32 v{tmp}, v{lane}, 2, 2")
    a.I(f"v_lshrrev_b32 v{tmp2}, 5, v{lane}")
    a.I(f"v_mul_u32_u24 v{tmp2}, {hrows}, v{tmp2}")
    a.I(f"v_add_u32 v{tmp}, v{tmp}, v{tmp2}")
    a.I(f"v_mul_u32_u24 v{dst}, {pitch}, v{tmp}")
    a.I(f"v_bfe_u32 v{tmp}, v{lane}, 4, 1")
    a.I(f"v_lshlrev_b32 v{tmp}, 1, v{tmp}")
    a.I(f"v_bfe_u32 v{tmp2}, v{lane}, 1, 1")
    a.I(f"v_add_u32 v{tmp}, v{tmp}, v{tmp2}")
    a.I(f"v_bfe_u32 v{tmp2}, v{lane}, 3, 1")
    a.I(f"v_lshlrev_b32 v{tmp2}, 2, v{tmp2}")
    a.I(f"v_xor_b32 v{tmp}, v{tmp}, v{tmp2}")
    a.I(f"v_lshl_add_u32 v{dst}, v{tmp}, 4, v{dst}")
    a.I(f"v_and_b32 v{tmp}, 1, v{lane}")
    a.I(f"v_lshl_add_u32 v{dst}, v{tmp}, 3, v{dst}")

def dma_w_lane_off(a, dst, lane, tmp, tmp2, pitch):
    a.I(f"v_lshrrev_b32 v{tmp}, 3, v{lane}")
    a.I(f"v_mul_u32_u24 v{dst}, {pitch}, v{tmp}")
    a.I(f"v_bfe_u32 v{tmp}, v{lane}, 4, 1")
    a.I(f"v_lshlrev_b32 v{tmp}, 2, v{tmp}")
    a.I(f"v_and_b32 v{tmp2}, 7, v{lane}")
    a.I(f"v_xor_b32 v{tmp}, v{tmp}, v{tmp2}")
    a.I(f"v_lshl_add_u32 v{dst}, v{tmp}, 4, v{dst}")

_lab = [0]
def lab(p):
    _lab[0] += 1
    return f"L_{p}{_lab[0]}"

def poll(a, srd_reg, nlanes, voff, vtmp, soff, slp=1):
    l0, l1 = lab("poll"), lab("polld")
    if nlanes < 64:
        a.I(f"s_mov_b32 exec_lo, {hex((1 << nlanes) - 1)}")
        a.I("s_mov_b32 exec_hi, 0")
    a.I("s_mov_b32 s50, 0x40000")
    a.L(l0)
    a.I(f"buffer_load_dword v{vtmp}, v{voff}, {S4(srd_reg)}, {soff} offen sc1")
    a.I("s_waitcnt vmcnt(0)")
    a.I(f"v_cmp_ne_u32 vcc, s{S_NONCE}, v{vtmp}")
    a.I(f"s_cbranch_vccz {l1}")
    a.I("s_sub_u32 s50, s50, 1")
    a.I("s_cmp_eq_u32 s50, 0")
    a.I(f"s_cbranch_scc1 {l1}")
    a.I(f"s_sleep {slp}")
    a.I(f"s_branch {l0}")
    a.L(l1)
    a.I("s_mov_b64 exec, -1")

def lds_spin(a, addr, target, vaddr, vtmp, slp=1):
    l0, l1 = lab("spin"), lab("spind")
    a.I(f"v_mov_b32 v{vaddr}, {addr}")
    a.I("s_mov_b32 s50, 0x400000")
    a.L(l0)
    a.I(f"ds_read_b32 v{vtmp}, v{vaddr}")
    a.I("s_waitcnt lgkmcnt(0)")
    a.I(f"v_readfirstlane_b32 s51, v{vtmp}")
    a.I("s_sub_u32 s50, s50, 1")
    a.I(f"s_cmp_ge_u32 s51, {target}")
    a.I(f"s_cbranch_scc1 {l1}")
    a.I("s_cmp_eq_u32 s50, 0")
    a.I(f"s_cbranch_scc1 {l1}")
    a.I(f"s_sleep {slp}")
    a.I(f"s_branch {l0}")
    a.L(l1)

def lds_add1(a, addr, vaddr, vtmp):
    a.I(f"v_mov_b32 v{vaddr}, {addr}")
    a.I(f"v_mov_b32 v{vtmp}, 1")
    a.I("s_mov_b64 exec, 1")
    a.I(f"ds_add_u32 v{vaddr}, v{vtmp}")
    a.I("s_mov_b64 exec, -1")

def flag_store(a, soff, v0_, v1_):
    a.I(f"v_mov_b32 v{v0_}, s{S_NONCE}")
    a.I(f"v_mov_b32 v{v1_}, 0")
    a.I("s_mov_b64 exec, 1")
    a.I(f"buffer_store_dword v{v0_}, v{v1_}, {S4(RC)}, {soff} offen sc1")
    a.I("s_mov_b64 exec, -1")

def prologue(a):
    a.raw(f".globl {KN}\n.p2align 8\n.type {KN},@function\n{KN}:")
    if STAMPS:
        a.I("s_memrealtime s[94:95]")
        a.I("s_memtime s[92:93]")
    a.I("s_cmp_ge_u32 s2, 256")
    a.I("s_cbranch_scc1 L_end")
    a.I("s_load_dwordx4 s[4:7], s[0:1], 0")
    a.I("s_load_dwordx2 s[8:9], s[0:1], 16")
    a.I("s_load_dwordx4 s[12:15], s[0:1], 32")
    a.I("s_load_dwordx4 s[16:19], s[0:1], 48")
    a.I("s_load_dwordx4 s[20:23], s[0:1], 64")
    a.I("s_load_dwordx4 s[24:27], s[0:1], 80")
    a.I("v_lshrrev_b32 v2, 6, v0")
    a.I("v_and_b32 v1, 63, v0")
    a.I(f"v_readfirstlane_b32 s{S_W}, v2")
    if OPT.get("codeearly", 1):
        a.I("s_getpc_b64 s[52:53]")
        a.L("L_pc0")
        a.I(f"s_sub_u32 s52, s52, L_pc0-{KN}")
        a.I("s_subb_u32 s53, s53, 0")
        a.I("v_lshlrev_b32 v3, 7, v0")
        a.I(f"v_min_u32 v3, L_code_end-{KN}-4, v3")
        a.I(f"s_cmp_ge_u32 s{S_W}, 3")
        a.I("s_cbranch_scc1 L_pc1")
        a.I("global_load_dword v31, v3, s[52:53]")
        a.L("L_pc1")
    if STAMPS:
        a.I("v_mov_b32 v6, 0"); a.I("v_mov_b32 v7, 0")
    a.I("s_and_b32 s52, s2, 7")
    a.I("s_lshr_b32 s53, s2, 3")
    if OPT.get("map84"):
        a.I("s_lshr_b32 s54, s52, 1")
        a.I("s_lshl_b32 s54, s54, 3")
        a.I("s_lshr_b32 s55, s53, 2")
        a.I(f"s_add_u32 s{S_RB}, s54, s55")
        a.I("s_and_b32 s54, s52, 1")
        a.I("s_lshl_b32 s54, s54, 2")
        a.I("s_and_b32 s55, s53, 3")
        a.I(f"s_add_u32 s{S_CG}, s54, s55")
    else:
        a.I("s_lshr_b32 s54, s52, 2")
        a.I("s_lshl_b32 s54, s54, 4")
        a.I("s_lshr_b32 s55, s53, 1")
        a.I(f"s_add_u32 s{S_RB}, s54, s55")
        a.I("s_and_b32 s54, s52, 3")
        a.I("s_lshl_b32 s54, s54, 1")
        a.I("s_and_b32 s55, s53, 1")
        a.I(f"s_add_u32 s{S_CG}, s54, s55")
    a.I(f"s_mul_i32 s54, s{S_CG}, 6")
    a.I(f"s_min_u32 s{S_START}, s54, 37")
    a.I(f"s_lshl_b32 s{S_HD}, s52, 2")
    a.I("s_and_b32 s54, s53, 3")
    a.I(f"s_add_u32 s{S_HD}, s{S_HD}, s54")
    a.I(f"s_lshr_b32 s{S_QB}, s2, 5")
    a.I("s_waitcnt lgkmcnt(0)")
    if STAMPS:
        _stamp_names.append("entry")
        a.I("v_writelane_b32 v6, s92, 0")
        a.I("v_writelane_b32 v7, s94, 0")
    stamp(a, "karg")
    a.I(f"s_cmp_ge_u32 s{S_W}, 8")
    a.I("s_cbranch_scc1 L_aux")
    a.I(f"s_cmp_lt_u32 s{S_W}, 4")
    a.I("s_cbranch_scc1 L_cons")

GATEPOS = 3
def producer(a, aux):
    T = "a" if aux else "p"
    if OPT.get("pprio"): a.I(f"s_setprio {OPT['pprio']}")
    a.I(f"s_sub_u32 s67, s{S_W}, 4")
    a.I(f"s_lshl_b32 s54, s{S_RB}, 16")
    srd_off(a, RA, S_AX, "s54", 65536)
    srd(a, RB, S_WQKV, 512*3072)
    a.I("v_lshrrev_b32 v2, 3, v1")
    a.I("s_lshl_b32 s54, s67, 3")
    a.I("v_add_u32 v2, s54, v2")
    a.I("v_lshrrev_b32 v3, 4, v1")
    a.I("s_and_b32 s54, s67, 1")
    a.I("s_lshl_b32 s54, s54, 2")
    a.I("v_add_u32 v3, s54, v3")
    a.I("v_and_b32 v4, 7, v1")
    a.I("v_xor_b32 v3, v3, v4")
    a.I("v_lshlrev_b32 v3, 4, v3")
    a.I("v_lshl_add_u32 v12, v2, 10, v3")
    a.I("s_lshl_b32 s68, s67, 10")
    def woffs(dst, pitch, segshift):
        for j in range(3):
            a.I(f"v_add_u32 v2, {64*j}, v1")
            a.I("v_mul_u32_u24 v3, 171, v2")
            a.I("v_lshrrev_b32 v3, 12, v3")
            a.I("v_mul_u32_u24 v4, 24, v3")
            a.I("v_sub_u32 v2, v2, v4")
            a.I("v_lshrrev_b32 v4, 3, v2")
            a.I("v_and_b32 v2, 7, v2")
            a.I("v_bfe_u32 v5, v3, 1, 1")
            a.I("v_lshlrev_b32 v5, 2, v5")
            a.I("v_xor_b32 v2, v2, v5")
            a.I("v_lshlrev_b32 v2, 4, v2")
            a.I(f"v_mul_u32_u24 v5, {pitch}, v3")
            a.I(f"v_lshl_add_u32 v5, v4, {segshift}, v5")
            a.I(f"v_add_u32 v{dst+j}, v5, v2")
    woffs(13, 3072, 10)
    a.I("s_mul_i32 s69, s67, 3072")
    a.I("s_add_u32 s69, s69, 0x10000")
    a.I(f"s_lshl_b32 s70, s{S_CG}, 7")
    a.I(f"s_mul_i32 s71, s67, {8*3072}")
    a.I("s_add_u32 s70, s70, s71")
    def pre_setup(item):
        k, c = item
        if k == "X":
            a.I(f"s_add_u32 m0, s68, {c*8192}")
            a.I(f"s_movk_i32 s81, {c*128}")
        else:
            a.I(f"s_add_u32 s82, s70, {c*64*3072}" if c < 8 else f"s_add_u32 s82, s71, {(c-8)*64*2752}")
            a.I(f"s_add_u32 m0, s69, {(c&3)*24576}")
    def issue_x(c, done=False):
        if OPT.get("p1noprod"): return
        if not done:
            a.I(f"s_add_u32 m0, s68, {c*8192}")
            a.I(f"s_movk_i32 s81, {c*128}")
        a.I(f"buffer_load_dwordx4 v12, {S4(RA)}, s81 offen lds")
    def issue_w(c, done=False):
        if OPT.get("p1noprod"): return
        if c < 8:
            if not done: a.I(f"s_add_u32 s82, s70, {c*64*3072}")
            vo, R = 13, RB
        else:
            if not done: a.I(f"s_add_u32 s82, s71, {(c-8)*64*2752}")
            vo, R = 16, RC
        for j in range(3):
            if not (done and j == 0):
                a.I(f"s_add_u32 m0, s69, {(c&3)*24576 + j*1024}")
                a.I("s_nop 0")
            a.I(f"buffer_load_dwordx4 v{vo+j}, {S4(R)}, s82 offen lds")
    sched = OPT.get("sched", 0)
    if sched == 0:
        pre = [("X",0),("W",0),("X",1),("W",1),("X",2),("W",2)]
        post = {c: ([("X",c+3)] if c+3 < 8 else []) + ([("W",c+3)] if c+3 < 16 else []) for c in range(16)}
    elif sched == 1:
        pre = [("X",0),("W",0),("X",1),("W",1),("X",2),("W",2),("X",3),("W",3),("X",4),("X",5),("X",6),("X",7)]
        post = {c: ([("W",c+3)] if (c >= 1 and c+3 < 16) else []) for c in range(16)}
    elif sched == 2:
        pre = [("X",0),("W",0),("X",1),("W",1),("X",2),("W",2),("X",3),("W",3)]
        post = {c: ([("W",c+3)] if (c >= 1 and c+3 < 16) else []) for c in range(16)}
        post[0] = [("X",4),("X",5),("X",6),("X",7)]
    fifo = []
    def do(item, done=False):
        k, c = item
        if k == "X":
            if OPT.get("skipx"): fifo.append((item, 0)); return
            issue_x(c, done); fifo.append((item, 1))
        else:
            if OPT.get("skipw") and c < 8: fifo.append((item, 0)); return
            issue_w(c, done); fifo.append((item, 3))
    for it in pre: do(it)
    if OPT.get("pfprod") and not aux:
        a.I(f"s_mov_b32 s89, s{S_W}")
        a.I(f"s_sub_u32 s{S_W}, s{S_W}, 4")
        l2_prefetch(a, 0)
        a.I(f"s_mov_b32 s{S_W}, s89")
        fifo.append(("pf", 2))
    stamp(a, "issued3")
    nside = 0
    if aux:
        nside = aux_side_issue(a)
    srd(a, RC, S_W1, 512*2752)
    if OPT.get("w1perm", 0):
        for j in range(3):
            a.I(f"v_add_u32 v2, {64*j}, v1")
            a.I("v_mul_u32_u24 v3, 171, v2")
            a.I("v_lshrrev_b32 v3, 12, v3")
            a.I("v_mul_u32_u24 v4, 24, v3")
            a.I("v_sub_u32 v2, v2, v4")
            a.I("v_lshrrev_b32 v4, 2, v2")
            a.I("v_and_b32 v2, 3, v2")
            a.I("v_bfe_u32 v5, v3, 1, 1")
            a.I("v_xor_b32 v4, v4, v5")
            a.I("v_add_u32 v5, 1, v4")
            a.I("v_cmp_eq_u32 vcc, 4, v4")
            a.I("s_nop 1")
            a.I("v_cndmask_b32_e64 v5, v5, 0, vcc")
            a.I("v_cmp_eq_u32 vcc, 5, v4")
            a.I("s_nop 1")
            a.I("v_cndmask_b32_e64 v5, v5, 5, vcc")
            a.I(f"v_add_u32 v19, s{S_START}, v3")
            a.I("v_and_b32 v19, 1, v19")
            a.I("v_cmp_eq_u32 vcc, 1, v19")
            a.I("s_nop 1")
            a.I("v_cndmask_b32 v4, v4, v5, vcc")
            a.I("v_lshlrev_b32 v4, 6, v4")
            a.I("v_lshl_add_u32 v4, v2, 4, v4")
            a.I("v_mul_u32_u24 v5, 2752, v3")
            a.I(f"v_add_u32 v{16+j}, v5, v4")
    else:
        woffs(16, 2752, 7)
    a.I(f"s_lshl_b32 s71, s{S_START}, 6")
    a.I(f"s_mul_i32 s72, s67, {8*2752}")
    a.I("s_add_u32 s71, s71, s72")
    fap = OPT.get("fapos", 2)
    assert fap >= 0
    for c in range(16):
        need = [("W", c)] + ([("X", c)] if c < 8 else [])
        idx = max(i for i, (it, _) in enumerate(fifo) if it in need)
        allow = sum(k for _, k in fifo[idx+1:])
        if c == 0 and STAMPS and OPT.get("fine"): a.I("s_mov_b32 s87, 24")
        stamp_dyn(a)
        early = OPT.get("early", 1) and not STAMPS and len(post[c]) > 0 and not OPT.get("p1noprod")
        if early:
            pre_setup(post[c][0])
        a.I(f"s_waitcnt vmcnt({allow})")
        stamp_dyn(a)
        a.I("s_barrier")
        for n_, it in enumerate(post[c]): do(it, early and n_ == 0)
        if aux and c == 2:
            fifo.append(("side", aux_side_loads(a)))
        if aux and c == 6:
            aux_gate(a)
            fifo.append(("g", 1))
        if aux and c == 4:
            fifo.append(("nonce", aux_nonce_issue(a)))
        if aux and c == 10:
            aux_zero_misc(a)
        if aux and c == 8:
            aux_nonce_take(a)
        if aux and c == 12:
            aux_share_nonce(a)
        if aux and c == 15:
            aux_fa_probe(a)
        if aux and c == 9 + fap:
            aux_publish_fa(a)
    a.I("s_barrier")
    if aux:
        aux_after_e1(a)
    else:
        if OPT.get("pprio"): a.I("s_setprio 0")
        a.I("s_branch L_attn")

def glob_w2(a):
    a.I("v_lshlrev_b32 v20, 7, v1")
    srd(a, RC, S_W2, 1376*1024)
    a.I("s_mul_i32 s54, s2, 5504")
    a.I("s_mov_b32 exec_hi, 0xfff")
    a.I(f"buffer_load_dword v24, v20, {S4(RC)}, s54 offen")
    srd(a, RC, S_WO, 512*1024)
    a.I("s_lshl_b32 s54, s2, 11")
    a.I("s_mov_b32 exec_hi, 0")
    a.I("s_mov_b32 exec_lo, 0xffff")
    a.I(f"buffer_load_dword v25, v20, {S4(RC)}, s54 offen")
    a.I("s_mov_b64 exec, -1")

def l2_prefetch(a, part):
    a.I("s_and_b32 s52, s2, 7")
    a.I("s_lshr_b32 s53, s2, 3")
    a.I("s_lshl_b32 s54, s53, 4")
    a.I(f"s_lshl_b32 s55, s{S_W}, 2")
    a.I("s_add_u32 s56, s54, s55")
    if OPT.get("pfglob", 1) and part == 0:
        lg = lab("pfg")
        a.I("v_lshlrev_b32 v20, 7, v1")
        a.I(f"s_cmp_eq_u32 s{S_W}, 0")
        a.I(f"s_cbranch_scc0 {lg}a")
        srd(a, RC, S_AX, 2*MB)
        a.I("s_lshl_b32 s54, s2, 13")
        a.I(f"buffer_load_dword v24, v20, {S4(RC)}, s54 offen")
        a.I(f"s_branch {lg}d")
        a.L(f"{lg}a")
        a.I(f"s_cmp_eq_u32 s{S_W}, 1")
        a.I(f"s_cbranch_scc0 {lg}b")
        srd(a, RC, S_WQKV, 512*3072)
        a.I("s_mul_i32 s54, s2, 6144")
        a.I("s_mov_b32 exec_hi, 0xffff")
        a.I(f"buffer_load_dword v24, v20, {S4(RC)}, s54 offen")
        a.I("s_mov_b64 exec, -1")
        a.I(f"s_branch {lg}d")
        a.L(f"{lg}b")
        a.I(f"s_cmp_eq_u32 s{S_W}, {99 if OPT.get('w1late') else 2}")
        a.I(f"s_cbranch_scc0 {lg}c")
        srd(a, RC, S_W1, 512*2752)
        a.I("s_mul_i32 s54, s2, 5504")
        a.I("s_mov_b32 exec_hi, 0xfff")
        a.I(f"buffer_load_dword v24, v20, {S4(RC)}, s54 offen")
        a.I("s_mov_b64 exec, -1")
        a.I(f"s_branch {lg}d")
        a.L(f"{lg}c")
        if OPT.get("pfw2") == 1:
            glob_w2(a)
        if OPT.get("tlb"):
            offs = [0, 2*MB + 4096, 4*MB + 8192, 6*MB + 12288, 11*MB + 512*1024, 12*MB + 16384, 14*MB, 16*MB + 4096]
            a.I("v_mov_b32 v21, 0")
            for i, o in enumerate(offs):
                a.I(f"v_mov_b32 v22, {o}")
                a.I(f"v_cmp_eq_u32 vcc, {i}, v1")
                a.I("s_nop 1")
                a.I("v_cndmask_b32 v21, v21, v22, vcc")
            a.I("s_mov_b32 exec_lo, 0xff")
            a.I("s_mov_b32 exec_hi, 0")
            a.I(f"global_load_dword v25, v21, s[{S_WS}:{S_WS+1}]")
            a.I("s_mov_b64 exec, -1")
        a.L(f"{lg}d")
        if OPT.get("pfglob", 1) == 1: return
        OPT["nopfx"] = 1 if OPT["pfglob"] == 2 else 0
    if OPT.get("map84"):
        if part == 0:
            srd(a, RC, S_AX, 2*MB)
            a.I("s_lshr_b32 s54, s52, 1")
            a.I("s_lshl_b32 s54, s54, 9")
            a.I("s_add_u32 s54, s54, s56")
            a.I("s_lshl_b32 s54, s54, 10")
            a.I("v_lshlrev_b32 v20, 7, v1")
            a.I("s_mov_b32 exec_hi, 0")
            a.I(f"buffer_load_dword v24, v20, {S4(RC)}, s54 offen")
            a.I("s_mov_b64 exec, -1")
            srd(a, RC, S_WQKV, 512*3072)
            a.I("s_mul_i32 s54, s56, 3072")
            a.I("s_and_b32 s55, s52, 1")
            a.I("s_lshl_b32 s55, s55, 9")
            a.I("s_add_u32 s54, s54, s55")
            a.I("v_lshrrev_b32 v21, 4, v1")
            a.I("v_mul_u32_u24 v21, 3072, v21")
            a.I("v_bfe_u32 v22, v1, 2, 2")
            a.I("v_min_u32 v22, 2, v22")
            a.I("v_lshl_add_u32 v21, v22, 10, v21")
            a.I("v_and_b32 v22, 3, v1")
            a.I("v_lshl_add_u32 v21, v22, 7, v21")
            a.I(f"buffer_load_dword v25, v21, {S4(RC)}, s54 offen")
        else:
            srd(a, RC, S_W1, 512*2752)
            a.I("s_and_b32 s55, s52, 1")
            a.I("s_mul_i32 s55, s55, 1536")
            a.I("s_mul_i32 s54, s56, 2752")
            a.I("s_add_u32 s54, s54, s55")
            a.I("v_lshrrev_b32 v21, 4, v1")
            a.I("v_mul_u32_u24 v21, 2752, v21")
            a.I("v_and_b32 v22, 15, v1")
            a.I("v_min_u32 v22, 12, v22")
            a.I("v_lshl_add_u32 v21, v22, 7, v21")
            a.I(f"buffer_load_dword v26, v21, {S4(RC)}, s54 offen")
        return
    if part == 2:
        a.I(f"s_cmp_lg_u32 s{S_W}, 0")
        a.I("s_cbranch_scc1 L_pf2")
        srd(a, RC, S_WQKV, 512*3072)
        a.I("s_lshl_b32 s54, s53, 3")
        a.I("s_add_u32 s54, s54, 256")
        a.I("s_mul_i32 s54, s54, 3072")
        a.I("s_and_b32 s55, s52, 3")
        a.I("s_lshl_b32 s55, s55, 8")
        a.I("s_add_u32 s54, s54, s55")
        a.I("v_lshrrev_b32 v21, 3, v1")
        a.I("v_mul_u32_u24 v21, 3072, v21")
        a.I("v_bfe_u32 v22, v1, 1, 2")
        a.I("v_min_u32 v22, 2, v22")
        a.I("v_lshl_add_u32 v21, v22, 10, v21")
        a.I("v_and_b32 v22, 1, v1")
        a.I("v_lshl_add_u32 v21, v22, 7, v21")
        a.I(f"buffer_load_dword v25, v21, {S4(RC)}, s54 offen")
        a.L("L_pf2")
    elif part == 0:
        G = OPT.get("pfg", 128)
        sh = {128: 7, 64: 6, 32: 5}[G]
        srd(a, RC, S_AX, 2*MB)
        a.I("s_lshr_b32 s54, s52, 2")
        a.I("s_lshl_b32 s54, s54, 10")
        a.I("s_lshl_b32 s55, s53, 5")
        a.I("s_add_u32 s54, s54, s55")
        a.I(f"s_lshl_b32 s55, s{S_W}, 3")
        a.I("s_add_u32 s54, s54, s55")
        a.I("s_lshl_b32 s54, s54, 10")
        if OPT.get("pftrim", 0):
            a.I("v_and_b32 v20, 7, v1")
            a.I("v_max_u32 v20, 3, v20")
            a.I("v_lshlrev_b32 v20, 7, v20")
            a.I("v_lshrrev_b32 v21, 3, v1")
            a.I("v_lshl_add_u32 v20, v21, 10, v20")
        else:
            a.I(f"v_lshlrev_b32 v20, {sh}, v1")
        for i in range(0 if OPT.get("nopfx") else 8192 // (64*G)):
            a.I(f"buffer_load_dword v24, v20, {S4(RC)}, s54 offen")
            a.I(f"s_add_u32 s54, s54, {64*G}")
        if OPT.get("pftrim", 0):
            a._pfl = lab("pfs")
            a.I("s_cmp_lt_u32 s53, 12")
            a.I(f"s_cbranch_scc1 {a._pfl}")
        srd(a, RC, S_WQKV, 512*3072)
        a.I("s_mul_i32 s54, s56, 3072")
        a.I("s_and_b32 s55, s52, 3")
        a.I("s_lshl_b32 s55, s55, 8")
        a.I("s_add_u32 s54, s54, s55")
        per = 256 // G
        a.I("v_lshrrev_b32 v21, 4, v1")
        a.I("v_mul_u32_u24 v21, 3072, v21")
        a.I("v_and_b32 v22, 15, v1")
        if G == 64:
            a.I("v_lshrrev_b32 v23, 2, v22")
            a.I("v_min_u32 v23, 2, v23")
            a.I("v_lshl_add_u32 v21, v23, 10, v21")
            a.I("v_and_b32 v22, 3, v22")
            a.I("v_lshl_add_u32 v21, v22, 6, v21")
            a.I(f"buffer_load_dword v25, v21, {S4(RC)}, s54 offen")
        elif G == 32:
            a.I("v_lshrrev_b32 v23, 3, v22")
            a.I("v_lshl_add_u32 v21, v23, 10, v21")
            a.I("v_and_b32 v22, 7, v22")
            a.I("v_lshl_add_u32 v21, v22, 5, v21")
            a.I(f"buffer_load_dword v25, v21, {S4(RC)}, s54 offen")
            a.I(f"buffer_load_dword v25, v21, {S4(RC)}, s54 offen offset:2048")
        else:
            a.I("v_lshrrev_b32 v23, 1, v22")
            a.I("v_min_u32 v23, 2, v23")
            a.I("v_lshl_add_u32 v21, v23, 10, v21")
            a.I("v_and_b32 v22, 1, v22")
            a.I("v_lshl_add_u32 v21, v22, 7, v21")
            a.I(f"buffer_load_dword v25, v21, {S4(RC)}, s54 offen")
        if OPT.get("pftrim", 0):
            a.L(a._pfl)
    else:
        a.I(f"s_cmp_ge_u32 s{S_W}, 2")
        a.I("s_cbranch_scc1 L_pf1")
        srd(a, RC, S_W1, 512*2752)
        a.I("s_and_b32 s55, s52, 3")
        a.I("s_mul_i32 s55, s55, 12")
        a.I("s_min_u32 s55, s55, 31")
        a.I("s_lshl_b32 s55, s55, 6")
        a.I("s_lshl_b32 s54, s53, 4")
        a.I(f"s_lshl_b32 s56, s{S_W}, 3")
        a.I("s_add_u32 s54, s54, s56")
        a.I("s_mul_i32 s54, s54, 2752")
        a.I("s_add_u32 s54, s54, s55")
        a.I("v_lshrrev_b32 v21, 3, v1")
        a.I("v_mul_u32_u24 v21, 2752, v21")
        a.I("v_and_b32 v22, 7, v1")
        a.I("v_lshl_add_u32 v21, v22, 7, v21")
        a.I(f"buffer_load_dword v26, v21, {S4(RC)}, s54 offen")
        a.L("L_pf1")

def consumer(a):
    a.L("L_cons")
    H, XA, WA, ACC, B1, FA, FB = 2, 8, 12, 32, 80, 104, 136
    if not OPT.get("nopf") and not OPT.get("pflate") and not OPT.get("pfprod"):
        l2_prefetch(a, OPT.get("pfmode", 0))
    a.I(f"v_lshrrev_b32 v{H}, 5, v1")
    a.I(f"s_and_b32 s63, s{S_W}, 1")
    a.I(f"s_lshr_b32 s64, s{S_W}, 1")
    srd(a, RD, S_B1, 2752)
    a.I(f"s_add_u32 s54, s{S_START}, s63")
    a.I("s_lshl_b32 s54, s54, 6")
    a.I(f"v_lshlrev_b32 v3, 3, v{H}")
    for s in range(3):
        for q in range(4):
            r = B1 + (s*4+q)*2
            a.I(f"buffer_load_dwordx2 v[{r}:{r+1}], v3, {S4(RD)}, s54 offen offset:{s*128+q*16}")
    for i in range(48):
        a.I(f"v_mov_b32 v{ACC+i}, 0")
    a.I("v_and_b32 v16, 31, v1")
    a.I("v_bfe_u32 v17, v1, 1, 3")
    a.I("s_lshl_b32 s54, s64, 5")
    a.I("v_add_u32 v16, s54, v16")
    a.I("v_lshlrev_b32 v16, 7, v16")
    a.I(f"v_xor_b32 v17, v17, v{H}")
    for ks in range(4):
        a.I(f"v_xor_b32 v18, {2*ks}, v17")
        a.I(f"v_lshl_add_u32 v{XA+ks}, v18, 4, v16")
    tr_lane_addr(a, WA, 1, 16, 17, 8, 384)
    a.I("s_lshl_b32 s54, s63, 6")
    a.I(f"v_xor_b32 v{WA}, s54, v{WA}")
    a.I(f"v_add_u32 v{WA}, 0x10000, v{WA}")
    a.I(f"v_add_u32 v{WA+1}, 49152, v{WA}")
    WF1 = [14, 15, 28, 29, 30, 31]
    if OPT.get("w1perm", 0):
        a.I("v_bfe_u32 v16, v1, 2, 2")
        a.I(f"v_lshl_add_u32 v17, v{H}, 3, v16")
        a.I("v_mul_u32_u24 v17, 384, v17")
        a.I("v_bfe_u32 v18, v1, 4, 1")
        a.I("v_lshlrev_b32 v18, 1, v18")
        a.I("v_bfe_u32 v19, v1, 1, 1")
        a.I("v_add_u32 v18, v18, v19")
        a.I("v_lshl_add_u32 v17, v18, 4, v17")
        a.I("v_and_b32 v18, 1, v1")
        a.I("v_lshl_add_u32 v17, v18, 3, v17")
        a.I("v_add_u32 v17, 0x10000, v17")
        a.I(f"v_add_u32 v18, s{S_START}, v16")
        a.I("v_and_b32 v18, 1, v18")
        a.I("v_cmp_eq_u32 vcc, 1, v18")
        a.I("v_bfe_u32 v19, v1, 3, 1")
        inv = [4, 0, 1, 2, 3, 5]
        for s_ in range(3):
            a.I(f"s_cmp_eq_u32 s63, 0")
            a.I(f"s_cselect_b32 s54, {2*s_}, {2*s_+1}")
            a.I(f"s_cselect_b32 s55, {inv[2*s_]}, {inv[2*s_+1]}")
            a.I(f"v_mov_b32 v26, s54")
            a.I(f"v_mov_b32 v27, s55")
            a.I(f"v_cndmask_b32 v26, v26, v27, vcc")
            a.I(f"v_xor_b32 v26, v26, v19")
            a.I(f"v_lshl_add_u32 v{WF1[s_]}, v26, 6, v17")
            a.I(f"v_add_u32 v{WF1[3+s_]}, 49152, v{WF1[s_]}")

    def reads(b, G, F, qkv=True):
        out = []
        if OPT.get("p1nocons"): return ["s_nop 0"]
        wv = WA + (b >> 1)
        for l in range(2):
            ks = 2*G + l
            out.append(f"ds_read_b128 {vr(F+4*l,4)}, v{XA+ks} offset:{b*8192}")
            for s in range(3):
                for rd in range(2):
                    if qkv or not OPT.get("w1perm", 0):
                        out.append(f"ds_read_b64_tr_b16 {vr(F+8+12*l+4*s+2*rd,2)}, v{wv} offset:{(b&1)*24576 + ks*6144 + rd*1536 + s*128}")
                    else:
                        out.append(f"ds_read_b64_tr_b16 {vr(F+8+12*l+4*s+2*rd,2)}, v{WF1[3*(b>>1)+s]} offset:{(b&1)*24576 + ks*6144 + rd*1536}")
        return out
    def mfmas(F, qkv):
        out = []
        if OPT.get("p1nocons") or OPT.get("p1nomfma"): return ["s_nop 0"]
        for l in range(2):
            for s in range(3):
                X, W = F+4*l, F+8+12*l+4*s
                out.append(MF(ACC+16*s, X, W, ACC+16*s) if (qkv and s == 2) else MF(ACC+16*s, W, X, ACC+16*s))
        return out
    def inter(mf, rd):
        out = []
        per = OPT.get("iper", [4, 4, 3, 3, 0, 0])
        if len(mf) != 6: return mf + rd
        k = 0
        for i, m in enumerate(mf):
            out.append(m)
            out += rd[k:k+per[i]]
            k += per[i]
        assert k >= len(rd)
        return out
    def stage_loop(tag, qkv):
        a.I("s_mov_b32 s65, 0x8000")
        a.L(f"L_loop_{tag}")
        fap = OPT.get("fapos", 2)
        for b in range(4):
            a.I("s_waitcnt lgkmcnt(0)")
            a.I(J(inter(mfmas(FA, qkv), reads(b, 1, FB, qkv))))
            if (not qkv) and b == (fap & 3):
                if fap >= 4:
                    a.I("s_cmp_lt_i32 s65, 0")
                    a.I(f"s_cbranch_scc0 L_nodrain")
                a.I("s_waitcnt vmcnt(0)")
                if fap >= 4: a.L("L_nodrain")
            a.I("s_waitcnt lgkmcnt(0)")
            if b == 3:
                if not qkv:
                    a.I("s_cmp_lt_i32 s65, 0")
                    a.I(f"s_cbranch_scc1 L_last_{tag}")
                for ks in range(4):
                    a.I(f"v_add_u32 v{XA+ks}, s65, v{XA+ks}")
            stamp_dyn(a)
            a.I("s_barrier")
            stamp_dyn(a)
            if qkv and b == 3:
                a.I("s_cmp_lt_i32 s65, 0")
                a.I("s_cbranch_scc1 L_qtail")
            a.I(J(inter(mfmas(FB, qkv), reads((b+1) % 4, 0, FA, qkv))))
        if qkv:
            a.I("s_mov_b32 s65, 0xffff8000")
            a.I(f"s_branch L_loop_{tag}")
            a.L("L_qtail")
            a.I(J(inter(mfmas(FB, qkv), reads(0, 0, FA, False))))
        else:
            a.I("s_mov_b32 s65, 0xffff8000")
            a.I(f"s_branch L_loop_{tag}")
        if not qkv:
            a.L(f"L_last_{tag}")
            a.I(J(mfmas(FB, qkv)))

    if OPT.get("pflate"):
        for i in range(OPT["pflate"]):
            a.I("s_sleep 8")
        l2_prefetch(a, 0)
    if OPT.get("pfw1early"):
        l2_prefetch(a, 1)
    a.I("s_barrier")
    stamp(a, "B0")
    if STAMPS and OPT.get("fine"): a.I("s_mov_b32 s87, 24")
    if not OPT.get("nopf") and not OPT.get("pfw1early") and not OPT.get("nopfw1", 1):
        l2_prefetch(a, 1)
    if OPT.get("w1late"):
        lw1 = lab("pw1")
        a.I(f"s_cmp_lg_u32 s{S_W}, 2")
        a.I(f"s_cbranch_scc1 {lw1}")
        a.I("v_lshlrev_b32 v20, 7, v1")
        srd(a, RC, S_W1, 512*2752)
        a.I("s_mul_i32 s54, s2, 5504")
        a.I("s_mov_b32 exec_hi, 0xfff")
        a.I(f"buffer_load_dword v24, v20, {S4(RC)}, s54 offen")
        a.I("s_mov_b64 exec, -1")
        a.L(lw1)
    if OPT.get("pfw2") == 2:
        lw = lab("pw2")
        a.I(f"s_cmp_lg_u32 s{S_W}, 3")
        a.I(f"s_cbranch_scc1 {lw}")
        glob_w2(a)
        a.L(lw)
    a.I(J(reads(0, 0, FA)))
    stage_loop("q", True)
    stamp(a, "qloop")
    srd(a, RA, S_WS, VF + 2*MB)
    a.I(f"s_lshl_b32 s54, s{S_RB}, 1")
    a.I("s_add_u32 s54, s54, s64")
    a.I(f"s_lshl_b32 s55, s{S_CG}, 2")
    a.I("s_lshl_b32 s56, s63, 1")
    a.I("s_add_u32 s55, s55, s56")
    a.I("s_lshl_b32 s55, s55, 6")
    a.I("s_add_u32 s54, s54, s55")
    a.I("s_lshl_b32 s54, s54, 10")
    a.I("v_lshlrev_b32 v3, 4, v1")
    a.I("v_bfe_u32 v4, v1, 4, 1")
    a.I("v_lshlrev_b32 v4, 16, v4")
    a.I(f"v_lshl_add_u32 v4, v{H}, 8, v4")
    a.I("v_and_b32 v5, 15, v1")
    a.I("v_lshl_add_u32 v4, v5, 4, v4")
    a.I(f"s_mov_b32 s56, {hex(f2u(QSCALE))}")
    a.I("s_waitcnt vmcnt(0)")
    a.I("s_nop 4")
    for idx, s in enumerate((1, 2, 0)):
        d = ACC + 16*s
        if s == 0:
            for i in range(16):
                a.I(f"v_mul_f32 v{d+i}, s56, v{d+i}")
        for j in range(8):
            a.I(f"v_cvt_pk_bf16_f32 v{d+j}, v{d+2*j}, v{d+2*j+1}")
        if s < 2:
            for hh in range(2):
                a.I(f"s_add_u32 s55, s54, {(KF if s else QF) + hh*65536}")
                a.I(f"buffer_store_dwordx4 {vr(d+4*hh,4)}, v3, {S4(RA)}, s55 offen sc1")
        else:
            a.I(f"s_add_u32 s55, s54, {VF}")
            for u in range(2):
                a.I(f"buffer_store_dwordx4 {vr(d+4*u,4)}, v4, {S4(RA)}, s55 offen offset:{u*512} sc1")
    a.I("s_nop 1")
    for s in range(3):
        for q in range(4):
            r = B1 + (s*4+q)*2
            d = ACC + s*16 + q*4
            a.I(f"v_lshlrev_b32 v{d}, 16, v{r}")
            a.I(f"v_and_b32 v{d+1}, 0xffff0000, v{r}")
            a.I(f"v_lshlrev_b32 v{d+2}, 16, v{r+1}")
            a.I(f"v_and_b32 v{d+3}, 0xffff0000, v{r+1}")
    stage_loop("f", False)
    a.I("s_barrier")
    stamp(a, "floop")
    srd_off(a, RA, S_WS, HF, HF_SIZE)
    a.I(f"s_lshl_b32 s54, s{S_RB}, 1")
    a.I("s_add_u32 s54, s54, s64")
    a.I(f"s_add_u32 s55, s{S_START}, s63")
    a.I("s_lshl_b32 s55, s55, 7")
    a.I("s_add_u32 s54, s54, s55")
    a.I("s_lshl_b32 s54, s54, 10")
    a.I("v_lshlrev_b32 v3, 4, v1")
    a.I("s_nop 4")
    for s in range(3):
        d = ACC + 16*s
        for i in range(16):
            a.I(f"v_max_f32 v{d+i}, 0, v{d+i}")
        for i in range(16):
            a.I(f"v_mul_f32 v{d+i}, v{d+i}, v{d+i}")
        for j in range(8):
            a.I(f"v_cvt_pk_bf16_f32 v{d+j}, v{d+2*j}, v{d+2*j+1}")
        for uu in range(2):
            a.I(f"s_add_u32 s55, s54, {(4*s+uu)*65536}")
            a.I(f"buffer_store_dwordx4 {vr(d+4*uu,4)}, v3, {S4(RA)}, s55 offen sc1")
    a.I("s_nop 1")
    a.I("s_branch L_attn")

def aux_side_issue(a):
    a.I("s_sub_u32 s66, s67, 4")
    a.I(f"s_lshl_b32 s54, s2, 2")
    a.I("s_or_b32 s54, s54, s66")
    a.I("s_cmp_lg_u32 s54, 0")
    a.I("s_cbranch_scc1 L_aux1")
    srd(a, RD, S_DBG, 256)
    a.I("s_memrealtime s[54:55]")
    a.I("s_waitcnt lgkmcnt(0)")
    a.I("s_or_b32 s85, s54, 1")
    a.I("v_mov_b32 v8, s85")
    a.I("v_mov_b32 v10, 0")
    a.I("s_mov_b64 exec, 1")
    a.I(f"buffer_store_dword v8, v10, {S4(RD)}, 0 offen sc1")
    a.I("s_mov_b64 exec, -1")
    a.L("L_aux1")
    a.I(f"s_lshl_b32 s54, s{S_RB}, 6")
    a.I(f"s_lshl_b32 s55, s{S_CG}, 3")
    a.I("s_add_u32 s54, s54, s55")
    a.I("s_lshl_b32 s55, s66, 1")
    a.I("s_add_u32 s86, s54, s55")
    return 0

def aux_side_loads(a):
    a.I("s_lshl_b32 s54, s86, 10")
    srd_off(a, RD, S_AX, "s54", 2048)
    a.I("v_and_b32 v2, 31, v1")
    a.I("v_lshlrev_b32 v2, 5, v2")
    a.I("v_lshrrev_b32 v3, 5, v1")
    a.I("v_lshl_add_u32 v4, v3, 10, v2")
    for i in range(2):
        a.I(f"buffer_load_dwordx4 {vr(32+4*i,4)}, v4, {S4(RD)}, 0 offen offset:{16*i}")
    srd(a, RD, S_GW, 1024)
    for i in range(2):
        a.I(f"buffer_load_dwordx4 {vr(40+4*i,4)}, v2, {S4(RD)}, 0 offen offset:{16*i}")
    n = 4
    if OPT.get("codepf", 1) and not OPT.get("codeearly", 1):
        a.I("s_getpc_b64 s[52:53]")
        a.L("L_pc")
        a.I(f"s_sub_u32 s52, s52, L_pc-{KN}")
        a.I("s_subb_u32 s53, s53, 0")
        a.I("s_mul_i32 s54, s66, 6144")
        a.I("v_lshlrev_b32 v5, 7, v1")
        a.I("v_add_u32 v5, s54, v5")
        a.I(f"v_min_u32 v5, L_code_end-{KN}-4, v5")
        a.I("s_mov_b32 exec_hi, 0xffff")
        a.I("global_load_dword v116, v5, s[52:53]")
        a.I("s_mov_b64 exec, -1")
        n += 1
    return n

def aux_nonce_issue(a):
    srd(a, RD, S_DBG, 256)
    a.I("v_mov_b32 v10, 0")
    a.I(f"buffer_load_dword v8, v10, {S4(RD)}, 0 offen sc1")
    return 1

def aux_nonce_take(a):
    a.I(f"v_readfirstlane_b32 s{S_NONCE}, v8")
    a.I("s_mov_b32 s50, 0x40000")
    a.L("L_nonce")
    a.I(f"s_cmp_lg_u32 s{S_NONCE}, 0")
    a.I("s_cbranch_scc1 L_nonce_ok")
    a.I("s_sub_u32 s50, s50, 1")
    a.I("s_cmp_eq_u32 s50, 0")
    a.I("s_cbranch_scc1 L_nonce_ok")
    srd(a, RD, S_DBG, 256)
    a.I(f"buffer_load_dword v8, v10, {S4(RD)}, 0 offen sc1")
    a.I("s_waitcnt vmcnt(0)")
    a.I(f"v_readfirstlane_b32 s{S_NONCE}, v8")
    a.I("s_branch L_nonce")
    a.L("L_nonce_ok")

def aux_gate(a):
    if OPT.get("p1noprod"): a.I("s_waitcnt vmcnt(0)")
    a.I("v_mov_b32 v24, 0")
    for i in range(8):
        a.I(f"v_dot2c_f32_bf16 v24, v{32+i}, v{40+i}")
    a.I("s_nop 3")
    for sh in (1, 2, 4, 8):
        a.I(f"v_add_f32_dpp v24, v24, v24 row_shr:{sh} row_mask:0xf bank_mask:0xf")
        a.I("s_nop 1")
    a.I("v_add_f32_dpp v24, v24, v24 row_bcast:15 row_mask:0xa bank_mask:0xf")
    a.I("s_nop 1")
    a.I("v_cvt_pk_bf16_f32 v24, v24, v24")
    a.I("v_and_b32 v24, 0xffff0000, v24")
    a.I(f"v_mul_f32 v24, {hex(f2u(-1.4426950408889634))}, v24")
    a.I("v_exp_f32 v24, v24")
    a.I("s_nop 0")
    a.I("v_add_f32 v24, 1.0, v24")
    a.I("v_rcp_f32 v24, v24")
    a.I("s_nop 0")
    a.I("v_cvt_pk_bf16_f32 v24, v24, v24")
    a.I("v_and_b32 v24, 0xffff0000, v24")
    srd_off(a, RD, S_WS, GO, 8192)
    a.I("s_lshl_b32 s54, s86, 2")
    a.I("v_lshrrev_b32 v3, 5, v1")
    a.I("v_lshlrev_b32 v3, 2, v3")
    a.I("s_mov_b32 s52, 0x80000000")
    a.I("s_mov_b32 s53, 0x80000000")
    a.I("s_mov_b64 exec, s[52:53]")
    a.I(f"buffer_store_dword v24, v3, {S4(RD)}, s54 offen sc1")
    a.I("s_mov_b64 exec, -1")

def aux_publish_fa(a):
    a.I("s_cmp_lg_u32 s66, 0")
    a.I("s_cbranch_scc1 L_aux2")
    srd_off(a, RD, S_WS, FLG, FLG_SIZE)
    a.I(f"s_lshl_b32 s54, s{S_CG}, 7")
    a.I(f"s_lshl_b32 s55, s{S_RB}, 2")
    a.I("s_add_u32 s54, s54, s55")
    a.I(f"s_add_u32 s54, s54, {FA_OFF}")
    a.I(f"v_mov_b32 v8, s{S_NONCE}")
    a.I(f"v_mov_b32 v10, 0")
    a.I("s_mov_b64 exec, 1")
    a.I(f"buffer_store_dword v8, v10, {S4(RD)}, s54 offen sc1")
    a.I("s_mov_b64 exec, -1")
    stamp(a, "FApub")
    a.L("L_aux2")

def aux_zero_misc(a):
    a.I("s_cmp_lg_u32 s66, 1")
    a.I("s_cbranch_scc1 L_aux3")
    a.I(f"v_lshlrev_b32 v10, 2, v1")
    if L_MISC: a.I(f"v_add_u32 v10, {L_MISC}, v10")
    a.I("v_mov_b32 v9, 0")
    a.I("ds_write_b32 v10, v9")
    a.I("s_waitcnt lgkmcnt(0)")
    a.I("v_mov_b32 v10, 0")
    a.L("L_aux3")

def aux_share_nonce(a):
    a.I("s_cmp_lg_u32 s66, 0")
    a.I("s_cbranch_scc1 L_aux4")
    a.I(f"v_mov_b32 v9, {L_MISC + 128}")
    a.I(f"v_mov_b32 v11, s{S_NONCE}")
    a.I("ds_write_b32 v9, v11")
    a.I("s_waitcnt lgkmcnt(0)")
    a.L("L_aux4")

def aux_fa_probe(a):
    srd_off(a, RC, S_WS, FLG, FLG_SIZE)
    a.I(f"s_lshr_b32 s88, s{S_HD}, 2")
    a.I("s_lshl_b32 s88, s88, 7")
    a.I(f"s_add_u32 s88, s88, {FA_OFF}")
    a.I("v_lshlrev_b32 v9, 2, v1")
    a.I("s_mov_b32 exec_hi, 0")
    a.I(f"buffer_load_dword v11, v9, {S4(RC)}, s88 offen sc1")
    a.I("s_mov_b64 exec, -1")

def aux_after_e1(a):
    a.I("s_mov_b32 s67, s66")
    a.I("s_setprio 3")
    stamp(a, "E2")
    a.I("s_mov_b32 exec_hi, 0")
    a.I("s_waitcnt vmcnt(0)")
    a.I(f"v_cmp_ne_u32 vcc, s{S_NONCE}, v11")
    a.I("s_mov_b64 exec, -1")
    a.I("s_cbranch_vccz L_aux5")
    poll(a, RC, 32, 9, 11, "s88", OPT.get("faslp", 2))
    a.L("L_aux5")
    stamp(a, "FAok")
    VL = 4
    a.I(f"v_lshlrev_b32 v{VL}, 4, v1")
    a.I(f"s_lshl_b32 s54, s{S_HD}, 16")
    a.I(f"s_add_u32 s55, s54, {KF}")
    srd_off(a, RA, S_WS, "s55", 65536)
    a.I(f"s_add_u32 s55, s54, {VF}")
    srd_off(a, RB, S_WS, "s55", 65536)
    a.I(f"s_add_u32 s55, s54, {QF}")
    srd_off(a, RD, S_WS, "s55", 65536)
    a.I(f"s_lshl_b32 s54, s{S_QB}, 3")
    a.I("s_lshl_b32 s55, s67, 1")
    a.I("s_add_u32 s54, s54, s55")
    a.I("s_lshl_b32 s54, s54, 10")
    a.I("s_lshl_b32 s55, s67, 11")
    a.I(f"s_add_u32 s55, s55, {L_RING}")
    for t in range(2):
        a.I(f"s_add_u32 m0, s55, {t*1024}")
        a.I(f"s_add_u32 s56, s54, {t*1024}")
        a.I(f"buffer_load_dwordx4 v{VL}, {S4(RD)}, s56 offen sc1 lds")
    a.I("s_lshl_b32 s54, s67, 10")
    def kvchunks(cs):
        for c in cs:
            a.I(f"s_add_u32 s55, s54, {c*4096}")
            a.I(f"s_add_u32 m0, s55, {L_K}")
            a.I(f"s_add_u32 s56, s55, {L_V}")
            a.I(f"buffer_load_dwordx4 v{VL}, {S4(RA)}, s55 offen sc1 lds")
            a.I("s_mov_b32 m0, s56")
            a.I("s_nop 0")
            a.I(f"buffer_load_dwordx4 v{VL}, {S4(RB)}, s55 offen sc1 lds")
    kvchunks(range(0, 2))
    kvchunks(range(2, 4))
    a.I("s_waitcnt vmcnt(4)")
    lds_add1(a, M_KV, 8, 9)
    stamp(a, "KV1")
    kvchunks(range(4, 16))
    a.I("s_lshr_b32 s53, s2, 3")
    srd(a, RA, S_W2, 1376*1024)
    srd(a, RB, S_WO, 512*1024)
    a.I("s_mul_i32 s54, s53, 44032")
    a.I("s_lshl_b32 s55, s67, 10")
    a.I("s_add_u32 s54, s54, s55")
    a.I("s_waitcnt vmcnt(0)")
    lds_add1(a, M_KV, 8, 9)
    stamp(a, "KV2")
    a.I("v_lshlrev_b32 v10, 7, v1")
    a.I("s_lshl_b32 s55, s67, 13")
    a.I("s_mul_i32 s54, s53, 44032")
    a.I("s_add_u32 s54, s54, s55")
    a.I(f"buffer_load_dword v40, v10, {S4(RA)}, s54 offen")
    a.I("s_add_u32 s54, s54, 32768")
    a.I(f"buffer_load_dword v41, v10, {S4(RA)}, s54 offen")
    a.I("s_lshl_b32 s54, s53, 14")
    a.I("s_lshl_b32 s55, s67, 12")
    a.I("s_add_u32 s54, s54, s55")
    a.I("s_mov_b32 exec_hi, 0")
    a.I(f"buffer_load_dword v42, v10, {S4(RB)}, s54 offen")
    a.I("s_mov_b64 exec, -1")

def ffn2_p3(a):
    WF, HR, ACC2, BPR = 24, 40, 104, 8
    VH, VW, VA0, VA1 = 2, 3, 4, 5
    a.I("s_cmp_lg_u32 s67, 0")
    a.I("s_cbranch_scc1 L_f1")
    lds_spin(a, M_HST, 4, 8, 9, OPT.get('fslp', 1))
    lds_spin(a, M_KV, 8, 8, 9)
    a.I(f"s_lshl_b32 s54, s{S_RB}, 7")
    a.I(f"s_lshl_b32 s55, s{S_CG}, 2")
    a.I("s_add_u32 s54, s54, s55")
    a.I(f"s_add_u32 s54, s54, {FH_OFF}")
    flag_store(a, "s54", 8, 10)
    a.I(f"s_lshl_b32 s54, s{S_HD}, 7")
    a.I(f"s_add_u32 s54, s54, {FH_OFF}")
    a.I("v_lshlrev_b32 v8, 2, v1")
    poll(a, RC, 8, 8, 9, "s54", OPT.get("fhslp", 8))
    lds_add1(a, M_H, 8, 9)
    a.I("s_branch L_f2")
    a.L("L_f1")
    lds_spin(a, M_H, 1, 8, 9, OPT.get('fslp', 1))
    a.L("L_f2")
    lds_spin(a, M_QRD, 8, 8, 9, OPT.get('fslp', 1))
    stamp(a, "hready")
    if OPT.get("tailpf"):
        srd(a, RA, S_B2, 1024)
        a.I("v_lshlrev_b32 v10, 7, v1")
        a.I("s_mov_b32 exec_lo, 0xff")
        a.I("s_mov_b32 exec_hi, 0")
        a.I(f"buffer_load_dword v43, v10, {S4(RA)}, 0 offen")
        if OPT["tailpf"] > 1:
            srd(a, RA, S_OUT, 2*MB)
            a.I(f"s_lshl_b32 s54, s{S_HD}, 16")
            a.I("s_mov_b32 exec_lo, 1")
            a.I(f"buffer_load_dword v44, v10, {S4(RA)}, s54 offen")
        a.I("s_mov_b64 exec, -1")
    srd(a, RA, S_W2, 1376*1024)
    srd_off(a, RB, S_WS, HF, HF_SIZE)
    a.I(f"v_lshlrev_b32 v{VH}, 4, v1")
    dma_w_lane_off(a, VW, 1, 8, 9, 1024)
    a.I(f"s_lshl_b32 s54, s{S_QB}, 7")
    a.I(f"v_add_u32 v{VW}, s54, v{VW}")
    tr_lane_addr(a, VA0, 1, 8, 9, 4, 128)
    a.I("s_mul_i32 s68, s67, 6144")
    a.I(f"s_add_u32 s68, s68, {L_RING}")
    a.I(f"v_add_u32 v{VA0}, s68, v{VA0}")
    a.I(f"v_xor_b32 v{VA1}, 64, v{VA0}")
    a.I("s_mul_i32 s54, s67, 24")
    a.I("s_lshl_b32 s70, s54, 14")
    a.I("s_lshl_b32 s71, s54, 16")
    a.I(f"s_lshl_b32 s55, s{S_HD}, 11")
    a.I("s_add_u32 s71, s71, s55")
    for i in range(64):
        a.I(f"v_mov_b32 v{ACC2+i}, 0")
    a.I("s_waitcnt vmcnt(0)")
    def fissue(slot):
        return [f"s_add_u32 m0, s68, {slot*2048}",
                f"s_add_u32 s69, s70, 8192",
                f"buffer_load_dwordx4 v{VW}, {S4(RA)}, s70 offen lds",
                f"s_add_u32 m0, s68, {slot*2048+1024}",
                f"s_add_u32 s70, s70, 16384",
                f"buffer_load_dwordx4 v{VW}, {S4(RA)}, s69 offen lds",
                f"buffer_load_dwordx4 {vr(HR+slot*8,4)}, v{VH}, {S4(RB)}, s71 offen sc1",
                f"buffer_load_dwordx4 {vr(HR+slot*8+4,4)}, v{VH}, {S4(RB)}, s71 offen offset:1024 sc1",
                f"s_add_u32 s71, s71, 65536"]
    def trr(F, off):
        out = []
        for ct, va in ((0, VA0), (1, VA1)):
            for rd in range(2):
                out.append(f"ds_read_b64_tr_b16 {vr(F+4*ct+2*rd,2)}, v{va} offset:{off + rd*1024}")
        return out
    N2 = OPT.get("n2", 0)
    a.I("s_cmp_eq_u32 s67, 3")
    a.I(f"s_cselect_b32 s72, {5-N2}, {8-N2}")
    a.I("s_mov_b32 s76, 0")
    a.L("L_fpro")
    for slot in range(3):
        a.I(J(fissue(slot)))
    a.I("s_cmp_lg_u32 s76, 0")
    a.I("s_cbranch_scc1 L_floop")
    a.I(f"s_setprio {OPT.get('ffnprio', 0)}")
    if OPT.get("noffn"): a.I("s_branch L_fskip")
    a.L("L_floop")
    for slot in range(3):
        a.I("s_waitcnt vmcnt(8)")
        a.I(J(trr(WF, slot*2048)))
        a.I("s_waitcnt lgkmcnt(0)")
        fi = fissue(slot)
        mf = lambda ct, rt: MF(ACC2 + (ct*2+rt)*16, WF+4*ct, HR+slot*8+4*rt, ACC2 + (ct*2+rt)*16)
        if OPT.get("fspread", 1):
            a.I(mf(0, 0)); a.I(J(fi[0:3]))
            a.I(mf(1, 0)); a.I(J(fi[3:6]))
            a.I(mf(0, 1)); a.I(fi[6])
            a.I(mf(1, 1)); a.I(J(fi[7:]))
        else:
            for ct in range(2):
                for rt in range(2):
                    a.I(mf(ct, rt))
            a.I(J(fi))
    a.I("s_sub_u32 s72, s72, 1")
    a.I("s_cmp_lg_u32 s72, 0")
    a.I("s_cbranch_scc1 L_floop")
    a.L("L_fskip")
    a.I("s_setprio 3")
    a.I("s_waitcnt vmcnt(0)")
    a.I("s_cmp_lg_u32 s76, 0")
    a.I("s_cbranch_scc1 L_fdone")
    lds_add1(a, M_FFN, 8, 9)
    stamp(a, "ffn2")
    lds_spin(a, M_ATT, 4, 8, 9, OPT.get('attslp', 1))
    stamp(a, "attdone")
    srd(a, RD, S_WO, 512*1024)
    a.I("s_lshl_b32 s56, s67, 14")
    a.I(f"s_add_u32 s56, s56, {L_K}")
    a.I("s_lshl_b32 s57, s67, 17")
    for ks in range(8):
        for n in range(2):
            a.I(f"s_add_u32 m0, s56, {ks*2048+n*1024}")
            a.I(f"s_add_u32 s69, s57, {ks*16384+n*8192}")
            a.I(f"buffer_load_dwordx4 v{VW}, {S4(RD)}, s69 offen lds")
    if N2:
        a.I("s_mov_b32 s76, 1")
        a.I(f"s_sub_u32 s70, s70, {3*16384}")
        a.I(f"s_sub_u32 s71, s71, {3*65536}")
        a.I(f"s_mov_b32 s72, {N2}")
        a.I("s_branch L_fpro")
    a.L("L_fdone")
    srd_off(a, RA, S_WS, GO, 8192)
    srd(a, RB, S_B2, 1024)
    a.I("s_and_b32 s73, s67, 1")
    a.I("s_lshr_b32 s74, s67, 1")
    a.I(f"s_lshl_b32 s75, s{S_HD}, 6")
    a.I("s_lshl_b32 s54, s73, 5")
    a.I("s_add_u32 s75, s75, s54")
    a.I("s_lshl_b32 s54, s75, 2")
    a.I("v_and_b32 v8, 31, v1")
    a.I("v_lshlrev_b32 v8, 2, v8")
    a.I(f"buffer_load_dword v40, v8, {S4(RA)}, s54 offen sc1")
    a.I(f"s_lshl_b32 s54, s{S_QB}, 6")
    a.I("s_lshl_b32 s55, s74, 5")
    a.I("s_add_u32 s54, s54, s55")
    a.I("s_lshl_b32 s54, s54, 1")
    a.I("v_lshrrev_b32 v8, 5, v1")
    a.I("v_lshlrev_b32 v8, 3, v8")
    for q in range(4):
        a.I(f"buffer_load_dwordx2 v[{42+2*q}:{43+2*q}], v8, {S4(RB)}, s54 offen offset:{q*16}")
    a.I("s_lshl_b32 s68, s67, 14")
    a.I("s_nop 7")
    a.I(f"s_add_u32 s54, s68, {L_V}")
    a.I(f"v_add_u32 v8, s54, v{VH}")
    for i in range(16):
        a.I(f"ds_write_b128 v8, {vr(ACC2+4*i,4)} offset:{i*1024}")
    a.I("s_waitcnt vmcnt(0) lgkmcnt(0)")
    lds_add1(a, M_T1, 9, 10)
    lds_spin(a, M_T1, 4, 9, 10)
    a.I("s_lshl_b32 s54, s67, 12")
    a.I(f"s_add_u32 s54, s54, {L_V}")
    a.I(f"v_add_u32 v8, s54, v{VH}")
    for p in range(4):
        for q in range(4):
            a.I(f"ds_read_b128 {vr(ACC2+p*16+q*4,4)}, v8 offset:{p*16384+q*1024}")
    a.I("s_waitcnt lgkmcnt(0)")
    for i in range(16):
        a.I(f"v_add_f32 v{ACC2+i}, v{ACC2+i}, v{ACC2+16+i}")
        a.I(f"v_add_f32 v{ACC2+32+i}, v{ACC2+32+i}, v{ACC2+48+i}")
    for i in range(16):
        a.I(f"v_add_f32 v{ACC2+i}, v{ACC2+i}, v{ACC2+32+i}")
    a.I("s_waitcnt vmcnt(0)")
    a.I("v_sub_f32 v41, 1.0, v40")
    a.I("v_cvt_pk_bf16_f32 v41, v41, v41")
    a.I("v_and_b32 v41, 0xffff0000, v41")
    for q in range(4):
        a.I(f"v_lshlrev_b32 v52, 16, v{42+2*q}")
        a.I(f"v_and_b32 v53, 0xffff0000, v{42+2*q}")
        a.I(f"v_lshlrev_b32 v54, 16, v{43+2*q}")
        a.I(f"v_and_b32 v55, 0xffff0000, v{43+2*q}")
        for j in range(4):
            a.I(f"v_add_f32 v{BPR+4*q+j}, v{ACC2+4*q+j}, v{52+j}")
        for j in range(4):
            a.I(f"v_mul_f32 v{BPR+4*q+j}, v{BPR+4*q+j}, v41")
    a.I("v_mov_b32 v39, v40")
    tr_lane_addr(a, VA0, 1, 32, 33, 4, 128)
    a.I("s_lshl_b32 s54, s74, 6")
    a.I(f"v_xor_b32 v{VA0}, s54, v{VA0}")
    a.I(f"v_add_u32 v{VA0}, {L_K}, v{VA0}")
    a.I("s_lshl_b32 s54, s73, 15")
    a.I(f"s_add_u32 s54, s54, {L_V}")
    a.I(f"v_add_u32 v{VA1}, s54, v{VH}")
    FR = 40
    def wreads(ks):
        F = FR + (ks % 8) * 8
        return [f"ds_read_b64_tr_b16 {vr(F,2)}, v{VA0} offset:{ks*2048}",
                f"ds_read_b64_tr_b16 {vr(F+2,2)}, v{VA0} offset:{ks*2048+1024}"]
    def oread(ks):
        F = FR + (ks % 8) * 8
        return [f"ds_read_b128 {vr(F+4,4)}, v{VA1} offset:{ks*1024}"]
    a.I("s_cmp_lg_u32 s67, 0")
    a.I("s_cbranch_scc1 L_f4")
    a.I(f"s_lshl_b32 s54, s{S_HD}, 8")
    a.I(f"s_add_u32 s54, s54, {FO_OFF}")
    a.I("v_lshlrev_b32 v121, 2, v1")
    if not OPT.get("opf", 0):
        poll(a, RC, 64, 121, 122, "s54", OPT.get("foslp", 2))
    else:
        srd_off(a, RB, S_WS, OF, 2*MB)
        a.I(f"s_lshl_b32 s55, s{S_HD}, 16")
        a.I("v_lshlrev_b32 v123, 10, v1")
        a.I("s_mov_b64 s[56:57], 0")
        a.I("s_mov_b32 s50, 0x40000")
        a.L("L_opf")
        a.I(f"buffer_load_dword v122, v121, {S4(RC)}, s54 offen sc1")
        a.I("s_waitcnt vmcnt(0)")
        a.I(f"v_cmp_eq_u32 vcc, s{S_NONCE}, v122")
        a.I("s_nop 1")
        a.I("s_andn2_b64 s[58:59], vcc, s[56:57]")
        a.I("s_or_b64 s[56:57], s[56:57], vcc")
        a.I("s_cmp_eq_u64 s[56:57], -1")
        a.I("s_cbranch_scc1 L_opf3")
        a.I("s_cmp_eq_u64 s[58:59], 0")
        a.I("s_cbranch_scc1 L_opf2")
        a.I("s_mov_b64 exec, s[58:59]")
        for j in range(8):
            a.I(f"buffer_load_dword v120, v123, {S4(RB)}, s55 offen offset:{j*128} sc1")
        a.I("s_mov_b64 exec, -1")
        a.L("L_opf2")
        a.I("s_sub_u32 s50, s50, 1")
        a.I("s_cmp_eq_u32 s50, 0")
        a.I("s_cbranch_scc1 L_opf3")
        a.I(f"s_sleep {OPT.get('foslp', 2)}")
        a.I("s_branch L_opf")
        a.L("L_opf3")
    a.L("L_f4")
    for ks in range(8): a.I(J(wreads(ks)))
    srd_off(a, RB, S_WS, OF, 2*MB)
    a.I(f"s_lshl_b32 s54, s{S_HD}, 16")
    a.I("s_lshl_b32 s55, s67, 11")
    a.I("s_add_u32 s54, s54, s55")
    a.I(f"s_add_u32 s55, s55, {L_V}")
    srd(a, RA, S_OUT, 2*MB)
    a.I("s_lshl_b32 s58, s75, 10")
    a.I(f"s_lshl_b32 s59, s{S_QB}, 7")
    a.I("s_add_u32 s58, s58, s59")
    a.I("s_lshl_b32 s59, s74, 6")
    a.I("s_add_u32 s58, s58, s59")
    a.I("v_and_b32 v32, 31, v1")
    a.I("v_lshlrev_b32 v32, 10, v32")
    a.I("v_lshrrev_b32 v33, 5, v1")
    a.I("v_lshl_add_u32 v32, v33, 4, v32")
    a.I("s_waitcnt lgkmcnt(0)")
    a.I("s_barrier")
    stamp(a, "T2")
    def odma(ch):
        L = []
        for hh in range(2):
            for rt in range(2):
                off = rt*32768 + ch*8192 + hh*1024
                L.append([f"s_add_u32 m0, s55, {off}", f"s_add_u32 s56, s54, {off}",
                          f"buffer_load_dwordx4 v{VH}, {S4(RB)}, s56 offen sc1 lds"])
        return L
    for ch in range(4):
        for x in odma(ch): a.I(J(x))
    for ch in range(4):
        a.I(f"s_waitcnt vmcnt({4*(3-ch)}) lgkmcnt(0)")
        a.I("s_barrier")
        for ks in range(8*ch, 8*ch+8): a.I(J(oread(ks)))
        for i in range(8):
            ks = 8*ch + i
            a.I(f"s_waitcnt lgkmcnt({7 + i if ch < 3 else 7 - i})")
            F = FR + i*8
            a.I(MF(ACC2, F, F+4, ACC2 if ks else None))
            if ch < 3: a.I(J(wreads(ks+8)))
    a.I("s_nop 15")
    stamp(a, "p3mm")
    for i in range(16):
        a.I(f"v_fma_f32 v{ACC2+i}, v{ACC2+i}, v39, v{BPR+i}")
    for j in range(8):
        a.I(f"v_cvt_pk_bf16_f32 v{ACC2+j}, v{ACC2+2*j}, v{ACC2+2*j+1}")
    a.I("s_nop 1")
    a.I(f"v_permlane32_swap_b32 v{ACC2}, v{ACC2+2}")
    a.I(f"v_permlane32_swap_b32 v{ACC2+1}, v{ACC2+3}")
    a.I(f"v_permlane32_swap_b32 v{ACC2+4}, v{ACC2+6}")
    a.I(f"v_permlane32_swap_b32 v{ACC2+5}, v{ACC2+7}")
    ofl = {0: "", 1: " sc1", 2: " nt", 3: " sc0 sc1"}[OPT.get("outfl", 0)]
    a.I(f"buffer_store_dwordx4 {vr(ACC2,4)}, v32, {S4(RA)}, s58 offen{ofl}")
    a.I(f"buffer_store_dwordx4 {vr(ACC2+4,4)}, v32, {S4(RA)}, s58 offen offset:32{ofl}")
    stamp_flush(a, "ffn")
    a.I("s_endpgm")

def attention(a):
    a.L("L_attn")
    stamp(a, "attn0")
    QA, QB = 8, 12
    KB = [16, 20]; VB = [24, 32]
    S0, S1, OA, OB = 40, 56, 72, 88
    VK, VV, VL = 2, 3, 4
    T0, T1, T2 = 104, 105, 106
    VKN, VVN, VVB, VCH, VONE, VNX = 107, 108, 109, 110, 111, 5
    a.I(f"s_and_b32 s63, s{S_W}, 3")
    a.I(f"s_lshr_b32 s64, s{S_W}, 2")
    a.I(f"v_lshlrev_b32 v{VL}, 4, v1")
    a.I(f"v_lshrrev_b32 v{T0}, 5, v1")
    a.I(f"v_and_b32 v{T1}, 15, v1")
    a.I(f"v_lshlrev_b32 v{T1}, 4, v{T1}")
    a.I(f"v_lshl_add_u32 v{VVB}, v{T0}, 8, v{T1}")
    a.I(f"v_add_u32 v{VVB}, {L_V}, v{VVB}")
    a.I(f"v_add_u32 v{VKN}, {L_K}, v{VL}")
    a.I("s_lshl_b32 s54, s64, 12")
    a.I(f"v_add_u32 v{VK}, s54, v{VL}")
    a.I(f"v_add_u32 v{VV}, s54, v{VVB}")
    a.I("s_lshl_b32 s54, s63, 2")
    a.I(f"s_add_u32 s54, s54, {M_CH}")
    a.I(f"v_mov_b32 v{VCH}, s54")
    a.I(f"v_mov_b32 v{VONE}, 1")
    a.I("s_mov_b32 s74, 0x0000ffff")
    a.I("s_mov_b32 s75, 0x0000ffff")
    a.I("s_mov_b32 s77, 0")
    a.I(f"s_lshl_b32 s66, s{S_QB}, 3")
    a.I("s_lshl_b32 s54, s63, 1")
    a.I("s_add_u32 s66, s66, s54")
    a.I("s_lshl_b32 s54, s63, 11")
    a.I(f"s_add_u32 s54, s54, {L_RING}")
    a.I(f"v_add_u32 v{T2}, s54, v{VL}")
    a.I(f"v_and_b32 v{T0}, 31, v1")
    a.I(f"v_cmp_eq_u32 vcc, 16, v{T0}")
    a.I(f"v_mov_b32 v{T1}, 0x3f803f80")
    a.I("s_nop 1")
    a.I(f"v_cndmask_b32 v{T0}, 0, v{T1}, vcc")
    for i in range(16):
        a.I(f"v_mov_b32 v{VB[0]+i}, v{T0}")
    lds_spin(a, M_KV, 4, T0, T1)
    stamp(a, "kvok")
    a.I(f"ds_read_b128 {vr(QA,4)}, v{T2}")
    a.I(f"ds_read_b128 {vr(QB,4)}, v{T2} offset:1024")
    for i in range(16):
        a.I(f"v_mov_b32 v{OA+i}, 0")
        a.I(f"v_mov_b32 v{OB+i}, 0")
    a.I("s_waitcnt lgkmcnt(0)")
    lds_add1(a, M_QRD, T0, T1)
    a.I("s_lshl_b32 s71, s64, 12")
    if STAMPS and OPT.get("fineattn"): a.I("s_mov_b32 s87, 24")
    a.I("s_mov_b32 s73, 0")

    def e_(S, i): return f"v_exp_f32 v{S+i}, v{S+i}"
    def c_(S, j): return f"v_cvt_pk_bf16_f32 v{S+j}, v{S+2*j}, v{S+2*j+1}"
    def tile(Sin, Sout, Qn, Kn, Ocur, Vcur_u0, Oprev, Vprev_u1, after_pv2, wait_s, after_s, wait_pv1, do_pv2=True, do_s=True):
        e = lambda i: e_(Sin, i)
        c = lambda j: c_(Sin, j)
        L = [e(0), e(1)]
        if do_pv2: L.append(MF(Oprev, Vprev_u1, Sout+4, Oprev))
        L += after_pv2
        L += [e(2), e(3), c(0), e(4), e(5), c(1)]
        L += wait_s
        if do_s: L.append(MF(Sout, Kn, Qn))
        L += after_s
        L += [e(6), e(7), c(2), e(8), e(9), c(3), e(10), e(11)]
        L += wait_pv1
        L.append(MF(Ocur, Vcur_u0, Sin, Ocur))
        L += [c(4), e(12), e(13), c(5), e(14), e(15), c(6), c(7)]
        return L
    fifo = []
    def dsr(tag, txt): fifo.append(tag); return txt
    def need(tag):
        idx = max(i for i, t in enumerate(fifo) if t == tag)
        return [f"s_waitcnt lgkmcnt({len(fifo) - 1 - idx})"]
    def vreads(t):
        kap = t & 1
        return ["s_mov_b64 exec, s[74:75]",
                dsr(("V", t), f"ds_read_b128 {vr(VB[kap],4)}, v{VV} offset:{t*1024}"),
                dsr(("V", t), f"ds_read_b128 {vr(VB[kap]+4,4)}, v{VV} offset:{t*1024+512}"),
                "s_mov_b64 exec, -1"]
    def kread(t): return [dsr(("K", t), f"ds_read_b128 {vr(KB[t & 1],4)}, v{VK} offset:{t*1024}")]
    a.raw(".p2align 6")
    a.L("L_aloop")
    if OPT.get("fineattn"):
        OPT["fine"] = 1; stamp_dyn(a); OPT["fine"] = 0
    a.I(f"v_add_u32 v{VK}, s71, v{VKN}")
    a.I(f"v_add_u32 v{VV}, s71, v{VVB}")
    L = kread(0) + vreads(0) + kread(1)
    L += need(("K", 0))
    L.append(MF(S0, KB[0], QA))
    a.I(J(L))
    a.I("s_nop 7")
    a.I("s_nop 3")
    body = []
    for t in range(4):
        kap = t & 1
        A = []
        Sin, Sout = S0, S1
        A += [e_(Sin, 0), e_(Sin, 1)]
        if t > 0: A.append(MF(OB, VB[kap^1]+4, Sout+4, OB))
        if t + 1 < 4: A += vreads(t+1)
        A += [e_(Sin, 2), e_(Sin, 3), c_(Sin, 0), e_(Sin, 4), e_(Sin, 5), c_(Sin, 1)]
        A.append(MF(Sout, KB[kap], QB))
        if t + 2 < 4: A += kread(t+2)
        A += [e_(Sin, 6), e_(Sin, 7), c_(Sin, 2), e_(Sin, 8), e_(Sin, 9), c_(Sin, 3), e_(Sin, 10), e_(Sin, 11)]
        A += need(("V", t))
        A.append(MF(OA, VB[kap], Sin, OA))
        A += [c_(Sin, 4), e_(Sin, 12), e_(Sin, 13), c_(Sin, 5), e_(Sin, 14), e_(Sin, 15), c_(Sin, 6), c_(Sin, 7)]
        Sin, Sout = S1, S0
        B = [e_(Sin, 0), e_(Sin, 1), MF(OA, VB[kap]+4, Sout+4, OA)]
        if t == 3:
            B += ["s_mov_b64 exec, 1", dsr(("G",), f"ds_add_rtn_u32 v{VNX}, v{VCH}, v{VONE}"), "s_mov_b64 exec, -1"]
        B += [e_(Sin, 2), e_(Sin, 3), c_(Sin, 0), e_(Sin, 4), e_(Sin, 5), c_(Sin, 1)]
        if t + 1 < 4:
            B += need(("K", t+1))
            B.append(MF(Sout, KB[kap^1], QA))
        B += [e_(Sin, 6), e_(Sin, 7), c_(Sin, 2), e_(Sin, 8), e_(Sin, 9), c_(Sin, 3), e_(Sin, 10), e_(Sin, 11)]
        B.append(MF(OB, VB[kap], Sin, OB))
        B += [c_(Sin, 4), e_(Sin, 12), e_(Sin, 13), c_(Sin, 5), e_(Sin, 14), e_(Sin, 15), c_(Sin, 6), c_(Sin, 7)]
        body += A + B
    a.I(J(body))
    a.I("s_waitcnt lgkmcnt(0)")
    a.I(f"v_readfirstlane_b32 s70, v{VNX}")
    a.I(MF(OB, VB[1]+4, S1+4, OB))
    a.I("s_add_u32 s70, s70, 2")
    a.I("s_lshl_b32 s71, s70, 12")
    a.I("s_cmp_lg_u32 s73, 0")
    a.I("s_cbranch_scc1 L_aloop2")
    a.I("s_mov_b32 s73, 1")
    a.I("s_waitcnt vmcnt(0)")
    a.I(f"s_cmp_ge_u32 s{S_W}, 4")
    a.I("s_cbranch_scc1 L_aloop1")
    lds_add1(a, M_HST, T0, T1)
    a.L("L_aloop1")
    lds_spin(a, M_KV, 8, T0, T1)
    a.L("L_aloop2")
    a.I("s_cmp_lt_u32 s70, 16")
    a.I("s_cbranch_scc1 L_aloop")
    a.I("s_waitcnt lgkmcnt(0)")
    a.I("s_nop 7")
    stamp(a, "aloop")
    a.I("s_lshl_b32 s54, s63, 2")
    a.I(f"s_add_u32 s55, s54, {M_PAIR}")
    a.I(f"s_add_u32 s76, s54, {M_PFLAG}")
    a.I(f"v_mov_b32 v{T0}, s55")
    a.I(f"v_mov_b32 v{T1}, 1")
    a.I("s_mov_b64 exec, 1")
    a.I(f"ds_add_rtn_u32 v{T2}, v{T0}, v{T1}")
    a.I("s_mov_b64 exec, -1")
    a.I("s_mul_i32 s54, s63, 4608")
    a.I(f"s_add_u32 s54, s54, {L_XCH}")
    a.I(f"v_add_u32 v{S0}, s54, v{VL}")
    a.I(f"v_lshlrev_b32 v{S0+1}, 2, v1")
    a.I(f"v_add_u32 v{S0+1}, s54, v{S0+1}")
    a.I("s_waitcnt lgkmcnt(0)")
    a.I(f"v_readfirstlane_b32 s55, v{T2}")
    a.I("s_nop 4")
    a.I("s_cmp_lg_u32 s55, 0")
    a.I("s_cbranch_scc1 L_second")
    lds_spin(a, M_FFN, 4, T0, T1)
    a.I(f"ds_write_b128 v{S0}, {vr(OA,4)}")
    a.I(f"ds_write_b128 v{S0}, {vr(OA+4,4)} offset:1024")
    a.I(f"ds_write_b128 v{S0}, {vr(OB,4)} offset:2048")
    a.I(f"ds_write_b128 v{S0}, {vr(OB+4,4)} offset:3072")
    a.I(f"ds_write_b32 v{S0+1}, v{OA+8} offset:4096")
    a.I(f"ds_write_b32 v{S0+1}, v{OB+8} offset:4352")
    a.I("s_waitcnt lgkmcnt(0)")
    lds_add1(a, "s76", T0, T1)
    a.I("s_waitcnt lgkmcnt(0)")
    stamp_flush(a, "attn")
    a.I("s_endpgm")
    a.L("L_second")
    lds_spin(a, "s76", 1, T0, T1)
    a.I(f"ds_read_b128 {vr(S1,4)}, v{S0}")
    a.I(f"ds_read_b128 {vr(S1+4,4)}, v{S0} offset:1024")
    a.I(f"ds_read_b128 {vr(S1+8,4)}, v{S0} offset:2048")
    a.I(f"ds_read_b128 {vr(S1+12,4)}, v{S0} offset:3072")
    a.I(f"ds_read_b32 v{T0}, v{S0+1} offset:4096")
    a.I(f"ds_read_b32 v{T1}, v{S0+1} offset:4352")
    a.I(f"v_mov_b32 v{T2}, {L_MISC + 128}")
    a.I(f"ds_read_b32 v{T2}, v{T2}")
    a.I("s_waitcnt lgkmcnt(0)")
    a.I(f"v_readfirstlane_b32 s{S_NONCE}, v{T2}")
    for i in range(8):
        a.I(f"v_add_f32 v{OA+i}, v{OA+i}, v{S1+i}")
        a.I(f"v_add_f32 v{OB+i}, v{OB+i}, v{S1+8+i}")
    a.I(f"v_add_f32 v{OA+8}, v{OA+8}, v{T0}")
    a.I(f"v_add_f32 v{OB+8}, v{OB+8}, v{T1}")
    a.L("L_fin")
    for O in (OA, OB):
        a.I(f"v_mov_b32 v{O+9}, v{O+8}")
    a.I("s_nop 1")
    for O in (OA, OB):
        a.I(f"v_permlane32_swap_b32 v{O+9}, v{O+8}")
    a.I("s_nop 1")
    for O in (OA, OB):
        a.I(f"v_rcp_f32 v{O+10}, v{O+9}")
    srd_off(a, RA, S_WS, OF, 2*MB)
    a.I("s_lshl_b32 s54, s66, 5")
    a.I(f"s_add_u32 s54, s54, s{S_HD}")
    a.I("s_lshl_b32 s55, s54, 10")
    for n_, O in enumerate((OA, OB)):
        for i in range(8):
            a.I(f"v_mul_f32 v{S0+8*n_+i}, v{O+i}, v{O+10}")
        for j in range(4):
            a.I(f"v_cvt_pk_bf16_f32 v{S1+4*n_+j}, v{S0+8*n_+2*j}, v{S0+8*n_+2*j+1}")
        a.I(f"buffer_store_dwordx4 {vr(S1+4*n_,4)}, v{VL}, {S4(RA)}, s55 offen sc1")
        if n_ == 0: a.I("s_add_u32 s55, s55, 32768")
    srd_off(a, RC, S_WS, FLG, FLG_SIZE)
    slow_check(a, OA, OB, T0, T1)
    lds_add1(a, M_ATT, T0, T1)
    a.I("s_lshl_b32 s54, s54, 2")
    a.I(f"s_add_u32 s54, s54, {FO_OFF}")
    a.I(f"v_mov_b32 v{T0}, s{S_NONCE}")
    a.I(f"v_lshlrev_b32 v{T1}, 7, v1")
    a.I("s_waitcnt vmcnt(0)")
    a.I("s_mov_b64 exec, 3")
    a.I(f"buffer_store_dword v{T0}, v{T1}, {S4(RC)}, s54 offen sc1")
    a.I("s_mov_b64 exec, -1")
    stamp_flush(a, "attn")
    a.I("s_endpgm")
    slow_path(a, QA, QB, KB, VB, S0, S1, OA, OB, VL, T0, T1, T2)

def slow_check(a, OA, OB, T0, T1):
    if OPT.get("noslow"): return
    a.I(f"v_mul_f32 v{T0}, 0, v{OA}")
    for i in range(1, 8):
        a.I(f"v_fma_f32 v{T0}, v{OA+i}, 0, v{T0}")
    for i in range(8):
        a.I(f"v_fma_f32 v{T0}, v{OB+i}, 0, v{T0}")
    a.I(f"v_cmp_eq_f32 s[78:79], 0, v{T0}")
    a.I(f"s_mov_b32 s80, {hex(f2u(2.0**-60))}")
    a.I(f"s_mov_b32 s81, {hex(f2u(2.0**60))}")
    for O in (OA, OB):
        a.I(f"v_cmp_le_f32 s[82:83], s80, v{O+9}")
        a.I(f"v_cmp_ge_f32 vcc, s81, v{O+9}")
        a.I("s_nop 1")
        a.I("s_and_b64 s[78:79], s[78:79], s[82:83]")
        a.I("s_and_b64 s[78:79], s[78:79], vcc")
    if OPT.get("forceslow"):
        a.I("s_mov_b64 s[78:79], 0")
    a.I("s_cmp_eq_u64 s[78:79], -1")
    a.I("s_cbranch_scc1 L_ok")
    a.I("s_cmp_eq_u32 s77, 0")
    a.I("s_cbranch_scc1 L_slow")
    a.L("L_ok")

def slow_path(a, QA, QB, KB, VB, S0, S1, OA, OB, VL, T0, T1, T2):
    if OPT.get("noslow"): return
    K, V0, M, C = KB[0], VB[0], 108, 112
    a.L("L_slow")
    a.I("s_waitcnt vmcnt(0)")
    a.I("s_mov_b32 s77, 1")
    a.I(f"v_lshrrev_b32 v{T0}, 5, v1")
    a.I(f"v_and_b32 v{T1}, 15, v1")
    a.I(f"v_lshlrev_b32 v{T1}, 4, v{T1}")
    a.I(f"v_lshl_add_u32 v{T2}, v{T0}, 8, v{T1}")
    a.I(f"v_add_u32 v{T2}, {L_V}, v{T2}")
    a.I(f"v_mov_b32 v{M}, 0xff800000")
    a.I(f"v_mov_b32 v{M+1}, 0xff800000")
    a.I(f"v_add_u32 v{T0}, {L_K}, v{VL}")
    a.I("s_mov_b32 s73, 0")
    a.L("L_slow1")
    a.I(f"ds_read_b128 {vr(K,4)}, v{T0}")
    a.I("s_waitcnt lgkmcnt(0)")
    a.I(MF(S0, K, QA))
    a.I(MF(S1, K, QB))
    a.I("s_nop 15")
    for S, m in ((S0, M), (S1, M+1)):
        for i in range(0, 16, 2):
            a.I(f"v_max3_f32 v{m}, v{S+i}, v{S+i+1}, v{m}")
    a.I(f"v_add_u32 v{T0}, 1024, v{T0}")
    a.I("s_add_u32 s73, s73, 1")
    a.I("s_cmp_lt_u32 s73, 64")
    a.I("s_cbranch_scc1 L_slow1")
    for m in (M, M+1):
        a.I(f"v_mov_b32 v{T1}, v{m}")
        a.I("s_nop 1")
        a.I(f"v_permlane32_swap_b32 v{T1}, v{m}")
        a.I("s_nop 1")
        a.I(f"v_max_f32 v{m}, v{m}, v{T1}")
    for t in range(2):
        for i in range(16):
            a.I(f"v_sub_f32 v{C+16*t+i}, 0, v{M+t}")
    for i in range(16):
        a.I(f"v_mov_b32 v{OA+i}, 0")
        a.I(f"v_mov_b32 v{OB+i}, 0")
    a.I(f"v_add_u32 v{T0}, {L_K}, v{VL}")
    a.I("s_mov_b32 s73, 0")
    a.L("L_slow2")
    a.I(f"ds_read_b128 {vr(K,4)}, v{T0}")
    a.I("s_mov_b64 exec, s[74:75]")
    a.I(f"ds_read_b128 {vr(V0,4)}, v{T2}")
    a.I(f"ds_read_b128 {vr(V0+4,4)}, v{T2} offset:512")
    a.I("s_mov_b64 exec, -1")
    a.I("s_waitcnt lgkmcnt(0)")
    a.I(MF(S0, K, QA, C))
    a.I(MF(S1, K, QB, C+16))
    a.I("s_nop 15")
    for S, O in ((S0, OA), (S1, OB)):
        for i in range(16):
            a.I(f"v_exp_f32 v{S+i}, v{S+i}")
        a.I("s_nop 0")
        for j in range(8):
            a.I(f"v_cvt_pk_bf16_f32 v{S+j}, v{S+2*j}, v{S+2*j+1}")
        a.I("s_nop 1")
        a.I(MF(O, V0, S, O))
        a.I(MF(O, V0+4, S+4, O))
    a.I(f"v_add_u32 v{T0}, 1024, v{T0}")
    a.I(f"v_add_u32 v{T2}, 1024, v{T2}")
    a.I("s_add_u32 s73, s73, 1")
    a.I("s_cmp_lt_u32 s73, 64")
    a.I("s_cbranch_scc1 L_slow2")
    a.I("s_nop 15")
    a.I("s_branch L_fin")

def gen():
    a = Asm()
    prologue(a)
    producer(a, False)
    consumer(a)
    a.L("L_aux")
    producer(a, True)
    ffn2_p3(a)
    attention(a)
    a.L("L_end")
    a.I("s_endpgm")
    a.L("L_code_end")
    a.I("s_endpgm")
    return a

HEADER = open("cdna_kernels/" + NAME + ".s.ref").read().split("; Override launch")[0]

def build(path):
    a = gen()
    out = HEADER + f"; WSLAYOUT QF={QF} KF={KF} VF={VF} HF={HF} GO={GO} OF={OF}\n"
    out += f"; @launch grid=(256,1,1) block=(768,1,1) lds={LDS_TOTAL}\n"
    out += '.amdgcn_target "amdgcn-amd-amdhsa--gfx950"\n.text\n' + a.text()
    out += f""".section .rodata,"a"
.p2align 6
.amdhsa_kernel {KN}
  .amdhsa_next_free_vgpr 168
  .amdhsa_next_free_sgpr 102
  .amdhsa_accum_offset 168
  .amdhsa_group_segment_fixed_size 0
  .amdhsa_kernarg_size 96
  .amdhsa_user_sgpr_count 2
  .amdhsa_user_sgpr_kernarg_segment_ptr 1
  .amdhsa_system_sgpr_workgroup_id_x 1
.end_amdhsa_kernel
"""
    open(path, "w").write(out)
    probs = check_linear(a.lines, "k")
    if STAMPS: print("stamps:", ",".join(_stamp_names))
    return probs

if __name__ == "__main__":
    for x in list(sys.argv[1:]):
        if x.startswith("-D"):
            k, _, v = x[2:].partition("=")
            OPT[k] = int(v) if v else 1
            sys.argv.remove(x)
    if "--stamps" in sys.argv:
        STAMPS = True; sys.argv.remove("--stamps")
    path = sys.argv[1] if len(sys.argv) > 1 else "cdna_kernels/" + NAME + ".s"
    probs = build(path)
    for p in probs: print("HAZARD:", p)
    print("written", path, "problems:", len(probs))
```

```python
import sys, struct
from asmlib import *

NAME = "gated_mix__mha_block__dense_activation_squared_relu__prompt"
KN = NAME + "_kernel"
MB = 1 << 20
QF, KF, VF, HF, GO, OF, FLG = 4096, 2*MB + 8192, 4*MB + 12288, 6*MB + 16384, 12*MB, 14*MB + 4096, 16*MB + 8192
HF_SIZE = 86 * 65536
FA_OFF, FH_OFF, FO_OFF = 0, 4096, 8192
FLG_SIZE = 16384
QSCALE = 0.25 * 1.4426950408889634
STAMP_OFF = 32*MB
STAMPS = False
OPT = {}
def f2u(x): return struct.unpack("<I", struct.pack("<f", x))[0]

S_AX, S_WQKV, S_WO, S_W1, S_B1, S_W2, S_B2, S_GW, S_OUT, S_DBG, S_WS = 4, 6, 8, 12, 14, 16, 18, 20, 22, 24, 26
S_W = 3
S_RB, S_CG, S_START = 29, 30, 31
RA, RB, RC, RD = 32, 36, 40, 44
S_NONCE, S_HD, S_QB = 60, 61, 62
L_MISC, L_K, L_V, L_RING = 0, 1024, 1024 + 65536, 1024 + 131072
L_XCH = L_RING
M_KV, M_H, M_FA, M_QRD, M_HST, M_FFN, M_ATT, M_T1 = [L_MISC + 4*i for i in range(8)]
M_PAIR, M_PFLAG, M_CH = L_MISC + 64, L_MISC + 96, L_MISC + 160
LDS_TOTAL = 163840

def srd(a, dst, base, size):
    a.I(f"s_mov_b32 s{dst}, s{base}")
    a.I(f"s_mov_b32 s{dst+1}, s{base+1}")
    a.I(f"s_mov_b32 s{dst+2}, {size}")
    a.I(f"s_mov_b32 s{dst+3}, 0x20000")
def srd_off(a, dst, base, off, size):
    a.I(f"s_add_u32 s{dst}, s{base}, {off}")
    a.I(f"s_addc_u32 s{dst+1}, s{base+1}, 0")
    a.I(f"s_mov_b32 s{dst+2}, {size}")
    a.I(f"s_mov_b32 s{dst+3}, 0x20000")
def MF(d, A, B, c=None):
    cc = "0" if c is None else vr(c, 16)
    return f"v_mfma_f32_32x32x16_bf16 {vr(d,16)}, {vr(A,4)}, {vr(B,4)}, {cc}"
def S4(r): return f"s[{r}:{r+3}]"
def J(L): return "\n".join(L)

_stamp_names = []
def stamp(a, name):
    if not STAMPS: return
    if name not in _stamp_names: _stamp_names.append(name)
    i = _stamp_names.index(name)
    a.I("s_waitcnt lgkmcnt(0)")
    a.I("s_memtime s[98:99]")
    a.I("s_memrealtime s[100:101]")
    a.I("s_waitcnt lgkmcnt(0)")
    a.I(f"v_writelane_b32 v6, s98, {i}")
    a.I(f"v_writelane_b32 v7, s100, {i}")
def stamp_dyn(a):
    if not (STAMPS and OPT.get("fine")): return
    a.I("s_memtime s[98:99]")
    a.I("s_memrealtime s[100:101]")
    a.I("s_waitcnt lgkmcnt(0)")
    a.I("s_mov_b32 s88, m0")
    a.I("s_mov_b32 m0, s87")
    a.I("s_nop 3")
    a.I("v_writelane_b32 v6, s98, m0")
    a.I("v_writelane_b32 v7, s100, m0")
    a.I("s_mov_b32 m0, s88")
    a.I("s_add_u32 s87, s87, 1")
def dbg_dump(a, names, word0):
    lb = lab("dd")
    a.I(f"s_cmp_lg_u32 s2, {OPT.get('dbgwg', 0)}")
    a.I(f"s_cbranch_scc1 {lb}")
    a.I("v_readlane_b32 s90, v7, 0")
    for i, nm in enumerate(names):
        if nm not in _stamp_names: _stamp_names.append(nm)
        a.I(f"v_readlane_b32 s91, v7, {_stamp_names.index(nm)}")
        a.I("s_nop 3")
        a.I("s_sub_u32 s91, s91, s90")
        a.I("v_mov_b32 v2, s91")
        a.I(f"v_mov_b32 v3, {4*(word0+i)}")
        a.I("s_mov_b64 exec, 1")
        a.I(f"global_store_dword v3, v2, s[{S_DBG}:{S_DBG+1}]")
        a.I("s_mov_b64 exec, -1")
    a.L(lb)

def stamp_flush(a, who=None):
    if not STAMPS: return
    a.I("s_waitcnt vmcnt(0)")
    stamp(a, "end")
    if OPT.get("dbgdump"):
        if who == "ffn":
            l2 = lab("d8")
            a.I(f"s_cmp_lg_u32 s{S_W}, 8"); a.I(f"s_cbranch_scc1 {l2}")
            dbg_dump(a, ["E2", "FAok", "KV1", "hready", "ffn2", "attdone", "T2", "p3mm", "end"], 7)
            a.L(l2)
        elif who == "attn":
            l2 = lab("d0")
            a.I(f"s_and_b32 s91, s{S_W}, 3"); a.I("s_cmp_lg_u32 s91, 0"); a.I(f"s_cbranch_scc1 {l2}")
            a.I(f"s_cmp_ge_u32 s{S_W}, 4"); a.I(f"s_cbranch_scc1 {l2}")
            dbg_dump(a, ["karg", "B0", "qloop", "floop", "kvok", "aloop"], 1)
            a.L(l2)
    a.I(f"s_add_u32 s96, s{S_WS}, {STAMP_OFF}")
    a.I(f"s_addc_u32 s97, s{S_WS+1}, 0")
    a.I("s_mul_i32 s98, s2, 12")
    a.I(f"s_add_u32 s98, s98, s{S_W}")
    a.I("s_lshl_b32 s98, s98, 9")
    a.I("v_lshlrev_b32 v2, 2, v1")
    a.I("v_add_u32 v2, s98, v2")
    a.I("s_mov_b64 exec, -1")
    a.I("global_store_dword v2, v6, s[96:97]")
    a.I("global_store_dword v2, v7, s[96:97] offset:256")
    a.I("s_waitcnt vmcnt(0)")

def tr_lane_addr(a, dst, lane, tmp, tmp2, hrows, pitch):
    a.I(f"v_bfe_u32 v{tmp}, v{lane}, 2, 2")
    a.I(f"v_lshrrev_b32 v{tmp2}, 5, v{lane}")
    a.I(f"v_mul_u32_u24 v{tmp2}, {hrows}, v{tmp2}")
    a.I(f"v_add_u32 v{tmp}, v{tmp}, v{tmp2}")
    a.I(f"v_mul_u32_u24 v{dst}, {pitch}, v{tmp}")
    a.I(f"v_bfe_u32 v{tmp}, v{lane}, 4, 1")
    a.I(f"v_lshlrev_b32 v{tmp}, 1, v{tmp}")
    a.I(f"v_bfe_u32 v{tmp2}, v{lane}, 1, 1")
    a.I(f"v_add_u32 v{tmp}, v{tmp}, v{tmp2}")
    a.I(f"v_bfe_u32 v{tmp2}, v{lane}, 3, 1")
    a.I(f"v_lshlrev_b32 v{tmp2}, 2, v{tmp2}")
    a.I(f"v_xor_b32 v{tmp}, v{tmp}, v{tmp2}")
    a.I(f"v_lshl_add_u32 v{dst}, v{tmp}, 4, v{dst}")
    a.I(f"v_and_b32 v{tmp}, 1, v{lane}")
    a.I(f"v_lshl_add_u32 v{dst}, v{tmp}, 3, v{dst}")

def dma_w_lane_off(a, dst, lane, tmp, tmp2, pitch):
    a.I(f"v_lshrrev_b32 v{tmp}, 3, v{lane}")
    a.I(f"v_mul_u32_u24 v{dst}, {pitch}, v{tmp}")
    a.I(f"v_bfe_u32 v{tmp}, v{lane}, 4, 1")
    a.I(f"v_lshlrev_b32 v{tmp}, 2, v{tmp}")
    a.I(f"v_and_b32 v{tmp2}, 7, v{lane}")
    a.I(f"v_xor_b32 v{tmp}, v{tmp}, v{tmp2}")
    a.I(f"v_lshl_add_u32 v{dst}, v{tmp}, 4, v{dst}")

_lab = [0]
def lab(p):
    _lab[0] += 1
    return f"L_{p}{_lab[0]}"

def poll(a, srd_reg, nlanes, voff, vtmp, soff, slp=1):
    l0, l1 = lab("poll"), lab("polld")
    if nlanes < 64:
        a.I(f"s_mov_b32 exec_lo, {hex((1 << nlanes) - 1)}")
        a.I("s_mov_b32 exec_hi, 0")
    a.I("s_mov_b32 s50, 0x40000")
    a.L(l0)
    a.I(f"buffer_load_dword v{vtmp}, v{voff}, {S4(srd_reg)}, {soff} offen sc1")
    a.I("s_waitcnt vmcnt(0)")
    a.I(f"v_cmp_ne_u32 vcc, s{S_NONCE}, v{vtmp}")
    a.I(f"s_cbranch_vccz {l1}")
    a.I("s_sub_u32 s50, s50, 1")
    a.I("s_cmp_eq_u32 s50, 0")
    a.I(f"s_cbranch_scc1 {l1}")
    a.I(f"s_sleep {slp}")
    a.I(f"s_branch {l0}")
    a.L(l1)
    a.I("s_mov_b64 exec, -1")

def lds_spin(a, addr, target, vaddr, vtmp, slp=1):
    l0, l1 = lab("spin"), lab("spind")
    a.I(f"v_mov_b32 v{vaddr}, {addr}")
    a.I("s_mov_b32 s50, 0x400000")
    a.L(l0)
    a.I(f"ds_read_b32 v{vtmp}, v{vaddr}")
    a.I("s_waitcnt lgkmcnt(0)")
    a.I(f"v_readfirstlane_b32 s51, v{vtmp}")
    a.I("s_sub_u32 s50, s50, 1")
    a.I(f"s_cmp_ge_u32 s51, {target}")
    a.I(f"s_cbranch_scc1 {l1}")
    a.I("s_cmp_eq_u32 s50, 0")
    a.I(f"s_cbranch_scc1 {l1}")
    a.I(f"s_sleep {slp}")
    a.I(f"s_branch {l0}")
    a.L(l1)

def lds_add1(a, addr, vaddr, vtmp):
    a.I(f"v_mov_b32 v{vaddr}, {addr}")
    a.I(f"v_mov_b32 v{vtmp}, 1")
    a.I("s_mov_b64 exec, 1")
    a.I(f"ds_add_u32 v{vaddr}, v{vtmp}")
    a.I("s_mov_b64 exec, -1")

def flag_store(a, soff, v0_, v1_):
    a.I(f"v_mov_b32 v{v0_}, s{S_NONCE}")
    a.I(f"v_mov_b32 v{v1_}, 0")
    a.I("s_mov_b64 exec, 1")
    a.I(f"buffer_store_dword v{v0_}, v{v1_}, {S4(RC)}, {soff} offen sc1")
    a.I("s_mov_b64 exec, -1")

def prologue(a):
    a.raw(f".globl {KN}\n.p2align 8\n.type {KN},@function\n{KN}:")
    if STAMPS:
        a.I("s_memrealtime s[94:95]")
        a.I("s_memtime s[92:93]")
    a.I("s_cmp_ge_u32 s2, 256")
    a.I("s_cbranch_scc1 L_end")
    a.I("s_load_dwordx4 s[4:7], s[0:1], 0")
    a.I("s_load_dwordx2 s[8:9], s[0:1], 16")
    a.I("s_load_dwordx4 s[12:15], s[0:1], 32")
    a.I("s_load_dwordx4 s[16:19], s[0:1], 48")
    a.I("s_load_dwordx4 s[20:23], s[0:1], 64")
    a.I("s_load_dwordx4 s[24:27], s[0:1], 80")
    a.I("v_lshrrev_b32 v2, 6, v0")
    a.I("v_and_b32 v1, 63, v0")
    a.I(f"v_readfirstlane_b32 s{S_W}, v2")
    if OPT.get("codeearly", 1):
        a.I("s_getpc_b64 s[52:53]")
        a.L("L_pc0")
        a.I(f"s_sub_u32 s52, s52, L_pc0-{KN}")
        a.I("s_subb_u32 s53, s53, 0")
        a.I("v_lshlrev_b32 v3, 7, v0")
        a.I(f"v_min_u32 v3, L_code_end-{KN}-4, v3")
        a.I(f"s_cmp_ge_u32 s{S_W}, 3")
        a.I("s_cbranch_scc1 L_pc1")
        a.I("global_load_dword v31, v3, s[52:53]")
        a.L("L_pc1")
    if STAMPS:
        a.I("v_mov_b32 v6, 0"); a.I("v_mov_b32 v7, 0")
    a.I("s_and_b32 s52, s2, 7")
    a.I("s_lshr_b32 s53, s2, 3")
    if OPT.get("map84"):
        a.I("s_lshr_b32 s54, s52, 1")
        a.I("s_lshl_b32 s54, s54, 3")
        a.I("s_lshr_b32 s55, s53, 2")
        a.I(f"s_add_u32 s{S_RB}, s54, s55")
        a.I("s_and_b32 s54, s52, 1")
        a.I("s_lshl_b32 s54, s54, 2")
        a.I("s_and_b32 s55, s53, 3")
        a.I(f"s_add_u32 s{S_CG}, s54, s55")
    else:
        a.I("s_lshr_b32 s54, s52, 2")
        a.I("s_lshl_b32 s54, s54, 4")
        a.I("s_lshr_b32 s55, s53, 1")
        a.I(f"s_add_u32 s{S_RB}, s54, s55")
        a.I("s_and_b32 s54, s52, 3")
        a.I("s_lshl_b32 s54, s54, 1")
        a.I("s_and_b32 s55, s53, 1")
        a.I(f"s_add_u32 s{S_CG}, s54, s55")
    a.I(f"s_mul_i32 s54, s{S_CG}, 6")
    a.I(f"s_min_u32 s{S_START}, s54, 37")
    a.I(f"s_lshl_b32 s{S_HD}, s52, 2")
    a.I("s_and_b32 s54, s53, 3")
    a.I(f"s_add_u32 s{S_HD}, s{S_HD}, s54")
    a.I(f"s_lshr_b32 s{S_QB}, s2, 5")
    a.I("s_waitcnt lgkmcnt(0)")
    if STAMPS:
        _stamp_names.append("entry")
        a.I("v_writelane_b32 v6, s92, 0")
        a.I("v_writelane_b32 v7, s94, 0")
    stamp(a, "karg")
    a.I(f"s_cmp_ge_u32 s{S_W}, 8")
    a.I("s_cbranch_scc1 L_aux")
    a.I(f"s_cmp_lt_u32 s{S_W}, 4")
    a.I("s_cbranch_scc1 L_cons")

GATEPOS = 3
def producer(a, aux):
    T = "a" if aux else "p"
    if OPT.get("pprio"): a.I(f"s_setprio {OPT['pprio']}")
    a.I(f"s_sub_u32 s67, s{S_W}, 4")
    a.I(f"s_lshl_b32 s54, s{S_RB}, 16")
    srd_off(a, RA, S_AX, "s54", 65536)
    srd(a, RB, S_WQKV, 512*3072)
    a.I("v_lshrrev_b32 v2, 3, v1")
    a.I("s_lshl_b32 s54, s67, 3")
    a.I("v_add_u32 v2, s54, v2")
    a.I("v_lshrrev_b32 v3, 4, v1")
    a.I("s_and_b32 s54, s67, 1")
    a.I("s_lshl_b32 s54, s54, 2")
    a.I("v_add_u32 v3, s54, v3")
    a.I("v_and_b32 v4, 7, v1")
    a.I("v_xor_b32 v3, v3, v4")
    a.I("v_lshlrev_b32 v3, 4, v3")
    a.I("v_lshl_add_u32 v12, v2, 10, v3")
    a.I("s_lshl_b32 s68, s67, 10")
    def woffs(dst, pitch, segshift):
        for j in range(3):
            a.I(f"v_add_u32 v2, {64*j}, v1")
            a.I("v_mul_u32_u24 v3, 171, v2")
            a.I("v_lshrrev_b32 v3, 12, v3")
            a.I("v_mul_u32_u24 v4, 24, v3")
            a.I("v_sub_u32 v2, v2, v4")
            a.I("v_lshrrev_b32 v4, 3, v2")
            a.I("v_and_b32 v2, 7, v2")
            a.I("v_bfe_u32 v5, v3, 1, 1")
            a.I("v_lshlrev_b32 v5, 2, v5")
            a.I("v_xor_b32 v2, v2, v5")
            a.I("v_lshlrev_b32 v2, 4, v2")
            a.I(f"v_mul_u32_u24 v5, {pitch}, v3")
            a.I(f"v_lshl_add_u32 v5, v4, {segshift}, v5")
            a.I(f"v_add_u32 v{dst+j}, v5, v2")
    woffs(13, 3072, 10)
    a.I("s_mul_i32 s69, s67, 3072")
    a.I("s_add_u32 s69, s69, 0x10000")
    a.I(f"s_lshl_b32 s70, s{S_CG}, 7")
    a.I(f"s_mul_i32 s71, s67, {8*3072}")
    a.I("s_add_u32 s70, s70, s71")
    def pre_setup(item):
        k, c = item
        if k == "X":
            a.I(f"s_add_u32 m0, s68, {c*8192}")
            a.I(f"s_movk_i32 s81, {c*128}")
        else:
            a.I(f"s_add_u32 s82, s70, {c*64*3072}" if c < 8 else f"s_add_u32 s82, s71, {(c-8)*64*2752}")
            a.I(f"s_add_u32 m0, s69, {(c&3)*24576}")
    def issue_x(c, done=False):
        if OPT.get("p1noprod"): return
        if not done:
            a.I(f"s_add_u32 m0, s68, {c*8192}")
            a.I(f"s_movk_i32 s81, {c*128}")
        a.I(f"buffer_load_dwordx4 v12, {S4(RA)}, s81 offen lds")
    def issue_w(c, done=False):
        if OPT.get("p1noprod"): return
        if c < 8:
            if not done: a.I(f"s_add_u32 s82, s70, {c*64*3072}")
            vo, R = 13, RB
        else:
            if not done: a.I(f"s_add_u32 s82, s71, {(c-8)*64*2752}")
            vo, R = 16, RC
        for j in range(3):
            if not (done and j == 0):
                a.I(f"s_add_u32 m0, s69, {(c&3)*24576 + j*1024}")
                a.I("s_nop 0")
            a.I(f"buffer_load_dwordx4 v{vo+j}, {S4(R)}, s82 offen lds")
    sched = OPT.get("sched", 0)
    if sched == 0:
        pre = [("X",0),("W",0),("X",1),("W",1),("X",2),("W",2)]
        post = {c: ([("X",c+3)] if c+3 < 8 else []) + ([("W",c+3)] if c+3 < 16 else []) for c in range(16)}
    elif sched == 1:
        pre = [("X",0),("W",0),("X",1),("W",1),("X",2),("W",2),("X",3),("W",3),("X",4),("X",5),("X",6),("X",7)]
        post = {c: ([("W",c+3)] if (c >= 1 and c+3 < 16) else []) for c in range(16)}
    elif sched == 2:
        pre = [("X",0),("W",0),("X",1),("W",1),("X",2),("W",2),("X",3),("W",3)]
        post = {c: ([("W",c+3)] if (c >= 1 and c+3 < 16) else []) for c in range(16)}
        post[0] = [("X",4),("X",5),("X",6),("X",7)]
    fifo = []
    def do(item, done=False):
        k, c = item
        if k == "X":
            if OPT.get("skipx"): fifo.append((item, 0)); return
            issue_x(c, done); fifo.append((item, 1))
        else:
            if OPT.get("skipw") and c < 8: fifo.append((item, 0)); return
            issue_w(c, done); fifo.append((item, 3))
    for it in pre: do(it)
    if OPT.get("pfprod") and not aux:
        a.I(f"s_mov_b32 s89, s{S_W}")
        a.I(f"s_sub_u32 s{S_W}, s{S_W}, 4")
        l2_prefetch(a, 0)
        a.I(f"s_mov_b32 s{S_W}, s89")
        fifo.append(("pf", 2))
    stamp(a, "issued3")
    nside = 0
    if aux:
        nside = aux_side_issue(a)
    srd(a, RC, S_W1, 512*2752)
    if OPT.get("w1perm", 0):
        for j in range(3):
            a.I(f"v_add_u32 v2, {64*j}, v1")
            a.I("v_mul_u32_u24 v3, 171, v2")
            a.I("v_lshrrev_b32 v3, 12, v3")
            a.I("v_mul_u32_u24 v4, 24, v3")
            a.I("v_sub_u32 v2, v2, v4")
            a.I("v_lshrrev_b32 v4, 2, v2")
            a.I("v_and_b32 v2, 3, v2")
            a.I("v_bfe_u32 v5, v3, 1, 1")
            a.I("v_xor_b32 v4, v4, v5")
            a.I("v_add_u32 v5, 1, v4")
            a.I("v_cmp_eq_u32 vcc, 4, v4")
            a.I("s_nop 1")
            a.I("v_cndmask_b32_e64 v5, v5, 0, vcc")
            a.I("v_cmp_eq_u32 vcc, 5, v4")
            a.I("s_nop 1")
            a.I("v_cndmask_b32_e64 v5, v5, 5, vcc")
            a.I(f"v_add_u32 v19, s{S_START}, v3")
            a.I("v_and_b32 v19, 1, v19")
            a.I("v_cmp_eq_u32 vcc, 1, v19")
            a.I("s_nop 1")
            a.I("v_cndmask_b32 v4, v4, v5, vcc")
            a.I("v_lshlrev_b32 v4, 6, v4")
            a.I("v_lshl_add_u32 v4, v2, 4, v4")
            a.I("v_mul_u32_u24 v5, 2752, v3")
            a.I(f"v_add_u32 v{16+j}, v5, v4")
    else:
        woffs(16, 2752, 7)
    a.I(f"s_lshl_b32 s71, s{S_START}, 6")
    a.I(f"s_mul_i32 s72, s67, {8*2752}")
    a.I("s_add_u32 s71, s71, s72")
    fap = OPT.get("fapos", 2)
    assert fap >= 0
    for c in range(16):
        need = [("W", c)] + ([("X", c)] if c < 8 else [])
        idx = max(i for i, (it, _) in enumerate(fifo) if it in need)
        allow = sum(k for _, k in fifo[idx+1:])
        if c == 0 and STAMPS and OPT.get("fine"): a.I("s_mov_b32 s87, 24")
        stamp_dyn(a)
        early = OPT.get("early", 1) and not STAMPS and len(post[c]) > 0 and not OPT.get("p1noprod")
        if early:
            pre_setup(post[c][0])
        a.I(f"s_waitcnt vmcnt({allow})")
        stamp_dyn(a)
        a.I("s_barrier")
        for n_, it in enumerate(post[c]): do(it, early and n_ == 0)
        if aux and c == 2:
            fifo.append(("side", aux_side_loads(a)))
        if aux and c == 6:
            aux_gate(a)
            fifo.append(("g", 1))
        if aux and c == 4:
            fifo.append(("nonce", aux_nonce_issue(a)))
        if aux and c == 10:
            aux_zero_misc(a)
        if aux and c == 8:
            aux_nonce_take(a)
        if aux and c == 12:
            aux_share_nonce(a)
        if aux and c == 15:
            aux_fa_probe(a)
        if aux and c == 9 + fap:
            aux_publish_fa(a)
    a.I("s_barrier")
    if aux:
        aux_after_e1(a)
    else:
        if OPT.get("pprio"): a.I("s_setprio 0")
        a.I("s_branch L_attn")

def glob_w2(a):
    a.I("v_lshlrev_b32 v20, 7, v1")
    srd(a, RC, S_W2, 1376*1024)
    a.I("s_mul_i32 s54, s2, 5504")
    a.I("s_mov_b32 exec_hi, 0xfff")
    a.I(f"buffer_load_dword v24, v20, {S4(RC)}, s54 offen")
    srd(a, RC, S_WO, 512*1024)
    a.I("s_lshl_b32 s54, s2, 11")
    a.I("s_mov_b32 exec_hi, 0")
    a.I("s_mov_b32 exec_lo, 0xffff")
    a.I(f"buffer_load_dword v25, v20, {S4(RC)}, s54 offen")
    a.I("s_mov_b64 exec, -1")

def l2_prefetch(a, part):
    a.I("s_and_b32 s52, s2, 7")
    a.I("s_lshr_b32 s53, s2, 3")
    a.I("s_lshl_b32 s54, s53, 4")
    a.I(f"s_lshl_b32 s55, s{S_W}, 2")
    a.I("s_add_u32 s56, s54, s55")
    if OPT.get("pfglob", 1) and part == 0:
        lg = lab("pfg")
        G64 = OPT.get("pg64", 0)
        a.I(f"v_lshlrev_b32 v20, {6 if G64 else 7}, v1")
        def touch(nbytes):
            step = 64 if G64 else 128
            lanes = -(-nbytes // step)
            off = 0
            while lanes > 0:
                n = min(lanes, 64)
                if n < 64:
                    a.I(f"s_mov_b32 exec_lo, {hex((1 << min(n, 32)) - 1)}")
                    a.I(f"s_mov_b32 exec_hi, {hex((1 << max(n - 32, 0)) - 1)}")
                a.I(f"buffer_load_dword v24, v20, {S4(RC)}, s54 offen")
                if n < 64: a.I("s_mov_b64 exec, -1")
                lanes -= n
                if lanes > 0: a.I(f"s_add_u32 s54, s54, {64*step}")
        a.I(f"s_cmp_eq_u32 s{S_W}, 0")
        a.I(f"s_cbranch_scc0 {lg}a")
        srd(a, RC, S_AX, 2*MB)
        a.I("s_lshl_b32 s54, s2, 13")
        touch(8192)
        a.I(f"s_branch {lg}d")
        a.L(f"{lg}a")
        a.I(f"s_cmp_eq_u32 s{S_W}, 1")
        a.I(f"s_cbranch_scc0 {lg}b")
        srd(a, RC, S_WQKV, 512*3072)
        a.I("s_mul_i32 s54, s2, 6144")
        touch(6144)
        a.I(f"s_branch {lg}d")
        a.L(f"{lg}b")
        a.I(f"s_cmp_eq_u32 s{S_W}, {99 if OPT.get('w1late') else 2}")
        a.I(f"s_cbranch_scc0 {lg}c")
        srd(a, RC, S_W1, 512*2752)
        a.I("s_mul_i32 s54, s2, 5504")
        touch(5504)
        a.I(f"s_branch {lg}d")
        a.L(f"{lg}c")
        if OPT.get("pfw2") == 1:
            glob_w2(a)
        if OPT.get("tlb"):
            offs = [0, 2*MB + 4096, 4*MB + 8192, 6*MB + 12288, 11*MB + 512*1024, 12*MB + 16384, 14*MB, 16*MB + 4096]
            a.I("v_mov_b32 v21, 0")
            for i, o in enumerate(offs):
                a.I(f"v_mov_b32 v22, {o}")
                a.I(f"v_cmp_eq_u32 vcc, {i}, v1")
                a.I("s_nop 1")
                a.I("v_cndmask_b32 v21, v21, v22, vcc")
            a.I("s_mov_b32 exec_lo, 0xff")
            a.I("s_mov_b32 exec_hi, 0")
            a.I(f"global_load_dword v25, v21, s[{S_WS}:{S_WS+1}]")
            a.I("s_mov_b64 exec, -1")
        a.L(f"{lg}d")
        if OPT.get("pfglob", 1) == 1: return
        OPT["nopfx"] = 1 if OPT["pfglob"] == 2 else 0
    if OPT.get("map84"):
        if part == 0:
            srd(a, RC, S_AX, 2*MB)
            a.I("s_lshr_b32 s54, s52, 1")
            a.I("s_lshl_b32 s54, s54, 9")
            a.I("s_add_u32 s54, s54, s56")
            a.I("s_lshl_b32 s54, s54, 10")
            a.I("v_lshlrev_b32 v20, 7, v1")
            a.I("s_mov_b32 exec_hi, 0")
            a.I(f"buffer_load_dword v24, v20, {S4(RC)}, s54 offen")
            a.I("s_mov_b64 exec, -1")
            srd(a, RC, S_WQKV, 512*3072)
            a.I("s_mul_i32 s54, s56, 3072")
            a.I("s_and_b32 s55, s52, 1")
            a.I("s_lshl_b32 s55, s55, 9")
            a.I("s_add_u32 s54, s54, s55")
            a.I("v_lshrrev_b32 v21, 4, v1")
            a.I("v_mul_u32_u24 v21, 3072, v21")
            a.I("v_bfe_u32 v22, v1, 2, 2")
            a.I("v_min_u32 v22, 2, v22")
            a.I("v_lshl_add_u32 v21, v22, 10, v21")
            a.I("v_and_b32 v22, 3, v1")
            a.I("v_lshl_add_u32 v21, v22, 7, v21")
            a.I(f"buffer_load_dword v25, v21, {S4(RC)}, s54 offen")
        else:
            srd(a, RC, S_W1, 512*2752)
            a.I("s_and_b32 s55, s52, 1")
            a.I("s_mul_i32 s55, s55, 1536")
            a.I("s_mul_i32 s54, s56, 2752")
            a.I("s_add_u32 s54, s54, s55")
            a.I("v_lshrrev_b32 v21, 4, v1")
            a.I("v_mul_u32_u24 v21, 2752, v21")
            a.I("v_and_b32 v22, 15, v1")
            a.I("v_min_u32 v22, 12, v22")
            a.I("v_lshl_add_u32 v21, v22, 7, v21")
            a.I(f"buffer_load_dword v26, v21, {S4(RC)}, s54 offen")
        return
    if part == 2:
        a.I(f"s_cmp_lg_u32 s{S_W}, 0")
        a.I("s_cbranch_scc1 L_pf2")
        srd(a, RC, S_WQKV, 512*3072)
        a.I("s_lshl_b32 s54, s53, 3")
        a.I("s_add_u32 s54, s54, 256")
        a.I("s_mul_i32 s54, s54, 3072")
        a.I("s_and_b32 s55, s52, 3")
        a.I("s_lshl_b32 s55, s55, 8")
        a.I("s_add_u32 s54, s54, s55")
        a.I("v_lshrrev_b32 v21, 3, v1")
        a.I("v_mul_u32_u24 v21, 3072, v21")
        a.I("v_bfe_u32 v22, v1, 1, 2")
        a.I("v_min_u32 v22, 2, v22")
        a.I("v_lshl_add_u32 v21, v22, 10, v21")
        a.I("v_and_b32 v22, 1, v1")
        a.I("v_lshl_add_u32 v21, v22, 7, v21")
        a.I(f"buffer_load_dword v25, v21, {S4(RC)}, s54 offen")
        a.L("L_pf2")
    elif part == 0:
        G = OPT.get("pfg", 128)
        sh = {128: 7, 64: 6, 32: 5}[G]
        srd(a, RC, S_AX, 2*MB)
        a.I("s_lshr_b32 s54, s52, 2")
        a.I("s_lshl_b32 s54, s54, 10")
        a.I("s_lshl_b32 s55, s53, 5")
        a.I("s_add_u32 s54, s54, s55")
        a.I(f"s_lshl_b32 s55, s{S_W}, 3")
        a.I("s_add_u32 s54, s54, s55")
        a.I("s_lshl_b32 s54, s54, 10")
        if OPT.get("pftrim", 0):
            a.I("v_and_b32 v20, 7, v1")
            a.I("v_max_u32 v20, 3, v20")
            a.I("v_lshlrev_b32 v20, 7, v20")
            a.I("v_lshrrev_b32 v21, 3, v1")
            a.I("v_lshl_add_u32 v20, v21, 10, v20")
        else:
            a.I(f"v_lshlrev_b32 v20, {sh}, v1")
        for i in range(0 if OPT.get("nopfx") else 8192 // (64*G)):
            a.I(f"buffer_load_dword v24, v20, {S4(RC)}, s54 offen")
            a.I(f"s_add_u32 s54, s54, {64*G}")
        if OPT.get("pftrim", 0):
            a._pfl = lab("pfs")
            a.I("s_cmp_lt_u32 s53, 12")
            a.I(f"s_cbranch_scc1 {a._pfl}")
        srd(a, RC, S_WQKV, 512*3072)
        a.I("s_mul_i32 s54, s56, 3072")
        a.I("s_and_b32 s55, s52, 3")
        a.I("s_lshl_b32 s55, s55, 8")
        a.I("s_add_u32 s54, s54, s55")
        per = 256 // G
        a.I("v_lshrrev_b32 v21, 4, v1")
        a.I("v_mul_u32_u24 v21, 3072, v21")
        a.I("v_and_b32 v22, 15, v1")
        if G == 64:
            a.I("v_lshrrev_b32 v23, 2, v22")
            a.I("v_min_u32 v23, 2, v23")
            a.I("v_lshl_add_u32 v21, v23, 10, v21")
            a.I("v_and_b32 v22, 3, v22")
            a.I("v_lshl_add_u32 v21, v22, 6, v21")
            a.I(f"buffer_load_dword v25, v21, {S4(RC)}, s54 offen")
        elif G == 32:
            a.I("v_lshrrev_b32 v23, 3, v22")
            a.I("v_lshl_add_u32 v21, v23, 10, v21")
            a.I("v_and_b32 v22, 7, v22")
            a.I("v_lshl_add_u32 v21, v22, 5, v21")
            a.I(f"buffer_load_dword v25, v21, {S4(RC)}, s54 offen")
            a.I(f"buffer_load_dword v25, v21, {S4(RC)}, s54 offen offset:2048")
        else:
            a.I("v_lshrrev_b32 v23, 1, v22")
            a.I("v_min_u32 v23, 2, v23")
            a.I("v_lshl_add_u32 v21, v23, 10, v21")
            a.I("v_and_b32 v22, 1, v22")
            a.I("v_lshl_add_u32 v21, v22, 7, v21")
            a.I(f"buffer_load_dword v25, v21, {S4(RC)}, s54 offen")
        if OPT.get("pftrim", 0):
            a.L(a._pfl)
    else:
        a.I(f"s_cmp_ge_u32 s{S_W}, 2")
        a.I("s_cbranch_scc1 L_pf1")
        srd(a, RC, S_W1, 512*2752)
        a.I("s_and_b32 s55, s52, 3")
        a.I("s_mul_i32 s55, s55, 12")
        a.I("s_min_u32 s55, s55, 31")
        a.I("s_lshl_b32 s55, s55, 6")
        a.I("s_lshl_b32 s54, s53, 4")
        a.I(f"s_lshl_b32 s56, s{S_W}, 3")
        a.I("s_add_u32 s54, s54, s56")
        a.I("s_mul_i32 s54, s54, 2752")
        a.I("s_add_u32 s54, s54, s55")
        a.I("v_lshrrev_b32 v21, 3, v1")
        a.I("v_mul_u32_u24 v21, 2752, v21")
        a.I("v_and_b32 v22, 7, v1")
        a.I("v_lshl_add_u32 v21, v22, 7, v21")
        a.I(f"buffer_load_dword v26, v21, {S4(RC)}, s54 offen")
        a.L("L_pf1")

def consumer(a):
    a.L("L_cons")
    H, XA, WA, ACC, B1, FA, FB = 2, 8, 12, 32, 80, 104, 136
    if not OPT.get("nopf") and not OPT.get("pflate") and not OPT.get("pfprod"):
        l2_prefetch(a, OPT.get("pfmode", 0))
    a.I(f"v_lshrrev_b32 v{H}, 5, v1")
    a.I(f"s_and_b32 s63, s{S_W}, 1")
    a.I(f"s_lshr_b32 s64, s{S_W}, 1")
    srd(a, RD, S_B1, 2752)
    a.I(f"s_add_u32 s54, s{S_START}, s63")
    a.I("s_lshl_b32 s54, s54, 6")
    a.I(f"v_lshlrev_b32 v3, 3, v{H}")
    for s in range(3):
        for q in range(4):
            r = B1 + (s*4+q)*2
            a.I(f"buffer_load_dwordx2 v[{r}:{r+1}], v3, {S4(RD)}, s54 offen offset:{s*128+q*16}")
    for i in range(48):
        a.I(f"v_mov_b32 v{ACC+i}, 0")
    a.I("v_and_b32 v16, 31, v1")
    a.I("v_bfe_u32 v17, v1, 1, 3")
    a.I("s_lshl_b32 s54, s64, 5")
    a.I("v_add_u32 v16, s54, v16")
    a.I("v_lshlrev_b32 v16, 7, v16")
    a.I(f"v_xor_b32 v17, v17, v{H}")
    for ks in range(4):
        a.I(f"v_xor_b32 v18, {2*ks}, v17")
        a.I(f"v_lshl_add_u32 v{XA+ks}, v18, 4, v16")
    tr_lane_addr(a, WA, 1, 16, 17, 8, 384)
    a.I("s_lshl_b32 s54, s63, 6")
    a.I(f"v_xor_b32 v{WA}, s54, v{WA}")
    a.I(f"v_add_u32 v{WA}, 0x10000, v{WA}")
    a.I(f"v_add_u32 v{WA+1}, 49152, v{WA}")
    WF1 = [14, 15, 28, 29, 30, 31]
    if OPT.get("w1perm", 0):
        a.I("v_bfe_u32 v16, v1, 2, 2")
        a.I(f"v_lshl_add_u32 v17, v{H}, 3, v16")
        a.I("v_mul_u32_u24 v17, 384, v17")
        a.I("v_bfe_u32 v18, v1, 4, 1")
        a.I("v_lshlrev_b32 v18, 1, v18")
        a.I("v_bfe_u32 v19, v1, 1, 1")
        a.I("v_add_u32 v18, v18, v19")
        a.I("v_lshl_add_u32 v17, v18, 4, v17")
        a.I("v_and_b32 v18, 1, v1")
        a.I("v_lshl_add_u32 v17, v18, 3, v17")
        a.I("v_add_u32 v17, 0x10000, v17")
        a.I(f"v_add_u32 v18, s{S_START}, v16")
        a.I("v_and_b32 v18, 1, v18")
        a.I("v_cmp_eq_u32 vcc, 1, v18")
        a.I("v_bfe_u32 v19, v1, 3, 1")
        inv = [4, 0, 1, 2, 3, 5]
        for s_ in range(3):
            a.I(f"s_cmp_eq_u32 s63, 0")
            a.I(f"s_cselect_b32 s54, {2*s_}, {2*s_+1}")
            a.I(f"s_cselect_b32 s55, {inv[2*s_]}, {inv[2*s_+1]}")
            a.I(f"v_mov_b32 v26, s54")
            a.I(f"v_mov_b32 v27, s55")
            a.I(f"v_cndmask_b32 v26, v26, v27, vcc")
            a.I(f"v_xor_b32 v26, v26, v19")
            a.I(f"v_lshl_add_u32 v{WF1[s_]}, v26, 6, v17")
            a.I(f"v_add_u32 v{WF1[3+s_]}, 49152, v{WF1[s_]}")

    def reads(b, G, F, qkv=True):
        out = []
        if OPT.get("p1nocons"): return ["s_nop 0"]
        wv = WA + (b >> 1)
        for l in range(2):
            ks = 2*G + l
            out.append(f"ds_read_b128 {vr(F+4*l,4)}, v{XA+ks} offset:{b*8192}")
            for s in range(3):
                for rd in range(2):
                    if qkv or not OPT.get("w1perm", 0):
                        out.append(f"ds_read_b64_tr_b16 {vr(F+8+12*l+4*s+2*rd,2)}, v{wv} offset:{(b&1)*24576 + ks*6144 + rd*1536 + s*128}")
                    else:
                        out.append(f"ds_read_b64_tr_b16 {vr(F+8+12*l+4*s+2*rd,2)}, v{WF1[3*(b>>1)+s]} offset:{(b&1)*24576 + ks*6144 + rd*1536}")
        return out
    def mfmas(F, qkv):
        out = []
        if OPT.get("p1nocons") or OPT.get("p1nomfma"): return ["s_nop 0"]
        for l in range(2):
            for s in range(3):
                X, W = F+4*l, F+8+12*l+4*s
                out.append(MF(ACC+16*s, X, W, ACC+16*s) if (qkv and s == 2) else MF(ACC+16*s, W, X, ACC+16*s))
        return out
    def inter(mf, rd):
        out = []
        per = OPT.get("iper", [4, 4, 3, 3, 0, 0])
        if len(mf) != 6: return mf + rd
        k = 0
        for i, m in enumerate(mf):
            out.append(m)
            out += rd[k:k+per[i]]
            k += per[i]
        assert k >= len(rd)
        return out
    def stage_loop(tag, qkv):
        a.I("s_mov_b32 s65, 0x8000")
        a.L(f"L_loop_{tag}")
        fap = OPT.get("fapos", 2)
        for b in range(4):
            a.I("s_waitcnt lgkmcnt(0)")
            a.I(J(inter(mfmas(FA, qkv), reads(b, 1, FB, qkv))))
            if (not qkv) and b == (fap & 3):
                if fap >= 4:
                    a.I("s_cmp_lt_i32 s65, 0")
                    a.I(f"s_cbranch_scc0 L_nodrain")
                a.I("s_waitcnt vmcnt(0)")
                if fap >= 4: a.L("L_nodrain")
            a.I("s_waitcnt lgkmcnt(0)")
            if b == 3:
                if not qkv:
                    a.I("s_cmp_lt_i32 s65, 0")
                    a.I(f"s_cbranch_scc1 L_last_{tag}")
                for ks in range(4):
                    a.I(f"v_add_u32 v{XA+ks}, s65, v{XA+ks}")
            stamp_dyn(a)
            a.I("s_barrier")
            stamp_dyn(a)
            if qkv and b == 3:
                a.I("s_cmp_lt_i32 s65, 0")
                a.I("s_cbranch_scc1 L_qtail")
            a.I(J(inter(mfmas(FB, qkv), reads((b+1) % 4, 0, FA, qkv))))
        if qkv:
            a.I("s_mov_b32 s65, 0xffff8000")
            a.I(f"s_branch L_loop_{tag}")
            a.L("L_qtail")
            a.I(J(inter(mfmas(FB, qkv), reads(0, 0, FA, False))))
        else:
            a.I("s_mov_b32 s65, 0xffff8000")
            a.I(f"s_branch L_loop_{tag}")
        if not qkv:
            a.L(f"L_last_{tag}")
            a.I(J(mfmas(FB, qkv)))

    if OPT.get("pflate"):
        for i in range(OPT["pflate"]):
            a.I("s_sleep 8")
        l2_prefetch(a, 0)
    if OPT.get("pfw1early"):
        l2_prefetch(a, 1)
    a.I("s_barrier")
    stamp(a, "B0")
    if STAMPS and OPT.get("fine"): a.I("s_mov_b32 s87, 24")
    if not OPT.get("nopf") and not OPT.get("pfw1early") and not OPT.get("nopfw1", 1):
        l2_prefetch(a, 1)
    if OPT.get("w1late"):
        lw1 = lab("pw1")
        a.I(f"s_cmp_lg_u32 s{S_W}, 2")
        a.I(f"s_cbranch_scc1 {lw1}")
        a.I("v_lshlrev_b32 v20, 7, v1")
        srd(a, RC, S_W1, 512*2752)
        a.I("s_mul_i32 s54, s2, 5504")
        a.I("s_mov_b32 exec_hi, 0xfff")
        a.I(f"buffer_load_dword v24, v20, {S4(RC)}, s54 offen")
        a.I("s_mov_b64 exec, -1")
        a.L(lw1)
    if OPT.get("pfw2") == 2:
        lw = lab("pw2")
        a.I(f"s_cmp_lg_u32 s{S_W}, 3")
        a.I(f"s_cbranch_scc1 {lw}")
        glob_w2(a)
        a.L(lw)
    a.I(J(reads(0, 0, FA)))
    stage_loop("q", True)
    stamp(a, "qloop")
    srd(a, RA, S_WS, VF + 2*MB)
    a.I(f"s_lshl_b32 s54, s{S_RB}, 1")
    a.I("s_add_u32 s54, s54, s64")
    a.I(f"s_lshl_b32 s55, s{S_CG}, 2")
    a.I("s_lshl_b32 s56, s63, 1")
    a.I("s_add_u32 s55, s55, s56")
    a.I("s_lshl_b32 s55, s55, 6")
    a.I("s_add_u32 s54, s54, s55")
    a.I("s_lshl_b32 s54, s54, 10")
    a.I("v_lshlrev_b32 v3, 4, v1")
    a.I("v_bfe_u32 v4, v1, 4, 1")
    a.I("v_lshlrev_b32 v4, 16, v4")
    a.I(f"v_lshl_add_u32 v4, v{H}, 8, v4")
    a.I("v_and_b32 v5, 15, v1")
    a.I("v_lshl_add_u32 v4, v5, 4, v4")
    a.I(f"s_mov_b32 s56, {hex(f2u(QSCALE))}")
    a.I("s_waitcnt vmcnt(0)")
    a.I("s_nop 4")
    for idx, s in enumerate((1, 2, 0)):
        d = ACC + 16*s
        if s == 0:
            for i in range(16):
                a.I(f"v_mul_f32 v{d+i}, s56, v{d+i}")
        for j in range(8):
            a.I(f"v_cvt_pk_bf16_f32 v{d+j}, v{d+2*j}, v{d+2*j+1}")
        if s < 2:
            for hh in range(2):
                a.I(f"s_add_u32 s55, s54, {(KF if s else QF) + hh*65536}")
                a.I(f"buffer_store_dwordx4 {vr(d+4*hh,4)}, v3, {S4(RA)}, s55 offen sc1")
        else:
            a.I(f"s_add_u32 s55, s54, {VF}")
            for u in range(2):
                a.I(f"buffer_store_dwordx4 {vr(d+4*u,4)}, v4, {S4(RA)}, s55 offen offset:{u*512} sc1")
    a.I("s_nop 1")
    for s in range(3):
        for q in range(4):
            r = B1 + (s*4+q)*2
            d = ACC + s*16 + q*4
            a.I(f"v_lshlrev_b32 v{d}, 16, v{r}")
            a.I(f"v_and_b32 v{d+1}, 0xffff0000, v{r}")
            a.I(f"v_lshlrev_b32 v{d+2}, 16, v{r+1}")
            a.I(f"v_and_b32 v{d+3}, 0xffff0000, v{r+1}")
    stage_loop("f", False)
    a.I("s_barrier")
    stamp(a, "floop")
    srd_off(a, RA, S_WS, HF, HF_SIZE)
    a.I(f"s_lshl_b32 s54, s{S_RB}, 1")
    a.I("s_add_u32 s54, s54, s64")
    a.I(f"s_add_u32 s55, s{S_START}, s63")
    a.I("s_lshl_b32 s55, s55, 7")
    a.I("s_add_u32 s54, s54, s55")
    a.I("s_lshl_b32 s54, s54, 10")
    a.I("v_lshlrev_b32 v3, 4, v1")
    a.I("s_nop 4")
    for s in range(3):
        d = ACC + 16*s
        for i in range(16):
            a.I(f"v_max_f32 v{d+i}, 0, v{d+i}")
        for i in range(16):
            a.I(f"v_mul_f32 v{d+i}, v{d+i}, v{d+i}")
        for j in range(8):
            a.I(f"v_cvt_pk_bf16_f32 v{d+j}, v{d+2*j}, v{d+2*j+1}")
        for uu in range(2):
            a.I(f"s_add_u32 s55, s54, {(4*s+uu)*65536}")
            a.I(f"buffer_store_dwordx4 {vr(d+4*uu,4)}, v3, {S4(RA)}, s55 offen sc1")
    a.I("s_nop 1")
    a.I("s_branch L_attn")

def aux_side_issue(a):
    a.I("s_sub_u32 s66, s67, 4")
    a.I(f"s_lshl_b32 s54, s2, 2")
    a.I("s_or_b32 s54, s54, s66")
    a.I("s_cmp_lg_u32 s54, 0")
    a.I("s_cbranch_scc1 L_aux1")
    srd(a, RD, S_DBG, 256)
    a.I("s_memrealtime s[54:55]")
    a.I("s_waitcnt lgkmcnt(0)")
    a.I("s_or_b32 s85, s54, 1")
    a.I("v_mov_b32 v8, s85")
    a.I("v_mov_b32 v10, 0")
    a.I("s_mov_b64 exec, 1")
    a.I(f"buffer_store_dword v8, v10, {S4(RD)}, 0 offen sc1")
    a.I("s_mov_b64 exec, -1")
    a.L("L_aux1")
    a.I(f"s_lshl_b32 s54, s{S_RB}, 6")
    a.I(f"s_lshl_b32 s55, s{S_CG}, 3")
    a.I("s_add_u32 s54, s54, s55")
    a.I("s_lshl_b32 s55, s66, 1")
    a.I("s_add_u32 s86, s54, s55")
    return 0

def aux_side_loads(a):
    a.I("s_lshl_b32 s54, s86, 10")
    srd_off(a, RD, S_AX, "s54", 2048)
    a.I("v_and_b32 v2, 31, v1")
    a.I("v_lshlrev_b32 v2, 5, v2")
    a.I("v_lshrrev_b32 v3, 5, v1")
    a.I("v_lshl_add_u32 v4, v3, 10, v2")
    for i in range(2):
        a.I(f"buffer_load_dwordx4 {vr(32+4*i,4)}, v4, {S4(RD)}, 0 offen offset:{16*i}")
    srd(a, RD, S_GW, 1024)
    for i in range(2):
        a.I(f"buffer_load_dwordx4 {vr(40+4*i,4)}, v2, {S4(RD)}, 0 offen offset:{16*i}")
    n = 4
    if OPT.get("codepf", 1) and not OPT.get("codeearly", 1):
        a.I("s_getpc_b64 s[52:53]")
        a.L("L_pc")
        a.I(f"s_sub_u32 s52, s52, L_pc-{KN}")
        a.I("s_subb_u32 s53, s53, 0")
        a.I("s_mul_i32 s54, s66, 6144")
        a.I("v_lshlrev_b32 v5, 7, v1")
        a.I("v_add_u32 v5, s54, v5")
        a.I(f"v_min_u32 v5, L_code_end-{KN}-4, v5")
        a.I("s_mov_b32 exec_hi, 0xffff")
        a.I("global_load_dword v116, v5, s[52:53]")
        a.I("s_mov_b64 exec, -1")
        n += 1
    return n

def aux_nonce_issue(a):
    srd(a, RD, S_DBG, 256)
    a.I("v_mov_b32 v10, 0")
    a.I(f"buffer_load_dword v8, v10, {S4(RD)}, 0 offen sc1")
    return 1

def aux_nonce_take(a):
    a.I(f"v_readfirstlane_b32 s{S_NONCE}, v8")
    a.I("s_mov_b32 s50, 0x40000")
    a.L("L_nonce")
    a.I(f"s_cmp_lg_u32 s{S_NONCE}, 0")
    a.I("s_cbranch_scc1 L_nonce_ok")
    a.I("s_sub_u32 s50, s50, 1")
    a.I("s_cmp_eq_u32 s50, 0")
    a.I("s_cbranch_scc1 L_nonce_ok")
    srd(a, RD, S_DBG, 256)
    a.I(f"buffer_load_dword v8, v10, {S4(RD)}, 0 offen sc1")
    a.I("s_waitcnt vmcnt(0)")
    a.I(f"v_readfirstlane_b32 s{S_NONCE}, v8")
    a.I("s_branch L_nonce")
    a.L("L_nonce_ok")

def aux_gate(a):
    if OPT.get("p1noprod"): a.I("s_waitcnt vmcnt(0)")
    a.I("v_mov_b32 v24, 0")
    for i in range(8):
        a.I(f"v_dot2c_f32_bf16 v24, v{32+i}, v{40+i}")
    a.I("s_nop 3")
    for sh in (1, 2, 4, 8):
        a.I(f"v_add_f32_dpp v24, v24, v24 row_shr:{sh} row_mask:0xf bank_mask:0xf")
        a.I("s_nop 1")
    a.I("v_add_f32_dpp v24, v24, v24 row_bcast:15 row_mask:0xa bank_mask:0xf")
    a.I("s_nop 1")
    a.I("v_cvt_pk_bf16_f32 v24, v24, v24")
    a.I("v_and_b32 v24, 0xffff0000, v24")
    a.I(f"v_mul_f32 v24, {hex(f2u(-1.4426950408889634))}, v24")
    a.I("v_exp_f32 v24, v24")
    a.I("s_nop 0")
    a.I("v_add_f32 v24, 1.0, v24")
    a.I("v_rcp_f32 v24, v24")
    a.I("s_nop 0")
    a.I("v_cvt_pk_bf16_f32 v24, v24, v24")
    a.I("v_and_b32 v24, 0xffff0000, v24")
    srd_off(a, RD, S_WS, GO, 8192)
    a.I("s_lshl_b32 s54, s86, 2")
    a.I("v_lshrrev_b32 v3, 5, v1")
    a.I("v_lshlrev_b32 v3, 2, v3")
    a.I("s_mov_b32 s52, 0x80000000")
    a.I("s_mov_b32 s53, 0x80000000")
    a.I("s_mov_b64 exec, s[52:53]")
    a.I(f"buffer_store_dword v24, v3, {S4(RD)}, s54 offen sc1")
    a.I("s_mov_b64 exec, -1")

def aux_publish_fa(a):
    a.I("s_cmp_lg_u32 s66, 0")
    a.I("s_cbranch_scc1 L_aux2")
    srd_off(a, RD, S_WS, FLG, FLG_SIZE)
    a.I(f"s_lshl_b32 s54, s{S_CG}, 7")
    a.I(f"s_lshl_b32 s55, s{S_RB}, 2")
    a.I("s_add_u32 s54, s54, s55")
    a.I(f"s_add_u32 s54, s54, {FA_OFF}")
    a.I(f"v_mov_b32 v8, s{S_NONCE}")
    a.I(f"v_mov_b32 v10, 0")
    a.I("s_mov_b64 exec, 1")
    a.I(f"buffer_store_dword v8, v10, {S4(RD)}, s54 offen sc1")
    a.I("s_mov_b64 exec, -1")
    stamp(a, "FApub")
    a.L("L_aux2")

def aux_zero_misc(a):
    a.I("s_cmp_lg_u32 s66, 1")
    a.I("s_cbranch_scc1 L_aux3")
    a.I(f"v_lshlrev_b32 v10, 2, v1")
    if L_MISC: a.I(f"v_add_u32 v10, {L_MISC}, v10")
    a.I("v_mov_b32 v9, 0")
    a.I("ds_write_b32 v10, v9")
    a.I("s_waitcnt lgkmcnt(0)")
    a.I("v_mov_b32 v10, 0")
    a.L("L_aux3")

def aux_share_nonce(a):
    a.I("s_cmp_lg_u32 s66, 0")
    a.I("s_cbranch_scc1 L_aux4")
    a.I(f"v_mov_b32 v9, {L_MISC + 128}")
    a.I(f"v_mov_b32 v11, s{S_NONCE}")
    a.I("ds_write_b32 v9, v11")
    a.I("s_waitcnt lgkmcnt(0)")
    a.L("L_aux4")

def aux_fa_probe(a):
    srd_off(a, RC, S_WS, FLG, FLG_SIZE)
    a.I(f"s_lshr_b32 s88, s{S_HD}, 2")
    a.I("s_lshl_b32 s88, s88, 7")
    a.I(f"s_add_u32 s88, s88, {FA_OFF}")
    a.I("v_lshlrev_b32 v9, 2, v1")
    a.I("s_mov_b32 exec_hi, 0")
    a.I(f"buffer_load_dword v11, v9, {S4(RC)}, s88 offen sc1")
    a.I("s_mov_b64 exec, -1")

def aux_after_e1(a):
    a.I("s_mov_b32 s67, s66")
    a.I("s_setprio 3")
    stamp(a, "E2")
    a.I("s_mov_b32 exec_hi, 0")
    a.I("s_waitcnt vmcnt(0)")
    a.I(f"v_cmp_ne_u32 vcc, s{S_NONCE}, v11")
    a.I("s_mov_b64 exec, -1")
    a.I("s_cbranch_vccz L_aux5")
    poll(a, RC, 32, 9, 11, "s88", OPT.get("faslp", 2))
    a.L("L_aux5")
    stamp(a, "FAok")
    VL = 4
    a.I(f"v_lshlrev_b32 v{VL}, 4, v1")
    a.I(f"s_lshl_b32 s54, s{S_HD}, 16")
    a.I(f"s_add_u32 s55, s54, {KF}")
    srd_off(a, RA, S_WS, "s55", 65536)
    a.I(f"s_add_u32 s55, s54, {VF}")
    srd_off(a, RB, S_WS, "s55", 65536)
    a.I(f"s_add_u32 s55, s54, {QF}")
    srd_off(a, RD, S_WS, "s55", 65536)
    a.I(f"s_lshl_b32 s54, s{S_QB}, 3")
    a.I("s_lshl_b32 s55, s67, 1")
    a.I("s_add_u32 s54, s54, s55")
    a.I("s_lshl_b32 s54, s54, 10")
    a.I("s_lshl_b32 s55, s67, 11")
    a.I(f"s_add_u32 s55, s55, {L_RING}")
    for t in range(2):
        a.I(f"s_add_u32 m0, s55, {t*1024}")
        a.I(f"s_add_u32 s56, s54, {t*1024}")
        a.I(f"buffer_load_dwordx4 v{VL}, {S4(RD)}, s56 offen sc1 lds")
    a.I("s_lshl_b32 s54, s67, 10")
    def kvchunks(cs):
        for c in cs:
            a.I(f"s_add_u32 s55, s54, {c*4096}")
            a.I(f"s_add_u32 m0, s55, {L_K}")
            a.I(f"s_add_u32 s56, s55, {L_V}")
            a.I(f"buffer_load_dwordx4 v{VL}, {S4(RA)}, s55 offen sc1 lds")
            a.I("s_mov_b32 m0, s56")
            a.I("s_nop 0")
            a.I(f"buffer_load_dwordx4 v{VL}, {S4(RB)}, s55 offen sc1 lds")
    kvchunks(range(0, 2))
    kvchunks(range(2, 4))
    a.I("s_waitcnt vmcnt(4)")
    lds_add1(a, M_KV, 8, 9)
    stamp(a, "KV1")
    kvchunks(range(4, 16))
    a.I("s_lshr_b32 s53, s2, 3")
    srd(a, RA, S_W2, 1376*1024)
    srd(a, RB, S_WO, 512*1024)
    a.I("s_mul_i32 s54, s53, 44032")
    a.I("s_lshl_b32 s55, s67, 10")
    a.I("s_add_u32 s54, s54, s55")
    a.I("s_waitcnt vmcnt(0)")
    lds_add1(a, M_KV, 8, 9)
    stamp(a, "KV2")
    a.I("v_lshlrev_b32 v10, 7, v1")
    a.I("s_lshl_b32 s55, s67, 13")
    a.I("s_mul_i32 s54, s53, 44032")
    a.I("s_add_u32 s54, s54, s55")
    a.I(f"buffer_load_dword v40, v10, {S4(RA)}, s54 offen")
    a.I("s_add_u32 s54, s54, 32768")
    a.I(f"buffer_load_dword v41, v10, {S4(RA)}, s54 offen")
    a.I("s_lshl_b32 s54, s53, 14")
    a.I("s_lshl_b32 s55, s67, 12")
    a.I("s_add_u32 s54, s54, s55")
    a.I("s_mov_b32 exec_hi, 0")
    a.I(f"buffer_load_dword v42, v10, {S4(RB)}, s54 offen")
    a.I("s_mov_b64 exec, -1")

def ffn2_p3(a):
    WF, HR, ACC2, BPR = 24, 40, 104, 8
    VH, VW, VA0, VA1 = 2, 3, 4, 5
    a.I("s_cmp_lg_u32 s67, 0")
    a.I("s_cbranch_scc1 L_f1")
    lds_spin(a, M_HST, 4, 8, 9, OPT.get('fslp', 1))
    lds_spin(a, M_KV, 8, 8, 9)
    a.I(f"s_lshl_b32 s54, s{S_RB}, 7")
    a.I(f"s_lshl_b32 s55, s{S_CG}, 2")
    a.I("s_add_u32 s54, s54, s55")
    a.I(f"s_add_u32 s54, s54, {FH_OFF}")
    flag_store(a, "s54", 8, 10)
    a.I(f"s_lshl_b32 s54, s{S_HD}, 7")
    a.I(f"s_add_u32 s54, s54, {FH_OFF}")
    a.I("v_lshlrev_b32 v8, 2, v1")
    poll(a, RC, 8, 8, 9, "s54", OPT.get("fhslp", 8))
    lds_add1(a, M_H, 8, 9)
    a.I("s_branch L_f2")
    a.L("L_f1")
    lds_spin(a, M_H, 1, 8, 9, OPT.get('fslp', 1))
    a.L("L_f2")
    lds_spin(a, M_QRD, 8, 8, 9, OPT.get('fslp', 1))
    stamp(a, "hready")
    if OPT.get("tailpf"):
        srd(a, RA, S_B2, 1024)
        a.I("v_lshlrev_b32 v10, 7, v1")
        a.I("s_mov_b32 exec_lo, 0xff")
        a.I("s_mov_b32 exec_hi, 0")
        a.I(f"buffer_load_dword v43, v10, {S4(RA)}, 0 offen")
        if OPT["tailpf"] > 1:
            srd(a, RA, S_OUT, 2*MB)
            a.I(f"s_lshl_b32 s54, s{S_HD}, 16")
            a.I("s_mov_b32 exec_lo, 1")
            a.I(f"buffer_load_dword v44, v10, {S4(RA)}, s54 offen")
        a.I("s_mov_b64 exec, -1")
    srd(a, RA, S_W2, 1376*1024)
    srd_off(a, RB, S_WS, HF, HF_SIZE)
    a.I(f"v_lshlrev_b32 v{VH}, 4, v1")
    dma_w_lane_off(a, VW, 1, 8, 9, 1024)
    a.I(f"s_lshl_b32 s54, s{S_QB}, 7")
    a.I(f"v_add_u32 v{VW}, s54, v{VW}")
    tr_lane_addr(a, VA0, 1, 8, 9, 4, 128)
    a.I("s_mul_i32 s68, s67, 6144")
    a.I(f"s_add_u32 s68, s68, {L_RING}")
    a.I(f"v_add_u32 v{VA0}, s68, v{VA0}")
    a.I(f"v_xor_b32 v{VA1}, 64, v{VA0}")
    a.I("s_mul_i32 s54, s67, 24")
    a.I("s_lshl_b32 s70, s54, 14")
    a.I("s_lshl_b32 s71, s54, 16")
    a.I(f"s_lshl_b32 s55, s{S_HD}, 11")
    a.I("s_add_u32 s71, s71, s55")
    for i in range(64):
        a.I(f"v_mov_b32 v{ACC2+i}, 0")
    a.I("s_waitcnt vmcnt(0)")
    def fissue(slot):
        return [f"s_add_u32 m0, s68, {slot*2048}",
                f"s_add_u32 s69, s70, 8192",
                f"buffer_load_dwordx4 v{VW}, {S4(RA)}, s70 offen lds",
                f"s_add_u32 m0, s68, {slot*2048+1024}",
                f"s_add_u32 s70, s70, 16384",
                f"buffer_load_dwordx4 v{VW}, {S4(RA)}, s69 offen lds",
                f"buffer_load_dwordx4 {vr(HR+slot*8,4)}, v{VH}, {S4(RB)}, s71 offen sc1",
                f"buffer_load_dwordx4 {vr(HR+slot*8+4,4)}, v{VH}, {S4(RB)}, s71 offen offset:1024 sc1",
                f"s_add_u32 s71, s71, 65536"]
    def trr(F, off):
        out = []
        for ct, va in ((0, VA0), (1, VA1)):
            for rd in range(2):
                out.append(f"ds_read_b64_tr_b16 {vr(F+4*ct+2*rd,2)}, v{va} offset:{off + rd*1024}")
        return out
    N2 = OPT.get("n2", 0)
    a.I("s_cmp_eq_u32 s67, 3")
    a.I(f"s_cselect_b32 s72, {5-N2}, {8-N2}")
    a.I("s_mov_b32 s76, 0")
    a.L("L_fpro")
    for slot in range(3):
        a.I(J(fissue(slot)))
    a.I("s_cmp_lg_u32 s76, 0")
    a.I("s_cbranch_scc1 L_floop")
    a.I(f"s_setprio {OPT.get('ffnprio', 0)}")
    if OPT.get("noffn"): a.I("s_branch L_fskip")
    a.L("L_floop")
    for slot in range(3):
        a.I("s_waitcnt vmcnt(8)")
        a.I(J(trr(WF, slot*2048)))
        a.I("s_waitcnt lgkmcnt(0)")
        fi = fissue(slot)
        mf = lambda ct, rt: MF(ACC2 + (ct*2+rt)*16, WF+4*ct, HR+slot*8+4*rt, ACC2 + (ct*2+rt)*16)
        if OPT.get("fspread", 1):
            a.I(mf(0, 0)); a.I(J(fi[0:3]))
            a.I(mf(1, 0)); a.I(J(fi[3:6]))
            a.I(mf(0, 1)); a.I(fi[6])
            a.I(mf(1, 1)); a.I(J(fi[7:]))
        else:
            for ct in range(2):
                for rt in range(2):
                    a.I(mf(ct, rt))
            a.I(J(fi))
    a.I("s_sub_u32 s72, s72, 1")
    a.I("s_cmp_lg_u32 s72, 0")
    a.I("s_cbranch_scc1 L_floop")
    a.L("L_fskip")
    a.I("s_setprio 3")
    a.I("s_waitcnt vmcnt(0)")
    a.I("s_cmp_lg_u32 s76, 0")
    a.I("s_cbranch_scc1 L_fdone")
    lds_add1(a, M_FFN, 8, 9)
    stamp(a, "ffn2")
    lds_spin(a, M_ATT, 4, 8, 9, OPT.get('attslp', 1))
    stamp(a, "attdone")
    srd(a, RD, S_WO, 512*1024)
    a.I("s_lshl_b32 s56, s67, 14")
    a.I(f"s_add_u32 s56, s56, {L_K}")
    a.I("s_lshl_b32 s57, s67, 17")
    for ks in range(8):
        for n in range(2):
            a.I(f"s_add_u32 m0, s56, {ks*2048+n*1024}")
            a.I(f"s_add_u32 s69, s57, {ks*16384+n*8192}")
            a.I(f"buffer_load_dwordx4 v{VW}, {S4(RD)}, s69 offen lds")
    if N2:
        a.I("s_mov_b32 s76, 1")
        a.I(f"s_sub_u32 s70, s70, {3*16384}")
        a.I(f"s_sub_u32 s71, s71, {3*65536}")
        a.I(f"s_mov_b32 s72, {N2}")
        a.I("s_branch L_fpro")
    a.L("L_fdone")
    srd_off(a, RA, S_WS, GO, 8192)
    srd(a, RB, S_B2, 1024)
    a.I("s_and_b32 s73, s67, 1")
    a.I("s_lshr_b32 s74, s67, 1")
    a.I(f"s_lshl_b32 s75, s{S_HD}, 6")
    a.I("s_lshl_b32 s54, s73, 5")
    a.I("s_add_u32 s75, s75, s54")
    a.I("s_lshl_b32 s54, s75, 2")
    a.I("v_and_b32 v8, 31, v1")
    a.I("v_lshlrev_b32 v8, 2, v8")
    a.I(f"buffer_load_dword v40, v8, {S4(RA)}, s54 offen sc1")
    a.I(f"s_lshl_b32 s54, s{S_QB}, 6")
    a.I("s_lshl_b32 s55, s74, 5")
    a.I("s_add_u32 s54, s54, s55")
    a.I("s_lshl_b32 s54, s54, 1")
    a.I("v_lshrrev_b32 v8, 5, v1")
    a.I("v_lshlrev_b32 v8, 3, v8")
    for q in range(4):
        a.I(f"buffer_load_dwordx2 v[{42+2*q}:{43+2*q}], v8, {S4(RB)}, s54 offen offset:{q*16}")
    a.I("s_lshl_b32 s68, s67, 14")
    a.I("s_nop 7")
    a.I(f"s_add_u32 s54, s68, {L_V}")
    a.I(f"v_add_u32 v8, s54, v{VH}")
    for i in range(16):
        a.I(f"ds_write_b128 v8, {vr(ACC2+4*i,4)} offset:{i*1024}")
    a.I("s_waitcnt vmcnt(0) lgkmcnt(0)")
    lds_add1(a, M_T1, 9, 10)
    lds_spin(a, M_T1, 4, 9, 10)
    a.I("s_lshl_b32 s54, s67, 12")
    a.I(f"s_add_u32 s54, s54, {L_V}")
    a.I(f"v_add_u32 v8, s54, v{VH}")
    for p in range(4):
        for q in range(4):
            a.I(f"ds_read_b128 {vr(ACC2+p*16+q*4,4)}, v8 offset:{p*16384+q*1024}")
    a.I("s_waitcnt lgkmcnt(0)")
    for i in range(16):
        a.I(f"v_add_f32 v{ACC2+i}, v{ACC2+i}, v{ACC2+16+i}")
        a.I(f"v_add_f32 v{ACC2+32+i}, v{ACC2+32+i}, v{ACC2+48+i}")
    for i in range(16):
        a.I(f"v_add_f32 v{ACC2+i}, v{ACC2+i}, v{ACC2+32+i}")
    a.I("s_waitcnt vmcnt(0)")
    a.I("v_sub_f32 v41, 1.0, v40")
    a.I("v_cvt_pk_bf16_f32 v41, v41, v41")
    a.I("v_and_b32 v41, 0xffff0000, v41")
    for q in range(4):
        a.I(f"v_lshlrev_b32 v52, 16, v{42+2*q}")
        a.I(f"v_and_b32 v53, 0xffff0000, v{42+2*q}")
        a.I(f"v_lshlrev_b32 v54, 16, v{43+2*q}")
        a.I(f"v_and_b32 v55, 0xffff0000, v{43+2*q}")
        for j in range(4):
            a.I(f"v_add_f32 v{BPR+4*q+j}, v{ACC2+4*q+j}, v{52+j}")
        for j in range(4):
            a.I(f"v_mul_f32 v{BPR+4*q+j}, v{BPR+4*q+j}, v41")
    a.I("v_mov_b32 v39, v40")
    tr_lane_addr(a, VA0, 1, 32, 33, 4, 128)
    a.I("s_lshl_b32 s54, s74, 6")
    a.I(f"v_xor_b32 v{VA0}, s54, v{VA0}")
    a.I(f"v_add_u32 v{VA0}, {L_K}, v{VA0}")
    a.I("s_lshl_b32 s54, s73, 15")
    a.I(f"s_add_u32 s54, s54, {L_V}")
    a.I(f"v_add_u32 v{VA1}, s54, v{VH}")
    FR = 40
    def wreads(ks):
        F = FR + (ks % 8) * 8
        return [f"ds_read_b64_tr_b16 {vr(F,2)}, v{VA0} offset:{ks*2048}",
                f"ds_read_b64_tr_b16 {vr(F+2,2)}, v{VA0} offset:{ks*2048+1024}"]
    def oread(ks):
        F = FR + (ks % 8) * 8
        return [f"ds_read_b128 {vr(F+4,4)}, v{VA1} offset:{ks*1024}"]
    a.I("s_cmp_lg_u32 s67, 0")
    a.I("s_cbranch_scc1 L_f4")
    a.I(f"s_lshl_b32 s54, s{S_HD}, 8")
    a.I(f"s_add_u32 s54, s54, {FO_OFF}")
    a.I("v_lshlrev_b32 v121, 2, v1")
    if not OPT.get("opf", 0):
        poll(a, RC, 64, 121, 122, "s54", OPT.get("foslp", 2))
    else:
        srd_off(a, RB, S_WS, OF, 2*MB)
        a.I(f"s_lshl_b32 s55, s{S_HD}, 16")
        a.I("v_lshlrev_b32 v123, 10, v1")
        a.I("s_mov_b64 s[56:57], 0")
        a.I("s_mov_b32 s50, 0x40000")
        a.L("L_opf")
        a.I(f"buffer_load_dword v122, v121, {S4(RC)}, s54 offen sc1")
        a.I("s_waitcnt vmcnt(0)")
        a.I(f"v_cmp_eq_u32 vcc, s{S_NONCE}, v122")
        a.I("s_nop 1")
        a.I("s_andn2_b64 s[58:59], vcc, s[56:57]")
        a.I("s_or_b64 s[56:57], s[56:57], vcc")
        a.I("s_cmp_eq_u64 s[56:57], -1")
        a.I("s_cbranch_scc1 L_opf3")
        a.I("s_cmp_eq_u64 s[58:59], 0")
        a.I("s_cbranch_scc1 L_opf2")
        a.I("s_mov_b64 exec, s[58:59]")
        for j in range(8):
            a.I(f"buffer_load_dword v120, v123, {S4(RB)}, s55 offen offset:{j*128} sc1")
        a.I("s_mov_b64 exec, -1")
        a.L("L_opf2")
        a.I("s_sub_u32 s50, s50, 1")
        a.I("s_cmp_eq_u32 s50, 0")
        a.I("s_cbranch_scc1 L_opf3")
        a.I(f"s_sleep {OPT.get('foslp', 2)}")
        a.I("s_branch L_opf")
        a.L("L_opf3")
    a.L("L_f4")
    for ks in range(8): a.I(J(wreads(ks)))
    srd_off(a, RB, S_WS, OF, 2*MB)
    a.I(f"s_lshl_b32 s54, s{S_HD}, 16")
    a.I("s_lshl_b32 s55, s67, 11")
    a.I("s_add_u32 s54, s54, s55")
    a.I(f"s_add_u32 s55, s55, {L_V}")
    srd(a, RA, S_OUT, 2*MB)
    a.I("s_lshl_b32 s58, s75, 10")
    a.I(f"s_lshl_b32 s59, s{S_QB}, 7")
    a.I("s_add_u32 s58, s58, s59")
    a.I("s_lshl_b32 s59, s74, 6")
    a.I("s_add_u32 s58, s58, s59")
    a.I("v_and_b32 v32, 31, v1")
    a.I("v_lshlrev_b32 v32, 10, v32")
    a.I("v_lshrrev_b32 v33, 5, v1")
    a.I("v_lshl_add_u32 v32, v33, 4, v32")
    a.I("s_waitcnt lgkmcnt(0)")
    a.I("s_barrier")
    stamp(a, "T2")
    def odma(ch):
        L = []
        for hh in range(2):
            for rt in range(2):
                off = rt*32768 + ch*8192 + hh*1024
                L.append([f"s_add_u32 m0, s55, {off}", f"s_add_u32 s56, s54, {off}",
                          f"buffer_load_dwordx4 v{VH}, {S4(RB)}, s56 offen sc1 lds"])
        return L
    for ch in range(4):
        for x in odma(ch): a.I(J(x))
    for ch in range(4):
        a.I(f"s_waitcnt vmcnt({4*(3-ch)}) lgkmcnt(0)")
        a.I("s_barrier")
        for ks in range(8*ch, 8*ch+8): a.I(J(oread(ks)))
        for i in range(8):
            ks = 8*ch + i
            a.I(f"s_waitcnt lgkmcnt({7 + i if ch < 3 else 7 - i})")
            F = FR + i*8
            a.I(MF(ACC2, F, F+4, ACC2 if ks else None))
            if ch < 3: a.I(J(wreads(ks+8)))
    a.I("s_nop 15")
    stamp(a, "p3mm")
    for i in range(16):
        a.I(f"v_fma_f32 v{ACC2+i}, v{ACC2+i}, v39, v{BPR+i}")
    for j in range(8):
        a.I(f"v_cvt_pk_bf16_f32 v{ACC2+j}, v{ACC2+2*j}, v{ACC2+2*j+1}")
    a.I("s_nop 1")
    a.I(f"v_permlane32_swap_b32 v{ACC2}, v{ACC2+2}")
    a.I(f"v_permlane32_swap_b32 v{ACC2+1}, v{ACC2+3}")
    a.I(f"v_permlane32_swap_b32 v{ACC2+4}, v{ACC2+6}")
    a.I(f"v_permlane32_swap_b32 v{ACC2+5}, v{ACC2+7}")
    ofl = {0: "", 1: " sc1", 2: " nt", 3: " sc0 sc1"}[OPT.get("outfl", 0)]
    a.I(f"buffer_store_dwordx4 {vr(ACC2,4)}, v32, {S4(RA)}, s58 offen{ofl}")
    a.I(f"buffer_store_dwordx4 {vr(ACC2+4,4)}, v32, {S4(RA)}, s58 offen offset:32{ofl}")
    stamp_flush(a, "ffn")
    a.I("s_endpgm")

def attention(a):
    a.L("L_attn")
    stamp(a, "attn0")
    QA, QB = 8, 12
    KB = [16, 20]; VB = [24, 32]
    S0, S1, OA, OB = 40, 56, 72, 88
    VK, VV, VL = 2, 3, 4
    T0, T1, T2 = 104, 105, 106
    VKN, VVN, VVB, VCH, VONE, VNX = 107, 108, 109, 110, 111, 5
    a.I(f"s_and_b32 s63, s{S_W}, 3")
    a.I(f"s_lshr_b32 s64, s{S_W}, 2")
    a.I(f"v_lshlrev_b32 v{VL}, 4, v1")
    a.I(f"v_lshrrev_b32 v{T0}, 5, v1")
    a.I(f"v_and_b32 v{T1}, 15, v1")
    a.I(f"v_lshlrev_b32 v{T1}, 4, v{T1}")
    a.I(f"v_lshl_add_u32 v{VVB}, v{T0}, 8, v{T1}")
    a.I(f"v_add_u32 v{VVB}, {L_V}, v{VVB}")
    a.I(f"v_add_u32 v{VKN}, {L_K}, v{VL}")
    a.I("s_lshl_b32 s54, s64, 12")
    a.I(f"v_add_u32 v{VK}, s54, v{VL}")
    a.I(f"v_add_u32 v{VV}, s54, v{VVB}")
    a.I("s_lshl_b32 s54, s63, 2")
    a.I(f"s_add_u32 s54, s54, {M_CH}")
    a.I(f"v_mov_b32 v{VCH}, s54")
    a.I(f"v_mov_b32 v{VONE}, 1")
    a.I("s_mov_b32 s74, 0x0000ffff")
    a.I("s_mov_b32 s75, 0x0000ffff")
    a.I("s_mov_b32 s77, 0")
    a.I(f"s_lshl_b32 s66, s{S_QB}, 3")
    a.I("s_lshl_b32 s54, s63, 1")
    a.I("s_add_u32 s66, s66, s54")
    a.I("s_lshl_b32 s54, s63, 11")
    a.I(f"s_add_u32 s54, s54, {L_RING}")
    a.I(f"v_add_u32 v{T2}, s54, v{VL}")
    a.I(f"v_and_b32 v{T0}, 31, v1")
    a.I(f"v_cmp_eq_u32 vcc, 16, v{T0}")
    a.I(f"v_mov_b32 v{T1}, 0x3f803f80")
    a.I("s_nop 1")
    a.I(f"v_cndmask_b32 v{T0}, 0, v{T1}, vcc")
    for i in range(16):
        a.I(f"v_mov_b32 v{VB[0]+i}, v{T0}")
    lds_spin(a, M_KV, 4, T0, T1)
    stamp(a, "kvok")
    a.I(f"ds_read_b128 {vr(QA,4)}, v{T2}")
    a.I(f"ds_read_b128 {vr(QB,4)}, v{T2} offset:1024")
    for i in range(16):
        a.I(f"v_mov_b32 v{OA+i}, 0")
        a.I(f"v_mov_b32 v{OB+i}, 0")
    a.I("s_waitcnt lgkmcnt(0)")
    lds_add1(a, M_QRD, T0, T1)
    a.I("s_lshl_b32 s71, s64, 12")
    if STAMPS and OPT.get("fineattn"): a.I("s_mov_b32 s87, 24")
    a.I("s_mov_b32 s73, 0")

    def e_(S, i): return f"v_exp_f32 v{S+i}, v{S+i}"
    def c_(S, j): return f"v_cvt_pk_bf16_f32 v{S+j}, v{S+2*j}, v{S+2*j+1}"
    def tile(Sin, Sout, Qn, Kn, Ocur, Vcur_u0, Oprev, Vprev_u1, after_pv2, wait_s, after_s, wait_pv1, do_pv2=True, do_s=True):
        e = lambda i: e_(Sin, i)
        c = lambda j: c_(Sin, j)
        L = [e(0), e(1)]
        if do_pv2: L.append(MF(Oprev, Vprev_u1, Sout+4, Oprev))
        L += after_pv2
        L += [e(2), e(3), c(0), e(4), e(5), c(1)]
        L += wait_s
        if do_s: L.append(MF(Sout, Kn, Qn))
        L += after_s
        L += [e(6), e(7), c(2), e(8), e(9), c(3), e(10), e(11)]
        L += wait_pv1
        L.append(MF(Ocur, Vcur_u0, Sin, Ocur))
        L += [c(4), e(12), e(13), c(5), e(14), e(15), c(6), c(7)]
        return L
    fifo = []
    def dsr(tag, txt): fifo.append(tag); return txt
    def need(tag):
        idx = max(i for i, t in enumerate(fifo) if t == tag)
        return [f"s_waitcnt lgkmcnt({len(fifo) - 1 - idx})"]
    def vreads(t):
        kap = t & 1
        return ["s_mov_b64 exec, s[74:75]",
                dsr(("V", t), f"ds_read_b128 {vr(VB[kap],4)}, v{VV} offset:{t*1024}"),
                dsr(("V", t), f"ds_read_b128 {vr(VB[kap]+4,4)}, v{VV} offset:{t*1024+512}"),
                "s_mov_b64 exec, -1"]
    def kread(t): return [dsr(("K", t), f"ds_read_b128 {vr(KB[t & 1],4)}, v{VK} offset:{t*1024}")]
    a.raw(".p2align 6")
    a.L("L_aloop")
    if OPT.get("fineattn"):
        OPT["fine"] = 1; stamp_dyn(a); OPT["fine"] = 0
    a.I(f"v_add_u32 v{VK}, s71, v{VKN}")
    a.I(f"v_add_u32 v{VV}, s71, v{VVB}")
    L = kread(0) + vreads(0) + kread(1)
    L += need(("K", 0))
    L.append(MF(S0, KB[0], QA))
    a.I(J(L))
    a.I("s_nop 7")
    a.I("s_nop 3")
    body = []
    for t in range(4):
        kap = t & 1
        A = []
        Sin, Sout = S0, S1
        A += [e_(Sin, 0), e_(Sin, 1)]
        if t > 0: A.append(MF(OB, VB[kap^1]+4, Sout+4, OB))
        if t + 1 < 4: A += vreads(t+1)
        A += [e_(Sin, 2), e_(Sin, 3), c_(Sin, 0), e_(Sin, 4), e_(Sin, 5), c_(Sin, 1)]
        A.append(MF(Sout, KB[kap], QB))
        if t + 2 < 4: A += kread(t+2)
        A += [e_(Sin, 6), e_(Sin, 7), c_(Sin, 2), e_(Sin, 8), e_(Sin, 9), c_(Sin, 3), e_(Sin, 10), e_(Sin, 11)]
        A += need(("V", t))
        A.append(MF(OA, VB[kap], Sin, OA))
        A += [c_(Sin, 4), e_(Sin, 12), e_(Sin, 13), c_(Sin, 5), e_(Sin, 14), e_(Sin, 15), c_(Sin, 6), c_(Sin, 7)]
        Sin, Sout = S1, S0
        B = [e_(Sin, 0), e_(Sin, 1), MF(OA, VB[kap]+4, Sout+4, OA)]
        if t == 3:
            B += ["s_mov_b64 exec, 1", dsr(("G",), f"ds_add_rtn_u32 v{VNX}, v{VCH}, v{VONE}"), "s_mov_b64 exec, -1"]
        B += [e_(Sin, 2), e_(Sin, 3), c_(Sin, 0), e_(Sin, 4), e_(Sin, 5), c_(Sin, 1)]
        if t + 1 < 4:
            B += need(("K", t+1))
            B.append(MF(Sout, KB[kap^1], QA))
        B += [e_(Sin, 6), e_(Sin, 7), c_(Sin, 2), e_(Sin, 8), e_(Sin, 9), c_(Sin, 3), e_(Sin, 10), e_(Sin, 11)]
        B.append(MF(OB, VB[kap], Sin, OB))
        B += [c_(Sin, 4), e_(Sin, 12), e_(Sin, 13), c_(Sin, 5), e_(Sin, 14), e_(Sin, 15), c_(Sin, 6), c_(Sin, 7)]
        body += A + B
    a.I(J(body))
    a.I("s_waitcnt lgkmcnt(0)")
    a.I(f"v_readfirstlane_b32 s70, v{VNX}")
    a.I(MF(OB, VB[1]+4, S1+4, OB))
    a.I("s_add_u32 s70, s70, 2")
    a.I("s_lshl_b32 s71, s70, 12")
    a.I("s_cmp_lg_u32 s73, 0")
    a.I("s_cbranch_scc1 L_aloop2")
    a.I("s_mov_b32 s73, 1")
    a.I("s_waitcnt vmcnt(0)")
    a.I(f"s_cmp_ge_u32 s{S_W}, 4")
    a.I("s_cbranch_scc1 L_aloop1")
    lds_add1(a, M_HST, T0, T1)
    a.L("L_aloop1")
    lds_spin(a, M_KV, 8, T0, T1)
    a.L("L_aloop2")
    a.I("s_cmp_lt_u32 s70, 16")
    a.I("s_cbranch_scc1 L_aloop")
    a.I("s_waitcnt lgkmcnt(0)")
    a.I("s_nop 7")
    stamp(a, "aloop")
    a.I("s_lshl_b32 s54, s63, 2")
    a.I(f"s_add_u32 s55, s54, {M_PAIR}")
    a.I(f"s_add_u32 s76, s54, {M_PFLAG}")
    a.I(f"v_mov_b32 v{T0}, s55")
    a.I(f"v_mov_b32 v{T1}, 1")
    a.I("s_mov_b64 exec, 1")
    a.I(f"ds_add_rtn_u32 v{T2}, v{T0}, v{T1}")
    a.I("s_mov_b64 exec, -1")
    a.I("s_mul_i32 s54, s63, 4608")
    a.I(f"s_add_u32 s54, s54, {L_XCH}")
    a.I(f"v_add_u32 v{S0}, s54, v{VL}")
    a.I(f"v_lshlrev_b32 v{S0+1}, 2, v1")
    a.I(f"v_add_u32 v{S0+1}, s54, v{S0+1}")
    a.I("s_waitcnt lgkmcnt(0)")
    a.I(f"v_readfirstlane_b32 s55, v{T2}")
    a.I("s_nop 4")
    a.I("s_cmp_lg_u32 s55, 0")
    a.I("s_cbranch_scc1 L_second")
    lds_spin(a, M_FFN, 4, T0, T1)
    a.I(f"ds_write_b128 v{S0}, {vr(OA,4)}")
    a.I(f"ds_write_b128 v{S0}, {vr(OA+4,4)} offset:1024")
    a.I(f"ds_write_b128 v{S0}, {vr(OB,4)} offset:2048")
    a.I(f"ds_write_b128 v{S0}, {vr(OB+4,4)} offset:3072")
    a.I(f"ds_write_b32 v{S0+1}, v{OA+8} offset:4096")
    a.I(f"ds_write_b32 v{S0+1}, v{OB+8} offset:4352")
    a.I("s_waitcnt lgkmcnt(0)")
    lds_add1(a, "s76", T0, T1)
    a.I("s_waitcnt lgkmcnt(0)")
    stamp_flush(a, "attn")
    a.I("s_endpgm")
    a.L("L_second")
    lds_spin(a, "s76", 1, T0, T1)
    a.I(f"ds_read_b128 {vr(S1,4)}, v{S0}")
    a.I(f"ds_read_b128 {vr(S1+4,4)}, v{S0} offset:1024")
    a.I(f"ds_read_b128 {vr(S1+8,4)}, v{S0} offset:2048")
    a.I(f"ds_read_b128 {vr(S1+12,4)}, v{S0} offset:3072")
    a.I(f"ds_read_b32 v{T0}, v{S0+1} offset:4096")
    a.I(f"ds_read_b32 v{T1}, v{S0+1} offset:4352")
    a.I(f"v_mov_b32 v{T2}, {L_MISC + 128}")
    a.I(f"ds_read_b32 v{T2}, v{T2}")
    a.I("s_waitcnt lgkmcnt(0)")
    a.I(f"v_readfirstlane_b32 s{S_NONCE}, v{T2}")
    for i in range(8):
        a.I(f"v_add_f32 v{OA+i}, v{OA+i}, v{S1+i}")
        a.I(f"v_add_f32 v{OB+i}, v{OB+i}, v{S1+8+i}")
    a.I(f"v_add_f32 v{OA+8}, v{OA+8}, v{T0}")
    a.I(f"v_add_f32 v{OB+8}, v{OB+8}, v{T1}")
    a.L("L_fin")
    for O in (OA, OB):
        a.I(f"v_mov_b32 v{O+9}, v{O+8}")
    a.I("s_nop 1")
    for O in (OA, OB):
        a.I(f"v_permlane32_swap_b32 v{O+9}, v{O+8}")
    a.I("s_nop 1")
    for O in (OA, OB):
        a.I(f"v_rcp_f32 v{O+10}, v{O+9}")
    srd_off(a, RA, S_WS, OF, 2*MB)
    a.I("s_lshl_b32 s54, s66, 5")
    a.I(f"s_add_u32 s54, s54, s{S_HD}")
    a.I("s_lshl_b32 s55, s54, 10")
    for n_, O in enumerate((OA, OB)):
        for i in range(8):
            a.I(f"v_mul_f32 v{S0+8*n_+i}, v{O+i}, v{O+10}")
        for j in range(4):
            a.I(f"v_cvt_pk_bf16_f32 v{S1+4*n_+j}, v{S0+8*n_+2*j}, v{S0+8*n_+2*j+1}")
        a.I(f"buffer_store_dwordx4 {vr(S1+4*n_,4)}, v{VL}, {S4(RA)}, s55 offen sc1")
        if n_ == 0: a.I("s_add_u32 s55, s55, 32768")
    srd_off(a, RC, S_WS, FLG, FLG_SIZE)
    slow_check(a, OA, OB, T0, T1)
    lds_add1(a, M_ATT, T0, T1)
    a.I("s_lshl_b32 s54, s54, 2")
    a.I(f"s_add_u32 s54, s54, {FO_OFF}")
    a.I(f"v_mov_b32 v{T0}, s{S_NONCE}")
    a.I(f"v_lshlrev_b32 v{T1}, 7, v1")
    a.I("s_waitcnt vmcnt(0)")
    a.I("s_mov_b64 exec, 3")
    a.I(f"buffer_store_dword v{T0}, v{T1}, {S4(RC)}, s54 offen sc1")
    a.I("s_mov_b64 exec, -1")
    stamp_flush(a, "attn")
    a.I("s_endpgm")
    slow_path(a, QA, QB, KB, VB, S0, S1, OA, OB, VL, T0, T1, T2)

def slow_check(a, OA, OB, T0, T1):
    if OPT.get("noslow"): return
    a.I(f"v_mul_f32 v{T0}, 0, v{OA}")
    for i in range(1, 8):
        a.I(f"v_fma_f32 v{T0}, v{OA+i}, 0, v{T0}")
    for i in range(8):
        a.I(f"v_fma_f32 v{T0}, v{OB+i}, 0, v{T0}")
    a.I(f"v_cmp_eq_f32 s[78:79], 0, v{T0}")
    a.I(f"s_mov_b32 s80, {hex(f2u(2.0**-60))}")
    a.I(f"s_mov_b32 s81, {hex(f2u(2.0**60))}")
    for O in (OA, OB):
        a.I(f"v_cmp_le_f32 s[82:83], s80, v{O+9}")
        a.I(f"v_cmp_ge_f32 vcc, s81, v{O+9}")
        a.I("s_nop 1")
        a.I("s_and_b64 s[78:79], s[78:79], s[82:83]")
        a.I("s_and_b64 s[78:79], s[78:79], vcc")
    if OPT.get("forceslow"):
        a.I("s_mov_b64 s[78:79], 0")
    a.I("s_cmp_eq_u64 s[78:79], -1")
    a.I("s_cbranch_scc1 L_ok")
    a.I("s_cmp_eq_u32 s77, 0")
    a.I("s_cbranch_scc1 L_slow")
    a.L("L_ok")

def slow_path(a, QA, QB, KB, VB, S0, S1, OA, OB, VL, T0, T1, T2):
    if OPT.get("noslow"): return
    K, V0, M, C = KB[0], VB[0], 108, 112
    a.L("L_slow")
    a.I("s_waitcnt vmcnt(0)")
    a.I("s_mov_b32 s77, 1")
    a.I(f"v_lshrrev_b32 v{T0}, 5, v1")
    a.I(f"v_and_b32 v{T1}, 15, v1")
    a.I(f"v_lshlrev_b32 v{T1}, 4, v{T1}")
    a.I(f"v_lshl_add_u32 v{T2}, v{T0}, 8, v{T1}")
    a.I(f"v_add_u32 v{T2}, {L_V}, v{T2}")
    a.I(f"v_mov_b32 v{M}, 0xff800000")
    a.I(f"v_mov_b32 v{M+1}, 0xff800000")
    a.I(f"v_add_u32 v{T0}, {L_K}, v{VL}")
    a.I("s_mov_b32 s73, 0")
    a.L("L_slow1")
    a.I(f"ds_read_b128 {vr(K,4)}, v{T0}")
    a.I("s_waitcnt lgkmcnt(0)")
    a.I(MF(S0, K, QA))
    a.I(MF(S1, K, QB))
    a.I("s_nop 15")
    for S, m in ((S0, M), (S1, M+1)):
        for i in range(0, 16, 2):
            a.I(f"v_max3_f32 v{m}, v{S+i}, v{S+i+1}, v{m}")
    a.I(f"v_add_u32 v{T0}, 1024, v{T0}")
    a.I("s_add_u32 s73, s73, 1")
    a.I("s_cmp_lt_u32 s73, 64")
    a.I("s_cbranch_scc1 L_slow1")
    for m in (M, M+1):
        a.I(f"v_mov_b32 v{T1}, v{m}")
        a.I("s_nop 1")
        a.I(f"v_permlane32_swap_b32 v{T1}, v{m}")
        a.I("s_nop 1")
        a.I(f"v_max_f32 v{m}, v{m}, v{T1}")
    for t in range(2):
        for i in range(16):
            a.I(f"v_sub_f32 v{C+16*t+i}, 0, v{M+t}")
    for i in range(16):
        a.I(f"v_mov_b32 v{OA+i}, 0")
        a.I(f"v_mov_b32 v{OB+i}, 0")
    a.I(f"v_add_u32 v{T0}, {L_K}, v{VL}")
    a.I("s_mov_b32 s73, 0")
    a.L("L_slow2")
    a.I(f"ds_read_b128 {vr(K,4)}, v{T0}")
    a.I("s_mov_b64 exec, s[74:75]")
    a.I(f"ds_read_b128 {vr(V0,4)}, v{T2}")
    a.I(f"ds_read_b128 {vr(V0+4,4)}, v{T2} offset:512")
    a.I("s_mov_b64 exec, -1")
    a.I("s_waitcnt lgkmcnt(0)")
    a.I(MF(S0, K, QA, C))
    a.I(MF(S1, K, QB, C+16))
    a.I("s_nop 15")
    for S, O in ((S0, OA), (S1, OB)):
        for i in range(16):
            a.I(f"v_exp_f32 v{S+i}, v{S+i}")
        a.I("s_nop 0")
        for j in range(8):
            a.I(f"v_cvt_pk_bf16_f32 v{S+j}, v{S+2*j}, v{S+2*j+1}")
        a.I("s_nop 1")
        a.I(MF(O, V0, S, O))
        a.I(MF(O, V0+4, S+4, O))
    a.I(f"v_add_u32 v{T0}, 1024, v{T0}")
    a.I(f"v_add_u32 v{T2}, 1024, v{T2}")
    a.I("s_add_u32 s73, s73, 1")
    a.I("s_cmp_lt_u32 s73, 64")
    a.I("s_cbranch_scc1 L_slow2")
    a.I("s_nop 15")
    a.I("s_branch L_fin")

def gen():
    a = Asm()
    prologue(a)
    producer(a, False)
    consumer(a)
    a.L("L_aux")
    producer(a, True)
    ffn2_p3(a)
    attention(a)
    a.L("L_end")
    a.I("s_endpgm")
    a.L("L_code_end")
    a.I("s_endpgm")
    return a

HEADER = open("cdna_kernels/" + NAME + ".s.ref").read().split("; Override launch")[0]

def build(path):
    a = gen()
    out = HEADER + f"; WSLAYOUT QF={QF} KF={KF} VF={VF} HF={HF} GO={GO} OF={OF}\n"
    out += f"; @launch grid=(256,1,1) block=(768,1,1) lds={LDS_TOTAL}\n"
    out += '.amdgcn_target "amdgcn-amd-amdhsa--gfx950"\n.text\n' + a.text()
    out += f""".section .rodata,"a"
.p2align 6
.amdhsa_kernel {KN}
  .amdhsa_next_free_vgpr 168
  .amdhsa_next_free_sgpr 102
  .amdhsa_accum_offset 168
  .amdhsa_group_segment_fixed_size 0
  .amdhsa_kernarg_size 96
  .amdhsa_user_sgpr_count 2
  .amdhsa_user_sgpr_kernarg_segment_ptr 1
  .amdhsa_system_sgpr_workgroup_id_x 1
.end_amdhsa_kernel
"""
    open(path, "w").write(out)
    probs = check_linear(a.lines, "k")
    if STAMPS: print("stamps:", ",".join(_stamp_names))
    return probs

if __name__ == "__main__":
    for x in list(sys.argv[1:]):
        if x.startswith("-D"):
            k, _, v = x[2:].partition("=")
            OPT[k] = int(v) if v else 1
            sys.argv.remove(x)
    if "--stamps" in sys.argv:
        STAMPS = True; sys.argv.remove("--stamps")
    path = sys.argv[1] if len(sys.argv) > 1 else "cdna_kernels/" + NAME + ".s"
    probs = build(path)
    for p in probs: print("HAZARD:", p)
    print("written", path, "problems:", len(probs))
```

```python
import sys, struct
from asmlib import *

NAME = "gated_mix__mha_block__dense_activation_squared_relu__prompt"
KN = NAME + "_kernel"
MB = 1 << 20
QF, KF, VF, HF, GO, OF, FLG = 4096, 2*MB + 8192, 4*MB + 12288, 6*MB + 16384, 12*MB, 14*MB + 4096, 16*MB + 8192
HF_SIZE = 86 * 65536
FA_OFF, FH_OFF, FO_OFF = 0, 4096, 8192
FLG_SIZE = 16384
QSCALE = 0.25 * 1.4426950408889634
STAMP_OFF = 32*MB
STAMPS = False
OPT = {}
def f2u(x): return struct.unpack("<I", struct.pack("<f", x))[0]

S_AX, S_WQKV, S_WO, S_W1, S_B1, S_W2, S_B2, S_GW, S_OUT, S_DBG, S_WS = 4, 6, 8, 12, 14, 16, 18, 20, 22, 24, 26
S_W = 3
S_RB, S_CG, S_START = 29, 30, 31
RA, RB, RC, RD = 32, 36, 40, 44
S_NONCE, S_HD, S_QB = 60, 61, 62
L_MISC, L_K, L_V, L_RING = 0, 1024, 1024 + 65536, 1024 + 131072
L_XCH = L_RING
M_KV, M_H, M_FA, M_QRD, M_HST, M_FFN, M_ATT, M_T1 = [L_MISC + 4*i for i in range(8)]
M_PAIR, M_PFLAG, M_CH = L_MISC + 64, L_MISC + 96, L_MISC + 160
LDS_TOTAL = 163840

def srd(a, dst, base, size):
    a.I(f"s_mov_b32 s{dst}, s{base}")
    a.I(f"s_mov_b32 s{dst+1}, s{base+1}")
    a.I(f"s_mov_b32 s{dst+2}, {size}")
    a.I(f"s_mov_b32 s{dst+3}, 0x20000")
def srd_off(a, dst, base, off, size):
    a.I(f"s_add_u32 s{dst}, s{base}, {off}")
    a.I(f"s_addc_u32 s{dst+1}, s{base+1}, 0")
    a.I(f"s_mov_b32 s{dst+2}, {size}")
    a.I(f"s_mov_b32 s{dst+3}, 0x20000")
def MF(d, A, B, c=None):
    cc = "0" if c is None else vr(c, 16)
    return f"v_mfma_f32_32x32x16_bf16 {vr(d,16)}, {vr(A,4)}, {vr(B,4)}, {cc}"
def S4(r): return f"s[{r}:{r+3}]"
def J(L): return "\n".join(L)

_stamp_names = []
def stamp(a, name):
    if not STAMPS: return
    if name not in _stamp_names: _stamp_names.append(name)
    i = _stamp_names.index(name)
    a.I("s_waitcnt lgkmcnt(0)")
    a.I("s_memtime s[98:99]")
    a.I("s_memrealtime s[100:101]")
    a.I("s_waitcnt lgkmcnt(0)")
    a.I(f"v_writelane_b32 v6, s98, {i}")
    a.I(f"v_writelane_b32 v7, s100, {i}")
def stamp_dyn(a):
    if not (STAMPS and OPT.get("fine")): return
    a.I("s_memtime s[98:99]")
    a.I("s_memrealtime s[100:101]")
    a.I("s_waitcnt lgkmcnt(0)")
    a.I("s_mov_b32 s88, m0")
    a.I("s_mov_b32 m0, s87")
    a.I("s_nop 3")
    a.I("v_writelane_b32 v6, s98, m0")
    a.I("v_writelane_b32 v7, s100, m0")
    a.I("s_mov_b32 m0, s88")
    a.I("s_add_u32 s87, s87, 1")
def dbg_dump(a, names, word0):
    lb = lab("dd")
    a.I(f"s_cmp_lg_u32 s2, {OPT.get('dbgwg', 0)}")
    a.I(f"s_cbranch_scc1 {lb}")
    a.I("v_readlane_b32 s90, v7, 0")
    for i, nm in enumerate(names):
        if nm not in _stamp_names: _stamp_names.append(nm)
        a.I(f"v_readlane_b32 s91, v7, {_stamp_names.index(nm)}")
        a.I("s_nop 3")
        a.I("s_sub_u32 s91, s91, s90")
        a.I("v_mov_b32 v2, s91")
        a.I(f"v_mov_b32 v3, {4*(word0+i)}")
        a.I("s_mov_b64 exec, 1")
        a.I(f"global_store_dword v3, v2, s[{S_DBG}:{S_DBG+1}]")
        a.I("s_mov_b64 exec, -1")
    a.L(lb)

def stamp_flush(a, who=None):
    if not STAMPS: return
    a.I("s_waitcnt vmcnt(0)")
    stamp(a, "end")
    if OPT.get("dbgdump"):
        if who == "ffn":
            l2 = lab("d8")
            a.I(f"s_cmp_lg_u32 s{S_W}, 8"); a.I(f"s_cbranch_scc1 {l2}")
            dbg_dump(a, ["E2", "FAok", "KV1", "hready", "ffn2", "attdone", "T2", "p3mm", "end"], 7)
            a.L(l2)
        elif who == "attn":
            l2 = lab("d0")
            a.I(f"s_and_b32 s91, s{S_W}, 3"); a.I("s_cmp_lg_u32 s91, 0"); a.I(f"s_cbranch_scc1 {l2}")
            a.I(f"s_cmp_ge_u32 s{S_W}, 4"); a.I(f"s_cbranch_scc1 {l2}")
            dbg_dump(a, ["karg", "B0", "qloop", "floop", "kvok", "aloop"], 1)
            a.L(l2)
    a.I(f"s_add_u32 s96, s{S_WS}, {STAMP_OFF}")
    a.I(f"s_addc_u32 s97, s{S_WS+1}, 0")
    a.I("s_mul_i32 s98, s2, 12")
    a.I(f"s_add_u32 s98, s98, s{S_W}")
    a.I("s_lshl_b32 s98, s98, 9")
    a.I("v_lshlrev_b32 v2, 2, v1")
    a.I("v_add_u32 v2, s98, v2")
    a.I("s_mov_b64 exec, -1")
    a.I("global_store_dword v2, v6, s[96:97]")
    a.I("global_store_dword v2, v7, s[96:97] offset:256")
    a.I("s_waitcnt vmcnt(0)")

def tr_lane_addr(a, dst, lane, tmp, tmp2, hrows, pitch):
    a.I(f"v_bfe_u32 v{tmp}, v{lane}, 2, 2")
    a.I(f"v_lshrrev_b32 v{tmp2}, 5, v{lane}")
    a.I(f"v_mul_u32_u24 v{tmp2}, {hrows}, v{tmp2}")
    a.I(f"v_add_u32 v{tmp}, v{tmp}, v{tmp2}")
    a.I(f"v_mul_u32_u24 v{dst}, {pitch}, v{tmp}")
    a.I(f"v_bfe_u32 v{tmp}, v{lane}, 4, 1")
    a.I(f"v_lshlrev_b32 v{tmp}, 1, v{tmp}")
    a.I(f"v_bfe_u32 v{tmp2}, v{lane}, 1, 1")
    a.I(f"v_add_u32 v{tmp}, v{tmp}, v{tmp2}")
    a.I(f"v_bfe_u32 v{tmp2}, v{lane}, 3, 1")
    a.I(f"v_lshlrev_b32 v{tmp2}, 2, v{tmp2}")
    a.I(f"v_xor_b32 v{tmp}, v{tmp}, v{tmp2}")
    a.I(f"v_lshl_add_u32 v{dst}, v{tmp}, 4, v{dst}")
    a.I(f"v_and_b32 v{tmp}, 1, v{lane}")
    a.I(f"v_lshl_add_u32 v{dst}, v{tmp}, 3, v{dst}")

def dma_w_lane_off(a, dst, lane, tmp, tmp2, pitch):
    a.I(f"v_lshrrev_b32 v{tmp}, 3, v{lane}")
    a.I(f"v_mul_u32_u24 v{dst}, {pitch}, v{tmp}")
    a.I(f"v_bfe_u32 v{tmp}, v{lane}, 4, 1")
    a.I(f"v_lshlrev_b32 v{tmp}, 2, v{tmp}")
    a.I(f"v_and_b32 v{tmp2}, 7, v{lane}")
    a.I(f"v_xor_b32 v{tmp}, v{tmp}, v{tmp2}")
    a.I(f"v_lshl_add_u32 v{dst}, v{tmp}, 4, v{dst}")

_lab = [0]
def lab(p):
    _lab[0] += 1
    return f"L_{p}{_lab[0]}"

def poll(a, srd_reg, nlanes, voff, vtmp, soff, slp=1):
    l0, l1 = lab("poll"), lab("polld")
    if nlanes < 64:
        a.I(f"s_mov_b32 exec_lo, {hex((1 << nlanes) - 1)}")
        a.I("s_mov_b32 exec_hi, 0")
    a.I("s_mov_b32 s50, 0x40000")
    a.L(l0)
    a.I(f"buffer_load_dword v{vtmp}, v{voff}, {S4(srd_reg)}, {soff} offen sc1")
    a.I("s_waitcnt vmcnt(0)")
    a.I(f"v_cmp_ne_u32 vcc, s{S_NONCE}, v{vtmp}")
    a.I(f"s_cbranch_vccz {l1}")
    a.I("s_sub_u32 s50, s50, 1")
    a.I("s_cmp_eq_u32 s50, 0")
    a.I(f"s_cbranch_scc1 {l1}")
    a.I(f"s_sleep {slp}")
    a.I(f"s_branch {l0}")
    a.L(l1)
    a.I("s_mov_b64 exec, -1")

def lds_spin(a, addr, target, vaddr, vtmp, slp=1):
    l0, l1 = lab("spin"), lab("spind")
    a.I(f"v_mov_b32 v{vaddr}, {addr}")
    a.I("s_mov_b32 s50, 0x400000")
    a.L(l0)
    a.I(f"ds_read_b32 v{vtmp}, v{vaddr}")
    a.I("s_waitcnt lgkmcnt(0)")
    a.I(f"v_readfirstlane_b32 s51, v{vtmp}")
    a.I("s_sub_u32 s50, s50, 1")
    a.I(f"s_cmp_ge_u32 s51, {target}")
    a.I(f"s_cbranch_scc1 {l1}")
    a.I("s_cmp_eq_u32 s50, 0")
    a.I(f"s_cbranch_scc1 {l1}")
    a.I(f"s_sleep {slp}")
    a.I(f"s_branch {l0}")
    a.L(l1)

def lds_add1(a, addr, vaddr, vtmp):
    a.I(f"v_mov_b32 v{vaddr}, {addr}")
    a.I(f"v_mov_b32 v{vtmp}, 1")
    a.I("s_mov_b64 exec, 1")
    a.I(f"ds_add_u32 v{vaddr}, v{vtmp}")
    a.I("s_mov_b64 exec, -1")

def flag_store(a, soff, v0_, v1_):
    a.I(f"v_mov_b32 v{v0_}, s{S_NONCE}")
    a.I(f"v_mov_b32 v{v1_}, 0")
    a.I("s_mov_b64 exec, 1")
    a.I(f"buffer_store_dword v{v0_}, v{v1_}, {S4(RC)}, {soff} offen sc1")
    a.I("s_mov_b64 exec, -1")

def prologue(a):
    a.raw(f".globl {KN}\n.p2align 8\n.type {KN},@function\n{KN}:")
    if STAMPS:
        a.I("s_memrealtime s[94:95]")
        a.I("s_memtime s[92:93]")
    a.I("s_cmp_ge_u32 s2, 256")
    a.I("s_cbranch_scc1 L_end")
    a.I("s_load_dwordx4 s[4:7], s[0:1], 0")
    a.I("s_load_dwordx2 s[8:9], s[0:1], 16")
    a.I("s_load_dwordx4 s[12:15], s[0:1], 32")
    a.I("s_load_dwordx4 s[16:19], s[0:1], 48")
    a.I("s_load_dwordx4 s[20:23], s[0:1], 64")
    a.I("s_load_dwordx4 s[24:27], s[0:1], 80")
    a.I("v_lshrrev_b32 v2, 6, v0")
    a.I("v_and_b32 v1, 63, v0")
    a.I(f"v_readfirstlane_b32 s{S_W}, v2")
    if OPT.get("codeearly", 1):
        a.I("s_getpc_b64 s[52:53]")
        a.L("L_pc0")
        a.I(f"s_sub_u32 s52, s52, L_pc0-{KN}")
        a.I("s_subb_u32 s53, s53, 0")
        a.I("v_lshlrev_b32 v3, 7, v0")
        a.I(f"v_min_u32 v3, L_code_end-{KN}-4, v3")
        a.I(f"s_cmp_ge_u32 s{S_W}, 3")
        a.I("s_cbranch_scc1 L_pc1")
        a.I("global_load_dword v31, v3, s[52:53]")
        a.L("L_pc1")
    if STAMPS:
        a.I("v_mov_b32 v6, 0"); a.I("v_mov_b32 v7, 0")
    a.I("s_and_b32 s52, s2, 7")
    a.I("s_lshr_b32 s53, s2, 3")
    if OPT.get("map84"):
        a.I("s_lshr_b32 s54, s52, 1")
        a.I("s_lshl_b32 s54, s54, 3")
        a.I("s_lshr_b32 s55, s53, 2")
        a.I(f"s_add_u32 s{S_RB}, s54, s55")
        a.I("s_and_b32 s54, s52, 1")
        a.I("s_lshl_b32 s54, s54, 2")
        a.I("s_and_b32 s55, s53, 3")
        a.I(f"s_add_u32 s{S_CG}, s54, s55")
    else:
        a.I("s_lshr_b32 s54, s52, 2")
        a.I("s_lshl_b32 s54, s54, 4")
        a.I("s_lshr_b32 s55, s53, 1")
        a.I(f"s_add_u32 s{S_RB}, s54, s55")
        a.I("s_and_b32 s54, s52, 3")
        a.I("s_lshl_b32 s54, s54, 1")
        a.I("s_and_b32 s55, s53, 1")
        a.I(f"s_add_u32 s{S_CG}, s54, s55")
    a.I(f"s_mul_i32 s54, s{S_CG}, 6")
    a.I(f"s_min_u32 s{S_START}, s54, 37")
    a.I(f"s_lshl_b32 s{S_HD}, s52, 2")
    a.I("s_and_b32 s54, s53, 3")
    a.I(f"s_add_u32 s{S_HD}, s{S_HD}, s54")
    a.I(f"s_lshr_b32 s{S_QB}, s2, 5")
    a.I("s_waitcnt lgkmcnt(0)")
    if STAMPS:
        _stamp_names.append("entry")
        a.I("v_writelane_b32 v6, s92, 0")
        a.I("v_writelane_b32 v7, s94, 0")
    stamp(a, "karg")
    a.I(f"s_cmp_ge_u32 s{S_W}, 8")
    a.I("s_cbranch_scc1 L_aux")
    a.I(f"s_cmp_lt_u32 s{S_W}, 4")
    a.I("s_cbranch_scc1 L_cons")

GATEPOS = 3
def producer(a, aux):
    T = "a" if aux else "p"
    if OPT.get("pprio"): a.I(f"s_setprio {OPT['pprio']}")
    a.I(f"s_sub_u32 s67, s{S_W}, 4")
    a.I(f"s_lshl_b32 s54, s{S_RB}, 16")
    srd_off(a, RA, S_AX, "s54", 65536)
    srd(a, RB, S_WQKV, 512*3072)
    a.I("v_lshrrev_b32 v2, 3, v1")
    a.I("s_lshl_b32 s54, s67, 3")
    a.I("v_add_u32 v2, s54, v2")
    a.I("v_lshrrev_b32 v3, 4, v1")
    a.I("s_and_b32 s54, s67, 1")
    a.I("s_lshl_b32 s54, s54, 2")
    a.I("v_add_u32 v3, s54, v3")
    a.I("v_and_b32 v4, 7, v1")
    a.I("v_xor_b32 v3, v3, v4")
    a.I("v_lshlrev_b32 v3, 4, v3")
    a.I("v_lshl_add_u32 v12, v2, 10, v3")
    a.I("s_lshl_b32 s68, s67, 10")
    def woffs(dst, pitch, segshift):
        for j in range(3):
            a.I(f"v_add_u32 v2, {64*j}, v1")
            a.I("v_mul_u32_u24 v3, 171, v2")
            a.I("v_lshrrev_b32 v3, 12, v3")
            a.I("v_mul_u32_u24 v4, 24, v3")
            a.I("v_sub_u32 v2, v2, v4")
            a.I("v_lshrrev_b32 v4, 3, v2")
            a.I("v_and_b32 v2, 7, v2")
            a.I("v_bfe_u32 v5, v3, 1, 1")
            a.I("v_lshlrev_b32 v5, 2, v5")
            a.I("v_xor_b32 v2, v2, v5")
            a.I("v_lshlrev_b32 v2, 4, v2")
            a.I(f"v_mul_u32_u24 v5, {pitch}, v3")
            a.I(f"v_lshl_add_u32 v5, v4, {segshift}, v5")
            a.I(f"v_add_u32 v{dst+j}, v5, v2")
    woffs(13, 3072, 10)
    a.I("s_mul_i32 s69, s67, 3072")
    a.I("s_add_u32 s69, s69, 0x10000")
    a.I(f"s_lshl_b32 s70, s{S_CG}, 7")
    a.I(f"s_mul_i32 s71, s67, {8*3072}")
    a.I("s_add_u32 s70, s70, s71")
    def pre_setup(item):
        k, c = item
        if k == "X":
            a.I(f"s_add_u32 m0, s68, {c*8192}")
            a.I(f"s_movk_i32 s81, {c*128}")
        else:
            a.I(f"s_add_u32 s82, s70, {c*64*3072}" if c < 8 else f"s_add_u32 s82, s71, {(c-8)*64*2752}")
            a.I(f"s_add_u32 m0, s69, {(c&3)*24576}")
    def issue_x(c, done=False):
        if OPT.get("p1noprod"): return
        if not done:
            a.I(f"s_add_u32 m0, s68, {c*8192}")
            a.I(f"s_movk_i32 s81, {c*128}")
        a.I(f"buffer_load_dwordx4 v12, {S4(RA)}, s81 offen lds")
    def issue_w(c, done=False):
        if OPT.get("p1noprod"): return
        if c < 8:
            if not done: a.I(f"s_add_u32 s82, s70, {c*64*3072}")
            vo, R = 13, RB
        else:
            if not done: a.I(f"s_add_u32 s82, s71, {(c-8)*64*2752}")
            vo, R = 16, RC
        for j in range(3):
            if not (done and j == 0):
                a.I(f"s_add_u32 m0, s69, {(c&3)*24576 + j*1024}")
                a.I("s_nop 0")
            a.I(f"buffer_load_dwordx4 v{vo+j}, {S4(R)}, s82 offen lds")
    sched = OPT.get("sched", 0)
    if sched == 0:
        pre = [("X",0),("W",0),("X",1),("W",1),("X",2),("W",2)]
        post = {c: ([("X",c+3)] if c+3 < 8 else []) + ([("W",c+3)] if c+3 < 16 else []) for c in range(16)}
    elif sched == 1:
        pre = [("X",0),("W",0),("X",1),("W",1),("X",2),("W",2),("X",3),("W",3),("X",4),("X",5),("X",6),("X",7)]
        post = {c: ([("W",c+3)] if (c >= 1 and c+3 < 16) else []) for c in range(16)}
    elif sched == 2:
        pre = [("X",0),("W",0),("X",1),("W",1),("X",2),("W",2),("X",3),("W",3)]
        post = {c: ([("W",c+3)] if (c >= 1 and c+3 < 16) else []) for c in range(16)}
        post[0] = [("X",4),("X",5),("X",6),("X",7)]
    fifo = []
    def do(item, done=False):
        k, c = item
        if k == "X":
            if OPT.get("skipx"): fifo.append((item, 0)); return
            issue_x(c, done); fifo.append((item, 1))
        else:
            if OPT.get("skipw") and c < 8: fifo.append((item, 0)); return
            issue_w(c, done); fifo.append((item, 3))
    for it in pre: do(it)
    if OPT.get("pfprod") and not aux:
        a.I(f"s_mov_b32 s89, s{S_W}")
        a.I(f"s_sub_u32 s{S_W}, s{S_W}, 4")
        l2_prefetch(a, 0)
        a.I(f"s_mov_b32 s{S_W}, s89")
        fifo.append(("pf", 2))
    stamp(a, "issued3")
    nside = 0
    if aux:
        nside = aux_side_issue(a)
    srd(a, RC, S_W1, 512*2752)
    if OPT.get("w1perm", 0):
        for j in range(3):
            a.I(f"v_add_u32 v2, {64*j}, v1")
            a.I("v_mul_u32_u24 v3, 171, v2")
            a.I("v_lshrrev_b32 v3, 12, v3")
            a.I("v_mul_u32_u24 v4, 24, v3")
            a.I("v_sub_u32 v2, v2, v4")
            a.I("v_lshrrev_b32 v4, 2, v2")
            a.I("v_and_b32 v2, 3, v2")
            a.I("v_bfe_u32 v5, v3, 1, 1")
            a.I("v_xor_b32 v4, v4, v5")
            a.I("v_add_u32 v5, 1, v4")
            a.I("v_cmp_eq_u32 vcc, 4, v4")
            a.I("s_nop 1")
            a.I("v_cndmask_b32_e64 v5, v5, 0, vcc")
            a.I("v_cmp_eq_u32 vcc, 5, v4")
            a.I("s_nop 1")
            a.I("v_cndmask_b32_e64 v5, v5, 5, vcc")
            a.I(f"v_add_u32 v19, s{S_START}, v3")
            a.I("v_and_b32 v19, 1, v19")
            a.I("v_cmp_eq_u32 vcc, 1, v19")
            a.I("s_nop 1")
            a.I("v_cndmask_b32 v4, v4, v5, vcc")
            a.I("v_lshlrev_b32 v4, 6, v4")
            a.I("v_lshl_add_u32 v4, v2, 4, v4")
            a.I("v_mul_u32_u24 v5, 2752, v3")
            a.I(f"v_add_u32 v{16+j}, v5, v4")
    else:
        woffs(16, 2752, 7)
    a.I(f"s_lshl_b32 s71, s{S_START}, 6")
    a.I(f"s_mul_i32 s72, s67, {8*2752}")
    a.I("s_add_u32 s71, s71, s72")
    fap = OPT.get("fapos", 2)
    assert fap >= 0
    for c in range(16):
        need = [("W", c)] + ([("X", c)] if c < 8 else [])
        idx = max(i for i, (it, _) in enumerate(fifo) if it in need)
        allow = sum(k for _, k in fifo[idx+1:])
        if c == 0 and STAMPS and OPT.get("fine"): a.I("s_mov_b32 s87, 24")
        stamp_dyn(a)
        early = OPT.get("early", 1) and not STAMPS and len(post[c]) > 0 and not OPT.get("p1noprod")
        if early:
            pre_setup(post[c][0])
        a.I(f"s_waitcnt vmcnt({allow})")
        stamp_dyn(a)
        a.I("s_barrier")
        for n_, it in enumerate(post[c]): do(it, early and n_ == 0)
        if aux and c == 2:
            fifo.append(("side", aux_side_loads(a)))
        if aux and c == 6:
            aux_gate(a)
            fifo.append(("g", 1))
        if aux and c == 4:
            fifo.append(("nonce", aux_nonce_issue(a)))
        if aux and c == 10:
            aux_zero_misc(a)
        if aux and c == 8:
            aux_nonce_take(a)
        if aux and c == 12:
            aux_share_nonce(a)
        if aux and c == 15:
            aux_fa_probe(a)
        if aux and c == 9 + fap:
            aux_publish_fa(a)
    a.I("s_barrier")
    if aux:
        aux_after_e1(a)
    else:
        if OPT.get("pprio"): a.I("s_setprio 0")
        a.I("s_branch L_attn")

def glob_w2(a):
    a.I("v_lshlrev_b32 v20, 7, v1")
    srd(a, RC, S_W2, 1376*1024)
    a.I("s_mul_i32 s54, s2, 5504")
    a.I("s_mov_b32 exec_hi, 0xfff")
    a.I(f"buffer_load_dword v24, v20, {S4(RC)}, s54 offen")
    srd(a, RC, S_WO, 512*1024)
    a.I("s_lshl_b32 s54, s2, 11")
    a.I("s_mov_b32 exec_hi, 0")
    a.I("s_mov_b32 exec_lo, 0xffff")
    a.I(f"buffer_load_dword v25, v20, {S4(RC)}, s54 offen")
    a.I("s_mov_b64 exec, -1")

def l2_prefetch(a, part):
    a.I("s_and_b32 s52, s2, 7")
    a.I("s_lshr_b32 s53, s2, 3")
    a.I("s_lshl_b32 s54, s53, 4")
    a.I(f"s_lshl_b32 s55, s{S_W}, 2")
    a.I("s_add_u32 s56, s54, s55")
    if OPT.get("pfglob", 1) and part == 0:
        lg = lab("pfg")
        G64 = OPT.get("pg64", 0)
        a.I(f"v_lshlrev_b32 v20, {6 if G64 else 7}, v1")
        def touch(nbytes):
            step = 64 if G64 else 128
            lanes = -(-nbytes // step)
            off = 0
            while lanes > 0:
                n = min(lanes, 64)
                if n < 64:
                    a.I(f"s_mov_b32 exec_lo, {hex((1 << min(n, 32)) - 1)}")
                    a.I(f"s_mov_b32 exec_hi, {hex((1 << max(n - 32, 0)) - 1)}")
                a.I(f"buffer_load_dword v24, v20, {S4(RC)}, s54 offen")
                if n < 64: a.I("s_mov_b64 exec, -1")
                lanes -= n
                if lanes > 0: a.I(f"s_add_u32 s54, s54, {64*step}")
        a.I(f"s_cmp_eq_u32 s{S_W}, 0")
        a.I(f"s_cbranch_scc0 {lg}a")
        srd(a, RC, S_AX, 2*MB)
        a.I("s_lshl_b32 s54, s2, 13")
        touch(8192)
        a.I(f"s_branch {lg}d")
        a.L(f"{lg}a")
        a.I(f"s_cmp_eq_u32 s{S_W}, 1")
        a.I(f"s_cbranch_scc0 {lg}b")
        srd(a, RC, S_WQKV, 512*3072)
        a.I("s_mul_i32 s54, s2, 6144")
        touch(6144)
        a.I(f"s_branch {lg}d")
        a.L(f"{lg}b")
        a.I(f"s_cmp_eq_u32 s{S_W}, {99 if OPT.get('w1late') else 2}")
        a.I(f"s_cbranch_scc0 {lg}c")
        srd(a, RC, S_W1, 512*2752)
        a.I("s_mul_i32 s54, s2, 5504")
        touch(5504)
        a.I(f"s_branch {lg}d")
        a.L(f"{lg}c")
        if OPT.get("pfw2") == 1:
            glob_w2(a)
        if OPT.get("tlb"):
            offs = [0, 2*MB + 4096, 4*MB + 8192, 6*MB + 12288, 11*MB + 512*1024, 12*MB + 16384, 14*MB, 16*MB + 4096]
            a.I("v_mov_b32 v21, 0")
            for i, o in enumerate(offs):
                a.I(f"v_mov_b32 v22, {o}")
                a.I(f"v_cmp_eq_u32 vcc, {i}, v1")
                a.I("s_nop 1")
                a.I("v_cndmask_b32 v21, v21, v22, vcc")
            a.I("s_mov_b32 exec_lo, 0xff")
            a.I("s_mov_b32 exec_hi, 0")
            a.I(f"global_load_dword v25, v21, s[{S_WS}:{S_WS+1}]")
            a.I("s_mov_b64 exec, -1")
        a.L(f"{lg}d")
        if OPT.get("pfglob", 1) == 1: return
        OPT["nopfx"] = 1 if OPT["pfglob"] == 2 else 0
    if OPT.get("map84"):
        if part == 0:
            srd(a, RC, S_AX, 2*MB)
            a.I("s_lshr_b32 s54, s52, 1")
            a.I("s_lshl_b32 s54, s54, 9")
            a.I("s_add_u32 s54, s54, s56")
            a.I("s_lshl_b32 s54, s54, 10")
            a.I("v_lshlrev_b32 v20, 7, v1")
            a.I("s_mov_b32 exec_hi, 0")
            a.I(f"buffer_load_dword v24, v20, {S4(RC)}, s54 offen")
            a.I("s_mov_b64 exec, -1")
            srd(a, RC, S_WQKV, 512*3072)
            a.I("s_mul_i32 s54, s56, 3072")
            a.I("s_and_b32 s55, s52, 1")
            a.I("s_lshl_b32 s55, s55, 9")
            a.I("s_add_u32 s54, s54, s55")
            a.I("v_lshrrev_b32 v21, 4, v1")
            a.I("v_mul_u32_u24 v21, 3072, v21")
            a.I("v_bfe_u32 v22, v1, 2, 2")
            a.I("v_min_u32 v22, 2, v22")
            a.I("v_lshl_add_u32 v21, v22, 10, v21")
            a.I("v_and_b32 v22, 3, v1")
            a.I("v_lshl_add_u32 v21, v22, 7, v21")
            a.I(f"buffer_load_dword v25, v21, {S4(RC)}, s54 offen")
        else:
            srd(a, RC, S_W1, 512*2752)
            a.I("s_and_b32 s55, s52, 1")
            a.I("s_mul_i32 s55, s55, 1536")
            a.I("s_mul_i32 s54, s56, 2752")
            a.I("s_add_u32 s54, s54, s55")
            a.I("v_lshrrev_b32 v21, 4, v1")
            a.I("v_mul_u32_u24 v21, 2752, v21")
            a.I("v_and_b32 v22, 15, v1")
            a.I("v_min_u32 v22, 12, v22")
            a.I("v_lshl_add_u32 v21, v22, 7, v21")
            a.I(f"buffer_load_dword v26, v21, {S4(RC)}, s54 offen")
        return
    if part == 2:
        a.I(f"s_cmp_lg_u32 s{S_W}, 0")
        a.I("s_cbranch_scc1 L_pf2")
        srd(a, RC, S_WQKV, 512*3072)
        a.I("s_lshl_b32 s54, s53, 3")
        a.I("s_add_u32 s54, s54, 256")
        a.I("s_mul_i32 s54, s54, 3072")
        a.I("s_and_b32 s55, s52, 3")
        a.I("s_lshl_b32 s55, s55, 8")
        a.I("s_add_u32 s54, s54, s55")
        a.I("v_lshrrev_b32 v21, 3, v1")
        a.I("v_mul_u32_u24 v21, 3072, v21")
        a.I("v_bfe_u32 v22, v1, 1, 2")
        a.I("v_min_u32 v22, 2, v22")
        a.I("v_lshl_add_u32 v21, v22, 10, v21")
        a.I("v_and_b32 v22, 1, v1")
        a.I("v_lshl_add_u32 v21, v22, 7, v21")
        a.I(f"buffer_load_dword v25, v21, {S4(RC)}, s54 offen")
        a.L("L_pf2")
    elif part == 0:
        G = OPT.get("pfg", 128)
        sh = {128: 7, 64: 6, 32: 5}[G]
        srd(a, RC, S_AX, 2*MB)
        a.I("s_lshr_b32 s54, s52, 2")
        a.I("s_lshl_b32 s54, s54, 10")
        a.I("s_lshl_b32 s55, s53, 5")
        a.I("s_add_u32 s54, s54, s55")
        a.I(f"s_lshl_b32 s55, s{S_W}, 3")
        a.I("s_add_u32 s54, s54, s55")
        a.I("s_lshl_b32 s54, s54, 10")
        if OPT.get("pftrim", 0):
            a.I("v_and_b32 v20, 7, v1")
            a.I("v_max_u32 v20, 3, v20")
            a.I("v_lshlrev_b32 v20, 7, v20")
            a.I("v_lshrrev_b32 v21, 3, v1")
            a.I("v_lshl_add_u32 v20, v21, 10, v20")
        else:
            a.I(f"v_lshlrev_b32 v20, {sh}, v1")
        for i in range(0 if OPT.get("nopfx") else 8192 // (64*G)):
            a.I(f"buffer_load_dword v24, v20, {S4(RC)}, s54 offen")
            a.I(f"s_add_u32 s54, s54, {64*G}")
        if OPT.get("pftrim", 0):
            a._pfl = lab("pfs")
            a.I("s_cmp_lt_u32 s53, 12")
            a.I(f"s_cbranch_scc1 {a._pfl}")
        srd(a, RC, S_WQKV, 512*3072)
        a.I("s_mul_i32 s54, s56, 3072")
        a.I("s_and_b32 s55, s52, 3")
        a.I("s_lshl_b32 s55, s55, 8")
        a.I("s_add_u32 s54, s54, s55")
        per = 256 // G
        a.I("v_lshrrev_b32 v21, 4, v1")
        a.I("v_mul_u32_u24 v21, 3072, v21")
        a.I("v_and_b32 v22, 15, v1")
        if G == 64:
            a.I("v_lshrrev_b32 v23, 2, v22")
            a.I("v_min_u32 v23, 2, v23")
            a.I("v_lshl_add_u32 v21, v23, 10, v21")
            a.I("v_and_b32 v22, 3, v22")
            a.I("v_lshl_add_u32 v21, v22, 6, v21")
            a.I(f"buffer_load_dword v25, v21, {S4(RC)}, s54 offen")
        elif G == 32:
            a.I("v_lshrrev_b32 v23, 3, v22")
            a.I("v_lshl_add_u32 v21, v23, 10, v21")
            a.I("v_and_b32 v22, 7, v22")
            a.I("v_lshl_add_u32 v21, v22, 5, v21")
            a.I(f"buffer_load_dword v25, v21, {S4(RC)}, s54 offen")
            a.I(f"buffer_load_dword v25, v21, {S4(RC)}, s54 offen offset:2048")
        else:
            a.I("v_lshrrev_b32 v23, 1, v22")
            a.I("v_min_u32 v23, 2, v23")
            a.I("v_lshl_add_u32 v21, v23, 10, v21")
            a.I("v_and_b32 v22, 1, v22")
            a.I("v_lshl_add_u32 v21, v22, 7, v21")
            a.I(f"buffer_load_dword v25, v21, {S4(RC)}, s54 offen")
        if OPT.get("pftrim", 0):
            a.L(a._pfl)
    else:
        a.I(f"s_cmp_ge_u32 s{S_W}, 2")
        a.I("s_cbranch_scc1 L_pf1")
        srd(a, RC, S_W1, 512*2752)
        a.I("s_and_b32 s55, s52, 3")
        a.I("s_mul_i32 s55, s55, 12")
        a.I("s_min_u32 s55, s55, 31")
        a.I("s_lshl_b32 s55, s55, 6")
        a.I("s_lshl_b32 s54, s53, 4")
        a.I(f"s_lshl_b32 s56, s{S_W}, 3")
        a.I("s_add_u32 s54, s54, s56")
        a.I("s_mul_i32 s54, s54, 2752")
        a.I("s_add_u32 s54, s54, s55")
        a.I("v_lshrrev_b32 v21, 3, v1")
        a.I("v_mul_u32_u24 v21, 2752, v21")
        a.I("v_and_b32 v22, 7, v1")
        a.I("v_lshl_add_u32 v21, v22, 7, v21")
        a.I(f"buffer_load_dword v26, v21, {S4(RC)}, s54 offen")
        a.L("L_pf1")

def consumer(a):
    a.L("L_cons")
    H, XA, WA, ACC, B1, FA, FB = 2, 8, 12, 32, 80, 104, 136
    if not OPT.get("nopf") and not OPT.get("pflate") and not OPT.get("pfprod"):
        l2_prefetch(a, OPT.get("pfmode", 0))
    a.I(f"v_lshrrev_b32 v{H}, 5, v1")
    a.I(f"s_and_b32 s63, s{S_W}, 1")
    a.I(f"s_lshr_b32 s64, s{S_W}, 1")
    srd(a, RD, S_B1, 2752)
    a.I(f"s_add_u32 s54, s{S_START}, s63")
    a.I("s_lshl_b32 s54, s54, 6")
    a.I(f"v_lshlrev_b32 v3, 3, v{H}")
    for s in range(3):
        for q in range(4):
            r = B1 + (s*4+q)*2
            a.I(f"buffer_load_dwordx2 v[{r}:{r+1}], v3, {S4(RD)}, s54 offen offset:{s*128+q*16}")
    for i in range(48):
        a.I(f"v_mov_b32 v{ACC+i}, 0")
    a.I("v_and_b32 v16, 31, v1")
    a.I("v_bfe_u32 v17, v1, 1, 3")
    a.I("s_lshl_b32 s54, s64, 5")
    a.I("v_add_u32 v16, s54, v16")
    a.I("v_lshlrev_b32 v16, 7, v16")
    a.I(f"v_xor_b32 v17, v17, v{H}")
    for ks in range(4):
        a.I(f"v_xor_b32 v18, {2*ks}, v17")
        a.I(f"v_lshl_add_u32 v{XA+ks}, v18, 4, v16")
    tr_lane_addr(a, WA, 1, 16, 17, 8, 384)
    a.I("s_lshl_b32 s54, s63, 6")
    a.I(f"v_xor_b32 v{WA}, s54, v{WA}")
    a.I(f"v_add_u32 v{WA}, 0x10000, v{WA}")
    a.I(f"v_add_u32 v{WA+1}, 49152, v{WA}")
    WF1 = [14, 15, 28, 29, 30, 31]
    if OPT.get("w1perm", 0):
        a.I("v_bfe_u32 v16, v1, 2, 2")
        a.I(f"v_lshl_add_u32 v17, v{H}, 3, v16")
        a.I("v_mul_u32_u24 v17, 384, v17")
        a.I("v_bfe_u32 v18, v1, 4, 1")
        a.I("v_lshlrev_b32 v18, 1, v18")
        a.I("v_bfe_u32 v19, v1, 1, 1")
        a.I("v_add_u32 v18, v18, v19")
        a.I("v_lshl_add_u32 v17, v18, 4, v17")
        a.I("v_and_b32 v18, 1, v1")
        a.I("v_lshl_add_u32 v17, v18, 3, v17")
        a.I("v_add_u32 v17, 0x10000, v17")
        a.I(f"v_add_u32 v18, s{S_START}, v16")
        a.I("v_and_b32 v18, 1, v18")
        a.I("v_cmp_eq_u32 vcc, 1, v18")
        a.I("v_bfe_u32 v19, v1, 3, 1")
        inv = [4, 0, 1, 2, 3, 5]
        for s_ in range(3):
            a.I(f"s_cmp_eq_u32 s63, 0")
            a.I(f"s_cselect_b32 s54, {2*s_}, {2*s_+1}")
            a.I(f"s_cselect_b32 s55, {inv[2*s_]}, {inv[2*s_+1]}")
            a.I(f"v_mov_b32 v26, s54")
            a.I(f"v_mov_b32 v27, s55")
            a.I(f"v_cndmask_b32 v26, v26, v27, vcc")
            a.I(f"v_xor_b32 v26, v26, v19")
            a.I(f"v_lshl_add_u32 v{WF1[s_]}, v26, 6, v17")
            a.I(f"v_add_u32 v{WF1[3+s_]}, 49152, v{WF1[s_]}")

    def reads(b, G, F, qkv=True):
        out = []
        if OPT.get("p1nocons"): return ["s_nop 0"]
        wv = WA + (b >> 1)
        for l in range(2):
            ks = 2*G + l
            out.append(f"ds_read_b128 {vr(F+4*l,4)}, v{XA+ks} offset:{b*8192}")
            for s in range(3):
                for rd in range(2):
                    if qkv or not OPT.get("w1perm", 0):
                        out.append(f"ds_read_b64_tr_b16 {vr(F+8+12*l+4*s+2*rd,2)}, v{wv} offset:{(b&1)*24576 + ks*6144 + rd*1536 + s*128}")
                    else:
                        out.append(f"ds_read_b64_tr_b16 {vr(F+8+12*l+4*s+2*rd,2)}, v{WF1[3*(b>>1)+s]} offset:{(b&1)*24576 + ks*6144 + rd*1536}")
        return out
    def mfmas(F, qkv):
        out = []
        if OPT.get("p1nocons") or OPT.get("p1nomfma"): return ["s_nop 0"]
        for l in range(2):
            for s in range(3):
                X, W = F+4*l, F+8+12*l+4*s
                out.append(MF(ACC+16*s, X, W, ACC+16*s) if (qkv and s == 2) else MF(ACC+16*s, W, X, ACC+16*s))
        return out
    def inter(mf, rd):
        out = []
        per = OPT.get("iper", [4, 4, 3, 3, 0, 0])
        if len(mf) != 6: return mf + rd
        k = 0
        for i, m in enumerate(mf):
            out.append(m)
            out += rd[k:k+per[i]]
            k += per[i]
        assert k >= len(rd)
        return out
    def stage_loop(tag, qkv):
        a.I("s_mov_b32 s65, 0x8000")
        a.L(f"L_loop_{tag}")
        fap = OPT.get("fapos", 2)
        for b in range(4):
            a.I("s_waitcnt lgkmcnt(0)")
            a.I(J(inter(mfmas(FA, qkv), reads(b, 1, FB, qkv))))
            if (not qkv) and b == (fap & 3):
                if fap >= 4:
                    a.I("s_cmp_lt_i32 s65, 0")
                    a.I(f"s_cbranch_scc0 L_nodrain")
                a.I("s_waitcnt vmcnt(0)")
                if fap >= 4: a.L("L_nodrain")
            a.I("s_waitcnt lgkmcnt(0)")
            if b == 3:
                if not qkv:
                    a.I("s_cmp_lt_i32 s65, 0")
                    a.I(f"s_cbranch_scc1 L_last_{tag}")
                for ks in range(4):
                    a.I(f"v_add_u32 v{XA+ks}, s65, v{XA+ks}")
            stamp_dyn(a)
            a.I("s_barrier")
            stamp_dyn(a)
            if qkv and b == 3:
                a.I("s_cmp_lt_i32 s65, 0")
                a.I("s_cbranch_scc1 L_qtail")
            a.I(J(inter(mfmas(FB, qkv), reads((b+1) % 4, 0, FA, qkv))))
        if qkv:
            a.I("s_mov_b32 s65, 0xffff8000")
            a.I(f"s_branch L_loop_{tag}")
            a.L("L_qtail")
            a.I(J(inter(mfmas(FB, qkv), reads(0, 0, FA, False))))
        else:
            a.I("s_mov_b32 s65, 0xffff8000")
            a.I(f"s_branch L_loop_{tag}")
        if not qkv:
            a.L(f"L_last_{tag}")
            a.I(J(mfmas(FB, qkv)))

    if OPT.get("pflate"):
        for i in range(OPT["pflate"]):
            a.I("s_sleep 8")
        l2_prefetch(a, 0)
    if OPT.get("pfw1early"):
        l2_prefetch(a, 1)
    a.I("s_barrier")
    stamp(a, "B0")
    if STAMPS and OPT.get("fine"): a.I("s_mov_b32 s87, 24")
    if not OPT.get("nopf") and not OPT.get("pfw1early") and not OPT.get("nopfw1", 1):
        l2_prefetch(a, 1)
    if OPT.get("w1late"):
        lw1 = lab("pw1")
        a.I(f"s_cmp_lg_u32 s{S_W}, 2")
        a.I(f"s_cbranch_scc1 {lw1}")
        a.I("v_lshlrev_b32 v20, 7, v1")
        srd(a, RC, S_W1, 512*2752)
        a.I("s_mul_i32 s54, s2, 5504")
        a.I("s_mov_b32 exec_hi, 0xfff")
        a.I(f"buffer_load_dword v24, v20, {S4(RC)}, s54 offen")
        a.I("s_mov_b64 exec, -1")
        a.L(lw1)
    if OPT.get("pfw2") == 2:
        lw = lab("pw2")
        a.I(f"s_cmp_lg_u32 s{S_W}, 3")
        a.I(f"s_cbranch_scc1 {lw}")
        glob_w2(a)
        a.L(lw)
    a.I(J(reads(0, 0, FA)))
    stage_loop("q", True)
    stamp(a, "qloop")
    srd(a, RA, S_WS, VF + 2*MB)
    a.I(f"s_lshl_b32 s54, s{S_RB}, 1")
    a.I("s_add_u32 s54, s54, s64")
    a.I(f"s_lshl_b32 s55, s{S_CG}, 2")
    a.I("s_lshl_b32 s56, s63, 1")
    a.I("s_add_u32 s55, s55, s56")
    a.I("s_lshl_b32 s55, s55, 6")
    a.I("s_add_u32 s54, s54, s55")
    a.I("s_lshl_b32 s54, s54, 10")
    a.I("v_lshlrev_b32 v3, 4, v1")
    a.I("v_bfe_u32 v4, v1, 4, 1")
    a.I("v_lshlrev_b32 v4, 16, v4")
    a.I(f"v_lshl_add_u32 v4, v{H}, 8, v4")
    a.I("v_and_b32 v5, 15, v1")
    a.I("v_lshl_add_u32 v4, v5, 4, v4")
    a.I(f"s_mov_b32 s56, {hex(f2u(QSCALE))}")
    a.I("s_waitcnt vmcnt(0)")
    a.I("s_nop 4")
    for idx, s in enumerate((1, 2, 0)):
        d = ACC + 16*s
        if s == 0:
            for i in range(16):
                a.I(f"v_mul_f32 v{d+i}, s56, v{d+i}")
        for j in range(8):
            a.I(f"v_cvt_pk_bf16_f32 v{d+j}, v{d+2*j}, v{d+2*j+1}")
        if s < 2:
            for hh in range(2):
                a.I(f"s_add_u32 s55, s54, {(KF if s else QF) + hh*65536}")
                a.I(f"buffer_store_dwordx4 {vr(d+4*hh,4)}, v3, {S4(RA)}, s55 offen sc1")
        else:
            a.I(f"s_add_u32 s55, s54, {VF}")
            for u in range(2):
                a.I(f"buffer_store_dwordx4 {vr(d+4*u,4)}, v4, {S4(RA)}, s55 offen offset:{u*512} sc1")
    a.I("s_nop 1")
    for s in range(3):
        for q in range(4):
            r = B1 + (s*4+q)*2
            d = ACC + s*16 + q*4
            a.I(f"v_lshlrev_b32 v{d}, 16, v{r}")
            a.I(f"v_and_b32 v{d+1}, 0xffff0000, v{r}")
            a.I(f"v_lshlrev_b32 v{d+2}, 16, v{r+1}")
            a.I(f"v_and_b32 v{d+3}, 0xffff0000, v{r+1}")
    stage_loop("f", False)
    a.I("s_barrier")
    stamp(a, "floop")
    srd_off(a, RA, S_WS, HF, HF_SIZE)
    a.I(f"s_lshl_b32 s54, s{S_RB}, 1")
    a.I("s_add_u32 s54, s54, s64")
    a.I(f"s_add_u32 s55, s{S_START}, s63")
    a.I("s_lshl_b32 s55, s55, 7")
    a.I("s_add_u32 s54, s54, s55")
    a.I("s_lshl_b32 s54, s54, 10")
    a.I("v_lshlrev_b32 v3, 4, v1")
    a.I("s_nop 4")
    for s in range(3):
        d = ACC + 16*s
        for i in range(16):
            a.I(f"v_max_f32 v{d+i}, 0, v{d+i}")
        for i in range(16):
            a.I(f"v_mul_f32 v{d+i}, v{d+i}, v{d+i}")
        for j in range(8):
            a.I(f"v_cvt_pk_bf16_f32 v{d+j}, v{d+2*j}, v{d+2*j+1}")
        for uu in range(2):
            a.I(f"s_add_u32 s55, s54, {(4*s+uu)*65536}")
            a.I(f"buffer_store_dwordx4 {vr(d+4*uu,4)}, v3, {S4(RA)}, s55 offen sc1")
    a.I("s_nop 1")
    a.I("s_branch L_attn")

def aux_side_issue(a):
    a.I("s_sub_u32 s66, s67, 4")
    a.I(f"s_lshl_b32 s54, s2, 2")
    a.I("s_or_b32 s54, s54, s66")
    a.I("s_cmp_lg_u32 s54, 0")
    a.I("s_cbranch_scc1 L_aux1")
    srd(a, RD, S_DBG, 256)
    a.I("s_memrealtime s[54:55]")
    a.I("s_waitcnt lgkmcnt(0)")
    a.I("s_or_b32 s85, s54, 1")
    a.I("v_mov_b32 v8, s85")
    a.I("v_mov_b32 v10, 0")
    a.I("s_mov_b64 exec, 1")
    a.I(f"buffer_store_dword v8, v10, {S4(RD)}, 0 offen sc1")
    a.I("s_mov_b64 exec, -1")
    a.L("L_aux1")
    a.I(f"s_lshl_b32 s54, s{S_RB}, 6")
    a.I(f"s_lshl_b32 s55, s{S_CG}, 3")
    a.I("s_add_u32 s54, s54, s55")
    a.I("s_lshl_b32 s55, s66, 1")
    a.I("s_add_u32 s86, s54, s55")
    return 0

def aux_side_loads(a):
    a.I("s_lshl_b32 s54, s86, 10")
    srd_off(a, RD, S_AX, "s54", 2048)
    a.I("v_and_b32 v2, 31, v1")
    a.I("v_lshlrev_b32 v2, 5, v2")
    a.I("v_lshrrev_b32 v3, 5, v1")
    a.I("v_lshl_add_u32 v4, v3, 10, v2")
    for i in range(2):
        a.I(f"buffer_load_dwordx4 {vr(32+4*i,4)}, v4, {S4(RD)}, 0 offen offset:{16*i}")
    srd(a, RD, S_GW, 1024)
    for i in range(2):
        a.I(f"buffer_load_dwordx4 {vr(40+4*i,4)}, v2, {S4(RD)}, 0 offen offset:{16*i}")
    n = 4
    if OPT.get("codepf", 1) and not OPT.get("codeearly", 1):
        a.I("s_getpc_b64 s[52:53]")
        a.L("L_pc")
        a.I(f"s_sub_u32 s52, s52, L_pc-{KN}")
        a.I("s_subb_u32 s53, s53, 0")
        a.I("s_mul_i32 s54, s66, 6144")
        a.I("v_lshlrev_b32 v5, 7, v1")
        a.I("v_add_u32 v5, s54, v5")
        a.I(f"v_min_u32 v5, L_code_end-{KN}-4, v5")
        a.I("s_mov_b32 exec_hi, 0xffff")
        a.I("global_load_dword v116, v5, s[52:53]")
        a.I("s_mov_b64 exec, -1")
        n += 1
    return n

def aux_nonce_issue(a):
    srd(a, RD, S_DBG, 256)
    a.I("v_mov_b32 v10, 0")
    a.I(f"buffer_load_dword v8, v10, {S4(RD)}, 0 offen sc1")
    return 1

def aux_nonce_take(a):
    a.I(f"v_readfirstlane_b32 s{S_NONCE}, v8")
    a.I("s_mov_b32 s50, 0x40000")
    a.L("L_nonce")
    a.I(f"s_cmp_lg_u32 s{S_NONCE}, 0")
    a.I("s_cbranch_scc1 L_nonce_ok")
    a.I("s_sub_u32 s50, s50, 1")
    a.I("s_cmp_eq_u32 s50, 0")
    a.I("s_cbranch_scc1 L_nonce_ok")
    srd(a, RD, S_DBG, 256)
    a.I(f"buffer_load_dword v8, v10, {S4(RD)}, 0 offen sc1")
    a.I("s_waitcnt vmcnt(0)")
    a.I(f"v_readfirstlane_b32 s{S_NONCE}, v8")
    a.I("s_branch L_nonce")
    a.L("L_nonce_ok")

def aux_gate(a):
    if OPT.get("p1noprod"): a.I("s_waitcnt vmcnt(0)")
    a.I("v_mov_b32 v24, 0")
    for i in range(8):
        a.I(f"v_dot2c_f32_bf16 v24, v{32+i}, v{40+i}")
    a.I("s_nop 3")
    for sh in (1, 2, 4, 8):
        a.I(f"v_add_f32_dpp v24, v24, v24 row_shr:{sh} row_mask:0xf bank_mask:0xf")
        a.I("s_nop 1")
    a.I("v_add_f32_dpp v24, v24, v24 row_bcast:15 row_mask:0xa bank_mask:0xf")
    a.I("s_nop 1")
    a.I("v_cvt_pk_bf16_f32 v24, v24, v24")
    a.I("v_and_b32 v24, 0xffff0000, v24")
    a.I(f"v_mul_f32 v24, {hex(f2u(-1.4426950408889634))}, v24")
    a.I("v_exp_f32 v24, v24")
    a.I("s_nop 0")
    a.I("v_add_f32 v24, 1.0, v24")
    a.I("v_rcp_f32 v24, v24")
    a.I("s_nop 0")
    a.I("v_cvt_pk_bf16_f32 v24, v24, v24")
    a.I("v_and_b32 v24, 0xffff0000, v24")
    srd_off(a, RD, S_WS, GO, 8192)
    a.I("s_lshl_b32 s54, s86, 2")
    a.I("v_lshrrev_b32 v3, 5, v1")
    a.I("v_lshlrev_b32 v3, 2, v3")
    a.I("s_mov_b32 s52, 0x80000000")
    a.I("s_mov_b32 s53, 0x80000000")
    a.I("s_mov_b64 exec, s[52:53]")
    a.I(f"buffer_store_dword v24, v3, {S4(RD)}, s54 offen sc1")
    a.I("s_mov_b64 exec, -1")

def aux_publish_fa(a):
    a.I("s_cmp_lg_u32 s66, 0")
    a.I("s_cbranch_scc1 L_aux2")
    srd_off(a, RD, S_WS, FLG, FLG_SIZE)
    a.I(f"s_lshl_b32 s54, s{S_CG}, 7")
    a.I(f"s_lshl_b32 s55, s{S_RB}, 2")
    a.I("s_add_u32 s54, s54, s55")
    a.I(f"s_add_u32 s54, s54, {FA_OFF}")
    a.I(f"v_mov_b32 v8, s{S_NONCE}")
    a.I(f"v_mov_b32 v10, 0")
    a.I("s_mov_b64 exec, 1")
    a.I(f"buffer_store_dword v8, v10, {S4(RD)}, s54 offen sc1")
    a.I("s_mov_b64 exec, -1")
    stamp(a, "FApub")
    a.L("L_aux2")

def aux_zero_misc(a):
    a.I("s_cmp_lg_u32 s66, 1")
    a.I("s_cbranch_scc1 L_aux3")
    a.I(f"v_lshlrev_b32 v10, 2, v1")
    if L_MISC: a.I(f"v_add_u32 v10, {L_MISC}, v10")
    a.I("v_mov_b32 v9, 0")
    a.I("ds_write_b32 v10, v9")
    a.I("s_waitcnt lgkmcnt(0)")
    a.I("v_mov_b32 v10, 0")
    a.L("L_aux3")

def aux_share_nonce(a):
    a.I("s_cmp_lg_u32 s66, 0")
    a.I("s_cbranch_scc1 L_aux4")
    a.I(f"v_mov_b32 v9, {L_MISC + 128}")
    a.I(f"v_mov_b32 v11, s{S_NONCE}")
    a.I("ds_write_b32 v9, v11")
    a.I("s_waitcnt lgkmcnt(0)")
    a.L("L_aux4")

def aux_fa_probe(a):
    srd_off(a, RC, S_WS, FLG, FLG_SIZE)
    a.I(f"s_lshr_b32 s88, s{S_HD}, 2")
    a.I("s_lshl_b32 s88, s88, 7")
    a.I(f"s_add_u32 s88, s88, {FA_OFF}")
    a.I("v_lshlrev_b32 v9, 2, v1")
    a.I("s_mov_b32 exec_hi, 0")
    a.I(f"buffer_load_dword v11, v9, {S4(RC)}, s88 offen sc1")
    a.I("s_mov_b64 exec, -1")
    VL = 4
    a.I(f"v_lshlrev_b32 v{VL}, 4, v1")
    a.I(f"s_lshl_b32 s54, s{S_HD}, 16")
    a.I(f"s_add_u32 s55, s54, {KF}")
    srd_off(a, RA, S_WS, "s55", 65536)
    a.I(f"s_add_u32 s55, s54, {VF}")
    srd_off(a, RB, S_WS, "s55", 65536)
    a.I(f"s_add_u32 s55, s54, {QF}")
    srd_off(a, RD, S_WS, "s55", 65536)
    a.I(f"s_lshl_b32 s54, s{S_QB}, 3")
    a.I("s_lshl_b32 s55, s66, 1")
    a.I("s_add_u32 s54, s54, s55")
    a.I("s_lshl_b32 s54, s54, 10")
    a.I("s_lshl_b32 s55, s66, 11")
    a.I(f"s_add_u32 s55, s55, {L_RING}")

def aux_after_e1(a):
    a.I("s_mov_b32 s67, s66")
    a.I("s_setprio 3")
    stamp(a, "E2")
    a.I("s_mov_b32 exec_hi, 0")
    a.I("s_waitcnt vmcnt(0)")
    a.I(f"v_cmp_ne_u32 vcc, s{S_NONCE}, v11")
    a.I("s_mov_b64 exec, -1")
    a.I("s_cbranch_vccz L_aux5")
    poll(a, RC, 32, 9, 11, "s88", OPT.get("faslp", 2))
    a.L("L_aux5")
    stamp(a, "FAok")
    VL = 4
    for t in range(2):
        a.I(f"s_add_u32 m0, s55, {t*1024}")
        a.I(f"s_add_u32 s56, s54, {t*1024}")
        a.I(f"buffer_load_dwordx4 v{VL}, {S4(RD)}, s56 offen sc1 lds")
    a.I("s_lshl_b32 s54, s67, 10")
    def kvchunks(cs):
        for c in cs:
            a.I(f"s_add_u32 s55, s54, {c*4096}")
            a.I(f"s_add_u32 m0, s55, {L_K}")
            a.I(f"s_add_u32 s56, s55, {L_V}")
            a.I(f"buffer_load_dwordx4 v{VL}, {S4(RA)}, s55 offen sc1 lds")
            a.I("s_mov_b32 m0, s56")
            a.I("s_nop 0")
            a.I(f"buffer_load_dwordx4 v{VL}, {S4(RB)}, s55 offen sc1 lds")
    kvchunks(range(0, 2))
    kvchunks(range(2, 4))
    a.I("s_waitcnt vmcnt(4)")
    lds_add1(a, M_KV, 8, 9)
    stamp(a, "KV1")
    kvchunks(range(4, 16))
    a.I("s_lshr_b32 s53, s2, 3")
    srd(a, RA, S_W2, 1376*1024)
    srd(a, RB, S_WO, 512*1024)
    a.I("s_mul_i32 s54, s53, 44032")
    a.I("s_lshl_b32 s55, s67, 10")
    a.I("s_add_u32 s54, s54, s55")
    a.I("s_waitcnt vmcnt(0)")
    lds_add1(a, M_KV, 8, 9)
    stamp(a, "KV2")
    a.I("v_lshlrev_b32 v10, 7, v1")
    a.I("s_lshl_b32 s55, s67, 13")
    a.I("s_mul_i32 s54, s53, 44032")
    a.I("s_add_u32 s54, s54, s55")
    a.I(f"buffer_load_dword v40, v10, {S4(RA)}, s54 offen")
    a.I("s_add_u32 s54, s54, 32768")
    a.I(f"buffer_load_dword v41, v10, {S4(RA)}, s54 offen")
    a.I("s_lshl_b32 s54, s53, 14")
    a.I("s_lshl_b32 s55, s67, 12")
    a.I("s_add_u32 s54, s54, s55")
    a.I("s_mov_b32 exec_hi, 0")
    a.I(f"buffer_load_dword v42, v10, {S4(RB)}, s54 offen")
    a.I("s_mov_b64 exec, -1")

def ffn2_p3(a):
    WF, HR, ACC2, BPR = 24, 40, 104, 8
    VH, VW, VA0, VA1 = 2, 3, 4, 5
    a.I("s_cmp_lg_u32 s67, 0")
    a.I("s_cbranch_scc1 L_f1")
    lds_spin(a, M_HST, 4, 8, 9, OPT.get('fslp', 1))
    lds_spin(a, M_KV, 8, 8, 9)
    a.I(f"s_lshl_b32 s54, s{S_RB}, 7")
    a.I(f"s_lshl_b32 s55, s{S_CG}, 2")
    a.I("s_add_u32 s54, s54, s55")
    a.I(f"s_add_u32 s54, s54, {FH_OFF}")
    flag_store(a, "s54", 8, 10)
    a.I(f"s_lshl_b32 s54, s{S_HD}, 7")
    a.I(f"s_add_u32 s54, s54, {FH_OFF}")
    a.I("v_lshlrev_b32 v8, 2, v1")
    poll(a, RC, 8, 8, 9, "s54", OPT.get("fhslp", 8))
    lds_add1(a, M_H, 8, 9)
    a.I("s_branch L_f2")
    a.L("L_f1")
    lds_spin(a, M_H, 1, 8, 9, OPT.get('fslp', 1))
    a.L("L_f2")
    lds_spin(a, M_QRD, 8, 8, 9, OPT.get('fslp', 1))
    stamp(a, "hready")
    if OPT.get("tailpf"):
        srd(a, RA, S_B2, 1024)
        a.I("v_lshlrev_b32 v10, 7, v1")
        a.I("s_mov_b32 exec_lo, 0xff")
        a.I("s_mov_b32 exec_hi, 0")
        a.I(f"buffer_load_dword v43, v10, {S4(RA)}, 0 offen")
        if OPT["tailpf"] > 1:
            srd(a, RA, S_OUT, 2*MB)
            a.I(f"s_lshl_b32 s54, s{S_HD}, 16")
            a.I("s_mov_b32 exec_lo, 1")
            a.I(f"buffer_load_dword v44, v10, {S4(RA)}, s54 offen")
        a.I("s_mov_b64 exec, -1")
    srd(a, RA, S_W2, 1376*1024)
    srd_off(a, RB, S_WS, HF, HF_SIZE)
    a.I(f"v_lshlrev_b32 v{VH}, 4, v1")
    dma_w_lane_off(a, VW, 1, 8, 9, 1024)
    a.I(f"s_lshl_b32 s54, s{S_QB}, 7")
    a.I(f"v_add_u32 v{VW}, s54, v{VW}")
    tr_lane_addr(a, VA0, 1, 8, 9, 4, 128)
    a.I("s_mul_i32 s68, s67, 6144")
    a.I(f"s_add_u32 s68, s68, {L_RING}")
    a.I(f"v_add_u32 v{VA0}, s68, v{VA0}")
    a.I(f"v_xor_b32 v{VA1}, 64, v{VA0}")
    a.I("s_mul_i32 s54, s67, 24")
    a.I("s_lshl_b32 s70, s54, 14")
    a.I("s_lshl_b32 s71, s54, 16")
    a.I(f"s_lshl_b32 s55, s{S_HD}, 11")
    a.I("s_add_u32 s71, s71, s55")
    for i in range(64):
        a.I(f"v_mov_b32 v{ACC2+i}, 0")
    a.I("s_waitcnt vmcnt(0)")
    def fissue(slot):
        return [f"s_add_u32 m0, s68, {slot*2048}",
                f"s_add_u32 s69, s70, 8192",
                f"buffer_load_dwordx4 v{VW}, {S4(RA)}, s70 offen lds",
                f"s_add_u32 m0, s68, {slot*2048+1024}",
                f"s_add_u32 s70, s70, 16384",
                f"buffer_load_dwordx4 v{VW}, {S4(RA)}, s69 offen lds",
                f"buffer_load_dwordx4 {vr(HR+slot*8,4)}, v{VH}, {S4(RB)}, s71 offen sc1",
                f"buffer_load_dwordx4 {vr(HR+slot*8+4,4)}, v{VH}, {S4(RB)}, s71 offen offset:1024 sc1",
                f"s_add_u32 s71, s71, 65536"]
    def trr(F, off):
        out = []
        for ct, va in ((0, VA0), (1, VA1)):
            for rd in range(2):
                out.append(f"ds_read_b64_tr_b16 {vr(F+4*ct+2*rd,2)}, v{va} offset:{off + rd*1024}")
        return out
    N2 = OPT.get("n2", 0)
    a.I("s_cmp_eq_u32 s67, 3")
    a.I(f"s_cselect_b32 s72, {5-N2}, {8-N2}")
    a.I("s_mov_b32 s76, 0")
    a.L("L_fpro")
    for slot in range(3):
        a.I(J(fissue(slot)))
    a.I("s_cmp_lg_u32 s76, 0")
    a.I("s_cbranch_scc1 L_floop")
    a.I(f"s_setprio {OPT.get('ffnprio', 0)}")
    if OPT.get("noffn"): a.I("s_branch L_fskip")
    a.L("L_floop")
    for slot in range(3):
        a.I("s_waitcnt vmcnt(8)")
        a.I(J(trr(WF, slot*2048)))
        a.I("s_waitcnt lgkmcnt(0)")
        fi = fissue(slot)
        mf = lambda ct, rt: MF(ACC2 + (ct*2+rt)*16, WF+4*ct, HR+slot*8+4*rt, ACC2 + (ct*2+rt)*16)
        if OPT.get("fspread", 1):
            a.I(mf(0, 0)); a.I(J(fi[0:3]))
            a.I(mf(1, 0)); a.I(J(fi[3:6]))
            a.I(mf(0, 1)); a.I(fi[6])
            a.I(mf(1, 1)); a.I(J(fi[7:]))
        else:
            for ct in range(2):
                for rt in range(2):
                    a.I(mf(ct, rt))
            a.I(J(fi))
    a.I("s_sub_u32 s72, s72, 1")
    a.I("s_cmp_lg_u32 s72, 0")
    a.I("s_cbranch_scc1 L_floop")
    a.L("L_fskip")
    a.I("s_setprio 3")
    a.I("s_waitcnt vmcnt(0)")
    a.I("s_cmp_lg_u32 s76, 0")
    a.I("s_cbranch_scc1 L_fdone")
    lds_add1(a, M_FFN, 8, 9)
    stamp(a, "ffn2")
    lds_spin(a, M_ATT, 4, 8, 9, OPT.get('attslp', 1))
    stamp(a, "attdone")
    srd(a, RD, S_WO, 512*1024)
    a.I("s_lshl_b32 s56, s67, 14")
    a.I(f"s_add_u32 s56, s56, {L_K}")
    a.I("s_lshl_b32 s57, s67, 17")
    for ks in range(8):
        for n in range(2):
            a.I(f"s_add_u32 m0, s56, {ks*2048+n*1024}")
            a.I(f"s_add_u32 s69, s57, {ks*16384+n*8192}")
            a.I(f"buffer_load_dwordx4 v{VW}, {S4(RD)}, s69 offen lds")
    if N2:
        a.I("s_mov_b32 s76, 1")
        a.I(f"s_sub_u32 s70, s70, {3*16384}")
        a.I(f"s_sub_u32 s71, s71, {3*65536}")
        a.I(f"s_mov_b32 s72, {N2}")
        a.I("s_branch L_fpro")
    a.L("L_fdone")
    srd_off(a, RA, S_WS, GO, 8192)
    srd(a, RB, S_B2, 1024)
    a.I("s_and_b32 s73, s67, 1")
    a.I("s_lshr_b32 s74, s67, 1")
    a.I(f"s_lshl_b32 s75, s{S_HD}, 6")
    a.I("s_lshl_b32 s54, s73, 5")
    a.I("s_add_u32 s75, s75, s54")
    a.I("s_lshl_b32 s54, s75, 2")
    a.I("v_and_b32 v8, 31, v1")
    a.I("v_lshlrev_b32 v8, 2, v8")
    a.I(f"buffer_load_dword v40, v8, {S4(RA)}, s54 offen sc1")
    a.I(f"s_lshl_b32 s54, s{S_QB}, 6")
    a.I("s_lshl_b32 s55, s74, 5")
    a.I("s_add_u32 s54, s54, s55")
    a.I("s_lshl_b32 s54, s54, 1")
    a.I("v_lshrrev_b32 v8, 5, v1")
    a.I("v_lshlrev_b32 v8, 3, v8")
    for q in range(4):
        a.I(f"buffer_load_dwordx2 v[{42+2*q}:{43+2*q}], v8, {S4(RB)}, s54 offen offset:{q*16}")
    a.I("s_lshl_b32 s68, s67, 14")
    a.I("s_nop 7")
    a.I(f"s_add_u32 s54, s68, {L_V}")
    a.I(f"v_add_u32 v8, s54, v{VH}")
    for i in range(16):
        a.I(f"ds_write_b128 v8, {vr(ACC2+4*i,4)} offset:{i*1024}")
    a.I("s_waitcnt vmcnt(0) lgkmcnt(0)")
    lds_add1(a, M_T1, 9, 10)
    lds_spin(a, M_T1, 4, 9, 10)
    a.I("s_lshl_b32 s54, s67, 12")
    a.I(f"s_add_u32 s54, s54, {L_V}")
    a.I(f"v_add_u32 v8, s54, v{VH}")
    for p in range(4):
        for q in range(4):
            a.I(f"ds_read_b128 {vr(ACC2+p*16+q*4,4)}, v8 offset:{p*16384+q*1024}")
    a.I("s_waitcnt lgkmcnt(0)")
    for i in range(16):
        a.I(f"v_add_f32 v{ACC2+i}, v{ACC2+i}, v{ACC2+16+i}")
        a.I(f"v_add_f32 v{ACC2+32+i}, v{ACC2+32+i}, v{ACC2+48+i}")
    for i in range(16):
        a.I(f"v_add_f32 v{ACC2+i}, v{ACC2+i}, v{ACC2+32+i}")
    a.I("s_waitcnt vmcnt(0)")
    a.I("v_sub_f32 v41, 1.0, v40")
    a.I("v_cvt_pk_bf16_f32 v41, v41, v41")
    a.I("v_and_b32 v41, 0xffff0000, v41")
    for q in range(4):
        a.I(f"v_lshlrev_b32 v52, 16, v{42+2*q}")
        a.I(f"v_and_b32 v53, 0xffff0000, v{42+2*q}")
        a.I(f"v_lshlrev_b32 v54, 16, v{43+2*q}")
        a.I(f"v_and_b32 v55, 0xffff0000, v{43+2*q}")
        for j in range(4):
            a.I(f"v_add_f32 v{BPR+4*q+j}, v{ACC2+4*q+j}, v{52+j}")
        for j in range(4):
            a.I(f"v_mul_f32 v{BPR+4*q+j}, v{BPR+4*q+j}, v41")
    a.I("v_mov_b32 v39, v40")
    tr_lane_addr(a, VA0, 1, 32, 33, 4, 128)
    a.I("s_lshl_b32 s54, s74, 6")
    a.I(f"v_xor_b32 v{VA0}, s54, v{VA0}")
    a.I(f"v_add_u32 v{VA0}, {L_K}, v{VA0}")
    a.I("s_lshl_b32 s54, s73, 15")
    a.I(f"s_add_u32 s54, s54, {L_V}")
    a.I(f"v_add_u32 v{VA1}, s54, v{VH}")
    FR = 40
    def wreads(ks):
        F = FR + (ks % 8) * 8
        return [f"ds_read_b64_tr_b16 {vr(F,2)}, v{VA0} offset:{ks*2048}",
                f"ds_read_b64_tr_b16 {vr(F+2,2)}, v{VA0} offset:{ks*2048+1024}"]
    def oread(ks):
        F = FR + (ks % 8) * 8
        return [f"ds_read_b128 {vr(F+4,4)}, v{VA1} offset:{ks*1024}"]
    a.I("s_cmp_lg_u32 s67, 0")
    a.I("s_cbranch_scc1 L_f4")
    a.I(f"s_lshl_b32 s54, s{S_HD}, 8")
    a.I(f"s_add_u32 s54, s54, {FO_OFF}")
    a.I("v_lshlrev_b32 v121, 2, v1")
    if not OPT.get("opf", 0):
        poll(a, RC, 64, 121, 122, "s54", OPT.get("foslp", 2))
    else:
        srd_off(a, RB, S_WS, OF, 2*MB)
        a.I(f"s_lshl_b32 s55, s{S_HD}, 16")
        a.I("v_lshlrev_b32 v123, 10, v1")
        a.I("s_mov_b64 s[56:57], 0")
        a.I("s_mov_b32 s50, 0x40000")
        a.L("L_opf")
        a.I(f"buffer_load_dword v122, v121, {S4(RC)}, s54 offen sc1")
        a.I("s_waitcnt vmcnt(0)")
        a.I(f"v_cmp_eq_u32 vcc, s{S_NONCE}, v122")
        a.I("s_nop 1")
        a.I("s_andn2_b64 s[58:59], vcc, s[56:57]")
        a.I("s_or_b64 s[56:57], s[56:57], vcc")
        a.I("s_cmp_eq_u64 s[56:57], -1")
        a.I("s_cbranch_scc1 L_opf3")
        a.I("s_cmp_eq_u64 s[58:59], 0")
        a.I("s_cbranch_scc1 L_opf2")
        a.I("s_mov_b64 exec, s[58:59]")
        for j in range(8):
            a.I(f"buffer_load_dword v120, v123, {S4(RB)}, s55 offen offset:{j*128} sc1")
        a.I("s_mov_b64 exec, -1")
        a.L("L_opf2")
        a.I("s_sub_u32 s50, s50, 1")
        a.I("s_cmp_eq_u32 s50, 0")
        a.I("s_cbranch_scc1 L_opf3")
        a.I(f"s_sleep {OPT.get('foslp', 2)}")
        a.I("s_branch L_opf")
        a.L("L_opf3")
    a.L("L_f4")
    for ks in range(8): a.I(J(wreads(ks)))
    srd_off(a, RB, S_WS, OF, 2*MB)
    a.I(f"s_lshl_b32 s54, s{S_HD}, 16")
    a.I("s_lshl_b32 s55, s67, 11")
    a.I("s_add_u32 s54, s54, s55")
    a.I(f"s_add_u32 s55, s55, {L_V}")
    srd(a, RA, S_OUT, 2*MB)
    a.I("s_lshl_b32 s58, s75, 10")
    a.I(f"s_lshl_b32 s59, s{S_QB}, 7")
    a.I("s_add_u32 s58, s58, s59")
    a.I("s_lshl_b32 s59, s74, 6")
    a.I("s_add_u32 s58, s58, s59")
    a.I("v_and_b32 v32, 31, v1")
    a.I("v_lshlrev_b32 v32, 10, v32")
    a.I("v_lshrrev_b32 v33, 5, v1")
    a.I("v_lshl_add_u32 v32, v33, 4, v32")
    a.I("s_waitcnt lgkmcnt(0)")
    a.I("s_barrier")
    stamp(a, "T2")
    def odma(ch):
        L = []
        for hh in range(2):
            for rt in range(2):
                off = rt*32768 + ch*8192 + hh*1024
                L.append([f"s_add_u32 m0, s55, {off}", f"s_add_u32 s56, s54, {off}",
                          f"buffer_load_dwordx4 v{VH}, {S4(RB)}, s56 offen sc1 lds"])
        return L
    for ch in range(4):
        for x in odma(ch): a.I(J(x))
    for ch in range(4):
        a.I(f"s_waitcnt vmcnt({4*(3-ch)}) lgkmcnt(0)")
        a.I("s_barrier")
        for ks in range(8*ch, 8*ch+8): a.I(J(oread(ks)))
        for i in range(8):
            ks = 8*ch + i
            a.I(f"s_waitcnt lgkmcnt({7 + i if ch < 3 else 7 - i})")
            F = FR + i*8
            a.I(MF(ACC2, F, F+4, ACC2 if ks else None))
            if ch < 3: a.I(J(wreads(ks+8)))
    a.I("s_nop 15")
    stamp(a, "p3mm")
    for i in range(16):
        a.I(f"v_fma_f32 v{ACC2+i}, v{ACC2+i}, v39, v{BPR+i}")
    for j in range(8):
        a.I(f"v_cvt_pk_bf16_f32 v{ACC2+j}, v{ACC2+2*j}, v{ACC2+2*j+1}")
    a.I("s_nop 1")
    a.I(f"v_permlane32_swap_b32 v{ACC2}, v{ACC2+2}")
    a.I(f"v_permlane32_swap_b32 v{ACC2+1}, v{ACC2+3}")
    a.I(f"v_permlane32_swap_b32 v{ACC2+4}, v{ACC2+6}")
    a.I(f"v_permlane32_swap_b32 v{ACC2+5}, v{ACC2+7}")
    ofl = {0: "", 1: " sc1", 2: " nt", 3: " sc0 sc1"}[OPT.get("outfl", 0)]
    a.I(f"buffer_store_dwordx4 {vr(ACC2,4)}, v32, {S4(RA)}, s58 offen{ofl}")
    a.I(f"buffer_store_dwordx4 {vr(ACC2+4,4)}, v32, {S4(RA)}, s58 offen offset:32{ofl}")
    stamp_flush(a, "ffn")
    a.I("s_endpgm")

def attention(a):
    a.L("L_attn")
    stamp(a, "attn0")
    QA, QB = 8, 12
    KB = [16, 20]; VB = [24, 32]
    S0, S1, OA, OB = 40, 56, 72, 88
    VK, VV, VL = 2, 3, 4
    T0, T1, T2 = 104, 105, 106
    VKN, VVN, VVB, VCH, VONE, VNX = 107, 108, 109, 110, 111, 5
    a.I(f"s_and_b32 s63, s{S_W}, 3")
    a.I(f"s_lshr_b32 s64, s{S_W}, 2")
    a.I(f"v_lshlrev_b32 v{VL}, 4, v1")
    a.I(f"v_lshrrev_b32 v{T0}, 5, v1")
    a.I(f"v_and_b32 v{T1}, 15, v1")
    a.I(f"v_lshlrev_b32 v{T1}, 4, v{T1}")
    a.I(f"v_lshl_add_u32 v{VVB}, v{T0}, 8, v{T1}")
    a.I(f"v_add_u32 v{VVB}, {L_V}, v{VVB}")
    a.I(f"v_add_u32 v{VKN}, {L_K}, v{VL}")
    a.I("s_lshl_b32 s54, s64, 12")
    a.I(f"v_add_u32 v{VK}, s54, v{VL}")
    a.I(f"v_add_u32 v{VV}, s54, v{VVB}")
    a.I("s_lshl_b32 s54, s63, 2")
    a.I(f"s_add_u32 s54, s54, {M_CH}")
    a.I(f"v_mov_b32 v{VCH}, s54")
    a.I(f"v_mov_b32 v{VONE}, 1")
    a.I("s_mov_b32 s74, 0x0000ffff")
    a.I("s_mov_b32 s75, 0x0000ffff")
    a.I("s_mov_b32 s77, 0")
    a.I(f"s_lshl_b32 s66, s{S_QB}, 3")
    a.I("s_lshl_b32 s54, s63, 1")
    a.I("s_add_u32 s66, s66, s54")
    a.I("s_lshl_b32 s54, s63, 11")
    a.I(f"s_add_u32 s54, s54, {L_RING}")
    a.I(f"v_add_u32 v{T2}, s54, v{VL}")
    a.I(f"v_and_b32 v{T0}, 31, v1")
    a.I(f"v_cmp_eq_u32 vcc, 16, v{T0}")
    a.I(f"v_mov_b32 v{T1}, 0x3f803f80")
    a.I("s_nop 1")
    a.I(f"v_cndmask_b32 v{T0}, 0, v{T1}, vcc")
    for i in range(16):
        a.I(f"v_mov_b32 v{VB[0]+i}, v{T0}")
    lds_spin(a, M_KV, 4, T0, T1)
    stamp(a, "kvok")
    a.I(f"ds_read_b128 {vr(QA,4)}, v{T2}")
    a.I(f"ds_read_b128 {vr(QB,4)}, v{T2} offset:1024")
    for i in range(16):
        a.I(f"v_mov_b32 v{OA+i}, 0")
        a.I(f"v_mov_b32 v{OB+i}, 0")
    a.I("s_lshl_b32 s71, s64, 12")
    if STAMPS and OPT.get("fineattn"): a.I("s_mov_b32 s87, 24")
    a.I("s_mov_b32 s73, 0")

    def e_(S, i): return f"v_exp_f32 v{S+i}, v{S+i}"
    def c_(S, j): return f"v_cvt_pk_bf16_f32 v{S+j}, v{S+2*j}, v{S+2*j+1}"
    def tile(Sin, Sout, Qn, Kn, Ocur, Vcur_u0, Oprev, Vprev_u1, after_pv2, wait_s, after_s, wait_pv1, do_pv2=True, do_s=True):
        e = lambda i: e_(Sin, i)
        c = lambda j: c_(Sin, j)
        L = [e(0), e(1)]
        if do_pv2: L.append(MF(Oprev, Vprev_u1, Sout+4, Oprev))
        L += after_pv2
        L += [e(2), e(3), c(0), e(4), e(5), c(1)]
        L += wait_s
        if do_s: L.append(MF(Sout, Kn, Qn))
        L += after_s
        L += [e(6), e(7), c(2), e(8), e(9), c(3), e(10), e(11)]
        L += wait_pv1
        L.append(MF(Ocur, Vcur_u0, Sin, Ocur))
        L += [c(4), e(12), e(13), c(5), e(14), e(15), c(6), c(7)]
        return L
    fifo = []
    def dsr(tag, txt): fifo.append(tag); return txt
    def need(tag):
        idx = max(i for i, t in enumerate(fifo) if t == tag)
        return [f"s_waitcnt lgkmcnt({len(fifo) - 1 - idx})"]
    def vreads(t):
        kap = t & 1
        return ["s_mov_b64 exec, s[74:75]",
                dsr(("V", t), f"ds_read_b128 {vr(VB[kap],4)}, v{VV} offset:{t*1024}"),
                dsr(("V", t), f"ds_read_b128 {vr(VB[kap]+4,4)}, v{VV} offset:{t*1024+512}"),
                "s_mov_b64 exec, -1"]
    def kread(t): return [dsr(("K", t), f"ds_read_b128 {vr(KB[t & 1],4)}, v{VK} offset:{t*1024}")]
    a.raw(".p2align 6")
    a.L("L_aloop")
    if OPT.get("fineattn"):
        OPT["fine"] = 1; stamp_dyn(a); OPT["fine"] = 0
    a.I(f"v_add_u32 v{VK}, s71, v{VKN}")
    a.I(f"v_add_u32 v{VV}, s71, v{VVB}")
    L = kread(0) + vreads(0) + kread(1)
    L += need(("K", 0))
    L.append(MF(S0, KB[0], QA))
    a.I(J(L))
    a.I("s_nop 7")
    a.I("s_nop 3")
    body = []
    for t in range(4):
        kap = t & 1
        A = []
        Sin, Sout = S0, S1
        A += [e_(Sin, 0), e_(Sin, 1)]
        if t > 0: A.append(MF(OB, VB[kap^1]+4, Sout+4, OB))
        if t + 1 < 4: A += vreads(t+1)
        A += [e_(Sin, 2), e_(Sin, 3), c_(Sin, 0), e_(Sin, 4), e_(Sin, 5), c_(Sin, 1)]
        A.append(MF(Sout, KB[kap], QB))
        if t + 2 < 4: A += kread(t+2)
        A += [e_(Sin, 6), e_(Sin, 7), c_(Sin, 2), e_(Sin, 8), e_(Sin, 9), c_(Sin, 3), e_(Sin, 10), e_(Sin, 11)]
        A += need(("V", t))
        A.append(MF(OA, VB[kap], Sin, OA))
        A += [c_(Sin, 4), e_(Sin, 12), e_(Sin, 13), c_(Sin, 5), e_(Sin, 14), e_(Sin, 15), c_(Sin, 6), c_(Sin, 7)]
        Sin, Sout = S1, S0
        B = [e_(Sin, 0), e_(Sin, 1), MF(OA, VB[kap]+4, Sout+4, OA)]
        if t == 3:
            B += ["s_mov_b64 exec, 1", dsr(("G",), f"ds_add_rtn_u32 v{VNX}, v{VCH}, v{VONE}"), "s_mov_b64 exec, -1"]
        B += [e_(Sin, 2), e_(Sin, 3), c_(Sin, 0), e_(Sin, 4), e_(Sin, 5), c_(Sin, 1)]
        if t + 1 < 4:
            B += need(("K", t+1))
            B.append(MF(Sout, KB[kap^1], QA))
        B += [e_(Sin, 6), e_(Sin, 7), c_(Sin, 2), e_(Sin, 8), e_(Sin, 9), c_(Sin, 3), e_(Sin, 10), e_(Sin, 11)]
        B.append(MF(OB, VB[kap], Sin, OB))
        B += [c_(Sin, 4), e_(Sin, 12), e_(Sin, 13), c_(Sin, 5), e_(Sin, 14), e_(Sin, 15), c_(Sin, 6), c_(Sin, 7)]
        body += A + B
    a.I(J(body))
    a.I("s_waitcnt lgkmcnt(0)")
    a.I(f"v_readfirstlane_b32 s70, v{VNX}")
    a.I(MF(OB, VB[1]+4, S1+4, OB))
    a.I("s_add_u32 s70, s70, 2")
    a.I("s_lshl_b32 s71, s70, 12")
    a.I("s_cmp_lg_u32 s73, 0")
    a.I("s_cbranch_scc1 L_aloop2")
    a.I("s_mov_b32 s73, 1")
    lds_add1(a, M_QRD, T0, T1)
    a.I("s_waitcnt vmcnt(0)")
    a.I(f"s_cmp_ge_u32 s{S_W}, 4")
    a.I("s_cbranch_scc1 L_aloop1")
    lds_add1(a, M_HST, T0, T1)
    a.L("L_aloop1")
    lds_spin(a, M_KV, 8, T0, T1)
    a.L("L_aloop2")
    a.I("s_cmp_lt_u32 s70, 16")
    a.I("s_cbranch_scc1 L_aloop")
    a.I("s_waitcnt lgkmcnt(0)")
    a.I("s_nop 7")
    stamp(a, "aloop")
    a.I("s_lshl_b32 s54, s63, 2")
    a.I(f"s_add_u32 s55, s54, {M_PAIR}")
    a.I(f"s_add_u32 s76, s54, {M_PFLAG}")
    a.I(f"v_mov_b32 v{T0}, s55")
    a.I(f"v_mov_b32 v{T1}, 1")
    a.I("s_mov_b64 exec, 1")
    a.I(f"ds_add_rtn_u32 v{T2}, v{T0}, v{T1}")
    a.I("s_mov_b64 exec, -1")
    a.I("s_mul_i32 s54, s63, 4608")
    a.I(f"s_add_u32 s54, s54, {L_XCH}")
    a.I(f"v_add_u32 v{S0}, s54, v{VL}")
    a.I(f"v_lshlrev_b32 v{S0+1}, 2, v1")
    a.I(f"v_add_u32 v{S0+1}, s54, v{S0+1}")
    a.I("s_waitcnt lgkmcnt(0)")
    a.I(f"v_readfirstlane_b32 s55, v{T2}")
    a.I("s_nop 4")
    a.I("s_cmp_lg_u32 s55, 0")
    a.I("s_cbranch_scc1 L_second")
    lds_spin(a, M_FFN, 4, T0, T1)
    a.I(f"ds_write_b128 v{S0}, {vr(OA,4)}")
    a.I(f"ds_write_b128 v{S0}, {vr(OA+4,4)} offset:1024")
    a.I(f"ds_write_b128 v{S0}, {vr(OB,4)} offset:2048")
    a.I(f"ds_write_b128 v{S0}, {vr(OB+4,4)} offset:3072")
    a.I(f"ds_write_b32 v{S0+1}, v{OA+8} offset:4096")
    a.I(f"ds_write_b32 v{S0+1}, v{OB+8} offset:4352")
    a.I("s_waitcnt lgkmcnt(0)")
    lds_add1(a, "s76", T0, T1)
    a.I("s_waitcnt lgkmcnt(0)")
    stamp_flush(a, "attn")
    a.I("s_endpgm")
    a.L("L_second")
    lds_spin(a, "s76", 1, T0, T1)
    a.I(f"ds_read_b128 {vr(S1,4)}, v{S0}")
    a.I(f"ds_read_b128 {vr(S1+4,4)}, v{S0} offset:1024")
    a.I(f"ds_read_b128 {vr(S1+8,4)}, v{S0} offset:2048")
    a.I(f"ds_read_b128 {vr(S1+12,4)}, v{S0} offset:3072")
    a.I(f"ds_read_b32 v{T0}, v{S0+1} offset:4096")
    a.I(f"ds_read_b32 v{T1}, v{S0+1} offset:4352")
    a.I(f"v_mov_b32 v{T2}, {L_MISC + 128}")
    a.I(f"ds_read_b32 v{T2}, v{T2}")
    a.I("s_waitcnt lgkmcnt(0)")
    a.I(f"v_readfirstlane_b32 s{S_NONCE}, v{T2}")
    for i in range(8):
        a.I(f"v_add_f32 v{OA+i}, v{OA+i}, v{S1+i}")
        a.I(f"v_add_f32 v{OB+i}, v{OB+i}, v{S1+8+i}")
    a.I(f"v_add_f32 v{OA+8}, v{OA+8}, v{T0}")
    a.I(f"v_add_f32 v{OB+8}, v{OB+8}, v{T1}")
    a.L("L_fin")
    for O in (OA, OB):
        a.I(f"v_mov_b32 v{O+9}, v{O+8}")
    a.I("s_nop 1")
    for O in (OA, OB):
        a.I(f"v_permlane32_swap_b32 v{O+9}, v{O+8}")
    a.I("s_nop 1")
    for O in (OA, OB):
        a.I(f"v_rcp_f32 v{O+10}, v{O+9}")
    srd_off(a, RA, S_WS, OF, 2*MB)
    a.I("s_lshl_b32 s54, s66, 5")
    a.I(f"s_add_u32 s54, s54, s{S_HD}")
    a.I("s_lshl_b32 s55, s54, 10")
    for n_, O in enumerate((OA, OB)):
        for i in range(8):
            a.I(f"v_mul_f32 v{S0+8*n_+i}, v{O+i}, v{O+10}")
        for j in range(4):
            a.I(f"v_cvt_pk_bf16_f32 v{S1+4*n_+j}, v{S0+8*n_+2*j}, v{S0+8*n_+2*j+1}")
        a.I(f"buffer_store_dwordx4 {vr(S1+4*n_,4)}, v{VL}, {S4(RA)}, s55 offen sc1")
        if n_ == 0: a.I("s_add_u32 s55, s55, 32768")
    srd_off(a, RC, S_WS, FLG, FLG_SIZE)
    slow_check(a, OA, OB, T0, T1)
    lds_add1(a, M_ATT, T0, T1)
    a.I("s_lshl_b32 s54, s54, 2")
    a.I(f"s_add_u32 s54, s54, {FO_OFF}")
    a.I(f"v_mov_b32 v{T0}, s{S_NONCE}")
    a.I(f"v_lshlrev_b32 v{T1}, 7, v1")
    a.I("s_waitcnt vmcnt(0)")
    a.I("s_mov_b64 exec, 3")
    a.I(f"buffer_store_dword v{T0}, v{T1}, {S4(RC)}, s54 offen sc1")
    a.I("s_mov_b64 exec, -1")
    stamp_flush(a, "attn")
    a.I("s_endpgm")
    slow_path(a, QA, QB, KB, VB, S0, S1, OA, OB, VL, T0, T1, T2)

def slow_check(a, OA, OB, T0, T1):
    if OPT.get("noslow"): return
    a.I(f"v_mul_f32 v{T0}, 0, v{OA}")
    for i in range(1, 8):
        a.I(f"v_fma_f32 v{T0}, v{OA+i}, 0, v{T0}")
    for i in range(8):
        a.I(f"v_fma_f32 v{T0}, v{OB+i}, 0, v{T0}")
    a.I(f"v_cmp_eq_f32 s[78:79], 0, v{T0}")
    a.I(f"s_mov_b32 s80, {hex(f2u(2.0**-60))}")
    a.I(f"s_mov_b32 s81, {hex(f2u(2.0**60))}")
    for O in (OA, OB):
        a.I(f"v_cmp_le_f32 s[82:83], s80, v{O+9}")
        a.I(f"v_cmp_ge_f32 vcc, s81, v{O+9}")
        a.I("s_nop 1")
        a.I("s_and_b64 s[78:79], s[78:79], s[82:83]")
        a.I("s_and_b64 s[78:79], s[78:79], vcc")
    if OPT.get("forceslow"):
        a.I("s_mov_b64 s[78:79], 0")
    a.I("s_cmp_eq_u64 s[78:79], -1")
    a.I("s_cbranch_scc1 L_ok")
    a.I("s_cmp_eq_u32 s77, 0")
    a.I("s_cbranch_scc1 L_slow")
    a.L("L_ok")

def slow_path(a, QA, QB, KB, VB, S0, S1, OA, OB, VL, T0, T1, T2):
    if OPT.get("noslow"): return
    K, V0, M, C = KB[0], VB[0], 108, 112
    a.L("L_slow")
    a.I("s_waitcnt vmcnt(0)")
    a.I("s_mov_b32 s77, 1")
    a.I(f"v_lshrrev_b32 v{T0}, 5, v1")
    a.I(f"v_and_b32 v{T1}, 15, v1")
    a.I(f"v_lshlrev_b32 v{T1}, 4, v{T1}")
    a.I(f"v_lshl_add_u32 v{T2}, v{T0}, 8, v{T1}")
    a.I(f"v_add_u32 v{T2}, {L_V}, v{T2}")
    a.I(f"v_mov_b32 v{M}, 0xff800000")
    a.I(f"v_mov_b32 v{M+1}, 0xff800000")
    a.I(f"v_add_u32 v{T0}, {L_K}, v{VL}")
    a.I("s_mov_b32 s73, 0")
    a.L("L_slow1")
    a.I(f"ds_read_b128 {vr(K,4)}, v{T0}")
    a.I("s_waitcnt lgkmcnt(0)")
    a.I(MF(S0, K, QA))
    a.I(MF(S1, K, QB))
    a.I("s_nop 15")
    for S, m in ((S0, M), (S1, M+1)):
        for i in range(0, 16, 2):
            a.I(f"v_max3_f32 v{m}, v{S+i}, v{S+i+1}, v{m}")
    a.I(f"v_add_u32 v{T0}, 1024, v{T0}")
    a.I("s_add_u32 s73, s73, 1")
    a.I("s_cmp_lt_u32 s73, 64")
    a.I("s_cbranch_scc1 L_slow1")
    for m in (M, M+1):
        a.I(f"v_mov_b32 v{T1}, v{m}")
        a.I("s_nop 1")
        a.I(f"v_permlane32_swap_b32 v{T1}, v{m}")
        a.I("s_nop 1")
        a.I(f"v_max_f32 v{m}, v{m}, v{T1}")
    for t in range(2):
        for i in range(16):
            a.I(f"v_sub_f32 v{C+16*t+i}, 0, v{M+t}")
    for i in range(16):
        a.I(f"v_mov_b32 v{OA+i}, 0")
        a.I(f"v_mov_b32 v{OB+i}, 0")
    a.I(f"v_add_u32 v{T0}, {L_K}, v{VL}")
    a.I("s_mov_b32 s73, 0")
    a.L("L_slow2")
    a.I(f"ds_read_b128 {vr(K,4)}, v{T0}")
    a.I("s_mov_b64 exec, s[74:75]")
    a.I(f"ds_read_b128 {vr(V0,4)}, v{T2}")
    a.I(f"ds_read_b128 {vr(V0+4,4)}, v{T2} offset:512")
    a.I("s_mov_b64 exec, -1")
    a.I("s_waitcnt lgkmcnt(0)")
    a.I(MF(S0, K, QA, C))
    a.I(MF(S1, K, QB, C+16))
    a.I("s_nop 15")
    for S, O in ((S0, OA), (S1, OB)):
        for i in range(16):
            a.I(f"v_exp_f32 v{S+i}, v{S+i}")
        a.I("s_nop 0")
        for j in range(8):
            a.I(f"v_cvt_pk_bf16_f32 v{S+j}, v{S+2*j}, v{S+2*j+1}")
        a.I("s_nop 1")
        a.I(MF(O, V0, S, O))
        a.I(MF(O, V0+4, S+4, O))
    a.I(f"v_add_u32 v{T0}, 1024, v{T0}")
    a.I(f"v_add_u32 v{T2}, 1024, v{T2}")
    a.I("s_add_u32 s73, s73, 1")
    a.I("s_cmp_lt_u32 s73, 64")
    a.I("s_cbranch_scc1 L_slow2")
    a.I("s_nop 15")
    a.I("s_branch L_fin")

def gen():
    a = Asm()
    prologue(a)
    producer(a, False)
    consumer(a)
    a.L("L_aux")
    producer(a, True)
    ffn2_p3(a)
    attention(a)
    a.L("L_end")
    a.I("s_endpgm")
    a.L("L_code_end")
    a.I("s_endpgm")
    return a

HEADER = open("cdna_kernels/" + NAME + ".s.ref").read().split("; Override launch")[0]

def build(path):
    a = gen()
    out = HEADER + f"; WSLAYOUT QF={QF} KF={KF} VF={VF} HF={HF} GO={GO} OF={OF}\n"
    out += f"; @launch grid=(256,1,1) block=(768,1,1) lds={LDS_TOTAL}\n"
    out += '.amdgcn_target "amdgcn-amd-amdhsa--gfx950"\n.text\n' + a.text()
    out += f""".section .rodata,"a"
.p2align 6
.amdhsa_kernel {KN}
  .amdhsa_next_free_vgpr 168
  .amdhsa_next_free_sgpr 102
  .amdhsa_accum_offset 168
  .amdhsa_group_segment_fixed_size 0
  .amdhsa_kernarg_size 96
  .amdhsa_user_sgpr_count 2
  .amdhsa_user_sgpr_kernarg_segment_ptr 1
  .amdhsa_system_sgpr_workgroup_id_x 1
.end_amdhsa_kernel
"""
    open(path, "w").write(out)
    probs = check_linear(a.lines, "k")
    if STAMPS: print("stamps:", ",".join(_stamp_names))
    return probs

if __name__ == "__main__":
    for x in list(sys.argv[1:]):
        if x.startswith("-D"):
            k, _, v = x[2:].partition("=")
            OPT[k] = int(v) if v else 1
            sys.argv.remove(x)
    if "--stamps" in sys.argv:
        STAMPS = True; sys.argv.remove("--stamps")
    path = sys.argv[1] if len(sys.argv) > 1 else "cdna_kernels/" + NAME + ".s"
    probs = build(path)
    for p in probs: print("HAZARD:", p)
    print("written", path, "problems:", len(probs))
```

```python
import sys, struct
from asmlib import *

NAME = "gated_mix__mha_block__dense_activation_squared_relu__prompt"
KN = NAME + "_kernel"
MB = 1 << 20
QF, KF, VF, HF, GO, OF, FLG = 4096, 2*MB + 8192, 4*MB + 12288, 6*MB + 16384, 12*MB, 14*MB + 4096, 16*MB + 8192
HF_SIZE = 86 * 65536
FA_OFF, FH_OFF, FO_OFF = 0, 4096, 8192
FLG_SIZE = 16384
QSCALE = 0.25 * 1.4426950408889634
STAMP_OFF = 32*MB
STAMPS = False
OPT = {}
def f2u(x): return struct.unpack("<I", struct.pack("<f", x))[0]

S_AX, S_WQKV, S_WO, S_W1, S_B1, S_W2, S_B2, S_GW, S_OUT, S_DBG, S_WS = 4, 6, 8, 12, 14, 16, 18, 20, 22, 24, 26
S_W = 3
S_RB, S_CG, S_START = 29, 30, 31
RA, RB, RC, RD = 32, 36, 40, 44
S_NONCE, S_HD, S_QB = 60, 61, 62
L_MISC, L_K, L_V, L_RING = 0, 1024, 1024 + 65536, 1024 + 131072
L_XCH = L_RING
M_KV, M_H, M_FA, M_QRD, M_HST, M_FFN, M_ATT, M_T1 = [L_MISC + 4*i for i in range(8)]
M_PAIR, M_PFLAG, M_CH = L_MISC + 64, L_MISC + 96, L_MISC + 160
LDS_TOTAL = 163840

def srd(a, dst, base, size):
    a.I(f"s_mov_b32 s{dst}, s{base}")
    a.I(f"s_mov_b32 s{dst+1}, s{base+1}")
    a.I(f"s_mov_b32 s{dst+2}, {size}")
    a.I(f"s_mov_b32 s{dst+3}, 0x20000")
def srd_off(a, dst, base, off, size):
    a.I(f"s_add_u32 s{dst}, s{base}, {off}")
    a.I(f"s_addc_u32 s{dst+1}, s{base+1}, 0")
    a.I(f"s_mov_b32 s{dst+2}, {size}")
    a.I(f"s_mov_b32 s{dst+3}, 0x20000")
def MF(d, A, B, c=None):
    cc = "0" if c is None else vr(c, 16)
    return f"v_mfma_f32_32x32x16_bf16 {vr(d,16)}, {vr(A,4)}, {vr(B,4)}, {cc}"
def S4(r): return f"s[{r}:{r+3}]"
def J(L): return "\n".join(L)

_stamp_names = []
def stamp(a, name):
    if not STAMPS: return
    if name not in _stamp_names: _stamp_names.append(name)
    i = _stamp_names.index(name)
    a.I("s_waitcnt lgkmcnt(0)")
    a.I("s_memtime s[98:99]")
    a.I("s_memrealtime s[100:101]")
    a.I("s_waitcnt lgkmcnt(0)")
    a.I(f"v_writelane_b32 v6, s98, {i}")
    a.I(f"v_writelane_b32 v7, s100, {i}")
def stamp_dyn(a):
    if not (STAMPS and OPT.get("fine")): return
    a.I("s_memtime s[98:99]")
    a.I("s_memrealtime s[100:101]")
    a.I("s_waitcnt lgkmcnt(0)")
    a.I("s_mov_b32 s88, m0")
    a.I("s_mov_b32 m0, s87")
    a.I("s_nop 3")
    a.I("v_writelane_b32 v6, s98, m0")
    a.I("v_writelane_b32 v7, s100, m0")
    a.I("s_mov_b32 m0, s88")
    a.I("s_add_u32 s87, s87, 1")
def dbg_dump(a, names, word0):
    lb = lab("dd")
    a.I(f"s_cmp_lg_u32 s2, {OPT.get('dbgwg', 0)}")
    a.I(f"s_cbranch_scc1 {lb}")
    a.I("v_readlane_b32 s90, v7, 0")
    for i, nm in enumerate(names):
        if nm not in _stamp_names: _stamp_names.append(nm)
        a.I(f"v_readlane_b32 s91, v7, {_stamp_names.index(nm)}")
        a.I("s_nop 3")
        a.I("s_sub_u32 s91, s91, s90")
        a.I("v_mov_b32 v2, s91")
        a.I(f"v_mov_b32 v3, {4*(word0+i)}")
        a.I("s_mov_b64 exec, 1")
        a.I(f"global_store_dword v3, v2, s[{S_DBG}:{S_DBG+1}]")
        a.I("s_mov_b64 exec, -1")
    a.L(lb)

def stamp_flush(a, who=None):
    if not STAMPS: return
    a.I("s_waitcnt vmcnt(0)")
    stamp(a, "end")
    if OPT.get("dbgdump"):
        if who == "ffn":
            l2 = lab("d8")
            a.I(f"s_cmp_lg_u32 s{S_W}, 8"); a.I(f"s_cbranch_scc1 {l2}")
            dbg_dump(a, ["E2", "FAok", "KV1", "hready", "ffn2", "attdone", "T2", "p3mm", "end"], 7)
            a.L(l2)
        elif who == "attn":
            l2 = lab("d0")
            a.I(f"s_and_b32 s91, s{S_W}, 3"); a.I("s_cmp_lg_u32 s91, 0"); a.I(f"s_cbranch_scc1 {l2}")
            a.I(f"s_cmp_ge_u32 s{S_W}, 4"); a.I(f"s_cbranch_scc1 {l2}")
            dbg_dump(a, ["karg", "B0", "qloop", "floop", "kvok", "aloop"], 1)
            a.L(l2)
    a.I(f"s_add_u32 s96, s{S_WS}, {STAMP_OFF}")
    a.I(f"s_addc_u32 s97, s{S_WS+1}, 0")
    a.I("s_mul_i32 s98, s2, 12")
    a.I(f"s_add_u32 s98, s98, s{S_W}")
    a.I("s_lshl_b32 s98, s98, 9")
    a.I("v_lshlrev_b32 v2, 2, v1")
    a.I("v_add_u32 v2, s98, v2")
    a.I("s_mov_b64 exec, -1")
    a.I("global_store_dword v2, v6, s[96:97]")
    a.I("global_store_dword v2, v7, s[96:97] offset:256")
    a.I("s_waitcnt vmcnt(0)")

def tr_lane_addr(a, dst, lane, tmp, tmp2, hrows, pitch):
    a.I(f"v_bfe_u32 v{tmp}, v{lane}, 2, 2")
    a.I(f"v_lshrrev_b32 v{tmp2}, 5, v{lane}")
    a.I(f"v_mul_u32_u24 v{tmp2}, {hrows}, v{tmp2}")
    a.I(f"v_add_u32 v{tmp}, v{tmp}, v{tmp2}")
    a.I(f"v_mul_u32_u24 v{dst}, {pitch}, v{tmp}")
    a.I(f"v_bfe_u32 v{tmp}, v{lane}, 4, 1")
    a.I(f"v_lshlrev_b32 v{tmp}, 1, v{tmp}")
    a.I(f"v_bfe_u32 v{tmp2}, v{lane}, 1, 1")
    a.I(f"v_add_u32 v{tmp}, v{tmp}, v{tmp2}")
    a.I(f"v_bfe_u32 v{tmp2}, v{lane}, 3, 1")
    a.I(f"v_lshlrev_b32 v{tmp2}, 2, v{tmp2}")
    a.I(f"v_xor_b32 v{tmp}, v{tmp}, v{tmp2}")
    a.I(f"v_lshl_add_u32 v{dst}, v{tmp}, 4, v{dst}")
    a.I(f"v_and_b32 v{tmp}, 1, v{lane}")
    a.I(f"v_lshl_add_u32 v{dst}, v{tmp}, 3, v{dst}")

def dma_w_lane_off(a, dst, lane, tmp, tmp2, pitch):
    a.I(f"v_lshrrev_b32 v{tmp}, 3, v{lane}")
    a.I(f"v_mul_u32_u24 v{dst}, {pitch}, v{tmp}")
    a.I(f"v_bfe_u32 v{tmp}, v{lane}, 4, 1")
    a.I(f"v_lshlrev_b32 v{tmp}, 2, v{tmp}")
    a.I(f"v_and_b32 v{tmp2}, 7, v{lane}")
    a.I(f"v_xor_b32 v{tmp}, v{tmp}, v{tmp2}")
    a.I(f"v_lshl_add_u32 v{dst}, v{tmp}, 4, v{dst}")

_lab = [0]
def lab(p):
    _lab[0] += 1
    return f"L_{p}{_lab[0]}"

def poll(a, srd_reg, nlanes, voff, vtmp, soff, slp=1):
    l0, l1 = lab("poll"), lab("polld")
    if nlanes < 64:
        a.I(f"s_mov_b32 exec_lo, {hex((1 << nlanes) - 1)}")
        a.I("s_mov_b32 exec_hi, 0")
    a.I("s_mov_b32 s50, 0x40000")
    a.L(l0)
    a.I(f"buffer_load_dword v{vtmp}, v{voff}, {S4(srd_reg)}, {soff} offen sc1")
    a.I("s_waitcnt vmcnt(0)")
    a.I(f"v_cmp_ne_u32 vcc, s{S_NONCE}, v{vtmp}")
    a.I(f"s_cbranch_vccz {l1}")
    a.I("s_sub_u32 s50, s50, 1")
    a.I("s_cmp_eq_u32 s50, 0")
    a.I(f"s_cbranch_scc1 {l1}")
    a.I(f"s_sleep {slp}")
    a.I(f"s_branch {l0}")
    a.L(l1)
    a.I("s_mov_b64 exec, -1")

def lds_spin(a, addr, target, vaddr, vtmp, slp=1):
    l0, l1 = lab("spin"), lab("spind")
    a.I(f"v_mov_b32 v{vaddr}, {addr}")
    a.I("s_mov_b32 s50, 0x400000")
    a.L(l0)
    a.I(f"ds_read_b32 v{vtmp}, v{vaddr}")
    a.I("s_waitcnt lgkmcnt(0)")
    a.I(f"v_readfirstlane_b32 s51, v{vtmp}")
    a.I("s_sub_u32 s50, s50, 1")
    a.I(f"s_cmp_ge_u32 s51, {target}")
    a.I(f"s_cbranch_scc1 {l1}")
    a.I("s_cmp_eq_u32 s50, 0")
    a.I(f"s_cbranch_scc1 {l1}")
    a.I(f"s_sleep {slp}")
    a.I(f"s_branch {l0}")
    a.L(l1)

def lds_add1(a, addr, vaddr, vtmp):
    a.I(f"v_mov_b32 v{vaddr}, {addr}")
    a.I(f"v_mov_b32 v{vtmp}, 1")
    a.I("s_mov_b64 exec, 1")
    a.I(f"ds_add_u32 v{vaddr}, v{vtmp}")
    a.I("s_mov_b64 exec, -1")

def flag_store(a, soff, v0_, v1_):
    a.I(f"v_mov_b32 v{v0_}, s{S_NONCE}")
    a.I(f"v_mov_b32 v{v1_}, 0")
    a.I("s_mov_b64 exec, 1")
    a.I(f"buffer_store_dword v{v0_}, v{v1_}, {S4(RC)}, {soff} offen sc1")
    a.I("s_mov_b64 exec, -1")

def prologue(a):
    a.raw(f".globl {KN}\n.p2align 8\n.type {KN},@function\n{KN}:")
    if STAMPS:
        a.I("s_memrealtime s[94:95]")
        a.I("s_memtime s[92:93]")
    a.I("s_cmp_ge_u32 s2, 256")
    a.I("s_cbranch_scc1 L_end")
    a.I("s_load_dwordx4 s[4:7], s[0:1], 0")
    a.I("s_load_dwordx2 s[8:9], s[0:1], 16")
    a.I("s_load_dwordx4 s[12:15], s[0:1], 32")
    a.I("s_load_dwordx4 s[16:19], s[0:1], 48")
    a.I("s_load_dwordx4 s[20:23], s[0:1], 64")
    a.I("s_load_dwordx4 s[24:27], s[0:1], 80")
    a.I("v_lshrrev_b32 v2, 6, v0")
    a.I("v_and_b32 v1, 63, v0")
    a.I(f"v_readfirstlane_b32 s{S_W}, v2")
    if OPT.get("codeearly", 1):
        a.I("s_getpc_b64 s[52:53]")
        a.L("L_pc0")
        a.I(f"s_sub_u32 s52, s52, L_pc0-{KN}")
        a.I("s_subb_u32 s53, s53, 0")
        a.I("v_lshlrev_b32 v3, 7, v0")
        a.I(f"v_min_u32 v3, L_code_end-{KN}-4, v3")
        a.I(f"s_cmp_ge_u32 s{S_W}, 3")
        a.I("s_cbranch_scc1 L_pc1")
        a.I("global_load_dword v31, v3, s[52:53]")
        a.L("L_pc1")
    if STAMPS:
        a.I("v_mov_b32 v6, 0"); a.I("v_mov_b32 v7, 0")
    a.I("s_and_b32 s52, s2, 7")
    a.I("s_lshr_b32 s53, s2, 3")
    if OPT.get("map84"):
        a.I("s_lshr_b32 s54, s52, 1")
        a.I("s_lshl_b32 s54, s54, 3")
        a.I("s_lshr_b32 s55, s53, 2")
        a.I(f"s_add_u32 s{S_RB}, s54, s55")
        a.I("s_and_b32 s54, s52, 1")
        a.I("s_lshl_b32 s54, s54, 2")
        a.I("s_and_b32 s55, s53, 3")
        a.I(f"s_add_u32 s{S_CG}, s54, s55")
    else:
        a.I("s_lshr_b32 s54, s52, 2")
        a.I("s_lshl_b32 s54, s54, 4")
        a.I("s_lshr_b32 s55, s53, 1")
        a.I(f"s_add_u32 s{S_RB}, s54, s55")
        a.I("s_and_b32 s54, s52, 3")
        a.I("s_lshl_b32 s54, s54, 1")
        a.I("s_and_b32 s55, s53, 1")
        a.I(f"s_add_u32 s{S_CG}, s54, s55")
    a.I(f"s_mul_i32 s54, s{S_CG}, 6")
    a.I(f"s_min_u32 s{S_START}, s54, 37")
    a.I(f"s_lshl_b32 s{S_HD}, s52, 2")
    a.I("s_and_b32 s54, s53, 3")
    a.I(f"s_add_u32 s{S_HD}, s{S_HD}, s54")
    a.I(f"s_lshr_b32 s{S_QB}, s2, 5")
    a.I("s_waitcnt lgkmcnt(0)")
    if STAMPS:
        _stamp_names.append("entry")
        a.I("v_writelane_b32 v6, s92, 0")
        a.I("v_writelane_b32 v7, s94, 0")
    stamp(a, "karg")
    a.I(f"s_cmp_ge_u32 s{S_W}, 8")
    a.I("s_cbranch_scc1 L_aux")
    a.I(f"s_cmp_lt_u32 s{S_W}, 4")
    a.I("s_cbranch_scc1 L_cons")

GATEPOS = 3
def producer(a, aux):
    T = "a" if aux else "p"
    if OPT.get("pprio"): a.I(f"s_setprio {OPT['pprio']}")
    a.I(f"s_sub_u32 s67, s{S_W}, 4")
    a.I(f"s_lshl_b32 s54, s{S_RB}, 16")
    srd_off(a, RA, S_AX, "s54", 65536)
    a.I("v_lshrrev_b32 v2, 3, v1")
    a.I("s_lshl_b32 s54, s67, 3")
    a.I("v_add_u32 v2, s54, v2")
    a.I("v_lshrrev_b32 v3, 4, v1")
    a.I("s_and_b32 s54, s67, 1")
    a.I("s_lshl_b32 s54, s54, 2")
    a.I("v_add_u32 v3, s54, v3")
    a.I("v_and_b32 v4, 7, v1")
    a.I("v_xor_b32 v3, v3, v4")
    a.I("v_lshlrev_b32 v3, 4, v3")
    a.I("v_lshl_add_u32 v12, v2, 10, v3")
    a.I("s_lshl_b32 s68, s67, 10")
    def woffs(dst, pitch, segshift):
        for j in range(3):
            a.I(f"v_add_u32 v2, {64*j}, v1")
            a.I("v_mul_u32_u24 v3, 171, v2")
            a.I("v_lshrrev_b32 v3, 12, v3")
            a.I("v_mul_u32_u24 v4, 24, v3")
            a.I("v_sub_u32 v2, v2, v4")
            a.I("v_lshrrev_b32 v4, 3, v2")
            a.I("v_and_b32 v2, 7, v2")
            a.I("v_bfe_u32 v5, v3, 1, 1")
            a.I("v_lshlrev_b32 v5, 2, v5")
            a.I("v_xor_b32 v2, v2, v5")
            a.I("v_lshlrev_b32 v2, 4, v2")
            a.I(f"v_mul_u32_u24 v5, {pitch}, v3")
            a.I(f"v_lshl_add_u32 v5, v4, {segshift}, v5")
            a.I(f"v_add_u32 v{dst+j}, v5, v2")
    wsetup_done = [False]
    def wsetup():
        if wsetup_done[0]: return
        wsetup_done[0] = True
        srd(a, RB, S_WQKV, 512*3072)
        woffs(13, 3072, 10)
        a.I("s_mul_i32 s69, s67, 3072")
        a.I("s_add_u32 s69, s69, 0x10000")
        a.I(f"s_lshl_b32 s70, s{S_CG}, 7")
        a.I(f"s_mul_i32 s71, s67, {8*3072}")
        a.I("s_add_u32 s70, s70, s71")
    def pre_setup(item):
        k, c = item
        if k == "X":
            a.I(f"s_add_u32 m0, s68, {c*8192}")
            a.I(f"s_movk_i32 s81, {c*128}")
        else:
            a.I(f"s_add_u32 s82, s70, {c*64*3072}" if c < 8 else f"s_add_u32 s82, s71, {(c-8)*64*2752}")
            a.I(f"s_add_u32 m0, s69, {(c&3)*24576}")
    def issue_x(c, done=False):
        if OPT.get("p1noprod"): return
        if not done:
            a.I(f"s_add_u32 m0, s68, {c*8192}")
            a.I(f"s_movk_i32 s81, {c*128}")
        a.I(f"buffer_load_dwordx4 v12, {S4(RA)}, s81 offen lds")
    def issue_w(c, done=False):
        if OPT.get("p1noprod"): return
        if c < 8:
            if not done: a.I(f"s_add_u32 s82, s70, {c*64*3072}")
            vo, R = 13, RB
        else:
            if not done: a.I(f"s_add_u32 s82, s71, {(c-8)*64*2752}")
            vo, R = 16, RC
        for j in range(3):
            if not (done and j == 0):
                a.I(f"s_add_u32 m0, s69, {(c&3)*24576 + j*1024}")
                a.I("s_nop 0")
            a.I(f"buffer_load_dwordx4 v{vo+j}, {S4(R)}, s82 offen lds")
    sched = OPT.get("sched", 0)
    if sched == 0:
        pre = [("X",0),("X",1),("X",2),("W",0),("W",1),("W",2)] if OPT.get("xfirst", 1) else [("X",0),("W",0),("X",1),("W",1),("X",2),("W",2)]
        post = {c: ([("X",c+3)] if c+3 < 8 else []) + ([("W",c+3)] if c+3 < 16 else []) for c in range(16)}
    elif sched == 1:
        pre = [("X",0),("W",0),("X",1),("W",1),("X",2),("W",2),("X",3),("W",3),("X",4),("X",5),("X",6),("X",7)]
        post = {c: ([("W",c+3)] if (c >= 1 and c+3 < 16) else []) for c in range(16)}
    elif sched == 2:
        pre = [("X",0),("W",0),("X",1),("W",1),("X",2),("W",2),("X",3),("W",3)]
        post = {c: ([("W",c+3)] if (c >= 1 and c+3 < 16) else []) for c in range(16)}
        post[0] = [("X",4),("X",5),("X",6),("X",7)]
    fifo = []
    def do(item, done=False):
        k, c = item
        if k == "X":
            if OPT.get("skipx"): fifo.append((item, 0)); return
            issue_x(c, done); fifo.append((item, 1))
        else:
            if OPT.get("skipw") and c < 8: fifo.append((item, 0)); return
            wsetup()
            issue_w(c, done); fifo.append((item, 3))
    for it in pre: do(it)
    if OPT.get("pfprod") and not aux:
        a.I(f"s_mov_b32 s89, s{S_W}")
        a.I(f"s_sub_u32 s{S_W}, s{S_W}, 4")
        l2_prefetch(a, 0)
        a.I(f"s_mov_b32 s{S_W}, s89")
        fifo.append(("pf", 2))
    stamp(a, "issued3")
    nside = 0
    if aux:
        nside = aux_side_issue(a)
    srd(a, RC, S_W1, 512*2752)
    if OPT.get("w1perm", 0):
        for j in range(3):
            a.I(f"v_add_u32 v2, {64*j}, v1")
            a.I("v_mul_u32_u24 v3, 171, v2")
            a.I("v_lshrrev_b32 v3, 12, v3")
            a.I("v_mul_u32_u24 v4, 24, v3")
            a.I("v_sub_u32 v2, v2, v4")
            a.I("v_lshrrev_b32 v4, 2, v2")
            a.I("v_and_b32 v2, 3, v2")
            a.I("v_bfe_u32 v5, v3, 1, 1")
            a.I("v_xor_b32 v4, v4, v5")
            a.I("v_add_u32 v5, 1, v4")
            a.I("v_cmp_eq_u32 vcc, 4, v4")
            a.I("s_nop 1")
            a.I("v_cndmask_b32_e64 v5, v5, 0, vcc")
            a.I("v_cmp_eq_u32 vcc, 5, v4")
            a.I("s_nop 1")
            a.I("v_cndmask_b32_e64 v5, v5, 5, vcc")
            a.I(f"v_add_u32 v19, s{S_START}, v3")
            a.I("v_and_b32 v19, 1, v19")
            a.I("v_cmp_eq_u32 vcc, 1, v19")
            a.I("s_nop 1")
            a.I("v_cndmask_b32 v4, v4, v5, vcc")
            a.I("v_lshlrev_b32 v4, 6, v4")
            a.I("v_lshl_add_u32 v4, v2, 4, v4")
            a.I("v_mul_u32_u24 v5, 2752, v3")
            a.I(f"v_add_u32 v{16+j}, v5, v4")
    else:
        woffs(16, 2752, 7)
    a.I(f"s_lshl_b32 s71, s{S_START}, 6")
    a.I(f"s_mul_i32 s72, s67, {8*2752}")
    a.I("s_add_u32 s71, s71, s72")
    fap = OPT.get("fapos", 2)
    assert fap >= 0
    for c in range(16):
        need = [("W", c)] + ([("X", c)] if c < 8 else [])
        idx = max(i for i, (it, _) in enumerate(fifo) if it in need)
        allow = sum(k for _, k in fifo[idx+1:])
        if c == 0 and STAMPS and OPT.get("fine"): a.I("s_mov_b32 s87, 24")
        stamp_dyn(a)
        early = OPT.get("early", 1) and not STAMPS and len(post[c]) > 0 and not OPT.get("p1noprod")
        if early:
            pre_setup(post[c][0])
        a.I(f"s_waitcnt vmcnt({allow})")
        stamp_dyn(a)
        a.I("s_barrier")
        for n_, it in enumerate(post[c]): do(it, early and n_ == 0)
        if aux and c == 2:
            fifo.append(("side", aux_side_loads(a)))
        if aux and c == 6:
            aux_gate(a)
            fifo.append(("g", 1))
        if aux and c == 4:
            fifo.append(("nonce", aux_nonce_issue(a)))
        if aux and c == 10:
            aux_zero_misc(a)
        if aux and c == 8:
            aux_nonce_take(a)
        if aux and c == 12:
            aux_share_nonce(a)
        if aux and c == 15:
            aux_fa_probe(a)
        if aux and c == 9 + fap:
            aux_publish_fa(a)
    a.I("s_barrier")
    if aux:
        aux_after_e1(a)
    else:
        if OPT.get("pprio"): a.I("s_setprio 0")
        a.I("s_branch L_attn")

def glob_w2(a):
    a.I("v_lshlrev_b32 v20, 7, v1")
    srd(a, RC, S_W2, 1376*1024)
    a.I("s_mul_i32 s54, s2, 5504")
    a.I("s_mov_b32 exec_hi, 0xfff")
    a.I(f"buffer_load_dword v24, v20, {S4(RC)}, s54 offen")
    srd(a, RC, S_WO, 512*1024)
    a.I("s_lshl_b32 s54, s2, 11")
    a.I("s_mov_b32 exec_hi, 0")
    a.I("s_mov_b32 exec_lo, 0xffff")
    a.I(f"buffer_load_dword v25, v20, {S4(RC)}, s54 offen")
    a.I("s_mov_b64 exec, -1")

def l2_prefetch(a, part):
    a.I("s_and_b32 s52, s2, 7")
    a.I("s_lshr_b32 s53, s2, 3")
    a.I("s_lshl_b32 s54, s53, 4")
    a.I(f"s_lshl_b32 s55, s{S_W}, 2")
    a.I("s_add_u32 s56, s54, s55")
    if OPT.get("pfglob", 1) and part == 0:
        lg = lab("pfg")
        G64 = OPT.get("pg64", 0)
        a.I(f"v_lshlrev_b32 v20, {6 if G64 else 7}, v1")
        def touch(nbytes):
            step = 64 if G64 else 128
            lanes = -(-nbytes // step)
            off = 0
            while lanes > 0:
                n = min(lanes, 64)
                if n < 64:
                    a.I(f"s_mov_b32 exec_lo, {hex((1 << min(n, 32)) - 1)}")
                    a.I(f"s_mov_b32 exec_hi, {hex((1 << max(n - 32, 0)) - 1)}")
                a.I(f"buffer_load_dword v24, v20, {S4(RC)}, s54 offen")
                if n < 64: a.I("s_mov_b64 exec, -1")
                lanes -= n
                if lanes > 0: a.I(f"s_add_u32 s54, s54, {64*step}")
        a.I(f"s_cmp_eq_u32 s{S_W}, 0")
        a.I(f"s_cbranch_scc0 {lg}a")
        srd(a, RC, S_AX, 2*MB)
        a.I("s_lshl_b32 s54, s2, 13")
        touch(8192)
        a.I(f"s_branch {lg}d")
        a.L(f"{lg}a")
        a.I(f"s_cmp_eq_u32 s{S_W}, 1")
        a.I(f"s_cbranch_scc0 {lg}b")
        srd(a, RC, S_WQKV, 512*3072)
        a.I("s_mul_i32 s54, s2, 6144")
        touch(6144)
        a.I(f"s_branch {lg}d")
        a.L(f"{lg}b")
        a.I(f"s_cmp_eq_u32 s{S_W}, {99 if OPT.get('w1late') else 2}")
        a.I(f"s_cbranch_scc0 {lg}c")
        srd(a, RC, S_W1, 512*2752)
        a.I("s_mul_i32 s54, s2, 5504")
        touch(5504)
        a.I(f"s_branch {lg}d")
        a.L(f"{lg}c")
        if OPT.get("pfw2") == 1:
            glob_w2(a)
        if OPT.get("tlb"):
            offs = [0, 2*MB + 4096, 4*MB + 8192, 6*MB + 12288, 11*MB + 512*1024, 12*MB + 16384, 14*MB, 16*MB + 4096]
            a.I("v_mov_b32 v21, 0")
            for i, o in enumerate(offs):
                a.I(f"v_mov_b32 v22, {o}")
                a.I(f"v_cmp_eq_u32 vcc, {i}, v1")
                a.I("s_nop 1")
                a.I("v_cndmask_b32 v21, v21, v22, vcc")
            a.I("s_mov_b32 exec_lo, 0xff")
            a.I("s_mov_b32 exec_hi, 0")
            a.I(f"global_load_dword v25, v21, s[{S_WS}:{S_WS+1}]")
            a.I("s_mov_b64 exec, -1")
        a.L(f"{lg}d")
        if OPT.get("pfglob", 1) == 1: return
        OPT["nopfx"] = 1 if OPT["pfglob"] == 2 else 0
    if OPT.get("map84"):
        if part == 0:
            srd(a, RC, S_AX, 2*MB)
            a.I("s_lshr_b32 s54, s52, 1")
            a.I("s_lshl_b32 s54, s54, 9")
            a.I("s_add_u32 s54, s54, s56")
            a.I("s_lshl_b32 s54, s54, 10")
            a.I("v_lshlrev_b32 v20, 7, v1")
            a.I("s_mov_b32 exec_hi, 0")
            a.I(f"buffer_load_dword v24, v20, {S4(RC)}, s54 offen")
            a.I("s_mov_b64 exec, -1")
            srd(a, RC, S_WQKV, 512*3072)
            a.I("s_mul_i32 s54, s56, 3072")
            a.I("s_and_b32 s55, s52, 1")
            a.I("s_lshl_b32 s55, s55, 9")
            a.I("s_add_u32 s54, s54, s55")
            a.I("v_lshrrev_b32 v21, 4, v1")
            a.I("v_mul_u32_u24 v21, 3072, v21")
            a.I("v_bfe_u32 v22, v1, 2, 2")
            a.I("v_min_u32 v22, 2, v22")
            a.I("v_lshl_add_u32 v21, v22, 10, v21")
            a.I("v_and_b32 v22, 3, v1")
            a.I("v_lshl_add_u32 v21, v22, 7, v21")
            a.I(f"buffer_load_dword v25, v21, {S4(RC)}, s54 offen")
        else:
            srd(a, RC, S_W1, 512*2752)
            a.I("s_and_b32 s55, s52, 1")
            a.I("s_mul_i32 s55, s55, 1536")
            a.I("s_mul_i32 s54, s56, 2752")
            a.I("s_add_u32 s54, s54, s55")
            a.I("v_lshrrev_b32 v21, 4, v1")
            a.I("v_mul_u32_u24 v21, 2752, v21")
            a.I("v_and_b32 v22, 15, v1")
            a.I("v_min_u32 v22, 12, v22")
            a.I("v_lshl_add_u32 v21, v22, 7, v21")
            a.I(f"buffer_load_dword v26, v21, {S4(RC)}, s54 offen")
        return
    if part == 2:
        a.I(f"s_cmp_lg_u32 s{S_W}, 0")
        a.I("s_cbranch_scc1 L_pf2")
        srd(a, RC, S_WQKV, 512*3072)
        a.I("s_lshl_b32 s54, s53, 3")
        a.I("s_add_u32 s54, s54, 256")
        a.I("s_mul_i32 s54, s54, 3072")
        a.I("s_and_b32 s55, s52, 3")
        a.I("s_lshl_b32 s55, s55, 8")
        a.I("s_add_u32 s54, s54, s55")
        a.I("v_lshrrev_b32 v21, 3, v1")
        a.I("v_mul_u32_u24 v21, 3072, v21")
        a.I("v_bfe_u32 v22, v1, 1, 2")
        a.I("v_min_u32 v22, 2, v22")
        a.I("v_lshl_add_u32 v21, v22, 10, v21")
        a.I("v_and_b32 v22, 1, v1")
        a.I("v_lshl_add_u32 v21, v22, 7, v21")
        a.I(f"buffer_load_dword v25, v21, {S4(RC)}, s54 offen")
        a.L("L_pf2")
    elif part == 0:
        G = OPT.get("pfg", 128)
        sh = {128: 7, 64: 6, 32: 5}[G]
        srd(a, RC, S_AX, 2*MB)
        a.I("s_lshr_b32 s54, s52, 2")
        a.I("s_lshl_b32 s54, s54, 10")
        a.I("s_lshl_b32 s55, s53, 5")
        a.I("s_add_u32 s54, s54, s55")
        a.I(f"s_lshl_b32 s55, s{S_W}, 3")
        a.I("s_add_u32 s54, s54, s55")
        a.I("s_lshl_b32 s54, s54, 10")
        if OPT.get("pftrim", 0):
            a.I("v_and_b32 v20, 7, v1")
            a.I("v_max_u32 v20, 3, v20")
            a.I("v_lshlrev_b32 v20, 7, v20")
            a.I("v_lshrrev_b32 v21, 3, v1")
            a.I("v_lshl_add_u32 v20, v21, 10, v20")
        else:
            a.I(f"v_lshlrev_b32 v20, {sh}, v1")
        for i in range(0 if OPT.get("nopfx") else 8192 // (64*G)):
            a.I(f"buffer_load_dword v24, v20, {S4(RC)}, s54 offen")
            a.I(f"s_add_u32 s54, s54, {64*G}")
        if OPT.get("pftrim", 0):
            a._pfl = lab("pfs")
            a.I("s_cmp_lt_u32 s53, 12")
            a.I(f"s_cbranch_scc1 {a._pfl}")
        srd(a, RC, S_WQKV, 512*3072)
        a.I("s_mul_i32 s54, s56, 3072")
        a.I("s_and_b32 s55, s52, 3")
        a.I("s_lshl_b32 s55, s55, 8")
        a.I("s_add_u32 s54, s54, s55")
        per = 256 // G
        a.I("v_lshrrev_b32 v21, 4, v1")
        a.I("v_mul_u32_u24 v21, 3072, v21")
        a.I("v_and_b32 v22, 15, v1")
        if G == 64:
            a.I("v_lshrrev_b32 v23, 2, v22")
            a.I("v_min_u32 v23, 2, v23")
            a.I("v_lshl_add_u32 v21, v23, 10, v21")
            a.I("v_and_b32 v22, 3, v22")
            a.I("v_lshl_add_u32 v21, v22, 6, v21")
            a.I(f"buffer_load_dword v25, v21, {S4(RC)}, s54 offen")
        elif G == 32:
            a.I("v_lshrrev_b32 v23, 3, v22")
            a.I("v_lshl_add_u32 v21, v23, 10, v21")
            a.I("v_and_b32 v22, 7, v22")
            a.I("v_lshl_add_u32 v21, v22, 5, v21")
            a.I(f"buffer_load_dword v25, v21, {S4(RC)}, s54 offen")
            a.I(f"buffer_load_dword v25, v21, {S4(RC)}, s54 offen offset:2048")
        else:
            a.I("v_lshrrev_b32 v23, 1, v22")
            a.I("v_min_u32 v23, 2, v23")
            a.I("v_lshl_add_u32 v21, v23, 10, v21")
            a.I("v_and_b32 v22, 1, v22")
            a.I("v_lshl_add_u32 v21, v22, 7, v21")
            a.I(f"buffer_load_dword v25, v21, {S4(RC)}, s54 offen")
        if OPT.get("pftrim", 0):
            a.L(a._pfl)
    else:
        a.I(f"s_cmp_ge_u32 s{S_W}, 2")
        a.I("s_cbranch_scc1 L_pf1")
        srd(a, RC, S_W1, 512*2752)
        a.I("s_and_b32 s55, s52, 3")
        a.I("s_mul_i32 s55, s55, 12")
        a.I("s_min_u32 s55, s55, 31")
        a.I("s_lshl_b32 s55, s55, 6")
        a.I("s_lshl_b32 s54, s53, 4")
        a.I(f"s_lshl_b32 s56, s{S_W}, 3")
        a.I("s_add_u32 s54, s54, s56")
        a.I("s_mul_i32 s54, s54, 2752")
        a.I("s_add_u32 s54, s54, s55")
        a.I("v_lshrrev_b32 v21, 3, v1")
        a.I("v_mul_u32_u24 v21, 2752, v21")
        a.I("v_and_b32 v22, 7, v1")
        a.I("v_lshl_add_u32 v21, v22, 7, v21")
        a.I(f"buffer_load_dword v26, v21, {S4(RC)}, s54 offen")
        a.L("L_pf1")

def consumer(a):
    a.L("L_cons")
    H, XA, WA, ACC, B1, FA, FB = 2, 8, 12, 32, 80, 104, 136
    if not OPT.get("nopf") and not OPT.get("pflate") and not OPT.get("pfprod"):
        l2_prefetch(a, OPT.get("pfmode", 0))
    a.I(f"v_lshrrev_b32 v{H}, 5, v1")
    a.I(f"s_and_b32 s63, s{S_W}, 1")
    a.I(f"s_lshr_b32 s64, s{S_W}, 1")
    srd(a, RD, S_B1, 2752)
    a.I(f"s_add_u32 s54, s{S_START}, s63")
    a.I("s_lshl_b32 s54, s54, 6")
    a.I(f"v_lshlrev_b32 v3, 3, v{H}")
    for s in range(3):
        for q in range(4):
            r = B1 + (s*4+q)*2
            a.I(f"buffer_load_dwordx2 v[{r}:{r+1}], v3, {S4(RD)}, s54 offen offset:{s*128+q*16}")
    for i in range(48):
        a.I(f"v_mov_b32 v{ACC+i}, 0")
    a.I("v_and_b32 v16, 31, v1")
    a.I("v_bfe_u32 v17, v1, 1, 3")
    a.I("s_lshl_b32 s54, s64, 5")
    a.I("v_add_u32 v16, s54, v16")
    a.I("v_lshlrev_b32 v16, 7, v16")
    a.I(f"v_xor_b32 v17, v17, v{H}")
    for ks in range(4):
        a.I(f"v_xor_b32 v18, {2*ks}, v17")
        a.I(f"v_lshl_add_u32 v{XA+ks}, v18, 4, v16")
    tr_lane_addr(a, WA, 1, 16, 17, 8, 384)
    a.I("s_lshl_b32 s54, s63, 6")
    a.I(f"v_xor_b32 v{WA}, s54, v{WA}")
    a.I(f"v_add_u32 v{WA}, 0x10000, v{WA}")
    a.I(f"v_add_u32 v{WA+1}, 49152, v{WA}")
    WF1 = [14, 15, 28, 29, 30, 31]
    if OPT.get("w1perm", 0):
        a.I("v_bfe_u32 v16, v1, 2, 2")
        a.I(f"v_lshl_add_u32 v17, v{H}, 3, v16")
        a.I("v_mul_u32_u24 v17, 384, v17")
        a.I("v_bfe_u32 v18, v1, 4, 1")
        a.I("v_lshlrev_b32 v18, 1, v18")
        a.I("v_bfe_u32 v19, v1, 1, 1")
        a.I("v_add_u32 v18, v18, v19")
        a.I("v_lshl_add_u32 v17, v18, 4, v17")
        a.I("v_and_b32 v18, 1, v1")
        a.I("v_lshl_add_u32 v17, v18, 3, v17")
        a.I("v_add_u32 v17, 0x10000, v17")
        a.I(f"v_add_u32 v18, s{S_START}, v16")
        a.I("v_and_b32 v18, 1, v18")
        a.I("v_cmp_eq_u32 vcc, 1, v18")
        a.I("v_bfe_u32 v19, v1, 3, 1")
        inv = [4, 0, 1, 2, 3, 5]
        for s_ in range(3):
            a.I(f"s_cmp_eq_u32 s63, 0")
            a.I(f"s_cselect_b32 s54, {2*s_}, {2*s_+1}")
            a.I(f"s_cselect_b32 s55, {inv[2*s_]}, {inv[2*s_+1]}")
            a.I(f"v_mov_b32 v26, s54")
            a.I(f"v_mov_b32 v27, s55")
            a.I(f"v_cndmask_b32 v26, v26, v27, vcc")
            a.I(f"v_xor_b32 v26, v26, v19")
            a.I(f"v_lshl_add_u32 v{WF1[s_]}, v26, 6, v17")
            a.I(f"v_add_u32 v{WF1[3+s_]}, 49152, v{WF1[s_]}")

    def reads(b, G, F, qkv=True):
        out = []
        if OPT.get("p1nocons"): return ["s_nop 0"]
        wv = WA + (b >> 1)
        for l in range(2):
            ks = 2*G + l
            out.append(f"ds_read_b128 {vr(F+4*l,4)}, v{XA+ks} offset:{b*8192}")
            for s in range(3):
                for rd in range(2):
                    if qkv or not OPT.get("w1perm", 0):
                        out.append(f"ds_read_b64_tr_b16 {vr(F+8+12*l+4*s+2*rd,2)}, v{wv} offset:{(b&1)*24576 + ks*6144 + rd*1536 + s*128}")
                    else:
                        out.append(f"ds_read_b64_tr_b16 {vr(F+8+12*l+4*s+2*rd,2)}, v{WF1[3*(b>>1)+s]} offset:{(b&1)*24576 + ks*6144 + rd*1536}")
        return out
    def mfmas(F, qkv):
        out = []
        if OPT.get("p1nocons") or OPT.get("p1nomfma"): return ["s_nop 0"]
        for l in range(2):
            for s in range(3):
                X, W = F+4*l, F+8+12*l+4*s
                out.append(MF(ACC+16*s, X, W, ACC+16*s) if (qkv and s == 2) else MF(ACC+16*s, W, X, ACC+16*s))
        return out
    def inter(mf, rd):
        out = []
        per = OPT.get("iper", [4, 4, 3, 3, 0, 0])
        if len(mf) != 6: return mf + rd
        k = 0
        for i, m in enumerate(mf):
            out.append(m)
            out += rd[k:k+per[i]]
            k += per[i]
        assert k >= len(rd)
        return out
    def stage_loop(tag, qkv):
        a.I("s_mov_b32 s65, 0x8000")
        a.L(f"L_loop_{tag}")
        fap = OPT.get("fapos", 2)
        for b in range(4):
            a.I("s_waitcnt lgkmcnt(0)")
            a.I(J(inter(mfmas(FA, qkv), reads(b, 1, FB, qkv))))
            if (not qkv) and b == (fap & 3):
                if fap >= 4:
                    a.I("s_cmp_lt_i32 s65, 0")
                    a.I(f"s_cbranch_scc0 L_nodrain")
                a.I("s_waitcnt vmcnt(0)")
                if fap >= 4: a.L("L_nodrain")
            a.I("s_waitcnt lgkmcnt(0)")
            if b == 3:
                if not qkv:
                    a.I("s_cmp_lt_i32 s65, 0")
                    a.I(f"s_cbranch_scc1 L_last_{tag}")
                for ks in range(4):
                    a.I(f"v_add_u32 v{XA+ks}, s65, v{XA+ks}")
            stamp_dyn(a)
            a.I("s_barrier")
            stamp_dyn(a)
            if qkv and b == 3:
                a.I("s_cmp_lt_i32 s65, 0")
                a.I("s_cbranch_scc1 L_qtail")
            a.I(J(inter(mfmas(FB, qkv), reads((b+1) % 4, 0, FA, qkv))))
        if qkv:
            a.I("s_mov_b32 s65, 0xffff8000")
            a.I(f"s_branch L_loop_{tag}")
            a.L("L_qtail")
            a.I(J(inter(mfmas(FB, qkv), reads(0, 0, FA, False))))
        else:
            a.I("s_mov_b32 s65, 0xffff8000")
            a.I(f"s_branch L_loop_{tag}")
        if not qkv:
            a.L(f"L_last_{tag}")
            a.I(J(mfmas(FB, qkv)))

    if OPT.get("pflate"):
        for i in range(OPT["pflate"]):
            a.I("s_sleep 8")
        l2_prefetch(a, 0)
    if OPT.get("pfw1early"):
        l2_prefetch(a, 1)
    a.I("s_barrier")
    stamp(a, "B0")
    if STAMPS and OPT.get("fine"): a.I("s_mov_b32 s87, 24")
    if not OPT.get("nopf") and not OPT.get("pfw1early") and not OPT.get("nopfw1", 1):
        l2_prefetch(a, 1)
    if OPT.get("w1late"):
        lw1 = lab("pw1")
        a.I(f"s_cmp_lg_u32 s{S_W}, 2")
        a.I(f"s_cbranch_scc1 {lw1}")
        a.I("v_lshlrev_b32 v20, 7, v1")
        srd(a, RC, S_W1, 512*2752)
        a.I("s_mul_i32 s54, s2, 5504")
        a.I("s_mov_b32 exec_hi, 0xfff")
        a.I(f"buffer_load_dword v24, v20, {S4(RC)}, s54 offen")
        a.I("s_mov_b64 exec, -1")
        a.L(lw1)
    if OPT.get("pfw2") == 2:
        lw = lab("pw2")
        a.I(f"s_cmp_lg_u32 s{S_W}, 3")
        a.I(f"s_cbranch_scc1 {lw}")
        glob_w2(a)
        a.L(lw)
    a.I(J(reads(0, 0, FA)))
    stage_loop("q", True)
    stamp(a, "qloop")
    srd(a, RA, S_WS, VF + 2*MB)
    a.I(f"s_lshl_b32 s54, s{S_RB}, 1")
    a.I("s_add_u32 s54, s54, s64")
    a.I(f"s_lshl_b32 s55, s{S_CG}, 2")
    a.I("s_lshl_b32 s56, s63, 1")
    a.I("s_add_u32 s55, s55, s56")
    a.I("s_lshl_b32 s55, s55, 6")
    a.I("s_add_u32 s54, s54, s55")
    a.I("s_lshl_b32 s54, s54, 10")
    a.I("v_lshlrev_b32 v3, 4, v1")
    a.I("v_bfe_u32 v4, v1, 4, 1")
    a.I("v_lshlrev_b32 v4, 16, v4")
    a.I(f"v_lshl_add_u32 v4, v{H}, 8, v4")
    a.I("v_and_b32 v5, 15, v1")
    a.I("v_lshl_add_u32 v4, v5, 4, v4")
    a.I(f"s_mov_b32 s56, {hex(f2u(QSCALE))}")
    a.I("s_waitcnt vmcnt(0)")
    a.I("s_nop 4")
    for idx, s in enumerate((1, 2, 0)):
        d = ACC + 16*s
        if s == 0:
            for i in range(16):
                a.I(f"v_mul_f32 v{d+i}, s56, v{d+i}")
        for j in range(8):
            a.I(f"v_cvt_pk_bf16_f32 v{d+j}, v{d+2*j}, v{d+2*j+1}")
        if s < 2:
            for hh in range(2):
                a.I(f"s_add_u32 s55, s54, {(KF if s else QF) + hh*65536}")
                a.I(f"buffer_store_dwordx4 {vr(d+4*hh,4)}, v3, {S4(RA)}, s55 offen sc1")
        else:
            a.I(f"s_add_u32 s55, s54, {VF}")
            for u in range(2):
                a.I(f"buffer_store_dwordx4 {vr(d+4*u,4)}, v4, {S4(RA)}, s55 offen offset:{u*512} sc1")
    a.I("s_nop 1")
    for s in range(3):
        for q in range(4):
            r = B1 + (s*4+q)*2
            d = ACC + s*16 + q*4
            a.I(f"v_lshlrev_b32 v{d}, 16, v{r}")
            a.I(f"v_and_b32 v{d+1}, 0xffff0000, v{r}")
            a.I(f"v_lshlrev_b32 v{d+2}, 16, v{r+1}")
            a.I(f"v_and_b32 v{d+3}, 0xffff0000, v{r+1}")
    stage_loop("f", False)
    a.I("s_barrier")
    stamp(a, "floop")
    srd_off(a, RA, S_WS, HF, HF_SIZE)
    a.I(f"s_lshl_b32 s54, s{S_RB}, 1")
    a.I("s_add_u32 s54, s54, s64")
    a.I(f"s_add_u32 s55, s{S_START}, s63")
    a.I("s_lshl_b32 s55, s55, 7")
    a.I("s_add_u32 s54, s54, s55")
    a.I("s_lshl_b32 s54, s54, 10")
    a.I("v_lshlrev_b32 v3, 4, v1")
    a.I("s_nop 4")
    HP = 120
    defer = OPT.get("hdefer", 1)
    for s in range(3):
        d = ACC + 16*s
        for i in range(16):
            a.I(f"v_max_f32 v{d+i}, 0, v{d+i}")
        for i in range(16):
            a.I(f"v_mul_f32 v{d+i}, v{d+i}, v{d+i}")
        for j in range(8):
            a.I(f"v_cvt_pk_bf16_f32 v{(HP+8*s if defer else d)+j}, v{d+2*j}, v{d+2*j+1}")
    if defer:
        a.I("s_mov_b32 s83, s54")
    else:
        if OPT.get("hlate", 1):
            lds_spin(a, M_KV, 4, 20, 21, 0)
        for s in range(3):
            d = ACC + 16*s
            for uu in range(2):
                a.I(f"s_add_u32 s55, s54, {(4*s+uu)*65536}")
                a.I(f"buffer_store_dwordx4 {vr(d+4*uu,4)}, v3, {S4(RA)}, s55 offen sc1")
    a.I("s_nop 1")
    a.I("s_branch L_attn")

def aux_side_issue(a):
    a.I("s_sub_u32 s66, s67, 4")
    a.I(f"s_lshl_b32 s54, s2, 2")
    a.I("s_or_b32 s54, s54, s66")
    a.I("s_cmp_lg_u32 s54, 0")
    a.I("s_cbranch_scc1 L_aux1")
    srd(a, RD, S_DBG, 256)
    a.I("s_memrealtime s[54:55]")
    a.I("s_waitcnt lgkmcnt(0)")
    a.I("s_or_b32 s85, s54, 1")
    a.I("v_mov_b32 v8, s85")
    a.I("v_mov_b32 v10, 0")
    a.I("s_mov_b64 exec, 1")
    a.I(f"buffer_store_dword v8, v10, {S4(RD)}, 0 offen sc1")
    a.I("s_mov_b64 exec, -1")
    a.L("L_aux1")
    a.I(f"s_lshl_b32 s54, s{S_RB}, 6")
    a.I(f"s_lshl_b32 s55, s{S_CG}, 3")
    a.I("s_add_u32 s54, s54, s55")
    a.I("s_lshl_b32 s55, s66, 1")
    a.I("s_add_u32 s86, s54, s55")
    return 0

def aux_side_loads(a):
    a.I("s_lshl_b32 s54, s86, 10")
    srd_off(a, RD, S_AX, "s54", 2048)
    a.I("v_and_b32 v2, 31, v1")
    a.I("v_lshlrev_b32 v2, 5, v2")
    a.I("v_lshrrev_b32 v3, 5, v1")
    a.I("v_lshl_add_u32 v4, v3, 10, v2")
    for i in range(2):
        a.I(f"buffer_load_dwordx4 {vr(32+4*i,4)}, v4, {S4(RD)}, 0 offen offset:{16*i}")
    srd(a, RD, S_GW, 1024)
    for i in range(2):
        a.I(f"buffer_load_dwordx4 {vr(40+4*i,4)}, v2, {S4(RD)}, 0 offen offset:{16*i}")
    n = 4
    if OPT.get("codepf", 1) and not OPT.get("codeearly", 1):
        a.I("s_getpc_b64 s[52:53]")
        a.L("L_pc")
        a.I(f"s_sub_u32 s52, s52, L_pc-{KN}")
        a.I("s_subb_u32 s53, s53, 0")
        a.I("s_mul_i32 s54, s66, 6144")
        a.I("v_lshlrev_b32 v5, 7, v1")
        a.I("v_add_u32 v5, s54, v5")
        a.I(f"v_min_u32 v5, L_code_end-{KN}-4, v5")
        a.I("s_mov_b32 exec_hi, 0xffff")
        a.I("global_load_dword v116, v5, s[52:53]")
        a.I("s_mov_b64 exec, -1")
        n += 1
    return n

def aux_nonce_issue(a):
    srd(a, RD, S_DBG, 256)
    a.I("v_mov_b32 v10, 0")
    a.I(f"buffer_load_dword v8, v10, {S4(RD)}, 0 offen sc1")
    return 1

def aux_nonce_take(a):
    a.I(f"v_readfirstlane_b32 s{S_NONCE}, v8")
    a.I("s_mov_b32 s50, 0x40000")
    a.L("L_nonce")
    a.I(f"s_cmp_lg_u32 s{S_NONCE}, 0")
    a.I("s_cbranch_scc1 L_nonce_ok")
    a.I("s_sub_u32 s50, s50, 1")
    a.I("s_cmp_eq_u32 s50, 0")
    a.I("s_cbranch_scc1 L_nonce_ok")
    srd(a, RD, S_DBG, 256)
    a.I(f"buffer_load_dword v8, v10, {S4(RD)}, 0 offen sc1")
    a.I("s_waitcnt vmcnt(0)")
    a.I(f"v_readfirstlane_b32 s{S_NONCE}, v8")
    a.I("s_branch L_nonce")
    a.L("L_nonce_ok")

def aux_gate(a):
    if OPT.get("p1noprod"): a.I("s_waitcnt vmcnt(0)")
    a.I("v_mov_b32 v24, 0")
    for i in range(8):
        a.I(f"v_dot2c_f32_bf16 v24, v{32+i}, v{40+i}")
    a.I("s_nop 3")
    for sh in (1, 2, 4, 8):
        a.I(f"v_add_f32_dpp v24, v24, v24 row_shr:{sh} row_mask:0xf bank_mask:0xf")
        a.I("s_nop 1")
    a.I("v_add_f32_dpp v24, v24, v24 row_bcast:15 row_mask:0xa bank_mask:0xf")
    a.I("s_nop 1")
    a.I("v_cvt_pk_bf16_f32 v24, v24, v24")
    a.I("v_and_b32 v24, 0xffff0000, v24")
    a.I(f"v_mul_f32 v24, {hex(f2u(-1.4426950408889634))}, v24")
    a.I("v_exp_f32 v24, v24")
    a.I("s_nop 0")
    a.I("v_add_f32 v24, 1.0, v24")
    a.I("v_rcp_f32 v24, v24")
    a.I("s_nop 0")
    a.I("v_cvt_pk_bf16_f32 v24, v24, v24")
    a.I("v_and_b32 v24, 0xffff0000, v24")
    srd_off(a, RD, S_WS, GO, 8192)
    a.I("s_lshl_b32 s54, s86, 2")
    a.I("v_lshrrev_b32 v3, 5, v1")
    a.I("v_lshlrev_b32 v3, 2, v3")
    a.I("s_mov_b32 s52, 0x80000000")
    a.I("s_mov_b32 s53, 0x80000000")
    a.I("s_mov_b64 exec, s[52:53]")
    a.I(f"buffer_store_dword v24, v3, {S4(RD)}, s54 offen sc1")
    a.I("s_mov_b64 exec, -1")

def aux_publish_fa(a):
    a.I("s_cmp_lg_u32 s66, 0")
    a.I("s_cbranch_scc1 L_aux2")
    srd_off(a, RD, S_WS, FLG, FLG_SIZE)
    a.I(f"s_lshl_b32 s54, s{S_CG}, 7")
    a.I(f"s_lshl_b32 s55, s{S_RB}, 2")
    a.I("s_add_u32 s54, s54, s55")
    a.I(f"s_add_u32 s54, s54, {FA_OFF}")
    a.I(f"v_mov_b32 v8, s{S_NONCE}")
    a.I(f"v_mov_b32 v10, 0")
    a.I("s_mov_b64 exec, 1")
    a.I(f"buffer_store_dword v8, v10, {S4(RD)}, s54 offen sc1")
    a.I("s_mov_b64 exec, -1")
    stamp(a, "FApub")
    a.L("L_aux2")

def aux_zero_misc(a):
    a.I("s_cmp_lg_u32 s66, 1")
    a.I("s_cbranch_scc1 L_aux3")
    a.I(f"v_lshlrev_b32 v10, 2, v1")
    if L_MISC: a.I(f"v_add_u32 v10, {L_MISC}, v10")
    a.I("v_mov_b32 v9, 0")
    a.I("ds_write_b32 v10, v9")
    a.I("s_waitcnt lgkmcnt(0)")
    a.I("v_mov_b32 v10, 0")
    a.L("L_aux3")

def aux_share_nonce(a):
    a.I("s_cmp_lg_u32 s66, 0")
    a.I("s_cbranch_scc1 L_aux4")
    a.I(f"v_mov_b32 v9, {L_MISC + 128}")
    a.I(f"v_mov_b32 v11, s{S_NONCE}")
    a.I("ds_write_b32 v9, v11")
    a.I("s_waitcnt lgkmcnt(0)")
    a.L("L_aux4")

def aux_fa_probe(a):
    srd_off(a, RC, S_WS, FLG, FLG_SIZE)
    a.I(f"s_lshr_b32 s88, s{S_HD}, 2")
    a.I("s_lshl_b32 s88, s88, 7")
    a.I(f"s_add_u32 s88, s88, {FA_OFF}")
    a.I("v_lshlrev_b32 v9, 2, v1")
    a.I("s_mov_b32 exec_hi, 0")
    a.I(f"buffer_load_dword v11, v9, {S4(RC)}, s88 offen sc1")
    a.I("s_mov_b64 exec, -1")
    VL = 4
    a.I(f"v_lshlrev_b32 v{VL}, 4, v1")
    a.I(f"s_lshl_b32 s54, s{S_HD}, 16")
    a.I(f"s_add_u32 s55, s54, {KF}")
    srd_off(a, RA, S_WS, "s55", 65536)
    a.I(f"s_add_u32 s55, s54, {VF}")
    srd_off(a, RB, S_WS, "s55", 65536)
    a.I(f"s_add_u32 s55, s54, {QF}")
    srd_off(a, RD, S_WS, "s55", 65536)
    a.I(f"s_lshl_b32 s54, s{S_QB}, 3")
    a.I("s_lshl_b32 s55, s66, 1")
    a.I("s_add_u32 s54, s54, s55")
    a.I("s_lshl_b32 s54, s54, 10")
    a.I("s_lshl_b32 s55, s66, 11")
    a.I(f"s_add_u32 s55, s55, {L_RING}")

def aux_after_e1(a):
    a.I("s_mov_b32 s67, s66")
    a.I("s_setprio 3")
    stamp(a, "E2")
    a.I("s_mov_b32 exec_hi, 0")
    a.I("s_waitcnt vmcnt(0)")
    a.I(f"v_cmp_ne_u32 vcc, s{S_NONCE}, v11")
    a.I("s_mov_b64 exec, -1")
    a.I("s_cbranch_vccz L_aux5")
    poll(a, RC, 32, 9, 11, "s88", OPT.get("faslp", 2))
    a.L("L_aux5")
    stamp(a, "FAok")
    VL = 4
    for t in range(2):
        a.I(f"s_add_u32 m0, s55, {t*1024}")
        a.I(f"s_add_u32 s56, s54, {t*1024}")
        a.I(f"buffer_load_dwordx4 v{VL}, {S4(RD)}, s56 offen sc1 lds")
    a.I("s_lshl_b32 s54, s67, 10")
    def kvchunks(cs):
        for c in cs:
            a.I(f"s_add_u32 s55, s54, {c*4096}")
            a.I(f"s_add_u32 m0, s55, {L_K}")
            a.I(f"s_add_u32 s56, s55, {L_V}")
            a.I(f"buffer_load_dwordx4 v{VL}, {S4(RA)}, s55 offen sc1 lds")
            a.I("s_mov_b32 m0, s56")
            a.I("s_nop 0")
            a.I(f"buffer_load_dwordx4 v{VL}, {S4(RB)}, s55 offen sc1 lds")
    kvchunks(range(0, 2))
    kvchunks(range(2, 4))
    a.I("s_waitcnt vmcnt(4)")
    lds_add1(a, M_KV, 8, 9)
    stamp(a, "KV1")
    kvchunks(range(4, 16))
    a.I("s_lshr_b32 s53, s2, 3")
    srd(a, RA, S_W2, 1376*1024)
    srd(a, RB, S_WO, 512*1024)
    a.I("s_mul_i32 s54, s53, 44032")
    a.I("s_lshl_b32 s55, s67, 10")
    a.I("s_add_u32 s54, s54, s55")
    a.I("s_waitcnt vmcnt(0)")
    lds_add1(a, M_KV, 8, 9)
    stamp(a, "KV2")
    a.I("v_lshlrev_b32 v10, 7, v1")
    a.I("s_lshl_b32 s55, s67, 13")
    a.I("s_mul_i32 s54, s53, 44032")
    a.I("s_add_u32 s54, s54, s55")
    a.I(f"buffer_load_dword v40, v10, {S4(RA)}, s54 offen")
    a.I("s_add_u32 s54, s54, 32768")
    a.I(f"buffer_load_dword v41, v10, {S4(RA)}, s54 offen")
    a.I("s_lshl_b32 s54, s53, 14")
    a.I("s_lshl_b32 s55, s67, 12")
    a.I("s_add_u32 s54, s54, s55")
    a.I("s_mov_b32 exec_hi, 0")
    a.I(f"buffer_load_dword v42, v10, {S4(RB)}, s54 offen")
    a.I("s_mov_b64 exec, -1")

def ffn2_p3(a):
    WF, HR, ACC2, BPR = 24, 40, 104, 8
    VH, VW, VA0, VA1 = 2, 3, 4, 5
    a.I("s_cmp_lg_u32 s67, 0")
    a.I("s_cbranch_scc1 L_f1")
    lds_spin(a, M_HST, 4, 8, 9, OPT.get('fslp', 1))
    lds_spin(a, M_KV, 8, 8, 9)
    a.I(f"s_lshl_b32 s54, s{S_RB}, 7")
    a.I(f"s_lshl_b32 s55, s{S_CG}, 2")
    a.I("s_add_u32 s54, s54, s55")
    a.I(f"s_add_u32 s54, s54, {FH_OFF}")
    flag_store(a, "s54", 8, 10)
    a.I(f"s_lshl_b32 s54, s{S_HD}, 7")
    a.I(f"s_add_u32 s54, s54, {FH_OFF}")
    a.I("v_lshlrev_b32 v8, 2, v1")
    poll(a, RC, 8, 8, 9, "s54", OPT.get("fhslp", 8))
    lds_add1(a, M_H, 8, 9)
    a.I("s_branch L_f2")
    a.L("L_f1")
    lds_spin(a, M_H, 1, 8, 9, OPT.get('fslp', 1))
    a.L("L_f2")
    lds_spin(a, M_QRD, 8, 8, 9, OPT.get('fslp', 1))
    stamp(a, "hready")
    if OPT.get("tailpf"):
        srd(a, RA, S_B2, 1024)
        a.I("v_lshlrev_b32 v10, 7, v1")
        a.I("s_mov_b32 exec_lo, 0xff")
        a.I("s_mov_b32 exec_hi, 0")
        a.I(f"buffer_load_dword v43, v10, {S4(RA)}, 0 offen")
        if OPT["tailpf"] > 1:
            srd(a, RA, S_OUT, 2*MB)
            a.I(f"s_lshl_b32 s54, s{S_HD}, 16")
            a.I("s_mov_b32 exec_lo, 1")
            a.I(f"buffer_load_dword v44, v10, {S4(RA)}, s54 offen")
        a.I("s_mov_b64 exec, -1")
    srd(a, RA, S_W2, 1376*1024)
    srd_off(a, RB, S_WS, HF, HF_SIZE)
    a.I(f"v_lshlrev_b32 v{VH}, 4, v1")
    dma_w_lane_off(a, VW, 1, 8, 9, 1024)
    a.I(f"s_lshl_b32 s54, s{S_QB}, 7")
    a.I(f"v_add_u32 v{VW}, s54, v{VW}")
    tr_lane_addr(a, VA0, 1, 8, 9, 4, 128)
    a.I("s_mul_i32 s68, s67, 6144")
    a.I(f"s_add_u32 s68, s68, {L_RING}")
    a.I(f"v_add_u32 v{VA0}, s68, v{VA0}")
    a.I(f"v_xor_b32 v{VA1}, 64, v{VA0}")
    a.I("s_mul_i32 s54, s67, 24")
    a.I("s_lshl_b32 s70, s54, 14")
    a.I("s_lshl_b32 s71, s54, 16")
    a.I(f"s_lshl_b32 s55, s{S_HD}, 11")
    a.I("s_add_u32 s71, s71, s55")
    for i in range(64):
        a.I(f"v_mov_b32 v{ACC2+i}, 0")
    a.I("s_waitcnt vmcnt(0)")
    def fissue(slot):
        return [f"s_add_u32 m0, s68, {slot*2048}",
                f"s_add_u32 s69, s70, 8192",
                f"buffer_load_dwordx4 v{VW}, {S4(RA)}, s70 offen lds",
                f"s_add_u32 m0, s68, {slot*2048+1024}",
                f"s_add_u32 s70, s70, 16384",
                f"buffer_load_dwordx4 v{VW}, {S4(RA)}, s69 offen lds",
                f"buffer_load_dwordx4 {vr(HR+slot*8,4)}, v{VH}, {S4(RB)}, s71 offen sc1",
                f"buffer_load_dwordx4 {vr(HR+slot*8+4,4)}, v{VH}, {S4(RB)}, s71 offen offset:1024 sc1",
                f"s_add_u32 s71, s71, 65536"]
    def trr(F, off):
        out = []
        for ct, va in ((0, VA0), (1, VA1)):
            for rd in range(2):
                out.append(f"ds_read_b64_tr_b16 {vr(F+4*ct+2*rd,2)}, v{va} offset:{off + rd*1024}")
        return out
    N2 = OPT.get("n2", 0)
    a.I("s_cmp_eq_u32 s67, 3")
    a.I(f"s_cselect_b32 s72, {5-N2}, {8-N2}")
    a.I("s_mov_b32 s76, 0")
    a.L("L_fpro")
    for slot in range(3):
        a.I(J(fissue(slot)))
    a.I("s_cmp_lg_u32 s76, 0")
    a.I("s_cbranch_scc1 L_floop")
    a.I(f"s_setprio {OPT.get('ffnprio', 0)}")
    if OPT.get("noffn"): a.I("s_branch L_fskip")
    a.L("L_floop")
    for slot in range(3):
        a.I("s_waitcnt vmcnt(8)")
        a.I(J(trr(WF, slot*2048)))
        a.I("s_waitcnt lgkmcnt(0)")
        fi = fissue(slot)
        mf = lambda ct, rt: MF(ACC2 + (ct*2+rt)*16, WF+4*ct, HR+slot*8+4*rt, ACC2 + (ct*2+rt)*16)
        if OPT.get("fspread", 1):
            a.I(mf(0, 0)); a.I(J(fi[0:3]))
            a.I(mf(1, 0)); a.I(J(fi[3:6]))
            a.I(mf(0, 1)); a.I(fi[6])
            a.I(mf(1, 1)); a.I(J(fi[7:]))
        else:
            for ct in range(2):
                for rt in range(2):
                    a.I(mf(ct, rt))
            a.I(J(fi))
    a.I("s_sub_u32 s72, s72, 1")
    a.I("s_cmp_lg_u32 s72, 0")
    a.I("s_cbranch_scc1 L_floop")
    a.L("L_fskip")
    a.I("s_setprio 3")
    a.I("s_waitcnt vmcnt(0)")
    a.I("s_cmp_lg_u32 s76, 0")
    a.I("s_cbranch_scc1 L_fdone")
    lds_add1(a, M_FFN, 8, 9)
    stamp(a, "ffn2")
    lds_spin(a, M_ATT, 4, 8, 9, OPT.get('attslp', 1))
    stamp(a, "attdone")
    srd(a, RD, S_WO, 512*1024)
    a.I("s_lshl_b32 s56, s67, 14")
    a.I(f"s_add_u32 s56, s56, {L_K}")
    a.I("s_lshl_b32 s57, s67, 17")
    for ks in range(8):
        for n in range(2):
            a.I(f"s_add_u32 m0, s56, {ks*2048+n*1024}")
            a.I(f"s_add_u32 s69, s57, {ks*16384+n*8192}")
            a.I(f"buffer_load_dwordx4 v{VW}, {S4(RD)}, s69 offen lds")
    if N2:
        a.I("s_mov_b32 s76, 1")
        a.I(f"s_sub_u32 s70, s70, {3*16384}")
        a.I(f"s_sub_u32 s71, s71, {3*65536}")
        a.I(f"s_mov_b32 s72, {N2}")
        a.I("s_branch L_fpro")
    a.L("L_fdone")
    srd_off(a, RA, S_WS, GO, 8192)
    srd(a, RB, S_B2, 1024)
    a.I("s_and_b32 s73, s67, 1")
    a.I("s_lshr_b32 s74, s67, 1")
    a.I(f"s_lshl_b32 s75, s{S_HD}, 6")
    a.I("s_lshl_b32 s54, s73, 5")
    a.I("s_add_u32 s75, s75, s54")
    a.I("s_lshl_b32 s54, s75, 2")
    a.I("v_and_b32 v8, 31, v1")
    a.I("v_lshlrev_b32 v8, 2, v8")
    a.I(f"buffer_load_dword v40, v8, {S4(RA)}, s54 offen sc1")
    a.I(f"s_lshl_b32 s54, s{S_QB}, 6")
    a.I("s_lshl_b32 s55, s74, 5")
    a.I("s_add_u32 s54, s54, s55")
    a.I("s_lshl_b32 s54, s54, 1")
    a.I("v_lshrrev_b32 v8, 5, v1")
    a.I("v_lshlrev_b32 v8, 3, v8")
    for q in range(4):
        a.I(f"buffer_load_dwordx2 v[{42+2*q}:{43+2*q}], v8, {S4(RB)}, s54 offen offset:{q*16}")
    a.I("s_lshl_b32 s68, s67, 14")
    a.I("s_nop 7")
    a.I(f"s_add_u32 s54, s68, {L_V}")
    a.I(f"v_add_u32 v8, s54, v{VH}")
    for i in range(16):
        a.I(f"ds_write_b128 v8, {vr(ACC2+4*i,4)} offset:{i*1024}")
    a.I("s_waitcnt vmcnt(0) lgkmcnt(0)")
    lds_add1(a, M_T1, 9, 10)
    lds_spin(a, M_T1, 4, 9, 10)
    a.I("s_lshl_b32 s54, s67, 12")
    a.I(f"s_add_u32 s54, s54, {L_V}")
    a.I(f"v_add_u32 v8, s54, v{VH}")
    for p in range(4):
        for q in range(4):
            a.I(f"ds_read_b128 {vr(ACC2+p*16+q*4,4)}, v8 offset:{p*16384+q*1024}")
    a.I("s_waitcnt lgkmcnt(0)")
    for i in range(16):
        a.I(f"v_add_f32 v{ACC2+i}, v{ACC2+i}, v{ACC2+16+i}")
        a.I(f"v_add_f32 v{ACC2+32+i}, v{ACC2+32+i}, v{ACC2+48+i}")
    for i in range(16):
        a.I(f"v_add_f32 v{ACC2+i}, v{ACC2+i}, v{ACC2+32+i}")
    a.I("s_waitcnt vmcnt(0)")
    a.I("v_sub_f32 v41, 1.0, v40")
    a.I("v_cvt_pk_bf16_f32 v41, v41, v41")
    a.I("v_and_b32 v41, 0xffff0000, v41")
    for q in range(4):
        a.I(f"v_lshlrev_b32 v52, 16, v{42+2*q}")
        a.I(f"v_and_b32 v53, 0xffff0000, v{42+2*q}")
        a.I(f"v_lshlrev_b32 v54, 16, v{43+2*q}")
        a.I(f"v_and_b32 v55, 0xffff0000, v{43+2*q}")
        for j in range(4):
            a.I(f"v_add_f32 v{BPR+4*q+j}, v{ACC2+4*q+j}, v{52+j}")
        for j in range(4):
            a.I(f"v_mul_f32 v{BPR+4*q+j}, v{BPR+4*q+j}, v41")
    a.I("v_mov_b32 v39, v40")
    tr_lane_addr(a, VA0, 1, 32, 33, 4, 128)
    a.I("s_lshl_b32 s54, s74, 6")
    a.I(f"v_xor_b32 v{VA0}, s54, v{VA0}")
    a.I(f"v_add_u32 v{VA0}, {L_K}, v{VA0}")
    a.I("s_lshl_b32 s54, s73, 15")
    a.I(f"s_add_u32 s54, s54, {L_V}")
    a.I(f"v_add_u32 v{VA1}, s54, v{VH}")
    FR = 40
    def wreads(ks):
        F = FR + (ks % 8) * 8
        return [f"ds_read_b64_tr_b16 {vr(F,2)}, v{VA0} offset:{ks*2048}",
                f"ds_read_b64_tr_b16 {vr(F+2,2)}, v{VA0} offset:{ks*2048+1024}"]
    def oread(ks):
        F = FR + (ks % 8) * 8
        return [f"ds_read_b128 {vr(F+4,4)}, v{VA1} offset:{ks*1024}"]
    a.I("s_cmp_lg_u32 s67, 0")
    a.I("s_cbranch_scc1 L_f4")
    a.I(f"s_lshl_b32 s54, s{S_HD}, 8")
    a.I(f"s_add_u32 s54, s54, {FO_OFF}")
    a.I("v_lshlrev_b32 v121, 2, v1")
    if not OPT.get("opf", 0):
        poll(a, RC, 64, 121, 122, "s54", OPT.get("foslp", 2))
    else:
        srd_off(a, RB, S_WS, OF, 2*MB)
        a.I(f"s_lshl_b32 s55, s{S_HD}, 16")
        a.I("v_lshlrev_b32 v123, 10, v1")
        a.I("s_mov_b64 s[56:57], 0")
        a.I("s_mov_b32 s50, 0x40000")
        a.L("L_opf")
        a.I(f"buffer_load_dword v122, v121, {S4(RC)}, s54 offen sc1")
        a.I("s_waitcnt vmcnt(0)")
        a.I(f"v_cmp_eq_u32 vcc, s{S_NONCE}, v122")
        a.I("s_nop 1")
        a.I("s_andn2_b64 s[58:59], vcc, s[56:57]")
        a.I("s_or_b64 s[56:57], s[56:57], vcc")
        a.I("s_cmp_eq_u64 s[56:57], -1")
        a.I("s_cbranch_scc1 L_opf3")
        a.I("s_cmp_eq_u64 s[58:59], 0")
        a.I("s_cbranch_scc1 L_opf2")
        a.I("s_mov_b64 exec, s[58:59]")
        for j in range(8):
            a.I(f"buffer_load_dword v120, v123, {S4(RB)}, s55 offen offset:{j*128} sc1")
        a.I("s_mov_b64 exec, -1")
        a.L("L_opf2")
        a.I("s_sub_u32 s50, s50, 1")
        a.I("s_cmp_eq_u32 s50, 0")
        a.I("s_cbranch_scc1 L_opf3")
        a.I(f"s_sleep {OPT.get('foslp', 2)}")
        a.I("s_branch L_opf")
        a.L("L_opf3")
    a.L("L_f4")
    for ks in range(8): a.I(J(wreads(ks)))
    srd_off(a, RB, S_WS, OF, 2*MB)
    a.I(f"s_lshl_b32 s54, s{S_HD}, 16")
    a.I("s_lshl_b32 s55, s67, 11")
    a.I("s_add_u32 s54, s54, s55")
    a.I(f"s_add_u32 s55, s55, {L_V}")
    srd(a, RA, S_OUT, 2*MB)
    a.I("s_lshl_b32 s58, s75, 10")
    a.I(f"s_lshl_b32 s59, s{S_QB}, 7")
    a.I("s_add_u32 s58, s58, s59")
    a.I("s_lshl_b32 s59, s74, 6")
    a.I("s_add_u32 s58, s58, s59")
    a.I("v_and_b32 v32, 31, v1")
    a.I("v_lshlrev_b32 v32, 10, v32")
    a.I("v_lshrrev_b32 v33, 5, v1")
    a.I("v_lshl_add_u32 v32, v33, 4, v32")
    a.I("s_waitcnt lgkmcnt(0)")
    a.I("s_barrier")
    stamp(a, "T2")
    def odma(ch):
        L = []
        for hh in range(2):
            for rt in range(2):
                off = rt*32768 + ch*8192 + hh*1024
                L.append([f"s_add_u32 m0, s55, {off}", f"s_add_u32 s56, s54, {off}",
                          f"buffer_load_dwordx4 v{VH}, {S4(RB)}, s56 offen sc1 lds"])
        return L
    for ch in range(4):
        for x in odma(ch): a.I(J(x))
    for ch in range(4):
        a.I(f"s_waitcnt vmcnt({4*(3-ch)}) lgkmcnt(0)")
        a.I("s_barrier")
        for ks in range(8*ch, 8*ch+8): a.I(J(oread(ks)))
        for i in range(8):
            ks = 8*ch + i
            a.I(f"s_waitcnt lgkmcnt({7 + i if ch < 3 else 7 - i})")
            F = FR + i*8
            a.I(MF(ACC2, F, F+4, ACC2 if ks else None))
            if ch < 3: a.I(J(wreads(ks+8)))
    a.I("s_nop 15")
    stamp(a, "p3mm")
    for i in range(16):
        a.I(f"v_fma_f32 v{ACC2+i}, v{ACC2+i}, v39, v{BPR+i}")
    for j in range(8):
        a.I(f"v_cvt_pk_bf16_f32 v{ACC2+j}, v{ACC2+2*j}, v{ACC2+2*j+1}")
    a.I("s_nop 1")
    a.I(f"v_permlane32_swap_b32 v{ACC2}, v{ACC2+2}")
    a.I(f"v_permlane32_swap_b32 v{ACC2+1}, v{ACC2+3}")
    a.I(f"v_permlane32_swap_b32 v{ACC2+4}, v{ACC2+6}")
    a.I(f"v_permlane32_swap_b32 v{ACC2+5}, v{ACC2+7}")
    ofl = {0: "", 1: " sc1", 2: " nt", 3: " sc0 sc1"}[OPT.get("outfl", 0)]
    a.I(f"buffer_store_dwordx4 {vr(ACC2,4)}, v32, {S4(RA)}, s58 offen{ofl}")
    a.I(f"buffer_store_dwordx4 {vr(ACC2+4,4)}, v32, {S4(RA)}, s58 offen offset:32{ofl}")
    stamp_flush(a, "ffn")
    a.I("s_endpgm")

def attention(a):
    a.L("L_attn")
    stamp(a, "attn0")
    QA, QB = 8, 12
    KB = [16, 20]; VB = [24, 32]
    S0, S1, OA, OB = 40, 56, 72, 88
    VK, VV, VL = 2, 3, 4
    T0, T1, T2 = 104, 105, 106
    VKN, VVN, VVB, VCH, VONE, VNX = 107, 108, 109, 110, 111, 5
    VX128, VX32, VPAIR, VPFLAG, VTF = 144, 145, 146, 147, 148
    a.I(f"s_and_b32 s63, s{S_W}, 3")
    a.I(f"s_lshr_b32 s64, s{S_W}, 2")
    a.I(f"v_lshlrev_b32 v{VL}, 4, v1")
    a.I(f"v_lshrrev_b32 v{T0}, 5, v1")
    a.I(f"v_and_b32 v{T1}, 15, v1")
    a.I(f"v_lshlrev_b32 v{T1}, 4, v{T1}")
    a.I(f"v_lshl_add_u32 v{VVB}, v{T0}, 8, v{T1}")
    a.I(f"v_add_u32 v{VVB}, {L_V}, v{VVB}")
    a.I(f"v_add_u32 v{VKN}, {L_K}, v{VL}")
    a.I("s_lshl_b32 s54, s64, 12")
    a.I(f"v_add_u32 v{VK}, s54, v{VL}")
    a.I(f"v_add_u32 v{VV}, s54, v{VVB}")
    a.I("s_lshl_b32 s54, s63, 2")
    a.I(f"s_add_u32 s54, s54, {M_CH}")
    a.I(f"v_mov_b32 v{VCH}, s54")
    a.I(f"v_mov_b32 v{VONE}, 1")
    a.I("s_mov_b32 s74, 0x0000ffff")
    a.I("s_mov_b32 s75, 0x0000ffff")
    a.I("s_mov_b32 s77, 0")
    a.I(f"s_lshl_b32 s66, s{S_QB}, 3")
    a.I("s_lshl_b32 s54, s63, 1")
    a.I("s_add_u32 s66, s66, s54")
    a.I("s_lshl_b32 s54, s63, 11")
    a.I(f"s_add_u32 s54, s54, {L_RING}")
    a.I(f"v_add_u32 v{T2}, s54, v{VL}")
    a.I(f"v_and_b32 v{T0}, 31, v1")
    a.I(f"v_cmp_eq_u32 vcc, 16, v{T0}")
    a.I(f"v_mov_b32 v{T1}, 0x3f803f80")
    a.I("s_nop 1")
    a.I(f"v_cndmask_b32 v{T0}, 0, v{T1}, vcc")
    for i in range(16):
        a.I(f"v_mov_b32 v{VB[0]+i}, v{T0}")
    a.I("s_lshl_b32 s54, s63, 2")
    a.I(f"s_add_u32 s55, s54, {M_PAIR}")
    a.I(f"s_add_u32 s76, s54, {M_PFLAG}")
    a.I(f"v_mov_b32 v{VPAIR}, s55")
    a.I(f"v_mov_b32 v{VPFLAG}, s76")
    a.I("s_mul_i32 s54, s63, 4608")
    a.I(f"s_add_u32 s54, s54, {L_XCH}")
    a.I(f"v_add_u32 v{VX128}, s54, v{VL}")
    a.I(f"v_lshlrev_b32 v{VX32}, 2, v1")
    a.I(f"v_add_u32 v{VX32}, s54, v{VX32}")
    a.I(f"v_mov_b32 v{VTF}, {L_MISC + 128}")
    a.I(f"ds_read_b32 v{VTF}, v{VTF}")
    a.I("s_waitcnt lgkmcnt(0)")
    a.I(f"v_readfirstlane_b32 s{S_NONCE}, v{VTF}")
    for i in range(16):
        a.I(f"v_mov_b32 v{OA+i}, 0")
        a.I(f"v_mov_b32 v{OB+i}, 0")
    lds_spin(a, M_KV, 4, T0, T1, 0)
    stamp(a, "kvok")
    a.I(f"ds_read_b128 {vr(QA,4)}, v{T2}")
    a.I(f"ds_read_b128 {vr(QB,4)}, v{T2} offset:1024")
    a.I("s_lshl_b32 s71, s64, 12")
    if STAMPS and OPT.get("fineattn"): a.I("s_mov_b32 s87, 24")
    a.I("s_mov_b32 s73, 0")

    def e_(S, i): return f"v_exp_f32 v{S+i}, v{S+i}"
    def c_(S, j): return f"v_cvt_pk_bf16_f32 v{S+j}, v{S+2*j}, v{S+2*j+1}"
    def tile(Sin, Sout, Qn, Kn, Ocur, Vcur_u0, Oprev, Vprev_u1, after_pv2, wait_s, after_s, wait_pv1, do_pv2=True, do_s=True):
        e = lambda i: e_(Sin, i)
        c = lambda j: c_(Sin, j)
        L = [e(0), e(1)]
        if do_pv2: L.append(MF(Oprev, Vprev_u1, Sout+4, Oprev))
        L += after_pv2
        L += [e(2), e(3), c(0), e(4), e(5), c(1)]
        L += wait_s
        if do_s: L.append(MF(Sout, Kn, Qn))
        L += after_s
        L += [e(6), e(7), c(2), e(8), e(9), c(3), e(10), e(11)]
        L += wait_pv1
        L.append(MF(Ocur, Vcur_u0, Sin, Ocur))
        L += [c(4), e(12), e(13), c(5), e(14), e(15), c(6), c(7)]
        return L
    fifo = []
    def dsr(tag, txt): fifo.append(tag); return txt
    def need(tag):
        idx = max(i for i, t in enumerate(fifo) if t == tag)
        return [f"s_waitcnt lgkmcnt({len(fifo) - 1 - idx})"]
    def vreads(t):
        kap = t & 1
        return ["s_mov_b64 exec, s[74:75]",
                dsr(("V", t), f"ds_read_b128 {vr(VB[kap],4)}, v{VV} offset:{t*1024}"),
                dsr(("V", t), f"ds_read_b128 {vr(VB[kap]+4,4)}, v{VV} offset:{t*1024+512}"),
                "s_mov_b64 exec, -1"]
    def kread(t): return [dsr(("K", t), f"ds_read_b128 {vr(KB[t & 1],4)}, v{VK} offset:{t*1024}")]
    a.raw(".p2align 6")
    a.L("L_aloop")
    if OPT.get("fineattn"):
        OPT["fine"] = 1; stamp_dyn(a); OPT["fine"] = 0
    a.I(f"v_add_u32 v{VK}, s71, v{VKN}")
    a.I(f"v_add_u32 v{VV}, s71, v{VVB}")
    L = kread(0) + vreads(0) + kread(1)
    L += need(("K", 0))
    L.append(MF(S0, KB[0], QA))
    a.I(J(L))
    a.I("s_nop 7")
    a.I("s_nop 3")
    body = []
    for t in range(4):
        kap = t & 1
        A = []
        Sin, Sout = S0, S1
        A += [e_(Sin, 0), e_(Sin, 1)]
        if t > 0: A.append(MF(OB, VB[kap^1]+4, Sout+4, OB))
        if t + 1 < 4: A += vreads(t+1)
        A += [e_(Sin, 2), e_(Sin, 3), c_(Sin, 0), e_(Sin, 4), e_(Sin, 5), c_(Sin, 1)]
        A.append(MF(Sout, KB[kap], QB))
        if t + 2 < 4: A += kread(t+2)
        A += [e_(Sin, 6), e_(Sin, 7), c_(Sin, 2), e_(Sin, 8), e_(Sin, 9), c_(Sin, 3), e_(Sin, 10), e_(Sin, 11)]
        A += need(("V", t))
        A.append(MF(OA, VB[kap], Sin, OA))
        A += [c_(Sin, 4), e_(Sin, 12), e_(Sin, 13), c_(Sin, 5), e_(Sin, 14), e_(Sin, 15), c_(Sin, 6), c_(Sin, 7)]
        Sin, Sout = S1, S0
        B = [e_(Sin, 0), e_(Sin, 1), MF(OA, VB[kap]+4, Sout+4, OA)]
        if t == 3:
            B += ["s_mov_b64 exec, 1", dsr(("G",), f"ds_add_rtn_u32 v{VNX}, v{VCH}, v{VONE}"), "s_mov_b64 exec, -1"]
        B += [e_(Sin, 2), e_(Sin, 3), c_(Sin, 0), e_(Sin, 4), e_(Sin, 5), c_(Sin, 1)]
        if t + 1 < 4:
            B += need(("K", t+1))
            B.append(MF(Sout, KB[kap^1], QA))
        B += [e_(Sin, 6), e_(Sin, 7), c_(Sin, 2), e_(Sin, 8), e_(Sin, 9), c_(Sin, 3), e_(Sin, 10), e_(Sin, 11)]
        B.append(MF(OB, VB[kap], Sin, OB))
        B += [c_(Sin, 4), e_(Sin, 12), e_(Sin, 13), c_(Sin, 5), e_(Sin, 14), e_(Sin, 15), c_(Sin, 6), c_(Sin, 7)]
        body += A + B
    a.I(J(body))
    a.I("s_waitcnt lgkmcnt(0)")
    a.I(f"v_readfirstlane_b32 s70, v{VNX}")
    a.I(MF(OB, VB[1]+4, S1+4, OB))
    a.I("s_add_u32 s70, s70, 2")
    a.I("s_lshl_b32 s71, s70, 12")
    if OPT.get("hdefer", 1):
        a.I("s_cmp_ge_u32 s73, 2")
        a.I("s_cbranch_scc1 L_aloop2")
        a.I("s_cmp_eq_u32 s73, 1")
        a.I("s_cbranch_scc1 L_aloop3")
        a.I("s_mov_b32 s73, 1")
        lds_add1(a, M_QRD, T0, T1)
        a.I(f"s_cmp_ge_u32 s{S_W}, 4")
        a.I("s_cbranch_scc1 L_aloop1")
        for s_ in range(3):
            for uu in range(2):
                a.I(f"s_add_u32 s55, s83, {(4*s_+uu)*65536}")
                a.I(f"buffer_store_dwordx4 {vr(120+8*s_+4*uu,4)}, v{VL}, {S4(RA)}, s55 offen sc1")
        a.L("L_aloop1")
        lds_spin(a, M_KV, 8, T0, T1)
        a.I("s_branch L_aloop4")
        a.L("L_aloop3")
        a.I("s_mov_b32 s73, 2")
        a.I(f"s_cmp_ge_u32 s{S_W}, 4")
        a.I("s_cbranch_scc1 L_aloop2")
        a.I("s_waitcnt vmcnt(0)")
        lds_add1(a, M_HST, T0, T1)
        a.I("s_branch L_aloop2")
        a.L("L_aloop4")
        a.I("s_cmp_lt_u32 s70, 16")
        a.I("s_cbranch_scc1 L_aloop")
        a.I("s_branch L_aloop3")
    else:
        a.I("s_cmp_lg_u32 s73, 0")
        a.I("s_cbranch_scc1 L_aloop2")
        a.I("s_mov_b32 s73, 1")
        lds_add1(a, M_QRD, T0, T1)
        a.I("s_waitcnt vmcnt(0)")
        a.I(f"s_cmp_ge_u32 s{S_W}, 4")
        a.I("s_cbranch_scc1 L_aloop1")
        lds_add1(a, M_HST, T0, T1)
        a.L("L_aloop1")
        lds_spin(a, M_KV, 8, T0, T1)
    a.L("L_aloop2")
    a.I("s_cmp_lt_u32 s70, 16")
    a.I("s_cbranch_scc1 L_aloop")
    a.I("s_waitcnt lgkmcnt(0)")
    a.I("s_nop 7")
    stamp(a, "aloop")
    def preads():
        return [f"ds_read_b128 {vr(S1,4)}, v{VX128}", f"ds_read_b128 {vr(S1+4,4)}, v{VX128} offset:1024",
                f"ds_read_b128 {vr(S1+8,4)}, v{VX128} offset:2048", f"ds_read_b128 {vr(S1+12,4)}, v{VX128} offset:3072",
                f"ds_read_b32 v{T0}, v{VX32} offset:4096", f"ds_read_b32 v{T1}, v{VX32} offset:4352"]
    a.I("s_mov_b64 exec, 1")
    a.I(f"ds_add_rtn_u32 v{T2}, v{VPAIR}, v{VONE}")
    a.I("s_mov_b64 exec, -1")
    a.I(f"ds_read_b32 v{VTF}, v{VPFLAG}")
    a.I(J(preads()))
    a.I("s_waitcnt lgkmcnt(0)")
    a.I(f"v_readfirstlane_b32 s55, v{T2}")
    a.I(f"v_readfirstlane_b32 s56, v{VTF}")
    a.I("s_nop 3")
    a.I("s_cmp_lg_u32 s55, 0")
    a.I("s_cbranch_scc1 L_second")
    lds_spin(a, M_FFN, 4, T0, T1)
    a.I(f"ds_write_b128 v{VX128}, {vr(OA,4)}")
    a.I(f"ds_write_b128 v{VX128}, {vr(OA+4,4)} offset:1024")
    a.I(f"ds_write_b128 v{VX128}, {vr(OB,4)} offset:2048")
    a.I(f"ds_write_b128 v{VX128}, {vr(OB+4,4)} offset:3072")
    a.I(f"ds_write_b32 v{VX32}, v{OA+8} offset:4096")
    a.I(f"ds_write_b32 v{VX32}, v{OB+8} offset:4352")
    a.I("s_waitcnt lgkmcnt(0)")
    lds_add1(a, "s76", T0, T1)
    a.I("s_waitcnt lgkmcnt(0)")
    stamp_flush(a, "attn")
    a.I("s_endpgm")
    a.L("L_second")
    a.I("s_cmp_lg_u32 s56, 0")
    a.I("s_cbranch_scc1 L_second2")
    lds_spin(a, "s76", 1, T0, T1)
    a.I(J(preads()))
    a.I("s_waitcnt lgkmcnt(0)")
    a.L("L_second2")
    for i in range(8):
        a.I(f"v_add_f32 v{OA+i}, v{OA+i}, v{S1+i}")
        a.I(f"v_add_f32 v{OB+i}, v{OB+i}, v{S1+8+i}")
    a.I(f"v_add_f32 v{OA+8}, v{OA+8}, v{T0}")
    a.I(f"v_add_f32 v{OB+8}, v{OB+8}, v{T1}")
    a.L("L_fin")
    for O in (OA, OB):
        a.I(f"v_mov_b32 v{O+9}, v{O+8}")
    a.I("s_nop 1")
    for O in (OA, OB):
        a.I(f"v_permlane32_swap_b32 v{O+9}, v{O+8}")
    a.I("s_nop 1")
    for O in (OA, OB):
        a.I(f"v_rcp_f32 v{O+10}, v{O+9}")
    srd_off(a, RA, S_WS, OF, 2*MB)
    a.I("s_lshl_b32 s54, s66, 5")
    a.I(f"s_add_u32 s54, s54, s{S_HD}")
    a.I("s_lshl_b32 s55, s54, 10")
    for n_, O in enumerate((OA, OB)):
        for i in range(8):
            a.I(f"v_mul_f32 v{S0+8*n_+i}, v{O+i}, v{O+10}")
        for j in range(4):
            a.I(f"v_cvt_pk_bf16_f32 v{S1+4*n_+j}, v{S0+8*n_+2*j}, v{S0+8*n_+2*j+1}")
        a.I(f"buffer_store_dwordx4 {vr(S1+4*n_,4)}, v{VL}, {S4(RA)}, s55 offen sc1")
        if n_ == 0: a.I("s_add_u32 s55, s55, 32768")
    srd_off(a, RC, S_WS, FLG, FLG_SIZE)
    slow_check(a, OA, OB, T0, T1)
    lds_add1(a, M_ATT, T0, T1)
    a.I("s_lshl_b32 s54, s54, 2")
    a.I(f"s_add_u32 s54, s54, {FO_OFF}")
    a.I(f"v_mov_b32 v{T0}, s{S_NONCE}")
    a.I(f"v_lshlrev_b32 v{T1}, 7, v1")
    a.I("s_waitcnt vmcnt(0)")
    a.I("s_mov_b64 exec, 3")
    a.I(f"buffer_store_dword v{T0}, v{T1}, {S4(RC)}, s54 offen sc1")
    a.I("s_mov_b64 exec, -1")
    stamp_flush(a, "attn")
    a.I("s_endpgm")
    slow_path(a, QA, QB, KB, VB, S0, S1, OA, OB, VL, T0, T1, T2)

def slow_check(a, OA, OB, T0, T1):
    if OPT.get("noslow"): return
    a.I(f"v_mul_f32 v{T0}, 0, v{OA}")
    for i in range(1, 8):
        a.I(f"v_fma_f32 v{T0}, v{OA+i}, 0, v{T0}")
    for i in range(8):
        a.I(f"v_fma_f32 v{T0}, v{OB+i}, 0, v{T0}")
    a.I(f"v_cmp_eq_f32 s[78:79], 0, v{T0}")
    a.I(f"s_mov_b32 s80, {hex(f2u(2.0**-60))}")
    a.I(f"s_mov_b32 s81, {hex(f2u(2.0**60))}")
    for O in (OA, OB):
        a.I(f"v_cmp_le_f32 s[82:83], s80, v{O+9}")
        a.I(f"v_cmp_ge_f32 vcc, s81, v{O+9}")
        a.I("s_nop 1")
        a.I("s_and_b64 s[78:79], s[78:79], s[82:83]")
        a.I("s_and_b64 s[78:79], s[78:79], vcc")
    if OPT.get("forceslow"):
        a.I("s_mov_b64 s[78:79], 0")
    a.I("s_cmp_eq_u64 s[78:79], -1")
    a.I("s_cbranch_scc1 L_ok")
    a.I("s_cmp_eq_u32 s77, 0")
    a.I("s_cbranch_scc1 L_slow")
    a.L("L_ok")

def slow_path(a, QA, QB, KB, VB, S0, S1, OA, OB, VL, T0, T1, T2):
    if OPT.get("noslow"): return
    K, V0, M, C = KB[0], VB[0], 108, 112
    a.L("L_slow")
    a.I("s_waitcnt vmcnt(0)")
    a.I("s_mov_b32 s77, 1")
    a.I(f"v_lshrrev_b32 v{T0}, 5, v1")
    a.I(f"v_and_b32 v{T1}, 15, v1")
    a.I(f"v_lshlrev_b32 v{T1}, 4, v{T1}")
    a.I(f"v_lshl_add_u32 v{T2}, v{T0}, 8, v{T1}")
    a.I(f"v_add_u32 v{T2}, {L_V}, v{T2}")
    a.I(f"v_mov_b32 v{M}, 0xff800000")
    a.I(f"v_mov_b32 v{M+1}, 0xff800000")
    a.I(f"v_add_u32 v{T0}, {L_K}, v{VL}")
    a.I("s_mov_b32 s73, 0")
    a.L("L_slow1")
    a.I(f"ds_read_b128 {vr(K,4)}, v{T0}")
    a.I("s_waitcnt lgkmcnt(0)")
    a.I(MF(S0, K, QA))
    a.I(MF(S1, K, QB))
    a.I("s_nop 15")
    for S, m in ((S0, M), (S1, M+1)):
        for i in range(0, 16, 2):
            a.I(f"v_max3_f32 v{m}, v{S+i}, v{S+i+1}, v{m}")
    a.I(f"v_add_u32 v{T0}, 1024, v{T0}")
    a.I("s_add_u32 s73, s73, 1")
    a.I("s_cmp_lt_u32 s73, 64")
    a.I("s_cbranch_scc1 L_slow1")
    for m in (M, M+1):
        a.I(f"v_mov_b32 v{T1}, v{m}")
        a.I("s_nop 1")
        a.I(f"v_permlane32_swap_b32 v{T1}, v{m}")
        a.I("s_nop 1")
        a.I(f"v_max_f32 v{m}, v{m}, v{T1}")
    for t in range(2):
        for i in range(16):
            a.I(f"v_sub_f32 v{C+16*t+i}, 0, v{M+t}")
    for i in range(16):
        a.I(f"v_mov_b32 v{OA+i}, 0")
        a.I(f"v_mov_b32 v{OB+i}, 0")
    a.I(f"v_add_u32 v{T0}, {L_K}, v{VL}")
    a.I("s_mov_b32 s73, 0")
    a.L("L_slow2")
    a.I(f"ds_read_b128 {vr(K,4)}, v{T0}")
    a.I("s_mov_b64 exec, s[74:75]")
    a.I(f"ds_read_b128 {vr(V0,4)}, v{T2}")
    a.I(f"ds_read_b128 {vr(V0+4,4)}, v{T2} offset:512")
    a.I("s_mov_b64 exec, -1")
    a.I("s_waitcnt lgkmcnt(0)")
    a.I(MF(S0, K, QA, C))
    a.I(MF(S1, K, QB, C+16))
    a.I("s_nop 15")
    for S, O in ((S0, OA), (S1, OB)):
        for i in range(16):
            a.I(f"v_exp_f32 v{S+i}, v{S+i}")
        a.I("s_nop 0")
        for j in range(8):
            a.I(f"v_cvt_pk_bf16_f32 v{S+j}, v{S+2*j}, v{S+2*j+1}")
        a.I("s_nop 1")
        a.I(MF(O, V0, S, O))
        a.I(MF(O, V0+4, S+4, O))
    a.I(f"v_add_u32 v{T0}, 1024, v{T0}")
    a.I(f"v_add_u32 v{T2}, 1024, v{T2}")
    a.I("s_add_u32 s73, s73, 1")
    a.I("s_cmp_lt_u32 s73, 64")
    a.I("s_cbranch_scc1 L_slow2")
    a.I("s_nop 15")
    a.I("s_branch L_fin")

def gen():
    a = Asm()
    prologue(a)
    producer(a, False)
    consumer(a)
    a.L("L_aux")
    producer(a, True)
    ffn2_p3(a)
    attention(a)
    a.L("L_end")
    a.I("s_endpgm")
    a.L("L_code_end")
    a.I("s_endpgm")
    return a

HEADER = open("cdna_kernels/" + NAME + ".s.ref").read().split("; Override launch")[0]

def build(path):
    a = gen()
    out = HEADER + f"; WSLAYOUT QF={QF} KF={KF} VF={VF} HF={HF} GO={GO} OF={OF}\n"
    out += f"; @launch grid=(256,1,1) block=(768,1,1) lds={LDS_TOTAL}\n"
    out += '.amdgcn_target "amdgcn-amd-amdhsa--gfx950"\n.text\n' + a.text()
    out += f""".section .rodata,"a"
.p2align 6
.amdhsa_kernel {KN}
  .amdhsa_next_free_vgpr 168
  .amdhsa_next_free_sgpr 102
  .amdhsa_accum_offset 168
  .amdhsa_group_segment_fixed_size 0
  .amdhsa_kernarg_size 96
  .amdhsa_user_sgpr_count 2
  .amdhsa_user_sgpr_kernarg_segment_ptr 1
  .amdhsa_system_sgpr_workgroup_id_x 1
.end_amdhsa_kernel
"""
    open(path, "w").write(out)
    probs = check_linear(a.lines, "k")
    if STAMPS: print("stamps:", ",".join(_stamp_names))
    return probs

if __name__ == "__main__":
    for x in list(sys.argv[1:]):
        if x.startswith("-D"):
            k, _, v = x[2:].partition("=")
            OPT[k] = int(v) if v else 1
            sys.argv.remove(x)
    if "--stamps" in sys.argv:
        STAMPS = True; sys.argv.remove("--stamps")
    path = sys.argv[1] if len(sys.argv) > 1 else "cdna_kernels/" + NAME + ".s"
    probs = build(path)
    for p in probs: print("HAZARD:", p)
    print("written", path, "problems:", len(probs))
```

```python
import sys, struct
from asmlib import *

NAME = "gated_mix__mha_block__dense_activation_squared_relu__prompt"
KN = NAME + "_kernel"
MB = 1 << 20
QF, KF, VF, HF, GO, OF, FLG = 4096, 2*MB + 8192, 4*MB + 12288, 6*MB + 16384, 12*MB, 14*MB + 4096, 16*MB + 8192
HF_SIZE = 86 * 65536
FA_OFF, FH_OFF, FO_OFF = 0, 4096, 8192
FLG_SIZE = 16384
QSCALE = 0.25 * 1.4426950408889634
STAMP_OFF = 32*MB
STAMPS = False
OPT = {}
def f2u(x): return struct.unpack("<I", struct.pack("<f", x))[0]

S_AX, S_WQKV, S_WO, S_W1, S_B1, S_W2, S_B2, S_GW, S_OUT, S_DBG, S_WS = 4, 6, 8, 12, 14, 16, 18, 20, 22, 24, 26
S_W = 3
S_RB, S_CG, S_START = 29, 30, 31
RA, RB, RC, RD = 32, 36, 40, 44
S_NONCE, S_HD, S_QB = 60, 61, 62
L_MISC, L_K, L_V, L_RING = 0, 1024, 1024 + 65536, 1024 + 131072
L_XCH = L_RING
M_KV, M_H, M_FA, M_QRD, M_HST, M_FFN, M_ATT, M_T1 = [L_MISC + 4*i for i in range(8)]
M_PAIR, M_PFLAG, M_CH = L_MISC + 64, L_MISC + 96, L_MISC + 160
LDS_TOTAL = 163840

def srd(a, dst, base, size):
    a.I(f"s_mov_b32 s{dst}, s{base}")
    a.I(f"s_mov_b32 s{dst+1}, s{base+1}")
    a.I(f"s_mov_b32 s{dst+2}, {size}")
    a.I(f"s_mov_b32 s{dst+3}, 0x20000")
def srd_off(a, dst, base, off, size):
    a.I(f"s_add_u32 s{dst}, s{base}, {off}")
    a.I(f"s_addc_u32 s{dst+1}, s{base+1}, 0")
    a.I(f"s_mov_b32 s{dst+2}, {size}")
    a.I(f"s_mov_b32 s{dst+3}, 0x20000")
def MF(d, A, B, c=None):
    cc = "0" if c is None else vr(c, 16)
    return f"v_mfma_f32_32x32x16_bf16 {vr(d,16)}, {vr(A,4)}, {vr(B,4)}, {cc}"
def S4(r): return f"s[{r}:{r+3}]"
def J(L): return "\n".join(L)

_stamp_names = []
def stamp(a, name):
    if not STAMPS: return
    if name not in _stamp_names: _stamp_names.append(name)
    i = _stamp_names.index(name)
    a.I("s_waitcnt lgkmcnt(0)")
    a.I("s_memtime s[98:99]")
    a.I("s_memrealtime s[100:101]")
    a.I("s_waitcnt lgkmcnt(0)")
    a.I(f"v_writelane_b32 v6, s98, {i}")
    a.I(f"v_writelane_b32 v7, s100, {i}")
def stamp_dyn(a):
    if not (STAMPS and OPT.get("fine")): return
    a.I("s_memtime s[98:99]")
    a.I("s_memrealtime s[100:101]")
    a.I("s_waitcnt lgkmcnt(0)")
    a.I("s_mov_b32 s88, m0")
    a.I("s_mov_b32 m0, s87")
    a.I("s_nop 3")
    a.I("v_writelane_b32 v6, s98, m0")
    a.I("v_writelane_b32 v7, s100, m0")
    a.I("s_mov_b32 m0, s88")
    a.I("s_add_u32 s87, s87, 1")
def dbg_dump(a, names, word0):
    lb = lab("dd")
    a.I(f"s_cmp_lg_u32 s2, {OPT.get('dbgwg', 0)}")
    a.I(f"s_cbranch_scc1 {lb}")
    a.I("v_readlane_b32 s90, v7, 0")
    for i, nm in enumerate(names):
        if nm not in _stamp_names: _stamp_names.append(nm)
        a.I(f"v_readlane_b32 s91, v7, {_stamp_names.index(nm)}")
        a.I("s_nop 3")
        a.I("s_sub_u32 s91, s91, s90")
        a.I("v_mov_b32 v2, s91")
        a.I(f"v_mov_b32 v3, {4*(word0+i)}")
        a.I("s_mov_b64 exec, 1")
        a.I(f"global_store_dword v3, v2, s[{S_DBG}:{S_DBG+1}]")
        a.I("s_mov_b64 exec, -1")
    a.L(lb)

def stamp_flush(a, who=None):
    if not STAMPS: return
    a.I("s_waitcnt vmcnt(0)")
    stamp(a, "end")
    if OPT.get("dbgdump"):
        if who == "ffn":
            l2 = lab("d8")
            a.I(f"s_cmp_lg_u32 s{S_W}, 8"); a.I(f"s_cbranch_scc1 {l2}")
            dbg_dump(a, ["E2", "FAok", "KV1", "hready", "ffn2", "attdone", "T2", "p3mm", "end"], 7)
            a.L(l2)
        elif who == "attn":
            l2 = lab("d0")
            a.I(f"s_and_b32 s91, s{S_W}, 3"); a.I("s_cmp_lg_u32 s91, 0"); a.I(f"s_cbranch_scc1 {l2}")
            a.I(f"s_cmp_ge_u32 s{S_W}, 4"); a.I(f"s_cbranch_scc1 {l2}")
            dbg_dump(a, ["karg", "B0", "qloop", "floop", "kvok", "aloop"], 1)
            a.L(l2)
    a.I(f"s_add_u32 s96, s{S_WS}, {STAMP_OFF}")
    a.I(f"s_addc_u32 s97, s{S_WS+1}, 0")
    a.I("s_mul_i32 s98, s2, 12")
    a.I(f"s_add_u32 s98, s98, s{S_W}")
    a.I("s_lshl_b32 s98, s98, 9")
    a.I("v_lshlrev_b32 v2, 2, v1")
    a.I("v_add_u32 v2, s98, v2")
    a.I("s_mov_b64 exec, -1")
    a.I("global_store_dword v2, v6, s[96:97]")
    a.I("global_store_dword v2, v7, s[96:97] offset:256")
    a.I("s_waitcnt vmcnt(0)")

def tr_lane_addr(a, dst, lane, tmp, tmp2, hrows, pitch):
    a.I(f"v_bfe_u32 v{tmp}, v{lane}, 2, 2")
    a.I(f"v_lshrrev_b32 v{tmp2}, 5, v{lane}")
    a.I(f"v_mul_u32_u24 v{tmp2}, {hrows}, v{tmp2}")
    a.I(f"v_add_u32 v{tmp}, v{tmp}, v{tmp2}")
    a.I(f"v_mul_u32_u24 v{dst}, {pitch}, v{tmp}")
    a.I(f"v_bfe_u32 v{tmp}, v{lane}, 4, 1")
    a.I(f"v_lshlrev_b32 v{tmp}, 1, v{tmp}")
    a.I(f"v_bfe_u32 v{tmp2}, v{lane}, 1, 1")
    a.I(f"v_add_u32 v{tmp}, v{tmp}, v{tmp2}")
    a.I(f"v_bfe_u32 v{tmp2}, v{lane}, 3, 1")
    a.I(f"v_lshlrev_b32 v{tmp2}, 2, v{tmp2}")
    a.I(f"v_xor_b32 v{tmp}, v{tmp}, v{tmp2}")
    a.I(f"v_lshl_add_u32 v{dst}, v{tmp}, 4, v{dst}")
    a.I(f"v_and_b32 v{tmp}, 1, v{lane}")
    a.I(f"v_lshl_add_u32 v{dst}, v{tmp}, 3, v{dst}")

def dma_w_lane_off(a, dst, lane, tmp, tmp2, pitch):
    a.I(f"v_lshrrev_b32 v{tmp}, 3, v{lane}")
    a.I(f"v_mul_u32_u24 v{dst}, {pitch}, v{tmp}")
    a.I(f"v_bfe_u32 v{tmp}, v{lane}, 4, 1")
    a.I(f"v_lshlrev_b32 v{tmp}, 2, v{tmp}")
    a.I(f"v_and_b32 v{tmp2}, 7, v{lane}")
    a.I(f"v_xor_b32 v{tmp}, v{tmp}, v{tmp2}")
    a.I(f"v_lshl_add_u32 v{dst}, v{tmp}, 4, v{dst}")

_lab = [0]
def lab(p):
    _lab[0] += 1
    return f"L_{p}{_lab[0]}"

def poll(a, srd_reg, nlanes, voff, vtmp, soff, slp=1):
    l0, l1 = lab("poll"), lab("polld")
    if nlanes < 64:
        a.I(f"s_mov_b32 exec_lo, {hex((1 << nlanes) - 1)}")
        a.I("s_mov_b32 exec_hi, 0")
    a.I("s_mov_b32 s50, 0x40000")
    a.L(l0)
    a.I(f"buffer_load_dword v{vtmp}, v{voff}, {S4(srd_reg)}, {soff} offen sc1")
    a.I("s_waitcnt vmcnt(0)")
    a.I(f"v_cmp_ne_u32 vcc, s{S_NONCE}, v{vtmp}")
    a.I(f"s_cbranch_vccz {l1}")
    a.I("s_sub_u32 s50, s50, 1")
    a.I("s_cmp_eq_u32 s50, 0")
    a.I(f"s_cbranch_scc1 {l1}")
    a.I(f"s_sleep {slp}")
    a.I(f"s_branch {l0}")
    a.L(l1)
    a.I("s_mov_b64 exec, -1")

def lds_spin(a, addr, target, vaddr, vtmp, slp=1):
    l0, l1 = lab("spin"), lab("spind")
    a.I(f"v_mov_b32 v{vaddr}, {addr}")
    a.I("s_mov_b32 s50, 0x400000")
    a.L(l0)
    a.I(f"ds_read_b32 v{vtmp}, v{vaddr}")
    a.I("s_waitcnt lgkmcnt(0)")
    a.I(f"v_readfirstlane_b32 s51, v{vtmp}")
    a.I("s_sub_u32 s50, s50, 1")
    a.I(f"s_cmp_ge_u32 s51, {target}")
    a.I(f"s_cbranch_scc1 {l1}")
    a.I("s_cmp_eq_u32 s50, 0")
    a.I(f"s_cbranch_scc1 {l1}")
    a.I(f"s_sleep {slp}")
    a.I(f"s_branch {l0}")
    a.L(l1)

def lds_add1(a, addr, vaddr, vtmp):
    a.I(f"v_mov_b32 v{vaddr}, {addr}")
    a.I(f"v_mov_b32 v{vtmp}, 1")
    a.I("s_mov_b64 exec, 1")
    a.I(f"ds_add_u32 v{vaddr}, v{vtmp}")
    a.I("s_mov_b64 exec, -1")

def flag_store(a, soff, v0_, v1_):
    a.I(f"v_mov_b32 v{v0_}, s{S_NONCE}")
    a.I(f"v_mov_b32 v{v1_}, 0")
    a.I("s_mov_b64 exec, 1")
    a.I(f"buffer_store_dword v{v0_}, v{v1_}, {S4(RC)}, {soff} offen sc1")
    a.I("s_mov_b64 exec, -1")

def prologue(a):
    a.raw(f".globl {KN}\n.p2align 8\n.type {KN},@function\n{KN}:")
    if STAMPS:
        a.I("s_memrealtime s[94:95]")
        a.I("s_memtime s[92:93]")
    a.I("s_cmp_ge_u32 s2, 256")
    a.I("s_cbranch_scc1 L_end")
    a.I("s_load_dwordx4 s[4:7], s[0:1], 0")
    a.I("s_load_dwordx2 s[8:9], s[0:1], 16")
    a.I("s_load_dwordx4 s[12:15], s[0:1], 32")
    a.I("s_load_dwordx4 s[16:19], s[0:1], 48")
    a.I("s_load_dwordx4 s[20:23], s[0:1], 64")
    a.I("s_load_dwordx4 s[24:27], s[0:1], 80")
    a.I("v_lshrrev_b32 v2, 6, v0")
    a.I("v_and_b32 v1, 63, v0")
    a.I(f"v_readfirstlane_b32 s{S_W}, v2")
    if OPT.get("codeearly", 1):
        a.I("s_getpc_b64 s[52:53]")
        a.L("L_pc0")
        a.I(f"s_sub_u32 s52, s52, L_pc0-{KN}")
        a.I("s_subb_u32 s53, s53, 0")
        a.I("v_lshlrev_b32 v3, 7, v0")
        a.I(f"v_min_u32 v3, L_code_end-{KN}-4, v3")
        a.I(f"s_cmp_ge_u32 s{S_W}, 3")
        a.I("s_cbranch_scc1 L_pc1")
        a.I("global_load_dword v31, v3, s[52:53]")
        a.L("L_pc1")
    if STAMPS:
        a.I("v_mov_b32 v6, 0"); a.I("v_mov_b32 v7, 0")
    a.I("s_and_b32 s52, s2, 7")
    a.I("s_lshr_b32 s53, s2, 3")
    if OPT.get("map84"):
        a.I("s_lshr_b32 s54, s52, 1")
        a.I("s_lshl_b32 s54, s54, 3")
        a.I("s_lshr_b32 s55, s53, 2")
        a.I(f"s_add_u32 s{S_RB}, s54, s55")
        a.I("s_and_b32 s54, s52, 1")
        a.I("s_lshl_b32 s54, s54, 2")
        a.I("s_and_b32 s55, s53, 3")
        a.I(f"s_add_u32 s{S_CG}, s54, s55")
    else:
        a.I("s_lshr_b32 s54, s52, 2")
        a.I("s_lshl_b32 s54, s54, 4")
        a.I("s_lshr_b32 s55, s53, 1")
        a.I(f"s_add_u32 s{S_RB}, s54, s55")
        a.I("s_and_b32 s54, s52, 3")
        a.I("s_lshl_b32 s54, s54, 1")
        a.I("s_and_b32 s55, s53, 1")
        a.I(f"s_add_u32 s{S_CG}, s54, s55")
    a.I(f"s_mul_i32 s54, s{S_CG}, 6")
    a.I(f"s_min_u32 s{S_START}, s54, 37")
    a.I(f"s_lshl_b32 s{S_HD}, s52, 2")
    a.I("s_and_b32 s54, s53, 3")
    a.I(f"s_add_u32 s{S_HD}, s{S_HD}, s54")
    a.I(f"s_lshr_b32 s{S_QB}, s2, 5")
    a.I("s_waitcnt lgkmcnt(0)")
    if STAMPS:
        _stamp_names.append("entry")
        a.I("v_writelane_b32 v6, s92, 0")
        a.I("v_writelane_b32 v7, s94, 0")
    stamp(a, "karg")
    a.I(f"s_cmp_ge_u32 s{S_W}, 8")
    a.I("s_cbranch_scc1 L_aux")
    a.I(f"s_cmp_lt_u32 s{S_W}, 4")
    a.I("s_cbranch_scc1 L_cons")

GATEPOS = 3
def producer(a, aux):
    T = "a" if aux else "p"
    if OPT.get("pprio"): a.I(f"s_setprio {OPT['pprio']}")
    a.I(f"s_sub_u32 s67, s{S_W}, 4")
    a.I(f"s_lshl_b32 s54, s{S_RB}, 16")
    srd_off(a, RA, S_AX, "s54", 65536)
    a.I("v_lshrrev_b32 v2, 3, v1")
    a.I("s_lshl_b32 s54, s67, 3")
    a.I("v_add_u32 v2, s54, v2")
    a.I("v_lshrrev_b32 v3, 4, v1")
    a.I("s_and_b32 s54, s67, 1")
    a.I("s_lshl_b32 s54, s54, 2")
    a.I("v_add_u32 v3, s54, v3")
    a.I("v_and_b32 v4, 7, v1")
    a.I("v_xor_b32 v3, v3, v4")
    a.I("v_lshlrev_b32 v3, 4, v3")
    a.I("v_lshl_add_u32 v12, v2, 10, v3")
    a.I("s_lshl_b32 s68, s67, 10")
    def woffs(dst, pitch, segshift):
        for j in range(3):
            a.I(f"v_add_u32 v2, {64*j}, v1")
            a.I("v_mul_u32_u24 v3, 171, v2")
            a.I("v_lshrrev_b32 v3, 12, v3")
            a.I("v_mul_u32_u24 v4, 24, v3")
            a.I("v_sub_u32 v2, v2, v4")
            a.I("v_lshrrev_b32 v4, 3, v2")
            a.I("v_and_b32 v2, 7, v2")
            a.I("v_bfe_u32 v5, v3, 1, 1")
            a.I("v_lshlrev_b32 v5, 2, v5")
            a.I("v_xor_b32 v2, v2, v5")
            a.I("v_lshlrev_b32 v2, 4, v2")
            a.I(f"v_mul_u32_u24 v5, {pitch}, v3")
            a.I(f"v_lshl_add_u32 v5, v4, {segshift}, v5")
            a.I(f"v_add_u32 v{dst+j}, v5, v2")
    wsetup_done = [False]
    def wsetup():
        if wsetup_done[0]: return
        wsetup_done[0] = True
        srd(a, RB, S_WQKV, 512*3072)
        woffs(13, 3072, 10)
        a.I("s_mul_i32 s69, s67, 3072")
        a.I("s_add_u32 s69, s69, 0x10000")
        a.I(f"s_lshl_b32 s70, s{S_CG}, 7")
        a.I(f"s_mul_i32 s71, s67, {8*3072}")
        a.I("s_add_u32 s70, s70, s71")
    def pre_setup(item):
        k, c = item
        if k == "X":
            a.I(f"s_add_u32 m0, s68, {c*8192}")
            a.I(f"s_movk_i32 s81, {c*128}")
        else:
            a.I(f"s_add_u32 s82, s70, {c*64*3072}" if c < 8 else f"s_add_u32 s82, s71, {(c-8)*64*2752}")
            a.I(f"s_add_u32 m0, s69, {(c&3)*24576}")
    def issue_x(c, done=False):
        if OPT.get("p1noprod"): return
        if not done:
            a.I(f"s_add_u32 m0, s68, {c*8192}")
            a.I(f"s_movk_i32 s81, {c*128}")
        a.I(f"buffer_load_dwordx4 v12, {S4(RA)}, s81 offen lds")
    def issue_w(c, done=False):
        if OPT.get("p1noprod"): return
        if c < 8:
            if not done: a.I(f"s_add_u32 s82, s70, {c*64*3072}")
            vo, R = 13, RB
        else:
            if not done: a.I(f"s_add_u32 s82, s71, {(c-8)*64*2752}")
            vo, R = 16, RC
        for j in range(3):
            if not (done and j == 0):
                a.I(f"s_add_u32 m0, s69, {(c&3)*24576 + j*1024}")
                a.I("s_nop 0")
            a.I(f"buffer_load_dwordx4 v{vo+j}, {S4(R)}, s82 offen lds")
    sched = OPT.get("sched", 0)
    if sched == 0:
        pre = [("X",0),("X",1),("X",2),("W",0),("W",1),("W",2)] if OPT.get("xfirst", 1) else [("X",0),("W",0),("X",1),("W",1),("X",2),("W",2)]
        post = {c: ([("X",c+3)] if c+3 < 8 else []) + ([("W",c+3)] if c+3 < 16 else []) for c in range(16)}
    elif sched == 1:
        pre = [("X",0),("W",0),("X",1),("W",1),("X",2),("W",2),("X",3),("W",3),("X",4),("X",5),("X",6),("X",7)]
        post = {c: ([("W",c+3)] if (c >= 1 and c+3 < 16) else []) for c in range(16)}
    elif sched == 2:
        pre = [("X",0),("W",0),("X",1),("W",1),("X",2),("W",2),("X",3),("W",3)]
        post = {c: ([("W",c+3)] if (c >= 1 and c+3 < 16) else []) for c in range(16)}
        post[0] = [("X",4),("X",5),("X",6),("X",7)]
    fifo = []
    def do(item, done=False):
        k, c = item
        if k == "X":
            if OPT.get("skipx"): fifo.append((item, 0)); return
            issue_x(c, done); fifo.append((item, 1))
        else:
            if OPT.get("skipw") and c < 8: fifo.append((item, 0)); return
            wsetup()
            issue_w(c, done); fifo.append((item, 3))
    for it in pre: do(it)
    if OPT.get("pfprod") and not aux:
        a.I(f"s_mov_b32 s89, s{S_W}")
        a.I(f"s_sub_u32 s{S_W}, s{S_W}, 4")
        l2_prefetch(a, 0)
        a.I(f"s_mov_b32 s{S_W}, s89")
        fifo.append(("pf", 2))
    stamp(a, "issued3")
    nside = 0
    if aux:
        nside = aux_side_issue(a)
    srd(a, RC, S_W1, 512*2752)
    if OPT.get("w1perm", 0):
        for j in range(3):
            a.I(f"v_add_u32 v2, {64*j}, v1")
            a.I("v_mul_u32_u24 v3, 171, v2")
            a.I("v_lshrrev_b32 v3, 12, v3")
            a.I("v_mul_u32_u24 v4, 24, v3")
            a.I("v_sub_u32 v2, v2, v4")
            a.I("v_lshrrev_b32 v4, 2, v2")
            a.I("v_and_b32 v2, 3, v2")
            a.I("v_bfe_u32 v5, v3, 1, 1")
            a.I("v_xor_b32 v4, v4, v5")
            a.I("v_add_u32 v5, 1, v4")
            a.I("v_cmp_eq_u32 vcc, 4, v4")
            a.I("s_nop 1")
            a.I("v_cndmask_b32_e64 v5, v5, 0, vcc")
            a.I("v_cmp_eq_u32 vcc, 5, v4")
            a.I("s_nop 1")
            a.I("v_cndmask_b32_e64 v5, v5, 5, vcc")
            a.I(f"v_add_u32 v19, s{S_START}, v3")
            a.I("v_and_b32 v19, 1, v19")
            a.I("v_cmp_eq_u32 vcc, 1, v19")
            a.I("s_nop 1")
            a.I("v_cndmask_b32 v4, v4, v5, vcc")
            a.I("v_lshlrev_b32 v4, 6, v4")
            a.I("v_lshl_add_u32 v4, v2, 4, v4")
            a.I("v_mul_u32_u24 v5, 2752, v3")
            a.I(f"v_add_u32 v{16+j}, v5, v4")
    else:
        woffs(16, 2752, 7)
    a.I(f"s_lshl_b32 s71, s{S_START}, 6")
    a.I(f"s_mul_i32 s72, s67, {8*2752}")
    a.I("s_add_u32 s71, s71, s72")
    fap = OPT.get("fapos", 2)
    assert fap >= 0
    for c in range(16):
        need = [("W", c)] + ([("X", c)] if c < 8 else [])
        idx = max(i for i, (it, _) in enumerate(fifo) if it in need)
        allow = sum(k for _, k in fifo[idx+1:])
        if c == 0 and STAMPS and OPT.get("fine"): a.I("s_mov_b32 s87, 24")
        stamp_dyn(a)
        early = OPT.get("early", 1) and not STAMPS and len(post[c]) > 0 and not OPT.get("p1noprod")
        if early:
            pre_setup(post[c][0])
        a.I(f"s_waitcnt vmcnt({allow})")
        stamp_dyn(a)
        a.I("s_barrier")
        for n_, it in enumerate(post[c]): do(it, early and n_ == 0)
        if aux and c == 2:
            fifo.append(("side", aux_side_loads(a)))
        if aux and c == 6:
            aux_gate(a)
            fifo.append(("g", 1))
        if aux and c == 4:
            fifo.append(("nonce", aux_nonce_issue(a)))
        if aux and c == 10:
            aux_zero_misc(a)
        if aux and c == 8:
            aux_nonce_take(a)
        if aux and c == 12:
            aux_share_nonce(a)
        if aux and c == 15:
            aux_fa_probe(a)
        if aux and c == 9 + fap:
            aux_publish_fa(a)
    a.I("s_barrier")
    if aux:
        aux_after_e1(a)
    else:
        if OPT.get("pprio"): a.I("s_setprio 0")
        a.I("s_branch L_attn")

def glob_w2(a):
    a.I("v_lshlrev_b32 v20, 7, v1")
    srd(a, RC, S_W2, 1376*1024)
    a.I("s_mul_i32 s54, s2, 5504")
    a.I("s_mov_b32 exec_hi, 0xfff")
    a.I(f"buffer_load_dword v24, v20, {S4(RC)}, s54 offen")
    srd(a, RC, S_WO, 512*1024)
    a.I("s_lshl_b32 s54, s2, 11")
    a.I("s_mov_b32 exec_hi, 0")
    a.I("s_mov_b32 exec_lo, 0xffff")
    a.I(f"buffer_load_dword v25, v20, {S4(RC)}, s54 offen")
    a.I("s_mov_b64 exec, -1")

def l2_prefetch(a, part):
    a.I("s_and_b32 s52, s2, 7")
    a.I("s_lshr_b32 s53, s2, 3")
    a.I("s_lshl_b32 s54, s53, 4")
    a.I(f"s_lshl_b32 s55, s{S_W}, 2")
    a.I("s_add_u32 s56, s54, s55")
    if OPT.get("pfglob", 1) and part == 0:
        lg = lab("pfg")
        G64 = OPT.get("pg64", 0)
        a.I(f"v_lshlrev_b32 v20, {6 if G64 else 7}, v1")
        def touch(nbytes):
            step = 64 if G64 else 128
            lanes = -(-nbytes // step)
            off = 0
            while lanes > 0:
                n = min(lanes, 64)
                if n < 64:
                    a.I(f"s_mov_b32 exec_lo, {hex((1 << min(n, 32)) - 1)}")
                    a.I(f"s_mov_b32 exec_hi, {hex((1 << max(n - 32, 0)) - 1)}")
                a.I(f"buffer_load_dword v24, v20, {S4(RC)}, s54 offen")
                if n < 64: a.I("s_mov_b64 exec, -1")
                lanes -= n
                if lanes > 0: a.I(f"s_add_u32 s54, s54, {64*step}")
        a.I(f"s_cmp_eq_u32 s{S_W}, 0")
        a.I(f"s_cbranch_scc0 {lg}a")
        srd(a, RC, S_AX, 2*MB)
        a.I("s_lshl_b32 s54, s2, 13")
        touch(8192)
        a.I(f"s_branch {lg}d")
        a.L(f"{lg}a")
        a.I(f"s_cmp_eq_u32 s{S_W}, 1")
        a.I(f"s_cbranch_scc0 {lg}b")
        srd(a, RC, S_WQKV, 512*3072)
        a.I("s_mul_i32 s54, s2, 6144")
        touch(6144)
        a.I(f"s_branch {lg}d")
        a.L(f"{lg}b")
        a.I(f"s_cmp_eq_u32 s{S_W}, {99 if OPT.get('w1late') else 2}")
        a.I(f"s_cbranch_scc0 {lg}c")
        srd(a, RC, S_W1, 512*2752)
        a.I("s_mul_i32 s54, s2, 5504")
        touch(5504)
        a.I(f"s_branch {lg}d")
        a.L(f"{lg}c")
        if OPT.get("pfw2") == 1:
            glob_w2(a)
        if OPT.get("tlb"):
            offs = [0, 2*MB + 4096, 4*MB + 8192, 6*MB + 12288, 11*MB + 512*1024, 12*MB + 16384, 14*MB, 16*MB + 4096]
            a.I("v_mov_b32 v21, 0")
            for i, o in enumerate(offs):
                a.I(f"v_mov_b32 v22, {o}")
                a.I(f"v_cmp_eq_u32 vcc, {i}, v1")
                a.I("s_nop 1")
                a.I("v_cndmask_b32 v21, v21, v22, vcc")
            a.I("s_mov_b32 exec_lo, 0xff")
            a.I("s_mov_b32 exec_hi, 0")
            a.I(f"global_load_dword v25, v21, s[{S_WS}:{S_WS+1}]")
            a.I("s_mov_b64 exec, -1")
        a.L(f"{lg}d")
        if OPT.get("pfglob", 1) == 1: return
        OPT["nopfx"] = 1 if OPT["pfglob"] == 2 else 0
    if OPT.get("map84"):
        if part == 0:
            srd(a, RC, S_AX, 2*MB)
            a.I("s_lshr_b32 s54, s52, 1")
            a.I("s_lshl_b32 s54, s54, 9")
            a.I("s_add_u32 s54, s54, s56")
            a.I("s_lshl_b32 s54, s54, 10")
            a.I("v_lshlrev_b32 v20, 7, v1")
            a.I("s_mov_b32 exec_hi, 0")
            a.I(f"buffer_load_dword v24, v20, {S4(RC)}, s54 offen")
            a.I("s_mov_b64 exec, -1")
            srd(a, RC, S_WQKV, 512*3072)
            a.I("s_mul_i32 s54, s56, 3072")
            a.I("s_and_b32 s55, s52, 1")
            a.I("s_lshl_b32 s55, s55, 9")
            a.I("s_add_u32 s54, s54, s55")
            a.I("v_lshrrev_b32 v21, 4, v1")
            a.I("v_mul_u32_u24 v21, 3072, v21")
            a.I("v_bfe_u32 v22, v1, 2, 2")
            a.I("v_min_u32 v22, 2, v22")
            a.I("v_lshl_add_u32 v21, v22, 10, v21")
            a.I("v_and_b32 v22, 3, v1")
            a.I("v_lshl_add_u32 v21, v22, 7, v21")
            a.I(f"buffer_load_dword v25, v21, {S4(RC)}, s54 offen")
        else:
            srd(a, RC, S_W1, 512*2752)
            a.I("s_and_b32 s55, s52, 1")
            a.I("s_mul_i32 s55, s55, 1536")
            a.I("s_mul_i32 s54, s56, 2752")
            a.I("s_add_u32 s54, s54, s55")
            a.I("v_lshrrev_b32 v21, 4, v1")
            a.I("v_mul_u32_u24 v21, 2752, v21")
            a.I("v_and_b32 v22, 15, v1")
            a.I("v_min_u32 v22, 12, v22")
            a.I("v_lshl_add_u32 v21, v22, 7, v21")
            a.I(f"buffer_load_dword v26, v21, {S4(RC)}, s54 offen")
        return
    if part == 2:
        a.I(f"s_cmp_lg_u32 s{S_W}, 0")
        a.I("s_cbranch_scc1 L_pf2")
        srd(a, RC, S_WQKV, 512*3072)
        a.I("s_lshl_b32 s54, s53, 3")
        a.I("s_add_u32 s54, s54, 256")
        a.I("s_mul_i32 s54, s54, 3072")
        a.I("s_and_b32 s55, s52, 3")
        a.I("s_lshl_b32 s55, s55, 8")
        a.I("s_add_u32 s54, s54, s55")
        a.I("v_lshrrev_b32 v21, 3, v1")
        a.I("v_mul_u32_u24 v21, 3072, v21")
        a.I("v_bfe_u32 v22, v1, 1, 2")
        a.I("v_min_u32 v22, 2, v22")
        a.I("v_lshl_add_u32 v21, v22, 10, v21")
        a.I("v_and_b32 v22, 1, v1")
        a.I("v_lshl_add_u32 v21, v22, 7, v21")
        a.I(f"buffer_load_dword v25, v21, {S4(RC)}, s54 offen")
        a.L("L_pf2")
    elif part == 0:
        G = OPT.get("pfg", 128)
        sh = {128: 7, 64: 6, 32: 5}[G]
        srd(a, RC, S_AX, 2*MB)
        a.I("s_lshr_b32 s54, s52, 2")
        a.I("s_lshl_b32 s54, s54, 10")
        a.I("s_lshl_b32 s55, s53, 5")
        a.I("s_add_u32 s54, s54, s55")
        a.I(f"s_lshl_b32 s55, s{S_W}, 3")
        a.I("s_add_u32 s54, s54, s55")
        a.I("s_lshl_b32 s54, s54, 10")
        if OPT.get("pftrim", 0):
            a.I("v_and_b32 v20, 7, v1")
            a.I("v_max_u32 v20, 3, v20")
            a.I("v_lshlrev_b32 v20, 7, v20")
            a.I("v_lshrrev_b32 v21, 3, v1")
            a.I("v_lshl_add_u32 v20, v21, 10, v20")
        else:
            a.I(f"v_lshlrev_b32 v20, {sh}, v1")
        for i in range(0 if OPT.get("nopfx") else 8192 // (64*G)):
            a.I(f"buffer_load_dword v24, v20, {S4(RC)}, s54 offen")
            a.I(f"s_add_u32 s54, s54, {64*G}")
        if OPT.get("pftrim", 0):
            a._pfl = lab("pfs")
            a.I("s_cmp_lt_u32 s53, 12")
            a.I(f"s_cbranch_scc1 {a._pfl}")
        srd(a, RC, S_WQKV, 512*3072)
        a.I("s_mul_i32 s54, s56, 3072")
        a.I("s_and_b32 s55, s52, 3")
        a.I("s_lshl_b32 s55, s55, 8")
        a.I("s_add_u32 s54, s54, s55")
        per = 256 // G
        a.I("v_lshrrev_b32 v21, 4, v1")
        a.I("v_mul_u32_u24 v21, 3072, v21")
        a.I("v_and_b32 v22, 15, v1")
        if G == 64:
            a.I("v_lshrrev_b32 v23, 2, v22")
            a.I("v_min_u32 v23, 2, v23")
            a.I("v_lshl_add_u32 v21, v23, 10, v21")
            a.I("v_and_b32 v22, 3, v22")
            a.I("v_lshl_add_u32 v21, v22, 6, v21")
            a.I(f"buffer_load_dword v25, v21, {S4(RC)}, s54 offen")
        elif G == 32:
            a.I("v_lshrrev_b32 v23, 3, v22")
            a.I("v_lshl_add_u32 v21, v23, 10, v21")
            a.I("v_and_b32 v22, 7, v22")
            a.I("v_lshl_add_u32 v21, v22, 5, v21")
            a.I(f"buffer_load_dword v25, v21, {S4(RC)}, s54 offen")
            a.I(f"buffer_load_dword v25, v21, {S4(RC)}, s54 offen offset:2048")
        else:
            a.I("v_lshrrev_b32 v23, 1, v22")
            a.I("v_min_u32 v23, 2, v23")
            a.I("v_lshl_add_u32 v21, v23, 10, v21")
            a.I("v_and_b32 v22, 1, v22")
            a.I("v_lshl_add_u32 v21, v22, 7, v21")
            a.I(f"buffer_load_dword v25, v21, {S4(RC)}, s54 offen")
        if OPT.get("pftrim", 0):
            a.L(a._pfl)
    else:
        a.I(f"s_cmp_ge_u32 s{S_W}, 2")
        a.I("s_cbranch_scc1 L_pf1")
        srd(a, RC, S_W1, 512*2752)
        a.I("s_and_b32 s55, s52, 3")
        a.I("s_mul_i32 s55, s55, 12")
        a.I("s_min_u32 s55, s55, 31")
        a.I("s_lshl_b32 s55, s55, 6")
        a.I("s_lshl_b32 s54, s53, 4")
        a.I(f"s_lshl_b32 s56, s{S_W}, 3")
        a.I("s_add_u32 s54, s54, s56")
        a.I("s_mul_i32 s54, s54, 2752")
        a.I("s_add_u32 s54, s54, s55")
        a.I("v_lshrrev_b32 v21, 3, v1")
        a.I("v_mul_u32_u24 v21, 2752, v21")
        a.I("v_and_b32 v22, 7, v1")
        a.I("v_lshl_add_u32 v21, v22, 7, v21")
        a.I(f"buffer_load_dword v26, v21, {S4(RC)}, s54 offen")
        a.L("L_pf1")

def consumer(a):
    a.L("L_cons")
    H, XA, WA, ACC, B1, FA, FB = 2, 8, 12, 32, 80, 104, 136
    if not OPT.get("nopf") and not OPT.get("pflate") and not OPT.get("pfprod"):
        l2_prefetch(a, OPT.get("pfmode", 0))
    a.I(f"v_lshrrev_b32 v{H}, 5, v1")
    a.I(f"s_and_b32 s63, s{S_W}, 1")
    a.I(f"s_lshr_b32 s64, s{S_W}, 1")
    srd(a, RD, S_B1, 2752)
    a.I(f"s_add_u32 s54, s{S_START}, s63")
    a.I("s_lshl_b32 s54, s54, 6")
    a.I(f"v_lshlrev_b32 v3, 3, v{H}")
    for s in range(3):
        for q in range(4):
            r = B1 + (s*4+q)*2
            a.I(f"buffer_load_dwordx2 v[{r}:{r+1}], v3, {S4(RD)}, s54 offen offset:{s*128+q*16}")
    for i in range(48):
        a.I(f"v_mov_b32 v{ACC+i}, 0")
    a.I("v_and_b32 v16, 31, v1")
    a.I("v_bfe_u32 v17, v1, 1, 3")
    a.I("s_lshl_b32 s54, s64, 5")
    a.I("v_add_u32 v16, s54, v16")
    a.I("v_lshlrev_b32 v16, 7, v16")
    a.I(f"v_xor_b32 v17, v17, v{H}")
    for ks in range(4):
        a.I(f"v_xor_b32 v18, {2*ks}, v17")
        a.I(f"v_lshl_add_u32 v{XA+ks}, v18, 4, v16")
    tr_lane_addr(a, WA, 1, 16, 17, 8, 384)
    a.I("s_lshl_b32 s54, s63, 6")
    a.I(f"v_xor_b32 v{WA}, s54, v{WA}")
    a.I(f"v_add_u32 v{WA}, 0x10000, v{WA}")
    a.I(f"v_add_u32 v{WA+1}, 49152, v{WA}")
    WF1 = [14, 15, 28, 29, 30, 31]
    if OPT.get("w1perm", 0):
        a.I("v_bfe_u32 v16, v1, 2, 2")
        a.I(f"v_lshl_add_u32 v17, v{H}, 3, v16")
        a.I("v_mul_u32_u24 v17, 384, v17")
        a.I("v_bfe_u32 v18, v1, 4, 1")
        a.I("v_lshlrev_b32 v18, 1, v18")
        a.I("v_bfe_u32 v19, v1, 1, 1")
        a.I("v_add_u32 v18, v18, v19")
        a.I("v_lshl_add_u32 v17, v18, 4, v17")
        a.I("v_and_b32 v18, 1, v1")
        a.I("v_lshl_add_u32 v17, v18, 3, v17")
        a.I("v_add_u32 v17, 0x10000, v17")
        a.I(f"v_add_u32 v18, s{S_START}, v16")
        a.I("v_and_b32 v18, 1, v18")
        a.I("v_cmp_eq_u32 vcc, 1, v18")
        a.I("v_bfe_u32 v19, v1, 3, 1")
        inv = [4, 0, 1, 2, 3, 5]
        for s_ in range(3):
            a.I(f"s_cmp_eq_u32 s63, 0")
            a.I(f"s_cselect_b32 s54, {2*s_}, {2*s_+1}")
            a.I(f"s_cselect_b32 s55, {inv[2*s_]}, {inv[2*s_+1]}")
            a.I(f"v_mov_b32 v26, s54")
            a.I(f"v_mov_b32 v27, s55")
            a.I(f"v_cndmask_b32 v26, v26, v27, vcc")
            a.I(f"v_xor_b32 v26, v26, v19")
            a.I(f"v_lshl_add_u32 v{WF1[s_]}, v26, 6, v17")
            a.I(f"v_add_u32 v{WF1[3+s_]}, 49152, v{WF1[s_]}")

    def reads(b, G, F, qkv=True):
        out = []
        if OPT.get("p1nocons"): return ["s_nop 0"]
        wv = WA + (b >> 1)
        for l in range(2):
            ks = 2*G + l
            out.append(f"ds_read_b128 {vr(F+4*l,4)}, v{XA+ks} offset:{b*8192}")
            for s in range(3):
                for rd in range(2):
                    if qkv or not OPT.get("w1perm", 0):
                        out.append(f"ds_read_b64_tr_b16 {vr(F+8+12*l+4*s+2*rd,2)}, v{wv} offset:{(b&1)*24576 + ks*6144 + rd*1536 + s*128}")
                    else:
                        out.append(f"ds_read_b64_tr_b16 {vr(F+8+12*l+4*s+2*rd,2)}, v{WF1[3*(b>>1)+s]} offset:{(b&1)*24576 + ks*6144 + rd*1536}")
        return out
    def mfmas(F, qkv):
        out = []
        if OPT.get("p1nocons") or OPT.get("p1nomfma"): return ["s_nop 0"]
        for l in range(2):
            for s in range(3):
                X, W = F+4*l, F+8+12*l+4*s
                out.append(MF(ACC+16*s, X, W, ACC+16*s) if (qkv and s == 2) else MF(ACC+16*s, W, X, ACC+16*s))
        return out
    def inter(mf, rd):
        out = []
        per = OPT.get("iper", [4, 4, 3, 3, 0, 0])
        if len(mf) != 6: return mf + rd
        k = 0
        for i, m in enumerate(mf):
            out.append(m)
            out += rd[k:k+per[i]]
            k += per[i]
        assert k >= len(rd)
        return out
    def stage_loop(tag, qkv):
        a.I("s_mov_b32 s65, 0x8000")
        a.L(f"L_loop_{tag}")
        fap = OPT.get("fapos", 2)
        for b in range(4):
            a.I("s_waitcnt lgkmcnt(0)")
            a.I(J(inter(mfmas(FA, qkv), reads(b, 1, FB, qkv))))
            if (not qkv) and b == (fap & 3):
                if fap >= 4:
                    a.I("s_cmp_lt_i32 s65, 0")
                    a.I(f"s_cbranch_scc0 L_nodrain")
                a.I("s_waitcnt vmcnt(0)")
                if fap >= 4: a.L("L_nodrain")
            a.I("s_waitcnt lgkmcnt(0)")
            if b == 3:
                if not qkv:
                    a.I("s_cmp_lt_i32 s65, 0")
                    a.I(f"s_cbranch_scc1 L_last_{tag}")
                for ks in range(4):
                    a.I(f"v_add_u32 v{XA+ks}, s65, v{XA+ks}")
            stamp_dyn(a)
            a.I("s_barrier")
            stamp_dyn(a)
            if qkv and b == 3:
                a.I("s_cmp_lt_i32 s65, 0")
                a.I("s_cbranch_scc1 L_qtail")
            a.I(J(inter(mfmas(FB, qkv), reads((b+1) % 4, 0, FA, qkv))))
        if qkv:
            a.I("s_mov_b32 s65, 0xffff8000")
            a.I(f"s_branch L_loop_{tag}")
            a.L("L_qtail")
            a.I(J(inter(mfmas(FB, qkv), reads(0, 0, FA, False))))
        else:
            a.I("s_mov_b32 s65, 0xffff8000")
            a.I(f"s_branch L_loop_{tag}")
        if not qkv:
            a.L(f"L_last_{tag}")
            a.I(J(mfmas(FB, qkv)))

    if OPT.get("pflate"):
        for i in range(OPT["pflate"]):
            a.I("s_sleep 8")
        l2_prefetch(a, 0)
    if OPT.get("pfw1early"):
        l2_prefetch(a, 1)
    a.I("s_barrier")
    stamp(a, "B0")
    if STAMPS and OPT.get("fine"): a.I("s_mov_b32 s87, 24")
    if not OPT.get("nopf") and not OPT.get("pfw1early") and not OPT.get("nopfw1", 1):
        l2_prefetch(a, 1)
    if OPT.get("w1late"):
        lw1 = lab("pw1")
        a.I(f"s_cmp_lg_u32 s{S_W}, 2")
        a.I(f"s_cbranch_scc1 {lw1}")
        a.I("v_lshlrev_b32 v20, 7, v1")
        srd(a, RC, S_W1, 512*2752)
        a.I("s_mul_i32 s54, s2, 5504")
        a.I("s_mov_b32 exec_hi, 0xfff")
        a.I(f"buffer_load_dword v24, v20, {S4(RC)}, s54 offen")
        a.I("s_mov_b64 exec, -1")
        a.L(lw1)
    if OPT.get("pfw2") == 2:
        lw = lab("pw2")
        a.I(f"s_cmp_lg_u32 s{S_W}, 3")
        a.I(f"s_cbranch_scc1 {lw}")
        glob_w2(a)
        a.L(lw)
    a.I(J(reads(0, 0, FA)))
    stage_loop("q", True)
    stamp(a, "qloop")
    srd(a, RA, S_WS, VF + 2*MB)
    a.I(f"s_lshl_b32 s54, s{S_RB}, 1")
    a.I("s_add_u32 s54, s54, s64")
    a.I(f"s_lshl_b32 s55, s{S_CG}, 2")
    a.I("s_lshl_b32 s56, s63, 1")
    a.I("s_add_u32 s55, s55, s56")
    a.I("s_lshl_b32 s55, s55, 6")
    a.I("s_add_u32 s54, s54, s55")
    a.I("s_lshl_b32 s54, s54, 10")
    a.I("v_lshlrev_b32 v3, 4, v1")
    a.I("v_bfe_u32 v4, v1, 4, 1")
    a.I("v_lshlrev_b32 v4, 16, v4")
    a.I(f"v_lshl_add_u32 v4, v{H}, 8, v4")
    a.I("v_and_b32 v5, 15, v1")
    a.I("v_lshl_add_u32 v4, v5, 4, v4")
    a.I(f"s_mov_b32 s56, {hex(f2u(QSCALE))}")
    a.I("s_waitcnt vmcnt(0)")
    a.I("s_nop 4")
    for idx, s in enumerate((1, 2, 0)):
        d = ACC + 16*s
        if s == 0:
            for i in range(16):
                a.I(f"v_mul_f32 v{d+i}, s56, v{d+i}")
        for j in range(8):
            a.I(f"v_cvt_pk_bf16_f32 v{d+j}, v{d+2*j}, v{d+2*j+1}")
        if s < 2:
            for hh in range(2):
                a.I(f"s_add_u32 s55, s54, {(KF if s else QF) + hh*65536}")
                a.I(f"buffer_store_dwordx4 {vr(d+4*hh,4)}, v3, {S4(RA)}, s55 offen sc1")
        else:
            a.I(f"s_add_u32 s55, s54, {VF}")
            for u in range(2):
                a.I(f"buffer_store_dwordx4 {vr(d+4*u,4)}, v4, {S4(RA)}, s55 offen offset:{u*512} sc1")
    a.I("s_nop 1")
    for s in range(3):
        for q in range(4):
            r = B1 + (s*4+q)*2
            d = ACC + s*16 + q*4
            a.I(f"v_lshlrev_b32 v{d}, 16, v{r}")
            a.I(f"v_and_b32 v{d+1}, 0xffff0000, v{r}")
            a.I(f"v_lshlrev_b32 v{d+2}, 16, v{r+1}")
            a.I(f"v_and_b32 v{d+3}, 0xffff0000, v{r+1}")
    stage_loop("f", False)
    a.I("s_barrier")
    stamp(a, "floop")
    srd_off(a, RA, S_WS, HF, HF_SIZE)
    a.I(f"s_lshl_b32 s54, s{S_RB}, 1")
    a.I("s_add_u32 s54, s54, s64")
    a.I(f"s_add_u32 s55, s{S_START}, s63")
    a.I("s_lshl_b32 s55, s55, 7")
    a.I("s_add_u32 s54, s54, s55")
    a.I("s_lshl_b32 s54, s54, 10")
    a.I("v_lshlrev_b32 v3, 4, v1")
    a.I("s_nop 4")
    HP = 120
    defer = OPT.get("hdefer", 1)
    for s in range(3):
        d = ACC + 16*s
        for i in range(16):
            a.I(f"v_max_f32 v{d+i}, 0, v{d+i}")
        for i in range(16):
            a.I(f"v_mul_f32 v{d+i}, v{d+i}, v{d+i}")
        for j in range(8):
            a.I(f"v_cvt_pk_bf16_f32 v{(HP+8*s if defer else d)+j}, v{d+2*j}, v{d+2*j+1}")
    if defer:
        a.I("s_mov_b32 s83, s54")
    else:
        if OPT.get("hlate", 1):
            lds_spin(a, M_KV, 4, 20, 21, 0)
        for s in range(3):
            d = ACC + 16*s
            for uu in range(2):
                a.I(f"s_add_u32 s55, s54, {(4*s+uu)*65536}")
                a.I(f"buffer_store_dwordx4 {vr(d+4*uu,4)}, v3, {S4(RA)}, s55 offen sc1")
    a.I("s_nop 1")
    a.I("s_branch L_attn")

def aux_side_issue(a):
    a.I("s_sub_u32 s66, s67, 4")
    a.I(f"s_lshl_b32 s54, s2, 2")
    a.I("s_or_b32 s54, s54, s66")
    a.I("s_cmp_lg_u32 s54, 0")
    a.I("s_cbranch_scc1 L_aux1")
    srd(a, RD, S_DBG, 256)
    a.I("s_memrealtime s[54:55]")
    a.I("s_waitcnt lgkmcnt(0)")
    a.I("s_or_b32 s85, s54, 1")
    a.I("v_mov_b32 v8, s85")
    a.I("v_mov_b32 v10, 0")
    a.I("s_mov_b64 exec, 1")
    a.I(f"buffer_store_dword v8, v10, {S4(RD)}, 0 offen sc1")
    a.I("s_mov_b64 exec, -1")
    a.L("L_aux1")
    a.I(f"s_lshl_b32 s54, s{S_RB}, 6")
    a.I(f"s_lshl_b32 s55, s{S_CG}, 3")
    a.I("s_add_u32 s54, s54, s55")
    a.I("s_lshl_b32 s55, s66, 1")
    a.I("s_add_u32 s86, s54, s55")
    return 0

def aux_side_loads(a):
    a.I("s_lshl_b32 s54, s86, 10")
    srd_off(a, RD, S_AX, "s54", 2048)
    a.I("v_and_b32 v2, 31, v1")
    a.I("v_lshlrev_b32 v2, 5, v2")
    a.I("v_lshrrev_b32 v3, 5, v1")
    a.I("v_lshl_add_u32 v4, v3, 10, v2")
    for i in range(2):
        a.I(f"buffer_load_dwordx4 {vr(32+4*i,4)}, v4, {S4(RD)}, 0 offen offset:{16*i}")
    srd(a, RD, S_GW, 1024)
    for i in range(2):
        a.I(f"buffer_load_dwordx4 {vr(40+4*i,4)}, v2, {S4(RD)}, 0 offen offset:{16*i}")
    n = 4
    if OPT.get("codepf", 1) and not OPT.get("codeearly", 1):
        a.I("s_getpc_b64 s[52:53]")
        a.L("L_pc")
        a.I(f"s_sub_u32 s52, s52, L_pc-{KN}")
        a.I("s_subb_u32 s53, s53, 0")
        a.I("s_mul_i32 s54, s66, 6144")
        a.I("v_lshlrev_b32 v5, 7, v1")
        a.I("v_add_u32 v5, s54, v5")
        a.I(f"v_min_u32 v5, L_code_end-{KN}-4, v5")
        a.I("s_mov_b32 exec_hi, 0xffff")
        a.I("global_load_dword v116, v5, s[52:53]")
        a.I("s_mov_b64 exec, -1")
        n += 1
    return n

def aux_nonce_issue(a):
    srd(a, RD, S_DBG, 256)
    a.I("v_mov_b32 v10, 0")
    a.I(f"buffer_load_dword v8, v10, {S4(RD)}, 0 offen sc1")
    return 1

def aux_nonce_take(a):
    a.I(f"v_readfirstlane_b32 s{S_NONCE}, v8")
    a.I("s_mov_b32 s50, 0x40000")
    a.L("L_nonce")
    a.I(f"s_cmp_lg_u32 s{S_NONCE}, 0")
    a.I("s_cbranch_scc1 L_nonce_ok")
    a.I("s_sub_u32 s50, s50, 1")
    a.I("s_cmp_eq_u32 s50, 0")
    a.I("s_cbranch_scc1 L_nonce_ok")
    srd(a, RD, S_DBG, 256)
    a.I(f"buffer_load_dword v8, v10, {S4(RD)}, 0 offen sc1")
    a.I("s_waitcnt vmcnt(0)")
    a.I(f"v_readfirstlane_b32 s{S_NONCE}, v8")
    a.I("s_branch L_nonce")
    a.L("L_nonce_ok")

def aux_gate(a):
    if OPT.get("p1noprod"): a.I("s_waitcnt vmcnt(0)")
    a.I("v_mov_b32 v24, 0")
    for i in range(8):
        a.I(f"v_dot2c_f32_bf16 v24, v{32+i}, v{40+i}")
    a.I("s_nop 3")
    for sh in (1, 2, 4, 8):
        a.I(f"v_add_f32_dpp v24, v24, v24 row_shr:{sh} row_mask:0xf bank_mask:0xf")
        a.I("s_nop 1")
    a.I("v_add_f32_dpp v24, v24, v24 row_bcast:15 row_mask:0xa bank_mask:0xf")
    a.I("s_nop 1")
    a.I("v_cvt_pk_bf16_f32 v24, v24, v24")
    a.I("v_and_b32 v24, 0xffff0000, v24")
    a.I(f"v_mul_f32 v24, {hex(f2u(-1.4426950408889634))}, v24")
    a.I("v_exp_f32 v24, v24")
    a.I("s_nop 0")
    a.I("v_add_f32 v24, 1.0, v24")
    a.I("v_rcp_f32 v24, v24")
    a.I("s_nop 0")
    a.I("v_cvt_pk_bf16_f32 v24, v24, v24")
    a.I("v_and_b32 v24, 0xffff0000, v24")
    srd_off(a, RD, S_WS, GO, 8192)
    a.I("s_lshl_b32 s54, s86, 2")
    a.I("v_lshrrev_b32 v3, 5, v1")
    a.I("v_lshlrev_b32 v3, 2, v3")
    a.I("s_mov_b32 s52, 0x80000000")
    a.I("s_mov_b32 s53, 0x80000000")
    a.I("s_mov_b64 exec, s[52:53]")
    a.I(f"buffer_store_dword v24, v3, {S4(RD)}, s54 offen sc1")
    a.I("s_mov_b64 exec, -1")

def aux_publish_fa(a):
    a.I("s_cmp_lg_u32 s66, 0")
    a.I("s_cbranch_scc1 L_aux2")
    srd_off(a, RD, S_WS, FLG, FLG_SIZE)
    a.I(f"s_lshl_b32 s54, s{S_CG}, 7")
    a.I(f"s_lshl_b32 s55, s{S_RB}, 2")
    a.I("s_add_u32 s54, s54, s55")
    a.I(f"s_add_u32 s54, s54, {FA_OFF}")
    a.I(f"v_mov_b32 v8, s{S_NONCE}")
    a.I(f"v_mov_b32 v10, 0")
    a.I("s_mov_b64 exec, 1")
    a.I(f"buffer_store_dword v8, v10, {S4(RD)}, s54 offen sc1")
    a.I("s_mov_b64 exec, -1")
    stamp(a, "FApub")
    a.L("L_aux2")

def aux_zero_misc(a):
    a.I("s_cmp_lg_u32 s66, 1")
    a.I("s_cbranch_scc1 L_aux3")
    a.I(f"v_lshlrev_b32 v10, 2, v1")
    if L_MISC: a.I(f"v_add_u32 v10, {L_MISC}, v10")
    a.I("v_mov_b32 v9, 0")
    a.I("ds_write_b32 v10, v9")
    a.I("s_waitcnt lgkmcnt(0)")
    a.I("v_mov_b32 v10, 0")
    a.L("L_aux3")

def aux_share_nonce(a):
    a.I("s_cmp_lg_u32 s66, 0")
    a.I("s_cbranch_scc1 L_aux4")
    a.I(f"v_mov_b32 v9, {L_MISC + 128}")
    a.I(f"v_mov_b32 v11, s{S_NONCE}")
    a.I("ds_write_b32 v9, v11")
    a.I("s_waitcnt lgkmcnt(0)")
    a.L("L_aux4")

def aux_fa_probe(a):
    srd_off(a, RC, S_WS, FLG, FLG_SIZE)
    a.I(f"s_lshr_b32 s88, s{S_HD}, 2")
    a.I("s_lshl_b32 s88, s88, 7")
    a.I(f"s_add_u32 s88, s88, {FA_OFF}")
    a.I("v_lshlrev_b32 v9, 2, v1")
    a.I("s_mov_b32 exec_hi, 0")
    a.I(f"buffer_load_dword v11, v9, {S4(RC)}, s88 offen sc1")
    a.I("s_mov_b64 exec, -1")
    VL = 4
    a.I(f"v_lshlrev_b32 v{VL}, 4, v1")
    a.I(f"s_lshl_b32 s54, s{S_HD}, 16")
    a.I(f"s_add_u32 s55, s54, {KF}")
    srd_off(a, RA, S_WS, "s55", 65536)
    a.I(f"s_add_u32 s55, s54, {VF}")
    srd_off(a, RB, S_WS, "s55", 65536)
    a.I(f"s_add_u32 s55, s54, {QF}")
    srd_off(a, RD, S_WS, "s55", 65536)
    a.I(f"s_lshl_b32 s54, s{S_QB}, 3")
    a.I("s_lshl_b32 s55, s66, 1")
    a.I("s_add_u32 s54, s54, s55")
    a.I("s_lshl_b32 s54, s54, 10")
    a.I("s_lshl_b32 s55, s66, 11")
    a.I(f"s_add_u32 s55, s55, {L_RING}")

def aux_after_e1(a):
    a.I("s_mov_b32 s67, s66")
    a.I("s_setprio 3")
    stamp(a, "E2")
    a.I("s_mov_b32 exec_hi, 0")
    a.I("s_waitcnt vmcnt(0)")
    a.I(f"v_cmp_ne_u32 vcc, s{S_NONCE}, v11")
    a.I("s_mov_b64 exec, -1")
    a.I("s_cbranch_vccz L_aux5")
    poll(a, RC, 32, 9, 11, "s88", OPT.get("faslp", 2))
    a.L("L_aux5")
    stamp(a, "FAok")
    VL = 4
    for t in range(2):
        a.I(f"s_add_u32 m0, s55, {t*1024}")
        a.I(f"s_add_u32 s56, s54, {t*1024}")
        a.I(f"buffer_load_dwordx4 v{VL}, {S4(RD)}, s56 offen sc1 lds")
    a.I("s_lshl_b32 s54, s67, 10")
    def kvchunks(cs):
        for c in cs:
            a.I(f"s_add_u32 s55, s54, {c*4096}")
            a.I(f"s_add_u32 m0, s55, {L_K}")
            a.I(f"s_add_u32 s56, s55, {L_V}")
            a.I(f"buffer_load_dwordx4 v{VL}, {S4(RA)}, s55 offen sc1 lds")
            a.I("s_mov_b32 m0, s56")
            a.I("s_nop 0")
            a.I(f"buffer_load_dwordx4 v{VL}, {S4(RB)}, s55 offen sc1 lds")
    m1x = OPT.get("m1x", 2)
    kvchunks(range(0, 2 + m1x))
    a.I(f"s_waitcnt vmcnt({2*m1x})")
    lds_add1(a, M_KV, 8, 9)
    stamp(a, "KV1")
    kvchunks(range(2 + m1x, 16))
    a.I("s_lshr_b32 s53, s2, 3")
    srd(a, RA, S_W2, 1376*1024)
    srd(a, RB, S_WO, 512*1024)
    a.I("s_mul_i32 s54, s53, 44032")
    a.I("s_lshl_b32 s55, s67, 10")
    a.I("s_add_u32 s54, s54, s55")
    a.I("s_waitcnt vmcnt(0)")
    lds_add1(a, M_KV, 8, 9)
    stamp(a, "KV2")
    a.I("v_lshlrev_b32 v10, 7, v1")
    a.I("s_lshl_b32 s55, s67, 13")
    a.I("s_mul_i32 s54, s53, 44032")
    a.I("s_add_u32 s54, s54, s55")
    a.I(f"buffer_load_dword v40, v10, {S4(RA)}, s54 offen")
    a.I("s_add_u32 s54, s54, 32768")
    a.I(f"buffer_load_dword v41, v10, {S4(RA)}, s54 offen")
    a.I("s_lshl_b32 s54, s53, 14")
    a.I("s_lshl_b32 s55, s67, 12")
    a.I("s_add_u32 s54, s54, s55")
    a.I("s_mov_b32 exec_hi, 0")
    a.I(f"buffer_load_dword v42, v10, {S4(RB)}, s54 offen")
    a.I("s_mov_b64 exec, -1")

def ffn2_p3(a):
    WF, HR, ACC2, BPR = 24, 40, 104, 8
    VH, VW, VA0, VA1 = 2, 3, 4, 5
    a.I("s_cmp_lg_u32 s67, 0")
    a.I("s_cbranch_scc1 L_f1")
    lds_spin(a, M_HST, 4, 8, 9, OPT.get('fslp', 1))
    lds_spin(a, M_KV, 8, 8, 9)
    a.I(f"s_lshl_b32 s54, s{S_RB}, 7")
    a.I(f"s_lshl_b32 s55, s{S_CG}, 2")
    a.I("s_add_u32 s54, s54, s55")
    a.I(f"s_add_u32 s54, s54, {FH_OFF}")
    flag_store(a, "s54", 8, 10)
    a.I(f"s_lshl_b32 s54, s{S_HD}, 7")
    a.I(f"s_add_u32 s54, s54, {FH_OFF}")
    a.I("v_lshlrev_b32 v8, 2, v1")
    poll(a, RC, 8, 8, 9, "s54", OPT.get("fhslp", 8))
    lds_add1(a, M_H, 8, 9)
    a.I("s_branch L_f2")
    a.L("L_f1")
    lds_spin(a, M_H, 1, 8, 9, OPT.get('fslp', 1))
    a.L("L_f2")
    lds_spin(a, M_QRD, 8, 8, 9, OPT.get('fslp', 1))
    stamp(a, "hready")
    if OPT.get("tailpf"):
        srd(a, RA, S_B2, 1024)
        a.I("v_lshlrev_b32 v10, 7, v1")
        a.I("s_mov_b32 exec_lo, 0xff")
        a.I("s_mov_b32 exec_hi, 0")
        a.I(f"buffer_load_dword v43, v10, {S4(RA)}, 0 offen")
        if OPT["tailpf"] > 1:
            srd(a, RA, S_OUT, 2*MB)
            a.I(f"s_lshl_b32 s54, s{S_HD}, 16")
            a.I("s_mov_b32 exec_lo, 1")
            a.I(f"buffer_load_dword v44, v10, {S4(RA)}, s54 offen")
        a.I("s_mov_b64 exec, -1")
    srd(a, RA, S_W2, 1376*1024)
    srd_off(a, RB, S_WS, HF, HF_SIZE)
    a.I(f"v_lshlrev_b32 v{VH}, 4, v1")
    dma_w_lane_off(a, VW, 1, 8, 9, 1024)
    a.I(f"s_lshl_b32 s54, s{S_QB}, 7")
    a.I(f"v_add_u32 v{VW}, s54, v{VW}")
    tr_lane_addr(a, VA0, 1, 8, 9, 4, 128)
    a.I("s_mul_i32 s68, s67, 6144")
    a.I(f"s_add_u32 s68, s68, {L_RING}")
    a.I(f"v_add_u32 v{VA0}, s68, v{VA0}")
    a.I(f"v_xor_b32 v{VA1}, 64, v{VA0}")
    a.I("s_mul_i32 s54, s67, 24")
    a.I("s_lshl_b32 s70, s54, 14")
    a.I("s_lshl_b32 s71, s54, 16")
    a.I(f"s_lshl_b32 s55, s{S_HD}, 11")
    a.I("s_add_u32 s71, s71, s55")
    for i in range(64):
        a.I(f"v_mov_b32 v{ACC2+i}, 0")
    a.I("s_waitcnt vmcnt(0)")
    def fissue(slot):
        return [f"s_add_u32 m0, s68, {slot*2048}",
                f"s_add_u32 s69, s70, 8192",
                f"buffer_load_dwordx4 v{VW}, {S4(RA)}, s70 offen lds",
                f"s_add_u32 m0, s68, {slot*2048+1024}",
                f"s_add_u32 s70, s70, 16384",
                f"buffer_load_dwordx4 v{VW}, {S4(RA)}, s69 offen lds",
                f"buffer_load_dwordx4 {vr(HR+slot*8,4)}, v{VH}, {S4(RB)}, s71 offen sc1",
                f"buffer_load_dwordx4 {vr(HR+slot*8+4,4)}, v{VH}, {S4(RB)}, s71 offen offset:1024 sc1",
                f"s_add_u32 s71, s71, 65536"]
    def trr(F, off):
        out = []
        for ct, va in ((0, VA0), (1, VA1)):
            for rd in range(2):
                out.append(f"ds_read_b64_tr_b16 {vr(F+4*ct+2*rd,2)}, v{va} offset:{off + rd*1024}")
        return out
    N2 = OPT.get("n2", 0)
    a.I("s_cmp_eq_u32 s67, 3")
    a.I(f"s_cselect_b32 s72, {5-N2}, {8-N2}")
    a.I("s_mov_b32 s76, 0")
    a.L("L_fpro")
    for slot in range(3):
        a.I(J(fissue(slot)))
    a.I("s_cmp_lg_u32 s76, 0")
    a.I("s_cbranch_scc1 L_floop")
    a.I(f"s_setprio {OPT.get('ffnprio', 0)}")
    if OPT.get("noffn"): a.I("s_branch L_fskip")
    a.L("L_floop")
    for slot in range(3):
        a.I("s_waitcnt vmcnt(8)")
        a.I(J(trr(WF, slot*2048)))
        a.I("s_waitcnt lgkmcnt(0)")
        fi = fissue(slot)
        mf = lambda ct, rt: MF(ACC2 + (ct*2+rt)*16, WF+4*ct, HR+slot*8+4*rt, ACC2 + (ct*2+rt)*16)
        if OPT.get("fspread", 1):
            a.I(mf(0, 0)); a.I(J(fi[0:3]))
            a.I(mf(1, 0)); a.I(J(fi[3:6]))
            a.I(mf(0, 1)); a.I(fi[6])
            a.I(mf(1, 1)); a.I(J(fi[7:]))
        else:
            for ct in range(2):
                for rt in range(2):
                    a.I(mf(ct, rt))
            a.I(J(fi))
    a.I("s_sub_u32 s72, s72, 1")
    a.I("s_cmp_lg_u32 s72, 0")
    a.I("s_cbranch_scc1 L_floop")
    a.L("L_fskip")
    a.I("s_setprio 3")
    a.I("s_waitcnt vmcnt(0)")
    a.I("s_cmp_lg_u32 s76, 0")
    a.I("s_cbranch_scc1 L_fdone")
    lds_add1(a, M_FFN, 8, 9)
    stamp(a, "ffn2")
    lds_spin(a, M_ATT, 4, 8, 9, OPT.get('attslp', 1))
    stamp(a, "attdone")
    srd(a, RD, S_WO, 512*1024)
    a.I("s_lshl_b32 s56, s67, 14")
    a.I(f"s_add_u32 s56, s56, {L_K}")
    a.I("s_lshl_b32 s57, s67, 17")
    for ks in range(8):
        for n in range(2):
            a.I(f"s_add_u32 m0, s56, {ks*2048+n*1024}")
            a.I(f"s_add_u32 s69, s57, {ks*16384+n*8192}")
            a.I(f"buffer_load_dwordx4 v{VW}, {S4(RD)}, s69 offen lds")
    if N2:
        a.I("s_mov_b32 s76, 1")
        a.I(f"s_sub_u32 s70, s70, {3*16384}")
        a.I(f"s_sub_u32 s71, s71, {3*65536}")
        a.I(f"s_mov_b32 s72, {N2}")
        a.I("s_branch L_fpro")
    a.L("L_fdone")
    srd_off(a, RA, S_WS, GO, 8192)
    srd(a, RB, S_B2, 1024)
    a.I("s_and_b32 s73, s67, 1")
    a.I("s_lshr_b32 s74, s67, 1")
    a.I(f"s_lshl_b32 s75, s{S_HD}, 6")
    a.I("s_lshl_b32 s54, s73, 5")
    a.I("s_add_u32 s75, s75, s54")
    a.I("s_lshl_b32 s54, s75, 2")
    a.I("v_and_b32 v8, 31, v1")
    a.I("v_lshlrev_b32 v8, 2, v8")
    a.I(f"buffer_load_dword v40, v8, {S4(RA)}, s54 offen sc1")
    a.I(f"s_lshl_b32 s54, s{S_QB}, 6")
    a.I("s_lshl_b32 s55, s74, 5")
    a.I("s_add_u32 s54, s54, s55")
    a.I("s_lshl_b32 s54, s54, 1")
    a.I("v_lshrrev_b32 v8, 5, v1")
    a.I("v_lshlrev_b32 v8, 3, v8")
    for q in range(4):
        a.I(f"buffer_load_dwordx2 v[{42+2*q}:{43+2*q}], v8, {S4(RB)}, s54 offen offset:{q*16}")
    a.I("s_lshl_b32 s68, s67, 14")
    a.I("s_nop 7")
    a.I(f"s_add_u32 s54, s68, {L_V}")
    a.I(f"v_add_u32 v8, s54, v{VH}")
    for i in range(16):
        a.I(f"ds_write_b128 v8, {vr(ACC2+4*i,4)} offset:{i*1024}")
    a.I("s_waitcnt vmcnt(0) lgkmcnt(0)")
    lds_add1(a, M_T1, 9, 10)
    lds_spin(a, M_T1, 4, 9, 10)
    a.I("s_lshl_b32 s54, s67, 12")
    a.I(f"s_add_u32 s54, s54, {L_V}")
    a.I(f"v_add_u32 v8, s54, v{VH}")
    for p in range(4):
        for q in range(4):
            a.I(f"ds_read_b128 {vr(ACC2+p*16+q*4,4)}, v8 offset:{p*16384+q*1024}")
    a.I("s_waitcnt lgkmcnt(0)")
    for i in range(16):
        a.I(f"v_add_f32 v{ACC2+i}, v{ACC2+i}, v{ACC2+16+i}")
        a.I(f"v_add_f32 v{ACC2+32+i}, v{ACC2+32+i}, v{ACC2+48+i}")
    for i in range(16):
        a.I(f"v_add_f32 v{ACC2+i}, v{ACC2+i}, v{ACC2+32+i}")
    a.I("s_waitcnt vmcnt(0)")
    a.I("v_sub_f32 v41, 1.0, v40")
    a.I("v_cvt_pk_bf16_f32 v41, v41, v41")
    a.I("v_and_b32 v41, 0xffff0000, v41")
    for q in range(4):
        a.I(f"v_lshlrev_b32 v52, 16, v{42+2*q}")
        a.I(f"v_and_b32 v53, 0xffff0000, v{42+2*q}")
        a.I(f"v_lshlrev_b32 v54, 16, v{43+2*q}")
        a.I(f"v_and_b32 v55, 0xffff0000, v{43+2*q}")
        for j in range(4):
            a.I(f"v_add_f32 v{BPR+4*q+j}, v{ACC2+4*q+j}, v{52+j}")
        for j in range(4):
            a.I(f"v_mul_f32 v{BPR+4*q+j}, v{BPR+4*q+j}, v41")
    a.I("v_mov_b32 v39, v40")
    tr_lane_addr(a, VA0, 1, 32, 33, 4, 128)
    a.I("s_lshl_b32 s54, s74, 6")
    a.I(f"v_xor_b32 v{VA0}, s54, v{VA0}")
    a.I(f"v_add_u32 v{VA0}, {L_K}, v{VA0}")
    a.I("s_lshl_b32 s54, s73, 15")
    a.I(f"s_add_u32 s54, s54, {L_V}")
    a.I(f"v_add_u32 v{VA1}, s54, v{VH}")
    FR = 40
    def wreads(ks):
        F = FR + (ks % 8) * 8
        return [f"ds_read_b64_tr_b16 {vr(F,2)}, v{VA0} offset:{ks*2048}",
                f"ds_read_b64_tr_b16 {vr(F+2,2)}, v{VA0} offset:{ks*2048+1024}"]
    def oread(ks):
        F = FR + (ks % 8) * 8
        return [f"ds_read_b128 {vr(F+4,4)}, v{VA1} offset:{ks*1024}"]
    a.I("s_cmp_lg_u32 s67, 0")
    a.I("s_cbranch_scc1 L_f4")
    a.I(f"s_lshl_b32 s54, s{S_HD}, 8")
    a.I(f"s_add_u32 s54, s54, {FO_OFF}")
    a.I("v_lshlrev_b32 v121, 2, v1")
    if not OPT.get("opf", 0):
        poll(a, RC, 64, 121, 122, "s54", OPT.get("foslp", 2))
    else:
        srd_off(a, RB, S_WS, OF, 2*MB)
        a.I(f"s_lshl_b32 s55, s{S_HD}, 16")
        a.I("v_lshlrev_b32 v123, 10, v1")
        a.I("s_mov_b64 s[56:57], 0")
        a.I("s_mov_b32 s50, 0x40000")
        a.L("L_opf")
        a.I(f"buffer_load_dword v122, v121, {S4(RC)}, s54 offen sc1")
        a.I("s_waitcnt vmcnt(0)")
        a.I(f"v_cmp_eq_u32 vcc, s{S_NONCE}, v122")
        a.I("s_nop 1")
        a.I("s_andn2_b64 s[58:59], vcc, s[56:57]")
        a.I("s_or_b64 s[56:57], s[56:57], vcc")
        a.I("s_cmp_eq_u64 s[56:57], -1")
        a.I("s_cbranch_scc1 L_opf3")
        a.I("s_cmp_eq_u64 s[58:59], 0")
        a.I("s_cbranch_scc1 L_opf2")
        a.I("s_mov_b64 exec, s[58:59]")
        for j in range(8):
            a.I(f"buffer_load_dword v120, v123, {S4(RB)}, s55 offen offset:{j*128} sc1")
        a.I("s_mov_b64 exec, -1")
        a.L("L_opf2")
        a.I("s_sub_u32 s50, s50, 1")
        a.I("s_cmp_eq_u32 s50, 0")
        a.I("s_cbranch_scc1 L_opf3")
        a.I(f"s_sleep {OPT.get('foslp', 2)}")
        a.I("s_branch L_opf")
        a.L("L_opf3")
    a.L("L_f4")
    for ks in range(8): a.I(J(wreads(ks)))
    srd_off(a, RB, S_WS, OF, 2*MB)
    a.I(f"s_lshl_b32 s54, s{S_HD}, 16")
    a.I("s_lshl_b32 s55, s67, 11")
    a.I("s_add_u32 s54, s54, s55")
    a.I(f"s_add_u32 s55, s55, {L_V}")
    srd(a, RA, S_OUT, 2*MB)
    a.I("s_lshl_b32 s58, s75, 10")
    a.I(f"s_lshl_b32 s59, s{S_QB}, 7")
    a.I("s_add_u32 s58, s58, s59")
    a.I("s_lshl_b32 s59, s74, 6")
    a.I("s_add_u32 s58, s58, s59")
    a.I("v_and_b32 v32, 31, v1")
    a.I("v_lshlrev_b32 v32, 10, v32")
    a.I("v_lshrrev_b32 v33, 5, v1")
    a.I("v_lshl_add_u32 v32, v33, 4, v32")
    a.I("s_waitcnt lgkmcnt(0)")
    a.I("s_barrier")
    stamp(a, "T2")
    def odma(ch):
        L = []
        for hh in range(2):
            for rt in range(2):
                off = rt*32768 + ch*8192 + hh*1024
                L.append([f"s_add_u32 m0, s55, {off}", f"s_add_u32 s56, s54, {off}",
                          f"buffer_load_dwordx4 v{VH}, {S4(RB)}, s56 offen sc1 lds"])
        return L
    for ch in range(4):
        for x in odma(ch): a.I(J(x))
    for ch in range(4):
        a.I(f"s_waitcnt vmcnt({4*(3-ch)}) lgkmcnt(0)")
        a.I("s_barrier")
        for ks in range(8*ch, 8*ch+8): a.I(J(oread(ks)))
        for i in range(8):
            ks = 8*ch + i
            a.I(f"s_waitcnt lgkmcnt({7 + i if ch < 3 else 7 - i})")
            F = FR + i*8
            a.I(MF(ACC2, F, F+4, ACC2 if ks else None))
            if ch < 3: a.I(J(wreads(ks+8)))
    a.I("s_nop 15")
    stamp(a, "p3mm")
    for i in range(16):
        a.I(f"v_fma_f32 v{ACC2+i}, v{ACC2+i}, v39, v{BPR+i}")
    for j in range(8):
        a.I(f"v_cvt_pk_bf16_f32 v{ACC2+j}, v{ACC2+2*j}, v{ACC2+2*j+1}")
    a.I("s_nop 1")
    a.I(f"v_permlane32_swap_b32 v{ACC2}, v{ACC2+2}")
    a.I(f"v_permlane32_swap_b32 v{ACC2+1}, v{ACC2+3}")
    a.I(f"v_permlane32_swap_b32 v{ACC2+4}, v{ACC2+6}")
    a.I(f"v_permlane32_swap_b32 v{ACC2+5}, v{ACC2+7}")
    ofl = {0: "", 1: " sc1", 2: " nt", 3: " sc0 sc1"}[OPT.get("outfl", 0)]
    a.I(f"buffer_store_dwordx4 {vr(ACC2,4)}, v32, {S4(RA)}, s58 offen{ofl}")
    a.I(f"buffer_store_dwordx4 {vr(ACC2+4,4)}, v32, {S4(RA)}, s58 offen offset:32{ofl}")
    stamp_flush(a, "ffn")
    a.I("s_endpgm")

def attention(a):
    a.L("L_attn")
    stamp(a, "attn0")
    QA, QB = 8, 12
    KB = [16, 20]; VB = [24, 32]
    S0, S1, OA, OB = 40, 56, 72, 88
    VK, VV, VL = 2, 3, 4
    T0, T1, T2 = 104, 105, 106
    VKN, VVN, VVB, VCH, VONE, VNX = 107, 108, 109, 110, 111, 5
    VX128, VX32, VPAIR, VPFLAG, VTF = 144, 145, 146, 147, 148
    a.I(f"s_and_b32 s63, s{S_W}, 3")
    a.I(f"s_lshr_b32 s64, s{S_W}, 2")
    a.I(f"v_lshlrev_b32 v{VL}, 4, v1")
    a.I(f"v_lshrrev_b32 v{T0}, 5, v1")
    a.I(f"v_and_b32 v{T1}, 15, v1")
    a.I(f"v_lshlrev_b32 v{T1}, 4, v{T1}")
    a.I(f"v_lshl_add_u32 v{VVB}, v{T0}, 8, v{T1}")
    a.I(f"v_add_u32 v{VVB}, {L_V}, v{VVB}")
    a.I(f"v_add_u32 v{VKN}, {L_K}, v{VL}")
    a.I("s_lshl_b32 s54, s64, 12")
    a.I(f"v_add_u32 v{VK}, s54, v{VL}")
    a.I(f"v_add_u32 v{VV}, s54, v{VVB}")
    a.I("s_lshl_b32 s54, s63, 2")
    a.I(f"s_add_u32 s54, s54, {M_CH}")
    a.I(f"v_mov_b32 v{VCH}, s54")
    a.I(f"v_mov_b32 v{VONE}, 1")
    a.I("s_mov_b32 s74, 0x0000ffff")
    a.I("s_mov_b32 s75, 0x0000ffff")
    a.I("s_mov_b32 s77, 0")
    a.I(f"s_lshl_b32 s66, s{S_QB}, 3")
    a.I("s_lshl_b32 s54, s63, 1")
    a.I("s_add_u32 s66, s66, s54")
    a.I("s_lshl_b32 s54, s63, 11")
    a.I(f"s_add_u32 s54, s54, {L_RING}")
    a.I(f"v_add_u32 v{T2}, s54, v{VL}")
    a.I(f"v_and_b32 v{T0}, 31, v1")
    a.I(f"v_cmp_eq_u32 vcc, 16, v{T0}")
    a.I(f"v_mov_b32 v{T1}, 0x3f803f80")
    a.I("s_nop 1")
    a.I(f"v_cndmask_b32 v{T0}, 0, v{T1}, vcc")
    for i in range(16):
        a.I(f"v_mov_b32 v{VB[0]+i}, v{T0}")
    a.I("s_lshl_b32 s54, s63, 2")
    a.I(f"s_add_u32 s55, s54, {M_PAIR}")
    a.I(f"s_add_u32 s76, s54, {M_PFLAG}")
    a.I(f"v_mov_b32 v{VPAIR}, s55")
    a.I(f"v_mov_b32 v{VPFLAG}, s76")
    a.I("s_mul_i32 s54, s63, 4608")
    a.I(f"s_add_u32 s54, s54, {L_XCH}")
    a.I(f"v_add_u32 v{VX128}, s54, v{VL}")
    a.I(f"v_lshlrev_b32 v{VX32}, 2, v1")
    a.I(f"v_add_u32 v{VX32}, s54, v{VX32}")
    a.I(f"v_mov_b32 v{VTF}, {L_MISC + 128}")
    a.I(f"ds_read_b32 v{VTF}, v{VTF}")
    a.I("s_waitcnt lgkmcnt(0)")
    a.I(f"v_readfirstlane_b32 s{S_NONCE}, v{VTF}")
    for i in range(16):
        a.I(f"v_mov_b32 v{OA+i}, 0")
        a.I(f"v_mov_b32 v{OB+i}, 0")
    lds_spin(a, M_KV, 4, T0, T1, 0)
    stamp(a, "kvok")
    a.I(f"ds_read_b128 {vr(QA,4)}, v{T2}")
    a.I(f"ds_read_b128 {vr(QB,4)}, v{T2} offset:1024")
    a.I("s_lshl_b32 s71, s64, 12")
    if STAMPS and OPT.get("fineattn"): a.I("s_mov_b32 s87, 24")
    a.I("s_mov_b32 s73, 0")

    def e_(S, i): return f"v_exp_f32 v{S+i}, v{S+i}"
    def c_(S, j): return f"v_cvt_pk_bf16_f32 v{S+j}, v{S+2*j}, v{S+2*j+1}"
    def tile(Sin, Sout, Qn, Kn, Ocur, Vcur_u0, Oprev, Vprev_u1, after_pv2, wait_s, after_s, wait_pv1, do_pv2=True, do_s=True):
        e = lambda i: e_(Sin, i)
        c = lambda j: c_(Sin, j)
        L = [e(0), e(1)]
        if do_pv2: L.append(MF(Oprev, Vprev_u1, Sout+4, Oprev))
        L += after_pv2
        L += [e(2), e(3), c(0), e(4), e(5), c(1)]
        L += wait_s
        if do_s: L.append(MF(Sout, Kn, Qn))
        L += after_s
        L += [e(6), e(7), c(2), e(8), e(9), c(3), e(10), e(11)]
        L += wait_pv1
        L.append(MF(Ocur, Vcur_u0, Sin, Ocur))
        L += [c(4), e(12), e(13), c(5), e(14), e(15), c(6), c(7)]
        return L
    fifo = []
    def dsr(tag, txt): fifo.append(tag); return txt
    def need(tag):
        idx = max(i for i, t in enumerate(fifo) if t == tag)
        return [f"s_waitcnt lgkmcnt({len(fifo) - 1 - idx})"]
    def vreads(t):
        kap = t & 1
        return ["s_mov_b64 exec, s[74:75]",
                dsr(("V", t), f"ds_read_b128 {vr(VB[kap],4)}, v{VV} offset:{t*1024}"),
                dsr(("V", t), f"ds_read_b128 {vr(VB[kap]+4,4)}, v{VV} offset:{t*1024+512}"),
                "s_mov_b64 exec, -1"]
    def kread(t): return [dsr(("K", t), f"ds_read_b128 {vr(KB[t & 1],4)}, v{VK} offset:{t*1024}")]
    a.raw(".p2align 6")
    a.L("L_aloop")
    if OPT.get("fineattn"):
        OPT["fine"] = 1; stamp_dyn(a); OPT["fine"] = 0
    a.I(f"v_add_u32 v{VK}, s71, v{VKN}")
    a.I(f"v_add_u32 v{VV}, s71, v{VVB}")
    L = kread(0) + vreads(0) + kread(1)
    L += need(("K", 0))
    L.append(MF(S0, KB[0], QA))
    a.I(J(L))
    a.I("s_nop 7")
    a.I("s_nop 3")
    body = []
    for t in range(4):
        kap = t & 1
        A = []
        Sin, Sout = S0, S1
        A += [e_(Sin, 0), e_(Sin, 1)]
        if t > 0: A.append(MF(OB, VB[kap^1]+4, Sout+4, OB))
        if t + 1 < 4: A += vreads(t+1)
        A += [e_(Sin, 2), e_(Sin, 3), c_(Sin, 0), e_(Sin, 4), e_(Sin, 5), c_(Sin, 1)]
        A.append(MF(Sout, KB[kap], QB))
        if t + 2 < 4: A += kread(t+2)
        A += [e_(Sin, 6), e_(Sin, 7), c_(Sin, 2), e_(Sin, 8), e_(Sin, 9), c_(Sin, 3), e_(Sin, 10), e_(Sin, 11)]
        A += need(("V", t))
        A.append(MF(OA, VB[kap], Sin, OA))
        A += [c_(Sin, 4), e_(Sin, 12), e_(Sin, 13), c_(Sin, 5), e_(Sin, 14), e_(Sin, 15), c_(Sin, 6), c_(Sin, 7)]
        Sin, Sout = S1, S0
        B = [e_(Sin, 0), e_(Sin, 1), MF(OA, VB[kap]+4, Sout+4, OA)]
        if t == 3:
            B += ["s_mov_b64 exec, 1", dsr(("G",), f"ds_add_rtn_u32 v{VNX}, v{VCH}, v{VONE}"), "s_mov_b64 exec, -1"]
        B += [e_(Sin, 2), e_(Sin, 3), c_(Sin, 0), e_(Sin, 4), e_(Sin, 5), c_(Sin, 1)]
        if t + 1 < 4:
            B += need(("K", t+1))
            B.append(MF(Sout, KB[kap^1], QA))
        B += [e_(Sin, 6), e_(Sin, 7), c_(Sin, 2), e_(Sin, 8), e_(Sin, 9), c_(Sin, 3), e_(Sin, 10), e_(Sin, 11)]
        B.append(MF(OB, VB[kap], Sin, OB))
        B += [c_(Sin, 4), e_(Sin, 12), e_(Sin, 13), c_(Sin, 5), e_(Sin, 14), e_(Sin, 15), c_(Sin, 6), c_(Sin, 7)]
        body += A + B
    a.I(J(body))
    a.I("s_waitcnt lgkmcnt(0)")
    a.I(f"v_readfirstlane_b32 s70, v{VNX}")
    a.I(MF(OB, VB[1]+4, S1+4, OB))
    a.I("s_add_u32 s70, s70, 2")
    a.I("s_lshl_b32 s71, s70, 12")
    if OPT.get("hdefer", 1):
        a.I("s_cmp_ge_u32 s73, 2")
        a.I("s_cbranch_scc1 L_aloop2")
        a.I("s_cmp_eq_u32 s73, 1")
        a.I("s_cbranch_scc1 L_aloop3")
        a.I("s_mov_b32 s73, 1")
        lds_add1(a, M_QRD, T0, T1)
        a.I(f"s_cmp_ge_u32 s{S_W}, 4")
        a.I("s_cbranch_scc1 L_aloop1")
        for s_ in range(3):
            for uu in range(2):
                a.I(f"s_add_u32 s55, s83, {(4*s_+uu)*65536}")
                a.I(f"buffer_store_dwordx4 {vr(120+8*s_+4*uu,4)}, v{VL}, {S4(RA)}, s55 offen sc1")
        a.L("L_aloop1")
        lds_spin(a, M_KV, 8, T0, T1)
        a.I("s_branch L_aloop4")
        a.L("L_aloop3")
        a.I("s_mov_b32 s73, 2")
        a.I(f"s_cmp_ge_u32 s{S_W}, 4")
        a.I("s_cbranch_scc1 L_aloop2")
        a.I("s_waitcnt vmcnt(0)")
        lds_add1(a, M_HST, T0, T1)
        a.I("s_branch L_aloop2")
        a.L("L_aloop4")
        a.I("s_cmp_lt_u32 s70, 16")
        a.I("s_cbranch_scc1 L_aloop")
        a.I("s_branch L_aloop3")
    else:
        a.I("s_cmp_lg_u32 s73, 0")
        a.I("s_cbranch_scc1 L_aloop2")
        a.I("s_mov_b32 s73, 1")
        lds_add1(a, M_QRD, T0, T1)
        a.I("s_waitcnt vmcnt(0)")
        a.I(f"s_cmp_ge_u32 s{S_W}, 4")
        a.I("s_cbranch_scc1 L_aloop1")
        lds_add1(a, M_HST, T0, T1)
        a.L("L_aloop1")
        lds_spin(a, M_KV, 8, T0, T1)
    a.L("L_aloop2")
    a.I("s_cmp_lt_u32 s70, 16")
    a.I("s_cbranch_scc1 L_aloop")
    a.I("s_waitcnt lgkmcnt(0)")
    a.I("s_nop 7")
    stamp(a, "aloop")
    def preads():
        return [f"ds_read_b128 {vr(S1,4)}, v{VX128}", f"ds_read_b128 {vr(S1+4,4)}, v{VX128} offset:1024",
                f"ds_read_b128 {vr(S1+8,4)}, v{VX128} offset:2048", f"ds_read_b128 {vr(S1+12,4)}, v{VX128} offset:3072",
                f"ds_read_b32 v{T0}, v{VX32} offset:4096", f"ds_read_b32 v{T1}, v{VX32} offset:4352"]
    a.I("s_mov_b64 exec, 1")
    a.I(f"ds_add_rtn_u32 v{T2}, v{VPAIR}, v{VONE}")
    a.I("s_mov_b64 exec, -1")
    a.I(f"ds_read_b32 v{VTF}, v{VPFLAG}")
    a.I(J(preads()))
    a.I("s_waitcnt lgkmcnt(0)")
    a.I(f"v_readfirstlane_b32 s55, v{T2}")
    a.I(f"v_readfirstlane_b32 s56, v{VTF}")
    a.I("s_nop 3")
    a.I("s_cmp_lg_u32 s55, 0")
    a.I("s_cbranch_scc1 L_second")
    lds_spin(a, M_FFN, 4, T0, T1)
    a.I(f"ds_write_b128 v{VX128}, {vr(OA,4)}")
    a.I(f"ds_write_b128 v{VX128}, {vr(OA+4,4)} offset:1024")
    a.I(f"ds_write_b128 v{VX128}, {vr(OB,4)} offset:2048")
    a.I(f"ds_write_b128 v{VX128}, {vr(OB+4,4)} offset:3072")
    a.I(f"ds_write_b32 v{VX32}, v{OA+8} offset:4096")
    a.I(f"ds_write_b32 v{VX32}, v{OB+8} offset:4352")
    a.I("s_waitcnt lgkmcnt(0)")
    lds_add1(a, "s76", T0, T1)
    a.I("s_waitcnt lgkmcnt(0)")
    stamp_flush(a, "attn")
    a.I("s_endpgm")
    a.L("L_second")
    a.I("s_cmp_lg_u32 s56, 0")
    a.I("s_cbranch_scc1 L_second2")
    lds_spin(a, "s76", 1, T0, T1)
    a.I(J(preads()))
    a.I("s_waitcnt lgkmcnt(0)")
    a.L("L_second2")
    for i in range(8):
        a.I(f"v_add_f32 v{OA+i}, v{OA+i}, v{S1+i}")
        a.I(f"v_add_f32 v{OB+i}, v{OB+i}, v{S1+8+i}")
    a.I(f"v_add_f32 v{OA+8}, v{OA+8}, v{T0}")
    a.I(f"v_add_f32 v{OB+8}, v{OB+8}, v{T1}")
    a.L("L_fin")
    for O in (OA, OB):
        a.I(f"v_mov_b32 v{O+9}, v{O+8}")
    a.I("s_nop 1")
    for O in (OA, OB):
        a.I(f"v_permlane32_swap_b32 v{O+9}, v{O+8}")
    a.I("s_nop 1")
    for O in (OA, OB):
        a.I(f"v_rcp_f32 v{O+10}, v{O+9}")
    srd_off(a, RA, S_WS, OF, 2*MB)
    a.I("s_lshl_b32 s54, s66, 5")
    a.I(f"s_add_u32 s54, s54, s{S_HD}")
    a.I("s_lshl_b32 s55, s54, 10")
    for n_, O in enumerate((OA, OB)):
        for i in range(8):
            a.I(f"v_mul_f32 v{S0+8*n_+i}, v{O+i}, v{O+10}")
        for j in range(4):
            a.I(f"v_cvt_pk_bf16_f32 v{S1+4*n_+j}, v{S0+8*n_+2*j}, v{S0+8*n_+2*j+1}")
        a.I(f"buffer_store_dwordx4 {vr(S1+4*n_,4)}, v{VL}, {S4(RA)}, s55 offen sc1")
        if n_ == 0: a.I("s_add_u32 s55, s55, 32768")
    srd_off(a, RC, S_WS, FLG, FLG_SIZE)
    slow_check(a, OA, OB, T0, T1)
    lds_add1(a, M_ATT, T0, T1)
    a.I("s_lshl_b32 s54, s54, 2")
    a.I(f"s_add_u32 s54, s54, {FO_OFF}")
    a.I(f"v_mov_b32 v{T0}, s{S_NONCE}")
    a.I(f"v_lshlrev_b32 v{T1}, 7, v1")
    a.I("s_waitcnt vmcnt(0)")
    a.I("s_mov_b64 exec, 3")
    a.I(f"buffer_store_dword v{T0}, v{T1}, {S4(RC)}, s54 offen sc1")
    a.I("s_mov_b64 exec, -1")
    stamp_flush(a, "attn")
    a.I("s_endpgm")
    slow_path(a, QA, QB, KB, VB, S0, S1, OA, OB, VL, T0, T1, T2)

def slow_check(a, OA, OB, T0, T1):
    if OPT.get("noslow"): return
    a.I(f"v_mul_f32 v{T0}, 0, v{OA}")
    for i in range(1, 8):
        a.I(f"v_fma_f32 v{T0}, v{OA+i}, 0, v{T0}")
    for i in range(8):
        a.I(f"v_fma_f32 v{T0}, v{OB+i}, 0, v{T0}")
    a.I(f"v_cmp_eq_f32 s[78:79], 0, v{T0}")
    a.I(f"s_mov_b32 s80, {hex(f2u(2.0**-60))}")
    a.I(f"s_mov_b32 s81, {hex(f2u(2.0**60))}")
    for O in (OA, OB):
        a.I(f"v_cmp_le_f32 s[82:83], s80, v{O+9}")
        a.I(f"v_cmp_ge_f32 vcc, s81, v{O+9}")
        a.I("s_nop 1")
        a.I("s_and_b64 s[78:79], s[78:79], s[82:83]")
        a.I("s_and_b64 s[78:79], s[78:79], vcc")
    if OPT.get("forceslow"):
        a.I("s_mov_b64 s[78:79], 0")
    a.I("s_cmp_eq_u64 s[78:79], -1")
    a.I("s_cbranch_scc1 L_ok")
    a.I("s_cmp_eq_u32 s77, 0")
    a.I("s_cbranch_scc1 L_slow")
    a.L("L_ok")

def slow_path(a, QA, QB, KB, VB, S0, S1, OA, OB, VL, T0, T1, T2):
    if OPT.get("noslow"): return
    K, V0, M, C = KB[0], VB[0], 108, 112
    a.L("L_slow")
    a.I("s_waitcnt vmcnt(0)")
    a.I("s_mov_b32 s77, 1")
    a.I(f"v_lshrrev_b32 v{T0}, 5, v1")
    a.I(f"v_and_b32 v{T1}, 15, v1")
    a.I(f"v_lshlrev_b32 v{T1}, 4, v{T1}")
    a.I(f"v_lshl_add_u32 v{T2}, v{T0}, 8, v{T1}")
    a.I(f"v_add_u32 v{T2}, {L_V}, v{T2}")
    a.I(f"v_mov_b32 v{M}, 0xff800000")
    a.I(f"v_mov_b32 v{M+1}, 0xff800000")
    a.I(f"v_add_u32 v{T0}, {L_K}, v{VL}")
    a.I("s_mov_b32 s73, 0")
    a.L("L_slow1")
    a.I(f"ds_read_b128 {vr(K,4)}, v{T0}")
    a.I("s_waitcnt lgkmcnt(0)")
    a.I(MF(S0, K, QA))
    a.I(MF(S1, K, QB))
    a.I("s_nop 15")
    for S, m in ((S0, M), (S1, M+1)):
        for i in range(0, 16, 2):
            a.I(f"v_max3_f32 v{m}, v{S+i}, v{S+i+1}, v{m}")
    a.I(f"v_add_u32 v{T0}, 1024, v{T0}")
    a.I("s_add_u32 s73, s73, 1")
    a.I("s_cmp_lt_u32 s73, 64")
    a.I("s_cbranch_scc1 L_slow1")
    for m in (M, M+1):
        a.I(f"v_mov_b32 v{T1}, v{m}")
        a.I("s_nop 1")
        a.I(f"v_permlane32_swap_b32 v{T1}, v{m}")
        a.I("s_nop 1")
        a.I(f"v_max_f32 v{m}, v{m}, v{T1}")
    for t in range(2):
        for i in range(16):
            a.I(f"v_sub_f32 v{C+16*t+i}, 0, v{M+t}")
    for i in range(16):
        a.I(f"v_mov_b32 v{OA+i}, 0")
        a.I(f"v_mov_b32 v{OB+i}, 0")
    a.I(f"v_add_u32 v{T0}, {L_K}, v{VL}")
    a.I("s_mov_b32 s73, 0")
    a.L("L_slow2")
    a.I(f"ds_read_b128 {vr(K,4)}, v{T0}")
    a.I("s_mov_b64 exec, s[74:75]")
    a.I(f"ds_read_b128 {vr(V0,4)}, v{T2}")
    a.I(f"ds_read_b128 {vr(V0+4,4)}, v{T2} offset:512")
    a.I("s_mov_b64 exec, -1")
    a.I("s_waitcnt lgkmcnt(0)")
    a.I(MF(S0, K, QA, C))
    a.I(MF(S1, K, QB, C+16))
    a.I("s_nop 15")
    for S, O in ((S0, OA), (S1, OB)):
        for i in range(16):
            a.I(f"v_exp_f32 v{S+i}, v{S+i}")
        a.I("s_nop 0")
        for j in range(8):
            a.I(f"v_cvt_pk_bf16_f32 v{S+j}, v{S+2*j}, v{S+2*j+1}")
        a.I("s_nop 1")
        a.I(MF(O, V0, S, O))
        a.I(MF(O, V0+4, S+4, O))
    a.I(f"v_add_u32 v{T0}, 1024, v{T0}")
    a.I(f"v_add_u32 v{T2}, 1024, v{T2}")
    a.I("s_add_u32 s73, s73, 1")
    a.I("s_cmp_lt_u32 s73, 64")
    a.I("s_cbranch_scc1 L_slow2")
    a.I("s_nop 15")
    a.I("s_branch L_fin")

def gen():
    a = Asm()
    prologue(a)
    producer(a, False)
    consumer(a)
    a.L("L_aux")
    producer(a, True)
    ffn2_p3(a)
    attention(a)
    a.L("L_end")
    a.I("s_endpgm")
    a.L("L_code_end")
    a.I("s_endpgm")
    return a

HEADER = open("cdna_kernels/" + NAME + ".s.ref").read().split("; Override launch")[0]

def build(path):
    a = gen()
    out = HEADER + f"; WSLAYOUT QF={QF} KF={KF} VF={VF} HF={HF} GO={GO} OF={OF}\n"
    out += f"; @launch grid=(256,1,1) block=(768,1,1) lds={LDS_TOTAL}\n"
    out += '.amdgcn_target "amdgcn-amd-amdhsa--gfx950"\n.text\n' + a.text()
    out += f""".section .rodata,"a"
.p2align 6
.amdhsa_kernel {KN}
  .amdhsa_next_free_vgpr 168
  .amdhsa_next_free_sgpr 102
  .amdhsa_accum_offset 168
  .amdhsa_group_segment_fixed_size 0
  .amdhsa_kernarg_size 96
  .amdhsa_user_sgpr_count 2
  .amdhsa_user_sgpr_kernarg_segment_ptr 1
  .amdhsa_system_sgpr_workgroup_id_x 1
.end_amdhsa_kernel
"""
    open(path, "w").write(out)
    probs = check_linear(a.lines, "k")
    if STAMPS: print("stamps:", ",".join(_stamp_names))
    return probs

if __name__ == "__main__":
    for x in list(sys.argv[1:]):
        if x.startswith("-D"):
            k, _, v = x[2:].partition("=")
            OPT[k] = int(v) if v else 1
            sys.argv.remove(x)
    if "--stamps" in sys.argv:
        STAMPS = True; sys.argv.remove("--stamps")
    path = sys.argv[1] if len(sys.argv) > 1 else "cdna_kernels/" + NAME + ".s"
    probs = build(path)
    for p in probs: print("HAZARD:", p)
    print("written", path, "problems:", len(probs))
```

```python
import sys, struct
from asmlib import *

NAME = "gated_mix__mha_block__dense_activation_squared_relu__prompt"
KN = NAME + "_kernel"
MB = 1 << 20
QF, KF, VF, HF, GO, OF, FLG = 4096, 2*MB + 8192, 4*MB + 12288, 6*MB + 16384, 12*MB, 14*MB + 4096, 16*MB + 8192
HF_SIZE = 86 * 65536
FA_OFF, FH_OFF, FO_OFF = 0, 4096, 8192
FLG_SIZE = 16384
QSCALE = 0.25 * 1.4426950408889634
STAMP_OFF = 32*MB
STAMPS = False
OPT = {}
def f2u(x): return struct.unpack("<I", struct.pack("<f", x))[0]

S_AX, S_WQKV, S_WO, S_W1, S_B1, S_W2, S_B2, S_GW, S_OUT, S_DBG, S_WS = 4, 6, 8, 12, 14, 16, 18, 20, 22, 24, 26
S_W = 3
S_RB, S_CG, S_START = 29, 30, 31
RA, RB, RC, RD = 32, 36, 40, 44
S_NONCE, S_HD, S_QB = 60, 61, 62
L_MISC, L_K, L_V, L_RING = 0, 1024, 1024 + 65536, 1024 + 131072
L_XCH = L_RING
M_KV, M_H, M_FA, M_QRD, M_HST, M_FFN, M_ATT, M_T1 = [L_MISC + 4*i for i in range(8)]
M_PAIR, M_PFLAG, M_CH = L_MISC + 64, L_MISC + 96, L_MISC + 160
LDS_TOTAL = 163840

def srd(a, dst, base, size):
    a.I(f"s_mov_b32 s{dst}, s{base}")
    a.I(f"s_mov_b32 s{dst+1}, s{base+1}")
    a.I(f"s_mov_b32 s{dst+2}, {size}")
    a.I(f"s_mov_b32 s{dst+3}, 0x20000")
def srd_off(a, dst, base, off, size):
    a.I(f"s_add_u32 s{dst}, s{base}, {off}")
    a.I(f"s_addc_u32 s{dst+1}, s{base+1}, 0")
    a.I(f"s_mov_b32 s{dst+2}, {size}")
    a.I(f"s_mov_b32 s{dst+3}, 0x20000")
def MF(d, A, B, c=None):
    cc = "0" if c is None else vr(c, 16)
    return f"v_mfma_f32_32x32x16_bf16 {vr(d,16)}, {vr(A,4)}, {vr(B,4)}, {cc}"
def S4(r): return f"s[{r}:{r+3}]"
def J(L): return "\n".join(L)

_stamp_names = []
def stamp(a, name):
    if not STAMPS: return
    if name not in _stamp_names: _stamp_names.append(name)
    i = _stamp_names.index(name)
    a.I("s_waitcnt lgkmcnt(0)")
    a.I("s_memtime s[98:99]")
    a.I("s_memrealtime s[100:101]")
    a.I("s_waitcnt lgkmcnt(0)")
    a.I(f"v_writelane_b32 v6, s98, {i}")
    a.I(f"v_writelane_b32 v7, s100, {i}")
def stamp_dyn(a):
    if not (STAMPS and OPT.get("fine")): return
    a.I("s_memtime s[98:99]")
    a.I("s_memrealtime s[100:101]")
    a.I("s_waitcnt lgkmcnt(0)")
    a.I("s_mov_b32 s88, m0")
    a.I("s_mov_b32 m0, s87")
    a.I("s_nop 3")
    a.I("v_writelane_b32 v6, s98, m0")
    a.I("v_writelane_b32 v7, s100, m0")
    a.I("s_mov_b32 m0, s88")
    a.I("s_add_u32 s87, s87, 1")
def dbg_dump(a, names, word0):
    lb = lab("dd")
    a.I(f"s_cmp_lg_u32 s2, {OPT.get('dbgwg', 0)}")
    a.I(f"s_cbranch_scc1 {lb}")
    a.I("v_readlane_b32 s90, v7, 0")
    for i, nm in enumerate(names):
        if nm not in _stamp_names: _stamp_names.append(nm)
        a.I(f"v_readlane_b32 s91, v7, {_stamp_names.index(nm)}")
        a.I("s_nop 3")
        a.I("s_sub_u32 s91, s91, s90")
        a.I("v_mov_b32 v2, s91")
        a.I(f"v_mov_b32 v3, {4*(word0+i)}")
        a.I("s_mov_b64 exec, 1")
        a.I(f"global_store_dword v3, v2, s[{S_DBG}:{S_DBG+1}]")
        a.I("s_mov_b64 exec, -1")
    a.L(lb)

def stamp_flush(a, who=None):
    if not STAMPS: return
    a.I("s_waitcnt vmcnt(0)")
    stamp(a, "end")
    if OPT.get("dbgdump"):
        if who == "ffn":
            l2 = lab("d8")
            a.I(f"s_cmp_lg_u32 s{S_W}, 8"); a.I(f"s_cbranch_scc1 {l2}")
            dbg_dump(a, ["E2", "FAok", "KV1", "hready", "ffn2", "attdone", "T2", "p3mm", "end"], 7)
            a.L(l2)
        elif who == "attn":
            l2 = lab("d0")
            a.I(f"s_and_b32 s91, s{S_W}, 3"); a.I("s_cmp_lg_u32 s91, 0"); a.I(f"s_cbranch_scc1 {l2}")
            a.I(f"s_cmp_ge_u32 s{S_W}, 4"); a.I(f"s_cbranch_scc1 {l2}")
            dbg_dump(a, ["karg", "B0", "qloop", "floop", "kvok", "aloop"], 1)
            a.L(l2)
    a.I(f"s_add_u32 s96, s{S_WS}, {STAMP_OFF}")
    a.I(f"s_addc_u32 s97, s{S_WS+1}, 0")
    a.I("s_mul_i32 s98, s2, 12")
    a.I(f"s_add_u32 s98, s98, s{S_W}")
    a.I("s_lshl_b32 s98, s98, 9")
    a.I("v_lshlrev_b32 v2, 2, v1")
    a.I("v_add_u32 v2, s98, v2")
    a.I("s_mov_b64 exec, -1")
    a.I("global_store_dword v2, v6, s[96:97]")
    a.I("global_store_dword v2, v7, s[96:97] offset:256")
    a.I("s_waitcnt vmcnt(0)")

def tr_lane_addr(a, dst, lane, tmp, tmp2, hrows, pitch):
    a.I(f"v_bfe_u32 v{tmp}, v{lane}, 2, 2")
    a.I(f"v_lshrrev_b32 v{tmp2}, 5, v{lane}")
    a.I(f"v_mul_u32_u24 v{tmp2}, {hrows}, v{tmp2}")
    a.I(f"v_add_u32 v{tmp}, v{tmp}, v{tmp2}")
    a.I(f"v_mul_u32_u24 v{dst}, {pitch}, v{tmp}")
    a.I(f"v_bfe_u32 v{tmp}, v{lane}, 4, 1")
    a.I(f"v_lshlrev_b32 v{tmp}, 1, v{tmp}")
    a.I(f"v_bfe_u32 v{tmp2}, v{lane}, 1, 1")
    a.I(f"v_add_u32 v{tmp}, v{tmp}, v{tmp2}")
    a.I(f"v_bfe_u32 v{tmp2}, v{lane}, 3, 1")
    a.I(f"v_lshlrev_b32 v{tmp2}, 2, v{tmp2}")
    a.I(f"v_xor_b32 v{tmp}, v{tmp}, v{tmp2}")
    a.I(f"v_lshl_add_u32 v{dst}, v{tmp}, 4, v{dst}")
    a.I(f"v_and_b32 v{tmp}, 1, v{lane}")
    a.I(f"v_lshl_add_u32 v{dst}, v{tmp}, 3, v{dst}")

def dma_w_lane_off(a, dst, lane, tmp, tmp2, pitch):
    a.I(f"v_lshrrev_b32 v{tmp}, 3, v{lane}")
    a.I(f"v_mul_u32_u24 v{dst}, {pitch}, v{tmp}")
    a.I(f"v_bfe_u32 v{tmp}, v{lane}, 4, 1")
    a.I(f"v_lshlrev_b32 v{tmp}, 2, v{tmp}")
    a.I(f"v_and_b32 v{tmp2}, 7, v{lane}")
    a.I(f"v_xor_b32 v{tmp}, v{tmp}, v{tmp2}")
    a.I(f"v_lshl_add_u32 v{dst}, v{tmp}, 4, v{dst}")

_lab = [0]
def lab(p):
    _lab[0] += 1
    return f"L_{p}{_lab[0]}"

def poll(a, srd_reg, nlanes, voff, vtmp, soff, slp=1):
    l0, l1 = lab("poll"), lab("polld")
    if nlanes < 64:
        a.I(f"s_mov_b32 exec_lo, {hex((1 << nlanes) - 1)}")
        a.I("s_mov_b32 exec_hi, 0")
    a.I("s_mov_b32 s50, 0x40000")
    a.L(l0)
    a.I(f"buffer_load_dword v{vtmp}, v{voff}, {S4(srd_reg)}, {soff} offen sc1")
    a.I("s_waitcnt vmcnt(0)")
    a.I(f"v_cmp_ne_u32 vcc, s{S_NONCE}, v{vtmp}")
    a.I(f"s_cbranch_vccz {l1}")
    a.I("s_sub_u32 s50, s50, 1")
    a.I("s_cmp_eq_u32 s50, 0")
    a.I(f"s_cbranch_scc1 {l1}")
    a.I(f"s_sleep {slp}")
    a.I(f"s_branch {l0}")
    a.L(l1)
    a.I("s_mov_b64 exec, -1")

def lds_spin(a, addr, target, vaddr, vtmp, slp=1):
    l0, l1 = lab("spin"), lab("spind")
    a.I(f"v_mov_b32 v{vaddr}, {addr}")
    a.I("s_mov_b32 s50, 0x400000")
    a.L(l0)
    a.I(f"ds_read_b32 v{vtmp}, v{vaddr}")
    a.I("s_waitcnt lgkmcnt(0)")
    a.I(f"v_readfirstlane_b32 s51, v{vtmp}")
    a.I("s_sub_u32 s50, s50, 1")
    a.I(f"s_cmp_ge_u32 s51, {target}")
    a.I(f"s_cbranch_scc1 {l1}")
    a.I("s_cmp_eq_u32 s50, 0")
    a.I(f"s_cbranch_scc1 {l1}")
    a.I(f"s_sleep {slp}")
    a.I(f"s_branch {l0}")
    a.L(l1)

def lds_add1(a, addr, vaddr, vtmp):
    a.I(f"v_mov_b32 v{vaddr}, {addr}")
    a.I(f"v_mov_b32 v{vtmp}, 1")
    a.I("s_mov_b64 exec, 1")
    a.I(f"ds_add_u32 v{vaddr}, v{vtmp}")
    a.I("s_mov_b64 exec, -1")

def flag_store(a, soff, v0_, v1_):
    a.I(f"v_mov_b32 v{v0_}, s{S_NONCE}")
    a.I(f"v_mov_b32 v{v1_}, 0")
    a.I("s_mov_b64 exec, 1")
    a.I(f"buffer_store_dword v{v0_}, v{v1_}, {S4(RC)}, {soff} offen sc1")
    a.I("s_mov_b64 exec, -1")

def prologue(a):
    a.raw(f".globl {KN}\n.p2align 8\n.type {KN},@function\n{KN}:")
    if STAMPS:
        a.I("s_memrealtime s[94:95]")
        a.I("s_memtime s[92:93]")
    a.I("s_cmp_ge_u32 s2, 256")
    a.I("s_cbranch_scc1 L_end")
    a.I("s_load_dwordx4 s[4:7], s[0:1], 0")
    a.I("s_load_dwordx2 s[8:9], s[0:1], 16")
    a.I("s_load_dwordx4 s[12:15], s[0:1], 32")
    a.I("s_load_dwordx4 s[16:19], s[0:1], 48")
    a.I("s_load_dwordx4 s[20:23], s[0:1], 64")
    a.I("s_load_dwordx4 s[24:27], s[0:1], 80")
    a.I("v_lshrrev_b32 v2, 6, v0")
    a.I("v_and_b32 v1, 63, v0")
    a.I(f"v_readfirstlane_b32 s{S_W}, v2")
    if OPT.get("codeearly", 1):
        a.I("s_getpc_b64 s[52:53]")
        a.L("L_pc0")
        a.I(f"s_sub_u32 s52, s52, L_pc0-{KN}")
        a.I("s_subb_u32 s53, s53, 0")
        a.I("v_lshlrev_b32 v3, 7, v0")
        a.I(f"v_min_u32 v3, L_code_end-{KN}-4, v3")
        a.I(f"s_cmp_ge_u32 s{S_W}, 3")
        a.I("s_cbranch_scc1 L_pc1")
        a.I("global_load_dword v31, v3, s[52:53]")
        a.L("L_pc1")
    if STAMPS:
        a.I("v_mov_b32 v6, 0"); a.I("v_mov_b32 v7, 0")
    a.I("s_and_b32 s52, s2, 7")
    a.I("s_lshr_b32 s53, s2, 3")
    if OPT.get("map84"):
        a.I("s_lshr_b32 s54, s52, 1")
        a.I("s_lshl_b32 s54, s54, 3")
        a.I("s_lshr_b32 s55, s53, 2")
        a.I(f"s_add_u32 s{S_RB}, s54, s55")
        a.I("s_and_b32 s54, s52, 1")
        a.I("s_lshl_b32 s54, s54, 2")
        a.I("s_and_b32 s55, s53, 3")
        a.I(f"s_add_u32 s{S_CG}, s54, s55")
    else:
        a.I("s_lshr_b32 s54, s52, 2")
        a.I("s_lshl_b32 s54, s54, 4")
        a.I("s_lshr_b32 s55, s53, 1")
        a.I(f"s_add_u32 s{S_RB}, s54, s55")
        a.I("s_and_b32 s54, s52, 3")
        a.I("s_lshl_b32 s54, s54, 1")
        a.I("s_and_b32 s55, s53, 1")
        a.I(f"s_add_u32 s{S_CG}, s54, s55")
    a.I(f"s_mul_i32 s54, s{S_CG}, 6")
    a.I(f"s_min_u32 s{S_START}, s54, 37")
    a.I(f"s_lshl_b32 s{S_HD}, s52, 2")
    a.I("s_and_b32 s54, s53, 3")
    a.I(f"s_add_u32 s{S_HD}, s{S_HD}, s54")
    a.I(f"s_lshr_b32 s{S_QB}, s2, 5")
    a.I("s_waitcnt lgkmcnt(0)")
    if STAMPS:
        _stamp_names.append("entry")
        a.I("v_writelane_b32 v6, s92, 0")
        a.I("v_writelane_b32 v7, s94, 0")
    stamp(a, "karg")
    a.I(f"s_cmp_ge_u32 s{S_W}, 8")
    a.I("s_cbranch_scc1 L_aux")
    a.I(f"s_cmp_lt_u32 s{S_W}, 4")
    a.I("s_cbranch_scc1 L_cons")

GATEPOS = 3
def producer(a, aux):
    T = "a" if aux else "p"
    if OPT.get("pprio"): a.I(f"s_setprio {OPT['pprio']}")
    a.I(f"s_sub_u32 s67, s{S_W}, 4")
    a.I(f"s_lshl_b32 s54, s{S_RB}, 16")
    srd_off(a, RA, S_AX, "s54", 65536)
    a.I("v_lshrrev_b32 v2, 3, v1")
    a.I("s_lshl_b32 s54, s67, 3")
    a.I("v_add_u32 v2, s54, v2")
    a.I("v_lshrrev_b32 v3, 4, v1")
    a.I("s_and_b32 s54, s67, 1")
    a.I("s_lshl_b32 s54, s54, 2")
    a.I("v_add_u32 v3, s54, v3")
    a.I("v_and_b32 v4, 7, v1")
    a.I("v_xor_b32 v3, v3, v4")
    a.I("v_lshlrev_b32 v3, 4, v3")
    a.I("v_lshl_add_u32 v12, v2, 10, v3")
    a.I("s_lshl_b32 s68, s67, 10")
    def woffs(dst, pitch, segshift):
        for j in range(3):
            a.I(f"v_add_u32 v2, {64*j}, v1")
            a.I("v_mul_u32_u24 v3, 171, v2")
            a.I("v_lshrrev_b32 v3, 12, v3")
            a.I("v_mul_u32_u24 v4, 24, v3")
            a.I("v_sub_u32 v2, v2, v4")
            a.I("v_lshrrev_b32 v4, 3, v2")
            a.I("v_and_b32 v2, 7, v2")
            a.I("v_bfe_u32 v5, v3, 1, 1")
            a.I("v_lshlrev_b32 v5, 2, v5")
            a.I("v_xor_b32 v2, v2, v5")
            a.I("v_lshlrev_b32 v2, 4, v2")
            a.I(f"v_mul_u32_u24 v5, {pitch}, v3")
            a.I(f"v_lshl_add_u32 v5, v4, {segshift}, v5")
            a.I(f"v_add_u32 v{dst+j}, v5, v2")
    wsetup_done = [False]
    def wsetup():
        if wsetup_done[0]: return
        wsetup_done[0] = True
        srd(a, RB, S_WQKV, 512*3072)
        woffs(13, 3072, 10)
        a.I("s_mul_i32 s69, s67, 3072")
        a.I("s_add_u32 s69, s69, 0x10000")
        a.I(f"s_lshl_b32 s70, s{S_CG}, 7")
        a.I(f"s_mul_i32 s71, s67, {8*3072}")
        a.I("s_add_u32 s70, s70, s71")
    def pre_setup(item):
        k, c = item
        if k == "X":
            a.I(f"s_add_u32 m0, s68, {c*8192}")
            a.I(f"s_movk_i32 s81, {c*128}")
        else:
            a.I(f"s_add_u32 s82, s70, {c*64*3072}" if c < 8 else f"s_add_u32 s82, s71, {(c-8)*64*2752}")
            a.I(f"s_add_u32 m0, s69, {(c&3)*24576}")
    def issue_x(c, done=False):
        if OPT.get("p1noprod"): return
        if not done:
            a.I(f"s_add_u32 m0, s68, {c*8192}")
            a.I(f"s_movk_i32 s81, {c*128}")
        a.I(f"buffer_load_dwordx4 v12, {S4(RA)}, s81 offen lds")
    def issue_w(c, done=False):
        if OPT.get("p1noprod"): return
        if c < 8:
            if not done: a.I(f"s_add_u32 s82, s70, {c*64*3072}")
            vo, R = 13, RB
        else:
            if not done: a.I(f"s_add_u32 s82, s71, {(c-8)*64*2752}")
            vo, R = 16, RC
        for j in range(3):
            if not (done and j == 0):
                a.I(f"s_add_u32 m0, s69, {(c&3)*24576 + j*1024}")
                a.I("s_nop 0")
            a.I(f"buffer_load_dwordx4 v{vo+j}, {S4(R)}, s82 offen lds")
    sched = OPT.get("sched", 0)
    if sched == 0:
        pre = [("X",0),("X",1),("X",2),("W",0),("W",1),("W",2)] if OPT.get("xfirst", 1) else [("X",0),("W",0),("X",1),("W",1),("X",2),("W",2)]
        post = {c: ([("X",c+3)] if c+3 < 8 else []) + ([("W",c+3)] if c+3 < 16 else []) for c in range(16)}
    elif sched == 1:
        pre = [("X",0),("W",0),("X",1),("W",1),("X",2),("W",2),("X",3),("W",3),("X",4),("X",5),("X",6),("X",7)]
        post = {c: ([("W",c+3)] if (c >= 1 and c+3 < 16) else []) for c in range(16)}
    elif sched == 2:
        pre = [("X",0),("W",0),("X",1),("W",1),("X",2),("W",2),("X",3),("W",3)]
        post = {c: ([("W",c+3)] if (c >= 1 and c+3 < 16) else []) for c in range(16)}
        post[0] = [("X",4),("X",5),("X",6),("X",7)]
    fifo = []
    def do(item, done=False):
        k, c = item
        if k == "X":
            if OPT.get("skipx"): fifo.append((item, 0)); return
            issue_x(c, done); fifo.append((item, 1))
        else:
            if OPT.get("skipw") and c < 8: fifo.append((item, 0)); return
            wsetup()
            issue_w(c, done); fifo.append((item, 3))
    for it in pre: do(it)
    if OPT.get("pfprod") and not aux:
        a.I(f"s_mov_b32 s89, s{S_W}")
        a.I(f"s_sub_u32 s{S_W}, s{S_W}, 4")
        l2_prefetch(a, 0)
        a.I(f"s_mov_b32 s{S_W}, s89")
        fifo.append(("pf", 2))
    stamp(a, "issued3")
    nside = 0
    if aux:
        nside = aux_side_issue(a)
    srd(a, RC, S_W1, 512*2752)
    if OPT.get("w1perm", 0):
        for j in range(3):
            a.I(f"v_add_u32 v2, {64*j}, v1")
            a.I("v_mul_u32_u24 v3, 171, v2")
            a.I("v_lshrrev_b32 v3, 12, v3")
            a.I("v_mul_u32_u24 v4, 24, v3")
            a.I("v_sub_u32 v2, v2, v4")
            a.I("v_lshrrev_b32 v4, 2, v2")
            a.I("v_and_b32 v2, 3, v2")
            a.I("v_bfe_u32 v5, v3, 1, 1")
            a.I("v_xor_b32 v4, v4, v5")
            a.I("v_add_u32 v5, 1, v4")
            a.I("v_cmp_eq_u32 vcc, 4, v4")
            a.I("s_nop 1")
            a.I("v_cndmask_b32_e64 v5, v5, 0, vcc")
            a.I("v_cmp_eq_u32 vcc, 5, v4")
            a.I("s_nop 1")
            a.I("v_cndmask_b32_e64 v5, v5, 5, vcc")
            a.I(f"v_add_u32 v19, s{S_START}, v3")
            a.I("v_and_b32 v19, 1, v19")
            a.I("v_cmp_eq_u32 vcc, 1, v19")
            a.I("s_nop 1")
            a.I("v_cndmask_b32 v4, v4, v5, vcc")
            a.I("v_lshlrev_b32 v4, 6, v4")
            a.I("v_lshl_add_u32 v4, v2, 4, v4")
            a.I("v_mul_u32_u24 v5, 2752, v3")
            a.I(f"v_add_u32 v{16+j}, v5, v4")
    else:
        woffs(16, 2752, 7)
    a.I(f"s_lshl_b32 s71, s{S_START}, 6")
    a.I(f"s_mul_i32 s72, s67, {8*2752}")
    a.I("s_add_u32 s71, s71, s72")
    fap = OPT.get("fapos", 2)
    assert fap >= 0
    for c in range(16):
        need = [("W", c)] + ([("X", c)] if c < 8 else [])
        idx = max(i for i, (it, _) in enumerate(fifo) if it in need)
        allow = sum(k for _, k in fifo[idx+1:])
        if c == 0 and STAMPS and OPT.get("fine"): a.I("s_mov_b32 s87, 24")
        stamp_dyn(a)
        early = OPT.get("early", 1) and not STAMPS and len(post[c]) > 0 and not OPT.get("p1noprod")
        if early:
            pre_setup(post[c][0])
        a.I(f"s_waitcnt vmcnt({allow})")
        stamp_dyn(a)
        a.I("s_barrier")
        for n_, it in enumerate(post[c]): do(it, early and n_ == 0)
        if aux and c == 2:
            fifo.append(("side", aux_side_loads(a)))
        if aux and c == 6:
            aux_gate(a)
            fifo.append(("g", 1))
        if aux and c == 4:
            fifo.append(("nonce", aux_nonce_issue(a)))
        if aux and c == 10:
            aux_zero_misc(a)
        if aux and c == 8:
            aux_nonce_take(a)
        if aux and c == 12:
            aux_share_nonce(a)
        if aux and c == 14:
            aux_fa_probe(a, 0)
            fifo.append(("probe", 1))
        if aux and c == 15:
            aux_fa_probe(a, 1)
        if aux and c == 9 + fap:
            aux_publish_fa(a)
    a.I("s_barrier")
    if aux:
        aux_after_e1(a)
    else:
        if OPT.get("pprio"): a.I("s_setprio 0")
        a.I("s_branch L_attn")

def glob_w2(a):
    a.I("v_lshlrev_b32 v20, 7, v1")
    srd(a, RC, S_W2, 1376*1024)
    a.I("s_mul_i32 s54, s2, 5504")
    a.I("s_mov_b32 exec_hi, 0xfff")
    a.I(f"buffer_load_dword v24, v20, {S4(RC)}, s54 offen")
    srd(a, RC, S_WO, 512*1024)
    a.I("s_lshl_b32 s54, s2, 11")
    a.I("s_mov_b32 exec_hi, 0")
    a.I("s_mov_b32 exec_lo, 0xffff")
    a.I(f"buffer_load_dword v25, v20, {S4(RC)}, s54 offen")
    a.I("s_mov_b64 exec, -1")

def l2_prefetch(a, part):
    a.I("s_and_b32 s52, s2, 7")
    a.I("s_lshr_b32 s53, s2, 3")
    a.I("s_lshl_b32 s54, s53, 4")
    a.I(f"s_lshl_b32 s55, s{S_W}, 2")
    a.I("s_add_u32 s56, s54, s55")
    if OPT.get("pfglob", 1) and part == 0:
        lg = lab("pfg")
        G64 = OPT.get("pg64", 0)
        a.I(f"v_lshlrev_b32 v20, {6 if G64 else 7}, v1")
        def touch(nbytes):
            step = 64 if G64 else 128
            lanes = -(-nbytes // step)
            off = 0
            while lanes > 0:
                n = min(lanes, 64)
                if n < 64:
                    a.I(f"s_mov_b32 exec_lo, {hex((1 << min(n, 32)) - 1)}")
                    a.I(f"s_mov_b32 exec_hi, {hex((1 << max(n - 32, 0)) - 1)}")
                a.I(f"buffer_load_dword v24, v20, {S4(RC)}, s54 offen")
                if n < 64: a.I("s_mov_b64 exec, -1")
                lanes -= n
                if lanes > 0: a.I(f"s_add_u32 s54, s54, {64*step}")
        a.I(f"s_cmp_eq_u32 s{S_W}, 0")
        a.I(f"s_cbranch_scc0 {lg}a")
        srd(a, RC, S_AX, 2*MB)
        a.I("s_lshl_b32 s54, s2, 13")
        touch(8192)
        a.I(f"s_branch {lg}d")
        a.L(f"{lg}a")
        a.I(f"s_cmp_eq_u32 s{S_W}, 1")
        a.I(f"s_cbranch_scc0 {lg}b")
        srd(a, RC, S_WQKV, 512*3072)
        a.I("s_mul_i32 s54, s2, 6144")
        touch(6144)
        a.I(f"s_branch {lg}d")
        a.L(f"{lg}b")
        a.I(f"s_cmp_eq_u32 s{S_W}, {99 if OPT.get('w1late') else 2}")
        a.I(f"s_cbranch_scc0 {lg}c")
        srd(a, RC, S_W1, 512*2752)
        a.I("s_mul_i32 s54, s2, 5504")
        touch(5504)
        a.I(f"s_branch {lg}d")
        a.L(f"{lg}c")
        if OPT.get("pfw2") == 1:
            glob_w2(a)
        if OPT.get("tlb"):
            offs = [0, 2*MB + 4096, 4*MB + 8192, 6*MB + 12288, 11*MB + 512*1024, 12*MB + 16384, 14*MB, 16*MB + 4096]
            a.I("v_mov_b32 v21, 0")
            for i, o in enumerate(offs):
                a.I(f"v_mov_b32 v22, {o}")
                a.I(f"v_cmp_eq_u32 vcc, {i}, v1")
                a.I("s_nop 1")
                a.I("v_cndmask_b32 v21, v21, v22, vcc")
            a.I("s_mov_b32 exec_lo, 0xff")
            a.I("s_mov_b32 exec_hi, 0")
            a.I(f"global_load_dword v25, v21, s[{S_WS}:{S_WS+1}]")
            a.I("s_mov_b64 exec, -1")
        a.L(f"{lg}d")
        if OPT.get("pfglob", 1) == 1: return
        OPT["nopfx"] = 1 if OPT["pfglob"] == 2 else 0
    if OPT.get("map84"):
        if part == 0:
            srd(a, RC, S_AX, 2*MB)
            a.I("s_lshr_b32 s54, s52, 1")
            a.I("s_lshl_b32 s54, s54, 9")
            a.I("s_add_u32 s54, s54, s56")
            a.I("s_lshl_b32 s54, s54, 10")
            a.I("v_lshlrev_b32 v20, 7, v1")
            a.I("s_mov_b32 exec_hi, 0")
            a.I(f"buffer_load_dword v24, v20, {S4(RC)}, s54 offen")
            a.I("s_mov_b64 exec, -1")
            srd(a, RC, S_WQKV, 512*3072)
            a.I("s_mul_i32 s54, s56, 3072")
            a.I("s_and_b32 s55, s52, 1")
            a.I("s_lshl_b32 s55, s55, 9")
            a.I("s_add_u32 s54, s54, s55")
            a.I("v_lshrrev_b32 v21, 4, v1")
            a.I("v_mul_u32_u24 v21, 3072, v21")
            a.I("v_bfe_u32 v22, v1, 2, 2")
            a.I("v_min_u32 v22, 2, v22")
            a.I("v_lshl_add_u32 v21, v22, 10, v21")
            a.I("v_and_b32 v22, 3, v1")
            a.I("v_lshl_add_u32 v21, v22, 7, v21")
            a.I(f"buffer_load_dword v25, v21, {S4(RC)}, s54 offen")
        else:
            srd(a, RC, S_W1, 512*2752)
            a.I("s_and_b32 s55, s52, 1")
            a.I("s_mul_i32 s55, s55, 1536")
            a.I("s_mul_i32 s54, s56, 2752")
            a.I("s_add_u32 s54, s54, s55")
            a.I("v_lshrrev_b32 v21, 4, v1")
            a.I("v_mul_u32_u24 v21, 2752, v21")
            a.I("v_and_b32 v22, 15, v1")
            a.I("v_min_u32 v22, 12, v22")
            a.I("v_lshl_add_u32 v21, v22, 7, v21")
            a.I(f"buffer_load_dword v26, v21, {S4(RC)}, s54 offen")
        return
    if part == 2:
        a.I(f"s_cmp_lg_u32 s{S_W}, 0")
        a.I("s_cbranch_scc1 L_pf2")
        srd(a, RC, S_WQKV, 512*3072)
        a.I("s_lshl_b32 s54, s53, 3")
        a.I("s_add_u32 s54, s54, 256")
        a.I("s_mul_i32 s54, s54, 3072")
        a.I("s_and_b32 s55, s52, 3")
        a.I("s_lshl_b32 s55, s55, 8")
        a.I("s_add_u32 s54, s54, s55")
        a.I("v_lshrrev_b32 v21, 3, v1")
        a.I("v_mul_u32_u24 v21, 3072, v21")
        a.I("v_bfe_u32 v22, v1, 1, 2")
        a.I("v_min_u32 v22, 2, v22")
        a.I("v_lshl_add_u32 v21, v22, 10, v21")
        a.I("v_and_b32 v22, 1, v1")
        a.I("v_lshl_add_u32 v21, v22, 7, v21")
        a.I(f"buffer_load_dword v25, v21, {S4(RC)}, s54 offen")
        a.L("L_pf2")
    elif part == 0:
        G = OPT.get("pfg", 128)
        sh = {128: 7, 64: 6, 32: 5}[G]
        srd(a, RC, S_AX, 2*MB)
        a.I("s_lshr_b32 s54, s52, 2")
        a.I("s_lshl_b32 s54, s54, 10")
        a.I("s_lshl_b32 s55, s53, 5")
        a.I("s_add_u32 s54, s54, s55")
        a.I(f"s_lshl_b32 s55, s{S_W}, 3")
        a.I("s_add_u32 s54, s54, s55")
        a.I("s_lshl_b32 s54, s54, 10")
        if OPT.get("pftrim", 0):
            a.I("v_and_b32 v20, 7, v1")
            a.I("v_max_u32 v20, 3, v20")
            a.I("v_lshlrev_b32 v20, 7, v20")
            a.I("v_lshrrev_b32 v21, 3, v1")
            a.I("v_lshl_add_u32 v20, v21, 10, v20")
        else:
            a.I(f"v_lshlrev_b32 v20, {sh}, v1")
        for i in range(0 if OPT.get("nopfx") else 8192 // (64*G)):
            a.I(f"buffer_load_dword v24, v20, {S4(RC)}, s54 offen")
            a.I(f"s_add_u32 s54, s54, {64*G}")
        if OPT.get("pftrim", 0):
            a._pfl = lab("pfs")
            a.I("s_cmp_lt_u32 s53, 12")
            a.I(f"s_cbranch_scc1 {a._pfl}")
        srd(a, RC, S_WQKV, 512*3072)
        a.I("s_mul_i32 s54, s56, 3072")
        a.I("s_and_b32 s55, s52, 3")
        a.I("s_lshl_b32 s55, s55, 8")
        a.I("s_add_u32 s54, s54, s55")
        per = 256 // G
        a.I("v_lshrrev_b32 v21, 4, v1")
        a.I("v_mul_u32_u24 v21, 3072, v21")
        a.I("v_and_b32 v22, 15, v1")
        if G == 64:
            a.I("v_lshrrev_b32 v23, 2, v22")
            a.I("v_min_u32 v23, 2, v23")
            a.I("v_lshl_add_u32 v21, v23, 10, v21")
            a.I("v_and_b32 v22, 3, v22")
            a.I("v_lshl_add_u32 v21, v22, 6, v21")
            a.I(f"buffer_load_dword v25, v21, {S4(RC)}, s54 offen")
        elif G == 32:
            a.I("v_lshrrev_b32 v23, 3, v22")
            a.I("v_lshl_add_u32 v21, v23, 10, v21")
            a.I("v_and_b32 v22, 7, v22")
            a.I("v_lshl_add_u32 v21, v22, 5, v21")
            a.I(f"buffer_load_dword v25, v21, {S4(RC)}, s54 offen")
            a.I(f"buffer_load_dword v25, v21, {S4(RC)}, s54 offen offset:2048")
        else:
            a.I("v_lshrrev_b32 v23, 1, v22")
            a.I("v_min_u32 v23, 2, v23")
            a.I("v_lshl_add_u32 v21, v23, 10, v21")
            a.I("v_and_b32 v22, 1, v22")
            a.I("v_lshl_add_u32 v21, v22, 7, v21")
            a.I(f"buffer_load_dword v25, v21, {S4(RC)}, s54 offen")
        if OPT.get("pftrim", 0):
            a.L(a._pfl)
    else:
        a.I(f"s_cmp_ge_u32 s{S_W}, 2")
        a.I("s_cbranch_scc1 L_pf1")
        srd(a, RC, S_W1, 512*2752)
        a.I("s_and_b32 s55, s52, 3")
        a.I("s_mul_i32 s55, s55, 12")
        a.I("s_min_u32 s55, s55, 31")
        a.I("s_lshl_b32 s55, s55, 6")
        a.I("s_lshl_b32 s54, s53, 4")
        a.I(f"s_lshl_b32 s56, s{S_W}, 3")
        a.I("s_add_u32 s54, s54, s56")
        a.I("s_mul_i32 s54, s54, 2752")
        a.I("s_add_u32 s54, s54, s55")
        a.I("v_lshrrev_b32 v21, 3, v1")
        a.I("v_mul_u32_u24 v21, 2752, v21")
        a.I("v_and_b32 v22, 7, v1")
        a.I("v_lshl_add_u32 v21, v22, 7, v21")
        a.I(f"buffer_load_dword v26, v21, {S4(RC)}, s54 offen")
        a.L("L_pf1")

def consumer(a):
    a.L("L_cons")
    H, XA, WA, ACC, B1, FA, FB = 2, 8, 12, 32, 80, 104, 136
    if not OPT.get("nopf") and not OPT.get("pflate") and not OPT.get("pfprod"):
        l2_prefetch(a, OPT.get("pfmode", 0))
    a.I(f"v_lshrrev_b32 v{H}, 5, v1")
    a.I(f"s_and_b32 s63, s{S_W}, 1")
    a.I(f"s_lshr_b32 s64, s{S_W}, 1")
    srd(a, RD, S_B1, 2752)
    a.I(f"s_add_u32 s54, s{S_START}, s63")
    a.I("s_lshl_b32 s54, s54, 6")
    a.I(f"v_lshlrev_b32 v3, 3, v{H}")
    for s in range(3):
        for q in range(4):
            r = B1 + (s*4+q)*2
            a.I(f"buffer_load_dwordx2 v[{r}:{r+1}], v3, {S4(RD)}, s54 offen offset:{s*128+q*16}")
    for i in range(48):
        a.I(f"v_mov_b32 v{ACC+i}, 0")
    a.I("v_and_b32 v16, 31, v1")
    a.I("v_bfe_u32 v17, v1, 1, 3")
    a.I("s_lshl_b32 s54, s64, 5")
    a.I("v_add_u32 v16, s54, v16")
    a.I("v_lshlrev_b32 v16, 7, v16")
    a.I(f"v_xor_b32 v17, v17, v{H}")
    for ks in range(4):
        a.I(f"v_xor_b32 v18, {2*ks}, v17")
        a.I(f"v_lshl_add_u32 v{XA+ks}, v18, 4, v16")
    tr_lane_addr(a, WA, 1, 16, 17, 8, 384)
    a.I("s_lshl_b32 s54, s63, 6")
    a.I(f"v_xor_b32 v{WA}, s54, v{WA}")
    a.I(f"v_add_u32 v{WA}, 0x10000, v{WA}")
    a.I(f"v_add_u32 v{WA+1}, 49152, v{WA}")
    WF1 = [14, 15, 28, 29, 30, 23]
    if OPT.get("w1perm", 0):
        a.I("v_bfe_u32 v16, v1, 2, 2")
        a.I(f"v_lshl_add_u32 v17, v{H}, 3, v16")
        a.I("v_mul_u32_u24 v17, 384, v17")
        a.I("v_bfe_u32 v18, v1, 4, 1")
        a.I("v_lshlrev_b32 v18, 1, v18")
        a.I("v_bfe_u32 v19, v1, 1, 1")
        a.I("v_add_u32 v18, v18, v19")
        a.I("v_lshl_add_u32 v17, v18, 4, v17")
        a.I("v_and_b32 v18, 1, v1")
        a.I("v_lshl_add_u32 v17, v18, 3, v17")
        a.I("v_add_u32 v17, 0x10000, v17")
        a.I(f"v_add_u32 v18, s{S_START}, v16")
        a.I("v_and_b32 v18, 1, v18")
        a.I("v_cmp_eq_u32 vcc, 1, v18")
        a.I("v_bfe_u32 v19, v1, 3, 1")
        inv = [4, 0, 1, 2, 3, 5]
        for s_ in range(3):
            a.I(f"s_cmp_eq_u32 s63, 0")
            a.I(f"s_cselect_b32 s54, {2*s_}, {2*s_+1}")
            a.I(f"s_cselect_b32 s55, {inv[2*s_]}, {inv[2*s_+1]}")
            a.I(f"v_mov_b32 v26, s54")
            a.I(f"v_mov_b32 v27, s55")
            a.I(f"v_cndmask_b32 v26, v26, v27, vcc")
            a.I(f"v_xor_b32 v26, v26, v19")
            a.I(f"v_lshl_add_u32 v{WF1[s_]}, v26, 6, v17")
            a.I(f"v_add_u32 v{WF1[3+s_]}, 49152, v{WF1[s_]}")

    def reads(b, G, F, qkv=True):
        out = []
        if OPT.get("p1nocons"): return ["s_nop 0"]
        wv = WA + (b >> 1)
        for l in range(2):
            ks = 2*G + l
            out.append(f"ds_read_b128 {vr(F+4*l,4)}, v{XA+ks} offset:{b*8192}")
            for s in range(3):
                for rd in range(2):
                    if qkv or not OPT.get("w1perm", 0):
                        out.append(f"ds_read_b64_tr_b16 {vr(F+8+12*l+4*s+2*rd,2)}, v{wv} offset:{(b&1)*24576 + ks*6144 + rd*1536 + s*128}")
                    else:
                        out.append(f"ds_read_b64_tr_b16 {vr(F+8+12*l+4*s+2*rd,2)}, v{WF1[3*(b>>1)+s]} offset:{(b&1)*24576 + ks*6144 + rd*1536}")
        return out
    def mfmas(F, qkv):
        out = []
        if OPT.get("p1nocons") or OPT.get("p1nomfma"): return ["s_nop 0"]
        for l in range(2):
            for s in range(3):
                X, W = F+4*l, F+8+12*l+4*s
                out.append(MF(ACC+16*s, X, W, ACC+16*s) if (qkv and s == 2) else MF(ACC+16*s, W, X, ACC+16*s))
        return out
    def inter(mf, rd):
        out = []
        per = OPT.get("iper", [4, 4, 3, 3, 0, 0])
        if len(mf) != 6: return mf + rd
        k = 0
        for i, m in enumerate(mf):
            out.append(m)
            out += rd[k:k+per[i]]
            k += per[i]
        assert k >= len(rd)
        return out
    def stage_loop(tag, qkv):
        a.I("s_mov_b32 s65, 0x8000")
        a.L(f"L_loop_{tag}")
        fap = OPT.get("fapos", 2)
        for b in range(4):
            a.I("s_waitcnt lgkmcnt(0)")
            a.I(J(inter(mfmas(FA, qkv), reads(b, 1, FB, qkv))))
            if (not qkv) and b == (fap & 3):
                if fap >= 4:
                    a.I("s_cmp_lt_i32 s65, 0")
                    a.I(f"s_cbranch_scc0 L_nodrain")
                a.I("s_waitcnt vmcnt(0)")
                if fap >= 4: a.L("L_nodrain")
            a.I("s_waitcnt lgkmcnt(0)")
            if b == 3:
                if not qkv:
                    a.I("s_cmp_lt_i32 s65, 0")
                    a.I(f"s_cbranch_scc1 L_last_{tag}")
                for ks in range(4):
                    a.I(f"v_add_u32 v{XA+ks}, s65, v{XA+ks}")
            stamp_dyn(a)
            a.I("s_barrier")
            stamp_dyn(a)
            if qkv and b == 3:
                a.I("s_cmp_lt_i32 s65, 0")
                a.I("s_cbranch_scc1 L_qtail")
            a.I(J(inter(mfmas(FB, qkv), reads((b+1) % 4, 0, FA, qkv))))
        if qkv:
            a.I("s_mov_b32 s65, 0xffff8000")
            a.I(f"s_branch L_loop_{tag}")
            a.L("L_qtail")
            a.I(J(inter(mfmas(FB, qkv), reads(0, 0, FA, False))))
        else:
            a.I("s_mov_b32 s65, 0xffff8000")
            a.I(f"s_branch L_loop_{tag}")
        if not qkv:
            a.L(f"L_last_{tag}")
            a.I(J(mfmas(FB, qkv)))

    if OPT.get("pflate"):
        for i in range(OPT["pflate"]):
            a.I("s_sleep 8")
        l2_prefetch(a, 0)
    if OPT.get("pfw1early"):
        l2_prefetch(a, 1)
    a.I("s_barrier")
    stamp(a, "B0")
    if STAMPS and OPT.get("fine"): a.I("s_mov_b32 s87, 24")
    if not OPT.get("nopf") and not OPT.get("pfw1early") and not OPT.get("nopfw1", 1):
        l2_prefetch(a, 1)
    if OPT.get("w1late"):
        lw1 = lab("pw1")
        a.I(f"s_cmp_lg_u32 s{S_W}, 2")
        a.I(f"s_cbranch_scc1 {lw1}")
        a.I("v_lshlrev_b32 v20, 7, v1")
        srd(a, RC, S_W1, 512*2752)
        a.I("s_mul_i32 s54, s2, 5504")
        a.I("s_mov_b32 exec_hi, 0xfff")
        a.I(f"buffer_load_dword v24, v20, {S4(RC)}, s54 offen")
        a.I("s_mov_b64 exec, -1")
        a.L(lw1)
    if OPT.get("pfw2") == 2:
        lw = lab("pw2")
        a.I(f"s_cmp_lg_u32 s{S_W}, 3")
        a.I(f"s_cbranch_scc1 {lw}")
        glob_w2(a)
        a.L(lw)
    a.I(J(reads(0, 0, FA)))
    stage_loop("q", True)
    stamp(a, "qloop")
    srd(a, RA, S_WS, VF + 2*MB)
    a.I(f"s_lshl_b32 s54, s{S_RB}, 1")
    a.I("s_add_u32 s54, s54, s64")
    a.I(f"s_lshl_b32 s55, s{S_CG}, 2")
    a.I("s_lshl_b32 s56, s63, 1")
    a.I("s_add_u32 s55, s55, s56")
    a.I("s_lshl_b32 s55, s55, 6")
    a.I("s_add_u32 s54, s54, s55")
    a.I("s_lshl_b32 s54, s54, 10")
    a.I("v_lshlrev_b32 v3, 4, v1")
    a.I("v_bfe_u32 v4, v1, 4, 1")
    a.I("v_lshlrev_b32 v4, 16, v4")
    a.I(f"v_lshl_add_u32 v4, v{H}, 8, v4")
    a.I("v_and_b32 v5, 15, v1")
    a.I("v_lshl_add_u32 v4, v5, 4, v4")
    a.I(f"s_mov_b32 s56, {hex(f2u(QSCALE))}")
    a.I("s_waitcnt vmcnt(0)")
    a.I("s_nop 4")
    for idx, s in enumerate((1, 2, 0)):
        d = ACC + 16*s
        if s == 0:
            for i in range(16):
                a.I(f"v_mul_f32 v{d+i}, s56, v{d+i}")
        for j in range(8):
            a.I(f"v_cvt_pk_bf16_f32 v{d+j}, v{d+2*j}, v{d+2*j+1}")
        if s < 2:
            for hh in range(2):
                a.I(f"s_add_u32 s55, s54, {(KF if s else QF) + hh*65536}")
                a.I(f"buffer_store_dwordx4 {vr(d+4*hh,4)}, v3, {S4(RA)}, s55 offen sc1")
        else:
            a.I(f"s_add_u32 s55, s54, {VF}")
            for u in range(2):
                a.I(f"buffer_store_dwordx4 {vr(d+4*u,4)}, v4, {S4(RA)}, s55 offen offset:{u*512} sc1")
    a.I("s_nop 1")
    for s in range(3):
        for q in range(4):
            r = B1 + (s*4+q)*2
            d = ACC + s*16 + q*4
            a.I(f"v_lshlrev_b32 v{d}, 16, v{r}")
            a.I(f"v_and_b32 v{d+1}, 0xffff0000, v{r}")
            a.I(f"v_lshlrev_b32 v{d+2}, 16, v{r+1}")
            a.I(f"v_and_b32 v{d+3}, 0xffff0000, v{r+1}")
    stage_loop("f", False)
    a.I("s_barrier")
    stamp(a, "floop")
    srd_off(a, RA, S_WS, HF, HF_SIZE)
    a.I(f"s_lshl_b32 s54, s{S_RB}, 1")
    a.I("s_add_u32 s54, s54, s64")
    a.I(f"s_add_u32 s55, s{S_START}, s63")
    a.I("s_lshl_b32 s55, s55, 7")
    a.I("s_add_u32 s54, s54, s55")
    a.I("s_lshl_b32 s54, s54, 10")
    a.I("v_lshlrev_b32 v3, 4, v1")
    a.I("s_nop 4")
    HP = 120
    defer = OPT.get("hdefer", 1)
    for s in range(3):
        d = ACC + 16*s
        for i in range(16):
            a.I(f"v_max_f32 v{d+i}, 0, v{d+i}")
        for i in range(16):
            a.I(f"v_mul_f32 v{d+i}, v{d+i}, v{d+i}")
        for j in range(8):
            a.I(f"v_cvt_pk_bf16_f32 v{(HP+8*s if defer else d)+j}, v{d+2*j}, v{d+2*j+1}")
    if defer:
        a.I("s_mov_b32 s83, s54")
    else:
        if OPT.get("hlate", 1):
            lds_spin(a, M_KV, 4, 20, 21, 0)
        for s in range(3):
            d = ACC + 16*s
            for uu in range(2):
                a.I(f"s_add_u32 s55, s54, {(4*s+uu)*65536}")
                a.I(f"buffer_store_dwordx4 {vr(d+4*uu,4)}, v3, {S4(RA)}, s55 offen sc1")
    a.I("s_nop 1")
    a.I("s_branch L_attn")

def aux_side_issue(a):
    a.I("s_sub_u32 s66, s67, 4")
    a.I(f"s_lshl_b32 s54, s2, 2")
    a.I("s_or_b32 s54, s54, s66")
    a.I("s_cmp_lg_u32 s54, 0")
    a.I("s_cbranch_scc1 L_aux1")
    srd(a, RD, S_DBG, 256)
    a.I("s_memrealtime s[54:55]")
    a.I("s_waitcnt lgkmcnt(0)")
    a.I("s_or_b32 s85, s54, 1")
    a.I("v_mov_b32 v8, s85")
    a.I("v_mov_b32 v10, 0")
    a.I("s_mov_b64 exec, 1")
    a.I(f"buffer_store_dword v8, v10, {S4(RD)}, 0 offen sc1")
    a.I("s_mov_b64 exec, -1")
    a.L("L_aux1")
    a.I(f"s_lshl_b32 s54, s{S_RB}, 6")
    a.I(f"s_lshl_b32 s55, s{S_CG}, 3")
    a.I("s_add_u32 s54, s54, s55")
    a.I("s_lshl_b32 s55, s66, 1")
    a.I("s_add_u32 s86, s54, s55")
    return 0

def aux_side_loads(a):
    a.I("s_lshl_b32 s54, s86, 10")
    srd_off(a, RD, S_AX, "s54", 2048)
    a.I("v_and_b32 v2, 31, v1")
    a.I("v_lshlrev_b32 v2, 5, v2")
    a.I("v_lshrrev_b32 v3, 5, v1")
    a.I("v_lshl_add_u32 v4, v3, 10, v2")
    for i in range(2):
        a.I(f"buffer_load_dwordx4 {vr(32+4*i,4)}, v4, {S4(RD)}, 0 offen offset:{16*i}")
    srd(a, RD, S_GW, 1024)
    for i in range(2):
        a.I(f"buffer_load_dwordx4 {vr(40+4*i,4)}, v2, {S4(RD)}, 0 offen offset:{16*i}")
    n = 4
    if OPT.get("codepf", 1) and not OPT.get("codeearly", 1):
        a.I("s_getpc_b64 s[52:53]")
        a.L("L_pc")
        a.I(f"s_sub_u32 s52, s52, L_pc-{KN}")
        a.I("s_subb_u32 s53, s53, 0")
        a.I("s_mul_i32 s54, s66, 6144")
        a.I("v_lshlrev_b32 v5, 7, v1")
        a.I("v_add_u32 v5, s54, v5")
        a.I(f"v_min_u32 v5, L_code_end-{KN}-4, v5")
        a.I("s_mov_b32 exec_hi, 0xffff")
        a.I("global_load_dword v116, v5, s[52:53]")
        a.I("s_mov_b64 exec, -1")
        n += 1
    return n

def aux_nonce_issue(a):
    srd(a, RD, S_DBG, 256)
    a.I("v_mov_b32 v10, 0")
    a.I(f"buffer_load_dword v8, v10, {S4(RD)}, 0 offen sc1")
    return 1

def aux_nonce_take(a):
    a.I(f"v_readfirstlane_b32 s{S_NONCE}, v8")
    a.I("s_mov_b32 s50, 0x40000")
    a.L("L_nonce")
    a.I(f"s_cmp_lg_u32 s{S_NONCE}, 0")
    a.I("s_cbranch_scc1 L_nonce_ok")
    a.I("s_sub_u32 s50, s50, 1")
    a.I("s_cmp_eq_u32 s50, 0")
    a.I("s_cbranch_scc1 L_nonce_ok")
    srd(a, RD, S_DBG, 256)
    a.I(f"buffer_load_dword v8, v10, {S4(RD)}, 0 offen sc1")
    a.I("s_waitcnt vmcnt(0)")
    a.I(f"v_readfirstlane_b32 s{S_NONCE}, v8")
    a.I("s_branch L_nonce")
    a.L("L_nonce_ok")

def aux_gate(a):
    if OPT.get("p1noprod"): a.I("s_waitcnt vmcnt(0)")
    a.I("v_mov_b32 v24, 0")
    for i in range(8):
        a.I(f"v_dot2c_f32_bf16 v24, v{32+i}, v{40+i}")
    a.I("s_nop 3")
    for sh in (1, 2, 4, 8):
        a.I(f"v_add_f32_dpp v24, v24, v24 row_shr:{sh} row_mask:0xf bank_mask:0xf")
        a.I("s_nop 1")
    a.I("v_add_f32_dpp v24, v24, v24 row_bcast:15 row_mask:0xa bank_mask:0xf")
    a.I("s_nop 1")
    a.I("v_cvt_pk_bf16_f32 v24, v24, v24")
    a.I("v_and_b32 v24, 0xffff0000, v24")
    a.I(f"v_mul_f32 v24, {hex(f2u(-1.4426950408889634))}, v24")
    a.I("v_exp_f32 v24, v24")
    a.I("s_nop 0")
    a.I("v_add_f32 v24, 1.0, v24")
    a.I("v_rcp_f32 v24, v24")
    a.I("s_nop 0")
    a.I("v_cvt_pk_bf16_f32 v24, v24, v24")
    a.I("v_and_b32 v24, 0xffff0000, v24")
    srd_off(a, RD, S_WS, GO, 8192)
    a.I("s_lshl_b32 s54, s86, 2")
    a.I("v_lshrrev_b32 v3, 5, v1")
    a.I("v_lshlrev_b32 v3, 2, v3")
    a.I("s_mov_b32 s52, 0x80000000")
    a.I("s_mov_b32 s53, 0x80000000")
    a.I("s_mov_b64 exec, s[52:53]")
    a.I(f"buffer_store_dword v24, v3, {S4(RD)}, s54 offen sc1")
    a.I("s_mov_b64 exec, -1")

def aux_publish_fa(a):
    a.I("s_cmp_lg_u32 s66, 0")
    a.I("s_cbranch_scc1 L_aux2")
    srd_off(a, RD, S_WS, FLG, FLG_SIZE)
    a.I(f"s_lshl_b32 s54, s{S_CG}, 7")
    a.I(f"s_lshl_b32 s55, s{S_RB}, 2")
    a.I("s_add_u32 s54, s54, s55")
    a.I(f"s_add_u32 s54, s54, {FA_OFF}")
    a.I(f"v_mov_b32 v8, s{S_NONCE}")
    a.I(f"v_mov_b32 v10, 0")
    a.I("s_mov_b64 exec, 1")
    a.I(f"buffer_store_dword v8, v10, {S4(RD)}, s54 offen sc1")
    a.I("s_mov_b64 exec, -1")
    stamp(a, "FApub")
    a.L("L_aux2")

def aux_zero_misc(a):
    a.I("s_cmp_lg_u32 s66, 1")
    a.I("s_cbranch_scc1 L_aux3")
    a.I(f"v_lshlrev_b32 v10, 2, v1")
    if L_MISC: a.I(f"v_add_u32 v10, {L_MISC}, v10")
    a.I("v_mov_b32 v9, 0")
    a.I("ds_write_b32 v10, v9")
    a.I("s_waitcnt lgkmcnt(0)")
    a.I("v_mov_b32 v10, 0")
    a.L("L_aux3")

def aux_share_nonce(a):
    a.I("s_cmp_lg_u32 s66, 0")
    a.I("s_cbranch_scc1 L_aux4")
    a.I(f"v_mov_b32 v9, {L_MISC + 128}")
    a.I(f"v_mov_b32 v11, s{S_NONCE}")
    a.I("ds_write_b32 v9, v11")
    a.I("s_waitcnt lgkmcnt(0)")
    a.L("L_aux4")

def aux_fa_probe(a, second):
    if second:
        a.I("s_mov_b32 exec_hi, 0")
        a.I(f"buffer_load_dword v26, v9, {S4(RC)}, s88 offen sc1")
        a.I("s_mov_b64 exec, -1")
        return
    srd_off(a, RC, S_WS, FLG, FLG_SIZE)
    a.I(f"s_lshr_b32 s88, s{S_HD}, 2")
    a.I("s_lshl_b32 s88, s88, 7")
    a.I(f"s_add_u32 s88, s88, {FA_OFF}")
    a.I("v_lshlrev_b32 v9, 2, v1")
    a.I("s_mov_b32 exec_hi, 0")
    a.I(f"buffer_load_dword v11, v9, {S4(RC)}, s88 offen sc1")
    a.I("s_mov_b64 exec, -1")
    VL = 4
    a.I(f"v_lshlrev_b32 v{VL}, 4, v1")
    a.I(f"s_lshl_b32 s54, s{S_HD}, 16")
    a.I(f"s_add_u32 s55, s54, {KF}")
    srd_off(a, RA, S_WS, "s55", 65536)
    a.I(f"s_add_u32 s55, s54, {VF}")
    srd_off(a, RB, S_WS, "s55", 65536)
    a.I(f"s_add_u32 s55, s54, {QF}")
    srd_off(a, RD, S_WS, "s55", 65536)
    a.I(f"s_lshl_b32 s54, s{S_QB}, 3")
    a.I("s_lshl_b32 s55, s66, 1")
    a.I("s_add_u32 s54, s54, s55")
    a.I("s_lshl_b32 s54, s54, 10")
    a.I("s_lshl_b32 s55, s66, 11")
    a.I(f"s_add_u32 s55, s55, {L_RING}")

def aux_after_e1(a):
    a.I("s_mov_b32 s67, s66")
    a.I("s_setprio 3")
    stamp(a, "E2")
    a.I("s_mov_b32 exec_hi, 0")
    a.I("s_waitcnt vmcnt(1)")
    a.I(f"v_cmp_ne_u32 vcc, s{S_NONCE}, v11")
    a.I("s_cbranch_vccz L_aux5a")
    a.I("s_waitcnt vmcnt(0)")
    a.I(f"v_cmp_ne_u32 vcc, s{S_NONCE}, v26")
    a.L("L_aux5a")
    a.I("s_mov_b64 exec, -1")
    a.I("s_cbranch_vccz L_aux5")
    poll(a, RC, 32, 9, 11, "s88", OPT.get("faslp", 2))
    a.L("L_aux5")
    stamp(a, "FAok")
    VL = 4
    for t in range(2):
        a.I(f"s_add_u32 m0, s55, {t*1024}")
        a.I(f"s_add_u32 s56, s54, {t*1024}")
        a.I(f"buffer_load_dwordx4 v{VL}, {S4(RD)}, s56 offen sc1 lds")
    a.I("s_lshl_b32 s54, s67, 10")
    def kvchunks(cs):
        for c in cs:
            a.I(f"s_add_u32 s55, s54, {c*4096}")
            a.I(f"s_add_u32 m0, s55, {L_K}")
            a.I(f"s_add_u32 s56, s55, {L_V}")
            a.I(f"buffer_load_dwordx4 v{VL}, {S4(RA)}, s55 offen sc1 lds")
            a.I("s_mov_b32 m0, s56")
            a.I("s_nop 0")
            a.I(f"buffer_load_dwordx4 v{VL}, {S4(RB)}, s55 offen sc1 lds")
    m1x = OPT.get("m1x", 0)
    kvchunks(range(0, 2 + m1x))
    a.I(f"s_waitcnt vmcnt({2*m1x})")
    lds_add1(a, M_KV, 8, 9)
    stamp(a, "KV1")
    kvchunks(range(2 + m1x, 16))
    a.I("s_lshr_b32 s53, s2, 3")
    srd(a, RA, S_W2, 1376*1024)
    srd(a, RB, S_WO, 512*1024)
    a.I("s_mul_i32 s54, s53, 44032")
    a.I("s_lshl_b32 s55, s67, 10")
    a.I("s_add_u32 s54, s54, s55")
    a.I("s_waitcnt vmcnt(0)")
    lds_add1(a, M_KV, 8, 9)
    stamp(a, "KV2")
    a.I("v_lshlrev_b32 v10, 7, v1")
    a.I("s_lshl_b32 s55, s67, 13")
    a.I("s_mul_i32 s54, s53, 44032")
    a.I("s_add_u32 s54, s54, s55")
    a.I(f"buffer_load_dword v40, v10, {S4(RA)}, s54 offen")
    a.I("s_add_u32 s54, s54, 32768")
    a.I(f"buffer_load_dword v41, v10, {S4(RA)}, s54 offen")
    a.I("s_lshl_b32 s54, s53, 14")
    a.I("s_lshl_b32 s55, s67, 12")
    a.I("s_add_u32 s54, s54, s55")
    a.I("s_mov_b32 exec_hi, 0")
    a.I(f"buffer_load_dword v42, v10, {S4(RB)}, s54 offen")
    a.I("s_mov_b64 exec, -1")

def ffn2_p3(a):
    WF, HR, ACC2, BPR = 24, 40, 104, 8
    VH, VW, VA0, VA1 = 2, 3, 4, 5
    a.I("s_cmp_lg_u32 s67, 0")
    a.I("s_cbranch_scc1 L_f1")
    lds_spin(a, M_HST, 4, 8, 9, OPT.get('fslp', 1))
    lds_spin(a, M_KV, 8, 8, 9)
    a.I(f"s_lshl_b32 s54, s{S_RB}, 7")
    a.I(f"s_lshl_b32 s55, s{S_CG}, 2")
    a.I("s_add_u32 s54, s54, s55")
    a.I(f"s_add_u32 s54, s54, {FH_OFF}")
    flag_store(a, "s54", 8, 10)
    a.I(f"s_lshl_b32 s54, s{S_HD}, 7")
    a.I(f"s_add_u32 s54, s54, {FH_OFF}")
    a.I("v_lshlrev_b32 v8, 2, v1")
    poll(a, RC, 8, 8, 9, "s54", OPT.get("fhslp", 8))
    lds_add1(a, M_H, 8, 9)
    a.I("s_branch L_f2")
    a.L("L_f1")
    lds_spin(a, M_H, 1, 8, 9, OPT.get('fslp', 1))
    a.L("L_f2")
    lds_spin(a, M_QRD, 8, 8, 9, OPT.get('fslp', 1))
    stamp(a, "hready")
    if OPT.get("tailpf"):
        srd(a, RA, S_B2, 1024)
        a.I("v_lshlrev_b32 v10, 7, v1")
        a.I("s_mov_b32 exec_lo, 0xff")
        a.I("s_mov_b32 exec_hi, 0")
        a.I(f"buffer_load_dword v43, v10, {S4(RA)}, 0 offen")
        if OPT["tailpf"] > 1:
            srd(a, RA, S_OUT, 2*MB)
            a.I(f"s_lshl_b32 s54, s{S_HD}, 16")
            a.I("s_mov_b32 exec_lo, 1")
            a.I(f"buffer_load_dword v44, v10, {S4(RA)}, s54 offen")
        a.I("s_mov_b64 exec, -1")
    srd(a, RA, S_W2, 1376*1024)
    srd_off(a, RB, S_WS, HF, HF_SIZE)
    a.I(f"v_lshlrev_b32 v{VH}, 4, v1")
    dma_w_lane_off(a, VW, 1, 8, 9, 1024)
    a.I(f"s_lshl_b32 s54, s{S_QB}, 7")
    a.I(f"v_add_u32 v{VW}, s54, v{VW}")
    tr_lane_addr(a, VA0, 1, 8, 9, 4, 128)
    a.I("s_mul_i32 s68, s67, 6144")
    a.I(f"s_add_u32 s68, s68, {L_RING}")
    a.I(f"v_add_u32 v{VA0}, s68, v{VA0}")
    a.I(f"v_xor_b32 v{VA1}, 64, v{VA0}")
    a.I("s_mul_i32 s54, s67, 24")
    a.I("s_lshl_b32 s70, s54, 14")
    a.I("s_lshl_b32 s71, s54, 16")
    a.I(f"s_lshl_b32 s55, s{S_HD}, 11")
    a.I("s_add_u32 s71, s71, s55")
    for i in range(64):
        a.I(f"v_mov_b32 v{ACC2+i}, 0")
    a.I("s_waitcnt vmcnt(0)")
    def fissue(slot):
        return [f"s_add_u32 m0, s68, {slot*2048}",
                f"s_add_u32 s69, s70, 8192",
                f"buffer_load_dwordx4 v{VW}, {S4(RA)}, s70 offen lds",
                f"s_add_u32 m0, s68, {slot*2048+1024}",
                f"s_add_u32 s70, s70, 16384",
                f"buffer_load_dwordx4 v{VW}, {S4(RA)}, s69 offen lds",
                f"buffer_load_dwordx4 {vr(HR+slot*8,4)}, v{VH}, {S4(RB)}, s71 offen sc1",
                f"buffer_load_dwordx4 {vr(HR+slot*8+4,4)}, v{VH}, {S4(RB)}, s71 offen offset:1024 sc1",
                f"s_add_u32 s71, s71, 65536"]
    def trr(F, off):
        out = []
        for ct, va in ((0, VA0), (1, VA1)):
            for rd in range(2):
                out.append(f"ds_read_b64_tr_b16 {vr(F+4*ct+2*rd,2)}, v{va} offset:{off + rd*1024}")
        return out
    N2 = OPT.get("n2", 0)
    a.I("s_cmp_eq_u32 s67, 3")
    a.I(f"s_cselect_b32 s72, {5-N2}, {8-N2}")
    for slot in range(3):
        a.I(J(fissue(slot)))
    a.I(f"s_setprio {OPT.get('ffnprio', 0)}")
    if OPT.get("noffn"): a.I("s_branch L_fskip")
    a.L("L_floop")
    for slot in range(3):
        a.I("s_waitcnt vmcnt(8)")
        a.I(J(trr(WF, slot*2048)))
        a.I("s_waitcnt lgkmcnt(0)")
        fi = fissue(slot)
        mf = lambda ct, rt: MF(ACC2 + (ct*2+rt)*16, WF+4*ct, HR+slot*8+4*rt, ACC2 + (ct*2+rt)*16)
        if OPT.get("fspread", 1):
            a.I(mf(0, 0)); a.I(J(fi[0:3]))
            a.I(mf(1, 0)); a.I(J(fi[3:6]))
            a.I(mf(0, 1)); a.I(fi[6])
            a.I(mf(1, 1)); a.I(J(fi[7:]))
        else:
            for ct in range(2):
                for rt in range(2):
                    a.I(mf(ct, rt))
            a.I(J(fi))
    a.I("s_sub_u32 s72, s72, 1")
    a.I("s_cmp_lg_u32 s72, 0")
    a.I("s_cbranch_scc1 L_floop")
    a.L("L_fskip")
    a.I("s_setprio 3")
    a.I("s_waitcnt vmcnt(0)")
    lds_add1(a, M_FFN, 8, 9)
    stamp(a, "ffn2")
    srd_off(a, RA, S_WS, GO, 8192)
    srd(a, RB, S_B2, 1024)
    a.I("s_and_b32 s73, s67, 1")
    a.I("s_lshr_b32 s74, s67, 1")
    a.I(f"s_lshl_b32 s75, s{S_HD}, 6")
    a.I("s_lshl_b32 s54, s73, 5")
    a.I("s_add_u32 s75, s75, s54")
    a.I("s_lshl_b32 s54, s75, 2")
    a.I("v_and_b32 v8, 31, v1")
    a.I("v_lshlrev_b32 v8, 2, v8")
    a.I(f"buffer_load_dword v39, v8, {S4(RA)}, s54 offen sc1")
    a.I(f"s_lshl_b32 s54, s{S_QB}, 6")
    a.I("s_lshl_b32 s55, s74, 5")
    a.I("s_add_u32 s54, s54, s55")
    a.I("s_lshl_b32 s54, s54, 1")
    a.I("v_lshrrev_b32 v8, 5, v1")
    a.I("v_lshlrev_b32 v8, 3, v8")
    for q in range(4):
        a.I(f"buffer_load_dwordx2 v[{42+2*q}:{43+2*q}], v8, {S4(RB)}, s54 offen offset:{q*16}")
    tr_lane_addr(a, VA0, 1, 32, 33, 4, 128)
    a.I("s_lshl_b32 s54, s74, 6")
    a.I(f"v_xor_b32 v{VA0}, s54, v{VA0}")
    a.I(f"v_add_u32 v{VA0}, {L_K}, v{VA0}")
    a.I("s_lshl_b32 s54, s73, 15")
    a.I(f"s_add_u32 s54, s54, {L_V}")
    a.I(f"v_add_u32 v{VA1}, s54, v{VH}")
    a.I("s_lshl_b32 s58, s75, 10")
    a.I(f"s_lshl_b32 s59, s{S_QB}, 7")
    a.I("s_add_u32 s58, s58, s59")
    a.I("s_lshl_b32 s59, s74, 6")
    a.I("s_add_u32 s58, s58, s59")
    a.I("v_and_b32 v32, 31, v1")
    a.I("v_lshlrev_b32 v32, 10, v32")
    a.I("v_lshrrev_b32 v33, 5, v1")
    a.I("v_lshl_add_u32 v32, v33, 4, v32")
    a.I("s_lshl_b32 s68, s67, 14")
    a.I(f"s_add_u32 s54, s68, {L_V}")
    a.I(f"v_add_u32 v34, s54, v{VH}")
    a.I("s_lshl_b32 s54, s67, 12")
    a.I(f"s_add_u32 s54, s54, {L_V}")
    a.I(f"v_add_u32 v35, s54, v{VH}")
    srd(a, RD, S_WO, 512*1024)
    a.I("s_lshl_b32 s56, s67, 14")
    a.I(f"s_add_u32 s56, s56, {L_K}")
    a.I("s_lshl_b32 s57, s67, 17")
    a.I("s_waitcnt vmcnt(0)")
    a.I("v_sub_f32 v41, 1.0, v39")
    a.I("v_cvt_pk_bf16_f32 v41, v41, v41")
    a.I("v_and_b32 v41, 0xffff0000, v41")
    for q in range(4):
        a.I(f"v_lshlrev_b32 v{BPR+4*q}, 16, v{42+2*q}")
        a.I(f"v_and_b32 v{BPR+4*q+1}, 0xffff0000, v{42+2*q}")
        a.I(f"v_lshlrev_b32 v{BPR+4*q+2}, 16, v{43+2*q}")
        a.I(f"v_and_b32 v{BPR+4*q+3}, 0xffff0000, v{43+2*q}")
    lds_spin(a, M_ATT, 4, 36, 37, OPT.get('attslp', 1))
    stamp(a, "attdone")
    for i in range(16):
        a.I(f"ds_write_b128 v34, {vr(ACC2+4*i,4)} offset:{i*1024}")
    a.I("s_waitcnt lgkmcnt(0)")
    lds_add1(a, M_T1, 36, 37)
    for ks in range(8):
        for n in range(2):
            a.I(f"s_add_u32 m0, s56, {ks*2048+n*1024}")
            a.I(f"s_add_u32 s69, s57, {ks*16384+n*8192}")
            a.I(f"buffer_load_dwordx4 v{VW}, {S4(RD)}, s69 offen lds")
    lds_spin(a, M_T1, 4, 36, 37)
    for p in range(4):
        for q in range(4):
            a.I(f"ds_read_b128 {vr(ACC2+p*16+q*4,4)}, v35 offset:{p*16384+q*1024}")
    a.I("s_waitcnt lgkmcnt(0)")
    for i in range(16):
        a.I(f"v_add_f32 v{ACC2+i}, v{ACC2+i}, v{ACC2+16+i}")
        a.I(f"v_add_f32 v{ACC2+32+i}, v{ACC2+32+i}, v{ACC2+48+i}")
    for i in range(16):
        a.I(f"v_add_f32 v{ACC2+i}, v{ACC2+i}, v{ACC2+32+i}")
    for i in range(16):
        a.I(f"v_add_f32 v{BPR+i}, v{ACC2+i}, v{BPR+i}")
    for i in range(16):
        a.I(f"v_mul_f32 v{BPR+i}, v{BPR+i}, v41")
    FR = 40
    def wreads(ks):
        F = FR + (ks % 8) * 8
        return [f"ds_read_b64_tr_b16 {vr(F,2)}, v{VA0} offset:{ks*2048}",
                f"ds_read_b64_tr_b16 {vr(F+2,2)}, v{VA0} offset:{ks*2048+1024}"]
    def oread(ks):
        F = FR + (ks % 8) * 8
        return [f"ds_read_b128 {vr(F+4,4)}, v{VA1} offset:{ks*1024}"]
    srd_off(a, RB, S_WS, OF, 2*MB)
    srd(a, RA, S_OUT, 2*MB)
    a.I("s_cmp_lg_u32 s67, 0")
    a.I("s_cbranch_scc1 L_f4")
    a.I(f"s_lshl_b32 s54, s{S_HD}, 8")
    a.I(f"s_add_u32 s54, s54, {FO_OFF}")
    a.I("v_lshlrev_b32 v121, 2, v1")
    poll(a, RC, 64, 121, 122, "s54", OPT.get("foslp", 2))
    a.L("L_f4")
    a.I(f"s_lshl_b32 s54, s{S_HD}, 16")
    a.I("s_lshl_b32 s55, s67, 11")
    a.I("s_add_u32 s54, s54, s55")
    a.I(f"s_add_u32 s55, s55, {L_V}")
    a.I("s_waitcnt vmcnt(0)")
    a.I("s_barrier")
    stamp(a, "T2")
    def odma(ch):
        L = []
        for hh in range(2):
            for rt in range(2):
                off = rt*32768 + ch*8192 + hh*1024
                L.append([f"s_add_u32 m0, s55, {off}", f"s_add_u32 s56, s54, {off}",
                          f"buffer_load_dwordx4 v{VH}, {S4(RB)}, s56 offen sc1 lds"])
        return L
    for ch in range(4):
        for x in odma(ch): a.I(J(x))
        if ch == 0:
            for ks in range(8): a.I(J(wreads(ks)))
            a.I("s_waitcnt lgkmcnt(8)")
    for ch in range(4):
        a.I(f"s_waitcnt vmcnt({4*(3-ch)}) lgkmcnt(0)")
        a.I("s_barrier")
        for ks in range(8*ch, 8*ch+8): a.I(J(oread(ks)))
        for i in range(8):
            ks = 8*ch + i
            a.I(f"s_waitcnt lgkmcnt({7 + i if ch < 3 else 7 - i})")
            F = FR + i*8
            a.I(MF(ACC2, F, F+4, ACC2 if ks else None))
            if ch < 3: a.I(J(wreads(ks+8)))
    a.I("s_nop 15")
    stamp(a, "p3mm")
    for i in range(16):
        a.I(f"v_fma_f32 v{ACC2+i}, v{ACC2+i}, v39, v{BPR+i}")
    for j in range(8):
        a.I(f"v_cvt_pk_bf16_f32 v{ACC2+j}, v{ACC2+2*j}, v{ACC2+2*j+1}")
    a.I("s_nop 1")
    a.I(f"v_permlane32_swap_b32 v{ACC2}, v{ACC2+2}")
    a.I(f"v_permlane32_swap_b32 v{ACC2+1}, v{ACC2+3}")
    a.I(f"v_permlane32_swap_b32 v{ACC2+4}, v{ACC2+6}")
    a.I(f"v_permlane32_swap_b32 v{ACC2+5}, v{ACC2+7}")
    ofl = {0: "", 1: " sc1", 2: " nt", 3: " sc0 sc1"}[OPT.get("outfl", 0)]
    a.I(f"buffer_store_dwordx4 {vr(ACC2,4)}, v32, {S4(RA)}, s58 offen{ofl}")
    a.I(f"buffer_store_dwordx4 {vr(ACC2+4,4)}, v32, {S4(RA)}, s58 offen offset:32{ofl}")
    stamp_flush(a, "ffn")
    a.I("s_endpgm")

def attention(a):
    a.L("L_attn")
    stamp(a, "attn0")
    QA, QB = 8, 12
    KB = [16, 20]; VB = [24, 32]
    S0, S1, OA, OB = 40, 56, 72, 88
    VK, VV, VL = 2, 3, 4
    T0, T1, T2 = 104, 105, 106
    VKN, VVN, VVB, VCH, VONE, VNX = 107, 108, 109, 110, 111, 5
    VX128, VX32, VPAIR, VPFLAG, VTF = 144, 145, 146, 147, 148
    a.I(f"s_and_b32 s63, s{S_W}, 3")
    a.I(f"s_lshr_b32 s64, s{S_W}, 2")
    a.I(f"v_lshlrev_b32 v{VL}, 4, v1")
    a.I(f"v_lshrrev_b32 v{T0}, 5, v1")
    a.I(f"v_and_b32 v{T1}, 15, v1")
    a.I(f"v_lshlrev_b32 v{T1}, 4, v{T1}")
    a.I(f"v_lshl_add_u32 v{VVB}, v{T0}, 8, v{T1}")
    a.I(f"v_add_u32 v{VVB}, {L_V}, v{VVB}")
    a.I(f"v_add_u32 v{VKN}, {L_K}, v{VL}")
    a.I("s_lshl_b32 s54, s64, 12")
    a.I(f"v_add_u32 v{VK}, s54, v{VL}")
    a.I(f"v_add_u32 v{VV}, s54, v{VVB}")
    a.I("s_lshl_b32 s54, s63, 2")
    a.I(f"s_add_u32 s54, s54, {M_CH}")
    a.I(f"v_mov_b32 v{VCH}, s54")
    a.I(f"v_mov_b32 v{VONE}, 1")
    a.I("s_mov_b32 s74, 0x0000ffff")
    a.I("s_mov_b32 s75, 0x0000ffff")
    a.I("s_mov_b32 s77, 0")
    a.I(f"s_lshl_b32 s66, s{S_QB}, 3")
    a.I("s_lshl_b32 s54, s63, 1")
    a.I("s_add_u32 s66, s66, s54")
    a.I("s_lshl_b32 s54, s63, 11")
    a.I(f"s_add_u32 s54, s54, {L_RING}")
    a.I(f"v_add_u32 v{T2}, s54, v{VL}")
    a.I(f"v_and_b32 v{T0}, 31, v1")
    a.I(f"v_cmp_eq_u32 vcc, 16, v{T0}")
    a.I(f"v_mov_b32 v{T1}, 0x3f803f80")
    a.I("s_nop 1")
    a.I(f"v_cndmask_b32 v{T0}, 0, v{T1}, vcc")
    for i in range(16):
        a.I(f"v_mov_b32 v{VB[0]+i}, v{T0}")
    a.I("s_lshl_b32 s54, s63, 2")
    a.I(f"s_add_u32 s55, s54, {M_PAIR}")
    a.I(f"s_add_u32 s76, s54, {M_PFLAG}")
    a.I(f"v_mov_b32 v{VPAIR}, s55")
    a.I(f"v_mov_b32 v{VPFLAG}, s76")
    a.I("s_mul_i32 s54, s63, 4608")
    a.I(f"s_add_u32 s54, s54, {L_XCH}")
    a.I(f"v_add_u32 v{VX128}, s54, v{VL}")
    a.I(f"v_lshlrev_b32 v{VX32}, 2, v1")
    a.I(f"v_add_u32 v{VX32}, s54, v{VX32}")
    a.I(f"v_mov_b32 v{VTF}, {L_MISC + 128}")
    a.I(f"ds_read_b32 v{VTF}, v{VTF}")
    a.I("s_waitcnt lgkmcnt(0)")
    a.I(f"v_readfirstlane_b32 s{S_NONCE}, v{VTF}")
    for i in range(16):
        a.I(f"v_mov_b32 v{OA+i}, 0")
        a.I(f"v_mov_b32 v{OB+i}, 0")
    lds_spin(a, M_KV, 4, T0, T1, 0)
    stamp(a, "kvok")
    a.I(f"ds_read_b128 {vr(QA,4)}, v{T2}")
    a.I(f"ds_read_b128 {vr(QB,4)}, v{T2} offset:1024")
    a.I("s_lshl_b32 s71, s64, 12")
    if STAMPS and OPT.get("fineattn"): a.I("s_mov_b32 s87, 24")
    a.I("s_mov_b32 s73, 0")

    def e_(S, i): return f"v_exp_f32 v{S+i}, v{S+i}"
    def c_(S, j): return f"v_cvt_pk_bf16_f32 v{S+j}, v{S+2*j}, v{S+2*j+1}"
    def tile(Sin, Sout, Qn, Kn, Ocur, Vcur_u0, Oprev, Vprev_u1, after_pv2, wait_s, after_s, wait_pv1, do_pv2=True, do_s=True):
        e = lambda i: e_(Sin, i)
        c = lambda j: c_(Sin, j)
        L = [e(0), e(1)]
        if do_pv2: L.append(MF(Oprev, Vprev_u1, Sout+4, Oprev))
        L += after_pv2
        L += [e(2), e(3), c(0), e(4), e(5), c(1)]
        L += wait_s
        if do_s: L.append(MF(Sout, Kn, Qn))
        L += after_s
        L += [e(6), e(7), c(2), e(8), e(9), c(3), e(10), e(11)]
        L += wait_pv1
        L.append(MF(Ocur, Vcur_u0, Sin, Ocur))
        L += [c(4), e(12), e(13), c(5), e(14), e(15), c(6), c(7)]
        return L
    fifo = []
    def dsr(tag, txt): fifo.append(tag); return txt
    def need(tag):
        idx = max(i for i, t in enumerate(fifo) if t == tag)
        return [f"s_waitcnt lgkmcnt({len(fifo) - 1 - idx})"]
    def vreads(t):
        kap = t & 1
        return ["s_mov_b64 exec, s[74:75]",
                dsr(("V", t), f"ds_read_b128 {vr(VB[kap],4)}, v{VV} offset:{t*1024}"),
                dsr(("V", t), f"ds_read_b128 {vr(VB[kap]+4,4)}, v{VV} offset:{t*1024+512}"),
                "s_mov_b64 exec, -1"]
    def kread(t): return [dsr(("K", t), f"ds_read_b128 {vr(KB[t & 1],4)}, v{VK} offset:{t*1024}")]
    a.raw(".p2align 6")
    a.L("L_aloop")
    if OPT.get("fineattn"):
        OPT["fine"] = 1; stamp_dyn(a); OPT["fine"] = 0
    a.I(f"v_add_u32 v{VK}, s71, v{VKN}")
    a.I(f"v_add_u32 v{VV}, s71, v{VVB}")
    L = kread(0) + vreads(0) + kread(1)
    L += need(("K", 0))
    L.append(MF(S0, KB[0], QA))
    a.I(J(L))
    a.I("s_nop 7")
    a.I("s_nop 3")
    body = []
    for t in range(4):
        kap = t & 1
        A = []
        Sin, Sout = S0, S1
        A += [e_(Sin, 0), e_(Sin, 1)]
        if t > 0: A.append(MF(OB, VB[kap^1]+4, Sout+4, OB))
        if t + 1 < 4: A += vreads(t+1)
        A += [e_(Sin, 2), e_(Sin, 3), c_(Sin, 0), e_(Sin, 4), e_(Sin, 5), c_(Sin, 1)]
        A.append(MF(Sout, KB[kap], QB))
        if t + 2 < 4: A += kread(t+2)
        A += [e_(Sin, 6), e_(Sin, 7), c_(Sin, 2), e_(Sin, 8), e_(Sin, 9), c_(Sin, 3), e_(Sin, 10), e_(Sin, 11)]
        A += need(("V", t))
        A.append(MF(OA, VB[kap], Sin, OA))
        A += [c_(Sin, 4), e_(Sin, 12), e_(Sin, 13), c_(Sin, 5), e_(Sin, 14), e_(Sin, 15), c_(Sin, 6), c_(Sin, 7)]
        Sin, Sout = S1, S0
        B = [e_(Sin, 0), e_(Sin, 1), MF(OA, VB[kap]+4, Sout+4, OA)]
        if t == 3:
            B += ["s_mov_b64 exec, 1", dsr(("G",), f"ds_add_rtn_u32 v{VNX}, v{VCH}, v{VONE}"), "s_mov_b64 exec, -1"]
        B += [e_(Sin, 2), e_(Sin, 3), c_(Sin, 0), e_(Sin, 4), e_(Sin, 5), c_(Sin, 1)]
        if t + 1 < 4:
            B += need(("K", t+1))
            B.append(MF(Sout, KB[kap^1], QA))
        B += [e_(Sin, 6), e_(Sin, 7), c_(Sin, 2), e_(Sin, 8), e_(Sin, 9), c_(Sin, 3), e_(Sin, 10), e_(Sin, 11)]
        B.append(MF(OB, VB[kap], Sin, OB))
        B += [c_(Sin, 4), e_(Sin, 12), e_(Sin, 13), c_(Sin, 5), e_(Sin, 14), e_(Sin, 15), c_(Sin, 6), c_(Sin, 7)]
        body += A + B
    a.I(J(body))
    a.I("s_waitcnt lgkmcnt(0)")
    a.I(f"v_readfirstlane_b32 s70, v{VNX}")
    a.I(MF(OB, VB[1]+4, S1+4, OB))
    a.I("s_add_u32 s70, s70, 2")
    a.I("s_lshl_b32 s71, s70, 12")
    if OPT.get("hdefer", 1):
        a.I("s_cmp_ge_u32 s73, 2")
        a.I("s_cbranch_scc1 L_aloop2")
        a.I("s_cmp_eq_u32 s73, 1")
        a.I("s_cbranch_scc1 L_aloop3")
        a.I("s_mov_b32 s73, 1")
        lds_add1(a, M_QRD, T0, T1)
        a.I(f"s_cmp_ge_u32 s{S_W}, 4")
        a.I("s_cbranch_scc1 L_aloop1")
        for s_ in range(3):
            for uu in range(2):
                a.I(f"s_add_u32 s55, s83, {(4*s_+uu)*65536}")
                a.I(f"buffer_store_dwordx4 {vr(120+8*s_+4*uu,4)}, v{VL}, {S4(RA)}, s55 offen sc1")
        a.L("L_aloop1")
        lds_spin(a, M_KV, 8, T0, T1)
        a.I("s_branch L_aloop4")
        a.L("L_aloop3")
        a.I("s_mov_b32 s73, 2")
        a.I(f"s_cmp_ge_u32 s{S_W}, 4")
        a.I("s_cbranch_scc1 L_aloop2")
        a.I("s_waitcnt vmcnt(0)")
        lds_add1(a, M_HST, T0, T1)
        a.I("s_branch L_aloop2")
        a.L("L_aloop4")
        a.I("s_cmp_lt_u32 s70, 16")
        a.I("s_cbranch_scc1 L_aloop")
        a.I("s_branch L_aloop3")
    else:
        a.I("s_cmp_lg_u32 s73, 0")
        a.I("s_cbranch_scc1 L_aloop2")
        a.I("s_mov_b32 s73, 1")
        lds_add1(a, M_QRD, T0, T1)
        a.I("s_waitcnt vmcnt(0)")
        a.I(f"s_cmp_ge_u32 s{S_W}, 4")
        a.I("s_cbranch_scc1 L_aloop1")
        lds_add1(a, M_HST, T0, T1)
        a.L("L_aloop1")
        lds_spin(a, M_KV, 8, T0, T1)
    a.L("L_aloop2")
    a.I("s_cmp_lt_u32 s70, 16")
    a.I("s_cbranch_scc1 L_aloop")
    a.I("s_waitcnt lgkmcnt(0)")
    a.I("s_nop 7")
    stamp(a, "aloop")
    def preads():
        return [f"ds_read_b128 {vr(S1,4)}, v{VX128}", f"ds_read_b128 {vr(S1+4,4)}, v{VX128} offset:1024",
                f"ds_read_b128 {vr(S1+8,4)}, v{VX128} offset:2048", f"ds_read_b128 {vr(S1+12,4)}, v{VX128} offset:3072",
                f"ds_read_b32 v{T0}, v{VX32} offset:4096", f"ds_read_b32 v{T1}, v{VX32} offset:4352"]
    a.I("s_mov_b64 exec, 1")
    a.I(f"ds_add_rtn_u32 v{T2}, v{VPAIR}, v{VONE}")
    a.I("s_mov_b64 exec, -1")
    a.I(f"ds_read_b32 v{VTF}, v{VPFLAG}")
    a.I(J(preads()))
    a.I("s_waitcnt lgkmcnt(0)")
    a.I(f"v_readfirstlane_b32 s55, v{T2}")
    a.I(f"v_readfirstlane_b32 s56, v{VTF}")
    a.I("s_nop 3")
    a.I("s_cmp_lg_u32 s55, 0")
    a.I("s_cbranch_scc1 L_second")
    lds_spin(a, M_FFN, 4, T0, T1)
    a.I(f"ds_write_b128 v{VX128}, {vr(OA,4)}")
    a.I(f"ds_write_b128 v{VX128}, {vr(OA+4,4)} offset:1024")
    a.I(f"ds_write_b128 v{VX128}, {vr(OB,4)} offset:2048")
    a.I(f"ds_write_b128 v{VX128}, {vr(OB+4,4)} offset:3072")
    a.I(f"ds_write_b32 v{VX32}, v{OA+8} offset:4096")
    a.I(f"ds_write_b32 v{VX32}, v{OB+8} offset:4352")
    a.I("s_waitcnt lgkmcnt(0)")
    lds_add1(a, "s76", T0, T1)
    a.I("s_waitcnt lgkmcnt(0)")
    stamp_flush(a, "attn")
    a.I("s_endpgm")
    a.L("L_second")
    a.I("s_cmp_lg_u32 s56, 0")
    a.I("s_cbranch_scc1 L_second2")
    lds_spin(a, "s76", 1, T0, T1)
    a.I(J(preads()))
    a.I("s_waitcnt lgkmcnt(0)")
    a.L("L_second2")
    for i in range(8):
        a.I(f"v_add_f32 v{OA+i}, v{OA+i}, v{S1+i}")
        a.I(f"v_add_f32 v{OB+i}, v{OB+i}, v{S1+8+i}")
    a.I(f"v_add_f32 v{OA+8}, v{OA+8}, v{T0}")
    a.I(f"v_add_f32 v{OB+8}, v{OB+8}, v{T1}")
    a.L("L_fin")
    for O in (OA, OB):
        a.I(f"v_mov_b32 v{O+9}, v{O+8}")
    a.I("s_nop 1")
    for O in (OA, OB):
        a.I(f"v_permlane32_swap_b32 v{O+9}, v{O+8}")
    a.I("s_nop 1")
    for O in (OA, OB):
        a.I(f"v_rcp_f32 v{O+10}, v{O+9}")
    srd_off(a, RA, S_WS, OF, 2*MB)
    a.I("s_lshl_b32 s54, s66, 5")
    a.I(f"s_add_u32 s54, s54, s{S_HD}")
    a.I("s_lshl_b32 s55, s54, 10")
    for n_, O in enumerate((OA, OB)):
        for i in range(8):
            a.I(f"v_mul_f32 v{S0+8*n_+i}, v{O+i}, v{O+10}")
        for j in range(4):
            a.I(f"v_cvt_pk_bf16_f32 v{S1+4*n_+j}, v{S0+8*n_+2*j}, v{S0+8*n_+2*j+1}")
        a.I(f"buffer_store_dwordx4 {vr(S1+4*n_,4)}, v{VL}, {S4(RA)}, s55 offen sc1")
        if n_ == 0: a.I("s_add_u32 s55, s55, 32768")
    srd_off(a, RC, S_WS, FLG, FLG_SIZE)
    slow_check(a, OA, OB, T0, T1)
    lds_add1(a, M_ATT, T0, T1)
    a.I("s_lshl_b32 s54, s54, 2")
    a.I(f"s_add_u32 s54, s54, {FO_OFF}")
    a.I(f"v_mov_b32 v{T0}, s{S_NONCE}")
    a.I(f"v_lshlrev_b32 v{T1}, 7, v1")
    a.I("s_waitcnt vmcnt(0)")
    a.I("s_mov_b64 exec, 3")
    a.I(f"buffer_store_dword v{T0}, v{T1}, {S4(RC)}, s54 offen sc1")
    a.I("s_mov_b64 exec, -1")
    stamp_flush(a, "attn")
    a.I("s_endpgm")
    slow_path(a, QA, QB, KB, VB, S0, S1, OA, OB, VL, T0, T1, T2)

def slow_check(a, OA, OB, T0, T1):
    if OPT.get("noslow"): return
    a.I(f"v_mul_f32 v{T0}, 0, v{OA}")
    for i in range(1, 8):
        a.I(f"v_fma_f32 v{T0}, v{OA+i}, 0, v{T0}")
    for i in range(8):
        a.I(f"v_fma_f32 v{T0}, v{OB+i}, 0, v{T0}")
    a.I(f"v_cmp_eq_f32 s[78:79], 0, v{T0}")
    a.I(f"s_mov_b32 s80, {hex(f2u(2.0**-60))}")
    a.I(f"s_mov_b32 s81, {hex(f2u(2.0**60))}")
    for O in (OA, OB):
        a.I(f"v_cmp_le_f32 s[82:83], s80, v{O+9}")
        a.I(f"v_cmp_ge_f32 vcc, s81, v{O+9}")
        a.I("s_nop 1")
        a.I("s_and_b64 s[78:79], s[78:79], s[82:83]")
        a.I("s_and_b64 s[78:79], s[78:79], vcc")
    if OPT.get("forceslow"):
        a.I("s_mov_b64 s[78:79], 0")
    a.I("s_cmp_eq_u64 s[78:79], -1")
    a.I("s_cbranch_scc1 L_ok")
    a.I("s_cmp_eq_u32 s77, 0")
    a.I("s_cbranch_scc1 L_slow")
    a.L("L_ok")

def slow_path(a, QA, QB, KB, VB, S0, S1, OA, OB, VL, T0, T1, T2):
    if OPT.get("noslow"): return
    K, V0, M, C = KB[0], VB[0], 108, 112
    a.L("L_slow")
    a.I("s_waitcnt vmcnt(0)")
    a.I("s_mov_b32 s77, 1")
    a.I(f"v_lshrrev_b32 v{T0}, 5, v1")
    a.I(f"v_and_b32 v{T1}, 15, v1")
    a.I(f"v_lshlrev_b32 v{T1}, 4, v{T1}")
    a.I(f"v_lshl_add_u32 v{T2}, v{T0}, 8, v{T1}")
    a.I(f"v_add_u32 v{T2}, {L_V}, v{T2}")
    a.I(f"v_mov_b32 v{M}, 0xff800000")
    a.I(f"v_mov_b32 v{M+1}, 0xff800000")
    a.I(f"v_add_u32 v{T0}, {L_K}, v{VL}")
    a.I("s_mov_b32 s73, 0")
    a.L("L_slow1")
    a.I(f"ds_read_b128 {vr(K,4)}, v{T0}")
    a.I("s_waitcnt lgkmcnt(0)")
    a.I(MF(S0, K, QA))
    a.I(MF(S1, K, QB))
    a.I("s_nop 15")
    for S, m in ((S0, M), (S1, M+1)):
        for i in range(0, 16, 2):
            a.I(f"v_max3_f32 v{m}, v{S+i}, v{S+i+1}, v{m}")
    a.I(f"v_add_u32 v{T0}, 1024, v{T0}")
    a.I("s_add_u32 s73, s73, 1")
    a.I("s_cmp_lt_u32 s73, 64")
    a.I("s_cbranch_scc1 L_slow1")
    for m in (M, M+1):
        a.I(f"v_mov_b32 v{T1}, v{m}")
        a.I("s_nop 1")
        a.I(f"v_permlane32_swap_b32 v{T1}, v{m}")
        a.I("s_nop 1")
        a.I(f"v_max_f32 v{m}, v{m}, v{T1}")
    for t in range(2):
        for i in range(16):
            a.I(f"v_sub_f32 v{C+16*t+i}, 0, v{M+t}")
    for i in range(16):
        a.I(f"v_mov_b32 v{OA+i}, 0")
        a.I(f"v_mov_b32 v{OB+i}, 0")
    a.I(f"v_add_u32 v{T0}, {L_K}, v{VL}")
    a.I("s_mov_b32 s73, 0")
    a.L("L_slow2")
    a.I(f"ds_read_b128 {vr(K,4)}, v{T0}")
    a.I("s_mov_b64 exec, s[74:75]")
    a.I(f"ds_read_b128 {vr(V0,4)}, v{T2}")
    a.I(f"ds_read_b128 {vr(V0+4,4)}, v{T2} offset:512")
    a.I("s_mov_b64 exec, -1")
    a.I("s_waitcnt lgkmcnt(0)")
    a.I(MF(S0, K, QA, C))
    a.I(MF(S1, K, QB, C+16))
    a.I("s_nop 15")
    for S, O in ((S0, OA), (S1, OB)):
        for i in range(16):
            a.I(f"v_exp_f32 v{S+i}, v{S+i}")
        a.I("s_nop 0")
        for j in range(8):
            a.I(f"v_cvt_pk_bf16_f32 v{S+j}, v{S+2*j}, v{S+2*j+1}")
        a.I("s_nop 1")
        a.I(MF(O, V0, S, O))
        a.I(MF(O, V0+4, S+4, O))
    a.I(f"v_add_u32 v{T0}, 1024, v{T0}")
    a.I(f"v_add_u32 v{T2}, 1024, v{T2}")
    a.I("s_add_u32 s73, s73, 1")
    a.I("s_cmp_lt_u32 s73, 64")
    a.I("s_cbranch_scc1 L_slow2")
    a.I("s_nop 15")
    a.I("s_branch L_fin")

def gen():
    a = Asm()
    prologue(a)
    producer(a, False)
    consumer(a)
    a.L("L_aux")
    producer(a, True)
    ffn2_p3(a)
    attention(a)
    a.L("L_end")
    a.I("s_endpgm")
    a.L("L_code_end")
    a.I("s_endpgm")
    return a

HEADER = open("cdna_kernels/" + NAME + ".s.ref").read().split("; Override launch")[0]

def build(path):
    a = gen()
    out = HEADER + f"; WSLAYOUT QF={QF} KF={KF} VF={VF} HF={HF} GO={GO} OF={OF}\n"
    out += f"; @launch grid=(256,1,1) block=(768,1,1) lds={LDS_TOTAL}\n"
    out += '.amdgcn_target "amdgcn-amd-amdhsa--gfx950"\n.text\n' + a.text()
    out += f""".section .rodata,"a"
.p2align 6
.amdhsa_kernel {KN}
  .amdhsa_next_free_vgpr 168
  .amdhsa_next_free_sgpr 102
  .amdhsa_accum_offset 168
  .amdhsa_group_segment_fixed_size 0
  .amdhsa_kernarg_size 96
  .amdhsa_user_sgpr_count 2
  .amdhsa_user_sgpr_kernarg_segment_ptr 1
  .amdhsa_system_sgpr_workgroup_id_x 1
.end_amdhsa_kernel
"""
    open(path, "w").write(out)
    probs = check_linear(a.lines, "k")
    if STAMPS: print("stamps:", ",".join(_stamp_names))
    return probs

if __name__ == "__main__":
    for x in list(sys.argv[1:]):
        if x.startswith("-D"):
            k, _, v = x[2:].partition("=")
            OPT[k] = int(v) if v else 1
            sys.argv.remove(x)
    if "--stamps" in sys.argv:
        STAMPS = True; sys.argv.remove("--stamps")
    path = sys.argv[1] if len(sys.argv) > 1 else "cdna_kernels/" + NAME + ".s"
    probs = build(path)
    for p in probs: print("HAZARD:", p)
    print("written", path, "problems:", len(probs))
```

```python
import sys, struct
from asmlib import *

NAME = "gated_mix__mha_block__dense_activation_squared_relu__prompt"
KN = NAME + "_kernel"
MB = 1 << 20
QF, KF, VF, HF, GO, OF, FLG = 4096, 2*MB + 8192, 4*MB + 12288, 6*MB + 16384, 12*MB, 14*MB + 4096, 16*MB + 8192
HF_SIZE = 86 * 65536
FA_OFF, FH_OFF, FO_OFF = 0, 4096, 8192
FLG_SIZE = 16384
QSCALE = 0.25 * 1.4426950408889634
STAMP_OFF = 32*MB
STAMPS = False
OPT = {}
def f2u(x): return struct.unpack("<I", struct.pack("<f", x))[0]

S_AX, S_WQKV, S_WO, S_W1, S_B1, S_W2, S_B2, S_GW, S_OUT, S_DBG, S_WS = 4, 6, 8, 12, 14, 16, 18, 20, 22, 24, 26
S_W = 3
S_RB, S_CG, S_START = 29, 30, 31
RA, RB, RC, RD = 32, 36, 40, 44
S_NONCE, S_HD, S_QB = 60, 61, 62
L_MISC, L_K, L_V, L_RING = 0, 1024, 1024 + 65536, 1024 + 131072
L_XCH = L_RING
M_KV, M_H, M_FA, M_QRD, M_HST, M_FFN, M_ATT, M_T1 = [L_MISC + 4*i for i in range(8)]
M_PAIR, M_PFLAG, M_CH = L_MISC + 64, L_MISC + 96, L_MISC + 160
LDS_TOTAL = 163840

def srd(a, dst, base, size):
    a.I(f"s_mov_b32 s{dst}, s{base}")
    a.I(f"s_mov_b32 s{dst+1}, s{base+1}")
    a.I(f"s_mov_b32 s{dst+2}, {size}")
    a.I(f"s_mov_b32 s{dst+3}, 0x20000")
def srd_off(a, dst, base, off, size):
    a.I(f"s_add_u32 s{dst}, s{base}, {off}")
    a.I(f"s_addc_u32 s{dst+1}, s{base+1}, 0")
    a.I(f"s_mov_b32 s{dst+2}, {size}")
    a.I(f"s_mov_b32 s{dst+3}, 0x20000")
def MF(d, A, B, c=None):
    cc = "0" if c is None else vr(c, 16)
    return f"v_mfma_f32_32x32x16_bf16 {vr(d,16)}, {vr(A,4)}, {vr(B,4)}, {cc}"
def S4(r): return f"s[{r}:{r+3}]"
def J(L): return "\n".join(L)

_stamp_names = []
def stamp(a, name):
    if not STAMPS: return
    if name not in _stamp_names: _stamp_names.append(name)
    i = _stamp_names.index(name)
    a.I("s_waitcnt lgkmcnt(0)")
    a.I("s_memtime s[98:99]")
    a.I("s_memrealtime s[100:101]")
    a.I("s_waitcnt lgkmcnt(0)")
    a.I(f"v_writelane_b32 v6, s98, {i}")
    a.I(f"v_writelane_b32 v7, s100, {i}")
def stamp_dyn(a):
    if not (STAMPS and OPT.get("fine")): return
    a.I("s_memtime s[98:99]")
    a.I("s_memrealtime s[100:101]")
    a.I("s_waitcnt lgkmcnt(0)")
    a.I("s_mov_b32 s88, m0")
    a.I("s_mov_b32 m0, s87")
    a.I("s_nop 3")
    a.I("v_writelane_b32 v6, s98, m0")
    a.I("v_writelane_b32 v7, s100, m0")
    a.I("s_mov_b32 m0, s88")
    a.I("s_add_u32 s87, s87, 1")
def dbg_dump(a, names, word0):
    lb = lab("dd")
    a.I(f"s_cmp_lg_u32 s2, {OPT.get('dbgwg', 0)}")
    a.I(f"s_cbranch_scc1 {lb}")
    a.I("v_readlane_b32 s90, v7, 0")
    for i, nm in enumerate(names):
        if nm not in _stamp_names: _stamp_names.append(nm)
        a.I(f"v_readlane_b32 s91, v7, {_stamp_names.index(nm)}")
        a.I("s_nop 3")
        a.I("s_sub_u32 s91, s91, s90")
        a.I("v_mov_b32 v2, s91")
        a.I(f"v_mov_b32 v3, {4*(word0+i)}")
        a.I("s_mov_b64 exec, 1")
        a.I(f"global_store_dword v3, v2, s[{S_DBG}:{S_DBG+1}]")
        a.I("s_mov_b64 exec, -1")
    a.L(lb)

def stamp_flush(a, who=None):
    if not STAMPS: return
    a.I("s_waitcnt vmcnt(0)")
    stamp(a, "end")
    if OPT.get("dbgdump"):
        if who == "ffn":
            l2 = lab("d8")
            a.I(f"s_cmp_lg_u32 s{S_W}, 8"); a.I(f"s_cbranch_scc1 {l2}")
            dbg_dump(a, ["E2", "FAok", "KV1", "hready", "ffn2", "attdone", "T2", "p3mm", "end"], 7)
            a.L(l2)
        elif who == "attn":
            l2 = lab("d0")
            a.I(f"s_and_b32 s91, s{S_W}, 3"); a.I("s_cmp_lg_u32 s91, 0"); a.I(f"s_cbranch_scc1 {l2}")
            a.I(f"s_cmp_ge_u32 s{S_W}, 4"); a.I(f"s_cbranch_scc1 {l2}")
            dbg_dump(a, ["karg", "B0", "qloop", "floop", "kvok", "aloop"], 1)
            a.L(l2)
    a.I(f"s_add_u32 s96, s{S_WS}, {STAMP_OFF}")
    a.I(f"s_addc_u32 s97, s{S_WS+1}, 0")
    a.I("s_mul_i32 s98, s2, 12")
    a.I(f"s_add_u32 s98, s98, s{S_W}")
    a.I("s_lshl_b32 s98, s98, 9")
    a.I("v_lshlrev_b32 v2, 2, v1")
    a.I("v_add_u32 v2, s98, v2")
    a.I("s_mov_b64 exec, -1")
    a.I("global_store_dword v2, v6, s[96:97]")
    a.I("global_store_dword v2, v7, s[96:97] offset:256")
    a.I("s_waitcnt vmcnt(0)")

def tr_lane_addr(a, dst, lane, tmp, tmp2, hrows, pitch):
    a.I(f"v_bfe_u32 v{tmp}, v{lane}, 2, 2")
    a.I(f"v_lshrrev_b32 v{tmp2}, 5, v{lane}")
    a.I(f"v_mul_u32_u24 v{tmp2}, {hrows}, v{tmp2}")
    a.I(f"v_add_u32 v{tmp}, v{tmp}, v{tmp2}")
    a.I(f"v_mul_u32_u24 v{dst}, {pitch}, v{tmp}")
    a.I(f"v_bfe_u32 v{tmp}, v{lane}, 4, 1")
    a.I(f"v_lshlrev_b32 v{tmp}, 1, v{tmp}")
    a.I(f"v_bfe_u32 v{tmp2}, v{lane}, 1, 1")
    a.I(f"v_add_u32 v{tmp}, v{tmp}, v{tmp2}")
    a.I(f"v_bfe_u32 v{tmp2}, v{lane}, 3, 1")
    a.I(f"v_lshlrev_b32 v{tmp2}, 2, v{tmp2}")
    a.I(f"v_xor_b32 v{tmp}, v{tmp}, v{tmp2}")
    a.I(f"v_lshl_add_u32 v{dst}, v{tmp}, 4, v{dst}")
    a.I(f"v_and_b32 v{tmp}, 1, v{lane}")
    a.I(f"v_lshl_add_u32 v{dst}, v{tmp}, 3, v{dst}")

def dma_w_lane_off(a, dst, lane, tmp, tmp2, pitch):
    a.I(f"v_lshrrev_b32 v{tmp}, 3, v{lane}")
    a.I(f"v_mul_u32_u24 v{dst}, {pitch}, v{tmp}")
    a.I(f"v_bfe_u32 v{tmp}, v{lane}, 4, 1")
    a.I(f"v_lshlrev_b32 v{tmp}, 2, v{tmp}")
    a.I(f"v_and_b32 v{tmp2}, 7, v{lane}")
    a.I(f"v_xor_b32 v{tmp}, v{tmp}, v{tmp2}")
    a.I(f"v_lshl_add_u32 v{dst}, v{tmp}, 4, v{dst}")

_lab = [0]
def lab(p):
    _lab[0] += 1
    return f"L_{p}{_lab[0]}"

def poll(a, srd_reg, nlanes, voff, vtmp, soff, slp=1):
    l0, l1 = lab("poll"), lab("polld")
    if nlanes < 64:
        a.I(f"s_mov_b32 exec_lo, {hex((1 << nlanes) - 1)}")
        a.I("s_mov_b32 exec_hi, 0")
    a.I("s_mov_b32 s50, 0x40000")
    a.L(l0)
    a.I(f"buffer_load_dword v{vtmp}, v{voff}, {S4(srd_reg)}, {soff} offen sc1")
    a.I("s_waitcnt vmcnt(0)")
    a.I(f"v_cmp_ne_u32 vcc, s{S_NONCE}, v{vtmp}")
    a.I(f"s_cbranch_vccz {l1}")
    a.I("s_sub_u32 s50, s50, 1")
    a.I("s_cmp_eq_u32 s50, 0")
    a.I(f"s_cbranch_scc1 {l1}")
    a.I(f"s_sleep {slp}")
    a.I(f"s_branch {l0}")
    a.L(l1)
    a.I("s_mov_b64 exec, -1")

def lds_spin(a, addr, target, vaddr, vtmp, slp=1):
    l0, l1 = lab("spin"), lab("spind")
    a.I(f"v_mov_b32 v{vaddr}, {addr}")
    a.I("s_mov_b32 s50, 0x400000")
    a.L(l0)
    a.I(f"ds_read_b32 v{vtmp}, v{vaddr}")
    a.I("s_waitcnt lgkmcnt(0)")
    a.I(f"v_readfirstlane_b32 s51, v{vtmp}")
    a.I("s_sub_u32 s50, s50, 1")
    a.I(f"s_cmp_ge_u32 s51, {target}")
    a.I(f"s_cbranch_scc1 {l1}")
    a.I("s_cmp_eq_u32 s50, 0")
    a.I(f"s_cbranch_scc1 {l1}")
    a.I(f"s_sleep {slp}")
    a.I(f"s_branch {l0}")
    a.L(l1)

def lds_add1(a, addr, vaddr, vtmp):
    a.I(f"v_mov_b32 v{vaddr}, {addr}")
    a.I(f"v_mov_b32 v{vtmp}, 1")
    a.I("s_mov_b64 exec, 1")
    a.I(f"ds_add_u32 v{vaddr}, v{vtmp}")
    a.I("s_mov_b64 exec, -1")

def flag_store(a, soff, v0_, v1_):
    a.I(f"v_mov_b32 v{v0_}, s{S_NONCE}")
    a.I(f"v_mov_b32 v{v1_}, 0")
    a.I("s_mov_b64 exec, 1")
    a.I(f"buffer_store_dword v{v0_}, v{v1_}, {S4(RC)}, {soff} offen sc1")
    a.I("s_mov_b64 exec, -1")

def prologue(a):
    a.raw(f".globl {KN}\n.p2align 8\n.type {KN},@function\n{KN}:")
    if STAMPS:
        a.I("s_memrealtime s[94:95]")
        a.I("s_memtime s[92:93]")
    a.I("s_cmp_ge_u32 s2, 256")
    a.I("s_cbranch_scc1 L_end")
    a.I("s_load_dwordx4 s[4:7], s[0:1], 0")
    a.I("s_load_dwordx2 s[8:9], s[0:1], 16")
    a.I("s_load_dwordx4 s[12:15], s[0:1], 32")
    a.I("s_load_dwordx4 s[16:19], s[0:1], 48")
    a.I("s_load_dwordx4 s[20:23], s[0:1], 64")
    a.I("s_load_dwordx4 s[24:27], s[0:1], 80")
    a.I("v_lshrrev_b32 v2, 6, v0")
    a.I("v_and_b32 v1, 63, v0")
    a.I(f"v_readfirstlane_b32 s{S_W}, v2")
    if OPT.get("codeearly", 1):
        a.I("s_getpc_b64 s[52:53]")
        a.L("L_pc0")
        a.I(f"s_sub_u32 s52, s52, L_pc0-{KN}")
        a.I("s_subb_u32 s53, s53, 0")
        a.I("v_lshlrev_b32 v3, 7, v0")
        a.I(f"v_min_u32 v3, L_code_end-{KN}-4, v3")
        a.I(f"s_cmp_ge_u32 s{S_W}, 3")
        a.I("s_cbranch_scc1 L_pc1")
        a.I("global_load_dword v31, v3, s[52:53]")
        a.L("L_pc1")
    if STAMPS:
        a.I("v_mov_b32 v6, 0"); a.I("v_mov_b32 v7, 0")
    a.I("s_and_b32 s52, s2, 7")
    a.I("s_lshr_b32 s53, s2, 3")
    if OPT.get("map84"):
        a.I("s_lshr_b32 s54, s52, 1")
        a.I("s_lshl_b32 s54, s54, 3")
        a.I("s_lshr_b32 s55, s53, 2")
        a.I(f"s_add_u32 s{S_RB}, s54, s55")
        a.I("s_and_b32 s54, s52, 1")
        a.I("s_lshl_b32 s54, s54, 2")
        a.I("s_and_b32 s55, s53, 3")
        a.I(f"s_add_u32 s{S_CG}, s54, s55")
    else:
        a.I("s_lshr_b32 s54, s52, 2")
        a.I("s_lshl_b32 s54, s54, 4")
        a.I("s_lshr_b32 s55, s53, 1")
        a.I(f"s_add_u32 s{S_RB}, s54, s55")
        a.I("s_and_b32 s54, s52, 3")
        a.I("s_lshl_b32 s54, s54, 1")
        a.I("s_and_b32 s55, s53, 1")
        a.I(f"s_add_u32 s{S_CG}, s54, s55")
    a.I(f"s_mul_i32 s54, s{S_CG}, 6")
    a.I(f"s_min_u32 s{S_START}, s54, 37")
    a.I(f"s_lshl_b32 s{S_HD}, s52, 2")
    a.I("s_and_b32 s54, s53, 3")
    a.I(f"s_add_u32 s{S_HD}, s{S_HD}, s54")
    a.I(f"s_lshr_b32 s{S_QB}, s2, 5")
    a.I("s_waitcnt lgkmcnt(0)")
    if STAMPS:
        _stamp_names.append("entry")
        a.I("v_writelane_b32 v6, s92, 0")
        a.I("v_writelane_b32 v7, s94, 0")
    stamp(a, "karg")
    a.I(f"s_cmp_ge_u32 s{S_W}, 8")
    a.I("s_cbranch_scc1 L_aux")
    a.I(f"s_cmp_lt_u32 s{S_W}, 4")
    a.I("s_cbranch_scc1 L_cons")

GATEPOS = 3
def producer(a, aux):
    T = "a" if aux else "p"
    if OPT.get("pprio"): a.I(f"s_setprio {OPT['pprio']}")
    a.I(f"s_sub_u32 s67, s{S_W}, 4")
    a.I(f"s_lshl_b32 s54, s{S_RB}, 16")
    srd_off(a, RA, S_AX, "s54", 65536)
    a.I("v_lshrrev_b32 v2, 3, v1")
    a.I("s_lshl_b32 s54, s67, 3")
    a.I("v_add_u32 v2, s54, v2")
    a.I("v_lshrrev_b32 v3, 4, v1")
    a.I("s_and_b32 s54, s67, 1")
    a.I("s_lshl_b32 s54, s54, 2")
    a.I("v_add_u32 v3, s54, v3")
    a.I("v_and_b32 v4, 7, v1")
    a.I("v_xor_b32 v3, v3, v4")
    a.I("v_lshlrev_b32 v3, 4, v3")
    a.I("v_lshl_add_u32 v12, v2, 10, v3")
    a.I("s_lshl_b32 s68, s67, 10")
    def woffs(dst, pitch, segshift):
        for j in range(3):
            a.I(f"v_add_u32 v2, {64*j}, v1")
            a.I("v_mul_u32_u24 v3, 171, v2")
            a.I("v_lshrrev_b32 v3, 12, v3")
            a.I("v_mul_u32_u24 v4, 24, v3")
            a.I("v_sub_u32 v2, v2, v4")
            a.I("v_lshrrev_b32 v4, 3, v2")
            a.I("v_and_b32 v2, 7, v2")
            a.I("v_bfe_u32 v5, v3, 1, 1")
            a.I("v_lshlrev_b32 v5, 2, v5")
            a.I("v_xor_b32 v2, v2, v5")
            a.I("v_lshlrev_b32 v2, 4, v2")
            a.I(f"v_mul_u32_u24 v5, {pitch}, v3")
            a.I(f"v_lshl_add_u32 v5, v4, {segshift}, v5")
            a.I(f"v_add_u32 v{dst+j}, v5, v2")
    wsetup_done = [False]
    def wsetup():
        if wsetup_done[0]: return
        wsetup_done[0] = True
        srd(a, RB, S_WQKV, 512*3072)
        woffs(13, 3072, 10)
        a.I("s_mul_i32 s69, s67, 3072")
        a.I("s_add_u32 s69, s69, 0x10000")
        a.I(f"s_lshl_b32 s70, s{S_CG}, 7")
        a.I(f"s_mul_i32 s71, s67, {8*3072}")
        a.I("s_add_u32 s70, s70, s71")
    def pre_setup(item):
        k, c = item
        if k == "X":
            a.I(f"s_add_u32 m0, s68, {c*8192}")
            a.I(f"s_movk_i32 s81, {c*128}")
        else:
            a.I(f"s_add_u32 s82, s70, {c*64*3072}" if c < 8 else f"s_add_u32 s82, s71, {(c-8)*64*2752}")
            a.I(f"s_add_u32 m0, s69, {(c&3)*24576}")
    def issue_x(c, done=False):
        if OPT.get("p1noprod"): return
        if not done:
            a.I(f"s_add_u32 m0, s68, {c*8192}")
            a.I(f"s_movk_i32 s81, {c*128}")
        a.I(f"buffer_load_dwordx4 v12, {S4(RA)}, s81 offen lds")
    def issue_w(c, done=False):
        if OPT.get("p1noprod"): return
        if c < 8:
            if not done: a.I(f"s_add_u32 s82, s70, {c*64*3072}")
            vo, R = 13, RB
        else:
            if not done: a.I(f"s_add_u32 s82, s71, {(c-8)*64*2752}")
            vo, R = 16, RC
        for j in range(3):
            if not (done and j == 0):
                a.I(f"s_add_u32 m0, s69, {(c&3)*24576 + j*1024}")
                a.I("s_nop 0")
            a.I(f"buffer_load_dwordx4 v{vo+j}, {S4(R)}, s82 offen lds")
    sched = OPT.get("sched", 0)
    if sched == 0:
        pre = [("X",0),("X",1),("X",2),("W",0),("W",1),("W",2)] if OPT.get("xfirst", 1) else [("X",0),("W",0),("X",1),("W",1),("X",2),("W",2)]
        post = {c: ([("X",c+3)] if c+3 < 8 else []) + ([("W",c+3)] if c+3 < 16 else []) for c in range(16)}
    elif sched == 1:
        pre = [("X",0),("W",0),("X",1),("W",1),("X",2),("W",2),("X",3),("W",3),("X",4),("X",5),("X",6),("X",7)]
        post = {c: ([("W",c+3)] if (c >= 1 and c+3 < 16) else []) for c in range(16)}
    elif sched == 2:
        pre = [("X",0),("W",0),("X",1),("W",1),("X",2),("W",2),("X",3),("W",3)]
        post = {c: ([("W",c+3)] if (c >= 1 and c+3 < 16) else []) for c in range(16)}
        post[0] = [("X",4),("X",5),("X",6),("X",7)]
    fifo = []
    def do(item, done=False):
        k, c = item
        if k == "X":
            if OPT.get("skipx"): fifo.append((item, 0)); return
            issue_x(c, done); fifo.append((item, 1))
        else:
            if OPT.get("skipw") and c < 8: fifo.append((item, 0)); return
            wsetup()
            issue_w(c, done); fifo.append((item, 3))
    for it in pre: do(it)
    if OPT.get("pfprod") and not aux:
        a.I(f"s_mov_b32 s89, s{S_W}")
        a.I(f"s_sub_u32 s{S_W}, s{S_W}, 4")
        l2_prefetch(a, 0)
        a.I(f"s_mov_b32 s{S_W}, s89")
        fifo.append(("pf", 2))
    stamp(a, "issued3")
    nside = 0
    if aux:
        nside = aux_side_issue(a)
    srd(a, RC, S_W1, 512*2752)
    if OPT.get("w1perm", 0):
        for j in range(3):
            a.I(f"v_add_u32 v2, {64*j}, v1")
            a.I("v_mul_u32_u24 v3, 171, v2")
            a.I("v_lshrrev_b32 v3, 12, v3")
            a.I("v_mul_u32_u24 v4, 24, v3")
            a.I("v_sub_u32 v2, v2, v4")
            a.I("v_lshrrev_b32 v4, 2, v2")
            a.I("v_and_b32 v2, 3, v2")
            a.I("v_bfe_u32 v5, v3, 1, 1")
            a.I("v_xor_b32 v4, v4, v5")
            a.I("v_add_u32 v5, 1, v4")
            a.I("v_cmp_eq_u32 vcc, 4, v4")
            a.I("s_nop 1")
            a.I("v_cndmask_b32_e64 v5, v5, 0, vcc")
            a.I("v_cmp_eq_u32 vcc, 5, v4")
            a.I("s_nop 1")
            a.I("v_cndmask_b32_e64 v5, v5, 5, vcc")
            a.I(f"v_add_u32 v19, s{S_START}, v3")
            a.I("v_and_b32 v19, 1, v19")
            a.I("v_cmp_eq_u32 vcc, 1, v19")
            a.I("s_nop 1")
            a.I("v_cndmask_b32 v4, v4, v5, vcc")
            a.I("v_lshlrev_b32 v4, 6, v4")
            a.I("v_lshl_add_u32 v4, v2, 4, v4")
            a.I("v_mul_u32_u24 v5, 2752, v3")
            a.I(f"v_add_u32 v{16+j}, v5, v4")
    else:
        woffs(16, 2752, 7)
    a.I(f"s_lshl_b32 s71, s{S_START}, 6")
    a.I(f"s_mul_i32 s72, s67, {8*2752}")
    a.I("s_add_u32 s71, s71, s72")
    fap = OPT.get("fapos", 2)
    assert fap >= 0
    for c in range(16):
        need = [("W", c)] + ([("X", c)] if c < 8 else [])
        idx = max(i for i, (it, _) in enumerate(fifo) if it in need)
        allow = sum(k for _, k in fifo[idx+1:])
        if c == 0 and STAMPS and OPT.get("fine"): a.I("s_mov_b32 s87, 24")
        stamp_dyn(a)
        early = OPT.get("early", 1) and not STAMPS and len(post[c]) > 0 and not OPT.get("p1noprod")
        if early:
            pre_setup(post[c][0])
        a.I(f"s_waitcnt vmcnt({allow})")
        stamp_dyn(a)
        a.I("s_barrier")
        for n_, it in enumerate(post[c]): do(it, early and n_ == 0)
        if aux and c == 2:
            fifo.append(("side", aux_side_loads(a)))
        if aux and c == 6:
            aux_gate(a)
            fifo.append(("g", 1))
        if aux and c == 4:
            fifo.append(("nonce", aux_nonce_issue(a)))
        if aux and c == 10:
            aux_zero_misc(a)
        if aux and c == 8:
            aux_nonce_take(a)
        if aux and c == 12:
            aux_share_nonce(a)
        if aux and c == 14:
            aux_fa_probe(a, 0)
            fifo.append(("probe", 1))
        if aux and c == 15:
            aux_fa_probe(a, 1)
        if aux and c == 9 + fap:
            aux_publish_fa(a)
    a.I("s_barrier")
    if aux:
        aux_after_e1(a)
    else:
        if OPT.get("pprio"): a.I("s_setprio 0")
        a.I("s_branch L_attn")

def glob_w2(a):
    a.I("v_lshlrev_b32 v20, 7, v1")
    srd(a, RC, S_W2, 1376*1024)
    a.I("s_mul_i32 s54, s2, 5504")
    a.I("s_mov_b32 exec_hi, 0xfff")
    a.I(f"buffer_load_dword v24, v20, {S4(RC)}, s54 offen")
    srd(a, RC, S_WO, 512*1024)
    a.I("s_lshl_b32 s54, s2, 11")
    a.I("s_mov_b32 exec_hi, 0")
    a.I("s_mov_b32 exec_lo, 0xffff")
    a.I(f"buffer_load_dword v25, v20, {S4(RC)}, s54 offen")
    a.I("s_mov_b64 exec, -1")

def l2_prefetch(a, part):
    a.I("s_and_b32 s52, s2, 7")
    a.I("s_lshr_b32 s53, s2, 3")
    a.I("s_lshl_b32 s54, s53, 4")
    a.I(f"s_lshl_b32 s55, s{S_W}, 2")
    a.I("s_add_u32 s56, s54, s55")
    if OPT.get("pfglob", 1) and part == 0:
        lg = lab("pfg")
        G64 = OPT.get("pg64", 0)
        a.I(f"v_lshlrev_b32 v20, {6 if G64 else 7}, v1")
        def touch(nbytes):
            step = 64 if G64 else 128
            lanes = -(-nbytes // step)
            off = 0
            while lanes > 0:
                n = min(lanes, 64)
                if n < 64:
                    a.I(f"s_mov_b32 exec_lo, {hex((1 << min(n, 32)) - 1)}")
                    a.I(f"s_mov_b32 exec_hi, {hex((1 << max(n - 32, 0)) - 1)}")
                a.I(f"buffer_load_dword v24, v20, {S4(RC)}, s54 offen")
                if n < 64: a.I("s_mov_b64 exec, -1")
                lanes -= n
                if lanes > 0: a.I(f"s_add_u32 s54, s54, {64*step}")
        a.I(f"s_cmp_eq_u32 s{S_W}, 0")
        a.I(f"s_cbranch_scc0 {lg}a")
        srd(a, RC, S_AX, 2*MB)
        a.I("s_lshl_b32 s54, s2, 13")
        touch(8192)
        a.I(f"s_branch {lg}d")
        a.L(f"{lg}a")
        a.I(f"s_cmp_eq_u32 s{S_W}, 1")
        a.I(f"s_cbranch_scc0 {lg}b")
        srd(a, RC, S_WQKV, 512*3072)
        a.I("s_mul_i32 s54, s2, 6144")
        touch(6144)
        a.I(f"s_branch {lg}d")
        a.L(f"{lg}b")
        a.I(f"s_cmp_eq_u32 s{S_W}, {99 if OPT.get('w1late') else 2}")
        a.I(f"s_cbranch_scc0 {lg}c")
        srd(a, RC, S_W1, 512*2752)
        a.I("s_mul_i32 s54, s2, 5504")
        touch(5504)
        a.I(f"s_branch {lg}d")
        a.L(f"{lg}c")
        if OPT.get("pfw2") == 1:
            glob_w2(a)
        if OPT.get("tlb"):
            offs = [0, 2*MB + 4096, 4*MB + 8192, 6*MB + 12288, 11*MB + 512*1024, 12*MB + 16384, 14*MB, 16*MB + 4096]
            a.I("v_mov_b32 v21, 0")
            for i, o in enumerate(offs):
                a.I(f"v_mov_b32 v22, {o}")
                a.I(f"v_cmp_eq_u32 vcc, {i}, v1")
                a.I("s_nop 1")
                a.I("v_cndmask_b32 v21, v21, v22, vcc")
            a.I("s_mov_b32 exec_lo, 0xff")
            a.I("s_mov_b32 exec_hi, 0")
            a.I(f"global_load_dword v25, v21, s[{S_WS}:{S_WS+1}]")
            a.I("s_mov_b64 exec, -1")
        a.L(f"{lg}d")
        if OPT.get("pfglob", 1) == 1: return
        OPT["nopfx"] = 1 if OPT["pfglob"] == 2 else 0
    if OPT.get("map84"):
        if part == 0:
            srd(a, RC, S_AX, 2*MB)
            a.I("s_lshr_b32 s54, s52, 1")
            a.I("s_lshl_b32 s54, s54, 9")
            a.I("s_add_u32 s54, s54, s56")
            a.I("s_lshl_b32 s54, s54, 10")
            a.I("v_lshlrev_b32 v20, 7, v1")
            a.I("s_mov_b32 exec_hi, 0")
            a.I(f"buffer_load_dword v24, v20, {S4(RC)}, s54 offen")
            a.I("s_mov_b64 exec, -1")
            srd(a, RC, S_WQKV, 512*3072)
            a.I("s_mul_i32 s54, s56, 3072")
            a.I("s_and_b32 s55, s52, 1")
            a.I("s_lshl_b32 s55, s55, 9")
            a.I("s_add_u32 s54, s54, s55")
            a.I("v_lshrrev_b32 v21, 4, v1")
            a.I("v_mul_u32_u24 v21, 3072, v21")
            a.I("v_bfe_u32 v22, v1, 2, 2")
            a.I("v_min_u32 v22, 2, v22")
            a.I("v_lshl_add_u32 v21, v22, 10, v21")
            a.I("v_and_b32 v22, 3, v1")
            a.I("v_lshl_add_u32 v21, v22, 7, v21")
            a.I(f"buffer_load_dword v25, v21, {S4(RC)}, s54 offen")
        else:
            srd(a, RC, S_W1, 512*2752)
            a.I("s_and_b32 s55, s52, 1")
            a.I("s_mul_i32 s55, s55, 1536")
            a.I("s_mul_i32 s54, s56, 2752")
            a.I("s_add_u32 s54, s54, s55")
            a.I("v_lshrrev_b32 v21, 4, v1")
            a.I("v_mul_u32_u24 v21, 2752, v21")
            a.I("v_and_b32 v22, 15, v1")
            a.I("v_min_u32 v22, 12, v22")
            a.I("v_lshl_add_u32 v21, v22, 7, v21")
            a.I(f"buffer_load_dword v26, v21, {S4(RC)}, s54 offen")
        return
    if part == 2:
        a.I(f"s_cmp_lg_u32 s{S_W}, 0")
        a.I("s_cbranch_scc1 L_pf2")
        srd(a, RC, S_WQKV, 512*3072)
        a.I("s_lshl_b32 s54, s53, 3")
        a.I("s_add_u32 s54, s54, 256")
        a.I("s_mul_i32 s54, s54, 3072")
        a.I("s_and_b32 s55, s52, 3")
        a.I("s_lshl_b32 s55, s55, 8")
        a.I("s_add_u32 s54, s54, s55")
        a.I("v_lshrrev_b32 v21, 3, v1")
        a.I("v_mul_u32_u24 v21, 3072, v21")
        a.I("v_bfe_u32 v22, v1, 1, 2")
        a.I("v_min_u32 v22, 2, v22")
        a.I("v_lshl_add_u32 v21, v22, 10, v21")
        a.I("v_and_b32 v22, 1, v1")
        a.I("v_lshl_add_u32 v21, v22, 7, v21")
        a.I(f"buffer_load_dword v25, v21, {S4(RC)}, s54 offen")
        a.L("L_pf2")
    elif part == 0:
        G = OPT.get("pfg", 128)
        sh = {128: 7, 64: 6, 32: 5}[G]
        srd(a, RC, S_AX, 2*MB)
        a.I("s_lshr_b32 s54, s52, 2")
        a.I("s_lshl_b32 s54, s54, 10")
        a.I("s_lshl_b32 s55, s53, 5")
        a.I("s_add_u32 s54, s54, s55")
        a.I(f"s_lshl_b32 s55, s{S_W}, 3")
        a.I("s_add_u32 s54, s54, s55")
        a.I("s_lshl_b32 s54, s54, 10")
        if OPT.get("pftrim", 0):
            a.I("v_and_b32 v20, 7, v1")
            a.I("v_max_u32 v20, 3, v20")
            a.I("v_lshlrev_b32 v20, 7, v20")
            a.I("v_lshrrev_b32 v21, 3, v1")
            a.I("v_lshl_add_u32 v20, v21, 10, v20")
        else:
            a.I(f"v_lshlrev_b32 v20, {sh}, v1")
        for i in range(0 if OPT.get("nopfx") else 8192 // (64*G)):
            a.I(f"buffer_load_dword v24, v20, {S4(RC)}, s54 offen")
            a.I(f"s_add_u32 s54, s54, {64*G}")
        if OPT.get("pftrim", 0):
            a._pfl = lab("pfs")
            a.I("s_cmp_lt_u32 s53, 12")
            a.I(f"s_cbranch_scc1 {a._pfl}")
        srd(a, RC, S_WQKV, 512*3072)
        a.I("s_mul_i32 s54, s56, 3072")
        a.I("s_and_b32 s55, s52, 3")
        a.I("s_lshl_b32 s55, s55, 8")
        a.I("s_add_u32 s54, s54, s55")
        per = 256 // G
        a.I("v_lshrrev_b32 v21, 4, v1")
        a.I("v_mul_u32_u24 v21, 3072, v21")
        a.I("v_and_b32 v22, 15, v1")
        if G == 64:
            a.I("v_lshrrev_b32 v23, 2, v22")
            a.I("v_min_u32 v23, 2, v23")
            a.I("v_lshl_add_u32 v21, v23, 10, v21")
            a.I("v_and_b32 v22, 3, v22")
            a.I("v_lshl_add_u32 v21, v22, 6, v21")
            a.I(f"buffer_load_dword v25, v21, {S4(RC)}, s54 offen")
        elif G == 32:
            a.I("v_lshrrev_b32 v23, 3, v22")
            a.I("v_lshl_add_u32 v21, v23, 10, v21")
            a.I("v_and_b32 v22, 7, v22")
            a.I("v_lshl_add_u32 v21, v22, 5, v21")
            a.I(f"buffer_load_dword v25, v21, {S4(RC)}, s54 offen")
            a.I(f"buffer_load_dword v25, v21, {S4(RC)}, s54 offen offset:2048")
        else:
            a.I("v_lshrrev_b32 v23, 1, v22")
            a.I("v_min_u32 v23, 2, v23")
            a.I("v_lshl_add_u32 v21, v23, 10, v21")
            a.I("v_and_b32 v22, 1, v22")
            a.I("v_lshl_add_u32 v21, v22, 7, v21")
            a.I(f"buffer_load_dword v25, v21, {S4(RC)}, s54 offen")
        if OPT.get("pftrim", 0):
            a.L(a._pfl)
    else:
        a.I(f"s_cmp_ge_u32 s{S_W}, 2")
        a.I("s_cbranch_scc1 L_pf1")
        srd(a, RC, S_W1, 512*2752)
        a.I("s_and_b32 s55, s52, 3")
        a.I("s_mul_i32 s55, s55, 12")
        a.I("s_min_u32 s55, s55, 31")
        a.I("s_lshl_b32 s55, s55, 6")
        a.I("s_lshl_b32 s54, s53, 4")
        a.I(f"s_lshl_b32 s56, s{S_W}, 3")
        a.I("s_add_u32 s54, s54, s56")
        a.I("s_mul_i32 s54, s54, 2752")
        a.I("s_add_u32 s54, s54, s55")
        a.I("v_lshrrev_b32 v21, 3, v1")
        a.I("v_mul_u32_u24 v21, 2752, v21")
        a.I("v_and_b32 v22, 7, v1")
        a.I("v_lshl_add_u32 v21, v22, 7, v21")
        a.I(f"buffer_load_dword v26, v21, {S4(RC)}, s54 offen")
        a.L("L_pf1")

def consumer(a):
    a.L("L_cons")
    H, XA, WA, ACC, B1, FA, FB = 2, 8, 12, 32, 80, 104, 136
    if not OPT.get("nopf") and not OPT.get("pflate") and not OPT.get("pfprod"):
        l2_prefetch(a, OPT.get("pfmode", 0))
    a.I(f"v_lshrrev_b32 v{H}, 5, v1")
    a.I(f"s_and_b32 s63, s{S_W}, 1")
    a.I(f"s_lshr_b32 s64, s{S_W}, 1")
    srd(a, RD, S_B1, 2752)
    a.I(f"s_add_u32 s54, s{S_START}, s63")
    a.I("s_lshl_b32 s54, s54, 6")
    a.I(f"v_lshlrev_b32 v3, 3, v{H}")
    for s in range(3):
        for q in range(4):
            r = B1 + (s*4+q)*2
            a.I(f"buffer_load_dwordx2 v[{r}:{r+1}], v3, {S4(RD)}, s54 offen offset:{s*128+q*16}")
    for i in range(48):
        a.I(f"v_mov_b32 v{ACC+i}, 0")
    a.I("v_and_b32 v16, 31, v1")
    a.I("v_bfe_u32 v17, v1, 1, 3")
    a.I("s_lshl_b32 s54, s64, 5")
    a.I("v_add_u32 v16, s54, v16")
    a.I("v_lshlrev_b32 v16, 7, v16")
    a.I(f"v_xor_b32 v17, v17, v{H}")
    for ks in range(4):
        a.I(f"v_xor_b32 v18, {2*ks}, v17")
        a.I(f"v_lshl_add_u32 v{XA+ks}, v18, 4, v16")
    tr_lane_addr(a, WA, 1, 16, 17, 8, 384)
    a.I("s_lshl_b32 s54, s63, 6")
    a.I(f"v_xor_b32 v{WA}, s54, v{WA}")
    a.I(f"v_add_u32 v{WA}, 0x10000, v{WA}")
    a.I(f"v_add_u32 v{WA+1}, 49152, v{WA}")
    WF1 = [14, 15, 28, 29, 30, 23]
    if OPT.get("w1perm", 0):
        a.I("v_bfe_u32 v16, v1, 2, 2")
        a.I(f"v_lshl_add_u32 v17, v{H}, 3, v16")
        a.I("v_mul_u32_u24 v17, 384, v17")
        a.I("v_bfe_u32 v18, v1, 4, 1")
        a.I("v_lshlrev_b32 v18, 1, v18")
        a.I("v_bfe_u32 v19, v1, 1, 1")
        a.I("v_add_u32 v18, v18, v19")
        a.I("v_lshl_add_u32 v17, v18, 4, v17")
        a.I("v_and_b32 v18, 1, v1")
        a.I("v_lshl_add_u32 v17, v18, 3, v17")
        a.I("v_add_u32 v17, 0x10000, v17")
        a.I(f"v_add_u32 v18, s{S_START}, v16")
        a.I("v_and_b32 v18, 1, v18")
        a.I("v_cmp_eq_u32 vcc, 1, v18")
        a.I("v_bfe_u32 v19, v1, 3, 1")
        inv = [4, 0, 1, 2, 3, 5]
        for s_ in range(3):
            a.I(f"s_cmp_eq_u32 s63, 0")
            a.I(f"s_cselect_b32 s54, {2*s_}, {2*s_+1}")
            a.I(f"s_cselect_b32 s55, {inv[2*s_]}, {inv[2*s_+1]}")
            a.I(f"v_mov_b32 v26, s54")
            a.I(f"v_mov_b32 v27, s55")
            a.I(f"v_cndmask_b32 v26, v26, v27, vcc")
            a.I(f"v_xor_b32 v26, v26, v19")
            a.I(f"v_lshl_add_u32 v{WF1[s_]}, v26, 6, v17")
            a.I(f"v_add_u32 v{WF1[3+s_]}, 49152, v{WF1[s_]}")

    def reads(b, G, F, qkv=True):
        out = []
        if OPT.get("p1nocons"): return ["s_nop 0"]
        wv = WA + (b >> 1)
        for l in range(2):
            ks = 2*G + l
            out.append(f"ds_read_b128 {vr(F+4*l,4)}, v{XA+ks} offset:{b*8192}")
            for s in range(3):
                for rd in range(2):
                    if qkv or not OPT.get("w1perm", 0):
                        out.append(f"ds_read_b64_tr_b16 {vr(F+8+12*l+4*s+2*rd,2)}, v{wv} offset:{(b&1)*24576 + ks*6144 + rd*1536 + s*128}")
                    else:
                        out.append(f"ds_read_b64_tr_b16 {vr(F+8+12*l+4*s+2*rd,2)}, v{WF1[3*(b>>1)+s]} offset:{(b&1)*24576 + ks*6144 + rd*1536}")
        return out
    def mfmas(F, qkv):
        out = []
        if OPT.get("p1nocons") or OPT.get("p1nomfma"): return ["s_nop 0"]
        for l in range(2):
            for s in range(3):
                X, W = F+4*l, F+8+12*l+4*s
                out.append(MF(ACC+16*s, X, W, ACC+16*s) if (qkv and s == 2) else MF(ACC+16*s, W, X, ACC+16*s))
        return out
    def inter(mf, rd):
        out = []
        per = OPT.get("iper", [4, 4, 3, 3, 0, 0])
        if len(mf) != 6: return mf + rd
        k = 0
        for i, m in enumerate(mf):
            out.append(m)
            out += rd[k:k+per[i]]
            k += per[i]
        assert k >= len(rd)
        return out
    def stage_loop(tag, qkv):
        a.I("s_mov_b32 s65, 0x8000")
        a.L(f"L_loop_{tag}")
        fap = OPT.get("fapos", 2)
        for b in range(4):
            a.I("s_waitcnt lgkmcnt(0)")
            a.I(J(inter(mfmas(FA, qkv), reads(b, 1, FB, qkv))))
            if (not qkv) and b == (fap & 3):
                if fap >= 4:
                    a.I("s_cmp_lt_i32 s65, 0")
                    a.I(f"s_cbranch_scc0 L_nodrain")
                a.I("s_waitcnt vmcnt(0)")
                if fap >= 4: a.L("L_nodrain")
            a.I("s_waitcnt lgkmcnt(0)")
            if b == 3:
                if not qkv:
                    a.I("s_cmp_lt_i32 s65, 0")
                    a.I(f"s_cbranch_scc1 L_last_{tag}")
                for ks in range(4):
                    a.I(f"v_add_u32 v{XA+ks}, s65, v{XA+ks}")
            stamp_dyn(a)
            a.I("s_barrier")
            stamp_dyn(a)
            if qkv and b == 3:
                a.I("s_cmp_lt_i32 s65, 0")
                a.I("s_cbranch_scc1 L_qtail")
            a.I(J(inter(mfmas(FB, qkv), reads((b+1) % 4, 0, FA, qkv))))
        if qkv:
            a.I("s_mov_b32 s65, 0xffff8000")
            a.I(f"s_branch L_loop_{tag}")
            a.L("L_qtail")
            a.I(J(inter(mfmas(FB, qkv), reads(0, 0, FA, False))))
        else:
            a.I("s_mov_b32 s65, 0xffff8000")
            a.I(f"s_branch L_loop_{tag}")
        if not qkv:
            a.L(f"L_last_{tag}")
            a.I(J(mfmas(FB, qkv)))

    if OPT.get("pflate"):
        for i in range(OPT["pflate"]):
            a.I("s_sleep 8")
        l2_prefetch(a, 0)
    if OPT.get("pfw1early"):
        l2_prefetch(a, 1)
    a.I("s_barrier")
    stamp(a, "B0")
    if STAMPS and OPT.get("fine"): a.I("s_mov_b32 s87, 24")
    if not OPT.get("nopf") and not OPT.get("pfw1early") and not OPT.get("nopfw1", 1):
        l2_prefetch(a, 1)
    if OPT.get("w1late"):
        lw1 = lab("pw1")
        a.I(f"s_cmp_lg_u32 s{S_W}, 2")
        a.I(f"s_cbranch_scc1 {lw1}")
        a.I("v_lshlrev_b32 v20, 7, v1")
        srd(a, RC, S_W1, 512*2752)
        a.I("s_mul_i32 s54, s2, 5504")
        a.I("s_mov_b32 exec_hi, 0xfff")
        a.I(f"buffer_load_dword v24, v20, {S4(RC)}, s54 offen")
        a.I("s_mov_b64 exec, -1")
        a.L(lw1)
    if OPT.get("pfw2") == 2:
        lw = lab("pw2")
        a.I(f"s_cmp_lg_u32 s{S_W}, 3")
        a.I(f"s_cbranch_scc1 {lw}")
        glob_w2(a)
        a.L(lw)
    a.I(J(reads(0, 0, FA)))
    stage_loop("q", True)
    stamp(a, "qloop")
    srd(a, RA, S_WS, VF + 2*MB)
    a.I(f"s_lshl_b32 s54, s{S_RB}, 1")
    a.I("s_add_u32 s54, s54, s64")
    a.I(f"s_lshl_b32 s55, s{S_CG}, 2")
    a.I("s_lshl_b32 s56, s63, 1")
    a.I("s_add_u32 s55, s55, s56")
    a.I("s_lshl_b32 s55, s55, 6")
    a.I("s_add_u32 s54, s54, s55")
    a.I("s_lshl_b32 s54, s54, 10")
    a.I("v_lshlrev_b32 v3, 4, v1")
    a.I("v_bfe_u32 v4, v1, 4, 1")
    a.I("v_lshlrev_b32 v4, 16, v4")
    a.I(f"v_lshl_add_u32 v4, v{H}, 8, v4")
    a.I("v_and_b32 v5, 15, v1")
    a.I("v_lshl_add_u32 v4, v5, 4, v4")
    a.I(f"s_mov_b32 s56, {hex(f2u(QSCALE))}")
    a.I("s_waitcnt vmcnt(0)")
    a.I("s_nop 4")
    for idx, s in enumerate((1, 2, 0)):
        d = ACC + 16*s
        if s == 0:
            for i in range(16):
                a.I(f"v_mul_f32 v{d+i}, s56, v{d+i}")
        for j in range(8):
            a.I(f"v_cvt_pk_bf16_f32 v{d+j}, v{d+2*j}, v{d+2*j+1}")
        if s < 2:
            for hh in range(2):
                a.I(f"s_add_u32 s55, s54, {(KF if s else QF) + hh*65536}")
                a.I(f"buffer_store_dwordx4 {vr(d+4*hh,4)}, v3, {S4(RA)}, s55 offen sc1")
        else:
            a.I(f"s_add_u32 s55, s54, {VF}")
            for u in range(2):
                a.I(f"buffer_store_dwordx4 {vr(d+4*u,4)}, v4, {S4(RA)}, s55 offen offset:{u*512} sc1")
    a.I("s_nop 1")
    for s in range(3):
        for q in range(4):
            r = B1 + (s*4+q)*2
            d = ACC + s*16 + q*4
            a.I(f"v_lshlrev_b32 v{d}, 16, v{r}")
            a.I(f"v_and_b32 v{d+1}, 0xffff0000, v{r}")
            a.I(f"v_lshlrev_b32 v{d+2}, 16, v{r+1}")
            a.I(f"v_and_b32 v{d+3}, 0xffff0000, v{r+1}")
    stage_loop("f", False)
    a.I("s_barrier")
    stamp(a, "floop")
    srd_off(a, RA, S_WS, HF, HF_SIZE)
    a.I(f"s_lshl_b32 s54, s{S_RB}, 1")
    a.I("s_add_u32 s54, s54, s64")
    a.I(f"s_add_u32 s55, s{S_START}, s63")
    a.I("s_lshl_b32 s55, s55, 7")
    a.I("s_add_u32 s54, s54, s55")
    a.I("s_lshl_b32 s54, s54, 10")
    a.I("v_lshlrev_b32 v3, 4, v1")
    a.I("s_nop 4")
    HP = 120
    defer = OPT.get("hdefer", 1)
    for s in range(3):
        d = ACC + 16*s
        for i in range(16):
            a.I(f"v_max_f32 v{d+i}, 0, v{d+i}")
        for i in range(16):
            a.I(f"v_mul_f32 v{d+i}, v{d+i}, v{d+i}")
        for j in range(8):
            a.I(f"v_cvt_pk_bf16_f32 v{(HP+8*s if defer else d)+j}, v{d+2*j}, v{d+2*j+1}")
    if defer:
        a.I("s_mov_b32 s83, s54")
    else:
        if OPT.get("hlate", 1):
            lds_spin(a, M_KV, 4, 20, 21, 0)
        for s in range(3):
            d = ACC + 16*s
            for uu in range(2):
                a.I(f"s_add_u32 s55, s54, {(4*s+uu)*65536}")
                a.I(f"buffer_store_dwordx4 {vr(d+4*uu,4)}, v3, {S4(RA)}, s55 offen sc1")
    a.I("s_nop 1")
    a.I("s_branch L_attn")

def aux_side_issue(a):
    a.I("s_sub_u32 s66, s67, 4")
    a.I(f"s_lshl_b32 s54, s2, 2")
    a.I("s_or_b32 s54, s54, s66")
    a.I("s_cmp_lg_u32 s54, 0")
    a.I("s_cbranch_scc1 L_aux1")
    srd(a, RD, S_DBG, 256)
    a.I("s_memrealtime s[54:55]")
    a.I("s_waitcnt lgkmcnt(0)")
    a.I("s_or_b32 s85, s54, 1")
    a.I("v_mov_b32 v8, s85")
    a.I("v_mov_b32 v10, 0")
    a.I("s_mov_b64 exec, 1")
    a.I(f"buffer_store_dword v8, v10, {S4(RD)}, 0 offen sc1")
    a.I("s_mov_b64 exec, -1")
    a.L("L_aux1")
    a.I(f"s_lshl_b32 s54, s{S_RB}, 6")
    a.I(f"s_lshl_b32 s55, s{S_CG}, 3")
    a.I("s_add_u32 s54, s54, s55")
    a.I("s_lshl_b32 s55, s66, 1")
    a.I("s_add_u32 s86, s54, s55")
    return 0

def aux_side_loads(a):
    a.I("s_lshl_b32 s54, s86, 10")
    srd_off(a, RD, S_AX, "s54", 2048)
    a.I("v_and_b32 v2, 31, v1")
    a.I("v_lshlrev_b32 v2, 5, v2")
    a.I("v_lshrrev_b32 v3, 5, v1")
    a.I("v_lshl_add_u32 v4, v3, 10, v2")
    for i in range(2):
        a.I(f"buffer_load_dwordx4 {vr(32+4*i,4)}, v4, {S4(RD)}, 0 offen offset:{16*i}")
    srd(a, RD, S_GW, 1024)
    for i in range(2):
        a.I(f"buffer_load_dwordx4 {vr(40+4*i,4)}, v2, {S4(RD)}, 0 offen offset:{16*i}")
    n = 4
    if OPT.get("codepf", 1) and not OPT.get("codeearly", 1):
        a.I("s_getpc_b64 s[52:53]")
        a.L("L_pc")
        a.I(f"s_sub_u32 s52, s52, L_pc-{KN}")
        a.I("s_subb_u32 s53, s53, 0")
        a.I("s_mul_i32 s54, s66, 6144")
        a.I("v_lshlrev_b32 v5, 7, v1")
        a.I("v_add_u32 v5, s54, v5")
        a.I(f"v_min_u32 v5, L_code_end-{KN}-4, v5")
        a.I("s_mov_b32 exec_hi, 0xffff")
        a.I("global_load_dword v116, v5, s[52:53]")
        a.I("s_mov_b64 exec, -1")
        n += 1
    return n

def aux_nonce_issue(a):
    srd(a, RD, S_DBG, 256)
    a.I("v_mov_b32 v10, 0")
    a.I(f"buffer_load_dword v8, v10, {S4(RD)}, 0 offen sc1")
    return 1

def aux_nonce_take(a):
    a.I(f"v_readfirstlane_b32 s{S_NONCE}, v8")
    a.I("s_mov_b32 s50, 0x40000")
    a.L("L_nonce")
    a.I(f"s_cmp_lg_u32 s{S_NONCE}, 0")
    a.I("s_cbranch_scc1 L_nonce_ok")
    a.I("s_sub_u32 s50, s50, 1")
    a.I("s_cmp_eq_u32 s50, 0")
    a.I("s_cbranch_scc1 L_nonce_ok")
    srd(a, RD, S_DBG, 256)
    a.I(f"buffer_load_dword v8, v10, {S4(RD)}, 0 offen sc1")
    a.I("s_waitcnt vmcnt(0)")
    a.I(f"v_readfirstlane_b32 s{S_NONCE}, v8")
    a.I("s_branch L_nonce")
    a.L("L_nonce_ok")

def aux_gate(a):
    if OPT.get("p1noprod"): a.I("s_waitcnt vmcnt(0)")
    a.I("v_mov_b32 v24, 0")
    for i in range(8):
        a.I(f"v_dot2c_f32_bf16 v24, v{32+i}, v{40+i}")
    a.I("s_nop 3")
    for sh in (1, 2, 4, 8):
        a.I(f"v_add_f32_dpp v24, v24, v24 row_shr:{sh} row_mask:0xf bank_mask:0xf")
        a.I("s_nop 1")
    a.I("v_add_f32_dpp v24, v24, v24 row_bcast:15 row_mask:0xa bank_mask:0xf")
    a.I("s_nop 1")
    a.I("v_cvt_pk_bf16_f32 v24, v24, v24")
    a.I("v_and_b32 v24, 0xffff0000, v24")
    a.I(f"v_mul_f32 v24, {hex(f2u(-1.4426950408889634))}, v24")
    a.I("v_exp_f32 v24, v24")
    a.I("s_nop 0")
    a.I("v_add_f32 v24, 1.0, v24")
    a.I("v_rcp_f32 v24, v24")
    a.I("s_nop 0")
    a.I("v_cvt_pk_bf16_f32 v24, v24, v24")
    a.I("v_and_b32 v24, 0xffff0000, v24")
    srd_off(a, RD, S_WS, GO, 8192)
    a.I("s_lshl_b32 s54, s86, 2")
    a.I("v_lshrrev_b32 v3, 5, v1")
    a.I("v_lshlrev_b32 v3, 2, v3")
    a.I("s_mov_b32 s52, 0x80000000")
    a.I("s_mov_b32 s53, 0x80000000")
    a.I("s_mov_b64 exec, s[52:53]")
    a.I(f"buffer_store_dword v24, v3, {S4(RD)}, s54 offen sc1")
    a.I("s_mov_b64 exec, -1")

def aux_publish_fa(a):
    a.I("s_cmp_lg_u32 s66, 0")
    a.I("s_cbranch_scc1 L_aux2")
    srd_off(a, RD, S_WS, FLG, FLG_SIZE)
    a.I(f"s_lshl_b32 s54, s{S_CG}, 7")
    a.I(f"s_lshl_b32 s55, s{S_RB}, 2")
    a.I("s_add_u32 s54, s54, s55")
    a.I(f"s_add_u32 s54, s54, {FA_OFF}")
    a.I(f"v_mov_b32 v8, s{S_NONCE}")
    a.I(f"v_mov_b32 v10, 0")
    a.I("s_mov_b64 exec, 1")
    a.I(f"buffer_store_dword v8, v10, {S4(RD)}, s54 offen sc1")
    a.I("s_mov_b64 exec, -1")
    stamp(a, "FApub")
    a.L("L_aux2")

def aux_zero_misc(a):
    a.I("s_cmp_lg_u32 s66, 1")
    a.I("s_cbranch_scc1 L_aux3")
    a.I(f"v_lshlrev_b32 v10, 2, v1")
    if L_MISC: a.I(f"v_add_u32 v10, {L_MISC}, v10")
    a.I("v_mov_b32 v9, 0")
    a.I("ds_write_b32 v10, v9")
    a.I("s_waitcnt lgkmcnt(0)")
    a.I("v_mov_b32 v10, 0")
    a.L("L_aux3")

def aux_share_nonce(a):
    a.I("s_cmp_lg_u32 s66, 0")
    a.I("s_cbranch_scc1 L_aux4")
    a.I(f"v_mov_b32 v9, {L_MISC + 128}")
    a.I(f"v_mov_b32 v11, s{S_NONCE}")
    a.I("ds_write_b32 v9, v11")
    a.I("s_waitcnt lgkmcnt(0)")
    a.L("L_aux4")

def aux_fa_probe(a, second):
    if second:
        a.I("s_mov_b32 exec_hi, 0")
        a.I(f"buffer_load_dword v26, v9, {S4(RC)}, s88 offen sc1")
        a.I("s_mov_b64 exec, -1")
        return
    srd_off(a, RC, S_WS, FLG, FLG_SIZE)
    a.I(f"s_lshr_b32 s88, s{S_HD}, 2")
    a.I("s_lshl_b32 s88, s88, 7")
    a.I(f"s_add_u32 s88, s88, {FA_OFF}")
    a.I("v_lshlrev_b32 v9, 2, v1")
    a.I("s_mov_b32 exec_hi, 0")
    a.I(f"buffer_load_dword v11, v9, {S4(RC)}, s88 offen sc1")
    a.I("s_mov_b64 exec, -1")
    VL = 4
    a.I(f"v_lshlrev_b32 v{VL}, 4, v1")
    a.I(f"s_lshl_b32 s54, s{S_HD}, 16")
    a.I(f"s_add_u32 s55, s54, {KF}")
    srd_off(a, RA, S_WS, "s55", 65536)
    a.I(f"s_add_u32 s55, s54, {VF}")
    srd_off(a, RB, S_WS, "s55", 65536)
    a.I(f"s_add_u32 s55, s54, {QF}")
    srd_off(a, RD, S_WS, "s55", 65536)
    a.I(f"s_lshl_b32 s54, s{S_QB}, 3")
    a.I("s_lshl_b32 s55, s66, 1")
    a.I("s_add_u32 s54, s54, s55")
    a.I("s_lshl_b32 s54, s54, 10")
    a.I("s_lshl_b32 s55, s66, 11")
    a.I(f"s_add_u32 s55, s55, {L_RING}")

def aux_after_e1(a):
    a.I("s_mov_b32 s67, s66")
    a.I("s_setprio 3")
    stamp(a, "E2")
    a.I("s_mov_b32 exec_hi, 0")
    a.I("s_waitcnt vmcnt(1)")
    a.I(f"v_cmp_ne_u32 vcc, s{S_NONCE}, v11")
    a.I("s_cbranch_vccz L_aux5a")
    a.I("s_waitcnt vmcnt(0)")
    a.I(f"v_cmp_ne_u32 vcc, s{S_NONCE}, v26")
    a.L("L_aux5a")
    a.I("s_mov_b64 exec, -1")
    a.I("s_cbranch_vccz L_aux5")
    poll(a, RC, 32, 9, 11, "s88", OPT.get("faslp", 2))
    a.L("L_aux5")
    stamp(a, "FAok")
    VL = 4
    for t in range(2):
        a.I(f"s_add_u32 m0, s55, {t*1024}")
        a.I(f"s_add_u32 s56, s54, {t*1024}")
        a.I(f"buffer_load_dwordx4 v{VL}, {S4(RD)}, s56 offen sc1 lds")
    a.I("s_lshl_b32 s54, s67, 10")
    def kvchunks(cs):
        for c in cs:
            a.I(f"s_add_u32 s55, s54, {c*4096}")
            a.I(f"s_add_u32 m0, s55, {L_K}")
            a.I(f"s_add_u32 s56, s55, {L_V}")
            a.I(f"buffer_load_dwordx4 v{VL}, {S4(RA)}, s55 offen sc1 lds")
            a.I("s_mov_b32 m0, s56")
            a.I("s_nop 0")
            a.I(f"buffer_load_dwordx4 v{VL}, {S4(RB)}, s55 offen sc1 lds")
    m1x = OPT.get("m1x", 0)
    kvchunks(range(0, 2 + m1x))
    a.I(f"s_waitcnt vmcnt({2*m1x})")
    lds_add1(a, M_KV, 8, 9)
    stamp(a, "KV1")
    kvchunks(range(2 + m1x, 16))
    a.I("s_lshr_b32 s53, s2, 3")
    srd(a, RA, S_W2, 1376*1024)
    srd(a, RB, S_WO, 512*1024)
    a.I("s_mul_i32 s54, s53, 44032")
    a.I("s_lshl_b32 s55, s67, 10")
    a.I("s_add_u32 s54, s54, s55")
    a.I("s_waitcnt vmcnt(0)")
    lds_add1(a, M_KV, 8, 9)
    stamp(a, "KV2")
    a.I("v_lshlrev_b32 v10, 7, v1")
    a.I("s_lshl_b32 s55, s67, 13")
    a.I("s_mul_i32 s54, s53, 44032")
    a.I("s_add_u32 s54, s54, s55")
    a.I(f"buffer_load_dword v40, v10, {S4(RA)}, s54 offen")
    a.I("s_add_u32 s54, s54, 32768")
    a.I(f"buffer_load_dword v41, v10, {S4(RA)}, s54 offen")
    a.I("s_lshl_b32 s54, s53, 14")
    a.I("s_lshl_b32 s55, s67, 12")
    a.I("s_add_u32 s54, s54, s55")
    a.I("s_mov_b32 exec_hi, 0")
    a.I(f"buffer_load_dword v42, v10, {S4(RB)}, s54 offen")
    a.I("s_mov_b64 exec, -1")

def ffn2_p3(a):
    WF, HR, ACC2, BPR = 24, 40, 104, 8
    VH, VW, VA0, VA1 = 2, 3, 4, 5
    a.I("s_cmp_lg_u32 s67, 0")
    a.I("s_cbranch_scc1 L_f1")
    lds_spin(a, M_HST, 4, 8, 9, OPT.get('fslp', 1))
    lds_spin(a, M_KV, 8, 8, 9)
    a.I(f"s_lshl_b32 s54, s{S_RB}, 7")
    a.I(f"s_lshl_b32 s55, s{S_CG}, 2")
    a.I("s_add_u32 s54, s54, s55")
    a.I(f"s_add_u32 s54, s54, {FH_OFF}")
    flag_store(a, "s54", 8, 10)
    a.I(f"s_lshl_b32 s54, s{S_HD}, 7")
    a.I(f"s_add_u32 s54, s54, {FH_OFF}")
    a.I("v_lshlrev_b32 v8, 2, v1")
    poll(a, RC, 8, 8, 9, "s54", OPT.get("fhslp", 8))
    lds_add1(a, M_H, 8, 9)
    a.I("s_branch L_f2")
    a.L("L_f1")
    lds_spin(a, M_H, 1, 8, 9, OPT.get('fslp', 1))
    a.L("L_f2")
    lds_spin(a, M_QRD, 8, 8, 9, OPT.get('fslp', 1))
    stamp(a, "hready")
    if OPT.get("tailpf"):
        srd(a, RA, S_B2, 1024)
        a.I("v_lshlrev_b32 v10, 7, v1")
        a.I("s_mov_b32 exec_lo, 0xff")
        a.I("s_mov_b32 exec_hi, 0")
        a.I(f"buffer_load_dword v43, v10, {S4(RA)}, 0 offen")
        if OPT["tailpf"] > 1:
            srd(a, RA, S_OUT, 2*MB)
            a.I(f"s_lshl_b32 s54, s{S_HD}, 16")
            a.I("s_mov_b32 exec_lo, 1")
            a.I(f"buffer_load_dword v44, v10, {S4(RA)}, s54 offen")
        a.I("s_mov_b64 exec, -1")
    srd(a, RA, S_W2, 1376*1024)
    srd_off(a, RB, S_WS, HF, HF_SIZE)
    a.I(f"v_lshlrev_b32 v{VH}, 4, v1")
    dma_w_lane_off(a, VW, 1, 8, 9, 1024)
    a.I(f"s_lshl_b32 s54, s{S_QB}, 7")
    a.I(f"v_add_u32 v{VW}, s54, v{VW}")
    tr_lane_addr(a, VA0, 1, 8, 9, 4, 128)
    a.I("s_mul_i32 s68, s67, 6144")
    a.I(f"s_add_u32 s68, s68, {L_RING}")
    a.I(f"v_add_u32 v{VA0}, s68, v{VA0}")
    a.I(f"v_xor_b32 v{VA1}, 64, v{VA0}")
    a.I("s_mul_i32 s54, s67, 24")
    a.I("s_lshl_b32 s70, s54, 14")
    a.I("s_lshl_b32 s71, s54, 16")
    a.I(f"s_lshl_b32 s55, s{S_HD}, 11")
    a.I("s_add_u32 s71, s71, s55")
    for i in range(64):
        a.I(f"v_mov_b32 v{ACC2+i}, 0")
    a.I("s_waitcnt vmcnt(0)")
    def fissue(slot):
        return [f"s_add_u32 m0, s68, {slot*2048}",
                f"s_add_u32 s69, s70, 8192",
                f"buffer_load_dwordx4 v{VW}, {S4(RA)}, s70 offen lds",
                f"s_add_u32 m0, s68, {slot*2048+1024}",
                f"s_add_u32 s70, s70, 16384",
                f"buffer_load_dwordx4 v{VW}, {S4(RA)}, s69 offen lds",
                f"buffer_load_dwordx4 {vr(HR+slot*8,4)}, v{VH}, {S4(RB)}, s71 offen sc1",
                f"buffer_load_dwordx4 {vr(HR+slot*8+4,4)}, v{VH}, {S4(RB)}, s71 offen offset:1024 sc1",
                f"s_add_u32 s71, s71, 65536"]
    def trr(F, off):
        out = []
        for ct, va in ((0, VA0), (1, VA1)):
            for rd in range(2):
                out.append(f"ds_read_b64_tr_b16 {vr(F+4*ct+2*rd,2)}, v{va} offset:{off + rd*1024}")
        return out
    N2 = OPT.get("n2", 0)
    a.I("s_cmp_eq_u32 s67, 3")
    a.I(f"s_cselect_b32 s72, {5-N2}, {8-N2}")
    for slot in range(3):
        a.I(J(fissue(slot)))
    a.I(f"s_setprio {OPT.get('ffnprio', 0)}")
    if OPT.get("noffn"): a.I("s_branch L_fskip")
    a.L("L_floop")
    for slot in range(3):
        a.I("s_waitcnt vmcnt(8)")
        a.I(J(trr(WF, slot*2048)))
        a.I("s_waitcnt lgkmcnt(0)")
        fi = fissue(slot)
        mf = lambda ct, rt: MF(ACC2 + (ct*2+rt)*16, WF+4*ct, HR+slot*8+4*rt, ACC2 + (ct*2+rt)*16)
        if OPT.get("fspread", 1):
            a.I(mf(0, 0)); a.I(J(fi[0:3]))
            a.I(mf(1, 0)); a.I(J(fi[3:6]))
            a.I(mf(0, 1)); a.I(fi[6])
            a.I(mf(1, 1)); a.I(J(fi[7:]))
        else:
            for ct in range(2):
                for rt in range(2):
                    a.I(mf(ct, rt))
            a.I(J(fi))
    a.I("s_sub_u32 s72, s72, 1")
    a.I("s_cmp_lg_u32 s72, 0")
    a.I("s_cbranch_scc1 L_floop")
    a.L("L_fskip")
    a.I("s_setprio 3")
    a.I("s_waitcnt vmcnt(0)")
    lds_add1(a, M_FFN, 8, 9)
    stamp(a, "ffn2")
    srd_off(a, RA, S_WS, GO, 8192)
    srd(a, RB, S_B2, 1024)
    a.I("s_and_b32 s73, s67, 1")
    a.I("s_lshr_b32 s74, s67, 1")
    a.I(f"s_lshl_b32 s75, s{S_HD}, 6")
    a.I("s_lshl_b32 s54, s73, 5")
    a.I("s_add_u32 s75, s75, s54")
    a.I("s_lshl_b32 s54, s75, 2")
    a.I("v_and_b32 v8, 31, v1")
    a.I("v_lshlrev_b32 v8, 2, v8")
    a.I(f"buffer_load_dword v39, v8, {S4(RA)}, s54 offen sc1")
    a.I(f"s_lshl_b32 s54, s{S_QB}, 6")
    a.I("s_lshl_b32 s55, s74, 5")
    a.I("s_add_u32 s54, s54, s55")
    a.I("s_lshl_b32 s54, s54, 1")
    a.I("v_lshrrev_b32 v8, 5, v1")
    a.I("v_lshlrev_b32 v8, 3, v8")
    for q in range(4):
        a.I(f"buffer_load_dwordx2 v[{42+2*q}:{43+2*q}], v8, {S4(RB)}, s54 offen offset:{q*16}")
    tr_lane_addr(a, VA0, 1, 32, 33, 4, 128)
    a.I("s_lshl_b32 s54, s74, 6")
    a.I(f"v_xor_b32 v{VA0}, s54, v{VA0}")
    a.I(f"v_add_u32 v{VA0}, {L_K}, v{VA0}")
    a.I("s_lshl_b32 s54, s73, 15")
    a.I(f"s_add_u32 s54, s54, {L_V}")
    a.I(f"v_add_u32 v{VA1}, s54, v{VH}")
    a.I("s_lshl_b32 s58, s75, 10")
    a.I(f"s_lshl_b32 s59, s{S_QB}, 7")
    a.I("s_add_u32 s58, s58, s59")
    a.I("s_lshl_b32 s59, s74, 6")
    a.I("s_add_u32 s58, s58, s59")
    a.I("v_and_b32 v32, 31, v1")
    a.I("v_lshlrev_b32 v32, 10, v32")
    a.I("v_lshrrev_b32 v33, 5, v1")
    a.I("v_lshl_add_u32 v32, v33, 4, v32")
    a.I("s_lshl_b32 s68, s67, 14")
    a.I(f"s_add_u32 s54, s68, {L_V}")
    a.I(f"v_add_u32 v34, s54, v{VH}")
    a.I("s_lshl_b32 s54, s67, 12")
    a.I(f"s_add_u32 s54, s54, {L_V}")
    a.I(f"v_add_u32 v35, s54, v{VH}")
    srd(a, RD, S_WO, 512*1024)
    a.I("s_lshl_b32 s56, s67, 14")
    a.I(f"s_add_u32 s56, s56, {L_K}")
    a.I("s_lshl_b32 s57, s67, 17")
    a.I("s_waitcnt vmcnt(0)")
    a.I("v_sub_f32 v41, 1.0, v39")
    a.I("v_cvt_pk_bf16_f32 v41, v41, v41")
    a.I("v_and_b32 v41, 0xffff0000, v41")
    for q in range(4):
        a.I(f"v_lshlrev_b32 v{BPR+4*q}, 16, v{42+2*q}")
        a.I(f"v_and_b32 v{BPR+4*q+1}, 0xffff0000, v{42+2*q}")
        a.I(f"v_lshlrev_b32 v{BPR+4*q+2}, 16, v{43+2*q}")
        a.I(f"v_and_b32 v{BPR+4*q+3}, 0xffff0000, v{43+2*q}")
    lds_spin(a, M_ATT, 4, 36, 37, OPT.get('attslp', 1))
    stamp(a, "attdone")
    for i in range(16):
        a.I(f"ds_write_b128 v34, {vr(ACC2+4*i,4)} offset:{i*1024}")
    a.I("s_waitcnt lgkmcnt(0)")
    lds_add1(a, M_T1, 36, 37)
    for ks in range(8):
        for n in range(2):
            a.I(f"s_add_u32 m0, s56, {ks*2048+n*1024}")
            a.I(f"s_add_u32 s69, s57, {ks*16384+n*8192}")
            a.I(f"buffer_load_dwordx4 v{VW}, {S4(RD)}, s69 offen lds")
    lds_spin(a, M_T1, 4, 36, 37)
    for p in range(4):
        for q in range(4):
            a.I(f"ds_read_b128 {vr(ACC2+p*16+q*4,4)}, v35 offset:{p*16384+q*1024}")
    a.I("s_waitcnt lgkmcnt(0)")
    for i in range(16):
        a.I(f"v_add_f32 v{ACC2+i}, v{ACC2+i}, v{ACC2+16+i}")
        a.I(f"v_add_f32 v{ACC2+32+i}, v{ACC2+32+i}, v{ACC2+48+i}")
    for i in range(16):
        a.I(f"v_add_f32 v{ACC2+i}, v{ACC2+i}, v{ACC2+32+i}")
    for i in range(16):
        a.I(f"v_add_f32 v{BPR+i}, v{ACC2+i}, v{BPR+i}")
    for i in range(16):
        a.I(f"v_mul_f32 v{BPR+i}, v{BPR+i}, v41")
    FR = 40
    def wreads(ks):
        F = FR + (ks % 8) * 8
        return [f"ds_read_b64_tr_b16 {vr(F,2)}, v{VA0} offset:{ks*2048}",
                f"ds_read_b64_tr_b16 {vr(F+2,2)}, v{VA0} offset:{ks*2048+1024}"]
    def oread(ks):
        F = FR + (ks % 8) * 8
        return [f"ds_read_b128 {vr(F+4,4)}, v{VA1} offset:{ks*1024}"]
    srd_off(a, RB, S_WS, OF, 2*MB)
    srd(a, RA, S_OUT, 2*MB)
    a.I("s_cmp_lg_u32 s67, 0")
    a.I("s_cbranch_scc1 L_f4")
    a.I(f"s_lshl_b32 s54, s{S_HD}, 8")
    a.I(f"s_add_u32 s54, s54, {FO_OFF}")
    a.I("v_lshlrev_b32 v121, 2, v1")
    poll(a, RC, 64, 121, 122, "s54", OPT.get("foslp", 2))
    a.L("L_f4")
    a.I(f"s_lshl_b32 s54, s{S_HD}, 16")
    a.I("s_lshl_b32 s55, s67, 11")
    a.I("s_add_u32 s54, s54, s55")
    a.I(f"s_add_u32 s55, s55, {L_V}")
    a.I("s_waitcnt vmcnt(0)")
    a.I("s_barrier")
    stamp(a, "T2")
    def odma(ch):
        L = []
        for hh in range(2):
            for rt in range(2):
                off = rt*32768 + ch*8192 + hh*1024
                L.append([f"s_add_u32 m0, s55, {off}", f"s_add_u32 s56, s54, {off}",
                          f"buffer_load_dwordx4 v{VH}, {S4(RB)}, s56 offen sc1 lds"])
        return L
    for ch in range(4):
        for x in odma(ch): a.I(J(x))
        if ch == 0:
            for ks in range(8): a.I(J(wreads(ks)))
            a.I("s_waitcnt lgkmcnt(8)")
    for ch in range(4):
        a.I(f"s_waitcnt vmcnt({4*(3-ch)}) lgkmcnt(0)")
        a.I("s_barrier")
        for ks in range(8*ch, 8*ch+8): a.I(J(oread(ks)))
        for i in range(8):
            ks = 8*ch + i
            a.I(f"s_waitcnt lgkmcnt({7 + i if ch < 3 else 7 - i})")
            F = FR + i*8
            a.I(MF(ACC2, F, F+4, ACC2 if ks else None))
            if ch < 3: a.I(J(wreads(ks+8)))
    a.I("s_nop 15")
    stamp(a, "p3mm")
    for i in range(16):
        a.I(f"v_fma_f32 v{ACC2+i}, v{ACC2+i}, v39, v{BPR+i}")
    for j in range(8):
        a.I(f"v_cvt_pk_bf16_f32 v{ACC2+j}, v{ACC2+2*j}, v{ACC2+2*j+1}")
    a.I("s_nop 1")
    a.I(f"v_permlane32_swap_b32 v{ACC2}, v{ACC2+2}")
    a.I(f"v_permlane32_swap_b32 v{ACC2+1}, v{ACC2+3}")
    a.I(f"v_permlane32_swap_b32 v{ACC2+4}, v{ACC2+6}")
    a.I(f"v_permlane32_swap_b32 v{ACC2+5}, v{ACC2+7}")
    ofl = {0: "", 1: " sc1", 2: " nt", 3: " sc0 sc1"}[OPT.get("outfl", 0)]
    a.I(f"buffer_store_dwordx4 {vr(ACC2,4)}, v32, {S4(RA)}, s58 offen{ofl}")
    a.I(f"buffer_store_dwordx4 {vr(ACC2+4,4)}, v32, {S4(RA)}, s58 offen offset:32{ofl}")
    stamp_flush(a, "ffn")
    a.I("s_endpgm")

def attention(a):
    a.L("L_attn")
    stamp(a, "attn0")
    QA, QB = 8, 12
    KB = [16, 20]; VB = [24, 32]
    S0, S1, OA, OB = 40, 56, 72, 88
    VK, VV, VL = 2, 3, 4
    T0, T1, T2 = 104, 105, 106
    VKN, VVN, VVB, VCH, VONE, VNX = 107, 108, 109, 110, 111, 5
    VX128, VX32, VPAIR, VPFLAG, VTF = 144, 145, 146, 147, 148
    a.I(f"s_and_b32 s63, s{S_W}, 3")
    a.I(f"s_lshr_b32 s64, s{S_W}, 2")
    a.I(f"v_lshlrev_b32 v{VL}, 4, v1")
    a.I(f"v_lshrrev_b32 v{T0}, 5, v1")
    a.I(f"v_and_b32 v{T1}, 15, v1")
    a.I(f"v_lshlrev_b32 v{T1}, 4, v{T1}")
    a.I(f"v_lshl_add_u32 v{VVB}, v{T0}, 8, v{T1}")
    a.I(f"v_add_u32 v{VVB}, {L_V}, v{VVB}")
    a.I(f"v_add_u32 v{VKN}, {L_K}, v{VL}")
    a.I("s_lshl_b32 s54, s64, 12")
    a.I(f"v_add_u32 v{VK}, s54, v{VL}")
    a.I(f"v_add_u32 v{VV}, s54, v{VVB}")
    a.I("s_lshl_b32 s54, s63, 2")
    a.I(f"s_add_u32 s54, s54, {M_CH}")
    a.I(f"v_mov_b32 v{VCH}, s54")
    a.I(f"v_mov_b32 v{VONE}, 1")
    a.I("s_mov_b32 s74, 0x0000ffff")
    a.I("s_mov_b32 s75, 0x0000ffff")
    a.I("s_mov_b32 s77, 0")
    a.I(f"s_lshl_b32 s66, s{S_QB}, 3")
    a.I("s_lshl_b32 s54, s63, 1")
    a.I("s_add_u32 s66, s66, s54")
    a.I("s_lshl_b32 s54, s63, 11")
    a.I(f"s_add_u32 s54, s54, {L_RING}")
    a.I(f"v_add_u32 v{T2}, s54, v{VL}")
    a.I(f"v_and_b32 v{T0}, 31, v1")
    a.I(f"v_cmp_eq_u32 vcc, 16, v{T0}")
    a.I(f"v_mov_b32 v{T1}, 0x3f803f80")
    a.I("s_nop 1")
    a.I(f"v_cndmask_b32 v{T0}, 0, v{T1}, vcc")
    for i in range(16):
        a.I(f"v_mov_b32 v{VB[0]+i}, v{T0}")
    a.I("s_lshl_b32 s54, s63, 2")
    a.I(f"s_add_u32 s55, s54, {M_PAIR}")
    a.I(f"s_add_u32 s76, s54, {M_PFLAG}")
    a.I(f"v_mov_b32 v{VPAIR}, s55")
    a.I(f"v_mov_b32 v{VPFLAG}, s76")
    a.I("s_mul_i32 s54, s63, 4608")
    a.I(f"s_add_u32 s54, s54, {L_XCH}")
    a.I(f"v_add_u32 v{VX128}, s54, v{VL}")
    a.I(f"v_lshlrev_b32 v{VX32}, 2, v1")
    a.I(f"v_add_u32 v{VX32}, s54, v{VX32}")
    a.I(f"v_mov_b32 v{VTF}, {L_MISC + 128}")
    a.I(f"ds_read_b32 v{VTF}, v{VTF}")
    a.I("s_waitcnt lgkmcnt(0)")
    a.I(f"v_readfirstlane_b32 s{S_NONCE}, v{VTF}")
    for i in range(16):
        a.I(f"v_mov_b32 v{OA+i}, 0")
        a.I(f"v_mov_b32 v{OB+i}, 0")
    lds_spin(a, M_KV, 4, T0, T1, 0)
    stamp(a, "kvok")
    a.I(f"ds_read_b128 {vr(QA,4)}, v{T2}")
    a.I(f"ds_read_b128 {vr(QB,4)}, v{T2} offset:1024")
    a.I("s_lshl_b32 s71, s64, 12")
    if STAMPS and OPT.get("fineattn"): a.I("s_mov_b32 s87, 24")
    a.I("s_mov_b32 s73, 0")

    def e_(S, i): return f"v_exp_f32 v{S+i}, v{S+i}"
    def c_(S, j): return f"v_cvt_pk_bf16_f32 v{S+j}, v{S+2*j}, v{S+2*j+1}"
    def tile(Sin, Sout, Qn, Kn, Ocur, Vcur_u0, Oprev, Vprev_u1, after_pv2, wait_s, after_s, wait_pv1, do_pv2=True, do_s=True):
        e = lambda i: e_(Sin, i)
        c = lambda j: c_(Sin, j)
        L = [e(0), e(1)]
        if do_pv2: L.append(MF(Oprev, Vprev_u1, Sout+4, Oprev))
        L += after_pv2
        L += [e(2), e(3), c(0), e(4), e(5), c(1)]
        L += wait_s
        if do_s: L.append(MF(Sout, Kn, Qn))
        L += after_s
        L += [e(6), e(7), c(2), e(8), e(9), c(3), e(10), e(11)]
        L += wait_pv1
        L.append(MF(Ocur, Vcur_u0, Sin, Ocur))
        L += [c(4), e(12), e(13), c(5), e(14), e(15), c(6), c(7)]
        return L
    fifo = []
    def dsr(tag, txt): fifo.append(tag); return txt
    def need(tag):
        idx = max(i for i, t in enumerate(fifo) if t == tag)
        return [f"s_waitcnt lgkmcnt({len(fifo) - 1 - idx})"]
    def vreads(t):
        kap = t & 1
        return ["s_mov_b64 exec, s[74:75]",
                dsr(("V", t), f"ds_read_b128 {vr(VB[kap],4)}, v{VV} offset:{t*1024}"),
                dsr(("V", t), f"ds_read_b128 {vr(VB[kap]+4,4)}, v{VV} offset:{t*1024+512}"),
                "s_mov_b64 exec, -1"]
    def kread(t): return [dsr(("K", t), f"ds_read_b128 {vr(KB[t & 1],4)}, v{VK} offset:{t*1024}")]
    a.raw(".p2align 6")
    a.L("L_aloop")
    if OPT.get("fineattn"):
        OPT["fine"] = 1; stamp_dyn(a); OPT["fine"] = 0
    a.I(f"v_add_u32 v{VK}, s71, v{VKN}")
    a.I(f"v_add_u32 v{VV}, s71, v{VVB}")
    L = kread(0) + vreads(0) + kread(1)
    L += need(("K", 0))
    L.append(MF(S0, KB[0], QA))
    a.I(J(L))
    a.I("s_nop 7")
    a.I("s_nop 3")
    body = []
    for t in range(4):
        kap = t & 1
        A = []
        Sin, Sout = S0, S1
        A += [e_(Sin, 0), e_(Sin, 1)]
        if t > 0: A.append(MF(OB, VB[kap^1]+4, Sout+4, OB))
        if t + 1 < 4: A += vreads(t+1)
        A += [e_(Sin, 2), e_(Sin, 3), c_(Sin, 0), e_(Sin, 4), e_(Sin, 5), c_(Sin, 1)]
        A.append(MF(Sout, KB[kap], QB))
        if t + 2 < 4: A += kread(t+2)
        A += [e_(Sin, 6), e_(Sin, 7), c_(Sin, 2), e_(Sin, 8), e_(Sin, 9), c_(Sin, 3), e_(Sin, 10), e_(Sin, 11)]
        A += need(("V", t))
        A.append(MF(OA, VB[kap], Sin, OA))
        A += [c_(Sin, 4), e_(Sin, 12), e_(Sin, 13), c_(Sin, 5), e_(Sin, 14), e_(Sin, 15), c_(Sin, 6), c_(Sin, 7)]
        Sin, Sout = S1, S0
        B = [e_(Sin, 0), e_(Sin, 1), MF(OA, VB[kap]+4, Sout+4, OA)]
        if t == 3:
            B += ["s_mov_b64 exec, 1", dsr(("G",), f"ds_add_rtn_u32 v{VNX}, v{VCH}, v{VONE}"), "s_mov_b64 exec, -1"]
        B += [e_(Sin, 2), e_(Sin, 3), c_(Sin, 0), e_(Sin, 4), e_(Sin, 5), c_(Sin, 1)]
        if t + 1 < 4:
            B += need(("K", t+1))
            B.append(MF(Sout, KB[kap^1], QA))
        B += [e_(Sin, 6), e_(Sin, 7), c_(Sin, 2), e_(Sin, 8), e_(Sin, 9), c_(Sin, 3), e_(Sin, 10), e_(Sin, 11)]
        B.append(MF(OB, VB[kap], Sin, OB))
        B += [c_(Sin, 4), e_(Sin, 12), e_(Sin, 13), c_(Sin, 5), e_(Sin, 14), e_(Sin, 15), c_(Sin, 6), c_(Sin, 7)]
        body += A + B
    a.I(J(body))
    a.I("s_waitcnt lgkmcnt(0)")
    a.I(f"v_readfirstlane_b32 s70, v{VNX}")
    a.I(MF(OB, VB[1]+4, S1+4, OB))
    a.I("s_add_u32 s70, s70, 2")
    a.I("s_lshl_b32 s71, s70, 12")
    if OPT.get("hdefer", 1):
        a.I("s_cmp_ge_u32 s73, 2")
        a.I("s_cbranch_scc1 L_aloop2")
        a.I("s_cmp_eq_u32 s73, 1")
        a.I("s_cbranch_scc1 L_aloop3")
        a.I("s_mov_b32 s73, 1")
        lds_add1(a, M_QRD, T0, T1)
        a.I(f"s_cmp_ge_u32 s{S_W}, 4")
        a.I("s_cbranch_scc1 L_aloop1")
        for s_ in range(3):
            for uu in range(2):
                a.I(f"s_add_u32 s55, s83, {(4*s_+uu)*65536}")
                a.I(f"buffer_store_dwordx4 {vr(120+8*s_+4*uu,4)}, v{VL}, {S4(RA)}, s55 offen sc1")
        a.L("L_aloop1")
        lds_spin(a, M_KV, 8, T0, T1)
        a.I("s_branch L_aloop4")
        a.L("L_aloop3")
        a.I("s_mov_b32 s73, 2")
        a.I(f"s_cmp_ge_u32 s{S_W}, 4")
        a.I("s_cbranch_scc1 L_aloop2")
        a.I("s_waitcnt vmcnt(0)")
        lds_add1(a, M_HST, T0, T1)
        a.I("s_branch L_aloop2")
        a.L("L_aloop4")
        a.I("s_cmp_lt_u32 s70, 16")
        a.I("s_cbranch_scc1 L_aloop")
        a.I("s_branch L_aloop3")
    else:
        a.I("s_cmp_lg_u32 s73, 0")
        a.I("s_cbranch_scc1 L_aloop2")
        a.I("s_mov_b32 s73, 1")
        lds_add1(a, M_QRD, T0, T1)
        a.I("s_waitcnt vmcnt(0)")
        a.I(f"s_cmp_ge_u32 s{S_W}, 4")
        a.I("s_cbranch_scc1 L_aloop1")
        lds_add1(a, M_HST, T0, T1)
        a.L("L_aloop1")
        lds_spin(a, M_KV, 8, T0, T1)
    a.L("L_aloop2")
    a.I("s_cmp_lt_u32 s70, 16")
    a.I("s_cbranch_scc1 L_aloop")
    a.I("s_waitcnt lgkmcnt(0)")
    a.I("s_nop 7")
    stamp(a, "aloop")
    def preads():
        return [f"ds_read_b128 {vr(S1,4)}, v{VX128}", f"ds_read_b128 {vr(S1+4,4)}, v{VX128} offset:1024",
                f"ds_read_b128 {vr(S1+8,4)}, v{VX128} offset:2048", f"ds_read_b128 {vr(S1+12,4)}, v{VX128} offset:3072",
                f"ds_read_b32 v{T0}, v{VX32} offset:4096", f"ds_read_b32 v{T1}, v{VX32} offset:4352"]
    a.I("s_mov_b64 exec, 1")
    a.I(f"ds_add_rtn_u32 v{T2}, v{VPAIR}, v{VONE}")
    a.I("s_mov_b64 exec, -1")
    a.I(f"ds_read_b32 v{VTF}, v{VPFLAG}")
    a.I(J(preads()))
    a.I("s_waitcnt lgkmcnt(0)")
    a.I(f"v_readfirstlane_b32 s55, v{T2}")
    a.I(f"v_readfirstlane_b32 s56, v{VTF}")
    a.I("s_nop 3")
    a.I("s_cmp_lg_u32 s55, 0")
    a.I("s_cbranch_scc1 L_second")
    lds_spin(a, M_FFN, 4, T0, T1)
    a.I(f"ds_write_b128 v{VX128}, {vr(OA,4)}")
    a.I(f"ds_write_b128 v{VX128}, {vr(OA+4,4)} offset:1024")
    a.I(f"ds_write_b128 v{VX128}, {vr(OB,4)} offset:2048")
    a.I(f"ds_write_b128 v{VX128}, {vr(OB+4,4)} offset:3072")
    a.I(f"ds_write_b32 v{VX32}, v{OA+8} offset:4096")
    a.I(f"ds_write_b32 v{VX32}, v{OB+8} offset:4352")
    a.I("s_waitcnt lgkmcnt(0)")
    lds_add1(a, "s76", T0, T1)
    a.I("s_waitcnt lgkmcnt(0)")
    stamp_flush(a, "attn")
    a.I("s_endpgm")
    a.L("L_second")
    a.I("s_cmp_lg_u32 s56, 0")
    a.I("s_cbranch_scc1 L_second2")
    lds_spin(a, "s76", 1, T0, T1)
    a.I(J(preads()))
    a.I("s_waitcnt lgkmcnt(0)")
    a.L("L_second2")
    for i in range(8):
        a.I(f"v_add_f32 v{OA+i}, v{OA+i}, v{S1+i}")
        a.I(f"v_add_f32 v{OB+i}, v{OB+i}, v{S1+8+i}")
    a.I(f"v_add_f32 v{OA+8}, v{OA+8}, v{T0}")
    a.I(f"v_add_f32 v{OB+8}, v{OB+8}, v{T1}")
    a.L("L_fin")
    for O in (OA, OB):
        a.I(f"v_mov_b32 v{O+9}, v{O+8}")
    a.I("s_nop 1")
    for O in (OA, OB):
        a.I(f"v_permlane32_swap_b32 v{O+9}, v{O+8}")
    a.I("s_nop 1")
    for O in (OA, OB):
        a.I(f"v_rcp_f32 v{O+10}, v{O+9}")
    srd_off(a, RA, S_WS, OF, 2*MB)
    a.I("s_lshl_b32 s54, s66, 5")
    a.I(f"s_add_u32 s54, s54, s{S_HD}")
    a.I("s_lshl_b32 s55, s54, 10")
    for n_, O in enumerate((OA, OB)):
        for i in range(8):
            a.I(f"v_mul_f32 v{S0+8*n_+i}, v{O+i}, v{O+10}")
        for j in range(4):
            a.I(f"v_cvt_pk_bf16_f32 v{S1+4*n_+j}, v{S0+8*n_+2*j}, v{S0+8*n_+2*j+1}")
        a.I(f"buffer_store_dwordx4 {vr(S1+4*n_,4)}, v{VL}, {S4(RA)}, s55 offen sc1")
        if n_ == 0: a.I("s_add_u32 s55, s55, 32768")
    srd_off(a, RC, S_WS, FLG, FLG_SIZE)
    slow_check(a, OA, OB, T0, T1)
    lds_add1(a, M_ATT, T0, T1)
    a.I("s_lshl_b32 s54, s54, 2")
    a.I(f"s_add_u32 s54, s54, {FO_OFF}")
    a.I(f"v_mov_b32 v{T0}, s{S_NONCE}")
    a.I(f"v_lshlrev_b32 v{T1}, 7, v1")
    a.I("s_waitcnt vmcnt(0)")
    a.I("s_mov_b64 exec, 3")
    a.I(f"buffer_store_dword v{T0}, v{T1}, {S4(RC)}, s54 offen sc1")
    a.I("s_mov_b64 exec, -1")
    stamp_flush(a, "attn")
    a.I("s_endpgm")
    slow_path(a, QA, QB, KB, VB, S0, S1, OA, OB, VL, T0, T1, T2)

def slow_check(a, OA, OB, T0, T1):
    if OPT.get("noslow"): return
    a.I(f"v_mul_f32 v{T0}, 0, v{OA}")
    for i in range(1, 8):
        a.I(f"v_fma_f32 v{T0}, v{OA+i}, 0, v{T0}")
    for i in range(8):
        a.I(f"v_fma_f32 v{T0}, v{OB+i}, 0, v{T0}")
    a.I(f"v_cmp_eq_f32 s[78:79], 0, v{T0}")
    a.I(f"s_mov_b32 s80, {hex(f2u(2.0**-60))}")
    a.I(f"s_mov_b32 s81, {hex(f2u(2.0**60))}")
    for O in (OA, OB):
        a.I(f"v_cmp_le_f32 s[82:83], s80, v{O+9}")
        a.I(f"v_cmp_ge_f32 vcc, s81, v{O+9}")
        a.I("s_nop 1")
        a.I("s_and_b64 s[78:79], s[78:79], s[82:83]")
        a.I("s_and_b64 s[78:79], s[78:79], vcc")
    if OPT.get("forceslow"):
        a.I("s_mov_b64 s[78:79], 0")
    a.I("s_cmp_eq_u64 s[78:79], -1")
    a.I("s_cbranch_scc1 L_ok")
    a.I("s_cmp_eq_u32 s77, 0")
    a.I("s_cbranch_scc1 L_slow")
    a.L("L_ok")

def slow_path(a, QA, QB, KB, VB, S0, S1, OA, OB, VL, T0, T1, T2):
    if OPT.get("noslow"): return
    K, V0, M, C = KB[0], VB[0], 108, 112
    a.L("L_slow")
    a.I("s_waitcnt vmcnt(0)")
    a.I("s_mov_b32 s77, 1")
    a.I(f"v_lshrrev_b32 v{T0}, 5, v1")
    a.I(f"v_and_b32 v{T1}, 15, v1")
    a.I(f"v_lshlrev_b32 v{T1}, 4, v{T1}")
    a.I(f"v_lshl_add_u32 v{T2}, v{T0}, 8, v{T1}")
    a.I(f"v_add_u32 v{T2}, {L_V}, v{T2}")
    a.I(f"v_mov_b32 v{M}, 0xff800000")
    a.I(f"v_mov_b32 v{M+1}, 0xff800000")
    a.I(f"v_add_u32 v{T0}, {L_K}, v{VL}")
    a.I("s_mov_b32 s73, 0")
    a.L("L_slow1")
    a.I(f"ds_read_b128 {vr(K,4)}, v{T0}")
    a.I("s_waitcnt lgkmcnt(0)")
    a.I(MF(S0, K, QA))
    a.I(MF(S1, K, QB))
    a.I("s_nop 15")
    for S, m in ((S0, M), (S1, M+1)):
        for i in range(0, 16, 2):
            a.I(f"v_max3_f32 v{m}, v{S+i}, v{S+i+1}, v{m}")
    a.I(f"v_add_u32 v{T0}, 1024, v{T0}")
    a.I("s_add_u32 s73, s73, 1")
    a.I("s_cmp_lt_u32 s73, 64")
    a.I("s_cbranch_scc1 L_slow1")
    for m in (M, M+1):
        a.I(f"v_mov_b32 v{T1}, v{m}")
        a.I("s_nop 1")
        a.I(f"v_permlane32_swap_b32 v{T1}, v{m}")
        a.I("s_nop 1")
        a.I(f"v_max_f32 v{m}, v{m}, v{T1}")
    for t in range(2):
        for i in range(16):
            a.I(f"v_sub_f32 v{C+16*t+i}, 0, v{M+t}")
    for i in range(16):
        a.I(f"v_mov_b32 v{OA+i}, 0")
        a.I(f"v_mov_b32 v{OB+i}, 0")
    a.I(f"v_add_u32 v{T0}, {L_K}, v{VL}")
    a.I("s_mov_b32 s73, 0")
    a.L("L_slow2")
    a.I(f"ds_read_b128 {vr(K,4)}, v{T0}")
    a.I("s_mov_b64 exec, s[74:75]")
    a.I(f"ds_read_b128 {vr(V0,4)}, v{T2}")
    a.I(f"ds_read_b128 {vr(V0+4,4)}, v{T2} offset:512")
    a.I("s_mov_b64 exec, -1")
    a.I("s_waitcnt lgkmcnt(0)")
    a.I(MF(S0, K, QA, C))
    a.I(MF(S1, K, QB, C+16))
    a.I("s_nop 15")
    for S, O in ((S0, OA), (S1, OB)):
        for i in range(16):
            a.I(f"v_exp_f32 v{S+i}, v{S+i}")
        a.I("s_nop 0")
        for j in range(8):
            a.I(f"v_cvt_pk_bf16_f32 v{S+j}, v{S+2*j}, v{S+2*j+1}")
        a.I("s_nop 1")
        a.I(MF(O, V0, S, O))
        a.I(MF(O, V0+4, S+4, O))
    a.I(f"v_add_u32 v{T0}, 1024, v{T0}")
    a.I(f"v_add_u32 v{T2}, 1024, v{T2}")
    a.I("s_add_u32 s73, s73, 1")
    a.I("s_cmp_lt_u32 s73, 64")
    a.I("s_cbranch_scc1 L_slow2")
    a.I("s_nop 15")
    a.I("s_branch L_fin")

def gen():
    a = Asm()
    prologue(a)
    producer(a, False)
    consumer(a)
    a.L("L_aux")
    producer(a, True)
    ffn2_p3(a)
    attention(a)
    a.L("L_end")
    a.I("s_endpgm")
    a.L("L_code_end")
    a.I("s_endpgm")
    return a

HEADER = open("cdna_kernels/" + NAME + ".s.ref").read().split("; Override launch")[0]

DOC = """;
;  P1  waves 4-11 stream x / wqkv / w1 tiles into LDS (LDS-DMA), waves 0-3 run the MFMA GEMMs:
;      row maximum (L_slow).  Waves 8-11: ffn = h @ w2 for a 64 x 64 output tile (split over k, reduced through LDS).
;  P3  waves 8-11: out = g * (o @ wo) + (1 - g) * (ffn + b2).
"""

def build(path):
    a = gen()
    out = HEADER + f"; WSLAYOUT QF={QF} KF={KF} VF={VF} HF={HF} GO={GO} OF={OF}\n"
    out += f"; @launch grid=(256,1,1) block=(768,1,1) lds={LDS_TOTAL}\n"
    out += DOC
    out += '.amdgcn_target "amdgcn-amd-amdhsa--gfx950"\n.text\n' + a.text()
    out += f""".section .rodata,"a"
.p2align 6
.amdhsa_kernel {KN}
  .amdhsa_next_free_vgpr 168
  .amdhsa_next_free_sgpr 102
  .amdhsa_accum_offset 168
  .amdhsa_group_segment_fixed_size 0
  .amdhsa_kernarg_size 96
  .amdhsa_user_sgpr_count 2
  .amdhsa_user_sgpr_kernarg_segment_ptr 1
  .amdhsa_system_sgpr_workgroup_id_x 1
.end_amdhsa_kernel
"""
    open(path, "w").write(out)
    probs = check_linear(a.lines, "k")
    if STAMPS: print("stamps:", ",".join(_stamp_names))
    return probs

if __name__ == "__main__":
    for x in list(sys.argv[1:]):
        if x.startswith("-D"):
            k, _, v = x[2:].partition("=")
            OPT[k] = int(v) if v else 1
            sys.argv.remove(x)
    if "--stamps" in sys.argv:
        STAMPS = True; sys.argv.remove("--stamps")
    path = sys.argv[1] if len(sys.argv) > 1 else "cdna_kernels/" + NAME + ".s"
    probs = build(path)
    for p in probs: print("HAZARD:", p)
    print("written", path, "problems:", len(probs))
```

```python
import sys, struct
from asmlib import *

NAME = "gated_mix__mha_block__dense_activation_squared_relu__prompt"
KN = NAME + "_kernel"
MB = 1 << 20
QF, KF, VF, HF, GO, OF, FLG = 4096, 2*MB + 8192, 4*MB + 12288, 6*MB + 16384, 12*MB, 14*MB + 4096, 16*MB + 8192
HF_SIZE = 86 * 65536
FA_OFF, FH_OFF, FO_OFF = 0, 4096, 8192
FLG_SIZE = 16384
QSCALE = 0.25 * 1.4426950408889634
STAMP_OFF = 32*MB
STAMPS = False
OPT = {}
def f2u(x): return struct.unpack("<I", struct.pack("<f", x))[0]

S_AX, S_WQKV, S_WO, S_W1, S_B1, S_W2, S_B2, S_GW, S_OUT, S_DBG, S_WS = 4, 6, 8, 12, 14, 16, 18, 20, 22, 24, 26
S_W = 3
S_RB, S_CG, S_START = 29, 30, 31
RA, RB, RC, RD = 32, 36, 40, 44
S_NONCE, S_HD, S_QB = 60, 61, 62
L_MISC, L_K, L_V, L_RING = 0, 1024, 1024 + 65536, 1024 + 131072
L_XCH = L_RING
M_KV, M_H, M_FA, M_QRD, M_HST, M_FFN, M_ATT, M_T1 = [L_MISC + 4*i for i in range(8)]
M_PAIR, M_PFLAG, M_CH = L_MISC + 64, L_MISC + 96, L_MISC + 160
LDS_TOTAL = 163840

def srd(a, dst, base, size):
    a.I(f"s_mov_b32 s{dst}, s{base}")
    a.I(f"s_mov_b32 s{dst+1}, s{base+1}")
    a.I(f"s_mov_b32 s{dst+2}, {size}")
    a.I(f"s_mov_b32 s{dst+3}, 0x20000")
def srd_off(a, dst, base, off, size):
    a.I(f"s_add_u32 s{dst}, s{base}, {off}")
    a.I(f"s_addc_u32 s{dst+1}, s{base+1}, 0")
    a.I(f"s_mov_b32 s{dst+2}, {size}")
    a.I(f"s_mov_b32 s{dst+3}, 0x20000")
def MF(d, A, B, c=None):
    cc = "0" if c is None else vr(c, 16)
    return f"v_mfma_f32_32x32x16_bf16 {vr(d,16)}, {vr(A,4)}, {vr(B,4)}, {cc}"
def S4(r): return f"s[{r}:{r+3}]"
def J(L): return "\n".join(L)

_stamp_names = []
def stamp(a, name):
    if not STAMPS: return
    if name not in _stamp_names: _stamp_names.append(name)
    i = _stamp_names.index(name)
    a.I("s_waitcnt lgkmcnt(0)")
    a.I("s_memtime s[98:99]")
    a.I("s_memrealtime s[100:101]")
    a.I("s_waitcnt lgkmcnt(0)")
    a.I(f"v_writelane_b32 v6, s98, {i}")
    a.I(f"v_writelane_b32 v7, s100, {i}")
def stamp_dyn(a):
    if not (STAMPS and OPT.get("fine")): return
    a.I("s_memtime s[98:99]")
    a.I("s_memrealtime s[100:101]")
    a.I("s_waitcnt lgkmcnt(0)")
    a.I("s_mov_b32 s88, m0")
    a.I("s_mov_b32 m0, s87")
    a.I("s_nop 3")
    a.I("v_writelane_b32 v6, s98, m0")
    a.I("v_writelane_b32 v7, s100, m0")
    a.I("s_mov_b32 m0, s88")
    a.I("s_add_u32 s87, s87, 1")
def dbg_dump(a, names, word0):
    lb = lab("dd")
    a.I(f"s_cmp_lg_u32 s2, {OPT.get('dbgwg', 0)}")
    a.I(f"s_cbranch_scc1 {lb}")
    a.I("v_readlane_b32 s90, v7, 0")
    for i, nm in enumerate(names):
        if nm not in _stamp_names: _stamp_names.append(nm)
        a.I(f"v_readlane_b32 s91, v7, {_stamp_names.index(nm)}")
        a.I("s_nop 3")
        a.I("s_sub_u32 s91, s91, s90")
        a.I("v_mov_b32 v2, s91")
        a.I(f"v_mov_b32 v3, {4*(word0+i)}")
        a.I("s_mov_b64 exec, 1")
        a.I(f"global_store_dword v3, v2, s[{S_DBG}:{S_DBG+1}]")
        a.I("s_mov_b64 exec, -1")
    a.L(lb)

def stamp_flush(a, who=None):
    if not STAMPS: return
    a.I("s_waitcnt vmcnt(0)")
    stamp(a, "end")
    if OPT.get("dbgdump"):
        if who == "ffn":
            l2 = lab("d8")
            a.I(f"s_cmp_lg_u32 s{S_W}, 8"); a.I(f"s_cbranch_scc1 {l2}")
            dbg_dump(a, ["E2", "FAok", "KV1", "hready", "ffn2", "attdone", "T2", "p3mm", "end"], 7)
            a.L(l2)
        elif who == "attn":
            l2 = lab("d0")
            a.I(f"s_and_b32 s91, s{S_W}, 3"); a.I("s_cmp_lg_u32 s91, 0"); a.I(f"s_cbranch_scc1 {l2}")
            a.I(f"s_cmp_ge_u32 s{S_W}, 4"); a.I(f"s_cbranch_scc1 {l2}")
            dbg_dump(a, ["karg", "B0", "qloop", "floop", "kvok", "aloop"], 1)
            a.L(l2)
    a.I(f"s_add_u32 s96, s{S_WS}, {STAMP_OFF}")
    a.I(f"s_addc_u32 s97, s{S_WS+1}, 0")
    a.I("s_mul_i32 s98, s2, 12")
    a.I(f"s_add_u32 s98, s98, s{S_W}")
    a.I("s_lshl_b32 s98, s98, 9")
    a.I("v_lshlrev_b32 v2, 2, v1")
    a.I("v_add_u32 v2, s98, v2")
    a.I("s_mov_b64 exec, -1")
    a.I("global_store_dword v2, v6, s[96:97]")
    a.I("global_store_dword v2, v7, s[96:97] offset:256")
    a.I("s_waitcnt vmcnt(0)")

def tr_lane_addr(a, dst, lane, tmp, tmp2, hrows, pitch):
    a.I(f"v_bfe_u32 v{tmp}, v{lane}, 2, 2")
    a.I(f"v_lshrrev_b32 v{tmp2}, 5, v{lane}")
    a.I(f"v_mul_u32_u24 v{tmp2}, {hrows}, v{tmp2}")
    a.I(f"v_add_u32 v{tmp}, v{tmp}, v{tmp2}")
    a.I(f"v_mul_u32_u24 v{dst}, {pitch}, v{tmp}")
    a.I(f"v_bfe_u32 v{tmp}, v{lane}, 4, 1")
    a.I(f"v_lshlrev_b32 v{tmp}, 1, v{tmp}")
    a.I(f"v_bfe_u32 v{tmp2}, v{lane}, 1, 1")
    a.I(f"v_add_u32 v{tmp}, v{tmp}, v{tmp2}")
    a.I(f"v_bfe_u32 v{tmp2}, v{lane}, 3, 1")
    a.I(f"v_lshlrev_b32 v{tmp2}, 2, v{tmp2}")
    a.I(f"v_xor_b32 v{tmp}, v{tmp}, v{tmp2}")
    a.I(f"v_lshl_add_u32 v{dst}, v{tmp}, 4, v{dst}")
    a.I(f"v_and_b32 v{tmp}, 1, v{lane}")
    a.I(f"v_lshl_add_u32 v{dst}, v{tmp}, 3, v{dst}")

def dma_w_lane_off(a, dst, lane, tmp, tmp2, pitch):
    a.I(f"v_lshrrev_b32 v{tmp}, 3, v{lane}")
    a.I(f"v_mul_u32_u24 v{dst}, {pitch}, v{tmp}")
    a.I(f"v_bfe_u32 v{tmp}, v{lane}, 4, 1")
    a.I(f"v_lshlrev_b32 v{tmp}, 2, v{tmp}")
    a.I(f"v_and_b32 v{tmp2}, 7, v{lane}")
    a.I(f"v_xor_b32 v{tmp}, v{tmp}, v{tmp2}")
    a.I(f"v_lshl_add_u32 v{dst}, v{tmp}, 4, v{dst}")

_lab = [0]
def lab(p):
    _lab[0] += 1
    return f"L_{p}{_lab[0]}"

def poll(a, srd_reg, nlanes, voff, vtmp, soff, slp=1):
    l0, l1 = lab("poll"), lab("polld")
    if nlanes < 64:
        a.I(f"s_mov_b32 exec_lo, {hex((1 << nlanes) - 1)}")
        a.I("s_mov_b32 exec_hi, 0")
    a.I("s_mov_b32 s50, 0x40000")
    a.L(l0)
    a.I(f"buffer_load_dword v{vtmp}, v{voff}, {S4(srd_reg)}, {soff} offen sc1")
    a.I("s_waitcnt vmcnt(0)")
    a.I(f"v_cmp_ne_u32 vcc, s{S_NONCE}, v{vtmp}")
    a.I(f"s_cbranch_vccz {l1}")
    a.I("s_sub_u32 s50, s50, 1")
    a.I("s_cmp_eq_u32 s50, 0")
    a.I(f"s_cbranch_scc1 {l1}")
    a.I(f"s_sleep {slp}")
    a.I(f"s_branch {l0}")
    a.L(l1)
    a.I("s_mov_b64 exec, -1")

def lds_spin(a, addr, target, vaddr, vtmp, slp=1):
    l0, l1 = lab("spin"), lab("spind")
    a.I(f"v_mov_b32 v{vaddr}, {addr}")
    a.I("s_mov_b32 s50, 0x400000")
    a.L(l0)
    a.I(f"ds_read_b32 v{vtmp}, v{vaddr}")
    a.I("s_waitcnt lgkmcnt(0)")
    a.I(f"v_readfirstlane_b32 s51, v{vtmp}")
    a.I("s_sub_u32 s50, s50, 1")
    a.I(f"s_cmp_ge_u32 s51, {target}")
    a.I(f"s_cbranch_scc1 {l1}")
    a.I("s_cmp_eq_u32 s50, 0")
    a.I(f"s_cbranch_scc1 {l1}")
    a.I(f"s_sleep {slp}")
    a.I(f"s_branch {l0}")
    a.L(l1)

def lds_add1(a, addr, vaddr, vtmp):
    a.I(f"v_mov_b32 v{vaddr}, {addr}")
    a.I(f"v_mov_b32 v{vtmp}, 1")
    a.I("s_mov_b64 exec, 1")
    a.I(f"ds_add_u32 v{vaddr}, v{vtmp}")
    a.I("s_mov_b64 exec, -1")

def flag_store(a, soff, v0_, v1_):
    a.I(f"v_mov_b32 v{v0_}, s{S_NONCE}")
    a.I(f"v_mov_b32 v{v1_}, 0")
    a.I("s_mov_b64 exec, 1")
    a.I(f"buffer_store_dword v{v0_}, v{v1_}, {S4(RC)}, {soff} offen sc1")
    a.I("s_mov_b64 exec, -1")

def prologue(a):
    a.raw(f".globl {KN}\n.p2align 8\n.type {KN},@function\n{KN}:")
    if STAMPS:
        a.I("s_memrealtime s[94:95]")
        a.I("s_memtime s[92:93]")
    a.I("s_cmp_ge_u32 s2, 256")
    a.I("s_cbranch_scc1 L_end")
    a.I("s_load_dwordx4 s[4:7], s[0:1], 0")
    a.I("s_load_dwordx2 s[8:9], s[0:1], 16")
    a.I("s_load_dwordx4 s[12:15], s[0:1], 32")
    a.I("s_load_dwordx4 s[16:19], s[0:1], 48")
    a.I("s_load_dwordx4 s[20:23], s[0:1], 64")
    a.I("s_load_dwordx4 s[24:27], s[0:1], 80")
    a.I("v_lshrrev_b32 v2, 6, v0")
    a.I("v_and_b32 v1, 63, v0")
    a.I(f"v_readfirstlane_b32 s{S_W}, v2")
    if OPT.get("codeearly", 1):
        a.I("s_getpc_b64 s[52:53]")
        a.L("L_pc0")
        a.I(f"s_sub_u32 s52, s52, L_pc0-{KN}")
        a.I("s_subb_u32 s53, s53, 0")
        a.I("v_lshlrev_b32 v3, 7, v0")
        a.I(f"v_min_u32 v3, L_code_end-{KN}-4, v3")
        a.I(f"s_cmp_ge_u32 s{S_W}, 3")
        a.I("s_cbranch_scc1 L_pc1")
        a.I("global_load_dword v31, v3, s[52:53]")
        a.L("L_pc1")
    if STAMPS:
        a.I("v_mov_b32 v6, 0"); a.I("v_mov_b32 v7, 0")
    a.I("s_and_b32 s52, s2, 7")
    a.I("s_lshr_b32 s53, s2, 3")
    if OPT.get("map84"):
        a.I("s_lshr_b32 s54, s52, 1")
        a.I("s_lshl_b32 s54, s54, 3")
        a.I("s_lshr_b32 s55, s53, 2")
        a.I(f"s_add_u32 s{S_RB}, s54, s55")
        a.I("s_and_b32 s54, s52, 1")
        a.I("s_lshl_b32 s54, s54, 2")
        a.I("s_and_b32 s55, s53, 3")
        a.I(f"s_add_u32 s{S_CG}, s54, s55")
    else:
        a.I("s_lshr_b32 s54, s52, 2")
        a.I("s_lshl_b32 s54, s54, 4")
        a.I("s_lshr_b32 s55, s53, 1")
        a.I(f"s_add_u32 s{S_RB}, s54, s55")
        a.I("s_and_b32 s54, s52, 3")
        a.I("s_lshl_b32 s54, s54, 1")
        a.I("s_and_b32 s55, s53, 1")
        a.I(f"s_add_u32 s{S_CG}, s54, s55")
    a.I(f"s_mul_i32 s54, s{S_CG}, 6")
    a.I(f"s_min_u32 s{S_START}, s54, 37")
    a.I(f"s_lshl_b32 s{S_HD}, s52, 2")
    a.I("s_and_b32 s54, s53, 3")
    a.I(f"s_add_u32 s{S_HD}, s{S_HD}, s54")
    a.I(f"s_lshr_b32 s{S_QB}, s2, 5")
    a.I("s_waitcnt lgkmcnt(0)")
    if STAMPS:
        _stamp_names.append("entry")
        a.I("v_writelane_b32 v6, s92, 0")
        a.I("v_writelane_b32 v7, s94, 0")
    stamp(a, "karg")
    a.I(f"s_cmp_ge_u32 s{S_W}, 8")
    a.I("s_cbranch_scc1 L_aux")
    a.I(f"s_cmp_lt_u32 s{S_W}, 4")
    a.I("s_cbranch_scc1 L_cons")

GATEPOS = 3
def producer(a, aux):
    T = "a" if aux else "p"
    if OPT.get("pprio"): a.I(f"s_setprio {OPT['pprio']}")
    a.I(f"s_sub_u32 s67, s{S_W}, 4")
    a.I(f"s_lshl_b32 s54, s{S_RB}, 16")
    srd_off(a, RA, S_AX, "s54", 65536)
    a.I("v_lshrrev_b32 v2, 3, v1")
    a.I("s_lshl_b32 s54, s67, 3")
    a.I("v_add_u32 v2, s54, v2")
    a.I("v_lshrrev_b32 v3, 4, v1")
    a.I("s_and_b32 s54, s67, 1")
    a.I("s_lshl_b32 s54, s54, 2")
    a.I("v_add_u32 v3, s54, v3")
    a.I("v_and_b32 v4, 7, v1")
    a.I("v_xor_b32 v3, v3, v4")
    a.I("v_lshlrev_b32 v3, 4, v3")
    a.I("v_lshl_add_u32 v12, v2, 10, v3")
    a.I("s_lshl_b32 s68, s67, 10")
    def woffs(dst, pitch, segshift):
        for j in range(3):
            a.I(f"v_add_u32 v2, {64*j}, v1")
            a.I("v_mul_u32_u24 v3, 171, v2")
            a.I("v_lshrrev_b32 v3, 12, v3")
            a.I("v_mul_u32_u24 v4, 24, v3")
            a.I("v_sub_u32 v2, v2, v4")
            a.I("v_lshrrev_b32 v4, 3, v2")
            a.I("v_and_b32 v2, 7, v2")
            a.I("v_bfe_u32 v5, v3, 1, 1")
            a.I("v_lshlrev_b32 v5, 2, v5")
            a.I("v_xor_b32 v2, v2, v5")
            a.I("v_lshlrev_b32 v2, 4, v2")
            a.I(f"v_mul_u32_u24 v5, {pitch}, v3")
            a.I(f"v_lshl_add_u32 v5, v4, {segshift}, v5")
            a.I(f"v_add_u32 v{dst+j}, v5, v2")
    wsetup_done = [False]
    def wsetup():
        if wsetup_done[0]: return
        wsetup_done[0] = True
        srd(a, RB, S_WQKV, 512*3072)
        woffs(13, 3072, 10)
        a.I("s_mul_i32 s69, s67, 3072")
        a.I("s_add_u32 s69, s69, 0x10000")
        a.I(f"s_lshl_b32 s70, s{S_CG}, 7")
        a.I(f"s_mul_i32 s71, s67, {8*3072}")
        a.I("s_add_u32 s70, s70, s71")
    def pre_setup(item):
        k, c = item
        if k == "X":
            a.I(f"s_add_u32 m0, s68, {c*8192}")
            a.I(f"s_movk_i32 s81, {c*128}")
        else:
            a.I(f"s_add_u32 s82, s70, {c*64*3072}" if c < 8 else f"s_add_u32 s82, s71, {(c-8)*64*2752}")
            a.I(f"s_add_u32 m0, s69, {(c&3)*24576}")
    def issue_x(c, done=False):
        if OPT.get("p1noprod"): return
        if not done:
            a.I(f"s_add_u32 m0, s68, {c*8192}")
            a.I(f"s_movk_i32 s81, {c*128}")
        a.I(f"buffer_load_dwordx4 v12, {S4(RA)}, s81 offen lds")
    def issue_w(c, done=False):
        if OPT.get("p1noprod"): return
        if c < 8:
            if not done: a.I(f"s_add_u32 s82, s70, {c*64*3072}")
            vo, R = 13, RB
        else:
            if not done: a.I(f"s_add_u32 s82, s71, {(c-8)*64*2752}")
            vo, R = 16, RC
        for j in range(3):
            if not (done and j == 0):
                a.I(f"s_add_u32 m0, s69, {(c&3)*24576 + j*1024}")
                a.I("s_nop 0")
            a.I(f"buffer_load_dwordx4 v{vo+j}, {S4(R)}, s82 offen lds")
    sched = OPT.get("sched", 0)
    if sched == 0:
        pre = [("X",0),("X",1),("X",2),("W",0),("W",1),("W",2)] if OPT.get("xfirst", 1) else [("X",0),("W",0),("X",1),("W",1),("X",2),("W",2)]
        post = {c: ([("X",c+3)] if c+3 < 8 else []) + ([("W",c+3)] if c+3 < 16 else []) for c in range(16)}
    elif sched == 1:
        pre = [("X",0),("W",0),("X",1),("W",1),("X",2),("W",2),("X",3),("W",3),("X",4),("X",5),("X",6),("X",7)]
        post = {c: ([("W",c+3)] if (c >= 1 and c+3 < 16) else []) for c in range(16)}
    elif sched == 2:
        pre = [("X",0),("W",0),("X",1),("W",1),("X",2),("W",2),("X",3),("W",3)]
        post = {c: ([("W",c+3)] if (c >= 1 and c+3 < 16) else []) for c in range(16)}
        post[0] = [("X",4),("X",5),("X",6),("X",7)]
    fifo = []
    def do(item, done=False):
        k, c = item
        if k == "X":
            if OPT.get("skipx"): fifo.append((item, 0)); return
            issue_x(c, done); fifo.append((item, 1))
        else:
            if OPT.get("skipw") and c < 8: fifo.append((item, 0)); return
            wsetup()
            issue_w(c, done); fifo.append((item, 3))
    for it in pre: do(it)
    if OPT.get("pfprod") and not aux:
        a.I(f"s_mov_b32 s89, s{S_W}")
        a.I(f"s_sub_u32 s{S_W}, s{S_W}, 4")
        l2_prefetch(a, 0)
        a.I(f"s_mov_b32 s{S_W}, s89")
        fifo.append(("pf", 2))
    stamp(a, "issued3")
    nside = 0
    if aux:
        nside = aux_side_issue(a)
    srd(a, RC, S_W1, 512*2752)
    if OPT.get("w1perm", 0):
        for j in range(3):
            a.I(f"v_add_u32 v2, {64*j}, v1")
            a.I("v_mul_u32_u24 v3, 171, v2")
            a.I("v_lshrrev_b32 v3, 12, v3")
            a.I("v_mul_u32_u24 v4, 24, v3")
            a.I("v_sub_u32 v2, v2, v4")
            a.I("v_lshrrev_b32 v4, 2, v2")
            a.I("v_and_b32 v2, 3, v2")
            a.I("v_bfe_u32 v5, v3, 1, 1")
            a.I("v_xor_b32 v4, v4, v5")
            a.I("v_add_u32 v5, 1, v4")
            a.I("v_cmp_eq_u32 vcc, 4, v4")
            a.I("s_nop 1")
            a.I("v_cndmask_b32_e64 v5, v5, 0, vcc")
            a.I("v_cmp_eq_u32 vcc, 5, v4")
            a.I("s_nop 1")
            a.I("v_cndmask_b32_e64 v5, v5, 5, vcc")
            a.I(f"v_add_u32 v19, s{S_START}, v3")
            a.I("v_and_b32 v19, 1, v19")
            a.I("v_cmp_eq_u32 vcc, 1, v19")
            a.I("s_nop 1")
            a.I("v_cndmask_b32 v4, v4, v5, vcc")
            a.I("v_lshlrev_b32 v4, 6, v4")
            a.I("v_lshl_add_u32 v4, v2, 4, v4")
            a.I("v_mul_u32_u24 v5, 2752, v3")
            a.I(f"v_add_u32 v{16+j}, v5, v4")
    else:
        woffs(16, 2752, 7)
    a.I(f"s_lshl_b32 s71, s{S_START}, 6")
    a.I(f"s_mul_i32 s72, s67, {8*2752}")
    a.I("s_add_u32 s71, s71, s72")
    fap = OPT.get("fapos", 2)
    assert fap >= 0
    for c in range(16):
        need = [("W", c)] + ([("X", c)] if c < 8 else [])
        idx = max(i for i, (it, _) in enumerate(fifo) if it in need)
        allow = sum(k for _, k in fifo[idx+1:])
        if c == 0 and STAMPS and OPT.get("fine"): a.I("s_mov_b32 s87, 24")
        stamp_dyn(a)
        early = OPT.get("early", 1) and not STAMPS and len(post[c]) > 0 and not OPT.get("p1noprod")
        if early:
            pre_setup(post[c][0])
        a.I(f"s_waitcnt vmcnt({allow})")
        stamp_dyn(a)
        a.I("s_barrier")
        for n_, it in enumerate(post[c]): do(it, early and n_ == 0)
        if aux and c == 2:
            fifo.append(("side", aux_side_loads(a)))
        if aux and c == 6:
            aux_gate(a)
            fifo.append(("g", 1))
        if aux and c == 4:
            fifo.append(("nonce", aux_nonce_issue(a)))
        if aux and c == 10:
            aux_zero_misc(a)
        if aux and c == 8:
            aux_nonce_take(a)
        if aux and c == 12:
            aux_share_nonce(a)
        if aux and c == 14:
            aux_fa_probe(a, 0)
            fifo.append(("probe", 1))
        if aux and c == 15:
            aux_fa_probe(a, 1)
        if aux and c == 9 + fap:
            aux_publish_fa(a)
    a.I("s_barrier")
    if aux:
        aux_after_e1(a)
    else:
        if OPT.get("pprio"): a.I("s_setprio 0")
        a.I("s_branch L_attn")

def glob_w2(a):
    a.I("v_lshlrev_b32 v20, 7, v1")
    srd(a, RC, S_W2, 1376*1024)
    a.I("s_mul_i32 s54, s2, 5504")
    a.I("s_mov_b32 exec_hi, 0xfff")
    a.I(f"buffer_load_dword v24, v20, {S4(RC)}, s54 offen")
    srd(a, RC, S_WO, 512*1024)
    a.I("s_lshl_b32 s54, s2, 11")
    a.I("s_mov_b32 exec_hi, 0")
    a.I("s_mov_b32 exec_lo, 0xffff")
    a.I(f"buffer_load_dword v25, v20, {S4(RC)}, s54 offen")
    a.I("s_mov_b64 exec, -1")

def l2_prefetch(a, part):
    a.I("s_and_b32 s52, s2, 7")
    a.I("s_lshr_b32 s53, s2, 3")
    a.I("s_lshl_b32 s54, s53, 4")
    a.I(f"s_lshl_b32 s55, s{S_W}, 2")
    a.I("s_add_u32 s56, s54, s55")
    if OPT.get("pfglob", 1) and part == 0:
        lg = lab("pfg")
        G64 = OPT.get("pg64", 0)
        a.I(f"v_lshlrev_b32 v20, {6 if G64 else 7}, v1")
        def touch(nbytes):
            step = 64 if G64 else 128
            lanes = -(-nbytes // step)
            off = 0
            while lanes > 0:
                n = min(lanes, 64)
                if n < 64:
                    a.I(f"s_mov_b32 exec_lo, {hex((1 << min(n, 32)) - 1)}")
                    a.I(f"s_mov_b32 exec_hi, {hex((1 << max(n - 32, 0)) - 1)}")
                a.I(f"buffer_load_dword v24, v20, {S4(RC)}, s54 offen")
                if n < 64: a.I("s_mov_b64 exec, -1")
                lanes -= n
                if lanes > 0: a.I(f"s_add_u32 s54, s54, {64*step}")
        a.I(f"s_cmp_eq_u32 s{S_W}, 0")
        a.I(f"s_cbranch_scc0 {lg}a")
        srd(a, RC, S_AX, 2*MB)
        a.I("s_lshl_b32 s54, s2, 13")
        touch(8192)
        a.I(f"s_branch {lg}d")
        a.L(f"{lg}a")
        a.I(f"s_cmp_eq_u32 s{S_W}, 1")
        a.I(f"s_cbranch_scc0 {lg}b")
        srd(a, RC, S_WQKV, 512*3072)
        a.I("s_mul_i32 s54, s2, 6144")
        touch(6144)
        a.I(f"s_branch {lg}d")
        a.L(f"{lg}b")
        a.I(f"s_cmp_eq_u32 s{S_W}, {99 if OPT.get('w1late') else 2}")
        a.I(f"s_cbranch_scc0 {lg}c")
        srd(a, RC, S_W1, 512*2752)
        a.I("s_mul_i32 s54, s2, 5504")
        touch(5504)
        a.I(f"s_branch {lg}d")
        a.L(f"{lg}c")
        if OPT.get("pfw2") == 1:
            glob_w2(a)
        if OPT.get("tlb"):
            offs = [0, 2*MB + 4096, 4*MB + 8192, 6*MB + 12288, 11*MB + 512*1024, 12*MB + 16384, 14*MB, 16*MB + 4096]
            a.I("v_mov_b32 v21, 0")
            for i, o in enumerate(offs):
                a.I(f"v_mov_b32 v22, {o}")
                a.I(f"v_cmp_eq_u32 vcc, {i}, v1")
                a.I("s_nop 1")
                a.I("v_cndmask_b32 v21, v21, v22, vcc")
            a.I("s_mov_b32 exec_lo, 0xff")
            a.I("s_mov_b32 exec_hi, 0")
            a.I(f"global_load_dword v25, v21, s[{S_WS}:{S_WS+1}]")
            a.I("s_mov_b64 exec, -1")
        a.L(f"{lg}d")
        if OPT.get("pfglob", 1) == 1: return
        OPT["nopfx"] = 1 if OPT["pfglob"] == 2 else 0
    if OPT.get("map84"):
        if part == 0:
            srd(a, RC, S_AX, 2*MB)
            a.I("s_lshr_b32 s54, s52, 1")
            a.I("s_lshl_b32 s54, s54, 9")
            a.I("s_add_u32 s54, s54, s56")
            a.I("s_lshl_b32 s54, s54, 10")
            a.I("v_lshlrev_b32 v20, 7, v1")
            a.I("s_mov_b32 exec_hi, 0")
            a.I(f"buffer_load_dword v24, v20, {S4(RC)}, s54 offen")
            a.I("s_mov_b64 exec, -1")
            srd(a, RC, S_WQKV, 512*3072)
            a.I("s_mul_i32 s54, s56, 3072")
            a.I("s_and_b32 s55, s52, 1")
            a.I("s_lshl_b32 s55, s55, 9")
            a.I("s_add_u32 s54, s54, s55")
            a.I("v_lshrrev_b32 v21, 4, v1")
            a.I("v_mul_u32_u24 v21, 3072, v21")
            a.I("v_bfe_u32 v22, v1, 2, 2")
            a.I("v_min_u32 v22, 2, v22")
            a.I("v_lshl_add_u32 v21, v22, 10, v21")
            a.I("v_and_b32 v22, 3, v1")
            a.I("v_lshl_add_u32 v21, v22, 7, v21")
            a.I(f"buffer_load_dword v25, v21, {S4(RC)}, s54 offen")
        else:
            srd(a, RC, S_W1, 512*2752)
            a.I("s_and_b32 s55, s52, 1")
            a.I("s_mul_i32 s55, s55, 1536")
            a.I("s_mul_i32 s54, s56, 2752")
            a.I("s_add_u32 s54, s54, s55")
            a.I("v_lshrrev_b32 v21, 4, v1")
            a.I("v_mul_u32_u24 v21, 2752, v21")
            a.I("v_and_b32 v22, 15, v1")
            a.I("v_min_u32 v22, 12, v22")
            a.I("v_lshl_add_u32 v21, v22, 7, v21")
            a.I(f"buffer_load_dword v26, v21, {S4(RC)}, s54 offen")
        return
    if part == 2:
        a.I(f"s_cmp_lg_u32 s{S_W}, 0")
        a.I("s_cbranch_scc1 L_pf2")
        srd(a, RC, S_WQKV, 512*3072)
        a.I("s_lshl_b32 s54, s53, 3")
        a.I("s_add_u32 s54, s54, 256")
        a.I("s_mul_i32 s54, s54, 3072")
        a.I("s_and_b32 s55, s52, 3")
        a.I("s_lshl_b32 s55, s55, 8")
        a.I("s_add_u32 s54, s54, s55")
        a.I("v_lshrrev_b32 v21, 3, v1")
        a.I("v_mul_u32_u24 v21, 3072, v21")
        a.I("v_bfe_u32 v22, v1, 1, 2")
        a.I("v_min_u32 v22, 2, v22")
        a.I("v_lshl_add_u32 v21, v22, 10, v21")
        a.I("v_and_b32 v22, 1, v1")
        a.I("v_lshl_add_u32 v21, v22, 7, v21")
        a.I(f"buffer_load_dword v25, v21, {S4(RC)}, s54 offen")
        a.L("L_pf2")
    elif part == 0:
        G = OPT.get("pfg", 128)
        sh = {128: 7, 64: 6, 32: 5}[G]
        srd(a, RC, S_AX, 2*MB)
        a.I("s_lshr_b32 s54, s52, 2")
        a.I("s_lshl_b32 s54, s54, 10")
        a.I("s_lshl_b32 s55, s53, 5")
        a.I("s_add_u32 s54, s54, s55")
        a.I(f"s_lshl_b32 s55, s{S_W}, 3")
        a.I("s_add_u32 s54, s54, s55")
        a.I("s_lshl_b32 s54, s54, 10")
        if OPT.get("pftrim", 0):
            a.I("v_and_b32 v20, 7, v1")
            a.I("v_max_u32 v20, 3, v20")
            a.I("v_lshlrev_b32 v20, 7, v20")
            a.I("v_lshrrev_b32 v21, 3, v1")
            a.I("v_lshl_add_u32 v20, v21, 10, v20")
        else:
            a.I(f"v_lshlrev_b32 v20, {sh}, v1")
        for i in range(0 if OPT.get("nopfx") else 8192 // (64*G)):
            a.I(f"buffer_load_dword v24, v20, {S4(RC)}, s54 offen")
            a.I(f"s_add_u32 s54, s54, {64*G}")
        if OPT.get("pftrim", 0):
            a._pfl = lab("pfs")
            a.I("s_cmp_lt_u32 s53, 12")
            a.I(f"s_cbranch_scc1 {a._pfl}")
        srd(a, RC, S_WQKV, 512*3072)
        a.I("s_mul_i32 s54, s56, 3072")
        a.I("s_and_b32 s55, s52, 3")
        a.I("s_lshl_b32 s55, s55, 8")
        a.I("s_add_u32 s54, s54, s55")
        per = 256 // G
        a.I("v_lshrrev_b32 v21, 4, v1")
        a.I("v_mul_u32_u24 v21, 3072, v21")
        a.I("v_and_b32 v22, 15, v1")
        if G == 64:
            a.I("v_lshrrev_b32 v23, 2, v22")
            a.I("v_min_u32 v23, 2, v23")
            a.I("v_lshl_add_u32 v21, v23, 10, v21")
            a.I("v_and_b32 v22, 3, v22")
            a.I("v_lshl_add_u32 v21, v22, 6, v21")
            a.I(f"buffer_load_dword v25, v21, {S4(RC)}, s54 offen")
        elif G == 32:
            a.I("v_lshrrev_b32 v23, 3, v22")
            a.I("v_lshl_add_u32 v21, v23, 10, v21")
            a.I("v_and_b32 v22, 7, v22")
            a.I("v_lshl_add_u32 v21, v22, 5, v21")
            a.I(f"buffer_load_dword v25, v21, {S4(RC)}, s54 offen")
            a.I(f"buffer_load_dword v25, v21, {S4(RC)}, s54 offen offset:2048")
        else:
            a.I("v_lshrrev_b32 v23, 1, v22")
            a.I("v_min_u32 v23, 2, v23")
            a.I("v_lshl_add_u32 v21, v23, 10, v21")
            a.I("v_and_b32 v22, 1, v22")
            a.I("v_lshl_add_u32 v21, v22, 7, v21")
            a.I(f"buffer_load_dword v25, v21, {S4(RC)}, s54 offen")
        if OPT.get("pftrim", 0):
            a.L(a._pfl)
    else:
        a.I(f"s_cmp_ge_u32 s{S_W}, 2")
        a.I("s_cbranch_scc1 L_pf1")
        srd(a, RC, S_W1, 512*2752)
        a.I("s_and_b32 s55, s52, 3")
        a.I("s_mul_i32 s55, s55, 12")
        a.I("s_min_u32 s55, s55, 31")
        a.I("s_lshl_b32 s55, s55, 6")
        a.I("s_lshl_b32 s54, s53, 4")
        a.I(f"s_lshl_b32 s56, s{S_W}, 3")
        a.I("s_add_u32 s54, s54, s56")
        a.I("s_mul_i32 s54, s54, 2752")
        a.I("s_add_u32 s54, s54, s55")
        a.I("v_lshrrev_b32 v21, 3, v1")
        a.I("v_mul_u32_u24 v21, 2752, v21")
        a.I("v_and_b32 v22, 7, v1")
        a.I("v_lshl_add_u32 v21, v22, 7, v21")
        a.I(f"buffer_load_dword v26, v21, {S4(RC)}, s54 offen")
        a.L("L_pf1")

def consumer(a):
    a.L("L_cons")
    H, XA, WA, ACC, B1, FA, FB = 2, 8, 12, 32, 80, 104, 136
    if not OPT.get("nopf") and not OPT.get("pflate") and not OPT.get("pfprod"):
        l2_prefetch(a, OPT.get("pfmode", 0))
    a.I(f"v_lshrrev_b32 v{H}, 5, v1")
    a.I(f"s_and_b32 s63, s{S_W}, 1")
    a.I(f"s_lshr_b32 s64, s{S_W}, 1")
    def b1loads():
        srd(a, RD, S_B1, 2752)
        a.I(f"s_add_u32 s54, s{S_START}, s63")
        a.I("s_lshl_b32 s54, s54, 6")
        a.I(f"v_lshlrev_b32 v3, 3, v{H}")
        for s in range(3):
            for q in range(4):
                r = B1 + (s*4+q)*2
                a.I(f"buffer_load_dwordx2 v[{r}:{r+1}], v3, {S4(RD)}, s54 offen offset:{s*128+q*16}")
    if not OPT.get("b1late", 1): b1loads()
    for i in range(48):
        a.I(f"v_mov_b32 v{ACC+i}, 0")
    a.I("v_and_b32 v16, 31, v1")
    a.I("v_bfe_u32 v17, v1, 1, 3")
    a.I("s_lshl_b32 s54, s64, 5")
    a.I("v_add_u32 v16, s54, v16")
    a.I("v_lshlrev_b32 v16, 7, v16")
    a.I(f"v_xor_b32 v17, v17, v{H}")
    for ks in range(4):
        a.I(f"v_xor_b32 v18, {2*ks}, v17")
        a.I(f"v_lshl_add_u32 v{XA+ks}, v18, 4, v16")
    tr_lane_addr(a, WA, 1, 16, 17, 8, 384)
    a.I("s_lshl_b32 s54, s63, 6")
    a.I(f"v_xor_b32 v{WA}, s54, v{WA}")
    a.I(f"v_add_u32 v{WA}, 0x10000, v{WA}")
    a.I(f"v_add_u32 v{WA+1}, 49152, v{WA}")
    WF1 = [14, 15, 28, 29, 30, 23]
    if OPT.get("w1perm", 0):
        a.I("v_bfe_u32 v16, v1, 2, 2")
        a.I(f"v_lshl_add_u32 v17, v{H}, 3, v16")
        a.I("v_mul_u32_u24 v17, 384, v17")
        a.I("v_bfe_u32 v18, v1, 4, 1")
        a.I("v_lshlrev_b32 v18, 1, v18")
        a.I("v_bfe_u32 v19, v1, 1, 1")
        a.I("v_add_u32 v18, v18, v19")
        a.I("v_lshl_add_u32 v17, v18, 4, v17")
        a.I("v_and_b32 v18, 1, v1")
        a.I("v_lshl_add_u32 v17, v18, 3, v17")
        a.I("v_add_u32 v17, 0x10000, v17")
        a.I(f"v_add_u32 v18, s{S_START}, v16")
        a.I("v_and_b32 v18, 1, v18")
        a.I("v_cmp_eq_u32 vcc, 1, v18")
        a.I("v_bfe_u32 v19, v1, 3, 1")
        inv = [4, 0, 1, 2, 3, 5]
        for s_ in range(3):
            a.I(f"s_cmp_eq_u32 s63, 0")
            a.I(f"s_cselect_b32 s54, {2*s_}, {2*s_+1}")
            a.I(f"s_cselect_b32 s55, {inv[2*s_]}, {inv[2*s_+1]}")
            a.I(f"v_mov_b32 v26, s54")
            a.I(f"v_mov_b32 v27, s55")
            a.I(f"v_cndmask_b32 v26, v26, v27, vcc")
            a.I(f"v_xor_b32 v26, v26, v19")
            a.I(f"v_lshl_add_u32 v{WF1[s_]}, v26, 6, v17")
            a.I(f"v_add_u32 v{WF1[3+s_]}, 49152, v{WF1[s_]}")

    def reads(b, G, F, qkv=True):
        out = []
        if OPT.get("p1nocons"): return ["s_nop 0"]
        wv = WA + (b >> 1)
        for l in range(2):
            ks = 2*G + l
            out.append(f"ds_read_b128 {vr(F+4*l,4)}, v{XA+ks} offset:{b*8192}")
            for s in range(3):
                for rd in range(2):
                    if qkv or not OPT.get("w1perm", 0):
                        out.append(f"ds_read_b64_tr_b16 {vr(F+8+12*l+4*s+2*rd,2)}, v{wv} offset:{(b&1)*24576 + ks*6144 + rd*1536 + s*128}")
                    else:
                        out.append(f"ds_read_b64_tr_b16 {vr(F+8+12*l+4*s+2*rd,2)}, v{WF1[3*(b>>1)+s]} offset:{(b&1)*24576 + ks*6144 + rd*1536}")
        return out
    def mfmas(F, qkv):
        out = []
        if OPT.get("p1nocons") or OPT.get("p1nomfma"): return ["s_nop 0"]
        for l in range(2):
            for s in range(3):
                X, W = F+4*l, F+8+12*l+4*s
                out.append(MF(ACC+16*s, X, W, ACC+16*s) if (qkv and s == 2) else MF(ACC+16*s, W, X, ACC+16*s))
        return out
    def inter(mf, rd):
        out = []
        per = OPT.get("iper", [4, 4, 3, 3, 0, 0])
        if len(mf) != 6: return mf + rd
        k = 0
        for i, m in enumerate(mf):
            out.append(m)
            out += rd[k:k+per[i]]
            k += per[i]
        assert k >= len(rd)
        return out
    def stage_loop(tag, qkv):
        a.I("s_mov_b32 s65, 0x8000")
        a.L(f"L_loop_{tag}")
        fap = OPT.get("fapos", 2)
        for b in range(4):
            a.I("s_waitcnt lgkmcnt(0)")
            a.I(J(inter(mfmas(FA, qkv), reads(b, 1, FB, qkv))))
            if (not qkv) and b == (fap & 3):
                if fap >= 4:
                    a.I("s_cmp_lt_i32 s65, 0")
                    a.I(f"s_cbranch_scc0 L_nodrain")
                a.I("s_waitcnt vmcnt(0)")
                if fap >= 4: a.L("L_nodrain")
            a.I("s_waitcnt lgkmcnt(0)")
            if b == 3:
                if not qkv:
                    a.I("s_cmp_lt_i32 s65, 0")
                    a.I(f"s_cbranch_scc1 L_last_{tag}")
                for ks in range(4):
                    a.I(f"v_add_u32 v{XA+ks}, s65, v{XA+ks}")
            stamp_dyn(a)
            a.I("s_barrier")
            stamp_dyn(a)
            if qkv and b == 3:
                a.I("s_cmp_lt_i32 s65, 0")
                a.I("s_cbranch_scc1 L_qtail")
            a.I(J(inter(mfmas(FB, qkv), reads((b+1) % 4, 0, FA, qkv))))
        if qkv:
            a.I("s_mov_b32 s65, 0xffff8000")
            a.I(f"s_branch L_loop_{tag}")
            a.L("L_qtail")
            a.I(J(inter(mfmas(FB, qkv), reads(0, 0, FA, False))))
        else:
            a.I("s_mov_b32 s65, 0xffff8000")
            a.I(f"s_branch L_loop_{tag}")
        if not qkv:
            a.L(f"L_last_{tag}")
            a.I(J(mfmas(FB, qkv)))

    if OPT.get("pflate"):
        for i in range(OPT["pflate"]):
            a.I("s_sleep 8")
        l2_prefetch(a, 0)
    if OPT.get("pfw1early"):
        l2_prefetch(a, 1)
    a.I("s_barrier")
    stamp(a, "B0")
    if STAMPS and OPT.get("fine"): a.I("s_mov_b32 s87, 24")
    if not OPT.get("nopf") and not OPT.get("pfw1early") and not OPT.get("nopfw1", 1):
        l2_prefetch(a, 1)
    if OPT.get("w1late"):
        lw1 = lab("pw1")
        a.I(f"s_cmp_lg_u32 s{S_W}, 2")
        a.I(f"s_cbranch_scc1 {lw1}")
        a.I("v_lshlrev_b32 v20, 7, v1")
        srd(a, RC, S_W1, 512*2752)
        a.I("s_mul_i32 s54, s2, 5504")
        a.I("s_mov_b32 exec_hi, 0xfff")
        a.I(f"buffer_load_dword v24, v20, {S4(RC)}, s54 offen")
        a.I("s_mov_b64 exec, -1")
        a.L(lw1)
    if OPT.get("pfw2") == 2:
        lw = lab("pw2")
        a.I(f"s_cmp_lg_u32 s{S_W}, 3")
        a.I(f"s_cbranch_scc1 {lw}")
        glob_w2(a)
        a.L(lw)
    a.I(J(reads(0, 0, FA)))
    if OPT.get("b1late", 1): b1loads()
    stage_loop("q", True)
    stamp(a, "qloop")
    srd(a, RA, S_WS, VF + 2*MB)
    a.I(f"s_lshl_b32 s54, s{S_RB}, 1")
    a.I("s_add_u32 s54, s54, s64")
    a.I(f"s_lshl_b32 s55, s{S_CG}, 2")
    a.I("s_lshl_b32 s56, s63, 1")
    a.I("s_add_u32 s55, s55, s56")
    a.I("s_lshl_b32 s55, s55, 6")
    a.I("s_add_u32 s54, s54, s55")
    a.I("s_lshl_b32 s54, s54, 10")
    a.I("v_lshlrev_b32 v3, 4, v1")
    a.I("v_bfe_u32 v4, v1, 4, 1")
    a.I("v_lshlrev_b32 v4, 16, v4")
    a.I(f"v_lshl_add_u32 v4, v{H}, 8, v4")
    a.I("v_and_b32 v5, 15, v1")
    a.I("v_lshl_add_u32 v4, v5, 4, v4")
    a.I(f"s_mov_b32 s56, {hex(f2u(QSCALE))}")
    a.I("s_waitcnt vmcnt(0)")
    a.I("s_nop 4")
    for idx, s in enumerate((1, 2, 0)):
        d = ACC + 16*s
        if s == 0:
            for i in range(16):
                a.I(f"v_mul_f32 v{d+i}, s56, v{d+i}")
        for j in range(8):
            a.I(f"v_cvt_pk_bf16_f32 v{d+j}, v{d+2*j}, v{d+2*j+1}")
        if s < 2:
            for hh in range(2):
                a.I(f"s_add_u32 s55, s54, {(KF if s else QF) + hh*65536}")
                a.I(f"buffer_store_dwordx4 {vr(d+4*hh,4)}, v3, {S4(RA)}, s55 offen sc1")
        else:
            a.I(f"s_add_u32 s55, s54, {VF}")
            for u in range(2):
                a.I(f"buffer_store_dwordx4 {vr(d+4*u,4)}, v4, {S4(RA)}, s55 offen offset:{u*512} sc1")
    a.I("s_nop 1")
    for s in range(3):
        for q in range(4):
            r = B1 + (s*4+q)*2
            d = ACC + s*16 + q*4
            a.I(f"v_lshlrev_b32 v{d}, 16, v{r}")
            a.I(f"v_and_b32 v{d+1}, 0xffff0000, v{r}")
            a.I(f"v_lshlrev_b32 v{d+2}, 16, v{r+1}")
            a.I(f"v_and_b32 v{d+3}, 0xffff0000, v{r+1}")
    stage_loop("f", False)
    a.I("s_barrier")
    stamp(a, "floop")
    srd_off(a, RA, S_WS, HF, HF_SIZE)
    a.I(f"s_lshl_b32 s54, s{S_RB}, 1")
    a.I("s_add_u32 s54, s54, s64")
    a.I(f"s_add_u32 s55, s{S_START}, s63")
    a.I("s_lshl_b32 s55, s55, 7")
    a.I("s_add_u32 s54, s54, s55")
    a.I("s_lshl_b32 s54, s54, 10")
    a.I("v_lshlrev_b32 v3, 4, v1")
    a.I("s_nop 4")
    HP = 120
    defer = OPT.get("hdefer", 1)
    for s in range(3):
        d = ACC + 16*s
        for i in range(16):
            a.I(f"v_max_f32 v{d+i}, 0, v{d+i}")
        for i in range(16):
            a.I(f"v_mul_f32 v{d+i}, v{d+i}, v{d+i}")
        for j in range(8):
            a.I(f"v_cvt_pk_bf16_f32 v{(HP+8*s if defer else d)+j}, v{d+2*j}, v{d+2*j+1}")
    if defer:
        a.I("s_mov_b32 s83, s54")
    else:
        if OPT.get("hlate", 1):
            lds_spin(a, M_KV, 4, 20, 21, 0)
        for s in range(3):
            d = ACC + 16*s
            for uu in range(2):
                a.I(f"s_add_u32 s55, s54, {(4*s+uu)*65536}")
                a.I(f"buffer_store_dwordx4 {vr(d+4*uu,4)}, v3, {S4(RA)}, s55 offen sc1")
    a.I("s_nop 1")
    a.I("s_branch L_attn")

def aux_side_issue(a):
    a.I("s_sub_u32 s66, s67, 4")
    a.I(f"s_lshl_b32 s54, s2, 2")
    a.I("s_or_b32 s54, s54, s66")
    a.I("s_cmp_lg_u32 s54, 0")
    a.I("s_cbranch_scc1 L_aux1")
    srd(a, RD, S_DBG, 256)
    a.I("s_memrealtime s[54:55]")
    a.I("s_waitcnt lgkmcnt(0)")
    a.I("s_or_b32 s85, s54, 1")
    a.I("v_mov_b32 v8, s85")
    a.I("v_mov_b32 v10, 0")
    a.I("s_mov_b64 exec, 1")
    a.I(f"buffer_store_dword v8, v10, {S4(RD)}, 0 offen sc1")
    a.I("s_mov_b64 exec, -1")
    a.L("L_aux1")
    a.I(f"s_lshl_b32 s54, s{S_RB}, 6")
    a.I(f"s_lshl_b32 s55, s{S_CG}, 3")
    a.I("s_add_u32 s54, s54, s55")
    a.I("s_lshl_b32 s55, s66, 1")
    a.I("s_add_u32 s86, s54, s55")
    return 0

def aux_side_loads(a):
    a.I("s_lshl_b32 s54, s86, 10")
    srd_off(a, RD, S_AX, "s54", 2048)
    a.I("v_and_b32 v2, 31, v1")
    a.I("v_lshlrev_b32 v2, 5, v2")
    a.I("v_lshrrev_b32 v3, 5, v1")
    a.I("v_lshl_add_u32 v4, v3, 10, v2")
    for i in range(2):
        a.I(f"buffer_load_dwordx4 {vr(32+4*i,4)}, v4, {S4(RD)}, 0 offen offset:{16*i}")
    srd(a, RD, S_GW, 1024)
    for i in range(2):
        a.I(f"buffer_load_dwordx4 {vr(40+4*i,4)}, v2, {S4(RD)}, 0 offen offset:{16*i}")
    n = 4
    if OPT.get("codepf", 1) and not OPT.get("codeearly", 1):
        a.I("s_getpc_b64 s[52:53]")
        a.L("L_pc")
        a.I(f"s_sub_u32 s52, s52, L_pc-{KN}")
        a.I("s_subb_u32 s53, s53, 0")
        a.I("s_mul_i32 s54, s66, 6144")
        a.I("v_lshlrev_b32 v5, 7, v1")
        a.I("v_add_u32 v5, s54, v5")
        a.I(f"v_min_u32 v5, L_code_end-{KN}-4, v5")
        a.I("s_mov_b32 exec_hi, 0xffff")
        a.I("global_load_dword v116, v5, s[52:53]")
        a.I("s_mov_b64 exec, -1")
        n += 1
    return n

def aux_nonce_issue(a):
    srd(a, RD, S_DBG, 256)
    a.I("v_mov_b32 v10, 0")
    a.I(f"buffer_load_dword v8, v10, {S4(RD)}, 0 offen sc1")
    return 1

def aux_nonce_take(a):
    a.I(f"v_readfirstlane_b32 s{S_NONCE}, v8")
    a.I("s_mov_b32 s50, 0x40000")
    a.L("L_nonce")
    a.I(f"s_cmp_lg_u32 s{S_NONCE}, 0")
    a.I("s_cbranch_scc1 L_nonce_ok")
    a.I("s_sub_u32 s50, s50, 1")
    a.I("s_cmp_eq_u32 s50, 0")
    a.I("s_cbranch_scc1 L_nonce_ok")
    srd(a, RD, S_DBG, 256)
    a.I(f"buffer_load_dword v8, v10, {S4(RD)}, 0 offen sc1")
    a.I("s_waitcnt vmcnt(0)")
    a.I(f"v_readfirstlane_b32 s{S_NONCE}, v8")
    a.I("s_branch L_nonce")
    a.L("L_nonce_ok")

def aux_gate(a):
    if OPT.get("p1noprod"): a.I("s_waitcnt vmcnt(0)")
    a.I("v_mov_b32 v24, 0")
    for i in range(8):
        a.I(f"v_dot2c_f32_bf16 v24, v{32+i}, v{40+i}")
    a.I("s_nop 3")
    for sh in (1, 2, 4, 8):
        a.I(f"v_add_f32_dpp v24, v24, v24 row_shr:{sh} row_mask:0xf bank_mask:0xf")
        a.I("s_nop 1")
    a.I("v_add_f32_dpp v24, v24, v24 row_bcast:15 row_mask:0xa bank_mask:0xf")
    a.I("s_nop 1")
    a.I("v_cvt_pk_bf16_f32 v24, v24, v24")
    a.I("v_and_b32 v24, 0xffff0000, v24")
    a.I(f"v_mul_f32 v24, {hex(f2u(-1.4426950408889634))}, v24")
    a.I("v_exp_f32 v24, v24")
    a.I("s_nop 0")
    a.I("v_add_f32 v24, 1.0, v24")
    a.I("v_rcp_f32 v24, v24")
    a.I("s_nop 0")
    a.I("v_cvt_pk_bf16_f32 v24, v24, v24")
    a.I("v_and_b32 v24, 0xffff0000, v24")
    srd_off(a, RD, S_WS, GO, 8192)
    a.I("s_lshl_b32 s54, s86, 2")
    a.I("v_lshrrev_b32 v3, 5, v1")
    a.I("v_lshlrev_b32 v3, 2, v3")
    a.I("s_mov_b32 s52, 0x80000000")
    a.I("s_mov_b32 s53, 0x80000000")
    a.I("s_mov_b64 exec, s[52:53]")
    a.I(f"buffer_store_dword v24, v3, {S4(RD)}, s54 offen sc1")
    a.I("s_mov_b64 exec, -1")

def aux_publish_fa(a):
    a.I("s_cmp_lg_u32 s66, 0")
    a.I("s_cbranch_scc1 L_aux2")
    srd_off(a, RD, S_WS, FLG, FLG_SIZE)
    a.I(f"s_lshl_b32 s54, s{S_CG}, 7")
    a.I(f"s_lshl_b32 s55, s{S_RB}, 2")
    a.I("s_add_u32 s54, s54, s55")
    a.I(f"s_add_u32 s54, s54, {FA_OFF}")
    a.I(f"v_mov_b32 v8, s{S_NONCE}")
    a.I(f"v_mov_b32 v10, 0")
    a.I("s_mov_b64 exec, 1")
    a.I(f"buffer_store_dword v8, v10, {S4(RD)}, s54 offen sc1")
    a.I("s_mov_b64 exec, -1")
    stamp(a, "FApub")
    a.L("L_aux2")

def aux_zero_misc(a):
    a.I("s_cmp_lg_u32 s66, 1")
    a.I("s_cbranch_scc1 L_aux3")
    a.I(f"v_lshlrev_b32 v10, 2, v1")
    if L_MISC: a.I(f"v_add_u32 v10, {L_MISC}, v10")
    a.I("v_mov_b32 v9, 0")
    a.I("ds_write_b32 v10, v9")
    a.I("s_waitcnt lgkmcnt(0)")
    a.I("v_mov_b32 v10, 0")
    a.L("L_aux3")

def aux_share_nonce(a):
    a.I("s_cmp_lg_u32 s66, 0")
    a.I("s_cbranch_scc1 L_aux4")
    a.I(f"v_mov_b32 v9, {L_MISC + 128}")
    a.I(f"v_mov_b32 v11, s{S_NONCE}")
    a.I("ds_write_b32 v9, v11")
    a.I("s_waitcnt lgkmcnt(0)")
    a.L("L_aux4")

def aux_fa_probe(a, second):
    if second:
        a.I("s_mov_b32 exec_hi, 0")
        a.I(f"buffer_load_dword v26, v9, {S4(RC)}, s88 offen sc1")
        a.I("s_mov_b64 exec, -1")
        return
    srd_off(a, RC, S_WS, FLG, FLG_SIZE)
    a.I(f"s_lshr_b32 s88, s{S_HD}, 2")
    a.I("s_lshl_b32 s88, s88, 7")
    a.I(f"s_add_u32 s88, s88, {FA_OFF}")
    a.I("v_lshlrev_b32 v9, 2, v1")
    a.I("s_mov_b32 exec_hi, 0")
    a.I(f"buffer_load_dword v11, v9, {S4(RC)}, s88 offen sc1")
    a.I("s_mov_b64 exec, -1")
    VL = 4
    a.I(f"v_lshlrev_b32 v{VL}, 4, v1")
    a.I(f"s_lshl_b32 s54, s{S_HD}, 16")
    a.I(f"s_add_u32 s55, s54, {KF}")
    srd_off(a, RA, S_WS, "s55", 65536)
    a.I(f"s_add_u32 s55, s54, {VF}")
    srd_off(a, RB, S_WS, "s55", 65536)
    a.I(f"s_add_u32 s55, s54, {QF}")
    srd_off(a, RD, S_WS, "s55", 65536)
    a.I(f"s_lshl_b32 s54, s{S_QB}, 3")
    a.I("s_lshl_b32 s55, s66, 1")
    a.I("s_add_u32 s54, s54, s55")
    a.I("s_lshl_b32 s54, s54, 10")
    a.I("s_lshl_b32 s55, s66, 11")
    a.I(f"s_add_u32 s55, s55, {L_RING}")

def aux_after_e1(a):
    a.I("s_mov_b32 s67, s66")
    a.I("s_setprio 3")
    stamp(a, "E2")
    a.I("s_mov_b32 exec_hi, 0")
    a.I("s_waitcnt vmcnt(1)")
    a.I(f"v_cmp_ne_u32 vcc, s{S_NONCE}, v11")
    a.I("s_cbranch_vccz L_aux5a")
    a.I("s_waitcnt vmcnt(0)")
    a.I(f"v_cmp_ne_u32 vcc, s{S_NONCE}, v26")
    a.L("L_aux5a")
    a.I("s_mov_b64 exec, -1")
    a.I("s_cbranch_vccz L_aux5")
    poll(a, RC, 32, 9, 11, "s88", OPT.get("faslp", 2))
    a.L("L_aux5")
    stamp(a, "FAok")
    VL = 4
    for t in range(2):
        a.I(f"s_add_u32 m0, s55, {t*1024}")
        a.I(f"s_add_u32 s56, s54, {t*1024}")
        a.I(f"buffer_load_dwordx4 v{VL}, {S4(RD)}, s56 offen sc1 lds")
    a.I("s_lshl_b32 s54, s67, 10")
    def kvchunks(cs):
        for c in cs:
            a.I(f"s_add_u32 s55, s54, {c*4096}")
            a.I(f"s_add_u32 m0, s55, {L_K}")
            a.I(f"s_add_u32 s56, s55, {L_V}")
            a.I(f"buffer_load_dwordx4 v{VL}, {S4(RA)}, s55 offen sc1 lds")
            a.I("s_mov_b32 m0, s56")
            a.I("s_nop 0")
            a.I(f"buffer_load_dwordx4 v{VL}, {S4(RB)}, s55 offen sc1 lds")
    m1x = OPT.get("m1x", 0)
    kvchunks(range(0, 2 + m1x))
    a.I(f"s_waitcnt vmcnt({2*m1x})")
    lds_add1(a, M_KV, 8, 9)
    stamp(a, "KV1")
    kvchunks(range(2 + m1x, 16))
    a.I("s_lshr_b32 s53, s2, 3")
    srd(a, RA, S_W2, 1376*1024)
    srd(a, RB, S_WO, 512*1024)
    a.I("s_mul_i32 s54, s53, 44032")
    a.I("s_lshl_b32 s55, s67, 10")
    a.I("s_add_u32 s54, s54, s55")
    a.I("s_waitcnt vmcnt(0)")
    lds_add1(a, M_KV, 8, 9)
    stamp(a, "KV2")
    a.I("v_lshlrev_b32 v10, 7, v1")
    a.I("s_lshl_b32 s55, s67, 13")
    a.I("s_mul_i32 s54, s53, 44032")
    a.I("s_add_u32 s54, s54, s55")
    a.I(f"buffer_load_dword v40, v10, {S4(RA)}, s54 offen")
    a.I("s_add_u32 s54, s54, 32768")
    a.I(f"buffer_load_dword v41, v10, {S4(RA)}, s54 offen")
    a.I("s_lshl_b32 s54, s53, 14")
    a.I("s_lshl_b32 s55, s67, 12")
    a.I("s_add_u32 s54, s54, s55")
    a.I("s_mov_b32 exec_hi, 0")
    a.I(f"buffer_load_dword v42, v10, {S4(RB)}, s54 offen")
    a.I("s_mov_b64 exec, -1")

def ffn2_p3(a):
    WF, HR, ACC2, BPR = 24, 40, 104, 8
    VH, VW, VA0, VA1 = 2, 3, 4, 5
    a.I("s_cmp_lg_u32 s67, 0")
    a.I("s_cbranch_scc1 L_f1")
    lds_spin(a, M_HST, 4, 8, 9, OPT.get('fslp', 1))
    lds_spin(a, M_KV, 8, 8, 9)
    a.I(f"s_lshl_b32 s54, s{S_RB}, 7")
    a.I(f"s_lshl_b32 s55, s{S_CG}, 2")
    a.I("s_add_u32 s54, s54, s55")
    a.I(f"s_add_u32 s54, s54, {FH_OFF}")
    flag_store(a, "s54", 8, 10)
    a.I(f"s_lshl_b32 s54, s{S_HD}, 7")
    a.I(f"s_add_u32 s54, s54, {FH_OFF}")
    a.I("v_lshlrev_b32 v8, 2, v1")
    poll(a, RC, 8, 8, 9, "s54", OPT.get("fhslp", 8))
    lds_add1(a, M_H, 8, 9)
    a.I("s_branch L_f2")
    a.L("L_f1")
    lds_spin(a, M_H, 1, 8, 9, OPT.get('fslp', 1))
    a.L("L_f2")
    lds_spin(a, M_QRD, 8, 8, 9, OPT.get('fslp', 1))
    stamp(a, "hready")
    if OPT.get("tailpf"):
        srd(a, RA, S_B2, 1024)
        a.I("v_lshlrev_b32 v10, 7, v1")
        a.I("s_mov_b32 exec_lo, 0xff")
        a.I("s_mov_b32 exec_hi, 0")
        a.I(f"buffer_load_dword v43, v10, {S4(RA)}, 0 offen")
        if OPT["tailpf"] > 1:
            srd(a, RA, S_OUT, 2*MB)
            a.I(f"s_lshl_b32 s54, s{S_HD}, 16")
            a.I("s_mov_b32 exec_lo, 1")
            a.I(f"buffer_load_dword v44, v10, {S4(RA)}, s54 offen")
        a.I("s_mov_b64 exec, -1")
    srd(a, RA, S_W2, 1376*1024)
    srd_off(a, RB, S_WS, HF, HF_SIZE)
    a.I(f"v_lshlrev_b32 v{VH}, 4, v1")
    dma_w_lane_off(a, VW, 1, 8, 9, 1024)
    a.I(f"s_lshl_b32 s54, s{S_QB}, 7")
    a.I(f"v_add_u32 v{VW}, s54, v{VW}")
    tr_lane_addr(a, VA0, 1, 8, 9, 4, 128)
    a.I("s_mul_i32 s68, s67, 6144")
    a.I(f"s_add_u32 s68, s68, {L_RING}")
    a.I(f"v_add_u32 v{VA0}, s68, v{VA0}")
    a.I(f"v_xor_b32 v{VA1}, 64, v{VA0}")
    a.I("s_mul_i32 s54, s67, 24")
    a.I("s_lshl_b32 s70, s54, 14")
    a.I("s_lshl_b32 s71, s54, 16")
    a.I(f"s_lshl_b32 s55, s{S_HD}, 11")
    a.I("s_add_u32 s71, s71, s55")
    for i in range(64):
        a.I(f"v_mov_b32 v{ACC2+i}, 0")
    a.I("s_waitcnt vmcnt(0)")
    def fissue(slot):
        return [f"s_add_u32 m0, s68, {slot*2048}",
                f"s_add_u32 s69, s70, 8192",
                f"buffer_load_dwordx4 v{VW}, {S4(RA)}, s70 offen lds",
                f"s_add_u32 m0, s68, {slot*2048+1024}",
                f"s_add_u32 s70, s70, 16384",
                f"buffer_load_dwordx4 v{VW}, {S4(RA)}, s69 offen lds",
                f"buffer_load_dwordx4 {vr(HR+slot*8,4)}, v{VH}, {S4(RB)}, s71 offen sc1",
                f"buffer_load_dwordx4 {vr(HR+slot*8+4,4)}, v{VH}, {S4(RB)}, s71 offen offset:1024 sc1",
                f"s_add_u32 s71, s71, 65536"]
    def trr(F, off):
        out = []
        for ct, va in ((0, VA0), (1, VA1)):
            for rd in range(2):
                out.append(f"ds_read_b64_tr_b16 {vr(F+4*ct+2*rd,2)}, v{va} offset:{off + rd*1024}")
        return out
    N2 = OPT.get("n2", 0)
    a.I("s_cmp_eq_u32 s67, 3")
    a.I(f"s_cselect_b32 s72, {5-N2}, {8-N2}")
    for slot in range(3):
        a.I(J(fissue(slot)))
    a.I(f"s_setprio {OPT.get('ffnprio', 0)}")
    if OPT.get("noffn"): a.I("s_branch L_fskip")
    a.L("L_floop")
    for slot in range(3):
        a.I("s_waitcnt vmcnt(8)")
        a.I(J(trr(WF, slot*2048)))
        a.I("s_waitcnt lgkmcnt(0)")
        fi = fissue(slot)
        mf = lambda ct, rt: MF(ACC2 + (ct*2+rt)*16, WF+4*ct, HR+slot*8+4*rt, ACC2 + (ct*2+rt)*16)
        if OPT.get("fspread", 1):
            a.I(mf(0, 0)); a.I(J(fi[0:3]))
            a.I(mf(1, 0)); a.I(J(fi[3:6]))
            a.I(mf(0, 1)); a.I(fi[6])
            a.I(mf(1, 1)); a.I(J(fi[7:]))
        else:
            for ct in range(2):
                for rt in range(2):
                    a.I(mf(ct, rt))
            a.I(J(fi))
    a.I("s_sub_u32 s72, s72, 1")
    a.I("s_cmp_lg_u32 s72, 0")
    a.I("s_cbranch_scc1 L_floop")
    a.L("L_fskip")
    a.I("s_setprio 3")
    a.I("s_waitcnt vmcnt(0)")
    lds_add1(a, M_FFN, 8, 9)
    stamp(a, "ffn2")
    srd_off(a, RA, S_WS, GO, 8192)
    srd(a, RB, S_B2, 1024)
    a.I("s_and_b32 s73, s67, 1")
    a.I("s_lshr_b32 s74, s67, 1")
    a.I(f"s_lshl_b32 s75, s{S_HD}, 6")
    a.I("s_lshl_b32 s54, s73, 5")
    a.I("s_add_u32 s75, s75, s54")
    a.I("s_lshl_b32 s54, s75, 2")
    a.I("v_and_b32 v8, 31, v1")
    a.I("v_lshlrev_b32 v8, 2, v8")
    a.I(f"buffer_load_dword v39, v8, {S4(RA)}, s54 offen sc1")
    a.I(f"s_lshl_b32 s54, s{S_QB}, 6")
    a.I("s_lshl_b32 s55, s74, 5")
    a.I("s_add_u32 s54, s54, s55")
    a.I("s_lshl_b32 s54, s54, 1")
    a.I("v_lshrrev_b32 v8, 5, v1")
    a.I("v_lshlrev_b32 v8, 3, v8")
    for q in range(4):
        a.I(f"buffer_load_dwordx2 v[{42+2*q}:{43+2*q}], v8, {S4(RB)}, s54 offen offset:{q*16}")
    tr_lane_addr(a, VA0, 1, 32, 33, 4, 128)
    a.I("s_lshl_b32 s54, s74, 6")
    a.I(f"v_xor_b32 v{VA0}, s54, v{VA0}")
    a.I(f"v_add_u32 v{VA0}, {L_K}, v{VA0}")
    a.I("s_lshl_b32 s54, s73, 15")
    a.I(f"s_add_u32 s54, s54, {L_V}")
    a.I(f"v_add_u32 v{VA1}, s54, v{VH}")
    a.I("s_lshl_b32 s58, s75, 10")
    a.I(f"s_lshl_b32 s59, s{S_QB}, 7")
    a.I("s_add_u32 s58, s58, s59")
    a.I("s_lshl_b32 s59, s74, 6")
    a.I("s_add_u32 s58, s58, s59")
    a.I("v_and_b32 v32, 31, v1")
    a.I("v_lshlrev_b32 v32, 10, v32")
    a.I("v_lshrrev_b32 v33, 5, v1")
    a.I("v_lshl_add_u32 v32, v33, 4, v32")
    a.I("s_lshl_b32 s68, s67, 14")
    a.I(f"s_add_u32 s54, s68, {L_V}")
    a.I(f"v_add_u32 v34, s54, v{VH}")
    a.I("s_lshl_b32 s54, s67, 12")
    a.I(f"s_add_u32 s54, s54, {L_V}")
    a.I(f"v_add_u32 v35, s54, v{VH}")
    srd(a, RD, S_WO, 512*1024)
    a.I("s_lshl_b32 s56, s67, 14")
    a.I(f"s_add_u32 s56, s56, {L_K}")
    a.I("s_lshl_b32 s57, s67, 17")
    a.I("s_waitcnt vmcnt(0)")
    a.I("v_sub_f32 v41, 1.0, v39")
    a.I("v_cvt_pk_bf16_f32 v41, v41, v41")
    a.I("v_and_b32 v41, 0xffff0000, v41")
    for q in range(4):
        a.I(f"v_lshlrev_b32 v{BPR+4*q}, 16, v{42+2*q}")
        a.I(f"v_and_b32 v{BPR+4*q+1}, 0xffff0000, v{42+2*q}")
        a.I(f"v_lshlrev_b32 v{BPR+4*q+2}, 16, v{43+2*q}")
        a.I(f"v_and_b32 v{BPR+4*q+3}, 0xffff0000, v{43+2*q}")
    lds_spin(a, M_ATT, 4, 36, 37, OPT.get('attslp', 1))
    stamp(a, "attdone")
    for i in range(16):
        a.I(f"ds_write_b128 v34, {vr(ACC2+4*i,4)} offset:{i*1024}")
    a.I("s_waitcnt lgkmcnt(0)")
    lds_add1(a, M_T1, 36, 37)
    for ks in range(8):
        for n in range(2):
            a.I(f"s_add_u32 m0, s56, {ks*2048+n*1024}")
            a.I(f"s_add_u32 s69, s57, {ks*16384+n*8192}")
            a.I(f"buffer_load_dwordx4 v{VW}, {S4(RD)}, s69 offen lds")
    lds_spin(a, M_T1, 4, 36, 37)
    for p in range(4):
        for q in range(4):
            a.I(f"ds_read_b128 {vr(ACC2+p*16+q*4,4)}, v35 offset:{p*16384+q*1024}")
    a.I("s_waitcnt lgkmcnt(0)")
    for i in range(16):
        a.I(f"v_add_f32 v{ACC2+i}, v{ACC2+i}, v{ACC2+16+i}")
        a.I(f"v_add_f32 v{ACC2+32+i}, v{ACC2+32+i}, v{ACC2+48+i}")
    for i in range(16):
        a.I(f"v_add_f32 v{ACC2+i}, v{ACC2+i}, v{ACC2+32+i}")
    for i in range(16):
        a.I(f"v_add_f32 v{BPR+i}, v{ACC2+i}, v{BPR+i}")
    for i in range(16):
        a.I(f"v_mul_f32 v{BPR+i}, v{BPR+i}, v41")
    FR = 40
    def wreads(ks):
        F = FR + (ks % 8) * 8
        return [f"ds_read_b64_tr_b16 {vr(F,2)}, v{VA0} offset:{ks*2048}",
                f"ds_read_b64_tr_b16 {vr(F+2,2)}, v{VA0} offset:{ks*2048+1024}"]
    def oread(ks):
        F = FR + (ks % 8) * 8
        return [f"ds_read_b128 {vr(F+4,4)}, v{VA1} offset:{ks*1024}"]
    srd_off(a, RB, S_WS, OF, 2*MB)
    srd(a, RA, S_OUT, 2*MB)
    a.I("s_cmp_lg_u32 s67, 0")
    a.I("s_cbranch_scc1 L_f4")
    a.I(f"s_lshl_b32 s54, s{S_HD}, 8")
    a.I(f"s_add_u32 s54, s54, {FO_OFF}")
    a.I("v_lshlrev_b32 v121, 2, v1")
    poll(a, RC, 64, 121, 122, "s54", OPT.get("foslp", 2))
    a.L("L_f4")
    a.I(f"s_lshl_b32 s54, s{S_HD}, 16")
    a.I("s_lshl_b32 s55, s67, 11")
    a.I("s_add_u32 s54, s54, s55")
    a.I(f"s_add_u32 s55, s55, {L_V}")
    a.I("s_waitcnt vmcnt(0)")
    a.I("s_barrier")
    stamp(a, "T2")
    def odma(ch):
        L = []
        for hh in range(2):
            for rt in range(2):
                off = rt*32768 + ch*8192 + hh*1024
                L.append([f"s_add_u32 m0, s55, {off}", f"s_add_u32 s56, s54, {off}",
                          f"buffer_load_dwordx4 v{VH}, {S4(RB)}, s56 offen sc1 lds"])
        return L
    for ch in range(4):
        for x in odma(ch): a.I(J(x))
        if ch == 0:
            for ks in range(8): a.I(J(wreads(ks)))
            a.I("s_waitcnt lgkmcnt(8)")
    for ch in range(4):
        a.I(f"s_waitcnt vmcnt({4*(3-ch)}) lgkmcnt(0)")
        a.I("s_barrier")
        for ks in range(8*ch, 8*ch+8): a.I(J(oread(ks)))
        for i in range(8):
            ks = 8*ch + i
            a.I(f"s_waitcnt lgkmcnt({7 + i if ch < 3 else 7 - i})")
            F = FR + i*8
            a.I(MF(ACC2, F, F+4, ACC2 if ks else None))
            if ch < 3: a.I(J(wreads(ks+8)))
    a.I("s_nop 15")
    stamp(a, "p3mm")
    for i in range(16):
        a.I(f"v_fma_f32 v{ACC2+i}, v{ACC2+i}, v39, v{BPR+i}")
    for j in range(8):
        a.I(f"v_cvt_pk_bf16_f32 v{ACC2+j}, v{ACC2+2*j}, v{ACC2+2*j+1}")
    a.I("s_nop 1")
    a.I(f"v_permlane32_swap_b32 v{ACC2}, v{ACC2+2}")
    a.I(f"v_permlane32_swap_b32 v{ACC2+1}, v{ACC2+3}")
    a.I(f"v_permlane32_swap_b32 v{ACC2+4}, v{ACC2+6}")
    a.I(f"v_permlane32_swap_b32 v{ACC2+5}, v{ACC2+7}")
    ofl = {0: "", 1: " sc1", 2: " nt", 3: " sc0 sc1"}[OPT.get("outfl", 0)]
    a.I(f"buffer_store_dwordx4 {vr(ACC2,4)}, v32, {S4(RA)}, s58 offen{ofl}")
    a.I(f"buffer_store_dwordx4 {vr(ACC2+4,4)}, v32, {S4(RA)}, s58 offen offset:32{ofl}")
    stamp_flush(a, "ffn")
    a.I("s_endpgm")

def attention(a):
    a.L("L_attn")
    stamp(a, "attn0")
    QA, QB = 8, 12
    KB = [16, 20]; VB = [24, 32]
    S0, S1, OA, OB = 40, 56, 72, 88
    VK, VV, VL = 2, 3, 4
    T0, T1, T2 = 104, 105, 106
    VKN, VVN, VVB, VCH, VONE, VNX = 107, 108, 109, 110, 111, 5
    VX128, VX32, VPAIR, VPFLAG, VTF = 144, 145, 146, 147, 148
    a.I(f"s_and_b32 s63, s{S_W}, 3")
    a.I(f"s_lshr_b32 s64, s{S_W}, 2")
    a.I(f"v_lshlrev_b32 v{VL}, 4, v1")
    a.I(f"v_lshrrev_b32 v{T0}, 5, v1")
    a.I(f"v_and_b32 v{T1}, 15, v1")
    a.I(f"v_lshlrev_b32 v{T1}, 4, v{T1}")
    a.I(f"v_lshl_add_u32 v{VVB}, v{T0}, 8, v{T1}")
    a.I(f"v_add_u32 v{VVB}, {L_V}, v{VVB}")
    a.I(f"v_add_u32 v{VKN}, {L_K}, v{VL}")
    a.I("s_lshl_b32 s54, s64, 12")
    a.I(f"v_add_u32 v{VK}, s54, v{VL}")
    a.I(f"v_add_u32 v{VV}, s54, v{VVB}")
    a.I("s_lshl_b32 s54, s63, 2")
    a.I(f"s_add_u32 s54, s54, {M_CH}")
    a.I(f"v_mov_b32 v{VCH}, s54")
    a.I(f"v_mov_b32 v{VONE}, 1")
    a.I("s_mov_b32 s74, 0x0000ffff")
    a.I("s_mov_b32 s75, 0x0000ffff")
    a.I("s_mov_b32 s77, 0")
    a.I(f"s_lshl_b32 s66, s{S_QB}, 3")
    a.I("s_lshl_b32 s54, s63, 1")
    a.I("s_add_u32 s66, s66, s54")
    a.I("s_lshl_b32 s54, s63, 11")
    a.I(f"s_add_u32 s54, s54, {L_RING}")
    a.I(f"v_add_u32 v{T2}, s54, v{VL}")
    a.I(f"v_and_b32 v{T0}, 31, v1")
    a.I(f"v_cmp_eq_u32 vcc, 16, v{T0}")
    a.I(f"v_mov_b32 v{T1}, 0x3f803f80")
    a.I("s_nop 1")
    a.I(f"v_cndmask_b32 v{T0}, 0, v{T1}, vcc")
    for i in range(16):
        a.I(f"v_mov_b32 v{VB[0]+i}, v{T0}")
    a.I("s_lshl_b32 s54, s63, 2")
    a.I(f"s_add_u32 s55, s54, {M_PAIR}")
    a.I(f"s_add_u32 s76, s54, {M_PFLAG}")
    a.I(f"v_mov_b32 v{VPAIR}, s55")
    a.I(f"v_mov_b32 v{VPFLAG}, s76")
    a.I("s_mul_i32 s54, s63, 4608")
    a.I(f"s_add_u32 s54, s54, {L_XCH}")
    a.I(f"v_add_u32 v{VX128}, s54, v{VL}")
    a.I(f"v_lshlrev_b32 v{VX32}, 2, v1")
    a.I(f"v_add_u32 v{VX32}, s54, v{VX32}")
    a.I(f"v_mov_b32 v{VTF}, {L_MISC + 128}")
    a.I(f"ds_read_b32 v{VTF}, v{VTF}")
    a.I("s_waitcnt lgkmcnt(0)")
    a.I(f"v_readfirstlane_b32 s{S_NONCE}, v{VTF}")
    for i in range(16):
        a.I(f"v_mov_b32 v{OA+i}, 0")
        a.I(f"v_mov_b32 v{OB+i}, 0")
    lds_spin(a, M_KV, 4, T0, T1, 0)
    stamp(a, "kvok")
    a.I(f"ds_read_b128 {vr(QA,4)}, v{T2}")
    a.I(f"ds_read_b128 {vr(QB,4)}, v{T2} offset:1024")
    a.I("s_lshl_b32 s71, s64, 12")
    if STAMPS and OPT.get("fineattn"): a.I("s_mov_b32 s87, 24")
    a.I("s_mov_b32 s73, 0")

    def e_(S, i): return f"v_exp_f32 v{S+i}, v{S+i}"
    def c_(S, j): return f"v_cvt_pk_bf16_f32 v{S+j}, v{S+2*j}, v{S+2*j+1}"
    def tile(Sin, Sout, Qn, Kn, Ocur, Vcur_u0, Oprev, Vprev_u1, after_pv2, wait_s, after_s, wait_pv1, do_pv2=True, do_s=True):
        e = lambda i: e_(Sin, i)
        c = lambda j: c_(Sin, j)
        L = [e(0), e(1)]
        if do_pv2: L.append(MF(Oprev, Vprev_u1, Sout+4, Oprev))
        L += after_pv2
        L += [e(2), e(3), c(0), e(4), e(5), c(1)]
        L += wait_s
        if do_s: L.append(MF(Sout, Kn, Qn))
        L += after_s
        L += [e(6), e(7), c(2), e(8), e(9), c(3), e(10), e(11)]
        L += wait_pv1
        L.append(MF(Ocur, Vcur_u0, Sin, Ocur))
        L += [c(4), e(12), e(13), c(5), e(14), e(15), c(6), c(7)]
        return L
    fifo = []
    def dsr(tag, txt): fifo.append(tag); return txt
    def need(tag):
        idx = max(i for i, t in enumerate(fifo) if t == tag)
        return [f"s_waitcnt lgkmcnt({len(fifo) - 1 - idx})"]
    def vreads(t):
        kap = t & 1
        return ["s_mov_b64 exec, s[74:75]",
                dsr(("V", t), f"ds_read_b128 {vr(VB[kap],4)}, v{VV} offset:{t*1024}"),
                dsr(("V", t), f"ds_read_b128 {vr(VB[kap]+4,4)}, v{VV} offset:{t*1024+512}"),
                "s_mov_b64 exec, -1"]
    def kread(t): return [dsr(("K", t), f"ds_read_b128 {vr(KB[t & 1],4)}, v{VK} offset:{t*1024}")]
    a.raw(".p2align 6")
    a.L("L_aloop")
    if OPT.get("fineattn"):
        OPT["fine"] = 1; stamp_dyn(a); OPT["fine"] = 0
    a.I(f"v_add_u32 v{VK}, s71, v{VKN}")
    a.I(f"v_add_u32 v{VV}, s71, v{VVB}")
    L = kread(0) + vreads(0) + kread(1)
    L += need(("K", 0))
    L.append(MF(S0, KB[0], QA))
    a.I(J(L))
    a.I("s_nop 7")
    a.I("s_nop 3")
    body = []
    for t in range(4):
        kap = t & 1
        A = []
        Sin, Sout = S0, S1
        A += [e_(Sin, 0), e_(Sin, 1)]
        if t > 0: A.append(MF(OB, VB[kap^1]+4, Sout+4, OB))
        if t + 1 < 4: A += vreads(t+1)
        A += [e_(Sin, 2), e_(Sin, 3), c_(Sin, 0), e_(Sin, 4), e_(Sin, 5), c_(Sin, 1)]
        A.append(MF(Sout, KB[kap], QB))
        if t + 2 < 4: A += kread(t+2)
        A += [e_(Sin, 6), e_(Sin, 7), c_(Sin, 2), e_(Sin, 8), e_(Sin, 9), c_(Sin, 3), e_(Sin, 10), e_(Sin, 11)]
        A += need(("V", t))
        A.append(MF(OA, VB[kap], Sin, OA))
        A += [c_(Sin, 4), e_(Sin, 12), e_(Sin, 13), c_(Sin, 5), e_(Sin, 14), e_(Sin, 15), c_(Sin, 6), c_(Sin, 7)]
        Sin, Sout = S1, S0
        B = [e_(Sin, 0), e_(Sin, 1), MF(OA, VB[kap]+4, Sout+4, OA)]
        if t == 3:
            B += ["s_mov_b64 exec, 1", dsr(("G",), f"ds_add_rtn_u32 v{VNX}, v{VCH}, v{VONE}"), "s_mov_b64 exec, -1"]
        B += [e_(Sin, 2), e_(Sin, 3), c_(Sin, 0), e_(Sin, 4), e_(Sin, 5), c_(Sin, 1)]
        if t + 1 < 4:
            B += need(("K", t+1))
            B.append(MF(Sout, KB[kap^1], QA))
        B += [e_(Sin, 6), e_(Sin, 7), c_(Sin, 2), e_(Sin, 8), e_(Sin, 9), c_(Sin, 3), e_(Sin, 10), e_(Sin, 11)]
        B.append(MF(OB, VB[kap], Sin, OB))
        B += [c_(Sin, 4), e_(Sin, 12), e_(Sin, 13), c_(Sin, 5), e_(Sin, 14), e_(Sin, 15), c_(Sin, 6), c_(Sin, 7)]
        body += A + B
    a.I(J(body))
    a.I("s_waitcnt lgkmcnt(0)")
    a.I(f"v_readfirstlane_b32 s70, v{VNX}")
    a.I(MF(OB, VB[1]+4, S1+4, OB))
    a.I("s_add_u32 s70, s70, 2")
    a.I("s_lshl_b32 s71, s70, 12")
    if OPT.get("hdefer", 1):
        a.I("s_cmp_ge_u32 s73, 2")
        a.I("s_cbranch_scc1 L_aloop2")
        a.I("s_cmp_eq_u32 s73, 1")
        a.I("s_cbranch_scc1 L_aloop3")
        a.I("s_mov_b32 s73, 1")
        lds_add1(a, M_QRD, T0, T1)
        a.I(f"s_cmp_ge_u32 s{S_W}, 4")
        a.I("s_cbranch_scc1 L_aloop1")
        for s_ in range(3):
            for uu in range(2):
                a.I(f"s_add_u32 s55, s83, {(4*s_+uu)*65536}")
                a.I(f"buffer_store_dwordx4 {vr(120+8*s_+4*uu,4)}, v{VL}, {S4(RA)}, s55 offen sc1")
        a.L("L_aloop1")
        lds_spin(a, M_KV, 8, T0, T1)
        a.I("s_branch L_aloop4")
        a.L("L_aloop3")
        a.I("s_mov_b32 s73, 2")
        a.I(f"s_cmp_ge_u32 s{S_W}, 4")
        a.I("s_cbranch_scc1 L_aloop2")
        a.I("s_waitcnt vmcnt(0)")
        lds_add1(a, M_HST, T0, T1)
        a.I("s_branch L_aloop2")
        a.L("L_aloop4")
        a.I("s_cmp_lt_u32 s70, 16")
        a.I("s_cbranch_scc1 L_aloop")
        a.I("s_branch L_aloop3")
    else:
        a.I("s_cmp_lg_u32 s73, 0")
        a.I("s_cbranch_scc1 L_aloop2")
        a.I("s_mov_b32 s73, 1")
        lds_add1(a, M_QRD, T0, T1)
        a.I("s_waitcnt vmcnt(0)")
        a.I(f"s_cmp_ge_u32 s{S_W}, 4")
        a.I("s_cbranch_scc1 L_aloop1")
        lds_add1(a, M_HST, T0, T1)
        a.L("L_aloop1")
        lds_spin(a, M_KV, 8, T0, T1)
    a.L("L_aloop2")
    a.I("s_cmp_lt_u32 s70, 16")
    a.I("s_cbranch_scc1 L_aloop")
    a.I("s_waitcnt lgkmcnt(0)")
    a.I("s_nop 7")
    stamp(a, "aloop")
    def preads():
        return [f"ds_read_b128 {vr(S1,4)}, v{VX128}", f"ds_read_b128 {vr(S1+4,4)}, v{VX128} offset:1024",
                f"ds_read_b128 {vr(S1+8,4)}, v{VX128} offset:2048", f"ds_read_b128 {vr(S1+12,4)}, v{VX128} offset:3072",
                f"ds_read_b32 v{T0}, v{VX32} offset:4096", f"ds_read_b32 v{T1}, v{VX32} offset:4352"]
    a.I("s_mov_b64 exec, 1")
    a.I(f"ds_add_rtn_u32 v{T2}, v{VPAIR}, v{VONE}")
    a.I("s_mov_b64 exec, -1")
    a.I(f"ds_read_b32 v{VTF}, v{VPFLAG}")
    a.I(J(preads()))
    a.I("s_waitcnt lgkmcnt(0)")
    a.I(f"v_readfirstlane_b32 s55, v{T2}")
    a.I(f"v_readfirstlane_b32 s56, v{VTF}")
    a.I("s_nop 3")
    a.I("s_cmp_lg_u32 s55, 0")
    a.I("s_cbranch_scc1 L_second")
    lds_spin(a, M_FFN, 4, T0, T1)
    a.I(f"ds_write_b128 v{VX128}, {vr(OA,4)}")
    a.I(f"ds_write_b128 v{VX128}, {vr(OA+4,4)} offset:1024")
    a.I(f"ds_write_b128 v{VX128}, {vr(OB,4)} offset:2048")
    a.I(f"ds_write_b128 v{VX128}, {vr(OB+4,4)} offset:3072")
    a.I(f"ds_write_b32 v{VX32}, v{OA+8} offset:4096")
    a.I(f"ds_write_b32 v{VX32}, v{OB+8} offset:4352")
    a.I("s_waitcnt lgkmcnt(0)")
    lds_add1(a, "s76", T0, T1)
    a.I("s_waitcnt lgkmcnt(0)")
    stamp_flush(a, "attn")
    a.I("s_endpgm")
    a.L("L_second")
    a.I("s_cmp_lg_u32 s56, 0")
    a.I("s_cbranch_scc1 L_second2")
    lds_spin(a, "s76", 1, T0, T1)
    a.I(J(preads()))
    a.I("s_waitcnt lgkmcnt(0)")
    a.L("L_second2")
    for i in range(8):
        a.I(f"v_add_f32 v{OA+i}, v{OA+i}, v{S1+i}")
        a.I(f"v_add_f32 v{OB+i}, v{OB+i}, v{S1+8+i}")
    a.I(f"v_add_f32 v{OA+8}, v{OA+8}, v{T0}")
    a.I(f"v_add_f32 v{OB+8}, v{OB+8}, v{T1}")
    a.L("L_fin")
    for O in (OA, OB):
        a.I(f"v_mov_b32 v{O+9}, v{O+8}")
    a.I("s_nop 1")
    for O in (OA, OB):
        a.I(f"v_permlane32_swap_b32 v{O+9}, v{O+8}")
    a.I("s_nop 1")
    for O in (OA, OB):
        a.I(f"v_rcp_f32 v{O+10}, v{O+9}")
    srd_off(a, RA, S_WS, OF, 2*MB)
    a.I("s_lshl_b32 s54, s66, 5")
    a.I(f"s_add_u32 s54, s54, s{S_HD}")
    a.I("s_lshl_b32 s55, s54, 10")
    for n_, O in enumerate((OA, OB)):
        for i in range(8):
            a.I(f"v_mul_f32 v{S0+8*n_+i}, v{O+i}, v{O+10}")
        for j in range(4):
            a.I(f"v_cvt_pk_bf16_f32 v{S1+4*n_+j}, v{S0+8*n_+2*j}, v{S0+8*n_+2*j+1}")
        a.I(f"buffer_store_dwordx4 {vr(S1+4*n_,4)}, v{VL}, {S4(RA)}, s55 offen sc1")
        if n_ == 0: a.I("s_add_u32 s55, s55, 32768")
    srd_off(a, RC, S_WS, FLG, FLG_SIZE)
    slow_check(a, OA, OB, T0, T1)
    lds_add1(a, M_ATT, T0, T1)
    a.I("s_lshl_b32 s54, s54, 2")
    a.I(f"s_add_u32 s54, s54, {FO_OFF}")
    a.I(f"v_mov_b32 v{T0}, s{S_NONCE}")
    a.I(f"v_lshlrev_b32 v{T1}, 7, v1")
    a.I("s_waitcnt vmcnt(0)")
    a.I("s_mov_b64 exec, 3")
    a.I(f"buffer_store_dword v{T0}, v{T1}, {S4(RC)}, s54 offen sc1")
    a.I("s_mov_b64 exec, -1")
    stamp_flush(a, "attn")
    a.I("s_endpgm")
    slow_path(a, QA, QB, KB, VB, S0, S1, OA, OB, VL, T0, T1, T2)

def slow_check(a, OA, OB, T0, T1):
    if OPT.get("noslow"): return
    a.I(f"v_mul_f32 v{T0}, 0, v{OA}")
    for i in range(1, 8):
        a.I(f"v_fma_f32 v{T0}, v{OA+i}, 0, v{T0}")
    for i in range(8):
        a.I(f"v_fma_f32 v{T0}, v{OB+i}, 0, v{T0}")
    a.I(f"v_cmp_eq_f32 s[78:79], 0, v{T0}")
    a.I(f"s_mov_b32 s80, {hex(f2u(2.0**-60))}")
    a.I(f"s_mov_b32 s81, {hex(f2u(2.0**60))}")
    for O in (OA, OB):
        a.I(f"v_cmp_le_f32 s[82:83], s80, v{O+9}")
        a.I(f"v_cmp_ge_f32 vcc, s81, v{O+9}")
        a.I("s_nop 1")
        a.I("s_and_b64 s[78:79], s[78:79], s[82:83]")
        a.I("s_and_b64 s[78:79], s[78:79], vcc")
    if OPT.get("forceslow"):
        a.I("s_mov_b64 s[78:79], 0")
    a.I("s_cmp_eq_u64 s[78:79], -1")
    a.I("s_cbranch_scc1 L_ok")
    a.I("s_cmp_eq_u32 s77, 0")
    a.I("s_cbranch_scc1 L_slow")
    a.L("L_ok")

def slow_path(a, QA, QB, KB, VB, S0, S1, OA, OB, VL, T0, T1, T2):
    if OPT.get("noslow"): return
    K, V0, M, C = KB[0], VB[0], 108, 112
    a.L("L_slow")
    a.I("s_waitcnt vmcnt(0)")
    a.I("s_mov_b32 s77, 1")
    a.I(f"v_lshrrev_b32 v{T0}, 5, v1")
    a.I(f"v_and_b32 v{T1}, 15, v1")
    a.I(f"v_lshlrev_b32 v{T1}, 4, v{T1}")
    a.I(f"v_lshl_add_u32 v{T2}, v{T0}, 8, v{T1}")
    a.I(f"v_add_u32 v{T2}, {L_V}, v{T2}")
    a.I(f"v_mov_b32 v{M}, 0xff800000")
    a.I(f"v_mov_b32 v{M+1}, 0xff800000")
    a.I(f"v_add_u32 v{T0}, {L_K}, v{VL}")
    a.I("s_mov_b32 s73, 0")
    a.L("L_slow1")
    a.I(f"ds_read_b128 {vr(K,4)}, v{T0}")
    a.I("s_waitcnt lgkmcnt(0)")
    a.I(MF(S0, K, QA))
    a.I(MF(S1, K, QB))
    a.I("s_nop 15")
    for S, m in ((S0, M), (S1, M+1)):
        for i in range(0, 16, 2):
            a.I(f"v_max3_f32 v{m}, v{S+i}, v{S+i+1}, v{m}")
    a.I(f"v_add_u32 v{T0}, 1024, v{T0}")
    a.I("s_add_u32 s73, s73, 1")
    a.I("s_cmp_lt_u32 s73, 64")
    a.I("s_cbranch_scc1 L_slow1")
    for m in (M, M+1):
        a.I(f"v_mov_b32 v{T1}, v{m}")
        a.I("s_nop 1")
        a.I(f"v_permlane32_swap_b32 v{T1}, v{m}")
        a.I("s_nop 1")
        a.I(f"v_max_f32 v{m}, v{m}, v{T1}")
    for t in range(2):
        for i in range(16):
            a.I(f"v_sub_f32 v{C+16*t+i}, 0, v{M+t}")
    for i in range(16):
        a.I(f"v_mov_b32 v{OA+i}, 0")
        a.I(f"v_mov_b32 v{OB+i}, 0")
    a.I(f"v_add_u32 v{T0}, {L_K}, v{VL}")
    a.I("s_mov_b32 s73, 0")
    a.L("L_slow2")
    a.I(f"ds_read_b128 {vr(K,4)}, v{T0}")
    a.I("s_mov_b64 exec, s[74:75]")
    a.I(f"ds_read_b128 {vr(V0,4)}, v{T2}")
    a.I(f"ds_read_b128 {vr(V0+4,4)}, v{T2} offset:512")
    a.I("s_mov_b64 exec, -1")
    a.I("s_waitcnt lgkmcnt(0)")
    a.I(MF(S0, K, QA, C))
    a.I(MF(S1, K, QB, C+16))
    a.I("s_nop 15")
    for S, O in ((S0, OA), (S1, OB)):
        for i in range(16):
            a.I(f"v_exp_f32 v{S+i}, v{S+i}")
        a.I("s_nop 0")
        for j in range(8):
            a.I(f"v_cvt_pk_bf16_f32 v{S+j}, v{S+2*j}, v{S+2*j+1}")
        a.I("s_nop 1")
        a.I(MF(O, V0, S, O))
        a.I(MF(O, V0+4, S+4, O))
    a.I(f"v_add_u32 v{T0}, 1024, v{T0}")
    a.I(f"v_add_u32 v{T2}, 1024, v{T2}")
    a.I("s_add_u32 s73, s73, 1")
    a.I("s_cmp_lt_u32 s73, 64")
    a.I("s_cbranch_scc1 L_slow2")
    a.I("s_nop 15")
    a.I("s_branch L_fin")

def gen():
    a = Asm()
    prologue(a)
    producer(a, False)
    consumer(a)
    a.L("L_aux")
    producer(a, True)
    ffn2_p3(a)
    attention(a)
    a.L("L_end")
    a.I("s_endpgm")
    a.L("L_code_end")
    a.I("s_endpgm")
    return a

HEADER = open("cdna_kernels/" + NAME + ".s.ref").read().split("; Override launch")[0]

DOC = """;
;  P1  waves 4-11 stream x / wqkv / w1 tiles into LDS (LDS-DMA), waves 0-3 run the MFMA GEMMs:
;      row maximum (L_slow).  Waves 8-11: ffn = h @ w2 for a 64 x 64 output tile (split over k, reduced through LDS).
;  P3  waves 8-11: out = g * (o @ wo) + (1 - g) * (ffn + b2).
"""

def build(path):
    a = gen()
    out = HEADER + f"; WSLAYOUT QF={QF} KF={KF} VF={VF} HF={HF} GO={GO} OF={OF}\n"
    out += f"; @launch grid=(256,1,1) block=(768,1,1) lds={LDS_TOTAL}\n"
    out += DOC
    out += '.amdgcn_target "amdgcn-amd-amdhsa--gfx950"\n.text\n' + a.text()
    out += f""".section .rodata,"a"
.p2align 6
.amdhsa_kernel {KN}
  .amdhsa_next_free_vgpr 168
  .amdhsa_next_free_sgpr 102
  .amdhsa_accum_offset 168
  .amdhsa_group_segment_fixed_size 0
  .amdhsa_kernarg_size 96
  .amdhsa_user_sgpr_count 2
  .amdhsa_user_sgpr_kernarg_segment_ptr 1
  .amdhsa_system_sgpr_workgroup_id_x 1
.end_amdhsa_kernel
"""
    open(path, "w").write(out)
    probs = check_linear(a.lines, "k")
    if STAMPS: print("stamps:", ",".join(_stamp_names))
    return probs

if __name__ == "__main__":
    for x in list(sys.argv[1:]):
        if x.startswith("-D"):
            k, _, v = x[2:].partition("=")
            OPT[k] = int(v) if v else 1
            sys.argv.remove(x)
    if "--stamps" in sys.argv:
        STAMPS = True; sys.argv.remove("--stamps")
    path = sys.argv[1] if len(sys.argv) > 1 else "cdna_kernels/" + NAME + ".s"
    probs = build(path)
    for p in probs: print("HAZARD:", p)
    print("written", path, "problems:", len(probs))
```
